```python
import torch

def _softmax(x, axis=-1):
    return torch.softmax(x, dim=axis)
def _gelu(x):
    return torch.nn.functional.gelu(x, approximate="tanh")
def _silu(x):
    return torch.nn.functional.silu(x)
def _sigmoid(x):
    return torch.sigmoid(x)
def _layernorm(x, axis=-1, eps=1e-5):
    m = x.mean(dim=axis, keepdim=True)
    v = x.var(dim=axis, keepdim=True, unbiased=False)
    return (x - m) / torch.sqrt(v + eps)
def _scatter_add(tgt, idx, src, axis=0):
    return tgt.clone().index_add_(axis, idx, src)
def _segment_sum(src, seg, n):
    out = torch.zeros((n,) + src.shape[1:], dtype=src.dtype)
    return out.index_add_(0, seg, src)
def _pad(x, pw):
    flat = tuple(v for pair in reversed(pw) for v in pair)
    return torch.nn.functional.pad(x, flat)

kernel_name = 'sequential_preLN__spectral_fnet__dense_activation_squared_relu__prompt'

def setup_inputs():

    _w = (lambda a: (lambda t: t.to(torch.bfloat16) if t.is_floating_point() else t)(torch.as_tensor(a)))
    def _A_setup():
        B, S, D = 1, 2048, 512
        ns = torch.arange(S)[:, None] * torch.arange(S)[None, :]
        nd = torch.arange(D)[:, None] * torch.arange(D)[None, :]
        Ws_re = torch.cos(-2.0 * torch.pi * ns / S).to(float)
        Ws_im = torch.sin(-2.0 * torch.pi * ns / S).to(float)
        Wd_re = torch.cos(-2.0 * torch.pi * nd / D).to(float)
        Wd_im = torch.sin(-2.0 * torch.pi * nd / D).to(float)
        return {
            "x": _w((lambda *s: torch.randn(*s, dtype=torch.bfloat16) * 0.05)(B, S, D)),
            "dft_seq_re": _w(Ws_re),
            "dft_seq_im": _w(Ws_im),
            "dft_hid_re": _w(Wd_re),
            "dft_hid_im": _w(Wd_im),
        }
    _A_in = _A_setup()

    def _B_setup():
        B, S, D, F = 1, 2048, 512, 1792
        return {
            "x": _w((lambda *s: torch.randn(*s, dtype=torch.bfloat16) * 0.05)(B, S, D)),
            "w1": _w((lambda *s: torch.randn(*s, dtype=torch.bfloat16) * 0.2)(D, F)),
            "b1": _w((lambda *s: torch.randn(*s, dtype=torch.bfloat16) * 0.2)(F)),
            "w2": _w((lambda *s: torch.randn(*s, dtype=torch.bfloat16) * 0.2)(F, D)),
            "b2": _w((lambda *s: torch.randn(*s, dtype=torch.bfloat16) * 0.2)(D)),
        }
    _B_in = _B_setup()

    return {
        "A_x": _A_in["x"],
        "A_dft_seq_re": _A_in["dft_seq_re"],
        "A_dft_seq_im": _A_in["dft_seq_im"],
        "A_dft_hid_re": _A_in["dft_hid_re"],
        "A_dft_hid_im": _A_in["dft_hid_im"],
        "B_x": _B_in["x"],
        "B_w1": _B_in["w1"],
        "B_b1": _B_in["b1"],
        "B_w2": _B_in["w2"],
        "B_b2": _B_in["b2"],
    }

def reference(A_x, A_dft_seq_re, A_dft_seq_im, A_dft_hid_re, A_dft_hid_im, B_x, B_w1, B_b1, B_w2, B_b2):
    def _A_ref(x, dft_seq_re, dft_seq_im, dft_hid_re, dft_hid_im):
        a = torch.einsum("bsd,ed->bse", x, dft_hid_re)
        b = torch.einsum("bsd,ed->bse", x, dft_hid_im)
        y = torch.einsum("ts,bse->bte", dft_seq_re, a) - torch.einsum("ts,bse->bte", dft_seq_im, b)
        return y

    def _B_ref(x, w1, b1, w2, b2):
        h = torch.einsum("bsd,df->bsf", x, w1) + b1
        zero = torch.zeros_like(h)
        r = torch.where(h > zero, h, zero)
        h = r * r
        out = torch.einsum("bsf,fd->bsd", h, w2) + b2
        return out

    x = A_x
    h = x + _A_ref(_layernorm(x, axis=-1), A_dft_seq_re, A_dft_seq_im, A_dft_hid_re, A_dft_hid_im)
    h2 = h + _B_ref(_layernorm(h, axis=-1), B_w1, B_b1, B_w2, B_b2)
    return h2
```

```python
import re

TRANS = ('v_exp_f32','v_log_f32','v_rcp_f32','v_rsq_f32','v_sqrt_f32','v_sin_f32','v_cos_f32','v_rcp_iflag_f32')

def _regs(tok):
    tok = tok.strip()
    tok = tok.lstrip('-')
    if tok.startswith('|') and tok.endswith('|'): tok = tok[1:-1]
    if tok.startswith('abs(') and tok.endswith(')'): tok = tok[4:-1]
    m = re.fullmatch(r'([vas])(\d+)', tok)
    if m: return [(m.group(1), int(m.group(2)))]
    m = re.fullmatch(r'([vas])\[(\d+):(\d+)\]', tok)
    if m: return [(m.group(1), i) for i in range(int(m.group(2)), int(m.group(3)) + 1)]
    if tok in ('vcc',): return [('s', 106), ('s', 107)]
    if tok == 'vcc_lo': return [('s', 106)]
    if tok == 'vcc_hi': return [('s', 107)]
    if tok == 'exec': return [('s', 126), ('s', 127)]
    if tok == 'm0': return [('s', 124)]
    return []

class Ins:
    def __init__(self, text):
        self.text = text
        t = text.split(';')[0].strip()
        parts = t.split(None, 1)
        self.op = parts[0]
        rest = parts[1] if len(parts) > 1 else ''
        ops = []; depth = 0; cur = ''
        for ch in rest:
            if ch in '[(': depth += 1
            if ch in '])': depth -= 1
            if ch == ',' and depth == 0:
                ops.append(cur.strip()); cur = ''
            else: cur += ch
        if cur.strip(): ops.append(cur.strip())
        self.mods = ''
        if ops:
            l = ops[-1].split(None, 1)
            ops[-1] = l[0]
            if len(l) > 1: self.mods = l[1]
        self.ops = ops
        op = self.op
        self.is_mfma = op.startswith('v_mfma')
        self.is_valu = op.startswith('v_') and not self.is_mfma
        self.is_salu = op.startswith('s_') and not op.startswith(('s_load', 's_buffer_load', 's_memtime', 's_memrealtime', 's_waitcnt', 's_nop', 's_barrier', 's_branch', 's_cbranch', 's_endpgm', 's_sleep', 's_setprio', 's_atomic'))
        self.is_vmem = op.startswith(('buffer_', 'global_', 'flat_'))
        self.is_ds = op.startswith('ds_')
        self.is_trans = any(op.startswith(x) for x in TRANS)
        self.is_dot = op.startswith('v_dot')
        self.is_dpp = ('_dpp' in op) or ('row_' in self.mods) or ('quad_perm' in self.mods)
        self.is_perml = op.startswith('v_permlane')
        self.is_rdl = op.startswith(('v_readfirstlane', 'v_readlane'))
        self.lds_dma = self.is_vmem and (re.search(r'\blds\b', self.mods) is not None or 'load_lds' in op)
        R = [_regs(o) for o in ops]
        d, u = [], []
        self.srcA = self.srcB = self.srcC = []
        self.wide_store = []
        if self.is_mfma:
            d = R[0]; self.srcA = R[1]; self.srcB = R[2]; self.srcC = R[3]; u = R[1] + R[2] + R[3]
            if '16x16x32' in op or '16x16x16' in op: self.passes = 4; self.xdl = True
            elif '32x32x16' in op or '32x32x8' in op: self.passes = 8; self.xdl = True
            elif '16x16x4_f32' in op: self.passes = 8; self.xdl = False
            elif '32x32x2_f32' in op: self.passes = 16; self.xdl = False
            else: raise ValueError(op)
        elif self.is_valu:
            if op.startswith('v_cmp'):
                d = R[0]; u = sum(R[1:], [])
                if op.startswith('v_cmpx'): d = d + _regs('exec')
            elif (self.is_perml and 'swap' in op) or op.startswith('v_swap'):
                d = R[0] + R[1]; u = R[0] + R[1]
            elif re.match(r'v_(add|sub|subrev)_co_u32', op) or op.startswith('v_mad_u64_u32'):
                d = R[0] + R[1]; u = sum(R[2:], [])
            elif re.match(r'v_(addc|subb)_co_u32', op):
                d = R[0] + R[1]; u = sum(R[2:], [])
            elif op == 'v_nop':
                pass
            else:
                d = R[0]; u = sum(R[1:], [])
                if op.startswith(('v_fmac', 'v_dot2c', 'v_pk_fmac', 'v_writelane')) or self.is_dpp or 'UNUSED_PRESERVE' in self.mods:
                    u = u + R[0]
                if op.startswith('v_cndmask') and len(ops) == 3: u = u + _regs('vcc')
        elif self.is_vmem:
            if self.lds_dma:
                u = sum(R, []) + _regs('m0')
            elif 'load' in op:
                d = R[0]; u = sum(R[1:], [])
                if 'd16' in op: u = u + R[0]
            elif 'store' in op:
                u = sum(R, [])
                if 'x4' in op or 'x3' in op:
                    self.wide_store = R[0] if op.startswith('buffer') else R[1]
            elif 'atomic' in op:
                u = sum(R, [])
                if 'sc0' in self.mods: d = R[0]
            else:
                pass
        elif self.is_ds:
            if op.startswith(('ds_read', 'ds_bpermute', 'ds_permute', 'ds_swizzle')):
                d = R[0]; u = sum(R[1:], [])
            else:
                u = sum(R, [])
        elif op.startswith(('s_load', 's_buffer_load', 's_memtime', 's_memrealtime')):
            d = R[0]; u = sum(R[1:], [])
        elif self.is_salu:
            if op.startswith('s_cmp') or op.startswith('s_bitcmp'):
                u = sum(R, [])
            else:
                d = R[0] if R else []; u = sum(R[1:], [])
                if 'saveexec' in op: d = d + _regs('exec')
        self.defs = set(d); self.uses = set(u)
        self.states = 1
        if op == 's_nop': self.states = int(ops[0], 0) + 1

def need(p, c):
    n = 0
    pv = {r for r in p.defs if r[0] in 'va'}
    ps = {r for r in p.defs if r[0] == 's'}
    if p.is_valu:
        if c.is_mfma and pv & c.uses: n = max(n, 3 if p.is_dot else 2)
        if p.is_trans and c.is_valu and not c.is_trans and pv & c.uses: n = max(n, 1)
        if p.is_trans and c.is_valu and c.is_trans and pv & c.uses: n = max(n, 1)
        if c.is_rdl and pv & c.uses: n = max(n, 1)
        if c.is_perml and pv & c.uses: n = max(n, 2)
        if c.is_dpp and pv & c.uses: n = max(n, 2)
        if ps:
            if c.is_valu and ps & c.uses: n = max(n, 4 if (c.is_rdl or c.op.startswith('v_writelane')) else 2)
            if c.is_vmem and ps & c.uses: n = max(n, 5)
            if ('s', 126) in ps:
                if c.is_mfma or c.is_perml or c.is_rdl: n = max(n, 4)
                if c.is_dpp: n = max(n, 5)
            if c.is_salu and ps & c.uses: n = max(n, 1)
        if p.is_dot and (pv & (c.uses | c.defs)):
            if c.op == p.op:
                srcs = set(sum([_regs(o) for o in c.ops[1:3]], []))
                if pv & srcs: n = max(n, 3)
            else: n = max(n, 3)
        if ('sdwa' in p.op and 'dst_sel:DWORD' not in p.mods) or ('op_sel:' in p.mods and not p.op.startswith('v_pk')):
            if c.is_valu and pv & (c.uses | c.defs): n = max(n, 1)
    if p.is_salu and ('s', 124) in ps and c.lds_dma: n = max(n, 1)
    if p.wide_store and set(p.wide_store) & c.defs:
        n = max(n, 2 if c.is_valu else 1)
    if p.is_mfma:
        P = {2: 0, 4: 1, 8: 2, 16: 3}[p.passes]
        if c.is_mfma:
            if pv & (set(c.srcA) | set(c.srcB)):
                n = max(n, ([5, 8, 12, 20] if p.xdl else [4, 6, 10, 18])[P])
            if pv & set(c.srcC):
                same = (sorted(pv) == sorted(c.srcC)) and c.passes == p.passes and c.xdl == p.xdl
                if same: n = max(n, [2, 0, 0, 0][P])
                elif p.xdl: n = max(n, [4, 6, 10, 18][P])
                elif c.xdl: n = max(n, 0)
                else: n = max(n, [2, 4, 8, 16][P])
            elif pv & c.defs:
                n = max(n, [4, 6, 10, 18][P])
        else:
            if pv & (c.uses | c.defs) and (c.is_valu or c.is_vmem or c.is_ds):
                n = max(n, ([5, 8, 12, 20] if p.xdl else [4, 6, 10, 18])[P])
            if p.xdl and c.is_valu and set(p.srcC) & c.defs:
                n = max(n, [1, 3, 7, 15][P])
    return n

class Asm:
    def __init__(self):
        self.lines = []
        self.hist = []
        self.nops = 0
        self.uid = 0
    def raw(self, s):
        self.lines.append(s)
    def label(self, name):
        self.lines.append(name + ':')
    def newlabel(self, base):
        self.uid += 1
        return f'L_{base}_{self.uid}'
    def comment(self, s):
        self.lines.append('    ; ' + s)
    def __call__(self, text):
        for t in text.strip().split('\n'):
            t = t.strip()
            if not t or t.startswith(';'): continue
            if t.endswith(':'): self.label(t[:-1]); continue
            self.i(t)
    def i(self, text):
        c = Ins(text)
        dist = 0; req = 0
        for p in reversed(self.hist):
            n = need(p, c)
            if n - dist > req: req = n - dist
            dist += p.states
            if dist >= 20: break
        while req > 0:
            k = min(req, 16)
            nop = Ins(f's_nop {k-1}')
            self.lines.append(f'    s_nop {k-1}'); self.hist.append(nop); self.nops += 1
            req -= k
        self.lines.append('    ' + text); self.hist.append(c)
        if len(self.hist) > 64: self.hist = self.hist[-40:]
    def quiesce(self, n=20):
        while n > 0:
            k = min(n, 16); self.i(f's_nop {k-1}'); n -= k
    def text(self):
        return '\n'.join(self.lines) + '\n'

def v(i, n=1): return f'v{i}' if n == 1 else f'v[{i}:{i+n-1}]'
def a(i, n=1): return f'a{i}' if n == 1 else f'a[{i}:{i+n-1}]'
def s(i, n=1): return f's{i}' if n == 1 else f's[{i}:{i+n-1}]'
import struct
def f2u(x): return '0x%08x' % struct.unpack('<I', struct.pack('<f', x))[0]
```

```python
import sys
from asmlib import *

KNAME = 'sequential_preLN__spectral_fnet__dense_activation_squared_relu__prompt_kernel'
WS_Z, WS_HN, WS_R, WS_ST, WS_FL, WS_TS = 0, 2 << 20, 4 << 20, 12 << 20, 13 << 20, 14 << 20
WS_SIZE = 16 << 20
F1 = WS_FL
F2 = WS_FL + 0x2000
F3 = WS_FL + 0x4000
FX = WS_FL + 0x6000
FE = WS_FL + 0x7000
WPW = 28672
L_S = 114688
SPW = 12288
L_TAB, L_EXC = L_S, L_S + 32768
S_W = 3
S_T0, S_T1, S_T2, S_T3 = 4, 5, 6, 7
SRD_X, SRD_W1, SRD_W2, SRD_OUT, SRD_WS, SRD_B1, SRD_B2 = 8, 12, 16, 20, 24, 28, 32
S_CNT, S_FAST = 36, 37
S_J, S_N, S_S1, S_Q, S_U2, S_RQ, S_FB, S_RB, S_CB, S_XB = 38, 39, 40, 41, 42, 43, 44, 45, 46, 47
S_U4 = S_S1
S_XO = 48
S_ASO, S_AM0, S_BSO, S_BM0 = 52, 53, 54, 55
SRD_B = 56
S_M = 60
S_TS = 62
S_WB, S_SB = 0, 1
V_LANE, V_L15, V_G, V_L16, V_TAG = 0, 1, 2, 3, 4
V_W2A = 14
V_W1A = 240
V_BIAS = 184
KO = [0, 1, 2, 14, 15, 16,  3, 4, 5, 17, 18, 19,  6, 7, 8, 20, 21, 22,  9, 10, 11, 12, 13, 23, 24, 25, 26, 27]

class TAsm(Asm):
    def __init__(self):
        super().__init__(); self.nvm = 0; self.nlg = 0
    def i(self, text):
        super().i(text)
        c = self.hist[-1]
        if c.is_vmem: self.nvm += 1
        if c.is_ds: self.nlg += 1
    def wait(self, vm=None, lg=None):
        p = []
        if vm is not None: p.append(f'vmcnt({min(63, self.nvm - vm)})')
        if lg is not None: p.append(f'lgkmcnt({min(15, self.nlg - lg)})')
        self('s_waitcnt ' + ' '.join(p))

class Gen:
    def __init__(self, diag=False, opt=None):
        self.A = TAsm(); self.diag = diag; self.nts = 0; self.names = []
        self.opt = opt or {}
        self.skip = {'kernarg', 'Z first'} if not self.opt.get('early') else {'p4 prepoll', 'F3 set'}

    def stamp(self, name, idx=None):
        if self.diag and name not in self.skip:
            if name in self.names: idx = self.names.index(name)
            else:
                idx = len(self.names); self.names.append(name)
            assert idx < 20
            self.A(f's_memrealtime {s(S_TS + 2*idx, 2)}')

    def srd(self, base, nbytes):
        self.A(f's_mov_b32 {s(base+2)}, {nbytes}\ns_mov_b32 {s(base+3)}, 0x20000')

    def poll(self, vaddr, nl, vtmp):
        A = self.A
        L = A.newlabel('poll'); D = A.newlabel('polld')
        if nl < 64: A(f's_mov_b64 exec, {(1<<nl)-1}')
        A(f's_mov_b32 {s(S_CNT)}, 0x20000')
        A.label(L)
        A(f'buffer_load_dwordx2 {v(vtmp,2)}, {v(vaddr)}, {s(SRD_WS,4)}, 0 offen sc1')
        A(f's_sub_u32 {s(S_CNT)}, {s(S_CNT)}, 1')
        A(f's_cbranch_scc1 {D}')
        A('s_waitcnt vmcnt(0)')
        A(f'v_cmp_ne_u64 vcc, {v(vtmp,2)}, {v(V_TAG,2)}')
        A(f's_cbranch_vccnz {L}')
        A.label(D)
        A('s_waitcnt vmcnt(0)')
        if nl < 64: A('s_mov_b64 exec, -1')

    def setflag(self, soff, sc):
        A = self.A
        A('s_mov_b64 exec, 1')
        A(f'buffer_store_dwordx2 {v(V_TAG,2)}, off, {s(SRD_WS,4)}, {s(soff)}{sc}')
        A('s_mov_b64 exec, -1')

    def dual(self, fn):
        A = self.A
        if self.opt.get('nofast'):
            fn(' sc1'); return
        LS = A.newlabel('slow'); LJ = A.newlabel('dj')
        A(f's_cmp_eq_u32 {s(S_FAST)}, 0\ns_cbranch_scc1 {LS}')
        n0, l0 = A.nvm, A.nlg
        fn('')
        A(f's_branch {LJ}')
        A.label(LS)
        A.nvm, A.nlg = n0, l0
        fn(' sc1')
        A.label(LJ)

    def w1_addr_setup(self):
        A = self.A; vdst = V_W1A
        A(f'''
        s_and_b32 {s(S_T0)}, {s(S_W)}, 1
        s_lshl_b32 {s(S_T0)}, {s(S_T0)}, 5
        s_mul_i32 {s(S_T1)}, {s(S_FB)}, 224
        s_mov_b32 {s(S_T2)}, 4682
        s_cmp_ge_u32 {s(S_W)}, 2
        s_cselect_b64 vcc, -1, 0
        s_movk_i32 {s(S_T3)}, 3584
        ''')
        for i in range(7):
            A(f'''
            v_add_u32 v6, {64*i}, {v(V_LANE)}
            v_mul_u32_u24 v7, {s(S_T2)}, v6
            v_lshrrev_b32 v7, 16, v7
            v_mul_u32_u24 v8, 14, v7
            v_sub_u32 v8, v6, v8
            v_bfe_u32 v9, v7, 2, 2
            v_and_b32 v10, 3, v7
            v_lshl_add_u32 v9, v9, 3, v10
            v_lshrrev_b32 v10, 4, v7
            v_lshl_add_u32 v9, v10, 2, v9
            v_add_u32 v9, {s(S_T0)}, v9
            v_sub_u32 v10, 320, v9
            v_cndmask_b32 v10, v9, v10, vcc
            v_lshl_add_u32 v8, v8, 4, {s(S_T1)}
            v_mad_u32_u24 {v(vdst+i)}, v10, {s(S_T3)}, v8
            ''')
            if i == 0:
                A(f'''
                v_mov_b32 v11, 320
                v_cmp_eq_u32 {s(S_M,2)}, v11, v10
                v_mov_b32 v11, 64
                v_cndmask_b32 v10, v10, v11, {s(S_M,2)}
                v_mad_u32_u24 {v(vdst+7)}, v10, {s(S_T3)}, v8
                ''')
    def w1_soff(self, dst, wp):
        self.A(f'''
        s_cmp_ge_u32 {s(S_W)}, 2
        s_mov_b32 {s(dst)}, {64*wp*3584}
        s_cselect_b32 {s(dst)}, {(3-wp)*64*3584}, {s(dst)}
        ''')
    def w1_ops(self, wp, i0, i1, sreg):
        A = self.A; ops = []
        for i in range(i0, i1):
            def f(i=i):
                if i == i0: self.w1_soff(sreg, wp)
                va = V_W1A + 7 if (wp == 0 and i == 0) else V_W1A + i
                A(f's_add_u32 m0, {s(S_WB)}, {wp*7168 + i*1024}')
                A(f'buffer_load_dwordx4 {v(va)}, {s(SRD_W1,4)}, {s(sreg)} offen lds')
            ops.append(f)
        return ops

    def w2_addr_setup(self):
        A = self.A
        A(f'''
        v_lshrrev_b32 v6, 3, {v(V_LANE)}
        v_and_b32 v7, 7, {v(V_LANE)}
        v_lshlrev_b32 v8, 1, v6
        v_and_b32 v8, 4, v8
        v_xor_b32 v7, v7, v8
        v_lshlrev_b32 v7, 4, v7
        v_lshl_add_u32 {v(V_W2A)}, v6, 10, v7
        s_mul_i32 {s(S_T0)}, {s(S_W)}, {448*1024}
        s_lshl_b32 {s(S_T1)}, {s(S_CB)}, 7
        s_add_u32 {s(S_T0)}, {s(S_T0)}, {s(S_T1)}
        v_add_u32 {v(V_W2A)}, {s(S_T0)}, {v(V_W2A)}
        ''')
    def w2_ops(self, pos0, npos, sbase, sreg):
        A = self.A; ops = []
        for loc in range(npos):
            k = KO[pos0 + loc]
            for h in range(2):
                def f(loc=loc, k=k, h=h):
                    A(f's_add_u32 m0, {s(sbase)}, {loc*2048 + h*1024}')
                    A(f's_mov_b32 {s(sreg)}, {(2*k+h)*8192}')
                    A(f'buffer_load_dwordx4 {v(V_W2A)}, {s(SRD_W2,4)}, {s(sreg)} offen lds')
                ops.append(f)
        return ops
    def w2_rd_addr(self, vdst, sbase):
        A = self.A
        A(f'''
        v_lshrrev_b32 v6, 5, {v(V_LANE)}
        v_lshlrev_b32 v6, 10, v6
        v_bfe_u32 v7, {v(V_LANE)}, 2, 2
        v_lshl_add_u32 v6, v7, 7, v6
        v_and_b32 v8, 1, {v(V_LANE)}
        v_lshl_add_u32 v6, v8, 5, v6
        v_bfe_u32 v8, {v(V_LANE)}, 1, 1
        v_lshl_add_u32 v6, v8, 3, v6
        v_bfe_u32 v8, {v(V_LANE)}, 4, 1
        v_lshl_add_u32 v6, v8, 4, v6
        v_bfe_u32 v8, {v(V_LANE)}, 3, 1
        v_lshl_add_u32 v6, v8, 6, v6
        v_add_u32 {v(vdst)}, {s(sbase)}, v6
        v_xor_b32 v6, 64, v6
        v_add_u32 {v(vdst+1)}, {s(sbase)}, v6
        ''')
    def w2_rd1(self, dst, vaddr, loc, mt, hh):
        self.A(f'ds_read_b64_tr_b16 {dst}, {v(vaddr+mt)} offset:{loc*2048 + hh*512}')

    def p1(self):
        A = self.A
        X, SC, R1, ONES, SUM, SQ, ACC = 16, 80, 144, 152, 156, 160, 208
        V_SGN, V_FAC, V_ZO, V_EW, V_XD, V_XR, V_ONE, V_BA, V_A0 = 162, 163, 164, 165, 166, 168, 170, 172, 176
        A(f'''
        s_cmp_ge_u32 s2, 256
        s_cbranch_scc1 L_end
        s_load_dwordx2 {s(SRD_X,2)}, s[0:1], 0
        s_load_dwordx2 {s(SRD_WS,2)}, s[0:1], 96
        s_load_dwordx2 {s(SRD_W1,2)}, s[0:1], 48
        s_load_dwordx2 {s(SRD_W2,2)}, s[0:1], 64
        s_load_dwordx2 {s(SRD_B1,2)}, s[0:1], 56
        s_load_dwordx2 {s(SRD_B2,2)}, s[0:1], 72
        s_load_dwordx2 {s(SRD_OUT,2)}, s[0:1], 80
        ''')
        self.stamp('start')
        if self.diag:
            for i in range(2, 40): A(f's_mov_b32 {s(S_TS+i)}, 0')
        A(f'''
        v_lshrrev_b32 v6, 6, v0
        v_and_b32 {v(V_LANE)}, 63, v0
        v_readfirstlane_b32 {s(S_W)}, v6
        v_and_b32 {v(V_L15)}, 15, {v(V_LANE)}
        v_lshrrev_b32 {v(V_G)}, 4, {v(V_LANE)}
        v_lshlrev_b32 {v(V_L16)}, 4, {v(V_LANE)}
        s_and_b32 {s(S_J)}, s2, 7
        s_lshr_b32 {s(S_N)}, s2, 3
        s_and_b32 {s(S_Q)}, {s(S_N)}, 7
        s_lshl_b32 {s(S_T0)}, {s(S_J)}, 2
        s_lshr_b32 {s(S_T1)}, {s(S_N)}, 3
        s_add_u32 {s(S_S1)}, {s(S_T0)}, {s(S_T1)}
        s_bfe_u32 {s(S_T1)}, {s(S_N)}, 0x20002
        s_add_u32 {s(S_U2)}, {s(S_T0)}, {s(S_T1)}
        s_and_b32 {s(S_RQ)}, {s(S_N)}, 3
        s_and_b32 {s(S_FB)}, {s(S_N)}, 15
        s_lshr_b32 {s(S_T1)}, {s(S_N)}, 4
        s_lshl_b32 {s(S_RB)}, {s(S_J)}, 1
        s_add_u32 {s(S_RB)}, {s(S_RB)}, {s(S_T1)}
        s_mov_b32 {s(S_CB)}, {s(S_Q)}
        s_mul_i32 {s(S_XB)}, {s(S_T1)}, 12288
        s_mul_i32 {s(S_T0)}, {s(S_W)}, {WPW}
        s_add_u32 {s(S_XB)}, {s(S_XB)}, {s(S_T0)}
        s_lshl_b32 {s(S_T0)}, {s(S_Q)}, 7
        s_and_b32 {s(S_T1)}, {s(S_T0)}, 0x200
        ''')
        for i in range(4):
            A(f's_add_u32 {s(S_T2)}, {s(S_T0)}, {128*i}\ns_and_b32 {s(S_T2)}, {s(S_T2)}, 0x180\ns_or_b32 {s(S_XO+i)}, {s(S_T2)}, {s(S_T1)}')
        self.srd(SRD_X, 2097152); self.srd(SRD_WS, WS_SIZE); self.srd(SRD_W2, 1835008); self.srd(SRD_W1, 1835008)
        self.srd(SRD_B1, 3584); self.srd(SRD_B2, 1024); self.srd(SRD_OUT, 2097152)
        A(f'''
        s_lshl_b32 {s(S_T0)}, {s(S_W)}, 19
        s_lshl_b32 {s(S_T1)}, {s(S_S1)}, 10
        s_add_u32 {s(S_T0)}, {s(S_T0)}, {s(S_T1)}
        v_lshrrev_b32 v12, 3, {v(V_LANE)}
        v_and_b32 v13, 7, {v(V_LANE)}
        v_xor_b32 v13, v13, {v(V_G)}
        v_lshlrev_b32 v13, 4, v13
        v_lshl_add_u32 v6, v12, 15, v13
        v_add_u32 {v(V_XD)}, {s(S_T0)}, v6
        v_xor_b32 v6, 64, {v(V_XD)}
        v_add_u32 {v(V_XD+1)}, {8*32768 - 1024}, v6
        ''')
        A(f'''
        s_lshl_b32 {s(S_T0)}, {s(S_Q)}, 5
        v_lshrrev_b32 v6, 2, {v(V_L15)}
        v_and_b32 v7, 3, {v(V_L15)}
        v_lshl_add_u32 v6, v6, 3, v7
        v_add_u32 v6, {s(S_T0)}, v6
        v_add_u32 v7, 4, v6
        v_cmp_eq_u32 vcc, 0, v6
        v_mov_b32 v8, 0x100
        v_cndmask_b32 v6, v6, v8, vcc
        v_cvt_f32_u32 v6, v6
        v_cvt_f32_u32 v7, v7
        v_mul_f32 v6, {f2u(1/512)}, v6
        v_mul_f32 v7, {f2u(1/512)}, v7
        s_add_u32 {s(S_T0)}, {s(S_W)}, {s(S_Q)}
        s_and_b32 {s(S_T0)}, {s(S_T0)}, 3
        s_lshl_b32 {s(S_T0)}, {s(S_T0)}, 6
        v_lshl_add_u32 v8, {v(V_G)}, 3, {s(S_T0)}
        v_cvt_f32_u32 v8, v8
        v_add_f32 v9, {f2u(32.0)}, v8
        s_lshl_b32 {s(S_T0)}, {s(S_W)}, 13
        s_add_u32 {s(S_T0)}, {s(S_T0)}, {L_TAB}
        v_add_u32 v10, {s(S_T0)}, {v(V_L16)}
        ''')
        def tab(kk, et):
            b = SC + 32 * et
            A(f'v_mul_f32 {v(b)}, {v(6+et)}, {v(8+kk)}')
            for j in range(1, 8):
                A(f'v_add_f32 {v(b+j)}, {v(b+j-1)}, {v(6+et)}')
            for j in range(8):
                A(f'v_cos_f32 {v(b+8+j)}, {v(b+j)}')
                A(f'v_sin_f32 {v(b+16+j)}, {v(b+j)}')
            for j in range(4):
                A(f'v_cvt_pk_bf16_f32 {v(b+24+j)}, {v(b+8+2*j)}, {v(b+9+2*j)}')
            for j in range(4):
                A(f'v_cvt_pk_bf16_f32 {v(b+28+j)}, {v(b+16+2*j)}, {v(b+17+2*j)}')
            A(f'ds_write_b128 v10, {v(b+24,4)} offset:{(kk*4+et*2)*1024}')
            A(f'ds_write_b128 v10, {v(b+28,4)} offset:{(kk*4+et*2+1)*1024}')
        npre = self.opt.get('tabpre', 1)
        tabs = [(0, 0), (0, 1), (1, 0), (1, 1)]
        for t in tabs[:npre]: tab(*t)
        A(f's_mov_b32 {s(S_T2)}, {FE}')
        A('s_waitcnt lgkmcnt(0)')
        self.stamp('kernarg')
        xm = []
        def xdma(i):
            A(f's_add_u32 m0, {s(S_XB)}, {i*2048}')
            so = S_XO + (i >> 1)
            if i & 1:
                A(f's_xor_b32 {s(S_T0)}, {s(so)}, 0x200'); so = S_T0
            A(f'buffer_load_dwordx4 {v(V_XD)}, {s(SRD_X,4)}, {s(so)} offen lds')
            A(f'buffer_load_dwordx4 {v(V_XD+1)}, {s(SRD_X,4)}, {s(so)} offen offset:1024 lds')
            xm.append(A.nvm)
        NX0 = self.opt.get('nx0', 5)
        xdma(0)
        A(f'buffer_load_dwordx2 {v(V_TAG,2)}, off, {s(SRD_WS,4)}, {s(S_T2)} sc1')
        for i in range(1, NX0): xdma(i)
        A(f'''
        s_mul_i32 {s(S_WB)}, {s(S_W)}, {WPW}
        s_mul_i32 {s(S_SB)}, {s(S_W)}, {SPW}
        s_add_u32 {s(S_SB)}, {s(S_SB)}, {L_S}
        ''')
        for t in tabs[npre:]: tab(*t)
        A(f'v_add_u32 v10, {L_TAB}, {v(V_L16)}')
        b = SC
        A(f'''
        s_lshl_b32 {s(S_T0)}, {s(S_W)}, 3
        v_lshrrev_b32 v6, 1, {v(V_L15)}
        v_add_u32 v6, {s(S_T0)}, v6
        v_and_b32 v7, 1, {v(V_L15)}
        v_cvt_f32_u32 v9, v7
        v_mul_f32 v9, {f2u(-0.25)}, v9
        v_lshl_add_u32 v8, v6, 1, v7
        v_cmp_eq_u32 vcc, 1, v8
        v_cndmask_b32 v6, v6, 32, vcc
        v_cndmask_b32 v9, v9, 0, vcc
        v_cvt_f32_u32 v6, v6
        v_mul_f32 v6, {f2u(1/64)}, v6
        v_lshlrev_b32 v8, 2, {v(V_G)}
        v_cvt_f32_u32 v8, v8
        v_fma_f32 v9, v6, v8, v9
        s_waitcnt lgkmcnt(0)
        s_barrier
        ''')
        def tabrd(f0, f1):
            for f in range(f0, f1): A(f'ds_read_b128 {a(4*f,4)}, v10 offset:{f*1024}')
        tabrd(0, 12)
        for blk in range(4):
            for j in range(4):
                c = 16 * blk + j
                if c == 0: A(f'v_mov_b32 {v(b)}, v9')
                else: A(f'v_fmamk_f32 {v(b+4*blk+j)}, v6, {f2u(float(c))}, v9')
        A('s_waitcnt lgkmcnt(2)')
        tabrd(12, 24)
        for j in range(16):
            A(f'v_cos_f32 {v(b+16+j)}, {v(b+j)}')
        A('s_waitcnt lgkmcnt(2)')
        tabrd(24, 32)
        for j in range(8):
            A(f'v_cvt_pk_bf16_f32 {v(R1+j)}, {v(b+16+2*j)}, {v(b+17+2*j)}')
        A(f'''
        v_and_b32 v6, 1, {v(V_LANE)}
        v_lshlrev_b32 v6, 31, v6
        v_or_b32 {v(V_SGN)}, 1.0, v6
        s_cmp_ge_u32 {s(S_Q)}, 4
        s_cselect_b64 vcc, -1, 0
        v_mov_b32 {v(V_ONE)}, 1.0
        v_cndmask_b32 {v(V_FAC)}, {v(V_ONE)}, {v(V_SGN)}, vcc
        s_lshl_b32 {s(S_T0)}, {s(S_W)}, 19
        s_lshl_b32 {s(S_T1)}, {s(S_Q)}, 13
        s_add_u32 {s(S_T0)}, {s(S_T0)}, {s(S_T1)}
        s_lshl_b32 {s(S_T1)}, {s(S_S1)}, 8
        s_add_u32 {s(S_T0)}, {s(S_T0)}, {s(S_T1)}
        v_lshlrev_b32 v6, 17, {v(V_G)}
        v_lshl_add_u32 v6, {v(V_L15)}, 4, v6
        v_add_u32 {v(V_ZO)}, {s(S_T0)}, v6
        s_lshr_b32 {s(S_T0)}, {s(S_W)}, 1
        s_lshl_b32 {s(S_T0)}, {s(S_T0)}, 10
        s_and_b32 {s(S_T1)}, {s(S_W)}, 1
        s_lshl_b32 {s(S_T1)}, {s(S_T1)}, 3
        s_add_u32 {s(S_T0)}, {s(S_T0)}, {s(S_T1)}
        s_add_u32 {s(S_T0)}, {s(S_T0)}, {L_EXC}
        v_add_u32 {v(V_EW)}, {s(S_T0)}, {v(V_L16)}
        v_lshrrev_b32 v6, 1, {v(V_L15)}
        v_xor_b32 v6, v6, {v(V_G)}
        v_lshlrev_b32 v6, 4, v6
        v_lshl_add_u32 v15, {v(V_L15)}, 7, v6
        v_add_u32 {v(V_XR)}, {s(S_XB)}, v15
        v_xor_b32 v6, 64, v15
        v_add_u32 {v(V_XR+1)}, {s(S_XB)}, v6
        v_mov_b32 {v(SQ)}, 0
        v_mov_b32 {v(SQ+1)}, 0
        ''')
        for i in range(4): A(f'v_mov_b32 {v(ONES+i)}, 0x3f803f80')
        self.w1_addr_setup()
        LI = A.newlabel('ri'); LJ = A.newlabel('rj')
        A(f's_cmp_ge_u32 {s(S_N)}, 16\ns_cbranch_scc1 {LI}')
        self.w1_soff(S_ASO, 3)
        self.p2_rowbase(S_T3)
        A(f'''
        s_add_u32 {s(S_AM0)}, {s(S_WB)}, {3*7168}
        s_mov_b32 {s(S_BSO)}, 0
        s_add_u32 {s(S_BM0)}, {s(S_WB)}, 16384
        s_mov_b64 {s(SRD_B,2)}, {s(SRD_X,2)}
        s_mov_b64 {s(SRD_B+2,2)}, {s(SRD_X+2,2)}
        v_mov_b32 {v(V_A0)}, {v(V_W1A)}
        s_lshl_b32 {s(S_T3)}, {s(S_T3)}, 10
        s_lshl_b32 {s(S_T0)}, {s(S_W)}, 7
        s_add_u32 {s(S_T1)}, {s(S_T3)}, {s(S_T0)}
        s_sub_u32 {s(S_T2)}, {s(S_T3)}, {s(S_T0)}
        s_add_u32 {s(S_T2)}, {s(S_T2)}, 896
        v_lshl_add_u32 v6, v12, 16, v13
        v_xor_b32 v7, 64, v6
        v_add_u32 v7, {8*65536}, v7
        v_add_u32 {v(V_BA)}, {s(S_T1)}, v6
        v_add_u32 {v(V_BA+1)}, {s(S_T1)}, v7
        v_add_u32 {v(V_BA+2)}, {s(S_T2)}, v6
        v_add_u32 {v(V_BA+3)}, {s(S_T2)}, v7
        s_branch {LJ}
        ''')
        A.label(LI)
        self.w1_soff(S_ASO, 0); self.w1_soff(S_BSO, 1)
        A(f'''
        s_mov_b32 {s(S_AM0)}, {s(S_WB)}
        s_add_u32 {s(S_BM0)}, {s(S_WB)}, 7168
        s_mov_b64 {s(SRD_B,2)}, {s(SRD_W1,2)}
        s_mov_b64 {s(SRD_B+2,2)}, {s(SRD_W1+2,2)}
        v_mov_b32 {v(V_A0)}, {v(V_W1A+7)}
        ''')
        for i in range(4): A(f'v_mov_b32 {v(V_BA+i)}, {v(V_W1A+i)}')
        A.label(LJ)
        self.stamp('tables')
        for i in range(NX0, 8): xdma(i)
        pf = []
        for i in range(4):
            def f(i=i):
                A(f's_add_u32 m0, {s(S_BM0)}, {i*1024}')
                A(f'buffer_load_dwordx4 {v(V_BA+i)}, {s(SRD_B,4)}, {s(S_BSO)} offen lds')
            pf.append(f)
        for i in range(7):
            def f(i=i):
                A(f's_add_u32 m0, {s(S_AM0)}, {i*1024}')
                A(f'buffer_load_dwordx4 {v(V_A0 if i == 0 else V_W1A+i)}, {s(SRD_W1,4)}, {s(S_ASO)} offen lds')
            pf.append(f)
        xl = []
        def xrd(i):
            A.wait(vm=xm[i])
            for kk in range(2):
                A(f'ds_read_b128 {v(X+8*i+4*kk,4)}, {v(V_XR+kk)} offset:{i*2048}')
            xl.append(A.nlg)
        xrd(0)
        self.stamp('x first')
        xrd(1)
        A(f'''
        v_add_u32 {v(V_TAG)}, 0x9e3779b0, {v(V_TAG)}
        v_add_u32 {v(V_TAG+1)}, 0x7f4a7c15, {v(V_TAG+1)}
        s_getreg_b32 {s(S_T0)}, hwreg(HW_REG_XCC_ID)
        s_and_b32 {s(S_T0)}, {s(S_T0)}, 15
        v_add_u32 v178, {s(S_T0)}, {v(V_TAG)}
        v_mov_b32 v179, {v(V_TAG+1)}
        s_lshl_b32 {s(S_T0)}, {s(S_J)}, 8
        s_lshl_b32 {s(S_T1)}, {s(S_N)}, 3
        s_add_u32 {s(S_T0)}, {s(S_T0)}, {s(S_T1)}
        s_add_u32 {s(S_T0)}, {s(S_T0)}, {FX}
        s_mov_b64 exec, 1
        buffer_store_dwordx2 v[178:179], off, {s(SRD_WS,4)}, {s(S_T0)} sc1
        s_mov_b64 exec, -1
        ''')
        PF0 = self.opt.get('pf0', 2)
        for i in range(8):
            ip, hp = i >> 1, i & 1
            if i + 2 < 8: xrd(i + 2)
            A.wait(lg=xl[i])
            for kk in range(2):
                xa = X + 8 * i + 4 * kk
                for t in range(4):
                    acc = ACC + 16 * hp + 4 * t
                    cin = '0' if (ip == 0 and kk == 0) else v(acc, 4)
                    A(f'v_mfma_f32_16x16x32_bf16 {v(acc,4)}, {v(xa,4)}, {a(32*ip+16*kk+4*t,4)}, {cin}')
                    A(f'v_dot2c_f32_bf16 {v(SQ + (t&1))}, {v(xa+t)}, {v(xa+t)}')
                cin = '0' if (i == 0 and kk == 0) else v(SUM, 4)
                A(f'v_mfma_f32_16x16x32_bf16 {v(SUM,4)}, {v(xa,4)}, {v(ONES,4)}, {cin}')
                if i >= PF0 and pf: pf.pop(0)()
        self.stamp('gemm1 done')
        A(f'''
        v_add_f32 {v(SQ)}, {v(SQ)}, {v(SQ+1)}
        v_mfma_f32_16x16x4_f32 v[20:23], {v(SQ)}, {v(V_ONE)}, 0
        ''')
        while pf: pf.pop(0)()
        for i in range(16):
            A(f'v_fma_f32 {v(ACC+i)}, {v(ACC+16+i)}, {v(V_SGN)}, {v(ACC+i)}')
        for r in range(4):
            A(f'v_mul_f32 {v(16+r)}, {f2u(1/512)}, {v(SUM+r)}')
        for r in range(4):
            A(f'v_mul_f32 {v(16+r)}, {v(16+r)}, {v(16+r)}')
        A(f's_mov_b32 {s(S_T0)}, {f2u(1/512)}')
        for r in range(4):
            A(f'v_fma_f32 {v(20+r)}, {v(20+r)}, {s(S_T0)}, -{v(16+r)}')
        for r in range(4):
            A(f'v_max_f32 {v(20+r)}, 0, {v(20+r)}')
        for r in range(4):
            A(f'v_add_f32 {v(20+r)}, {f2u(1e-5)}, {v(20+r)}')
        for r in range(4):
            A(f'v_rsq_f32 {v(20+r)}, {v(20+r)}')
        for r in range(4):
            A(f'v_mul_f32 {v(20+r)}, {v(20+r)}, {v(V_FAC)}')
        for t in range(4):
            for r in range(0, 4, 2):
                A(f'v_pk_mul_f32 {v(ACC+4*t+r,2)}, {v(ACC+4*t+r,2)}, {v(20+r,2)}')
            A(f'v_cvt_pk_bf16_f32 {v(24+2*t)}, {v(ACC+4*t)}, {v(ACC+4*t+1)}')
            A(f'v_cvt_pk_bf16_f32 {v(25+2*t)}, {v(ACC+4*t+2)}, {v(ACC+4*t+3)}')
            A(f'ds_write_b64 {v(V_EW)}, {v(24+2*t,2)} offset:{t*2048}')
        A(f'v_add_u32 v10, {L_EXC}, {v(V_L16)}')
        A('s_waitcnt lgkmcnt(0)\ns_barrier')
        for f in range(8):
            A(f'ds_read_b128 {v(32+4*f,4)}, v10 offset:{f*1024}')
        A(f'''
        s_lshl_b32 {s(S_T0)}, {s(S_W)}, 11
        s_lshr_b32 {s(S_T1)}, {s(S_Q)}, 1
        s_lshl_b32 {s(S_T1)}, {s(S_T1)}, 9
        s_add_u32 {s(S_T0)}, {s(S_T0)}, {s(S_T1)}
        s_lshl_b32 {s(S_T1)}, {s(S_S1)}, 4
        s_add_u32 {s(S_T0)}, {s(S_T0)}, {s(S_T1)}
        s_and_b32 {s(S_T1)}, {s(S_Q)}, 1
        s_lshl_b32 {s(S_T1)}, {s(S_T1)}, 3
        s_add_u32 {s(S_T0)}, {s(S_T0)}, {s(S_T1)}
        s_add_u32 {s(S_AM0)}, {s(S_T0)}, {F1}
        s_mov_b32 {s(S_T1)}, 65536
        ''')
        for t in range(4):
            A(f's_waitcnt lgkmcnt({6-2*t})')
            A(f'v_mfma_f32_16x16x32_bf16 {v(64+4*t,4)}, {v(R1,4)}, {v(32+8*t,4)}, 0')
            A(f'v_mfma_f32_16x16x32_bf16 {v(64+4*t,4)}, {v(R1+4,4)}, {v(36+8*t,4)}, {v(64+4*t,4)}')
        for k in range(2):
            for t in range(4):
                A(f'v_cvt_pk_bf16_f32 {v(80+4*k+t)}, {v(64+4*t+2*k)}, {v(65+4*t+2*k)}')
            A(f'buffer_store_dwordx4 {v(80+4*k,4)}, {v(V_ZO)}, {s(SRD_WS,4)}, {"0" if k == 0 else s(S_T1)} offen sc1')
        self.stamp('Z stores')
        self.zst = A.nvm

    def p2_rowbase(self, dst):
        self.A(f'''
        s_sub_u32 {s(S_T0)}, 64, {s(S_U2)}
        s_cmp_eq_u32 {s(S_U2)}, 0
        s_cselect_b32 {s(S_T0)}, 32, {s(S_T0)}
        s_cmp_ge_u32 {s(S_RQ)}, 2
        s_cselect_b32 {s(dst)}, {s(S_T0)}, {s(S_U2)}
        s_and_b32 {s(S_T0)}, {s(S_RQ)}, 1
        s_lshl_b32 {s(S_T0)}, {s(S_T0)}, 10
        s_add_u32 {s(dst)}, {s(dst)}, {s(S_T0)}
        ''')

    def bias_load(self):
        A = self.A
        A(f'''
        s_mul_i32 {s(S_T0)}, {s(S_FB)}, 224
        v_lshlrev_b32 v6, 3, {v(V_LANE)}
        s_mov_b64 exec, {(1<<28)-1}
        buffer_load_dwordx2 v[180:181], v6, {s(SRD_B1,4)}, {s(S_T0)} offen
        s_mov_b64 exec, -1
        ''')
    def bias_spread(self):
        A = self.A
        A(f'v_lshlrev_b32 v6, 2, {v(V_G)}')
        for ft in range(7):
            for d in range(2):
                A(f'ds_bpermute_b32 {v(V_BIAS+2*ft+d)}, v6, {v(180+d)} offset:{16*ft}')
    def fx_load(self):
        A = self.A
        A(f'''
        s_lshl_b32 {s(S_T0)}, {s(S_J)}, 8
        s_add_u32 {s(S_T0)}, {s(S_T0)}, {FX}
        v_and_b32 v6, 31, {v(V_LANE)}
        v_lshlrev_b32 v6, 3, v6
        buffer_load_dwordx2 v[182:183], v6, {s(SRD_WS,4)}, {s(S_T0)} offen sc1
        ''')
    def fx_eval(self):
        A = self.A
        A(f'''
        v_cmp_ne_u64 vcc, v[182:183], v[178:179]
        s_cmp_eq_u64 vcc, 0
        s_cselect_b32 {s(S_FAST)}, 1, 0
        ''')

    def p2(self):
        A = self.A
        ZF, TB, XR, SC, H = 16, 80, 112, 132, 208
        S_TB, S_PHI, S_MSK = 48, 49, 50
        self.p2_rowbase(S_TB)
        A(f'''
        v_lshl_add_u32 v11, {v(V_L15)}, 6, {s(S_TB)}
        s_lshl_b32 {s(S_T0)}, {s(S_W)}, 7
        s_sub_u32 {s(S_T0)}, 1024, {s(S_T0)}
        s_cmp_eq_u32 {s(S_W)}, 0
        s_cselect_b32 {s(S_T0)}, 512, {s(S_T0)}
        v_lshlrev_b32 v7, 10, v11
        s_mov_b64 exec, 0xffff
        buffer_load_ushort {v(XR+18)}, v7, {s(SRD_X,4)}, {s(S_T0)} offen
        s_mov_b64 exec, -1
        ''')
        self.bias_load()
        mb = A.nvm
        for f in self.w1_ops(0, 0, 7, S_T2) + self.w1_ops(1, 0, 4, S_T2): f()
        A.wait(vm=self.zst)
        self.setflag(S_AM0, ' sc1')
        self.stamp('F1 set')
        A(f'''
        s_add_u32 {s(S_T0)}, {s(S_WB)}, 16384
        v_add_u32 v6, {s(S_T0)}, v15
        v_xor_b32 v7, 64, v15
        v_add_u32 v7, {s(S_T0)}, v7
        v_xor_b32 v8, 0x70, v15
        v_add_u32 v8, {s(S_T0)}, v8
        v_xor_b32 v9, 0x30, v15
        v_add_u32 v9, {s(S_T0)}, v9
        ds_read_b128 {v(XR,4)}, v6
        ds_read_b128 {v(XR+4,4)}, v7
        ds_read_b128 {v(XR+8,4)}, v8 offset:2048
        ds_read_b128 {v(XR+12,4)}, v9 offset:2048
        v_lshrrev_b32 v6, 1, {v(V_L15)}
        v_sub_u32 v7, 8, {v(V_G)}
        v_and_b32 v7, 7, v7
        v_xor_b32 v7, v7, v6
        v_lshlrev_b32 v7, 4, v7
        v_lshl_add_u32 v7, {v(V_L15)}, 7, v7
        v_xor_b32 v8, 64, v7
        v_add_u32 v7, {s(S_T0)}, v7
        v_add_u32 v8, {s(S_T0)}, v8
        ds_read_u16 {v(XR+16)}, v7 offset:2048
        ds_read_u16 {v(XR+17)}, v8 offset:2048
        ''')
        A(f'''
        s_cmp_eq_u32 {s(S_U2)}, 0
        s_cselect_b32 {s(S_T1)}, 0, {f2u(-0.25)}
        s_cselect_b32 {s(S_T2)}, 0xffff0000, -1
        s_cselect_b32 {s(S_T3)}, 0xffff, -1
        s_cmp_ge_u32 {s(S_RQ)}, 2
        s_cselect_b32 {s(S_PHI)}, {s(S_T1)}, {f2u(0.25)}
        s_cselect_b32 {s(S_MSK)}, {s(S_T2)}, {s(S_T3)}
        v_cvt_f32_u32 v11, v11
        v_mul_f32 v11, {f2u(1/2048)}, v11
        s_lshl_b32 {s(S_T0)}, {s(S_RQ)}, 3
        v_add_u32 v10, {s(S_T0)}, {v(V_G)}
        ''')
        for half in range(2):
            b = SC
            for j in range(4):
                ks = 4 * half + j
                A(f'v_add_u32 v6, {4*ks}, v10\nv_and_b32 v6, 31, v6\nv_cvt_f32_u32 v6, v6')
                A(f'v_mul_f32 {v(b+2*j)}, v6, v11')
                A(f'v_add_f32 {v(b+2*j+1)}, {s(S_PHI)}, {v(b+2*j)}')
            for j in range(8):
                A(f'v_cos_f32 {v(b+8+j)}, {v(b+j)}')
                A(f'v_sin_f32 {v(b+16+j)}, {v(b+j)}')
            for j in range(4):
                d = TB + 4 * (4 * half + j)
                A(f'v_cvt_pk_bf16_f32 {v(d)}, {v(b+8+2*j)}, {v(b+9+2*j)}')
                A(f'v_cvt_pk_bf16_f32 {v(d+3)}, {v(b+16+2*j)}, {v(b+17+2*j)}')
                A(f'v_and_b32 {v(d)}, {s(S_MSK)}, {v(d)}')
                A(f'v_and_b32 {v(d+3)}, {s(S_MSK)}, {v(d+3)}')
                A(f'v_mov_b32 {v(d+2)}, {v(d)}')
                A(f'v_xor_b32 {v(d+1)}, 0x80008000, {v(d+3)}')
        A.wait(vm=mb, lg=A.nlg)
        self.bias_spread()
        def unp(dst, r, hi):
            if hi: A(f'v_and_b32 {v(dst)}, 0xffff0000, {v(r)}')
            else: A(f'v_lshlrev_b32 {v(dst)}, 16, {v(r)}')
        A(f'''
        v_cmp_eq_u32 vcc, 0, {v(V_G)}
        v_cndmask_b32 {v(XR+16)}, {v(XR+16)}, {v(XR+18)}, vcc
        s_cmp_eq_u32 {s(S_W)}, 0
        s_cselect_b64 {s(S_M,2)}, vcc, 0
        ''')
        for k in range(16): unp(H + k, XR + k // 2, k & 1)
        for q1 in range(2):
            unp(H + 16 + 8 * q1, XR + 16 + q1, 0)
            for j in range(1, 8): unp(H + 16 + 8 * q1 + j, XR + 8 + 4 * q1 + (8 - j) // 2, (8 - j) & 1)
        A(f'v_mov_b32 {v(XR+19)}, {v(H)}')
        self.w2_addr_setup()
        self.fx_load()
        A(f'''
        s_lshr_b32 {s(S_T0)}, {s(S_U2)}, 3
        s_lshl_b32 {s(S_T0)}, {s(S_T0)}, 11
        s_lshl_b32 {s(S_T1)}, {s(S_W)}, 9
        s_add_u32 {s(S_T0)}, {s(S_T0)}, {s(S_T1)}
        s_add_u32 {s(S_T0)}, {s(S_T0)}, {F1}
        v_lshl_add_u32 v6, {v(V_LANE)}, 3, {s(S_T0)}
        s_lshl_b32 {s(S_T2)}, {s(S_U2)}, 16
        s_lshl_b32 {s(S_T1)}, {s(S_W)}, 14
        s_add_u32 {s(S_T2)}, {s(S_T2)}, {s(S_T1)}
        v_add_u32 v12, {s(S_T2)}, {v(V_L16)}
        v_add_u32 v13, 8192, v12
        s_lshl_b32 {s(S_T3)}, {s(S_RQ)}, 11
        ''')
        self.stamp('p2 prepoll')
        self.poll(6, 64, 8)
        self.stamp('p2 polled')
        zm = []
        def zld(kp):
            if kp: A(f's_add_u32 {s(S_T3)}, {s(S_T3)}, 2048\ns_and_b32 {s(S_T3)}, {s(S_T3)}, 0x1800')
            for kk in range(2):
                for q1 in range(2):
                    n = 4 * kp + 2 * kk + q1
                    A(f'buffer_load_dwordx4 {v(ZF+4*n,4)}, {v(12+q1)}, {s(SRD_WS,4)}, {s(S_T3)} offen offset:{kk*1024} sc1')
                    zm.append(A.nvm)
        for kp in range(3): zld(kp)
        self.fx_eval()
        pf = self.w1_ops(1, 4, 7, S_T2) + self.w1_ops(2, 0, 7, S_T2)
        for n in range(16):
            ks, q1 = n >> 1, n & 1
            A.wait(vm=zm[n])
            if n == 0: self.stamp('Z first')
            for et in range(2):
                for var in range(2):
                    acc = H + 16 * var + 8 * q1 + 4 * et
                    A(f'v_mfma_f32_16x16x16_bf16 {v(acc,4)}, {v(ZF+4*n+2*et,2)}, {v(TB+4*ks+2*var,2)}, {v(acc,4)}')
            if n == 1: zld(3)
            if n >= self.opt.get('pf2', 8) and pf: pf.pop(0)()
        self.stamp('Z landed')
        A(f'''
        s_lshl_b32 {s(S_T0)}, {s(S_W)}, 3
        s_add_u32 {s(S_T0)}, {s(S_T0)}, {L_S+4096}
        v_lshlrev_b32 v10, 5, {v(V_L15)}
        v_add_u32 v11, {s(S_T0)}, v10
        v_add_u32 v10, {s(S_SB)}, v10
        ''')
        while pf: pf.pop(0)()
        A(f'v_cndmask_b32 {v(H)}, {v(H)}, {v(XR+19)}, {s(S_M,2)}')
        A(f'v_pk_add_f32 v[6:7], {v(H,2)}, {v(H+2,2)}')
        A(f'v_pk_mul_f32 v[8:9], {v(H,2)}, {v(H,2)}')
        A(f'v_pk_fma_f32 v[8:9], {v(H+2,2)}, {v(H+2,2)}, v[8:9]')
        for k in range(4, 32, 2):
            A(f'v_pk_add_f32 v[6:7], v[6:7], {v(H+k,2)}')
            A(f'v_pk_fma_f32 v[8:9], {v(H+k,2)}, {v(H+k,2)}, v[8:9]')
        A(f'''
        v_add_f32 v6, v6, v7
        v_add_f32 v7, v8, v9
        v_mov_b32 v8, v6
        v_mov_b32 v9, v7
        v_permlane16_swap_b32 v6, v8
        v_permlane16_swap_b32 v7, v9
        v_add_f32 v6, v6, v8
        v_add_f32 v7, v7, v9
        v_mov_b32 v8, v6
        v_mov_b32 v9, v7
        v_permlane32_swap_b32 v6, v8
        v_permlane32_swap_b32 v7, v9
        v_add_f32 v6, v6, v8
        v_add_f32 v7, v7, v9
        v_mul_u32_u24 v8, {SPW}, {v(V_G)}
        v_add_u32 v11, v11, v8
        ds_write_b64 v11, v[6:7]
        s_lshl_b32 {s(S_T0)}, {s(S_U2)}, 2
        s_add_u32 {s(S_T0)}, {s(S_T0)}, {s(S_RQ)}
        s_lshl_b32 {s(S_T1)}, {s(S_T0)}, 14
        s_lshl_b32 {s(S_T2)}, {s(S_W)}, 12
        s_add_u32 {s(S_T1)}, {s(S_T1)}, {s(S_T2)}
        s_add_u32 {s(S_T1)}, {s(S_T1)}, {WS_HN}
        s_lshl_b32 {s(S_T2)}, {s(S_T0)}, 7
        s_add_u32 {s(S_T2)}, {s(S_T2)}, {WS_ST}
        s_lshl_b32 {s(S_T0)}, {s(S_T0)}, 5
        s_lshl_b32 {s(S_T3)}, {s(S_W)}, 3
        s_add_u32 {s(S_T0)}, {s(S_T0)}, {s(S_T3)}
        s_add_u32 {s(S_AM0)}, {s(S_T0)}, {F2}
        s_waitcnt lgkmcnt(0)
        s_barrier
        ds_read_b128 v[16:19], v10 offset:4096
        ds_read_b128 v[20:23], v10 offset:4112
        v_lshlrev_b32 v10, 3, {v(V_L15)}
        s_waitcnt lgkmcnt(0)
        v_pk_add_f32 v[16:17], v[16:17], v[18:19]
        v_pk_add_f32 v[20:21], v[20:21], v[22:23]
        v_pk_add_f32 v[16:17], v[16:17], v[20:21]
        v_mul_f32 v16, {f2u(1/512)}, v16
        v_mul_f32 v17, {f2u(1/512)}, v17
        v_fma_f32 v17, -v16, v16, v17
        v_max_f32 v17, 0, v17
        v_add_f32 v17, {f2u(1e-5)}, v17
        v_rsq_f32 v18, v17
        v_sqrt_f32 v17, v17
        v_mul_f32 v20, -v16, v18
        ''')
        for n in range(4):
            for k in range(0, 8, 2):
                r = H + 8 * n + k
                A(f'v_pk_fma_f32 {v(r,2)}, {v(r,2)}, v[18:19], v[20:21] op_sel_hi:[1,0,0]')
            for k in range(4):
                A(f'v_cvt_pk_bf16_f32 {v(24+4*n+k)}, {v(H+8*n+2*k)}, {v(H+8*n+2*k+1)}')
        def st(sc):
            for n in range(4):
                A(f'buffer_store_dwordx4 {v(24+4*n,4)}, {v(V_L16)}, {s(SRD_WS,4)}, {s(S_T1)} offen offset:{n*1024}{sc}')
            A(f'''
            s_mov_b64 exec, 0xffff
            buffer_store_dwordx2 v[16:17], v10, {s(SRD_WS,4)}, {s(S_T2)} offen{sc}
            s_mov_b64 exec, -1
            ''')
        self.dual(st)
        self.stamp('hn stores')
        m = A.nvm
        r1 = self.w2_ops(0, 6, S_SB, S_T1)
        n0 = self.opt.get('r1pre', 4)
        for f in r1[:n0]: f()
        A.wait(vm=m)
        self.dual(lambda sc: self.setflag(S_AM0, sc))
        self.stamp('F2 set')
        for f in r1[n0:]: f()
        L = A.newlabel('noe')
        A(f'''
        s_or_b32 {s(S_T0)}, s2, {s(S_W)}
        s_cmp_lg_u32 {s(S_T0)}, 0
        s_cbranch_scc1 {L}
        s_mov_b32 {s(S_T0)}, {FE}
        ''')
        self.setflag(S_T0, ' sc1')
        A.label(L)

    def p2_idle(self):
        A = self.A
        self.bias_load()
        mb = A.nvm
        for f in self.w1_ops(1, 4, 7, S_T2) + self.w1_ops(2, 0, 7, S_T2): f()
        A.wait(vm=self.zst)
        self.setflag(S_AM0, ' sc1')
        self.stamp('F1 set')
        self.w2_addr_setup()
        A(f'''
        s_bitcmp1_b32 {s(S_N)}, 3
        s_cselect_b32 {s(S_T1)}, {28*8192}, 0
        ''')
        for i in range(28):
            A(f'buffer_load_dwordx4 {v(16+4*i,4)}, {v(V_W2A)}, {s(SRD_W2,4)}, {s(S_T1)} offen')
            A(f's_add_u32 {s(S_T1)}, {s(S_T1)}, 8192')
        for f in self.w1_ops(3, 0, 7, S_T2): f()
        self.fx_load()
        A.wait(vm=mb)
        self.bias_spread()
        A('s_barrier')
        A.wait(vm=A.nvm)
        self.stamp('F2 set')
        self.fx_eval()
        for f in self.w2_ops(0, 6, S_SB, S_T1): f()

    def p3(self):
        A = self.A
        ACC, AF, HN = 16, 72, 96
        V_SR = 100
        A(f'''
        v_lshrrev_b32 v6, 2, {v(V_LANE)}
        v_mul_u32_u24 v6, 224, v6
        v_and_b32 v7, 3, {v(V_LANE)}
        v_lshl_add_u32 v10, v7, 3, v6
        v_add_u32 v11, {2*WPW}, v10
        s_lshl_b32 {s(S_T0)}, {s(S_RB)}, 3
        s_lshl_b32 {s(S_T1)}, {s(S_W)}, 1
        s_add_u32 {s(S_T0)}, {s(S_T0)}, {s(S_T1)}
        s_lshl_b32 {s(S_T2)}, {s(S_T0)}, 14
        s_add_u32 {s(S_T2)}, {s(S_T2)}, {WS_HN}
        v_add_u32 v12, {s(S_T2)}, {v(V_L16)}
        v_add_u32 v13, 16384, v12
        s_lshl_b32 {s(S_T0)}, {s(S_T0)}, 5
        s_add_u32 {s(S_T3)}, {s(S_T0)}, {F2}
        ''')
        self.w2_rd_addr(V_SR, S_SB)
        A(f'v_lshl_add_u32 v6, {v(V_LANE)}, 3, {s(S_T3)}')
        A('s_waitcnt lgkmcnt(0)')
        for ft in range(7):
            for tt in range(2):
                c = ACC + 8 * ft + 4 * tt
                A(f'v_lshlrev_b32 {v(c)}, 16, {v(V_BIAS+2*ft)}')
                A(f'v_and_b32 {v(c+1)}, 0xffff0000, {v(V_BIAS+2*ft)}')
                A(f'v_lshlrev_b32 {v(c+2)}, 16, {v(V_BIAS+1+2*ft)}')
                A(f'v_and_b32 {v(c+3)}, 0xffff0000, {v(V_BIAS+1+2*ft)}')
        A('s_barrier')
        self.stamp('p3 prepoll')
        self.poll(6, 8, 8)
        self.stamp('p3 polled')
        hm = {}
        def hld(ks):
            A(f's_mov_b32 {s(S_T2)}, {(ks//4)*4096}')
            for tt in range(2):
                A(f'buffer_load_dwordx4 {a(HN+8*ks+4*tt,4)}, {v(12+tt)}, {s(SRD_WS,4)}, {s(S_T2)} offen offset:{(ks%4)*1024} sc1')
            hm[ks] = A.nvm
        LA = self.opt.get('la3', 4)
        for ks in range(LA): hld(ks)
        def trs(rnd):
            ops = []
            for loc in range(6):
                for mt in range(2):
                    for hh in range(2):
                        ops.append(lambda loc=loc, mt=mt, hh=hh: self.w2_rd1(a(48*rnd + 8*loc + 4*mt + 2*hh, 2), V_SR, loc, mt, hh))
            return ops
        for n, f in enumerate(trs(0)):
            f()
            if n == 11: A('s_waitcnt lgkmcnt(4)')
        D, R = 5, 7
        lm = {}
        def rd(p, hh):
            ks, ft = divmod(p, 7)
            wp, w = ks >> 2, ks & 3
            off = (w & 1) * WPW + wp * 7168 + hh * 3584 + ft * 32
            A(f'ds_read_b64_tr_b16 {v(AF+4*(p%R)+2*hh,2)}, {v(10 + (w >> 1))} offset:{off}')
            lm[p] = A.nlg
        A('s_waitcnt lgkmcnt(4)')
        for p in range(D): rd(p, 0); rd(p, 1)
        r2 = self.w2_ops(6, 6, S_SB, S_T1); r3 = self.w2_ops(12, 6, S_SB, S_T1); t2 = trs(1)
        r2m = None; t2m = None
        for p in range(112):
            ks, ft = divmod(p, 7)
            if ft == 0: A.wait(vm=hm[ks], lg=lm[p])
            else: A.wait(lg=lm[p])
            for tt in range(2):
                c = ACC + 8 * ft + 4 * tt
                A(f'v_mfma_f32_16x16x32_bf16 {v(c,4)}, {v(AF+4*(p%R),4)}, {a(HN+8*ks+4*tt,4)}, {v(c,4)}')
                if p + D < 112: rd(p + D, tt)
            if ft == 1 and ks + LA < 16: hld(ks + LA)
            if ft in (3, 5) and r2:
                r2.pop(0)(); r2m = A.nvm
            elif not r2 and t2 and ks >= 8:
                if len(t2) == 24: A.wait(vm=r2m)
                t2.pop(0)(); t2m = A.nlg
            elif not t2 and r3 and ft in (1, 3, 5) and lm.get(p, 0) > t2m:
                r3.pop(0)()
        self.stamp('p3 mfma done')
        A('s_barrier')
        assert not t2
        while r3: r3.pop(0)()
        A(f'''
        s_lshl_b32 {s(S_T0)}, {s(S_RB)}, 2
        s_add_u32 {s(S_T0)}, {s(S_T0)}, {s(S_W)}
        s_mul_i32 {s(S_T1)}, {s(S_T0)}, {112*1024}
        s_mul_i32 {s(S_T2)}, {s(S_FB)}, 7168
        s_add_u32 {s(S_T1)}, {s(S_T1)}, {s(S_T2)}
        s_add_u32 {s(S_T1)}, {s(S_T1)}, {WS_R}
        s_add_u32 {s(S_T2)}, {s(S_T1)}, 4096
        s_lshr_b32 {s(S_T3)}, {s(S_T0)}, 1
        s_lshl_b32 {s(S_T3)}, {s(S_T3)}, 8
        s_lshl_b32 {s(S_AM0)}, {s(S_FB)}, 4
        s_add_u32 {s(S_T3)}, {s(S_T3)}, {s(S_AM0)}
        s_and_b32 {s(S_T0)}, {s(S_T0)}, 1
        s_lshl_b32 {s(S_T0)}, {s(S_T0)}, 3
        s_add_u32 {s(S_T0)}, {s(S_T0)}, {s(S_T3)}
        s_add_u32 {s(S_AM0)}, {s(S_T0)}, {F3}
        ''')
        A.quiesce(8)
        def epi(sc):
            for ft in range(7):
                c = ACC + 8 * ft; o = 72 + 4 * ft
                for i in range(8): A(f'v_mul_f32 {v(c+i)}, {v(c+i)}, |{v(c+i)}|')
                for i in range(4): A(f'v_cvt_pk_bf16_f32 {v(o+i)}, {v(c+2*i)}, {v(c+2*i+1)}')
                for i in range(4): A(f'v_pk_max_i16 {v(o+i)}, {v(o+i)}, 0')
                A(f'v_permlane16_swap_b32 {v(o)}, {v(o+2)}')
                A(f'v_permlane16_swap_b32 {v(o+1)}, {v(o+3)}')
                A(f'buffer_store_dwordx4 {v(o,4)}, {v(V_L16)}, {s(SRD_WS,4)}, {s(S_T1 if ft < 4 else S_T2)} offen offset:{(ft%4)*1024}{sc}')
        self.dual(epi)
        self.stamp('r stores')
        self.rst = A.nvm

    def p4(self):
        A = self.A
        ACC, BASE, AF, RV = 16, 80, 96, 128
        wops = self.w2_ops(18, 10, S_WB, S_T1)
        n0 = self.opt.get('wpre', 4)
        for f in wops[:n0]: f()
        A.wait(vm=self.rst)
        self.dual(lambda sc: self.setflag(S_AM0, sc))
        self.stamp('F3 set')
        S_MIR = 51
        A(f'''
        s_and_b32 {s(S_T0)}, {s(S_W)}, 1
        s_lshl_b32 {s(S_T0)}, {s(S_T0)}, 1
        s_lshl_b32 {s(S_T1)}, {s(S_U4)}, 2
        s_add_u32 {s(S_T0)}, {s(S_T0)}, {s(S_T1)}
        v_bfe_u32 v6, {v(V_LANE)}, 4, 1
        v_add_u32 v6, {s(S_T0)}, v6
        v_lshlrev_b32 v7, 7, v6
        v_lshl_add_u32 v7, {v(V_L15)}, 3, v7
        v_lshlrev_b32 v6, 14, v6
        v_lshl_add_u32 v6, {v(V_L15)}, 4, v6
        s_lshl_b32 {s(S_T0)}, {s(S_CB)}, 2
        s_and_b32 {s(S_T1)}, {s(S_W)}, 2
        s_add_u32 {s(S_T0)}, {s(S_T0)}, {s(S_T1)}
        v_lshrrev_b32 v8, 5, {v(V_LANE)}
        v_add_u32 v8, {s(S_T0)}, v8
        v_lshlrev_b32 v12, 5, v8
        s_cmp_ge_u32 {s(S_CB)}, 4
        s_cselect_b64 vcc, -1, 0
        s_cselect_b32 {s(S_MIR)}, 2048, 0
        v_sub_u32 v9, 31, v8
        v_cndmask_b32 v9, v8, v9, vcc
        v_lshrrev_b32 v10, 2, v9
        v_and_b32 v11, 3, v9
        v_lshlrev_b32 v10, 12, v10
        v_lshl_add_u32 v10, v11, 9, v10
        v_add_u32 v10, v6, v10
        v_add_u32 v9, 1, v9
        v_bfe_u32 v11, v9, 2, 2
        v_and_b32 v9, 3, v9
        v_lshlrev_b32 v11, 12, v11
        v_lshl_add_u32 v11, v9, 9, v11
        v_add_u32 v11, v6, v11
        s_add_u32 {s(S_T0)}, {s(S_MIR)}, {WS_HN}
        s_mov_b32 {s(S_T1)}, {WS_ST}
        buffer_load_dwordx4 v[208:211], v10, {s(SRD_WS,4)}, {s(S_T0)} offen sc1
        buffer_load_dwordx4 v[212:215], v10, {s(SRD_WS,4)}, {s(S_T0)} offen offset:256 sc1
        buffer_load_ushort v216, v11, {s(SRD_WS,4)}, {s(S_T0)} offen sc1
        buffer_load_dwordx2 v[218:219], v7, {s(SRD_WS,4)}, {s(S_T1)} offen sc1
        buffer_load_dwordx4 v[220:223], v12, {s(SRD_B2,4)}, 0 offen
        buffer_load_dwordx4 v[224:227], v12, {s(SRD_B2,4)}, 0 offen offset:16
        ''')
        for f in wops[n0:]: f()
        V_OO = 228
        A(f'''
        s_sub_u32 {s(S_T0)}, 64, {s(S_U4)}
        s_cmp_eq_u32 {s(S_U4)}, 0
        s_cselect_b32 {s(S_T0)}, 32, {s(S_T0)}
        s_bitcmp1_b32 {s(S_W)}, 0
        s_cselect_b32 {s(S_T0)}, {s(S_T0)}, {s(S_U4)}
        s_lshl_b32 {s(S_T0)}, {s(S_T0)}, 10
        v_and_b32 v6, 31, {v(V_LANE)}
        v_lshlrev_b32 v6, 16, v6
        v_add3_u32 {v(V_OO)}, v6, v12, {s(S_T0)}
        v_mov_b32 v230, v100
        v_mov_b32 v231, v101
        s_sub_u32 {s(S_T0)}, {s(S_WB)}, {s(S_SB)}
        v_add_u32 v232, {s(S_T0)}, v100
        v_add_u32 v233, {s(S_T0)}, v101
        s_lshl_b32 {s(S_T0)}, {s(S_U4)}, 8
        s_lshl_b32 {s(S_T1)}, {s(S_W)}, 6
        s_add_u32 {s(S_T0)}, {s(S_T0)}, {s(S_T1)}
        s_add_u32 {s(S_T0)}, {s(S_T0)}, {F3}
        v_lshl_add_u32 v6, {v(V_LANE)}, 3, {s(S_T0)}
        s_mul_i32 {s(S_T2)}, {s(S_U4)}, {2*112*1024}
        s_mul_i32 {s(S_T1)}, {s(S_W)}, {28*1024}
        s_add_u32 {s(S_T2)}, {s(S_T2)}, {s(S_T1)}
        s_add_u32 {s(S_T2)}, {s(S_T2)}, {WS_R}
        v_add_u32 v12, {s(S_T2)}, {v(V_L16)}
        v_add_u32 v13, {112*1024}, v12
        ''')
        self.stamp('p4 prepoll')
        self.poll(6, 8, 8)
        self.stamp('p4 polled')
        def rreg(i, nt):
            n = 2 * i + nt
            return v(RV + 4 * n, 4) if n < 20 else a(96 + 4 * (n - 20), 4)
        rm = {}
        def rld(i):
            k = KO[i]
            A(f's_mov_b32 {s(S_T2)}, {(k//4)*4096}')
            for nt in range(2):
                A(f'buffer_load_dwordx4 {rreg(i,nt)}, {v(12+nt)}, {s(SRD_WS,4)}, {s(S_T2)} offen offset:{(k%4)*1024} sc1')
            rm[i] = A.nvm
        LA = self.opt.get('la4', 5)
        for i in range(LA): rld(i)
        def unp(dst, r, hi):
            if hi: A(f'v_and_b32 {v(dst)}, 0xffff0000, {v(r)}')
            else: A(f'v_lshlrev_b32 {v(dst)}, 16, {v(r)}')
        LM = A.newlabel('mir'); LJ = A.newlabel('join')
        A(f's_cmp_ge_u32 {s(S_CB)}, 4\ns_cbranch_scc1 {LM}')
        for k in range(16): unp(BASE + k, 208 + k // 2, k & 1)
        A(f's_branch {LJ}')
        A.label(LM)
        unp(BASE, 216, 0)
        for k in range(1, 16): unp(BASE + k, 208 + (16 - k) // 2, (16 - k) & 1)
        A.label(LJ)
        for k in range(16):
            unp(6, 220 + k // 2, k & 1)
            A(f'v_add_f32 v6, v6, v218')
            A(f'v_fma_f32 {v(BASE+k)}, {v(BASE+k)}, v219, v6')
        def areg(i, mt):
            return a(8 * i + 4 * mt, 4) if i < 12 else v(AF + 8 * (i % 4) + 4 * mt, 4)
        lm = {}
        def rd(i, mt):
            base = AF + 8 * (i % 4) + 4 * mt
            for hh in range(2):
                if i < 18: self.w2_rd1(v(base + 2*hh, 2), 230, i - 12, mt, hh)
                else: self.w2_rd1(v(base + 2*hh, 2), 232, i - 18, mt, hh)
            lm[i] = A.nlg
        D = 3
        for i in range(28):
            A.wait(vm=rm[i], lg=lm.get(i))
            for mt in range(2):
                for nt in range(2):
                    c = ACC + 32 * mt + 16 * nt
                    cin = '0' if i == 0 else v(c, 16)
                    A(f'v_mfma_f32_32x32x16_bf16 {v(c,16)}, {areg(i,mt)}, {rreg(i,nt)}, {cin}')
                    if mt == 0 and nt == 0 and i + LA < 28: rld(i + LA)
                if 12 <= i + D < 28: rd(i + D, mt)
        self.stamp('p4 mfma done')
        LE = A.newlabel('red')
        labs = [A.newlabel('rw') for _ in range(4)]
        A(f'v_add_u32 v6, {s(S_SB)}, {v(V_L16)}')
        A(f'v_add_u32 v7, {L_S}, {v(V_L16)}')
        A.quiesce(12)
        for w in range(1, 4):
            A(f's_cmp_eq_u32 {s(S_W)}, {w}\ns_cbranch_scc1 {labs[w]}')
        for w in range(4):
            A.label(labs[w])
            for T in range(4):
                if T == w: continue
                slot = (T - w - 1) & 3
                for qq in range(4):
                    A(f'ds_write_b128 v6, {v(ACC+16*T+4*qq,4)} offset:{slot*4096 + qq*1024}')
            for k in range(0, 16, 2):
                A(f'v_pk_add_f32 {v(BASE+k,2)}, {v(BASE+k,2)}, {v(ACC+16*w+k,2)}')
            A('s_waitcnt lgkmcnt(0)\ns_barrier')
            n = 0
            for src in range(4):
                if src == w: continue
                slot = (w - src - 1) & 3
                for qq in range(4):
                    A(f'ds_read_b128 {v(128+4*n,4)}, v7 offset:{src*SPW + slot*4096 + qq*1024}'); n += 1
            if w < 3: A(f's_branch {LE}')
        A.label(LE)
        for sl in range(3):
            A(f's_waitcnt lgkmcnt({8-4*sl})')
            for k in range(0, 16, 2):
                A(f'v_pk_add_f32 {v(BASE+k,2)}, {v(BASE+k,2)}, {v(128+16*sl+k,2)}')
        for k in range(8):
            A(f'v_cvt_pk_bf16_f32 {v(96+k)}, {v(BASE+2*k)}, {v(BASE+2*k+1)}')
        A(f'buffer_store_dwordx4 v[96:99], {v(V_OO)}, {s(SRD_OUT,4)}, 0 offen')
        A(f'buffer_store_dwordx4 v[100:103], {v(V_OO)}, {s(SRD_OUT,4)}, 0 offen offset:16')

    def dump_ts(self):
        if not self.diag: return
        A = self.A
        A('s_waitcnt vmcnt(0)')
        self.stamp('end')
        A(f'''
        s_lshl_b32 {s(S_T0)}, s2, 2
        s_add_u32 {s(S_T0)}, {s(S_T0)}, {s(S_W)}
        s_lshl_b32 {s(S_T0)}, {s(S_T0)}, 7
        s_add_u32 {s(S_T0)}, {s(S_T0)}, {WS_TS}
        s_getreg_b32 {s(S_T1)}, hwreg(HW_REG_XCC_ID)
        s_waitcnt lgkmcnt(0)
        s_mov_b64 exec, 1
        ''')
        for i in range(20): A(f'v_mov_b32 {v(16+i)}, {s(S_TS+2*i)}')
        A(f'v_mov_b32 v40, {s(S_T1)}')
        A(f'v_mov_b32 v41, {s(S_FAST)}')
        for i in range(5):
            A(f'buffer_store_dwordx4 {v(16+4*i,4)}, off, {s(SRD_WS,4)}, {s(S_T0)} offset:{16*i}')
        A(f'buffer_store_dwordx2 v[40:41], off, {s(SRD_WS,4)}, {s(S_T0)} offset:80')

    def build(self):
        A = self.A
        self.p1()
        LI = A.newlabel('idle'); LJ = A.newlabel('p3')
        A(f's_cmp_ge_u32 {s(S_N)}, 16\ns_cbranch_scc1 {LI}')
        n0, l0 = A.nvm, A.nlg
        self.p2()
        A(f's_branch {LJ}')
        A.label(LI)
        A.nvm, A.nlg = n0, l0
        self.p2_idle()
        A.label(LJ)
        self.p3()
        self.p4()
        self.dump_ts()
        hdr = f'''; FNet (2D DFT, factored) + LayerNorms + squared-ReLU FFN, one persistent launch.
; @launch grid=(256,1,1) block=(256,1,1) lds=163840
''' + (f'; names: {",".join(self.names)}\n' if self.diag else '') + f'''.amdgcn_target "amdgcn-amd-amdhsa--gfx950"
.text
.globl {KNAME}
.p2align 8
.type {KNAME},@function
{KNAME}:
'''
        ftr = f'''L_end:
    s_endpgm
.section .rodata,"a"
.p2align 6
.amdhsa_kernel {KNAME}
  .amdhsa_next_free_vgpr 512
  .amdhsa_next_free_sgpr 102
  .amdhsa_accum_offset 256
  .amdhsa_group_segment_fixed_size 0
  .amdhsa_kernarg_size 104
  .amdhsa_user_sgpr_count 2
  .amdhsa_user_sgpr_kernarg_segment_ptr 1
  .amdhsa_system_sgpr_workgroup_id_x 1
.end_amdhsa_kernel
'''
        return hdr + A.text() + ftr

if __name__ == '__main__':
    out = sys.argv[1]
    opt = {}
    for x in sys.argv[2:]:
        if '=' in x:
            k, val = x.split('='); opt[k] = int(val)
    g = Gen(diag='diag' in sys.argv[2:], opt=opt)
    t = g.build()
    open(out, 'w').write(t)
    print('nops inserted', g.A.nops, 'stamps', len(g.names))
```

```python
import sys
from asmlib import *

KNAME = 'sequential_preLN__spectral_fnet__dense_activation_squared_relu__prompt_kernel'
WS_Z, WS_HN, WS_R, WS_ST, WS_FL, WS_TS = 0, 2 << 20, 4 << 20, 12 << 20, 13 << 20, 14 << 20
WS_SIZE = 16 << 20
F1 = WS_FL
F2 = WS_FL + 0x2000
F3 = WS_FL + 0x4000
FX = WS_FL + 0x6000
FE = WS_FL + 0x7000
WPW = 28672
L_S = 114688
SPW = 12288
L_TAB, L_EXC = L_S, L_S + 32768
S_W = 3
S_T0, S_T1, S_T2, S_T3 = 4, 5, 6, 7
SRD_X, SRD_W1, SRD_W2, SRD_OUT, SRD_WS, SRD_B1, SRD_B2 = 8, 12, 16, 20, 24, 28, 32
S_CNT, S_FAST = 36, 37
S_J, S_N, S_S1, S_Q, S_U2, S_RQ, S_FB, S_RB, S_CB, S_XB = 38, 39, 40, 41, 42, 43, 44, 45, 46, 47
S_U4 = S_S1
S_XO = 48
S_ASO, S_AM0, S_BSO, S_BM0 = 52, 53, 54, 55
SRD_B = 56
S_M = 60
S_TS = 62
S_WB, S_SB = 0, 1
V_LANE, V_L15, V_G, V_L16, V_TAG = 0, 1, 2, 3, 4
V_W2A = 14
V_W1A = 240
V_BIAS = 184
KO = [0, 1, 2, 14, 15, 16,  3, 4, 5, 17, 18, 19,  6, 7, 8, 20, 21, 22,  9, 10, 11, 12, 13, 23, 24, 25, 26, 27]

class TAsm(Asm):
    def __init__(self):
        super().__init__(); self.nvm = 0; self.nlg = 0
    def i(self, text):
        super().i(text)
        c = self.hist[-1]
        if c.is_vmem: self.nvm += 1
        if c.is_ds: self.nlg += 1
    def wait(self, vm=None, lg=None):
        p = []
        if vm is not None: p.append(f'vmcnt({min(63, self.nvm - vm)})')
        if lg is not None: p.append(f'lgkmcnt({min(15, self.nlg - lg)})')
        self('s_waitcnt ' + ' '.join(p))

class Gen:
    def __init__(self, diag=False, opt=None):
        self.A = TAsm(); self.diag = diag; self.nts = 0; self.names = []
        self.opt = opt or {}
        self.skip = {'kernarg', 'Z first'} if not self.opt.get('early') else {'p4 prepoll', 'F3 set'}

    def stamp(self, name, idx=None):
        pr = self.opt.get('probe')
        if pr:
            a_, b_ = pr.split('-')
            if name == 'start': self.A(f's_memrealtime {s(S_TS, 2)}')
            if name == a_ and name != 'start': self.A(f's_memrealtime {s(S_TS+2, 2)}')
            if name == b_: self.A(f's_memrealtime {s(S_TS+4, 2)}')
            return
        if self.diag and name not in self.skip:
            if name in self.names: idx = self.names.index(name)
            else:
                idx = len(self.names); self.names.append(name)
            assert idx < 20
            self.A(f'{"s_memtime" if self.opt.get("cyc") else "s_memrealtime"} {s(S_TS + 2*idx, 2)}')

    def srd(self, base, nbytes):
        self.A(f's_mov_b32 {s(base+2)}, {nbytes}\ns_mov_b32 {s(base+3)}, 0x20000')

    def poll(self, vaddr, nl, vtmp):
        A = self.A
        L = A.newlabel('poll'); D = A.newlabel('polld')
        if nl < 64: A(f's_mov_b64 exec, {(1<<nl)-1}')
        A(f's_mov_b32 {s(S_CNT)}, 0x20000')
        A.label(L)
        A(f'buffer_load_dwordx2 {v(vtmp,2)}, {v(vaddr)}, {s(SRD_WS,4)}, 0 offen sc1')
        A(f's_sub_u32 {s(S_CNT)}, {s(S_CNT)}, 1')
        A(f's_cbranch_scc1 {D}')
        A('s_waitcnt vmcnt(0)')
        A(f'v_cmp_ne_u64 vcc, {v(vtmp,2)}, {v(V_TAG,2)}')
        A(f's_cbranch_vccnz {L}')
        A.label(D)
        A('s_waitcnt vmcnt(0)')
        if nl < 64: A('s_mov_b64 exec, -1')

    def setflag(self, soff, sc):
        A = self.A
        A('s_mov_b64 exec, 1')
        A(f'buffer_store_dwordx2 {v(V_TAG,2)}, off, {s(SRD_WS,4)}, {s(soff)}{sc}')
        A('s_mov_b64 exec, -1')

    def dual(self, fn):
        A = self.A
        if self.opt.get('nofast'):
            fn(' sc1'); return
        LS = A.newlabel('slow'); LJ = A.newlabel('dj')
        A(f's_cmp_eq_u32 {s(S_FAST)}, 0\ns_cbranch_scc1 {LS}')
        n0, l0 = A.nvm, A.nlg
        fn('')
        A(f's_branch {LJ}')
        A.label(LS)
        A.nvm, A.nlg = n0, l0
        fn(' sc1')
        A.label(LJ)

    def w1_addr_setup(self):
        A = self.A; vdst = V_W1A
        A(f'''
        s_and_b32 {s(S_T0)}, {s(S_W)}, 1
        s_lshl_b32 {s(S_T0)}, {s(S_T0)}, 5
        s_mul_i32 {s(S_T1)}, {s(S_FB)}, 224
        s_mov_b32 {s(S_T2)}, 4682
        s_cmp_ge_u32 {s(S_W)}, 2
        s_cselect_b64 vcc, -1, 0
        s_movk_i32 {s(S_T3)}, 3584
        ''')
        for i in range(7):
            A(f'''
            v_add_u32 v6, {64*i}, {v(V_LANE)}
            v_mul_u32_u24 v7, {s(S_T2)}, v6
            v_lshrrev_b32 v7, 16, v7
            v_mul_u32_u24 v8, 14, v7
            v_sub_u32 v8, v6, v8
            v_bfe_u32 v9, v7, 2, 2
            v_and_b32 v10, 3, v7
            v_lshl_add_u32 v9, v9, 3, v10
            v_lshrrev_b32 v10, 4, v7
            v_lshl_add_u32 v9, v10, 2, v9
            v_add_u32 v9, {s(S_T0)}, v9
            v_sub_u32 v10, 320, v9
            v_cndmask_b32 v10, v9, v10, vcc
            v_lshl_add_u32 v8, v8, 4, {s(S_T1)}
            v_mad_u32_u24 {v(vdst+i)}, v10, {s(S_T3)}, v8
            ''')
            if i == 0:
                A(f'''
                v_mov_b32 v11, 320
                v_cmp_eq_u32 {s(S_M,2)}, v11, v10
                v_mov_b32 v11, 64
                v_cndmask_b32 v10, v10, v11, {s(S_M,2)}
                v_mad_u32_u24 {v(vdst+7)}, v10, {s(S_T3)}, v8
                ''')
    def w1_soff(self, dst, wp):
        self.A(f'''
        s_cmp_ge_u32 {s(S_W)}, 2
        s_mov_b32 {s(dst)}, {64*wp*3584}
        s_cselect_b32 {s(dst)}, {(3-wp)*64*3584}, {s(dst)}
        ''')
    def w1_ops(self, wp, i0, i1, sreg):
        A = self.A; ops = []
        for i in range(i0, i1):
            def f(i=i):
                if i == i0: self.w1_soff(sreg, wp)
                va = V_W1A + 7 if (wp == 0 and i == 0) else V_W1A + i
                A(f's_add_u32 m0, {s(S_WB)}, {wp*7168 + i*1024}')
                A(f'buffer_load_dwordx4 {v(va)}, {s(SRD_W1,4)}, {s(sreg)} offen lds')
            ops.append(f)
        return ops

    def w2_addr_setup(self):
        A = self.A
        A(f'''
        v_lshrrev_b32 v6, 3, {v(V_LANE)}
        v_and_b32 v7, 7, {v(V_LANE)}
        v_lshlrev_b32 v8, 1, v6
        v_and_b32 v8, 4, v8
        v_xor_b32 v7, v7, v8
        v_lshlrev_b32 v7, 4, v7
        v_lshl_add_u32 {v(V_W2A)}, v6, 10, v7
        s_mul_i32 {s(S_T0)}, {s(S_W)}, {448*1024}
        s_lshl_b32 {s(S_T1)}, {s(S_CB)}, 7
        s_add_u32 {s(S_T0)}, {s(S_T0)}, {s(S_T1)}
        v_add_u32 {v(V_W2A)}, {s(S_T0)}, {v(V_W2A)}
        ''')
    def w2_ops(self, pos0, npos, sbase, sreg):
        A = self.A; ops = []
        for loc in range(npos):
            k = KO[pos0 + loc]
            for h in range(2):
                def f(loc=loc, k=k, h=h):
                    A(f's_add_u32 m0, {s(sbase)}, {loc*2048 + h*1024}')
                    A(f's_mov_b32 {s(sreg)}, {(2*k+h)*8192}')
                    A(f'buffer_load_dwordx4 {v(V_W2A)}, {s(SRD_W2,4)}, {s(sreg)} offen lds')
                ops.append(f)
        return ops
    def w2_rd_addr(self, vdst, sbase):
        A = self.A
        A(f'''
        v_lshrrev_b32 v6, 5, {v(V_LANE)}
        v_lshlrev_b32 v6, 10, v6
        v_bfe_u32 v7, {v(V_LANE)}, 2, 2
        v_lshl_add_u32 v6, v7, 7, v6
        v_and_b32 v8, 1, {v(V_LANE)}
        v_lshl_add_u32 v6, v8, 5, v6
        v_bfe_u32 v8, {v(V_LANE)}, 1, 1
        v_lshl_add_u32 v6, v8, 3, v6
        v_bfe_u32 v8, {v(V_LANE)}, 4, 1
        v_lshl_add_u32 v6, v8, 4, v6
        v_bfe_u32 v8, {v(V_LANE)}, 3, 1
        v_lshl_add_u32 v6, v8, 6, v6
        v_add_u32 {v(vdst)}, {s(sbase)}, v6
        v_xor_b32 v6, 64, v6
        v_add_u32 {v(vdst+1)}, {s(sbase)}, v6
        ''')
    def w2_rd1(self, dst, vaddr, loc, mt, hh):
        self.A(f'ds_read_b64_tr_b16 {dst}, {v(vaddr+mt)} offset:{loc*2048 + hh*512}')

    def p1(self):
        A = self.A
        X, SC, R1, ONES, SUM, SQ, ACC = 16, 80, 144, 152, 156, 160, 208
        V_SGN, V_FAC, V_ZO, V_EW, V_XD, V_XR, V_ONE, V_BA, V_A0 = 162, 163, 164, 165, 166, 168, 170, 172, 176
        A(f'''
        s_cmp_ge_u32 s2, 256
        s_cbranch_scc1 L_end
        s_load_dwordx2 {s(SRD_X,2)}, s[0:1], 0
        s_load_dwordx2 {s(SRD_WS,2)}, s[0:1], 96
        s_load_dwordx2 {s(SRD_W1,2)}, s[0:1], 48
        s_load_dwordx2 {s(SRD_W2,2)}, s[0:1], 64
        s_load_dwordx2 {s(SRD_B1,2)}, s[0:1], 56
        s_load_dwordx2 {s(SRD_B2,2)}, s[0:1], 72
        s_load_dwordx2 {s(SRD_OUT,2)}, s[0:1], 80
        ''')
        self.stamp('start')
        if self.diag:
            for i in range(2, 40): A(f's_mov_b32 {s(S_TS+i)}, 0')
        A(f'''
        v_lshrrev_b32 v6, 6, v0
        v_and_b32 {v(V_LANE)}, 63, v0
        v_readfirstlane_b32 {s(S_W)}, v6
        v_and_b32 {v(V_L15)}, 15, {v(V_LANE)}
        v_lshrrev_b32 {v(V_G)}, 4, {v(V_LANE)}
        v_lshlrev_b32 {v(V_L16)}, 4, {v(V_LANE)}
        s_and_b32 {s(S_J)}, s2, 7
        s_lshr_b32 {s(S_N)}, s2, 3
        s_and_b32 {s(S_Q)}, {s(S_N)}, 7
        s_lshl_b32 {s(S_T0)}, {s(S_J)}, 2
        s_lshr_b32 {s(S_T1)}, {s(S_N)}, 3
        s_add_u32 {s(S_S1)}, {s(S_T0)}, {s(S_T1)}
        s_bfe_u32 {s(S_T1)}, {s(S_N)}, 0x20002
        s_add_u32 {s(S_U2)}, {s(S_T0)}, {s(S_T1)}
        s_and_b32 {s(S_RQ)}, {s(S_N)}, 3
        s_and_b32 {s(S_FB)}, {s(S_N)}, 15
        s_lshr_b32 {s(S_T1)}, {s(S_N)}, 4
        s_lshl_b32 {s(S_RB)}, {s(S_J)}, 1
        s_add_u32 {s(S_RB)}, {s(S_RB)}, {s(S_T1)}
        s_mov_b32 {s(S_CB)}, {s(S_Q)}
        s_mul_i32 {s(S_XB)}, {s(S_T1)}, 12288
        s_mul_i32 {s(S_T0)}, {s(S_W)}, {WPW}
        s_add_u32 {s(S_XB)}, {s(S_XB)}, {s(S_T0)}
        s_lshl_b32 {s(S_T0)}, {s(S_Q)}, 7
        s_and_b32 {s(S_T1)}, {s(S_T0)}, 0x200
        ''')
        for i in range(4):
            A(f's_add_u32 {s(S_T2)}, {s(S_T0)}, {128*i}\ns_and_b32 {s(S_T2)}, {s(S_T2)}, 0x180\ns_or_b32 {s(S_XO+i)}, {s(S_T2)}, {s(S_T1)}')
        self.srd(SRD_X, 2097152); self.srd(SRD_WS, WS_SIZE); self.srd(SRD_W2, 1835008); self.srd(SRD_W1, 1835008)
        self.srd(SRD_B1, 3584); self.srd(SRD_B2, 1024); self.srd(SRD_OUT, 2097152)
        A(f'''
        s_lshl_b32 {s(S_T0)}, {s(S_W)}, 19
        s_lshl_b32 {s(S_T1)}, {s(S_S1)}, 10
        s_add_u32 {s(S_T0)}, {s(S_T0)}, {s(S_T1)}
        v_lshrrev_b32 v12, 3, {v(V_LANE)}
        v_and_b32 v13, 7, {v(V_LANE)}
        v_xor_b32 v13, v13, {v(V_G)}
        v_lshlrev_b32 v13, 4, v13
        v_lshl_add_u32 v6, v12, 15, v13
        v_add_u32 {v(V_XD)}, {s(S_T0)}, v6
        v_xor_b32 v6, 64, {v(V_XD)}
        v_add_u32 {v(V_XD+1)}, {8*32768 - 1024}, v6
        ''')
        A(f'''
        s_lshl_b32 {s(S_T0)}, {s(S_Q)}, 5
        v_lshrrev_b32 v6, 2, {v(V_L15)}
        v_and_b32 v7, 3, {v(V_L15)}
        v_lshl_add_u32 v6, v6, 3, v7
        v_add_u32 v6, {s(S_T0)}, v6
        v_add_u32 v7, 4, v6
        v_cmp_eq_u32 vcc, 0, v6
        v_mov_b32 v8, 0x100
        v_cndmask_b32 v6, v6, v8, vcc
        v_cvt_f32_u32 v6, v6
        v_cvt_f32_u32 v7, v7
        v_mul_f32 v6, {f2u(1/512)}, v6
        v_mul_f32 v7, {f2u(1/512)}, v7
        s_add_u32 {s(S_T0)}, {s(S_W)}, {s(S_Q)}
        s_and_b32 {s(S_T0)}, {s(S_T0)}, 3
        s_lshl_b32 {s(S_T0)}, {s(S_T0)}, 6
        v_lshl_add_u32 v8, {v(V_G)}, 3, {s(S_T0)}
        v_cvt_f32_u32 v8, v8
        v_add_f32 v9, {f2u(32.0)}, v8
        s_lshl_b32 {s(S_T0)}, {s(S_W)}, 13
        s_add_u32 {s(S_T0)}, {s(S_T0)}, {L_TAB}
        v_add_u32 v10, {s(S_T0)}, {v(V_L16)}
        ''')
        def tab(kk, et):
            b = SC + 32 * et
            A(f'v_mul_f32 {v(b)}, {v(6+et)}, {v(8+kk)}')
            for j in range(1, 8):
                A(f'v_add_f32 {v(b+j)}, {v(b+j-1)}, {v(6+et)}')
            for j in range(8):
                A(f'v_cos_f32 {v(b+8+j)}, {v(b+j)}')
                A(f'v_sin_f32 {v(b+16+j)}, {v(b+j)}')
            for j in range(4):
                A(f'v_cvt_pk_bf16_f32 {v(b+24+j)}, {v(b+8+2*j)}, {v(b+9+2*j)}')
            for j in range(4):
                A(f'v_cvt_pk_bf16_f32 {v(b+28+j)}, {v(b+16+2*j)}, {v(b+17+2*j)}')
            A(f'ds_write_b128 v10, {v(b+24,4)} offset:{(kk*4+et*2)*1024}')
            A(f'ds_write_b128 v10, {v(b+28,4)} offset:{(kk*4+et*2+1)*1024}')
        npre = self.opt.get('tabpre', 1)
        tabs = [(0, 0), (0, 1), (1, 0), (1, 1)]
        for t in tabs[:npre]: tab(*t)
        A(f's_mov_b32 {s(S_T2)}, {FE}')
        A('s_waitcnt lgkmcnt(0)')
        self.stamp('kernarg')
        xm = []
        def xdma(i):
            A(f's_add_u32 m0, {s(S_XB)}, {i*2048}')
            so = S_XO + (i >> 1)
            if i & 1:
                A(f's_xor_b32 {s(S_T0)}, {s(so)}, 0x200'); so = S_T0
            A(f'buffer_load_dwordx4 {v(V_XD)}, {s(SRD_X,4)}, {s(so)} offen lds')
            A(f'buffer_load_dwordx4 {v(V_XD+1)}, {s(SRD_X,4)}, {s(so)} offen offset:1024 lds')
            xm.append(A.nvm)
        NX0 = self.opt.get('nx0', 5)
        xdma(0)
        A(f'buffer_load_dwordx2 {v(V_TAG,2)}, off, {s(SRD_WS,4)}, {s(S_T2)} sc1')
        for i in range(1, NX0): xdma(i)
        A(f'''
        s_mul_i32 {s(S_WB)}, {s(S_W)}, {WPW}
        s_mul_i32 {s(S_SB)}, {s(S_W)}, {SPW}
        s_add_u32 {s(S_SB)}, {s(S_SB)}, {L_S}
        ''')
        for t in tabs[npre:]: tab(*t)
        A(f'v_add_u32 v10, {L_TAB}, {v(V_L16)}')
        b = SC
        A(f'''
        s_lshl_b32 {s(S_T0)}, {s(S_W)}, 3
        v_lshrrev_b32 v6, 1, {v(V_L15)}
        v_add_u32 v6, {s(S_T0)}, v6
        v_and_b32 v7, 1, {v(V_L15)}
        v_cvt_f32_u32 v9, v7
        v_mul_f32 v9, {f2u(-0.25)}, v9
        v_lshl_add_u32 v8, v6, 1, v7
        v_cmp_eq_u32 vcc, 1, v8
        v_cndmask_b32 v6, v6, 32, vcc
        v_cndmask_b32 v9, v9, 0, vcc
        v_cvt_f32_u32 v6, v6
        v_mul_f32 v6, {f2u(1/64)}, v6
        v_lshlrev_b32 v8, 2, {v(V_G)}
        v_cvt_f32_u32 v8, v8
        v_fma_f32 v9, v6, v8, v9
        s_waitcnt lgkmcnt(0)
        s_barrier
        ''')
        def tabrd(f0, f1):
            for f in range(f0, f1): A(f'ds_read_b128 {a(4*f,4)}, v10 offset:{f*1024}')
        tabrd(0, 12)
        for blk in range(4):
            for j in range(4):
                c = 16 * blk + j
                if c == 0: A(f'v_mov_b32 {v(b)}, v9')
                else: A(f'v_fmamk_f32 {v(b+4*blk+j)}, v6, {f2u(float(c))}, v9')
        A('s_waitcnt lgkmcnt(2)')
        tabrd(12, 24)
        for j in range(16):
            A(f'v_cos_f32 {v(b+16+j)}, {v(b+j)}')
        A('s_waitcnt lgkmcnt(2)')
        tabrd(24, 32)
        for j in range(8):
            A(f'v_cvt_pk_bf16_f32 {v(R1+j)}, {v(b+16+2*j)}, {v(b+17+2*j)}')
        A(f'''
        v_and_b32 v6, 1, {v(V_LANE)}
        v_lshlrev_b32 v6, 31, v6
        v_or_b32 {v(V_SGN)}, 1.0, v6
        s_cmp_ge_u32 {s(S_Q)}, 4
        s_cselect_b64 vcc, -1, 0
        v_mov_b32 {v(V_ONE)}, 1.0
        v_cndmask_b32 {v(V_FAC)}, {v(V_ONE)}, {v(V_SGN)}, vcc
        s_lshl_b32 {s(S_T0)}, {s(S_W)}, 19
        s_lshl_b32 {s(S_T1)}, {s(S_Q)}, 13
        s_add_u32 {s(S_T0)}, {s(S_T0)}, {s(S_T1)}
        s_lshl_b32 {s(S_T1)}, {s(S_S1)}, 8
        s_add_u32 {s(S_T0)}, {s(S_T0)}, {s(S_T1)}
        v_lshlrev_b32 v6, 17, {v(V_G)}
        v_lshl_add_u32 v6, {v(V_L15)}, 4, v6
        v_add_u32 {v(V_ZO)}, {s(S_T0)}, v6
        s_lshr_b32 {s(S_T0)}, {s(S_W)}, 1
        s_lshl_b32 {s(S_T0)}, {s(S_T0)}, 10
        s_and_b32 {s(S_T1)}, {s(S_W)}, 1
        s_lshl_b32 {s(S_T1)}, {s(S_T1)}, 3
        s_add_u32 {s(S_T0)}, {s(S_T0)}, {s(S_T1)}
        s_add_u32 {s(S_T0)}, {s(S_T0)}, {L_EXC}
        v_add_u32 {v(V_EW)}, {s(S_T0)}, {v(V_L16)}
        v_lshrrev_b32 v6, 1, {v(V_L15)}
        v_xor_b32 v6, v6, {v(V_G)}
        v_lshlrev_b32 v6, 4, v6
        v_lshl_add_u32 v15, {v(V_L15)}, 7, v6
        v_add_u32 {v(V_XR)}, {s(S_XB)}, v15
        v_xor_b32 v6, 64, v15
        v_add_u32 {v(V_XR+1)}, {s(S_XB)}, v6
        v_mov_b32 {v(SQ)}, 0
        v_mov_b32 {v(SQ+1)}, 0
        ''')
        for i in range(4): A(f'v_mov_b32 {v(ONES+i)}, 0x3f803f80')
        self.w1_addr_setup()
        LI = A.newlabel('ri'); LJ = A.newlabel('rj')
        A(f's_cmp_ge_u32 {s(S_N)}, 16\ns_cbranch_scc1 {LI}')
        self.w1_soff(S_ASO, 3)
        self.p2_rowbase(S_T3)
        A(f'''
        s_add_u32 {s(S_AM0)}, {s(S_WB)}, {3*7168}
        s_mov_b32 {s(S_BSO)}, 0
        s_add_u32 {s(S_BM0)}, {s(S_WB)}, 16384
        s_mov_b64 {s(SRD_B,2)}, {s(SRD_X,2)}
        s_mov_b64 {s(SRD_B+2,2)}, {s(SRD_X+2,2)}
        v_mov_b32 {v(V_A0)}, {v(V_W1A)}
        s_lshl_b32 {s(S_T3)}, {s(S_T3)}, 10
        s_lshl_b32 {s(S_T0)}, {s(S_W)}, 7
        s_add_u32 {s(S_T1)}, {s(S_T3)}, {s(S_T0)}
        s_sub_u32 {s(S_T2)}, {s(S_T3)}, {s(S_T0)}
        s_add_u32 {s(S_T2)}, {s(S_T2)}, 896
        v_lshl_add_u32 v6, v12, 16, v13
        v_xor_b32 v7, 64, v6
        v_add_u32 v7, {8*65536}, v7
        v_add_u32 {v(V_BA)}, {s(S_T1)}, v6
        v_add_u32 {v(V_BA+1)}, {s(S_T1)}, v7
        v_add_u32 {v(V_BA+2)}, {s(S_T2)}, v6
        v_add_u32 {v(V_BA+3)}, {s(S_T2)}, v7
        s_branch {LJ}
        ''')
        A.label(LI)
        self.w1_soff(S_ASO, 0); self.w1_soff(S_BSO, 1)
        A(f'''
        s_mov_b32 {s(S_AM0)}, {s(S_WB)}
        s_add_u32 {s(S_BM0)}, {s(S_WB)}, 7168
        s_mov_b64 {s(SRD_B,2)}, {s(SRD_W1,2)}
        s_mov_b64 {s(SRD_B+2,2)}, {s(SRD_W1+2,2)}
        v_mov_b32 {v(V_A0)}, {v(V_W1A+7)}
        ''')
        for i in range(4): A(f'v_mov_b32 {v(V_BA+i)}, {v(V_W1A+i)}')
        A.label(LJ)
        self.stamp('tables')
        for i in range(NX0, 8): xdma(i)
        pf = []
        for i in range(4):
            def f(i=i):
                A(f's_add_u32 m0, {s(S_BM0)}, {i*1024}')
                A(f'buffer_load_dwordx4 {v(V_BA+i)}, {s(SRD_B,4)}, {s(S_BSO)} offen lds')
            pf.append(f)
        for i in range(7):
            def f(i=i):
                A(f's_add_u32 m0, {s(S_AM0)}, {i*1024}')
                A(f'buffer_load_dwordx4 {v(V_A0 if i == 0 else V_W1A+i)}, {s(SRD_W1,4)}, {s(S_ASO)} offen lds')
            pf.append(f)
        xl = []
        def xrd(i):
            A.wait(vm=xm[i])
            for kk in range(2):
                A(f'ds_read_b128 {v(X+8*i+4*kk,4)}, {v(V_XR+kk)} offset:{i*2048}')
            xl.append(A.nlg)
        xrd(0)
        self.stamp('x first')
        xrd(1)
        A(f'''
        v_add_u32 {v(V_TAG)}, 0x9e3779b0, {v(V_TAG)}
        v_add_u32 {v(V_TAG+1)}, 0x7f4a7c15, {v(V_TAG+1)}
        s_getreg_b32 {s(S_T0)}, hwreg(HW_REG_XCC_ID)
        s_and_b32 {s(S_T0)}, {s(S_T0)}, 15
        v_add_u32 v178, {s(S_T0)}, {v(V_TAG)}
        v_mov_b32 v179, {v(V_TAG+1)}
        s_lshl_b32 {s(S_T0)}, {s(S_J)}, 8
        s_lshl_b32 {s(S_T1)}, {s(S_N)}, 3
        s_add_u32 {s(S_T0)}, {s(S_T0)}, {s(S_T1)}
        s_add_u32 {s(S_T0)}, {s(S_T0)}, {FX}
        s_mov_b64 exec, 1
        buffer_store_dwordx2 v[178:179], off, {s(SRD_WS,4)}, {s(S_T0)} sc1
        s_mov_b64 exec, -1
        ''')
        PF0 = self.opt.get('pf0', 2)
        for i in range(8):
            ip, hp = i >> 1, i & 1
            if i + 2 < 8: xrd(i + 2)
            A.wait(lg=xl[i])
            for kk in range(2):
                xa = X + 8 * i + 4 * kk
                for t in range(4):
                    acc = ACC + 16 * hp + 4 * t
                    cin = '0' if (ip == 0 and kk == 0) else v(acc, 4)
                    A(f'v_mfma_f32_16x16x32_bf16 {v(acc,4)}, {v(xa,4)}, {a(32*ip+16*kk+4*t,4)}, {cin}')
                    A(f'v_dot2c_f32_bf16 {v(SQ + (t&1))}, {v(xa+t)}, {v(xa+t)}')
                cin = '0' if (i == 0 and kk == 0) else v(SUM, 4)
                A(f'v_mfma_f32_16x16x32_bf16 {v(SUM,4)}, {v(xa,4)}, {v(ONES,4)}, {cin}')
                if i >= PF0 and pf: pf.pop(0)()
        self.stamp('gemm1 done')
        A(f'''
        v_add_f32 {v(SQ)}, {v(SQ)}, {v(SQ+1)}
        v_mfma_f32_16x16x4_f32 v[20:23], {v(SQ)}, {v(V_ONE)}, 0
        ''')
        while pf: pf.pop(0)()
        for i in range(16):
            A(f'v_fma_f32 {v(ACC+i)}, {v(ACC+16+i)}, {v(V_SGN)}, {v(ACC+i)}')
        for r in range(4):
            A(f'v_mul_f32 {v(16+r)}, {f2u(1/512)}, {v(SUM+r)}')
        for r in range(4):
            A(f'v_mul_f32 {v(16+r)}, {v(16+r)}, {v(16+r)}')
        A(f's_mov_b32 {s(S_T0)}, {f2u(1/512)}')
        for r in range(4):
            A(f'v_fma_f32 {v(20+r)}, {v(20+r)}, {s(S_T0)}, -{v(16+r)}')
        for r in range(4):
            A(f'v_max_f32 {v(20+r)}, 0, {v(20+r)}')
        for r in range(4):
            A(f'v_add_f32 {v(20+r)}, {f2u(1e-5)}, {v(20+r)}')
        for r in range(4):
            A(f'v_rsq_f32 {v(20+r)}, {v(20+r)}')
        for r in range(4):
            A(f'v_mul_f32 {v(20+r)}, {v(20+r)}, {v(V_FAC)}')
        for t in range(4):
            for r in range(0, 4, 2):
                A(f'v_pk_mul_f32 {v(ACC+4*t+r,2)}, {v(ACC+4*t+r,2)}, {v(20+r,2)}')
            A(f'v_cvt_pk_bf16_f32 {v(24+2*t)}, {v(ACC+4*t)}, {v(ACC+4*t+1)}')
            A(f'v_cvt_pk_bf16_f32 {v(25+2*t)}, {v(ACC+4*t+2)}, {v(ACC+4*t+3)}')
            A(f'ds_write_b64 {v(V_EW)}, {v(24+2*t,2)} offset:{t*2048}')
        A(f'v_add_u32 v10, {L_EXC}, {v(V_L16)}')
        A('s_waitcnt lgkmcnt(0)\ns_barrier')
        for f in range(8):
            A(f'ds_read_b128 {v(32+4*f,4)}, v10 offset:{f*1024}')
        A(f'''
        s_lshl_b32 {s(S_T0)}, {s(S_W)}, 11
        s_lshr_b32 {s(S_T1)}, {s(S_Q)}, 1
        s_lshl_b32 {s(S_T1)}, {s(S_T1)}, 9
        s_add_u32 {s(S_T0)}, {s(S_T0)}, {s(S_T1)}
        s_lshl_b32 {s(S_T1)}, {s(S_S1)}, 4
        s_add_u32 {s(S_T0)}, {s(S_T0)}, {s(S_T1)}
        s_and_b32 {s(S_T1)}, {s(S_Q)}, 1
        s_lshl_b32 {s(S_T1)}, {s(S_T1)}, 3
        s_add_u32 {s(S_T0)}, {s(S_T0)}, {s(S_T1)}
        s_add_u32 {s(S_AM0)}, {s(S_T0)}, {F1}
        s_mov_b32 {s(S_T1)}, 65536
        ''')
        for t in range(4):
            A(f's_waitcnt lgkmcnt({6-2*t})')
            A(f'v_mfma_f32_16x16x32_bf16 {v(64+4*t,4)}, {v(R1,4)}, {v(32+8*t,4)}, 0')
            A(f'v_mfma_f32_16x16x32_bf16 {v(64+4*t,4)}, {v(R1+4,4)}, {v(36+8*t,4)}, {v(64+4*t,4)}')
        for k in range(2):
            for t in range(4):
                A(f'v_cvt_pk_bf16_f32 {v(80+4*k+t)}, {v(64+4*t+2*k)}, {v(65+4*t+2*k)}')
            A(f'buffer_store_dwordx4 {v(80+4*k,4)}, {v(V_ZO)}, {s(SRD_WS,4)}, {"0" if k == 0 else s(S_T1)} offen sc1')
        self.stamp('Z stores')
        self.zst = A.nvm

    def p2_rowbase(self, dst):
        self.A(f'''
        s_sub_u32 {s(S_T0)}, 64, {s(S_U2)}
        s_cmp_eq_u32 {s(S_U2)}, 0
        s_cselect_b32 {s(S_T0)}, 32, {s(S_T0)}
        s_cmp_ge_u32 {s(S_RQ)}, 2
        s_cselect_b32 {s(dst)}, {s(S_T0)}, {s(S_U2)}
        s_and_b32 {s(S_T0)}, {s(S_RQ)}, 1
        s_lshl_b32 {s(S_T0)}, {s(S_T0)}, 10
        s_add_u32 {s(dst)}, {s(dst)}, {s(S_T0)}
        ''')

    def bias_load(self):
        A = self.A
        A(f'''
        s_mul_i32 {s(S_T0)}, {s(S_FB)}, 224
        v_lshlrev_b32 v6, 3, {v(V_LANE)}
        s_mov_b64 exec, {(1<<28)-1}
        buffer_load_dwordx2 v[180:181], v6, {s(SRD_B1,4)}, {s(S_T0)} offen
        s_mov_b64 exec, -1
        ''')
    def bias_spread(self):
        A = self.A
        A(f'v_lshlrev_b32 v6, 2, {v(V_G)}')
        for ft in range(7):
            for d in range(2):
                A(f'ds_bpermute_b32 {v(V_BIAS+2*ft+d)}, v6, {v(180+d)} offset:{16*ft}')
    def fx_load(self):
        A = self.A
        A(f'''
        s_lshl_b32 {s(S_T0)}, {s(S_J)}, 8
        s_add_u32 {s(S_T0)}, {s(S_T0)}, {FX}
        v_and_b32 v6, 31, {v(V_LANE)}
        v_lshlrev_b32 v6, 3, v6
        buffer_load_dwordx2 v[182:183], v6, {s(SRD_WS,4)}, {s(S_T0)} offen sc1
        ''')
    def fx_eval(self):
        A = self.A
        A(f'''
        v_cmp_ne_u64 vcc, v[182:183], v[178:179]
        s_cmp_eq_u64 vcc, 0
        s_cselect_b32 {s(S_FAST)}, 1, 0
        ''')

    def p2(self):
        A = self.A
        ZF, TB, XR, SC, H = 16, 80, 112, 132, 208
        S_TB, S_PHI, S_MSK = 48, 49, 50
        self.p2_rowbase(S_TB)
        A(f'''
        v_lshl_add_u32 v11, {v(V_L15)}, 6, {s(S_TB)}
        s_lshl_b32 {s(S_T0)}, {s(S_W)}, 7
        s_sub_u32 {s(S_T0)}, 1024, {s(S_T0)}
        s_cmp_eq_u32 {s(S_W)}, 0
        s_cselect_b32 {s(S_T0)}, 512, {s(S_T0)}
        v_lshlrev_b32 v7, 10, v11
        s_mov_b64 exec, 0xffff
        buffer_load_ushort {v(XR+18)}, v7, {s(SRD_X,4)}, {s(S_T0)} offen
        s_mov_b64 exec, -1
        ''')
        self.bias_load()
        mb = A.nvm
        for f in self.w1_ops(0, 0, 7, S_T2) + self.w1_ops(1, 0, 4, S_T2): f()
        A.wait(vm=self.zst)
        self.setflag(S_AM0, ' sc1')
        self.stamp('F1 set')
        A(f'''
        s_add_u32 {s(S_T0)}, {s(S_WB)}, 16384
        v_add_u32 v6, {s(S_T0)}, v15
        v_xor_b32 v7, 64, v15
        v_add_u32 v7, {s(S_T0)}, v7
        v_xor_b32 v8, 0x70, v15
        v_add_u32 v8, {s(S_T0)}, v8
        v_xor_b32 v9, 0x30, v15
        v_add_u32 v9, {s(S_T0)}, v9
        ds_read_b128 {v(XR,4)}, v6
        ds_read_b128 {v(XR+4,4)}, v7
        ds_read_b128 {v(XR+8,4)}, v8 offset:2048
        ds_read_b128 {v(XR+12,4)}, v9 offset:2048
        v_lshrrev_b32 v6, 1, {v(V_L15)}
        v_sub_u32 v7, 8, {v(V_G)}
        v_and_b32 v7, 7, v7
        v_xor_b32 v7, v7, v6
        v_lshlrev_b32 v7, 4, v7
        v_lshl_add_u32 v7, {v(V_L15)}, 7, v7
        v_xor_b32 v8, 64, v7
        v_add_u32 v7, {s(S_T0)}, v7
        v_add_u32 v8, {s(S_T0)}, v8
        ds_read_u16 {v(XR+16)}, v7 offset:2048
        ds_read_u16 {v(XR+17)}, v8 offset:2048
        ''')
        A(f'''
        s_cmp_eq_u32 {s(S_U2)}, 0
        s_cselect_b32 {s(S_T1)}, 0, {f2u(-0.25)}
        s_cselect_b32 {s(S_T2)}, 0xffff0000, -1
        s_cselect_b32 {s(S_T3)}, 0xffff, -1
        s_cmp_ge_u32 {s(S_RQ)}, 2
        s_cselect_b32 {s(S_PHI)}, {s(S_T1)}, {f2u(0.25)}
        s_cselect_b32 {s(S_MSK)}, {s(S_T2)}, {s(S_T3)}
        v_cvt_f32_u32 v11, v11
        v_mul_f32 v11, {f2u(1/2048)}, v11
        s_lshl_b32 {s(S_T0)}, {s(S_RQ)}, 3
        v_add_u32 v10, {s(S_T0)}, {v(V_G)}
        ''')
        for half in range(2):
            b = SC
            for j in range(4):
                ks = 4 * half + j
                A(f'v_add_u32 v6, {4*ks}, v10\nv_and_b32 v6, 31, v6\nv_cvt_f32_u32 v6, v6')
                A(f'v_mul_f32 {v(b+2*j)}, v6, v11')
                A(f'v_add_f32 {v(b+2*j+1)}, {s(S_PHI)}, {v(b+2*j)}')
            for j in range(8):
                A(f'v_cos_f32 {v(b+8+j)}, {v(b+j)}')
                A(f'v_sin_f32 {v(b+16+j)}, {v(b+j)}')
            for j in range(4):
                d = TB + 4 * (4 * half + j)
                A(f'v_cvt_pk_bf16_f32 {v(d)}, {v(b+8+2*j)}, {v(b+9+2*j)}')
                A(f'v_cvt_pk_bf16_f32 {v(d+3)}, {v(b+16+2*j)}, {v(b+17+2*j)}')
                A(f'v_and_b32 {v(d)}, {s(S_MSK)}, {v(d)}')
                A(f'v_and_b32 {v(d+3)}, {s(S_MSK)}, {v(d+3)}')
                A(f'v_mov_b32 {v(d+2)}, {v(d)}')
                A(f'v_xor_b32 {v(d+1)}, 0x80008000, {v(d+3)}')
        A.wait(vm=mb, lg=A.nlg)
        self.bias_spread()
        def unp(dst, r, hi):
            if hi: A(f'v_and_b32 {v(dst)}, 0xffff0000, {v(r)}')
            else: A(f'v_lshlrev_b32 {v(dst)}, 16, {v(r)}')
        A(f'''
        v_cmp_eq_u32 vcc, 0, {v(V_G)}
        v_cndmask_b32 {v(XR+16)}, {v(XR+16)}, {v(XR+18)}, vcc
        s_cmp_eq_u32 {s(S_W)}, 0
        s_cselect_b64 {s(S_M,2)}, vcc, 0
        ''')
        for k in range(16): unp(H + k, XR + k // 2, k & 1)
        for q1 in range(2):
            unp(H + 16 + 8 * q1, XR + 16 + q1, 0)
            for j in range(1, 8): unp(H + 16 + 8 * q1 + j, XR + 8 + 4 * q1 + (8 - j) // 2, (8 - j) & 1)
        A(f'v_mov_b32 {v(XR+19)}, {v(H)}')
        self.w2_addr_setup()
        self.fx_load()
        A(f'''
        s_lshr_b32 {s(S_T0)}, {s(S_U2)}, 3
        s_lshl_b32 {s(S_T0)}, {s(S_T0)}, 11
        s_lshl_b32 {s(S_T1)}, {s(S_W)}, 9
        s_add_u32 {s(S_T0)}, {s(S_T0)}, {s(S_T1)}
        s_add_u32 {s(S_T0)}, {s(S_T0)}, {F1}
        v_lshl_add_u32 v6, {v(V_LANE)}, 3, {s(S_T0)}
        s_lshl_b32 {s(S_T2)}, {s(S_U2)}, 16
        s_lshl_b32 {s(S_T1)}, {s(S_W)}, 14
        s_add_u32 {s(S_T2)}, {s(S_T2)}, {s(S_T1)}
        v_add_u32 v12, {s(S_T2)}, {v(V_L16)}
        v_add_u32 v13, 8192, v12
        s_lshl_b32 {s(S_T3)}, {s(S_RQ)}, 11
        ''')
        self.stamp('p2 prepoll')
        self.poll(6, 64, 8)
        self.stamp('p2 polled')
        zm = []
        def zld(kp):
            if kp: A(f's_add_u32 {s(S_T3)}, {s(S_T3)}, 2048\ns_and_b32 {s(S_T3)}, {s(S_T3)}, 0x1800')
            for kk in range(2):
                for q1 in range(2):
                    n = 4 * kp + 2 * kk + q1
                    A(f'buffer_load_dwordx4 {v(ZF+4*n,4)}, {v(12+q1)}, {s(SRD_WS,4)}, {s(S_T3)} offen offset:{kk*1024} sc1')
                    zm.append(A.nvm)
        for kp in range(3): zld(kp)
        self.fx_eval()
        pf = self.w1_ops(1, 4, 7, S_T2) + self.w1_ops(2, 0, 7, S_T2)
        for n in range(16):
            ks, q1 = n >> 1, n & 1
            A.wait(vm=zm[n])
            if n == 0: self.stamp('Z first')
            for et in range(2):
                for var in range(2):
                    acc = H + 16 * var + 8 * q1 + 4 * et
                    A(f'v_mfma_f32_16x16x16_bf16 {v(acc,4)}, {v(ZF+4*n+2*et,2)}, {v(TB+4*ks+2*var,2)}, {v(acc,4)}')
            if n == 1: zld(3)
            if n >= self.opt.get('pf2', 8) and pf: pf.pop(0)()
        self.stamp('Z landed')
        A(f'''
        s_lshl_b32 {s(S_T0)}, {s(S_W)}, 3
        s_add_u32 {s(S_T0)}, {s(S_T0)}, {L_S+4096}
        v_lshlrev_b32 v10, 5, {v(V_L15)}
        v_add_u32 v11, {s(S_T0)}, v10
        v_add_u32 v10, {s(S_SB)}, v10
        ''')
        while pf: pf.pop(0)()
        A(f'v_cndmask_b32 {v(H)}, {v(H)}, {v(XR+19)}, {s(S_M,2)}')
        A(f'v_pk_add_f32 v[6:7], {v(H,2)}, {v(H+2,2)}')
        A(f'v_pk_mul_f32 v[8:9], {v(H,2)}, {v(H,2)}')
        A(f'v_pk_fma_f32 v[8:9], {v(H+2,2)}, {v(H+2,2)}, v[8:9]')
        for k in range(4, 32, 2):
            A(f'v_pk_add_f32 v[6:7], v[6:7], {v(H+k,2)}')
            A(f'v_pk_fma_f32 v[8:9], {v(H+k,2)}, {v(H+k,2)}, v[8:9]')
        A(f'''
        v_add_f32 v6, v6, v7
        v_add_f32 v7, v8, v9
        v_mov_b32 v8, v6
        v_mov_b32 v9, v7
        v_permlane16_swap_b32 v6, v8
        v_permlane16_swap_b32 v7, v9
        v_add_f32 v6, v6, v8
        v_add_f32 v7, v7, v9
        v_mov_b32 v8, v6
        v_mov_b32 v9, v7
        v_permlane32_swap_b32 v6, v8
        v_permlane32_swap_b32 v7, v9
        v_add_f32 v6, v6, v8
        v_add_f32 v7, v7, v9
        v_mul_u32_u24 v8, {SPW}, {v(V_G)}
        v_add_u32 v11, v11, v8
        ds_write_b64 v11, v[6:7]
        s_lshl_b32 {s(S_T0)}, {s(S_U2)}, 2
        s_add_u32 {s(S_T0)}, {s(S_T0)}, {s(S_RQ)}
        s_lshl_b32 {s(S_T1)}, {s(S_T0)}, 14
        s_lshl_b32 {s(S_T2)}, {s(S_W)}, 12
        s_add_u32 {s(S_T1)}, {s(S_T1)}, {s(S_T2)}
        s_add_u32 {s(S_T1)}, {s(S_T1)}, {WS_HN}
        s_lshl_b32 {s(S_T2)}, {s(S_T0)}, 7
        s_add_u32 {s(S_T2)}, {s(S_T2)}, {WS_ST}
        s_lshl_b32 {s(S_T0)}, {s(S_T0)}, 5
        s_lshl_b32 {s(S_T3)}, {s(S_W)}, 3
        s_add_u32 {s(S_T0)}, {s(S_T0)}, {s(S_T3)}
        s_add_u32 {s(S_AM0)}, {s(S_T0)}, {F2}
        s_waitcnt lgkmcnt(0)
        s_barrier
        ds_read_b128 v[16:19], v10 offset:4096
        ds_read_b128 v[20:23], v10 offset:4112
        v_lshlrev_b32 v10, 3, {v(V_L15)}
        s_waitcnt lgkmcnt(0)
        v_pk_add_f32 v[16:17], v[16:17], v[18:19]
        v_pk_add_f32 v[20:21], v[20:21], v[22:23]
        v_pk_add_f32 v[16:17], v[16:17], v[20:21]
        v_mul_f32 v16, {f2u(1/512)}, v16
        v_mul_f32 v17, {f2u(1/512)}, v17
        v_fma_f32 v17, -v16, v16, v17
        v_max_f32 v17, 0, v17
        v_add_f32 v17, {f2u(1e-5)}, v17
        v_rsq_f32 v18, v17
        v_sqrt_f32 v17, v17
        v_mul_f32 v20, -v16, v18
        ''')
        for n in range(4):
            for k in range(0, 8, 2):
                r = H + 8 * n + k
                A(f'v_pk_fma_f32 {v(r,2)}, {v(r,2)}, v[18:19], v[20:21] op_sel_hi:[1,0,0]')
            for k in range(4):
                A(f'v_cvt_pk_bf16_f32 {v(24+4*n+k)}, {v(H+8*n+2*k)}, {v(H+8*n+2*k+1)}')
        def st(sc):
            for n in range(4):
                A(f'buffer_store_dwordx4 {v(24+4*n,4)}, {v(V_L16)}, {s(SRD_WS,4)}, {s(S_T1)} offen offset:{n*1024}{sc}')
            A(f'''
            s_mov_b64 exec, 0xffff
            buffer_store_dwordx2 v[16:17], v10, {s(SRD_WS,4)}, {s(S_T2)} offen{sc}
            s_mov_b64 exec, -1
            ''')
        self.dual(st)
        self.stamp('hn stores')
        m = A.nvm
        r1 = self.w2_ops(0, 6, S_SB, S_T1)
        n0 = self.opt.get('r1pre', 4)
        for f in r1[:n0]: f()
        A.wait(vm=m)
        self.dual(lambda sc: self.setflag(S_AM0, sc))
        self.stamp('F2 set')
        for f in r1[n0:]: f()
        L = A.newlabel('noe')
        A(f'''
        s_or_b32 {s(S_T0)}, s2, {s(S_W)}
        s_cmp_lg_u32 {s(S_T0)}, 0
        s_cbranch_scc1 {L}
        s_mov_b32 {s(S_T0)}, {FE}
        ''')
        self.setflag(S_T0, ' sc1')
        A.label(L)

    def p2_idle(self):
        A = self.A
        self.bias_load()
        mb = A.nvm
        for f in self.w1_ops(1, 4, 7, S_T2) + self.w1_ops(2, 0, 7, S_T2): f()
        A.wait(vm=self.zst)
        self.setflag(S_AM0, ' sc1')
        self.stamp('F1 set')
        self.w2_addr_setup()
        A(f'''
        s_bitcmp1_b32 {s(S_N)}, 3
        s_cselect_b32 {s(S_T1)}, {28*8192}, 0
        ''')
        for i in range(28):
            A(f'buffer_load_dwordx4 {v(16+4*i,4)}, {v(V_W2A)}, {s(SRD_W2,4)}, {s(S_T1)} offen')
            A(f's_add_u32 {s(S_T1)}, {s(S_T1)}, 8192')
        for f in self.w1_ops(3, 0, 7, S_T2): f()
        self.fx_load()
        A.wait(vm=mb)
        self.bias_spread()
        A('s_barrier')
        A.wait(vm=A.nvm)
        self.stamp('F2 set')
        self.fx_eval()
        for f in self.w2_ops(0, 6, S_SB, S_T1): f()

    def p3(self):
        A = self.A
        ACC, AF, HN = 16, 72, 96
        V_SR = 100
        A(f'''
        v_lshrrev_b32 v6, 2, {v(V_LANE)}
        v_mul_u32_u24 v6, 224, v6
        v_and_b32 v7, 3, {v(V_LANE)}
        v_lshl_add_u32 v10, v7, 3, v6
        v_add_u32 v11, {2*WPW}, v10
        s_lshl_b32 {s(S_T0)}, {s(S_RB)}, 3
        s_lshl_b32 {s(S_T1)}, {s(S_W)}, 1
        s_add_u32 {s(S_T0)}, {s(S_T0)}, {s(S_T1)}
        s_lshl_b32 {s(S_T2)}, {s(S_T0)}, 14
        s_add_u32 {s(S_T2)}, {s(S_T2)}, {WS_HN}
        v_add_u32 v12, {s(S_T2)}, {v(V_L16)}
        v_add_u32 v13, 16384, v12
        s_lshl_b32 {s(S_T0)}, {s(S_T0)}, 5
        s_add_u32 {s(S_T3)}, {s(S_T0)}, {F2}
        ''')
        self.w2_rd_addr(V_SR, S_SB)
        A(f'v_lshl_add_u32 v6, {v(V_LANE)}, 3, {s(S_T3)}')
        A('s_waitcnt lgkmcnt(0)')
        for ft in range(7):
            for tt in range(2):
                c = ACC + 8 * ft + 4 * tt
                A(f'v_lshlrev_b32 {v(c)}, 16, {v(V_BIAS+2*ft)}')
                A(f'v_and_b32 {v(c+1)}, 0xffff0000, {v(V_BIAS+2*ft)}')
                A(f'v_lshlrev_b32 {v(c+2)}, 16, {v(V_BIAS+1+2*ft)}')
                A(f'v_and_b32 {v(c+3)}, 0xffff0000, {v(V_BIAS+1+2*ft)}')
        A('s_barrier')
        self.stamp('p3 prepoll')
        self.poll(6, 8, 8)
        self.stamp('p3 polled')
        hm = {}
        def hld(ks):
            A(f's_mov_b32 {s(S_T2)}, {(ks//4)*4096}')
            for tt in range(2):
                A(f'buffer_load_dwordx4 {a(HN+8*ks+4*tt,4)}, {v(12+tt)}, {s(SRD_WS,4)}, {s(S_T2)} offen offset:{(ks%4)*1024} sc1')
            hm[ks] = A.nvm
        LA = self.opt.get('la3', 4)
        for ks in range(LA): hld(ks)
        def trs(rnd):
            ops = []
            for loc in range(6):
                for mt in range(2):
                    for hh in range(2):
                        ops.append(lambda loc=loc, mt=mt, hh=hh: self.w2_rd1(a(48*rnd + 8*loc + 4*mt + 2*hh, 2), V_SR, loc, mt, hh))
            return ops
        for n, f in enumerate(trs(0)):
            f()
            if n == 11: A('s_waitcnt lgkmcnt(4)')
        D, R = 5, 7
        lm = {}
        def rd(p, hh):
            ks, ft = divmod(p, 7)
            wp, w = ks >> 2, ks & 3
            off = (w & 1) * WPW + wp * 7168 + hh * 3584 + ft * 32
            A(f'ds_read_b64_tr_b16 {v(AF+4*(p%R)+2*hh,2)}, {v(10 + (w >> 1))} offset:{off}')
            lm[p] = A.nlg
        A('s_waitcnt lgkmcnt(4)')
        for p in range(D): rd(p, 0); rd(p, 1)
        r2 = self.w2_ops(6, 6, S_SB, S_T1); r3 = self.w2_ops(12, 6, S_SB, S_T1); t2 = trs(1)
        r2m = None; t2m = None
        for p in range(112):
            ks, ft = divmod(p, 7)
            if ft == 0: A.wait(vm=hm[ks], lg=lm[p])
            else: A.wait(lg=lm[p])
            for tt in range(2):
                c = ACC + 8 * ft + 4 * tt
                A(f'v_mfma_f32_16x16x32_bf16 {v(c,4)}, {v(AF+4*(p%R),4)}, {a(HN+8*ks+4*tt,4)}, {v(c,4)}')
                if p + D < 112: rd(p + D, tt)
            if ft == 1 and ks + LA < 16: hld(ks + LA)
            if ft in (3, 5) and r2:
                r2.pop(0)(); r2m = A.nvm
            elif not r2 and t2 and ks >= 8:
                if len(t2) == 24: A.wait(vm=r2m)
                t2.pop(0)(); t2m = A.nlg
            elif not t2 and r3 and ft in (1, 3, 5) and lm.get(p, 0) > t2m:
                r3.pop(0)()
        self.stamp('p3 mfma done')
        A('s_barrier')
        assert not t2
        while r3: r3.pop(0)()
        A(f'''
        s_lshl_b32 {s(S_T0)}, {s(S_RB)}, 2
        s_add_u32 {s(S_T0)}, {s(S_T0)}, {s(S_W)}
        s_mul_i32 {s(S_T1)}, {s(S_T0)}, {112*1024}
        s_mul_i32 {s(S_T2)}, {s(S_FB)}, 7168
        s_add_u32 {s(S_T1)}, {s(S_T1)}, {s(S_T2)}
        s_add_u32 {s(S_T1)}, {s(S_T1)}, {WS_R}
        s_add_u32 {s(S_T2)}, {s(S_T1)}, 4096
        s_lshr_b32 {s(S_T3)}, {s(S_T0)}, 1
        s_lshl_b32 {s(S_T3)}, {s(S_T3)}, 8
        s_lshl_b32 {s(S_AM0)}, {s(S_FB)}, 4
        s_add_u32 {s(S_T3)}, {s(S_T3)}, {s(S_AM0)}
        s_and_b32 {s(S_T0)}, {s(S_T0)}, 1
        s_lshl_b32 {s(S_T0)}, {s(S_T0)}, 3
        s_add_u32 {s(S_T0)}, {s(S_T0)}, {s(S_T3)}
        s_add_u32 {s(S_AM0)}, {s(S_T0)}, {F3}
        ''')
        A.quiesce(8)
        def epi(sc):
            for ft in range(7):
                c = ACC + 8 * ft; o = 72 + 4 * ft
                for i in range(8): A(f'v_mul_f32 {v(c+i)}, {v(c+i)}, |{v(c+i)}|')
                for i in range(4): A(f'v_cvt_pk_bf16_f32 {v(o+i)}, {v(c+2*i)}, {v(c+2*i+1)}')
                for i in range(4): A(f'v_pk_max_i16 {v(o+i)}, {v(o+i)}, 0')
                A(f'v_permlane16_swap_b32 {v(o)}, {v(o+2)}')
                A(f'v_permlane16_swap_b32 {v(o+1)}, {v(o+3)}')
                A(f'buffer_store_dwordx4 {v(o,4)}, {v(V_L16)}, {s(SRD_WS,4)}, {s(S_T1 if ft < 4 else S_T2)} offen offset:{(ft%4)*1024}{sc}')
        self.dual(epi)
        self.stamp('r stores')
        self.rst = A.nvm

    def p4(self):
        A = self.A
        ACC, BASE, AF, RV = 16, 80, 96, 128
        wops = self.w2_ops(18, 10, S_WB, S_T1)
        n0 = self.opt.get('wpre', 4)
        for f in wops[:n0]: f()
        A.wait(vm=self.rst)
        self.dual(lambda sc: self.setflag(S_AM0, sc))
        self.stamp('F3 set')
        S_MIR = 51
        A(f'''
        s_and_b32 {s(S_T0)}, {s(S_W)}, 1
        s_lshl_b32 {s(S_T0)}, {s(S_T0)}, 1
        s_lshl_b32 {s(S_T1)}, {s(S_U4)}, 2
        s_add_u32 {s(S_T0)}, {s(S_T0)}, {s(S_T1)}
        v_bfe_u32 v6, {v(V_LANE)}, 4, 1
        v_add_u32 v6, {s(S_T0)}, v6
        v_lshlrev_b32 v7, 7, v6
        v_lshl_add_u32 v7, {v(V_L15)}, 3, v7
        v_lshlrev_b32 v6, 14, v6
        v_lshl_add_u32 v6, {v(V_L15)}, 4, v6
        s_lshl_b32 {s(S_T0)}, {s(S_CB)}, 2
        s_and_b32 {s(S_T1)}, {s(S_W)}, 2
        s_add_u32 {s(S_T0)}, {s(S_T0)}, {s(S_T1)}
        v_lshrrev_b32 v8, 5, {v(V_LANE)}
        v_add_u32 v8, {s(S_T0)}, v8
        v_lshlrev_b32 v12, 5, v8
        s_cmp_ge_u32 {s(S_CB)}, 4
        s_cselect_b64 vcc, -1, 0
        s_cselect_b32 {s(S_MIR)}, 2048, 0
        v_sub_u32 v9, 31, v8
        v_cndmask_b32 v9, v8, v9, vcc
        v_lshrrev_b32 v10, 2, v9
        v_and_b32 v11, 3, v9
        v_lshlrev_b32 v10, 12, v10
        v_lshl_add_u32 v10, v11, 9, v10
        v_add_u32 v10, v6, v10
        v_add_u32 v9, 1, v9
        v_bfe_u32 v11, v9, 2, 2
        v_and_b32 v9, 3, v9
        v_lshlrev_b32 v11, 12, v11
        v_lshl_add_u32 v11, v9, 9, v11
        v_add_u32 v11, v6, v11
        s_add_u32 {s(S_T0)}, {s(S_MIR)}, {WS_HN}
        s_mov_b32 {s(S_T1)}, {WS_ST}
        buffer_load_dwordx4 v[208:211], v10, {s(SRD_WS,4)}, {s(S_T0)} offen sc1
        buffer_load_dwordx4 v[212:215], v10, {s(SRD_WS,4)}, {s(S_T0)} offen offset:256 sc1
        buffer_load_ushort v216, v11, {s(SRD_WS,4)}, {s(S_T0)} offen sc1
        buffer_load_dwordx2 v[218:219], v7, {s(SRD_WS,4)}, {s(S_T1)} offen sc1
        buffer_load_dwordx4 v[220:223], v12, {s(SRD_B2,4)}, 0 offen
        buffer_load_dwordx4 v[224:227], v12, {s(SRD_B2,4)}, 0 offen offset:16
        ''')
        for f in wops[n0:]: f()
        V_OO = 228
        A(f'''
        s_sub_u32 {s(S_T0)}, 64, {s(S_U4)}
        s_cmp_eq_u32 {s(S_U4)}, 0
        s_cselect_b32 {s(S_T0)}, 32, {s(S_T0)}
        s_bitcmp1_b32 {s(S_W)}, 0
        s_cselect_b32 {s(S_T0)}, {s(S_T0)}, {s(S_U4)}
        s_lshl_b32 {s(S_T0)}, {s(S_T0)}, 10
        v_and_b32 v6, 31, {v(V_LANE)}
        v_lshlrev_b32 v6, 16, v6
        v_add3_u32 {v(V_OO)}, v6, v12, {s(S_T0)}
        v_mov_b32 v230, v100
        v_mov_b32 v231, v101
        s_sub_u32 {s(S_T0)}, {s(S_WB)}, {s(S_SB)}
        v_add_u32 v232, {s(S_T0)}, v100
        v_add_u32 v233, {s(S_T0)}, v101
        s_lshl_b32 {s(S_T0)}, {s(S_U4)}, 8
        s_lshl_b32 {s(S_T1)}, {s(S_W)}, 6
        s_add_u32 {s(S_T0)}, {s(S_T0)}, {s(S_T1)}
        s_add_u32 {s(S_T0)}, {s(S_T0)}, {F3}
        v_lshl_add_u32 v6, {v(V_LANE)}, 3, {s(S_T0)}
        s_mul_i32 {s(S_T2)}, {s(S_U4)}, {2*112*1024}
        s_mul_i32 {s(S_T1)}, {s(S_W)}, {28*1024}
        s_add_u32 {s(S_T2)}, {s(S_T2)}, {s(S_T1)}
        s_add_u32 {s(S_T2)}, {s(S_T2)}, {WS_R}
        v_add_u32 v12, {s(S_T2)}, {v(V_L16)}
        v_add_u32 v13, {112*1024}, v12
        ''')
        self.stamp('p4 prepoll')
        self.poll(6, 8, 8)
        self.stamp('p4 polled')
        def rreg(i, nt):
            n = 2 * i + nt
            return v(RV + 4 * n, 4) if n < 20 else a(96 + 4 * (n - 20), 4)
        rm = {}
        def rld(i):
            k = KO[i]
            A(f's_mov_b32 {s(S_T2)}, {(k//4)*4096}')
            for nt in range(2):
                A(f'buffer_load_dwordx4 {rreg(i,nt)}, {v(12+nt)}, {s(SRD_WS,4)}, {s(S_T2)} offen offset:{(k%4)*1024} sc1')
            rm[i] = A.nvm
        LA = self.opt.get('la4', 5)
        for i in range(LA): rld(i)
        def unp(dst, r, hi):
            if hi: A(f'v_and_b32 {v(dst)}, 0xffff0000, {v(r)}')
            else: A(f'v_lshlrev_b32 {v(dst)}, 16, {v(r)}')
        LM = A.newlabel('mir'); LJ = A.newlabel('join')
        A(f's_cmp_ge_u32 {s(S_CB)}, 4\ns_cbranch_scc1 {LM}')
        for k in range(16): unp(BASE + k, 208 + k // 2, k & 1)
        A(f's_branch {LJ}')
        A.label(LM)
        unp(BASE, 216, 0)
        for k in range(1, 16): unp(BASE + k, 208 + (16 - k) // 2, (16 - k) & 1)
        A.label(LJ)
        for k in range(16):
            unp(6, 220 + k // 2, k & 1)
            A(f'v_add_f32 v6, v6, v218')
            A(f'v_fma_f32 {v(BASE+k)}, {v(BASE+k)}, v219, v6')
        def areg(i, mt):
            return a(8 * i + 4 * mt, 4) if i < 12 else v(AF + 8 * (i % 4) + 4 * mt, 4)
        lm = {}
        def rd(i, mt):
            base = AF + 8 * (i % 4) + 4 * mt
            for hh in range(2):
                if i < 18: self.w2_rd1(v(base + 2*hh, 2), 230, i - 12, mt, hh)
                else: self.w2_rd1(v(base + 2*hh, 2), 232, i - 18, mt, hh)
            lm[i] = A.nlg
        D = 3
        for i in range(28):
            A.wait(vm=rm[i], lg=lm.get(i))
            for mt in range(2):
                for nt in range(2):
                    c = ACC + 32 * mt + 16 * nt
                    cin = '0' if i == 0 else v(c, 16)
                    A(f'v_mfma_f32_32x32x16_bf16 {v(c,16)}, {areg(i,mt)}, {rreg(i,nt)}, {cin}')
                    if mt == 0 and nt == 0 and i + LA < 28: rld(i + LA)
                if 12 <= i + D < 28: rd(i + D, mt)
        self.stamp('p4 mfma done')
        LE = A.newlabel('red')
        labs = [A.newlabel('rw') for _ in range(4)]
        A(f'v_add_u32 v6, {s(S_SB)}, {v(V_L16)}')
        A(f'v_add_u32 v7, {L_S}, {v(V_L16)}')
        A.quiesce(12)
        for w in range(1, 4):
            A(f's_cmp_eq_u32 {s(S_W)}, {w}\ns_cbranch_scc1 {labs[w]}')
        for w in range(4):
            A.label(labs[w])
            for T in range(4):
                if T == w: continue
                slot = (T - w - 1) & 3
                for qq in range(4):
                    A(f'ds_write_b128 v6, {v(ACC+16*T+4*qq,4)} offset:{slot*4096 + qq*1024}')
            for k in range(0, 16, 2):
                A(f'v_pk_add_f32 {v(BASE+k,2)}, {v(BASE+k,2)}, {v(ACC+16*w+k,2)}')
            A('s_waitcnt lgkmcnt(0)\ns_barrier')
            n = 0
            for src in range(4):
                if src == w: continue
                slot = (w - src - 1) & 3
                for qq in range(4):
                    A(f'ds_read_b128 {v(128+4*n,4)}, v7 offset:{src*SPW + slot*4096 + qq*1024}'); n += 1
            if w < 3: A(f's_branch {LE}')
        A.label(LE)
        for sl in range(3):
            A(f's_waitcnt lgkmcnt({8-4*sl})')
            for k in range(0, 16, 2):
                A(f'v_pk_add_f32 {v(BASE+k,2)}, {v(BASE+k,2)}, {v(128+16*sl+k,2)}')
        for k in range(8):
            A(f'v_cvt_pk_bf16_f32 {v(96+k)}, {v(BASE+2*k)}, {v(BASE+2*k+1)}')
        A(f'buffer_store_dwordx4 v[96:99], {v(V_OO)}, {s(SRD_OUT,4)}, 0 offen')
        A(f'buffer_store_dwordx4 v[100:103], {v(V_OO)}, {s(SRD_OUT,4)}, 0 offen offset:16')

    def probe_end(self):
        A = self.A
        a_, b_ = self.opt['probe'].split('-')
        if b_ == 'end':
            A('s_waitcnt vmcnt(0)'); self.stamp('end')
        A(f'''
        s_waitcnt lgkmcnt(0)
        s_sub_u32 {s(S_T0)}, {s(S_TS+4)}, {s(S_TS if a_ == 'start' else S_TS+2)}
        s_cmp_ge_u32 {s(S_N)}, {self.opt.get('pmax', 32)}
        s_cselect_b32 {s(S_T0)}, 0, {s(S_T0)}
        s_min_u32 {s(S_T0)}, {s(S_T0)}, 4000
        s_lshl_b32 {s(S_T0)}, {s(S_T0)}, 2
        s_add_u32 {s(S_T0)}, {s(S_T0)}, 4000
        s_add_u32 {s(S_T0)}, {s(S_T0)}, {s(S_TS)}
        L_pspin:
        s_memrealtime {s(S_TS+6,2)}
        s_waitcnt lgkmcnt(0)
        s_sub_u32 {s(S_T1)}, {s(S_TS+6)}, {s(S_T0)}
        s_cmp_lt_i32 {s(S_T1)}, 0
        s_cbranch_scc1 L_pspin
        ''')

    def dump_ts(self):
        if self.opt.get('probe'): return self.probe_end()
        if not self.diag: return
        A = self.A
        A('s_waitcnt vmcnt(0)')
        self.stamp('end')
        A(f'''
        s_lshl_b32 {s(S_T0)}, s2, 2
        s_add_u32 {s(S_T0)}, {s(S_T0)}, {s(S_W)}
        s_lshl_b32 {s(S_T0)}, {s(S_T0)}, 7
        s_add_u32 {s(S_T0)}, {s(S_T0)}, {WS_TS}
        s_getreg_b32 {s(S_T1)}, hwreg(HW_REG_XCC_ID)
        s_waitcnt lgkmcnt(0)
        s_mov_b64 exec, 1
        ''')
        for i in range(20): A(f'v_mov_b32 {v(16+i)}, {s(S_TS+2*i)}')
        A(f'v_mov_b32 v40, {s(S_T1)}')
        A(f'v_mov_b32 v41, {s(S_FAST)}')
        for i in range(5):
            A(f'buffer_store_dwordx4 {v(16+4*i,4)}, off, {s(SRD_WS,4)}, {s(S_T0)} offset:{16*i}')
        A(f'buffer_store_dwordx2 v[40:41], off, {s(SRD_WS,4)}, {s(S_T0)} offset:80')

    def build(self):
        A = self.A
        self.p1()
        LI = A.newlabel('idle'); LJ = A.newlabel('p3')
        A(f's_cmp_ge_u32 {s(S_N)}, 16\ns_cbranch_scc1 {LI}')
        n0, l0 = A.nvm, A.nlg
        self.p2()
        A(f's_branch {LJ}')
        A.label(LI)
        A.nvm, A.nlg = n0, l0
        self.p2_idle()
        A.label(LJ)
        self.p3()
        self.p4()
        self.dump_ts()
        hdr = f'''; FNet (2D DFT, factored) + LayerNorms + squared-ReLU FFN, one persistent launch.
; @launch grid=(256,1,1) block=(256,1,1) lds=163840
''' + (f'; names: {",".join(self.names)}\n' if self.diag else '') + f'''.amdgcn_target "amdgcn-amd-amdhsa--gfx950"
.text
.globl {KNAME}
.p2align 8
.type {KNAME},@function
{KNAME}:
'''
        ftr = f'''L_end:
    s_endpgm
.section .rodata,"a"
.p2align 6
.amdhsa_kernel {KNAME}
  .amdhsa_next_free_vgpr 512
  .amdhsa_next_free_sgpr 102
  .amdhsa_accum_offset 256
  .amdhsa_group_segment_fixed_size 0
  .amdhsa_kernarg_size 104
  .amdhsa_user_sgpr_count 2
  .amdhsa_user_sgpr_kernarg_segment_ptr 1
  .amdhsa_system_sgpr_workgroup_id_x 1
.end_amdhsa_kernel
'''
        return hdr + A.text() + ftr

if __name__ == '__main__':
    out = sys.argv[1]
    opt = {}
    for x in sys.argv[2:]:
        if '=' in x:
            k, val = x.split('='); opt[k] = int(val) if val.lstrip('-').isdigit() else val.replace('_', ' ')
    g = Gen(diag='diag' in sys.argv[2:], opt=opt)
    t = g.build()
    open(out, 'w').write(t)
    print('nops inserted', g.A.nops, 'stamps', len(g.names))
```

```python
import sys
from asmlib import *

KNAME = 'sequential_preLN__spectral_fnet__dense_activation_squared_relu__prompt_kernel'
WS_Z, WS_HN, WS_R, WS_ST, WS_FL, WS_TS = 0, 2 << 20, 4 << 20, 12 << 20, 13 << 20, 14 << 20
WS_SIZE = 16 << 20
F1 = WS_FL
F2 = WS_FL + 0x2000
F3 = WS_FL + 0x4000
FX = WS_FL + 0x6000
FE = WS_FL + 0x7000
WPW = 28672
L_S = 114688
SPW = 12288
L_TAB, L_EXC = L_S, L_S + 32768
S_W = 3
S_T0, S_T1, S_T2, S_T3 = 4, 5, 6, 7
SRD_X, SRD_W1, SRD_W2, SRD_OUT, SRD_WS, SRD_B1, SRD_B2 = 8, 12, 16, 20, 24, 28, 32
S_CNT, S_FAST = 36, 37
S_J, S_N, S_S1, S_Q, S_U2, S_RQ, S_FB, S_RB, S_CB, S_XB = 38, 39, 40, 41, 42, 43, 44, 45, 46, 47
S_U4 = S_S1
S_XO = 48
S_ASO, S_AM0, S_BSO, S_BM0 = 52, 53, 54, 55
SRD_B = 56
S_M = 60
S_TS = 62
S_WB, S_SB = 0, 1
V_LANE, V_L15, V_G, V_L16, V_TAG = 0, 1, 2, 3, 4
V_W2A = 14
V_W1A = 240
V_BIAS = 184
KO = [0, 1, 2, 14, 15, 16,  3, 4, 5, 17, 18, 19,  6, 7, 8, 20, 21, 22,  9, 10, 11, 12, 13, 23, 24, 25, 26, 27]

class TAsm(Asm):
    def __init__(self):
        super().__init__(); self.nvm = 0; self.nlg = 0
    def i(self, text):
        super().i(text)
        c = self.hist[-1]
        if c.is_vmem: self.nvm += 1
        if c.is_ds: self.nlg += 1
    def wait(self, vm=None, lg=None):
        p = []
        if vm is not None: p.append(f'vmcnt({min(63, self.nvm - vm)})')
        if lg is not None: p.append(f'lgkmcnt({min(15, self.nlg - lg)})')
        self('s_waitcnt ' + ' '.join(p))

class Gen:
    def __init__(self, diag=False, opt=None):
        self.A = TAsm(); self.diag = diag; self.nts = 0; self.names = []
        self.opt = opt or {}
        fl = lambda k, d: (' ' + self.opt[k]).rstrip() if self.opt.get(k, 'pl') != 'pl' else ('' if k in self.opt else d)
        self.stf = fl('stf', ''); self.ldf = fl('ldf', ' sc1'); self.outf = fl('outf', '')
        self.skip = {'kernarg', 'Z first'} if not self.opt.get('early') else {'p4 prepoll', 'F3 set'}

    def stamp(self, name, idx=None):
        pr = self.opt.get('probe')
        if pr:
            a_, b_ = pr.split('-')
            if name == 'start': self.A(f's_memrealtime {s(S_TS, 2)}')
            if name == a_ and name != 'start': self.A(f's_memrealtime {s(S_TS+2, 2)}')
            if name == b_: self.A(f's_memrealtime {s(S_TS+4, 2)}')
            return
        if self.diag and name not in self.skip:
            if name in self.names: idx = self.names.index(name)
            else:
                idx = len(self.names); self.names.append(name)
            assert idx < 20
            self.A(f'{"s_memtime" if self.opt.get("cyc") else "s_memrealtime"} {s(S_TS + 2*idx, 2)}')

    def srd(self, base, nbytes):
        self.A(f's_mov_b32 {s(base+2)}, {nbytes}\ns_mov_b32 {s(base+3)}, 0x20000')

    def poll(self, vaddr, nl, vtmp):
        A = self.A
        L = A.newlabel('poll'); D = A.newlabel('polld')
        if nl < 64: A(f's_mov_b64 exec, {(1<<nl)-1}')
        A(f's_mov_b32 {s(S_CNT)}, 0x20000')
        A.label(L)
        A(f'buffer_load_dwordx2 {v(vtmp,2)}, {v(vaddr)}, {s(SRD_WS,4)}, 0 offen sc1')
        A(f's_sub_u32 {s(S_CNT)}, {s(S_CNT)}, 1')
        A(f's_cbranch_scc1 {D}')
        A('s_waitcnt vmcnt(0)')
        A(f'v_cmp_ne_u64 vcc, {v(vtmp,2)}, {v(V_TAG,2)}')
        A(f's_cbranch_vccnz {L}')
        A.label(D)
        A('s_waitcnt vmcnt(0)')
        if nl < 64: A('s_mov_b64 exec, -1')

    def setflag(self, soff, sc):
        A = self.A
        A('s_mov_b64 exec, 1')
        A(f'buffer_store_dwordx2 {v(V_TAG,2)}, off, {s(SRD_WS,4)}, {s(soff)}{sc}')
        A('s_mov_b64 exec, -1')

    def dual(self, fn):
        A = self.A
        if self.opt.get('nofast'):
            fn(' sc1'); return
        LS = A.newlabel('slow'); LJ = A.newlabel('dj')
        A(f's_cmp_eq_u32 {s(S_FAST)}, 0\ns_cbranch_scc1 {LS}')
        n0, l0 = A.nvm, A.nlg
        fn(self.stf)
        A(f's_branch {LJ}')
        A.label(LS)
        A.nvm, A.nlg = n0, l0
        fn(' sc1')
        A.label(LJ)

    def w1_addr_setup(self):
        A = self.A; vdst = V_W1A
        A(f'''
        s_and_b32 {s(S_T0)}, {s(S_W)}, 1
        s_lshl_b32 {s(S_T0)}, {s(S_T0)}, 5
        s_mul_i32 {s(S_T1)}, {s(S_FB)}, 224
        s_mov_b32 {s(S_T2)}, 4682
        s_cmp_ge_u32 {s(S_W)}, 2
        s_cselect_b64 vcc, -1, 0
        s_movk_i32 {s(S_T3)}, 3584
        ''')
        for i in range(7):
            A(f'''
            v_add_u32 v6, {64*i}, {v(V_LANE)}
            v_mul_u32_u24 v7, {s(S_T2)}, v6
            v_lshrrev_b32 v7, 16, v7
            v_mul_u32_u24 v8, 14, v7
            v_sub_u32 v8, v6, v8
            v_bfe_u32 v9, v7, 2, 2
            v_and_b32 v10, 3, v7
            v_lshl_add_u32 v9, v9, 3, v10
            v_lshrrev_b32 v10, 4, v7
            v_lshl_add_u32 v9, v10, 2, v9
            v_add_u32 v9, {s(S_T0)}, v9
            v_sub_u32 v10, 320, v9
            v_cndmask_b32 v10, v9, v10, vcc
            v_lshl_add_u32 v8, v8, 4, {s(S_T1)}
            v_mad_u32_u24 {v(vdst+i)}, v10, {s(S_T3)}, v8
            ''')
            if i == 0:
                A(f'''
                v_mov_b32 v11, 320
                v_cmp_eq_u32 {s(S_M,2)}, v11, v10
                v_mov_b32 v11, 64
                v_cndmask_b32 v10, v10, v11, {s(S_M,2)}
                v_mad_u32_u24 {v(vdst+7)}, v10, {s(S_T3)}, v8
                ''')
    def w1_soff(self, dst, wp):
        self.A(f'''
        s_cmp_ge_u32 {s(S_W)}, 2
        s_mov_b32 {s(dst)}, {64*wp*3584}
        s_cselect_b32 {s(dst)}, {(3-wp)*64*3584}, {s(dst)}
        ''')
    def w1_ops(self, wp, i0, i1, sreg):
        A = self.A; ops = []
        for i in range(i0, i1):
            def f(i=i):
                if i == i0: self.w1_soff(sreg, wp)
                va = V_W1A + 7 if (wp == 0 and i == 0) else V_W1A + i
                A(f's_add_u32 m0, {s(S_WB)}, {wp*7168 + i*1024}')
                A(f'buffer_load_dwordx4 {v(va)}, {s(SRD_W1,4)}, {s(sreg)} offen lds')
            ops.append(f)
        return ops

    def w2_addr_setup(self):
        A = self.A
        A(f'''
        v_lshrrev_b32 v6, 3, {v(V_LANE)}
        v_and_b32 v7, 7, {v(V_LANE)}
        v_lshlrev_b32 v8, 1, v6
        v_and_b32 v8, 4, v8
        v_xor_b32 v7, v7, v8
        v_lshlrev_b32 v7, 4, v7
        v_lshl_add_u32 {v(V_W2A)}, v6, 10, v7
        s_mul_i32 {s(S_T0)}, {s(S_W)}, {448*1024}
        s_lshl_b32 {s(S_T1)}, {s(S_CB)}, 7
        s_add_u32 {s(S_T0)}, {s(S_T0)}, {s(S_T1)}
        v_add_u32 {v(V_W2A)}, {s(S_T0)}, {v(V_W2A)}
        ''')
    def w2_ops(self, pos0, npos, sbase, sreg):
        A = self.A; ops = []
        for loc in range(npos):
            k = KO[pos0 + loc]
            for h in range(2):
                def f(loc=loc, k=k, h=h):
                    A(f's_add_u32 m0, {s(sbase)}, {loc*2048 + h*1024}')
                    A(f's_mov_b32 {s(sreg)}, {(2*k+h)*8192}')
                    A(f'buffer_load_dwordx4 {v(V_W2A)}, {s(SRD_W2,4)}, {s(sreg)} offen lds')
                ops.append(f)
        return ops
    def w2_rd_addr(self, vdst, sbase):
        A = self.A
        A(f'''
        v_lshrrev_b32 v6, 5, {v(V_LANE)}
        v_lshlrev_b32 v6, 10, v6
        v_bfe_u32 v7, {v(V_LANE)}, 2, 2
        v_lshl_add_u32 v6, v7, 7, v6
        v_and_b32 v8, 1, {v(V_LANE)}
        v_lshl_add_u32 v6, v8, 5, v6
        v_bfe_u32 v8, {v(V_LANE)}, 1, 1
        v_lshl_add_u32 v6, v8, 3, v6
        v_bfe_u32 v8, {v(V_LANE)}, 4, 1
        v_lshl_add_u32 v6, v8, 4, v6
        v_bfe_u32 v8, {v(V_LANE)}, 3, 1
        v_lshl_add_u32 v6, v8, 6, v6
        v_add_u32 {v(vdst)}, {s(sbase)}, v6
        v_xor_b32 v6, 64, v6
        v_add_u32 {v(vdst+1)}, {s(sbase)}, v6
        ''')
    def w2_rd1(self, dst, vaddr, loc, mt, hh):
        self.A(f'ds_read_b64_tr_b16 {dst}, {v(vaddr+mt)} offset:{loc*2048 + hh*512}')

    def p1(self):
        A = self.A
        X, SC, R1, ONES, SUM, SQ, ACC = 16, 80, 144, 152, 156, 160, 208
        V_SGN, V_FAC, V_ZO, V_EW, V_XD, V_XR, V_ONE, V_BA, V_A0 = 162, 163, 164, 165, 166, 168, 170, 172, 176
        A(f'''
        s_cmp_ge_u32 s2, 256
        s_cbranch_scc1 L_end
        s_load_dwordx2 {s(SRD_X,2)}, s[0:1], 0
        s_load_dwordx2 {s(SRD_WS,2)}, s[0:1], 96
        s_load_dwordx2 {s(SRD_W1,2)}, s[0:1], 48
        s_load_dwordx2 {s(SRD_W2,2)}, s[0:1], 64
        s_load_dwordx2 {s(SRD_B1,2)}, s[0:1], 56
        s_load_dwordx2 {s(SRD_B2,2)}, s[0:1], 72
        s_load_dwordx2 {s(SRD_OUT,2)}, s[0:1], 80
        ''')
        self.stamp('start')
        if self.diag:
            for i in range(2, 40): A(f's_mov_b32 {s(S_TS+i)}, 0')
        A(f'''
        v_lshrrev_b32 v6, 6, v0
        v_and_b32 {v(V_LANE)}, 63, v0
        v_readfirstlane_b32 {s(S_W)}, v6
        v_and_b32 {v(V_L15)}, 15, {v(V_LANE)}
        v_lshrrev_b32 {v(V_G)}, 4, {v(V_LANE)}
        v_lshlrev_b32 {v(V_L16)}, 4, {v(V_LANE)}
        s_and_b32 {s(S_J)}, s2, 7
        s_lshr_b32 {s(S_N)}, s2, 3
        s_and_b32 {s(S_Q)}, {s(S_N)}, 7
        s_lshl_b32 {s(S_T0)}, {s(S_J)}, 2
        s_lshr_b32 {s(S_T1)}, {s(S_N)}, 3
        s_add_u32 {s(S_S1)}, {s(S_T0)}, {s(S_T1)}
        s_bfe_u32 {s(S_T1)}, {s(S_N)}, 0x20002
        s_add_u32 {s(S_U2)}, {s(S_T0)}, {s(S_T1)}
        s_and_b32 {s(S_RQ)}, {s(S_N)}, 3
        s_and_b32 {s(S_FB)}, {s(S_N)}, 15
        s_lshr_b32 {s(S_T1)}, {s(S_N)}, 4
        s_lshl_b32 {s(S_RB)}, {s(S_J)}, 1
        s_add_u32 {s(S_RB)}, {s(S_RB)}, {s(S_T1)}
        s_mov_b32 {s(S_CB)}, {s(S_Q)}
        s_mul_i32 {s(S_XB)}, {s(S_T1)}, 12288
        s_mul_i32 {s(S_T0)}, {s(S_W)}, {WPW}
        s_add_u32 {s(S_XB)}, {s(S_XB)}, {s(S_T0)}
        s_lshl_b32 {s(S_T0)}, {s(S_Q)}, 7
        s_and_b32 {s(S_T1)}, {s(S_T0)}, 0x200
        ''')
        for i in range(4):
            A(f's_add_u32 {s(S_T2)}, {s(S_T0)}, {128*i}\ns_and_b32 {s(S_T2)}, {s(S_T2)}, 0x180\ns_or_b32 {s(S_XO+i)}, {s(S_T2)}, {s(S_T1)}')
        self.srd(SRD_X, 2097152); self.srd(SRD_WS, WS_SIZE); self.srd(SRD_W2, 1835008); self.srd(SRD_W1, 1835008)
        self.srd(SRD_B1, 3584); self.srd(SRD_B2, 1024); self.srd(SRD_OUT, 2097152)
        A(f'''
        s_lshl_b32 {s(S_T0)}, {s(S_W)}, 19
        s_lshl_b32 {s(S_T1)}, {s(S_S1)}, 10
        s_add_u32 {s(S_T0)}, {s(S_T0)}, {s(S_T1)}
        v_lshrrev_b32 v12, 3, {v(V_LANE)}
        v_and_b32 v13, 7, {v(V_LANE)}
        v_xor_b32 v13, v13, {v(V_G)}
        v_lshlrev_b32 v13, 4, v13
        v_lshl_add_u32 v6, v12, 15, v13
        v_add_u32 {v(V_XD)}, {s(S_T0)}, v6
        v_xor_b32 v6, 64, {v(V_XD)}
        v_add_u32 {v(V_XD+1)}, {8*32768 - 1024}, v6
        ''')
        A(f'''
        s_lshl_b32 {s(S_T0)}, {s(S_Q)}, 5
        v_lshrrev_b32 v6, 2, {v(V_L15)}
        v_and_b32 v7, 3, {v(V_L15)}
        v_lshl_add_u32 v6, v6, 3, v7
        v_add_u32 v6, {s(S_T0)}, v6
        v_add_u32 v7, 4, v6
        v_cmp_eq_u32 vcc, 0, v6
        v_mov_b32 v8, 0x100
        v_cndmask_b32 v6, v6, v8, vcc
        v_cvt_f32_u32 v6, v6
        v_cvt_f32_u32 v7, v7
        v_mul_f32 v6, {f2u(1/512)}, v6
        v_mul_f32 v7, {f2u(1/512)}, v7
        s_add_u32 {s(S_T0)}, {s(S_W)}, {s(S_Q)}
        s_and_b32 {s(S_T0)}, {s(S_T0)}, 3
        s_lshl_b32 {s(S_T0)}, {s(S_T0)}, 6
        v_lshl_add_u32 v8, {v(V_G)}, 3, {s(S_T0)}
        v_cvt_f32_u32 v8, v8
        v_add_f32 v9, {f2u(32.0)}, v8
        s_lshl_b32 {s(S_T0)}, {s(S_W)}, 13
        s_add_u32 {s(S_T0)}, {s(S_T0)}, {L_TAB}
        v_add_u32 v10, {s(S_T0)}, {v(V_L16)}
        ''')
        def tab(kk, et):
            b = SC + 32 * et
            A(f'v_mul_f32 {v(b)}, {v(6+et)}, {v(8+kk)}')
            for j in range(1, 8):
                A(f'v_add_f32 {v(b+j)}, {v(b+j-1)}, {v(6+et)}')
            for j in range(8):
                A(f'v_cos_f32 {v(b+8+j)}, {v(b+j)}')
                A(f'v_sin_f32 {v(b+16+j)}, {v(b+j)}')
            for j in range(4):
                A(f'v_cvt_pk_bf16_f32 {v(b+24+j)}, {v(b+8+2*j)}, {v(b+9+2*j)}')
            for j in range(4):
                A(f'v_cvt_pk_bf16_f32 {v(b+28+j)}, {v(b+16+2*j)}, {v(b+17+2*j)}')
            A(f'ds_write_b128 v10, {v(b+24,4)} offset:{(kk*4+et*2)*1024}')
            A(f'ds_write_b128 v10, {v(b+28,4)} offset:{(kk*4+et*2+1)*1024}')
        npre = self.opt.get('tabpre', 1)
        tabs = [(0, 0), (0, 1), (1, 0), (1, 1)]
        for t in tabs[:npre]: tab(*t)
        A(f's_mov_b32 {s(S_T2)}, {FE}')
        A('s_waitcnt lgkmcnt(0)')
        self.stamp('kernarg')
        xm = []
        def xdma(i):
            A(f's_add_u32 m0, {s(S_XB)}, {i*2048}')
            so = S_XO + (i >> 1)
            if i & 1:
                A(f's_xor_b32 {s(S_T0)}, {s(so)}, 0x200'); so = S_T0
            A(f'buffer_load_dwordx4 {v(V_XD)}, {s(SRD_X,4)}, {s(so)} offen lds')
            A(f'buffer_load_dwordx4 {v(V_XD+1)}, {s(SRD_X,4)}, {s(so)} offen offset:1024 lds')
            xm.append(A.nvm)
        NX0 = self.opt.get('nx0', 5)
        xdma(0)
        A(f'buffer_load_dwordx2 {v(V_TAG,2)}, off, {s(SRD_WS,4)}, {s(S_T2)} sc1')
        for i in range(1, NX0): xdma(i)
        A(f'''
        s_mul_i32 {s(S_WB)}, {s(S_W)}, {WPW}
        s_mul_i32 {s(S_SB)}, {s(S_W)}, {SPW}
        s_add_u32 {s(S_SB)}, {s(S_SB)}, {L_S}
        ''')
        for t in tabs[npre:]: tab(*t)
        A(f'v_add_u32 v10, {L_TAB}, {v(V_L16)}')
        b = SC
        A(f'''
        s_lshl_b32 {s(S_T0)}, {s(S_W)}, 3
        v_lshrrev_b32 v6, 1, {v(V_L15)}
        v_add_u32 v6, {s(S_T0)}, v6
        v_and_b32 v7, 1, {v(V_L15)}
        v_cvt_f32_u32 v9, v7
        v_mul_f32 v9, {f2u(-0.25)}, v9
        v_lshl_add_u32 v8, v6, 1, v7
        v_cmp_eq_u32 vcc, 1, v8
        v_cndmask_b32 v6, v6, 32, vcc
        v_cndmask_b32 v9, v9, 0, vcc
        v_cvt_f32_u32 v6, v6
        v_mul_f32 v6, {f2u(1/64)}, v6
        v_lshlrev_b32 v8, 2, {v(V_G)}
        v_cvt_f32_u32 v8, v8
        v_fma_f32 v9, v6, v8, v9
        s_waitcnt lgkmcnt(0)
        s_barrier
        ''')
        def tabrd(f0, f1):
            for f in range(f0, f1): A(f'ds_read_b128 {a(4*f,4)}, v10 offset:{f*1024}')
        tabrd(0, 12)
        for blk in range(4):
            for j in range(4):
                c = 16 * blk + j
                if c == 0: A(f'v_mov_b32 {v(b)}, v9')
                else: A(f'v_fmamk_f32 {v(b+4*blk+j)}, v6, {f2u(float(c))}, v9')
        A('s_waitcnt lgkmcnt(2)')
        tabrd(12, 24)
        for j in range(16):
            A(f'v_cos_f32 {v(b+16+j)}, {v(b+j)}')
        A('s_waitcnt lgkmcnt(2)')
        tabrd(24, 32)
        for j in range(8):
            A(f'v_cvt_pk_bf16_f32 {v(R1+j)}, {v(b+16+2*j)}, {v(b+17+2*j)}')
        A(f'''
        v_and_b32 v6, 1, {v(V_LANE)}
        v_lshlrev_b32 v6, 31, v6
        v_or_b32 {v(V_SGN)}, 1.0, v6
        s_cmp_ge_u32 {s(S_Q)}, 4
        s_cselect_b64 vcc, -1, 0
        v_mov_b32 {v(V_ONE)}, 1.0
        v_cndmask_b32 {v(V_FAC)}, {v(V_ONE)}, {v(V_SGN)}, vcc
        s_lshl_b32 {s(S_T0)}, {s(S_W)}, 19
        s_lshl_b32 {s(S_T1)}, {s(S_Q)}, 13
        s_add_u32 {s(S_T0)}, {s(S_T0)}, {s(S_T1)}
        s_lshl_b32 {s(S_T1)}, {s(S_S1)}, 8
        s_add_u32 {s(S_T0)}, {s(S_T0)}, {s(S_T1)}
        v_lshlrev_b32 v6, 17, {v(V_G)}
        v_lshl_add_u32 v6, {v(V_L15)}, 4, v6
        v_add_u32 {v(V_ZO)}, {s(S_T0)}, v6
        s_lshr_b32 {s(S_T0)}, {s(S_W)}, 1
        s_lshl_b32 {s(S_T0)}, {s(S_T0)}, 10
        s_and_b32 {s(S_T1)}, {s(S_W)}, 1
        s_lshl_b32 {s(S_T1)}, {s(S_T1)}, 3
        s_add_u32 {s(S_T0)}, {s(S_T0)}, {s(S_T1)}
        s_add_u32 {s(S_T0)}, {s(S_T0)}, {L_EXC}
        v_add_u32 {v(V_EW)}, {s(S_T0)}, {v(V_L16)}
        v_lshrrev_b32 v6, 1, {v(V_L15)}
        v_xor_b32 v6, v6, {v(V_G)}
        v_lshlrev_b32 v6, 4, v6
        v_lshl_add_u32 v15, {v(V_L15)}, 7, v6
        v_add_u32 {v(V_XR)}, {s(S_XB)}, v15
        v_xor_b32 v6, 64, v15
        v_add_u32 {v(V_XR+1)}, {s(S_XB)}, v6
        v_mov_b32 {v(SQ)}, 0
        v_mov_b32 {v(SQ+1)}, 0
        ''')
        for i in range(4): A(f'v_mov_b32 {v(ONES+i)}, 0x3f803f80')
        self.w1_addr_setup()
        LI = A.newlabel('ri'); LJ = A.newlabel('rj')
        A(f's_cmp_ge_u32 {s(S_N)}, 16\ns_cbranch_scc1 {LI}')
        self.w1_soff(S_ASO, 3)
        self.p2_rowbase(S_T3)
        A(f'''
        s_add_u32 {s(S_AM0)}, {s(S_WB)}, {3*7168}
        s_mov_b32 {s(S_BSO)}, 0
        s_add_u32 {s(S_BM0)}, {s(S_WB)}, 16384
        s_mov_b64 {s(SRD_B,2)}, {s(SRD_X,2)}
        s_mov_b64 {s(SRD_B+2,2)}, {s(SRD_X+2,2)}
        v_mov_b32 {v(V_A0)}, {v(V_W1A)}
        s_lshl_b32 {s(S_T3)}, {s(S_T3)}, 10
        s_lshl_b32 {s(S_T0)}, {s(S_W)}, 7
        s_add_u32 {s(S_T1)}, {s(S_T3)}, {s(S_T0)}
        s_sub_u32 {s(S_T2)}, {s(S_T3)}, {s(S_T0)}
        s_add_u32 {s(S_T2)}, {s(S_T2)}, 896
        v_lshl_add_u32 v6, v12, 16, v13
        v_xor_b32 v7, 64, v6
        v_add_u32 v7, {8*65536}, v7
        v_add_u32 {v(V_BA)}, {s(S_T1)}, v6
        v_add_u32 {v(V_BA+1)}, {s(S_T1)}, v7
        v_add_u32 {v(V_BA+2)}, {s(S_T2)}, v6
        v_add_u32 {v(V_BA+3)}, {s(S_T2)}, v7
        s_branch {LJ}
        ''')
        A.label(LI)
        self.w1_soff(S_ASO, 0); self.w1_soff(S_BSO, 1)
        A(f'''
        s_mov_b32 {s(S_AM0)}, {s(S_WB)}
        s_add_u32 {s(S_BM0)}, {s(S_WB)}, 7168
        s_mov_b64 {s(SRD_B,2)}, {s(SRD_W1,2)}
        s_mov_b64 {s(SRD_B+2,2)}, {s(SRD_W1+2,2)}
        v_mov_b32 {v(V_A0)}, {v(V_W1A+7)}
        ''')
        for i in range(4): A(f'v_mov_b32 {v(V_BA+i)}, {v(V_W1A+i)}')
        A.label(LJ)
        self.stamp('tables')
        for i in range(NX0, 8): xdma(i)
        pf = []
        for i in range(4):
            def f(i=i):
                A(f's_add_u32 m0, {s(S_BM0)}, {i*1024}')
                A(f'buffer_load_dwordx4 {v(V_BA+i)}, {s(SRD_B,4)}, {s(S_BSO)} offen lds')
            pf.append(f)
        for i in range(7):
            def f(i=i):
                A(f's_add_u32 m0, {s(S_AM0)}, {i*1024}')
                A(f'buffer_load_dwordx4 {v(V_A0 if i == 0 else V_W1A+i)}, {s(SRD_W1,4)}, {s(S_ASO)} offen lds')
            pf.append(f)
        xl = []
        def xrd(i):
            A.wait(vm=xm[i])
            for kk in range(2):
                A(f'ds_read_b128 {v(X+8*i+4*kk,4)}, {v(V_XR+kk)} offset:{i*2048}')
            xl.append(A.nlg)
        xrd(0)
        self.stamp('x first')
        xrd(1)
        A(f'''
        v_add_u32 {v(V_TAG)}, 0x9e3779b0, {v(V_TAG)}
        v_add_u32 {v(V_TAG+1)}, 0x7f4a7c15, {v(V_TAG+1)}
        s_getreg_b32 {s(S_T0)}, hwreg(HW_REG_XCC_ID)
        s_and_b32 {s(S_T0)}, {s(S_T0)}, 15
        v_add_u32 v178, {s(S_T0)}, {v(V_TAG)}
        v_mov_b32 v179, {v(V_TAG+1)}
        s_lshl_b32 {s(S_T0)}, {s(S_J)}, 8
        s_lshl_b32 {s(S_T1)}, {s(S_N)}, 3
        s_add_u32 {s(S_T0)}, {s(S_T0)}, {s(S_T1)}
        s_add_u32 {s(S_T0)}, {s(S_T0)}, {FX}
        s_mov_b64 exec, 1
        buffer_store_dwordx2 v[178:179], off, {s(SRD_WS,4)}, {s(S_T0)} sc1
        s_mov_b64 exec, -1
        ''')
        PF0 = self.opt.get('pf0', 2)
        for i in range(8):
            ip, hp = i >> 1, i & 1
            if i + 2 < 8: xrd(i + 2)
            A.wait(lg=xl[i])
            for kk in range(2):
                xa = X + 8 * i + 4 * kk
                for t in range(4):
                    acc = ACC + 16 * hp + 4 * t
                    cin = '0' if (ip == 0 and kk == 0) else v(acc, 4)
                    A(f'v_mfma_f32_16x16x32_bf16 {v(acc,4)}, {v(xa,4)}, {a(32*ip+16*kk+4*t,4)}, {cin}')
                    A(f'v_dot2c_f32_bf16 {v(SQ + (t&1))}, {v(xa+t)}, {v(xa+t)}')
                cin = '0' if (i == 0 and kk == 0) else v(SUM, 4)
                A(f'v_mfma_f32_16x16x32_bf16 {v(SUM,4)}, {v(xa,4)}, {v(ONES,4)}, {cin}')
                if i >= PF0 and pf: pf.pop(0)()
        self.stamp('gemm1 done')
        A(f'''
        v_add_f32 {v(SQ)}, {v(SQ)}, {v(SQ+1)}
        v_mfma_f32_16x16x4_f32 v[20:23], {v(SQ)}, {v(V_ONE)}, 0
        ''')
        while pf: pf.pop(0)()
        for i in range(16):
            A(f'v_fma_f32 {v(ACC+i)}, {v(ACC+16+i)}, {v(V_SGN)}, {v(ACC+i)}')
        for r in range(4):
            A(f'v_mul_f32 {v(16+r)}, {f2u(1/512)}, {v(SUM+r)}')
        for r in range(4):
            A(f'v_mul_f32 {v(16+r)}, {v(16+r)}, {v(16+r)}')
        A(f's_mov_b32 {s(S_T0)}, {f2u(1/512)}')
        for r in range(4):
            A(f'v_fma_f32 {v(20+r)}, {v(20+r)}, {s(S_T0)}, -{v(16+r)}')
        for r in range(4):
            A(f'v_max_f32 {v(20+r)}, 0, {v(20+r)}')
        for r in range(4):
            A(f'v_add_f32 {v(20+r)}, {f2u(1e-5)}, {v(20+r)}')
        for r in range(4):
            A(f'v_rsq_f32 {v(20+r)}, {v(20+r)}')
        for r in range(4):
            A(f'v_mul_f32 {v(20+r)}, {v(20+r)}, {v(V_FAC)}')
        for t in range(4):
            for r in range(0, 4, 2):
                A(f'v_pk_mul_f32 {v(ACC+4*t+r,2)}, {v(ACC+4*t+r,2)}, {v(20+r,2)}')
            A(f'v_cvt_pk_bf16_f32 {v(24+2*t)}, {v(ACC+4*t)}, {v(ACC+4*t+1)}')
            A(f'v_cvt_pk_bf16_f32 {v(25+2*t)}, {v(ACC+4*t+2)}, {v(ACC+4*t+3)}')
            A(f'ds_write_b64 {v(V_EW)}, {v(24+2*t,2)} offset:{t*2048}')
        A(f'v_add_u32 v10, {L_EXC}, {v(V_L16)}')
        A('s_waitcnt lgkmcnt(0)\ns_barrier')
        for f in range(8):
            A(f'ds_read_b128 {v(32+4*f,4)}, v10 offset:{f*1024}')
        A(f'''
        s_lshl_b32 {s(S_T0)}, {s(S_W)}, 11
        s_lshr_b32 {s(S_T1)}, {s(S_Q)}, 1
        s_lshl_b32 {s(S_T1)}, {s(S_T1)}, 9
        s_add_u32 {s(S_T0)}, {s(S_T0)}, {s(S_T1)}
        s_lshl_b32 {s(S_T1)}, {s(S_S1)}, 4
        s_add_u32 {s(S_T0)}, {s(S_T0)}, {s(S_T1)}
        s_and_b32 {s(S_T1)}, {s(S_Q)}, 1
        s_lshl_b32 {s(S_T1)}, {s(S_T1)}, 3
        s_add_u32 {s(S_T0)}, {s(S_T0)}, {s(S_T1)}
        s_add_u32 {s(S_AM0)}, {s(S_T0)}, {F1}
        s_mov_b32 {s(S_T1)}, 65536
        ''')
        for t in range(4):
            A(f's_waitcnt lgkmcnt({6-2*t})')
            A(f'v_mfma_f32_16x16x32_bf16 {v(64+4*t,4)}, {v(R1,4)}, {v(32+8*t,4)}, 0')
            A(f'v_mfma_f32_16x16x32_bf16 {v(64+4*t,4)}, {v(R1+4,4)}, {v(36+8*t,4)}, {v(64+4*t,4)}')
        for k in range(2):
            for t in range(4):
                A(f'v_cvt_pk_bf16_f32 {v(80+4*k+t)}, {v(64+4*t+2*k)}, {v(65+4*t+2*k)}')
            A(f'buffer_store_dwordx4 {v(80+4*k,4)}, {v(V_ZO)}, {s(SRD_WS,4)}, {"0" if k == 0 else s(S_T1)} offen sc1')
        self.stamp('Z stores')
        self.zst = A.nvm

    def p2_rowbase(self, dst):
        self.A(f'''
        s_sub_u32 {s(S_T0)}, 64, {s(S_U2)}
        s_cmp_eq_u32 {s(S_U2)}, 0
        s_cselect_b32 {s(S_T0)}, 32, {s(S_T0)}
        s_cmp_ge_u32 {s(S_RQ)}, 2
        s_cselect_b32 {s(dst)}, {s(S_T0)}, {s(S_U2)}
        s_and_b32 {s(S_T0)}, {s(S_RQ)}, 1
        s_lshl_b32 {s(S_T0)}, {s(S_T0)}, 10
        s_add_u32 {s(dst)}, {s(dst)}, {s(S_T0)}
        ''')

    def bias_load(self):
        A = self.A
        A(f'''
        s_mul_i32 {s(S_T0)}, {s(S_FB)}, 224
        v_lshlrev_b32 v6, 3, {v(V_LANE)}
        s_mov_b64 exec, {(1<<28)-1}
        buffer_load_dwordx2 v[180:181], v6, {s(SRD_B1,4)}, {s(S_T0)} offen
        s_mov_b64 exec, -1
        ''')
    def bias_spread(self):
        A = self.A
        A(f'v_lshlrev_b32 v6, 2, {v(V_G)}')
        for ft in range(7):
            for d in range(2):
                A(f'ds_bpermute_b32 {v(V_BIAS+2*ft+d)}, v6, {v(180+d)} offset:{16*ft}')
    def fx_load(self):
        A = self.A
        A(f'''
        s_lshl_b32 {s(S_T0)}, {s(S_J)}, 8
        s_add_u32 {s(S_T0)}, {s(S_T0)}, {FX}
        v_and_b32 v6, 31, {v(V_LANE)}
        v_lshlrev_b32 v6, 3, v6
        buffer_load_dwordx2 v[182:183], v6, {s(SRD_WS,4)}, {s(S_T0)} offen sc1
        ''')
    def fx_eval(self):
        A = self.A
        A(f'''
        v_cmp_ne_u64 vcc, v[182:183], v[178:179]
        s_cmp_eq_u64 vcc, 0
        s_cselect_b32 {s(S_FAST)}, 1, 0
        ''')

    def p2(self):
        A = self.A
        ZF, TB, XR, SC, H = 16, 80, 112, 132, 208
        S_TB, S_PHI, S_MSK = 48, 49, 50
        self.p2_rowbase(S_TB)
        A(f'''
        v_lshl_add_u32 v11, {v(V_L15)}, 6, {s(S_TB)}
        s_lshl_b32 {s(S_T0)}, {s(S_W)}, 7
        s_sub_u32 {s(S_T0)}, 1024, {s(S_T0)}
        s_cmp_eq_u32 {s(S_W)}, 0
        s_cselect_b32 {s(S_T0)}, 512, {s(S_T0)}
        v_lshlrev_b32 v7, 10, v11
        s_mov_b64 exec, 0xffff
        buffer_load_ushort {v(XR+18)}, v7, {s(SRD_X,4)}, {s(S_T0)} offen
        s_mov_b64 exec, -1
        ''')
        self.bias_load()
        mb = A.nvm
        for f in self.w1_ops(0, 0, 7, S_T2) + self.w1_ops(1, 0, 4, S_T2): f()
        A.wait(vm=self.zst)
        self.setflag(S_AM0, ' sc1')
        self.stamp('F1 set')
        A(f'''
        s_add_u32 {s(S_T0)}, {s(S_WB)}, 16384
        v_add_u32 v6, {s(S_T0)}, v15
        v_xor_b32 v7, 64, v15
        v_add_u32 v7, {s(S_T0)}, v7
        v_xor_b32 v8, 0x70, v15
        v_add_u32 v8, {s(S_T0)}, v8
        v_xor_b32 v9, 0x30, v15
        v_add_u32 v9, {s(S_T0)}, v9
        ds_read_b128 {v(XR,4)}, v6
        ds_read_b128 {v(XR+4,4)}, v7
        ds_read_b128 {v(XR+8,4)}, v8 offset:2048
        ds_read_b128 {v(XR+12,4)}, v9 offset:2048
        v_lshrrev_b32 v6, 1, {v(V_L15)}
        v_sub_u32 v7, 8, {v(V_G)}
        v_and_b32 v7, 7, v7
        v_xor_b32 v7, v7, v6
        v_lshlrev_b32 v7, 4, v7
        v_lshl_add_u32 v7, {v(V_L15)}, 7, v7
        v_xor_b32 v8, 64, v7
        v_add_u32 v7, {s(S_T0)}, v7
        v_add_u32 v8, {s(S_T0)}, v8
        ds_read_u16 {v(XR+16)}, v7 offset:2048
        ds_read_u16 {v(XR+17)}, v8 offset:2048
        ''')
        A(f'''
        s_cmp_eq_u32 {s(S_U2)}, 0
        s_cselect_b32 {s(S_T1)}, 0, {f2u(-0.25)}
        s_cselect_b32 {s(S_T2)}, 0xffff0000, -1
        s_cselect_b32 {s(S_T3)}, 0xffff, -1
        s_cmp_ge_u32 {s(S_RQ)}, 2
        s_cselect_b32 {s(S_PHI)}, {s(S_T1)}, {f2u(0.25)}
        s_cselect_b32 {s(S_MSK)}, {s(S_T2)}, {s(S_T3)}
        v_cvt_f32_u32 v11, v11
        v_mul_f32 v11, {f2u(1/2048)}, v11
        s_lshl_b32 {s(S_T0)}, {s(S_RQ)}, 3
        v_add_u32 v10, {s(S_T0)}, {v(V_G)}
        ''')
        for half in range(2):
            b = SC
            for j in range(4):
                ks = 4 * half + j
                A(f'v_add_u32 v6, {4*ks}, v10\nv_and_b32 v6, 31, v6\nv_cvt_f32_u32 v6, v6')
                A(f'v_mul_f32 {v(b+2*j)}, v6, v11')
                A(f'v_add_f32 {v(b+2*j+1)}, {s(S_PHI)}, {v(b+2*j)}')
            for j in range(8):
                A(f'v_cos_f32 {v(b+8+j)}, {v(b+j)}')
                A(f'v_sin_f32 {v(b+16+j)}, {v(b+j)}')
            for j in range(4):
                d = TB + 4 * (4 * half + j)
                A(f'v_cvt_pk_bf16_f32 {v(d)}, {v(b+8+2*j)}, {v(b+9+2*j)}')
                A(f'v_cvt_pk_bf16_f32 {v(d+3)}, {v(b+16+2*j)}, {v(b+17+2*j)}')
                A(f'v_and_b32 {v(d)}, {s(S_MSK)}, {v(d)}')
                A(f'v_and_b32 {v(d+3)}, {s(S_MSK)}, {v(d+3)}')
                A(f'v_mov_b32 {v(d+2)}, {v(d)}')
                A(f'v_xor_b32 {v(d+1)}, 0x80008000, {v(d+3)}')
        A.wait(vm=mb, lg=A.nlg)
        self.bias_spread()
        def unp(dst, r, hi):
            if hi: A(f'v_and_b32 {v(dst)}, 0xffff0000, {v(r)}')
            else: A(f'v_lshlrev_b32 {v(dst)}, 16, {v(r)}')
        A(f'''
        v_cmp_eq_u32 vcc, 0, {v(V_G)}
        v_cndmask_b32 {v(XR+16)}, {v(XR+16)}, {v(XR+18)}, vcc
        s_cmp_eq_u32 {s(S_W)}, 0
        s_cselect_b64 {s(S_M,2)}, vcc, 0
        ''')
        for k in range(16): unp(H + k, XR + k // 2, k & 1)
        for q1 in range(2):
            unp(H + 16 + 8 * q1, XR + 16 + q1, 0)
            for j in range(1, 8): unp(H + 16 + 8 * q1 + j, XR + 8 + 4 * q1 + (8 - j) // 2, (8 - j) & 1)
        A(f'v_mov_b32 {v(XR+19)}, {v(H)}')
        self.w2_addr_setup()
        self.fx_load()
        A(f'''
        s_lshr_b32 {s(S_T0)}, {s(S_U2)}, 3
        s_lshl_b32 {s(S_T0)}, {s(S_T0)}, 11
        s_lshl_b32 {s(S_T1)}, {s(S_W)}, 9
        s_add_u32 {s(S_T0)}, {s(S_T0)}, {s(S_T1)}
        s_add_u32 {s(S_T0)}, {s(S_T0)}, {F1}
        v_lshl_add_u32 v6, {v(V_LANE)}, 3, {s(S_T0)}
        s_lshl_b32 {s(S_T2)}, {s(S_U2)}, 16
        s_lshl_b32 {s(S_T1)}, {s(S_W)}, 14
        s_add_u32 {s(S_T2)}, {s(S_T2)}, {s(S_T1)}
        v_add_u32 v12, {s(S_T2)}, {v(V_L16)}
        v_add_u32 v13, 8192, v12
        s_lshl_b32 {s(S_T3)}, {s(S_RQ)}, 11
        ''')
        self.stamp('p2 prepoll')
        self.poll(6, 64, 8)
        self.stamp('p2 polled')
        zm = []
        def zld(kp):
            if kp: A(f's_add_u32 {s(S_T3)}, {s(S_T3)}, 2048\ns_and_b32 {s(S_T3)}, {s(S_T3)}, 0x1800')
            for kk in range(2):
                for q1 in range(2):
                    n = 4 * kp + 2 * kk + q1
                    A(f'buffer_load_dwordx4 {v(ZF+4*n,4)}, {v(12+q1)}, {s(SRD_WS,4)}, {s(S_T3)} offen offset:{kk*1024} sc1')
                    zm.append(A.nvm)
        for kp in range(3): zld(kp)
        self.fx_eval()
        pf = self.w1_ops(1, 4, 7, S_T2) + self.w1_ops(2, 0, 7, S_T2)
        for n in range(16):
            ks, q1 = n >> 1, n & 1
            A.wait(vm=zm[n])
            if n == 0: self.stamp('Z first')
            for et in range(2):
                for var in range(2):
                    acc = H + 16 * var + 8 * q1 + 4 * et
                    A(f'v_mfma_f32_16x16x16_bf16 {v(acc,4)}, {v(ZF+4*n+2*et,2)}, {v(TB+4*ks+2*var,2)}, {v(acc,4)}')
            if n == 1: zld(3)
            if n >= self.opt.get('pf2', 8) and pf: pf.pop(0)()
        self.stamp('Z landed')
        A(f'''
        s_lshl_b32 {s(S_T0)}, {s(S_W)}, 3
        s_add_u32 {s(S_T0)}, {s(S_T0)}, {L_S+4096}
        v_lshlrev_b32 v10, 5, {v(V_L15)}
        v_add_u32 v11, {s(S_T0)}, v10
        v_add_u32 v10, {s(S_SB)}, v10
        ''')
        while pf: pf.pop(0)()
        A(f'v_cndmask_b32 {v(H)}, {v(H)}, {v(XR+19)}, {s(S_M,2)}')
        A(f'v_pk_add_f32 v[6:7], {v(H,2)}, {v(H+2,2)}')
        A(f'v_pk_mul_f32 v[8:9], {v(H,2)}, {v(H,2)}')
        A(f'v_pk_fma_f32 v[8:9], {v(H+2,2)}, {v(H+2,2)}, v[8:9]')
        for k in range(4, 32, 2):
            A(f'v_pk_add_f32 v[6:7], v[6:7], {v(H+k,2)}')
            A(f'v_pk_fma_f32 v[8:9], {v(H+k,2)}, {v(H+k,2)}, v[8:9]')
        A(f'''
        v_add_f32 v6, v6, v7
        v_add_f32 v7, v8, v9
        v_mov_b32 v8, v6
        v_mov_b32 v9, v7
        v_permlane16_swap_b32 v6, v8
        v_permlane16_swap_b32 v7, v9
        v_add_f32 v6, v6, v8
        v_add_f32 v7, v7, v9
        v_mov_b32 v8, v6
        v_mov_b32 v9, v7
        v_permlane32_swap_b32 v6, v8
        v_permlane32_swap_b32 v7, v9
        v_add_f32 v6, v6, v8
        v_add_f32 v7, v7, v9
        v_mul_u32_u24 v8, {SPW}, {v(V_G)}
        v_add_u32 v11, v11, v8
        ds_write_b64 v11, v[6:7]
        s_lshl_b32 {s(S_T0)}, {s(S_U2)}, 2
        s_add_u32 {s(S_T0)}, {s(S_T0)}, {s(S_RQ)}
        s_lshl_b32 {s(S_T1)}, {s(S_T0)}, 14
        s_lshl_b32 {s(S_T2)}, {s(S_W)}, 12
        s_add_u32 {s(S_T1)}, {s(S_T1)}, {s(S_T2)}
        s_add_u32 {s(S_T1)}, {s(S_T1)}, {WS_HN}
        s_lshl_b32 {s(S_T2)}, {s(S_T0)}, 7
        s_add_u32 {s(S_T2)}, {s(S_T2)}, {WS_ST}
        s_lshl_b32 {s(S_T0)}, {s(S_T0)}, 5
        s_lshl_b32 {s(S_T3)}, {s(S_W)}, 3
        s_add_u32 {s(S_T0)}, {s(S_T0)}, {s(S_T3)}
        s_add_u32 {s(S_AM0)}, {s(S_T0)}, {F2}
        s_waitcnt lgkmcnt(0)
        s_barrier
        ds_read_b128 v[16:19], v10 offset:4096
        ds_read_b128 v[20:23], v10 offset:4112
        v_lshlrev_b32 v10, 3, {v(V_L15)}
        s_waitcnt lgkmcnt(0)
        v_pk_add_f32 v[16:17], v[16:17], v[18:19]
        v_pk_add_f32 v[20:21], v[20:21], v[22:23]
        v_pk_add_f32 v[16:17], v[16:17], v[20:21]
        v_mul_f32 v16, {f2u(1/512)}, v16
        v_mul_f32 v17, {f2u(1/512)}, v17
        v_fma_f32 v17, -v16, v16, v17
        v_max_f32 v17, 0, v17
        v_add_f32 v17, {f2u(1e-5)}, v17
        v_rsq_f32 v18, v17
        v_sqrt_f32 v17, v17
        v_mul_f32 v20, -v16, v18
        ''')
        for n in range(4):
            for k in range(0, 8, 2):
                r = H + 8 * n + k
                A(f'v_pk_fma_f32 {v(r,2)}, {v(r,2)}, v[18:19], v[20:21] op_sel_hi:[1,0,0]')
            for k in range(4):
                A(f'v_cvt_pk_bf16_f32 {v(24+4*n+k)}, {v(H+8*n+2*k)}, {v(H+8*n+2*k+1)}')
        def st(sc):
            for n in range(4):
                A(f'buffer_store_dwordx4 {v(24+4*n,4)}, {v(V_L16)}, {s(SRD_WS,4)}, {s(S_T1)} offen offset:{n*1024}{sc}')
            A(f'''
            s_mov_b64 exec, 0xffff
            buffer_store_dwordx2 v[16:17], v10, {s(SRD_WS,4)}, {s(S_T2)} offen{sc}
            s_mov_b64 exec, -1
            ''')
        self.dual(st)
        self.stamp('hn stores')
        m = A.nvm
        r1 = self.w2_ops(0, 6, S_SB, S_T1)
        n0 = self.opt.get('r1pre', 4)
        for f in r1[:n0]: f()
        A.wait(vm=m)
        self.dual(lambda sc: self.setflag(S_AM0, sc))
        self.stamp('F2 set')
        for f in r1[n0:]: f()
        L = A.newlabel('noe')
        A(f'''
        s_or_b32 {s(S_T0)}, s2, {s(S_W)}
        s_cmp_lg_u32 {s(S_T0)}, 0
        s_cbranch_scc1 {L}
        s_mov_b32 {s(S_T0)}, {FE}
        ''')
        self.setflag(S_T0, ' sc1')
        A.label(L)

    def p2_idle(self):
        A = self.A
        self.bias_load()
        mb = A.nvm
        for f in self.w1_ops(1, 4, 7, S_T2) + self.w1_ops(2, 0, 7, S_T2): f()
        A.wait(vm=self.zst)
        self.setflag(S_AM0, ' sc1')
        self.stamp('F1 set')
        self.w2_addr_setup()
        A(f'''
        s_bitcmp1_b32 {s(S_N)}, 3
        s_cselect_b32 {s(S_T1)}, {28*8192}, 0
        ''')
        for i in range(28):
            A(f'buffer_load_dwordx4 {v(16+4*i,4)}, {v(V_W2A)}, {s(SRD_W2,4)}, {s(S_T1)} offen')
            A(f's_add_u32 {s(S_T1)}, {s(S_T1)}, 8192')
        for f in self.w1_ops(3, 0, 7, S_T2): f()
        self.fx_load()
        A.wait(vm=mb)
        self.bias_spread()
        A('s_barrier')
        A.wait(vm=A.nvm)
        self.stamp('F2 set')
        self.fx_eval()
        for f in self.w2_ops(0, 6, S_SB, S_T1): f()

    def p3(self):
        A = self.A
        ACC, AF, HN = 16, 72, 96
        V_SR = 100
        A(f'''
        v_lshrrev_b32 v6, 2, {v(V_LANE)}
        v_mul_u32_u24 v6, 224, v6
        v_and_b32 v7, 3, {v(V_LANE)}
        v_lshl_add_u32 v10, v7, 3, v6
        v_add_u32 v11, {2*WPW}, v10
        s_lshl_b32 {s(S_T0)}, {s(S_RB)}, 3
        s_lshl_b32 {s(S_T1)}, {s(S_W)}, 1
        s_add_u32 {s(S_T0)}, {s(S_T0)}, {s(S_T1)}
        s_lshl_b32 {s(S_T2)}, {s(S_T0)}, 14
        s_add_u32 {s(S_T2)}, {s(S_T2)}, {WS_HN}
        v_add_u32 v12, {s(S_T2)}, {v(V_L16)}
        v_add_u32 v13, 16384, v12
        s_lshl_b32 {s(S_T0)}, {s(S_T0)}, 5
        s_add_u32 {s(S_T3)}, {s(S_T0)}, {F2}
        ''')
        self.w2_rd_addr(V_SR, S_SB)
        A(f'v_lshl_add_u32 v6, {v(V_LANE)}, 3, {s(S_T3)}')
        A('s_waitcnt lgkmcnt(0)')
        for ft in range(7):
            for tt in range(2):
                c = ACC + 8 * ft + 4 * tt
                A(f'v_lshlrev_b32 {v(c)}, 16, {v(V_BIAS+2*ft)}')
                A(f'v_and_b32 {v(c+1)}, 0xffff0000, {v(V_BIAS+2*ft)}')
                A(f'v_lshlrev_b32 {v(c+2)}, 16, {v(V_BIAS+1+2*ft)}')
                A(f'v_and_b32 {v(c+3)}, 0xffff0000, {v(V_BIAS+1+2*ft)}')
        A('s_barrier')
        self.stamp('p3 prepoll')
        self.poll(6, 8, 8)
        self.stamp('p3 polled')
        hm = {}
        def hld(ks):
            A(f's_mov_b32 {s(S_T2)}, {(ks//4)*4096}')
            for tt in range(2):
                A(f'buffer_load_dwordx4 {a(HN+8*ks+4*tt,4)}, {v(12+tt)}, {s(SRD_WS,4)}, {s(S_T2)} offen offset:{(ks%4)*1024}{self.ldf}')
            hm[ks] = A.nvm
        LA = self.opt.get('la3', 4)
        for ks in range(LA): hld(ks)
        def trs(rnd):
            ops = []
            for loc in range(6):
                for mt in range(2):
                    for hh in range(2):
                        ops.append(lambda loc=loc, mt=mt, hh=hh: self.w2_rd1(a(48*rnd + 8*loc + 4*mt + 2*hh, 2), V_SR, loc, mt, hh))
            return ops
        for n, f in enumerate(trs(0)):
            f()
            if n == 11: A('s_waitcnt lgkmcnt(4)')
        D, R = 5, 7
        lm = {}
        def rd(p, hh):
            ks, ft = divmod(p, 7)
            wp, w = ks >> 2, ks & 3
            off = (w & 1) * WPW + wp * 7168 + hh * 3584 + ft * 32
            A(f'ds_read_b64_tr_b16 {v(AF+4*(p%R)+2*hh,2)}, {v(10 + (w >> 1))} offset:{off}')
            lm[p] = A.nlg
        A('s_waitcnt lgkmcnt(4)')
        for p in range(D): rd(p, 0); rd(p, 1)
        r2 = self.w2_ops(6, 6, S_SB, S_T1); r3 = self.w2_ops(12, 6, S_SB, S_T1); t2 = trs(1)
        r2m = None; t2m = None
        for p in range(112):
            ks, ft = divmod(p, 7)
            if ft == 0: A.wait(vm=hm[ks], lg=lm[p])
            else: A.wait(lg=lm[p])
            for tt in range(2):
                c = ACC + 8 * ft + 4 * tt
                A(f'v_mfma_f32_16x16x32_bf16 {v(c,4)}, {v(AF+4*(p%R),4)}, {a(HN+8*ks+4*tt,4)}, {v(c,4)}')
                if p + D < 112: rd(p + D, tt)
            if ft == 1 and ks + LA < 16: hld(ks + LA)
            if ft in (3, 5) and r2:
                r2.pop(0)(); r2m = A.nvm
            elif not r2 and t2 and ks >= 8:
                if len(t2) == 24: A.wait(vm=r2m)
                t2.pop(0)(); t2m = A.nlg
            elif not t2 and r3 and ft in (1, 3, 5) and lm.get(p, 0) > t2m:
                r3.pop(0)()
        self.stamp('p3 mfma done')
        A('s_barrier')
        assert not t2
        while r3: r3.pop(0)()
        A(f'''
        s_lshl_b32 {s(S_T0)}, {s(S_RB)}, 2
        s_add_u32 {s(S_T0)}, {s(S_T0)}, {s(S_W)}
        s_mul_i32 {s(S_T1)}, {s(S_T0)}, {112*1024}
        s_mul_i32 {s(S_T2)}, {s(S_FB)}, 7168
        s_add_u32 {s(S_T1)}, {s(S_T1)}, {s(S_T2)}
        s_add_u32 {s(S_T1)}, {s(S_T1)}, {WS_R}
        s_add_u32 {s(S_T2)}, {s(S_T1)}, 4096
        s_lshr_b32 {s(S_T3)}, {s(S_T0)}, 1
        s_lshl_b32 {s(S_T3)}, {s(S_T3)}, 8
        s_lshl_b32 {s(S_AM0)}, {s(S_FB)}, 4
        s_add_u32 {s(S_T3)}, {s(S_T3)}, {s(S_AM0)}
        s_and_b32 {s(S_T0)}, {s(S_T0)}, 1
        s_lshl_b32 {s(S_T0)}, {s(S_T0)}, 3
        s_add_u32 {s(S_T0)}, {s(S_T0)}, {s(S_T3)}
        s_add_u32 {s(S_AM0)}, {s(S_T0)}, {F3}
        ''')
        A.quiesce(8)
        def epi(sc):
            for ft in range(7):
                c = ACC + 8 * ft; o = 72 + 4 * ft
                for i in range(8): A(f'v_mul_f32 {v(c+i)}, {v(c+i)}, |{v(c+i)}|')
                for i in range(4): A(f'v_cvt_pk_bf16_f32 {v(o+i)}, {v(c+2*i)}, {v(c+2*i+1)}')
                for i in range(4): A(f'v_pk_max_i16 {v(o+i)}, {v(o+i)}, 0')
                A(f'v_permlane16_swap_b32 {v(o)}, {v(o+2)}')
                A(f'v_permlane16_swap_b32 {v(o+1)}, {v(o+3)}')
                A(f'buffer_store_dwordx4 {v(o,4)}, {v(V_L16)}, {s(SRD_WS,4)}, {s(S_T1 if ft < 4 else S_T2)} offen offset:{(ft%4)*1024}{sc}')
        self.dual(epi)
        self.stamp('r stores')
        self.rst = A.nvm

    def p4(self):
        A = self.A
        ACC, BASE, AF, RV = 16, 80, 96, 128
        wops = self.w2_ops(18, 10, S_WB, S_T1)
        n0 = self.opt.get('wpre', 4)
        for f in wops[:n0]: f()
        A.wait(vm=self.rst)
        self.dual(lambda sc: self.setflag(S_AM0, sc))
        self.stamp('F3 set')
        S_MIR = 51
        A(f'''
        s_and_b32 {s(S_T0)}, {s(S_W)}, 1
        s_lshl_b32 {s(S_T0)}, {s(S_T0)}, 1
        s_lshl_b32 {s(S_T1)}, {s(S_U4)}, 2
        s_add_u32 {s(S_T0)}, {s(S_T0)}, {s(S_T1)}
        v_bfe_u32 v6, {v(V_LANE)}, 4, 1
        v_add_u32 v6, {s(S_T0)}, v6
        v_lshlrev_b32 v7, 7, v6
        v_lshl_add_u32 v7, {v(V_L15)}, 3, v7
        v_lshlrev_b32 v6, 14, v6
        v_lshl_add_u32 v6, {v(V_L15)}, 4, v6
        s_lshl_b32 {s(S_T0)}, {s(S_CB)}, 2
        s_and_b32 {s(S_T1)}, {s(S_W)}, 2
        s_add_u32 {s(S_T0)}, {s(S_T0)}, {s(S_T1)}
        v_lshrrev_b32 v8, 5, {v(V_LANE)}
        v_add_u32 v8, {s(S_T0)}, v8
        v_lshlrev_b32 v12, 5, v8
        s_cmp_ge_u32 {s(S_CB)}, 4
        s_cselect_b64 vcc, -1, 0
        s_cselect_b32 {s(S_MIR)}, 2048, 0
        v_sub_u32 v9, 31, v8
        v_cndmask_b32 v9, v8, v9, vcc
        v_lshrrev_b32 v10, 2, v9
        v_and_b32 v11, 3, v9
        v_lshlrev_b32 v10, 12, v10
        v_lshl_add_u32 v10, v11, 9, v10
        v_add_u32 v10, v6, v10
        v_add_u32 v9, 1, v9
        v_bfe_u32 v11, v9, 2, 2
        v_and_b32 v9, 3, v9
        v_lshlrev_b32 v11, 12, v11
        v_lshl_add_u32 v11, v9, 9, v11
        v_add_u32 v11, v6, v11
        s_add_u32 {s(S_T0)}, {s(S_MIR)}, {WS_HN}
        s_mov_b32 {s(S_T1)}, {WS_ST}
        buffer_load_dwordx4 v[208:211], v10, {s(SRD_WS,4)}, {s(S_T0)} offen sc1
        buffer_load_dwordx4 v[212:215], v10, {s(SRD_WS,4)}, {s(S_T0)} offen offset:256 sc1
        buffer_load_ushort v216, v11, {s(SRD_WS,4)}, {s(S_T0)} offen sc1
        buffer_load_dwordx2 v[218:219], v7, {s(SRD_WS,4)}, {s(S_T1)} offen sc1
        buffer_load_dwordx4 v[220:223], v12, {s(SRD_B2,4)}, 0 offen
        buffer_load_dwordx4 v[224:227], v12, {s(SRD_B2,4)}, 0 offen offset:16
        ''')
        for f in wops[n0:]: f()
        V_OO = 228
        A(f'''
        s_sub_u32 {s(S_T0)}, 64, {s(S_U4)}
        s_cmp_eq_u32 {s(S_U4)}, 0
        s_cselect_b32 {s(S_T0)}, 32, {s(S_T0)}
        s_bitcmp1_b32 {s(S_W)}, 0
        s_cselect_b32 {s(S_T0)}, {s(S_T0)}, {s(S_U4)}
        s_lshl_b32 {s(S_T0)}, {s(S_T0)}, 10
        v_and_b32 v6, 31, {v(V_LANE)}
        v_lshlrev_b32 v6, 16, v6
        v_add3_u32 {v(V_OO)}, v6, v12, {s(S_T0)}
        v_mov_b32 v230, v100
        v_mov_b32 v231, v101
        s_sub_u32 {s(S_T0)}, {s(S_WB)}, {s(S_SB)}
        v_add_u32 v232, {s(S_T0)}, v100
        v_add_u32 v233, {s(S_T0)}, v101
        s_lshl_b32 {s(S_T0)}, {s(S_U4)}, 8
        s_lshl_b32 {s(S_T1)}, {s(S_W)}, 6
        s_add_u32 {s(S_T0)}, {s(S_T0)}, {s(S_T1)}
        s_add_u32 {s(S_T0)}, {s(S_T0)}, {F3}
        v_lshl_add_u32 v6, {v(V_LANE)}, 3, {s(S_T0)}
        s_mul_i32 {s(S_T2)}, {s(S_U4)}, {2*112*1024}
        s_mul_i32 {s(S_T1)}, {s(S_W)}, {28*1024}
        s_add_u32 {s(S_T2)}, {s(S_T2)}, {s(S_T1)}
        s_add_u32 {s(S_T2)}, {s(S_T2)}, {WS_R}
        v_add_u32 v12, {s(S_T2)}, {v(V_L16)}
        v_add_u32 v13, {112*1024}, v12
        ''')
        self.stamp('p4 prepoll')
        self.poll(6, 8, 8)
        self.stamp('p4 polled')
        def rreg(i, nt):
            n = 2 * i + nt
            return v(RV + 4 * n, 4) if n < 20 else a(96 + 4 * (n - 20), 4)
        rm = {}
        def rld(i):
            k = KO[i]
            A(f's_mov_b32 {s(S_T2)}, {(k//4)*4096}')
            for nt in range(2):
                A(f'buffer_load_dwordx4 {rreg(i,nt)}, {v(12+nt)}, {s(SRD_WS,4)}, {s(S_T2)} offen offset:{(k%4)*1024}{self.ldf}')
            rm[i] = A.nvm
        LA = self.opt.get('la4', 5)
        for i in range(LA): rld(i)
        def unp(dst, r, hi):
            if hi: A(f'v_and_b32 {v(dst)}, 0xffff0000, {v(r)}')
            else: A(f'v_lshlrev_b32 {v(dst)}, 16, {v(r)}')
        LM = A.newlabel('mir'); LJ = A.newlabel('join')
        A(f's_cmp_ge_u32 {s(S_CB)}, 4\ns_cbranch_scc1 {LM}')
        for k in range(16): unp(BASE + k, 208 + k // 2, k & 1)
        A(f's_branch {LJ}')
        A.label(LM)
        unp(BASE, 216, 0)
        for k in range(1, 16): unp(BASE + k, 208 + (16 - k) // 2, (16 - k) & 1)
        A.label(LJ)
        for k in range(16):
            unp(6, 220 + k // 2, k & 1)
            A(f'v_add_f32 v6, v6, v218')
            A(f'v_fma_f32 {v(BASE+k)}, {v(BASE+k)}, v219, v6')
        def areg(i, mt):
            return a(8 * i + 4 * mt, 4) if i < 12 else v(AF + 8 * (i % 4) + 4 * mt, 4)
        lm = {}
        def rd(i, mt):
            base = AF + 8 * (i % 4) + 4 * mt
            for hh in range(2):
                if i < 18: self.w2_rd1(v(base + 2*hh, 2), 230, i - 12, mt, hh)
                else: self.w2_rd1(v(base + 2*hh, 2), 232, i - 18, mt, hh)
            lm[i] = A.nlg
        D = 3
        for i in range(28):
            A.wait(vm=rm[i], lg=lm.get(i))
            for mt in range(2):
                for nt in range(2):
                    c = ACC + 32 * mt + 16 * nt
                    cin = '0' if i == 0 else v(c, 16)
                    A(f'v_mfma_f32_32x32x16_bf16 {v(c,16)}, {areg(i,mt)}, {rreg(i,nt)}, {cin}')
                    if mt == 0 and nt == 0 and i + LA < 28: rld(i + LA)
                if 12 <= i + D < 28: rd(i + D, mt)
        self.stamp('p4 mfma done')
        LE = A.newlabel('red')
        labs = [A.newlabel('rw') for _ in range(4)]
        A(f'v_add_u32 v6, {s(S_SB)}, {v(V_L16)}')
        A(f'v_add_u32 v7, {L_S}, {v(V_L16)}')
        A.quiesce(12)
        for w in range(1, 4):
            A(f's_cmp_eq_u32 {s(S_W)}, {w}\ns_cbranch_scc1 {labs[w]}')
        for w in range(4):
            A.label(labs[w])
            for T in range(4):
                if T == w: continue
                slot = (T - w - 1) & 3
                for qq in range(4):
                    A(f'ds_write_b128 v6, {v(ACC+16*T+4*qq,4)} offset:{slot*4096 + qq*1024}')
            for k in range(0, 16, 2):
                A(f'v_pk_add_f32 {v(BASE+k,2)}, {v(BASE+k,2)}, {v(ACC+16*w+k,2)}')
            A('s_waitcnt lgkmcnt(0)\ns_barrier')
            n = 0
            for src in range(4):
                if src == w: continue
                slot = (w - src - 1) & 3
                for qq in range(4):
                    A(f'ds_read_b128 {v(128+4*n,4)}, v7 offset:{src*SPW + slot*4096 + qq*1024}'); n += 1
            if w < 3: A(f's_branch {LE}')
        A.label(LE)
        for sl in range(3):
            A(f's_waitcnt lgkmcnt({8-4*sl})')
            for k in range(0, 16, 2):
                A(f'v_pk_add_f32 {v(BASE+k,2)}, {v(BASE+k,2)}, {v(128+16*sl+k,2)}')
        for k in range(8):
            A(f'v_cvt_pk_bf16_f32 {v(96+k)}, {v(BASE+2*k)}, {v(BASE+2*k+1)}')
        A(f'buffer_store_dwordx4 v[96:99], {v(V_OO)}, {s(SRD_OUT,4)}, 0 offen{self.outf}')
        A(f'buffer_store_dwordx4 v[100:103], {v(V_OO)}, {s(SRD_OUT,4)}, 0 offen offset:16{self.outf}')

    def probe_end(self):
        A = self.A
        a_, b_ = self.opt['probe'].split('-')
        if b_ == 'end':
            A('s_waitcnt vmcnt(0)'); self.stamp('end')
        A(f'''
        s_waitcnt lgkmcnt(0)
        s_sub_u32 {s(S_T0)}, {s(S_TS+4)}, {s(S_TS if a_ == 'start' else S_TS+2)}
        s_cmp_ge_u32 {s(S_N)}, {self.opt.get('pmax', 32)}
        s_cselect_b32 {s(S_T0)}, 0, {s(S_T0)}
        s_min_u32 {s(S_T0)}, {s(S_T0)}, 4000
        s_lshl_b32 {s(S_T0)}, {s(S_T0)}, 2
        s_add_u32 {s(S_T0)}, {s(S_T0)}, 4000
        s_add_u32 {s(S_T0)}, {s(S_T0)}, {s(S_TS)}
        L_pspin:
        s_memrealtime {s(S_TS+6,2)}
        s_waitcnt lgkmcnt(0)
        s_sub_u32 {s(S_T1)}, {s(S_TS+6)}, {s(S_T0)}
        s_cmp_lt_i32 {s(S_T1)}, 0
        s_cbranch_scc1 L_pspin
        ''')

    def dump_ts(self):
        if self.opt.get('probe'): return self.probe_end()
        if not self.diag: return
        A = self.A
        A('s_waitcnt vmcnt(0)')
        self.stamp('end')
        A(f'''
        s_lshl_b32 {s(S_T0)}, s2, 2
        s_add_u32 {s(S_T0)}, {s(S_T0)}, {s(S_W)}
        s_lshl_b32 {s(S_T0)}, {s(S_T0)}, 7
        s_add_u32 {s(S_T0)}, {s(S_T0)}, {WS_TS}
        s_getreg_b32 {s(S_T1)}, hwreg(HW_REG_XCC_ID)
        s_waitcnt lgkmcnt(0)
        s_mov_b64 exec, 1
        ''')
        for i in range(20): A(f'v_mov_b32 {v(16+i)}, {s(S_TS+2*i)}')
        A(f'v_mov_b32 v40, {s(S_T1)}')
        A(f'v_mov_b32 v41, {s(S_FAST)}')
        for i in range(5):
            A(f'buffer_store_dwordx4 {v(16+4*i,4)}, off, {s(SRD_WS,4)}, {s(S_T0)} offset:{16*i}')
        A(f'buffer_store_dwordx2 v[40:41], off, {s(SRD_WS,4)}, {s(S_T0)} offset:80')

    def build(self):
        A = self.A
        self.p1()
        LI = A.newlabel('idle'); LJ = A.newlabel('p3')
        A(f's_cmp_ge_u32 {s(S_N)}, 16\ns_cbranch_scc1 {LI}')
        n0, l0 = A.nvm, A.nlg
        self.p2()
        A(f's_branch {LJ}')
        A.label(LI)
        A.nvm, A.nlg = n0, l0
        self.p2_idle()
        A.label(LJ)
        self.p3()
        self.p4()
        self.dump_ts()
        hdr = f'''; FNet (2D DFT, factored) + LayerNorms + squared-ReLU FFN, one persistent launch.
; @launch grid=(256,1,1) block=(256,1,1) lds=163840
''' + (f'; names: {",".join(self.names)}\n' if self.diag else '') + f'''.amdgcn_target "amdgcn-amd-amdhsa--gfx950"
.text
.globl {KNAME}
.p2align 8
.type {KNAME},@function
{KNAME}:
'''
        ftr = f'''L_end:
    s_endpgm
.section .rodata,"a"
.p2align 6
.amdhsa_kernel {KNAME}
  .amdhsa_next_free_vgpr 512
  .amdhsa_next_free_sgpr 102
  .amdhsa_accum_offset 256
  .amdhsa_group_segment_fixed_size 0
  .amdhsa_kernarg_size 104
  .amdhsa_user_sgpr_count 2
  .amdhsa_user_sgpr_kernarg_segment_ptr 1
  .amdhsa_system_sgpr_workgroup_id_x 1
.end_amdhsa_kernel
'''
        return hdr + A.text() + ftr

if __name__ == '__main__':
    out = sys.argv[1]
    opt = {}
    for x in sys.argv[2:]:
        if '=' in x:
            k, val = x.split('='); opt[k] = int(val) if val.lstrip('-').isdigit() else val.replace('_', ' ')
    g = Gen(diag='diag' in sys.argv[2:], opt=opt)
    t = g.build()
    open(out, 'w').write(t)
    print('nops inserted', g.A.nops, 'stamps', len(g.names))
```

```python
import sys
from asmlib import *

KNAME = 'sequential_preLN__spectral_fnet__dense_activation_squared_relu__prompt_kernel'
WS_Z, WS_HN, WS_R, WS_ST, WS_FL, WS_TS = 0, 2 << 20, 4 << 20, 12 << 20, 13 << 20, 14 << 20
WS_SIZE = 16 << 20
F1 = WS_FL + 0x10000
F2 = WS_FL + 0x2000
F3 = WS_FL + 0x4000
FX = WS_FL + 0x6000
FE = WS_FL + 0x7000
WPW = 28672
L_S = 114688
SPW = 12288
L_TAB, L_EXC = L_S, L_S + 32768
S_W = 3
S_T0, S_T1, S_T2, S_T3 = 4, 5, 6, 7
SRD_X, SRD_W1, SRD_W2, SRD_OUT, SRD_WS, SRD_B1, SRD_B2 = 8, 12, 16, 20, 24, 28, 32
S_CNT, S_FAST = 36, 37
S_F1 = S_CNT
S_J, S_N, S_S1, S_Q, S_U2, S_RQ, S_FB, S_RB, S_CB, S_XB = 38, 39, 40, 41, 42, 43, 44, 45, 46, 47
S_U4 = S_S1
S_XO = 48
S_ASO, S_AM0, S_BSO, S_BM0 = 52, 53, 54, 55
SRD_B = 56
S_M = 60
S_TS = 62
S_WB, S_SB = 0, 1
V_LANE, V_L15, V_G, V_L16, V_TAG = 0, 1, 2, 3, 4
V_W2A = 14
V_W1A = 240
V_BIAS = 184
KO = [0, 1, 2, 14, 15, 16,  3, 4, 5, 17, 18, 19,  6, 7, 8, 20, 21, 22,  9, 10, 11, 12, 13, 23, 24, 25, 26, 27]

class TAsm(Asm):
    def __init__(self):
        super().__init__(); self.nvm = 0; self.nlg = 0
    def i(self, text):
        super().i(text)
        c = self.hist[-1]
        if c.is_vmem: self.nvm += 1
        if c.is_ds: self.nlg += 1
    def wait(self, vm=None, lg=None):
        p = []
        if vm is not None: p.append(f'vmcnt({min(63, self.nvm - vm)})')
        if lg is not None: p.append(f'lgkmcnt({min(15, self.nlg - lg)})')
        self('s_waitcnt ' + ' '.join(p))

class Gen:
    def __init__(self, diag=False, opt=None):
        self.A = TAsm(); self.diag = diag; self.nts = 0; self.names = []
        self.opt = opt or {}
        self.fsh = self.opt.get('fsh', 4)
        fl = lambda k, d: (' ' + self.opt[k]).rstrip() if self.opt.get(k, 'pl') != 'pl' else ('' if k in self.opt else d)
        self.stf = fl('stf', ''); self.ldf = fl('ldf', ' sc1'); self.outf = fl('outf', '')
        self.skip = {'kernarg', 'Z first'} if not self.opt.get('early') else {'p4 prepoll', 'F3 set'}

    def stamp(self, name, idx=None):
        pr = self.opt.get('probe')
        if pr:
            a_, b_ = pr.split('-')
            if name == 'start': self.A(f's_memrealtime {s(S_TS, 2)}')
            if name == a_ and name != 'start': self.A(f's_memrealtime {s(S_TS+2, 2)}')
            if name == b_: self.A(f's_memrealtime {s(S_TS+4, 2)}')
            return
        if self.diag and name not in self.skip:
            if name in self.names: idx = self.names.index(name)
            else:
                idx = len(self.names); self.names.append(name)
            assert idx < 20
            self.A(f'{"s_memtime" if self.opt.get("cyc") else "s_memrealtime"} {s(S_TS + 2*idx, 2)}')

    def srd(self, base, nbytes):
        self.A(f's_mov_b32 {s(base+2)}, {nbytes}\ns_mov_b32 {s(base+3)}, 0x20000')

    def poll(self, vaddr, nl, vtmp):
        A = self.A
        L = A.newlabel('poll'); D = A.newlabel('polld')
        if nl < 64: A(f's_mov_b64 exec, {(1<<nl)-1}')
        A(f's_mov_b32 {s(S_CNT)}, 0x20000')
        A.label(L)
        A(f'buffer_load_dwordx2 {v(vtmp,2)}, {v(vaddr)}, {s(SRD_WS,4)}, 0 offen sc1')
        A(f's_sub_u32 {s(S_CNT)}, {s(S_CNT)}, 1')
        A(f's_cbranch_scc1 {D}')
        A('s_waitcnt vmcnt(0)')
        A(f'v_cmp_ne_u64 vcc, {v(vtmp,2)}, {v(V_TAG,2)}')
        A(f's_cbranch_vccnz {L}')
        A.label(D)
        A('s_waitcnt vmcnt(0)')
        if nl < 64: A('s_mov_b64 exec, -1')

    def setflag(self, soff, sc):
        A = self.A
        A('s_mov_b64 exec, 1')
        A(f'buffer_store_dwordx2 {v(V_TAG,2)}, off, {s(SRD_WS,4)}, {s(soff)}{sc}')
        A('s_mov_b64 exec, -1')

    def dual(self, fn, data=False):
        A = self.A
        if self.opt.get('nofast') or (data and self.opt.get('hyb')):
            fn(' sc1'); return
        LS = A.newlabel('slow'); LJ = A.newlabel('dj')
        A(f's_cmp_eq_u32 {s(S_FAST)}, 0\ns_cbranch_scc1 {LS}')
        n0, l0 = A.nvm, A.nlg
        fn(self.stf if data else '')
        A(f's_branch {LJ}')
        A.label(LS)
        A.nvm, A.nlg = n0, l0
        fn(' sc1')
        A.label(LJ)

    def w1_addr_setup(self):
        A = self.A; vdst = V_W1A
        A(f'''
        s_and_b32 {s(S_T0)}, {s(S_W)}, 1
        s_lshl_b32 {s(S_T0)}, {s(S_T0)}, 5
        s_mul_i32 {s(S_T1)}, {s(S_FB)}, 224
        s_mov_b32 {s(S_T2)}, 4682
        s_cmp_ge_u32 {s(S_W)}, 2
        s_cselect_b64 vcc, -1, 0
        s_movk_i32 {s(S_T3)}, 3584
        ''')
        for i in range(7):
            A(f'''
            v_add_u32 v6, {64*i}, {v(V_LANE)}
            v_mul_u32_u24 v7, {s(S_T2)}, v6
            v_lshrrev_b32 v7, 16, v7
            v_mul_u32_u24 v8, 14, v7
            v_sub_u32 v8, v6, v8
            v_bfe_u32 v9, v7, 2, 2
            v_and_b32 v10, 3, v7
            v_lshl_add_u32 v9, v9, 3, v10
            v_lshrrev_b32 v10, 4, v7
            v_lshl_add_u32 v9, v10, 2, v9
            v_add_u32 v9, {s(S_T0)}, v9
            v_sub_u32 v10, 320, v9
            v_cndmask_b32 v10, v9, v10, vcc
            v_lshl_add_u32 v8, v8, 4, {s(S_T1)}
            v_mad_u32_u24 {v(vdst+i)}, v10, {s(S_T3)}, v8
            ''')
            if i == 0:
                A(f'''
                v_mov_b32 v11, 320
                v_cmp_eq_u32 {s(S_M,2)}, v11, v10
                v_mov_b32 v11, 64
                v_cndmask_b32 v10, v10, v11, {s(S_M,2)}
                v_mad_u32_u24 {v(vdst+7)}, v10, {s(S_T3)}, v8
                ''')
    def w1_soff(self, dst, wp):
        self.A(f'''
        s_cmp_ge_u32 {s(S_W)}, 2
        s_mov_b32 {s(dst)}, {64*wp*3584}
        s_cselect_b32 {s(dst)}, {(3-wp)*64*3584}, {s(dst)}
        ''')
    def w1_ops(self, wp, i0, i1, sreg):
        A = self.A; ops = []
        for i in range(i0, i1):
            def f(i=i):
                if i == i0: self.w1_soff(sreg, wp)
                va = V_W1A + 7 if (wp == 0 and i == 0) else V_W1A + i
                A(f's_add_u32 m0, {s(S_WB)}, {wp*7168 + i*1024}')
                A(f'buffer_load_dwordx4 {v(va)}, {s(SRD_W1,4)}, {s(sreg)} offen lds')
            ops.append(f)
        return ops

    def w2_addr_setup(self):
        A = self.A
        A(f'''
        v_lshrrev_b32 v6, 3, {v(V_LANE)}
        v_and_b32 v7, 7, {v(V_LANE)}
        v_lshlrev_b32 v8, 1, v6
        v_and_b32 v8, 4, v8
        v_xor_b32 v7, v7, v8
        v_lshlrev_b32 v7, 4, v7
        v_lshl_add_u32 {v(V_W2A)}, v6, 10, v7
        s_mul_i32 {s(S_T0)}, {s(S_W)}, {448*1024}
        s_lshl_b32 {s(S_T1)}, {s(S_CB)}, 7
        s_add_u32 {s(S_T0)}, {s(S_T0)}, {s(S_T1)}
        v_add_u32 {v(V_W2A)}, {s(S_T0)}, {v(V_W2A)}
        ''')
    def w2_ops(self, pos0, npos, sbase, sreg):
        A = self.A; ops = []
        for loc in range(npos):
            k = KO[pos0 + loc]
            for h in range(2):
                def f(loc=loc, k=k, h=h):
                    A(f's_add_u32 m0, {s(sbase)}, {loc*2048 + h*1024}')
                    A(f's_mov_b32 {s(sreg)}, {(2*k+h)*8192}')
                    A(f'buffer_load_dwordx4 {v(V_W2A)}, {s(SRD_W2,4)}, {s(sreg)} offen lds')
                ops.append(f)
        return ops
    def w2_rd_addr(self, vdst, sbase):
        A = self.A
        A(f'''
        v_lshrrev_b32 v6, 5, {v(V_LANE)}
        v_lshlrev_b32 v6, 10, v6
        v_bfe_u32 v7, {v(V_LANE)}, 2, 2
        v_lshl_add_u32 v6, v7, 7, v6
        v_and_b32 v8, 1, {v(V_LANE)}
        v_lshl_add_u32 v6, v8, 5, v6
        v_bfe_u32 v8, {v(V_LANE)}, 1, 1
        v_lshl_add_u32 v6, v8, 3, v6
        v_bfe_u32 v8, {v(V_LANE)}, 4, 1
        v_lshl_add_u32 v6, v8, 4, v6
        v_bfe_u32 v8, {v(V_LANE)}, 3, 1
        v_lshl_add_u32 v6, v8, 6, v6
        v_add_u32 {v(vdst)}, {s(sbase)}, v6
        v_xor_b32 v6, 64, v6
        v_add_u32 {v(vdst+1)}, {s(sbase)}, v6
        ''')
    def w2_rd1(self, dst, vaddr, loc, mt, hh):
        self.A(f'ds_read_b64_tr_b16 {dst}, {v(vaddr+mt)} offset:{loc*2048 + hh*512}')

    def p1(self):
        A = self.A
        X, SC, R1, ONES, SUM, SQ, ACC = 16, 80, 144, 152, 156, 160, 208
        V_SGN, V_FAC, V_ZO, V_EW, V_XD, V_XR, V_ER, V_BA, V_A0 = 198, 199, 164, 165, 166, 168, 170, 172, 176
        A(f'''
        s_cmp_ge_u32 s2, 256
        s_cbranch_scc1 L_end
        s_load_dwordx2 {s(SRD_X,2)}, s[0:1], 0
        s_load_dwordx2 {s(SRD_WS,2)}, s[0:1], 96
        s_load_dwordx2 {s(SRD_W1,2)}, s[0:1], 48
        s_load_dwordx2 {s(SRD_W2,2)}, s[0:1], 64
        s_load_dwordx2 {s(SRD_B1,2)}, s[0:1], 56
        s_load_dwordx2 {s(SRD_B2,2)}, s[0:1], 72
        s_load_dwordx2 {s(SRD_OUT,2)}, s[0:1], 80
        ''')
        self.stamp('start')
        if self.diag:
            for i in range(2, 40): A(f's_mov_b32 {s(S_TS+i)}, 0')
        A(f'''
        v_lshrrev_b32 v6, 6, v0
        v_and_b32 {v(V_LANE)}, 63, v0
        v_readfirstlane_b32 {s(S_W)}, v6
        v_and_b32 {v(V_L15)}, 15, {v(V_LANE)}
        v_lshrrev_b32 {v(V_G)}, 4, {v(V_LANE)}
        v_lshlrev_b32 {v(V_L16)}, 4, {v(V_LANE)}
        s_and_b32 {s(S_J)}, s2, 7
        s_lshr_b32 {s(S_N)}, s2, 3
        s_and_b32 {s(S_Q)}, {s(S_N)}, 7
        s_lshl_b32 {s(S_T0)}, {s(S_J)}, 2
        s_lshr_b32 {s(S_T1)}, {s(S_N)}, 3
        s_add_u32 {s(S_S1)}, {s(S_T0)}, {s(S_T1)}
        s_bfe_u32 {s(S_T1)}, {s(S_N)}, 0x20002
        s_add_u32 {s(S_U2)}, {s(S_T0)}, {s(S_T1)}
        s_and_b32 {s(S_RQ)}, {s(S_N)}, 3
        s_and_b32 {s(S_FB)}, {s(S_N)}, 15
        s_lshr_b32 {s(S_T1)}, {s(S_N)}, 4
        s_lshl_b32 {s(S_RB)}, {s(S_J)}, 1
        s_add_u32 {s(S_RB)}, {s(S_RB)}, {s(S_T1)}
        s_mov_b32 {s(S_CB)}, {s(S_Q)}
        s_mul_i32 {s(S_XB)}, {s(S_T1)}, 12288
        s_mul_i32 {s(S_T0)}, {s(S_W)}, {WPW}
        s_add_u32 {s(S_XB)}, {s(S_XB)}, {s(S_T0)}
        s_lshl_b32 {s(S_T0)}, {s(S_Q)}, 7
        s_and_b32 {s(S_T1)}, {s(S_T0)}, 0x200
        ''')
        for i in range(4):
            A(f's_add_u32 {s(S_T2)}, {s(S_T0)}, {128*i}\ns_and_b32 {s(S_T2)}, {s(S_T2)}, 0x180\ns_or_b32 {s(S_XO+i)}, {s(S_T2)}, {s(S_T1)}')
        self.srd(SRD_X, 2097152); self.srd(SRD_WS, WS_SIZE); self.srd(SRD_W2, 1835008); self.srd(SRD_W1, 1835008)
        self.srd(SRD_B1, 3584); self.srd(SRD_B2, 1024); self.srd(SRD_OUT, 2097152)
        A(f'''
        s_lshl_b32 {s(S_T0)}, {s(S_W)}, 19
        s_lshl_b32 {s(S_T1)}, {s(S_S1)}, 10
        s_add_u32 {s(S_T0)}, {s(S_T0)}, {s(S_T1)}
        v_lshrrev_b32 v12, 3, {v(V_LANE)}
        v_and_b32 v13, 7, {v(V_LANE)}
        v_xor_b32 v13, v13, {v(V_G)}
        v_lshlrev_b32 v13, 4, v13
        v_lshl_add_u32 v6, v12, 15, v13
        v_add_u32 {v(V_XD)}, {s(S_T0)}, v6
        v_xor_b32 v6, 64, {v(V_XD)}
        v_add_u32 {v(V_XD+1)}, {8*32768 - 1024}, v6
        ''')
        A(f'''
        s_lshl_b32 {s(S_T0)}, {s(S_Q)}, 5
        v_lshrrev_b32 v6, 2, {v(V_L15)}
        v_and_b32 v7, 3, {v(V_L15)}
        v_lshl_add_u32 v6, v6, 3, v7
        v_add_u32 v6, {s(S_T0)}, v6
        v_add_u32 v7, 4, v6
        v_cmp_eq_u32 vcc, 0, v6
        v_mov_b32 v8, 0x100
        v_cndmask_b32 v6, v6, v8, vcc
        v_cvt_f32_u32 v6, v6
        v_cvt_f32_u32 v7, v7
        v_mul_f32 v6, {f2u(1/512)}, v6
        v_mul_f32 v7, {f2u(1/512)}, v7
        s_add_u32 {s(S_T0)}, {s(S_W)}, {s(S_Q)}
        s_and_b32 {s(S_T0)}, {s(S_T0)}, 3
        s_lshl_b32 {s(S_T0)}, {s(S_T0)}, 6
        v_lshl_add_u32 v8, {v(V_G)}, 3, {s(S_T0)}
        v_cvt_f32_u32 v8, v8
        v_add_f32 v9, {f2u(32.0)}, v8
        s_lshl_b32 {s(S_T0)}, {s(S_W)}, 13
        s_add_u32 {s(S_T0)}, {s(S_T0)}, {L_TAB}
        v_add_u32 v10, {s(S_T0)}, {v(V_L16)}
        ''')
        def tab(kk, et):
            b = SC + 32 * et
            A(f'v_mul_f32 {v(b)}, {v(6+et)}, {v(8+kk)}')
            for j in range(1, 8):
                A(f'v_add_f32 {v(b+j)}, {v(b+j-1)}, {v(6+et)}')
            for j in range(8):
                A(f'v_cos_f32 {v(b+8+j)}, {v(b+j)}')
                A(f'v_sin_f32 {v(b+16+j)}, {v(b+j)}')
            for j in range(4):
                A(f'v_cvt_pk_bf16_f32 {v(b+24+j)}, {v(b+8+2*j)}, {v(b+9+2*j)}')
            for j in range(4):
                A(f'v_cvt_pk_bf16_f32 {v(b+28+j)}, {v(b+16+2*j)}, {v(b+17+2*j)}')
            A(f'ds_write_b128 v10, {v(b+24,4)} offset:{(kk*4+et*2)*1024}')
            A(f'ds_write_b128 v10, {v(b+28,4)} offset:{(kk*4+et*2+1)*1024}')
        npre = self.opt.get('tabpre', 1)
        tabs = [(0, 0), (0, 1), (1, 0), (1, 1)]
        for t in tabs[:npre]: tab(*t)
        A(f's_mov_b32 {s(S_T2)}, {FE}')
        A('s_waitcnt lgkmcnt(0)')
        self.stamp('kernarg')
        xm = []
        def xdma(i):
            A(f's_add_u32 m0, {s(S_XB)}, {i*2048}')
            so = S_XO + (i >> 1)
            if i & 1:
                A(f's_xor_b32 {s(S_T0)}, {s(so)}, 0x200'); so = S_T0
            A(f'buffer_load_dwordx4 {v(V_XD)}, {s(SRD_X,4)}, {s(so)} offen lds')
            A(f'buffer_load_dwordx4 {v(V_XD+1)}, {s(SRD_X,4)}, {s(so)} offen offset:1024 lds')
            xm.append(A.nvm)
        NX0 = self.opt.get('nx0', 5)
        xdma(0)
        A(f'buffer_load_dwordx2 {v(V_TAG,2)}, off, {s(SRD_WS,4)}, {s(S_T2)} sc1')
        for i in range(1, NX0): xdma(i)
        A(f'''
        s_mul_i32 {s(S_WB)}, {s(S_W)}, {WPW}
        s_mul_i32 {s(S_SB)}, {s(S_W)}, {SPW}
        s_add_u32 {s(S_SB)}, {s(S_SB)}, {L_S}
        ''')
        for t in tabs[npre:]: tab(*t)
        A(f'v_add_u32 v10, {L_TAB}, {v(V_L16)}')
        A('s_waitcnt lgkmcnt(0)\ns_barrier')
        def tabrd(f0, f1):
            for f in range(f0, f1): A(f'ds_read_b128 {a(4*f,4)}, v10 offset:{f*1024}')
        tabrd(0, 12)
        A(f'''
        v_lshrrev_b32 v6, 1, {v(V_L15)}
        v_xor_b32 v6, v6, {v(V_G)}
        v_lshlrev_b32 v6, 4, v6
        v_lshl_add_u32 v15, {v(V_L15)}, 7, v6
        v_add_u32 {v(V_XR)}, {s(S_XB)}, v15
        v_xor_b32 v6, 64, v15
        v_add_u32 {v(V_XR+1)}, {s(S_XB)}, v6
        ''')
        for i in range(4): A(f'v_mov_b32 {v(ONES+i)}, 0x3f803f80')
        A('s_waitcnt lgkmcnt(2)')
        tabrd(12, 24)
        A('s_waitcnt lgkmcnt(6)')
        tabrd(24, 32)
        b = SC
        fill = f'''
        s_lshl_b32 {s(S_T0)}, {s(S_W)}, 3
        v_lshrrev_b32 v6, 1, {v(V_L15)}
        v_add_u32 v6, {s(S_T0)}, v6
        v_and_b32 v7, 1, {v(V_L15)}
        v_cvt_f32_u32 v9, v7
        v_mul_f32 v9, {f2u(-0.25)}, v9
        v_lshl_add_u32 v8, v6, 1, v7
        v_cmp_eq_u32 vcc, 1, v8
        v_lshlrev_b32 v8, 2, {v(V_G)}
        v_cndmask_b32 v6, v6, 32, vcc
        v_cndmask_b32 v9, v9, 0, vcc
        v_cvt_f32_u32 v6, v6
        v_mul_f32 v6, {f2u(1/64)}, v6
        v_cvt_f32_u32 v8, v8
        v_fma_f32 {v(b)}, v6, v8, v9
        '''.strip().split('\n')
        for blk in range(4):
            for j in range(4):
                c = 16 * blk + j
                if c: fill.append(f'v_fmamk_f32 {v(b+4*blk+j)}, v6, {f2u(float(c))}, {v(b)}')
        for j in range(16): fill.append(f'v_cos_f32 {v(b+16+j)}, {v(b+j)}')
        for j in range(8): fill.append(f'v_cvt_pk_bf16_f32 {v(R1+j)}, {v(b+16+2*j)}, {v(b+17+2*j)}')
        fill += f'''
        v_and_b32 v6, 1, {v(V_LANE)}
        v_lshlrev_b32 v6, 31, v6
        v_or_b32 {v(V_SGN)}, 1.0, v6
        s_cmp_ge_u32 {s(S_Q)}, 4 @@ s_cselect_b64 vcc, -1, 0
        v_mov_b32 {v(V_FAC)}, 1.0
        v_cndmask_b32 {v(V_FAC)}, {v(V_FAC)}, {v(V_SGN)}, vcc
        s_lshl_b32 {s(S_T0)}, {s(S_W)}, 19
        s_lshl_b32 {s(S_T1)}, {s(S_Q)}, 13
        s_add_u32 {s(S_T0)}, {s(S_T0)}, {s(S_T1)}
        s_lshl_b32 {s(S_T1)}, {s(S_S1)}, 8
        s_add_u32 {s(S_T0)}, {s(S_T0)}, {s(S_T1)}
        v_lshlrev_b32 v6, 17, {v(V_G)}
        v_lshl_add_u32 v6, {v(V_L15)}, 4, v6
        v_add_u32 {v(V_ZO)}, {s(S_T0)}, v6
        s_lshr_b32 {s(S_T0)}, {s(S_W)}, 1
        s_lshl_b32 {s(S_T0)}, {s(S_T0)}, 10
        s_and_b32 {s(S_T1)}, {s(S_W)}, 1
        s_lshl_b32 {s(S_T1)}, {s(S_T1)}, 3
        s_add_u32 {s(S_T0)}, {s(S_T0)}, {s(S_T1)}
        s_add_u32 {s(S_T0)}, {s(S_T0)}, {L_EXC}
        v_add_u32 {v(V_EW)}, {s(S_T0)}, {v(V_L16)}
        v_add_u32 {v(V_ER)}, {L_EXC}, {v(V_L16)}
        s_lshl_b32 {s(S_T0)}, {s(S_W)}, 11
        s_lshr_b32 {s(S_T1)}, {s(S_Q)}, 1
        s_lshl_b32 {s(S_T1)}, {s(S_T1)}, 9
        s_add_u32 {s(S_T0)}, {s(S_T0)}, {s(S_T1)}
        s_lshl_b32 {s(S_T1)}, {s(S_S1)}, 4
        s_add_u32 {s(S_T0)}, {s(S_T0)}, {s(S_T1)}
        s_and_b32 {s(S_T1)}, {s(S_Q)}, 1
        s_lshl_b32 {s(S_T1)}, {s(S_T1)}, 3
        s_add_u32 {s(S_T0)}, {s(S_T0)}, {s(S_T1)}
        s_lshl_b32 {s(S_T0)}, {s(S_T0)}, {self.fsh}
        s_add_u32 {s(S_F1)}, {s(S_T0)}, {F1}
        v_and_b32 v6, 1, {v(V_L15)}
        v_cmp_eq_u32 {s(S_XO,2)}, 1, v6
        v_and_b32 v6, 2, {v(V_L15)}
        v_cmp_eq_u32 {s(S_XO+2,2)}, 2, v6
        v_lshrrev_b32 v6, 2, {v(V_L15)}
        v_cmp_eq_u32 {s(S_M,2)}, v6, {v(V_G)}
        s_mov_b32 {s(S_T1)}, 65536
        s_mov_b32 {s(S_T0)}, {f2u(1/512)}
        '''.strip().split('\n')
        fill = [x.strip().replace(' @@ ', '\n') for x in fill]
        self.w1_addr_setup()
        LI = A.newlabel('ri'); LJ = A.newlabel('rj')
        A(f's_cmp_ge_u32 {s(S_N)}, 16\ns_cbranch_scc1 {LI}')
        self.w1_soff(S_ASO, 3)
        self.p2_rowbase(S_T3)
        A(f'''
        s_add_u32 {s(S_AM0)}, {s(S_WB)}, {3*7168}
        s_mov_b32 {s(S_BSO)}, 0
        s_add_u32 {s(S_BM0)}, {s(S_WB)}, 16384
        s_mov_b64 {s(SRD_B,2)}, {s(SRD_X,2)}
        s_mov_b64 {s(SRD_B+2,2)}, {s(SRD_X+2,2)}
        v_mov_b32 {v(V_A0)}, {v(V_W1A)}
        s_lshl_b32 {s(S_T3)}, {s(S_T3)}, 10
        s_lshl_b32 {s(S_T0)}, {s(S_W)}, 7
        s_add_u32 {s(S_T1)}, {s(S_T3)}, {s(S_T0)}
        s_sub_u32 {s(S_T2)}, {s(S_T3)}, {s(S_T0)}
        s_add_u32 {s(S_T2)}, {s(S_T2)}, 896
        v_lshl_add_u32 v6, v12, 16, v13
        v_xor_b32 v7, 64, v6
        v_add_u32 v7, {8*65536}, v7
        v_add_u32 {v(V_BA)}, {s(S_T1)}, v6
        v_add_u32 {v(V_BA+1)}, {s(S_T1)}, v7
        v_add_u32 {v(V_BA+2)}, {s(S_T2)}, v6
        v_add_u32 {v(V_BA+3)}, {s(S_T2)}, v7
        s_branch {LJ}
        ''')
        A.label(LI)
        self.w1_soff(S_ASO, 0); self.w1_soff(S_BSO, 1)
        A(f'''
        s_mov_b32 {s(S_AM0)}, {s(S_WB)}
        s_add_u32 {s(S_BM0)}, {s(S_WB)}, 7168
        s_mov_b64 {s(SRD_B,2)}, {s(SRD_W1,2)}
        s_mov_b64 {s(SRD_B+2,2)}, {s(SRD_W1+2,2)}
        v_mov_b32 {v(V_A0)}, {v(V_W1A+7)}
        ''')
        for i in range(4): A(f'v_mov_b32 {v(V_BA+i)}, {v(V_W1A+i)}')
        A.label(LJ)
        self.stamp('tables')
        for i in range(NX0, 8): xdma(i)
        pf = []
        for i in range(4):
            def f(i=i):
                A(f's_add_u32 m0, {s(S_BM0)}, {i*1024}')
                A(f'buffer_load_dwordx4 {v(V_BA+i)}, {s(SRD_B,4)}, {s(S_BSO)} offen lds')
            pf.append(f)
        for i in range(7):
            def f(i=i):
                A(f's_add_u32 m0, {s(S_AM0)}, {i*1024}')
                A(f'buffer_load_dwordx4 {v(V_A0 if i == 0 else V_W1A+i)}, {s(SRD_W1,4)}, {s(S_ASO)} offen lds')
            pf.append(f)
        xl = []
        def xrd(i):
            A.wait(vm=xm[i])
            for kk in range(2):
                A(f'ds_read_b128 {v(X+8*i+4*kk,4)}, {v(V_XR+kk)} offset:{i*2048}')
            xl.append(A.nlg)
        xrd(0)
        self.stamp('x first')
        xrd(1)
        A(f'''
        v_add_u32 {v(V_TAG)}, 0x9e3779b0, {v(V_TAG)}
        v_add_u32 {v(V_TAG+1)}, 0x7f4a7c15, {v(V_TAG+1)}
        s_getreg_b32 {s(S_T0)}, hwreg(HW_REG_XCC_ID)
        s_and_b32 {s(S_T0)}, {s(S_T0)}, 15
        v_add_u32 v178, {s(S_T0)}, {v(V_TAG)}
        v_mov_b32 v179, {v(V_TAG+1)}
        s_lshl_b32 {s(S_T0)}, {s(S_J)}, 8
        s_lshl_b32 {s(S_T1)}, {s(S_N)}, 3
        s_add_u32 {s(S_T0)}, {s(S_T0)}, {s(S_T1)}
        s_add_u32 {s(S_T0)}, {s(S_T0)}, {FX}
        s_mov_b64 exec, 1
        buffer_store_dwordx2 v[178:179], off, {s(SRD_WS,4)}, {s(S_T0)} sc1
        s_mov_b64 exec, -1
        ''')
        PF0 = self.opt.get('pf0', 2)
        def fl(n):
            for _ in range(n):
                if fill:
                    x = fill.pop(0); A(x)
                    if x.startswith('v_cos'): return
        for i in range(8):
            ip, hp = i >> 1, i & 1
            if i + 2 < 8: xrd(i + 2)
            A.wait(lg=xl[i])
            for kk in range(2):
                xa = X + 8 * i + 4 * kk
                first = (i == 0 and kk == 0)
                A(f'v_mfma_f32_16x16x32_bf16 {v(SQ,4)}, {v(xa,4)}, {v(xa,4)}, {"0" if first else v(SQ,4)}')
                fl(2)
                A(f'v_mfma_f32_16x16x32_bf16 {v(SUM,4)}, {v(xa,4)}, {v(ONES,4)}, {"0" if first else v(SUM,4)}')
                if i >= PF0 and pf: pf.pop(0)()
                else: fl(2)
                for t in range(4):
                    acc = ACC + 16 * hp + 4 * t
                    cin = '0' if (ip == 0 and kk == 0) else v(acc, 4)
                    A(f'v_mfma_f32_16x16x32_bf16 {v(acc,4)}, {v(xa,4)}, {a(32*ip+16*kk+4*t,4)}, {cin}')
                    if not (kk == 1 and t == 3): fl(2)
        self.stamp('gemm1 done')
        assert not fill and not pf, (len(fill), len(pf))
        A(f'''
        v_cndmask_b32 v6, {v(SQ)}, {v(SQ+1)}, {s(S_XO,2)}
        v_cndmask_b32 v7, {v(SQ+2)}, {v(SQ+3)}, {s(S_XO,2)}
        v_cndmask_b32 v8, {v(SUM)}, {v(SUM+1)}, {s(S_XO,2)}
        v_cndmask_b32 v9, {v(SUM+2)}, {v(SUM+3)}, {s(S_XO,2)}
        v_cndmask_b32 v6, v6, v7, {s(S_XO+2,2)}
        v_cndmask_b32 v8, v8, v9, {s(S_XO+2,2)}
        v_mul_f32 v8, {s(S_T0)}, v8
        v_mul_f32 v8, v8, v8
        v_fma_f32 v6, v6, {s(S_T0)}, -v8
        v_max_f32 v6, 0, v6
        v_add_f32 v6, {f2u(1e-5)}, v6
        v_rsq_f32 v6, v6
        v_fma_f32 {v(ACC)}, {v(ACC+16)}, {v(V_SGN)}, {v(ACC)}
        v_cndmask_b32 v6, 0, v6, {s(S_M,2)}
        v_fma_f32 {v(ACC+1)}, {v(ACC+17)}, {v(V_SGN)}, {v(ACC+1)}
        v_fma_f32 {v(ACC+2)}, {v(ACC+18)}, {v(V_SGN)}, {v(ACC+2)}
        v_mfma_f32_16x16x4_f32 v[20:23], v6, {v(V_FAC)}, 0
        ''')
        for i in range(3, 16):
            A(f'v_fma_f32 {v(ACC+i)}, {v(ACC+16+i)}, {v(V_SGN)}, {v(ACC+i)}')
        for t in range(4):
            for r in range(0, 4, 2):
                A(f'v_pk_mul_f32 {v(ACC+4*t+r,2)}, {v(ACC+4*t+r,2)}, {v(20+r,2)}')
            A(f'v_cvt_pk_bf16_f32 {v(24+2*t)}, {v(ACC+4*t)}, {v(ACC+4*t+1)}')
            A(f'v_cvt_pk_bf16_f32 {v(25+2*t)}, {v(ACC+4*t+2)}, {v(ACC+4*t+3)}')
            A(f'ds_write_b64 {v(V_EW)}, {v(24+2*t,2)} offset:{t*2048}')
        A('s_waitcnt lgkmcnt(0)\ns_barrier')
        for f in range(8):
            A(f'ds_read_b128 {v(32+4*f,4)}, {v(V_ER)} offset:{f*1024}')
        for t in range(4):
            A(f's_waitcnt lgkmcnt({6-2*t})')
            A(f'v_mfma_f32_16x16x32_bf16 {v(64+4*t,4)}, {v(R1,4)}, {v(32+8*t,4)}, 0')
            A(f'v_mfma_f32_16x16x32_bf16 {v(64+4*t,4)}, {v(R1+4,4)}, {v(36+8*t,4)}, {v(64+4*t,4)}')
        for k in range(2):
            for t in range(4):
                A(f'v_cvt_pk_bf16_f32 {v(80+4*k+t)}, {v(64+4*t+2*k)}, {v(65+4*t+2*k)}')
            A(f'buffer_store_dwordx4 {v(80+4*k,4)}, {v(V_ZO)}, {s(SRD_WS,4)}, {"0" if k == 0 else s(S_T1)} offen sc1')
        self.stamp('Z stores')
        self.zst = A.nvm

    def p2_rowbase(self, dst):
        self.A(f'''
        s_sub_u32 {s(S_T0)}, 64, {s(S_U2)}
        s_cmp_eq_u32 {s(S_U2)}, 0
        s_cselect_b32 {s(S_T0)}, 32, {s(S_T0)}
        s_cmp_ge_u32 {s(S_RQ)}, 2
        s_cselect_b32 {s(dst)}, {s(S_T0)}, {s(S_U2)}
        s_and_b32 {s(S_T0)}, {s(S_RQ)}, 1
        s_lshl_b32 {s(S_T0)}, {s(S_T0)}, 10
        s_add_u32 {s(dst)}, {s(dst)}, {s(S_T0)}
        ''')

    def bias_load(self):
        A = self.A
        A(f'''
        s_mul_i32 {s(S_T0)}, {s(S_FB)}, 224
        v_lshlrev_b32 v6, 3, {v(V_LANE)}
        s_mov_b64 exec, {(1<<28)-1}
        buffer_load_dwordx2 v[180:181], v6, {s(SRD_B1,4)}, {s(S_T0)} offen
        s_mov_b64 exec, -1
        ''')
    def bias_spread(self):
        A = self.A
        A(f'v_lshlrev_b32 v6, 2, {v(V_G)}')
        for ft in range(7):
            for d in range(2):
                A(f'ds_bpermute_b32 {v(V_BIAS+2*ft+d)}, v6, {v(180+d)} offset:{16*ft}')
    def fx_load(self):
        A = self.A
        A(f'''
        s_lshl_b32 {s(S_T0)}, {s(S_J)}, 8
        s_add_u32 {s(S_T0)}, {s(S_T0)}, {FX}
        v_and_b32 v6, 31, {v(V_LANE)}
        v_lshlrev_b32 v6, 3, v6
        buffer_load_dwordx2 v[182:183], v6, {s(SRD_WS,4)}, {s(S_T0)} offen sc1
        ''')
    def fx_eval(self):
        A = self.A
        A(f'''
        v_cmp_ne_u64 vcc, v[182:183], v[178:179]
        s_cmp_eq_u64 vcc, 0
        s_cselect_b32 {s(S_FAST)}, 1, 0
        ''')

    def p2(self):
        A = self.A
        ZF, TB, XR, SC, H = 16, 80, 112, 132, 208
        S_TB, S_PHI, S_MSK = 48, 49, 50
        self.p2_rowbase(S_TB)
        A(f'''
        v_lshl_add_u32 v11, {v(V_L15)}, 6, {s(S_TB)}
        s_lshl_b32 {s(S_T0)}, {s(S_W)}, 7
        s_sub_u32 {s(S_T0)}, 1024, {s(S_T0)}
        s_cmp_eq_u32 {s(S_W)}, 0
        s_cselect_b32 {s(S_T0)}, 512, {s(S_T0)}
        v_lshlrev_b32 v7, 10, v11
        s_mov_b64 exec, 0xffff
        buffer_load_ushort {v(XR+18)}, v7, {s(SRD_X,4)}, {s(S_T0)} offen
        s_mov_b64 exec, -1
        ''')
        self.bias_load()
        mb = A.nvm
        A.wait(vm=self.zst - 2)
        A(f'''
        s_add_u32 {s(S_T0)}, {s(S_WB)}, 16384
        v_add_u32 v6, {s(S_T0)}, v15
        v_xor_b32 v7, 64, v15
        v_add_u32 v7, {s(S_T0)}, v7
        v_xor_b32 v8, 0x70, v15
        v_add_u32 v8, {s(S_T0)}, v8
        v_xor_b32 v9, 0x30, v15
        v_add_u32 v9, {s(S_T0)}, v9
        ds_read_b128 {v(XR,4)}, v6
        ds_read_b128 {v(XR+4,4)}, v7
        ds_read_b128 {v(XR+8,4)}, v8 offset:2048
        ds_read_b128 {v(XR+12,4)}, v9 offset:2048
        v_lshrrev_b32 v6, 1, {v(V_L15)}
        v_sub_u32 v7, 8, {v(V_G)}
        v_and_b32 v7, 7, v7
        v_xor_b32 v7, v7, v6
        v_lshlrev_b32 v7, 4, v7
        v_lshl_add_u32 v7, {v(V_L15)}, 7, v7
        v_xor_b32 v8, 64, v7
        v_add_u32 v7, {s(S_T0)}, v7
        v_add_u32 v8, {s(S_T0)}, v8
        ds_read_u16 {v(XR+16)}, v7 offset:2048
        ds_read_u16 {v(XR+17)}, v8 offset:2048
        ''')
        A(f'''
        s_cmp_eq_u32 {s(S_U2)}, 0
        s_cselect_b32 {s(S_T1)}, 0, {f2u(-0.25)}
        s_cselect_b32 {s(S_T2)}, 0xffff0000, -1
        s_cselect_b32 {s(S_T3)}, 0xffff, -1
        s_cmp_ge_u32 {s(S_RQ)}, 2
        s_cselect_b32 {s(S_PHI)}, {s(S_T1)}, {f2u(0.25)}
        s_cselect_b32 {s(S_MSK)}, {s(S_T2)}, {s(S_T3)}
        v_cvt_f32_u32 v11, v11
        v_mul_f32 v11, {f2u(1/2048)}, v11
        s_lshl_b32 {s(S_T0)}, {s(S_RQ)}, 3
        v_add_u32 v10, {s(S_T0)}, {v(V_G)}
        ''')
        for half in range(2):
            b = SC
            if half == self.opt.get('f1pos', 1):
                A.wait(vm=self.zst)
                self.setflag(S_F1, ' sc1')
                self.stamp('F1 set')
                for f in self.w1_ops(0, 0, 7, S_T2) + self.w1_ops(1, 0, 4, S_T2): f()
            for j in range(4):
                ks = 4 * half + j
                A(f'v_add_u32 v6, {4*ks}, v10\nv_and_b32 v6, 31, v6\nv_cvt_f32_u32 v6, v6')
                A(f'v_mul_f32 {v(b+2*j)}, v6, v11')
                A(f'v_add_f32 {v(b+2*j+1)}, {s(S_PHI)}, {v(b+2*j)}')
            for j in range(8):
                A(f'v_cos_f32 {v(b+8+j)}, {v(b+j)}')
                A(f'v_sin_f32 {v(b+16+j)}, {v(b+j)}')
            for j in range(4):
                d = TB + 4 * (4 * half + j)
                A(f'v_cvt_pk_bf16_f32 {v(d)}, {v(b+8+2*j)}, {v(b+9+2*j)}')
                A(f'v_cvt_pk_bf16_f32 {v(d+3)}, {v(b+16+2*j)}, {v(b+17+2*j)}')
                A(f'v_and_b32 {v(d)}, {s(S_MSK)}, {v(d)}')
                A(f'v_and_b32 {v(d+3)}, {s(S_MSK)}, {v(d+3)}')
                A(f'v_mov_b32 {v(d+2)}, {v(d)}')
                A(f'v_xor_b32 {v(d+1)}, 0x80008000, {v(d+3)}')
        A.wait(vm=mb, lg=A.nlg)
        self.bias_spread()
        def unp(dst, r, hi):
            if hi: A(f'v_and_b32 {v(dst)}, 0xffff0000, {v(r)}')
            else: A(f'v_lshlrev_b32 {v(dst)}, 16, {v(r)}')
        A(f'''
        v_cmp_eq_u32 vcc, 0, {v(V_G)}
        v_cndmask_b32 {v(XR+16)}, {v(XR+16)}, {v(XR+18)}, vcc
        s_cmp_eq_u32 {s(S_W)}, 0
        s_cselect_b64 {s(S_M,2)}, vcc, 0
        ''')
        for k in range(16): unp(H + k, XR + k // 2, k & 1)
        for q1 in range(2):
            unp(H + 16 + 8 * q1, XR + 16 + q1, 0)
            for j in range(1, 8): unp(H + 16 + 8 * q1 + j, XR + 8 + 4 * q1 + (8 - j) // 2, (8 - j) & 1)
        A(f'v_mov_b32 {v(XR+19)}, {v(H)}')
        self.w2_addr_setup()
        self.fx_load()
        A(f'''
        s_lshr_b32 {s(S_T0)}, {s(S_U2)}, 3
        s_lshl_b32 {s(S_T0)}, {s(S_T0)}, 11
        s_lshl_b32 {s(S_T1)}, {s(S_W)}, 9
        s_add_u32 {s(S_T0)}, {s(S_T0)}, {s(S_T1)}
        s_lshl_b32 {s(S_T0)}, {s(S_T0)}, {self.fsh}
        s_add_u32 {s(S_T0)}, {s(S_T0)}, {F1}
        v_lshl_add_u32 v6, {v(V_LANE)}, {3+self.fsh}, {s(S_T0)}
        s_lshl_b32 {s(S_T2)}, {s(S_U2)}, 16
        s_lshl_b32 {s(S_T1)}, {s(S_W)}, 14
        s_add_u32 {s(S_T2)}, {s(S_T2)}, {s(S_T1)}
        v_add_u32 v12, {s(S_T2)}, {v(V_L16)}
        v_add_u32 v13, 8192, v12
        s_lshl_b32 {s(S_T3)}, {s(S_RQ)}, 11
        ''')
        self.stamp('p2 prepoll')
        self.poll(6, 64, 8)
        self.stamp('p2 polled')
        zm = []
        def zld(kp):
            if kp: A(f's_add_u32 {s(S_T3)}, {s(S_T3)}, 2048\ns_and_b32 {s(S_T3)}, {s(S_T3)}, 0x1800')
            for kk in range(2):
                for q1 in range(2):
                    n = 4 * kp + 2 * kk + q1
                    A(f'buffer_load_dwordx4 {v(ZF+4*n,4)}, {v(12+q1)}, {s(SRD_WS,4)}, {s(S_T3)} offen offset:{kk*1024} sc1')
                    zm.append(A.nvm)
        for kp in range(3): zld(kp)
        self.fx_eval()
        pf = self.w1_ops(1, 4, 7, S_T2) + self.w1_ops(2, 0, 7, S_T2)
        for n in range(16):
            ks, q1 = n >> 1, n & 1
            A.wait(vm=zm[n])
            if n == 0: self.stamp('Z first')
            for et in range(2):
                for var in range(2):
                    acc = H + 16 * var + 8 * q1 + 4 * et
                    A(f'v_mfma_f32_16x16x16_bf16 {v(acc,4)}, {v(ZF+4*n+2*et,2)}, {v(TB+4*ks+2*var,2)}, {v(acc,4)}')
            if n == 1: zld(3)
            if n >= self.opt.get('pf2', 8) and pf: pf.pop(0)()
        self.stamp('Z landed')
        A(f'''
        s_lshl_b32 {s(S_T0)}, {s(S_W)}, 3
        s_add_u32 {s(S_T0)}, {s(S_T0)}, {L_S+4096}
        v_lshlrev_b32 v10, 5, {v(V_L15)}
        v_add_u32 v11, {s(S_T0)}, v10
        v_add_u32 v10, {s(S_SB)}, v10
        ''')
        while pf: pf.pop(0)()
        A(f'v_cndmask_b32 {v(H)}, {v(H)}, {v(XR+19)}, {s(S_M,2)}')
        A(f'v_pk_add_f32 v[6:7], {v(H,2)}, {v(H+2,2)}')
        A(f'v_pk_mul_f32 v[8:9], {v(H,2)}, {v(H,2)}')
        A(f'v_pk_fma_f32 v[8:9], {v(H+2,2)}, {v(H+2,2)}, v[8:9]')
        for k in range(4, 32, 2):
            A(f'v_pk_add_f32 v[6:7], v[6:7], {v(H+k,2)}')
            A(f'v_pk_fma_f32 v[8:9], {v(H+k,2)}, {v(H+k,2)}, v[8:9]')
        A(f'''
        v_add_f32 v6, v6, v7
        v_add_f32 v7, v8, v9
        v_mov_b32 v8, v6
        v_mov_b32 v9, v7
        v_permlane16_swap_b32 v6, v8
        v_permlane16_swap_b32 v7, v9
        v_add_f32 v6, v6, v8
        v_add_f32 v7, v7, v9
        v_mov_b32 v8, v6
        v_mov_b32 v9, v7
        v_permlane32_swap_b32 v6, v8
        v_permlane32_swap_b32 v7, v9
        v_add_f32 v6, v6, v8
        v_add_f32 v7, v7, v9
        v_mul_u32_u24 v8, {SPW}, {v(V_G)}
        v_add_u32 v11, v11, v8
        ds_write_b64 v11, v[6:7]
        s_lshl_b32 {s(S_T0)}, {s(S_U2)}, 2
        s_add_u32 {s(S_T0)}, {s(S_T0)}, {s(S_RQ)}
        s_lshl_b32 {s(S_T1)}, {s(S_T0)}, 14
        s_lshl_b32 {s(S_T2)}, {s(S_W)}, 12
        s_add_u32 {s(S_T1)}, {s(S_T1)}, {s(S_T2)}
        s_add_u32 {s(S_T1)}, {s(S_T1)}, {WS_HN}
        s_lshl_b32 {s(S_T2)}, {s(S_T0)}, 7
        s_add_u32 {s(S_T2)}, {s(S_T2)}, {WS_ST}
        s_lshl_b32 {s(S_T0)}, {s(S_T0)}, 5
        s_lshl_b32 {s(S_T3)}, {s(S_W)}, 3
        s_add_u32 {s(S_T0)}, {s(S_T0)}, {s(S_T3)}
        s_add_u32 {s(S_AM0)}, {s(S_T0)}, {F2}
        s_waitcnt lgkmcnt(0)
        s_barrier
        ds_read_b128 v[16:19], v10 offset:4096
        ds_read_b128 v[20:23], v10 offset:4112
        v_lshlrev_b32 v10, 3, {v(V_L15)}
        s_waitcnt lgkmcnt(0)
        v_pk_add_f32 v[16:17], v[16:17], v[18:19]
        v_pk_add_f32 v[20:21], v[20:21], v[22:23]
        v_pk_add_f32 v[16:17], v[16:17], v[20:21]
        v_mul_f32 v16, {f2u(1/512)}, v16
        v_mul_f32 v17, {f2u(1/512)}, v17
        v_fma_f32 v17, -v16, v16, v17
        v_max_f32 v17, 0, v17
        v_add_f32 v17, {f2u(1e-5)}, v17
        v_rsq_f32 v18, v17
        v_sqrt_f32 v17, v17
        v_mul_f32 v20, -v16, v18
        ''')
        for n in range(4):
            for k in range(0, 8, 2):
                r = H + 8 * n + k
                A(f'v_pk_fma_f32 {v(r,2)}, {v(r,2)}, v[18:19], v[20:21] op_sel_hi:[1,0,0]')
            for k in range(4):
                A(f'v_cvt_pk_bf16_f32 {v(24+4*n+k)}, {v(H+8*n+2*k)}, {v(H+8*n+2*k+1)}')
        def st(sc):
            for n in range(4):
                A(f'buffer_store_dwordx4 {v(24+4*n,4)}, {v(V_L16)}, {s(SRD_WS,4)}, {s(S_T1)} offen offset:{n*1024}{sc}')
            A(f'''
            s_mov_b64 exec, 0xffff
            buffer_store_dwordx2 v[16:17], v10, {s(SRD_WS,4)}, {s(S_T2)} offen{sc}
            s_mov_b64 exec, -1
            ''')
        self.dual(st, True)
        self.stamp('hn stores')
        m = A.nvm
        r1 = self.w2_ops(0, 6, S_SB, S_T1)
        n0 = self.opt.get('r1pre', 4)
        for f in r1[:n0]: f()
        A.wait(vm=m)
        self.dual(lambda sc: self.setflag(S_AM0, sc))
        self.stamp('F2 set')
        for f in r1[n0:]: f()
        L = A.newlabel('noe')
        A(f'''
        s_or_b32 {s(S_T0)}, s2, {s(S_W)}
        s_cmp_lg_u32 {s(S_T0)}, 0
        s_cbranch_scc1 {L}
        s_mov_b32 {s(S_T0)}, {FE}
        ''')
        self.setflag(S_T0, ' sc1')
        A.label(L)

    def p2_idle(self):
        A = self.A
        self.bias_load()
        mb = A.nvm
        self.w2_addr_setup()
        A.wait(vm=self.zst)
        self.setflag(S_F1, ' sc1')
        self.stamp('F1 set')
        thr = self.opt.get('thr', 63)
        def T():
            if thr < 63: A(f's_waitcnt vmcnt({thr})')
        for f in self.w1_ops(1, 4, 7, S_T2) + self.w1_ops(2, 0, 7, S_T2): f(); T()
        if self.opt.get('pre'):
            A(f'''
            s_and_b32 {s(S_T0)}, {s(S_N)}, 15
            s_lshl_b32 {s(S_T0)}, {s(S_T0)}, 2
            s_add_u32 {s(S_T0)}, {s(S_T0)}, {s(S_W)}
            s_lshl_b32 {s(S_T1)}, {s(S_J)}, 6
            s_add_u32 {s(S_T0)}, {s(S_T0)}, {s(S_T1)}
            s_lshl_b32 {s(S_T1)}, {s(S_T0)}, 12
            s_add_u32 {s(S_T1)}, {s(S_T1)}, {WS_HN}
            s_mul_i32 {s(S_T3)}, {s(S_T0)}, 14336
            s_add_u32 {s(S_T3)}, {s(S_T3)}, {WS_R}
            v_lshlrev_b32 v7, 6, {v(V_LANE)}
            buffer_load_dword v130, v7, {s(SRD_WS,4)}, {s(S_T1)} offen sc1
            '''); T()
        A(f'''
        s_bitcmp1_b32 {s(S_N)}, 3
        s_cselect_b32 {s(S_T1)}, {28*8192}, 0
        ''')
        for i in range(28 if not self.opt.get('now2') else 0):
            A(f'buffer_load_dwordx4 {v(16+4*i,4)}, {v(V_W2A)}, {s(SRD_W2,4)}, {s(S_T1)} offen')
            A(f's_add_u32 {s(S_T1)}, {s(S_T1)}, 8192'); T()
        for f in self.w1_ops(3, 0, 7, S_T2): f()
        if self.opt.get('pre'):
            for i in range(4):
                if i == 3: A('s_mov_b64 exec, 0xffffffff')
                A(f'buffer_load_dword {v(131+i)}, v7, {s(SRD_WS,4)}, {s(S_T3)} offen sc1')
                A(f's_add_u32 {s(S_T3)}, {s(S_T3)}, 4096')
            A('s_mov_b64 exec, -1')
        A(f'''
        s_lshl_b32 {s(S_T0)}, {s(S_J)}, 10
        s_add_u32 {s(S_T0)}, {s(S_T0)}, {F3}
        buffer_load_dwordx4 v[136:139], {v(V_L16)}, {s(SRD_WS,4)}, {s(S_T0)} offen sc1
        s_lshl_b32 {s(S_T0)}, {s(S_J)}, 11
        s_add_u32 {s(S_T0)}, {s(S_T0)}, {WS_ST}
        v_lshlrev_b32 v7, 5, {v(V_LANE)}
        buffer_load_dword v140, v7, {s(SRD_WS,4)}, {s(S_T0)} offen sc1
        ''')
        self.fx_load()
        A.wait(vm=mb)
        self.bias_spread()
        A('s_barrier')
        A.wait(vm=A.nvm)
        self.stamp('F2 set')
        self.fx_eval()
        for f in self.w2_ops(0, 6, S_SB, S_T1): f()

    def p3(self):
        A = self.A
        ACC, AF, HN = 16, 72, 96
        V_SR = 100
        A(f'''
        v_lshrrev_b32 v6, 2, {v(V_LANE)}
        v_mul_u32_u24 v6, 224, v6
        v_and_b32 v7, 3, {v(V_LANE)}
        v_lshl_add_u32 v10, v7, 3, v6
        v_add_u32 v11, {2*WPW}, v10
        s_lshl_b32 {s(S_T0)}, {s(S_RB)}, 3
        s_lshl_b32 {s(S_T1)}, {s(S_W)}, 1
        s_add_u32 {s(S_T0)}, {s(S_T0)}, {s(S_T1)}
        s_lshl_b32 {s(S_T2)}, {s(S_T0)}, 14
        s_add_u32 {s(S_T2)}, {s(S_T2)}, {WS_HN}
        v_add_u32 v12, {s(S_T2)}, {v(V_L16)}
        v_add_u32 v13, 16384, v12
        s_lshl_b32 {s(S_T0)}, {s(S_T0)}, 5
        s_add_u32 {s(S_T3)}, {s(S_T0)}, {F2}
        ''')
        self.w2_rd_addr(V_SR, S_SB)
        A(f'v_lshl_add_u32 v6, {v(V_LANE)}, 3, {s(S_T3)}')
        A('s_waitcnt lgkmcnt(0)')
        for ft in range(7):
            for tt in range(2):
                c = ACC + 8 * ft + 4 * tt
                A(f'v_lshlrev_b32 {v(c)}, 16, {v(V_BIAS+2*ft)}')
                A(f'v_and_b32 {v(c+1)}, 0xffff0000, {v(V_BIAS+2*ft)}')
                A(f'v_lshlrev_b32 {v(c+2)}, 16, {v(V_BIAS+1+2*ft)}')
                A(f'v_and_b32 {v(c+3)}, 0xffff0000, {v(V_BIAS+1+2*ft)}')
        A('s_barrier')
        self.stamp('p3 prepoll')
        self.poll(6, 8, 8)
        self.stamp('p3 polled')
        hm = {}
        def hld(ks):
            A(f's_mov_b32 {s(S_T2)}, {(ks//4)*4096}')
            for tt in range(2):
                A(f'buffer_load_dwordx4 {a(HN+8*ks+4*tt,4)}, {v(12+tt)}, {s(SRD_WS,4)}, {s(S_T2)} offen offset:{(ks%4)*1024}{self.ldf}')
            hm[ks] = A.nvm
        LA = self.opt.get('la3', 4)
        for ks in range(LA): hld(ks)
        def trs(rnd):
            ops = []
            for loc in range(6):
                for mt in range(2):
                    for hh in range(2):
                        ops.append(lambda loc=loc, mt=mt, hh=hh: self.w2_rd1(a(48*rnd + 8*loc + 4*mt + 2*hh, 2), V_SR, loc, mt, hh))
            return ops
        for n, f in enumerate(trs(0)):
            f()
            if n == 11: A('s_waitcnt lgkmcnt(4)')
        D, R = 5, 7
        lm = {}
        def rd(p, hh):
            ks, ft = divmod(p, 7)
            wp, w = ks >> 2, ks & 3
            off = (w & 1) * WPW + wp * 7168 + hh * 3584 + ft * 32
            A(f'ds_read_b64_tr_b16 {v(AF+4*(p%R)+2*hh,2)}, {v(10 + (w >> 1))} offset:{off}')
            lm[p] = A.nlg
        A('s_waitcnt lgkmcnt(4)')
        for p in range(D): rd(p, 0); rd(p, 1)
        r2 = self.w2_ops(6, 6, S_SB, S_T1); r3 = self.w2_ops(12, 6, S_SB, S_T1); t2 = trs(1)
        r2m = None; t2m = None
        for p in range(112):
            ks, ft = divmod(p, 7)
            if ft == 0: A.wait(vm=hm[ks], lg=lm[p])
            else: A.wait(lg=lm[p])
            for tt in range(2):
                c = ACC + 8 * ft + 4 * tt
                A(f'v_mfma_f32_16x16x32_bf16 {v(c,4)}, {v(AF+4*(p%R),4)}, {a(HN+8*ks+4*tt,4)}, {v(c,4)}')
                if p + D < 112: rd(p + D, tt)
            if ft == 1 and ks + LA < 16: hld(ks + LA)
            if ft in (3, 5) and r2:
                r2.pop(0)(); r2m = A.nvm
            elif not r2 and t2 and ks >= 8:
                if len(t2) == 24: A.wait(vm=r2m)
                t2.pop(0)(); t2m = A.nlg
            elif not t2 and r3 and ft in (1, 3, 5) and lm.get(p, 0) > t2m:
                r3.pop(0)()
        self.stamp('p3 mfma done')
        A('s_barrier')
        assert not t2
        while r3: r3.pop(0)()
        A(f'''
        s_lshl_b32 {s(S_T0)}, {s(S_RB)}, 2
        s_add_u32 {s(S_T0)}, {s(S_T0)}, {s(S_W)}
        s_mul_i32 {s(S_T1)}, {s(S_T0)}, {112*1024}
        s_mul_i32 {s(S_T2)}, {s(S_FB)}, 7168
        s_add_u32 {s(S_T1)}, {s(S_T1)}, {s(S_T2)}
        s_add_u32 {s(S_T1)}, {s(S_T1)}, {WS_R}
        s_add_u32 {s(S_T2)}, {s(S_T1)}, 4096
        s_lshr_b32 {s(S_T3)}, {s(S_T0)}, 1
        s_lshl_b32 {s(S_T3)}, {s(S_T3)}, 8
        s_lshl_b32 {s(S_AM0)}, {s(S_FB)}, 4
        s_add_u32 {s(S_T3)}, {s(S_T3)}, {s(S_AM0)}
        s_and_b32 {s(S_T0)}, {s(S_T0)}, 1
        s_lshl_b32 {s(S_T0)}, {s(S_T0)}, 3
        s_add_u32 {s(S_T0)}, {s(S_T0)}, {s(S_T3)}
        s_add_u32 {s(S_AM0)}, {s(S_T0)}, {F3}
        ''')
        A.quiesce(8)
        def epi(sc):
            for ft in range(7):
                c = ACC + 8 * ft; o = 72 + 4 * ft
                for i in range(8): A(f'v_mul_f32 {v(c+i)}, {v(c+i)}, |{v(c+i)}|')
                for i in range(4): A(f'v_cvt_pk_bf16_f32 {v(o+i)}, {v(c+2*i)}, {v(c+2*i+1)}')
                for i in range(4): A(f'v_pk_max_i16 {v(o+i)}, {v(o+i)}, 0')
                A(f'v_permlane16_swap_b32 {v(o)}, {v(o+2)}')
                A(f'v_permlane16_swap_b32 {v(o+1)}, {v(o+3)}')
                A(f'buffer_store_dwordx4 {v(o,4)}, {v(V_L16)}, {s(SRD_WS,4)}, {s(S_T1 if ft < 4 else S_T2)} offen offset:{(ft%4)*1024}{sc}')
        self.dual(epi, True)
        self.stamp('r stores')
        self.rst = A.nvm

    def p4(self):
        A = self.A
        ACC, BASE, AF, RV = 16, 80, 96, 128
        wops = self.w2_ops(18, 10, S_WB, S_T1)
        n0 = self.opt.get('wpre', 4)
        for f in wops[:n0]: f()
        A.wait(vm=self.rst)
        self.dual(lambda sc: self.setflag(S_AM0, sc))
        self.stamp('F3 set')
        S_MIR = 51
        A(f'''
        s_and_b32 {s(S_T0)}, {s(S_W)}, 1
        s_lshl_b32 {s(S_T0)}, {s(S_T0)}, 1
        s_lshl_b32 {s(S_T1)}, {s(S_U4)}, 2
        s_add_u32 {s(S_T0)}, {s(S_T0)}, {s(S_T1)}
        v_bfe_u32 v6, {v(V_LANE)}, 4, 1
        v_add_u32 v6, {s(S_T0)}, v6
        v_lshlrev_b32 v7, 7, v6
        v_lshl_add_u32 v7, {v(V_L15)}, 3, v7
        v_lshlrev_b32 v6, 14, v6
        v_lshl_add_u32 v6, {v(V_L15)}, 4, v6
        s_lshl_b32 {s(S_T0)}, {s(S_CB)}, 2
        s_and_b32 {s(S_T1)}, {s(S_W)}, 2
        s_add_u32 {s(S_T0)}, {s(S_T0)}, {s(S_T1)}
        v_lshrrev_b32 v8, 5, {v(V_LANE)}
        v_add_u32 v8, {s(S_T0)}, v8
        v_lshlrev_b32 v12, 5, v8
        s_cmp_ge_u32 {s(S_CB)}, 4
        s_cselect_b64 vcc, -1, 0
        s_cselect_b32 {s(S_MIR)}, 2048, 0
        v_sub_u32 v9, 31, v8
        v_cndmask_b32 v9, v8, v9, vcc
        v_lshrrev_b32 v10, 2, v9
        v_and_b32 v11, 3, v9
        v_lshlrev_b32 v10, 12, v10
        v_lshl_add_u32 v10, v11, 9, v10
        v_add_u32 v10, v6, v10
        v_add_u32 v9, 1, v9
        v_bfe_u32 v11, v9, 2, 2
        v_and_b32 v9, 3, v9
        v_lshlrev_b32 v11, 12, v11
        v_lshl_add_u32 v11, v9, 9, v11
        v_add_u32 v11, v6, v11
        s_add_u32 {s(S_T0)}, {s(S_MIR)}, {WS_HN}
        s_mov_b32 {s(S_T1)}, {WS_ST}
        buffer_load_dwordx4 v[208:211], v10, {s(SRD_WS,4)}, {s(S_T0)} offen sc1
        buffer_load_dwordx4 v[212:215], v10, {s(SRD_WS,4)}, {s(S_T0)} offen offset:256 sc1
        buffer_load_ushort v216, v11, {s(SRD_WS,4)}, {s(S_T0)} offen sc1
        buffer_load_dwordx2 v[218:219], v7, {s(SRD_WS,4)}, {s(S_T1)} offen sc1
        buffer_load_dwordx4 v[220:223], v12, {s(SRD_B2,4)}, 0 offen
        buffer_load_dwordx4 v[224:227], v12, {s(SRD_B2,4)}, 0 offen offset:16
        ''')
        for f in wops[n0:]: f()
        V_OO = 228
        A(f'''
        s_sub_u32 {s(S_T0)}, 64, {s(S_U4)}
        s_cmp_eq_u32 {s(S_U4)}, 0
        s_cselect_b32 {s(S_T0)}, 32, {s(S_T0)}
        s_bitcmp1_b32 {s(S_W)}, 0
        s_cselect_b32 {s(S_T0)}, {s(S_T0)}, {s(S_U4)}
        s_lshl_b32 {s(S_T0)}, {s(S_T0)}, 10
        v_and_b32 v6, 31, {v(V_LANE)}
        v_lshlrev_b32 v6, 16, v6
        v_add3_u32 {v(V_OO)}, v6, v12, {s(S_T0)}
        v_mov_b32 v230, v100
        v_mov_b32 v231, v101
        s_sub_u32 {s(S_T0)}, {s(S_WB)}, {s(S_SB)}
        v_add_u32 v232, {s(S_T0)}, v100
        v_add_u32 v233, {s(S_T0)}, v101
        s_lshl_b32 {s(S_T0)}, {s(S_U4)}, 8
        s_lshl_b32 {s(S_T1)}, {s(S_W)}, 6
        s_add_u32 {s(S_T0)}, {s(S_T0)}, {s(S_T1)}
        s_add_u32 {s(S_T0)}, {s(S_T0)}, {F3}
        v_lshl_add_u32 v6, {v(V_LANE)}, 3, {s(S_T0)}
        s_mul_i32 {s(S_T2)}, {s(S_U4)}, {2*112*1024}
        s_mul_i32 {s(S_T1)}, {s(S_W)}, {28*1024}
        s_add_u32 {s(S_T2)}, {s(S_T2)}, {s(S_T1)}
        s_add_u32 {s(S_T2)}, {s(S_T2)}, {WS_R}
        v_add_u32 v12, {s(S_T2)}, {v(V_L16)}
        v_add_u32 v13, {112*1024}, v12
        ''')
        self.stamp('p4 prepoll')
        self.poll(6, 8, 8)
        self.stamp('p4 polled')
        def rreg(i, nt):
            n = 2 * i + nt
            return v(RV + 4 * n, 4) if n < 20 else a(96 + 4 * (n - 20), 4)
        rm = {}
        def rld(i):
            k = KO[i]
            A(f's_mov_b32 {s(S_T2)}, {(k//4)*4096}')
            for nt in range(2):
                A(f'buffer_load_dwordx4 {rreg(i,nt)}, {v(12+nt)}, {s(SRD_WS,4)}, {s(S_T2)} offen offset:{(k%4)*1024}{self.ldf}')
            rm[i] = A.nvm
        LA = self.opt.get('la4', 5)
        for i in range(LA): rld(i)
        def unp(dst, r, hi):
            if hi: A(f'v_and_b32 {v(dst)}, 0xffff0000, {v(r)}')
            else: A(f'v_lshlrev_b32 {v(dst)}, 16, {v(r)}')
        LM = A.newlabel('mir'); LJ = A.newlabel('join')
        A(f's_cmp_ge_u32 {s(S_CB)}, 4\ns_cbranch_scc1 {LM}')
        for k in range(16): unp(BASE + k, 208 + k // 2, k & 1)
        A(f's_branch {LJ}')
        A.label(LM)
        unp(BASE, 216, 0)
        for k in range(1, 16): unp(BASE + k, 208 + (16 - k) // 2, (16 - k) & 1)
        A.label(LJ)
        for k in range(16):
            unp(6, 220 + k // 2, k & 1)
            A(f'v_add_f32 v6, v6, v218')
            A(f'v_fma_f32 {v(BASE+k)}, {v(BASE+k)}, v219, v6')
        def areg(i, mt):
            return a(8 * i + 4 * mt, 4) if i < 12 else v(AF + 8 * (i % 4) + 4 * mt, 4)
        lm = {}
        def rd(i, mt):
            base = AF + 8 * (i % 4) + 4 * mt
            for hh in range(2):
                if i < 18: self.w2_rd1(v(base + 2*hh, 2), 230, i - 12, mt, hh)
                else: self.w2_rd1(v(base + 2*hh, 2), 232, i - 18, mt, hh)
            lm[i] = A.nlg
        D = 3
        for i in range(28):
            A.wait(vm=rm[i], lg=lm.get(i))
            for mt in range(2):
                for nt in range(2):
                    c = ACC + 32 * mt + 16 * nt
                    cin = '0' if i == 0 else v(c, 16)
                    A(f'v_mfma_f32_32x32x16_bf16 {v(c,16)}, {areg(i,mt)}, {rreg(i,nt)}, {cin}')
                    if mt == 0 and nt == 0 and i + LA < 28: rld(i + LA)
                if 12 <= i + D < 28: rd(i + D, mt)
        self.stamp('p4 mfma done')
        LE = A.newlabel('red')
        labs = [A.newlabel('rw') for _ in range(4)]
        A(f'v_add_u32 v6, {s(S_SB)}, {v(V_L16)}')
        A(f'v_add_u32 v7, {L_S}, {v(V_L16)}')
        A.quiesce(12)
        for w in range(1, 4):
            A(f's_cmp_eq_u32 {s(S_W)}, {w}\ns_cbranch_scc1 {labs[w]}')
        for w in range(4):
            A.label(labs[w])
            for T in range(4):
                if T == w: continue
                slot = (T - w - 1) & 3
                for qq in range(4):
                    A(f'ds_write_b128 v6, {v(ACC+16*T+4*qq,4)} offset:{slot*4096 + qq*1024}')
            for k in range(0, 16, 2):
                A(f'v_pk_add_f32 {v(BASE+k,2)}, {v(BASE+k,2)}, {v(ACC+16*w+k,2)}')
            A('s_waitcnt lgkmcnt(0)\ns_barrier')
            n = 0
            for src in range(4):
                if src == w: continue
                slot = (w - src - 1) & 3
                for qq in range(4):
                    A(f'ds_read_b128 {v(128+4*n,4)}, v7 offset:{src*SPW + slot*4096 + qq*1024}'); n += 1
            if w < 3: A(f's_branch {LE}')
        A.label(LE)
        for sl in range(3):
            A(f's_waitcnt lgkmcnt({8-4*sl})')
            for k in range(0, 16, 2):
                A(f'v_pk_add_f32 {v(BASE+k,2)}, {v(BASE+k,2)}, {v(128+16*sl+k,2)}')
        for k in range(8):
            A(f'v_cvt_pk_bf16_f32 {v(96+k)}, {v(BASE+2*k)}, {v(BASE+2*k+1)}')
        A(f'buffer_store_dwordx4 v[96:99], {v(V_OO)}, {s(SRD_OUT,4)}, 0 offen{self.outf}')
        A(f'buffer_store_dwordx4 v[100:103], {v(V_OO)}, {s(SRD_OUT,4)}, 0 offen offset:16{self.outf}')

    def probe_end(self):
        A = self.A
        a_, b_ = self.opt['probe'].split('-')
        if b_ == 'end':
            A('s_waitcnt vmcnt(0)'); self.stamp('end')
        A(f'''
        s_waitcnt lgkmcnt(0)
        s_sub_u32 {s(S_T0)}, {s(S_TS+4)}, {s(S_TS if a_ == 'start' else S_TS+2)}
        s_cmp_ge_u32 {s(S_N)}, {self.opt.get('pmax', 32)}
        s_cselect_b32 {s(S_T0)}, 0, {s(S_T0)}
        s_min_u32 {s(S_T0)}, {s(S_T0)}, 4000
        s_lshl_b32 {s(S_T0)}, {s(S_T0)}, 2
        s_add_u32 {s(S_T0)}, {s(S_T0)}, 4000
        s_add_u32 {s(S_T0)}, {s(S_T0)}, {s(S_TS)}
        L_pspin:
        s_memrealtime {s(S_TS+6,2)}
        s_waitcnt lgkmcnt(0)
        s_sub_u32 {s(S_T1)}, {s(S_TS+6)}, {s(S_T0)}
        s_cmp_lt_i32 {s(S_T1)}, 0
        s_cbranch_scc1 L_pspin
        ''')

    def dump_ts(self):
        if self.opt.get('probe'): return self.probe_end()
        if not self.diag: return
        A = self.A
        A('s_waitcnt vmcnt(0)')
        self.stamp('end')
        A(f'''
        s_lshl_b32 {s(S_T0)}, s2, 2
        s_add_u32 {s(S_T0)}, {s(S_T0)}, {s(S_W)}
        s_lshl_b32 {s(S_T0)}, {s(S_T0)}, 7
        s_add_u32 {s(S_T0)}, {s(S_T0)}, {WS_TS}
        s_getreg_b32 {s(S_T1)}, hwreg(HW_REG_XCC_ID)
        s_waitcnt lgkmcnt(0)
        s_mov_b64 exec, 1
        ''')
        for i in range(20): A(f'v_mov_b32 {v(16+i)}, {s(S_TS+2*i)}')
        A(f'v_mov_b32 v40, {s(S_T1)}')
        A(f'v_mov_b32 v41, {s(S_FAST)}')
        for i in range(5):
            A(f'buffer_store_dwordx4 {v(16+4*i,4)}, off, {s(SRD_WS,4)}, {s(S_T0)} offset:{16*i}')
        A(f'buffer_store_dwordx2 v[40:41], off, {s(SRD_WS,4)}, {s(S_T0)} offset:80')

    def build(self):
        A = self.A
        self.p1()
        LI = A.newlabel('idle'); LJ = A.newlabel('p3')
        A(f's_cmp_ge_u32 {s(S_N)}, 16\ns_cbranch_scc1 {LI}')
        n0, l0 = A.nvm, A.nlg
        self.p2()
        A(f's_branch {LJ}')
        A.label(LI)
        A.nvm, A.nlg = n0, l0
        self.p2_idle()
        A.label(LJ)
        self.p3()
        self.p4()
        self.dump_ts()
        hdr = f'''; FNet (2D DFT, factored) + LayerNorms + squared-ReLU FFN, one persistent launch.
; @launch grid=(256,1,1) block=(256,1,1) lds=163840
''' + (f'; names: {",".join(self.names)}\n' if self.diag else '') + f'''.amdgcn_target "amdgcn-amd-amdhsa--gfx950"
.text
.globl {KNAME}
.p2align 8
.type {KNAME},@function
{KNAME}:
'''
        ftr = f'''L_end:
    s_endpgm
.section .rodata,"a"
.p2align 6
.amdhsa_kernel {KNAME}
  .amdhsa_next_free_vgpr 512
  .amdhsa_next_free_sgpr 102
  .amdhsa_accum_offset 256
  .amdhsa_group_segment_fixed_size 0
  .amdhsa_kernarg_size 104
  .amdhsa_user_sgpr_count 2
  .amdhsa_user_sgpr_kernarg_segment_ptr 1
  .amdhsa_system_sgpr_workgroup_id_x 1
.end_amdhsa_kernel
'''
        return hdr + A.text() + ftr

if __name__ == '__main__':
    out = sys.argv[1]
    opt = {}
    for x in sys.argv[2:]:
        if '=' in x:
            k, val = x.split('='); opt[k] = int(val) if val.lstrip('-').isdigit() else val.replace('_', ' ')
    g = Gen(diag='diag' in sys.argv[2:], opt=opt)
    t = g.build()
    open(out, 'w').write(t)
    print('nops inserted', g.A.nops, 'stamps', len(g.names))
```

```python
import sys
from asmlib import *

KNAME = 'sequential_preLN__spectral_fnet__dense_activation_squared_relu__prompt_kernel'
WS_Z, WS_HN, WS_R, WS_ST, WS_FL, WS_TS = 0, 2 << 20, 4 << 20, 12 << 20, 13 << 20, 14 << 20
WS_SIZE = 16 << 20
F1 = WS_FL + 0x10000
F2 = WS_FL + 0x2000
F3 = WS_FL + 0x4000
FX = WS_FL + 0x6000
FE = WS_FL + 0x7000
WPW = 28672
L_S = 114688
SPW = 12288
L_TAB, L_EXC = L_S, L_S + 32768
S_W = 3
S_T0, S_T1, S_T2, S_T3 = 4, 5, 6, 7
SRD_X, SRD_W1, SRD_W2, SRD_OUT, SRD_WS, SRD_B1, SRD_B2 = 8, 12, 16, 20, 24, 28, 32
S_CNT, S_FAST = 36, 37
S_F1 = S_CNT
S_J, S_N, S_S1, S_Q, S_U2, S_RQ, S_FB, S_RB, S_CB, S_XB = 38, 39, 40, 41, 42, 43, 44, 45, 46, 47
S_U4 = S_S1
S_XO = 48
S_W2S, S_AM0, S_BSO, S_BM0 = 52, 53, 54, 55
SRD_B = 56
S_M = 60
S_TS = 62
S_WB, S_SB = 0, 1
V_LANE, V_L15, V_G, V_L16, V_TAG = 0, 1, 2, 3, 4
V_W2A = 200
V_L128 = 14
V_W1A = 240
V_BIAS = 184


class TAsm(Asm):
    def __init__(self):
        super().__init__(); self.nvm = 0; self.nlg = 0
    def i(self, text):
        super().i(text)
        c = self.hist[-1]
        if c.is_vmem: self.nvm += 1
        if c.is_ds: self.nlg += 1
    def wait(self, vm=None, lg=None):
        p = []
        if vm is not None: p.append(f'vmcnt({min(63, self.nvm - vm)})')
        if lg is not None: p.append(f'lgkmcnt({min(15, self.nlg - lg)})')
        self('s_waitcnt ' + ' '.join(p))

class Gen:
    def __init__(self, diag=False, opt=None):
        self.A = TAsm(); self.diag = diag; self.nts = 0; self.names = []
        self.opt = opt or {}
        self.fsh = self.opt.get('fsh', 4)
        fl = lambda k, d: (' ' + self.opt[k]).rstrip() if self.opt.get(k, 'pl') != 'pl' else ('' if k in self.opt else d)
        self.stf = fl('stf', ''); self.ldf = fl('ldf', ' sc1'); self.outf = fl('outf', ''); self.zldf = fl('zldf', ' sc1')
        self.skip = {'kernarg', 'Z first'} if not self.opt.get('early') else {'p4 prepoll', 'F3 set'}

    def stamp(self, name, idx=None):
        pr = self.opt.get('probe')
        if pr:
            a_, b_ = pr.split('-')
            if name == 'start': self.A(f's_memrealtime {s(S_TS, 2)}')
            if name == a_ and name != 'start': self.A(f's_memrealtime {s(S_TS+2, 2)}')
            if name == b_: self.A(f's_memrealtime {s(S_TS+4, 2)}')
            return
        if self.diag and name not in self.skip:
            if name in self.names: idx = self.names.index(name)
            else:
                idx = len(self.names); self.names.append(name)
            assert idx < 20
            self.A(f'{"s_memtime" if self.opt.get("cyc") else "s_memrealtime"} {s(S_TS + 2*idx, 2)}')

    def weave(self, lines, bg, every):
        if isinstance(lines, str): lines = [x.strip() for x in lines.strip().split('\n') if x.strip()]
        for n, x in enumerate(lines):
            self.A(x.replace(' @@ ', '\n'))
            if bg and (n + 1) % every == 0: bg.pop(0)()

    def srd(self, base, nbytes):
        self.A(f's_mov_b32 {s(base+2)}, {nbytes}\ns_mov_b32 {s(base+3)}, 0x20000')

    def poll(self, vaddr, nl, vtmp):
        A = self.A
        L = A.newlabel('poll'); D = A.newlabel('polld')
        if nl < 64: A(f's_mov_b64 exec, {(1<<nl)-1}')
        A(f's_mov_b32 {s(S_CNT)}, 0x20000')
        A.label(L)
        A(f'buffer_load_dwordx2 {v(vtmp,2)}, {v(vaddr)}, {s(SRD_WS,4)}, 0 offen sc1')
        A(f's_sub_u32 {s(S_CNT)}, {s(S_CNT)}, 1')
        A(f's_cbranch_scc1 {D}')
        A('s_waitcnt vmcnt(0)')
        A(f'v_cmp_ne_u64 vcc, {v(vtmp,2)}, {v(V_TAG,2)}')
        A(f's_cbranch_vccnz {L}')
        A.label(D)
        A('s_waitcnt vmcnt(0)')
        if nl < 64: A('s_mov_b64 exec, -1')

    def setflag(self, soff, sc):
        A = self.A
        A('s_mov_b64 exec, 1')
        A(f'buffer_store_dwordx2 {v(V_TAG,2)}, off, {s(SRD_WS,4)}, {s(soff)}{sc}')
        A('s_mov_b64 exec, -1')

    def dual(self, fn, data=False):
        A = self.A
        if self.opt.get('nofast') or (data and self.opt.get('hyb')):
            fn(' sc1'); return
        LS = A.newlabel('slow'); LJ = A.newlabel('dj')
        A(f's_cmp_eq_u32 {s(S_FAST)}, 0\ns_cbranch_scc1 {LS}')
        n0, l0 = A.nvm, A.nlg
        fn(self.stf if data else '')
        A(f's_branch {LJ}')
        A.label(LS)
        A.nvm, A.nlg = n0, l0
        fn(' sc1')
        A.label(LJ)

    def w1_addr_setup(self):
        A = self.A; vdst = V_W1A
        A(f'''
        s_and_b32 {s(S_T0)}, {s(S_W)}, 1
        s_lshl_b32 {s(S_T0)}, {s(S_T0)}, 5
        s_mul_i32 {s(S_T1)}, {s(S_FB)}, 224
        s_mov_b32 {s(S_T2)}, 4682
        s_cmp_ge_u32 {s(S_W)}, 2
        s_cselect_b64 vcc, -1, 0
        s_movk_i32 {s(S_T3)}, 3584
        ''')
        for i in range(7):
            A(f'''
            v_add_u32 v6, {64*i}, {v(V_LANE)}
            v_mul_u32_u24 v7, {s(S_T2)}, v6
            v_lshrrev_b32 v7, 16, v7
            v_mul_u32_u24 v8, 14, v7
            v_sub_u32 v8, v6, v8
            v_bfe_u32 v9, v7, 2, 2
            v_and_b32 v10, 3, v7
            v_lshl_add_u32 v9, v9, 3, v10
            v_lshrrev_b32 v10, 4, v7
            v_lshl_add_u32 v9, v10, 2, v9
            v_add_u32 v9, {s(S_T0)}, v9
            v_sub_u32 v10, 320, v9
            v_cndmask_b32 v10, v9, v10, vcc
            v_lshl_add_u32 v8, v8, 4, {s(S_T1)}
            v_mad_u32_u24 {v(vdst+i)}, v10, {s(S_T3)}, v8
            s_add_u32 {s(S_T1)}, {s(S_T1)}, {3072 if i == 3 else -1024}
            ''')
            if i == 0:
                A(f'''
                v_mov_b32 v11, 320
                v_cmp_eq_u32 {s(S_M,2)}, v11, v10
                v_mov_b32 v11, 64
                v_cndmask_b32 v10, v10, v11, {s(S_M,2)}
                v_mad_u32_u24 {v(vdst+7)}, v10, {s(S_T3)}, v8
                ''')
    def w1_soff(self, dst, wp):
        self.A(f'''
        s_cmp_ge_u32 {s(S_W)}, 2
        s_mov_b32 {s(dst)}, {64*wp*3584}
        s_cselect_b32 {s(dst)}, {(3-wp)*64*3584}, {s(dst)}
        ''')
    def w1_ops(self, wp, i0, i1, sreg):
        A = self.A; ops = []
        for i in range(i0, i1):
            def f(i=i):
                if i == i0 or i == 4: A(f's_add_u32 m0, {s(S_WB)}, {wp*7168 + (i//4)*4096}')
                if i == i0: self.w1_soff(sreg, wp)
                va = V_W1A + 7 if (wp == 0 and i == 0) else V_W1A + i
                A(f'buffer_load_dwordx4 {v(va)}, {s(SRD_W1,4)}, {s(sreg)} offen offset:{(i%4)*1024} lds')
            ops.append(f)
        return ops

    def w2_addr_lines(self):
        return f'''
        v_lshrrev_b32 v6, 3, {v(V_LANE)}
        v_and_b32 v7, 7, {v(V_LANE)}
        v_lshlrev_b32 v8, 1, v6
        v_and_b32 v8, 4, v8
        v_xor_b32 v7, v7, v8
        v_lshlrev_b32 v7, 4, v7
        v_lshl_add_u32 {v(V_W2A)}, v6, 10, v7
        s_mul_i32 {s(S_T0)}, {s(S_W)}, {448*1024}
        s_lshl_b32 {s(S_T1)}, {s(S_CB)}, 7
        s_add_u32 {s(S_T0)}, {s(S_T0)}, {s(S_T1)}
        v_add_u32 {v(V_W2A)}, {s(S_T0)}, {v(V_W2A)}
        v_add_u32 {v(V_W2A+1)}, 7168, {v(V_W2A)}
        v_add_u32 {v(V_W2A+2)}, {2*7168}, {v(V_W2A)}
        v_add_u32 {v(V_W2A+3)}, {3*7168}, {v(V_W2A)}
        '''
    def w2_ops(self, k0, nk, sbase):
        A = self.A; ops = []
        for i in range(2 * nk):
            def f(i=i):
                if i % 4 == 0:
                    A(f's_add_u32 m0, {s(sbase)}, {i*1024}')
                    A(f's_mov_b32 {s(S_W2S)}, {(2*k0+i)*8192}')
                A(f'buffer_load_dwordx4 {v(V_W2A+i%4)}, {s(SRD_W2,4)}, {s(S_W2S)} offen offset:{(i%4)*1024} lds')
            ops.append(f)
        return ops
    def touch(self, vd, srd, soff, lanes):
        A = self.A
        if lanes < 64: A(f's_mov_b64 exec, {hex((1<<lanes)-1)}' if lanes <= 32 else f's_mov_b32 exec_hi, {hex((1<<(lanes-32))-1)}')
        A(f'buffer_load_dword {v(vd)}, {v(V_L128)}, {s(srd,4)}, {s(soff)} offen')
        if lanes < 64: A('s_mov_b64 exec, -1')
    def w2_rd_addr(self, vdst, sbase):
        A = self.A
        A(f'''
        v_lshrrev_b32 v6, 5, {v(V_LANE)}
        v_lshlrev_b32 v6, 10, v6
        v_bfe_u32 v7, {v(V_LANE)}, 2, 2
        v_lshl_add_u32 v6, v7, 7, v6
        v_and_b32 v8, 1, {v(V_LANE)}
        v_lshl_add_u32 v6, v8, 5, v6
        v_bfe_u32 v8, {v(V_LANE)}, 1, 1
        v_lshl_add_u32 v6, v8, 3, v6
        v_bfe_u32 v8, {v(V_LANE)}, 4, 1
        v_lshl_add_u32 v6, v8, 4, v6
        v_bfe_u32 v8, {v(V_LANE)}, 3, 1
        v_lshl_add_u32 v6, v8, 6, v6
        v_add_u32 {v(vdst)}, {s(sbase)}, v6
        v_xor_b32 v6, 64, v6
        v_add_u32 {v(vdst+1)}, {s(sbase)}, v6
        ''')
    def w2_rd1(self, dst, vaddr, loc, mt, hh):
        self.A(f'ds_read_b64_tr_b16 {dst}, {v(vaddr+mt)} offset:{loc*2048 + hh*512}')

    def p1(self):
        A = self.A
        X, SC, R1, ONES, SUM, SQ, ACC = 16, 80, 144, 152, 156, 160, 208
        V_SGN, V_FAC, V_ZO, V_EW, V_XD, V_XR, V_ER, V_BA, V_A0 = 198, 199, 164, 165, 166, 168, 170, 172, 176
        A(f'''
        s_cmp_ge_u32 s2, 256
        s_cbranch_scc1 L_end
        s_load_dwordx2 {s(SRD_X,2)}, s[0:1], 0
        s_load_dwordx2 {s(SRD_WS,2)}, s[0:1], 96
        s_load_dwordx2 {s(SRD_W1,2)}, s[0:1], 48
        s_load_dwordx2 {s(SRD_W2,2)}, s[0:1], 64
        s_load_dwordx2 {s(SRD_B1,2)}, s[0:1], 56
        s_load_dwordx2 {s(SRD_B2,2)}, s[0:1], 72
        s_load_dwordx2 {s(SRD_OUT,2)}, s[0:1], 80
        ''')
        self.stamp('start')
        if self.diag:
            for i in range(2, 40): A(f's_mov_b32 {s(S_TS+i)}, 0')
        A(f'''
        v_lshrrev_b32 v6, 6, v0
        v_and_b32 {v(V_LANE)}, 63, v0
        v_readfirstlane_b32 {s(S_W)}, v6
        v_and_b32 {v(V_L15)}, 15, {v(V_LANE)}
        v_lshrrev_b32 {v(V_G)}, 4, {v(V_LANE)}
        v_lshlrev_b32 {v(V_L16)}, 4, {v(V_LANE)}
        v_lshlrev_b32 {v(V_L128)}, 7, {v(V_LANE)}
        s_and_b32 {s(S_J)}, s2, 7
        s_lshr_b32 {s(S_N)}, s2, 3
        s_and_b32 {s(S_Q)}, {s(S_N)}, 7
        s_lshl_b32 {s(S_T0)}, {s(S_J)}, 2
        s_lshr_b32 {s(S_T1)}, {s(S_N)}, 3
        s_add_u32 {s(S_S1)}, {s(S_T0)}, {s(S_T1)}
        s_bfe_u32 {s(S_T1)}, {s(S_N)}, 0x20002
        s_add_u32 {s(S_U2)}, {s(S_T0)}, {s(S_T1)}
        s_and_b32 {s(S_RQ)}, {s(S_N)}, 3
        s_and_b32 {s(S_FB)}, {s(S_N)}, 15
        s_lshr_b32 {s(S_T1)}, {s(S_N)}, 4
        s_lshl_b32 {s(S_RB)}, {s(S_J)}, 1
        s_add_u32 {s(S_RB)}, {s(S_RB)}, {s(S_T1)}
        s_mov_b32 {s(S_CB)}, {s(S_Q)}
        s_mul_i32 {s(S_XB)}, {s(S_T1)}, 12288
        s_mul_i32 {s(S_T0)}, {s(S_W)}, {WPW}
        s_add_u32 {s(S_XB)}, {s(S_XB)}, {s(S_T0)}
        s_lshl_b32 {s(S_T0)}, {s(S_Q)}, 7
        s_and_b32 {s(S_T1)}, {s(S_T0)}, 0x200
        ''')
        for i in range(4):
            A(f's_add_u32 {s(S_T2)}, {s(S_T0)}, {128*i}\ns_and_b32 {s(S_T2)}, {s(S_T2)}, 0x180\ns_or_b32 {s(S_XO+i)}, {s(S_T2)}, {s(S_T1)}')
        self.srd(SRD_X, 2097152); self.srd(SRD_WS, WS_SIZE); self.srd(SRD_W2, 1835008); self.srd(SRD_W1, 1835008)
        self.srd(SRD_B1, 3584); self.srd(SRD_B2, 1024); self.srd(SRD_OUT, 2097152)
        A(f'''
        s_lshl_b32 {s(S_T0)}, {s(S_W)}, 19
        s_lshl_b32 {s(S_T1)}, {s(S_S1)}, 10
        s_add_u32 {s(S_T0)}, {s(S_T0)}, {s(S_T1)}
        v_lshrrev_b32 v12, 3, {v(V_LANE)}
        v_and_b32 v13, 7, {v(V_LANE)}
        v_xor_b32 v13, v13, {v(V_G)}
        v_lshlrev_b32 v13, 4, v13
        v_lshl_add_u32 v6, v12, 15, v13
        v_add_u32 {v(V_XD)}, {s(S_T0)}, v6
        v_xor_b32 v6, 64, {v(V_XD)}
        v_add_u32 {v(V_XD+1)}, {8*32768 - 1024}, v6
        ''')
        A(f'''
        s_lshl_b32 {s(S_T0)}, {s(S_Q)}, 5
        v_lshrrev_b32 v6, 2, {v(V_L15)}
        v_and_b32 v7, 3, {v(V_L15)}
        v_lshl_add_u32 v6, v6, 3, v7
        v_add_u32 v6, {s(S_T0)}, v6
        v_add_u32 v7, 4, v6
        v_cmp_eq_u32 vcc, 0, v6
        v_mov_b32 v8, 0x100
        v_cndmask_b32 v6, v6, v8, vcc
        v_cvt_f32_u32 v6, v6
        v_cvt_f32_u32 v7, v7
        v_mul_f32 v6, {f2u(1/512)}, v6
        v_mul_f32 v7, {f2u(1/512)}, v7
        s_add_u32 {s(S_T0)}, {s(S_W)}, {s(S_Q)}
        s_and_b32 {s(S_T0)}, {s(S_T0)}, 3
        s_lshl_b32 {s(S_T0)}, {s(S_T0)}, 6
        v_lshl_add_u32 v8, {v(V_G)}, 3, {s(S_T0)}
        v_cvt_f32_u32 v8, v8
        v_add_f32 v9, {f2u(32.0)}, v8
        s_lshl_b32 {s(S_T0)}, {s(S_W)}, 13
        s_add_u32 {s(S_T0)}, {s(S_T0)}, {L_TAB}
        v_add_u32 v10, {s(S_T0)}, {v(V_L16)}
        ''')
        def tab(kk, et):
            b = SC + 32 * et
            A(f'v_mul_f32 {v(b)}, {v(6+et)}, {v(8+kk)}')
            for j in range(1, 8):
                A(f'v_add_f32 {v(b+j)}, {v(b+j-1)}, {v(6+et)}')
            for j in range(8):
                A(f'v_cos_f32 {v(b+8+j)}, {v(b+j)}')
                A(f'v_sin_f32 {v(b+16+j)}, {v(b+j)}')
            for j in range(4):
                A(f'v_cvt_pk_bf16_f32 {v(b+24+j)}, {v(b+8+2*j)}, {v(b+9+2*j)}')
            for j in range(4):
                A(f'v_cvt_pk_bf16_f32 {v(b+28+j)}, {v(b+16+2*j)}, {v(b+17+2*j)}')
            A(f'ds_write_b128 v10, {v(b+24,4)} offset:{(kk*4+et*2)*1024}')
            A(f'ds_write_b128 v10, {v(b+28,4)} offset:{(kk*4+et*2+1)*1024}')
        npre = self.opt.get('tabpre', 1)
        tabs = [(0, 0), (0, 1), (1, 0), (1, 1)]
        for t in tabs[:npre]: tab(*t)
        T0L, T1L = self.opt.get('t0', 32), self.opt.get('t1', 48)
        A(f'''
        s_mov_b32 {s(S_T2)}, {FE}
        s_lshl_b32 {s(S_T3)}, {s(S_N)}, 2
        s_add_u32 {s(S_T3)}, {s(S_T3)}, {s(S_W)}
        s_mul_i32 {s(S_AM0)}, {s(S_T3)}, {T1L*128}
        s_add_u32 {s(S_AM0)}, {s(S_AM0)}, {64*3584 + T0L*128*128}
        s_mul_i32 {s(S_T3)}, {s(S_T3)}, {T0L*128}
        s_add_u32 {s(S_T3)}, {s(S_T3)}, {64*3584}
        ''')
        A('s_waitcnt lgkmcnt(0)')
        self.stamp('kernarg')
        xm = []
        def xdma(i):
            A(f's_add_u32 m0, {s(S_XB)}, {i*2048}')
            so = S_XO + (i >> 1)
            if i & 1:
                A(f's_xor_b32 {s(S_T0)}, {s(so)}, 0x200'); so = S_T0
            A(f'buffer_load_dwordx4 {v(V_XD)}, {s(SRD_X,4)}, {s(so)} offen lds')
            A(f'buffer_load_dwordx4 {v(V_XD+1)}, {s(SRD_X,4)}, {s(so)} offen offset:1024 lds')
            xm.append(A.nvm)
        NX0 = self.opt.get('nx0', 5)
        xdma(0)
        A(f'buffer_load_dwordx2 {v(V_TAG,2)}, off, {s(SRD_WS,4)}, {s(S_T2)} sc1')
        for i in range(1, NX0):
            if i == self.opt.get('t0pos', 1) and T0L: self.touch(204, SRD_W1, S_T3, T0L)
            xdma(i)
        A(f'''
        s_mul_i32 {s(S_WB)}, {s(S_W)}, {WPW}
        s_mul_i32 {s(S_SB)}, {s(S_W)}, {SPW}
        s_add_u32 {s(S_SB)}, {s(S_SB)}, {L_S}
        ''')
        for t in tabs[npre:]: tab(*t)
        A(f'v_add_u32 v10, {L_TAB}, {v(V_L16)}')
        A('s_waitcnt lgkmcnt(0)\ns_barrier')
        def tabrd(f0, f1):
            for f in range(f0, f1): A(f'ds_read_b128 {a(4*f,4)}, v10 offset:{f*1024}')
        tabrd(0, 12)
        A(f'''
        v_lshrrev_b32 v6, 1, {v(V_L15)}
        v_xor_b32 v6, v6, {v(V_G)}
        v_lshlrev_b32 v6, 4, v6
        v_lshl_add_u32 v15, {v(V_L15)}, 7, v6
        v_add_u32 {v(V_XR)}, {s(S_XB)}, v15
        v_xor_b32 v6, 64, v15
        v_add_u32 {v(V_XR+1)}, {s(S_XB)}, v6
        ''')
        for i in range(4): A(f'v_mov_b32 {v(ONES+i)}, 0x3f803f80')
        A('s_waitcnt lgkmcnt(2)')
        tabrd(12, 24)
        A('s_waitcnt lgkmcnt(6)')
        tabrd(24, 32)
        b = SC
        fill = f'''
        s_lshl_b32 {s(S_T0)}, {s(S_W)}, 3
        v_lshrrev_b32 v6, 1, {v(V_L15)}
        v_add_u32 v6, {s(S_T0)}, v6
        v_and_b32 v7, 1, {v(V_L15)}
        v_cvt_f32_u32 v9, v7
        v_mul_f32 v9, {f2u(-0.25)}, v9
        v_lshl_add_u32 v8, v6, 1, v7
        v_cmp_eq_u32 vcc, 1, v8
        v_lshlrev_b32 v8, 2, {v(V_G)}
        v_cndmask_b32 v6, v6, 32, vcc
        v_cndmask_b32 v9, v9, 0, vcc
        v_cvt_f32_u32 v6, v6
        v_mul_f32 v6, {f2u(1/64)}, v6
        v_cvt_f32_u32 v8, v8
        v_fma_f32 {v(b)}, v6, v8, v9
        '''.strip().split('\n')
        for blk in range(4):
            for j in range(4):
                c = 16 * blk + j
                if c: fill.append(f'v_fmamk_f32 {v(b+4*blk+j)}, v6, {f2u(float(c))}, {v(b)}')
        for j in range(16): fill.append(f'v_cos_f32 {v(b+16+j)}, {v(b+j)}')
        for j in range(8): fill.append(f'v_cvt_pk_bf16_f32 {v(R1+j)}, {v(b+16+2*j)}, {v(b+17+2*j)}')
        fill += f'''
        v_and_b32 v6, 1, {v(V_LANE)}
        v_lshlrev_b32 v6, 31, v6
        v_or_b32 {v(V_SGN)}, 1.0, v6
        s_cmp_ge_u32 {s(S_Q)}, 4 @@ s_cselect_b64 vcc, -1, 0
        v_mov_b32 {v(V_FAC)}, 1.0
        v_cndmask_b32 {v(V_FAC)}, {v(V_FAC)}, {v(V_SGN)}, vcc
        s_lshl_b32 {s(S_T0)}, {s(S_W)}, 19
        s_lshl_b32 {s(S_T1)}, {s(S_Q)}, 13
        s_add_u32 {s(S_T0)}, {s(S_T0)}, {s(S_T1)}
        s_lshl_b32 {s(S_T1)}, {s(S_S1)}, 8
        s_add_u32 {s(S_T0)}, {s(S_T0)}, {s(S_T1)}
        v_lshlrev_b32 v6, 17, {v(V_G)}
        v_lshl_add_u32 v6, {v(V_L15)}, 4, v6
        v_add_u32 {v(V_ZO)}, {s(S_T0)}, v6
        s_lshr_b32 {s(S_T0)}, {s(S_W)}, 1
        s_lshl_b32 {s(S_T0)}, {s(S_T0)}, 10
        s_and_b32 {s(S_T1)}, {s(S_W)}, 1
        s_lshl_b32 {s(S_T1)}, {s(S_T1)}, 3
        s_add_u32 {s(S_T0)}, {s(S_T0)}, {s(S_T1)}
        s_add_u32 {s(S_T0)}, {s(S_T0)}, {L_EXC}
        v_add_u32 {v(V_EW)}, {s(S_T0)}, {v(V_L16)}
        v_add_u32 {v(V_ER)}, {L_EXC}, {v(V_L16)}
        s_lshl_b32 {s(S_T0)}, {s(S_W)}, 11
        s_lshr_b32 {s(S_T1)}, {s(S_Q)}, 1
        s_lshl_b32 {s(S_T1)}, {s(S_T1)}, 9
        s_add_u32 {s(S_T0)}, {s(S_T0)}, {s(S_T1)}
        s_lshl_b32 {s(S_T1)}, {s(S_S1)}, 4
        s_add_u32 {s(S_T0)}, {s(S_T0)}, {s(S_T1)}
        s_and_b32 {s(S_T1)}, {s(S_Q)}, 1
        s_lshl_b32 {s(S_T1)}, {s(S_T1)}, 3
        s_add_u32 {s(S_T0)}, {s(S_T0)}, {s(S_T1)}
        s_lshl_b32 {s(S_T0)}, {s(S_T0)}, {self.fsh}
        s_add_u32 {s(S_F1)}, {s(S_T0)}, {F1}
        v_and_b32 v6, 1, {v(V_L15)}
        v_cmp_eq_u32 {s(S_XO,2)}, 1, v6
        v_and_b32 v6, 2, {v(V_L15)}
        v_cmp_eq_u32 {s(S_XO+2,2)}, 2, v6
        v_lshrrev_b32 v6, 2, {v(V_L15)}
        v_cmp_eq_u32 {s(S_M,2)}, v6, {v(V_G)}
        s_mov_b32 {s(S_T1)}, 65536
        s_mov_b32 {s(S_T0)}, {f2u(1/512)}
        '''.strip().split('\n')
        fill = [x.strip().replace(' @@ ', '\n') for x in fill]
        self.w1_addr_setup()
        LI = A.newlabel('ri'); LJ = A.newlabel('rj')
        A(f's_cmp_ge_u32 {s(S_N)}, 16\ns_cbranch_scc1 {LI}')
        self.p2_rowbase(S_T3)
        A(f'''
        s_mov_b32 {s(S_BSO)}, 0
        s_add_u32 {s(S_BM0)}, {s(S_WB)}, 16384
        s_mov_b64 {s(SRD_B,2)}, {s(SRD_X,2)}
        s_mov_b64 {s(SRD_B+2,2)}, {s(SRD_X+2,2)}
        s_lshl_b32 {s(S_T3)}, {s(S_T3)}, 10
        s_lshl_b32 {s(S_T0)}, {s(S_W)}, 7
        s_add_u32 {s(S_T1)}, {s(S_T3)}, {s(S_T0)}
        s_sub_u32 {s(S_T2)}, {s(S_T3)}, {s(S_T0)}
        s_add_u32 {s(S_T2)}, {s(S_T2)}, 896
        v_lshl_add_u32 v6, v12, 16, v13
        v_xor_b32 v7, 64, v6
        v_add_u32 v7, {8*65536}, v7
        v_add_u32 {v(V_BA)}, {s(S_T1)}, v6
        v_add_u32 {v(V_BA+1)}, {s(S_T1)}, v7
        v_add_u32 {v(V_BA+2)}, {s(S_T2)}, v6
        v_add_u32 {v(V_BA+3)}, {s(S_T2)}, v7
        s_branch {LJ}
        ''')
        A.label(LI)
        self.w1_soff(S_BSO, 0)
        A(f'''
        s_mov_b32 {s(S_BM0)}, {s(S_WB)}
        s_mov_b64 {s(SRD_B,2)}, {s(SRD_W1,2)}
        s_mov_b64 {s(SRD_B+2,2)}, {s(SRD_W1+2,2)}
        v_mov_b32 {v(V_BA)}, {v(V_W1A+7)}
        ''')
        for i in range(1, 4): A(f'v_add_u32 {v(V_BA+i)}, {1024*i}, {v(V_W1A+i)}')
        A.label(LJ)
        self.stamp('tables')
        for i in range(NX0, 8): xdma(i)
        pf = []
        if T1L: pf.append(lambda: self.touch(205, SRD_W1, S_AM0, T1L))
        for i in range(4):
            def f(i=i):
                A(f's_add_u32 m0, {s(S_BM0)}, {i*1024}')
                fl(1)
                A(f'buffer_load_dwordx4 {v(V_BA+i)}, {s(SRD_B,4)}, {s(S_BSO)} offen lds')
            pf.append(f)
        xl = []
        def xrd(i):
            A.wait(vm=xm[i])
            for kk in range(2):
                A(f'ds_read_b128 {v(X+8*i+4*kk,4)}, {v(V_XR+kk)} offset:{i*2048}')
            xl.append(A.nlg)
        xrd(0)
        self.stamp('x first')
        xrd(1)
        A(f'''
        v_add_u32 {v(V_TAG)}, 0x9e3779b0, {v(V_TAG)}
        v_add_u32 {v(V_TAG+1)}, 0x7f4a7c15, {v(V_TAG+1)}
        s_getreg_b32 {s(S_T0)}, hwreg(HW_REG_XCC_ID)
        s_and_b32 {s(S_T0)}, {s(S_T0)}, 15
        v_add_u32 v178, {s(S_T0)}, {v(V_TAG)}
        v_mov_b32 v179, {v(V_TAG+1)}
        s_lshl_b32 {s(S_T0)}, {s(S_J)}, 8
        s_lshl_b32 {s(S_T1)}, {s(S_N)}, 3
        s_add_u32 {s(S_T0)}, {s(S_T0)}, {s(S_T1)}
        s_add_u32 {s(S_T0)}, {s(S_T0)}, {FX}
        s_mov_b64 exec, 1
        buffer_store_dwordx2 v[178:179], off, {s(SRD_WS,4)}, {s(S_T0)} sc1
        s_mov_b64 exec, -1
        ''')
        PF0 = self.opt.get('pf0', 1)
        def fl(n):
            for _ in range(n):
                if fill:
                    x = fill.pop(0); A(x)
                    if x.startswith('v_cos'): return
        for i in range(8):
            ip, hp = i >> 1, i & 1
            if i + 2 < 8: xrd(i + 2)
            A.wait(lg=xl[i])
            for kk in range(2):
                xa = X + 8 * i + 4 * kk
                first = (i == 0 and kk == 0)
                A(f'v_mfma_f32_16x16x32_bf16 {v(SQ,4)}, {v(xa,4)}, {v(xa,4)}, {"0" if first else v(SQ,4)}')
                fl(2)
                A(f'v_mfma_f32_16x16x32_bf16 {v(SUM,4)}, {v(xa,4)}, {v(ONES,4)}, {"0" if first else v(SUM,4)}')
                if i >= PF0 and pf: pf.pop(0)()
                else: fl(2)
                for t in range(4):
                    acc = ACC + 16 * hp + 4 * t
                    cin = '0' if (ip == 0 and kk == 0) else v(acc, 4)
                    A(f'v_mfma_f32_16x16x32_bf16 {v(acc,4)}, {v(xa,4)}, {a(32*ip+16*kk+4*t,4)}, {cin}')
                    if not (kk == 1 and t == 3): fl(2)
        self.stamp('gemm1 done')
        assert not fill and not pf, (len(fill), len(pf))
        A(f'''
        v_cndmask_b32 v6, {v(SQ)}, {v(SQ+1)}, {s(S_XO,2)}
        v_cndmask_b32 v7, {v(SQ+2)}, {v(SQ+3)}, {s(S_XO,2)}
        v_cndmask_b32 v8, {v(SUM)}, {v(SUM+1)}, {s(S_XO,2)}
        v_cndmask_b32 v9, {v(SUM+2)}, {v(SUM+3)}, {s(S_XO,2)}
        v_cndmask_b32 v6, v6, v7, {s(S_XO+2,2)}
        v_cndmask_b32 v8, v8, v9, {s(S_XO+2,2)}
        v_mul_f32 v8, {s(S_T0)}, v8
        v_mul_f32 v8, v8, v8
        v_fma_f32 v6, v6, {s(S_T0)}, -v8
        v_max_f32 v6, 0, v6
        v_add_f32 v6, {f2u(1e-5)}, v6
        v_rsq_f32 v6, v6
        v_fma_f32 {v(ACC)}, {v(ACC+16)}, {v(V_SGN)}, {v(ACC)}
        v_cndmask_b32 v6, 0, v6, {s(S_M,2)}
        v_fma_f32 {v(ACC+1)}, {v(ACC+17)}, {v(V_SGN)}, {v(ACC+1)}
        v_fma_f32 {v(ACC+2)}, {v(ACC+18)}, {v(V_SGN)}, {v(ACC+2)}
        v_mfma_f32_16x16x4_f32 v[20:23], v6, {v(V_FAC)}, 0
        ''')
        for i in range(3, 16):
            A(f'v_fma_f32 {v(ACC+i)}, {v(ACC+16+i)}, {v(V_SGN)}, {v(ACC+i)}')
        for t in range(4):
            for r in range(0, 4, 2):
                A(f'v_pk_mul_f32 {v(ACC+4*t+r,2)}, {v(ACC+4*t+r,2)}, {v(20+r,2)}')
            A(f'v_cvt_pk_bf16_f32 {v(24+2*t)}, {v(ACC+4*t)}, {v(ACC+4*t+1)}')
            A(f'v_cvt_pk_bf16_f32 {v(25+2*t)}, {v(ACC+4*t+2)}, {v(ACC+4*t+3)}')
            A(f'ds_write_b64 {v(V_EW)}, {v(24+2*t,2)} offset:{t*2048}')
        A('s_waitcnt lgkmcnt(0)\ns_barrier')
        for f in range(8):
            A(f'ds_read_b128 {v(32+4*f,4)}, {v(V_ER)} offset:{f*1024}')
        for t in range(4):
            A(f's_waitcnt lgkmcnt({6-2*t})')
            A(f'v_mfma_f32_16x16x32_bf16 {v(64+4*t,4)}, {v(R1,4)}, {v(32+8*t,4)}, 0')
            A(f'v_mfma_f32_16x16x32_bf16 {v(64+4*t,4)}, {v(R1+4,4)}, {v(36+8*t,4)}, {v(64+4*t,4)}')
        for k in range(2):
            for t in range(4):
                A(f'v_cvt_pk_bf16_f32 {v(80+4*k+t)}, {v(64+4*t+2*k)}, {v(65+4*t+2*k)}')
            A(f'buffer_store_dwordx4 {v(80+4*k,4)}, {v(V_ZO)}, {s(SRD_WS,4)}, {"0" if k == 0 else s(S_T1)} offen sc1')
        self.stamp('Z stores')
        self.zst = A.nvm

    def p2_rowbase(self, dst):
        self.A(f'''
        s_sub_u32 {s(S_T0)}, 64, {s(S_U2)}
        s_cmp_eq_u32 {s(S_U2)}, 0
        s_cselect_b32 {s(S_T0)}, 32, {s(S_T0)}
        s_cmp_ge_u32 {s(S_RQ)}, 2
        s_cselect_b32 {s(dst)}, {s(S_T0)}, {s(S_U2)}
        s_and_b32 {s(S_T0)}, {s(S_RQ)}, 1
        s_lshl_b32 {s(S_T0)}, {s(S_T0)}, 10
        s_add_u32 {s(dst)}, {s(dst)}, {s(S_T0)}
        ''')

    def bias_load(self):
        A = self.A
        A(f'''
        s_mul_i32 {s(S_T0)}, {s(S_FB)}, 224
        v_lshlrev_b32 v6, 3, {v(V_LANE)}
        s_mov_b64 exec, {(1<<28)-1}
        buffer_load_dwordx2 v[180:181], v6, {s(SRD_B1,4)}, {s(S_T0)} offen
        s_mov_b64 exec, -1
        ''')
    def bias_spread(self):
        A = self.A
        A(f'v_lshlrev_b32 v6, 2, {v(V_G)}')
        for ft in range(7):
            for d in range(2):
                A(f'ds_bpermute_b32 {v(V_BIAS+2*ft+d)}, v6, {v(180+d)} offset:{16*ft}')
    def fx_load(self):
        A = self.A
        A(f'''
        s_lshl_b32 {s(S_T0)}, {s(S_J)}, 8
        s_add_u32 {s(S_T0)}, {s(S_T0)}, {FX}
        v_and_b32 v6, 31, {v(V_LANE)}
        v_lshlrev_b32 v6, 3, v6
        buffer_load_dwordx2 v[182:183], v6, {s(SRD_WS,4)}, {s(S_T0)} offen sc1
        ''')
    def fx_eval(self):
        A = self.A
        A(f'''
        v_cmp_ne_u64 vcc, v[182:183], v[178:179]
        s_cmp_eq_u64 vcc, 0
        s_cselect_b32 {s(S_FAST)}, 1, 0
        ''')

    def p2(self):
        A = self.A
        ZF, TB, XR, SC, H = 16, 80, 112, 132, 208
        S_TB, S_PHI, S_MSK = 48, 49, 50
        self.p2_rowbase(S_TB)
        A(f'''
        v_lshl_add_u32 v11, {v(V_L15)}, 6, {s(S_TB)}
        s_lshl_b32 {s(S_T0)}, {s(S_W)}, 7
        s_sub_u32 {s(S_T0)}, 1024, {s(S_T0)}
        s_cmp_eq_u32 {s(S_W)}, 0
        s_cselect_b32 {s(S_T0)}, 512, {s(S_T0)}
        v_lshlrev_b32 v7, 10, v11
        s_mov_b64 exec, 0xffff
        buffer_load_ushort {v(XR+18)}, v7, {s(SRD_X,4)}, {s(S_T0)} offen
        s_mov_b64 exec, -1
        ''')
        self.bias_load()
        mb = A.nvm
        A.wait(vm=self.zst - 2)
        A(f'''
        s_add_u32 {s(S_T0)}, {s(S_WB)}, 16384
        v_add_u32 v6, {s(S_T0)}, v15
        v_xor_b32 v7, 64, v15
        v_add_u32 v7, {s(S_T0)}, v7
        v_xor_b32 v8, 0x70, v15
        v_add_u32 v8, {s(S_T0)}, v8
        v_xor_b32 v9, 0x30, v15
        v_add_u32 v9, {s(S_T0)}, v9
        ds_read_b128 {v(XR,4)}, v6
        ds_read_b128 {v(XR+4,4)}, v7
        ds_read_b128 {v(XR+8,4)}, v8 offset:2048
        ds_read_b128 {v(XR+12,4)}, v9 offset:2048
        v_lshrrev_b32 v6, 1, {v(V_L15)}
        v_sub_u32 v7, 8, {v(V_G)}
        v_and_b32 v7, 7, v7
        v_xor_b32 v7, v7, v6
        v_lshlrev_b32 v7, 4, v7
        v_lshl_add_u32 v7, {v(V_L15)}, 7, v7
        v_xor_b32 v8, 64, v7
        v_add_u32 v7, {s(S_T0)}, v7
        v_add_u32 v8, {s(S_T0)}, v8
        ds_read_u16 {v(XR+16)}, v7 offset:2048
        ds_read_u16 {v(XR+17)}, v8 offset:2048
        ''')
        A(f'''
        s_cmp_eq_u32 {s(S_U2)}, 0
        s_cselect_b32 {s(S_T1)}, 0, {f2u(-0.25)}
        s_cselect_b32 {s(S_T2)}, 0xffff0000, -1
        s_cselect_b32 {s(S_T3)}, 0xffff, -1
        s_cmp_ge_u32 {s(S_RQ)}, 2
        s_cselect_b32 {s(S_PHI)}, {s(S_T1)}, {f2u(0.25)}
        s_cselect_b32 {s(S_MSK)}, {s(S_T2)}, {s(S_T3)}
        v_cvt_f32_u32 v11, v11
        v_mul_f32 v11, {f2u(1/2048)}, v11
        s_lshl_b32 {s(S_T0)}, {s(S_RQ)}, 3
        v_add_u32 v10, {s(S_T0)}, {v(V_G)}
        ''')
        tl = []
        for half in range(2):
            b = SC
            for j in range(4):
                ks = 4 * half + j
                tl += [f'v_add_u32 v6, {4*ks}, v10', 'v_and_b32 v6, 31, v6', 'v_cvt_f32_u32 v6, v6',
                       f'v_mul_f32 {v(b+2*j)}, v6, v11', f'v_add_f32 {v(b+2*j+1)}, {s(S_PHI)}, {v(b+2*j)}']
            for j in range(8):
                tl += [f'v_cos_f32 {v(b+8+j)}, {v(b+j)}', f'v_sin_f32 {v(b+16+j)}, {v(b+j)}']
            for j in range(4):
                d = TB + 4 * (4 * half + j)
                tl += [f'v_cvt_pk_bf16_f32 {v(d)}, {v(b+8+2*j)}, {v(b+9+2*j)}',
                       f'v_cvt_pk_bf16_f32 {v(d+3)}, {v(b+16+2*j)}, {v(b+17+2*j)}',
                       f'v_and_b32 {v(d)}, {s(S_MSK)}, {v(d)}', f'v_and_b32 {v(d+3)}, {s(S_MSK)}, {v(d+3)}',
                       f'v_mov_b32 {v(d+2)}, {v(d)}', f'v_xor_b32 {v(d+1)}, 0x80008000, {v(d+3)}']
        np_ = self.opt.get('f1pos', 30)
        self.weave(tl[:np_], None, 1)
        A.wait(vm=self.zst, lg=A.nlg)
        self.setflag(S_F1, ' sc1')
        self.stamp('F1 set')
        bg = self.w1_ops(1, 0, 7, S_T2) + self.w1_ops(3, 0, 7, S_T2) + self.w1_ops(2, 0, 7, S_T2)
        nlate = self.opt.get('w1late', 0)
        late = bg[len(bg)-nlate:]; bg = bg[:len(bg)-nlate]
        self.weave(tl[np_:], bg, 8)
        A.wait(vm=mb)
        self.bias_spread()
        def unp(dst, r, hi):
            return f'v_and_b32 {v(dst)}, 0xffff0000, {v(r)}' if hi else f'v_lshlrev_b32 {v(dst)}, 16, {v(r)}'
        cl = [f'v_cmp_eq_u32 vcc, 0, {v(V_G)}', f'v_cndmask_b32 {v(XR+16)}, {v(XR+16)}, {v(XR+18)}, vcc',
              f's_cmp_eq_u32 {s(S_W)}, 0 @@ s_cselect_b64 {s(S_M,2)}, vcc, 0']
        for k in range(16): cl.append(unp(H + k, XR + k // 2, k & 1))
        for q1 in range(2):
            cl.append(unp(H + 16 + 8 * q1, XR + 16 + q1, 0))
            for j in range(1, 8): cl.append(unp(H + 16 + 8 * q1 + j, XR + 8 + 4 * q1 + (8 - j) // 2, (8 - j) & 1))
        cl.append(f'v_mov_b32 {v(XR+19)}, {v(H)}')
        self.weave(cl, bg, 8)
        self.weave(self.w2_addr_lines(), bg, 8)
        self.weave(f'''
        s_lshr_b32 {s(S_T0)}, {s(S_U2)}, 3
        s_lshl_b32 {s(S_T0)}, {s(S_T0)}, 11
        s_lshl_b32 {s(S_T1)}, {s(S_W)}, 9
        s_add_u32 {s(S_T0)}, {s(S_T0)}, {s(S_T1)}
        s_lshl_b32 {s(S_T0)}, {s(S_T0)}, {self.fsh}
        s_add_u32 {s(S_T0)}, {s(S_T0)}, {F1}
        v_lshl_add_u32 v10, {v(V_LANE)}, {3+self.fsh}, {s(S_T0)}
        s_lshl_b32 {s(S_T0)}, {s(S_U2)}, 16
        s_lshl_b32 {s(S_T1)}, {s(S_W)}, 14
        s_add_u32 {s(S_T0)}, {s(S_T0)}, {s(S_T1)}
        v_add_u32 v12, {s(S_T0)}, {v(V_L16)}
        v_add_u32 v13, 8192, v12
        s_lshl_b32 {s(S_T3)}, {s(S_RQ)}, 11
        ''', bg, 8)
        while bg: bg.pop(0)()
        self.fx_load()
        self.stamp('p2 prepoll')
        self.poll(10, 64, 8)
        self.stamp('p2 polled')
        zm = []
        def zld(kp):
            if kp: A(f's_add_u32 {s(S_T3)}, {s(S_T3)}, 2048\ns_and_b32 {s(S_T3)}, {s(S_T3)}, 0x1800')
            for kk in range(2):
                for q1 in range(2):
                    n = 4 * kp + 2 * kk + q1
                    A(f'buffer_load_dwordx4 {v(ZF+4*n,4)}, {v(12+q1)}, {s(SRD_WS,4)}, {s(S_T3)} offen offset:{kk*1024}{self.zldf}')
                    zm.append(A.nvm)
        for kp in range(3): zld(kp)
        self.fx_eval()
        pf = late + self.w1_ops(0, 0, 7, S_T2)
        for n in range(16):
            ks, q1 = n >> 1, n & 1
            A.wait(vm=zm[n])
            if n == 0: self.stamp('Z first')
            for et in range(2):
                for var in range(2):
                    acc = H + 16 * var + 8 * q1 + 4 * et
                    A(f'v_mfma_f32_16x16x16_bf16 {v(acc,4)}, {v(ZF+4*n+2*et,2)}, {v(TB+4*ks+2*var,2)}, {v(acc,4)}')
            if n == 1: zld(3)
            if n >= self.opt.get('pf2', 8) and pf: pf.pop(0)()
        self.stamp('Z landed')
        A(f'''
        s_lshl_b32 {s(S_T0)}, {s(S_W)}, 3
        s_add_u32 {s(S_T0)}, {s(S_T0)}, {L_S+4096}
        v_lshlrev_b32 v10, 5, {v(V_L15)}
        v_add_u32 v11, {s(S_T0)}, v10
        v_add_u32 v10, {s(S_SB)}, v10
        ''')
        while pf: pf.pop(0)()
        A(f'v_cndmask_b32 {v(H)}, {v(H)}, {v(XR+19)}, {s(S_M,2)}')
        A(f'v_pk_add_f32 v[6:7], {v(H,2)}, {v(H+2,2)}')
        A(f'v_pk_mul_f32 v[8:9], {v(H,2)}, {v(H,2)}')
        A(f'v_pk_fma_f32 v[8:9], {v(H+2,2)}, {v(H+2,2)}, v[8:9]')
        for k in range(4, 32, 2):
            A(f'v_pk_add_f32 v[6:7], v[6:7], {v(H+k,2)}')
            A(f'v_pk_fma_f32 v[8:9], {v(H+k,2)}, {v(H+k,2)}, v[8:9]')
        A(f'''
        v_add_f32 v6, v6, v7
        v_add_f32 v7, v8, v9
        v_mov_b32 v8, v6
        v_mov_b32 v9, v7
        v_permlane16_swap_b32 v6, v8
        v_permlane16_swap_b32 v7, v9
        v_add_f32 v6, v6, v8
        v_add_f32 v7, v7, v9
        v_mov_b32 v8, v6
        v_mov_b32 v9, v7
        v_permlane32_swap_b32 v6, v8
        v_permlane32_swap_b32 v7, v9
        v_add_f32 v6, v6, v8
        v_add_f32 v7, v7, v9
        v_mul_u32_u24 v8, {SPW}, {v(V_G)}
        v_add_u32 v11, v11, v8
        ds_write_b64 v11, v[6:7]
        s_lshl_b32 {s(S_T0)}, {s(S_U2)}, 2
        s_add_u32 {s(S_T0)}, {s(S_T0)}, {s(S_RQ)}
        s_lshl_b32 {s(S_T1)}, {s(S_T0)}, 14
        s_lshl_b32 {s(S_T2)}, {s(S_W)}, 12
        s_add_u32 {s(S_T1)}, {s(S_T1)}, {s(S_T2)}
        s_add_u32 {s(S_T1)}, {s(S_T1)}, {WS_HN}
        s_lshl_b32 {s(S_T2)}, {s(S_T0)}, 7
        s_add_u32 {s(S_T2)}, {s(S_T2)}, {WS_ST}
        s_lshl_b32 {s(S_T0)}, {s(S_T0)}, 5
        s_lshl_b32 {s(S_T3)}, {s(S_W)}, 3
        s_add_u32 {s(S_T0)}, {s(S_T0)}, {s(S_T3)}
        s_add_u32 {s(S_AM0)}, {s(S_T0)}, {F2}
        s_waitcnt lgkmcnt(0)
        s_barrier
        ds_read_b128 v[16:19], v10 offset:4096
        ds_read_b128 v[20:23], v10 offset:4112
        v_lshlrev_b32 v10, 3, {v(V_L15)}
        s_waitcnt lgkmcnt(0)
        v_pk_add_f32 v[16:17], v[16:17], v[18:19]
        v_pk_add_f32 v[20:21], v[20:21], v[22:23]
        v_pk_add_f32 v[16:17], v[16:17], v[20:21]
        v_mul_f32 v16, {f2u(1/512)}, v16
        v_mul_f32 v17, {f2u(1/512)}, v17
        v_fma_f32 v17, -v16, v16, v17
        v_max_f32 v17, 0, v17
        v_add_f32 v17, {f2u(1e-5)}, v17
        v_rsq_f32 v18, v17
        v_sqrt_f32 v17, v17
        v_mul_f32 v20, -v16, v18
        ''')
        for n in range(4):
            for k in range(0, 8, 2):
                r = H + 8 * n + k
                A(f'v_pk_fma_f32 {v(r,2)}, {v(r,2)}, v[18:19], v[20:21] op_sel_hi:[1,0,0]')
            for k in range(4):
                A(f'v_cvt_pk_bf16_f32 {v(24+4*n+k)}, {v(H+8*n+2*k)}, {v(H+8*n+2*k+1)}')
        def st(sc):
            for n in range(4):
                A(f'buffer_store_dwordx4 {v(24+4*n,4)}, {v(V_L16)}, {s(SRD_WS,4)}, {s(S_T1)} offen offset:{n*1024}{sc}')
            A(f'''
            s_mov_b64 exec, 0xffff
            buffer_store_dwordx2 v[16:17], v10, {s(SRD_WS,4)}, {s(S_T2)} offen{sc}
            s_mov_b64 exec, -1
            ''')
        self.dual(st, True)
        self.stamp('hn stores')
        m = A.nvm
        r1 = self.w2_ops(0, 6, S_SB)
        n0 = self.opt.get('r1pre', 6)
        pre = r1[:n0]
        self.p3_setup(pre)
        A.wait(vm=m)
        self.dual(lambda sc: self.setflag(S_AM0, sc))
        self.stamp('F2 set')
        for f in r1[n0:]: f()
        L = A.newlabel('noe')
        A(f'''
        s_or_b32 {s(S_T0)}, s2, {s(S_W)}
        s_cmp_lg_u32 {s(S_T0)}, 0
        s_cbranch_scc1 {L}
        s_mov_b32 {s(S_T0)}, {FE}
        ''')
        self.setflag(S_T0, ' sc1')
        A.label(L)

    def p2_idle(self):
        A = self.A
        self.bias_load()
        mb = A.nvm
        A(self.w2_addr_lines())
        A(f'''
        s_mul_i32 {s(S_T3)}, {s(S_W)}, {448*1024}
        s_lshl_b32 {s(S_T1)}, {s(S_FB)}, 13
        s_add_u32 {s(S_T3)}, {s(S_T3)}, {s(S_T1)}
        ''')
        A.wait(vm=self.zst)
        self.setflag(S_F1, ' sc1')
        self.stamp('F1 set')
        for f in self.w1_ops(0, 4, 7, S_T2): f()
        rest = 128 * 128 * (self.opt.get('t0', 32) + self.opt.get('t1', 48))
        nrest = max(0, -(-(385 * 3584 - rest) // (64 * 128)))
        if nrest:
            A(f'''
            s_lshl_b32 {s(S_T0)}, {s(S_FB)}, 2
            s_add_u32 {s(S_T0)}, {s(S_T0)}, {s(S_W)}
            s_mul_i32 {s(S_T0)}, {s(S_T0)}, {min(nrest,64)*128}
            s_add_u32 {s(S_T0)}, {s(S_T0)}, {64*3584 + rest}
            ''')
            assert nrest <= 64
            self.touch(206, SRD_W1, S_T0, nrest)
        for i in range(self.opt.get('nt2', 2)):
            self.touch(130 + i, SRD_W2, S_T3, 64)
            A(f's_add_u32 {s(S_T3)}, {s(S_T3)}, 131072')
        A(f'''
        s_lshl_b32 {s(S_T0)}, {s(S_J)}, 10
        s_add_u32 {s(S_T0)}, {s(S_T0)}, {F3}
        buffer_load_dwordx4 v[136:139], {v(V_L16)}, {s(SRD_WS,4)}, {s(S_T0)} offen sc1
        ''')
        self.fx_load()
        A.wait(vm=mb)
        self.bias_spread()
        for f in self.w1_ops(1, 0, 7, S_T2) + self.w1_ops(2, 0, 7, S_T2) + self.w1_ops(3, 0, 7, S_T2): f()
        m = A.nvm
        A('s_barrier')
        r1 = self.w2_ops(0, 6, S_SB)
        self.p3_setup(r1)
        A.wait(vm=m)
        self.stamp('F2 set')
        self.fx_eval()

    def p3_setup(self, bg):
        A = self.A
        ACC = 40
        ln = f'''
        v_lshrrev_b32 v6, 2, {v(V_LANE)}
        v_mul_u32_u24 v6, 224, v6
        v_and_b32 v7, 3, {v(V_LANE)}
        v_lshl_add_u32 v10, v7, 3, v6
        v_add_u32 v11, {2*WPW}, v10
        s_lshl_b32 {s(S_T0)}, {s(S_RB)}, 3
        s_lshl_b32 {s(S_T1)}, {s(S_W)}, 1
        s_add_u32 {s(S_T0)}, {s(S_T0)}, {s(S_T1)}
        s_lshl_b32 {s(S_T2)}, {s(S_T0)}, 14
        s_add_u32 {s(S_T2)}, {s(S_T2)}, {WS_HN}
        v_add_u32 v12, {s(S_T2)}, {v(V_L16)}
        v_add_u32 v13, 16384, v12
        s_lshl_b32 {s(S_T0)}, {s(S_T0)}, 5
        s_add_u32 {s(S_T3)}, {s(S_T0)}, {F2}
        v_lshl_add_u32 v15, {v(V_LANE)}, 3, {s(S_T3)}
        v_lshrrev_b32 v6, 5, {v(V_LANE)}
        v_lshlrev_b32 v6, 10, v6
        v_bfe_u32 v7, {v(V_LANE)}, 2, 2
        v_lshl_add_u32 v6, v7, 7, v6
        v_and_b32 v8, 1, {v(V_LANE)}
        v_lshl_add_u32 v6, v8, 5, v6
        v_bfe_u32 v8, {v(V_LANE)}, 1, 1
        v_lshl_add_u32 v6, v8, 3, v6
        v_bfe_u32 v8, {v(V_LANE)}, 4, 1
        v_lshl_add_u32 v6, v8, 4, v6
        v_bfe_u32 v8, {v(V_LANE)}, 3, 1
        v_lshl_add_u32 v6, v8, 6, v6
        s_and_b32 {s(S_T0)}, {s(S_W)}, 2
        s_lshl_b32 {s(S_T0)}, {s(S_T0)}, 5
        v_xor_b32 v6, {s(S_T0)}, v6
        v_add_u32 v230, {s(S_SB)}, v6
        v_add_u32 v232, {s(S_WB)}, v6
        v_xor_b32 v6, 64, v6
        v_add_u32 v231, {s(S_SB)}, v6
        v_add_u32 v233, {s(S_WB)}, v6
        s_waitcnt lgkmcnt(0)
        '''.strip().split('\n')
        ln = [x.strip() for x in ln]
        for ft in range(7):
            for tt in range(2):
                c = ACC + 8 * ft + 4 * tt
                ln += [f'v_lshlrev_b32 {v(c)}, 16, {v(V_BIAS+2*ft)}', f'v_and_b32 {v(c+1)}, 0xffff0000, {v(V_BIAS+2*ft)}',
                       f'v_lshlrev_b32 {v(c+2)}, 16, {v(V_BIAS+1+2*ft)}', f'v_and_b32 {v(c+3)}, 0xffff0000, {v(V_BIAS+1+2*ft)}']
        self.weave(ln, bg, 7)
        while bg: bg.pop(0)()

    def p3(self):
        A = self.A
        ACC, AF, HN = 40, 96, 96
        V_SR = 230
        A('s_barrier')
        self.stamp('p3 prepoll')
        self.poll(15, 8, 8)
        self.stamp('p3 polled')
        hm = {}
        def hld(ks):
            if ks % 4 == 0: A(f's_mov_b32 {s(S_T2)}, {(ks//4)*4096}')
            for tt in range(2):
                A(f'buffer_load_dwordx4 {a(HN+8*ks+4*tt,4)}, {v(12+tt)}, {s(SRD_WS,4)}, {s(S_T2)} offen offset:{(ks%4)*1024}{self.ldf}')
            hm[ks] = A.nvm
        LA = self.opt.get('la3', 5)
        for ks in range(LA): hld(ks)
        def trs(rnd):
            ops = []
            for loc in range(6):
                for mt in range(2):
                    for hh in range(2):
                        ops.append(lambda loc=loc, mt=mt, hh=hh: self.w2_rd1(a(48*rnd + 8*loc + 4*mt + 2*hh, 2), V_SR, loc, mt, hh))
            return ops
        for n, f in enumerate(trs(0)):
            f()
            if n == 11: A('s_waitcnt lgkmcnt(4)')
        D, R = 6, 8
        lm = {}
        def rd(p, hh):
            ks, ft = divmod(p, 7)
            wp, w = ks >> 2, ks & 3
            off = (w & 1) * WPW + wp * 7168 + hh * 3584 + ft * 32
            A(f'ds_read_b64_tr_b16 {v(AF+4*(p%R)+2*hh,2)}, {v(10 + (w >> 1))} offset:{off}')
            lm[p] = A.nlg
        A('s_waitcnt lgkmcnt(2)')
        for p in range(D): rd(p, 0); rd(p, 1)
        nxt = LA
        HP = self.opt.get('hp', 4)
        r2 = self.w2_ops(6, 6, S_SB); r3 = self.w2_ops(12, 6, S_SB); t2 = trs(1)
        tch = []
        if self.opt.get('nt2', 2) < 4:
            k0 = 8 * self.opt.get('nt2', 2); lanes = (28 - k0) * 4
            assert lanes <= 64
            def f():
                A(f'''
                s_mul_i32 {s(S_T0)}, {s(S_W)}, {448*1024}
                s_mul_i32 {s(S_T1)}, {s(S_N)}, {lanes*128}
                s_add_u32 {s(S_T0)}, {s(S_T0)}, {s(S_T1)}
                s_add_u32 {s(S_T0)}, {s(S_T0)}, {k0*16384}
                ''')
                self.touch(207, SRD_W2, S_T0, lanes)
            tch.append(f)
        r2m = None; t2m = None; r2p = None
        for p in range(112):
            ks, ft = divmod(p, 7)
            need_vm = hm[ks] if ft == 0 else None
            if p % 2 == 0: A.wait(vm=need_vm, lg=lm[min(p + 1, 111)])
            elif need_vm is not None: A.wait(vm=need_vm)
            for tt in range(2):
                c = ACC + 8 * ft + 4 * tt
                A(f'v_mfma_f32_16x16x32_bf16 {v(c,4)}, {v(AF+4*(p%R),4)}, {a(HN+8*ks+4*tt,4)}, {v(c,4)}')
                if p + D < 112: rd(p + D, tt)
            if p % 2 == 0: continue
            if nxt < 16:
                if p % HP == HP - 1: hld(nxt); nxt += 1
            elif r2:
                r2.pop(0)(); r2m = A.nvm; r2p = p
            elif tch: tch.pop(0)()
            elif t2:
                if p < r2p + self.opt.get('t2gap', 8): continue
                if len(t2) == 24: A.wait(vm=r2m)
                for _ in range(3): t2.pop(0)()
                t2m = A.nlg
            elif r3 and lm[p] > t2m:
                r3.pop(0)()
        self.stamp('p3 mfma done')
        A('s_barrier')
        assert not t2
        bg = r3 + self.w2_ops(18, 10, S_WB)
        print('r3 left', len(r3))
        A(f'''
        s_lshl_b32 {s(S_T0)}, {s(S_RB)}, 2
        s_add_u32 {s(S_T0)}, {s(S_T0)}, {s(S_W)}
        s_mul_i32 {s(S_T1)}, {s(S_T0)}, {112*1024}
        s_mul_i32 {s(S_T2)}, {s(S_FB)}, 7168
        s_add_u32 {s(S_T1)}, {s(S_T1)}, {s(S_T2)}
        s_add_u32 {s(S_T1)}, {s(S_T1)}, {WS_R}
        s_add_u32 {s(S_T2)}, {s(S_T1)}, 4096
        s_lshr_b32 {s(S_T3)}, {s(S_T0)}, 1
        s_lshl_b32 {s(S_T3)}, {s(S_T3)}, 8
        s_lshl_b32 {s(S_AM0)}, {s(S_FB)}, 4
        s_add_u32 {s(S_T3)}, {s(S_T3)}, {s(S_AM0)}
        s_and_b32 {s(S_T0)}, {s(S_T0)}, 1
        s_lshl_b32 {s(S_T0)}, {s(S_T0)}, 3
        s_add_u32 {s(S_T0)}, {s(S_T0)}, {s(S_T3)}
        s_add_u32 {s(S_AM0)}, {s(S_T0)}, {F3}
        ''')
        A.quiesce(8)
        def epi(sc):
            q = list(bg)
            for ft in range(7):
                c = ACC + 8 * ft; o = 96 + 4 * ft
                ln = [f'v_mul_f32 {v(c+i)}, {v(c+i)}, |{v(c+i)}|' for i in range(8)]
                ln += [f'v_cvt_pk_bf16_f32 {v(o+i)}, {v(c+2*i)}, {v(c+2*i+1)}' for i in range(4)]
                ln += [f'v_pk_max_i16 {v(o+i)}, {v(o+i)}, 0' for i in (0, 2, 1, 3)]
                self.weave(ln, q, self.opt.get('epiw', 16))
                A(f'v_permlane16_swap_b32 {v(o)}, {v(o+2)}')
                A(f'v_permlane16_swap_b32 {v(o+1)}, {v(o+3)}')
                A(f'buffer_store_dwordx4 {v(o,4)}, {v(V_L16)}, {s(SRD_WS,4)}, {s(S_T1 if ft < 4 else S_T2)} offen offset:{(ft%4)*1024}{sc}')
            self.wleft = q
        self.dual(epi, True)
        self.stamp('r stores')
        self.rst = A.nvm

    def p4(self):
        A = self.A
        ACC, BASE, AF, RV = 16, 80, 96, 128
        wops = self.wleft
        S_MIR = 51
        self.weave(f'''
        s_and_b32 {s(S_T0)}, {s(S_W)}, 1
        s_lshl_b32 {s(S_T0)}, {s(S_T0)}, 1
        s_lshl_b32 {s(S_T1)}, {s(S_U4)}, 2
        s_add_u32 {s(S_T0)}, {s(S_T0)}, {s(S_T1)}
        v_bfe_u32 v6, {v(V_LANE)}, 4, 1
        v_add_u32 v6, {s(S_T0)}, v6
        v_lshlrev_b32 v7, 7, v6
        v_lshl_add_u32 v7, {v(V_L15)}, 3, v7
        v_lshlrev_b32 v6, 14, v6
        v_lshl_add_u32 v6, {v(V_L15)}, 4, v6
        s_lshl_b32 {s(S_T0)}, {s(S_CB)}, 2
        s_and_b32 {s(S_T1)}, {s(S_W)}, 2
        s_add_u32 {s(S_T0)}, {s(S_T0)}, {s(S_T1)}
        v_lshrrev_b32 v8, 5, {v(V_LANE)}
        v_add_u32 v8, {s(S_T0)}, v8
        v_lshlrev_b32 v12, 5, v8
        s_cmp_ge_u32 {s(S_CB)}, 4 @@ s_cselect_b64 vcc, -1, 0 @@ s_cselect_b32 {s(S_MIR)}, 2048, 0
        v_sub_u32 v9, 31, v8
        v_cndmask_b32 v9, v8, v9, vcc
        v_lshrrev_b32 v10, 2, v9
        v_and_b32 v11, 3, v9
        v_lshlrev_b32 v10, 12, v10
        v_lshl_add_u32 v10, v11, 9, v10
        v_add_u32 v10, v6, v10
        v_add_u32 v9, 1, v9
        v_bfe_u32 v11, v9, 2, 2
        v_and_b32 v9, 3, v9
        v_lshlrev_b32 v11, 12, v11
        v_lshl_add_u32 v11, v9, 9, v11
        v_add_u32 v11, v6, v11
        s_add_u32 {s(S_T0)}, {s(S_MIR)}, {WS_HN}
        s_mov_b32 {s(S_T1)}, {WS_ST}
        ''', wops, self.opt.get('p4w', 5))
        A.wait(vm=self.rst)
        self.dual(lambda sc: self.setflag(S_AM0, sc))
        self.stamp('F3 set')
        A(f'''
        buffer_load_dwordx4 v[208:211], v10, {s(SRD_WS,4)}, {s(S_T0)} offen sc1
        buffer_load_dwordx4 v[212:215], v10, {s(SRD_WS,4)}, {s(S_T0)} offen offset:256 sc1
        buffer_load_ushort v216, v11, {s(SRD_WS,4)}, {s(S_T0)} offen sc1
        buffer_load_dwordx2 v[218:219], v7, {s(SRD_WS,4)}, {s(S_T1)} offen sc1
        buffer_load_dwordx4 v[220:223], v12, {s(SRD_B2,4)}, 0 offen
        buffer_load_dwordx4 v[224:227], v12, {s(SRD_B2,4)}, 0 offen offset:16
        ''')
        V_OO = 228
        self.weave(f'''
        s_sub_u32 {s(S_T0)}, 64, {s(S_U4)}
        s_cmp_eq_u32 {s(S_U4)}, 0 @@ s_cselect_b32 {s(S_T0)}, 32, {s(S_T0)}
        s_bitcmp1_b32 {s(S_W)}, 0 @@ s_cselect_b32 {s(S_T0)}, {s(S_T0)}, {s(S_U4)}
        s_lshl_b32 {s(S_T0)}, {s(S_T0)}, 10
        v_and_b32 v6, 31, {v(V_LANE)}
        v_lshlrev_b32 v6, 16, v6
        v_add3_u32 {v(V_OO)}, v6, v12, {s(S_T0)}
        s_lshl_b32 {s(S_T0)}, {s(S_U4)}, 8
        s_lshl_b32 {s(S_T1)}, {s(S_W)}, 6
        s_add_u32 {s(S_T0)}, {s(S_T0)}, {s(S_T1)}
        s_add_u32 {s(S_T0)}, {s(S_T0)}, {F3}
        v_lshl_add_u32 v6, {v(V_LANE)}, 3, {s(S_T0)}
        s_mul_i32 {s(S_T2)}, {s(S_U4)}, {2*112*1024}
        s_mul_i32 {s(S_T1)}, {s(S_W)}, {28*1024}
        s_add_u32 {s(S_T2)}, {s(S_T2)}, {s(S_T1)}
        s_add_u32 {s(S_T2)}, {s(S_T2)}, {WS_R}
        s_bitcmp1_b32 {s(S_W)}, 0 @@ s_cselect_b32 {s(S_T0)}, {112*1024}, 0 @@ s_cselect_b32 {s(S_T1)}, 0, {112*1024}
        s_add_u32 {s(S_T0)}, {s(S_T0)}, {s(S_T2)}
        s_add_u32 {s(S_T1)}, {s(S_T1)}, {s(S_T2)}
        v_add_u32 v12, {s(S_T0)}, {v(V_L16)}
        v_add_u32 v13, {s(S_T1)}, {v(V_L16)}
        ''', wops, 4)
        while wops: wops.pop(0)()
        self.stamp('p4 prepoll')
        self.poll(6, 8, 8)
        self.stamp('p4 polled')
        def rreg(i, nt):
            n = 2 * i + nt
            return v(RV + 4 * n, 4) if n < 20 else a(96 + 4 * (n - 20), 4)
        rm = {}
        def rld(i):
            k = i
            if k % 4 == 0: A(f's_mov_b32 {s(S_T2)}, {(k//4)*4096}')
            for nt in range(2):
                A(f'buffer_load_dwordx4 {rreg(i,nt)}, {v(12+nt)}, {s(SRD_WS,4)}, {s(S_T2)} offen offset:{(k%4)*1024}{self.ldf}')
            rm[i] = A.nvm
        LA = self.opt.get('la4', 5)
        for i in range(LA): rld(i)
        def unp(dst, r, hi):
            if hi: A(f'v_and_b32 {v(dst)}, 0xffff0000, {v(r)}')
            else: A(f'v_lshlrev_b32 {v(dst)}, 16, {v(r)}')
        LM = A.newlabel('mir'); LJ = A.newlabel('join')
        A(f's_cmp_ge_u32 {s(S_CB)}, 4\ns_cbranch_scc1 {LM}')
        for k in range(16): unp(BASE + k, 208 + k // 2, k & 1)
        A(f's_branch {LJ}')
        A.label(LM)
        unp(BASE, 216, 0)
        for k in range(1, 16): unp(BASE + k, 208 + (16 - k) // 2, (16 - k) & 1)
        A.label(LJ)
        for k in range(16):
            unp(6, 220 + k // 2, k & 1)
            A(f'v_add_f32 v6, v6, v218')
            A(f'v_fma_f32 {v(BASE+k)}, {v(BASE+k)}, v219, v6')
        def areg(i, mt):
            return a(8 * i + 4 * mt, 4) if i < 12 else v(AF + 8 * (i % 4) + 4 * mt, 4)
        lm = {}
        def rd(i, mt):
            base = AF + 8 * (i % 4) + 4 * mt
            for hh in range(2):
                if i < 18: self.w2_rd1(v(base + 2*hh, 2), 230, i - 12, mt, hh)
                else: self.w2_rd1(v(base + 2*hh, 2), 232, i - 18, mt, hh)
            lm[i] = A.nlg
        D = 3
        for i in range(28):
            A.wait(vm=rm[i], lg=lm.get(i))
            for mt in range(2):
                for nt in range(2):
                    c = ACC + 32 * mt + 16 * nt
                    cin = '0' if i == 0 else v(c, 16)
                    A(f'v_mfma_f32_32x32x16_bf16 {v(c,16)}, {areg(i,mt)}, {rreg(i,nt)}, {cin}')
                    if mt == 0 and nt == 0 and i + LA < 28: rld(i + LA)
                if 12 <= i + D < 28: rd(i + D, mt)
        self.stamp('p4 mfma done')
        A(f'v_add_u32 v6, {s(S_SB)}, {v(V_L16)}')
        for T in range(1, 4):
            A(f'''
            s_xor_b32 {s(S_T0)}, {s(S_W)}, {T}
            s_mul_i32 {s(S_T0)}, {s(S_T0)}, {SPW}
            s_add_u32 {s(S_T0)}, {s(S_T0)}, {L_S + (T-1)*4096}
            v_add_u32 {v(6+T)}, {s(S_T0)}, {v(V_L16)}
            ''')
        for T in range(1, 4):
            for qq in range(4):
                A(f'ds_write_b128 v6, {v(ACC+16*T+4*qq,4)} offset:{(T-1)*4096 + qq*1024}')
        for k in range(0, 16, 2):
            A(f'v_pk_add_f32 {v(BASE+k,2)}, {v(BASE+k,2)}, {v(ACC+k,2)}')
        A('s_waitcnt lgkmcnt(0)\ns_barrier')
        for T in range(1, 4):
            for qq in range(4):
                A(f'ds_read_b128 {v(128+16*(T-1)+4*qq,4)}, {v(6+T)} offset:{qq*1024}')
        for sl in range(3):
            A(f's_waitcnt lgkmcnt({8-4*sl})')
            for k in range(0, 16, 2):
                A(f'v_pk_add_f32 {v(BASE+k,2)}, {v(BASE+k,2)}, {v(128+16*sl+k,2)}')
        for k in range(8):
            A(f'v_cvt_pk_bf16_f32 {v(96+k)}, {v(BASE+2*k)}, {v(BASE+2*k+1)}')
        A(f'buffer_store_dwordx4 v[96:99], {v(V_OO)}, {s(SRD_OUT,4)}, 0 offen{self.outf}')
        A(f'buffer_store_dwordx4 v[100:103], {v(V_OO)}, {s(SRD_OUT,4)}, 0 offen offset:16{self.outf}')

    def probe_end(self):
        A = self.A
        a_, b_ = self.opt['probe'].split('-')
        if b_ == 'end':
            A('s_waitcnt vmcnt(0)'); self.stamp('end')
        A(f'''
        s_waitcnt lgkmcnt(0)
        s_sub_u32 {s(S_T0)}, {s(S_TS+4)}, {s(S_TS if a_ == 'start' else S_TS+2)}
        s_cmp_ge_u32 {s(S_N)}, {self.opt.get('pmax', 32)}
        s_cselect_b32 {s(S_T0)}, 0, {s(S_T0)}
        s_min_u32 {s(S_T0)}, {s(S_T0)}, 4000
        s_lshl_b32 {s(S_T0)}, {s(S_T0)}, 2
        s_add_u32 {s(S_T0)}, {s(S_T0)}, 4000
        s_add_u32 {s(S_T0)}, {s(S_T0)}, {s(S_TS)}
        L_pspin:
        s_memrealtime {s(S_TS+6,2)}
        s_waitcnt lgkmcnt(0)
        s_sub_u32 {s(S_T1)}, {s(S_TS+6)}, {s(S_T0)}
        s_cmp_lt_i32 {s(S_T1)}, 0
        s_cbranch_scc1 L_pspin
        ''')

    def dump_ts(self):
        if self.opt.get('probe'): return self.probe_end()
        if not self.diag: return
        A = self.A
        A('s_waitcnt vmcnt(0)')
        self.stamp('end')
        A(f'''
        s_lshl_b32 {s(S_T0)}, s2, 2
        s_add_u32 {s(S_T0)}, {s(S_T0)}, {s(S_W)}
        s_lshl_b32 {s(S_T0)}, {s(S_T0)}, 7
        s_add_u32 {s(S_T0)}, {s(S_T0)}, {WS_TS}
        s_getreg_b32 {s(S_T1)}, hwreg(HW_REG_XCC_ID)
        s_waitcnt lgkmcnt(0)
        s_mov_b64 exec, 1
        ''')
        for i in range(20): A(f'v_mov_b32 {v(16+i)}, {s(S_TS+2*i)}')
        A(f'v_mov_b32 v40, {s(S_T1)}')
        A(f'v_mov_b32 v41, {s(S_FAST)}')
        for i in range(5):
            A(f'buffer_store_dwordx4 {v(16+4*i,4)}, off, {s(SRD_WS,4)}, {s(S_T0)} offset:{16*i}')
        A(f'buffer_store_dwordx2 v[40:41], off, {s(SRD_WS,4)}, {s(S_T0)} offset:80')

    def build(self):
        A = self.A
        self.p1()
        LI = A.newlabel('idle'); LJ = A.newlabel('p3')
        A(f's_cmp_ge_u32 {s(S_N)}, 16\ns_cbranch_scc1 {LI}')
        n0, l0 = A.nvm, A.nlg
        self.p2()
        A(f's_branch {LJ}')
        A.label(LI)
        A.nvm, A.nlg = n0, l0
        self.p2_idle()
        A.label(LJ)
        self.p3()
        self.p4()
        self.dump_ts()
        hdr = f'''; FNet (2D DFT, factored) + LayerNorms + squared-ReLU FFN, one persistent launch.
; @launch grid=(256,1,1) block=(256,1,1) lds=163840
''' + (f'; names: {",".join(self.names)}\n' if self.diag else '') + f'''.amdgcn_target "amdgcn-amd-amdhsa--gfx950"
.text
.globl {KNAME}
.p2align 8
.type {KNAME},@function
{KNAME}:
'''
        ftr = f'''L_end:
    s_endpgm
.section .rodata,"a"
.p2align 6
.amdhsa_kernel {KNAME}
  .amdhsa_next_free_vgpr 512
  .amdhsa_next_free_sgpr 102
  .amdhsa_accum_offset 256
  .amdhsa_group_segment_fixed_size 0
  .amdhsa_kernarg_size 104
  .amdhsa_user_sgpr_count 2
  .amdhsa_user_sgpr_kernarg_segment_ptr 1
  .amdhsa_system_sgpr_workgroup_id_x 1
.end_amdhsa_kernel
'''
        return hdr + A.text() + ftr

if __name__ == '__main__':
    out = sys.argv[1]
    opt = {}
    for x in sys.argv[2:]:
        if '=' in x:
            k, val = x.split('='); opt[k] = int(val) if val.lstrip('-').isdigit() else val.replace('_', ' ')
    g = Gen(diag='diag' in sys.argv[2:], opt=opt)
    t = g.build()
    open(out, 'w').write(t)
    print('nops inserted', g.A.nops, 'stamps', len(g.names))
```

```python
import re
from asmlib import Ins, need, Asm

EXEC = {('s', 126), ('s', 127)}
def klass(c):
    if c.is_mfma: return 'M'
    if c.op == 's_waitcnt': return 'W'
    if c.is_vmem: return 'G'
    if c.is_ds: return 'D'
    if c.is_valu: return 'V'
    return 'S'
def parse_wait(text):
    vm = re.search(r'vmcnt\((\d+)\)', text); lg = re.search(r'lgkmcnt\((\d+)\)', text)
    return (int(vm.group(1)) if vm else None, int(lg.group(1)) if lg else None)

class Clock:
    def __init__(s):
        s.t = 0; s.vec = 0; s.pipe = 0; s.lastv = -99; s.lds = 0; s.lastw = -99
    def plan(s, c, k, nop=0):
        t = s.t + (max(4, nop) if nop else 0)
        if k == 'M': t = max(t, s.pipe, s.vec); return t, t + 4
        if k in 'SW': return t, t + (max(4, c.states) if c.op == 's_nop' else 4)
        if k == 'V':
            t = max(t, s.vec); return t, t + (8 if (c.is_trans or (c.op.startswith('v_pk_') and 'f32' in c.op)) else 4)
        if k == 'G': t = max(t, s.lastv + 8); return t, t + 12
        t = max(t, s.vec, s.lastv + 12, s.lds - 24)
        if 'write' in c.op:
            if 'b128' in c.op: t = max(t, s.lastw + 52); return t, t + 20
            return t, t + 8
        t = max(t, s.lastw + 40)
        return t, t + 4
    def do(s, c, k, nop=0):
        t, e = s.plan(c, k, nop)
        s.t = e
        if k == 'M': s.pipe = t + 4 * c.passes; s.vec = t + 8
        if k == 'V': s.lastv = e - 4
        if k == 'D':
            cost = 16 if 'b128' in c.op else 8
            if 'write' in c.op and 'b128' in c.op: s.lastw = t
            s.lds = max(s.lds, t) + cost
        return t

def nops_needed(hist, c):
    dist = 0; req = 0
    for p in reversed(hist):
        n = need(p, c)
        if n - dist > req: req = n - dist
        dist += p.states
        if dist >= 20: break
    return req

def schedule(lines, pend, hist, clk, win=20, verbose=None):
    I = [Ins(x) for x in lines]; K = [klass(c) for c in I]; n = len(I)
    uses = []; defs = []
    for c, k in zip(I, K):
        u = set(c.uses); d = set(c.defs)
        if k in 'MVDG': u |= EXEC
        if 'exec_lo' in c.ops[:1] or 'exec_hi' in c.ops[:1]: d |= EXEC
        uses.append(u); defs.append(d)
    dep = [set() for _ in range(n)]
    last = {}
    cnt = {'D': 0, 'G': 0}; idx = {'D': [], 'G': []}
    tgt = {}; cover = []
    lastdef = {}; readers = {}
    mbefore = []; nm = 0
    for j in range(n):
        k = K[j]
        mbefore.append(nm)
        if k == 'M': nm += 1
        if k in last: dep[j].add(last[k])
        last[k] = j
        for r in uses[j]:
            if r in lastdef: dep[j].add(lastdef[r])
        for r in defs[j]:
            if r in lastdef: dep[j].add(lastdef[r])
            dep[j] |= readers.get(r, set())
        for r in uses[j]: readers.setdefault(r, set()).add(j)
        for r in defs[j]: lastdef[r] = j; readers[r] = set()
        if k in 'DG' and 'W' in last: dep[j].add(last['W'])
        for w, regs in cover:
            if regs & (uses[j] | defs[j]): dep[j].add(w)
        if k == 'W':
            vm, lg = parse_wait(lines[j]); regs = set(); tg = {}
            for q, m in (('G', vm), ('D', lg)):
                if m is None: continue
                tg[q] = cnt[q] - m
                if tg[q] > 0: dep[j].add(idx[q][tg[q] - 1])
                while len(pend[q]) > m: regs |= pend[q].pop(0)
            tgt[j] = tg; cover.append((j, regs))
        if k in 'DG':
            cnt[k] += 1; idx[k].append(j); pend[k].append(set(I[j].defs))
        dep[j].discard(j)
    done = [False] * n; out = []; lo = 0; curm = 0
    streams = {k: [j for j in range(n) if K[j] == k] for k in 'MSWGDV'}
    c2 = {'D': 0, 'G': 0}
    t0 = clk.t
    hist = list(hist)
    def put(j):
        nonlocal lo, curm
        k = K[j]; txt = lines[j]
        if k == 'W':
            p = []
            if 'G' in tgt[j]: p.append(f'vmcnt({min(63, c2["G"] - tgt[j]["G"])})')
            if 'D' in tgt[j]: p.append(f'lgkmcnt({min(15, c2["D"] - tgt[j]["D"])})')
            txt = 's_waitcnt ' + ' '.join(p)
        nop = nops_needed(hist, I[j])
        if nop: hist.append(Ins(f's_nop {min(nop, 16) - 1}'))
        clk.do(I[j], k, nop)
        hist.append(I[j]); out.append(txt); done[j] = True
        streams[k].pop(0)
        if k in 'DG': c2[k] += 1
        if k == 'M': curm += 1
        while lo < n and done[lo]: lo += 1
    while lo < n:
        cand = {}
        for k, q in streams.items():
            if not q: continue
            j = q[0]
            if j - lo > win or not all(done[d] for d in dep[j]): continue
            if k == 'W' and mbefore[j] > curm: continue
            if k == 'G' and mbefore[j] > curm + 1: continue
            nop = nops_needed(hist, I[j])
            cand[k] = (j, nop) + clk.plan(I[j], k, nop)
        m = cand.pop('M', None)
        lim = max(clk.pipe, clk.vec) if streams['M'] else None
        fit = [(v[2], {'G': 0, 'W': 1, 'S': 2, 'D': 3, 'V': 4}[k], v[0]) for k, v in cand.items() if lim is not None and v[3] <= lim and not v[1]]
        if fit:
            fit.sort()
            best = fit[0]
            vec = [f for f in fit if f[1] >= 3 and f[0] <= best[0]]
            if best[1] in (1, 2) and vec and min(f[2] for f in vec) < best[2] + 6: best = vec[0]
            put(best[2])
        elif m and not m[1]: put(m[0])
        else:
            if m: cand['M'] = m
            best = min(cand.values(), key=lambda v: (v[2] - clk.t) + 1.0 * (v[0] - lo))
            put(best[0])
    if verbose is not None: verbose.append((n, nm, clk.t - t0))
    return out, hist[-40:]

def run(prog, win=20):
    A = Asm(); clk = Clock(); pend = {'D': [], 'G': []}
    reg = []; stats = []; rep = []
    def flush():
        nonlocal reg
        if reg:
            out, _ = schedule(reg, pend, A.hist, clk, win, stats)
            for x in out: A.i(x)
            reg = []
    depth = None
    for e in prog:
        kind = e[0]
        if kind == 'i':
            c = Ins(e[1])
            plain = e[2] and depth is None and not c.op.startswith(('s_barrier', 's_cbranch', 's_branch', 's_memtime', 's_memrealtime', 's_load', 's_buffer_load', 's_getreg', 's_setprio', 's_sleep', 's_endpgm'))
            if plain: reg.append(e[1]); continue
            flush()
            k = klass(c)
            clk.do(c, k, nops_needed(A.hist, c))
            A.i(e[1])
            if k == 'W':
                vm, lg = parse_wait(e[1])
                if depth is None:
                    for q, m in (('G', vm), ('D', lg)):
                        while m is not None and len(pend[q]) > m: pend[q].pop(0)
            elif k in 'DG' and depth is None: pend[k].append(set(c.defs))
        elif kind == 'snap': flush(); depth = (list(A.hist), dict(clk.__dict__))
        elif kind == 'unsnap': A.hist = depth[0]; clk.__dict__.update(depth[1]); depth = None
        elif kind == 'fence':
            flush(); rep.append((e[1], clk.t))
        elif kind == 'label': flush(); A.label(e[1])
        else: flush(); A.raw(e[1])
    flush()
    A.report = rep
    return A
```

```python
import sys
import sched
from asmlib import *

KNAME = 'sequential_preLN__spectral_fnet__dense_activation_squared_relu__prompt_kernel'
WS_Z, WS_HN, WS_R, WS_ST, WS_FL, WS_TS = 0, 2 << 20, 4 << 20, 12 << 20, 13 << 20, 14 << 20
WS_SIZE = 32 << 20
WS_P = 16 << 20
FP = WS_ST
F1 = WS_FL + 0x10000
F3 = WS_FL + 0x4000
FX = WS_FL + 0x6000
FE = WS_FL + 0x7000
HPW = 16384
L_S = 65536
SPW = 20480
L_M = L_S + 4 * SPW
L_EXC, L_XE, L_STAT = L_M, L_M + 8192, L_M + 10240
S_W = 3
S_T0, S_T1, S_T2, S_T3 = 4, 5, 6, 7
SRD_X, SRD_W1, SRD_W2, SRD_OUT, SRD_WS, SRD_B1, SRD_B2 = 8, 12, 16, 20, 24, 28, 32
S_CNT, S_FAST = 36, 37
S_F1 = S_CNT
S_C, S_N, S_U, S_Q = 38, 39, 40, 41
S_TB1, S_ODD, S_TW, S_W2S, S_BG, S_HB0 = 42, 43, 44, 45, 46, 47
S_XO = 48
S_RR = 52
S_FIX = 56
S_AM0, S_TCH = 58, 59
S_M = 60
S_TS = 62
S_HB, S_SB = 0, 1
V_LANE, V_L15, V_G, V_L16, V_TAG = 0, 1, 2, 3, 4
V_L128 = 14
ZF, TB, Y = 16, 80, 192
V_ONES = 144
V_W1U, V_W1D = 148, 152
V_W1R = 156
V_CS = 160
V_SEL = 176
AD_ = 224
V_FXV = 180
V_BT, V_TD = 182, 183
V_FIX = 184
V_ZA = 188
V_TT = 190
V_W2A = 148
V_W2R = 152


SW = 0.4
class TAsm(Asm):
    def __init__(self):
        super().__init__(); self.nvm = 0; self.nlg = 0; self.dvm = 0; self.dlg = 0
        self.prog = []; self.on = False; self.wt = 0; self.clk = None
    def label(self, name): super().label(name); self.prog.append(('label', name))
    def raw(self, t): super().raw(t); self.prog.append(('raw', t))
    def snap(self):
        self._snap = (list(self.hist), self.nvm); self.prog.append(('snap',))
    def unsnap(self):
        self.hist, self.nvm = self._snap; self.prog.append(('unsnap',))
    def i(self, text):
        if getattr(self, 'drop', None) and self.drop(text): return
        super().i(text)
        self.prog.append(('i', text, self.on))
        c = self.hist[-1]
        self.wt += 0 if c.is_mfma else 2 if c.is_vmem else 4 if c.op == 'ds_write_b128' else 2 if c.is_trans else 1 if (c.is_ds or c.is_valu) else SW
        if self.clk: self.clk.do(c, sched.klass(c))
        if c.is_vmem: self.nvm += 1
        if c.is_ds: self.nlg += 1
    def wait(self, vm=None, lg=None):
        p = []
        if vm is not None and vm > self.dvm:
            n = min(63, self.nvm - vm); p.append(f'vmcnt({n})'); self.dvm = self.nvm - n
        if lg is not None and lg > self.dlg:
            n = min(15, self.nlg - lg); p.append(f'lgkmcnt({n})'); self.dlg = self.nlg - n
        if p: self('s_waitcnt ' + ' '.join(p))
        return 1 if p else 0

def L(txt): return [x.strip().replace(' @@ ', '\n') for x in txt.strip().split('\n') if x.strip()]

class Gen:
    def __init__(self, diag=False, opt=None):
        self.A = TAsm(); self.diag = diag; self.nts = 0; self.names = []
        self.opt = opt or {}
        self.fsh = 4
        fl = lambda k, d: (' ' + self.opt[k]).rstrip() if self.opt.get(k, 'pl') != 'pl' else ('' if k in self.opt else d)
        self.ldf = fl('ldf', ' sc1'); self.outf = fl('outf', ' nt'); self.zldf = fl('zldf', ' sc1')
        self.skip = set()
        self.nofence = set(); self.skip = {'x first', 'kernarg', 'pre F1'}
        if self.opt.get('fine'): self.skip = {'kernarg', 'tables', 'x first', 'gemm1 done', 'Z stores', 'F1 set', 'p2 prepoll', 'pre F1', 'Z first', 'Z landed'}

    def stamp(self, name):
        if self.opt.get('fine') == 3 and not (name.startswith('wd') or name in ('start', 'gemm1 done', 'Z stores', 'pre F1', 'F1 set', 'p2 prepoll', 'p2 polled', 'Z first', 'end')): self.skip.add(name)
        elif self.opt.get('fine') == 3: self.skip.discard(name)
        if name not in self.nofence: self.A.prog.append(('fence', name))
        elif not self.opt.get('allst'): return
        pr = self.opt.get('probe')
        if pr:
            a_, b_ = pr.split('-')
            if name == 'start': self.A(f's_memrealtime {s(S_TS, 2)}')
            if name == a_ and name != 'start': self.A(f's_memrealtime {s(S_TS+2, 2)}')
            if name == b_: self.A(f's_memrealtime {s(S_TS+4, 2)}')
            return
        if self.diag and name not in self.skip:
            idx = len(self.names); self.names.append(name)
            assert idx < 20
            self.A(f'{"s_memtime" if self.opt.get("cyc") else "s_memrealtime"} {s(S_TS + 2*idx, 2)}')

    def emit(self, x):
        if callable(x): x()
        else: self.A(x)
    def weave(self, lines, bg, every):
        if isinstance(lines, str): lines = L(lines)
        for n, x in enumerate(lines):
            self.emit(x)
            if bg and (n + 1) % every == 0: self.emit(bg.pop(0))
    def flush(self, bg):
        while bg: self.emit(bg.pop(0))

    def srd(self, base, nbytes):
        self.A(f's_mov_b32 {s(base+2)}, {nbytes}\ns_mov_b32 {s(base+3)}, 0x20000')

    def poll(self, vaddr, nl, vtmp):
        A = self.A
        Lp = A.newlabel('poll'); D = A.newlabel('polld')
        on = A.on; A.on = False
        if nl < 64: A(f's_mov_b64 exec, {(1<<nl)-1}')
        A(f's_mov_b32 {s(S_CNT)}, 0x20000')
        A.label(Lp)
        A(f'buffer_load_dwordx2 {v(vtmp,2)}, {v(vaddr)}, {s(SRD_WS,4)}, 0 offen sc1')
        A(f's_sub_u32 {s(S_CNT)}, {s(S_CNT)}, 1')
        A(f's_cbranch_scc1 {D}')
        A('s_waitcnt vmcnt(0)')
        A(f'v_cmp_ne_u64 vcc, {v(vtmp,2)}, {v(V_TAG,2)}')
        A(f's_cbranch_vccnz {Lp}')
        A.label(D)
        A('s_waitcnt vmcnt(0)')
        A.dvm = A.nvm
        if nl < 64: A('s_mov_b64 exec, -1')
        A.on = on

    def setflag(self, soff, sc):
        A = self.A
        A('s_mov_b64 exec, 1')
        A(f'buffer_store_dwordx2 {v(V_TAG,2)}, off, {s(SRD_WS,4)}, {s(soff)}{sc}')
        A('s_mov_b64 exec, -1')

    def dualflag(self, soff):
        A = self.A
        if self.opt.get('nofast'): return self.setflag(soff, ' sc1')
        LS = A.newlabel('slow'); LJ = A.newlabel('dj')
        A(f's_cmp_eq_u32 {s(S_FAST)}, 0\ns_cbranch_scc1 {LS}')
        A.snap()
        self.setflag(soff, '')
        A(f's_branch {LJ}')
        A.label(LS)
        A.unsnap()
        self.setflag(soff, ' sc1')
        A.label(LJ)

    def touch(self, vd, srd, soff, lanes, fl='', va=V_L128):
        A = self.A
        if lanes < 64: A(f's_mov_b64 exec, {hex((1<<lanes)-1)}' if lanes <= 32 else f's_mov_b32 exec_hi, {hex((1<<(lanes-32))-1)}')
        A(f'buffer_load_dword {v(vd)}, {v(va)}, {s(srd,4)}, {s(soff)} offen{fl}')
        if lanes < 64: A('s_mov_b64 exec, -1')
    def w1touch(self, l0, l1):
        A = self.A
        m = ((1 << l1) - 1) & ~((1 << l0) - 1)
        A(f'''
        s_bfe_u32 {s(S_TCH)}, {s(S_TW)}, 0x20004
        s_lshl_b32 {s(S_TCH)}, {s(S_TCH)}, 6
        s_bitcmp1_b32 {s(S_TW)}, 6
        s_cselect_b32 {s(S_BG)}, 257, 32
        s_add_u32 {s(S_TCH)}, {s(S_TCH)}, {s(S_BG)}
        s_and_b32 {s(S_BG)}, {s(S_TW)}, 15
        s_lshl1_add_u32 {s(S_TCH)}, {s(S_BG)}, {s(S_TCH)}
        s_mul_i32 {s(S_TCH)}, {s(S_TCH)}, 3584
        s_mov_b32 exec_lo, {hex(m & 0xffffffff)}
        s_mov_b32 exec_hi, {hex(m >> 32)}
        buffer_load_dword {v(V_TD)}, {v(V_L128)}, {s(SRD_W1,4)}, {s(S_TCH)} offen
        s_mov_b64 exec, -1
        ''')
    def w2touch(self, k):
        A = self.A
        if k is not None:
            LS = A.newlabel('nt'); A(f's_cmp_lg_u32 {s(S_C)}, {k}\ns_cbranch_scc1 {LS}'); A.snap()
        A(f's_mul_i32 {s(S_TCH)}, {s(S_TW)}, {112*128}')
        self.touch(V_TD, SRD_W2, S_TCH, 64)
        A(f's_add_u32 {s(S_TCH)}, {s(S_TCH)}, 8192')
        self.touch(V_TD, SRD_W2, S_TCH, 48)
        if k is not None:
            A.label(LS); A.unsnap()
    def g2touch(self, m):
        A = self.A
        if m == 1:
            A(f'''
            v_mul_u32_u24 {v(V_BT)}, {3584-2048}, {v(V_G)}
            v_add_u32 {v(V_BT)}, {v(V_BT)}, {v(V_L128)}
            s_lshr_b32 {s(S_TCH)}, {s(S_Q)}, 2
            s_lshl3_add_u32 {s(S_TCH)}, {s(S_TW)}, {s(S_TCH)}
            s_mul_i32 {s(S_TCH)}, {s(S_TCH)}, 1792
            s_mov_b32 exec_lo, 0x3fff3fff
            s_mov_b32 exec_hi, 0x3fff3fff
            buffer_load_dword {v(V_TD)}, {v(V_BT)}, {s(SRD_W1,4)}, {s(S_TCH)} offen
            s_mov_b64 exec, -1
            ''')
        else:
            A(f"""
            s_lshr_b32 {s(S_BG)}, {s(S_Q)}, 2
            s_lshl_b32 {s(S_BG)}, {s(S_BG)}, 7
            s_add_u32 {s(S_TCH)}, {s(S_TW)}, {s(S_BG)}
            s_mul_i32 {s(S_TCH)}, {s(S_TCH)}, 7168
            """)
            self.touch(V_TD, SRD_W2, S_TCH, 56)
    def wtouch(self, vd, srd, l0, lanes):
        A = self.A
        A(f's_mul_i32 {s(S_TCH)}, {s(S_TW)}, {lanes*128}\ns_add_u32 {s(S_TCH)}, {s(S_TCH)}, {l0*128*128}')
        self.touch(vd, srd, S_TCH, lanes)

    def w1_setup(self):
        return L(f'''
        s_mul_i32 {s(S_T0)}, {s(S_Q)}, 448
        s_lshr_b32 {s(S_T1)}, {s(S_W)}, 1
        s_mul_i32 {s(S_T1)}, {s(S_T1)}, 224
        s_mul_i32 {s(S_T2)}, {s(S_ODD)}, 96
        s_add_u32 {s(S_T0)}, {s(S_T0)}, {s(S_T1)}
        s_add_u32 {s(S_T0)}, {s(S_T0)}, {s(S_T2)}
        v_lshlrev_b32 v6, 1, {v(V_G)}
        v_xor_b32 v6, v6, {v(V_LANE)}
        v_and_b32 v6, 7, v6
        v_lshl_add_u32 v6, v6, 4, {s(S_T0)}
        v_lshrrev_b32 v7, 5, {v(V_LANE)}
        v_bfe_u32 v8, {v(V_LANE)}, 3, 2
        v_lshl_add_u32 v7, v7, 3, v8
        v_sub_u32 v8, 11, v7
        s_movk_i32 {s(S_T3)}, 3584
        v_mad_u32_u24 {v(V_W1U)}, v7, {s(S_T3)}, v6
        v_mad_u32_u24 {v(V_W1D+3)}, v8, {s(S_T3)}, v6
        v_add_u32 {v(V_W1U+1)}, {16*3584-1024}, {v(V_W1U)}
        v_add_u32 {v(V_W1U+2)}, {4*3584-2048}, {v(V_W1U)}
        v_add_u32 {v(V_W1U+3)}, {20*3584-3072}, {v(V_W1U)}
        v_add_u32 {v(V_W1D)}, {20*3584+3072}, {v(V_W1D+3)}
        v_add_u32 {v(V_W1D+1)}, {4*3584+2048}, {v(V_W1D+3)}
        v_add_u32 {v(V_W1D+2)}, {16*3584+1024}, {v(V_W1D+3)}
        v_lshrrev_b32 v6, 2, {v(V_LANE)}
        v_lshlrev_b32 v6, 7, v6
        v_and_b32 v7, 3, {v(V_LANE)}
        v_lshl_add_u32 v6, v7, 3, v6
        v_add_u32 v6, {s(S_SB)}, v6
        v_bfe_u32 v7, {v(V_LANE)}, 3, 2
        ''') + sum([L(f'''
        s_add_u32 {s(S_T0)}, {s(S_ODD)}, {t}
        s_and_b32 {s(S_T0)}, {s(S_T0)}, 3
        v_xor_b32 v8, {s(S_T0)}, v7
        v_lshl_add_u32 {v(V_W1R+t)}, v8, 5, v6
        ''') for t in range(4)], [])
    def w1_dma(self, b, slot):
        A = self.A; q1, ip, var = b >> 3, (b >> 1) & 3, b & 1; n = 2 * var + q1
        ops = []
        for i in range(4):
            def f(i=i):
                if i == 0:
                    A(f's_xor_b32 {s(S_BG)}, {s(S_C)}, {ip}')
                    A(f's_mul_i32 {s(S_BG)}, {s(S_BG)}, {64*3584}')
                    if var == 0:
                        if q1: A(f's_add_u32 {s(S_BG)}, {s(S_BG)}, {32*3584}')
                    else: A(f's_sub_u32 {s(S_BG)}, {(512-31-32*q1)*3584 - 3072}, {s(S_BG)}')
                    A(f's_add_u32 m0, {s(S_SB)}, {slot*4096}')
                if n == 2 and i == 0:
                    A(f'''
                    v_add_u32 {v(V_BT)}, {s(S_BG)}, {v(V_W1D)}
                    s_cmp_eq_u32 {s(S_C)}, {ip}
                    s_cselect_b64 exec, 0xff, 0
                    v_subrev_u32 {v(V_BT)}, {256*3584}, {v(V_BT)}
                    s_mov_b64 exec, -1
                    buffer_load_dwordx4 {v(V_BT)}, {s(SRD_W1,4)}, 0 offen lds
                    ''')
                else:
                    A(f'buffer_load_dwordx4 {v((V_W1D if var else V_W1U)+i)}, {s(SRD_W1,4)}, {s(S_BG)} offen offset:{i*1024} lds')
                if i == 3: self.w1m[b] = A.nvm
            ops.append(f)
        return ops
    def w1_tr(self, b, slot):
        A = self.A; ops = []
        for t in range(4):
            for hh in range(2):
                def f(t=t, hh=hh):
                    A.wait(vm=self.w1m[b])
                    A(f'ds_read_b64_tr_b16 {a(16*b+4*t+2*hh,2)}, {v(V_W1R+t)} offset:{slot*4096+hh*2048}')
                    self.w1l[b] = A.nlg
                ops.append(f)
        return ops
    def w1_cs(self, b):
        A = self.A; ops = []
        for t in range(4):
            def f(t=t):
                A.wait(lg=self.w1l[b])
                c = v(V_CS + 4 * t, 4)
                A(f'v_mfma_f32_16x16x32_bf16 {c}, {v(V_ONES,4)}, {a(16*b+4*t,4)}, {c if self.csn[t] else "0"}')
                self.csn[t] += 1
            ops.append(f)
        return ops
    def w1_pipeline(self):
        order = self.w1order; NS = 5
        seq = []
        for k in range(NS): seq.append(('dma', k))
        for k in range(16):
            seq.append(('tr', k))
            if k >= 1:
                seq.append(('cs', k - 1))
                if k - 1 + NS < 16: seq.append(('dma', k - 1 + NS))
        seq.append(('cs', 15))
        out = []
        for kind, k in seq:
            b = order[k]
            if kind == 'dma': ops = self.w1_dma(b, k % NS)
            elif kind == 'tr': ops = self.w1_tr(b, k % NS)
            else: ops = self.w1_cs(b)
            out.append((kind, k, ops))
        return out

    def w2_setup(self):
        return L(f"""
        v_lshlrev_b32 {v(V_W2A)}, 1, {v(V_G)}
        v_xor_b32 {v(V_W2A)}, {v(V_W2A)}, {v(V_LANE)}
        v_and_b32 {v(V_W2A)}, 7, {v(V_W2A)}
        v_lshrrev_b32 {v(V_W2A+1)}, 3, {v(V_LANE)}
        v_lshlrev_b32 {v(V_W2A+1)}, 10, {v(V_W2A+1)}
        v_lshl_add_u32 {v(V_W2A)}, {v(V_W2A)}, 4, {v(V_W2A+1)}
        s_mul_i32 {s(S_W2S)}, {s(S_Q)}, {224*1024}
        s_and_b32 {s(S_BG)}, {s(S_Q)}, 4 @@ s_add_u32 {s(S_BG)}, {s(S_BG)}, {s(S_W)} @@ s_lshl_b32 {s(S_BG)}, {s(S_BG)}, 7 @@ s_add_u32 {s(S_W2S)}, {s(S_W2S)}, {s(S_BG)}
        s_xor_b32 {s(S_W2S)}, {s(S_W2S)}, 512
        v_add_u32 {v(V_W2A+1)}, {8192-1024}, {v(V_W2A)}
        """)
    def w2_setup_r(self):
        return L(f"""
        s_xor_b32 {s(S_TCH)}, {s(S_Q)}, {s(S_ODD)} @@ s_and_b32 {s(S_TCH)}, {s(S_TCH)}, 3 @@ s_lshl_b32 {s(S_TCH)}, {s(S_TCH)}, 5 @@ v_xor_b32 {v(V_W2R+3)}, {s(S_TCH)}, {v(V_W1R)}
        v_xor_b32 {v(V_W2R)}, 96, {v(V_W2R+3)}
        v_xor_b32 {v(V_W2R+1)}, 64, {v(V_W2R+3)}
        v_xor_b32 {v(V_W2R+2)}, 32, {v(V_W2R+3)}
        """)
    def w2_dma(self, b, slot):
        A = self.A; h, ks = divmod(b, 7); ops = []
        for i in range(4):
            def f(i=i):
                if i == 0:
                    if b == 7: A(f's_xor_b32 {s(S_W2S)}, {s(S_W2S)}, 512')
                    if ks < 4:
                        A(f's_xor_b32 {s(S_BG)}, {s(S_W)}, {ks}')
                        A(f's_mul_i32 {s(S_BG)}, {s(S_BG)}, {7*8192}')
                        A(f's_add_u32 {s(S_BG)}, {s(S_BG)}, 8192')
                        A(f's_and_b32 {s(S_BG)}, {s(S_BG)}, {hex(0xffffc000)}')
                        A(f's_add_u32 {s(S_BG)}, {s(S_BG)}, {s(S_W2S)}')
                    elif ks < 6:
                        A(f's_bitcmp1_b32 {s(S_W)}, 1')
                        A(f's_cselect_b32 {s(S_BG)}, {7 if ks == 4 else 0}, {0 if ks == 4 else 7}')
                        A(f's_add_u32 {s(S_BG)}, {s(S_BG)}, 2')
                        A(f's_lshl_b32 {s(S_BG)}, {s(S_BG)}, 14')
                        A(f's_add_u32 {s(S_BG)}, {s(S_BG)}, {s(S_W2S)}')
                    else: A(f's_add_u32 {s(S_BG)}, {s(S_W2S)}, {3*16384}')
                    A(f's_add_u32 m0, {s(S_SB)}, {slot*4096}')
                if i == 2: A(f's_add_u32 {s(S_BG)}, {s(S_BG)}, {(1 if ks < 4 else 4 if ks < 6 else 7)*16384 - 2048}')
                A(f'buffer_load_dwordx4 {v(V_W2A+(i&1))}, {s(SRD_W2,4)}, {s(S_BG)} offen offset:{i*1024} lds')
                if i == 3: self.w2m[b] = A.nvm
            ops.append(f)
        return ops
    def w2_tr(self, b, slot):
        A = self.A; ops = []
        for t in range(4):
            for hh in range(2):
                def f(t=t, hh=hh):
                    assert self.blk > b, 'w2 fragment would overwrite live w1'
                    A.wait(vm=self.w2m[b])
                    A(f'ds_read_b64_tr_b16 {a(16*b+4*t+2*hh,2)}, {v(V_W2R+t)} offset:{slot*4096+hh*2048}')
                    self.trl[16 + b] = A.nlg
                ops.append(f)
        return ops
    def smalltouch(self, T):
        self.A(f's_mul_i32 {s(T)}, {s(S_Q)}, 448\ns_lshl_b32 {s(T+1)}, {s(S_W)}, 8')
        self.touch(V_TD, SRD_B1, T, 5); self.touch(V_TD, SRD_B2, T + 1, 2)
        self.ptouch((0,), T)
    def ptouch(self, js=(0, 1, 2), T=S_RR + 2):
        A = self.A
        n = self.opt.get('npl', 3); tf = ' ' + self.opt.get('tf', 'sc1')
        A(f's_lshl3_add_u32 {s(T)}, {s(S_U)}, {s(S_Q)}')
        A(f"""
        s_lshl_b32 {s(T)}, {s(T)}, 5
        s_add_u32 {s(T)}, {s(T)}, {s(S_W)}
        s_lshl_b32 {s(T)}, {s(T)}, 11
        s_add_u32 {s(T)}, {s(T)}, {WS_P + 8192}
        """)
        if 0 in js:
            A(f's_sub_u32 {s(T+1)}, {s(T)}, {8192 - 128}')
            self.touch(191, SRD_WS, T + 1, 11 if self.opt.get('zc') else 7, ' sc1')
        if 3 in js:
            A(f"""
            s_sub_u32 {s(T+1)}, {s(T)}, 8192
            v_mul_u32_u24 v191, {65536+128}, {v(V_LANE)}
            v_xor_b32 v191, {s(T+1)}, v191
            s_mov_b64 exec, 0xfe
            buffer_load_dword v191, v191, {s(SRD_WS,4)}, 0 offen sc1
            s_mov_b64 exec, -1
            """)
        if 4 in js:
            A(f's_add_u32 {s(T+1)}, {s(T)}, 16384')
            self.touch(191, SRD_WS, T + 1, 16, tf)
        if 1 not in js and 2 not in js: return
        A(f"""
        v_mul_u32_u24 {v(V_W2A+2)}, {8192-2048}, {v(V_G)}
        v_add_u32 {v(V_W2A+2)}, {v(V_W2A+2)}, {v(V_L128)}
        """)
        if 1 in js: self.touch(191, SRD_WS, T, min(64, 16 * n), tf, va=V_W2A + 2)
        if n > 4 and 2 in js:
            A(f's_add_u32 {s(T)}, {s(T)}, 32768')
            self.touch(191, SRD_WS, T, 16 * (n - 4), tf, va=V_W2A + 2)

    def p1(self):
        A = self.A; o = self.opt
        X, R1, SUM, SQ, FS, ACC = 16, 160, 168, 172, 192, 224
        V_SGN, V_FAC, V_ZO, V_EW, V_XD, V_XR, V_ER = 176, 177, 178, 179, 184, 186, 191
        A(f'''
        s_cmp_ge_u32 s2, 256
        s_cbranch_scc1 L_end
        s_load_dwordx2 {s(SRD_X,2)}, s[0:1], 0
        s_load_dwordx2 {s(SRD_WS,2)}, s[0:1], 96
        s_load_dwordx2 {s(SRD_W1,2)}, s[0:1], 48
        s_load_dwordx2 {s(SRD_W2,2)}, s[0:1], 64
        s_load_dwordx2 {s(SRD_B1,2)}, s[0:1], 56
        s_load_dwordx2 {s(SRD_B2,2)}, s[0:1], 72
        s_load_dwordx2 {s(SRD_OUT,2)}, s[0:1], 80
        ''')
        self.stamp('start')
        A(f'''
        v_lshrrev_b32 v6, 6, v0
        v_and_b32 {v(V_LANE)}, 63, v0
        v_readfirstlane_b32 {s(S_W)}, v6
        v_and_b32 {v(V_L15)}, 15, {v(V_LANE)}
        v_lshrrev_b32 {v(V_G)}, 4, {v(V_LANE)}
        v_lshlrev_b32 {v(V_L16)}, 4, {v(V_LANE)}
        v_lshlrev_b32 {v(V_L128)}, 7, {v(V_LANE)}
        s_lshr_b32 {s(S_N)}, s2, 3
        ''')
        if o.get('g2') == 2: A(f'''
        s_and_b32 {s(S_T1)}, s2, 1
        s_and_b32 {s(S_Q)}, {s(S_N)}, 3
        s_lshl2_add_u32 {s(S_Q)}, {s(S_T1)}, {s(S_Q)}
        s_and_b32 {s(S_T1)}, s2, 6
        s_lshr_b32 {s(S_C)}, {s(S_N)}, 3
        s_lshl1_add_u32 {s(S_U)}, {s(S_T1)}, {s(S_C)}
        s_sub_u32 {s(S_T1)}, 32, {s(S_U)}
        s_cmp_eq_u32 {s(S_U)}, 0
        s_cselect_b32 {s(S_T1)}, 16, {s(S_T1)}
        s_bitcmp1_b32 {s(S_N)}, 2
        s_cselect_b32 {s(S_U)}, {s(S_T1)}, {s(S_U)}
        ''')
        elif o.get('g2'): A(f'''
        s_and_b32 {s(S_T1)}, s2, 1
        s_and_b32 {s(S_Q)}, {s(S_N)}, 3
        s_lshl2_add_u32 {s(S_Q)}, {s(S_T1)}, {s(S_Q)}
        s_and_b32 {s(S_T1)}, s2, 6
        s_lshr_b32 {s(S_U)}, {s(S_N)}, 2
        s_and_b32 {s(S_C)}, {s(S_U)}, 3
        s_lshl2_add_u32 {s(S_U)}, {s(S_T1)}, {s(S_U)}
        ''')
        else: A(f'''
        s_and_b32 {s(S_T1)}, s2, 7
        s_and_b32 {s(S_Q)}, {s(S_N)}, 7
        s_lshr_b32 {s(S_C)}, {s(S_N)}, 3
        s_lshl2_add_u32 {s(S_U)}, {s(S_T1)}, {s(S_C)}
        ''')
        A(f'''
        s_lshl_b32 {s(S_HB0)}, {s(S_W)}, 14
        s_and_b32 {s(S_ODD)}, {s(S_W)}, 1
        s_lshl2_add_u32 {s(S_TW)}, {s(S_N)}, {s(S_W)}
        s_lshl_b32 {s(S_T0)}, {s(S_Q)}, 7
        s_and_b32 {s(S_T1)}, {s(S_T0)}, 0x200
        ''')
        for i in range(4):
            A(f's_add_u32 {s(S_T2)}, {s(S_T0)}, {128*i}\ns_and_b32 {s(S_T2)}, {s(S_T2)}, 0x180\ns_or_b32 {s(S_XO+i)}, {s(S_T2)}, {s(S_T1)}')
        self.srd(SRD_X, 2097152); self.srd(SRD_WS, WS_SIZE); self.srd(SRD_W2, 1835008); self.srd(SRD_W1, 1835008)
        self.srd(SRD_B1, 3584); self.srd(SRD_B2, 1024); self.srd(SRD_OUT, 2097152)
        A(f'''
        s_and_b32 {s(S_T0)}, {s(S_W)}, 2
        s_lshl4_add_u32 {s(S_T0)}, {s(S_T0)}, {s(S_ODD)}
        s_lshl_b32 {s(S_T0)}, {s(S_T0)}, 5
        s_add_u32 {s(S_T0)}, {s(S_T0)}, {s(S_U)}
        s_lshl_b32 {s(S_T0)}, {s(S_T0)}, 10
        v_lshrrev_b32 v12, 3, {v(V_LANE)}
        v_and_b32 v13, 7, {v(V_LANE)}
        v_xor_b32 v13, v13, {v(V_G)}
        v_lshlrev_b32 v13, 4, v13
        v_lshl_add_u32 v6, v12, 16, v13
        v_add_u32 {v(V_XD)}, {s(S_T0)}, v6
        v_xor_b32 v6, 64, {v(V_XD)}
        v_add_u32 {v(V_XD+1)}, {8*65536 - 1024}, v6
        ''')
        A(f'''
        s_lshl_b32 {s(S_T0)}, {s(S_Q)}, 5
        v_lshrrev_b32 v6, 2, {v(V_L15)}
        v_and_b32 v7, 3, {v(V_L15)}
        v_lshl_add_u32 v6, v6, 3, v7
        v_add_u32 v6, {s(S_T0)}, v6
        v_add_u32 v7, 4, v6
        v_cmp_eq_u32 vcc, 0, v6
        v_mov_b32 v8, 0x100
        v_cndmask_b32 v6, v6, v8, vcc
        v_cvt_f32_u32 v6, v6
        v_cvt_f32_u32 v7, v7
        v_mul_f32 v6, {f2u(1/512)}, v6
        v_mul_f32 v7, {f2u(1/512)}, v7
        s_add_u32 {s(S_T0)}, {s(S_W)}, {s(S_Q)}
        s_and_b32 {s(S_T0)}, {s(S_T0)}, 3
        s_lshl_b32 {s(S_T0)}, {s(S_T0)}, 6
        v_lshl_add_u32 v8, {v(V_G)}, 3, {s(S_T0)}
        v_cvt_f32_u32 v8, v8
        v_add_f32 v9, {f2u(32.0)}, v8
        s_mul_i32 {s(S_T0)}, {s(S_W)}, {SPW}
        s_add_u32 {s(S_T0)}, {s(S_T0)}, {L_S}
        v_add_u32 v10, {s(S_T0)}, {v(V_L16)}
        ''')
        def tab(kk, et):
            b = X + 32 * et
            A(f'v_mul_f32 {v(b)}, {v(6+et)}, {v(8+kk)}')
            A(f'v_add_f32 {v(b+1)}, {v(b)}, {v(6+et)}')
            if kk == 0: A(f'v_cos_f32 {v(b+2)}, {v(6+et)}')
            for j in range(2):
                A(f'v_cos_f32 {v(b+8+j)}, {v(b+j)}')
                A(f'v_sin_f32 {v(b+16+j)}, {v(b+j)}')
            if kk == 0: A(f'v_add_f32 {v(b+2)}, {v(b+2)}, {v(b+2)}')
            for j in range(2, 8):
                A(f'v_fma_f32 {v(b+8+j)}, {v(b+2)}, {v(b+7+j)}, -{v(b+6+j)}')
                A(f'v_fma_f32 {v(b+16+j)}, {v(b+2)}, {v(b+15+j)}, -{v(b+14+j)}')
            for j in range(4):
                A(f'v_cvt_pk_bf16_f32 {v(b+24+j)}, {v(b+8+2*j)}, {v(b+9+2*j)}')
            for j in range(4):
                A(f'v_cvt_pk_bf16_f32 {v(b+28+j)}, {v(b+16+2*j)}, {v(b+17+2*j)}')
            A(f'ds_write_b128 v10, {v(b+24,4)} offset:{(kk*4+et*2)*1024}')
            A(f'ds_write_b128 v10, {v(b+28,4)} offset:{(kk*4+et*2+1)*1024}')
        npre = o.get('tabpre', 1)
        tabs = [(0, 0), (0, 1), (1, 0), (1, 1)]
        for t in tabs[:npre]: tab(*t)
        A(f's_mov_b32 {s(S_T2)}, {FE}')
        A('s_waitcnt lgkmcnt(0)')
        self.stamp('kernarg')
        A.on = bool(o.get('s1', 1))
        xm = []
        def xdma(i):
            A(f's_add_u32 m0, {s(S_HB0)}, {i*2048}')
            so = S_XO + (i >> 1)
            if i & 1:
                A(f's_xor_b32 {s(S_BG)}, {s(so)}, 0x200'); so = S_BG
            A(f'buffer_load_dwordx4 {v(V_XD)}, {s(SRD_X,4)}, {s(so)} offen lds')
            A(f'buffer_load_dwordx4 {v(V_XD+1)}, {s(SRD_X,4)}, {s(so)} offen offset:1024 lds')
            xm.append(A.nvm)
        NX0 = o.get('nx0', 5)
        xdma(0)
        A(f'buffer_load_dwordx2 {v(V_TAG,2)}, off, {s(SRD_WS,4)}, {s(S_T2)} sc1')
        for i in range(1, NX0): xdma(i)
        T0 = o.get('t0', 0)
        if T0: self.wtouch(V_TD, SRD_W1, 0, T0)
        A.on = False
        if o.get('txr', 0) or o.get('tsc', 0): A(f'''
        s_and_b32 {s(S_T0)}, {s(S_TW)}, 31
        s_lshl_b32 {s(S_T1)}, {s(S_T0)}, 6
        s_sub_u32 {s(S_T1)}, {s(S_T1)}, {s(S_U)}
        s_add_u32 {s(S_T1)}, {s(S_T1)}, 64
        s_and_b32 {s(S_T1)}, {s(S_T1)}, 2047
        s_lshl_b32 {s(S_T1)}, {s(S_T1)}, 10
        ''')
        if o.get('txr', 0):
            for k in range(8): A(f's_buffer_load_dword {s(S_AM0)}, {s(SRD_X,4)}, {s(S_T1)} offset:{128*k}')
        if o.get('tsc', 0): A(f'''
        s_min_u32 {s(S_T1)}, {s(S_T0)}, 27
        s_lshl_b32 {s(S_T1)}, {s(S_T1)}, 7
        s_buffer_load_dword {s(S_AM0)}, {s(SRD_B1,4)}, {s(S_T1)}
        s_and_b32 {s(S_T1)}, {s(S_T0)}, 7
        s_lshl_b32 {s(S_T1)}, {s(S_T1)}, 7
        s_buffer_load_dword {s(S_AM0)}, {s(SRD_B2,4)}, {s(S_T1)}
        ''')
        A.on = bool(o.get('s1', 1))
        if o.get('tlb'):
            LT = [A.newlabel('tl') for _ in range(4)]
            sh = o.get('tlb')
            A(f's_lshl_b32 {s(S_T0)}, {s(S_N)}, 10')
            for k, (srd, st_, base) in enumerate(((SRD_W1, 28672, 0), (SRD_W2, 28672, 0), (SRD_WS, 32768, WS_Z), (SRD_WS, 114688, WS_R))):
                A(f's_cmp_lg_u32 {s(S_W)}, {k}\ns_cbranch_scc1 {LT[k]}')
                A.snap()
                A(f'v_mul_u32_u24 {v(V_BT)}, {st_}, {v(V_LANE)}')
                if base: A(f's_add_u32 {s(S_T0)}, {s(S_T0)}, {base}')
                A(f'buffer_load_dword {v(V_TD)}, {v(V_BT)}, {s(srd,4)}, {s(S_T0)} offen')
                A.label(LT[k]); A.unsnap()
        A(f'''
        s_mov_b32 {s(S_HB)}, {s(S_HB0)}
        s_mul_i32 {s(S_SB)}, {s(S_W)}, {SPW}
        s_add_u32 {s(S_SB)}, {s(S_SB)}, {L_S}
        s_add_u32 {s(S_TB1)}, {s(S_U)}, 1024
        s_cmp_eq_u32 {s(S_U)}, 0
        s_cselect_b32 {s(S_TB1)}, 32, {s(S_TB1)}
        ''')
        self.w1m = {}; self.w1l = {}; self.csn = [0] * 4; self.w2m = {}
        self.w1order = list(range(16))
        if o.get('ord'): self.w1order = [0, 1, 8, 9] + list(range(2, 8)) + list(range(10, 16))
        self.pipe = self.w1_pipeline()
        for k, t in enumerate(tabs[npre:]):
            tab(*t)
        b = TB
        t2 = L(f'''
        s_mov_b32 {s(S_T2)}, 0xffff
        s_cmp_ge_u32 {s(S_W)}, 2 @@ s_cselect_b32 {s(S_T0)}, {s(S_TB1)}, {s(S_U)} @@ s_cselect_b32 {s(S_T1)}, 0, {f2u(0.25)} @@ s_cselect_b32 {s(S_T2)}, 0xffff0000, {s(S_T2)}
        s_cmp_eq_u32 {s(S_U)}, 0 @@ s_cselect_b32 {s(S_T1)}, {s(S_T1)}, {f2u(0.25)} @@ s_cselect_b32 {s(S_T2)}, {s(S_T2)}, -1
        v_lshl_add_u32 v11, {v(V_L15)}, 6, {s(S_T0)}
        v_cmp_eq_u32 vcc, 0, v11
        v_cvt_f32_u32 v11, v11
        v_mul_f32 v11, {f2u(1/2048)}, v11
        v_lshlrev_b32 v6, 15, {v(V_G)}
        v_and_b32 v6, 0x8000, v6
        v_cndmask_b32 v7, 0, v6, vcc
        s_lshl1_add_u32 {s(S_T0)}, {s(S_ODD)}, {s(S_Q)}
        s_lshl_b32 {s(S_T0)}, {s(S_T0)}, 3
        v_add_u32 v8, {s(S_T0)}, {v(V_G)}
        ''')
        for j in range(4):
            t2 += [f'v_add_u32 v6, {4*j}, v8', 'v_and_b32 v6, 31, v6', 'v_cvt_f32_u32 v6, v6',
                   f'v_mul_f32 {v(b+2*j)}, v6, v11', f'v_add_f32 {v(b+2*j+1)}, {s(S_T1)}, {v(b+2*j)}']
        for j in range(8):
            t2 += [f'v_cos_f32 {v(b+8+j)}, {v(b+j)}', f'v_sin_f32 {v(b+16+j)}, {v(b+j)}']
        for j in range(4):
            d = b + 24 + 8 * (j >> 1) + 2 * (j & 1)
            t2 += [f'v_cvt_pk_bf16_f32 {v(d)}, {v(b+8+2*j)}, {v(b+9+2*j)}',
                   f'v_cvt_pk_bf16_f32 {v(d+5)}, {v(b+16+2*j)}, {v(b+17+2*j)}',
                   f'v_and_b32 {v(d)}, {s(S_T2)}, {v(d)}', f'v_and_b32 {v(d+5)}, {s(S_T2)}, {v(d+5)}',
                   f'v_xor_b32 {v(d+4)}, v7, {v(d)}', f'v_xor_b32 {v(d+1)}, 0x80008000, {v(d+5)}']
        for k in range(2):
            for var in range(2):
                t2.append(f'ds_write_b128 v10, {v(b+24+8*k+4*var,4)} offset:{8192+k*2048+var*1024}')
        self.flush(t2)
        XRP = o.get('xrp', 0)
        VM = 16 if XRP == 2 else 148
        vmset = (f'''
        v_sub_u32 v7, 15, v12
        v_lshl_add_u32 {v(VM)}, v7, 16, v13
        v_xor_b32 {v(VM+1)}, {8*65536+64}, {v(VM)}
        s_sub_u32 {s(S_RR)}, 1088, {s(S_U)}
        s_lshl_b32 {s(S_RR)}, {s(S_RR)}, 10
        s_sub_u32 {s(S_RR+1)}, 1088, {s(S_TB1)}
        s_lshl_b32 {s(S_RR+1)}, {s(S_RR+1)}, 10
        s_lshl_b32 {s(S_RR+2)}, {s(S_W)}, 7
        s_sub_u32 {s(S_RR+3)}, 896, {s(S_RR+2)}
        v_add_u32 v6, {s(S_RR)}, {v(VM)}
        v_lshrrev_b32 v7, 1, v6
        v_and_b32 v7, {1<<20}, v7
        v_sub_u32 {v(VM+2)}, v6, v7
        v_and_b32 {v(VM+3)}, {(1<<21)-1}, v6
        ''')
        if XRP != 2: A(vmset)
        A(f'''
        v_mov_b32 v6, {s(S_U)}
        v_mov_b32 v7, {s(S_TB1)}
        v_and_b32 v8, 1, {v(V_G)}
        v_cmp_eq_u32 vcc, 1, v8
        v_add_u32 v10, {L_S}, {v(V_L16)}
        v_add_u32 v11, {L_S+2*SPW}, {v(V_L16)}
        v_cndmask_b32 v6, v6, v7, vcc
        v_lshl_add_u32 {v(V_TT)}, {v(V_L15)}, 6, v6
        v_lshrrev_b32 v6, 1, {v(V_L15)}
        v_xor_b32 v6, v6, {v(V_G)}
        v_lshlrev_b32 v6, 4, v6
        v_lshl_add_u32 v15, {v(V_L15)}, 7, v6
        v_add_u32 {v(V_XR)}, {s(S_HB)}, v15
        v_xor_b32 {v(V_XR+1)}, 64, {v(V_XR)}
        ''')
        for i in range(4): A(f'v_mov_b32 {v(V_ONES+i)}, 0x3f803f80')
        xr = []
        for m in (1, 0):
            for side in range(2):
                for hh in (1, 0):
                    def f(m=m, side=side, hh=hh):
                        A(f's_add_u32 m0, {s(S_SB)}, {12288+m*4096+side*2048+hh*1024}')
                        if hh == 0 and m == 0: A(f'buffer_load_dwordx4 {v(VM+2+side)}, {s(SRD_X,4)}, {s(S_RR+2+side)} offen lds')
                        else:
                            if hh == 1: A(f's_add_u32 {s(S_BG)}, {s(S_RR+m)}, {s(S_RR+2+side)}')
                            A(f'buffer_load_dwordx4 {v(VM+hh)}, {s(SRD_X,4)}, {s(S_BG)} offen lds')
                        self.xrm = A.nvm
                    xr.append(f)
        A.wait(lg=A.nlg)
        A('s_barrier')
        tl = {}
        def tabrd(f):
            A(f'ds_read_b128 {a(4*f,4)}, {v(10+(f>>4))} offset:{((f>>3)&1)*SPW+(f&7)*1024}')
            tl[f] = A.nlg
        for f in range(8): tabrd(f)
        self.stamp('tables')
        NX1 = min(8, NX0 + o.get('nx1', 3))
        for i in range(NX0, NX1): xdma(i)
        b = FS
        fild = [(lambda f=f: tabrd(f)) for f in range(8, 32)]
        fild += L(f'''
        s_lshl_b32 {s(S_W2S)}, {s(S_ODD)}, 10 @@ s_add_u32 {s(S_W2S)}, {s(S_W2S)}, {L_S+8192} @@ v_add_u32 v10, {s(S_W2S)}, {v(V_L16)}
        v_xor_b32 v11, 1024, v10
        ''')
        fill = []
        for f in range(16): fild.append(f'ds_read_b128 {v(TB+4*f,4)}, {v(10+(f&1))} offset:{(2*((f>>1)&1)+(f>>3))*SPW+((f>>2)&1)*2048}')
        fill += L(f'''
        s_lshl_b32 {s(S_T0)}, {s(S_W)}, 3
        v_lshrrev_b32 v6, 1, {v(V_L15)}
        v_add_u32 v6, {s(S_T0)}, v6
        v_and_b32 v7, 1, {v(V_L15)}
        v_cvt_f32_u32 v9, v7
        v_mul_f32 v9, {f2u(-0.25)}, v9
        v_lshl_add_u32 v8, v6, 1, v7
        v_cmp_eq_u32 vcc, 1, v8
        v_lshlrev_b32 v8, 3, {v(V_G)}
        v_cndmask_b32 v6, v6, 32, vcc
        v_cndmask_b32 v9, v9, 0, vcc
        v_cvt_f32_u32 v6, v6
        v_mul_f32 v6, {f2u(1/64)}, v6
        v_cvt_f32_u32 v8, v8
        v_fma_f32 {v(b)}, v6, v8, v9
        ''')
        for blk in range(4):
            for j in range(4):
                c = 2 * j + (blk & 1) + 32 * (blk >> 1)
                if c: fill.append(f'v_fmamk_f32 {v(b+4*blk+j)}, v6, {f2u(float(c))}, {v(b)}')
        for j in range(16): fill.append(f'v_cos_f32 {v(b+16+j)}, {v(b+j)}')
        for j in range(8): fill.append(f'v_cvt_pk_bf16_f32 {v(R1+j)}, {v(b+16+2*j)}, {v(b+17+2*j)}')
        fill += L(f'''
        v_and_b32 v6, 1, {v(V_LANE)}
        v_lshlrev_b32 v6, 31, v6
        v_or_b32 {v(V_SGN)}, 1.0, v6
        s_cmp_ge_u32 {s(S_Q)}, 4 @@ s_cselect_b64 vcc, -1, 0
        v_mov_b32 {v(V_FAC)}, 1.0
        v_cndmask_b32 {v(V_FAC)}, {v(V_FAC)}, {v(V_SGN)}, vcc
        s_lshl_b32 {s(S_T0)}, {s(S_W)}, 19
        s_lshl_b32 {s(S_T1)}, {s(S_Q)}, 13
        s_add_u32 {s(S_T0)}, {s(S_T0)}, {s(S_T1)}
        s_lshl_b32 {s(S_T1)}, {s(S_U)}, 8
        s_add_u32 {s(S_T0)}, {s(S_T0)}, {s(S_T1)}
        v_lshlrev_b32 v6, 17, {v(V_G)}
        v_lshl_add_u32 v6, {v(V_L15)}, 4, v6
        v_add_u32 {v(V_ZO)}, {s(S_T0)}, v6
        s_lshr_b32 {s(S_T0)}, {s(S_W)}, 1
        s_lshl_b32 {s(S_T0)}, {s(S_T0)}, 10
        s_lshl3_add_u32 {s(S_T0)}, {s(S_ODD)}, {s(S_T0)}
        s_add_u32 {s(S_T0)}, {s(S_T0)}, {L_EXC}
        v_add_u32 {v(V_EW)}, {s(S_T0)}, {v(V_L16)}
        v_add_u32 {v(V_ER)}, {L_EXC}, {v(V_L16)}
        s_lshr_b32 {s(S_T1)}, {s(S_Q)}, 1
        s_lshl2_add_u32 {s(S_T0)}, {s(S_W)}, {s(S_T1)}
        s_lshl_b32 {s(S_T0)}, {s(S_T0)}, 5
        s_add_u32 {s(S_T0)}, {s(S_T0)}, {s(S_U)}
        s_and_b32 {s(S_T1)}, {s(S_Q)}, 1
        s_lshl1_add_u32 {s(S_T0)}, {s(S_T0)}, {s(S_T1)}
        s_lshl_b32 {s(S_T0)}, {s(S_T0)}, 7
        s_add_u32 {s(S_F1)}, {s(S_T0)}, {F1}
        v_and_b32 v6, 1, {v(V_L15)}
        v_cmp_eq_u32 {s(S_XO,2)}, 1, v6
        v_and_b32 v6, 2, {v(V_L15)}
        v_cmp_eq_u32 {s(S_XO+2,2)}, 2, v6
        v_lshrrev_b32 v6, 2, {v(V_L15)}
        v_cmp_eq_u32 {s(S_M,2)}, v6, {v(V_G)}
        ''')
        fill += self.w1_setup()
        fill += L(f's_mov_b32 {s(S_T1)}, 65536\ns_mov_b32 {s(S_T0)}, {f2u(1/512)}\ns_mov_b32 {s(S_T2)}, {WS_HN}\ns_mov_b32 {s(S_T3)}, {WS_HN+65536}')
        xl = []
        def xrd(i):
            while len(xm) <= i: g1.pop(0)()
            A.wait(vm=xm[i])
            for kk in range(2):
                A(f'ds_read_b128 {v(X+8*i+4*kk,4)}, {v(V_XR+kk)} offset:{i*2048}')
            xl.append(A.nlg)
        xrd(0)
        self.stamp('x first')
        xrd(1)
        A(f'''
        v_add_u32 {v(V_TAG)}, 0x9e3779b0, {v(V_TAG)}
        v_add_u32 {v(V_TAG+1)}, 0x7f4a7c15, {v(V_TAG+1)}
        s_getreg_b32 {s(S_T0)}, hwreg(HW_REG_XCC_ID)
        s_and_b32 {s(S_T0)}, {s(S_T0)}, 15
        v_add_u32 {v(V_FXV)}, {s(S_T0)}, {v(V_TAG)}
        v_mov_b32 {v(V_FXV+1)}, {v(V_TAG+1)}
        s_lshl_b32 {s(S_T0)}, {s(S_U)}, 7
        s_lshl3_add_u32 {s(S_T0)}, {s(S_Q)}, {s(S_T0)}
        s_add_u32 {s(S_T0)}, {s(S_T0)}, {FX}
        s_mov_b64 exec, 1
        buffer_store_dwordx2 {v(V_FXV,2)}, off, {s(SRD_WS,4)}, {s(S_T0)} sc1
        s_mov_b64 exec, -1
        ''')
        def t1():
            if o.get('t1bar', 1): A('s_barrier')
            if o.get('g2'):
                self.g2touch(1)
                if o.get('tw2', 2) == 1: self.g2touch(2)
                if o.get('ts') == 0: self.smalltouch(S_AM0)
                return
            T1 = o.get('t1', 112)
            if T1 > T0: self.wtouch(V_TD, SRD_W1, T0, min(T1 - T0, 64))
            if T1 - T0 > 64: self.wtouch(V_TD, SRD_W1, T0 + 64, T1 - T0 - 64)
            if o.get('tw2'): self.wtouch(V_TD, SRD_W2, 0, o['tw2'])
        self.w1t = 56
        g1 = [(lambda i=i: xdma(i)) for i in range(NX1, 8)] + (xr if XRP != 2 else [lambda: None] * o.get('t1d', 0)) + [t1]
        for _ in range(min(len(g1), o.get('xr0', 3))): g1.pop(0)()
        XRE = o.get('xre', 2); cnt = [0, 0]
        def fl(n):
            cnt[0] += 1
            if g1 and cnt[0] % XRE == 0: return g1.pop(0)()
            k = cnt[1]
            if fild and cnt[0] % 4: self.emit(fild.pop(0)); k += 1
            while fill and k < n:
                n0 = A.wt; self.emit(fill.pop(0)); k += A.wt - n0
            cnt[1] = max(0, k - n)
        for i in range(8):
            ip, hp = i >> 1, i & 1
            if i + 2 < 8: xrd(i + 2)
            while 8 * ip + 7 not in tl: self.emit(fild.pop(0))
            A.wait(lg=max(xl[i], tl[8 * ip + 7]))
            for kk in range(2):
                xa = X + 8 * i + 4 * kk
                first = (i == 0 and kk == 0)
                A(f'v_mfma_f32_16x16x32_bf16 {v(SQ,4)}, {v(xa,4)}, {v(xa,4)}, {"0" if first else v(SQ,4)}')
                fl(2.2)
                A(f'v_mfma_f32_16x16x32_bf16 {v(SUM,4)}, {v(xa,4)}, {v(V_ONES,4)}, {"0" if first else v(SUM,4)}')
                fl(2.2)
                for t in range(4):
                    acc = ACC + 16 * hp + 4 * t
                    cin = '0' if (ip == 0 and kk == 0) else v(acc, 4)
                    A(f'v_mfma_f32_16x16x32_bf16 {v(acc,4)}, {v(xa,4)}, {a(32*ip+16*kk+4*t,4)}, {cin}')
                    if not (kk == 1 and t == 3): fl(2.2)
        print('gemm1 fill left', len(fill), len(fild), len(g1))
        self.flush(fild); self.flush(fill)
        self.stamp('gemm1 done')
        A(f'''
        v_cndmask_b32 v6, {v(SQ)}, {v(SQ+1)}, {s(S_XO,2)}
        v_cndmask_b32 v7, {v(SQ+2)}, {v(SQ+3)}, {s(S_XO,2)}
        v_cndmask_b32 v8, {v(SUM)}, {v(SUM+1)}, {s(S_XO,2)}
        v_cndmask_b32 v9, {v(SUM+2)}, {v(SUM+3)}, {s(S_XO,2)}
        v_cndmask_b32 v6, v6, v7, {s(S_XO+2,2)}
        v_cndmask_b32 v8, v8, v9, {s(S_XO+2,2)}
        v_mul_f32 v8, {s(S_T0)}, v8
        v_mul_f32 v8, v8, v8
        v_fma_f32 v6, v6, {s(S_T0)}, -v8
        v_max_f32 v6, 0, v6
        v_add_f32 v6, {f2u(1e-5)}, v6
        v_rsq_f32 v6, v6
        v_fma_f32 {v(ACC)}, {v(ACC+16)}, {v(V_SGN)}, {v(ACC)}
        v_cndmask_b32 v6, 0, v6, {s(S_M,2)}
        v_fma_f32 {v(ACC+1)}, {v(ACC+17)}, {v(V_SGN)}, {v(ACC+1)}
        v_fma_f32 {v(ACC+2)}, {v(ACC+18)}, {v(V_SGN)}, {v(ACC+2)}
        v_mfma_f32_16x16x4_f32 v[20:23], v6, {v(V_FAC)}, 0
        ''')
        for i in range(3, 16):
            A(f'v_fma_f32 {v(ACC+i)}, {v(ACC+16+i)}, {v(V_SGN)}, {v(ACC+i)}')
        for t in range(4):
            for r in range(0, 4, 2):
                A(f'v_pk_mul_f32 {v(ACC+4*t+r,2)}, {v(ACC+4*t+r,2)}, {v(20+r,2)}')
            A(f'v_cvt_pk_bf16_f32 {v(24+2*t)}, {v(ACC+4*t)}, {v(ACC+4*t+1)}')
            A(f'v_cvt_pk_bf16_f32 {v(25+2*t)}, {v(ACC+4*t+2)}, {v(ACC+4*t+3)}')
            A(f'ds_write_b64 {v(V_EW)}, {v(24+2*t,2)} offset:{t*2048}')
        if XRP == 2: A(vmset)
        A.wait(vm=None if XRP else self.xrm, lg=A.nlg)
        A('s_barrier')
        for f in range(8):
            A(f'ds_read_b128 {v(32+4*f,4)}, {v(V_ER)} offset:{f*1024}')
        for t in range(4):
            A(f's_waitcnt lgkmcnt({6-2*t})')
            A(f'v_mfma_f32_16x16x32_bf16 {v(64+4*t,4)}, {v(R1,4)}, {v(32+8*t,4)}, 0')
            A(f'v_mfma_f32_16x16x32_bf16 {v(64+4*t,4)}, {v(R1+4,4)}, {v(36+8*t,4)}, {v(64+4*t,4)}')
        A.dlg = A.nlg
        for k in range(2):
            for t in range(4):
                A(f'v_cvt_pk_bf16_f32 {v(24+4*k+t)}, {v(64+4*t+2*k)}, {v(65+4*t+2*k)}')
            A(f'buffer_store_dwordx4 {v(24+4*k,4)}, {v(V_ZO)}, {s(SRD_WS,4)}, {"0" if k == 0 else s(S_T1)} offen sc1')
            if o.get('zc'): A(f'buffer_store_dwordx4 {v(24+4*k,4)}, {v(V_ZO)}, {s(SRD_WS,4)}, {s(S_T2+k)} offen sc1')
        self.stamp('Z stores')
        self.zst = A.nvm
        self.xr = []
        if o.get('tw2') == 2:
            if o.get('t2bar', 1): A('s_barrier')
            self.g2touch(2)
            if XRP == 2: self.xr = xr
            if o.get('ts', 1) == 1: self.smalltouch(S_T0)
        elif XRP == 2: self.flush(xr)

    def ygrp(self, var, q1, tt): return Y + 32 * var + 16 * q1 + 8 * tt
    def dgrp(self, var, q1, tt):
        return ZF + 32 * q1 + 8 * self.dord.index((var, tt))
    dord = [(1, 1), (0, 1), (1, 0), (0, 0)]
    def window(self):
        A = self.A; o = self.opt
        A.clk = clk = sched.Clock()
        main = []
        AA = A
        A = lambda t: main.extend(L(t))
        XR = ZF
        SD0, SD1, SA1, SM_ = S_W2S, S_AM0, S_TCH, S_FIX
        AD = Y
        A(f'''
        s_sub_u32 {s(S_T0)}, {s(S_W)}, {s(S_Q)}
        s_and_b32 {s(S_T0)}, {s(S_T0)}, 3
        s_lshr_b32 {s(S_T1)}, {s(S_Q)}, 2
        s_lshl1_add_u32 {s(SD0)}, {s(S_T0)}, {s(S_T1)}
        s_lshl_b32 {s(SD0)}, {s(SD0)}, 11
        s_add_u32 {s(S_T0)}, {s(S_W)}, {s(S_Q)}
        s_sub_u32 {s(S_T0)}, 3, {s(S_T0)}
        s_and_b32 {s(S_T0)}, {s(S_T0)}, 3
        s_xor_b32 {s(S_T1)}, {s(S_T1)}, 1
        s_lshl1_add_u32 {s(SD1)}, {s(S_T0)}, {s(S_T1)}
        s_lshl_b32 {s(SD1)}, {s(SD1)}, 11
        s_add_u32 {s(SM_)}, {s(S_SB)}, 12288
        s_mov_b32 {s(SA1)}, 32768
        s_cmp_eq_u32 {s(S_U)}, 0
        s_cselect_b32 {s(S_T2)}, {s(SA1)}, 0
        s_cselect_b32 {s(SA1)}, 16384, {s(SA1)}
        s_cmp_eq_u32 {s(S_ODD)}, 0
        s_cselect_b32 {s(S_T3)}, 0, {s(S_T2)}
        s_cselect_b32 {s(S_T2)}, {s(S_T2)}, 0
        v_xor_b32 v7, 64, v15
        v_xor_b32 v8, 0x70, v15
        v_xor_b32 v9, 0x30, v15
        v_lshrrev_b32 v10, 1, {v(V_L15)}
        v_sub_u32 v11, 8, {v(V_G)}
        v_and_b32 v11, 7, v11
        v_xor_b32 v11, v11, v10
        v_lshlrev_b32 v11, 4, v11
        v_lshl_add_u32 v10, {v(V_L15)}, 7, v11
        v_xor_b32 v11, 64, v10
        v_cmp_eq_u32 vcc, 0, {v(V_L15)}
        v_mov_b32 v12, {s(S_T2)}
        v_mov_b32 v13, {s(S_T3)}
        v_cndmask_b32 v12, 0, v12, vcc
        v_cndmask_b32 v13, 0, v13, vcc
        s_add_u32 {s(S_T0)}, {s(SD1)}, 4096
        s_and_b32 {s(S_T0)}, {s(S_T0)}, 0x3fff
        s_sub_u32 {s(S_T0)}, {s(S_T0)}, {s(SD1)}
        s_mov_b32 {s(S_T1)}, {(-SPW) & 0xffffffff}
        s_cmp_eq_u32 {s(S_W)}, 0
        s_cselect_b32 {s(S_T1)}, {3*SPW}, {s(S_T1)}
        s_cmp_eq_u32 {s(S_ODD)}, 0
        s_cselect_b32 {s(S_T2)}, {s(S_T0)}, {s(S_T1)}
        s_cselect_b32 {s(S_T3)}, {s(S_T1)}, {s(S_T0)}
        v_mov_b32 v6, v10
        s_mov_b64 exec, 0xffff
        v_add_u32 v10, {s(S_T2)}, v10
        v_add_u32 v6, {s(S_T3)}, v6
        s_mov_b64 exec, -1
        ''')
        for rt in range(4):
            pat = [15, 7, 8, 9, 10 if rt < 2 else 6, 11]
            for side in range(2):
                d = S_T0 + side
                if rt & 1: A(f's_add_u32 {s(S_T2)}, {s(SD1 if side else SD0)}, {s(SA1)}')
                A(f's_add_u32 {s(S_T3)}, {s(SM_)}, {(rt&1)*4096+side*2048}')
                A(f's_cmp_eq_u32 {s(S_ODD)}, {rt>>1}')
                A(f's_cselect_b32 {s(d)}, {s(S_T2 if rt & 1 else (SD1 if side else SD0))}, {s(S_T3)}')
            for n in range(6):
                if n >= 2 and not rt & 1: A(f'v_add3_u32 {v(AD+6*rt+n)}, {v(pat[n])}, {s(S_T1)}, {v(12+(rt>>1))}')
                else: A(f'v_add_u32 {v(AD+6*rt+n)}, {s(S_T0 + (n >= 2))}, {v(pat[n])}')
        A = AA
        m2 = []; ex = False
        for x in main:
            if ex or x.startswith('s_cselect'): m2[-1] += '\n' + x
            else: m2.append(x)
            if x.startswith('s_mov_b64 exec'): ex = not x.endswith('-1')
        main = m2
        def xin():
            A.wait(vm=self.xrm); A('s_barrier')
        pre = []
        if o.get('xrp'): pre = main; main = [xin]
        xl = {}
        for rt in range(4):
            main += [f'ds_read_b128 {v(XR+16*rt+4*n,4)}, {v(AD+6*rt+n)}' for n in range(4)]
            main += [f'ds_read_u16 {v(AD+6*rt+4+q1)}, {v(AD+6*rt+4+q1)}' for q1 in range(2)]
            main.append(lambda rt=rt: (xl.__setitem__(rt, A.nlg), rt and A.wait(lg=xl[rt-1])))
        SR = 6
        (pre if pre else main).extend(L(f'''
        v_mov_b32 v6, 0xbf80
        v_mov_b32 v7, -1.0
        v_cndmask_b32 v6, v6, v7, {s(S_XO,2)}
        v_cndmask_b32 v6, 0, v6, {s(S_M,2)}
        v_cndmask_b32 {v(V_SEL+2)}, v6, 0, {s(S_XO+2,2)}
        v_cndmask_b32 {v(V_SEL+3)}, 0, v6, {s(S_XO+2,2)}
        v_mov_b32 {v(V_SEL)}, 0
        v_mov_b32 {v(V_SEL+1)}, 0
        v_mov_b32 {v(V_SEL+4)}, 0
        v_mov_b32 {v(V_SEL+5)}, 0
        v_and_b32 v6, 0xffff, {v(V_SEL+2)}
        v_and_b32 v8, 0xffff0000, {v(V_SEL+3)}
        v_xor_b32 v9, {v(V_SEL+2)}, {v(V_SEL+3)}
        v_xor_b32 v9, v9, v6
        v_xor_b32 v9, v9, v8
        v_mov_b32 v7, 0
        v_mov_b32 v10, v8
        v_mov_b32 v11, v9
        v_mov_b32 v12, v6
        v_mov_b32 v13, 0
        v_cmp_eq_u32 vcc, 0, {v(V_G)}
        s_cmp_eq_u32 {s(S_W)}, 0 @@ s_cselect_b64 {s(S_FIX,2)}, vcc, 0
        '''))
        main = pre + main
        def xfree():
            A.wait(lg=xl[3]); A('s_barrier'); self.xfree = True
        self.xfree = False
        main.append(xfree)
        main.append(f's_mov_b32 {s(S_T0)}, 0xffff')
        main += [f'v_bfi_b32 {v(XR+16*rt+8+4*q1)}, {s(S_T0)}, {v(AD+6*rt+4+q1)}, {v(XR+16*rt+8+4*q1)}' for rt in range(4) for q1 in range(2)]
        sel = lambda var, et: SR + 4 * et if var else V_SEL + 2 - 2 * et
        xf = lambda rt, var, q1: XR + 16 * rt + 4 * (2 * var + q1)
        G8 = [(q1, var, tt) for q1 in range(2) for var, tt in self.dord]
        def smm(d, var, et, x, c): return f'v_mfma_f32_16x16x32_bf16 {v(d+4*et,4)}, {v(sel(var,et),4)}, {v(x,4)}, {v(d+4*et,4) if c else "0"}'
        for q1, var, tt in G8: main += [smm(self.ygrp(1-var,q1,tt), 1-var, et, xf(tt,1-var,q1), 0) for et in range(2)]
        main += [f'v_lshlrev_b32 {v(V_FIX+rt)}, 16, {v(xf(rt,0,0))}' for rt in range(4)]
        main += [f'v_and_b32 {v(r)}, 0x7fff7fff, {v(r)}' for r in (V_SEL + 2, V_SEL + 3, 6, 8, 9, 10, 11, 12)]
        for q1, var, tt in G8: main += [smm(self.ygrp(1-var,q1,tt), var, et, xf(2+tt,var,q1), 1) for et in range(2)]
        for k, (q1, var, tt) in enumerate(G8):
            y = self.ygrp(1 - var, q1, tt); x = xf(2 + tt, var, q1)
            main += [f'v_cvt_pk_bf16_f32 {v(x+i)}, {v(y+2*i)}, {v(y+2*i+1)}' for i in range(4)]
            main += [smm(y, 1-var, et, xf(tt,1-var,q1), 0) for et in range(2)]
            main += [f'v_accvgpr_write_b32 {a(AD_+4*k+i)}, {v(x+i)}' for i in range(4)]
        main += L(f'''
        s_lshr_b32 {s(S_T0)}, {s(S_U)}, 3
        s_lshl2_add_u32 {s(S_T0)}, {s(S_T0)}, {s(S_W)}
        s_lshl_b32 {s(S_T0)}, {s(S_T0)}, 13
        s_add_u32 {s(S_T0)}, {s(S_T0)}, {F1}
        v_add_u32 v15, {s(S_T0)}, {v(V_L128)}
        s_lshl2_add_u32 {s(S_T0)}, {s(S_U)}, {s(S_W)}
        s_lshl_b32 {s(S_T0)}, {s(S_T0)}, 14
        s_and_b32 {s(S_T3)}, {s(S_Q)}, {4 if o.get('zc') else 0}
        s_lshl_b32 {s(S_T3)}, {s(S_T3)}, 19
        s_add_u32 {s(S_T0)}, {s(S_T0)}, {s(S_T3)}
        v_add_u32 {v(V_ZA)}, {s(S_T0)}, {v(V_L16)}
        v_add_u32 {v(V_ZA+1)}, 8192, {v(V_ZA)}
        s_and_b32 {s(S_T3)}, {s(S_Q)}, 3
        s_lshl_b32 {s(S_T3)}, {s(S_T3)}, 11
        s_lshl1_add_u32 {s(S_AM0)}, {s(S_T3)}, {s(S_T0)}
        s_lshl_b32 {s(S_T1)}, {s(S_ODD)}, 11
        s_add_u32 {s(S_T1)}, {s(S_T1)}, {s(S_HB)}
        v_add_u32 v10, {s(S_T1)}, {v(V_L16)}
        v_xor_b32 v11, 2048, v10
        s_xor_b32 {s(S_T1)}, {s(S_W)}, {s(S_C)}
        s_lshl_b32 {s(S_T1)}, {s(S_T1)}, 14
        v_xor_b32 v8, {s(S_T1)}, v10
        v_xor_b32 v9, {s(S_T1)}, v11
        s_lshl3_add_u32 {s(S_RR)}, {s(S_U)}, {s(S_Q)}
        s_lshl_b32 {s(S_RR)}, {s(S_RR)}, 5
        s_add_u32 {s(S_RR)}, {s(S_RR)}, {s(S_W)}
        s_lshl_b32 {s(S_RR)}, {s(S_RR)}, 11
        s_add_u32 {s(S_RR)}, {s(S_RR)}, {WS_P}
        s_lshl_b32 {s(S_T0)}, {s(S_U)}, 7
        s_add_u32 {s(S_T0)}, {s(S_T0)}, {FX}
        v_and_b32 v6, 7, {v(V_LANE)}
        v_lshlrev_b32 v6, 3, v6
        ''')
        NBD = o.get('nbd', 14); PE = o.get('pe', 1)
        WR, WL, WT, F1T, W0 = o.get('wr', 64), o.get('wl', 700), o.get('wt', 128), o.get('f1t', 1000), o.get('w0', 0)
        dq = []; tq = []; cq = []; dt = {}; tt_ = {}
        for kind, k, ops in self.pipe: {'dma': dq, 'tr': tq, 'cs': cq}[kind].extend((kind, k, f) for f in ops)
        nxt = W0; flagged = False; pm = None; nd = 0
        while main or (dq and dq[0][1] < NBD) or not flagged:
            T = clk.t
            k = dq[0][1] if dq else 99
            if not flagged and T >= F1T:
                self.stamp('pre F1')
                A.wait(vm=self.zst)
                self.setflag(S_F1, ' sc1')
                self.stamp('F1 set')
                flagged = True
                self.flush(self.xr)
                for _ in range(o.get('wq2', 0)):
                    k = dq[0][1]; self.emit(dq.pop(0)[2]); nxt = max(nxt, T) + WR; dt[k] = nxt
            elif nd < o.get('wq', 0): self.emit(dq.pop(0)[2]); nd += 1; dt[k] = W0
            elif main and main[0] is xin and not flagged and o.get('xrp') == 2: clk.t += 8
            elif k < NBD and T >= nxt and (k < 3 or (self.xfree if k < 5 else (k - 5) in tt_ and T >= tt_[k - 5] + WT)) and not (k >= NBD - PE and (main or not flagged)):
                if k == NBD - PE and pm is None:
                    A(f'buffer_load_dwordx2 v[12:13], v15, {s(SRD_WS,4)}, 0 offen sc1'); pm = A.nvm
                if k >= 5: A.wait(lg=self.w1l[k - 5])
                self.emit(dq.pop(0)[2]); nxt = max(nxt, T - 32) + WR
                if not (dq and dq[0][1] == k):
                    dt[k] = nxt
                    if o.get('fine') == 3 and k in (0, 2, 4, 5, 6, 7, 8, 9, 10, 11, 12): self.stamp(f'wd{k} m{len(main)} T{T}')
            elif tq[0][1] in dt and tq[0][1] < 14 and T >= dt[tq[0][1]] + WL:
                k = tq[0][1]; self.emit(tq.pop(0)[2])
                if tq[0][1] != k: tt_[k] = T
            elif cq[0][1] in tt_ and T >= tt_[cq[0][1]] + WT and clk.pipe <= T + 4 and not (main and o.get('mp', 1)): self.emit(cq.pop(0)[2])
            elif main: self.emit(main.pop(0))
            else: clk.t += 8
        print('window: est', clk.t, 'tr left', len(tq), 'cs left', len(cq))
        A.clk = None
        self.post = dq + tq + cq
        self.stamp('p2 prepoll')
        if pm is None:
            A(f'buffer_load_dwordx2 v[12:13], v15, {s(SRD_WS,4)}, 0 offen sc1'); pm = A.nvm
        Lp = A.newlabel('poll'); D = A.newlabel('polld')
        A.wait(vm=pm)
        A.on = False
        A(f'v_cmp_ne_u64 vcc, v[12:13], {v(V_TAG,2)}\ns_mov_b32 {s(S_CNT)}, 0x20000\ns_cbranch_vccz {D}')
        A.snap()
        A.label(Lp)
        A(f'''
        buffer_load_dwordx2 v[12:13], v15, {s(SRD_WS,4)}, 0 offen sc1
        s_sub_u32 {s(S_CNT)}, {s(S_CNT)}, 1
        s_cbranch_scc1 {D}
        s_waitcnt vmcnt(0)
        v_cmp_ne_u64 vcc, v[12:13], {v(V_TAG,2)}
        s_cbranch_vccnz {Lp}
        ''')
        A.label(D)
        A.unsnap()
        self.stamp('p2 polled')

    def p23(self):
        A = self.A; o = self.opt
        A.on = True
        dr = str(o.get('drop', ''))
        A.drop = lambda t: ('d' in dr and t.endswith(' lds')) or ('t' in dr and t.startswith('ds_read_b64_tr')) or ('w' in dr and t.startswith('ds_write')) or ('h' in dr and t.startswith('ds_read_b128'))
        zm = {}
        def zld(q1, ks):
            if ks or q1: A(f's_add_u32 {s(S_T3)}, {s(S_T3)}, 2048\ns_and_b32 {s(S_T3)}, {s(S_T3)}, 0x1800')
            for h in range(2):
                A(f'buffer_load_dwordx4 {v(ZF+32*q1+8*ks+4*h,4)}, {v(V_ZA+q1)}, {s(SRD_WS,4)}, {s(S_T3)} offen offset:{h*1024}{self.zldf}')
            zm[q1, ks] = A.nvm
        for k in range(6):
            zld(k >> 2, k & 3)
            if k == 3: A(f'buffer_load_dwordx2 v[6:7], v6, {s(SRD_WS,4)}, {s(S_T0)} offen sc1')
        NA = 10
        self.debt = 0; self.tick = 0; self.nxt = o.get('dma0', 16); self.blk = -1; self.b4 = False; self.hold = False
        RATE, LAT, SLACK, TL = o.get('rate', 40) / 10, o.get('lat', 44), o.get('slack', 8), o.get('tl', 8)
        dq = []; tq = []; cq = []; dt = {}; tt_ = {}
        for kind, k, f in self.post: {'dma': dq, 'tr': tq, 'cs': cq}[kind].append((kind, k, f))
        self.dfree = 0
        pend_d = {k for _, k, _ in dq}; pend_t = {k for _, k, _ in tq}
        for k in range(16):
            if k not in pend_d: dt[k] = -999
            if k not in pend_t: tt_[k] = -999
        dq += [('x', 16, x) for x in self.w2_setup()]
        for b in range(14): dq += [('dma', 16 + b, f) for f in self.w2_dma(b, (16 + b) % 5)]
        tq += [('x', 16, x) for x in self.w2_setup_r()]
        self.trl = {}
        for b in range(14): tq += [('tr', 16 + b, f) for f in self.w2_tr(b, (16 + b) % 5)]
        def ins(item, f, tag=-1):
            p = min([n for n, x in enumerate(dq) if x[1] >= item] + [len(dq)])
            dq.insert(p, ('x', tag, f))
        if self.w1t < 56: ins(0, lambda: self.w1touch(self.w1t, 56))
        if 't3' in o:
            t3 = [int(x) for x in str(o['t3']).split('.')]
            for k, p in enumerate(t3): ins(p, lambda k=k: self.w2touch(k if len(t3) > 1 else None))
        if 't4' in o:
            def t4():
                self.smalltouch(S_RR + 2)
                self.g2touch(2)
                if o.get('ptt4'): self.ptouch((o['ptt4'],))
                self.nxt = max(self.nxt, self.tick) + o.get('t4gap', 60)
            ins(o['t4'], t4, -2)
        if o.get('pt', 0) >= 16: ins(o['pt'], self.ptouch)
        NCL = o.get('ncl', 0)
        S_PQ, S_PS = S_RR, S_RR + 1
        V_FC, V_FPD, V_NAN = V_ZA, V_ZA + 1, V_W1D
        fadr = L(f'''
        v_add_u32 {v(V_FC)}, {s(S_PQ)}, {v(V_L128)}
        v_and_b32 {v(V_FPD)}, 7, {v(V_LANE)}
        v_lshlrev_b32 {v(V_FPD)}, 16, {v(V_FPD)}
        v_xor_b32 {v(V_FPD)}, {v(V_FPD)}, {v(V_FC)}
        ''')
        S_ZQ = S_AM0; ZC = o.get('zc', 0)
        def zdone():
            A.wait(vm=zm[1, 3])
            A(f's_mov_b64 exec, 0xe00\nbuffer_store_dwordx2 {v(V_TAG,2)}, {v(V_FPD)}, {s(SRD_WS,4)}, 0 offen sc1\ns_mov_b64 exec, -1')
        pos = min(n for n, x in enumerate(dq) if x[1] >= 16 or x[1] == -2)
        if o.get('clp'): pos += 1
        cl = []
        if NCL:
            cl += [('x', -3, f'v_mov_b32 {v(V_NAN+i)}, -1') for i in range(4)]
            def clr(x, k):
                if k == 0: A(f's_xor_b32 {s(S_PS)}, {s(S_PQ)}, {x*(65536+8192)}')
                A(f'buffer_store_dwordx4 {v(V_NAN,4)}, {v(V_L16)}, {s(SRD_WS,4)}, {s(S_PS)} offen offset:{k*1024} sc1')
                self.clm = A.nvm
            cl += [('st', -3, lambda x=x, k=k: clr(x, k)) for x in range(NCL, 0, -1) for k in range(2)]
            def clf():
                A.wait(vm=self.clm)
                A(f's_mov_b64 exec, {(2 << NCL) - 2}\nbuffer_store_dwordx2 {v(V_TAG,2)}, {v(V_FPD)}, {s(SRD_WS,4)}, 0 offen sc1\ns_mov_b64 exec, -1')
            ins(o.get('clf', 21), clf)
        dq[pos:pos] = cl
        dq[0:0] = [('x', -3, x) for x in fadr]
        def trlg(k): return self.w1l[self.w1order[k]] if k < 16 else self.trl[k]
        def d_ok(force=False):
            if not dq: return False
            kind, k, f = dq[0]
            if kind == 'x': return force or k > -2 or self.tick >= (o.get('t4t', 40) if k == -2 else 10)
            if kind == 'st': return force or self.tick >= self.nxt
            dep = k < 5 or ((k - 5) in tt_ and (force or self.tick >= tt_[k - 5] + TL))
            return dep and (force or (self.tick >= self.nxt and not self.hold))
        def d_pop():
            kind, k, f = dq.pop(0)
            if kind == 'st': self.nxt = max(self.nxt, self.tick - SLACK) + o.get('srate', 30) / 10
            if kind == 'dma':
                if k >= 5: A.wait(lg=trlg(k - 5))
                self.nxt = max(self.nxt, self.tick - SLACK) + RATE
                if not (dq and dq[0][:2] == ('dma', k)): dt[k] = self.tick
            self.emit(f)
        def t_ok(force=False):
            if not tq: return False
            kind, k, f = tq[0]
            if k not in dt: return False
            if kind == 'x': return True
            return (k < 14 + self.dfree if k < 16 else self.blk > k - 16) and (force or self.tick >= dt[k] + LAT)
        def t_pop():
            kind, k, f = tq.pop(0)
            self.emit(f)
            if kind == 'tr' and not (tq and tq[0][1] == k): tt_[k] = self.tick
        def c_ok(): return cq and cq[0][1] in tt_ and self.tick >= tt_[cq[0][1]] + TL
        def ensure(k):
            while k not in tt_:
                if t_ok(True): t_pop()
                else:
                    assert d_ok(True), (k, dq[:1], tq[:1]); d_pop()
        self.ensure = ensure; self.dq = dq; self.d_pop = d_pop
        def fill(kmax, qs, k=0):
            k += self.debt; self.debt = 0
            while k < kmax:
                n0 = A.wt
                if d_ok(): d_pop()
                else:
                    for q in qs:
                        if q is None:
                            if t_ok(): t_pop(); break
                        elif q: self.emit(q.pop(0)); break
                    else: break
                k += A.wt - n0
            self.debt = max(0, k - kmax)
        def extra(kmax, qs):
            if mq: mq.pop(0)()
            elif c_ok(): self.emit(cq.pop(0)[2])
            else: return
            self.tick += 1
            fill(kmax, qs)
        def grp(n, rt): return self.ygrp(n >> 1, n & 1, rt) if rt < 2 else self.dgrp(n >> 1, n & 1, rt - 2)
        SQ = {rt: grp(0, rt) + 4 for rt in range(4)}; SM = {rt: grp(2, rt) + 4 for rt in range(4)}
        mq = []
        slots = [TB + 56, TB + 60]
        def dadd(q1):
            for k, (var, tt) in enumerate(self.dord):
                d = self.dgrp(var, q1, tt); y = self.ygrp(1 - var, q1, tt)
                for et in range(2):
                    A(f'v_mfma_f32_16x16x32_bf16 {v(d+4*et,4)}, {v(V_SEL+2-2*et,4)}, {a(AD_+16*q1+4*k,4)}, {v(y+4*et,4)}')
                    self.tick += 1
                    fill(P2BG, [vq, None])
            self.dfree = q1 + 1
        def swap0(q1):
            def f():
                LS = A.newlabel('nsw')
                A(f's_cmp_lg_u32 {s(S_U)}, 0\ns_cbranch_scc1 {LS}')
                A.snap()
                A('s_mov_b32 exec_lo, 0x10001\ns_mov_b32 exec_hi, 0x10001')
                for j in range(8): A(f'v_swap_b32 {v(self.ygrp(1,q1,0)+j)}, {v(self.dgrp(1,q1,0)+j)}')
                A('s_mov_b64 exec, -1\ns_nop 3')
                A.label(LS)
                A.unsnap()
            return f
        def conv(n, rt):
            g = grp(n, rt)
            ln = []
            if n == 0: ln.append(f'v_cndmask_b32 {v(g)}, {v(g)}, {v(V_FIX+rt)}, {s(S_FIX,2)}')
            ln += [f'v_cvt_pk_bf16_f32 {v(g+j)}, {v(g+2*j)}, {v(g+2*j+1)}' for j in range(4)]
            if o.get('w64'):
                ln += [f'ds_write_b64 {v(10+(rt>>1))}, {v(g+2*j,2)} offset:{n*4096+(rt&1)*1024+8*j}' for j in range(2)]
            else: ln.append(f'ds_write_b128 {v(10+(rt>>1))}, {v(g,4)} offset:{n*4096+(rt&1)*1024}')
            def sm(gg, first):
                A(f'v_mfma_f32_16x16x32_bf16 {v(SM[rt],4)}, {v(V_ONES,4)}, {v(gg,4)}, {"0" if first else v(SM[rt],4)}')
                slots.append(gg)
            def rel():
                if self.tick >= o.get('wc0', 0): self.nxt += o.get('wc', 33) / 10
                if n & 1: slots.append(g + 4)
                mq.append(lambda: A(f'v_mfma_f32_16x16x32_bf16 {v(SQ[rt],4)}, {v(g,4)}, {v(g,4)}, {"0" if n == 0 else v(SQ[rt],4)}'))
                if n == 2: mq.append(lambda: sm(grp(0, rt), True))
                if n: mq.append(lambda: sm(g, False))
            ln.append(rel)
            return ln
        def half(q1):
            return (conv(q1, 1) + conv(q1, 3) + conv(2 + q1, 1) + conv(2 + q1, 3)
                    + conv(q1, 0) + conv(q1, 2) + [swap0(q1)] + conv(2 + q1, 0) + conv(2 + q1, 2))
        def take(q, kmax):
            k = 0
            while q and k < kmax:
                n0 = len(A.lines); self.emit(q.pop(0)); k += len(A.lines) - n0
            return k
        P2BG = o.get('p2bg', 2)
        vq = []
        n0 = A.wt
        while A.wt - n0 < o.get('shw', 100):
            if t_ok(): t_pop()
            elif cq and cq[0][1] in tt_: self.emit(cq.pop(0)[2]); A.wt += 4
            elif d_ok() and dq[0][0] == 'x': d_pop()
            else: break
        for q1 in range(2):
            if q1: dadd(0); vq += half(0)
            for ks in range(4):
                z = ZF + 32 * q1 + 8 * ks
                A.wait(vm=zm[q1, ks])
                if (ks, q1) == (0, 0): self.stamp('Z first')
                A(f'v_swap_b32 {v(z+2)}, {v(z+4)}')
                A(f'v_swap_b32 {v(z+3)}, {v(z+5)}')
                n = 0
                for tt in (1, 0):
                    for var in range(2):
                        for et in range(2):
                            acc = self.ygrp(var, q1, tt) + 4 * et
                            A(f'v_mfma_f32_16x16x32_bf16 {v(acc,4)}, {v(z+4*et,4)}, {v(TB+16*ks+8*tt+4*var,4)}, {v(acc,4)}')
                            n += 1; self.tick += 1
                            if q1 == 0 and ks < 2 and n == 1: zld(1, 2 + ks)
                            elif q1 == 0:
                                if (ks, n) > (1, 1): fill(P2BG, [None])
                            else:
                                fill(o.get('p2v', 3), [vq])
                                if mq and n % 2 == 0: extra(2, [vq])
        self.stamp('Z landed')
        if ZC:
            assert not any(x[2] in fadr for x in dq)
            zdone()
        dadd(1)
        while vq:
            if mq: extra(2, [vq])
            else: take(vq, 2)
        A.wait(lg=A.nlg)
        A('s_barrier')
        self.stamp('half 0')
        free = [TB + 4 * k for k in range(14)]
        acc = {}
        for t in range(4):
            for rt in range(4 if t < 3 else 2): acc[t, rt] = free.pop(0)
        started = set()
        def mm(t, rt, b, frag):
            c = v(acc[t, rt], 4)
            A(f'v_mfma_f32_16x16x32_bf16 {c}, {a(16*b+4*t,4)}, {v(frag,4)}, {c if (t, rt) in started else "0"}')
            started.add((t, rt))
        fr = {}; fl_ = {}
        def hrd(b):
            q1, ip, var = b >> 3, (b >> 1) & 3, b & 1
            ops = []
            if var == 0 and b:
                x = (ip ^ ((ip - 1) & 3)) << 14
                ops.append(f'v_xor_b32 v8, {x}, v8'); ops.append(f'v_xor_b32 v9, {x}, v9')
            for rt in range(4):
                def f(rt=rt):
                    fr[b, rt] = slots.pop(0)
                    A(f'ds_read_b128 {v(fr[b,rt],4)}, {v(8+(rt>>1))} offset:{(2*var+q1)*4096+(rt&1)*1024}')
                    fl_[b, rt] = A.nlg
                ops.append(f)
            return ops
        vq = half(1)
        while len(slots) < 4: extra(0, [])
        self.flush(hrd(0))
        while mq: extra(2, [None, vq] if o.get('tprio', 1) else [vq])
        take(vq, o.get('h1pre', 6))
        A(f'''
        s_getreg_b32 {s(S_T0)}, hwreg(HW_REG_XCC_ID)
        s_and_b32 {s(S_T0)}, {s(S_T0)}, 15
        v_subrev_u32 v6, {s(S_T0)}, v6
        v_cmp_ne_u64 vcc, v[6:7], {v(V_TAG,2)}
        s_and_b32 {s(S_T0)}, {s(S_Q)}, {4 if o.get('npl', 3) < 4 else 0}
        s_lshr_b32 {s(S_FAST)}, vcc_lo, {s(S_T0)}
        s_and_b32 {s(S_FAST)}, {s(S_FAST)}, {15 if o.get('npl', 3) < 4 else 255}
        s_cselect_b32 {s(S_FAST)}, 0, 1
        ''')
        LE = A.newlabel('noe')
        A(f'''
        s_or_b32 {s(S_T0)}, s2, {s(S_W)}
        s_cmp_lg_u32 {s(S_T0)}, 0
        s_cbranch_scc1 {LE}
        ''')
        A.snap()
        A(f's_mov_b32 {s(S_T0)}, {FE}')
        self.setflag(S_T0, ' sc1')
        A.label(LE); A.unsnap()
        st = L(f'''
        s_lshl_b32 {s(S_T0)}, {s(S_ODD)}, 10
        s_lshl3_add_u32 {s(S_T0)}, {s(S_W)}, {s(S_T0)}
        s_add_u32 {s(S_T0)}, {s(S_T0)}, {L_STAT}
        v_lshl_add_u32 v6, {v(V_L15)}, 5, {s(S_T0)}
        v_xor_b32 v7, 1024, v6
        ''')
        for rt in range(4):
            st += [f'v_cndmask_b32 {v(SM[rt]+1)}, {v(SQ[rt])}, {v(SQ[rt]+1)}, {s(S_XO,2)}',
                   f'v_cndmask_b32 {v(SM[rt]+2)}, {v(SQ[rt]+2)}, {v(SQ[rt]+3)}, {s(S_XO,2)}',
                   f'v_cndmask_b32 {v(SM[rt]+1)}, {v(SM[rt]+1)}, {v(SM[rt]+2)}, {s(S_XO+2,2)}']
        st.append(f's_mov_b64 exec, {s(S_M,2)}\n' + '\n'.join(f'ds_write_b64 {v(6+(rt>>1))}, {v(SM[rt],2)} offset:{(rt&1)*512}' for rt in range(4)) + '\ns_mov_b64 exec, -1')
        def mark(): self.stm = A.nlg
        st.append(mark)
        SB0, SB1 = SQ[2], SQ[3]
        BF = [SM[rt] for rt in range(4)]
        RS = SQ[0]
        s2 = L(f'''
        s_lshl_b32 {s(S_T2)}, {s(S_ODD)}, 10
        s_add_u32 {s(S_T2)}, {s(S_T2)}, {L_STAT}
        v_lshlrev_b32 {v(V_FIX)}, 5, {v(V_LANE)}
        v_xor_b32 {v(V_FIX)}, {s(S_T2)}, {v(V_FIX)}
        ds_read_b128 {v(SB0,4)}, {v(V_FIX)}
        ds_read_b128 {v(SB1,4)}, {v(V_FIX)} offset:16
        ''')
        def w_(): A.wait(lg=self.s2m)
        s3 = [w_] + L(f'''
        v_add_f32 {v(SB0)}, {v(SB0)}, {v(SB0+2)}
        v_add_f32 {v(SB0+1)}, {v(SB0+1)}, {v(SB0+3)}
        v_add_f32 {v(SB1)}, {v(SB1)}, {v(SB1+2)}
        v_add_f32 {v(SB1+1)}, {v(SB1+1)}, {v(SB1+3)}
        v_add_f32 {v(SB0)}, {v(SB0)}, {v(SB1)}
        v_add_f32 {v(SB0+1)}, {v(SB0+1)}, {v(SB1+1)}
        v_mul_f32 {v(SB0)}, {f2u(-1/512)}, {v(SB0)}
        v_mul_f32 {v(SB0+1)}, {f2u(1/512)}, {v(SB0+1)}
        v_fma_f32 {v(SB0+1)}, -{v(SB0)}, {v(SB0)}, {v(SB0+1)}
        v_max_f32 {v(SB0+1)}, 0, {v(SB0+1)}
        v_add_f32 {v(SB0+1)}, {f2u(1e-5)}, {v(SB0+1)}
        v_rcp_f32 {v(RS)}, {v(SB0+1)}
        v_sqrt_f32 {v(SB0+1)}, {v(SB0+1)}
        v_mov_b32 {v(RS+2)}, {v(RS)}
        v_cvt_pk_bf16_f32 {v(SB1)}, {v(SB0)}, {v(SB0+1)}
        v_lshlrev_b32 {v(SB0+2)}, 16, {v(SB1)}
        v_and_b32 {v(SB0+3)}, 0xffff0000, {v(SB1)}
        v_sub_f32 {v(SB0+2)}, {v(SB0)}, {v(SB0+2)}
        v_sub_f32 {v(SB0+3)}, {v(SB0+1)}, {v(SB0+3)}
        v_cvt_pk_bf16_f32 {v(SB1+1)}, {v(SB0+2)}, {v(SB0+3)}
        v_and_b32 {v(SB1+2)}, 0xffff, {v(SB1)}
        v_permlane32_swap_b32 {v(RS)}, {v(RS+2)}
        v_mov_b32 {v(RS+1)}, {v(RS)}
        v_mov_b32 {v(RS+3)}, {v(RS+2)}
        v_permlane16_swap_b32 {v(RS)}, {v(RS+1)}
        v_permlane16_swap_b32 {v(RS+2)}, {v(RS+3)}
        ''')
        for rt in range(4):
            s3 += [f'v_cmp_eq_u32 vcc, {rt}, {v(V_G)}', f'v_mov_b32 {v(BF[rt]+3)}, 0'] + [f'v_cndmask_b32 {v(BF[rt]+k)}, 0, {v(SB1+k)}, vcc' for k in range(3)]
        V_BIAS = SQ[1]
        def bld():
            for t in range(3): A(f'buffer_load_ushort {v(V_BIAS+t)}, {v(V_BT)}, {s(SRD_B1,4)}, {s(S_T1)} offen offset:{32*t}')
            A(f'buffer_load_ushort {v(V_BIAS+3)}, {v(V_BT)}, {s(SRD_B1,4)}, {s(S_T0)} offen offset:96')
            self.bm = A.nvm
        bias = L(f'''
        s_mul_i32 {s(S_T0)}, {s(S_Q)}, 448
        s_lshr_b32 {s(S_T1)}, {s(S_W)}, 1
        s_mul_i32 {s(S_T1)}, {s(S_T1)}, 224
        s_add_u32 {s(S_T0)}, {s(S_T0)}, {s(S_T1)}
        s_lshl_b32 {s(S_T1)}, {s(S_ODD)}, 7
        s_add_u32 {s(S_T1)}, {s(S_T1)}, {s(S_T0)}
        v_lshlrev_b32 {v(V_BT)}, 1, {v(V_L15)}
        ''') + [bld]
        csl = [lambda: A.wait(vm=self.bm)]
        for t in range(4):
            c = V_CS + 4 * t
            csl += L(f'''
            v_lshlrev_b32 {v(c+3)}, 16, {v(V_BIAS+t)}
            v_cvt_pk_bf16_f32 {v(c)}, {v(c)}, {v(c+3)}
            v_lshlrev_b32 {v(c+3)}, 16, {v(c)}
            v_sub_f32 {v(c+2)}, {v(c+2)}, {v(c+3)}
            v_mov_b32 {v(c+1)}, {v(c)}
            v_cvt_pk_bf16_f32 {v(c+2)}, {v(c+2)}, 0
            v_mov_b32 {v(c+3)}, 0
            ''')
        FK = o.get('fk', 22) / 10
        B3 = o.get('b3', 4); B4 = o.get('b4', 11)
        def mark2(): self.s2m = A.nlg
        q2 = []
        nrd = 1
        inv = {b: k for k, b in enumerate(self.w1order)}
        for b in range(12):
            self.blk = b
            if o.get('fine') == 1 and b: self.stamp(f'blk{b} t{self.tick} d{A.nvm}')
            ensure(inv[b])
            if b == B3:
                print('at B3: vq', len(vq), 'mq', len(mq), 'st', len(st), 'tick', self.tick)
                while vq or mq:
                    if mq: extra(2, [vq])
                    else: take(vq, 2)
                self.flush(st)
                A.wait(lg=self.stm)
                A('s_barrier')
                q2 = s2 + [mark2] + bias + s3
            hq = []
            while nrd < (8 if b < B3 else 16) and len(slots) - sum(callable(x) for x in hq) >= 4 and len(hq) < o.get('hmax', 8):
                hq += hrd(nrd); nrd += 1
            if b == B4:
                assert nrd == 16 and not hq, (nrd, len(hq))
                A.wait(lg=A.nlg)
                A('s_barrier')
                self.b4 = True
            for rt in range(4):
                for t in range(4 if rt < 2 else 3):
                    k = A.wait(lg=max(fl_[b, rt], self.w1l[b]))
                    mm(t, rt, b, fr[b, rt]); self.tick += 1
                    qs = ([hq, None, vq] if o.get('tprio', 1) else [hq, vq, None]) + [[] if mq else st, q2, [] if cq or b < o.get('csb', 9) else csl]
                    fill(FK, qs, k * SW)
                    extra(FK, qs)
            self.flush(hq)
            for rt in range(4): slots.append(fr[b, rt])
        self.blk = 12
        print('middle left: dq', len(dq), 'tq', len(tq), 'cq', len(cq), 'q2', len(q2), 'cs', len(csl), 'tick', self.tick)
        for b in range(12, 16): ensure(inv[b])
        while cq: self.emit(cq.pop(0)[2])
        self.flush(q2); self.flush(csl)
        self.stamp('mid done')
        slots += [SB0, SB1, SQ[1]]
        V_BIAS = V_CS
        print('free slots', len(slots))
        V_RB, V_RX, V_T2, V_T3 = 8, 10, 12, 15
        ep = L(f'''
        s_andn2_b32 {s(S_T0)}, 4, {s(S_Q)}
        s_add_u32 {s(S_T0)}, {s(S_T0)}, {s(S_ODD)}
        s_lshl_b32 {s(S_T0)}, {s(S_T0)}, 11
        v_add_u32 {v(V_RB)}, {s(S_T0)}, {v(V_L16)}
        v_xor_b32 {v(V_RB+1)}, 2048, {v(V_RB)}
        s_and_b32 {s(S_T1)}, {s(S_W)}, 2
        s_lshl1_add_u32 {s(S_T0)}, {s(S_T1)}, {s(S_ODD)}
        s_lshl_b32 {s(S_T0)}, {s(S_T0)}, 12
        v_add_u32 {v(V_RX)}, {s(S_T0)}, {v(V_RB)}
        v_add_u32 {v(V_RX+1)}, {s(S_T0)}, {v(V_RB+1)}
        s_lshl_b32 {s(S_T0)}, {s(S_T1)}, 11
        s_lshl3_add_u32 {s(S_T2)}, {s(S_ODD)}, {s(S_T0)}
        v_add_u32 {v(V_T2)}, {s(S_T2)}, {v(V_RB)}
        v_add_u32 {v(V_T2+1)}, {s(S_T2)}, {v(V_RB+1)}
        s_lshl_b32 {s(S_T1)}, {s(S_T1)}, 2
        v_add_u32 {v(V_T3)}, {s(S_T1)}, {v(V_RB)}
        ''')
        RF = {}; rl = {}
        def epi(t, nt):
            ln = []
            for rt in (2 * nt, 2 * nt + 1):
                c = acc[t, rt]; d = acc[0, rt] + 2 if t == 1 else c
                ln += [f'v_mul_f32 {v(c+i)}, {v(c+i)}, |{v(c+i)}|' for i in range(4)]
                ln += [f'v_cvt_pk_bf16_f32 {v(d+i)}, {v(c+2*i)}, {v(c+2*i+1)}' for i in range(2)]
                ln += [f'v_pk_max_i16 {v(d+i)}, {v(d+i)}, 0' for i in range(2)]
                if t == 1:
                    ln.append(f'ds_write_b128 {v(V_RX+nt)}, {v(acc[0,rt],4)} offset:{(rt&1)*1024}')
                    RF[0, rt] = acc[0, rt]; rl[0, rt] = 0
                if t == 2: ln.append(f'ds_write_b64 {v(V_T2+nt)}, {v(c,2)} offset:{32768+(rt&1)*1024}')
                if t == 3: ln.append(f'ds_write_b64 {v(V_T3)}, {v(c,2)} offset:{49152+(rt&1)*1024}')
                if t: ln.append(lambda c=c: slots.append(c))
            return ln
        def rrd(ks):
            ops = []
            if ks < 4:
                x = ks ^ (ks - 1); x = (x >> 1) * 16384 + (x & 1) * 4096
                ops += [f'v_xor_b32 {v(V_RX+k)}, {x}, {v(V_RX+k)}' for k in range(2)]
            if ks == 4: ops += [f'v_and_b32 {v(V_T2+k)}, {hex(0xfffffff0)}, {v(V_T2+k)}' for k in range(2)]
            if ks == 5: ops += [f'v_xor_b32 {v(V_T2+k)}, 4096, {v(V_T2+k)}' for k in range(2)]
            for rt in range(4):
                def f(rt=rt):
                    RF[ks, rt] = slots.pop(0)
                    va, off = (V_RX, 0) if ks < 4 else (V_T2, 32768) if ks < 6 else (V_RB, 49152)
                    A(f'ds_read_b128 {v(RF[ks,rt],4)}, {v(va+(rt>>1))} offset:{off+(rt&1)*1024}')
                    rl[ks, rt] = A.nlg
                ops.append(f)
            return ops
        A.wait(lg=max(max(fl_.values()), max(self.w1l.values())))
        EPK = o.get('epk', 22) / 10
        ml = []
        for t in range(4):
            for nt in range(2 if t < 3 else 1):
                ml += [('a', t, rt, b) for b in range(12, 17) for rt in (2 * nt, 2 * nt + 1)]
        N3 = len(ml)
        NI = o.get('ni', 2)
        for j in range(NI): ml += [('b', j, ks, rt) for ks in range(4) for rt in range(4)]
        for j in range(NI): ml += [('b', j, ks, rt) for ks in range(4, 7) for rt in range(4)]
        for j in range(NI, 8): ml += [('b', j, ks, rt) for ks in range(7) for rt in range(4)]
        X1, X2 = o.get('x1', 60), o.get('x2', N3 + 12)
        NPL = o.get('npl', 3) if o.get('pt') else 0
        pa = {}; stm = {}; rq = []; due = []
        def dual(fn, plain):
            if not plain: return fn(' sc1')
            LS = A.newlabel('slow'); LJ = A.newlabel('dj')
            A(f's_cmp_eq_u32 {s(S_FAST)}, 0\ns_cbranch_scc1 {LS}')
            A.snap(); fn(''); A(f's_branch {LJ}'); A.label(LS); A.unsnap()
            fn(' sc1'); A.label(LJ)
        def pack(j):
            return [f'v_cvt_pk_bf16_f32 {v(pa[j,rt&2]+2*(rt&1)+i)}, {v(pa[j,rt]+2*i)}, {v(pa[j,rt]+2*i+1)}' for rt in range(4) for i in range(2)]
        def send(j):
            x = 7 - j
            def st():
                if ZC and x <= 2:
                    assert (9,) in checked
                    A(f's_xor_b32 {s(S_PS)}, {s(S_ZQ)}, {x*4096+(x-1)*2048}')
                else: A(f's_xor_b32 {s(S_PS)}, {s(S_PQ)}, {x*(65536+8192)}')
                def fn(sc):
                    for k in range(2): A(f'buffer_store_dwordx4 {v(pa[j,2*k],4)}, {v(V_L16)}, {s(SRD_WS,4)}, {s(S_PS)} offen offset:{k*1024}{sc}')
                dual(fn, x <= NPL)
                stm[j] = A.nvm
                slots.extend(pa[j, rt] for rt in (1, 3, 0, 2))
            return pack(j) + [st]
        checked = set()
        def mask(js): return 0xe00 if js == (9,) else sum(1 << (7 - j) for j in js)
        def flag(js):
            while max(js) not in stm: self.emit(ep.pop(0))
            A.wait(vm=stm[max(js)])
            A(f's_mov_b64 exec, {mask(js)}')
            dual(lambda sc: A(f'buffer_store_dwordx2 {v(V_TAG,2)}, {v(V_FPD)}, {s(SRD_WS,4)}, 0 offen{sc}'), 7 - min(js) <= NPL)
            A('s_mov_b64 exec, -1')
        pm = {}; pl = {}; lm_ = {}; V_PL = V_ONES
        def pissue(js):
            A(f's_mov_b64 exec, {mask(js)}')
            A(f'buffer_load_dwordx2 {v(V_PL,2)}, {v(V_FC)}, {s(SRD_WS,4)}, 0 offen sc1')
            A('s_mov_b64 exec, -1')
            pm[js] = A.nvm
        def pcheck(js):
            if js not in pm: pissue(js)
            checked.add(js)
            if len(misc) < self.nmisc: self.flush(misc)
            Lp = A.newlabel('poll'); D = A.newlabel('polld')
            A.wait(vm=pm[js])
            A.on = False
            A(f's_mov_b64 exec, {mask(js)}\nv_cmp_ne_u64 vcc, {v(V_PL,2)}, {v(V_TAG,2)}\ns_mov_b32 {s(S_CNT)}, 0x20000\ns_cbranch_vccz {D}')
            A.snap()
            A.label(Lp)
            A(f'''
            buffer_load_dwordx2 {v(V_PL,2)}, {v(V_FC)}, {s(SRD_WS,4)}, 0 offen sc1
            s_sub_u32 {s(S_CNT)}, {s(S_CNT)}, 1
            s_cbranch_scc1 {D}
            s_waitcnt vmcnt(0)
            v_cmp_ne_u64 vcc, {v(V_PL,2)}, {v(V_TAG,2)}
            s_cbranch_vccnz {Lp}
            ''')
            A.label(D)
            A.unsnap()
            A('s_mov_b64 exec, -1')
            A.on = True
        def pload(js):
            for j in js:
                assert 3 in stm
                if ZC and j >= 5: A(f's_add_u32 {s(S_PS)}, {s(S_ZQ)}, {(6-j)*2048}')
                else: A(f's_add_u32 {s(S_PS)}, {s(S_PQ)}, {(7-j)*8192}')
                for k in range(2):
                    A(f'buffer_load_dwordx4 {a(8*j+4*k,4)}, {v(V_L16)}, {s(SRD_WS,4)}, {s(S_PS)} offen offset:{k*1024} sc1')
                lm_[j] = A.nvm
        SEL = V_SEL
        def padd(js):
            chk = any(7 - j <= NCL for j in js)
            src_ = {rt: pa[7, rt] for rt in range(4)}
            if chk:
                for rt in range(4): pa[7, rt] = slots.pop(0)
            def adds(w):
                for j in js:
                    if w: A.wait(vm=lm_[j])
                    for rt in range(4):
                        c = src_[rt] if j == js[0] else pa[7, rt]
                        A(f'v_mfma_f32_16x16x32_bf16 {v(pa[7,rt],4)}, {v(SEL+2-2*(rt&1),4)}, {a(8*j+4*(rt>>1),4)}, {v(c,4)}')
            adds(True)
            if not chk: return
            Lp = A.newlabel('again'); D = A.newlabel('got')
            A(f'v_cmp_u_f32 vcc, {v(pa[7,0])}, {v(pa[7,2])}')
            A.on = False
            A(f's_movk_i32 {s(S_CNT)}, 0x1000\ns_cbranch_vccz {D}')
            A.snap()
            A.label(Lp)
            keep = dict(lm_); pload(js); lm_.update(keep)
            A('s_waitcnt vmcnt(0)')
            adds(False)
            A(f'''
            s_nop 7
            v_cmp_u_f32 vcc, {v(pa[7,0])}, {v(pa[7,2])}
            s_sub_u32 {s(S_CNT)}, {s(S_CNT)}, 1
            s_cbranch_scc1 {D}
            s_cbranch_vccnz {Lp}
            ''')
            A.label(D)
            A.unsnap()
            A.on = True
        def pwait(js):
            while max(js) not in stm: self.emit(ep.pop(0))
            A.wait(vm=stm[max(js)])
        V_OO = V_CS + 4
        bs = {}
        def balloc():
            for rt in range(4): bs[rt] = slots.pop(0)
            q = [f'v_mov_b32 {v(bs[rt]+r)}, 0' for rt in range(4) for r in range(4)]
            q += [f'ds_read_u16_d16_hi {v(bs[rt]+r)}, {v(V_BIAS+r)} offset:{rt*1024}' for rt in range(2) for r in range(4)]
            q += [f'v_xor_b32 {v(V_BIAS+r)}, 2048, {v(V_BIAS+r)}' for r in range(4)]
            q += [f'ds_read_u16_d16_hi {v(bs[2+rt]+r)}, {v(V_BIAS+r)} offset:{rt*1024}' for rt in range(2) for r in range(4)]
            def mk(): self.bl = A.nlg
            q += [mk, lambda: A.wait(vm=self.b2m)]
            q += [f'v_lshlrev_b32 {v(V_FIX)}, 16, {v(V_BT)}', f'v_and_b32 {v(V_FIX+1)}, 0xffff0000, {v(V_BT)}',
                  f'v_lshlrev_b32 {v(V_FIX+2)}, 16, {v(V_TD)}', f'v_and_b32 {v(V_FIX+3)}, 0xffff0000, {v(V_TD)}', lambda: A.wait(lg=self.bl)]
            q += [f'v_add_f32 {v(bs[rt]+r)}, {v(bs[rt]+r)}, {v(V_FIX+r)}' for rt in range(4) for r in range(4)]
            misc.extend(q)
        def spread(d, e):
            return L(f'''
            v_and_b32 v7, 0xc0, {v(e)}
            v_lshl_add_u32 {v(d)}, v7, 8, {v(V_BIAS+3)}
            v_and_b32 v7, 0x20, {v(e)}
            v_lshl_add_u32 {v(d)}, v7, 7, {v(d)}
            v_and_b32 v7, 0x18, {v(e)}
            v_lshl_add_u32 {v(d)}, v7, 5, {v(d)}
            v_and_b32 v7, 7, {v(e)}
            v_lshl_add_u32 {v(d)}, v7, 1, {v(d)}
            ''')
        def b2ld():
            A(f'buffer_load_dwordx2 {v(V_BT,2)}, {v(V_FIX)}, {s(SRD_B2,4)}, 0 offen'); self.b2m = A.nvm
        mis0 = L(f'''
        s_and_b32 {s(S_T0)}, {s(S_Q)}, 4
        s_add_u32 {s(S_T1)}, {s(S_T0)}, {s(S_W)}
        s_and_b32 {s(S_T2)}, {s(S_Q)}, 3
        s_lshl2_add_u32 {s(S_T1)}, {s(S_T1)}, {s(S_T2)}
        s_lshl_b32 {s(S_T1)}, {s(S_T1)}, 4
        v_lshl_add_u32 v6, {v(V_G)}, 2, {s(S_T1)}
        v_lshlrev_b32 {v(V_FIX)}, 1, v6
        ''') + [b2ld]
        misc = L(f'''
        s_add_u32 {s(S_T2)}, {s(S_T0)}, {s(S_ODD)}
        s_lshl_b32 {s(S_T2)}, {s(S_T2)}, 11
        v_lshl_add_u32 {v(V_BIAS+3)}, {v(V_L15)}, 4, {s(S_T2)}
        s_cmp_ge_u32 {s(S_Q)}, 4 @@ s_cselect_b64 vcc, -1, 0
        v_sub_u32 {v(V_FIX+1)}, 512, v6
        v_cndmask_b32 {v(V_FIX+1)}, v6, {v(V_FIX+1)}, vcc
        v_subrev_u32 {v(V_FIX+2)}, {s(S_T0)}, {v(V_FIX+1)}
        ''') + spread(V_BIAS, V_FIX + 1) + spread(V_BIAS + 2, V_FIX + 2) + L(f'''
        s_add_u32 {s(S_T2)}, {s(S_T0)}, 2
        v_add_u32 {v(V_BIAS+1)}, {s(S_T2)}, {v(V_BIAS+2)}
        v_xor_b32 {v(V_BIAS+3)}, 4, {v(V_BIAS+1)}
        v_add_u32 {v(V_BIAS+2)}, 4, {v(V_BIAS+2)}
        v_lshrrev_b32 v6, 5, {v(V_LANE)}
        v_lshlrev_b32 v6, 4, v6
        s_lshl_b32 {s(S_T1)}, {s(S_T1)}, 1
        v_add_u32 v6, {s(S_T1)}, v6
        v_sub_u32 v7, 2048, {v(V_TT)}
        v_cmp_eq_u32 vcc, 0, {v(V_TT)}
        v_mov_b32 {v(V_OO)}, 1024
        v_cndmask_b32 v7, v7, {v(V_OO)}, vcc
        s_cmp_eq_u32 {s(S_ODD)}, 1 @@ s_cselect_b64 vcc, -1, 0
        v_cndmask_b32 {v(V_OO)}, {v(V_TT)}, v7, vcc
        v_cndmask_b32 {v(V_OO+1)}, v7, {v(V_TT)}, vcc
        v_lshl_add_u32 {v(V_OO)}, {v(V_OO)}, 10, v6
        v_lshl_add_u32 {v(V_OO+1)}, {v(V_OO+1)}, 10, v6
        ''') + [balloc]
        ev = {}
        tail = []
        for e in o.get('ev', 'f01@140.f2@176.f3@204.i01@200.F456.C01.C23456.A01.A23456').split('.'):
            js = tuple(int(ch) for ch in e.split('@')[0][1:])
            fn = {'f': flag, 'i': pissue, 'c': pcheck, 'a': padd, 't': self.ptouch, 'l': pload, 'w': pwait}[e[0].lower()]
            if '@' in e: ev.setdefault(N3 + int(e.split('@')[1]), []).append((fn, js))
            else: tail.append((e, fn, js))
        MB = o.get('misc0', N3 + 60); self.nmisc = len(misc)
        for n, m in enumerate(ml):
            if n == X1:
                assert n >= 42
                while any(isinstance(x, str) and x.startswith('ds_write_b128') for x in ep): self.emit(ep.pop(0))
                A.wait(lg=A.nlg); A('s_barrier')
                rq = rrd(1) + rrd(2) + rrd(3)
            if n == N3:
                self.stamp('p3 mfma done')
                print('last left: ep', len(ep), 'dq', len(dq), 'tq', len(tq), 'rq', len(rq), 'tick', self.tick)
                self.blk = 16
                slots.extend(fr[b, rt] for b in range(12, 16) for rt in range(4))
                slots.extend(BF); slots.extend([V_CS + 8, V_CS + 12])
            if n == X2:
                assert n >= N3 + 2
                print('at X2: ep', len(ep), 'rq', len(rq))
                self.flush(ep); self.flush(rq)
                A.wait(lg=A.nlg); A('s_barrier')
                self.stamp('r exchanged')
                rq = rrd(4) + rrd(5) + rrd(6); ep += mis0
            for fn, js in ev.get(n, []): fn(js)
            k = 0
            if m[0] == 'a':
                _, t, rt, b = m
                if b < 16: mm(t, rt, b, fr[b, rt])
                else: A(f'v_mfma_f32_16x16x32_bf16 {v(acc[t,rt],4)}, {v(V_CS+4*t,4)}, {v(BF[rt],4)}, {v(acc[t,rt],4)}')
                if b == 16 and rt & 1: due.append((n + 2, epi(t, rt >> 1)))
            else:
                _, j, ks, rt = m
                b = 7 * (j >> 2) + ks
                ensure(16 + b)
                while (ks, rt) not in rl: self.emit(rq.pop(0))
                k = A.wait(lg=max(rl[ks, rt], self.trl[16 + b]))
                if ks == 0: pa[j, rt] = slots.pop(0)
                c = v(pa[j, rt], 4)
                A(f'v_mfma_f32_16x16x32_bf16 {c}, {a(16*b+4*(j&3),4)}, {v(RF[ks,rt],4)}, {c if ks else "0"}')
                if (ks, rt) == (6, 3) and j < 7: due.append((n + 2, send(j)))
                if o.get('fine') == 2 and (ks, rt) == (6, 3) and j in (1, 3, 4, 5, 6): self.stamp(f'st{j} d{len(dq)}')
            self.tick += 1
            while due and due[0][0] <= n: ep += due.pop(0)[1]
            fill(EPK, [ep, rq, None, misc if n >= MB else []], k * SW)
        print('end left: ep', len(ep), 'misc', len(misc), 'dq', len(dq), 'tq', len(tq))
        self.flush(ep); self.flush(misc)
        self.stamp('p4 mfma done')
        slots.extend(RF.values())
        for e, fn, js in tail:
            fn(js)
            if e[0].isupper(): self.stamp(e)
        for rt in range(4):
            for k in range(0, 4, 2):
                A(f'v_pk_fma_f32 {v(pa[7,rt]+k,2)}, {v(pa[7,rt]+k,2)}, {v(RS+(rt&2),2)}, {v(bs[rt]+k,2)} op_sel:[0,{rt&1},0] op_sel_hi:[1,{rt&1},1]')
        self.flush(pack(7))
        for k in range(2):
            c = pa[7, 2 * k]
            A(f'v_permlane16_swap_b32 {v(c)}, {v(c+2)}\nv_permlane16_swap_b32 {v(c+1)}, {v(c+3)}')
            A(f'buffer_store_dwordx4 {v(c,4)}, {v(V_OO+k)}, {s(SRD_OUT,4)}, 0 offen{self.outf}')

    def probe_end(self):
        A = self.A
        a_, b_ = self.opt['probe'].split('-')
        if b_ == 'end':
            A('s_waitcnt vmcnt(0)'); self.stamp('end')
        A(f'''
        s_waitcnt lgkmcnt(0)
        s_sub_u32 {s(S_T0)}, {s(S_TS+4)}, {s(S_TS if a_ == 'start' else S_TS+2)}
        s_min_u32 {s(S_T0)}, {s(S_T0)}, 4000
        s_lshl_b32 {s(S_T0)}, {s(S_T0)}, 2
        s_add_u32 {s(S_T0)}, {s(S_T0)}, 4000
        s_add_u32 {s(S_T0)}, {s(S_T0)}, {s(S_TS)}
        L_pspin:
        s_memrealtime {s(S_TS+6,2)}
        s_waitcnt lgkmcnt(0)
        s_sub_u32 {s(S_T1)}, {s(S_TS+6)}, {s(S_T0)}
        s_cmp_lt_i32 {s(S_T1)}, 0
        s_cbranch_scc1 L_pspin
        ''')

    def dump_ts(self):
        if self.opt.get('probe'): return self.probe_end()
        if not self.diag: return
        A = self.A
        A('s_waitcnt vmcnt(0)')
        self.stamp('end')
        A(f'''
        s_lshl_b32 {s(S_T0)}, s2, 2
        s_add_u32 {s(S_T0)}, {s(S_T0)}, {s(S_W)}
        s_lshl_b32 {s(S_T0)}, {s(S_T0)}, 7
        s_add_u32 {s(S_T0)}, {s(S_T0)}, {WS_TS}
        s_getreg_b32 {s(S_T1)}, hwreg(HW_REG_XCC_ID)
        s_waitcnt lgkmcnt(0)
        s_mov_b64 exec, 1
        ''')
        for i in range(20): A(f'v_mov_b32 {v(16+i)}, {s(S_TS+2*i) if i < len(self.names) else 0}')
        A(f'v_mov_b32 v40, {s(S_T1)}')
        A(f'v_mov_b32 v41, {s(S_FAST)}')
        for i in range(5):
            A(f'buffer_store_dwordx4 {v(16+4*i,4)}, off, {s(SRD_WS,4)}, {s(S_T0)} offset:{16*i}')
        A(f'buffer_store_dwordx2 v[40:41], off, {s(SRD_WS,4)}, {s(S_T0)} offset:80')

    def build(self):
        A = self.A
        self.p1()
        self.window()
        self.p23()
        A.on = False
        self.dump_ts()
        if self.opt.get('sched', 1):
            import sched
            A = sched.run(A.prog, self.opt.get('win', 20))
            r = A.report
            print('model:', ' | '.join(f'{r[i][0]} {r[i][1]-r[i-1][1]}' for i in range(1, len(r))))
            self.A = A
        hdr = f'''; FNet (2D DFT, factored) + LayerNorms + squared-ReLU FFN, one persistent launch.
; @launch grid=(256,1,1) block=(256,1,1) lds=163840
''' + (f'; names: {",".join(self.names)}\n' if self.diag else '') + f'''.amdgcn_target "amdgcn-amd-amdhsa--gfx950"
.text
.globl {KNAME}
.p2align 8
.type {KNAME},@function
{KNAME}:
'''
        ftr = f'''L_end:
    s_endpgm
.section .rodata,"a"
.p2align 6
.amdhsa_kernel {KNAME}
  .amdhsa_next_free_vgpr 512
  .amdhsa_next_free_sgpr 102
  .amdhsa_accum_offset 256
  .amdhsa_group_segment_fixed_size 0
  .amdhsa_kernarg_size 104
  .amdhsa_user_sgpr_count 2
  .amdhsa_user_sgpr_kernarg_segment_ptr 1
  .amdhsa_system_sgpr_workgroup_id_x 1
.end_amdhsa_kernel
'''
        return hdr + A.text() + ftr

if __name__ == '__main__':
    out = sys.argv[1]
    opt = {}
    for x in sys.argv[2:]:
        if '=' in x:
            k, val = x.split('='); opt[k] = int(val) if val.lstrip('-').isdigit() else val.replace('_', ' ')
    g = Gen(diag='diag' in sys.argv[2:], opt=opt)
    t = g.build()
    open(out, 'w').write(t)
    print('nops inserted', g.A.nops, 'stamps', len(g.names))
```

```python
import sys
from asmlib import *

KNAME = 'sequential_preLN__spectral_fnet__dense_activation_squared_relu__prompt_kernel'
WS_Z, WS_HN, WS_R, WS_ST, WS_FL, WS_TS = 0, 2 << 20, 4 << 20, 12 << 20, 13 << 20, 14 << 20
WS_SIZE = 16 << 20
F1 = WS_FL + 0x10000
F2 = WS_FL + 0x2000
F3 = WS_FL + 0x4000
FX = WS_FL + 0x6000
FE = WS_FL + 0x7000
WPW = 28672
L_S = 114688
SPW = 12288
L_TAB, L_EXC = L_S, L_S + 32768
S_W = 3
S_T0, S_T1, S_T2, S_T3 = 4, 5, 6, 7
SRD_X, SRD_W1, SRD_W2, SRD_OUT, SRD_WS, SRD_B1, SRD_B2 = 8, 12, 16, 20, 24, 28, 32
S_CNT, S_FAST = 36, 37
S_F1 = S_CNT
S_J, S_N, S_S1, S_Q, S_U2, S_RQ, S_FB, S_RB, S_CB, S_XB = 38, 39, 40, 41, 42, 43, 44, 45, 46, 47
S_U4 = S_S1
S_XO = 48
S_W2S, S_AM0, S_BSO, S_BM0 = 52, 53, 54, 55
SRD_B = 56
S_M = 60
S_TS = 62
S_WB, S_SB = 0, 1
V_LANE, V_L15, V_G, V_L16, V_TAG = 0, 1, 2, 3, 4
V_W2A = 200
V_L128 = 14
V_W1A = 240
V_BIAS = 184


class TAsm(Asm):
    def __init__(self):
        super().__init__(); self.nvm = 0; self.nlg = 0
    def i(self, text):
        super().i(text)
        c = self.hist[-1]
        if c.is_vmem: self.nvm += 1
        if c.is_ds: self.nlg += 1
    def wait(self, vm=None, lg=None):
        p = []
        if vm is not None: p.append(f'vmcnt({min(63, self.nvm - vm)})')
        if lg is not None: p.append(f'lgkmcnt({min(15, self.nlg - lg)})')
        self('s_waitcnt ' + ' '.join(p))

class Gen:
    def __init__(self, diag=False, opt=None):
        self.A = TAsm(); self.diag = diag; self.nts = 0; self.names = []
        self.opt = opt or {}
        self.fsh = self.opt.get('fsh', 4)
        fl = lambda k, d: (' ' + self.opt[k]).rstrip() if self.opt.get(k, 'pl') != 'pl' else ('' if k in self.opt else d)
        self.stf = fl('stf', ''); self.ldf = fl('ldf', ' sc1'); self.outf = fl('outf', ''); self.zldf = fl('zldf', ' sc1')
        self.skip = {'kernarg', 'Z first'} if not self.opt.get('early') else {'p4 prepoll', 'F3 set'}

    def stamp(self, name, idx=None):
        pr = self.opt.get('probe')
        if pr:
            a_, b_ = pr.split('-')
            if name == 'start': self.A(f's_memrealtime {s(S_TS, 2)}')
            if name == a_ and name != 'start': self.A(f's_memrealtime {s(S_TS+2, 2)}')
            if name == b_: self.A(f's_memrealtime {s(S_TS+4, 2)}')
            return
        if self.diag and name not in self.skip:
            if name in self.names: idx = self.names.index(name)
            else:
                idx = len(self.names); self.names.append(name)
            assert idx < 20
            self.A(f'{"s_memtime" if self.opt.get("cyc") else "s_memrealtime"} {s(S_TS + 2*idx, 2)}')

    def weave(self, lines, bg, every):
        if isinstance(lines, str): lines = [x.strip() for x in lines.strip().split('\n') if x.strip()]
        for n, x in enumerate(lines):
            self.A(x.replace(' @@ ', '\n'))
            if bg and (n + 1) % every == 0: bg.pop(0)()

    def srd(self, base, nbytes):
        self.A(f's_mov_b32 {s(base+2)}, {nbytes}\ns_mov_b32 {s(base+3)}, 0x20000')

    def poll(self, vaddr, nl, vtmp):
        A = self.A
        L = A.newlabel('poll'); D = A.newlabel('polld')
        if nl < 64: A(f's_mov_b64 exec, {(1<<nl)-1}')
        A(f's_mov_b32 {s(S_CNT)}, 0x20000')
        A.label(L)
        A(f'buffer_load_dwordx2 {v(vtmp,2)}, {v(vaddr)}, {s(SRD_WS,4)}, 0 offen sc1')
        A(f's_sub_u32 {s(S_CNT)}, {s(S_CNT)}, 1')
        A(f's_cbranch_scc1 {D}')
        A('s_waitcnt vmcnt(0)')
        A(f'v_cmp_ne_u64 vcc, {v(vtmp,2)}, {v(V_TAG,2)}')
        A(f's_cbranch_vccnz {L}')
        A.label(D)
        A('s_waitcnt vmcnt(0)')
        if nl < 64: A('s_mov_b64 exec, -1')

    def setflag(self, soff, sc):
        A = self.A
        A('s_mov_b64 exec, 1')
        A(f'buffer_store_dwordx2 {v(V_TAG,2)}, off, {s(SRD_WS,4)}, {s(soff)}{sc}')
        A('s_mov_b64 exec, -1')

    def dual(self, fn, data=False):
        A = self.A
        if self.opt.get('nofast') or (data and self.opt.get('hyb')):
            fn(' sc1'); return
        LS = A.newlabel('slow'); LJ = A.newlabel('dj')
        A(f's_cmp_eq_u32 {s(S_FAST)}, 0\ns_cbranch_scc1 {LS}')
        n0, l0 = A.nvm, A.nlg
        fn(self.stf if data else '')
        A(f's_branch {LJ}')
        A.label(LS)
        A.nvm, A.nlg = n0, l0
        fn(' sc1')
        A.label(LJ)

    def w1_addr_setup(self):
        A = self.A; vdst = V_W1A
        A(f'''
        s_and_b32 {s(S_T0)}, {s(S_W)}, 1
        s_lshl_b32 {s(S_T0)}, {s(S_T0)}, 5
        s_mul_i32 {s(S_T1)}, {s(S_FB)}, 224
        s_mov_b32 {s(S_T2)}, 4682
        s_cmp_ge_u32 {s(S_W)}, 2
        s_cselect_b64 vcc, -1, 0
        s_movk_i32 {s(S_T3)}, 3584
        ''')
        for i in range(7):
            A(f'''
            v_add_u32 v6, {64*i}, {v(V_LANE)}
            v_mul_u32_u24 v7, {s(S_T2)}, v6
            v_lshrrev_b32 v7, 16, v7
            v_mul_u32_u24 v8, 14, v7
            v_sub_u32 v8, v6, v8
            v_bfe_u32 v9, v7, 2, 2
            v_and_b32 v10, 3, v7
            v_lshl_add_u32 v9, v9, 3, v10
            v_lshrrev_b32 v10, 4, v7
            v_lshl_add_u32 v9, v10, 2, v9
            v_add_u32 v9, {s(S_T0)}, v9
            v_sub_u32 v10, 320, v9
            v_cndmask_b32 v10, v9, v10, vcc
            v_lshl_add_u32 v8, v8, 4, {s(S_T1)}
            v_mad_u32_u24 {v(vdst+i)}, v10, {s(S_T3)}, v8
            s_add_u32 {s(S_T1)}, {s(S_T1)}, {3072 if i == 3 else -1024}
            ''')
            if i == 0:
                A(f'''
                v_mov_b32 v11, 320
                v_cmp_eq_u32 {s(S_M,2)}, v11, v10
                v_mov_b32 v11, 64
                v_cndmask_b32 v10, v10, v11, {s(S_M,2)}
                v_mad_u32_u24 {v(vdst+7)}, v10, {s(S_T3)}, v8
                ''')
    def w1_soff(self, dst, wp):
        self.A(f'''
        s_cmp_ge_u32 {s(S_W)}, 2
        s_mov_b32 {s(dst)}, {64*wp*3584}
        s_cselect_b32 {s(dst)}, {(3-wp)*64*3584}, {s(dst)}
        ''')
    def w1_ops(self, wp, i0, i1, sreg):
        A = self.A; ops = []
        for i in range(i0, i1):
            def f(i=i):
                if i == i0 or i == 4: A(f's_add_u32 m0, {s(S_WB)}, {wp*7168 + (i//4)*4096}')
                if i == i0: self.w1_soff(sreg, wp)
                va = V_W1A + 7 if (wp == 0 and i == 0) else V_W1A + i
                A(f'buffer_load_dwordx4 {v(va)}, {s(SRD_W1,4)}, {s(sreg)} offen offset:{(i%4)*1024} lds')
            ops.append(f)
        return ops

    def w2_addr_lines(self):
        return f'''
        v_lshrrev_b32 v6, 3, {v(V_LANE)}
        v_and_b32 v7, 7, {v(V_LANE)}
        v_lshlrev_b32 v8, 1, v6
        v_and_b32 v8, 4, v8
        v_xor_b32 v7, v7, v8
        v_lshlrev_b32 v7, 4, v7
        v_lshl_add_u32 {v(V_W2A)}, v6, 10, v7
        s_mul_i32 {s(S_T0)}, {s(S_W)}, {448*1024}
        s_lshl_b32 {s(S_T1)}, {s(S_CB)}, 7
        s_add_u32 {s(S_T0)}, {s(S_T0)}, {s(S_T1)}
        v_add_u32 {v(V_W2A)}, {s(S_T0)}, {v(V_W2A)}
        v_add_u32 {v(V_W2A+1)}, 7168, {v(V_W2A)}
        v_add_u32 {v(V_W2A+2)}, {2*7168}, {v(V_W2A)}
        v_add_u32 {v(V_W2A+3)}, {3*7168}, {v(V_W2A)}
        '''
    def w2_ops(self, k0, nk, sbase):
        A = self.A; ops = []
        for i in range(2 * nk):
            def f(i=i):
                if i % 4 == 0:
                    A(f's_add_u32 m0, {s(sbase)}, {i*1024}')
                    A(f's_mov_b32 {s(S_W2S)}, {(2*k0+i)*8192}')
                A(f'buffer_load_dwordx4 {v(V_W2A+i%4)}, {s(SRD_W2,4)}, {s(S_W2S)} offen offset:{(i%4)*1024} lds')
            ops.append(f)
        return ops
    def touch(self, vd, srd, soff, lanes, fl=''):
        A = self.A
        if lanes < 64: A(f's_mov_b64 exec, {hex((1<<lanes)-1)}' if lanes <= 32 else f's_mov_b32 exec_hi, {hex((1<<(lanes-32))-1)}')
        A(f'buffer_load_dword {v(vd)}, {v(V_L128)}, {s(srd,4)}, {s(soff)} offen{fl}')
        if lanes < 64: A('s_mov_b64 exec, -1')
    def w2_rd_addr(self, vdst, sbase):
        A = self.A
        A(f'''
        v_lshrrev_b32 v6, 5, {v(V_LANE)}
        v_lshlrev_b32 v6, 10, v6
        v_bfe_u32 v7, {v(V_LANE)}, 2, 2
        v_lshl_add_u32 v6, v7, 7, v6
        v_and_b32 v8, 1, {v(V_LANE)}
        v_lshl_add_u32 v6, v8, 5, v6
        v_bfe_u32 v8, {v(V_LANE)}, 1, 1
        v_lshl_add_u32 v6, v8, 3, v6
        v_bfe_u32 v8, {v(V_LANE)}, 4, 1
        v_lshl_add_u32 v6, v8, 4, v6
        v_bfe_u32 v8, {v(V_LANE)}, 3, 1
        v_lshl_add_u32 v6, v8, 6, v6
        v_add_u32 {v(vdst)}, {s(sbase)}, v6
        v_xor_b32 v6, 64, v6
        v_add_u32 {v(vdst+1)}, {s(sbase)}, v6
        ''')
    def w2_rd1(self, dst, vaddr, loc, mt, hh):
        self.A(f'ds_read_b64_tr_b16 {dst}, {v(vaddr+mt)} offset:{loc*2048 + hh*512}')

    def p1(self):
        A = self.A
        X, SC, R1, ONES, SUM, SQ, ACC = 16, 80, 144, 152, 156, 160, 208
        V_SGN, V_FAC, V_ZO, V_EW, V_XD, V_XR, V_ER, V_BA, V_A0 = 198, 199, 164, 165, 166, 168, 170, 172, 176
        A(f'''
        s_cmp_ge_u32 s2, 256
        s_cbranch_scc1 L_end
        s_load_dwordx2 {s(SRD_X,2)}, s[0:1], 0
        s_load_dwordx2 {s(SRD_WS,2)}, s[0:1], 96
        s_load_dwordx2 {s(SRD_W1,2)}, s[0:1], 48
        s_load_dwordx2 {s(SRD_W2,2)}, s[0:1], 64
        s_load_dwordx2 {s(SRD_B1,2)}, s[0:1], 56
        s_load_dwordx2 {s(SRD_B2,2)}, s[0:1], 72
        s_load_dwordx2 {s(SRD_OUT,2)}, s[0:1], 80
        ''')
        self.stamp('start')
        if self.diag:
            for i in range(2, 40): A(f's_mov_b32 {s(S_TS+i)}, 0')
        A(f'''
        v_lshrrev_b32 v6, 6, v0
        v_and_b32 {v(V_LANE)}, 63, v0
        v_readfirstlane_b32 {s(S_W)}, v6
        ''')
        if self.opt.get('cpf', 0):
            A(f'''
            s_getpc_b64 {s(S_M,2)}
            L_pc0:
            s_lshr_b32 {s(S_T0)}, s2, 3
            s_lshl2_add_u32 {s(S_T0)}, {s(S_T0)}, {s(S_W)}
            s_lshl_b32 {s(S_T0)}, {s(S_T0)}, 8
            s_min_u32 {s(S_T0)}, {s(S_T0)}, L_end-L_pc0-128
            s_load_dword {s(S_AM0)}, {s(S_M,2)}, {s(S_T0)}
            s_load_dword {s(S_BSO)}, {s(S_M,2)}, {s(S_T0)} offset:128
            ''')
        A(f'''
        v_and_b32 {v(V_L15)}, 15, {v(V_LANE)}
        v_lshrrev_b32 {v(V_G)}, 4, {v(V_LANE)}
        v_lshlrev_b32 {v(V_L16)}, 4, {v(V_LANE)}
        v_lshlrev_b32 {v(V_L128)}, 7, {v(V_LANE)}
        s_and_b32 {s(S_J)}, s2, 7
        s_lshr_b32 {s(S_N)}, s2, 3
        s_and_b32 {s(S_Q)}, {s(S_N)}, 7
        s_lshl_b32 {s(S_T0)}, {s(S_J)}, 2
        s_lshr_b32 {s(S_T1)}, {s(S_N)}, 3
        s_add_u32 {s(S_S1)}, {s(S_T0)}, {s(S_T1)}
        s_bfe_u32 {s(S_T1)}, {s(S_N)}, 0x20002
        s_add_u32 {s(S_U2)}, {s(S_T0)}, {s(S_T1)}
        s_and_b32 {s(S_RQ)}, {s(S_N)}, 3
        s_and_b32 {s(S_FB)}, {s(S_N)}, 15
        s_lshr_b32 {s(S_T1)}, {s(S_N)}, 4
        s_lshl_b32 {s(S_RB)}, {s(S_J)}, 1
        s_add_u32 {s(S_RB)}, {s(S_RB)}, {s(S_T1)}
        s_mov_b32 {s(S_CB)}, {s(S_Q)}
        s_mul_i32 {s(S_XB)}, {s(S_T1)}, 12288
        s_mul_i32 {s(S_T0)}, {s(S_W)}, {WPW}
        s_add_u32 {s(S_XB)}, {s(S_XB)}, {s(S_T0)}
        s_lshl_b32 {s(S_T0)}, {s(S_Q)}, 7
        s_and_b32 {s(S_T1)}, {s(S_T0)}, 0x200
        ''')
        for i in range(4):
            A(f's_add_u32 {s(S_T2)}, {s(S_T0)}, {128*i}\ns_and_b32 {s(S_T2)}, {s(S_T2)}, 0x180\ns_or_b32 {s(S_XO+i)}, {s(S_T2)}, {s(S_T1)}')
        self.srd(SRD_X, 2097152); self.srd(SRD_WS, WS_SIZE); self.srd(SRD_W2, 1835008); self.srd(SRD_W1, 1835008)
        self.srd(SRD_B1, 3584); self.srd(SRD_B2, 1024); self.srd(SRD_OUT, 2097152)
        A(f'''
        s_lshl_b32 {s(S_T0)}, {s(S_W)}, 19
        s_lshl_b32 {s(S_T1)}, {s(S_S1)}, 10
        s_add_u32 {s(S_T0)}, {s(S_T0)}, {s(S_T1)}
        v_lshrrev_b32 v12, 3, {v(V_LANE)}
        v_and_b32 v13, 7, {v(V_LANE)}
        v_xor_b32 v13, v13, {v(V_G)}
        v_lshlrev_b32 v13, 4, v13
        v_lshl_add_u32 v6, v12, 15, v13
        v_add_u32 {v(V_XD)}, {s(S_T0)}, v6
        v_xor_b32 v6, 64, {v(V_XD)}
        v_add_u32 {v(V_XD+1)}, {8*32768 - 1024}, v6
        ''')
        A(f'''
        s_lshl_b32 {s(S_T0)}, {s(S_Q)}, 5
        v_lshrrev_b32 v6, 2, {v(V_L15)}
        v_and_b32 v7, 3, {v(V_L15)}
        v_lshl_add_u32 v6, v6, 3, v7
        v_add_u32 v6, {s(S_T0)}, v6
        v_add_u32 v7, 4, v6
        v_cmp_eq_u32 vcc, 0, v6
        v_mov_b32 v8, 0x100
        v_cndmask_b32 v6, v6, v8, vcc
        v_cvt_f32_u32 v6, v6
        v_cvt_f32_u32 v7, v7
        v_mul_f32 v6, {f2u(1/512)}, v6
        v_mul_f32 v7, {f2u(1/512)}, v7
        s_add_u32 {s(S_T0)}, {s(S_W)}, {s(S_Q)}
        s_and_b32 {s(S_T0)}, {s(S_T0)}, 3
        s_lshl_b32 {s(S_T0)}, {s(S_T0)}, 6
        v_lshl_add_u32 v8, {v(V_G)}, 3, {s(S_T0)}
        v_cvt_f32_u32 v8, v8
        v_add_f32 v9, {f2u(32.0)}, v8
        s_lshl_b32 {s(S_T0)}, {s(S_W)}, 13
        s_add_u32 {s(S_T0)}, {s(S_T0)}, {L_TAB}
        v_add_u32 v10, {s(S_T0)}, {v(V_L16)}
        ''')
        def tab(kk, et):
            b = SC + 32 * et
            A(f'v_mul_f32 {v(b)}, {v(6+et)}, {v(8+kk)}')
            for j in range(1, 8):
                A(f'v_add_f32 {v(b+j)}, {v(b+j-1)}, {v(6+et)}')
            for j in range(8):
                A(f'v_cos_f32 {v(b+8+j)}, {v(b+j)}')
                A(f'v_sin_f32 {v(b+16+j)}, {v(b+j)}')
            for j in range(4):
                A(f'v_cvt_pk_bf16_f32 {v(b+24+j)}, {v(b+8+2*j)}, {v(b+9+2*j)}')
            for j in range(4):
                A(f'v_cvt_pk_bf16_f32 {v(b+28+j)}, {v(b+16+2*j)}, {v(b+17+2*j)}')
            A(f'ds_write_b128 v10, {v(b+24,4)} offset:{(kk*4+et*2)*1024}')
            A(f'ds_write_b128 v10, {v(b+28,4)} offset:{(kk*4+et*2+1)*1024}')
        npre = self.opt.get('tabpre', 1)
        tabs = [(0, 0), (0, 1), (1, 0), (1, 1)]
        for t in tabs[:npre]: tab(*t)
        T0L, T1L = self.opt.get('t0', 32), self.opt.get('t1', 48)
        A(f'''
        s_mov_b32 {s(S_T2)}, {FE}
        s_lshl_b32 {s(S_T3)}, {s(S_N)}, 2
        s_add_u32 {s(S_T3)}, {s(S_T3)}, {s(S_W)}
        s_mul_i32 {s(S_AM0)}, {s(S_T3)}, {T1L*128}
        s_add_u32 {s(S_AM0)}, {s(S_AM0)}, {64*3584 + T0L*128*128}
        s_mul_i32 {s(S_T3)}, {s(S_T3)}, {T0L*128}
        s_add_u32 {s(S_T3)}, {s(S_T3)}, {64*3584}
        ''')
        A('s_waitcnt lgkmcnt(0)')
        self.stamp('kernarg')
        xm = []
        def xdma(i):
            A(f's_add_u32 m0, {s(S_XB)}, {i*2048}')
            so = S_XO + (i >> 1)
            if i & 1:
                A(f's_xor_b32 {s(S_T0)}, {s(so)}, 0x200'); so = S_T0
            A(f'buffer_load_dwordx4 {v(V_XD)}, {s(SRD_X,4)}, {s(so)} offen lds')
            A(f'buffer_load_dwordx4 {v(V_XD+1)}, {s(SRD_X,4)}, {s(so)} offen offset:1024 lds')
            xm.append(A.nvm)
        NX0 = self.opt.get('nx0', 5)
        xdma(0)
        A(f'buffer_load_dwordx2 {v(V_TAG,2)}, off, {s(SRD_WS,4)}, {s(S_T2)} sc1')
        for i in range(1, NX0):
            if i == self.opt.get('t0pos', 1) and T0L: self.touch(204, SRD_W1, S_T3, T0L)
            xdma(i)
        A(f'''
        s_mul_i32 {s(S_WB)}, {s(S_W)}, {WPW}
        s_mul_i32 {s(S_SB)}, {s(S_W)}, {SPW}
        s_add_u32 {s(S_SB)}, {s(S_SB)}, {L_S}
        ''')
        for t in tabs[npre:]: tab(*t)
        A(f'v_add_u32 v10, {L_TAB}, {v(V_L16)}')
        A('s_waitcnt lgkmcnt(0)\ns_barrier')
        def tabrd(f0, f1):
            for f in range(f0, f1): A(f'ds_read_b128 {a(4*f,4)}, v10 offset:{f*1024}')
        tabrd(0, 12)
        A(f'''
        v_lshrrev_b32 v6, 1, {v(V_L15)}
        v_xor_b32 v6, v6, {v(V_G)}
        v_lshlrev_b32 v6, 4, v6
        v_lshl_add_u32 v15, {v(V_L15)}, 7, v6
        v_add_u32 {v(V_XR)}, {s(S_XB)}, v15
        v_xor_b32 v6, 64, v15
        v_add_u32 {v(V_XR+1)}, {s(S_XB)}, v6
        ''')
        for i in range(4): A(f'v_mov_b32 {v(ONES+i)}, 0x3f803f80')
        A('s_waitcnt lgkmcnt(2)')
        tabrd(12, 24)
        A('s_waitcnt lgkmcnt(6)')
        tabrd(24, 32)
        b = SC
        fill = f'''
        s_lshl_b32 {s(S_T0)}, {s(S_W)}, 3
        v_lshrrev_b32 v6, 1, {v(V_L15)}
        v_add_u32 v6, {s(S_T0)}, v6
        v_and_b32 v7, 1, {v(V_L15)}
        v_cvt_f32_u32 v9, v7
        v_mul_f32 v9, {f2u(-0.25)}, v9
        v_lshl_add_u32 v8, v6, 1, v7
        v_cmp_eq_u32 vcc, 1, v8
        v_lshlrev_b32 v8, 2, {v(V_G)}
        v_cndmask_b32 v6, v6, 32, vcc
        v_cndmask_b32 v9, v9, 0, vcc
        v_cvt_f32_u32 v6, v6
        v_mul_f32 v6, {f2u(1/64)}, v6
        v_cvt_f32_u32 v8, v8
        v_fma_f32 {v(b)}, v6, v8, v9
        '''.strip().split('\n')
        for blk in range(4):
            for j in range(4):
                c = 16 * blk + j
                if c: fill.append(f'v_fmamk_f32 {v(b+4*blk+j)}, v6, {f2u(float(c))}, {v(b)}')
        for j in range(16): fill.append(f'v_cos_f32 {v(b+16+j)}, {v(b+j)}')
        for j in range(8): fill.append(f'v_cvt_pk_bf16_f32 {v(R1+j)}, {v(b+16+2*j)}, {v(b+17+2*j)}')
        fill += f'''
        v_and_b32 v6, 1, {v(V_LANE)}
        v_lshlrev_b32 v6, 31, v6
        v_or_b32 {v(V_SGN)}, 1.0, v6
        s_cmp_ge_u32 {s(S_Q)}, 4 @@ s_cselect_b64 vcc, -1, 0
        v_mov_b32 {v(V_FAC)}, 1.0
        v_cndmask_b32 {v(V_FAC)}, {v(V_FAC)}, {v(V_SGN)}, vcc
        s_lshl_b32 {s(S_T0)}, {s(S_W)}, 19
        s_lshl_b32 {s(S_T1)}, {s(S_Q)}, 13
        s_add_u32 {s(S_T0)}, {s(S_T0)}, {s(S_T1)}
        s_lshl_b32 {s(S_T1)}, {s(S_S1)}, 8
        s_add_u32 {s(S_T0)}, {s(S_T0)}, {s(S_T1)}
        v_lshlrev_b32 v6, 17, {v(V_G)}
        v_lshl_add_u32 v6, {v(V_L15)}, 4, v6
        v_add_u32 {v(V_ZO)}, {s(S_T0)}, v6
        s_lshr_b32 {s(S_T0)}, {s(S_W)}, 1
        s_lshl_b32 {s(S_T0)}, {s(S_T0)}, 10
        s_and_b32 {s(S_T1)}, {s(S_W)}, 1
        s_lshl_b32 {s(S_T1)}, {s(S_T1)}, 3
        s_add_u32 {s(S_T0)}, {s(S_T0)}, {s(S_T1)}
        s_add_u32 {s(S_T0)}, {s(S_T0)}, {L_EXC}
        v_add_u32 {v(V_EW)}, {s(S_T0)}, {v(V_L16)}
        v_add_u32 {v(V_ER)}, {L_EXC}, {v(V_L16)}
        s_lshl_b32 {s(S_T0)}, {s(S_W)}, 11
        s_lshr_b32 {s(S_T1)}, {s(S_Q)}, 1
        s_lshl_b32 {s(S_T1)}, {s(S_T1)}, 9
        s_add_u32 {s(S_T0)}, {s(S_T0)}, {s(S_T1)}
        s_lshl_b32 {s(S_T1)}, {s(S_S1)}, 4
        s_add_u32 {s(S_T0)}, {s(S_T0)}, {s(S_T1)}
        s_and_b32 {s(S_T1)}, {s(S_Q)}, 1
        s_lshl_b32 {s(S_T1)}, {s(S_T1)}, 3
        s_add_u32 {s(S_T0)}, {s(S_T0)}, {s(S_T1)}
        s_lshl_b32 {s(S_T0)}, {s(S_T0)}, {self.fsh}
        s_add_u32 {s(S_F1)}, {s(S_T0)}, {F1}
        v_and_b32 v6, 1, {v(V_L15)}
        v_cmp_eq_u32 {s(S_XO,2)}, 1, v6
        v_and_b32 v6, 2, {v(V_L15)}
        v_cmp_eq_u32 {s(S_XO+2,2)}, 2, v6
        v_lshrrev_b32 v6, 2, {v(V_L15)}
        v_cmp_eq_u32 {s(S_M,2)}, v6, {v(V_G)}
        s_mov_b32 {s(S_T1)}, 65536
        s_mov_b32 {s(S_T0)}, {f2u(1/512)}
        '''.strip().split('\n')
        fill = [x.strip().replace(' @@ ', '\n') for x in fill]
        self.w1_addr_setup()
        LI = A.newlabel('ri'); LJ = A.newlabel('rj')
        A(f's_cmp_ge_u32 {s(S_N)}, 16\ns_cbranch_scc1 {LI}')
        self.p2_rowbase(S_T3)
        A(f'''
        s_mov_b32 {s(S_BSO)}, 0
        s_add_u32 {s(S_BM0)}, {s(S_WB)}, 16384
        s_mov_b64 {s(SRD_B,2)}, {s(SRD_X,2)}
        s_mov_b64 {s(SRD_B+2,2)}, {s(SRD_X+2,2)}
        s_lshl_b32 {s(S_T3)}, {s(S_T3)}, 10
        s_lshl_b32 {s(S_T0)}, {s(S_W)}, 7
        s_add_u32 {s(S_T1)}, {s(S_T3)}, {s(S_T0)}
        s_sub_u32 {s(S_T2)}, {s(S_T3)}, {s(S_T0)}
        s_add_u32 {s(S_T2)}, {s(S_T2)}, 896
        v_lshl_add_u32 v6, v12, 16, v13
        v_xor_b32 v7, 64, v6
        v_add_u32 v7, {8*65536}, v7
        v_add_u32 {v(V_BA)}, {s(S_T1)}, v6
        v_add_u32 {v(V_BA+1)}, {s(S_T1)}, v7
        v_add_u32 {v(V_BA+2)}, {s(S_T2)}, v6
        v_add_u32 {v(V_BA+3)}, {s(S_T2)}, v7
        s_branch {LJ}
        ''')
        A.label(LI)
        self.w1_soff(S_BSO, 0)
        A(f'''
        s_mov_b32 {s(S_BM0)}, {s(S_WB)}
        s_mov_b64 {s(SRD_B,2)}, {s(SRD_W1,2)}
        s_mov_b64 {s(SRD_B+2,2)}, {s(SRD_W1+2,2)}
        v_mov_b32 {v(V_BA)}, {v(V_W1A+7)}
        ''')
        for i in range(1, 4): A(f'v_add_u32 {v(V_BA+i)}, {1024*i}, {v(V_W1A+i)}')
        A.label(LJ)
        self.stamp('tables')
        for i in range(NX0, 8): xdma(i)
        pf = []
        if T1L: pf.append(lambda: self.touch(205, SRD_W1, S_AM0, T1L))
        for i in range(4):
            def f(i=i):
                A(f's_add_u32 m0, {s(S_BM0)}, {i*1024}')
                fl(1)
                A(f'buffer_load_dwordx4 {v(V_BA+i)}, {s(SRD_B,4)}, {s(S_BSO)} offen lds')
            pf.append(f)
        xl = []
        def xrd(i):
            A.wait(vm=xm[i])
            for kk in range(2):
                A(f'ds_read_b128 {v(X+8*i+4*kk,4)}, {v(V_XR+kk)} offset:{i*2048}')
            xl.append(A.nlg)
        xrd(0)
        self.stamp('x first')
        xrd(1)
        A(f'''
        v_add_u32 {v(V_TAG)}, 0x9e3779b0, {v(V_TAG)}
        v_add_u32 {v(V_TAG+1)}, 0x7f4a7c15, {v(V_TAG+1)}
        s_getreg_b32 {s(S_T0)}, hwreg(HW_REG_XCC_ID)
        s_and_b32 {s(S_T0)}, {s(S_T0)}, 15
        v_add_u32 v178, {s(S_T0)}, {v(V_TAG)}
        v_mov_b32 v179, {v(V_TAG+1)}
        s_lshl_b32 {s(S_T0)}, {s(S_J)}, 8
        s_lshl_b32 {s(S_T1)}, {s(S_N)}, 3
        s_add_u32 {s(S_T0)}, {s(S_T0)}, {s(S_T1)}
        s_add_u32 {s(S_T0)}, {s(S_T0)}, {FX}
        s_mov_b64 exec, 1
        buffer_store_dwordx2 v[178:179], off, {s(SRD_WS,4)}, {s(S_T0)} sc1
        s_mov_b64 exec, -1
        ''')
        PF0 = self.opt.get('pf0', 1)
        def fl(n):
            for _ in range(n):
                if fill:
                    x = fill.pop(0); A(x)
                    if x.startswith('v_cos'): return
        for i in range(8):
            ip, hp = i >> 1, i & 1
            if i + 2 < 8: xrd(i + 2)
            A.wait(lg=xl[i])
            for kk in range(2):
                xa = X + 8 * i + 4 * kk
                first = (i == 0 and kk == 0)
                A(f'v_mfma_f32_16x16x32_bf16 {v(SQ,4)}, {v(xa,4)}, {v(xa,4)}, {"0" if first else v(SQ,4)}')
                fl(2)
                A(f'v_mfma_f32_16x16x32_bf16 {v(SUM,4)}, {v(xa,4)}, {v(ONES,4)}, {"0" if first else v(SUM,4)}')
                if i >= PF0 and pf: pf.pop(0)()
                else: fl(2)
                for t in range(4):
                    acc = ACC + 16 * hp + 4 * t
                    cin = '0' if (ip == 0 and kk == 0) else v(acc, 4)
                    A(f'v_mfma_f32_16x16x32_bf16 {v(acc,4)}, {v(xa,4)}, {a(32*ip+16*kk+4*t,4)}, {cin}')
                    if not (kk == 1 and t == 3): fl(2)
        self.stamp('gemm1 done')
        assert not fill and not pf, (len(fill), len(pf))
        A(f'''
        v_cndmask_b32 v6, {v(SQ)}, {v(SQ+1)}, {s(S_XO,2)}
        v_cndmask_b32 v7, {v(SQ+2)}, {v(SQ+3)}, {s(S_XO,2)}
        v_cndmask_b32 v8, {v(SUM)}, {v(SUM+1)}, {s(S_XO,2)}
        v_cndmask_b32 v9, {v(SUM+2)}, {v(SUM+3)}, {s(S_XO,2)}
        v_cndmask_b32 v6, v6, v7, {s(S_XO+2,2)}
        v_cndmask_b32 v8, v8, v9, {s(S_XO+2,2)}
        v_mul_f32 v8, {s(S_T0)}, v8
        v_mul_f32 v8, v8, v8
        v_fma_f32 v6, v6, {s(S_T0)}, -v8
        v_max_f32 v6, 0, v6
        v_add_f32 v6, {f2u(1e-5)}, v6
        v_rsq_f32 v6, v6
        v_fma_f32 {v(ACC)}, {v(ACC+16)}, {v(V_SGN)}, {v(ACC)}
        v_cndmask_b32 v6, 0, v6, {s(S_M,2)}
        v_fma_f32 {v(ACC+1)}, {v(ACC+17)}, {v(V_SGN)}, {v(ACC+1)}
        v_fma_f32 {v(ACC+2)}, {v(ACC+18)}, {v(V_SGN)}, {v(ACC+2)}
        v_mfma_f32_16x16x4_f32 v[20:23], v6, {v(V_FAC)}, 0
        ''')
        for i in range(3, 16):
            A(f'v_fma_f32 {v(ACC+i)}, {v(ACC+16+i)}, {v(V_SGN)}, {v(ACC+i)}')
        for t in range(4):
            for r in range(0, 4, 2):
                A(f'v_pk_mul_f32 {v(ACC+4*t+r,2)}, {v(ACC+4*t+r,2)}, {v(20+r,2)}')
            A(f'v_cvt_pk_bf16_f32 {v(24+2*t)}, {v(ACC+4*t)}, {v(ACC+4*t+1)}')
            A(f'v_cvt_pk_bf16_f32 {v(25+2*t)}, {v(ACC+4*t+2)}, {v(ACC+4*t+3)}')
            A(f'ds_write_b64 {v(V_EW)}, {v(24+2*t,2)} offset:{t*2048}')
        A('s_waitcnt lgkmcnt(0)\ns_barrier')
        for f in range(8):
            A(f'ds_read_b128 {v(32+4*f,4)}, {v(V_ER)} offset:{f*1024}')
        for t in range(4):
            A(f's_waitcnt lgkmcnt({6-2*t})')
            A(f'v_mfma_f32_16x16x32_bf16 {v(64+4*t,4)}, {v(R1,4)}, {v(32+8*t,4)}, 0')
            A(f'v_mfma_f32_16x16x32_bf16 {v(64+4*t,4)}, {v(R1+4,4)}, {v(36+8*t,4)}, {v(64+4*t,4)}')
        for k in range(2):
            for t in range(4):
                A(f'v_cvt_pk_bf16_f32 {v(80+4*k+t)}, {v(64+4*t+2*k)}, {v(65+4*t+2*k)}')
            A(f'buffer_store_dwordx4 {v(80+4*k,4)}, {v(V_ZO)}, {s(SRD_WS,4)}, {"0" if k == 0 else s(S_T1)} offen sc1')
        self.stamp('Z stores')
        self.zst = A.nvm

    def p2_rowbase(self, dst):
        self.A(f'''
        s_sub_u32 {s(S_T0)}, 64, {s(S_U2)}
        s_cmp_eq_u32 {s(S_U2)}, 0
        s_cselect_b32 {s(S_T0)}, 32, {s(S_T0)}
        s_cmp_ge_u32 {s(S_RQ)}, 2
        s_cselect_b32 {s(dst)}, {s(S_T0)}, {s(S_U2)}
        s_and_b32 {s(S_T0)}, {s(S_RQ)}, 1
        s_lshl_b32 {s(S_T0)}, {s(S_T0)}, 10
        s_add_u32 {s(dst)}, {s(dst)}, {s(S_T0)}
        ''')

    def bias_load(self):
        A = self.A
        A(f'''
        s_mul_i32 {s(S_T0)}, {s(S_FB)}, 224
        v_lshlrev_b32 v6, 3, {v(V_LANE)}
        s_mov_b64 exec, {(1<<28)-1}
        buffer_load_dwordx2 v[180:181], v6, {s(SRD_B1,4)}, {s(S_T0)} offen
        s_mov_b64 exec, -1
        ''')
    def bias_spread(self):
        A = self.A
        A(f'v_lshlrev_b32 v6, 2, {v(V_G)}')
        for ft in range(7):
            for d in range(2):
                A(f'ds_bpermute_b32 {v(V_BIAS+2*ft+d)}, v6, {v(180+d)} offset:{16*ft}')
    def fx_load(self):
        A = self.A
        A(f'''
        s_lshl_b32 {s(S_T0)}, {s(S_J)}, 8
        s_add_u32 {s(S_T0)}, {s(S_T0)}, {FX}
        v_and_b32 v6, 31, {v(V_LANE)}
        v_lshlrev_b32 v6, 3, v6
        buffer_load_dwordx2 v[182:183], v6, {s(SRD_WS,4)}, {s(S_T0)} offen sc1
        ''')
    def fx_eval(self):
        A = self.A
        A(f'''
        v_cmp_ne_u64 vcc, v[182:183], v[178:179]
        s_cmp_eq_u64 vcc, 0
        s_cselect_b32 {s(S_FAST)}, 1, 0
        ''')

    def p2(self):
        A = self.A
        ZF, TB, XR, SC, H = 16, 80, 112, 132, 208
        S_TB, S_PHI, S_MSK = 48, 49, 50
        self.p2_rowbase(S_TB)
        A(f'''
        v_lshl_add_u32 v11, {v(V_L15)}, 6, {s(S_TB)}
        s_lshl_b32 {s(S_T0)}, {s(S_W)}, 7
        s_sub_u32 {s(S_T0)}, 1024, {s(S_T0)}
        s_cmp_eq_u32 {s(S_W)}, 0
        s_cselect_b32 {s(S_T0)}, 512, {s(S_T0)}
        v_lshlrev_b32 v7, 10, v11
        s_mov_b64 exec, 0xffff
        buffer_load_ushort {v(XR+18)}, v7, {s(SRD_X,4)}, {s(S_T0)} offen
        s_mov_b64 exec, -1
        ''')
        self.bias_load()
        mb = A.nvm
        A.wait(vm=self.zst - 2)
        A(f'''
        s_add_u32 {s(S_T0)}, {s(S_WB)}, 16384
        v_add_u32 v6, {s(S_T0)}, v15
        v_xor_b32 v7, 64, v15
        v_add_u32 v7, {s(S_T0)}, v7
        v_xor_b32 v8, 0x70, v15
        v_add_u32 v8, {s(S_T0)}, v8
        v_xor_b32 v9, 0x30, v15
        v_add_u32 v9, {s(S_T0)}, v9
        ds_read_b128 {v(XR,4)}, v6
        ds_read_b128 {v(XR+4,4)}, v7
        ds_read_b128 {v(XR+8,4)}, v8 offset:2048
        ds_read_b128 {v(XR+12,4)}, v9 offset:2048
        v_lshrrev_b32 v6, 1, {v(V_L15)}
        v_sub_u32 v7, 8, {v(V_G)}
        v_and_b32 v7, 7, v7
        v_xor_b32 v7, v7, v6
        v_lshlrev_b32 v7, 4, v7
        v_lshl_add_u32 v7, {v(V_L15)}, 7, v7
        v_xor_b32 v8, 64, v7
        v_add_u32 v7, {s(S_T0)}, v7
        v_add_u32 v8, {s(S_T0)}, v8
        ds_read_u16 {v(XR+16)}, v7 offset:2048
        ds_read_u16 {v(XR+17)}, v8 offset:2048
        ''')
        A(f'''
        s_cmp_eq_u32 {s(S_U2)}, 0
        s_cselect_b32 {s(S_T1)}, 0, {f2u(-0.25)}
        s_cselect_b32 {s(S_T2)}, 0xffff0000, -1
        s_cselect_b32 {s(S_T3)}, 0xffff, -1
        s_cmp_ge_u32 {s(S_RQ)}, 2
        s_cselect_b32 {s(S_PHI)}, {s(S_T1)}, {f2u(0.25)}
        s_cselect_b32 {s(S_MSK)}, {s(S_T2)}, {s(S_T3)}
        v_cvt_f32_u32 v11, v11
        v_mul_f32 v11, {f2u(1/2048)}, v11
        s_lshl_b32 {s(S_T0)}, {s(S_RQ)}, 3
        v_add_u32 v10, {s(S_T0)}, {v(V_G)}
        ''')
        tl = []
        for half in range(2):
            b = SC
            for j in range(4):
                ks = 4 * half + j
                tl += [f'v_add_u32 v6, {4*ks}, v10', 'v_and_b32 v6, 31, v6', 'v_cvt_f32_u32 v6, v6',
                       f'v_mul_f32 {v(b+2*j)}, v6, v11', f'v_add_f32 {v(b+2*j+1)}, {s(S_PHI)}, {v(b+2*j)}']
            for j in range(8):
                tl += [f'v_cos_f32 {v(b+8+j)}, {v(b+j)}', f'v_sin_f32 {v(b+16+j)}, {v(b+j)}']
            for j in range(4):
                d = TB + 4 * (4 * half + j)
                tl += [f'v_cvt_pk_bf16_f32 {v(d)}, {v(b+8+2*j)}, {v(b+9+2*j)}',
                       f'v_cvt_pk_bf16_f32 {v(d+3)}, {v(b+16+2*j)}, {v(b+17+2*j)}',
                       f'v_and_b32 {v(d)}, {s(S_MSK)}, {v(d)}', f'v_and_b32 {v(d+3)}, {s(S_MSK)}, {v(d+3)}',
                       f'v_mov_b32 {v(d+2)}, {v(d)}', f'v_xor_b32 {v(d+1)}, 0x80008000, {v(d+3)}']
        np_ = self.opt.get('f1pos', 30)
        self.weave(tl[:np_], None, 1)
        A.wait(vm=self.zst, lg=A.nlg)
        self.setflag(S_F1, ' sc1')
        self.stamp('F1 set')
        bg = self.w1_ops(1, 0, 7, S_T2) + self.w1_ops(3, 0, 7, S_T2) + self.w1_ops(2, 0, 7, S_T2)
        nlate = self.opt.get('w1late', 0)
        late = bg[len(bg)-nlate:]; bg = bg[:len(bg)-nlate]
        self.weave(tl[np_:], bg, 8)
        A.wait(vm=mb)
        self.bias_spread()
        def unp(dst, r, hi):
            return f'v_and_b32 {v(dst)}, 0xffff0000, {v(r)}' if hi else f'v_lshlrev_b32 {v(dst)}, 16, {v(r)}'
        cl = [f'v_cmp_eq_u32 vcc, 0, {v(V_G)}', f'v_cndmask_b32 {v(XR+16)}, {v(XR+16)}, {v(XR+18)}, vcc',
              f's_cmp_eq_u32 {s(S_W)}, 0 @@ s_cselect_b64 {s(S_M,2)}, vcc, 0']
        for k in range(16): cl.append(unp(H + k, XR + k // 2, k & 1))
        for q1 in range(2):
            cl.append(unp(H + 16 + 8 * q1, XR + 16 + q1, 0))
            for j in range(1, 8): cl.append(unp(H + 16 + 8 * q1 + j, XR + 8 + 4 * q1 + (8 - j) // 2, (8 - j) & 1))
        cl.append(f'v_mov_b32 {v(XR+19)}, {v(H)}')
        self.weave(cl, bg, 8)
        self.weave(self.w2_addr_lines(), bg, 8)
        self.weave(f'''
        s_lshr_b32 {s(S_T0)}, {s(S_U2)}, 3
        s_lshl_b32 {s(S_T0)}, {s(S_T0)}, 11
        s_lshl_b32 {s(S_T1)}, {s(S_W)}, 9
        s_add_u32 {s(S_T0)}, {s(S_T0)}, {s(S_T1)}
        s_lshl_b32 {s(S_T0)}, {s(S_T0)}, {self.fsh}
        s_add_u32 {s(S_T0)}, {s(S_T0)}, {F1}
        v_lshl_add_u32 v10, {v(V_LANE)}, {3+self.fsh}, {s(S_T0)}
        s_lshl_b32 {s(S_T0)}, {s(S_U2)}, 16
        s_lshl_b32 {s(S_T1)}, {s(S_W)}, 14
        s_add_u32 {s(S_T0)}, {s(S_T0)}, {s(S_T1)}
        v_add_u32 v12, {s(S_T0)}, {v(V_L16)}
        v_add_u32 v13, 8192, v12
        s_lshl_b32 {s(S_T3)}, {s(S_RQ)}, 11
        ''', bg, 8)
        while bg: bg.pop(0)()
        self.fx_load()
        self.stamp('p2 prepoll')
        self.poll(10, 64, 8)
        self.stamp('p2 polled')
        zm = []
        def zld(kp):
            if kp: A(f's_add_u32 {s(S_T3)}, {s(S_T3)}, 2048\ns_and_b32 {s(S_T3)}, {s(S_T3)}, 0x1800')
            for kk in range(2):
                for q1 in range(2):
                    n = 4 * kp + 2 * kk + q1
                    A(f'buffer_load_dwordx4 {v(ZF+4*n,4)}, {v(12+q1)}, {s(SRD_WS,4)}, {s(S_T3)} offen offset:{kk*1024}{self.zldf}')
                    zm.append(A.nvm)
        for kp in range(3): zld(kp)
        self.fx_eval()
        pf = late + self.w1_ops(0, 0, 7, S_T2)
        for n in range(16):
            ks, q1 = n >> 1, n & 1
            A.wait(vm=zm[n])
            if n == 0: self.stamp('Z first')
            for et in range(2):
                for var in range(2):
                    acc = H + 16 * var + 8 * q1 + 4 * et
                    A(f'v_mfma_f32_16x16x16_bf16 {v(acc,4)}, {v(ZF+4*n+2*et,2)}, {v(TB+4*ks+2*var,2)}, {v(acc,4)}')
            if n == 1: zld(3)
            if n >= self.opt.get('pf2', 8) and pf: pf.pop(0)()
        self.stamp('Z landed')
        A(f'''
        s_lshl_b32 {s(S_T0)}, {s(S_W)}, 3
        s_add_u32 {s(S_T0)}, {s(S_T0)}, {L_S+4096}
        v_lshlrev_b32 v10, 5, {v(V_L15)}
        v_add_u32 v11, {s(S_T0)}, v10
        v_add_u32 v10, {s(S_SB)}, v10
        ''')
        while pf: pf.pop(0)()
        A(f'v_cndmask_b32 {v(H)}, {v(H)}, {v(XR+19)}, {s(S_M,2)}')
        A(f'v_pk_add_f32 v[6:7], {v(H,2)}, {v(H+2,2)}')
        A(f'v_pk_mul_f32 v[8:9], {v(H,2)}, {v(H,2)}')
        A(f'v_pk_fma_f32 v[8:9], {v(H+2,2)}, {v(H+2,2)}, v[8:9]')
        for k in range(4, 32, 2):
            A(f'v_pk_add_f32 v[6:7], v[6:7], {v(H+k,2)}')
            A(f'v_pk_fma_f32 v[8:9], {v(H+k,2)}, {v(H+k,2)}, v[8:9]')
        A(f'''
        v_add_f32 v6, v6, v7
        v_add_f32 v7, v8, v9
        v_mov_b32 v8, v6
        v_mov_b32 v9, v7
        v_permlane16_swap_b32 v6, v8
        v_permlane16_swap_b32 v7, v9
        v_add_f32 v6, v6, v8
        v_add_f32 v7, v7, v9
        v_mov_b32 v8, v6
        v_mov_b32 v9, v7
        v_permlane32_swap_b32 v6, v8
        v_permlane32_swap_b32 v7, v9
        v_add_f32 v6, v6, v8
        v_add_f32 v7, v7, v9
        v_mul_u32_u24 v8, {SPW}, {v(V_G)}
        v_add_u32 v11, v11, v8
        ds_write_b64 v11, v[6:7]
        s_lshl_b32 {s(S_T0)}, {s(S_U2)}, 2
        s_add_u32 {s(S_T0)}, {s(S_T0)}, {s(S_RQ)}
        s_lshl_b32 {s(S_T1)}, {s(S_T0)}, 14
        s_lshl_b32 {s(S_T2)}, {s(S_W)}, 12
        s_add_u32 {s(S_T1)}, {s(S_T1)}, {s(S_T2)}
        s_add_u32 {s(S_T1)}, {s(S_T1)}, {WS_HN}
        s_lshl_b32 {s(S_T2)}, {s(S_T0)}, 7
        s_add_u32 {s(S_T2)}, {s(S_T2)}, {WS_ST}
        s_lshl_b32 {s(S_T0)}, {s(S_T0)}, 5
        s_lshl_b32 {s(S_T3)}, {s(S_W)}, 3
        s_add_u32 {s(S_T0)}, {s(S_T0)}, {s(S_T3)}
        s_add_u32 {s(S_AM0)}, {s(S_T0)}, {F2}
        s_waitcnt lgkmcnt(0)
        s_barrier
        ds_read_b128 v[16:19], v10 offset:4096
        ds_read_b128 v[20:23], v10 offset:4112
        v_lshlrev_b32 v10, 3, {v(V_L15)}
        s_waitcnt lgkmcnt(0)
        v_pk_add_f32 v[16:17], v[16:17], v[18:19]
        v_pk_add_f32 v[20:21], v[20:21], v[22:23]
        v_pk_add_f32 v[16:17], v[16:17], v[20:21]
        v_mul_f32 v16, {f2u(1/512)}, v16
        v_mul_f32 v17, {f2u(1/512)}, v17
        v_fma_f32 v17, -v16, v16, v17
        v_max_f32 v17, 0, v17
        v_add_f32 v17, {f2u(1e-5)}, v17
        v_rsq_f32 v18, v17
        v_sqrt_f32 v17, v17
        v_mul_f32 v20, -v16, v18
        ''')
        for n in range(4):
            for k in range(0, 8, 2):
                r = H + 8 * n + k
                A(f'v_pk_fma_f32 {v(r,2)}, {v(r,2)}, v[18:19], v[20:21] op_sel_hi:[1,0,0]')
            for k in range(4):
                A(f'v_cvt_pk_bf16_f32 {v(24+4*n+k)}, {v(H+8*n+2*k)}, {v(H+8*n+2*k+1)}')
        def st(sc):
            for n in range(4):
                A(f'buffer_store_dwordx4 {v(24+4*n,4)}, {v(V_L16)}, {s(SRD_WS,4)}, {s(S_T1)} offen offset:{n*1024}{sc}')
            A(f'''
            s_mov_b64 exec, 0xffff
            buffer_store_dwordx2 v[16:17], v10, {s(SRD_WS,4)}, {s(S_T2)} offen{sc}
            s_mov_b64 exec, -1
            ''')
        self.dual(st, True)
        self.stamp('hn stores')
        m = A.nvm
        r1 = self.w2_ops(0, 6, S_SB)
        n0 = self.opt.get('r1pre', 6)
        pre = r1[:n0]
        self.p3_setup(pre)
        A.wait(vm=m)
        self.dual(lambda sc: self.setflag(S_AM0, sc))
        self.stamp('F2 set')
        for f in r1[n0:]: f()
        L = A.newlabel('noe')
        A(f'''
        s_or_b32 {s(S_T0)}, s2, {s(S_W)}
        s_cmp_lg_u32 {s(S_T0)}, 0
        s_cbranch_scc1 {L}
        s_mov_b32 {s(S_T0)}, {FE}
        ''')
        self.setflag(S_T0, ' sc1')
        A.label(L)

    def p2_idle(self):
        A = self.A
        self.bias_load()
        mb = A.nvm
        A(self.w2_addr_lines())
        A(f'''
        s_mul_i32 {s(S_T3)}, {s(S_W)}, {448*1024}
        s_lshl_b32 {s(S_T1)}, {s(S_FB)}, 13
        s_add_u32 {s(S_T3)}, {s(S_T3)}, {s(S_T1)}
        ''')
        A.wait(vm=self.zst)
        self.setflag(S_F1, ' sc1')
        self.stamp('F1 set')
        if self.opt.get('pt'):
            A(f'''
            s_lshl_b32 {s(S_T0)}, {s(S_FB)}, 2
            s_add_u32 {s(S_T0)}, {s(S_T0)}, {s(S_W)}
            s_lshl_b32 {s(S_T0)}, {s(S_T0)}, 12
            s_lshl_b32 {s(S_T1)}, {s(S_J)}, 18
            s_add_u32 {s(S_T0)}, {s(S_T0)}, {s(S_T1)}
            s_add_u32 {s(S_T0)}, {s(S_T0)}, {WS_HN}
            s_lshl_b32 {s(S_T1)}, {s(S_J)}, 11
            s_lshl_b32 {s(S_T2)}, {s(S_FB)}, 7
            s_add_u32 {s(S_T1)}, {s(S_T1)}, {s(S_T2)}
            s_add_u32 {s(S_T1)}, {s(S_T1)}, {WS_ST}
            ''')
            self.touch(140, SRD_WS, S_T0, 32, ' sc1')
            self.touch(141, SRD_WS, S_T1, 1, ' sc1')
        for f in self.w1_ops(0, 4, 7, S_T2): f()
        rest = 128 * 128 * (self.opt.get('t0', 32) + self.opt.get('t1', 48))
        nrest = max(0, -(-(385 * 3584 - rest) // (64 * 128)))
        if nrest:
            A(f'''
            s_lshl_b32 {s(S_T0)}, {s(S_FB)}, 2
            s_add_u32 {s(S_T0)}, {s(S_T0)}, {s(S_W)}
            s_mul_i32 {s(S_T0)}, {s(S_T0)}, {min(nrest,64)*128}
            s_add_u32 {s(S_T0)}, {s(S_T0)}, {64*3584 + rest}
            ''')
            assert nrest <= 64
            self.touch(206, SRD_W1, S_T0, nrest)
        for i in range(self.opt.get('nt2', 2)):
            self.touch(130 + i, SRD_W2, S_T3, 64)
            A(f's_add_u32 {s(S_T3)}, {s(S_T3)}, 131072')
        A(f'''
        s_lshl_b32 {s(S_T0)}, {s(S_J)}, 10
        s_add_u32 {s(S_T0)}, {s(S_T0)}, {F3}
        buffer_load_dwordx4 v[136:139], {v(V_L16)}, {s(SRD_WS,4)}, {s(S_T0)} offen sc1
        ''')
        if self.opt.get('pt') == 2:
            A(f'''
            s_lshl_b32 {s(S_T0)}, {s(S_FB)}, 2
            s_add_u32 {s(S_T0)}, {s(S_T0)}, {s(S_W)}
            s_mul_i32 {s(S_T0)}, {s(S_T0)}, {112*128}
            s_mul_i32 {s(S_T1)}, {s(S_J)}, {896*1024}
            s_add_u32 {s(S_T0)}, {s(S_T0)}, {s(S_T1)}
            s_add_u32 {s(S_T0)}, {s(S_T0)}, {WS_R}
            s_add_u32 {s(S_T1)}, {s(S_T0)}, 8192
            ''')
            self.touch(142, SRD_WS, S_T0, 64, ' sc1')
            self.touch(143, SRD_WS, S_T1, 48, ' sc1')
        self.fx_load()
        A.wait(vm=mb)
        self.bias_spread()
        for f in self.w1_ops(1, 0, 7, S_T2) + self.w1_ops(2, 0, 7, S_T2) + self.w1_ops(3, 0, 7, S_T2): f()
        m = A.nvm
        A('s_barrier')
        r1 = self.w2_ops(0, 6, S_SB)
        self.p3_setup(r1)
        A.wait(vm=m)
        self.stamp('F2 set')
        self.fx_eval()

    def p3_setup(self, bg):
        A = self.A
        ACC = 40
        ln = f'''
        v_lshrrev_b32 v6, 2, {v(V_LANE)}
        v_mul_u32_u24 v6, 224, v6
        v_and_b32 v7, 3, {v(V_LANE)}
        v_lshl_add_u32 v10, v7, 3, v6
        v_add_u32 v11, {2*WPW}, v10
        s_lshl_b32 {s(S_T0)}, {s(S_RB)}, 3
        s_lshl_b32 {s(S_T1)}, {s(S_W)}, 1
        s_add_u32 {s(S_T0)}, {s(S_T0)}, {s(S_T1)}
        s_lshl_b32 {s(S_T2)}, {s(S_T0)}, 14
        s_add_u32 {s(S_T2)}, {s(S_T2)}, {WS_HN}
        v_add_u32 v12, {s(S_T2)}, {v(V_L16)}
        v_add_u32 v13, 16384, v12
        s_lshl_b32 {s(S_T0)}, {s(S_T0)}, 5
        s_add_u32 {s(S_T3)}, {s(S_T0)}, {F2}
        v_lshl_add_u32 v15, {v(V_LANE)}, 3, {s(S_T3)}
        v_lshrrev_b32 v6, 5, {v(V_LANE)}
        v_lshlrev_b32 v6, 10, v6
        v_bfe_u32 v7, {v(V_LANE)}, 2, 2
        v_lshl_add_u32 v6, v7, 7, v6
        v_and_b32 v8, 1, {v(V_LANE)}
        v_lshl_add_u32 v6, v8, 5, v6
        v_bfe_u32 v8, {v(V_LANE)}, 1, 1
        v_lshl_add_u32 v6, v8, 3, v6
        v_bfe_u32 v8, {v(V_LANE)}, 4, 1
        v_lshl_add_u32 v6, v8, 4, v6
        v_bfe_u32 v8, {v(V_LANE)}, 3, 1
        v_lshl_add_u32 v6, v8, 6, v6
        s_and_b32 {s(S_T0)}, {s(S_W)}, 2
        s_lshl_b32 {s(S_T0)}, {s(S_T0)}, 5
        v_xor_b32 v6, {s(S_T0)}, v6
        v_add_u32 v230, {s(S_SB)}, v6
        v_add_u32 v232, {s(S_WB)}, v6
        v_xor_b32 v6, 64, v6
        v_add_u32 v231, {s(S_SB)}, v6
        v_add_u32 v233, {s(S_WB)}, v6
        s_waitcnt lgkmcnt(0)
        '''.strip().split('\n')
        ln = [x.strip() for x in ln]
        for ft in range(7):
            for tt in range(2):
                c = ACC + 8 * ft + 4 * tt
                ln += [f'v_lshlrev_b32 {v(c)}, 16, {v(V_BIAS+2*ft)}', f'v_and_b32 {v(c+1)}, 0xffff0000, {v(V_BIAS+2*ft)}',
                       f'v_lshlrev_b32 {v(c+2)}, 16, {v(V_BIAS+1+2*ft)}', f'v_and_b32 {v(c+3)}, 0xffff0000, {v(V_BIAS+1+2*ft)}']
        self.weave(ln, bg, 7)
        while bg: bg.pop(0)()

    def p3(self):
        A = self.A
        ACC, AF, HN = 40, 96, 96
        V_SR = 230
        A('s_barrier')
        self.stamp('p3 prepoll')
        self.poll(15, 8, 8)
        self.stamp('p3 polled')
        hm = {}
        def hld(ks):
            if ks % 4 == 0: A(f's_mov_b32 {s(S_T2)}, {(ks//4)*4096}')
            for tt in range(2):
                A(f'buffer_load_dwordx4 {a(HN+8*ks+4*tt,4)}, {v(12+tt)}, {s(SRD_WS,4)}, {s(S_T2)} offen offset:{(ks%4)*1024}{self.ldf}')
            hm[ks] = A.nvm
        LA = self.opt.get('la3', 5)
        for ks in range(LA): hld(ks)
        def trs(rnd):
            ops = []
            for loc in range(6):
                for mt in range(2):
                    for hh in range(2):
                        ops.append(lambda loc=loc, mt=mt, hh=hh: self.w2_rd1(a(48*rnd + 8*loc + 4*mt + 2*hh, 2), V_SR, loc, mt, hh))
            return ops
        for n, f in enumerate(trs(0)):
            f()
            if n == 11: A('s_waitcnt lgkmcnt(4)')
        D, R = 6, 8
        lm = {}
        def rd(p, hh):
            ks, ft = divmod(p, 7)
            wp, w = ks >> 2, ks & 3
            off = (w & 1) * WPW + wp * 7168 + hh * 3584 + ft * 32
            A(f'ds_read_b64_tr_b16 {v(AF+4*(p%R)+2*hh,2)}, {v(10 + (w >> 1))} offset:{off}')
            lm[p] = A.nlg
        A('s_waitcnt lgkmcnt(2)')
        for p in range(D): rd(p, 0); rd(p, 1)
        nxt = LA
        HP = self.opt.get('hp', 4)
        r2 = self.w2_ops(6, 6, S_SB); r3 = self.w2_ops(12, 6, S_SB); t2 = trs(1)
        tch = []
        if self.opt.get('nt2', 2) < 4:
            k0 = 8 * self.opt.get('nt2', 2); lanes = (28 - k0) * 4
            assert lanes <= 64
            def f():
                A(f'''
                s_mul_i32 {s(S_T0)}, {s(S_W)}, {448*1024}
                s_mul_i32 {s(S_T1)}, {s(S_N)}, {lanes*128}
                s_add_u32 {s(S_T0)}, {s(S_T0)}, {s(S_T1)}
                s_add_u32 {s(S_T0)}, {s(S_T0)}, {k0*16384}
                ''')
                self.touch(207, SRD_W2, S_T0, lanes)
            tch.append(f)
        if self.opt.get('pt') == 1:
            def f2():
                A(f'''
                s_lshl_b32 {s(S_T0)}, {s(S_RB)}, 2
                s_add_u32 {s(S_T0)}, {s(S_T0)}, {s(S_W)}
                s_mul_i32 {s(S_T1)}, {s(S_T0)}, {112*1024}
                s_mul_i32 {s(S_T0)}, {s(S_FB)}, 7168
                s_add_u32 {s(S_T1)}, {s(S_T1)}, {s(S_T0)}
                s_add_u32 {s(S_T1)}, {s(S_T1)}, {WS_R}
                ''')
                self.touch(206, SRD_WS, S_T1, 56, ' sc1')
            tch.insert(0, f2)
        r2m = None; t2m = None; r2p = None
        for p in range(112):
            ks, ft = divmod(p, 7)
            need_vm = hm[ks] if ft == 0 else None
            if p % 2 == 0: A.wait(vm=need_vm, lg=lm[min(p + 1, 111)])
            elif need_vm is not None: A.wait(vm=need_vm)
            for tt in range(2):
                c = ACC + 8 * ft + 4 * tt
                A(f'v_mfma_f32_16x16x32_bf16 {v(c,4)}, {v(AF+4*(p%R),4)}, {a(HN+8*ks+4*tt,4)}, {v(c,4)}')
                if p + D < 112: rd(p + D, tt)
            if p % 2 == 0: continue
            if nxt < 16:
                if p % HP == HP - 1: hld(nxt); nxt += 1
            elif r2:
                r2.pop(0)(); r2m = A.nvm; r2p = p
            elif tch: tch.pop(0)()
            elif t2:
                if p < r2p + self.opt.get('t2gap', 8): continue
                if len(t2) == 24: A.wait(vm=r2m)
                for _ in range(3): t2.pop(0)()
                t2m = A.nlg
            elif r3 and lm[p] > t2m:
                r3.pop(0)()
        self.stamp('p3 mfma done')
        A('s_barrier')
        assert not t2
        bg = r3 + self.w2_ops(18, 10, S_WB)
        print('r3 left', len(r3))
        A(f'''
        s_lshl_b32 {s(S_T0)}, {s(S_RB)}, 2
        s_add_u32 {s(S_T0)}, {s(S_T0)}, {s(S_W)}
        s_mul_i32 {s(S_T1)}, {s(S_T0)}, {112*1024}
        s_mul_i32 {s(S_T2)}, {s(S_FB)}, 7168
        s_add_u32 {s(S_T1)}, {s(S_T1)}, {s(S_T2)}
        s_add_u32 {s(S_T1)}, {s(S_T1)}, {WS_R}
        s_add_u32 {s(S_T2)}, {s(S_T1)}, 4096
        s_lshr_b32 {s(S_T3)}, {s(S_T0)}, 1
        s_lshl_b32 {s(S_T3)}, {s(S_T3)}, 8
        s_lshl_b32 {s(S_AM0)}, {s(S_FB)}, 4
        s_add_u32 {s(S_T3)}, {s(S_T3)}, {s(S_AM0)}
        s_and_b32 {s(S_T0)}, {s(S_T0)}, 1
        s_lshl_b32 {s(S_T0)}, {s(S_T0)}, 3
        s_add_u32 {s(S_T0)}, {s(S_T0)}, {s(S_T3)}
        s_add_u32 {s(S_AM0)}, {s(S_T0)}, {F3}
        ''')
        A.quiesce(8)
        def epi(sc):
            q = list(bg)
            for ft in range(7):
                c = ACC + 8 * ft; o = 96 + 4 * ft
                ln = [f'v_mul_f32 {v(c+i)}, {v(c+i)}, |{v(c+i)}|' for i in range(8)]
                ln += [f'v_cvt_pk_bf16_f32 {v(o+i)}, {v(c+2*i)}, {v(c+2*i+1)}' for i in range(4)]
                ln += [f'v_pk_max_i16 {v(o+i)}, {v(o+i)}, 0' for i in (0, 2, 1, 3)]
                self.weave(ln, q, self.opt.get('epiw', 16))
                A(f'v_permlane16_swap_b32 {v(o)}, {v(o+2)}')
                A(f'v_permlane16_swap_b32 {v(o+1)}, {v(o+3)}')
                A(f'buffer_store_dwordx4 {v(o,4)}, {v(V_L16)}, {s(SRD_WS,4)}, {s(S_T1 if ft < 4 else S_T2)} offen offset:{(ft%4)*1024}{sc}')
            self.wleft = q
        self.dual(epi, True)
        self.stamp('r stores')
        self.rst = A.nvm

    def p4(self):
        A = self.A
        ACC, BASE, AF, RV = 16, 80, 96, 128
        wops = self.wleft
        S_MIR = 51
        self.weave(f'''
        s_and_b32 {s(S_T0)}, {s(S_W)}, 1
        s_lshl_b32 {s(S_T0)}, {s(S_T0)}, 1
        s_lshl_b32 {s(S_T1)}, {s(S_U4)}, 2
        s_add_u32 {s(S_T0)}, {s(S_T0)}, {s(S_T1)}
        v_bfe_u32 v6, {v(V_LANE)}, 4, 1
        v_add_u32 v6, {s(S_T0)}, v6
        v_lshlrev_b32 v7, 7, v6
        v_lshl_add_u32 v7, {v(V_L15)}, 3, v7
        v_lshlrev_b32 v6, 14, v6
        v_lshl_add_u32 v6, {v(V_L15)}, 4, v6
        s_lshl_b32 {s(S_T0)}, {s(S_CB)}, 2
        s_and_b32 {s(S_T1)}, {s(S_W)}, 2
        s_add_u32 {s(S_T0)}, {s(S_T0)}, {s(S_T1)}
        v_lshrrev_b32 v8, 5, {v(V_LANE)}
        v_add_u32 v8, {s(S_T0)}, v8
        v_lshlrev_b32 v12, 5, v8
        s_cmp_ge_u32 {s(S_CB)}, 4 @@ s_cselect_b64 vcc, -1, 0 @@ s_cselect_b32 {s(S_MIR)}, 2048, 0
        v_sub_u32 v9, 31, v8
        v_cndmask_b32 v9, v8, v9, vcc
        v_lshrrev_b32 v10, 2, v9
        v_and_b32 v11, 3, v9
        v_lshlrev_b32 v10, 12, v10
        v_lshl_add_u32 v10, v11, 9, v10
        v_add_u32 v10, v6, v10
        v_add_u32 v9, 1, v9
        v_bfe_u32 v11, v9, 2, 2
        v_and_b32 v9, 3, v9
        v_lshlrev_b32 v11, 12, v11
        v_lshl_add_u32 v11, v9, 9, v11
        v_add_u32 v11, v6, v11
        s_add_u32 {s(S_T0)}, {s(S_MIR)}, {WS_HN}
        s_mov_b32 {s(S_T1)}, {WS_ST}
        ''', wops, self.opt.get('p4w', 5))
        A.wait(vm=self.rst)
        self.dual(lambda sc: self.setflag(S_AM0, sc))
        self.stamp('F3 set')
        A(f'''
        buffer_load_dwordx4 v[208:211], v10, {s(SRD_WS,4)}, {s(S_T0)} offen sc1
        buffer_load_dwordx4 v[212:215], v10, {s(SRD_WS,4)}, {s(S_T0)} offen offset:256 sc1
        buffer_load_ushort v216, v11, {s(SRD_WS,4)}, {s(S_T0)} offen sc1
        buffer_load_dwordx2 v[218:219], v7, {s(SRD_WS,4)}, {s(S_T1)} offen sc1
        buffer_load_dwordx4 v[220:223], v12, {s(SRD_B2,4)}, 0 offen
        buffer_load_dwordx4 v[224:227], v12, {s(SRD_B2,4)}, 0 offen offset:16
        ''')
        V_OO = 228
        self.weave(f'''
        s_sub_u32 {s(S_T0)}, 64, {s(S_U4)}
        s_cmp_eq_u32 {s(S_U4)}, 0 @@ s_cselect_b32 {s(S_T0)}, 32, {s(S_T0)}
        s_bitcmp1_b32 {s(S_W)}, 0 @@ s_cselect_b32 {s(S_T0)}, {s(S_T0)}, {s(S_U4)}
        s_lshl_b32 {s(S_T0)}, {s(S_T0)}, 10
        v_and_b32 v6, 31, {v(V_LANE)}
        v_lshlrev_b32 v6, 16, v6
        v_add3_u32 {v(V_OO)}, v6, v12, {s(S_T0)}
        s_lshl_b32 {s(S_T0)}, {s(S_U4)}, 8
        s_lshl_b32 {s(S_T1)}, {s(S_W)}, 6
        s_add_u32 {s(S_T0)}, {s(S_T0)}, {s(S_T1)}
        s_add_u32 {s(S_T0)}, {s(S_T0)}, {F3}
        v_lshl_add_u32 v6, {v(V_LANE)}, 3, {s(S_T0)}
        s_mul_i32 {s(S_T2)}, {s(S_U4)}, {2*112*1024}
        s_mul_i32 {s(S_T1)}, {s(S_W)}, {28*1024}
        s_add_u32 {s(S_T2)}, {s(S_T2)}, {s(S_T1)}
        s_add_u32 {s(S_T2)}, {s(S_T2)}, {WS_R}
        s_bitcmp1_b32 {s(S_W)}, 0 @@ s_cselect_b32 {s(S_T0)}, {112*1024}, 0 @@ s_cselect_b32 {s(S_T1)}, 0, {112*1024}
        s_add_u32 {s(S_T0)}, {s(S_T0)}, {s(S_T2)}
        s_add_u32 {s(S_T1)}, {s(S_T1)}, {s(S_T2)}
        v_add_u32 v12, {s(S_T0)}, {v(V_L16)}
        v_add_u32 v13, {s(S_T1)}, {v(V_L16)}
        ''', wops, 4)
        while wops: wops.pop(0)()
        self.stamp('p4 prepoll')
        self.poll(6, 8, 8)
        self.stamp('p4 polled')
        def rreg(i, nt):
            n = 2 * i + nt
            return v(RV + 4 * n, 4) if n < 20 else a(96 + 4 * (n - 20), 4)
        rm = {}
        def rld(i):
            k = i
            if k % 4 == 0: A(f's_mov_b32 {s(S_T2)}, {(k//4)*4096}')
            for nt in range(2):
                A(f'buffer_load_dwordx4 {rreg(i,nt)}, {v(12+nt)}, {s(SRD_WS,4)}, {s(S_T2)} offen offset:{(k%4)*1024}{self.ldf}')
            rm[i] = A.nvm
        LA = self.opt.get('la4', 5)
        for i in range(LA): rld(i)
        def unp(dst, r, hi):
            if hi: A(f'v_and_b32 {v(dst)}, 0xffff0000, {v(r)}')
            else: A(f'v_lshlrev_b32 {v(dst)}, 16, {v(r)}')
        LM = A.newlabel('mir'); LJ = A.newlabel('join')
        A(f's_cmp_ge_u32 {s(S_CB)}, 4\ns_cbranch_scc1 {LM}')
        for k in range(16): unp(BASE + k, 208 + k // 2, k & 1)
        A(f's_branch {LJ}')
        A.label(LM)
        unp(BASE, 216, 0)
        for k in range(1, 16): unp(BASE + k, 208 + (16 - k) // 2, (16 - k) & 1)
        A.label(LJ)
        for k in range(16):
            unp(6, 220 + k // 2, k & 1)
            A(f'v_add_f32 v6, v6, v218')
            A(f'v_fma_f32 {v(BASE+k)}, {v(BASE+k)}, v219, v6')
        def areg(i, mt):
            return a(8 * i + 4 * mt, 4) if i < 12 else v(AF + 8 * (i % 4) + 4 * mt, 4)
        lm = {}
        def rd(i, mt):
            base = AF + 8 * (i % 4) + 4 * mt
            for hh in range(2):
                if i < 18: self.w2_rd1(v(base + 2*hh, 2), 230, i - 12, mt, hh)
                else: self.w2_rd1(v(base + 2*hh, 2), 232, i - 18, mt, hh)
            lm[i] = A.nlg
        D = 3
        for i in range(28):
            A.wait(vm=rm[i], lg=lm.get(i))
            for mt in range(2):
                for nt in range(2):
                    c = ACC + 32 * mt + 16 * nt
                    cin = '0' if i == 0 else v(c, 16)
                    A(f'v_mfma_f32_32x32x16_bf16 {v(c,16)}, {areg(i,mt)}, {rreg(i,nt)}, {cin}')
                    if mt == 0 and nt == 0 and i + LA < 28: rld(i + LA)
                if 12 <= i + D < 28: rd(i + D, mt)
        self.stamp('p4 mfma done')
        A(f'v_add_u32 v6, {s(S_SB)}, {v(V_L16)}')
        for T in range(1, 4):
            A(f'''
            s_xor_b32 {s(S_T0)}, {s(S_W)}, {T}
            s_mul_i32 {s(S_T0)}, {s(S_T0)}, {SPW}
            s_add_u32 {s(S_T0)}, {s(S_T0)}, {L_S + (T-1)*4096}
            v_add_u32 {v(6+T)}, {s(S_T0)}, {v(V_L16)}
            ''')
        for T in range(1, 4):
            for qq in range(4):
                A(f'ds_write_b128 v6, {v(ACC+16*T+4*qq,4)} offset:{(T-1)*4096 + qq*1024}')
        for k in range(0, 16, 2):
            A(f'v_pk_add_f32 {v(BASE+k,2)}, {v(BASE+k,2)}, {v(ACC+k,2)}')
        A('s_waitcnt lgkmcnt(0)\ns_barrier')
        for T in range(1, 4):
            for qq in range(4):
                A(f'ds_read_b128 {v(128+16*(T-1)+4*qq,4)}, {v(6+T)} offset:{qq*1024}')
        for sl in range(3):
            A(f's_waitcnt lgkmcnt({8-4*sl})')
            for k in range(0, 16, 2):
                A(f'v_pk_add_f32 {v(BASE+k,2)}, {v(BASE+k,2)}, {v(128+16*sl+k,2)}')
        for k in range(8):
            A(f'v_cvt_pk_bf16_f32 {v(96+k)}, {v(BASE+2*k)}, {v(BASE+2*k+1)}')
        A(f'buffer_store_dwordx4 v[96:99], {v(V_OO)}, {s(SRD_OUT,4)}, 0 offen{self.outf}')
        A(f'buffer_store_dwordx4 v[100:103], {v(V_OO)}, {s(SRD_OUT,4)}, 0 offen offset:16{self.outf}')

    def probe_end(self):
        A = self.A
        a_, b_ = self.opt['probe'].split('-')
        if b_ == 'end':
            A('s_waitcnt vmcnt(0)'); self.stamp('end')
        A(f'''
        s_waitcnt lgkmcnt(0)
        s_sub_u32 {s(S_T0)}, {s(S_TS+4)}, {s(S_TS if a_ == 'start' else S_TS+2)}
        s_cmp_ge_u32 {s(S_N)}, {self.opt.get('pmax', 32)}
        s_cselect_b32 {s(S_T0)}, 0, {s(S_T0)}
        s_min_u32 {s(S_T0)}, {s(S_T0)}, 4000
        s_lshl_b32 {s(S_T0)}, {s(S_T0)}, 2
        s_add_u32 {s(S_T0)}, {s(S_T0)}, 4000
        s_add_u32 {s(S_T0)}, {s(S_T0)}, {s(S_TS)}
        L_pspin:
        s_memrealtime {s(S_TS+6,2)}
        s_waitcnt lgkmcnt(0)
        s_sub_u32 {s(S_T1)}, {s(S_TS+6)}, {s(S_T0)}
        s_cmp_lt_i32 {s(S_T1)}, 0
        s_cbranch_scc1 L_pspin
        ''')

    def dump_ts(self):
        if self.opt.get('probe'): return self.probe_end()
        if not self.diag: return
        A = self.A
        A('s_waitcnt vmcnt(0)')
        self.stamp('end')
        A(f'''
        s_lshl_b32 {s(S_T0)}, s2, 2
        s_add_u32 {s(S_T0)}, {s(S_T0)}, {s(S_W)}
        s_lshl_b32 {s(S_T0)}, {s(S_T0)}, 7
        s_add_u32 {s(S_T0)}, {s(S_T0)}, {WS_TS}
        s_getreg_b32 {s(S_T1)}, hwreg(HW_REG_XCC_ID)
        s_waitcnt lgkmcnt(0)
        s_mov_b64 exec, 1
        ''')
        for i in range(20): A(f'v_mov_b32 {v(16+i)}, {s(S_TS+2*i)}')
        A(f'v_mov_b32 v40, {s(S_T1)}')
        A(f'v_mov_b32 v41, {s(S_FAST)}')
        for i in range(5):
            A(f'buffer_store_dwordx4 {v(16+4*i,4)}, off, {s(SRD_WS,4)}, {s(S_T0)} offset:{16*i}')
        A(f'buffer_store_dwordx2 v[40:41], off, {s(SRD_WS,4)}, {s(S_T0)} offset:80')

    def build(self):
        A = self.A
        self.p1()
        LI = A.newlabel('idle'); LJ = A.newlabel('p3')
        A(f's_cmp_ge_u32 {s(S_N)}, 16\ns_cbranch_scc1 {LI}')
        n0, l0 = A.nvm, A.nlg
        self.p2()
        A(f's_branch {LJ}')
        A.label(LI)
        A.nvm, A.nlg = n0, l0
        self.p2_idle()
        A.label(LJ)
        self.p3()
        self.p4()
        self.dump_ts()
        hdr = f'''; FNet (2D DFT, factored) + LayerNorms + squared-ReLU FFN, one persistent launch.
; @launch grid=(256,1,1) block=(256,1,1) lds=163840
''' + (f'; names: {",".join(self.names)}\n' if self.diag else '') + f'''.amdgcn_target "amdgcn-amd-amdhsa--gfx950"
.text
.globl {KNAME}
.p2align 8
.type {KNAME},@function
{KNAME}:
'''
        ftr = f'''L_end:
    s_endpgm
.section .rodata,"a"
.p2align 6
.amdhsa_kernel {KNAME}
  .amdhsa_next_free_vgpr 512
  .amdhsa_next_free_sgpr 102
  .amdhsa_accum_offset 256
  .amdhsa_group_segment_fixed_size 0
  .amdhsa_kernarg_size 104
  .amdhsa_user_sgpr_count 2
  .amdhsa_user_sgpr_kernarg_segment_ptr 1
  .amdhsa_system_sgpr_workgroup_id_x 1
.end_amdhsa_kernel
'''
        return hdr + A.text() + ftr

if __name__ == '__main__':
    out = sys.argv[1]
    opt = {}
    for x in sys.argv[2:]:
        if '=' in x:
            k, val = x.split('='); opt[k] = int(val) if val.lstrip('-').isdigit() else val.replace('_', ' ')
    g = Gen(diag='diag' in sys.argv[2:], opt=opt)
    t = g.build()
    open(out, 'w').write(t)
    print('nops inserted', g.A.nops, 'stamps', len(g.names))
```

```python
import sys
from asmlib import *

KNAME = 'sequential_preLN__spectral_fnet__dense_activation_squared_relu__prompt_kernel'
WS_Z, WS_HN, WS_R, WS_ST, WS_FL, WS_TS = 0, 2 << 20, 4 << 20, 12 << 20, 13 << 20, 14 << 20
WS_SIZE = 16 << 20
F1 = WS_FL + 0x10000
F2 = WS_FL + 0x2000
F3 = WS_FL + 0x4000
FX = WS_FL + 0x6000
FE = WS_FL + 0x7000
WPW = 28672
L_S = 114688
SPW = 12288
L_TAB, L_EXC = L_S, L_S + 32768
S_W = 3
S_T0, S_T1, S_T2, S_T3 = 4, 5, 6, 7
SRD_X, SRD_W1, SRD_W2, SRD_OUT, SRD_WS, SRD_B1, SRD_B2 = 8, 12, 16, 20, 24, 28, 32
S_CNT, S_FAST = 36, 37
S_F1 = S_CNT
S_J, S_N, S_S1, S_Q, S_U2, S_RQ, S_FB, S_RB, S_CB, S_XB = 38, 39, 40, 41, 42, 43, 44, 45, 46, 47
S_U4 = S_S1
S_XO = 48
S_W2S, S_AM0, S_BSO, S_BM0 = 52, 53, 54, 55
SRD_B = 56
S_M = 60
S_TS = 62
S_WB, S_SB = 0, 1
V_LANE, V_L15, V_G, V_L16, V_TAG = 0, 1, 2, 3, 4
V_W2A = 200
V_L128 = 14
V_W1A = 240
V_BIAS = 184


class TAsm(Asm):
    def __init__(self):
        super().__init__(); self.nvm = 0; self.nlg = 0
    def i(self, text):
        super().i(text)
        c = self.hist[-1]
        if c.is_vmem: self.nvm += 1
        if c.is_ds: self.nlg += 1
    def wait(self, vm=None, lg=None):
        p = []
        if vm is not None: p.append(f'vmcnt({min(63, self.nvm - vm)})')
        if lg is not None: p.append(f'lgkmcnt({min(15, self.nlg - lg)})')
        self('s_waitcnt ' + ' '.join(p))

class Gen:
    def __init__(self, diag=False, opt=None):
        self.A = TAsm(); self.diag = diag; self.nts = 0; self.names = []
        self.opt = opt or {}
        self.fsh = self.opt.get('fsh', 4)
        fl = lambda k, d: (' ' + self.opt[k]).rstrip() if self.opt.get(k, 'pl') != 'pl' else ('' if k in self.opt else d)
        self.stf = fl('stf', ''); self.ldf = fl('ldf', ' sc1'); self.outf = fl('outf', ''); self.zldf = fl('zldf', ' sc1')
        self.skip = {'kernarg', 'Z first'} if not self.opt.get('early') else {'p4 prepoll', 'F3 set'}

    def stamp(self, name, idx=None):
        pr = self.opt.get('probe')
        if pr:
            a_, b_ = pr.split('-')
            if name == 'start': self.A(f's_memrealtime {s(S_TS, 2)}')
            if name == a_ and name != 'start': self.A(f's_memrealtime {s(S_TS+2, 2)}')
            if name == b_: self.A(f's_memrealtime {s(S_TS+4, 2)}')
            return
        if self.diag and name not in self.skip:
            if name in self.names: idx = self.names.index(name)
            else:
                idx = len(self.names); self.names.append(name)
            assert idx < 20
            self.A(f'{"s_memtime" if self.opt.get("cyc") else "s_memrealtime"} {s(S_TS + 2*idx, 2)}')

    def weave(self, lines, bg, every):
        if isinstance(lines, str): lines = [x.strip() for x in lines.strip().split('\n') if x.strip()]
        for n, x in enumerate(lines):
            self.A(x.replace(' @@ ', '\n'))
            if bg and (n + 1) % every == 0: bg.pop(0)()

    def srd(self, base, nbytes):
        self.A(f's_mov_b32 {s(base+2)}, {nbytes}\ns_mov_b32 {s(base+3)}, 0x20000')

    def poll(self, vaddr, nl, vtmp):
        A = self.A
        L = A.newlabel('poll'); D = A.newlabel('polld')
        if nl < 64: A(f's_mov_b64 exec, {(1<<nl)-1}')
        A(f's_mov_b32 {s(S_CNT)}, 0x20000')
        A.label(L)
        A(f'buffer_load_dwordx2 {v(vtmp,2)}, {v(vaddr)}, {s(SRD_WS,4)}, 0 offen sc1')
        A(f's_sub_u32 {s(S_CNT)}, {s(S_CNT)}, 1')
        A(f's_cbranch_scc1 {D}')
        A('s_waitcnt vmcnt(0)')
        A(f'v_cmp_ne_u64 vcc, {v(vtmp,2)}, {v(V_TAG,2)}')
        A(f's_cbranch_vccnz {L}')
        A.label(D)
        A('s_waitcnt vmcnt(0)')
        if nl < 64: A('s_mov_b64 exec, -1')

    def setflag(self, soff, sc):
        A = self.A
        A('s_mov_b64 exec, 1')
        A(f'buffer_store_dwordx2 {v(V_TAG,2)}, off, {s(SRD_WS,4)}, {s(soff)}{sc}')
        A('s_mov_b64 exec, -1')

    def dual(self, fn, data=False):
        A = self.A
        if self.opt.get('nofast') or (data and self.opt.get('hyb')):
            fn(' sc1'); return
        LS = A.newlabel('slow'); LJ = A.newlabel('dj')
        A(f's_cmp_eq_u32 {s(S_FAST)}, 0\ns_cbranch_scc1 {LS}')
        n0, l0 = A.nvm, A.nlg
        fn(self.stf if data else '')
        A(f's_branch {LJ}')
        A.label(LS)
        A.nvm, A.nlg = n0, l0
        fn(' sc1')
        A.label(LJ)

    def w1_addr_setup(self):
        A = self.A; vdst = V_W1A
        A(f'''
        s_and_b32 {s(S_T0)}, {s(S_W)}, 1
        s_lshl_b32 {s(S_T0)}, {s(S_T0)}, 5
        s_mul_i32 {s(S_T1)}, {s(S_FB)}, 224
        s_mov_b32 {s(S_T2)}, 4682
        s_cmp_ge_u32 {s(S_W)}, 2
        s_cselect_b64 vcc, -1, 0
        s_movk_i32 {s(S_T3)}, 3584
        ''')
        for i in range(7):
            A(f'''
            v_add_u32 v6, {64*i}, {v(V_LANE)}
            v_mul_u32_u24 v7, {s(S_T2)}, v6
            v_lshrrev_b32 v7, 16, v7
            v_mul_u32_u24 v8, 14, v7
            v_sub_u32 v8, v6, v8
            v_bfe_u32 v9, v7, 2, 2
            v_and_b32 v10, 3, v7
            v_lshl_add_u32 v9, v9, 3, v10
            v_lshrrev_b32 v10, 4, v7
            v_lshl_add_u32 v9, v10, 2, v9
            v_add_u32 v9, {s(S_T0)}, v9
            v_sub_u32 v10, 320, v9
            v_cndmask_b32 v10, v9, v10, vcc
            v_lshl_add_u32 v8, v8, 4, {s(S_T1)}
            v_mad_u32_u24 {v(vdst+i)}, v10, {s(S_T3)}, v8
            s_add_u32 {s(S_T1)}, {s(S_T1)}, {3072 if i == 3 else -1024}
            ''')
            if i == 0:
                A(f'''
                v_mov_b32 v11, 320
                v_cmp_eq_u32 {s(S_M,2)}, v11, v10
                v_mov_b32 v11, 64
                v_cndmask_b32 v10, v10, v11, {s(S_M,2)}
                v_mad_u32_u24 {v(vdst+7)}, v10, {s(S_T3)}, v8
                ''')
    def w1_soff(self, dst, wp):
        self.A(f'''
        s_cmp_ge_u32 {s(S_W)}, 2
        s_mov_b32 {s(dst)}, {64*wp*3584}
        s_cselect_b32 {s(dst)}, {(3-wp)*64*3584}, {s(dst)}
        ''')
    def w1_ops(self, wp, i0, i1, sreg):
        A = self.A; ops = []
        for i in range(i0, i1):
            def f(i=i):
                if i == i0 or i == 4: A(f's_add_u32 m0, {s(S_WB)}, {wp*7168 + (i//4)*4096}')
                if i == i0: self.w1_soff(sreg, wp)
                va = V_W1A + 7 if (wp == 0 and i == 0) else V_W1A + i
                A(f'buffer_load_dwordx4 {v(va)}, {s(SRD_W1,4)}, {s(sreg)} offen offset:{(i%4)*1024} lds')
            ops.append(f)
        return ops

    def w2_addr_lines(self):
        return f'''
        v_lshrrev_b32 v6, 3, {v(V_LANE)}
        v_and_b32 v7, 7, {v(V_LANE)}
        v_lshlrev_b32 v8, 1, v6
        v_and_b32 v8, 4, v8
        v_xor_b32 v7, v7, v8
        v_lshlrev_b32 v7, 4, v7
        v_lshl_add_u32 {v(V_W2A)}, v6, 10, v7
        s_mul_i32 {s(S_T0)}, {s(S_W)}, {448*1024}
        s_lshl_b32 {s(S_T1)}, {s(S_CB)}, 7
        s_add_u32 {s(S_T0)}, {s(S_T0)}, {s(S_T1)}
        v_add_u32 {v(V_W2A)}, {s(S_T0)}, {v(V_W2A)}
        v_add_u32 {v(V_W2A+1)}, 7168, {v(V_W2A)}
        v_add_u32 {v(V_W2A+2)}, {2*7168}, {v(V_W2A)}
        v_add_u32 {v(V_W2A+3)}, {3*7168}, {v(V_W2A)}
        '''
    def w2_ops(self, k0, nk, sbase):
        A = self.A; ops = []
        for i in range(2 * nk):
            def f(i=i):
                if i % 4 == 0:
                    A(f's_add_u32 m0, {s(sbase)}, {i*1024}')
                    A(f's_mov_b32 {s(S_W2S)}, {(2*k0+i)*8192}')
                A(f'buffer_load_dwordx4 {v(V_W2A+i%4)}, {s(SRD_W2,4)}, {s(S_W2S)} offen offset:{(i%4)*1024} lds')
            ops.append(f)
        return ops
    def touch(self, vd, srd, soff, lanes, fl=''):
        A = self.A
        if lanes < 64: A(f's_mov_b64 exec, {hex((1<<lanes)-1)}' if lanes <= 32 else f's_mov_b32 exec_hi, {hex((1<<(lanes-32))-1)}')
        A(f'buffer_load_dword {v(vd)}, {v(V_L128)}, {s(srd,4)}, {s(soff)} offen{fl}')
        if lanes < 64: A('s_mov_b64 exec, -1')
    def w2_rd_addr(self, vdst, sbase):
        A = self.A
        A(f'''
        v_lshrrev_b32 v6, 5, {v(V_LANE)}
        v_lshlrev_b32 v6, 10, v6
        v_bfe_u32 v7, {v(V_LANE)}, 2, 2
        v_lshl_add_u32 v6, v7, 7, v6
        v_and_b32 v8, 1, {v(V_LANE)}
        v_lshl_add_u32 v6, v8, 5, v6
        v_bfe_u32 v8, {v(V_LANE)}, 1, 1
        v_lshl_add_u32 v6, v8, 3, v6
        v_bfe_u32 v8, {v(V_LANE)}, 4, 1
        v_lshl_add_u32 v6, v8, 4, v6
        v_bfe_u32 v8, {v(V_LANE)}, 3, 1
        v_lshl_add_u32 v6, v8, 6, v6
        v_add_u32 {v(vdst)}, {s(sbase)}, v6
        v_xor_b32 v6, 64, v6
        v_add_u32 {v(vdst+1)}, {s(sbase)}, v6
        ''')
    def w2_rd1(self, dst, vaddr, loc, mt, hh):
        self.A(f'ds_read_b64_tr_b16 {dst}, {v(vaddr+mt)} offset:{loc*2048 + hh*512}')

    def cpf(self):
        self.A(f'''
        s_getpc_b64 {s(S_M,2)}
        L_pc0:
        s_lshr_b32 {s(S_FAST)}, s2, 3
        s_lshl2_add_u32 {s(S_FAST)}, {s(S_FAST)}, {s(S_W)}
        s_lshl_b32 {s(S_FAST)}, {s(S_FAST)}, 8
        s_min_u32 {s(S_FAST)}, {s(S_FAST)}, L_end-L_pc0-192
        ''')
        for k in range(4): self.A(f's_load_dword {s(S_CNT)}, {s(S_M,2)}, {s(S_FAST)} offset:{64*k}')

    def p1(self):
        A = self.A
        X, SC, R1, ONES, SUM, SQ, ACC = 16, 80, 144, 152, 156, 160, 208
        V_SGN, V_FAC, V_ZO, V_EW, V_XD, V_XR, V_ER, V_BA, V_A0 = 198, 199, 164, 165, 166, 168, 170, 172, 176
        A(f'''
        s_cmp_ge_u32 s2, 256
        s_cbranch_scc1 L_end
        s_load_dwordx2 {s(SRD_X,2)}, s[0:1], 0
        s_load_dwordx2 {s(SRD_WS,2)}, s[0:1], 96
        s_load_dwordx2 {s(SRD_W1,2)}, s[0:1], 48
        s_load_dwordx2 {s(SRD_W2,2)}, s[0:1], 64
        s_load_dwordx2 {s(SRD_B1,2)}, s[0:1], 56
        s_load_dwordx2 {s(SRD_B2,2)}, s[0:1], 72
        s_load_dwordx2 {s(SRD_OUT,2)}, s[0:1], 80
        ''')
        self.stamp('start')
        if self.diag:
            for i in range(2, 40): A(f's_mov_b32 {s(S_TS+i)}, 0')
        if self.opt.get('cpf', 0) == 3:
            A(f'''
            s_getpc_b64 {s(S_M,2)}
            L_pc0:
            s_lshr_b32 {s(S_T0)}, s2, 3
            s_lshl_b32 {s(S_T0)}, {s(S_T0)}, 10
            v_lshl_add_u32 v7, v0, 2, {s(S_T0)}
            v_min_u32 v7, L_end-L_pc0, v7
            global_load_dword {v(204)}, v7, {s(S_M,2)}
            ''')
        A(f'''
        v_lshrrev_b32 v6, 6, v0
        v_and_b32 {v(V_LANE)}, 63, v0
        v_readfirstlane_b32 {s(S_W)}, v6
        ''')
        if self.opt.get('cpf', 0) == 1: self.cpf()
        A(f'''
        v_and_b32 {v(V_L15)}, 15, {v(V_LANE)}
        v_lshrrev_b32 {v(V_G)}, 4, {v(V_LANE)}
        v_lshlrev_b32 {v(V_L16)}, 4, {v(V_LANE)}
        v_lshlrev_b32 {v(V_L128)}, 7, {v(V_LANE)}
        s_and_b32 {s(S_J)}, s2, 7
        s_lshr_b32 {s(S_N)}, s2, 3
        s_and_b32 {s(S_Q)}, {s(S_N)}, 7
        s_lshl_b32 {s(S_T0)}, {s(S_J)}, 2
        s_lshr_b32 {s(S_T1)}, {s(S_N)}, 3
        s_add_u32 {s(S_S1)}, {s(S_T0)}, {s(S_T1)}
        s_bfe_u32 {s(S_T1)}, {s(S_N)}, 0x20002
        s_add_u32 {s(S_U2)}, {s(S_T0)}, {s(S_T1)}
        s_and_b32 {s(S_RQ)}, {s(S_N)}, 3
        s_and_b32 {s(S_FB)}, {s(S_N)}, 15
        s_lshr_b32 {s(S_T1)}, {s(S_N)}, 4
        s_lshl_b32 {s(S_RB)}, {s(S_J)}, 1
        s_add_u32 {s(S_RB)}, {s(S_RB)}, {s(S_T1)}
        s_mov_b32 {s(S_CB)}, {s(S_Q)}
        s_mul_i32 {s(S_XB)}, {s(S_T1)}, 12288
        s_mul_i32 {s(S_T0)}, {s(S_W)}, {WPW}
        s_add_u32 {s(S_XB)}, {s(S_XB)}, {s(S_T0)}
        s_lshl_b32 {s(S_T0)}, {s(S_Q)}, 7
        s_and_b32 {s(S_T1)}, {s(S_T0)}, 0x200
        ''')
        for i in range(4):
            A(f's_add_u32 {s(S_T2)}, {s(S_T0)}, {128*i}\ns_and_b32 {s(S_T2)}, {s(S_T2)}, 0x180\ns_or_b32 {s(S_XO+i)}, {s(S_T2)}, {s(S_T1)}')
        self.srd(SRD_X, 2097152); self.srd(SRD_WS, WS_SIZE); self.srd(SRD_W2, 1835008); self.srd(SRD_W1, 1835008)
        self.srd(SRD_B1, 3584); self.srd(SRD_B2, 1024); self.srd(SRD_OUT, 2097152)
        A(f'''
        s_lshl_b32 {s(S_T0)}, {s(S_W)}, 19
        s_lshl_b32 {s(S_T1)}, {s(S_S1)}, 10
        s_add_u32 {s(S_T0)}, {s(S_T0)}, {s(S_T1)}
        v_lshrrev_b32 v12, 3, {v(V_LANE)}
        v_and_b32 v13, 7, {v(V_LANE)}
        v_xor_b32 v13, v13, {v(V_G)}
        v_lshlrev_b32 v13, 4, v13
        v_lshl_add_u32 v6, v12, 15, v13
        v_add_u32 {v(V_XD)}, {s(S_T0)}, v6
        v_xor_b32 v6, 64, {v(V_XD)}
        v_add_u32 {v(V_XD+1)}, {8*32768 - 1024}, v6
        ''')
        A(f'''
        s_lshl_b32 {s(S_T0)}, {s(S_Q)}, 5
        v_lshrrev_b32 v6, 2, {v(V_L15)}
        v_and_b32 v7, 3, {v(V_L15)}
        v_lshl_add_u32 v6, v6, 3, v7
        v_add_u32 v6, {s(S_T0)}, v6
        v_add_u32 v7, 4, v6
        v_cmp_eq_u32 vcc, 0, v6
        v_mov_b32 v8, 0x100
        v_cndmask_b32 v6, v6, v8, vcc
        v_cvt_f32_u32 v6, v6
        v_cvt_f32_u32 v7, v7
        v_mul_f32 v6, {f2u(1/512)}, v6
        v_mul_f32 v7, {f2u(1/512)}, v7
        s_add_u32 {s(S_T0)}, {s(S_W)}, {s(S_Q)}
        s_and_b32 {s(S_T0)}, {s(S_T0)}, 3
        s_lshl_b32 {s(S_T0)}, {s(S_T0)}, 6
        v_lshl_add_u32 v8, {v(V_G)}, 3, {s(S_T0)}
        v_cvt_f32_u32 v8, v8
        v_add_f32 v9, {f2u(32.0)}, v8
        s_lshl_b32 {s(S_T0)}, {s(S_W)}, 13
        s_add_u32 {s(S_T0)}, {s(S_T0)}, {L_TAB}
        v_add_u32 v10, {s(S_T0)}, {v(V_L16)}
        ''')
        def tab(kk, et):
            b = SC + 32 * et
            A(f'v_mul_f32 {v(b)}, {v(6+et)}, {v(8+kk)}')
            for j in range(1, 8):
                A(f'v_add_f32 {v(b+j)}, {v(b+j-1)}, {v(6+et)}')
            for j in range(8):
                A(f'v_cos_f32 {v(b+8+j)}, {v(b+j)}')
                A(f'v_sin_f32 {v(b+16+j)}, {v(b+j)}')
            for j in range(4):
                A(f'v_cvt_pk_bf16_f32 {v(b+24+j)}, {v(b+8+2*j)}, {v(b+9+2*j)}')
            for j in range(4):
                A(f'v_cvt_pk_bf16_f32 {v(b+28+j)}, {v(b+16+2*j)}, {v(b+17+2*j)}')
            A(f'ds_write_b128 v10, {v(b+24,4)} offset:{(kk*4+et*2)*1024}')
            A(f'ds_write_b128 v10, {v(b+28,4)} offset:{(kk*4+et*2+1)*1024}')
        npre = self.opt.get('tabpre', 1)
        tabs = [(0, 0), (0, 1), (1, 0), (1, 1)]
        for t in tabs[:npre]: tab(*t)
        T0L, T1L = self.opt.get('t0', 32), self.opt.get('t1', 48)
        A(f'''
        s_mov_b32 {s(S_T2)}, {FE}
        s_lshl_b32 {s(S_T3)}, {s(S_N)}, 2
        s_add_u32 {s(S_T3)}, {s(S_T3)}, {s(S_W)}
        s_mul_i32 {s(S_AM0)}, {s(S_T3)}, {T1L*128}
        s_add_u32 {s(S_AM0)}, {s(S_AM0)}, {64*3584 + T0L*128*128}
        s_mul_i32 {s(S_T3)}, {s(S_T3)}, {T0L*128}
        s_add_u32 {s(S_T3)}, {s(S_T3)}, {64*3584}
        ''')
        A('s_waitcnt lgkmcnt(0)')
        self.stamp('kernarg')
        xm = []
        def xdma(i):
            A(f's_add_u32 m0, {s(S_XB)}, {i*2048}')
            so = S_XO + (i >> 1)
            if i & 1:
                A(f's_xor_b32 {s(S_T0)}, {s(so)}, 0x200'); so = S_T0
            A(f'buffer_load_dwordx4 {v(V_XD)}, {s(SRD_X,4)}, {s(so)} offen lds')
            A(f'buffer_load_dwordx4 {v(V_XD+1)}, {s(SRD_X,4)}, {s(so)} offen offset:1024 lds')
            xm.append(A.nvm)
        NX0 = self.opt.get('nx0', 5)
        xdma(0)
        A(f'buffer_load_dwordx2 {v(V_TAG,2)}, off, {s(SRD_WS,4)}, {s(S_T2)} sc1')
        for i in range(1, NX0):
            if i == self.opt.get('t0pos', 1) and T0L: self.touch(204, SRD_W1, S_T3, T0L)
            xdma(i)
        if self.opt.get('cpf') == 2: self.cpf()
        A(f'''
        s_mul_i32 {s(S_WB)}, {s(S_W)}, {WPW}
        s_mul_i32 {s(S_SB)}, {s(S_W)}, {SPW}
        s_add_u32 {s(S_SB)}, {s(S_SB)}, {L_S}
        ''')
        for t in tabs[npre:]: tab(*t)
        A(f'v_add_u32 v10, {L_TAB}, {v(V_L16)}')
        A('s_waitcnt lgkmcnt(0)\ns_barrier')
        def tabrd(f0, f1):
            for f in range(f0, f1): A(f'ds_read_b128 {a(4*f,4)}, v10 offset:{f*1024}')
        tabrd(0, 12)
        A(f'''
        v_lshrrev_b32 v6, 1, {v(V_L15)}
        v_xor_b32 v6, v6, {v(V_G)}
        v_lshlrev_b32 v6, 4, v6
        v_lshl_add_u32 v15, {v(V_L15)}, 7, v6
        v_add_u32 {v(V_XR)}, {s(S_XB)}, v15
        v_xor_b32 v6, 64, v15
        v_add_u32 {v(V_XR+1)}, {s(S_XB)}, v6
        ''')
        for i in range(4): A(f'v_mov_b32 {v(ONES+i)}, 0x3f803f80')
        A('s_waitcnt lgkmcnt(2)')
        tabrd(12, 24)
        A('s_waitcnt lgkmcnt(6)')
        tabrd(24, 32)
        b = SC
        fill = f'''
        s_lshl_b32 {s(S_T0)}, {s(S_W)}, 3
        v_lshrrev_b32 v6, 1, {v(V_L15)}
        v_add_u32 v6, {s(S_T0)}, v6
        v_and_b32 v7, 1, {v(V_L15)}
        v_cvt_f32_u32 v9, v7
        v_mul_f32 v9, {f2u(-0.25)}, v9
        v_lshl_add_u32 v8, v6, 1, v7
        v_cmp_eq_u32 vcc, 1, v8
        v_lshlrev_b32 v8, 2, {v(V_G)}
        v_cndmask_b32 v6, v6, 32, vcc
        v_cndmask_b32 v9, v9, 0, vcc
        v_cvt_f32_u32 v6, v6
        v_mul_f32 v6, {f2u(1/64)}, v6
        v_cvt_f32_u32 v8, v8
        v_fma_f32 {v(b)}, v6, v8, v9
        '''.strip().split('\n')
        for blk in range(4):
            for j in range(4):
                c = 16 * blk + j
                if c: fill.append(f'v_fmamk_f32 {v(b+4*blk+j)}, v6, {f2u(float(c))}, {v(b)}')
        for j in range(16): fill.append(f'v_cos_f32 {v(b+16+j)}, {v(b+j)}')
        for j in range(8): fill.append(f'v_cvt_pk_bf16_f32 {v(R1+j)}, {v(b+16+2*j)}, {v(b+17+2*j)}')
        fill += f'''
        v_and_b32 v6, 1, {v(V_LANE)}
        v_lshlrev_b32 v6, 31, v6
        v_or_b32 {v(V_SGN)}, 1.0, v6
        s_cmp_ge_u32 {s(S_Q)}, 4 @@ s_cselect_b64 vcc, -1, 0
        v_mov_b32 {v(V_FAC)}, 1.0
        v_cndmask_b32 {v(V_FAC)}, {v(V_FAC)}, {v(V_SGN)}, vcc
        s_lshl_b32 {s(S_T0)}, {s(S_W)}, 19
        s_lshl_b32 {s(S_T1)}, {s(S_Q)}, 13
        s_add_u32 {s(S_T0)}, {s(S_T0)}, {s(S_T1)}
        s_lshl_b32 {s(S_T1)}, {s(S_S1)}, 8
        s_add_u32 {s(S_T0)}, {s(S_T0)}, {s(S_T1)}
        v_lshlrev_b32 v6, 17, {v(V_G)}
        v_lshl_add_u32 v6, {v(V_L15)}, 4, v6
        v_add_u32 {v(V_ZO)}, {s(S_T0)}, v6
        s_lshr_b32 {s(S_T0)}, {s(S_W)}, 1
        s_lshl_b32 {s(S_T0)}, {s(S_T0)}, 10
        s_and_b32 {s(S_T1)}, {s(S_W)}, 1
        s_lshl_b32 {s(S_T1)}, {s(S_T1)}, 3
        s_add_u32 {s(S_T0)}, {s(S_T0)}, {s(S_T1)}
        s_add_u32 {s(S_T0)}, {s(S_T0)}, {L_EXC}
        v_add_u32 {v(V_EW)}, {s(S_T0)}, {v(V_L16)}
        v_add_u32 {v(V_ER)}, {L_EXC}, {v(V_L16)}
        s_lshl_b32 {s(S_T0)}, {s(S_W)}, 11
        s_lshr_b32 {s(S_T1)}, {s(S_Q)}, 1
        s_lshl_b32 {s(S_T1)}, {s(S_T1)}, 9
        s_add_u32 {s(S_T0)}, {s(S_T0)}, {s(S_T1)}
        s_lshl_b32 {s(S_T1)}, {s(S_S1)}, 4
        s_add_u32 {s(S_T0)}, {s(S_T0)}, {s(S_T1)}
        s_and_b32 {s(S_T1)}, {s(S_Q)}, 1
        s_lshl_b32 {s(S_T1)}, {s(S_T1)}, 3
        s_add_u32 {s(S_T0)}, {s(S_T0)}, {s(S_T1)}
        s_lshl_b32 {s(S_T0)}, {s(S_T0)}, {self.fsh}
        s_add_u32 {s(S_F1)}, {s(S_T0)}, {F1}
        v_and_b32 v6, 1, {v(V_L15)}
        v_cmp_eq_u32 {s(S_XO,2)}, 1, v6
        v_and_b32 v6, 2, {v(V_L15)}
        v_cmp_eq_u32 {s(S_XO+2,2)}, 2, v6
        v_lshrrev_b32 v6, 2, {v(V_L15)}
        v_cmp_eq_u32 {s(S_M,2)}, v6, {v(V_G)}
        s_mov_b32 {s(S_T1)}, 65536
        s_mov_b32 {s(S_T0)}, {f2u(1/512)}
        '''.strip().split('\n')
        fill = [x.strip().replace(' @@ ', '\n') for x in fill]
        self.w1_addr_setup()
        LI = A.newlabel('ri'); LJ = A.newlabel('rj')
        A(f's_cmp_ge_u32 {s(S_N)}, 16\ns_cbranch_scc1 {LI}')
        self.p2_rowbase(S_T3)
        A(f'''
        s_mov_b32 {s(S_BSO)}, 0
        s_add_u32 {s(S_BM0)}, {s(S_WB)}, 16384
        s_mov_b64 {s(SRD_B,2)}, {s(SRD_X,2)}
        s_mov_b64 {s(SRD_B+2,2)}, {s(SRD_X+2,2)}
        s_lshl_b32 {s(S_T3)}, {s(S_T3)}, 10
        s_lshl_b32 {s(S_T0)}, {s(S_W)}, 7
        s_add_u32 {s(S_T1)}, {s(S_T3)}, {s(S_T0)}
        s_sub_u32 {s(S_T2)}, {s(S_T3)}, {s(S_T0)}
        s_add_u32 {s(S_T2)}, {s(S_T2)}, 896
        v_lshl_add_u32 v6, v12, 16, v13
        v_xor_b32 v7, 64, v6
        v_add_u32 v7, {8*65536}, v7
        v_add_u32 {v(V_BA)}, {s(S_T1)}, v6
        v_add_u32 {v(V_BA+1)}, {s(S_T1)}, v7
        v_add_u32 {v(V_BA+2)}, {s(S_T2)}, v6
        v_add_u32 {v(V_BA+3)}, {s(S_T2)}, v7
        s_branch {LJ}
        ''')
        A.label(LI)
        self.w1_soff(S_BSO, 0)
        A(f'''
        s_mov_b32 {s(S_BM0)}, {s(S_WB)}
        s_mov_b64 {s(SRD_B,2)}, {s(SRD_W1,2)}
        s_mov_b64 {s(SRD_B+2,2)}, {s(SRD_W1+2,2)}
        v_mov_b32 {v(V_BA)}, {v(V_W1A+7)}
        ''')
        for i in range(1, 4): A(f'v_add_u32 {v(V_BA+i)}, {1024*i}, {v(V_W1A+i)}')
        A.label(LJ)
        self.stamp('tables')
        for i in range(NX0, 8): xdma(i)
        pf = []
        if T1L: pf.append(lambda: self.touch(205, SRD_W1, S_AM0, T1L))
        for i in range(4):
            def f(i=i):
                A(f's_add_u32 m0, {s(S_BM0)}, {i*1024}')
                fl(1)
                A(f'buffer_load_dwordx4 {v(V_BA+i)}, {s(SRD_B,4)}, {s(S_BSO)} offen lds')
            pf.append(f)
        xl = []
        def xrd(i):
            A.wait(vm=xm[i])
            for kk in range(2):
                A(f'ds_read_b128 {v(X+8*i+4*kk,4)}, {v(V_XR+kk)} offset:{i*2048}')
            xl.append(A.nlg)
        xrd(0)
        self.stamp('x first')
        xrd(1)
        A(f'''
        v_add_u32 {v(V_TAG)}, 0x9e3779b0, {v(V_TAG)}
        v_add_u32 {v(V_TAG+1)}, 0x7f4a7c15, {v(V_TAG+1)}
        s_getreg_b32 {s(S_T0)}, hwreg(HW_REG_XCC_ID)
        s_and_b32 {s(S_T0)}, {s(S_T0)}, 15
        v_add_u32 v178, {s(S_T0)}, {v(V_TAG)}
        v_mov_b32 v179, {v(V_TAG+1)}
        s_lshl_b32 {s(S_T0)}, {s(S_J)}, 8
        s_lshl_b32 {s(S_T1)}, {s(S_N)}, 3
        s_add_u32 {s(S_T0)}, {s(S_T0)}, {s(S_T1)}
        s_add_u32 {s(S_T0)}, {s(S_T0)}, {FX}
        s_mov_b64 exec, 1
        buffer_store_dwordx2 v[178:179], off, {s(SRD_WS,4)}, {s(S_T0)} sc1
        s_mov_b64 exec, -1
        ''')
        PF0 = self.opt.get('pf0', 1)
        def fl(n):
            for _ in range(n):
                if fill:
                    x = fill.pop(0); A(x)
                    if x.startswith('v_cos'): return
        for i in range(8):
            ip, hp = i >> 1, i & 1
            if i + 2 < 8: xrd(i + 2)
            A.wait(lg=xl[i])
            for kk in range(2):
                xa = X + 8 * i + 4 * kk
                first = (i == 0 and kk == 0)
                A(f'v_mfma_f32_16x16x32_bf16 {v(SQ,4)}, {v(xa,4)}, {v(xa,4)}, {"0" if first else v(SQ,4)}')
                fl(2)
                A(f'v_mfma_f32_16x16x32_bf16 {v(SUM,4)}, {v(xa,4)}, {v(ONES,4)}, {"0" if first else v(SUM,4)}')
                if i >= PF0 and pf: pf.pop(0)()
                else: fl(2)
                for t in range(4):
                    acc = ACC + 16 * hp + 4 * t
                    cin = '0' if (ip == 0 and kk == 0) else v(acc, 4)
                    A(f'v_mfma_f32_16x16x32_bf16 {v(acc,4)}, {v(xa,4)}, {a(32*ip+16*kk+4*t,4)}, {cin}')
                    if not (kk == 1 and t == 3): fl(2)
        self.stamp('gemm1 done')
        assert not fill and not pf, (len(fill), len(pf))
        A(f'''
        v_cndmask_b32 v6, {v(SQ)}, {v(SQ+1)}, {s(S_XO,2)}
        v_cndmask_b32 v7, {v(SQ+2)}, {v(SQ+3)}, {s(S_XO,2)}
        v_cndmask_b32 v8, {v(SUM)}, {v(SUM+1)}, {s(S_XO,2)}
        v_cndmask_b32 v9, {v(SUM+2)}, {v(SUM+3)}, {s(S_XO,2)}
        v_cndmask_b32 v6, v6, v7, {s(S_XO+2,2)}
        v_cndmask_b32 v8, v8, v9, {s(S_XO+2,2)}
        v_mul_f32 v8, {s(S_T0)}, v8
        v_mul_f32 v8, v8, v8
        v_fma_f32 v6, v6, {s(S_T0)}, -v8
        v_max_f32 v6, 0, v6
        v_add_f32 v6, {f2u(1e-5)}, v6
        v_rsq_f32 v6, v6
        v_fma_f32 {v(ACC)}, {v(ACC+16)}, {v(V_SGN)}, {v(ACC)}
        v_cndmask_b32 v6, 0, v6, {s(S_M,2)}
        v_fma_f32 {v(ACC+1)}, {v(ACC+17)}, {v(V_SGN)}, {v(ACC+1)}
        v_fma_f32 {v(ACC+2)}, {v(ACC+18)}, {v(V_SGN)}, {v(ACC+2)}
        v_mfma_f32_16x16x4_f32 v[20:23], v6, {v(V_FAC)}, 0
        ''')
        for i in range(3, 16):
            A(f'v_fma_f32 {v(ACC+i)}, {v(ACC+16+i)}, {v(V_SGN)}, {v(ACC+i)}')
        for t in range(4):
            for r in range(0, 4, 2):
                A(f'v_pk_mul_f32 {v(ACC+4*t+r,2)}, {v(ACC+4*t+r,2)}, {v(20+r,2)}')
            A(f'v_cvt_pk_bf16_f32 {v(24+2*t)}, {v(ACC+4*t)}, {v(ACC+4*t+1)}')
            A(f'v_cvt_pk_bf16_f32 {v(25+2*t)}, {v(ACC+4*t+2)}, {v(ACC+4*t+3)}')
            A(f'ds_write_b64 {v(V_EW)}, {v(24+2*t,2)} offset:{t*2048}')
        A('s_waitcnt lgkmcnt(0)\ns_barrier')
        for f in range(8):
            A(f'ds_read_b128 {v(32+4*f,4)}, {v(V_ER)} offset:{f*1024}')
        for t in range(4):
            A(f's_waitcnt lgkmcnt({6-2*t})')
            A(f'v_mfma_f32_16x16x32_bf16 {v(64+4*t,4)}, {v(R1,4)}, {v(32+8*t,4)}, 0')
            A(f'v_mfma_f32_16x16x32_bf16 {v(64+4*t,4)}, {v(R1+4,4)}, {v(36+8*t,4)}, {v(64+4*t,4)}')
        for k in range(2):
            for t in range(4):
                A(f'v_cvt_pk_bf16_f32 {v(80+4*k+t)}, {v(64+4*t+2*k)}, {v(65+4*t+2*k)}')
            A(f'buffer_store_dwordx4 {v(80+4*k,4)}, {v(V_ZO)}, {s(SRD_WS,4)}, {"0" if k == 0 else s(S_T1)} offen sc1')
        self.stamp('Z stores')
        self.zst = A.nvm

    def p2_rowbase(self, dst):
        self.A(f'''
        s_sub_u32 {s(S_T0)}, 64, {s(S_U2)}
        s_cmp_eq_u32 {s(S_U2)}, 0
        s_cselect_b32 {s(S_T0)}, 32, {s(S_T0)}
        s_cmp_ge_u32 {s(S_RQ)}, 2
        s_cselect_b32 {s(dst)}, {s(S_T0)}, {s(S_U2)}
        s_and_b32 {s(S_T0)}, {s(S_RQ)}, 1
        s_lshl_b32 {s(S_T0)}, {s(S_T0)}, 10
        s_add_u32 {s(dst)}, {s(dst)}, {s(S_T0)}
        ''')

    def bias_load(self):
        A = self.A
        A(f'''
        s_mul_i32 {s(S_T0)}, {s(S_FB)}, 224
        v_lshlrev_b32 v6, 3, {v(V_LANE)}
        s_mov_b64 exec, {(1<<28)-1}
        buffer_load_dwordx2 v[180:181], v6, {s(SRD_B1,4)}, {s(S_T0)} offen
        s_mov_b64 exec, -1
        ''')
    def bias_spread(self):
        A = self.A
        A(f'v_lshlrev_b32 v6, 2, {v(V_G)}')
        for ft in range(7):
            for d in range(2):
                A(f'ds_bpermute_b32 {v(V_BIAS+2*ft+d)}, v6, {v(180+d)} offset:{16*ft}')
    def fx_load(self):
        A = self.A
        A(f'''
        s_lshl_b32 {s(S_T0)}, {s(S_J)}, 8
        s_add_u32 {s(S_T0)}, {s(S_T0)}, {FX}
        v_and_b32 v6, 31, {v(V_LANE)}
        v_lshlrev_b32 v6, 3, v6
        buffer_load_dwordx2 v[182:183], v6, {s(SRD_WS,4)}, {s(S_T0)} offen sc1
        ''')
    def fx_eval(self):
        A = self.A
        A(f'''
        v_cmp_ne_u64 vcc, v[182:183], v[178:179]
        s_cmp_eq_u64 vcc, 0
        s_cselect_b32 {s(S_FAST)}, 1, 0
        ''')

    def p2(self):
        A = self.A
        ZF, TB, XR, SC, H = 16, 80, 112, 132, 208
        S_TB, S_PHI, S_MSK = 48, 49, 50
        self.p2_rowbase(S_TB)
        A(f'''
        v_lshl_add_u32 v11, {v(V_L15)}, 6, {s(S_TB)}
        s_lshl_b32 {s(S_T0)}, {s(S_W)}, 7
        s_sub_u32 {s(S_T0)}, 1024, {s(S_T0)}
        s_cmp_eq_u32 {s(S_W)}, 0
        s_cselect_b32 {s(S_T0)}, 512, {s(S_T0)}
        v_lshlrev_b32 v7, 10, v11
        s_mov_b64 exec, 0xffff
        buffer_load_ushort {v(XR+18)}, v7, {s(SRD_X,4)}, {s(S_T0)} offen
        s_mov_b64 exec, -1
        ''')
        self.bias_load()
        mb = A.nvm
        A.wait(vm=self.zst - 2)
        A(f'''
        s_add_u32 {s(S_T0)}, {s(S_WB)}, 16384
        v_add_u32 v6, {s(S_T0)}, v15
        v_xor_b32 v7, 64, v15
        v_add_u32 v7, {s(S_T0)}, v7
        v_xor_b32 v8, 0x70, v15
        v_add_u32 v8, {s(S_T0)}, v8
        v_xor_b32 v9, 0x30, v15
        v_add_u32 v9, {s(S_T0)}, v9
        ds_read_b128 {v(XR,4)}, v6
        ds_read_b128 {v(XR+4,4)}, v7
        ds_read_b128 {v(XR+8,4)}, v8 offset:2048
        ds_read_b128 {v(XR+12,4)}, v9 offset:2048
        v_lshrrev_b32 v6, 1, {v(V_L15)}
        v_sub_u32 v7, 8, {v(V_G)}
        v_and_b32 v7, 7, v7
        v_xor_b32 v7, v7, v6
        v_lshlrev_b32 v7, 4, v7
        v_lshl_add_u32 v7, {v(V_L15)}, 7, v7
        v_xor_b32 v8, 64, v7
        v_add_u32 v7, {s(S_T0)}, v7
        v_add_u32 v8, {s(S_T0)}, v8
        ds_read_u16 {v(XR+16)}, v7 offset:2048
        ds_read_u16 {v(XR+17)}, v8 offset:2048
        ''')
        A(f'''
        s_cmp_eq_u32 {s(S_U2)}, 0
        s_cselect_b32 {s(S_T1)}, 0, {f2u(-0.25)}
        s_cselect_b32 {s(S_T2)}, 0xffff0000, -1
        s_cselect_b32 {s(S_T3)}, 0xffff, -1
        s_cmp_ge_u32 {s(S_RQ)}, 2
        s_cselect_b32 {s(S_PHI)}, {s(S_T1)}, {f2u(0.25)}
        s_cselect_b32 {s(S_MSK)}, {s(S_T2)}, {s(S_T3)}
        v_cvt_f32_u32 v11, v11
        v_mul_f32 v11, {f2u(1/2048)}, v11
        s_lshl_b32 {s(S_T0)}, {s(S_RQ)}, 3
        v_add_u32 v10, {s(S_T0)}, {v(V_G)}
        ''')
        tl = []
        for half in range(2):
            b = SC
            for j in range(4):
                ks = 4 * half + j
                tl += [f'v_add_u32 v6, {4*ks}, v10', 'v_and_b32 v6, 31, v6', 'v_cvt_f32_u32 v6, v6',
                       f'v_mul_f32 {v(b+2*j)}, v6, v11', f'v_add_f32 {v(b+2*j+1)}, {s(S_PHI)}, {v(b+2*j)}']
            for j in range(8):
                tl += [f'v_cos_f32 {v(b+8+j)}, {v(b+j)}', f'v_sin_f32 {v(b+16+j)}, {v(b+j)}']
            for j in range(4):
                d = TB + 4 * (4 * half + j)
                tl += [f'v_cvt_pk_bf16_f32 {v(d)}, {v(b+8+2*j)}, {v(b+9+2*j)}',
                       f'v_cvt_pk_bf16_f32 {v(d+3)}, {v(b+16+2*j)}, {v(b+17+2*j)}',
                       f'v_and_b32 {v(d)}, {s(S_MSK)}, {v(d)}', f'v_and_b32 {v(d+3)}, {s(S_MSK)}, {v(d+3)}',
                       f'v_mov_b32 {v(d+2)}, {v(d)}', f'v_xor_b32 {v(d+1)}, 0x80008000, {v(d+3)}']
        np_ = self.opt.get('f1pos', 30)
        self.weave(tl[:np_], None, 1)
        A.wait(vm=self.zst, lg=A.nlg)
        self.setflag(S_F1, ' sc1')
        self.stamp('F1 set')
        bg = self.w1_ops(1, 0, 7, S_T2) + self.w1_ops(3, 0, 7, S_T2) + self.w1_ops(2, 0, 7, S_T2)
        nlate = self.opt.get('w1late', 0)
        late = bg[len(bg)-nlate:]; bg = bg[:len(bg)-nlate]
        self.weave(tl[np_:], bg, 8)
        A.wait(vm=mb)
        self.bias_spread()
        def unp(dst, r, hi):
            return f'v_and_b32 {v(dst)}, 0xffff0000, {v(r)}' if hi else f'v_lshlrev_b32 {v(dst)}, 16, {v(r)}'
        cl = [f'v_cmp_eq_u32 vcc, 0, {v(V_G)}', f'v_cndmask_b32 {v(XR+16)}, {v(XR+16)}, {v(XR+18)}, vcc',
              f's_cmp_eq_u32 {s(S_W)}, 0 @@ s_cselect_b64 {s(S_M,2)}, vcc, 0']
        for k in range(16): cl.append(unp(H + k, XR + k // 2, k & 1))
        for q1 in range(2):
            cl.append(unp(H + 16 + 8 * q1, XR + 16 + q1, 0))
            for j in range(1, 8): cl.append(unp(H + 16 + 8 * q1 + j, XR + 8 + 4 * q1 + (8 - j) // 2, (8 - j) & 1))
        cl.append(f'v_mov_b32 {v(XR+19)}, {v(H)}')
        self.weave(cl, bg, 8)
        self.weave(self.w2_addr_lines(), bg, 8)
        self.weave(f'''
        s_lshr_b32 {s(S_T0)}, {s(S_U2)}, 3
        s_lshl_b32 {s(S_T0)}, {s(S_T0)}, 11
        s_lshl_b32 {s(S_T1)}, {s(S_W)}, 9
        s_add_u32 {s(S_T0)}, {s(S_T0)}, {s(S_T1)}
        s_lshl_b32 {s(S_T0)}, {s(S_T0)}, {self.fsh}
        s_add_u32 {s(S_T0)}, {s(S_T0)}, {F1}
        v_lshl_add_u32 v10, {v(V_LANE)}, {3+self.fsh}, {s(S_T0)}
        s_lshl_b32 {s(S_T0)}, {s(S_U2)}, 16
        s_lshl_b32 {s(S_T1)}, {s(S_W)}, 14
        s_add_u32 {s(S_T0)}, {s(S_T0)}, {s(S_T1)}
        v_add_u32 v12, {s(S_T0)}, {v(V_L16)}
        v_add_u32 v13, 8192, v12
        s_lshl_b32 {s(S_T3)}, {s(S_RQ)}, 11
        ''', bg, 8)
        while bg: bg.pop(0)()
        self.fx_load()
        self.stamp('p2 prepoll')
        self.poll(10, 64, 8)
        self.stamp('p2 polled')
        zm = []
        def zld(kp):
            if kp: A(f's_add_u32 {s(S_T3)}, {s(S_T3)}, 2048\ns_and_b32 {s(S_T3)}, {s(S_T3)}, 0x1800')
            for kk in range(2):
                for q1 in range(2):
                    n = 4 * kp + 2 * kk + q1
                    A(f'buffer_load_dwordx4 {v(ZF+4*n,4)}, {v(12+q1)}, {s(SRD_WS,4)}, {s(S_T3)} offen offset:{kk*1024}{self.zldf}')
                    zm.append(A.nvm)
        for kp in range(3): zld(kp)
        self.fx_eval()
        pf = late + self.w1_ops(0, 0, 7, S_T2)
        for n in range(16):
            ks, q1 = n >> 1, n & 1
            A.wait(vm=zm[n])
            if n == 0: self.stamp('Z first')
            for et in range(2):
                for var in range(2):
                    acc = H + 16 * var + 8 * q1 + 4 * et
                    A(f'v_mfma_f32_16x16x16_bf16 {v(acc,4)}, {v(ZF+4*n+2*et,2)}, {v(TB+4*ks+2*var,2)}, {v(acc,4)}')
            if n == 1: zld(3)
            if n >= self.opt.get('pf2', 8) and pf: pf.pop(0)()
        self.stamp('Z landed')
        A(f'''
        s_lshl_b32 {s(S_T0)}, {s(S_W)}, 3
        s_add_u32 {s(S_T0)}, {s(S_T0)}, {L_S+4096}
        v_lshlrev_b32 v10, 5, {v(V_L15)}
        v_add_u32 v11, {s(S_T0)}, v10
        v_add_u32 v10, {s(S_SB)}, v10
        ''')
        while pf: pf.pop(0)()
        A(f'v_cndmask_b32 {v(H)}, {v(H)}, {v(XR+19)}, {s(S_M,2)}')
        A(f'v_pk_add_f32 v[6:7], {v(H,2)}, {v(H+2,2)}')
        A(f'v_pk_mul_f32 v[8:9], {v(H,2)}, {v(H,2)}')
        A(f'v_pk_fma_f32 v[8:9], {v(H+2,2)}, {v(H+2,2)}, v[8:9]')
        for k in range(4, 32, 2):
            A(f'v_pk_add_f32 v[6:7], v[6:7], {v(H+k,2)}')
            A(f'v_pk_fma_f32 v[8:9], {v(H+k,2)}, {v(H+k,2)}, v[8:9]')
        A(f'''
        v_add_f32 v6, v6, v7
        v_add_f32 v7, v8, v9
        v_mov_b32 v8, v6
        v_mov_b32 v9, v7
        v_permlane16_swap_b32 v6, v8
        v_permlane16_swap_b32 v7, v9
        v_add_f32 v6, v6, v8
        v_add_f32 v7, v7, v9
        v_mov_b32 v8, v6
        v_mov_b32 v9, v7
        v_permlane32_swap_b32 v6, v8
        v_permlane32_swap_b32 v7, v9
        v_add_f32 v6, v6, v8
        v_add_f32 v7, v7, v9
        v_mul_u32_u24 v8, {SPW}, {v(V_G)}
        v_add_u32 v11, v11, v8
        ds_write_b64 v11, v[6:7]
        s_lshl_b32 {s(S_T0)}, {s(S_U2)}, 2
        s_add_u32 {s(S_T0)}, {s(S_T0)}, {s(S_RQ)}
        s_lshl_b32 {s(S_T1)}, {s(S_T0)}, 14
        s_lshl_b32 {s(S_T2)}, {s(S_W)}, 12
        s_add_u32 {s(S_T1)}, {s(S_T1)}, {s(S_T2)}
        s_add_u32 {s(S_T1)}, {s(S_T1)}, {WS_HN}
        s_lshl_b32 {s(S_T2)}, {s(S_T0)}, 7
        s_add_u32 {s(S_T2)}, {s(S_T2)}, {WS_ST}
        s_lshl_b32 {s(S_T0)}, {s(S_T0)}, 5
        s_lshl_b32 {s(S_T3)}, {s(S_W)}, 3
        s_add_u32 {s(S_T0)}, {s(S_T0)}, {s(S_T3)}
        s_add_u32 {s(S_AM0)}, {s(S_T0)}, {F2}
        s_waitcnt lgkmcnt(0)
        s_barrier
        ds_read_b128 v[16:19], v10 offset:4096
        ds_read_b128 v[20:23], v10 offset:4112
        v_lshlrev_b32 v10, 3, {v(V_L15)}
        s_waitcnt lgkmcnt(0)
        v_pk_add_f32 v[16:17], v[16:17], v[18:19]
        v_pk_add_f32 v[20:21], v[20:21], v[22:23]
        v_pk_add_f32 v[16:17], v[16:17], v[20:21]
        v_mul_f32 v16, {f2u(1/512)}, v16
        v_mul_f32 v17, {f2u(1/512)}, v17
        v_fma_f32 v17, -v16, v16, v17
        v_max_f32 v17, 0, v17
        v_add_f32 v17, {f2u(1e-5)}, v17
        v_rsq_f32 v18, v17
        v_sqrt_f32 v17, v17
        v_mul_f32 v20, -v16, v18
        ''')
        for n in range(4):
            for k in range(0, 8, 2):
                r = H + 8 * n + k
                A(f'v_pk_fma_f32 {v(r,2)}, {v(r,2)}, v[18:19], v[20:21] op_sel_hi:[1,0,0]')
            for k in range(4):
                A(f'v_cvt_pk_bf16_f32 {v(24+4*n+k)}, {v(H+8*n+2*k)}, {v(H+8*n+2*k+1)}')
        def st(sc):
            for n in range(4):
                A(f'buffer_store_dwordx4 {v(24+4*n,4)}, {v(V_L16)}, {s(SRD_WS,4)}, {s(S_T1)} offen offset:{n*1024}{sc}')
            A(f'''
            s_mov_b64 exec, 0xffff
            buffer_store_dwordx2 v[16:17], v10, {s(SRD_WS,4)}, {s(S_T2)} offen{sc}
            s_mov_b64 exec, -1
            ''')
        self.dual(st, True)
        self.stamp('hn stores')
        m = A.nvm
        r1 = self.w2_ops(0, 6, S_SB)
        n0 = self.opt.get('r1pre', 6)
        pre = r1[:n0]
        self.p3_setup(pre)
        A.wait(vm=m)
        self.dual(lambda sc: self.setflag(S_AM0, sc))
        self.stamp('F2 set')
        for f in r1[n0:]: f()
        L = A.newlabel('noe')
        A(f'''
        s_or_b32 {s(S_T0)}, s2, {s(S_W)}
        s_cmp_lg_u32 {s(S_T0)}, 0
        s_cbranch_scc1 {L}
        s_mov_b32 {s(S_T0)}, {FE}
        ''')
        self.setflag(S_T0, ' sc1')
        A.label(L)

    def p2_idle(self):
        A = self.A
        self.bias_load()
        mb = A.nvm
        A(self.w2_addr_lines())
        A(f'''
        s_mul_i32 {s(S_T3)}, {s(S_W)}, {448*1024}
        s_lshl_b32 {s(S_T1)}, {s(S_FB)}, 13
        s_add_u32 {s(S_T3)}, {s(S_T3)}, {s(S_T1)}
        ''')
        A.wait(vm=self.zst)
        self.setflag(S_F1, ' sc1')
        self.stamp('F1 set')
        if self.opt.get('pt'):
            A(f'''
            s_lshl_b32 {s(S_T0)}, {s(S_FB)}, 2
            s_add_u32 {s(S_T0)}, {s(S_T0)}, {s(S_W)}
            s_lshl_b32 {s(S_T0)}, {s(S_T0)}, 12
            s_lshl_b32 {s(S_T1)}, {s(S_J)}, 18
            s_add_u32 {s(S_T0)}, {s(S_T0)}, {s(S_T1)}
            s_add_u32 {s(S_T0)}, {s(S_T0)}, {WS_HN}
            s_lshl_b32 {s(S_T1)}, {s(S_J)}, 11
            s_lshl_b32 {s(S_T2)}, {s(S_FB)}, 7
            s_add_u32 {s(S_T1)}, {s(S_T1)}, {s(S_T2)}
            s_add_u32 {s(S_T1)}, {s(S_T1)}, {WS_ST}
            ''')
            self.touch(140, SRD_WS, S_T0, 32, ' sc1')
            self.touch(141, SRD_WS, S_T1, 1, ' sc1')
        for f in self.w1_ops(0, 4, 7, S_T2): f()
        rest = 128 * 128 * (self.opt.get('t0', 32) + self.opt.get('t1', 48))
        nrest = max(0, -(-(385 * 3584 - rest) // (64 * 128)))
        if nrest:
            A(f'''
            s_lshl_b32 {s(S_T0)}, {s(S_FB)}, 2
            s_add_u32 {s(S_T0)}, {s(S_T0)}, {s(S_W)}
            s_mul_i32 {s(S_T0)}, {s(S_T0)}, {min(nrest,64)*128}
            s_add_u32 {s(S_T0)}, {s(S_T0)}, {64*3584 + rest}
            ''')
            assert nrest <= 64
            self.touch(206, SRD_W1, S_T0, nrest)
        for i in range(self.opt.get('nt2', 2)):
            self.touch(130 + i, SRD_W2, S_T3, 64)
            A(f's_add_u32 {s(S_T3)}, {s(S_T3)}, 131072')
        A(f'''
        s_lshl_b32 {s(S_T0)}, {s(S_J)}, 10
        s_add_u32 {s(S_T0)}, {s(S_T0)}, {F3}
        buffer_load_dwordx4 v[136:139], {v(V_L16)}, {s(SRD_WS,4)}, {s(S_T0)} offen sc1
        ''')
        if self.opt.get('pt') == 2:
            A(f'''
            s_lshl_b32 {s(S_T0)}, {s(S_FB)}, 2
            s_add_u32 {s(S_T0)}, {s(S_T0)}, {s(S_W)}
            s_mul_i32 {s(S_T0)}, {s(S_T0)}, {112*128}
            s_mul_i32 {s(S_T1)}, {s(S_J)}, {896*1024}
            s_add_u32 {s(S_T0)}, {s(S_T0)}, {s(S_T1)}
            s_add_u32 {s(S_T0)}, {s(S_T0)}, {WS_R}
            s_add_u32 {s(S_T1)}, {s(S_T0)}, 8192
            ''')
            self.touch(142, SRD_WS, S_T0, 64, ' sc1')
            self.touch(143, SRD_WS, S_T1, 48, ' sc1')
        self.fx_load()
        A.wait(vm=mb)
        self.bias_spread()
        for f in self.w1_ops(1, 0, 7, S_T2) + self.w1_ops(2, 0, 7, S_T2) + self.w1_ops(3, 0, 7, S_T2): f()
        m = A.nvm
        A('s_barrier')
        r1 = self.w2_ops(0, 6, S_SB)
        self.p3_setup(r1)
        A.wait(vm=m)
        self.stamp('F2 set')
        self.fx_eval()

    def p3_setup(self, bg):
        A = self.A
        ACC = 40
        ln = f'''
        v_lshrrev_b32 v6, 2, {v(V_LANE)}
        v_mul_u32_u24 v6, 224, v6
        v_and_b32 v7, 3, {v(V_LANE)}
        v_lshl_add_u32 v10, v7, 3, v6
        v_add_u32 v11, {2*WPW}, v10
        s_lshl_b32 {s(S_T0)}, {s(S_RB)}, 3
        s_lshl_b32 {s(S_T1)}, {s(S_W)}, 1
        s_add_u32 {s(S_T0)}, {s(S_T0)}, {s(S_T1)}
        s_lshl_b32 {s(S_T2)}, {s(S_T0)}, 14
        s_add_u32 {s(S_T2)}, {s(S_T2)}, {WS_HN}
        v_add_u32 v12, {s(S_T2)}, {v(V_L16)}
        v_add_u32 v13, 16384, v12
        s_lshl_b32 {s(S_T0)}, {s(S_T0)}, 5
        s_add_u32 {s(S_T3)}, {s(S_T0)}, {F2}
        v_lshl_add_u32 v15, {v(V_LANE)}, 3, {s(S_T3)}
        v_lshrrev_b32 v6, 5, {v(V_LANE)}
        v_lshlrev_b32 v6, 10, v6
        v_bfe_u32 v7, {v(V_LANE)}, 2, 2
        v_lshl_add_u32 v6, v7, 7, v6
        v_and_b32 v8, 1, {v(V_LANE)}
        v_lshl_add_u32 v6, v8, 5, v6
        v_bfe_u32 v8, {v(V_LANE)}, 1, 1
        v_lshl_add_u32 v6, v8, 3, v6
        v_bfe_u32 v8, {v(V_LANE)}, 4, 1
        v_lshl_add_u32 v6, v8, 4, v6
        v_bfe_u32 v8, {v(V_LANE)}, 3, 1
        v_lshl_add_u32 v6, v8, 6, v6
        s_and_b32 {s(S_T0)}, {s(S_W)}, 2
        s_lshl_b32 {s(S_T0)}, {s(S_T0)}, 5
        v_xor_b32 v6, {s(S_T0)}, v6
        v_add_u32 v230, {s(S_SB)}, v6
        v_add_u32 v232, {s(S_WB)}, v6
        v_xor_b32 v6, 64, v6
        v_add_u32 v231, {s(S_SB)}, v6
        v_add_u32 v233, {s(S_WB)}, v6
        s_waitcnt lgkmcnt(0)
        '''.strip().split('\n')
        ln = [x.strip() for x in ln]
        for ft in range(7):
            for tt in range(2):
                c = ACC + 8 * ft + 4 * tt
                ln += [f'v_lshlrev_b32 {v(c)}, 16, {v(V_BIAS+2*ft)}', f'v_and_b32 {v(c+1)}, 0xffff0000, {v(V_BIAS+2*ft)}',
                       f'v_lshlrev_b32 {v(c+2)}, 16, {v(V_BIAS+1+2*ft)}', f'v_and_b32 {v(c+3)}, 0xffff0000, {v(V_BIAS+1+2*ft)}']
        self.weave(ln, bg, 7)
        while bg: bg.pop(0)()

    def p3(self):
        A = self.A
        ACC, AF, HN = 40, 96, 96
        V_SR = 230
        A('s_barrier')
        self.stamp('p3 prepoll')
        self.poll(15, 8, 8)
        self.stamp('p3 polled')
        hm = {}
        def hld(ks):
            if ks % 4 == 0: A(f's_mov_b32 {s(S_T2)}, {(ks//4)*4096}')
            for tt in range(2):
                A(f'buffer_load_dwordx4 {a(HN+8*ks+4*tt,4)}, {v(12+tt)}, {s(SRD_WS,4)}, {s(S_T2)} offen offset:{(ks%4)*1024}{self.ldf}')
            hm[ks] = A.nvm
        LA = self.opt.get('la3', 5)
        for ks in range(LA): hld(ks)
        def trs(rnd):
            ops = []
            for loc in range(6):
                for mt in range(2):
                    for hh in range(2):
                        ops.append(lambda loc=loc, mt=mt, hh=hh: self.w2_rd1(a(48*rnd + 8*loc + 4*mt + 2*hh, 2), V_SR, loc, mt, hh))
            return ops
        for n, f in enumerate(trs(0)):
            f()
            if n == 11: A('s_waitcnt lgkmcnt(4)')
        D, R = 6, 8
        lm = {}
        def rd(p, hh):
            ks, ft = divmod(p, 7)
            wp, w = ks >> 2, ks & 3
            off = (w & 1) * WPW + wp * 7168 + hh * 3584 + ft * 32
            A(f'ds_read_b64_tr_b16 {v(AF+4*(p%R)+2*hh,2)}, {v(10 + (w >> 1))} offset:{off}')
            lm[p] = A.nlg
        A('s_waitcnt lgkmcnt(2)')
        for p in range(D): rd(p, 0); rd(p, 1)
        nxt = LA
        HP = self.opt.get('hp', 4)
        r2 = self.w2_ops(6, 6, S_SB); r3 = self.w2_ops(12, 6, S_SB); t2 = trs(1)
        tch = []
        if self.opt.get('nt2', 2) < 4:
            k0 = 8 * self.opt.get('nt2', 2); lanes = (28 - k0) * 4
            assert lanes <= 64
            def f():
                A(f'''
                s_mul_i32 {s(S_T0)}, {s(S_W)}, {448*1024}
                s_mul_i32 {s(S_T1)}, {s(S_N)}, {lanes*128}
                s_add_u32 {s(S_T0)}, {s(S_T0)}, {s(S_T1)}
                s_add_u32 {s(S_T0)}, {s(S_T0)}, {k0*16384}
                ''')
                self.touch(207, SRD_W2, S_T0, lanes)
            tch.append(f)
        if self.opt.get('pt') == 1:
            def f2():
                A(f'''
                s_lshl_b32 {s(S_T0)}, {s(S_RB)}, 2
                s_add_u32 {s(S_T0)}, {s(S_T0)}, {s(S_W)}
                s_mul_i32 {s(S_T1)}, {s(S_T0)}, {112*1024}
                s_mul_i32 {s(S_T0)}, {s(S_FB)}, 7168
                s_add_u32 {s(S_T1)}, {s(S_T1)}, {s(S_T0)}
                s_add_u32 {s(S_T1)}, {s(S_T1)}, {WS_R}
                ''')
                self.touch(206, SRD_WS, S_T1, 56, ' sc1')
            tch.insert(0, f2)
        r2m = None; t2m = None; r2p = None
        for p in range(112):
            ks, ft = divmod(p, 7)
            need_vm = hm[ks] if ft == 0 else None
            if p % 2 == 0: A.wait(vm=need_vm, lg=lm[min(p + 1, 111)])
            elif need_vm is not None: A.wait(vm=need_vm)
            for tt in range(2):
                c = ACC + 8 * ft + 4 * tt
                A(f'v_mfma_f32_16x16x32_bf16 {v(c,4)}, {v(AF+4*(p%R),4)}, {a(HN+8*ks+4*tt,4)}, {v(c,4)}')
                if p + D < 112: rd(p + D, tt)
            if p % 2 == 0: continue
            if nxt < 16:
                if p % HP == HP - 1: hld(nxt); nxt += 1
            elif r2:
                r2.pop(0)(); r2m = A.nvm; r2p = p
            elif tch: tch.pop(0)()
            elif t2:
                if p < r2p + self.opt.get('t2gap', 8): continue
                if len(t2) == 24: A.wait(vm=r2m)
                for _ in range(3): t2.pop(0)()
                t2m = A.nlg
            elif r3 and lm[p] > t2m:
                r3.pop(0)()
        self.stamp('p3 mfma done')
        A('s_barrier')
        assert not t2
        bg = r3 + self.w2_ops(18, 10, S_WB)
        print('r3 left', len(r3))
        A(f'''
        s_lshl_b32 {s(S_T0)}, {s(S_RB)}, 2
        s_add_u32 {s(S_T0)}, {s(S_T0)}, {s(S_W)}
        s_mul_i32 {s(S_T1)}, {s(S_T0)}, {112*1024}
        s_mul_i32 {s(S_T2)}, {s(S_FB)}, 7168
        s_add_u32 {s(S_T1)}, {s(S_T1)}, {s(S_T2)}
        s_add_u32 {s(S_T1)}, {s(S_T1)}, {WS_R}
        s_add_u32 {s(S_T2)}, {s(S_T1)}, 4096
        s_lshr_b32 {s(S_T3)}, {s(S_T0)}, 1
        s_lshl_b32 {s(S_T3)}, {s(S_T3)}, 8
        s_lshl_b32 {s(S_AM0)}, {s(S_FB)}, 4
        s_add_u32 {s(S_T3)}, {s(S_T3)}, {s(S_AM0)}
        s_and_b32 {s(S_T0)}, {s(S_T0)}, 1
        s_lshl_b32 {s(S_T0)}, {s(S_T0)}, 3
        s_add_u32 {s(S_T0)}, {s(S_T0)}, {s(S_T3)}
        s_add_u32 {s(S_AM0)}, {s(S_T0)}, {F3}
        ''')
        A.quiesce(8)
        def epi(sc):
            q = list(bg)
            for ft in range(7):
                c = ACC + 8 * ft; o = 96 + 4 * ft
                ln = [f'v_mul_f32 {v(c+i)}, {v(c+i)}, |{v(c+i)}|' for i in range(8)]
                ln += [f'v_cvt_pk_bf16_f32 {v(o+i)}, {v(c+2*i)}, {v(c+2*i+1)}' for i in range(4)]
                ln += [f'v_pk_max_i16 {v(o+i)}, {v(o+i)}, 0' for i in (0, 2, 1, 3)]
                self.weave(ln, q, self.opt.get('epiw', 16))
                A(f'v_permlane16_swap_b32 {v(o)}, {v(o+2)}')
                A(f'v_permlane16_swap_b32 {v(o+1)}, {v(o+3)}')
                A(f'buffer_store_dwordx4 {v(o,4)}, {v(V_L16)}, {s(SRD_WS,4)}, {s(S_T1 if ft < 4 else S_T2)} offen offset:{(ft%4)*1024}{sc}')
            self.wleft = q
        self.dual(epi, True)
        self.stamp('r stores')
        self.rst = A.nvm

    def p4(self):
        A = self.A
        ACC, BASE, AF, RV = 16, 80, 96, 128
        wops = self.wleft
        S_MIR = 51
        self.weave(f'''
        s_and_b32 {s(S_T0)}, {s(S_W)}, 1
        s_lshl_b32 {s(S_T0)}, {s(S_T0)}, 1
        s_lshl_b32 {s(S_T1)}, {s(S_U4)}, 2
        s_add_u32 {s(S_T0)}, {s(S_T0)}, {s(S_T1)}
        v_bfe_u32 v6, {v(V_LANE)}, 4, 1
        v_add_u32 v6, {s(S_T0)}, v6
        v_lshlrev_b32 v7, 7, v6
        v_lshl_add_u32 v7, {v(V_L15)}, 3, v7
        v_lshlrev_b32 v6, 14, v6
        v_lshl_add_u32 v6, {v(V_L15)}, 4, v6
        s_lshl_b32 {s(S_T0)}, {s(S_CB)}, 2
        s_and_b32 {s(S_T1)}, {s(S_W)}, 2
        s_add_u32 {s(S_T0)}, {s(S_T0)}, {s(S_T1)}
        v_lshrrev_b32 v8, 5, {v(V_LANE)}
        v_add_u32 v8, {s(S_T0)}, v8
        v_lshlrev_b32 v12, 5, v8
        s_cmp_ge_u32 {s(S_CB)}, 4 @@ s_cselect_b64 vcc, -1, 0 @@ s_cselect_b32 {s(S_MIR)}, 2048, 0
        v_sub_u32 v9, 31, v8
        v_cndmask_b32 v9, v8, v9, vcc
        v_lshrrev_b32 v10, 2, v9
        v_and_b32 v11, 3, v9
        v_lshlrev_b32 v10, 12, v10
        v_lshl_add_u32 v10, v11, 9, v10
        v_add_u32 v10, v6, v10
        v_add_u32 v9, 1, v9
        v_bfe_u32 v11, v9, 2, 2
        v_and_b32 v9, 3, v9
        v_lshlrev_b32 v11, 12, v11
        v_lshl_add_u32 v11, v9, 9, v11
        v_add_u32 v11, v6, v11
        s_add_u32 {s(S_T0)}, {s(S_MIR)}, {WS_HN}
        s_mov_b32 {s(S_T1)}, {WS_ST}
        ''', wops, self.opt.get('p4w', 5))
        A.wait(vm=self.rst)
        self.dual(lambda sc: self.setflag(S_AM0, sc))
        self.stamp('F3 set')
        A(f'''
        buffer_load_dwordx4 v[208:211], v10, {s(SRD_WS,4)}, {s(S_T0)} offen sc1
        buffer_load_dwordx4 v[212:215], v10, {s(SRD_WS,4)}, {s(S_T0)} offen offset:256 sc1
        buffer_load_ushort v216, v11, {s(SRD_WS,4)}, {s(S_T0)} offen sc1
        buffer_load_dwordx2 v[218:219], v7, {s(SRD_WS,4)}, {s(S_T1)} offen sc1
        buffer_load_dwordx4 v[220:223], v12, {s(SRD_B2,4)}, 0 offen
        buffer_load_dwordx4 v[224:227], v12, {s(SRD_B2,4)}, 0 offen offset:16
        ''')
        V_OO = 228
        self.weave(f'''
        s_sub_u32 {s(S_T0)}, 64, {s(S_U4)}
        s_cmp_eq_u32 {s(S_U4)}, 0 @@ s_cselect_b32 {s(S_T0)}, 32, {s(S_T0)}
        s_bitcmp1_b32 {s(S_W)}, 0 @@ s_cselect_b32 {s(S_T0)}, {s(S_T0)}, {s(S_U4)}
        s_lshl_b32 {s(S_T0)}, {s(S_T0)}, 10
        v_and_b32 v6, 31, {v(V_LANE)}
        v_lshlrev_b32 v6, 16, v6
        v_add3_u32 {v(V_OO)}, v6, v12, {s(S_T0)}
        s_lshl_b32 {s(S_T0)}, {s(S_U4)}, 8
        s_lshl_b32 {s(S_T1)}, {s(S_W)}, 6
        s_add_u32 {s(S_T0)}, {s(S_T0)}, {s(S_T1)}
        s_add_u32 {s(S_T0)}, {s(S_T0)}, {F3}
        v_lshl_add_u32 v6, {v(V_LANE)}, 3, {s(S_T0)}
        s_mul_i32 {s(S_T2)}, {s(S_U4)}, {2*112*1024}
        s_mul_i32 {s(S_T1)}, {s(S_W)}, {28*1024}
        s_add_u32 {s(S_T2)}, {s(S_T2)}, {s(S_T1)}
        s_add_u32 {s(S_T2)}, {s(S_T2)}, {WS_R}
        s_bitcmp1_b32 {s(S_W)}, 0 @@ s_cselect_b32 {s(S_T0)}, {112*1024}, 0 @@ s_cselect_b32 {s(S_T1)}, 0, {112*1024}
        s_add_u32 {s(S_T0)}, {s(S_T0)}, {s(S_T2)}
        s_add_u32 {s(S_T1)}, {s(S_T1)}, {s(S_T2)}
        v_add_u32 v12, {s(S_T0)}, {v(V_L16)}
        v_add_u32 v13, {s(S_T1)}, {v(V_L16)}
        ''', wops, 4)
        while wops: wops.pop(0)()
        self.stamp('p4 prepoll')
        self.poll(6, 8, 8)
        self.stamp('p4 polled')
        def rreg(i, nt):
            n = 2 * i + nt
            return v(RV + 4 * n, 4) if n < 20 else a(96 + 4 * (n - 20), 4)
        rm = {}
        def rld(i):
            k = i
            if k % 4 == 0: A(f's_mov_b32 {s(S_T2)}, {(k//4)*4096}')
            for nt in range(2):
                A(f'buffer_load_dwordx4 {rreg(i,nt)}, {v(12+nt)}, {s(SRD_WS,4)}, {s(S_T2)} offen offset:{(k%4)*1024}{self.ldf}')
            rm[i] = A.nvm
        LA = self.opt.get('la4', 5)
        for i in range(LA): rld(i)
        def unp(dst, r, hi):
            if hi: A(f'v_and_b32 {v(dst)}, 0xffff0000, {v(r)}')
            else: A(f'v_lshlrev_b32 {v(dst)}, 16, {v(r)}')
        LM = A.newlabel('mir'); LJ = A.newlabel('join')
        A(f's_cmp_ge_u32 {s(S_CB)}, 4\ns_cbranch_scc1 {LM}')
        for k in range(16): unp(BASE + k, 208 + k // 2, k & 1)
        A(f's_branch {LJ}')
        A.label(LM)
        unp(BASE, 216, 0)
        for k in range(1, 16): unp(BASE + k, 208 + (16 - k) // 2, (16 - k) & 1)
        A.label(LJ)
        for k in range(16):
            unp(6, 220 + k // 2, k & 1)
            A(f'v_add_f32 v6, v6, v218')
            A(f'v_fma_f32 {v(BASE+k)}, {v(BASE+k)}, v219, v6')
        def areg(i, mt):
            return a(8 * i + 4 * mt, 4) if i < 12 else v(AF + 8 * (i % 4) + 4 * mt, 4)
        lm = {}
        def rd(i, mt):
            base = AF + 8 * (i % 4) + 4 * mt
            for hh in range(2):
                if i < 18: self.w2_rd1(v(base + 2*hh, 2), 230, i - 12, mt, hh)
                else: self.w2_rd1(v(base + 2*hh, 2), 232, i - 18, mt, hh)
            lm[i] = A.nlg
        D = 3
        for i in range(28):
            A.wait(vm=rm[i], lg=lm.get(i))
            for mt in range(2):
                for nt in range(2):
                    c = ACC + 32 * mt + 16 * nt
                    cin = '0' if i == 0 else v(c, 16)
                    A(f'v_mfma_f32_32x32x16_bf16 {v(c,16)}, {areg(i,mt)}, {rreg(i,nt)}, {cin}')
                    if mt == 0 and nt == 0 and i + LA < 28: rld(i + LA)
                if 12 <= i + D < 28: rd(i + D, mt)
        self.stamp('p4 mfma done')
        A(f'v_add_u32 v6, {s(S_SB)}, {v(V_L16)}')
        for T in range(1, 4):
            A(f'''
            s_xor_b32 {s(S_T0)}, {s(S_W)}, {T}
            s_mul_i32 {s(S_T0)}, {s(S_T0)}, {SPW}
            s_add_u32 {s(S_T0)}, {s(S_T0)}, {L_S + (T-1)*4096}
            v_add_u32 {v(6+T)}, {s(S_T0)}, {v(V_L16)}
            ''')
        for T in range(1, 4):
            for qq in range(4):
                A(f'ds_write_b128 v6, {v(ACC+16*T+4*qq,4)} offset:{(T-1)*4096 + qq*1024}')
        for k in range(0, 16, 2):
            A(f'v_pk_add_f32 {v(BASE+k,2)}, {v(BASE+k,2)}, {v(ACC+k,2)}')
        A('s_waitcnt lgkmcnt(0)\ns_barrier')
        for T in range(1, 4):
            for qq in range(4):
                A(f'ds_read_b128 {v(128+16*(T-1)+4*qq,4)}, {v(6+T)} offset:{qq*1024}')
        for sl in range(3):
            A(f's_waitcnt lgkmcnt({8-4*sl})')
            for k in range(0, 16, 2):
                A(f'v_pk_add_f32 {v(BASE+k,2)}, {v(BASE+k,2)}, {v(128+16*sl+k,2)}')
        for k in range(8):
            A(f'v_cvt_pk_bf16_f32 {v(96+k)}, {v(BASE+2*k)}, {v(BASE+2*k+1)}')
        A(f'buffer_store_dwordx4 v[96:99], {v(V_OO)}, {s(SRD_OUT,4)}, 0 offen{self.outf}')
        A(f'buffer_store_dwordx4 v[100:103], {v(V_OO)}, {s(SRD_OUT,4)}, 0 offen offset:16{self.outf}')

    def probe_end(self):
        A = self.A
        a_, b_ = self.opt['probe'].split('-')
        if b_ == 'end':
            A('s_waitcnt vmcnt(0)'); self.stamp('end')
        A(f'''
        s_waitcnt lgkmcnt(0)
        s_sub_u32 {s(S_T0)}, {s(S_TS+4)}, {s(S_TS if a_ == 'start' else S_TS+2)}
        s_cmp_ge_u32 {s(S_N)}, {self.opt.get('pmax', 32)}
        s_cselect_b32 {s(S_T0)}, 0, {s(S_T0)}
        s_min_u32 {s(S_T0)}, {s(S_T0)}, 4000
        s_lshl_b32 {s(S_T0)}, {s(S_T0)}, 2
        s_add_u32 {s(S_T0)}, {s(S_T0)}, 4000
        s_add_u32 {s(S_T0)}, {s(S_T0)}, {s(S_TS)}
        L_pspin:
        s_memrealtime {s(S_TS+6,2)}
        s_waitcnt lgkmcnt(0)
        s_sub_u32 {s(S_T1)}, {s(S_TS+6)}, {s(S_T0)}
        s_cmp_lt_i32 {s(S_T1)}, 0
        s_cbranch_scc1 L_pspin
        ''')

    def dump_ts(self):
        if self.opt.get('probe'): return self.probe_end()
        if not self.diag: return
        A = self.A
        A('s_waitcnt vmcnt(0)')
        self.stamp('end')
        A(f'''
        s_lshl_b32 {s(S_T0)}, s2, 2
        s_add_u32 {s(S_T0)}, {s(S_T0)}, {s(S_W)}
        s_lshl_b32 {s(S_T0)}, {s(S_T0)}, 7
        s_add_u32 {s(S_T0)}, {s(S_T0)}, {WS_TS}
        s_getreg_b32 {s(S_T1)}, hwreg(HW_REG_XCC_ID)
        s_waitcnt lgkmcnt(0)
        s_mov_b64 exec, 1
        ''')
        for i in range(20): A(f'v_mov_b32 {v(16+i)}, {s(S_TS+2*i)}')
        A(f'v_mov_b32 v40, {s(S_T1)}')
        A(f'v_mov_b32 v41, {s(S_FAST)}')
        for i in range(5):
            A(f'buffer_store_dwordx4 {v(16+4*i,4)}, off, {s(SRD_WS,4)}, {s(S_T0)} offset:{16*i}')
        A(f'buffer_store_dwordx2 v[40:41], off, {s(SRD_WS,4)}, {s(S_T0)} offset:80')

    def build(self):
        A = self.A
        self.p1()
        LI = A.newlabel('idle'); LJ = A.newlabel('p3')
        A(f's_cmp_ge_u32 {s(S_N)}, 16\ns_cbranch_scc1 {LI}')
        n0, l0 = A.nvm, A.nlg
        self.p2()
        A(f's_branch {LJ}')
        A.label(LI)
        A.nvm, A.nlg = n0, l0
        self.p2_idle()
        A.label(LJ)
        self.p3()
        self.p4()
        self.dump_ts()
        hdr = f'''; FNet (2D DFT, factored) + LayerNorms + squared-ReLU FFN, one persistent launch.
; @launch grid=(256,1,1) block=(256,1,1) lds=163840
''' + (f'; names: {",".join(self.names)}\n' if self.diag else '') + f'''.amdgcn_target "amdgcn-amd-amdhsa--gfx950"
.text
.globl {KNAME}
.p2align 8
.type {KNAME},@function
{KNAME}:
'''
        ftr = f'''L_end:
    s_endpgm
.section .rodata,"a"
.p2align 6
.amdhsa_kernel {KNAME}
  .amdhsa_next_free_vgpr 512
  .amdhsa_next_free_sgpr 102
  .amdhsa_accum_offset 256
  .amdhsa_group_segment_fixed_size 0
  .amdhsa_kernarg_size 104
  .amdhsa_user_sgpr_count 2
  .amdhsa_user_sgpr_kernarg_segment_ptr 1
  .amdhsa_system_sgpr_workgroup_id_x 1
.end_amdhsa_kernel
'''
        return hdr + A.text() + ftr

if __name__ == '__main__':
    out = sys.argv[1]
    opt = {}
    for x in sys.argv[2:]:
        if '=' in x:
            k, val = x.split('='); opt[k] = int(val) if val.lstrip('-').isdigit() else val.replace('_', ' ')
    g = Gen(diag='diag' in sys.argv[2:], opt=opt)
    t = g.build()
    open(out, 'w').write(t)
    print('nops inserted', g.A.nops, 'stamps', len(g.names))
```

```python
import sys
from asmlib import *

KNAME = 'sequential_preLN__spectral_fnet__dense_activation_squared_relu__prompt_kernel'
WS_Z, WS_HN, WS_R, WS_ST, WS_FL, WS_TS = 0, 2 << 20, 4 << 20, 12 << 20, 13 << 20, 14 << 20
WS_SIZE = 16 << 20
F1 = WS_FL + 0x10000
F2 = WS_FL + 0x2000
F3 = WS_FL + 0x4000
FX = WS_FL + 0x6000
FE = WS_FL + 0x7000
WPW = 28672
L_S = 114688
SPW = 12288
L_TAB, L_EXC = L_S, L_S + 32768
S_W = 3
S_T0, S_T1, S_T2, S_T3 = 4, 5, 6, 7
SRD_X, SRD_W1, SRD_W2, SRD_OUT, SRD_WS, SRD_B1, SRD_B2 = 8, 12, 16, 20, 24, 28, 32
S_CNT, S_FAST = 36, 37
S_F1 = S_CNT
S_J, S_N, S_S1, S_Q, S_U2, S_RQ, S_FB, S_RB, S_CB, S_XB = 38, 39, 40, 41, 42, 43, 44, 45, 46, 47
S_U4 = S_S1
S_XO = 48
S_W2S, S_AM0, S_BSO, S_BM0 = 52, 53, 54, 55
SRD_B = 56
S_M = 60
S_TS = 62
S_WB, S_SB = 0, 1
V_LANE, V_L15, V_G, V_L16, V_TAG = 0, 1, 2, 3, 4
V_W2A = 200
V_L128 = 14
V_W1A = 240
V_BIAS = 184


class TAsm(Asm):
    def __init__(self):
        super().__init__(); self.nvm = 0; self.nlg = 0
    def i(self, text):
        super().i(text)
        c = self.hist[-1]
        if c.is_vmem: self.nvm += 1
        if c.is_ds: self.nlg += 1
    def wait(self, vm=None, lg=None):
        p = []
        if vm is not None: p.append(f'vmcnt({min(63, self.nvm - vm)})')
        if lg is not None: p.append(f'lgkmcnt({min(15, self.nlg - lg)})')
        self('s_waitcnt ' + ' '.join(p))

class Gen:
    def __init__(self, diag=False, opt=None):
        self.A = TAsm(); self.diag = diag; self.nts = 0; self.names = []
        self.opt = opt or {}
        self.fsh = self.opt.get('fsh', 4)
        fl = lambda k, d: (' ' + self.opt[k]).rstrip() if self.opt.get(k, 'pl') != 'pl' else ('' if k in self.opt else d)
        self.stf = fl('stf', ''); self.ldf = fl('ldf', ' sc1'); self.outf = fl('outf', ''); self.zldf = fl('zldf', ' sc1')
        self.skip = {'kernarg', 'Z first'} if not self.opt.get('early') else {'p4 prepoll', 'F3 set'}

    def stamp(self, name, idx=None):
        pr = self.opt.get('probe')
        if pr:
            a_, b_ = pr.split('-')
            if name == 'start': self.A(f's_memrealtime {s(S_TS, 2)}')
            if name == a_ and name != 'start': self.A(f's_memrealtime {s(S_TS+2, 2)}')
            if name == b_: self.A(f's_memrealtime {s(S_TS+4, 2)}')
            return
        if self.diag and name not in self.skip:
            if name in self.names: idx = self.names.index(name)
            else:
                idx = len(self.names); self.names.append(name)
            assert idx < 20
            self.A(f'{"s_memtime" if self.opt.get("cyc") else "s_memrealtime"} {s(S_TS + 2*idx, 2)}')

    def weave(self, lines, bg, every):
        if isinstance(lines, str): lines = [x.strip() for x in lines.strip().split('\n') if x.strip()]
        for n, x in enumerate(lines):
            self.A(x.replace(' @@ ', '\n'))
            if bg and (n + 1) % every == 0: bg.pop(0)()

    def srd(self, base, nbytes):
        self.A(f's_mov_b32 {s(base+2)}, {nbytes}\ns_mov_b32 {s(base+3)}, 0x20000')

    def poll(self, vaddr, nl, vtmp):
        A = self.A
        L = A.newlabel('poll'); D = A.newlabel('polld')
        if nl < 64: A(f's_mov_b64 exec, {(1<<nl)-1}')
        A(f's_mov_b32 {s(S_CNT)}, 0x20000')
        A.label(L)
        A(f'buffer_load_dwordx2 {v(vtmp,2)}, {v(vaddr)}, {s(SRD_WS,4)}, 0 offen sc1')
        A(f's_sub_u32 {s(S_CNT)}, {s(S_CNT)}, 1')
        A(f's_cbranch_scc1 {D}')
        A('s_waitcnt vmcnt(0)')
        A(f'v_cmp_ne_u64 vcc, {v(vtmp,2)}, {v(V_TAG,2)}')
        A(f's_cbranch_vccnz {L}')
        A.label(D)
        A('s_waitcnt vmcnt(0)')
        if nl < 64: A('s_mov_b64 exec, -1')

    def setflag(self, soff, sc):
        A = self.A
        A('s_mov_b64 exec, 1')
        A(f'buffer_store_dwordx2 {v(V_TAG,2)}, off, {s(SRD_WS,4)}, {s(soff)}{sc}')
        A('s_mov_b64 exec, -1')

    def dual(self, fn, data=False):
        A = self.A
        if self.opt.get('nofast') or (data and self.opt.get('hyb')):
            fn(' sc1'); return
        LS = A.newlabel('slow'); LJ = A.newlabel('dj')
        A(f's_cmp_eq_u32 {s(S_FAST)}, 0\ns_cbranch_scc1 {LS}')
        n0, l0 = A.nvm, A.nlg
        fn(self.stf if data else '')
        A(f's_branch {LJ}')
        A.label(LS)
        A.nvm, A.nlg = n0, l0
        fn(' sc1')
        A.label(LJ)

    def w1_addr_setup(self):
        A = self.A; vdst = V_W1A
        A(f'''
        s_and_b32 {s(S_T0)}, {s(S_W)}, 1
        s_lshl_b32 {s(S_T0)}, {s(S_T0)}, 5
        s_mul_i32 {s(S_T1)}, {s(S_FB)}, 224
        s_mov_b32 {s(S_T2)}, 4682
        s_cmp_ge_u32 {s(S_W)}, 2
        s_cselect_b64 vcc, -1, 0
        s_movk_i32 {s(S_T3)}, 3584
        ''')
        for i in range(7):
            A(f'''
            v_add_u32 v6, {64*i}, {v(V_LANE)}
            v_mul_u32_u24 v7, {s(S_T2)}, v6
            v_lshrrev_b32 v7, 16, v7
            v_mul_u32_u24 v8, 14, v7
            v_sub_u32 v8, v6, v8
            v_bfe_u32 v9, v7, 2, 2
            v_and_b32 v10, 3, v7
            v_lshl_add_u32 v9, v9, 3, v10
            v_lshrrev_b32 v10, 4, v7
            v_lshl_add_u32 v9, v10, 2, v9
            v_add_u32 v9, {s(S_T0)}, v9
            v_sub_u32 v10, 320, v9
            v_cndmask_b32 v10, v9, v10, vcc
            v_lshl_add_u32 v8, v8, 4, {s(S_T1)}
            v_mad_u32_u24 {v(vdst+i)}, v10, {s(S_T3)}, v8
            s_add_u32 {s(S_T1)}, {s(S_T1)}, {3072 if i == 3 else -1024}
            ''')
            if i == 0:
                A(f'''
                v_mov_b32 v11, 320
                v_cmp_eq_u32 {s(S_M,2)}, v11, v10
                v_mov_b32 v11, 64
                v_cndmask_b32 v10, v10, v11, {s(S_M,2)}
                v_mad_u32_u24 {v(vdst+7)}, v10, {s(S_T3)}, v8
                ''')
    def w1_soff(self, dst, wp):
        self.A(f'''
        s_cmp_ge_u32 {s(S_W)}, 2
        s_mov_b32 {s(dst)}, {64*wp*3584}
        s_cselect_b32 {s(dst)}, {(3-wp)*64*3584}, {s(dst)}
        ''')
    def w1_ops(self, wp, i0, i1, sreg):
        A = self.A; ops = []
        for i in range(i0, i1):
            def f(i=i):
                if i == i0 or i == 4: A(f's_add_u32 m0, {s(S_WB)}, {wp*7168 + (i//4)*4096}')
                if i == i0: self.w1_soff(sreg, wp)
                va = V_W1A + 7 if (wp == 0 and i == 0) else V_W1A + i
                A(f'buffer_load_dwordx4 {v(va)}, {s(SRD_W1,4)}, {s(sreg)} offen offset:{(i%4)*1024} lds')
            ops.append(f)
        return ops

    def w2_addr_lines(self):
        return f'''
        v_lshrrev_b32 v6, 3, {v(V_LANE)}
        v_and_b32 v7, 7, {v(V_LANE)}
        v_lshlrev_b32 v8, 1, v6
        v_and_b32 v8, 4, v8
        v_xor_b32 v7, v7, v8
        v_lshlrev_b32 v7, 4, v7
        v_lshl_add_u32 {v(V_W2A)}, v6, 10, v7
        s_mul_i32 {s(S_T0)}, {s(S_W)}, {448*1024}
        s_lshl_b32 {s(S_T1)}, {s(S_CB)}, 7
        s_add_u32 {s(S_T0)}, {s(S_T0)}, {s(S_T1)}
        v_add_u32 {v(V_W2A)}, {s(S_T0)}, {v(V_W2A)}
        v_add_u32 {v(V_W2A+1)}, 7168, {v(V_W2A)}
        v_add_u32 {v(V_W2A+2)}, {2*7168}, {v(V_W2A)}
        v_add_u32 {v(V_W2A+3)}, {3*7168}, {v(V_W2A)}
        '''
    def w2_ops(self, k0, nk, sbase):
        A = self.A; ops = []
        for i in range(2 * nk):
            def f(i=i):
                if i % 4 == 0:
                    A(f's_add_u32 m0, {s(sbase)}, {i*1024}')
                    A(f's_mov_b32 {s(S_W2S)}, {(2*k0+i)*8192}')
                A(f'buffer_load_dwordx4 {v(V_W2A+i%4)}, {s(SRD_W2,4)}, {s(S_W2S)} offen offset:{(i%4)*1024} lds')
            ops.append(f)
        return ops
    def touch(self, vd, srd, soff, lanes, fl=''):
        A = self.A
        if lanes < 64: A(f's_mov_b64 exec, {hex((1<<lanes)-1)}' if lanes <= 32 else f's_mov_b32 exec_hi, {hex((1<<(lanes-32))-1)}')
        A(f'buffer_load_dword {v(vd)}, {v(V_L128)}, {s(srd,4)}, {s(soff)} offen{fl}')
        if lanes < 64: A('s_mov_b64 exec, -1')
    def w2_rd_addr(self, vdst, sbase):
        A = self.A
        A(f'''
        v_lshrrev_b32 v6, 5, {v(V_LANE)}
        v_lshlrev_b32 v6, 10, v6
        v_bfe_u32 v7, {v(V_LANE)}, 2, 2
        v_lshl_add_u32 v6, v7, 7, v6
        v_and_b32 v8, 1, {v(V_LANE)}
        v_lshl_add_u32 v6, v8, 5, v6
        v_bfe_u32 v8, {v(V_LANE)}, 1, 1
        v_lshl_add_u32 v6, v8, 3, v6
        v_bfe_u32 v8, {v(V_LANE)}, 4, 1
        v_lshl_add_u32 v6, v8, 4, v6
        v_bfe_u32 v8, {v(V_LANE)}, 3, 1
        v_lshl_add_u32 v6, v8, 6, v6
        v_add_u32 {v(vdst)}, {s(sbase)}, v6
        v_xor_b32 v6, 64, v6
        v_add_u32 {v(vdst+1)}, {s(sbase)}, v6
        ''')
    def w2_rd1(self, dst, vaddr, loc, mt, hh):
        self.A(f'ds_read_b64_tr_b16 {dst}, {v(vaddr+mt)} offset:{loc*2048 + hh*512}')

    def align(self):
        if 'pg' not in self.opt: return ''
        return '.p2align 12\n' + (f".fill {self.opt['pg']//4}, 4, 0xbf810000\n" if self.opt['pg'] else '')
    def site(self, X):
        if 'pad' + X in self.opt: self.A.raw(f';SITE {X}')
    def cpf(self):
        self.A(f'''
        s_getpc_b64 {s(S_M,2)}
        L_pc0:
        s_lshr_b32 {s(S_FAST)}, s2, 3
        s_lshl2_add_u32 {s(S_FAST)}, {s(S_FAST)}, {s(S_W)}
        s_lshl_b32 {s(S_FAST)}, {s(S_FAST)}, 8
        s_min_u32 {s(S_FAST)}, {s(S_FAST)}, L_end-L_pc0-192
        ''')
        for k in range(4): self.A(f's_load_dword {s(S_CNT)}, {s(S_M,2)}, {s(S_FAST)} offset:{64*k}')

    def p1(self):
        A = self.A
        X, SC, R1, ONES, SUM, SQ, ACC = 16, 80, 144, 152, 156, 160, 208
        V_SGN, V_FAC, V_ZO, V_EW, V_XD, V_XR, V_ER, V_BA, V_A0 = 198, 199, 164, 165, 166, 168, 170, 172, 176
        A(f'''
        s_cmp_ge_u32 s2, 256
        s_cbranch_scc1 L_end
        s_load_dwordx2 {s(SRD_X,2)}, s[0:1], 0
        s_load_dwordx2 {s(SRD_WS,2)}, s[0:1], 96
        s_load_dwordx2 {s(SRD_W1,2)}, s[0:1], 48
        s_load_dwordx2 {s(SRD_W2,2)}, s[0:1], 64
        s_load_dwordx2 {s(SRD_B1,2)}, s[0:1], 56
        s_load_dwordx2 {s(SRD_B2,2)}, s[0:1], 72
        s_load_dwordx2 {s(SRD_OUT,2)}, s[0:1], 80
        ''')
        self.stamp('start')
        if self.diag:
            for i in range(2, 40): A(f's_mov_b32 {s(S_TS+i)}, 0')
        if self.opt.get('cpf', 0) == 3:
            A(f'''
            s_getpc_b64 {s(S_M,2)}
            L_pc0:
            s_lshr_b32 {s(S_T0)}, s2, 3
            s_lshl_b32 {s(S_T0)}, {s(S_T0)}, 10
            v_lshl_add_u32 v7, v0, 2, {s(S_T0)}
            v_min_u32 v7, L_end-L_pc0, v7
            global_load_dword {v(204)}, v7, {s(S_M,2)}
            ''')
        A(f'''
        v_lshrrev_b32 v6, 6, v0
        v_and_b32 {v(V_LANE)}, 63, v0
        v_readfirstlane_b32 {s(S_W)}, v6
        ''')
        if self.opt.get('cpf', 0) == 1: self.cpf()
        A(f'''
        v_and_b32 {v(V_L15)}, 15, {v(V_LANE)}
        v_lshrrev_b32 {v(V_G)}, 4, {v(V_LANE)}
        v_lshlrev_b32 {v(V_L16)}, 4, {v(V_LANE)}
        v_lshlrev_b32 {v(V_L128)}, 7, {v(V_LANE)}
        s_and_b32 {s(S_J)}, s2, 7
        s_lshr_b32 {s(S_N)}, s2, 3
        s_and_b32 {s(S_Q)}, {s(S_N)}, 7
        s_lshl_b32 {s(S_T0)}, {s(S_J)}, 2
        s_lshr_b32 {s(S_T1)}, {s(S_N)}, 3
        s_add_u32 {s(S_S1)}, {s(S_T0)}, {s(S_T1)}
        s_bfe_u32 {s(S_T1)}, {s(S_N)}, 0x20002
        s_add_u32 {s(S_U2)}, {s(S_T0)}, {s(S_T1)}
        s_and_b32 {s(S_RQ)}, {s(S_N)}, 3
        s_and_b32 {s(S_FB)}, {s(S_N)}, 15
        s_lshr_b32 {s(S_T1)}, {s(S_N)}, 4
        s_lshl_b32 {s(S_RB)}, {s(S_J)}, 1
        s_add_u32 {s(S_RB)}, {s(S_RB)}, {s(S_T1)}
        s_mov_b32 {s(S_CB)}, {s(S_Q)}
        s_mul_i32 {s(S_XB)}, {s(S_T1)}, 12288
        s_mul_i32 {s(S_T0)}, {s(S_W)}, {WPW}
        s_add_u32 {s(S_XB)}, {s(S_XB)}, {s(S_T0)}
        s_lshl_b32 {s(S_T0)}, {s(S_Q)}, 7
        s_and_b32 {s(S_T1)}, {s(S_T0)}, 0x200
        ''')
        for i in range(4):
            A(f's_add_u32 {s(S_T2)}, {s(S_T0)}, {128*i}\ns_and_b32 {s(S_T2)}, {s(S_T2)}, 0x180\ns_or_b32 {s(S_XO+i)}, {s(S_T2)}, {s(S_T1)}')
        self.srd(SRD_X, 2097152); self.srd(SRD_WS, WS_SIZE); self.srd(SRD_W2, 1835008); self.srd(SRD_W1, 1835008)
        self.srd(SRD_B1, 3584); self.srd(SRD_B2, 1024); self.srd(SRD_OUT, 2097152)
        A(f'''
        s_lshl_b32 {s(S_T0)}, {s(S_W)}, 19
        s_lshl_b32 {s(S_T1)}, {s(S_S1)}, 10
        s_add_u32 {s(S_T0)}, {s(S_T0)}, {s(S_T1)}
        v_lshrrev_b32 v12, 3, {v(V_LANE)}
        v_and_b32 v13, 7, {v(V_LANE)}
        v_xor_b32 v13, v13, {v(V_G)}
        v_lshlrev_b32 v13, 4, v13
        v_lshl_add_u32 v6, v12, 15, v13
        v_add_u32 {v(V_XD)}, {s(S_T0)}, v6
        v_xor_b32 v6, 64, {v(V_XD)}
        v_add_u32 {v(V_XD+1)}, {8*32768 - 1024}, v6
        ''')
        A(f'''
        s_lshl_b32 {s(S_T0)}, {s(S_Q)}, 5
        v_lshrrev_b32 v6, 2, {v(V_L15)}
        v_and_b32 v7, 3, {v(V_L15)}
        v_lshl_add_u32 v6, v6, 3, v7
        v_add_u32 v6, {s(S_T0)}, v6
        v_add_u32 v7, 4, v6
        v_cmp_eq_u32 vcc, 0, v6
        v_mov_b32 v8, 0x100
        v_cndmask_b32 v6, v6, v8, vcc
        v_cvt_f32_u32 v6, v6
        v_cvt_f32_u32 v7, v7
        v_mul_f32 v6, {f2u(1/512)}, v6
        v_mul_f32 v7, {f2u(1/512)}, v7
        s_add_u32 {s(S_T0)}, {s(S_W)}, {s(S_Q)}
        s_and_b32 {s(S_T0)}, {s(S_T0)}, 3
        s_lshl_b32 {s(S_T0)}, {s(S_T0)}, 6
        v_lshl_add_u32 v8, {v(V_G)}, 3, {s(S_T0)}
        v_cvt_f32_u32 v8, v8
        v_add_f32 v9, {f2u(32.0)}, v8
        s_lshl_b32 {s(S_T0)}, {s(S_W)}, 13
        s_add_u32 {s(S_T0)}, {s(S_T0)}, {L_TAB}
        v_add_u32 v10, {s(S_T0)}, {v(V_L16)}
        ''')
        def tab(kk, et):
            b = SC + 32 * et
            A(f'v_mul_f32 {v(b)}, {v(6+et)}, {v(8+kk)}')
            for j in range(1, 8):
                A(f'v_add_f32 {v(b+j)}, {v(b+j-1)}, {v(6+et)}')
            for j in range(8):
                A(f'v_cos_f32 {v(b+8+j)}, {v(b+j)}')
                A(f'v_sin_f32 {v(b+16+j)}, {v(b+j)}')
            for j in range(4):
                A(f'v_cvt_pk_bf16_f32 {v(b+24+j)}, {v(b+8+2*j)}, {v(b+9+2*j)}')
            for j in range(4):
                A(f'v_cvt_pk_bf16_f32 {v(b+28+j)}, {v(b+16+2*j)}, {v(b+17+2*j)}')
            A(f'ds_write_b128 v10, {v(b+24,4)} offset:{(kk*4+et*2)*1024}')
            A(f'ds_write_b128 v10, {v(b+28,4)} offset:{(kk*4+et*2+1)*1024}')
        npre = self.opt.get('tabpre', 1)
        tabs = [(0, 0), (0, 1), (1, 0), (1, 1)]
        for t in tabs[:npre]: tab(*t)
        T0L, T1L = self.opt.get('t0', 32), self.opt.get('t1', 48)
        A(f'''
        s_mov_b32 {s(S_T2)}, {FE}
        s_lshl_b32 {s(S_T3)}, {s(S_N)}, 2
        s_add_u32 {s(S_T3)}, {s(S_T3)}, {s(S_W)}
        s_mul_i32 {s(S_AM0)}, {s(S_T3)}, {T1L*128}
        s_add_u32 {s(S_AM0)}, {s(S_AM0)}, {64*3584 + T0L*128*128}
        s_mul_i32 {s(S_T3)}, {s(S_T3)}, {T0L*128}
        s_add_u32 {s(S_T3)}, {s(S_T3)}, {64*3584}
        ''')
        A('s_waitcnt lgkmcnt(0)')
        self.stamp('kernarg')
        xm = []
        def xdma(i):
            A(f's_add_u32 m0, {s(S_XB)}, {i*2048}')
            so = S_XO + (i >> 1)
            if i & 1:
                A(f's_xor_b32 {s(S_T0)}, {s(so)}, 0x200'); so = S_T0
            A(f'buffer_load_dwordx4 {v(V_XD)}, {s(SRD_X,4)}, {s(so)} offen lds')
            A(f'buffer_load_dwordx4 {v(V_XD+1)}, {s(SRD_X,4)}, {s(so)} offen offset:1024 lds')
            xm.append(A.nvm)
        NX0 = self.opt.get('nx0', 5)
        xdma(0)
        A(f'buffer_load_dwordx2 {v(V_TAG,2)}, off, {s(SRD_WS,4)}, {s(S_T2)} sc1')
        for i in range(1, NX0):
            if i == self.opt.get('t0pos', 1) and T0L: self.touch(204, SRD_W1, S_T3, T0L)
            xdma(i)
        if self.opt.get('cpf') == 2: self.cpf()
        A(f'''
        s_mul_i32 {s(S_WB)}, {s(S_W)}, {WPW}
        s_mul_i32 {s(S_SB)}, {s(S_W)}, {SPW}
        s_add_u32 {s(S_SB)}, {s(S_SB)}, {L_S}
        ''')
        for t in tabs[npre:]: tab(*t)
        A(f'v_add_u32 v10, {L_TAB}, {v(V_L16)}')
        A('s_waitcnt lgkmcnt(0)\ns_barrier')
        def tabrd(f0, f1):
            for f in range(f0, f1): A(f'ds_read_b128 {a(4*f,4)}, v10 offset:{f*1024}')
        tabrd(0, 12)
        A(f'''
        v_lshrrev_b32 v6, 1, {v(V_L15)}
        v_xor_b32 v6, v6, {v(V_G)}
        v_lshlrev_b32 v6, 4, v6
        v_lshl_add_u32 v15, {v(V_L15)}, 7, v6
        v_add_u32 {v(V_XR)}, {s(S_XB)}, v15
        v_xor_b32 v6, 64, v15
        v_add_u32 {v(V_XR+1)}, {s(S_XB)}, v6
        ''')
        for i in range(4): A(f'v_mov_b32 {v(ONES+i)}, 0x3f803f80')
        A('s_waitcnt lgkmcnt(2)')
        tabrd(12, 24)
        A('s_waitcnt lgkmcnt(6)')
        tabrd(24, 32)
        b = SC
        fill = f'''
        s_lshl_b32 {s(S_T0)}, {s(S_W)}, 3
        v_lshrrev_b32 v6, 1, {v(V_L15)}
        v_add_u32 v6, {s(S_T0)}, v6
        v_and_b32 v7, 1, {v(V_L15)}
        v_cvt_f32_u32 v9, v7
        v_mul_f32 v9, {f2u(-0.25)}, v9
        v_lshl_add_u32 v8, v6, 1, v7
        v_cmp_eq_u32 vcc, 1, v8
        v_lshlrev_b32 v8, 2, {v(V_G)}
        v_cndmask_b32 v6, v6, 32, vcc
        v_cndmask_b32 v9, v9, 0, vcc
        v_cvt_f32_u32 v6, v6
        v_mul_f32 v6, {f2u(1/64)}, v6
        v_cvt_f32_u32 v8, v8
        v_fma_f32 {v(b)}, v6, v8, v9
        '''.strip().split('\n')
        for blk in range(4):
            for j in range(4):
                c = 16 * blk + j
                if c: fill.append(f'v_fmamk_f32 {v(b+4*blk+j)}, v6, {f2u(float(c))}, {v(b)}')
        for j in range(16): fill.append(f'v_cos_f32 {v(b+16+j)}, {v(b+j)}')
        for j in range(8): fill.append(f'v_cvt_pk_bf16_f32 {v(R1+j)}, {v(b+16+2*j)}, {v(b+17+2*j)}')
        fill += f'''
        v_and_b32 v6, 1, {v(V_LANE)}
        v_lshlrev_b32 v6, 31, v6
        v_or_b32 {v(V_SGN)}, 1.0, v6
        s_cmp_ge_u32 {s(S_Q)}, 4 @@ s_cselect_b64 vcc, -1, 0
        v_mov_b32 {v(V_FAC)}, 1.0
        v_cndmask_b32 {v(V_FAC)}, {v(V_FAC)}, {v(V_SGN)}, vcc
        s_lshl_b32 {s(S_T0)}, {s(S_W)}, 19
        s_lshl_b32 {s(S_T1)}, {s(S_Q)}, 13
        s_add_u32 {s(S_T0)}, {s(S_T0)}, {s(S_T1)}
        s_lshl_b32 {s(S_T1)}, {s(S_S1)}, 8
        s_add_u32 {s(S_T0)}, {s(S_T0)}, {s(S_T1)}
        v_lshlrev_b32 v6, 17, {v(V_G)}
        v_lshl_add_u32 v6, {v(V_L15)}, 4, v6
        v_add_u32 {v(V_ZO)}, {s(S_T0)}, v6
        s_lshr_b32 {s(S_T0)}, {s(S_W)}, 1
        s_lshl_b32 {s(S_T0)}, {s(S_T0)}, 10
        s_and_b32 {s(S_T1)}, {s(S_W)}, 1
        s_lshl_b32 {s(S_T1)}, {s(S_T1)}, 3
        s_add_u32 {s(S_T0)}, {s(S_T0)}, {s(S_T1)}
        s_add_u32 {s(S_T0)}, {s(S_T0)}, {L_EXC}
        v_add_u32 {v(V_EW)}, {s(S_T0)}, {v(V_L16)}
        v_add_u32 {v(V_ER)}, {L_EXC}, {v(V_L16)}
        s_lshl_b32 {s(S_T0)}, {s(S_W)}, 11
        s_lshr_b32 {s(S_T1)}, {s(S_Q)}, 1
        s_lshl_b32 {s(S_T1)}, {s(S_T1)}, 9
        s_add_u32 {s(S_T0)}, {s(S_T0)}, {s(S_T1)}
        s_lshl_b32 {s(S_T1)}, {s(S_S1)}, 4
        s_add_u32 {s(S_T0)}, {s(S_T0)}, {s(S_T1)}
        s_and_b32 {s(S_T1)}, {s(S_Q)}, 1
        s_lshl_b32 {s(S_T1)}, {s(S_T1)}, 3
        s_add_u32 {s(S_T0)}, {s(S_T0)}, {s(S_T1)}
        s_lshl_b32 {s(S_T0)}, {s(S_T0)}, {self.fsh}
        s_add_u32 {s(S_F1)}, {s(S_T0)}, {F1}
        v_and_b32 v6, 1, {v(V_L15)}
        v_cmp_eq_u32 {s(S_XO,2)}, 1, v6
        v_and_b32 v6, 2, {v(V_L15)}
        v_cmp_eq_u32 {s(S_XO+2,2)}, 2, v6
        v_lshrrev_b32 v6, 2, {v(V_L15)}
        v_cmp_eq_u32 {s(S_M,2)}, v6, {v(V_G)}
        s_mov_b32 {s(S_T1)}, 65536
        s_mov_b32 {s(S_T0)}, {f2u(1/512)}
        '''.strip().split('\n')
        fill = [x.strip().replace(' @@ ', '\n') for x in fill]
        self.w1_addr_setup()
        LI = A.newlabel('ri'); LJ = A.newlabel('rj')
        A(f's_cmp_ge_u32 {s(S_N)}, 16\ns_cbranch_scc1 {LI}')
        self.p2_rowbase(S_T3)
        A(f'''
        s_mov_b32 {s(S_BSO)}, 0
        s_add_u32 {s(S_BM0)}, {s(S_WB)}, 16384
        s_mov_b64 {s(SRD_B,2)}, {s(SRD_X,2)}
        s_mov_b64 {s(SRD_B+2,2)}, {s(SRD_X+2,2)}
        s_lshl_b32 {s(S_T3)}, {s(S_T3)}, 10
        s_lshl_b32 {s(S_T0)}, {s(S_W)}, 7
        s_add_u32 {s(S_T1)}, {s(S_T3)}, {s(S_T0)}
        s_sub_u32 {s(S_T2)}, {s(S_T3)}, {s(S_T0)}
        s_add_u32 {s(S_T2)}, {s(S_T2)}, 896
        v_lshl_add_u32 v6, v12, 16, v13
        v_xor_b32 v7, 64, v6
        v_add_u32 v7, {8*65536}, v7
        v_add_u32 {v(V_BA)}, {s(S_T1)}, v6
        v_add_u32 {v(V_BA+1)}, {s(S_T1)}, v7
        v_add_u32 {v(V_BA+2)}, {s(S_T2)}, v6
        v_add_u32 {v(V_BA+3)}, {s(S_T2)}, v7
        s_branch {LJ}
        ''')
        A.label(LI)
        self.w1_soff(S_BSO, 0)
        A(f'''
        s_mov_b32 {s(S_BM0)}, {s(S_WB)}
        s_mov_b64 {s(SRD_B,2)}, {s(SRD_W1,2)}
        s_mov_b64 {s(SRD_B+2,2)}, {s(SRD_W1+2,2)}
        v_mov_b32 {v(V_BA)}, {v(V_W1A+7)}
        ''')
        for i in range(1, 4): A(f'v_add_u32 {v(V_BA+i)}, {1024*i}, {v(V_W1A+i)}')
        A.label(LJ)
        self.stamp('tables')
        for i in range(NX0, 8): xdma(i)
        pf = []
        if T1L: pf.append(lambda: self.touch(205, SRD_W1, S_AM0, T1L))
        for i in range(4):
            def f(i=i):
                A(f's_add_u32 m0, {s(S_BM0)}, {i*1024}')
                fl(1)
                A(f'buffer_load_dwordx4 {v(V_BA+i)}, {s(SRD_B,4)}, {s(S_BSO)} offen lds')
            pf.append(f)
        xl = []
        def xrd(i):
            A.wait(vm=xm[i])
            for kk in range(2):
                A(f'ds_read_b128 {v(X+8*i+4*kk,4)}, {v(V_XR+kk)} offset:{i*2048}')
            xl.append(A.nlg)
        self.site('A')
        xrd(0)
        self.stamp('x first')
        xrd(1)
        A(f'''
        v_add_u32 {v(V_TAG)}, 0x9e3779b0, {v(V_TAG)}
        v_add_u32 {v(V_TAG+1)}, 0x7f4a7c15, {v(V_TAG+1)}
        s_getreg_b32 {s(S_T0)}, hwreg(HW_REG_XCC_ID)
        s_and_b32 {s(S_T0)}, {s(S_T0)}, 15
        v_add_u32 v178, {s(S_T0)}, {v(V_TAG)}
        v_mov_b32 v179, {v(V_TAG+1)}
        s_lshl_b32 {s(S_T0)}, {s(S_J)}, 8
        s_lshl_b32 {s(S_T1)}, {s(S_N)}, 3
        s_add_u32 {s(S_T0)}, {s(S_T0)}, {s(S_T1)}
        s_add_u32 {s(S_T0)}, {s(S_T0)}, {FX}
        s_mov_b64 exec, 1
        buffer_store_dwordx2 v[178:179], off, {s(SRD_WS,4)}, {s(S_T0)} sc1
        s_mov_b64 exec, -1
        ''')
        PF0 = self.opt.get('pf0', 1)
        def fl(n):
            for _ in range(n):
                if fill:
                    x = fill.pop(0); A(x)
                    if x.startswith('v_cos'): return
        for i in range(8):
            ip, hp = i >> 1, i & 1
            if i + 2 < 8: xrd(i + 2)
            A.wait(lg=xl[i])
            for kk in range(2):
                xa = X + 8 * i + 4 * kk
                first = (i == 0 and kk == 0)
                A(f'v_mfma_f32_16x16x32_bf16 {v(SQ,4)}, {v(xa,4)}, {v(xa,4)}, {"0" if first else v(SQ,4)}')
                fl(2)
                A(f'v_mfma_f32_16x16x32_bf16 {v(SUM,4)}, {v(xa,4)}, {v(ONES,4)}, {"0" if first else v(SUM,4)}')
                if i >= PF0 and pf: pf.pop(0)()
                else: fl(2)
                for t in range(4):
                    acc = ACC + 16 * hp + 4 * t
                    cin = '0' if (ip == 0 and kk == 0) else v(acc, 4)
                    A(f'v_mfma_f32_16x16x32_bf16 {v(acc,4)}, {v(xa,4)}, {a(32*ip+16*kk+4*t,4)}, {cin}')
                    if not (kk == 1 and t == 3): fl(2)
        self.stamp('gemm1 done')
        assert not fill and not pf, (len(fill), len(pf))
        A(f'''
        v_cndmask_b32 v6, {v(SQ)}, {v(SQ+1)}, {s(S_XO,2)}
        v_cndmask_b32 v7, {v(SQ+2)}, {v(SQ+3)}, {s(S_XO,2)}
        v_cndmask_b32 v8, {v(SUM)}, {v(SUM+1)}, {s(S_XO,2)}
        v_cndmask_b32 v9, {v(SUM+2)}, {v(SUM+3)}, {s(S_XO,2)}
        v_cndmask_b32 v6, v6, v7, {s(S_XO+2,2)}
        v_cndmask_b32 v8, v8, v9, {s(S_XO+2,2)}
        v_mul_f32 v8, {s(S_T0)}, v8
        v_mul_f32 v8, v8, v8
        v_fma_f32 v6, v6, {s(S_T0)}, -v8
        v_max_f32 v6, 0, v6
        v_add_f32 v6, {f2u(1e-5)}, v6
        v_rsq_f32 v6, v6
        v_fma_f32 {v(ACC)}, {v(ACC+16)}, {v(V_SGN)}, {v(ACC)}
        v_cndmask_b32 v6, 0, v6, {s(S_M,2)}
        v_fma_f32 {v(ACC+1)}, {v(ACC+17)}, {v(V_SGN)}, {v(ACC+1)}
        v_fma_f32 {v(ACC+2)}, {v(ACC+18)}, {v(V_SGN)}, {v(ACC+2)}
        v_mfma_f32_16x16x4_f32 v[20:23], v6, {v(V_FAC)}, 0
        ''')
        for i in range(3, 16):
            A(f'v_fma_f32 {v(ACC+i)}, {v(ACC+16+i)}, {v(V_SGN)}, {v(ACC+i)}')
        for t in range(4):
            for r in range(0, 4, 2):
                A(f'v_pk_mul_f32 {v(ACC+4*t+r,2)}, {v(ACC+4*t+r,2)}, {v(20+r,2)}')
            A(f'v_cvt_pk_bf16_f32 {v(24+2*t)}, {v(ACC+4*t)}, {v(ACC+4*t+1)}')
            A(f'v_cvt_pk_bf16_f32 {v(25+2*t)}, {v(ACC+4*t+2)}, {v(ACC+4*t+3)}')
            A(f'ds_write_b64 {v(V_EW)}, {v(24+2*t,2)} offset:{t*2048}')
        A('s_waitcnt lgkmcnt(0)\ns_barrier')
        for f in range(8):
            A(f'ds_read_b128 {v(32+4*f,4)}, {v(V_ER)} offset:{f*1024}')
        for t in range(4):
            A(f's_waitcnt lgkmcnt({6-2*t})')
            A(f'v_mfma_f32_16x16x32_bf16 {v(64+4*t,4)}, {v(R1,4)}, {v(32+8*t,4)}, 0')
            A(f'v_mfma_f32_16x16x32_bf16 {v(64+4*t,4)}, {v(R1+4,4)}, {v(36+8*t,4)}, {v(64+4*t,4)}')
        for k in range(2):
            for t in range(4):
                A(f'v_cvt_pk_bf16_f32 {v(80+4*k+t)}, {v(64+4*t+2*k)}, {v(65+4*t+2*k)}')
            A(f'buffer_store_dwordx4 {v(80+4*k,4)}, {v(V_ZO)}, {s(SRD_WS,4)}, {"0" if k == 0 else s(S_T1)} offen sc1')
        self.stamp('Z stores')
        self.zst = A.nvm

    def p2_rowbase(self, dst):
        self.A(f'''
        s_sub_u32 {s(S_T0)}, 64, {s(S_U2)}
        s_cmp_eq_u32 {s(S_U2)}, 0
        s_cselect_b32 {s(S_T0)}, 32, {s(S_T0)}
        s_cmp_ge_u32 {s(S_RQ)}, 2
        s_cselect_b32 {s(dst)}, {s(S_T0)}, {s(S_U2)}
        s_and_b32 {s(S_T0)}, {s(S_RQ)}, 1
        s_lshl_b32 {s(S_T0)}, {s(S_T0)}, 10
        s_add_u32 {s(dst)}, {s(dst)}, {s(S_T0)}
        ''')

    def bias_load(self):
        A = self.A
        A(f'''
        s_mul_i32 {s(S_T0)}, {s(S_FB)}, 224
        v_lshlrev_b32 v6, 3, {v(V_LANE)}
        s_mov_b64 exec, {(1<<28)-1}
        buffer_load_dwordx2 v[180:181], v6, {s(SRD_B1,4)}, {s(S_T0)} offen
        s_mov_b64 exec, -1
        ''')
    def bias_spread(self):
        A = self.A
        A(f'v_lshlrev_b32 v6, 2, {v(V_G)}')
        for ft in range(7):
            for d in range(2):
                A(f'ds_bpermute_b32 {v(V_BIAS+2*ft+d)}, v6, {v(180+d)} offset:{16*ft}')
    def fx_load(self):
        A = self.A
        A(f'''
        s_lshl_b32 {s(S_T0)}, {s(S_J)}, 8
        s_add_u32 {s(S_T0)}, {s(S_T0)}, {FX}
        v_and_b32 v6, 31, {v(V_LANE)}
        v_lshlrev_b32 v6, 3, v6
        buffer_load_dwordx2 v[182:183], v6, {s(SRD_WS,4)}, {s(S_T0)} offen sc1
        ''')
    def fx_eval(self):
        A = self.A
        A(f'''
        v_cmp_ne_u64 vcc, v[182:183], v[178:179]
        s_cmp_eq_u64 vcc, 0
        s_cselect_b32 {s(S_FAST)}, 1, 0
        ''')

    def p2(self):
        A = self.A
        ZF, TB, XR, SC, H = 16, 80, 112, 132, 208
        S_TB, S_PHI, S_MSK = 48, 49, 50
        self.p2_rowbase(S_TB)
        A(f'''
        v_lshl_add_u32 v11, {v(V_L15)}, 6, {s(S_TB)}
        s_lshl_b32 {s(S_T0)}, {s(S_W)}, 7
        s_sub_u32 {s(S_T0)}, 1024, {s(S_T0)}
        s_cmp_eq_u32 {s(S_W)}, 0
        s_cselect_b32 {s(S_T0)}, 512, {s(S_T0)}
        v_lshlrev_b32 v7, 10, v11
        s_mov_b64 exec, 0xffff
        buffer_load_ushort {v(XR+18)}, v7, {s(SRD_X,4)}, {s(S_T0)} offen
        s_mov_b64 exec, -1
        ''')
        self.bias_load()
        mb = A.nvm
        A.wait(vm=self.zst - 2)
        A(f'''
        s_add_u32 {s(S_T0)}, {s(S_WB)}, 16384
        v_add_u32 v6, {s(S_T0)}, v15
        v_xor_b32 v7, 64, v15
        v_add_u32 v7, {s(S_T0)}, v7
        v_xor_b32 v8, 0x70, v15
        v_add_u32 v8, {s(S_T0)}, v8
        v_xor_b32 v9, 0x30, v15
        v_add_u32 v9, {s(S_T0)}, v9
        ds_read_b128 {v(XR,4)}, v6
        ds_read_b128 {v(XR+4,4)}, v7
        ds_read_b128 {v(XR+8,4)}, v8 offset:2048
        ds_read_b128 {v(XR+12,4)}, v9 offset:2048
        v_lshrrev_b32 v6, 1, {v(V_L15)}
        v_sub_u32 v7, 8, {v(V_G)}
        v_and_b32 v7, 7, v7
        v_xor_b32 v7, v7, v6
        v_lshlrev_b32 v7, 4, v7
        v_lshl_add_u32 v7, {v(V_L15)}, 7, v7
        v_xor_b32 v8, 64, v7
        v_add_u32 v7, {s(S_T0)}, v7
        v_add_u32 v8, {s(S_T0)}, v8
        ds_read_u16 {v(XR+16)}, v7 offset:2048
        ds_read_u16 {v(XR+17)}, v8 offset:2048
        ''')
        A(f'''
        s_cmp_eq_u32 {s(S_U2)}, 0
        s_cselect_b32 {s(S_T1)}, 0, {f2u(-0.25)}
        s_cselect_b32 {s(S_T2)}, 0xffff0000, -1
        s_cselect_b32 {s(S_T3)}, 0xffff, -1
        s_cmp_ge_u32 {s(S_RQ)}, 2
        s_cselect_b32 {s(S_PHI)}, {s(S_T1)}, {f2u(0.25)}
        s_cselect_b32 {s(S_MSK)}, {s(S_T2)}, {s(S_T3)}
        v_cvt_f32_u32 v11, v11
        v_mul_f32 v11, {f2u(1/2048)}, v11
        s_lshl_b32 {s(S_T0)}, {s(S_RQ)}, 3
        v_add_u32 v10, {s(S_T0)}, {v(V_G)}
        ''')
        tl = []
        for half in range(2):
            b = SC
            for j in range(4):
                ks = 4 * half + j
                tl += [f'v_add_u32 v6, {4*ks}, v10', 'v_and_b32 v6, 31, v6', 'v_cvt_f32_u32 v6, v6',
                       f'v_mul_f32 {v(b+2*j)}, v6, v11', f'v_add_f32 {v(b+2*j+1)}, {s(S_PHI)}, {v(b+2*j)}']
            for j in range(8):
                tl += [f'v_cos_f32 {v(b+8+j)}, {v(b+j)}', f'v_sin_f32 {v(b+16+j)}, {v(b+j)}']
            for j in range(4):
                d = TB + 4 * (4 * half + j)
                tl += [f'v_cvt_pk_bf16_f32 {v(d)}, {v(b+8+2*j)}, {v(b+9+2*j)}',
                       f'v_cvt_pk_bf16_f32 {v(d+3)}, {v(b+16+2*j)}, {v(b+17+2*j)}',
                       f'v_and_b32 {v(d)}, {s(S_MSK)}, {v(d)}', f'v_and_b32 {v(d+3)}, {s(S_MSK)}, {v(d+3)}',
                       f'v_mov_b32 {v(d+2)}, {v(d)}', f'v_xor_b32 {v(d+1)}, 0x80008000, {v(d+3)}']
        np_ = self.opt.get('f1pos', 30)
        self.weave(tl[:np_], None, 1)
        A.wait(vm=self.zst, lg=A.nlg)
        self.setflag(S_F1, ' sc1')
        self.stamp('F1 set')
        bg = self.w1_ops(1, 0, 7, S_T2) + self.w1_ops(3, 0, 7, S_T2) + self.w1_ops(2, 0, 7, S_T2)
        nlate = self.opt.get('w1late', 0)
        late = bg[len(bg)-nlate:]; bg = bg[:len(bg)-nlate]
        self.weave(tl[np_:], bg, 8)
        A.wait(vm=mb)
        self.bias_spread()
        def unp(dst, r, hi):
            return f'v_and_b32 {v(dst)}, 0xffff0000, {v(r)}' if hi else f'v_lshlrev_b32 {v(dst)}, 16, {v(r)}'
        cl = [f'v_cmp_eq_u32 vcc, 0, {v(V_G)}', f'v_cndmask_b32 {v(XR+16)}, {v(XR+16)}, {v(XR+18)}, vcc',
              f's_cmp_eq_u32 {s(S_W)}, 0 @@ s_cselect_b64 {s(S_M,2)}, vcc, 0']
        for k in range(16): cl.append(unp(H + k, XR + k // 2, k & 1))
        for q1 in range(2):
            cl.append(unp(H + 16 + 8 * q1, XR + 16 + q1, 0))
            for j in range(1, 8): cl.append(unp(H + 16 + 8 * q1 + j, XR + 8 + 4 * q1 + (8 - j) // 2, (8 - j) & 1))
        cl.append(f'v_mov_b32 {v(XR+19)}, {v(H)}')
        self.weave(cl, bg, 8)
        self.weave(self.w2_addr_lines(), bg, 8)
        self.weave(f'''
        s_lshr_b32 {s(S_T0)}, {s(S_U2)}, 3
        s_lshl_b32 {s(S_T0)}, {s(S_T0)}, 11
        s_lshl_b32 {s(S_T1)}, {s(S_W)}, 9
        s_add_u32 {s(S_T0)}, {s(S_T0)}, {s(S_T1)}
        s_lshl_b32 {s(S_T0)}, {s(S_T0)}, {self.fsh}
        s_add_u32 {s(S_T0)}, {s(S_T0)}, {F1}
        v_lshl_add_u32 v10, {v(V_LANE)}, {3+self.fsh}, {s(S_T0)}
        s_lshl_b32 {s(S_T0)}, {s(S_U2)}, 16
        s_lshl_b32 {s(S_T1)}, {s(S_W)}, 14
        s_add_u32 {s(S_T0)}, {s(S_T0)}, {s(S_T1)}
        v_add_u32 v12, {s(S_T0)}, {v(V_L16)}
        v_add_u32 v13, 8192, v12
        s_lshl_b32 {s(S_T3)}, {s(S_RQ)}, 11
        ''', bg, 8)
        while bg: bg.pop(0)()
        self.fx_load()
        self.stamp('p2 prepoll')
        self.poll(10, 64, 8)
        self.stamp('p2 polled')
        zm = []
        def zld(kp):
            if kp: A(f's_add_u32 {s(S_T3)}, {s(S_T3)}, 2048\ns_and_b32 {s(S_T3)}, {s(S_T3)}, 0x1800')
            for kk in range(2):
                for q1 in range(2):
                    n = 4 * kp + 2 * kk + q1
                    A(f'buffer_load_dwordx4 {v(ZF+4*n,4)}, {v(12+q1)}, {s(SRD_WS,4)}, {s(S_T3)} offen offset:{kk*1024}{self.zldf}')
                    zm.append(A.nvm)
        for kp in range(3): zld(kp)
        self.fx_eval()
        pf = late + self.w1_ops(0, 0, 7, S_T2)
        for n in range(16):
            ks, q1 = n >> 1, n & 1
            A.wait(vm=zm[n])
            if n == 0: self.stamp('Z first')
            for et in range(2):
                for var in range(2):
                    acc = H + 16 * var + 8 * q1 + 4 * et
                    A(f'v_mfma_f32_16x16x16_bf16 {v(acc,4)}, {v(ZF+4*n+2*et,2)}, {v(TB+4*ks+2*var,2)}, {v(acc,4)}')
            if n == 1: zld(3)
            if n >= self.opt.get('pf2', 8) and pf: pf.pop(0)()
        self.stamp('Z landed')
        A(f'''
        s_lshl_b32 {s(S_T0)}, {s(S_W)}, 3
        s_add_u32 {s(S_T0)}, {s(S_T0)}, {L_S+4096}
        v_lshlrev_b32 v10, 5, {v(V_L15)}
        v_add_u32 v11, {s(S_T0)}, v10
        v_add_u32 v10, {s(S_SB)}, v10
        ''')
        while pf: pf.pop(0)()
        A(f'v_cndmask_b32 {v(H)}, {v(H)}, {v(XR+19)}, {s(S_M,2)}')
        A(f'v_pk_add_f32 v[6:7], {v(H,2)}, {v(H+2,2)}')
        A(f'v_pk_mul_f32 v[8:9], {v(H,2)}, {v(H,2)}')
        A(f'v_pk_fma_f32 v[8:9], {v(H+2,2)}, {v(H+2,2)}, v[8:9]')
        for k in range(4, 32, 2):
            A(f'v_pk_add_f32 v[6:7], v[6:7], {v(H+k,2)}')
            A(f'v_pk_fma_f32 v[8:9], {v(H+k,2)}, {v(H+k,2)}, v[8:9]')
        A(f'''
        v_add_f32 v6, v6, v7
        v_add_f32 v7, v8, v9
        v_mov_b32 v8, v6
        v_mov_b32 v9, v7
        v_permlane16_swap_b32 v6, v8
        v_permlane16_swap_b32 v7, v9
        v_add_f32 v6, v6, v8
        v_add_f32 v7, v7, v9
        v_mov_b32 v8, v6
        v_mov_b32 v9, v7
        v_permlane32_swap_b32 v6, v8
        v_permlane32_swap_b32 v7, v9
        v_add_f32 v6, v6, v8
        v_add_f32 v7, v7, v9
        v_mul_u32_u24 v8, {SPW}, {v(V_G)}
        v_add_u32 v11, v11, v8
        ds_write_b64 v11, v[6:7]
        s_lshl_b32 {s(S_T0)}, {s(S_U2)}, 2
        s_add_u32 {s(S_T0)}, {s(S_T0)}, {s(S_RQ)}
        s_lshl_b32 {s(S_T1)}, {s(S_T0)}, 14
        s_lshl_b32 {s(S_T2)}, {s(S_W)}, 12
        s_add_u32 {s(S_T1)}, {s(S_T1)}, {s(S_T2)}
        s_add_u32 {s(S_T1)}, {s(S_T1)}, {WS_HN}
        s_lshl_b32 {s(S_T2)}, {s(S_T0)}, 7
        s_add_u32 {s(S_T2)}, {s(S_T2)}, {WS_ST}
        s_lshl_b32 {s(S_T0)}, {s(S_T0)}, 5
        s_lshl_b32 {s(S_T3)}, {s(S_W)}, 3
        s_add_u32 {s(S_T0)}, {s(S_T0)}, {s(S_T3)}
        s_add_u32 {s(S_AM0)}, {s(S_T0)}, {F2}
        s_waitcnt lgkmcnt(0)
        s_barrier
        ds_read_b128 v[16:19], v10 offset:4096
        ds_read_b128 v[20:23], v10 offset:4112
        v_lshlrev_b32 v10, 3, {v(V_L15)}
        s_waitcnt lgkmcnt(0)
        v_pk_add_f32 v[16:17], v[16:17], v[18:19]
        v_pk_add_f32 v[20:21], v[20:21], v[22:23]
        v_pk_add_f32 v[16:17], v[16:17], v[20:21]
        v_mul_f32 v16, {f2u(1/512)}, v16
        v_mul_f32 v17, {f2u(1/512)}, v17
        v_fma_f32 v17, -v16, v16, v17
        v_max_f32 v17, 0, v17
        v_add_f32 v17, {f2u(1e-5)}, v17
        v_rsq_f32 v18, v17
        v_sqrt_f32 v17, v17
        v_mul_f32 v20, -v16, v18
        ''')
        for n in range(4):
            for k in range(0, 8, 2):
                r = H + 8 * n + k
                A(f'v_pk_fma_f32 {v(r,2)}, {v(r,2)}, v[18:19], v[20:21] op_sel_hi:[1,0,0]')
            for k in range(4):
                A(f'v_cvt_pk_bf16_f32 {v(24+4*n+k)}, {v(H+8*n+2*k)}, {v(H+8*n+2*k+1)}')
        def st(sc):
            for n in range(4):
                A(f'buffer_store_dwordx4 {v(24+4*n,4)}, {v(V_L16)}, {s(SRD_WS,4)}, {s(S_T1)} offen offset:{n*1024}{sc}')
            A(f'''
            s_mov_b64 exec, 0xffff
            buffer_store_dwordx2 v[16:17], v10, {s(SRD_WS,4)}, {s(S_T2)} offen{sc}
            s_mov_b64 exec, -1
            ''')
        self.dual(st, True)
        self.stamp('hn stores')
        m = A.nvm
        r1 = self.w2_ops(0, 6, S_SB)
        n0 = self.opt.get('r1pre', 6)
        pre = r1[:n0]
        self.p3_setup(pre)
        A.wait(vm=m)
        self.dual(lambda sc: self.setflag(S_AM0, sc))
        self.stamp('F2 set')
        for f in r1[n0:]: f()
        L = A.newlabel('noe')
        A(f'''
        s_or_b32 {s(S_T0)}, s2, {s(S_W)}
        s_cmp_lg_u32 {s(S_T0)}, 0
        s_cbranch_scc1 {L}
        s_mov_b32 {s(S_T0)}, {FE}
        ''')
        self.setflag(S_T0, ' sc1')
        A.label(L)

    def p2_idle(self):
        A = self.A
        self.bias_load()
        mb = A.nvm
        A(self.w2_addr_lines())
        A(f'''
        s_mul_i32 {s(S_T3)}, {s(S_W)}, {448*1024}
        s_lshl_b32 {s(S_T1)}, {s(S_FB)}, 13
        s_add_u32 {s(S_T3)}, {s(S_T3)}, {s(S_T1)}
        ''')
        A.wait(vm=self.zst)
        self.setflag(S_F1, ' sc1')
        self.stamp('F1 set')
        if self.opt.get('pt'):
            A(f'''
            s_lshl_b32 {s(S_T0)}, {s(S_FB)}, 2
            s_add_u32 {s(S_T0)}, {s(S_T0)}, {s(S_W)}
            s_lshl_b32 {s(S_T0)}, {s(S_T0)}, 12
            s_lshl_b32 {s(S_T1)}, {s(S_J)}, 18
            s_add_u32 {s(S_T0)}, {s(S_T0)}, {s(S_T1)}
            s_add_u32 {s(S_T0)}, {s(S_T0)}, {WS_HN}
            s_lshl_b32 {s(S_T1)}, {s(S_J)}, 11
            s_lshl_b32 {s(S_T2)}, {s(S_FB)}, 7
            s_add_u32 {s(S_T1)}, {s(S_T1)}, {s(S_T2)}
            s_add_u32 {s(S_T1)}, {s(S_T1)}, {WS_ST}
            ''')
            self.touch(140, SRD_WS, S_T0, 32, ' sc1')
            self.touch(141, SRD_WS, S_T1, 1, ' sc1')
        for f in self.w1_ops(0, 4, 7, S_T2): f()
        rest = 128 * 128 * (self.opt.get('t0', 32) + self.opt.get('t1', 48))
        nrest = max(0, -(-(385 * 3584 - rest) // (64 * 128)))
        if nrest:
            A(f'''
            s_lshl_b32 {s(S_T0)}, {s(S_FB)}, 2
            s_add_u32 {s(S_T0)}, {s(S_T0)}, {s(S_W)}
            s_mul_i32 {s(S_T0)}, {s(S_T0)}, {min(nrest,64)*128}
            s_add_u32 {s(S_T0)}, {s(S_T0)}, {64*3584 + rest}
            ''')
            assert nrest <= 64
            self.touch(206, SRD_W1, S_T0, nrest)
        for i in range(self.opt.get('nt2', 2)):
            self.touch(130 + i, SRD_W2, S_T3, 64)
            A(f's_add_u32 {s(S_T3)}, {s(S_T3)}, 131072')
        A(f'''
        s_lshl_b32 {s(S_T0)}, {s(S_J)}, 10
        s_add_u32 {s(S_T0)}, {s(S_T0)}, {F3}
        buffer_load_dwordx4 v[136:139], {v(V_L16)}, {s(SRD_WS,4)}, {s(S_T0)} offen sc1
        ''')
        if self.opt.get('pt') == 2:
            A(f'''
            s_lshl_b32 {s(S_T0)}, {s(S_FB)}, 2
            s_add_u32 {s(S_T0)}, {s(S_T0)}, {s(S_W)}
            s_mul_i32 {s(S_T0)}, {s(S_T0)}, {112*128}
            s_mul_i32 {s(S_T1)}, {s(S_J)}, {896*1024}
            s_add_u32 {s(S_T0)}, {s(S_T0)}, {s(S_T1)}
            s_add_u32 {s(S_T0)}, {s(S_T0)}, {WS_R}
            s_add_u32 {s(S_T1)}, {s(S_T0)}, 8192
            ''')
            self.touch(142, SRD_WS, S_T0, 64, ' sc1')
            self.touch(143, SRD_WS, S_T1, 48, ' sc1')
        self.fx_load()
        A.wait(vm=mb)
        self.bias_spread()
        for f in self.w1_ops(1, 0, 7, S_T2) + self.w1_ops(2, 0, 7, S_T2) + self.w1_ops(3, 0, 7, S_T2): f()
        m = A.nvm
        A('s_barrier')
        r1 = self.w2_ops(0, 6, S_SB)
        self.p3_setup(r1)
        A.wait(vm=m)
        self.stamp('F2 set')
        self.fx_eval()

    def p3_setup(self, bg):
        A = self.A
        ACC = 40
        ln = f'''
        v_lshrrev_b32 v6, 2, {v(V_LANE)}
        v_mul_u32_u24 v6, 224, v6
        v_and_b32 v7, 3, {v(V_LANE)}
        v_lshl_add_u32 v10, v7, 3, v6
        v_add_u32 v11, {2*WPW}, v10
        s_lshl_b32 {s(S_T0)}, {s(S_RB)}, 3
        s_lshl_b32 {s(S_T1)}, {s(S_W)}, 1
        s_add_u32 {s(S_T0)}, {s(S_T0)}, {s(S_T1)}
        s_lshl_b32 {s(S_T2)}, {s(S_T0)}, 14
        s_add_u32 {s(S_T2)}, {s(S_T2)}, {WS_HN}
        v_add_u32 v12, {s(S_T2)}, {v(V_L16)}
        v_add_u32 v13, 16384, v12
        s_lshl_b32 {s(S_T0)}, {s(S_T0)}, 5
        s_add_u32 {s(S_T3)}, {s(S_T0)}, {F2}
        v_lshl_add_u32 v15, {v(V_LANE)}, 3, {s(S_T3)}
        v_lshrrev_b32 v6, 5, {v(V_LANE)}
        v_lshlrev_b32 v6, 10, v6
        v_bfe_u32 v7, {v(V_LANE)}, 2, 2
        v_lshl_add_u32 v6, v7, 7, v6
        v_and_b32 v8, 1, {v(V_LANE)}
        v_lshl_add_u32 v6, v8, 5, v6
        v_bfe_u32 v8, {v(V_LANE)}, 1, 1
        v_lshl_add_u32 v6, v8, 3, v6
        v_bfe_u32 v8, {v(V_LANE)}, 4, 1
        v_lshl_add_u32 v6, v8, 4, v6
        v_bfe_u32 v8, {v(V_LANE)}, 3, 1
        v_lshl_add_u32 v6, v8, 6, v6
        s_and_b32 {s(S_T0)}, {s(S_W)}, 2
        s_lshl_b32 {s(S_T0)}, {s(S_T0)}, 5
        v_xor_b32 v6, {s(S_T0)}, v6
        v_add_u32 v230, {s(S_SB)}, v6
        v_add_u32 v232, {s(S_WB)}, v6
        v_xor_b32 v6, 64, v6
        v_add_u32 v231, {s(S_SB)}, v6
        v_add_u32 v233, {s(S_WB)}, v6
        s_waitcnt lgkmcnt(0)
        '''.strip().split('\n')
        ln = [x.strip() for x in ln]
        for ft in range(7):
            for tt in range(2):
                c = ACC + 8 * ft + 4 * tt
                ln += [f'v_lshlrev_b32 {v(c)}, 16, {v(V_BIAS+2*ft)}', f'v_and_b32 {v(c+1)}, 0xffff0000, {v(V_BIAS+2*ft)}',
                       f'v_lshlrev_b32 {v(c+2)}, 16, {v(V_BIAS+1+2*ft)}', f'v_and_b32 {v(c+3)}, 0xffff0000, {v(V_BIAS+1+2*ft)}']
        self.weave(ln, bg, 7)
        while bg: bg.pop(0)()

    def p3(self):
        A = self.A
        ACC, AF, HN = 40, 96, 96
        V_SR = 230
        A('s_barrier')
        self.stamp('p3 prepoll')
        self.site('B')
        self.poll(15, 8, 8)
        self.stamp('p3 polled')
        hm = {}
        def hld(ks):
            if ks % 4 == 0: A(f's_mov_b32 {s(S_T2)}, {(ks//4)*4096}')
            for tt in range(2):
                A(f'buffer_load_dwordx4 {a(HN+8*ks+4*tt,4)}, {v(12+tt)}, {s(SRD_WS,4)}, {s(S_T2)} offen offset:{(ks%4)*1024}{self.ldf}')
            hm[ks] = A.nvm
        LA = self.opt.get('la3', 5)
        for ks in range(LA): hld(ks)
        def trs(rnd):
            ops = []
            for loc in range(6):
                for mt in range(2):
                    for hh in range(2):
                        ops.append(lambda loc=loc, mt=mt, hh=hh: self.w2_rd1(a(48*rnd + 8*loc + 4*mt + 2*hh, 2), V_SR, loc, mt, hh))
            return ops
        for n, f in enumerate(trs(0)):
            f()
            if n == 11: A('s_waitcnt lgkmcnt(4)')
        D, R = 6, 8
        lm = {}
        def rd(p, hh):
            ks, ft = divmod(p, 7)
            wp, w = ks >> 2, ks & 3
            off = (w & 1) * WPW + wp * 7168 + hh * 3584 + ft * 32
            A(f'ds_read_b64_tr_b16 {v(AF+4*(p%R)+2*hh,2)}, {v(10 + (w >> 1))} offset:{off}')
            lm[p] = A.nlg
        A('s_waitcnt lgkmcnt(2)')
        for p in range(D): rd(p, 0); rd(p, 1)
        nxt = LA
        HP = self.opt.get('hp', 4)
        r2 = self.w2_ops(6, 6, S_SB); r3 = self.w2_ops(12, 6, S_SB); t2 = trs(1)
        tch = []
        if self.opt.get('nt2', 2) < 4:
            k0 = 8 * self.opt.get('nt2', 2); lanes = (28 - k0) * 4
            assert lanes <= 64
            def f():
                A(f'''
                s_mul_i32 {s(S_T0)}, {s(S_W)}, {448*1024}
                s_mul_i32 {s(S_T1)}, {s(S_N)}, {lanes*128}
                s_add_u32 {s(S_T0)}, {s(S_T0)}, {s(S_T1)}
                s_add_u32 {s(S_T0)}, {s(S_T0)}, {k0*16384}
                ''')
                self.touch(207, SRD_W2, S_T0, lanes)
            tch.append(f)
        if self.opt.get('pt') == 1:
            def f2():
                A(f'''
                s_lshl_b32 {s(S_T0)}, {s(S_RB)}, 2
                s_add_u32 {s(S_T0)}, {s(S_T0)}, {s(S_W)}
                s_mul_i32 {s(S_T1)}, {s(S_T0)}, {112*1024}
                s_mul_i32 {s(S_T0)}, {s(S_FB)}, 7168
                s_add_u32 {s(S_T1)}, {s(S_T1)}, {s(S_T0)}
                s_add_u32 {s(S_T1)}, {s(S_T1)}, {WS_R}
                ''')
                self.touch(206, SRD_WS, S_T1, 56, ' sc1')
            tch.insert(0, f2)
        r2m = None; t2m = None; r2p = None
        for p in range(112):
            ks, ft = divmod(p, 7)
            need_vm = hm[ks] if ft == 0 else None
            if p % 2 == 0: A.wait(vm=need_vm, lg=lm[min(p + 1, 111)])
            elif need_vm is not None: A.wait(vm=need_vm)
            for tt in range(2):
                c = ACC + 8 * ft + 4 * tt
                A(f'v_mfma_f32_16x16x32_bf16 {v(c,4)}, {v(AF+4*(p%R),4)}, {a(HN+8*ks+4*tt,4)}, {v(c,4)}')
                if p + D < 112: rd(p + D, tt)
            if p % 2 == 0: continue
            if nxt < 16:
                if p % HP == HP - 1: hld(nxt); nxt += 1
            elif r2:
                r2.pop(0)(); r2m = A.nvm; r2p = p
            elif tch: tch.pop(0)()
            elif t2:
                if p < r2p + self.opt.get('t2gap', 8): continue
                if len(t2) == 24: A.wait(vm=r2m)
                for _ in range(3): t2.pop(0)()
                t2m = A.nlg
            elif r3 and lm[p] > t2m:
                r3.pop(0)()
        self.stamp('p3 mfma done')
        A('s_barrier')
        assert not t2
        bg = r3 + self.w2_ops(18, 10, S_WB)
        print('r3 left', len(r3))
        A(f'''
        s_lshl_b32 {s(S_T0)}, {s(S_RB)}, 2
        s_add_u32 {s(S_T0)}, {s(S_T0)}, {s(S_W)}
        s_mul_i32 {s(S_T1)}, {s(S_T0)}, {112*1024}
        s_mul_i32 {s(S_T2)}, {s(S_FB)}, 7168
        s_add_u32 {s(S_T1)}, {s(S_T1)}, {s(S_T2)}
        s_add_u32 {s(S_T1)}, {s(S_T1)}, {WS_R}
        s_add_u32 {s(S_T2)}, {s(S_T1)}, 4096
        s_lshr_b32 {s(S_T3)}, {s(S_T0)}, 1
        s_lshl_b32 {s(S_T3)}, {s(S_T3)}, 8
        s_lshl_b32 {s(S_AM0)}, {s(S_FB)}, 4
        s_add_u32 {s(S_T3)}, {s(S_T3)}, {s(S_AM0)}
        s_and_b32 {s(S_T0)}, {s(S_T0)}, 1
        s_lshl_b32 {s(S_T0)}, {s(S_T0)}, 3
        s_add_u32 {s(S_T0)}, {s(S_T0)}, {s(S_T3)}
        s_add_u32 {s(S_AM0)}, {s(S_T0)}, {F3}
        ''')
        A.quiesce(8)
        def epi(sc):
            q = list(bg)
            for ft in range(7):
                c = ACC + 8 * ft; o = 96 + 4 * ft
                ln = [f'v_mul_f32 {v(c+i)}, {v(c+i)}, |{v(c+i)}|' for i in range(8)]
                ln += [f'v_cvt_pk_bf16_f32 {v(o+i)}, {v(c+2*i)}, {v(c+2*i+1)}' for i in range(4)]
                ln += [f'v_pk_max_i16 {v(o+i)}, {v(o+i)}, 0' for i in (0, 2, 1, 3)]
                self.weave(ln, q, self.opt.get('epiw', 16))
                A(f'v_permlane16_swap_b32 {v(o)}, {v(o+2)}')
                A(f'v_permlane16_swap_b32 {v(o+1)}, {v(o+3)}')
                A(f'buffer_store_dwordx4 {v(o,4)}, {v(V_L16)}, {s(SRD_WS,4)}, {s(S_T1 if ft < 4 else S_T2)} offen offset:{(ft%4)*1024}{sc}')
            self.wleft = q
        self.dual(epi, True)
        self.stamp('r stores')
        self.rst = A.nvm

    def p4(self):
        A = self.A
        ACC, BASE, AF, RV = 16, 80, 96, 128
        wops = self.wleft
        S_MIR = 51
        self.weave(f'''
        s_and_b32 {s(S_T0)}, {s(S_W)}, 1
        s_lshl_b32 {s(S_T0)}, {s(S_T0)}, 1
        s_lshl_b32 {s(S_T1)}, {s(S_U4)}, 2
        s_add_u32 {s(S_T0)}, {s(S_T0)}, {s(S_T1)}
        v_bfe_u32 v6, {v(V_LANE)}, 4, 1
        v_add_u32 v6, {s(S_T0)}, v6
        v_lshlrev_b32 v7, 7, v6
        v_lshl_add_u32 v7, {v(V_L15)}, 3, v7
        v_lshlrev_b32 v6, 14, v6
        v_lshl_add_u32 v6, {v(V_L15)}, 4, v6
        s_lshl_b32 {s(S_T0)}, {s(S_CB)}, 2
        s_and_b32 {s(S_T1)}, {s(S_W)}, 2
        s_add_u32 {s(S_T0)}, {s(S_T0)}, {s(S_T1)}
        v_lshrrev_b32 v8, 5, {v(V_LANE)}
        v_add_u32 v8, {s(S_T0)}, v8
        v_lshlrev_b32 v12, 5, v8
        s_cmp_ge_u32 {s(S_CB)}, 4 @@ s_cselect_b64 vcc, -1, 0 @@ s_cselect_b32 {s(S_MIR)}, 2048, 0
        v_sub_u32 v9, 31, v8
        v_cndmask_b32 v9, v8, v9, vcc
        v_lshrrev_b32 v10, 2, v9
        v_and_b32 v11, 3, v9
        v_lshlrev_b32 v10, 12, v10
        v_lshl_add_u32 v10, v11, 9, v10
        v_add_u32 v10, v6, v10
        v_add_u32 v9, 1, v9
        v_bfe_u32 v11, v9, 2, 2
        v_and_b32 v9, 3, v9
        v_lshlrev_b32 v11, 12, v11
        v_lshl_add_u32 v11, v9, 9, v11
        v_add_u32 v11, v6, v11
        s_add_u32 {s(S_T0)}, {s(S_MIR)}, {WS_HN}
        s_mov_b32 {s(S_T1)}, {WS_ST}
        ''', wops, self.opt.get('p4w', 5))
        A.wait(vm=self.rst)
        self.dual(lambda sc: self.setflag(S_AM0, sc))
        self.stamp('F3 set')
        A(f'''
        buffer_load_dwordx4 v[208:211], v10, {s(SRD_WS,4)}, {s(S_T0)} offen sc1
        buffer_load_dwordx4 v[212:215], v10, {s(SRD_WS,4)}, {s(S_T0)} offen offset:256 sc1
        buffer_load_ushort v216, v11, {s(SRD_WS,4)}, {s(S_T0)} offen sc1
        buffer_load_dwordx2 v[218:219], v7, {s(SRD_WS,4)}, {s(S_T1)} offen sc1
        buffer_load_dwordx4 v[220:223], v12, {s(SRD_B2,4)}, 0 offen
        buffer_load_dwordx4 v[224:227], v12, {s(SRD_B2,4)}, 0 offen offset:16
        ''')
        V_OO = 228
        self.weave(f'''
        s_sub_u32 {s(S_T0)}, 64, {s(S_U4)}
        s_cmp_eq_u32 {s(S_U4)}, 0 @@ s_cselect_b32 {s(S_T0)}, 32, {s(S_T0)}
        s_bitcmp1_b32 {s(S_W)}, 0 @@ s_cselect_b32 {s(S_T0)}, {s(S_T0)}, {s(S_U4)}
        s_lshl_b32 {s(S_T0)}, {s(S_T0)}, 10
        v_and_b32 v6, 31, {v(V_LANE)}
        v_lshlrev_b32 v6, 16, v6
        v_add3_u32 {v(V_OO)}, v6, v12, {s(S_T0)}
        s_lshl_b32 {s(S_T0)}, {s(S_U4)}, 8
        s_lshl_b32 {s(S_T1)}, {s(S_W)}, 6
        s_add_u32 {s(S_T0)}, {s(S_T0)}, {s(S_T1)}
        s_add_u32 {s(S_T0)}, {s(S_T0)}, {F3}
        v_lshl_add_u32 v6, {v(V_LANE)}, 3, {s(S_T0)}
        s_mul_i32 {s(S_T2)}, {s(S_U4)}, {2*112*1024}
        s_mul_i32 {s(S_T1)}, {s(S_W)}, {28*1024}
        s_add_u32 {s(S_T2)}, {s(S_T2)}, {s(S_T1)}
        s_add_u32 {s(S_T2)}, {s(S_T2)}, {WS_R}
        s_bitcmp1_b32 {s(S_W)}, 0 @@ s_cselect_b32 {s(S_T0)}, {112*1024}, 0 @@ s_cselect_b32 {s(S_T1)}, 0, {112*1024}
        s_add_u32 {s(S_T0)}, {s(S_T0)}, {s(S_T2)}
        s_add_u32 {s(S_T1)}, {s(S_T1)}, {s(S_T2)}
        v_add_u32 v12, {s(S_T0)}, {v(V_L16)}
        v_add_u32 v13, {s(S_T1)}, {v(V_L16)}
        ''', wops, 4)
        while wops: wops.pop(0)()
        self.stamp('p4 prepoll')
        self.poll(6, 8, 8)
        self.stamp('p4 polled')
        def rreg(i, nt):
            n = 2 * i + nt
            return v(RV + 4 * n, 4) if n < 20 else a(96 + 4 * (n - 20), 4)
        rm = {}
        def rld(i):
            k = i
            if k % 4 == 0: A(f's_mov_b32 {s(S_T2)}, {(k//4)*4096}')
            for nt in range(2):
                A(f'buffer_load_dwordx4 {rreg(i,nt)}, {v(12+nt)}, {s(SRD_WS,4)}, {s(S_T2)} offen offset:{(k%4)*1024}{self.ldf}')
            rm[i] = A.nvm
        LA = self.opt.get('la4', 5)
        for i in range(LA): rld(i)
        def unp(dst, r, hi):
            if hi: A(f'v_and_b32 {v(dst)}, 0xffff0000, {v(r)}')
            else: A(f'v_lshlrev_b32 {v(dst)}, 16, {v(r)}')
        LM = A.newlabel('mir'); LJ = A.newlabel('join')
        A(f's_cmp_ge_u32 {s(S_CB)}, 4\ns_cbranch_scc1 {LM}')
        for k in range(16): unp(BASE + k, 208 + k // 2, k & 1)
        A(f's_branch {LJ}')
        A.label(LM)
        unp(BASE, 216, 0)
        for k in range(1, 16): unp(BASE + k, 208 + (16 - k) // 2, (16 - k) & 1)
        A.label(LJ)
        for k in range(16):
            unp(6, 220 + k // 2, k & 1)
            A(f'v_add_f32 v6, v6, v218')
            A(f'v_fma_f32 {v(BASE+k)}, {v(BASE+k)}, v219, v6')
        def areg(i, mt):
            return a(8 * i + 4 * mt, 4) if i < 12 else v(AF + 8 * (i % 4) + 4 * mt, 4)
        lm = {}
        def rd(i, mt):
            base = AF + 8 * (i % 4) + 4 * mt
            for hh in range(2):
                if i < 18: self.w2_rd1(v(base + 2*hh, 2), 230, i - 12, mt, hh)
                else: self.w2_rd1(v(base + 2*hh, 2), 232, i - 18, mt, hh)
            lm[i] = A.nlg
        D = 3
        for i in range(28):
            A.wait(vm=rm[i], lg=lm.get(i))
            for mt in range(2):
                for nt in range(2):
                    c = ACC + 32 * mt + 16 * nt
                    cin = '0' if i == 0 else v(c, 16)
                    A(f'v_mfma_f32_32x32x16_bf16 {v(c,16)}, {areg(i,mt)}, {rreg(i,nt)}, {cin}')
                    if mt == 0 and nt == 0 and i + LA < 28: rld(i + LA)
                if 12 <= i + D < 28: rd(i + D, mt)
        self.stamp('p4 mfma done')
        A(f'v_add_u32 v6, {s(S_SB)}, {v(V_L16)}')
        for T in range(1, 4):
            A(f'''
            s_xor_b32 {s(S_T0)}, {s(S_W)}, {T}
            s_mul_i32 {s(S_T0)}, {s(S_T0)}, {SPW}
            s_add_u32 {s(S_T0)}, {s(S_T0)}, {L_S + (T-1)*4096}
            v_add_u32 {v(6+T)}, {s(S_T0)}, {v(V_L16)}
            ''')
        for T in range(1, 4):
            for qq in range(4):
                A(f'ds_write_b128 v6, {v(ACC+16*T+4*qq,4)} offset:{(T-1)*4096 + qq*1024}')
        for k in range(0, 16, 2):
            A(f'v_pk_add_f32 {v(BASE+k,2)}, {v(BASE+k,2)}, {v(ACC+k,2)}')
        A('s_waitcnt lgkmcnt(0)\ns_barrier')
        for T in range(1, 4):
            for qq in range(4):
                A(f'ds_read_b128 {v(128+16*(T-1)+4*qq,4)}, {v(6+T)} offset:{qq*1024}')
        for sl in range(3):
            A(f's_waitcnt lgkmcnt({8-4*sl})')
            for k in range(0, 16, 2):
                A(f'v_pk_add_f32 {v(BASE+k,2)}, {v(BASE+k,2)}, {v(128+16*sl+k,2)}')
        for k in range(8):
            A(f'v_cvt_pk_bf16_f32 {v(96+k)}, {v(BASE+2*k)}, {v(BASE+2*k+1)}')
        A(f'buffer_store_dwordx4 v[96:99], {v(V_OO)}, {s(SRD_OUT,4)}, 0 offen{self.outf}')
        A(f'buffer_store_dwordx4 v[100:103], {v(V_OO)}, {s(SRD_OUT,4)}, 0 offen offset:16{self.outf}')

    def probe_end(self):
        A = self.A
        a_, b_ = self.opt['probe'].split('-')
        if b_ == 'end':
            A('s_waitcnt vmcnt(0)'); self.stamp('end')
        A(f'''
        s_waitcnt lgkmcnt(0)
        s_sub_u32 {s(S_T0)}, {s(S_TS+4)}, {s(S_TS if a_ == 'start' else S_TS+2)}
        s_cmp_ge_u32 {s(S_N)}, {self.opt.get('pmax', 32)}
        s_cselect_b32 {s(S_T0)}, 0, {s(S_T0)}
        s_min_u32 {s(S_T0)}, {s(S_T0)}, 4000
        s_lshl_b32 {s(S_T0)}, {s(S_T0)}, 2
        s_add_u32 {s(S_T0)}, {s(S_T0)}, 4000
        s_add_u32 {s(S_T0)}, {s(S_T0)}, {s(S_TS)}
        L_pspin:
        s_memrealtime {s(S_TS+6,2)}
        s_waitcnt lgkmcnt(0)
        s_sub_u32 {s(S_T1)}, {s(S_TS+6)}, {s(S_T0)}
        s_cmp_lt_i32 {s(S_T1)}, 0
        s_cbranch_scc1 L_pspin
        ''')

    def dump_ts(self):
        if self.opt.get('probe'): return self.probe_end()
        if not self.diag: return
        A = self.A
        A('s_waitcnt vmcnt(0)')
        self.stamp('end')
        A(f'''
        s_lshl_b32 {s(S_T0)}, s2, 2
        s_add_u32 {s(S_T0)}, {s(S_T0)}, {s(S_W)}
        s_lshl_b32 {s(S_T0)}, {s(S_T0)}, 7
        s_add_u32 {s(S_T0)}, {s(S_T0)}, {WS_TS}
        s_getreg_b32 {s(S_T1)}, hwreg(HW_REG_XCC_ID)
        s_waitcnt lgkmcnt(0)
        s_mov_b64 exec, 1
        ''')
        for i in range(20): A(f'v_mov_b32 {v(16+i)}, {s(S_TS+2*i)}')
        A(f'v_mov_b32 v40, {s(S_T1)}')
        A(f'v_mov_b32 v41, {s(S_FAST)}')
        for i in range(5):
            A(f'buffer_store_dwordx4 {v(16+4*i,4)}, off, {s(SRD_WS,4)}, {s(S_T0)} offset:{16*i}')
        A(f'buffer_store_dwordx2 v[40:41], off, {s(SRD_WS,4)}, {s(S_T0)} offset:80')

    def build(self):
        A = self.A
        self.p1()
        LI = A.newlabel('idle'); LJ = A.newlabel('p3')
        A(f's_cmp_ge_u32 {s(S_N)}, 16\ns_cbranch_scc1 {LI}')
        n0, l0 = A.nvm, A.nlg
        self.p2()
        A(f's_branch {LJ}')
        A.label(LI)
        A.nvm, A.nlg = n0, l0
        self.p2_idle()
        A.label(LJ)
        self.p3()
        self.p4()
        self.dump_ts()
        hdr = f'''; FNet (2D DFT, factored) + LayerNorms + squared-ReLU FFN, one persistent launch.
; @launch grid=(256,1,1) block=(256,1,1) lds=163840
''' + (f'; names: {",".join(self.names)}\n' if self.diag else '') + f'''.amdgcn_target "amdgcn-amd-amdhsa--gfx950"
.text
.globl {KNAME}
{self.align()}.p2align 8
.type {KNAME},@function
{KNAME}:
'''
        ftr = f'''L_end:
    s_endpgm
.section .rodata,"a"
.p2align 6
.amdhsa_kernel {KNAME}
  .amdhsa_next_free_vgpr 512
  .amdhsa_next_free_sgpr 102
  .amdhsa_accum_offset 256
  .amdhsa_group_segment_fixed_size 0
  .amdhsa_kernarg_size 104
  .amdhsa_user_sgpr_count 2
  .amdhsa_user_sgpr_kernarg_segment_ptr 1
  .amdhsa_system_sgpr_workgroup_id_x 1
.end_amdhsa_kernel
'''
        import pads
        return hdr + '\n'.join(pads.apply(hdr, A.text().rstrip('\n').split('\n'), ftr, self.opt, S_W)) + '\n' + ftr

if __name__ == '__main__':
    out = sys.argv[1]
    opt = {}
    for x in sys.argv[2:]:
        if '=' in x:
            k, val = x.split('='); opt[k] = int(val) if val.lstrip('-').isdigit() else val.replace('_', ' ')
    g = Gen(diag='diag' in sys.argv[2:], opt=opt)
    t = g.build()
    open(out, 'w').write(t)
    print('nops inserted', g.A.nops, 'stamps', len(g.names))
```

```python
import sys
import sched
from asmlib import *

KNAME = 'sequential_preLN__spectral_fnet__dense_activation_squared_relu__prompt_kernel'
WS_Z, WS_HN, WS_R, WS_ST, WS_FL, WS_TS = 0, 2 << 20, 4 << 20, 12 << 20, 13 << 20, 14 << 20
WS_SIZE = 32 << 20
WS_P = 16 << 20
FP = WS_ST
F1 = WS_FL + 0x10000
F3 = WS_FL + 0x4000
FX = WS_FL + 0x6000
FE = WS_FL + 0x7000
HPW = 16384
L_S = 65536
SPW = 20480
L_M = L_S + 4 * SPW
L_EXC, L_XE, L_STAT = L_M, L_M + 8192, L_M + 10240
S_W = 3
S_T0, S_T1, S_T2, S_T3 = 4, 5, 6, 7
SRD_X, SRD_W1, SRD_W2, SRD_OUT, SRD_WS, SRD_B1, SRD_B2 = 8, 12, 16, 20, 24, 28, 32
S_CNT, S_FAST = 36, 37
S_F1 = S_CNT
S_C, S_N, S_U, S_Q = 38, 39, 40, 41
S_TB1, S_ODD, S_TW, S_W2S, S_BG, S_HB0 = 42, 43, 44, 45, 46, 47
S_XO = 48
S_RR = 52
S_FIX = 56
S_AM0, S_TCH = 58, 59
S_M = 60
S_TS = 62
S_HB, S_SB = 0, 1
V_LANE, V_L15, V_G, V_L16, V_TAG = 0, 1, 2, 3, 4
V_L128 = 14
ZF, TB, Y = 16, 80, 192
V_ONES = 144
V_W1U, V_W1D = 148, 152
V_W1R = 156
V_CS = 160
V_SEL = 176
AD_ = 224
V_FXV = 180
V_BT, V_TD = 182, 183
V_FIX = 184
V_ZA = 188
V_TT = 190
V_W2A = 148
V_W2R = 152


SW = 0.4
class TAsm(Asm):
    def __init__(self):
        super().__init__(); self.nvm = 0; self.nlg = 0; self.dvm = 0; self.dlg = 0
        self.prog = []; self.on = False; self.wt = 0; self.clk = None
    def label(self, name): super().label(name); self.prog.append(('label', name))
    def raw(self, t): super().raw(t); self.prog.append(('raw', t))
    def snap(self):
        self._snap = (list(self.hist), self.nvm); self.prog.append(('snap',))
    def unsnap(self):
        self.hist, self.nvm = self._snap; self.prog.append(('unsnap',))
    def i(self, text):
        if getattr(self, 'drop', None) and self.drop(text): return
        super().i(text)
        self.prog.append(('i', text, self.on))
        c = self.hist[-1]
        self.wt += 0 if c.is_mfma else 2 if c.is_vmem else 4 if c.op == 'ds_write_b128' else 2 if c.is_trans else 1 if (c.is_ds or c.is_valu) else SW
        if self.clk: self.clk.do(c, sched.klass(c))
        if c.is_vmem: self.nvm += 1
        if c.is_ds: self.nlg += 1
    def wait(self, vm=None, lg=None):
        p = []
        if vm is not None and vm > self.dvm:
            n = min(63, self.nvm - vm); p.append(f'vmcnt({n})'); self.dvm = self.nvm - n
        if lg is not None and lg > self.dlg:
            n = min(15, self.nlg - lg); p.append(f'lgkmcnt({n})'); self.dlg = self.nlg - n
        if p: self('s_waitcnt ' + ' '.join(p))
        return 1 if p else 0

def L(txt): return [x.strip().replace(' @@ ', '\n') for x in txt.strip().split('\n') if x.strip()]

class Gen:
    def __init__(self, diag=False, opt=None):
        self.A = TAsm(); self.diag = diag; self.nts = 0; self.names = []
        self.opt = opt or {}
        self.fsh = 4
        fl = lambda k, d: (' ' + self.opt[k]).rstrip() if self.opt.get(k, 'pl') != 'pl' else ('' if k in self.opt else d)
        self.ldf = fl('ldf', ' sc1'); self.outf = fl('outf', ' nt'); self.zldf = fl('zldf', ' sc1')
        self.skip = set()
        self.nofence = set(); self.skip = {'x first', 'kernarg', 'pre F1'}
        if self.opt.get('fine'): self.skip = {'kernarg', 'tables', 'x first', 'gemm1 done', 'Z stores', 'F1 set', 'p2 prepoll', 'pre F1', 'Z first', 'Z landed'}

    def stamp(self, name):
        if self.opt.get('fine') == 3 and not (name.startswith('wd') or name in ('start', 'gemm1 done', 'Z stores', 'pre F1', 'F1 set', 'p2 prepoll', 'p2 polled', 'Z first', 'end')): self.skip.add(name)
        elif self.opt.get('fine') == 3: self.skip.discard(name)
        if name not in self.nofence: self.A.prog.append(('fence', name))
        elif not self.opt.get('allst'): return
        pr = self.opt.get('probe')
        if pr:
            a_, b_ = pr.split('-')
            if name == 'start': self.A(f's_memrealtime {s(S_TS, 2)}')
            if name == a_ and name != 'start': self.A(f's_memrealtime {s(S_TS+2, 2)}')
            if name == b_: self.A(f's_memrealtime {s(S_TS+4, 2)}')
            return
        if self.diag and name not in self.skip:
            idx = len(self.names); self.names.append(name)
            assert idx < 20
            self.A(f'{"s_memtime" if self.opt.get("cyc") else "s_memrealtime"} {s(S_TS + 2*idx, 2)}')

    def emit(self, x):
        if callable(x): x()
        else: self.A(x)
    def weave(self, lines, bg, every):
        if isinstance(lines, str): lines = L(lines)
        for n, x in enumerate(lines):
            self.emit(x)
            if bg and (n + 1) % every == 0: self.emit(bg.pop(0))
    def flush(self, bg):
        while bg: self.emit(bg.pop(0))

    def srd(self, base, nbytes):
        self.A(f's_mov_b32 {s(base+2)}, {nbytes}\ns_mov_b32 {s(base+3)}, 0x20000')

    def poll(self, vaddr, nl, vtmp):
        A = self.A
        Lp = A.newlabel('poll'); D = A.newlabel('polld')
        on = A.on; A.on = False
        if nl < 64: A(f's_mov_b64 exec, {(1<<nl)-1}')
        A(f's_mov_b32 {s(S_CNT)}, 0x20000')
        A.label(Lp)
        A(f'buffer_load_dwordx2 {v(vtmp,2)}, {v(vaddr)}, {s(SRD_WS,4)}, 0 offen sc1')
        A(f's_sub_u32 {s(S_CNT)}, {s(S_CNT)}, 1')
        A(f's_cbranch_scc1 {D}')
        A('s_waitcnt vmcnt(0)')
        A(f'v_cmp_ne_u64 vcc, {v(vtmp,2)}, {v(V_TAG,2)}')
        A(f's_cbranch_vccnz {Lp}')
        A.label(D)
        A('s_waitcnt vmcnt(0)')
        A.dvm = A.nvm
        if nl < 64: A('s_mov_b64 exec, -1')
        A.on = on

    def setflag(self, soff, sc):
        A = self.A
        A('s_mov_b64 exec, 1')
        A(f'buffer_store_dwordx2 {v(V_TAG,2)}, off, {s(SRD_WS,4)}, {s(soff)}{sc}')
        A('s_mov_b64 exec, -1')

    def dualflag(self, soff):
        A = self.A
        if self.opt.get('nofast'): return self.setflag(soff, ' sc1')
        LS = A.newlabel('slow'); LJ = A.newlabel('dj')
        A(f's_cmp_eq_u32 {s(S_FAST)}, 0\ns_cbranch_scc1 {LS}')
        A.snap()
        self.setflag(soff, '')
        A(f's_branch {LJ}')
        A.label(LS)
        A.unsnap()
        self.setflag(soff, ' sc1')
        A.label(LJ)

    def touch(self, vd, srd, soff, lanes, fl='', va=V_L128):
        A = self.A
        if lanes < 64: A(f's_mov_b64 exec, {hex((1<<lanes)-1)}' if lanes <= 32 else f's_mov_b32 exec_hi, {hex((1<<(lanes-32))-1)}')
        A(f'buffer_load_dword {v(vd)}, {v(va)}, {s(srd,4)}, {s(soff)} offen{fl}')
        if lanes < 64: A('s_mov_b64 exec, -1')
    def w1touch(self, l0, l1):
        A = self.A
        m = ((1 << l1) - 1) & ~((1 << l0) - 1)
        A(f'''
        s_bfe_u32 {s(S_TCH)}, {s(S_TW)}, 0x20004
        s_lshl_b32 {s(S_TCH)}, {s(S_TCH)}, 6
        s_bitcmp1_b32 {s(S_TW)}, 6
        s_cselect_b32 {s(S_BG)}, 257, 32
        s_add_u32 {s(S_TCH)}, {s(S_TCH)}, {s(S_BG)}
        s_and_b32 {s(S_BG)}, {s(S_TW)}, 15
        s_lshl1_add_u32 {s(S_TCH)}, {s(S_BG)}, {s(S_TCH)}
        s_mul_i32 {s(S_TCH)}, {s(S_TCH)}, 3584
        s_mov_b32 exec_lo, {hex(m & 0xffffffff)}
        s_mov_b32 exec_hi, {hex(m >> 32)}
        buffer_load_dword {v(V_TD)}, {v(V_L128)}, {s(SRD_W1,4)}, {s(S_TCH)} offen
        s_mov_b64 exec, -1
        ''')
    def w2touch(self, k):
        A = self.A
        if k is not None:
            LS = A.newlabel('nt'); A(f's_cmp_lg_u32 {s(S_C)}, {k}\ns_cbranch_scc1 {LS}'); A.snap()
        A(f's_mul_i32 {s(S_TCH)}, {s(S_TW)}, {112*128}')
        self.touch(V_TD, SRD_W2, S_TCH, 64)
        A(f's_add_u32 {s(S_TCH)}, {s(S_TCH)}, 8192')
        self.touch(V_TD, SRD_W2, S_TCH, 48)
        if k is not None:
            A.label(LS); A.unsnap()
    def g2touch(self, m):
        A = self.A
        if m == 1:
            A(f'''
            v_mul_u32_u24 {v(V_BT)}, {3584-2048}, {v(V_G)}
            v_add_u32 {v(V_BT)}, {v(V_BT)}, {v(V_L128)}
            s_lshr_b32 {s(S_TCH)}, {s(S_Q)}, 2
            s_lshl3_add_u32 {s(S_TCH)}, {s(S_TW)}, {s(S_TCH)}
            s_mul_i32 {s(S_TCH)}, {s(S_TCH)}, 1792
            s_mov_b32 exec_lo, 0x3fff3fff
            s_mov_b32 exec_hi, 0x3fff3fff
            buffer_load_dword {v(V_TD)}, {v(V_BT)}, {s(SRD_W1,4)}, {s(S_TCH)} offen
            s_mov_b64 exec, -1
            ''')
        else:
            A(f"""
            s_lshr_b32 {s(S_BG)}, {s(S_Q)}, 2
            s_lshl_b32 {s(S_BG)}, {s(S_BG)}, 7
            s_add_u32 {s(S_TCH)}, {s(S_TW)}, {s(S_BG)}
            s_mul_i32 {s(S_TCH)}, {s(S_TCH)}, 7168
            """)
            self.touch(V_TD, SRD_W2, S_TCH, 56)
    def wtouch(self, vd, srd, l0, lanes):
        A = self.A
        A(f's_mul_i32 {s(S_TCH)}, {s(S_TW)}, {lanes*128}\ns_add_u32 {s(S_TCH)}, {s(S_TCH)}, {l0*128*128}')
        self.touch(vd, srd, S_TCH, lanes)

    def w1_setup(self):
        return L(f'''
        s_mul_i32 {s(S_T0)}, {s(S_Q)}, 448
        s_lshr_b32 {s(S_T1)}, {s(S_W)}, 1
        s_mul_i32 {s(S_T1)}, {s(S_T1)}, 224
        s_mul_i32 {s(S_T2)}, {s(S_ODD)}, 96
        s_add_u32 {s(S_T0)}, {s(S_T0)}, {s(S_T1)}
        s_add_u32 {s(S_T0)}, {s(S_T0)}, {s(S_T2)}
        v_lshlrev_b32 v6, 1, {v(V_G)}
        v_xor_b32 v6, v6, {v(V_LANE)}
        v_and_b32 v6, 7, v6
        v_lshl_add_u32 v6, v6, 4, {s(S_T0)}
        v_lshrrev_b32 v7, 5, {v(V_LANE)}
        v_bfe_u32 v8, {v(V_LANE)}, 3, 2
        v_lshl_add_u32 v7, v7, 3, v8
        v_sub_u32 v8, 11, v7
        s_movk_i32 {s(S_T3)}, 3584
        v_mad_u32_u24 {v(V_W1U)}, v7, {s(S_T3)}, v6
        v_mad_u32_u24 {v(V_W1D+3)}, v8, {s(S_T3)}, v6
        v_add_u32 {v(V_W1U+1)}, {16*3584-1024}, {v(V_W1U)}
        v_add_u32 {v(V_W1U+2)}, {4*3584-2048}, {v(V_W1U)}
        v_add_u32 {v(V_W1U+3)}, {20*3584-3072}, {v(V_W1U)}
        v_add_u32 {v(V_W1D)}, {20*3584+3072}, {v(V_W1D+3)}
        v_add_u32 {v(V_W1D+1)}, {4*3584+2048}, {v(V_W1D+3)}
        v_add_u32 {v(V_W1D+2)}, {16*3584+1024}, {v(V_W1D+3)}
        v_lshrrev_b32 v6, 2, {v(V_LANE)}
        v_lshlrev_b32 v6, 7, v6
        v_and_b32 v7, 3, {v(V_LANE)}
        v_lshl_add_u32 v6, v7, 3, v6
        v_add_u32 v6, {s(S_SB)}, v6
        v_bfe_u32 v7, {v(V_LANE)}, 3, 2
        ''') + sum([L(f'''
        s_add_u32 {s(S_T0)}, {s(S_ODD)}, {t}
        s_and_b32 {s(S_T0)}, {s(S_T0)}, 3
        v_xor_b32 v8, {s(S_T0)}, v7
        v_lshl_add_u32 {v(V_W1R+t)}, v8, 5, v6
        ''') for t in range(4)], [])
    def w1_dma(self, b, slot):
        A = self.A; q1, ip, var = b >> 3, (b >> 1) & 3, b & 1; n = 2 * var + q1
        ops = []
        for i in range(4):
            def f(i=i):
                if i == 0:
                    A(f's_xor_b32 {s(S_BG)}, {s(S_C)}, {ip}')
                    A(f's_mul_i32 {s(S_BG)}, {s(S_BG)}, {64*3584}')
                    if var == 0:
                        if q1: A(f's_add_u32 {s(S_BG)}, {s(S_BG)}, {32*3584}')
                    else: A(f's_sub_u32 {s(S_BG)}, {(512-31-32*q1)*3584 - 3072}, {s(S_BG)}')
                    A(f's_add_u32 m0, {s(S_SB)}, {slot*4096}')
                if n == 2 and i == 0:
                    A(f'''
                    v_add_u32 {v(V_BT)}, {s(S_BG)}, {v(V_W1D)}
                    s_cmp_eq_u32 {s(S_C)}, {ip}
                    s_cselect_b64 exec, 0xff, 0
                    v_subrev_u32 {v(V_BT)}, {256*3584}, {v(V_BT)}
                    s_mov_b64 exec, -1
                    buffer_load_dwordx4 {v(V_BT)}, {s(SRD_W1,4)}, 0 offen lds
                    ''')
                else:
                    A(f'buffer_load_dwordx4 {v((V_W1D if var else V_W1U)+i)}, {s(SRD_W1,4)}, {s(S_BG)} offen offset:{i*1024} lds')
                if i == 3: self.w1m[b] = A.nvm
            ops.append(f)
        return ops
    def w1_tr(self, b, slot):
        A = self.A; ops = []
        for t in range(4):
            for hh in range(2):
                def f(t=t, hh=hh):
                    A.wait(vm=self.w1m[b])
                    A(f'ds_read_b64_tr_b16 {a(16*b+4*t+2*hh,2)}, {v(V_W1R+t)} offset:{slot*4096+hh*2048}')
                    self.w1l[b] = A.nlg
                ops.append(f)
        return ops
    def w1_cs(self, b):
        A = self.A; ops = []
        for t in range(4):
            def f(t=t):
                A.wait(lg=self.w1l[b])
                c = v(V_CS + 4 * t, 4)
                A(f'v_mfma_f32_16x16x32_bf16 {c}, {v(V_ONES,4)}, {a(16*b+4*t,4)}, {c if self.csn[t] else "0"}')
                self.csn[t] += 1
            ops.append(f)
        return ops
    def w1_pipeline(self):
        order = self.w1order; NS = 5
        seq = []
        for k in range(NS): seq.append(('dma', k))
        for k in range(16):
            seq.append(('tr', k))
            if k >= 1:
                seq.append(('cs', k - 1))
                if k - 1 + NS < 16: seq.append(('dma', k - 1 + NS))
        seq.append(('cs', 15))
        out = []
        for kind, k in seq:
            b = order[k]
            if kind == 'dma': ops = self.w1_dma(b, k % NS)
            elif kind == 'tr': ops = self.w1_tr(b, k % NS)
            else: ops = self.w1_cs(b)
            out.append((kind, k, ops))
        return out

    def w2_setup(self):
        return L(f"""
        v_lshlrev_b32 {v(V_W2A)}, 1, {v(V_G)}
        v_xor_b32 {v(V_W2A)}, {v(V_W2A)}, {v(V_LANE)}
        v_and_b32 {v(V_W2A)}, 7, {v(V_W2A)}
        v_lshrrev_b32 {v(V_W2A+1)}, 3, {v(V_LANE)}
        v_lshlrev_b32 {v(V_W2A+1)}, 10, {v(V_W2A+1)}
        v_lshl_add_u32 {v(V_W2A)}, {v(V_W2A)}, 4, {v(V_W2A+1)}
        s_mul_i32 {s(S_W2S)}, {s(S_Q)}, {224*1024}
        s_and_b32 {s(S_BG)}, {s(S_Q)}, 4 @@ s_add_u32 {s(S_BG)}, {s(S_BG)}, {s(S_W)} @@ s_lshl_b32 {s(S_BG)}, {s(S_BG)}, 7 @@ s_add_u32 {s(S_W2S)}, {s(S_W2S)}, {s(S_BG)}
        s_xor_b32 {s(S_W2S)}, {s(S_W2S)}, 512
        v_add_u32 {v(V_W2A+1)}, {8192-1024}, {v(V_W2A)}
        """)
    def w2_setup_r(self):
        return L(f"""
        s_xor_b32 {s(S_TCH)}, {s(S_Q)}, {s(S_ODD)} @@ s_and_b32 {s(S_TCH)}, {s(S_TCH)}, 3 @@ s_lshl_b32 {s(S_TCH)}, {s(S_TCH)}, 5 @@ v_xor_b32 {v(V_W2R+3)}, {s(S_TCH)}, {v(V_W1R)}
        v_xor_b32 {v(V_W2R)}, 96, {v(V_W2R+3)}
        v_xor_b32 {v(V_W2R+1)}, 64, {v(V_W2R+3)}
        v_xor_b32 {v(V_W2R+2)}, 32, {v(V_W2R+3)}
        """)
    def w2_dma(self, b, slot):
        A = self.A; h, ks = divmod(b, 7); ops = []
        for i in range(4):
            def f(i=i):
                if i == 0:
                    if b == 7: A(f's_xor_b32 {s(S_W2S)}, {s(S_W2S)}, 512')
                    if ks < 4:
                        A(f's_xor_b32 {s(S_BG)}, {s(S_W)}, {ks}')
                        A(f's_mul_i32 {s(S_BG)}, {s(S_BG)}, {7*8192}')
                        A(f's_add_u32 {s(S_BG)}, {s(S_BG)}, 8192')
                        A(f's_and_b32 {s(S_BG)}, {s(S_BG)}, {hex(0xffffc000)}')
                        A(f's_add_u32 {s(S_BG)}, {s(S_BG)}, {s(S_W2S)}')
                    elif ks < 6:
                        A(f's_bitcmp1_b32 {s(S_W)}, 1')
                        A(f's_cselect_b32 {s(S_BG)}, {7 if ks == 4 else 0}, {0 if ks == 4 else 7}')
                        A(f's_add_u32 {s(S_BG)}, {s(S_BG)}, 2')
                        A(f's_lshl_b32 {s(S_BG)}, {s(S_BG)}, 14')
                        A(f's_add_u32 {s(S_BG)}, {s(S_BG)}, {s(S_W2S)}')
                    else: A(f's_add_u32 {s(S_BG)}, {s(S_W2S)}, {3*16384}')
                    A(f's_add_u32 m0, {s(S_SB)}, {slot*4096}')
                if i == 2: A(f's_add_u32 {s(S_BG)}, {s(S_BG)}, {(1 if ks < 4 else 4 if ks < 6 else 7)*16384 - 2048}')
                A(f'buffer_load_dwordx4 {v(V_W2A+(i&1))}, {s(SRD_W2,4)}, {s(S_BG)} offen offset:{i*1024} lds')
                if i == 3: self.w2m[b] = A.nvm
            ops.append(f)
        return ops
    def w2_tr(self, b, slot):
        A = self.A; ops = []
        for t in range(4):
            for hh in range(2):
                def f(t=t, hh=hh):
                    assert self.blk > b, 'w2 fragment would overwrite live w1'
                    A.wait(vm=self.w2m[b])
                    A(f'ds_read_b64_tr_b16 {a(16*b+4*t+2*hh,2)}, {v(V_W2R+t)} offset:{slot*4096+hh*2048}')
                    self.trl[16 + b] = A.nlg
                ops.append(f)
        return ops
    def smalltouch(self, T):
        self.A(f's_mul_i32 {s(T)}, {s(S_Q)}, 448\ns_lshl_b32 {s(T+1)}, {s(S_W)}, 8')
        self.touch(V_TD, SRD_B1, T, 5); self.touch(V_TD, SRD_B2, T + 1, 2)
        self.ptouch((0,), T)
    def ptouch(self, js=(0, 1, 2), T=S_RR + 2):
        A = self.A
        n = self.opt.get('npl', 3); tf = ' ' + self.opt.get('tf', 'sc1')
        A(f's_lshl3_add_u32 {s(T)}, {s(S_U)}, {s(S_Q)}')
        A(f"""
        s_lshl_b32 {s(T)}, {s(T)}, 5
        s_add_u32 {s(T)}, {s(T)}, {s(S_W)}
        s_lshl_b32 {s(T)}, {s(T)}, 11
        s_add_u32 {s(T)}, {s(T)}, {WS_P + 8192}
        """)
        if 0 in js:
            A(f's_sub_u32 {s(T+1)}, {s(T)}, {8192 - 128}')
            self.touch(191, SRD_WS, T + 1, 11 if self.opt.get('zc') else 7, ' sc1')
        if 3 in js:
            A(f"""
            s_sub_u32 {s(T+1)}, {s(T)}, 8192
            v_mul_u32_u24 v191, {65536+128}, {v(V_LANE)}
            v_xor_b32 v191, {s(T+1)}, v191
            s_mov_b64 exec, 0xfe
            buffer_load_dword v191, v191, {s(SRD_WS,4)}, 0 offen sc1
            s_mov_b64 exec, -1
            """)
        if 4 in js:
            A(f's_add_u32 {s(T+1)}, {s(T)}, 16384')
            self.touch(191, SRD_WS, T + 1, 16, tf)
        if 1 not in js and 2 not in js: return
        A(f"""
        v_mul_u32_u24 {v(V_W2A+2)}, {8192-2048}, {v(V_G)}
        v_add_u32 {v(V_W2A+2)}, {v(V_W2A+2)}, {v(V_L128)}
        """)
        if 1 in js: self.touch(191, SRD_WS, T, min(64, 16 * n), tf, va=V_W2A + 2)
        if n > 4 and 2 in js:
            A(f's_add_u32 {s(T)}, {s(T)}, 32768')
            self.touch(191, SRD_WS, T, 16 * (n - 4), tf, va=V_W2A + 2)

    def align(self):
        if 'pg' not in self.opt: return ''
        return '.p2align 12\n' + (f".fill {self.opt['pg']//4}, 4, 0xbf810000\n" if self.opt['pg'] else '')
    def site(self, X):
        if 'pad' + X in self.opt: self.A.raw(f';SITE {X}')
    def cpf(self):
        self.A(f'''
        s_getpc_b64 {s(S_M,2)}
        L_pc0:
        s_lshr_b32 {s(S_FAST)}, s2, 3
        s_lshl2_add_u32 {s(S_FAST)}, {s(S_FAST)}, {s(S_W)}
        s_lshl_b32 {s(S_FAST)}, {s(S_FAST)}, 8
        s_min_u32 {s(S_FAST)}, {s(S_FAST)}, L_end-L_pc0-192
        ''')
        for k in range(4): self.A(f's_load_dword {s(S_CNT)}, {s(S_M,2)}, {s(S_FAST)} offset:{64*k}')

    def p1(self):
        A = self.A; o = self.opt
        X, R1, SUM, SQ, FS, ACC = 16, 160, 168, 172, 192, 224
        V_SGN, V_FAC, V_ZO, V_EW, V_XD, V_XR, V_ER = 176, 177, 178, 179, 184, 186, 191
        A(f'''
        s_cmp_ge_u32 s2, 256
        s_cbranch_scc1 L_end
        s_load_dwordx2 {s(SRD_X,2)}, s[0:1], 0
        s_load_dwordx2 {s(SRD_WS,2)}, s[0:1], 96
        s_load_dwordx2 {s(SRD_W1,2)}, s[0:1], 48
        s_load_dwordx2 {s(SRD_W2,2)}, s[0:1], 64
        s_load_dwordx2 {s(SRD_B1,2)}, s[0:1], 56
        s_load_dwordx2 {s(SRD_B2,2)}, s[0:1], 72
        s_load_dwordx2 {s(SRD_OUT,2)}, s[0:1], 80
        ''')
        self.stamp('start')
        if self.opt.get('cpf', 0) == 3:
            A(f'''
            s_getpc_b64 {s(S_M,2)}
            L_pc0:
            s_lshr_b32 {s(S_T0)}, s2, 3
            s_lshl_b32 {s(S_T0)}, {s(S_T0)}, 10
            v_lshl_add_u32 v7, v0, 2, {s(S_T0)}
            v_min_u32 v7, L_end-L_pc0, v7
            global_load_dword {v(V_TD)}, v7, {s(S_M,2)}
            ''')
        A(f'''
        v_lshrrev_b32 v6, 6, v0
        v_and_b32 {v(V_LANE)}, 63, v0
        v_readfirstlane_b32 {s(S_W)}, v6
        ''')
        if self.opt.get('cpf', 0) == 1: self.cpf()
        A(f'''
        v_and_b32 {v(V_L15)}, 15, {v(V_LANE)}
        v_lshrrev_b32 {v(V_G)}, 4, {v(V_LANE)}
        v_lshlrev_b32 {v(V_L16)}, 4, {v(V_LANE)}
        v_lshlrev_b32 {v(V_L128)}, 7, {v(V_LANE)}
        s_lshr_b32 {s(S_N)}, s2, 3
        ''')
        if o.get('g2') == 2: A(f'''
        s_and_b32 {s(S_T1)}, s2, 1
        s_and_b32 {s(S_Q)}, {s(S_N)}, 3
        s_lshl2_add_u32 {s(S_Q)}, {s(S_T1)}, {s(S_Q)}
        s_and_b32 {s(S_T1)}, s2, 6
        s_lshr_b32 {s(S_C)}, {s(S_N)}, 3
        s_lshl1_add_u32 {s(S_U)}, {s(S_T1)}, {s(S_C)}
        s_sub_u32 {s(S_T1)}, 32, {s(S_U)}
        s_cmp_eq_u32 {s(S_U)}, 0
        s_cselect_b32 {s(S_T1)}, 16, {s(S_T1)}
        s_bitcmp1_b32 {s(S_N)}, 2
        s_cselect_b32 {s(S_U)}, {s(S_T1)}, {s(S_U)}
        ''')
        elif o.get('g2'): A(f'''
        s_and_b32 {s(S_T1)}, s2, 1
        s_and_b32 {s(S_Q)}, {s(S_N)}, 3
        s_lshl2_add_u32 {s(S_Q)}, {s(S_T1)}, {s(S_Q)}
        s_and_b32 {s(S_T1)}, s2, 6
        s_lshr_b32 {s(S_U)}, {s(S_N)}, 2
        s_and_b32 {s(S_C)}, {s(S_U)}, 3
        s_lshl2_add_u32 {s(S_U)}, {s(S_T1)}, {s(S_U)}
        ''')
        else: A(f'''
        s_and_b32 {s(S_T1)}, s2, 7
        s_and_b32 {s(S_Q)}, {s(S_N)}, 7
        s_lshr_b32 {s(S_C)}, {s(S_N)}, 3
        s_lshl2_add_u32 {s(S_U)}, {s(S_T1)}, {s(S_C)}
        ''')
        A(f'''
        s_lshl_b32 {s(S_HB0)}, {s(S_W)}, 14
        s_and_b32 {s(S_ODD)}, {s(S_W)}, 1
        s_lshl2_add_u32 {s(S_TW)}, {s(S_N)}, {s(S_W)}
        s_lshl_b32 {s(S_T0)}, {s(S_Q)}, 7
        s_and_b32 {s(S_T1)}, {s(S_T0)}, 0x200
        ''')
        for i in range(4):
            A(f's_add_u32 {s(S_T2)}, {s(S_T0)}, {128*i}\ns_and_b32 {s(S_T2)}, {s(S_T2)}, 0x180\ns_or_b32 {s(S_XO+i)}, {s(S_T2)}, {s(S_T1)}')
        self.srd(SRD_X, 2097152); self.srd(SRD_WS, WS_SIZE); self.srd(SRD_W2, 1835008); self.srd(SRD_W1, 1835008)
        self.srd(SRD_B1, 3584); self.srd(SRD_B2, 1024); self.srd(SRD_OUT, 2097152)
        A(f'''
        s_and_b32 {s(S_T0)}, {s(S_W)}, 2
        s_lshl4_add_u32 {s(S_T0)}, {s(S_T0)}, {s(S_ODD)}
        s_lshl_b32 {s(S_T0)}, {s(S_T0)}, 5
        s_add_u32 {s(S_T0)}, {s(S_T0)}, {s(S_U)}
        s_lshl_b32 {s(S_T0)}, {s(S_T0)}, 10
        v_lshrrev_b32 v12, 3, {v(V_LANE)}
        v_and_b32 v13, 7, {v(V_LANE)}
        v_xor_b32 v13, v13, {v(V_G)}
        v_lshlrev_b32 v13, 4, v13
        v_lshl_add_u32 v6, v12, 16, v13
        v_add_u32 {v(V_XD)}, {s(S_T0)}, v6
        v_xor_b32 v6, 64, {v(V_XD)}
        v_add_u32 {v(V_XD+1)}, {8*65536 - 1024}, v6
        ''')
        A(f'''
        s_lshl_b32 {s(S_T0)}, {s(S_Q)}, 5
        v_lshrrev_b32 v6, 2, {v(V_L15)}
        v_and_b32 v7, 3, {v(V_L15)}
        v_lshl_add_u32 v6, v6, 3, v7
        v_add_u32 v6, {s(S_T0)}, v6
        v_add_u32 v7, 4, v6
        v_cmp_eq_u32 vcc, 0, v6
        v_mov_b32 v8, 0x100
        v_cndmask_b32 v6, v6, v8, vcc
        v_cvt_f32_u32 v6, v6
        v_cvt_f32_u32 v7, v7
        v_mul_f32 v6, {f2u(1/512)}, v6
        v_mul_f32 v7, {f2u(1/512)}, v7
        s_add_u32 {s(S_T0)}, {s(S_W)}, {s(S_Q)}
        s_and_b32 {s(S_T0)}, {s(S_T0)}, 3
        s_lshl_b32 {s(S_T0)}, {s(S_T0)}, 6
        v_lshl_add_u32 v8, {v(V_G)}, 3, {s(S_T0)}
        v_cvt_f32_u32 v8, v8
        v_add_f32 v9, {f2u(32.0)}, v8
        s_mul_i32 {s(S_T0)}, {s(S_W)}, {SPW}
        s_add_u32 {s(S_T0)}, {s(S_T0)}, {L_S}
        v_add_u32 v10, {s(S_T0)}, {v(V_L16)}
        ''')
        def tab(kk, et):
            b = X + 32 * et
            A(f'v_mul_f32 {v(b)}, {v(6+et)}, {v(8+kk)}')
            A(f'v_add_f32 {v(b+1)}, {v(b)}, {v(6+et)}')
            if kk == 0: A(f'v_cos_f32 {v(b+2)}, {v(6+et)}')
            for j in range(2):
                A(f'v_cos_f32 {v(b+8+j)}, {v(b+j)}')
                A(f'v_sin_f32 {v(b+16+j)}, {v(b+j)}')
            if kk == 0: A(f'v_add_f32 {v(b+2)}, {v(b+2)}, {v(b+2)}')
            for j in range(2, 8):
                A(f'v_fma_f32 {v(b+8+j)}, {v(b+2)}, {v(b+7+j)}, -{v(b+6+j)}')
                A(f'v_fma_f32 {v(b+16+j)}, {v(b+2)}, {v(b+15+j)}, -{v(b+14+j)}')
            for j in range(4):
                A(f'v_cvt_pk_bf16_f32 {v(b+24+j)}, {v(b+8+2*j)}, {v(b+9+2*j)}')
            for j in range(4):
                A(f'v_cvt_pk_bf16_f32 {v(b+28+j)}, {v(b+16+2*j)}, {v(b+17+2*j)}')
            A(f'ds_write_b128 v10, {v(b+24,4)} offset:{(kk*4+et*2)*1024}')
            A(f'ds_write_b128 v10, {v(b+28,4)} offset:{(kk*4+et*2+1)*1024}')
        npre = o.get('tabpre', 1)
        tabs = [(0, 0), (0, 1), (1, 0), (1, 1)]
        for t in tabs[:npre]: tab(*t)
        A(f's_mov_b32 {s(S_T2)}, {FE}')
        self.site('K')
        A('s_waitcnt lgkmcnt(0)')
        self.stamp('kernarg')
        A.on = bool(o.get('s1', 1))
        xm = []
        def xdma(i):
            A(f's_add_u32 m0, {s(S_HB0)}, {i*2048}')
            so = S_XO + (i >> 1)
            if i & 1:
                A(f's_xor_b32 {s(S_BG)}, {s(so)}, 0x200'); so = S_BG
            A(f'buffer_load_dwordx4 {v(V_XD)}, {s(SRD_X,4)}, {s(so)} offen lds')
            A(f'buffer_load_dwordx4 {v(V_XD+1)}, {s(SRD_X,4)}, {s(so)} offen offset:1024 lds')
            xm.append(A.nvm)
        NX0 = o.get('nx0', 5)
        xdma(0)
        A(f'buffer_load_dwordx2 {v(V_TAG,2)}, off, {s(SRD_WS,4)}, {s(S_T2)} sc1')
        for i in range(1, NX0): xdma(i)
        T0 = o.get('t0', 0)
        if T0: self.wtouch(V_TD, SRD_W1, 0, T0)
        A.on = False
        if o.get('cpf') == 2: self.cpf()
        if o.get('txr', 0) or o.get('tsc', 0): A(f'''
        s_and_b32 {s(S_T0)}, {s(S_TW)}, 31
        s_lshl_b32 {s(S_T1)}, {s(S_T0)}, 6
        s_sub_u32 {s(S_T1)}, {s(S_T1)}, {s(S_U)}
        s_add_u32 {s(S_T1)}, {s(S_T1)}, 64
        s_and_b32 {s(S_T1)}, {s(S_T1)}, 2047
        s_lshl_b32 {s(S_T1)}, {s(S_T1)}, 10
        ''')
        if o.get('txr', 0):
            for k in range(8): A(f's_buffer_load_dword {s(S_AM0)}, {s(SRD_X,4)}, {s(S_T1)} offset:{128*k}')
        if o.get('tsc', 0): A(f'''
        s_min_u32 {s(S_T1)}, {s(S_T0)}, 27
        s_lshl_b32 {s(S_T1)}, {s(S_T1)}, 7
        s_buffer_load_dword {s(S_AM0)}, {s(SRD_B1,4)}, {s(S_T1)}
        s_and_b32 {s(S_T1)}, {s(S_T0)}, 7
        s_lshl_b32 {s(S_T1)}, {s(S_T1)}, 7
        s_buffer_load_dword {s(S_AM0)}, {s(SRD_B2,4)}, {s(S_T1)}
        ''')
        A.on = bool(o.get('s1', 1))
        if o.get('tlb'):
            LT = [A.newlabel('tl') for _ in range(4)]
            sh = o.get('tlb')
            A(f's_lshl_b32 {s(S_T0)}, {s(S_N)}, 10')
            for k, (srd, st_, base) in enumerate(((SRD_W1, 28672, 0), (SRD_W2, 28672, 0), (SRD_WS, 32768, WS_Z), (SRD_WS, 114688, WS_R))):
                A(f's_cmp_lg_u32 {s(S_W)}, {k}\ns_cbranch_scc1 {LT[k]}')
                A.snap()
                A(f'v_mul_u32_u24 {v(V_BT)}, {st_}, {v(V_LANE)}')
                if base: A(f's_add_u32 {s(S_T0)}, {s(S_T0)}, {base}')
                A(f'buffer_load_dword {v(V_TD)}, {v(V_BT)}, {s(srd,4)}, {s(S_T0)} offen')
                A.label(LT[k]); A.unsnap()
        A(f'''
        s_mov_b32 {s(S_HB)}, {s(S_HB0)}
        s_mul_i32 {s(S_SB)}, {s(S_W)}, {SPW}
        s_add_u32 {s(S_SB)}, {s(S_SB)}, {L_S}
        s_add_u32 {s(S_TB1)}, {s(S_U)}, 1024
        s_cmp_eq_u32 {s(S_U)}, 0
        s_cselect_b32 {s(S_TB1)}, 32, {s(S_TB1)}
        ''')
        self.w1m = {}; self.w1l = {}; self.csn = [0] * 4; self.w2m = {}
        self.w1order = list(range(16))
        if o.get('ord'): self.w1order = [0, 1, 8, 9] + list(range(2, 8)) + list(range(10, 16))
        self.pipe = self.w1_pipeline()
        for k, t in enumerate(tabs[npre:]):
            tab(*t)
        b = TB
        t2 = L(f'''
        s_mov_b32 {s(S_T2)}, 0xffff
        s_cmp_ge_u32 {s(S_W)}, 2 @@ s_cselect_b32 {s(S_T0)}, {s(S_TB1)}, {s(S_U)} @@ s_cselect_b32 {s(S_T1)}, 0, {f2u(0.25)} @@ s_cselect_b32 {s(S_T2)}, 0xffff0000, {s(S_T2)}
        s_cmp_eq_u32 {s(S_U)}, 0 @@ s_cselect_b32 {s(S_T1)}, {s(S_T1)}, {f2u(0.25)} @@ s_cselect_b32 {s(S_T2)}, {s(S_T2)}, -1
        v_lshl_add_u32 v11, {v(V_L15)}, 6, {s(S_T0)}
        v_cmp_eq_u32 vcc, 0, v11
        v_cvt_f32_u32 v11, v11
        v_mul_f32 v11, {f2u(1/2048)}, v11
        v_lshlrev_b32 v6, 15, {v(V_G)}
        v_and_b32 v6, 0x8000, v6
        v_cndmask_b32 v7, 0, v6, vcc
        s_lshl1_add_u32 {s(S_T0)}, {s(S_ODD)}, {s(S_Q)}
        s_lshl_b32 {s(S_T0)}, {s(S_T0)}, 3
        v_add_u32 v8, {s(S_T0)}, {v(V_G)}
        ''')
        for j in range(4):
            t2 += [f'v_add_u32 v6, {4*j}, v8', 'v_and_b32 v6, 31, v6', 'v_cvt_f32_u32 v6, v6',
                   f'v_mul_f32 {v(b+2*j)}, v6, v11', f'v_add_f32 {v(b+2*j+1)}, {s(S_T1)}, {v(b+2*j)}']
        for j in range(8):
            t2 += [f'v_cos_f32 {v(b+8+j)}, {v(b+j)}', f'v_sin_f32 {v(b+16+j)}, {v(b+j)}']
        for j in range(4):
            d = b + 24 + 8 * (j >> 1) + 2 * (j & 1)
            t2 += [f'v_cvt_pk_bf16_f32 {v(d)}, {v(b+8+2*j)}, {v(b+9+2*j)}',
                   f'v_cvt_pk_bf16_f32 {v(d+5)}, {v(b+16+2*j)}, {v(b+17+2*j)}',
                   f'v_and_b32 {v(d)}, {s(S_T2)}, {v(d)}', f'v_and_b32 {v(d+5)}, {s(S_T2)}, {v(d+5)}',
                   f'v_xor_b32 {v(d+4)}, v7, {v(d)}', f'v_xor_b32 {v(d+1)}, 0x80008000, {v(d+5)}']
        for k in range(2):
            for var in range(2):
                t2.append(f'ds_write_b128 v10, {v(b+24+8*k+4*var,4)} offset:{8192+k*2048+var*1024}')
        self.flush(t2)
        XRP = o.get('xrp', 0)
        VM = 16 if XRP == 2 else 148
        vmset = (f'''
        v_sub_u32 v7, 15, v12
        v_lshl_add_u32 {v(VM)}, v7, 16, v13
        v_xor_b32 {v(VM+1)}, {8*65536+64}, {v(VM)}
        s_sub_u32 {s(S_RR)}, 1088, {s(S_U)}
        s_lshl_b32 {s(S_RR)}, {s(S_RR)}, 10
        s_sub_u32 {s(S_RR+1)}, 1088, {s(S_TB1)}
        s_lshl_b32 {s(S_RR+1)}, {s(S_RR+1)}, 10
        s_lshl_b32 {s(S_RR+2)}, {s(S_W)}, 7
        s_sub_u32 {s(S_RR+3)}, 896, {s(S_RR+2)}
        v_add_u32 v6, {s(S_RR)}, {v(VM)}
        v_lshrrev_b32 v7, 1, v6
        v_and_b32 v7, {1<<20}, v7
        v_sub_u32 {v(VM+2)}, v6, v7
        v_and_b32 {v(VM+3)}, {(1<<21)-1}, v6
        ''')
        if XRP != 2: A(vmset)
        A(f'''
        v_mov_b32 v6, {s(S_U)}
        v_mov_b32 v7, {s(S_TB1)}
        v_and_b32 v8, 1, {v(V_G)}
        v_cmp_eq_u32 vcc, 1, v8
        v_add_u32 v10, {L_S}, {v(V_L16)}
        v_add_u32 v11, {L_S+2*SPW}, {v(V_L16)}
        v_cndmask_b32 v6, v6, v7, vcc
        v_lshl_add_u32 {v(V_TT)}, {v(V_L15)}, 6, v6
        v_lshrrev_b32 v6, 1, {v(V_L15)}
        v_xor_b32 v6, v6, {v(V_G)}
        v_lshlrev_b32 v6, 4, v6
        v_lshl_add_u32 v15, {v(V_L15)}, 7, v6
        v_add_u32 {v(V_XR)}, {s(S_HB)}, v15
        v_xor_b32 {v(V_XR+1)}, 64, {v(V_XR)}
        ''')
        for i in range(4): A(f'v_mov_b32 {v(V_ONES+i)}, 0x3f803f80')
        xr = []
        for m in (1, 0):
            for side in range(2):
                for hh in (1, 0):
                    def f(m=m, side=side, hh=hh):
                        A(f's_add_u32 m0, {s(S_SB)}, {12288+m*4096+side*2048+hh*1024}')
                        if hh == 0 and m == 0: A(f'buffer_load_dwordx4 {v(VM+2+side)}, {s(SRD_X,4)}, {s(S_RR+2+side)} offen lds')
                        else:
                            if hh == 1: A(f's_add_u32 {s(S_BG)}, {s(S_RR+m)}, {s(S_RR+2+side)}')
                            A(f'buffer_load_dwordx4 {v(VM+hh)}, {s(SRD_X,4)}, {s(S_BG)} offen lds')
                        self.xrm = A.nvm
                    xr.append(f)
        A.wait(lg=A.nlg)
        A('s_barrier')
        tl = {}
        def tabrd(f):
            A(f'ds_read_b128 {a(4*f,4)}, {v(10+(f>>4))} offset:{((f>>3)&1)*SPW+(f&7)*1024}')
            tl[f] = A.nlg
        for f in range(8): tabrd(f)
        self.stamp('tables')
        NX1 = min(8, NX0 + o.get('nx1', 3))
        for i in range(NX0, NX1): xdma(i)
        b = FS
        fild = [(lambda f=f: tabrd(f)) for f in range(8, 32)]
        fild += L(f'''
        s_lshl_b32 {s(S_W2S)}, {s(S_ODD)}, 10 @@ s_add_u32 {s(S_W2S)}, {s(S_W2S)}, {L_S+8192} @@ v_add_u32 v10, {s(S_W2S)}, {v(V_L16)}
        v_xor_b32 v11, 1024, v10
        ''')
        fill = []
        for f in range(16): fild.append(f'ds_read_b128 {v(TB+4*f,4)}, {v(10+(f&1))} offset:{(2*((f>>1)&1)+(f>>3))*SPW+((f>>2)&1)*2048}')
        fill += L(f'''
        s_lshl_b32 {s(S_T0)}, {s(S_W)}, 3
        v_lshrrev_b32 v6, 1, {v(V_L15)}
        v_add_u32 v6, {s(S_T0)}, v6
        v_and_b32 v7, 1, {v(V_L15)}
        v_cvt_f32_u32 v9, v7
        v_mul_f32 v9, {f2u(-0.25)}, v9
        v_lshl_add_u32 v8, v6, 1, v7
        v_cmp_eq_u32 vcc, 1, v8
        v_lshlrev_b32 v8, 3, {v(V_G)}
        v_cndmask_b32 v6, v6, 32, vcc
        v_cndmask_b32 v9, v9, 0, vcc
        v_cvt_f32_u32 v6, v6
        v_mul_f32 v6, {f2u(1/64)}, v6
        v_cvt_f32_u32 v8, v8
        v_fma_f32 {v(b)}, v6, v8, v9
        ''')
        for blk in range(4):
            for j in range(4):
                c = 2 * j + (blk & 1) + 32 * (blk >> 1)
                if c: fill.append(f'v_fmamk_f32 {v(b+4*blk+j)}, v6, {f2u(float(c))}, {v(b)}')
        for j in range(16): fill.append(f'v_cos_f32 {v(b+16+j)}, {v(b+j)}')
        for j in range(8): fill.append(f'v_cvt_pk_bf16_f32 {v(R1+j)}, {v(b+16+2*j)}, {v(b+17+2*j)}')
        fill += L(f'''
        v_and_b32 v6, 1, {v(V_LANE)}
        v_lshlrev_b32 v6, 31, v6
        v_or_b32 {v(V_SGN)}, 1.0, v6
        s_cmp_ge_u32 {s(S_Q)}, 4 @@ s_cselect_b64 vcc, -1, 0
        v_mov_b32 {v(V_FAC)}, 1.0
        v_cndmask_b32 {v(V_FAC)}, {v(V_FAC)}, {v(V_SGN)}, vcc
        s_lshl_b32 {s(S_T0)}, {s(S_W)}, 19
        s_lshl_b32 {s(S_T1)}, {s(S_Q)}, 13
        s_add_u32 {s(S_T0)}, {s(S_T0)}, {s(S_T1)}
        s_lshl_b32 {s(S_T1)}, {s(S_U)}, 8
        s_add_u32 {s(S_T0)}, {s(S_T0)}, {s(S_T1)}
        v_lshlrev_b32 v6, 17, {v(V_G)}
        v_lshl_add_u32 v6, {v(V_L15)}, 4, v6
        v_add_u32 {v(V_ZO)}, {s(S_T0)}, v6
        s_lshr_b32 {s(S_T0)}, {s(S_W)}, 1
        s_lshl_b32 {s(S_T0)}, {s(S_T0)}, 10
        s_lshl3_add_u32 {s(S_T0)}, {s(S_ODD)}, {s(S_T0)}
        s_add_u32 {s(S_T0)}, {s(S_T0)}, {L_EXC}
        v_add_u32 {v(V_EW)}, {s(S_T0)}, {v(V_L16)}
        v_add_u32 {v(V_ER)}, {L_EXC}, {v(V_L16)}
        s_lshr_b32 {s(S_T1)}, {s(S_Q)}, 1
        s_lshl2_add_u32 {s(S_T0)}, {s(S_W)}, {s(S_T1)}
        s_lshl_b32 {s(S_T0)}, {s(S_T0)}, 5
        s_add_u32 {s(S_T0)}, {s(S_T0)}, {s(S_U)}
        s_and_b32 {s(S_T1)}, {s(S_Q)}, 1
        s_lshl1_add_u32 {s(S_T0)}, {s(S_T0)}, {s(S_T1)}
        s_lshl_b32 {s(S_T0)}, {s(S_T0)}, 7
        s_add_u32 {s(S_F1)}, {s(S_T0)}, {F1}
        v_and_b32 v6, 1, {v(V_L15)}
        v_cmp_eq_u32 {s(S_XO,2)}, 1, v6
        v_and_b32 v6, 2, {v(V_L15)}
        v_cmp_eq_u32 {s(S_XO+2,2)}, 2, v6
        v_lshrrev_b32 v6, 2, {v(V_L15)}
        v_cmp_eq_u32 {s(S_M,2)}, v6, {v(V_G)}
        ''')
        fill += self.w1_setup()
        fill += L(f's_mov_b32 {s(S_T1)}, 65536\ns_mov_b32 {s(S_T0)}, {f2u(1/512)}\ns_mov_b32 {s(S_T2)}, {WS_HN}\ns_mov_b32 {s(S_T3)}, {WS_HN+65536}')
        xl = []
        def xrd(i):
            while len(xm) <= i: g1.pop(0)()
            A.wait(vm=xm[i])
            for kk in range(2):
                A(f'ds_read_b128 {v(X+8*i+4*kk,4)}, {v(V_XR+kk)} offset:{i*2048}')
            xl.append(A.nlg)
        self.site('A')
        xrd(0)
        self.stamp('x first')
        xrd(1)
        A(f'''
        v_add_u32 {v(V_TAG)}, 0x9e3779b0, {v(V_TAG)}
        v_add_u32 {v(V_TAG+1)}, 0x7f4a7c15, {v(V_TAG+1)}
        s_getreg_b32 {s(S_T0)}, hwreg(HW_REG_XCC_ID)
        s_and_b32 {s(S_T0)}, {s(S_T0)}, 15
        v_add_u32 {v(V_FXV)}, {s(S_T0)}, {v(V_TAG)}
        v_mov_b32 {v(V_FXV+1)}, {v(V_TAG+1)}
        s_lshl_b32 {s(S_T0)}, {s(S_U)}, 7
        s_lshl3_add_u32 {s(S_T0)}, {s(S_Q)}, {s(S_T0)}
        s_add_u32 {s(S_T0)}, {s(S_T0)}, {FX}
        s_mov_b64 exec, 1
        buffer_store_dwordx2 {v(V_FXV,2)}, off, {s(SRD_WS,4)}, {s(S_T0)} sc1
        s_mov_b64 exec, -1
        ''')
        def t1():
            if o.get('t1bar', 1): A('s_barrier')
            if o.get('g2'):
                self.g2touch(1)
                if o.get('tw2', 2) == 1: self.g2touch(2)
                if o.get('ts') == 0: self.smalltouch(S_AM0)
                return
            T1 = o.get('t1', 112)
            if T1 > T0: self.wtouch(V_TD, SRD_W1, T0, min(T1 - T0, 64))
            if T1 - T0 > 64: self.wtouch(V_TD, SRD_W1, T0 + 64, T1 - T0 - 64)
            if o.get('tw2'): self.wtouch(V_TD, SRD_W2, 0, o['tw2'])
        self.w1t = 56
        g1 = [(lambda i=i: xdma(i)) for i in range(NX1, 8)] + (xr if XRP != 2 else [lambda: None] * o.get('t1d', 0)) + [t1]
        for _ in range(min(len(g1), o.get('xr0', 3))): g1.pop(0)()
        XRE = o.get('xre', 2); cnt = [0, 0]
        def fl(n):
            cnt[0] += 1
            if g1 and cnt[0] % XRE == 0: return g1.pop(0)()
            k = cnt[1]
            if fild and cnt[0] % 4: self.emit(fild.pop(0)); k += 1
            while fill and k < n:
                n0 = A.wt; self.emit(fill.pop(0)); k += A.wt - n0
            cnt[1] = max(0, k - n)
        for i in range(8):
            ip, hp = i >> 1, i & 1
            if i + 2 < 8: xrd(i + 2)
            while 8 * ip + 7 not in tl: self.emit(fild.pop(0))
            A.wait(lg=max(xl[i], tl[8 * ip + 7]))
            for kk in range(2):
                xa = X + 8 * i + 4 * kk
                first = (i == 0 and kk == 0)
                A(f'v_mfma_f32_16x16x32_bf16 {v(SQ,4)}, {v(xa,4)}, {v(xa,4)}, {"0" if first else v(SQ,4)}')
                fl(2.2)
                A(f'v_mfma_f32_16x16x32_bf16 {v(SUM,4)}, {v(xa,4)}, {v(V_ONES,4)}, {"0" if first else v(SUM,4)}')
                fl(2.2)
                for t in range(4):
                    acc = ACC + 16 * hp + 4 * t
                    cin = '0' if (ip == 0 and kk == 0) else v(acc, 4)
                    A(f'v_mfma_f32_16x16x32_bf16 {v(acc,4)}, {v(xa,4)}, {a(32*ip+16*kk+4*t,4)}, {cin}')
                    if not (kk == 1 and t == 3): fl(2.2)
        print('gemm1 fill left', len(fill), len(fild), len(g1))
        self.flush(fild); self.flush(fill)
        self.stamp('gemm1 done')
        A(f'''
        v_cndmask_b32 v6, {v(SQ)}, {v(SQ+1)}, {s(S_XO,2)}
        v_cndmask_b32 v7, {v(SQ+2)}, {v(SQ+3)}, {s(S_XO,2)}
        v_cndmask_b32 v8, {v(SUM)}, {v(SUM+1)}, {s(S_XO,2)}
        v_cndmask_b32 v9, {v(SUM+2)}, {v(SUM+3)}, {s(S_XO,2)}
        v_cndmask_b32 v6, v6, v7, {s(S_XO+2,2)}
        v_cndmask_b32 v8, v8, v9, {s(S_XO+2,2)}
        v_mul_f32 v8, {s(S_T0)}, v8
        v_mul_f32 v8, v8, v8
        v_fma_f32 v6, v6, {s(S_T0)}, -v8
        v_max_f32 v6, 0, v6
        v_add_f32 v6, {f2u(1e-5)}, v6
        v_rsq_f32 v6, v6
        v_fma_f32 {v(ACC)}, {v(ACC+16)}, {v(V_SGN)}, {v(ACC)}
        v_cndmask_b32 v6, 0, v6, {s(S_M,2)}
        v_fma_f32 {v(ACC+1)}, {v(ACC+17)}, {v(V_SGN)}, {v(ACC+1)}
        v_fma_f32 {v(ACC+2)}, {v(ACC+18)}, {v(V_SGN)}, {v(ACC+2)}
        v_mfma_f32_16x16x4_f32 v[20:23], v6, {v(V_FAC)}, 0
        ''')
        for i in range(3, 16):
            A(f'v_fma_f32 {v(ACC+i)}, {v(ACC+16+i)}, {v(V_SGN)}, {v(ACC+i)}')
        for t in range(4):
            for r in range(0, 4, 2):
                A(f'v_pk_mul_f32 {v(ACC+4*t+r,2)}, {v(ACC+4*t+r,2)}, {v(20+r,2)}')
            A(f'v_cvt_pk_bf16_f32 {v(24+2*t)}, {v(ACC+4*t)}, {v(ACC+4*t+1)}')
            A(f'v_cvt_pk_bf16_f32 {v(25+2*t)}, {v(ACC+4*t+2)}, {v(ACC+4*t+3)}')
            A(f'ds_write_b64 {v(V_EW)}, {v(24+2*t,2)} offset:{t*2048}')
        if XRP == 2: A(vmset)
        A.wait(vm=None if XRP else self.xrm, lg=A.nlg)
        A('s_barrier')
        for f in range(8):
            A(f'ds_read_b128 {v(32+4*f,4)}, {v(V_ER)} offset:{f*1024}')
        for t in range(4):
            A(f's_waitcnt lgkmcnt({6-2*t})')
            A(f'v_mfma_f32_16x16x32_bf16 {v(64+4*t,4)}, {v(R1,4)}, {v(32+8*t,4)}, 0')
            A(f'v_mfma_f32_16x16x32_bf16 {v(64+4*t,4)}, {v(R1+4,4)}, {v(36+8*t,4)}, {v(64+4*t,4)}')
        A.dlg = A.nlg
        for k in range(2):
            for t in range(4):
                A(f'v_cvt_pk_bf16_f32 {v(24+4*k+t)}, {v(64+4*t+2*k)}, {v(65+4*t+2*k)}')
            A(f'buffer_store_dwordx4 {v(24+4*k,4)}, {v(V_ZO)}, {s(SRD_WS,4)}, {"0" if k == 0 else s(S_T1)} offen sc1')
            if o.get('zc'): A(f'buffer_store_dwordx4 {v(24+4*k,4)}, {v(V_ZO)}, {s(SRD_WS,4)}, {s(S_T2+k)} offen sc1')
        self.stamp('Z stores')
        self.zst = A.nvm
        self.xr = []
        if o.get('tw2') == 2:
            if o.get('t2bar', 1): A('s_barrier')
            self.g2touch(2)
            if XRP == 2: self.xr = xr
            if o.get('ts', 1) == 1: self.smalltouch(S_T0)
        elif XRP == 2: self.flush(xr)

    def ygrp(self, var, q1, tt): return Y + 32 * var + 16 * q1 + 8 * tt
    def dgrp(self, var, q1, tt):
        return ZF + 32 * q1 + 8 * self.dord.index((var, tt))
    dord = [(1, 1), (0, 1), (1, 0), (0, 0)]
    def window(self):
        A = self.A; o = self.opt
        A.clk = clk = sched.Clock()
        main = []
        AA = A
        A = lambda t: main.extend(L(t))
        XR = ZF
        SD0, SD1, SA1, SM_ = S_W2S, S_AM0, S_TCH, S_FIX
        AD = Y
        A(f'''
        s_sub_u32 {s(S_T0)}, {s(S_W)}, {s(S_Q)}
        s_and_b32 {s(S_T0)}, {s(S_T0)}, 3
        s_lshr_b32 {s(S_T1)}, {s(S_Q)}, 2
        s_lshl1_add_u32 {s(SD0)}, {s(S_T0)}, {s(S_T1)}
        s_lshl_b32 {s(SD0)}, {s(SD0)}, 11
        s_add_u32 {s(S_T0)}, {s(S_W)}, {s(S_Q)}
        s_sub_u32 {s(S_T0)}, 3, {s(S_T0)}
        s_and_b32 {s(S_T0)}, {s(S_T0)}, 3
        s_xor_b32 {s(S_T1)}, {s(S_T1)}, 1
        s_lshl1_add_u32 {s(SD1)}, {s(S_T0)}, {s(S_T1)}
        s_lshl_b32 {s(SD1)}, {s(SD1)}, 11
        s_add_u32 {s(SM_)}, {s(S_SB)}, 12288
        s_mov_b32 {s(SA1)}, 32768
        s_cmp_eq_u32 {s(S_U)}, 0
        s_cselect_b32 {s(S_T2)}, {s(SA1)}, 0
        s_cselect_b32 {s(SA1)}, 16384, {s(SA1)}
        s_cmp_eq_u32 {s(S_ODD)}, 0
        s_cselect_b32 {s(S_T3)}, 0, {s(S_T2)}
        s_cselect_b32 {s(S_T2)}, {s(S_T2)}, 0
        v_xor_b32 v7, 64, v15
        v_xor_b32 v8, 0x70, v15
        v_xor_b32 v9, 0x30, v15
        v_lshrrev_b32 v10, 1, {v(V_L15)}
        v_sub_u32 v11, 8, {v(V_G)}
        v_and_b32 v11, 7, v11
        v_xor_b32 v11, v11, v10
        v_lshlrev_b32 v11, 4, v11
        v_lshl_add_u32 v10, {v(V_L15)}, 7, v11
        v_xor_b32 v11, 64, v10
        v_cmp_eq_u32 vcc, 0, {v(V_L15)}
        v_mov_b32 v12, {s(S_T2)}
        v_mov_b32 v13, {s(S_T3)}
        v_cndmask_b32 v12, 0, v12, vcc
        v_cndmask_b32 v13, 0, v13, vcc
        s_add_u32 {s(S_T0)}, {s(SD1)}, 4096
        s_and_b32 {s(S_T0)}, {s(S_T0)}, 0x3fff
        s_sub_u32 {s(S_T0)}, {s(S_T0)}, {s(SD1)}
        s_mov_b32 {s(S_T1)}, {(-SPW) & 0xffffffff}
        s_cmp_eq_u32 {s(S_W)}, 0
        s_cselect_b32 {s(S_T1)}, {3*SPW}, {s(S_T1)}
        s_cmp_eq_u32 {s(S_ODD)}, 0
        s_cselect_b32 {s(S_T2)}, {s(S_T0)}, {s(S_T1)}
        s_cselect_b32 {s(S_T3)}, {s(S_T1)}, {s(S_T0)}
        v_mov_b32 v6, v10
        s_mov_b64 exec, 0xffff
        v_add_u32 v10, {s(S_T2)}, v10
        v_add_u32 v6, {s(S_T3)}, v6
        s_mov_b64 exec, -1
        ''')
        for rt in range(4):
            pat = [15, 7, 8, 9, 10 if rt < 2 else 6, 11]
            for side in range(2):
                d = S_T0 + side
                if rt & 1: A(f's_add_u32 {s(S_T2)}, {s(SD1 if side else SD0)}, {s(SA1)}')
                A(f's_add_u32 {s(S_T3)}, {s(SM_)}, {(rt&1)*4096+side*2048}')
                A(f's_cmp_eq_u32 {s(S_ODD)}, {rt>>1}')
                A(f's_cselect_b32 {s(d)}, {s(S_T2 if rt & 1 else (SD1 if side else SD0))}, {s(S_T3)}')
            for n in range(6):
                if n >= 2 and not rt & 1: A(f'v_add3_u32 {v(AD+6*rt+n)}, {v(pat[n])}, {s(S_T1)}, {v(12+(rt>>1))}')
                else: A(f'v_add_u32 {v(AD+6*rt+n)}, {s(S_T0 + (n >= 2))}, {v(pat[n])}')
        A = AA
        m2 = []; ex = False
        for x in main:
            if ex or x.startswith('s_cselect'): m2[-1] += '\n' + x
            else: m2.append(x)
            if x.startswith('s_mov_b64 exec'): ex = not x.endswith('-1')
        main = m2
        def xin():
            A.wait(vm=self.xrm); A('s_barrier')
        pre = []
        if o.get('xrp'): pre = main; main = [xin]
        xl = {}
        for rt in range(4):
            main += [f'ds_read_b128 {v(XR+16*rt+4*n,4)}, {v(AD+6*rt+n)}' for n in range(4)]
            main += [f'ds_read_u16 {v(AD+6*rt+4+q1)}, {v(AD+6*rt+4+q1)}' for q1 in range(2)]
            main.append(lambda rt=rt: (xl.__setitem__(rt, A.nlg), rt and A.wait(lg=xl[rt-1])))
        SR = 6
        (pre if pre else main).extend(L(f'''
        v_mov_b32 v6, 0xbf80
        v_mov_b32 v7, -1.0
        v_cndmask_b32 v6, v6, v7, {s(S_XO,2)}
        v_cndmask_b32 v6, 0, v6, {s(S_M,2)}
        v_cndmask_b32 {v(V_SEL+2)}, v6, 0, {s(S_XO+2,2)}
        v_cndmask_b32 {v(V_SEL+3)}, 0, v6, {s(S_XO+2,2)}
        v_mov_b32 {v(V_SEL)}, 0
        v_mov_b32 {v(V_SEL+1)}, 0
        v_mov_b32 {v(V_SEL+4)}, 0
        v_mov_b32 {v(V_SEL+5)}, 0
        v_and_b32 v6, 0xffff, {v(V_SEL+2)}
        v_and_b32 v8, 0xffff0000, {v(V_SEL+3)}
        v_xor_b32 v9, {v(V_SEL+2)}, {v(V_SEL+3)}
        v_xor_b32 v9, v9, v6
        v_xor_b32 v9, v9, v8
        v_mov_b32 v7, 0
        v_mov_b32 v10, v8
        v_mov_b32 v11, v9
        v_mov_b32 v12, v6
        v_mov_b32 v13, 0
        v_cmp_eq_u32 vcc, 0, {v(V_G)}
        s_cmp_eq_u32 {s(S_W)}, 0 @@ s_cselect_b64 {s(S_FIX,2)}, vcc, 0
        '''))
        main = pre + main
        def xfree():
            A.wait(lg=xl[3]); A('s_barrier'); self.xfree = True
        self.xfree = False
        main.append(xfree)
        main.append(f's_mov_b32 {s(S_T0)}, 0xffff')
        main += [f'v_bfi_b32 {v(XR+16*rt+8+4*q1)}, {s(S_T0)}, {v(AD+6*rt+4+q1)}, {v(XR+16*rt+8+4*q1)}' for rt in range(4) for q1 in range(2)]
        sel = lambda var, et: SR + 4 * et if var else V_SEL + 2 - 2 * et
        xf = lambda rt, var, q1: XR + 16 * rt + 4 * (2 * var + q1)
        G8 = [(q1, var, tt) for q1 in range(2) for var, tt in self.dord]
        def smm(d, var, et, x, c): return f'v_mfma_f32_16x16x32_bf16 {v(d+4*et,4)}, {v(sel(var,et),4)}, {v(x,4)}, {v(d+4*et,4) if c else "0"}'
        for q1, var, tt in G8: main += [smm(self.ygrp(1-var,q1,tt), 1-var, et, xf(tt,1-var,q1), 0) for et in range(2)]
        main += [f'v_lshlrev_b32 {v(V_FIX+rt)}, 16, {v(xf(rt,0,0))}' for rt in range(4)]
        main += [f'v_and_b32 {v(r)}, 0x7fff7fff, {v(r)}' for r in (V_SEL + 2, V_SEL + 3, 6, 8, 9, 10, 11, 12)]
        for q1, var, tt in G8: main += [smm(self.ygrp(1-var,q1,tt), var, et, xf(2+tt,var,q1), 1) for et in range(2)]
        for k, (q1, var, tt) in enumerate(G8):
            y = self.ygrp(1 - var, q1, tt); x = xf(2 + tt, var, q1)
            main += [f'v_cvt_pk_bf16_f32 {v(x+i)}, {v(y+2*i)}, {v(y+2*i+1)}' for i in range(4)]
            main += [smm(y, 1-var, et, xf(tt,1-var,q1), 0) for et in range(2)]
            main += [f'v_accvgpr_write_b32 {a(AD_+4*k+i)}, {v(x+i)}' for i in range(4)]
        main += L(f'''
        s_lshr_b32 {s(S_T0)}, {s(S_U)}, 3
        s_lshl2_add_u32 {s(S_T0)}, {s(S_T0)}, {s(S_W)}
        s_lshl_b32 {s(S_T0)}, {s(S_T0)}, 13
        s_add_u32 {s(S_T0)}, {s(S_T0)}, {F1}
        v_add_u32 v15, {s(S_T0)}, {v(V_L128)}
        s_lshl2_add_u32 {s(S_T0)}, {s(S_U)}, {s(S_W)}
        s_lshl_b32 {s(S_T0)}, {s(S_T0)}, 14
        s_and_b32 {s(S_T3)}, {s(S_Q)}, {4 if o.get('zc') else 0}
        s_lshl_b32 {s(S_T3)}, {s(S_T3)}, 19
        s_add_u32 {s(S_T0)}, {s(S_T0)}, {s(S_T3)}
        v_add_u32 {v(V_ZA)}, {s(S_T0)}, {v(V_L16)}
        v_add_u32 {v(V_ZA+1)}, 8192, {v(V_ZA)}
        s_and_b32 {s(S_T3)}, {s(S_Q)}, 3
        s_lshl_b32 {s(S_T3)}, {s(S_T3)}, 11
        s_lshl1_add_u32 {s(S_AM0)}, {s(S_T3)}, {s(S_T0)}
        s_lshl_b32 {s(S_T1)}, {s(S_ODD)}, 11
        s_add_u32 {s(S_T1)}, {s(S_T1)}, {s(S_HB)}
        v_add_u32 v10, {s(S_T1)}, {v(V_L16)}
        v_xor_b32 v11, 2048, v10
        s_xor_b32 {s(S_T1)}, {s(S_W)}, {s(S_C)}
        s_lshl_b32 {s(S_T1)}, {s(S_T1)}, 14
        v_xor_b32 v8, {s(S_T1)}, v10
        v_xor_b32 v9, {s(S_T1)}, v11
        s_lshl3_add_u32 {s(S_RR)}, {s(S_U)}, {s(S_Q)}
        s_lshl_b32 {s(S_RR)}, {s(S_RR)}, 5
        s_add_u32 {s(S_RR)}, {s(S_RR)}, {s(S_W)}
        s_lshl_b32 {s(S_RR)}, {s(S_RR)}, 11
        s_add_u32 {s(S_RR)}, {s(S_RR)}, {WS_P}
        s_lshl_b32 {s(S_T0)}, {s(S_U)}, 7
        s_add_u32 {s(S_T0)}, {s(S_T0)}, {FX}
        v_and_b32 v6, 7, {v(V_LANE)}
        v_lshlrev_b32 v6, 3, v6
        ''')
        NBD = o.get('nbd', 14); PE = o.get('pe', 1)
        WR, WL, WT, F1T, W0 = o.get('wr', 64), o.get('wl', 700), o.get('wt', 128), o.get('f1t', 1000), o.get('w0', 0)
        dq = []; tq = []; cq = []; dt = {}; tt_ = {}
        for kind, k, ops in self.pipe: {'dma': dq, 'tr': tq, 'cs': cq}[kind].extend((kind, k, f) for f in ops)
        nxt = W0; flagged = False; pm = None; nd = 0
        while main or (dq and dq[0][1] < NBD) or not flagged:
            T = clk.t
            k = dq[0][1] if dq else 99
            if not flagged and T >= F1T:
                self.stamp('pre F1')
                A.wait(vm=self.zst)
                self.setflag(S_F1, ' sc1')
                self.stamp('F1 set')
                flagged = True
                self.flush(self.xr)
                for _ in range(o.get('wq2', 0)):
                    k = dq[0][1]; self.emit(dq.pop(0)[2]); nxt = max(nxt, T) + WR; dt[k] = nxt
            elif nd < o.get('wq', 0): self.emit(dq.pop(0)[2]); nd += 1; dt[k] = W0
            elif main and main[0] is xin and not flagged and o.get('xrp') == 2: clk.t += 8
            elif k < NBD and T >= nxt and (k < 3 or (self.xfree if k < 5 else (k - 5) in tt_ and T >= tt_[k - 5] + WT)) and not (k >= NBD - PE and (main or not flagged)):
                if k == NBD - PE and pm is None:
                    A(f'buffer_load_dwordx2 v[12:13], v15, {s(SRD_WS,4)}, 0 offen sc1'); pm = A.nvm
                if k >= 5: A.wait(lg=self.w1l[k - 5])
                self.emit(dq.pop(0)[2]); nxt = max(nxt, T - 32) + WR
                if not (dq and dq[0][1] == k):
                    dt[k] = nxt
                    if o.get('fine') == 3 and k in (0, 2, 4, 5, 6, 7, 8, 9, 10, 11, 12): self.stamp(f'wd{k} m{len(main)} T{T}')
            elif tq[0][1] in dt and tq[0][1] < 14 and T >= dt[tq[0][1]] + WL:
                k = tq[0][1]; self.emit(tq.pop(0)[2])
                if tq[0][1] != k: tt_[k] = T
            elif cq[0][1] in tt_ and T >= tt_[cq[0][1]] + WT and clk.pipe <= T + 4 and not (main and o.get('mp', 1)): self.emit(cq.pop(0)[2])
            elif main: self.emit(main.pop(0))
            else: clk.t += 8
        print('window: est', clk.t, 'tr left', len(tq), 'cs left', len(cq))
        A.clk = None
        self.post = dq + tq + cq
        self.stamp('p2 prepoll')
        if pm is None:
            A(f'buffer_load_dwordx2 v[12:13], v15, {s(SRD_WS,4)}, 0 offen sc1'); pm = A.nvm
        Lp = A.newlabel('poll'); D = A.newlabel('polld')
        self.site('B')
        A.wait(vm=pm)
        A.on = False
        A(f'v_cmp_ne_u64 vcc, v[12:13], {v(V_TAG,2)}\ns_mov_b32 {s(S_CNT)}, 0x20000\ns_cbranch_vccz {D}')
        A.snap()
        A.label(Lp)
        A(f'''
        buffer_load_dwordx2 v[12:13], v15, {s(SRD_WS,4)}, 0 offen sc1
        s_sub_u32 {s(S_CNT)}, {s(S_CNT)}, 1
        s_cbranch_scc1 {D}
        s_waitcnt vmcnt(0)
        v_cmp_ne_u64 vcc, v[12:13], {v(V_TAG,2)}
        s_cbranch_vccnz {Lp}
        ''')
        A.label(D)
        A.unsnap()
        self.stamp('p2 polled')

    def p23(self):
        A = self.A; o = self.opt
        A.on = True
        dr = str(o.get('drop', ''))
        A.drop = lambda t: ('d' in dr and t.endswith(' lds')) or ('t' in dr and t.startswith('ds_read_b64_tr')) or ('w' in dr and t.startswith('ds_write')) or ('h' in dr and t.startswith('ds_read_b128'))
        zm = {}
        def zld(q1, ks):
            if ks or q1: A(f's_add_u32 {s(S_T3)}, {s(S_T3)}, 2048\ns_and_b32 {s(S_T3)}, {s(S_T3)}, 0x1800')
            for h in range(2):
                A(f'buffer_load_dwordx4 {v(ZF+32*q1+8*ks+4*h,4)}, {v(V_ZA+q1)}, {s(SRD_WS,4)}, {s(S_T3)} offen offset:{h*1024}{self.zldf}')
            zm[q1, ks] = A.nvm
        for k in range(6):
            zld(k >> 2, k & 3)
            if k == 3: A(f'buffer_load_dwordx2 v[6:7], v6, {s(SRD_WS,4)}, {s(S_T0)} offen sc1')
        NA = 10
        self.debt = 0; self.tick = 0; self.nxt = o.get('dma0', 16); self.blk = -1; self.b4 = False; self.hold = False
        RATE, LAT, SLACK, TL = o.get('rate', 40) / 10, o.get('lat', 44), o.get('slack', 8), o.get('tl', 8)
        dq = []; tq = []; cq = []; dt = {}; tt_ = {}
        for kind, k, f in self.post: {'dma': dq, 'tr': tq, 'cs': cq}[kind].append((kind, k, f))
        self.dfree = 0
        pend_d = {k for _, k, _ in dq}; pend_t = {k for _, k, _ in tq}
        for k in range(16):
            if k not in pend_d: dt[k] = -999
            if k not in pend_t: tt_[k] = -999
        dq += [('x', 16, x) for x in self.w2_setup()]
        for b in range(14): dq += [('dma', 16 + b, f) for f in self.w2_dma(b, (16 + b) % 5)]
        tq += [('x', 16, x) for x in self.w2_setup_r()]
        self.trl = {}
        for b in range(14): tq += [('tr', 16 + b, f) for f in self.w2_tr(b, (16 + b) % 5)]
        def ins(item, f, tag=-1):
            p = min([n for n, x in enumerate(dq) if x[1] >= item] + [len(dq)])
            dq.insert(p, ('x', tag, f))
        if self.w1t < 56: ins(0, lambda: self.w1touch(self.w1t, 56))
        if 't3' in o:
            t3 = [int(x) for x in str(o['t3']).split('.')]
            for k, p in enumerate(t3): ins(p, lambda k=k: self.w2touch(k if len(t3) > 1 else None))
        if 't4' in o:
            def t4():
                self.smalltouch(S_RR + 2)
                self.g2touch(2)
                if o.get('ptt4'): self.ptouch((o['ptt4'],))
                self.nxt = max(self.nxt, self.tick) + o.get('t4gap', 60)
            ins(o['t4'], t4, -2)
        if o.get('pt', 0) >= 16: ins(o['pt'], self.ptouch)
        NCL = o.get('ncl', 0)
        S_PQ, S_PS = S_RR, S_RR + 1
        V_FC, V_FPD, V_NAN = V_ZA, V_ZA + 1, V_W1D
        fadr = L(f'''
        v_add_u32 {v(V_FC)}, {s(S_PQ)}, {v(V_L128)}
        v_and_b32 {v(V_FPD)}, 7, {v(V_LANE)}
        v_lshlrev_b32 {v(V_FPD)}, 16, {v(V_FPD)}
        v_xor_b32 {v(V_FPD)}, {v(V_FPD)}, {v(V_FC)}
        ''')
        S_ZQ = S_AM0; ZC = o.get('zc', 0)
        def zdone():
            A.wait(vm=zm[1, 3])
            A(f's_mov_b64 exec, 0xe00\nbuffer_store_dwordx2 {v(V_TAG,2)}, {v(V_FPD)}, {s(SRD_WS,4)}, 0 offen sc1\ns_mov_b64 exec, -1')
        pos = min(n for n, x in enumerate(dq) if x[1] >= 16 or x[1] == -2)
        if o.get('clp'): pos += 1
        cl = []
        if NCL:
            cl += [('x', -3, f'v_mov_b32 {v(V_NAN+i)}, -1') for i in range(4)]
            def clr(x, k):
                if k == 0: A(f's_xor_b32 {s(S_PS)}, {s(S_PQ)}, {x*(65536+8192)}')
                A(f'buffer_store_dwordx4 {v(V_NAN,4)}, {v(V_L16)}, {s(SRD_WS,4)}, {s(S_PS)} offen offset:{k*1024} sc1')
                self.clm = A.nvm
            cl += [('st', -3, lambda x=x, k=k: clr(x, k)) for x in range(NCL, 0, -1) for k in range(2)]
            def clf():
                A.wait(vm=self.clm)
                A(f's_mov_b64 exec, {(2 << NCL) - 2}\nbuffer_store_dwordx2 {v(V_TAG,2)}, {v(V_FPD)}, {s(SRD_WS,4)}, 0 offen sc1\ns_mov_b64 exec, -1')
            ins(o.get('clf', 21), clf)
        dq[pos:pos] = cl
        dq[0:0] = [('x', -3, x) for x in fadr]
        def trlg(k): return self.w1l[self.w1order[k]] if k < 16 else self.trl[k]
        def d_ok(force=False):
            if not dq: return False
            kind, k, f = dq[0]
            if kind == 'x': return force or k > -2 or self.tick >= (o.get('t4t', 40) if k == -2 else 10)
            if kind == 'st': return force or self.tick >= self.nxt
            dep = k < 5 or ((k - 5) in tt_ and (force or self.tick >= tt_[k - 5] + TL))
            return dep and (force or (self.tick >= self.nxt and not self.hold))
        def d_pop():
            kind, k, f = dq.pop(0)
            if kind == 'st': self.nxt = max(self.nxt, self.tick - SLACK) + o.get('srate', 30) / 10
            if kind == 'dma':
                if k >= 5: A.wait(lg=trlg(k - 5))
                self.nxt = max(self.nxt, self.tick - SLACK) + RATE
                if not (dq and dq[0][:2] == ('dma', k)): dt[k] = self.tick
            self.emit(f)
        def t_ok(force=False):
            if not tq: return False
            kind, k, f = tq[0]
            if k not in dt: return False
            if kind == 'x': return True
            return (k < 14 + self.dfree if k < 16 else self.blk > k - 16) and (force or self.tick >= dt[k] + LAT)
        def t_pop():
            kind, k, f = tq.pop(0)
            self.emit(f)
            if kind == 'tr' and not (tq and tq[0][1] == k): tt_[k] = self.tick
        def c_ok(): return cq and cq[0][1] in tt_ and self.tick >= tt_[cq[0][1]] + TL
        def ensure(k):
            while k not in tt_:
                if t_ok(True): t_pop()
                else:
                    assert d_ok(True), (k, dq[:1], tq[:1]); d_pop()
        self.ensure = ensure; self.dq = dq; self.d_pop = d_pop
        def fill(kmax, qs, k=0):
            k += self.debt; self.debt = 0
            while k < kmax:
                n0 = A.wt
                if d_ok(): d_pop()
                else:
                    for q in qs:
                        if q is None:
                            if t_ok(): t_pop(); break
                        elif q: self.emit(q.pop(0)); break
                    else: break
                k += A.wt - n0
            self.debt = max(0, k - kmax)
        def extra(kmax, qs):
            if mq: mq.pop(0)()
            elif c_ok(): self.emit(cq.pop(0)[2])
            else: return
            self.tick += 1
            fill(kmax, qs)
        def grp(n, rt): return self.ygrp(n >> 1, n & 1, rt) if rt < 2 else self.dgrp(n >> 1, n & 1, rt - 2)
        SQ = {rt: grp(0, rt) + 4 for rt in range(4)}; SM = {rt: grp(2, rt) + 4 for rt in range(4)}
        mq = []
        slots = [TB + 56, TB + 60]
        def dadd(q1):
            for k, (var, tt) in enumerate(self.dord):
                d = self.dgrp(var, q1, tt); y = self.ygrp(1 - var, q1, tt)
                for et in range(2):
                    A(f'v_mfma_f32_16x16x32_bf16 {v(d+4*et,4)}, {v(V_SEL+2-2*et,4)}, {a(AD_+16*q1+4*k,4)}, {v(y+4*et,4)}')
                    self.tick += 1
                    fill(P2BG, [vq, None])
            self.dfree = q1 + 1
        def swap0(q1):
            def f():
                LS = A.newlabel('nsw')
                A(f's_cmp_lg_u32 {s(S_U)}, 0\ns_cbranch_scc1 {LS}')
                A.snap()
                A('s_mov_b32 exec_lo, 0x10001\ns_mov_b32 exec_hi, 0x10001')
                for j in range(8): A(f'v_swap_b32 {v(self.ygrp(1,q1,0)+j)}, {v(self.dgrp(1,q1,0)+j)}')
                A('s_mov_b64 exec, -1\ns_nop 3')
                A.label(LS)
                A.unsnap()
            return f
        def conv(n, rt):
            g = grp(n, rt)
            ln = []
            if n == 0: ln.append(f'v_cndmask_b32 {v(g)}, {v(g)}, {v(V_FIX+rt)}, {s(S_FIX,2)}')
            ln += [f'v_cvt_pk_bf16_f32 {v(g+j)}, {v(g+2*j)}, {v(g+2*j+1)}' for j in range(4)]
            if o.get('w64'):
                ln += [f'ds_write_b64 {v(10+(rt>>1))}, {v(g+2*j,2)} offset:{n*4096+(rt&1)*1024+8*j}' for j in range(2)]
            else: ln.append(f'ds_write_b128 {v(10+(rt>>1))}, {v(g,4)} offset:{n*4096+(rt&1)*1024}')
            def sm(gg, first):
                A(f'v_mfma_f32_16x16x32_bf16 {v(SM[rt],4)}, {v(V_ONES,4)}, {v(gg,4)}, {"0" if first else v(SM[rt],4)}')
                slots.append(gg)
            def rel():
                if self.tick >= o.get('wc0', 0): self.nxt += o.get('wc', 33) / 10
                if n & 1: slots.append(g + 4)
                mq.append(lambda: A(f'v_mfma_f32_16x16x32_bf16 {v(SQ[rt],4)}, {v(g,4)}, {v(g,4)}, {"0" if n == 0 else v(SQ[rt],4)}'))
                if n == 2: mq.append(lambda: sm(grp(0, rt), True))
                if n: mq.append(lambda: sm(g, False))
            ln.append(rel)
            return ln
        def half(q1):
            return (conv(q1, 1) + conv(q1, 3) + conv(2 + q1, 1) + conv(2 + q1, 3)
                    + conv(q1, 0) + conv(q1, 2) + [swap0(q1)] + conv(2 + q1, 0) + conv(2 + q1, 2))
        def take(q, kmax):
            k = 0
            while q and k < kmax:
                n0 = len(A.lines); self.emit(q.pop(0)); k += len(A.lines) - n0
            return k
        P2BG = o.get('p2bg', 2)
        vq = []
        n0 = A.wt
        while A.wt - n0 < o.get('shw', 100):
            if t_ok(): t_pop()
            elif cq and cq[0][1] in tt_: self.emit(cq.pop(0)[2]); A.wt += 4
            elif d_ok() and dq[0][0] == 'x': d_pop()
            else: break
        for q1 in range(2):
            if q1: dadd(0); vq += half(0)
            for ks in range(4):
                z = ZF + 32 * q1 + 8 * ks
                A.wait(vm=zm[q1, ks])
                if (ks, q1) == (0, 0): self.stamp('Z first')
                A(f'v_swap_b32 {v(z+2)}, {v(z+4)}')
                A(f'v_swap_b32 {v(z+3)}, {v(z+5)}')
                n = 0
                for tt in (1, 0):
                    for var in range(2):
                        for et in range(2):
                            acc = self.ygrp(var, q1, tt) + 4 * et
                            A(f'v_mfma_f32_16x16x32_bf16 {v(acc,4)}, {v(z+4*et,4)}, {v(TB+16*ks+8*tt+4*var,4)}, {v(acc,4)}')
                            n += 1; self.tick += 1
                            if q1 == 0 and ks < 2 and n == 1: zld(1, 2 + ks)
                            elif q1 == 0:
                                if (ks, n) > (1, 1): fill(P2BG, [None])
                            else:
                                fill(o.get('p2v', 3), [vq])
                                if mq and n % 2 == 0: extra(2, [vq])
        self.stamp('Z landed')
        if ZC:
            assert not any(x[2] in fadr for x in dq)
            zdone()
        dadd(1)
        while vq:
            if mq: extra(2, [vq])
            else: take(vq, 2)
        A.wait(lg=A.nlg)
        A('s_barrier')
        self.stamp('half 0')
        free = [TB + 4 * k for k in range(14)]
        acc = {}
        for t in range(4):
            for rt in range(4 if t < 3 else 2): acc[t, rt] = free.pop(0)
        started = set()
        def mm(t, rt, b, frag):
            c = v(acc[t, rt], 4)
            A(f'v_mfma_f32_16x16x32_bf16 {c}, {a(16*b+4*t,4)}, {v(frag,4)}, {c if (t, rt) in started else "0"}')
            started.add((t, rt))
        fr = {}; fl_ = {}
        def hrd(b):
            q1, ip, var = b >> 3, (b >> 1) & 3, b & 1
            ops = []
            if var == 0 and b:
                x = (ip ^ ((ip - 1) & 3)) << 14
                ops.append(f'v_xor_b32 v8, {x}, v8'); ops.append(f'v_xor_b32 v9, {x}, v9')
            for rt in range(4):
                def f(rt=rt):
                    fr[b, rt] = slots.pop(0)
                    A(f'ds_read_b128 {v(fr[b,rt],4)}, {v(8+(rt>>1))} offset:{(2*var+q1)*4096+(rt&1)*1024}')
                    fl_[b, rt] = A.nlg
                ops.append(f)
            return ops
        vq = half(1)
        while len(slots) < 4: extra(0, [])
        self.flush(hrd(0))
        while mq: extra(2, [None, vq] if o.get('tprio', 1) else [vq])
        take(vq, o.get('h1pre', 6))
        A(f'''
        s_getreg_b32 {s(S_T0)}, hwreg(HW_REG_XCC_ID)
        s_and_b32 {s(S_T0)}, {s(S_T0)}, 15
        v_subrev_u32 v6, {s(S_T0)}, v6
        v_cmp_ne_u64 vcc, v[6:7], {v(V_TAG,2)}
        s_and_b32 {s(S_T0)}, {s(S_Q)}, {4 if o.get('npl', 3) < 4 else 0}
        s_lshr_b32 {s(S_FAST)}, vcc_lo, {s(S_T0)}
        s_and_b32 {s(S_FAST)}, {s(S_FAST)}, {15 if o.get('npl', 3) < 4 else 255}
        s_cselect_b32 {s(S_FAST)}, 0, 1
        ''')
        LE = A.newlabel('noe')
        A(f'''
        s_or_b32 {s(S_T0)}, s2, {s(S_W)}
        s_cmp_lg_u32 {s(S_T0)}, 0
        s_cbranch_scc1 {LE}
        ''')
        A.snap()
        A(f's_mov_b32 {s(S_T0)}, {FE}')
        self.setflag(S_T0, ' sc1')
        A.label(LE); A.unsnap()
        st = L(f'''
        s_lshl_b32 {s(S_T0)}, {s(S_ODD)}, 10
        s_lshl3_add_u32 {s(S_T0)}, {s(S_W)}, {s(S_T0)}
        s_add_u32 {s(S_T0)}, {s(S_T0)}, {L_STAT}
        v_lshl_add_u32 v6, {v(V_L15)}, 5, {s(S_T0)}
        v_xor_b32 v7, 1024, v6
        ''')
        for rt in range(4):
            st += [f'v_cndmask_b32 {v(SM[rt]+1)}, {v(SQ[rt])}, {v(SQ[rt]+1)}, {s(S_XO,2)}',
                   f'v_cndmask_b32 {v(SM[rt]+2)}, {v(SQ[rt]+2)}, {v(SQ[rt]+3)}, {s(S_XO,2)}',
                   f'v_cndmask_b32 {v(SM[rt]+1)}, {v(SM[rt]+1)}, {v(SM[rt]+2)}, {s(S_XO+2,2)}']
        st.append(f's_mov_b64 exec, {s(S_M,2)}\n' + '\n'.join(f'ds_write_b64 {v(6+(rt>>1))}, {v(SM[rt],2)} offset:{(rt&1)*512}' for rt in range(4)) + '\ns_mov_b64 exec, -1')
        def mark(): self.stm = A.nlg
        st.append(mark)
        SB0, SB1 = SQ[2], SQ[3]
        BF = [SM[rt] for rt in range(4)]
        RS = SQ[0]
        s2 = L(f'''
        s_lshl_b32 {s(S_T2)}, {s(S_ODD)}, 10
        s_add_u32 {s(S_T2)}, {s(S_T2)}, {L_STAT}
        v_lshlrev_b32 {v(V_FIX)}, 5, {v(V_LANE)}
        v_xor_b32 {v(V_FIX)}, {s(S_T2)}, {v(V_FIX)}
        ds_read_b128 {v(SB0,4)}, {v(V_FIX)}
        ds_read_b128 {v(SB1,4)}, {v(V_FIX)} offset:16
        ''')
        def w_(): A.wait(lg=self.s2m)
        s3 = [w_] + L(f'''
        v_add_f32 {v(SB0)}, {v(SB0)}, {v(SB0+2)}
        v_add_f32 {v(SB0+1)}, {v(SB0+1)}, {v(SB0+3)}
        v_add_f32 {v(SB1)}, {v(SB1)}, {v(SB1+2)}
        v_add_f32 {v(SB1+1)}, {v(SB1+1)}, {v(SB1+3)}
        v_add_f32 {v(SB0)}, {v(SB0)}, {v(SB1)}
        v_add_f32 {v(SB0+1)}, {v(SB0+1)}, {v(SB1+1)}
        v_mul_f32 {v(SB0)}, {f2u(-1/512)}, {v(SB0)}
        v_mul_f32 {v(SB0+1)}, {f2u(1/512)}, {v(SB0+1)}
        v_fma_f32 {v(SB0+1)}, -{v(SB0)}, {v(SB0)}, {v(SB0+1)}
        v_max_f32 {v(SB0+1)}, 0, {v(SB0+1)}
        v_add_f32 {v(SB0+1)}, {f2u(1e-5)}, {v(SB0+1)}
        v_rcp_f32 {v(RS)}, {v(SB0+1)}
        v_sqrt_f32 {v(SB0+1)}, {v(SB0+1)}
        v_mov_b32 {v(RS+2)}, {v(RS)}
        v_cvt_pk_bf16_f32 {v(SB1)}, {v(SB0)}, {v(SB0+1)}
        v_lshlrev_b32 {v(SB0+2)}, 16, {v(SB1)}
        v_and_b32 {v(SB0+3)}, 0xffff0000, {v(SB1)}
        v_sub_f32 {v(SB0+2)}, {v(SB0)}, {v(SB0+2)}
        v_sub_f32 {v(SB0+3)}, {v(SB0+1)}, {v(SB0+3)}
        v_cvt_pk_bf16_f32 {v(SB1+1)}, {v(SB0+2)}, {v(SB0+3)}
        v_and_b32 {v(SB1+2)}, 0xffff, {v(SB1)}
        v_permlane32_swap_b32 {v(RS)}, {v(RS+2)}
        v_mov_b32 {v(RS+1)}, {v(RS)}
        v_mov_b32 {v(RS+3)}, {v(RS+2)}
        v_permlane16_swap_b32 {v(RS)}, {v(RS+1)}
        v_permlane16_swap_b32 {v(RS+2)}, {v(RS+3)}
        ''')
        for rt in range(4):
            s3 += [f'v_cmp_eq_u32 vcc, {rt}, {v(V_G)}', f'v_mov_b32 {v(BF[rt]+3)}, 0'] + [f'v_cndmask_b32 {v(BF[rt]+k)}, 0, {v(SB1+k)}, vcc' for k in range(3)]
        V_BIAS = SQ[1]
        def bld():
            for t in range(3): A(f'buffer_load_ushort {v(V_BIAS+t)}, {v(V_BT)}, {s(SRD_B1,4)}, {s(S_T1)} offen offset:{32*t}')
            A(f'buffer_load_ushort {v(V_BIAS+3)}, {v(V_BT)}, {s(SRD_B1,4)}, {s(S_T0)} offen offset:96')
            self.bm = A.nvm
        bias = L(f'''
        s_mul_i32 {s(S_T0)}, {s(S_Q)}, 448
        s_lshr_b32 {s(S_T1)}, {s(S_W)}, 1
        s_mul_i32 {s(S_T1)}, {s(S_T1)}, 224
        s_add_u32 {s(S_T0)}, {s(S_T0)}, {s(S_T1)}
        s_lshl_b32 {s(S_T1)}, {s(S_ODD)}, 7
        s_add_u32 {s(S_T1)}, {s(S_T1)}, {s(S_T0)}
        v_lshlrev_b32 {v(V_BT)}, 1, {v(V_L15)}
        ''') + [bld]
        csl = [lambda: A.wait(vm=self.bm)]
        for t in range(4):
            c = V_CS + 4 * t
            csl += L(f'''
            v_lshlrev_b32 {v(c+3)}, 16, {v(V_BIAS+t)}
            v_cvt_pk_bf16_f32 {v(c)}, {v(c)}, {v(c+3)}
            v_lshlrev_b32 {v(c+3)}, 16, {v(c)}
            v_sub_f32 {v(c+2)}, {v(c+2)}, {v(c+3)}
            v_mov_b32 {v(c+1)}, {v(c)}
            v_cvt_pk_bf16_f32 {v(c+2)}, {v(c+2)}, 0
            v_mov_b32 {v(c+3)}, 0
            ''')
        FK = o.get('fk', 22) / 10
        B3 = o.get('b3', 4); B4 = o.get('b4', 11)
        def mark2(): self.s2m = A.nlg
        q2 = []
        nrd = 1
        inv = {b: k for k, b in enumerate(self.w1order)}
        for b in range(12):
            self.blk = b
            if o.get('fine') == 1 and b: self.stamp(f'blk{b} t{self.tick} d{A.nvm}')
            ensure(inv[b])
            if b == B3:
                print('at B3: vq', len(vq), 'mq', len(mq), 'st', len(st), 'tick', self.tick)
                while vq or mq:
                    if mq: extra(2, [vq])
                    else: take(vq, 2)
                self.flush(st)
                A.wait(lg=self.stm)
                A('s_barrier')
                q2 = s2 + [mark2] + bias + s3
            hq = []
            while nrd < (8 if b < B3 else 16) and len(slots) - sum(callable(x) for x in hq) >= 4 and len(hq) < o.get('hmax', 8):
                hq += hrd(nrd); nrd += 1
            if b == B4:
                assert nrd == 16 and not hq, (nrd, len(hq))
                A.wait(lg=A.nlg)
                A('s_barrier')
                self.b4 = True
            for rt in range(4):
                for t in range(4 if rt < 2 else 3):
                    k = A.wait(lg=max(fl_[b, rt], self.w1l[b]))
                    mm(t, rt, b, fr[b, rt]); self.tick += 1
                    qs = ([hq, None, vq] if o.get('tprio', 1) else [hq, vq, None]) + [[] if mq else st, q2, [] if cq or b < o.get('csb', 9) else csl]
                    fill(FK, qs, k * SW)
                    extra(FK, qs)
            self.flush(hq)
            for rt in range(4): slots.append(fr[b, rt])
        self.blk = 12
        print('middle left: dq', len(dq), 'tq', len(tq), 'cq', len(cq), 'q2', len(q2), 'cs', len(csl), 'tick', self.tick)
        for b in range(12, 16): ensure(inv[b])
        while cq: self.emit(cq.pop(0)[2])
        self.flush(q2); self.flush(csl)
        self.stamp('mid done')
        slots += [SB0, SB1, SQ[1]]
        V_BIAS = V_CS
        print('free slots', len(slots))
        V_RB, V_RX, V_T2, V_T3 = 8, 10, 12, 15
        ep = L(f'''
        s_andn2_b32 {s(S_T0)}, 4, {s(S_Q)}
        s_add_u32 {s(S_T0)}, {s(S_T0)}, {s(S_ODD)}
        s_lshl_b32 {s(S_T0)}, {s(S_T0)}, 11
        v_add_u32 {v(V_RB)}, {s(S_T0)}, {v(V_L16)}
        v_xor_b32 {v(V_RB+1)}, 2048, {v(V_RB)}
        s_and_b32 {s(S_T1)}, {s(S_W)}, 2
        s_lshl1_add_u32 {s(S_T0)}, {s(S_T1)}, {s(S_ODD)}
        s_lshl_b32 {s(S_T0)}, {s(S_T0)}, 12
        v_add_u32 {v(V_RX)}, {s(S_T0)}, {v(V_RB)}
        v_add_u32 {v(V_RX+1)}, {s(S_T0)}, {v(V_RB+1)}
        s_lshl_b32 {s(S_T0)}, {s(S_T1)}, 11
        s_lshl3_add_u32 {s(S_T2)}, {s(S_ODD)}, {s(S_T0)}
        v_add_u32 {v(V_T2)}, {s(S_T2)}, {v(V_RB)}
        v_add_u32 {v(V_T2+1)}, {s(S_T2)}, {v(V_RB+1)}
        s_lshl_b32 {s(S_T1)}, {s(S_T1)}, 2
        v_add_u32 {v(V_T3)}, {s(S_T1)}, {v(V_RB)}
        ''')
        RF = {}; rl = {}
        def epi(t, nt):
            ln = []
            for rt in (2 * nt, 2 * nt + 1):
                c = acc[t, rt]; d = acc[0, rt] + 2 if t == 1 else c
                ln += [f'v_mul_f32 {v(c+i)}, {v(c+i)}, |{v(c+i)}|' for i in range(4)]
                ln += [f'v_cvt_pk_bf16_f32 {v(d+i)}, {v(c+2*i)}, {v(c+2*i+1)}' for i in range(2)]
                ln += [f'v_pk_max_i16 {v(d+i)}, {v(d+i)}, 0' for i in range(2)]
                if t == 1:
                    ln.append(f'ds_write_b128 {v(V_RX+nt)}, {v(acc[0,rt],4)} offset:{(rt&1)*1024}')
                    RF[0, rt] = acc[0, rt]; rl[0, rt] = 0
                if t == 2: ln.append(f'ds_write_b64 {v(V_T2+nt)}, {v(c,2)} offset:{32768+(rt&1)*1024}')
                if t == 3: ln.append(f'ds_write_b64 {v(V_T3)}, {v(c,2)} offset:{49152+(rt&1)*1024}')
                if t: ln.append(lambda c=c: slots.append(c))
            return ln
        def rrd(ks):
            ops = []
            if ks < 4:
                x = ks ^ (ks - 1); x = (x >> 1) * 16384 + (x & 1) * 4096
                ops += [f'v_xor_b32 {v(V_RX+k)}, {x}, {v(V_RX+k)}' for k in range(2)]
            if ks == 4: ops += [f'v_and_b32 {v(V_T2+k)}, {hex(0xfffffff0)}, {v(V_T2+k)}' for k in range(2)]
            if ks == 5: ops += [f'v_xor_b32 {v(V_T2+k)}, 4096, {v(V_T2+k)}' for k in range(2)]
            for rt in range(4):
                def f(rt=rt):
                    RF[ks, rt] = slots.pop(0)
                    va, off = (V_RX, 0) if ks < 4 else (V_T2, 32768) if ks < 6 else (V_RB, 49152)
                    A(f'ds_read_b128 {v(RF[ks,rt],4)}, {v(va+(rt>>1))} offset:{off+(rt&1)*1024}')
                    rl[ks, rt] = A.nlg
                ops.append(f)
            return ops
        A.wait(lg=max(max(fl_.values()), max(self.w1l.values())))
        EPK = o.get('epk', 22) / 10
        ml = []
        for t in range(4):
            for nt in range(2 if t < 3 else 1):
                ml += [('a', t, rt, b) for b in range(12, 17) for rt in (2 * nt, 2 * nt + 1)]
        N3 = len(ml)
        NI = o.get('ni', 2)
        for j in range(NI): ml += [('b', j, ks, rt) for ks in range(4) for rt in range(4)]
        for j in range(NI): ml += [('b', j, ks, rt) for ks in range(4, 7) for rt in range(4)]
        for j in range(NI, 8): ml += [('b', j, ks, rt) for ks in range(7) for rt in range(4)]
        X1, X2 = o.get('x1', 60), o.get('x2', N3 + 12)
        NPL = o.get('npl', 3) if o.get('pt') else 0
        pa = {}; stm = {}; rq = []; due = []
        def dual(fn, plain):
            if not plain: return fn(' sc1')
            LS = A.newlabel('slow'); LJ = A.newlabel('dj')
            A(f's_cmp_eq_u32 {s(S_FAST)}, 0\ns_cbranch_scc1 {LS}')
            A.snap(); fn(''); A(f's_branch {LJ}'); A.label(LS); A.unsnap()
            fn(' sc1'); A.label(LJ)
        def pack(j):
            return [f'v_cvt_pk_bf16_f32 {v(pa[j,rt&2]+2*(rt&1)+i)}, {v(pa[j,rt]+2*i)}, {v(pa[j,rt]+2*i+1)}' for rt in range(4) for i in range(2)]
        def send(j):
            x = 7 - j
            def st():
                if ZC and x <= 2:
                    assert (9,) in checked
                    A(f's_xor_b32 {s(S_PS)}, {s(S_ZQ)}, {x*4096+(x-1)*2048}')
                else: A(f's_xor_b32 {s(S_PS)}, {s(S_PQ)}, {x*(65536+8192)}')
                def fn(sc):
                    for k in range(2): A(f'buffer_store_dwordx4 {v(pa[j,2*k],4)}, {v(V_L16)}, {s(SRD_WS,4)}, {s(S_PS)} offen offset:{k*1024}{sc}')
                dual(fn, x <= NPL)
                stm[j] = A.nvm
                slots.extend(pa[j, rt] for rt in (1, 3, 0, 2))
            return pack(j) + [st]
        checked = set()
        def mask(js): return 0xe00 if js == (9,) else sum(1 << (7 - j) for j in js)
        def flag(js):
            while max(js) not in stm: self.emit(ep.pop(0))
            A.wait(vm=stm[max(js)])
            A(f's_mov_b64 exec, {mask(js)}')
            dual(lambda sc: A(f'buffer_store_dwordx2 {v(V_TAG,2)}, {v(V_FPD)}, {s(SRD_WS,4)}, 0 offen{sc}'), 7 - min(js) <= NPL)
            A('s_mov_b64 exec, -1')
        pm = {}; pl = {}; lm_ = {}; V_PL = V_ONES
        def pissue(js):
            A(f's_mov_b64 exec, {mask(js)}')
            A(f'buffer_load_dwordx2 {v(V_PL,2)}, {v(V_FC)}, {s(SRD_WS,4)}, 0 offen sc1')
            A('s_mov_b64 exec, -1')
            pm[js] = A.nvm
        def pcheck(js):
            if js not in pm: pissue(js)
            checked.add(js)
            if len(misc) < self.nmisc: self.flush(misc)
            Lp = A.newlabel('poll'); D = A.newlabel('polld')
            A.wait(vm=pm[js])
            A.on = False
            A(f's_mov_b64 exec, {mask(js)}\nv_cmp_ne_u64 vcc, {v(V_PL,2)}, {v(V_TAG,2)}\ns_mov_b32 {s(S_CNT)}, 0x20000\ns_cbranch_vccz {D}')
            A.snap()
            A.label(Lp)
            A(f'''
            buffer_load_dwordx2 {v(V_PL,2)}, {v(V_FC)}, {s(SRD_WS,4)}, 0 offen sc1
            s_sub_u32 {s(S_CNT)}, {s(S_CNT)}, 1
            s_cbranch_scc1 {D}
            s_waitcnt vmcnt(0)
            v_cmp_ne_u64 vcc, {v(V_PL,2)}, {v(V_TAG,2)}
            s_cbranch_vccnz {Lp}
            ''')
            A.label(D)
            A.unsnap()
            A('s_mov_b64 exec, -1')
            A.on = True
        def pload(js):
            for j in js:
                assert 3 in stm
                if ZC and j >= 5: A(f's_add_u32 {s(S_PS)}, {s(S_ZQ)}, {(6-j)*2048}')
                else: A(f's_add_u32 {s(S_PS)}, {s(S_PQ)}, {(7-j)*8192}')
                for k in range(2):
                    A(f'buffer_load_dwordx4 {a(8*j+4*k,4)}, {v(V_L16)}, {s(SRD_WS,4)}, {s(S_PS)} offen offset:{k*1024} sc1')
                lm_[j] = A.nvm
        SEL = V_SEL
        def padd(js):
            chk = any(7 - j <= NCL for j in js)
            src_ = {rt: pa[7, rt] for rt in range(4)}
            if chk:
                for rt in range(4): pa[7, rt] = slots.pop(0)
            def adds(w):
                for j in js:
                    if w: A.wait(vm=lm_[j])
                    for rt in range(4):
                        c = src_[rt] if j == js[0] else pa[7, rt]
                        A(f'v_mfma_f32_16x16x32_bf16 {v(pa[7,rt],4)}, {v(SEL+2-2*(rt&1),4)}, {a(8*j+4*(rt>>1),4)}, {v(c,4)}')
            adds(True)
            if not chk: return
            Lp = A.newlabel('again'); D = A.newlabel('got')
            A(f'v_cmp_u_f32 vcc, {v(pa[7,0])}, {v(pa[7,2])}')
            A.on = False
            A(f's_movk_i32 {s(S_CNT)}, 0x1000\ns_cbranch_vccz {D}')
            A.snap()
            A.label(Lp)
            keep = dict(lm_); pload(js); lm_.update(keep)
            A('s_waitcnt vmcnt(0)')
            adds(False)
            A(f'''
            s_nop 7
            v_cmp_u_f32 vcc, {v(pa[7,0])}, {v(pa[7,2])}
            s_sub_u32 {s(S_CNT)}, {s(S_CNT)}, 1
            s_cbranch_scc1 {D}
            s_cbranch_vccnz {Lp}
            ''')
            A.label(D)
            A.unsnap()
            A.on = True
        def pwait(js):
            while max(js) not in stm: self.emit(ep.pop(0))
            A.wait(vm=stm[max(js)])
        V_OO = V_CS + 4
        bs = {}
        def balloc():
            for rt in range(4): bs[rt] = slots.pop(0)
            q = [f'v_mov_b32 {v(bs[rt]+r)}, 0' for rt in range(4) for r in range(4)]
            q += [f'ds_read_u16_d16_hi {v(bs[rt]+r)}, {v(V_BIAS+r)} offset:{rt*1024}' for rt in range(2) for r in range(4)]
            q += [f'v_xor_b32 {v(V_BIAS+r)}, 2048, {v(V_BIAS+r)}' for r in range(4)]
            q += [f'ds_read_u16_d16_hi {v(bs[2+rt]+r)}, {v(V_BIAS+r)} offset:{rt*1024}' for rt in range(2) for r in range(4)]
            def mk(): self.bl = A.nlg
            q += [mk, lambda: A.wait(vm=self.b2m)]
            q += [f'v_lshlrev_b32 {v(V_FIX)}, 16, {v(V_BT)}', f'v_and_b32 {v(V_FIX+1)}, 0xffff0000, {v(V_BT)}',
                  f'v_lshlrev_b32 {v(V_FIX+2)}, 16, {v(V_TD)}', f'v_and_b32 {v(V_FIX+3)}, 0xffff0000, {v(V_TD)}', lambda: A.wait(lg=self.bl)]
            q += [f'v_add_f32 {v(bs[rt]+r)}, {v(bs[rt]+r)}, {v(V_FIX+r)}' for rt in range(4) for r in range(4)]
            misc.extend(q)
        def spread(d, e):
            return L(f'''
            v_and_b32 v7, 0xc0, {v(e)}
            v_lshl_add_u32 {v(d)}, v7, 8, {v(V_BIAS+3)}
            v_and_b32 v7, 0x20, {v(e)}
            v_lshl_add_u32 {v(d)}, v7, 7, {v(d)}
            v_and_b32 v7, 0x18, {v(e)}
            v_lshl_add_u32 {v(d)}, v7, 5, {v(d)}
            v_and_b32 v7, 7, {v(e)}
            v_lshl_add_u32 {v(d)}, v7, 1, {v(d)}
            ''')
        def b2ld():
            A(f'buffer_load_dwordx2 {v(V_BT,2)}, {v(V_FIX)}, {s(SRD_B2,4)}, 0 offen'); self.b2m = A.nvm
        mis0 = L(f'''
        s_and_b32 {s(S_T0)}, {s(S_Q)}, 4
        s_add_u32 {s(S_T1)}, {s(S_T0)}, {s(S_W)}
        s_and_b32 {s(S_T2)}, {s(S_Q)}, 3
        s_lshl2_add_u32 {s(S_T1)}, {s(S_T1)}, {s(S_T2)}
        s_lshl_b32 {s(S_T1)}, {s(S_T1)}, 4
        v_lshl_add_u32 v6, {v(V_G)}, 2, {s(S_T1)}
        v_lshlrev_b32 {v(V_FIX)}, 1, v6
        ''') + [b2ld]
        misc = L(f'''
        s_add_u32 {s(S_T2)}, {s(S_T0)}, {s(S_ODD)}
        s_lshl_b32 {s(S_T2)}, {s(S_T2)}, 11
        v_lshl_add_u32 {v(V_BIAS+3)}, {v(V_L15)}, 4, {s(S_T2)}
        s_cmp_ge_u32 {s(S_Q)}, 4 @@ s_cselect_b64 vcc, -1, 0
        v_sub_u32 {v(V_FIX+1)}, 512, v6
        v_cndmask_b32 {v(V_FIX+1)}, v6, {v(V_FIX+1)}, vcc
        v_subrev_u32 {v(V_FIX+2)}, {s(S_T0)}, {v(V_FIX+1)}
        ''') + spread(V_BIAS, V_FIX + 1) + spread(V_BIAS + 2, V_FIX + 2) + L(f'''
        s_add_u32 {s(S_T2)}, {s(S_T0)}, 2
        v_add_u32 {v(V_BIAS+1)}, {s(S_T2)}, {v(V_BIAS+2)}
        v_xor_b32 {v(V_BIAS+3)}, 4, {v(V_BIAS+1)}
        v_add_u32 {v(V_BIAS+2)}, 4, {v(V_BIAS+2)}
        v_lshrrev_b32 v6, 5, {v(V_LANE)}
        v_lshlrev_b32 v6, 4, v6
        s_lshl_b32 {s(S_T1)}, {s(S_T1)}, 1
        v_add_u32 v6, {s(S_T1)}, v6
        v_sub_u32 v7, 2048, {v(V_TT)}
        v_cmp_eq_u32 vcc, 0, {v(V_TT)}
        v_mov_b32 {v(V_OO)}, 1024
        v_cndmask_b32 v7, v7, {v(V_OO)}, vcc
        s_cmp_eq_u32 {s(S_ODD)}, 1 @@ s_cselect_b64 vcc, -1, 0
        v_cndmask_b32 {v(V_OO)}, {v(V_TT)}, v7, vcc
        v_cndmask_b32 {v(V_OO+1)}, v7, {v(V_TT)}, vcc
        v_lshl_add_u32 {v(V_OO)}, {v(V_OO)}, 10, v6
        v_lshl_add_u32 {v(V_OO+1)}, {v(V_OO+1)}, 10, v6
        ''') + [balloc]
        ev = {}
        tail = []
        for e in o.get('ev', 'f01@140.f2@176.f3@204.i01@200.F456.C01.C23456.A01.A23456').split('.'):
            js = tuple(int(ch) for ch in e.split('@')[0][1:])
            fn = {'f': flag, 'i': pissue, 'c': pcheck, 'a': padd, 't': self.ptouch, 'l': pload, 'w': pwait}[e[0].lower()]
            if '@' in e: ev.setdefault(N3 + int(e.split('@')[1]), []).append((fn, js))
            else: tail.append((e, fn, js))
        MB = o.get('misc0', N3 + 60); self.nmisc = len(misc)
        for n, m in enumerate(ml):
            if n == X1:
                assert n >= 42
                while any(isinstance(x, str) and x.startswith('ds_write_b128') for x in ep): self.emit(ep.pop(0))
                A.wait(lg=A.nlg); A('s_barrier')
                rq = rrd(1) + rrd(2) + rrd(3)
            if n == N3:
                self.stamp('p3 mfma done')
                print('last left: ep', len(ep), 'dq', len(dq), 'tq', len(tq), 'rq', len(rq), 'tick', self.tick)
                self.blk = 16
                slots.extend(fr[b, rt] for b in range(12, 16) for rt in range(4))
                slots.extend(BF); slots.extend([V_CS + 8, V_CS + 12])
            if n == X2:
                assert n >= N3 + 2
                print('at X2: ep', len(ep), 'rq', len(rq))
                self.flush(ep); self.flush(rq)
                A.wait(lg=A.nlg); A('s_barrier')
                self.stamp('r exchanged')
                rq = rrd(4) + rrd(5) + rrd(6); ep += mis0
            for fn, js in ev.get(n, []): fn(js)
            k = 0
            if m[0] == 'a':
                _, t, rt, b = m
                if b < 16: mm(t, rt, b, fr[b, rt])
                else: A(f'v_mfma_f32_16x16x32_bf16 {v(acc[t,rt],4)}, {v(V_CS+4*t,4)}, {v(BF[rt],4)}, {v(acc[t,rt],4)}')
                if b == 16 and rt & 1: due.append((n + 2, epi(t, rt >> 1)))
            else:
                _, j, ks, rt = m
                b = 7 * (j >> 2) + ks
                ensure(16 + b)
                while (ks, rt) not in rl: self.emit(rq.pop(0))
                k = A.wait(lg=max(rl[ks, rt], self.trl[16 + b]))
                if ks == 0: pa[j, rt] = slots.pop(0)
                c = v(pa[j, rt], 4)
                A(f'v_mfma_f32_16x16x32_bf16 {c}, {a(16*b+4*(j&3),4)}, {v(RF[ks,rt],4)}, {c if ks else "0"}')
                if (ks, rt) == (6, 3) and j < 7: due.append((n + 2, send(j)))
                if o.get('fine') == 2 and (ks, rt) == (6, 3) and j in (1, 3, 4, 5, 6): self.stamp(f'st{j} d{len(dq)}')
            self.tick += 1
            while due and due[0][0] <= n: ep += due.pop(0)[1]
            fill(EPK, [ep, rq, None, misc if n >= MB else []], k * SW)
        print('end left: ep', len(ep), 'misc', len(misc), 'dq', len(dq), 'tq', len(tq))
        self.flush(ep); self.flush(misc)
        self.stamp('p4 mfma done')
        slots.extend(RF.values())
        for e, fn, js in tail:
            fn(js)
            if e[0].isupper(): self.stamp(e)
        for rt in range(4):
            for k in range(0, 4, 2):
                A(f'v_pk_fma_f32 {v(pa[7,rt]+k,2)}, {v(pa[7,rt]+k,2)}, {v(RS+(rt&2),2)}, {v(bs[rt]+k,2)} op_sel:[0,{rt&1},0] op_sel_hi:[1,{rt&1},1]')
        self.flush(pack(7))
        for k in range(2):
            c = pa[7, 2 * k]
            A(f'v_permlane16_swap_b32 {v(c)}, {v(c+2)}\nv_permlane16_swap_b32 {v(c+1)}, {v(c+3)}')
            A(f'buffer_store_dwordx4 {v(c,4)}, {v(V_OO+k)}, {s(SRD_OUT,4)}, 0 offen{self.outf}')

    def probe_end(self):
        A = self.A
        a_, b_ = self.opt['probe'].split('-')
        if b_ == 'end':
            A('s_waitcnt vmcnt(0)'); self.stamp('end')
        A(f'''
        s_waitcnt lgkmcnt(0)
        s_sub_u32 {s(S_T0)}, {s(S_TS+4)}, {s(S_TS if a_ == 'start' else S_TS+2)}
        s_min_u32 {s(S_T0)}, {s(S_T0)}, 4000
        s_lshl_b32 {s(S_T0)}, {s(S_T0)}, 2
        s_add_u32 {s(S_T0)}, {s(S_T0)}, 4000
        s_add_u32 {s(S_T0)}, {s(S_T0)}, {s(S_TS)}
        L_pspin:
        s_memrealtime {s(S_TS+6,2)}
        s_waitcnt lgkmcnt(0)
        s_sub_u32 {s(S_T1)}, {s(S_TS+6)}, {s(S_T0)}
        s_cmp_lt_i32 {s(S_T1)}, 0
        s_cbranch_scc1 L_pspin
        ''')

    def dump_ts(self):
        if self.opt.get('probe'): return self.probe_end()
        if not self.diag: return
        A = self.A
        A('s_waitcnt vmcnt(0)')
        self.stamp('end')
        A(f'''
        s_lshl_b32 {s(S_T0)}, s2, 2
        s_add_u32 {s(S_T0)}, {s(S_T0)}, {s(S_W)}
        s_lshl_b32 {s(S_T0)}, {s(S_T0)}, 7
        s_add_u32 {s(S_T0)}, {s(S_T0)}, {WS_TS}
        s_getreg_b32 {s(S_T1)}, hwreg(HW_REG_XCC_ID)
        s_waitcnt lgkmcnt(0)
        s_mov_b64 exec, 1
        ''')
        for i in range(20): A(f'v_mov_b32 {v(16+i)}, {s(S_TS+2*i) if i < len(self.names) else 0}')
        A(f'v_mov_b32 v40, {s(S_T1)}')
        A(f'v_mov_b32 v41, {s(S_FAST)}')
        for i in range(5):
            A(f'buffer_store_dwordx4 {v(16+4*i,4)}, off, {s(SRD_WS,4)}, {s(S_T0)} offset:{16*i}')
        A(f'buffer_store_dwordx2 v[40:41], off, {s(SRD_WS,4)}, {s(S_T0)} offset:80')

    def build(self):
        A = self.A
        self.p1()
        self.window()
        self.p23()
        A.on = False
        self.dump_ts()
        if self.opt.get('sched', 1):
            import sched
            A = sched.run(A.prog, self.opt.get('win', 20))
            r = A.report
            print('model:', ' | '.join(f'{r[i][0]} {r[i][1]-r[i-1][1]}' for i in range(1, len(r))))
            self.A = A
        hdr = f'''; FNet (2D DFT, factored) + LayerNorms + squared-ReLU FFN, one persistent launch.
; @launch grid=(256,1,1) block=(256,1,1) lds=163840
''' + (f'; names: {",".join(self.names)}\n' if self.diag else '') + f'''.amdgcn_target "amdgcn-amd-amdhsa--gfx950"
.text
.globl {KNAME}
{self.align()}.p2align 8
.type {KNAME},@function
{KNAME}:
'''
        ftr = f'''L_end:
    s_endpgm
.section .rodata,"a"
.p2align 6
.amdhsa_kernel {KNAME}
  .amdhsa_next_free_vgpr 512
  .amdhsa_next_free_sgpr 102
  .amdhsa_accum_offset 256
  .amdhsa_group_segment_fixed_size 0
  .amdhsa_kernarg_size 104
  .amdhsa_user_sgpr_count 2
  .amdhsa_user_sgpr_kernarg_segment_ptr 1
  .amdhsa_system_sgpr_workgroup_id_x 1
.end_amdhsa_kernel
'''
        import pads
        return hdr + '\n'.join(pads.apply(hdr, A.text().rstrip('\n').split('\n'), ftr, self.opt, S_W)) + '\n' + ftr

if __name__ == '__main__':
    out = sys.argv[1]
    opt = {}
    for x in sys.argv[2:]:
        if '=' in x:
            k, val = x.split('='); opt[k] = int(val) if val.lstrip('-').isdigit() else val.replace('_', ' ')
    g = Gen(diag='diag' in sys.argv[2:], opt=opt)
    t = g.build()
    open(out, 'w').write(t)
    print('nops inserted', g.A.nops, 'stamps', len(g.names))
```

```python
import sys
import sched
from asmlib import *

KNAME = 'sequential_preLN__spectral_fnet__dense_activation_squared_relu__prompt_kernel'
WS_Z, WS_HN, WS_R, WS_ST, WS_FL, WS_TS = 0, 2 << 20, 4 << 20, 12 << 20, 13 << 20, 14 << 20
WS_SIZE = 32 << 20
WS_P2 = 32 << 20
S_LT, S_FLA = 100, 101
WS_P = 16 << 20
FP = WS_ST
F1 = WS_FL + 0x10000
F3 = WS_FL + 0x4000
FX = WS_FL + 0x6000
FE = WS_FL + 0x7000
HPW = 16384
L_S = 65536
SPW = 20480
L_M = L_S + 4 * SPW
L_EXC, L_XE, L_STAT = L_M, L_M + 8192, L_M + 10240
S_W = 3
S_T0, S_T1, S_T2, S_T3 = 4, 5, 6, 7
SRD_X, SRD_W1, SRD_W2, SRD_OUT, SRD_WS, SRD_B1, SRD_B2 = 8, 12, 16, 20, 24, 28, 32
S_CNT, S_FAST = 36, 37
S_F1 = S_CNT
S_C, S_N, S_U, S_Q = 38, 39, 40, 41
S_TB1, S_ODD, S_TW, S_W2S, S_BG, S_HB0 = 42, 43, 44, 45, 46, 47
S_XO = 48
S_RR = 52
S_FIX = 56
S_AM0, S_TCH = 58, 59
S_M = 60
S_TS = 62
S_HB, S_SB = 0, 1
V_LANE, V_L15, V_G, V_L16, V_TAG = 0, 1, 2, 3, 4
V_L128 = 14
ZF, TB, Y = 16, 80, 192
V_ONES = 144
V_W1U, V_W1D = 148, 152
V_W1R = 156
V_CS = 160
V_SEL = 176
AD_ = 224
V_FXV = 180
V_BT, V_TD = 182, 183
V_FIX = 184
V_ZA = 188
V_TT = 190
V_W2A = 148
V_W2R = 152


SW = 0.4
class TAsm(Asm):
    def __init__(self):
        super().__init__(); self.nvm = 0; self.nlg = 0; self.dvm = 0; self.dlg = 0
        self.prog = []; self.on = False; self.wt = 0; self.clk = None
    def label(self, name): super().label(name); self.prog.append(('label', name))
    def raw(self, t): super().raw(t); self.prog.append(('raw', t))
    def snap(self):
        self._snap = (list(self.hist), self.nvm); self.prog.append(('snap',))
    def unsnap(self):
        self.hist, self.nvm = self._snap; self.prog.append(('unsnap',))
    def i(self, text):
        if getattr(self, 'drop', None) and self.drop(text): return
        super().i(text)
        self.prog.append(('i', text, self.on))
        c = self.hist[-1]
        self.wt += 0 if c.is_mfma else 2 if c.is_vmem else 4 if c.op == 'ds_write_b128' else 2 if c.is_trans else 1 if (c.is_ds or c.is_valu) else SW
        if self.clk: self.clk.do(c, sched.klass(c))
        if c.is_vmem: self.nvm += 1
        if c.is_ds: self.nlg += 1
    def wait(self, vm=None, lg=None):
        p = []
        if vm is not None and vm > self.dvm:
            n = min(63, self.nvm - vm); p.append(f'vmcnt({n})'); self.dvm = self.nvm - n
        if lg is not None and lg > self.dlg:
            n = min(15, self.nlg - lg); p.append(f'lgkmcnt({n})'); self.dlg = self.nlg - n
        if p: self('s_waitcnt ' + ' '.join(p))
        return 1 if p else 0

def L(txt): return [x.strip().replace(' @@ ', '\n') for x in txt.strip().split('\n') if x.strip()]

class Gen:
    def __init__(self, diag=False, opt=None):
        self.A = TAsm(); self.diag = diag; self.nts = 0; self.names = []
        self.opt = opt or {}
        self.fsh = 4
        fl = lambda k, d: (' ' + self.opt[k]).rstrip() if self.opt.get(k, 'pl') != 'pl' else ('' if k in self.opt else d)
        self.ldf = fl('ldf', ' sc1'); self.outf = fl('outf', ' nt'); self.zldf = fl('zldf', ' sc1')
        self.skip = set()
        self.nofence = set(); self.skip = {'x first', 'kernarg', 'pre F1'}
        if self.opt.get('fine'): self.skip = {'kernarg', 'tables', 'x first', 'gemm1 done', 'Z stores', 'F1 set', 'p2 prepoll', 'pre F1', 'Z first', 'Z landed'}

    def stamp(self, name):
        if self.opt.get('fine') == 3 and not (name.startswith('wd') or name in ('start', 'gemm1 done', 'Z stores', 'pre F1', 'F1 set', 'p2 prepoll', 'p2 polled', 'Z first', 'end')): self.skip.add(name)
        elif self.opt.get('fine') == 3: self.skip.discard(name)
        if name not in self.nofence: self.A.prog.append(('fence', name))
        elif not self.opt.get('allst'): return
        pr = self.opt.get('probe')
        if pr:
            a_, b_ = pr.split('-')
            if name == 'start': self.A(f's_memrealtime {s(S_TS, 2)}')
            if name == a_ and name != 'start': self.A(f's_memrealtime {s(S_TS+2, 2)}')
            if name == b_: self.A(f's_memrealtime {s(S_TS+4, 2)}')
            return
        if self.diag and name not in self.skip:
            idx = len(self.names); self.names.append(name)
            assert idx < 19
            self.A(f'{"s_memtime" if self.opt.get("cyc") else "s_memrealtime"} {s(S_TS + 2*idx, 2)}')

    def emit(self, x):
        if callable(x): x()
        else: self.A(x)
    def weave(self, lines, bg, every):
        if isinstance(lines, str): lines = L(lines)
        for n, x in enumerate(lines):
            self.emit(x)
            if bg and (n + 1) % every == 0: self.emit(bg.pop(0))
    def flush(self, bg):
        while bg: self.emit(bg.pop(0))

    def srd(self, base, nbytes):
        self.A(f's_mov_b32 {s(base+2)}, {nbytes}\ns_mov_b32 {s(base+3)}, 0x20000')

    def poll(self, vaddr, nl, vtmp):
        A = self.A
        Lp = A.newlabel('poll'); D = A.newlabel('polld')
        on = A.on; A.on = False
        if nl < 64: A(f's_mov_b64 exec, {(1<<nl)-1}')
        A(f's_mov_b32 {s(S_CNT)}, 0x20000')
        A.label(Lp)
        A(f'buffer_load_dwordx2 {v(vtmp,2)}, {v(vaddr)}, {s(SRD_WS,4)}, 0 offen sc1')
        A(f's_sub_u32 {s(S_CNT)}, {s(S_CNT)}, 1')
        A(f's_cbranch_scc1 {D}')
        A('s_waitcnt vmcnt(0)')
        A(f'v_cmp_ne_u64 vcc, {v(vtmp,2)}, {v(V_TAG,2)}')
        A(f's_cbranch_vccnz {Lp}')
        A.label(D)
        A('s_waitcnt vmcnt(0)')
        A.dvm = A.nvm
        if nl < 64: A('s_mov_b64 exec, -1')
        A.on = on

    def setflag(self, soff, sc):
        A = self.A
        A('s_mov_b64 exec, 1')
        A(f'buffer_store_dwordx2 {v(V_TAG,2)}, off, {s(SRD_WS,4)}, {s(soff)}{sc}')
        A('s_mov_b64 exec, -1')

    def dualflag(self, soff):
        A = self.A
        if self.opt.get('nofast'): return self.setflag(soff, ' sc1')
        LS = A.newlabel('slow'); LJ = A.newlabel('dj')
        A(f's_cmp_eq_u32 {s(S_FAST)}, 0\ns_cbranch_scc1 {LS}')
        A.snap()
        self.setflag(soff, '')
        A(f's_branch {LJ}')
        A.label(LS)
        A.unsnap()
        self.setflag(soff, ' sc1')
        A.label(LJ)

    def touch(self, vd, srd, soff, lanes, fl='', va=V_L128):
        A = self.A
        if lanes < 64: A(f's_mov_b64 exec, {hex((1<<lanes)-1)}' if lanes <= 32 else f's_mov_b32 exec_hi, {hex((1<<(lanes-32))-1)}')
        A(f'buffer_load_dword {v(vd)}, {v(va)}, {s(srd,4)}, {s(soff)} offen{fl}')
        if lanes < 64: A('s_mov_b64 exec, -1')
    def w1touch(self, l0, l1):
        A = self.A
        m = ((1 << l1) - 1) & ~((1 << l0) - 1)
        A(f'''
        s_bfe_u32 {s(S_TCH)}, {s(S_TW)}, 0x20004
        s_lshl_b32 {s(S_TCH)}, {s(S_TCH)}, 6
        s_bitcmp1_b32 {s(S_TW)}, 6
        s_cselect_b32 {s(S_BG)}, 257, 32
        s_add_u32 {s(S_TCH)}, {s(S_TCH)}, {s(S_BG)}
        s_and_b32 {s(S_BG)}, {s(S_TW)}, 15
        s_lshl1_add_u32 {s(S_TCH)}, {s(S_BG)}, {s(S_TCH)}
        s_mul_i32 {s(S_TCH)}, {s(S_TCH)}, 3584
        s_mov_b32 exec_lo, {hex(m & 0xffffffff)}
        s_mov_b32 exec_hi, {hex(m >> 32)}
        buffer_load_dword {v(V_TD)}, {v(V_L128)}, {s(SRD_W1,4)}, {s(S_TCH)} offen
        s_mov_b64 exec, -1
        ''')
    def w2touch(self, k):
        A = self.A
        if k is not None:
            LS = A.newlabel('nt'); A(f's_cmp_lg_u32 {s(S_C)}, {k}\ns_cbranch_scc1 {LS}'); A.snap()
        A(f's_mul_i32 {s(S_TCH)}, {s(S_TW)}, {112*128}')
        self.touch(V_TD, SRD_W2, S_TCH, 64)
        A(f's_add_u32 {s(S_TCH)}, {s(S_TCH)}, 8192')
        self.touch(V_TD, SRD_W2, S_TCH, 48)
        if k is not None:
            A.label(LS); A.unsnap()
    def g2touch(self, m):
        A = self.A
        if m == 1:
            A(f'''
            v_mul_u32_u24 {v(V_BT)}, {3584-2048}, {v(V_G)}
            v_add_u32 {v(V_BT)}, {v(V_BT)}, {v(V_L128)}
            s_lshr_b32 {s(S_TCH)}, {s(S_Q)}, 2
            s_lshl3_add_u32 {s(S_TCH)}, {s(S_TW)}, {s(S_TCH)}
            s_mul_i32 {s(S_TCH)}, {s(S_TCH)}, 1792
            s_mov_b32 exec_lo, 0x3fff3fff
            s_mov_b32 exec_hi, 0x3fff3fff
            buffer_load_dword {v(V_TD)}, {v(V_BT)}, {s(SRD_W1,4)}, {s(S_TCH)} offen
            s_mov_b64 exec, -1
            ''')
        else:
            A(f"""
            s_lshr_b32 {s(S_BG)}, {s(S_Q)}, 2
            s_lshl_b32 {s(S_BG)}, {s(S_BG)}, 7
            s_add_u32 {s(S_TCH)}, {s(S_TW)}, {s(S_BG)}
            s_mul_i32 {s(S_TCH)}, {s(S_TCH)}, 7168
            """)
            self.touch(V_TD, SRD_W2, S_TCH, 56)
    def wtouch(self, vd, srd, l0, lanes):
        A = self.A
        A(f's_mul_i32 {s(S_TCH)}, {s(S_TW)}, {lanes*128}\ns_add_u32 {s(S_TCH)}, {s(S_TCH)}, {l0*128*128}')
        self.touch(vd, srd, S_TCH, lanes)

    def w1_setup(self):
        return L(f'''
        s_mul_i32 {s(S_T0)}, {s(S_Q)}, 448
        s_lshr_b32 {s(S_T1)}, {s(S_W)}, 1
        s_mul_i32 {s(S_T1)}, {s(S_T1)}, 224
        s_mul_i32 {s(S_T2)}, {s(S_ODD)}, 96
        s_add_u32 {s(S_T0)}, {s(S_T0)}, {s(S_T1)}
        s_add_u32 {s(S_T0)}, {s(S_T0)}, {s(S_T2)}
        v_lshlrev_b32 v6, 1, {v(V_G)}
        v_xor_b32 v6, v6, {v(V_LANE)}
        v_and_b32 v6, 7, v6
        v_lshl_add_u32 v6, v6, 4, {s(S_T0)}
        v_lshrrev_b32 v7, 5, {v(V_LANE)}
        v_bfe_u32 v8, {v(V_LANE)}, 3, 2
        v_lshl_add_u32 v7, v7, 3, v8
        v_sub_u32 v8, 11, v7
        s_movk_i32 {s(S_T3)}, 3584
        v_mad_u32_u24 {v(V_W1U)}, v7, {s(S_T3)}, v6
        v_mad_u32_u24 {v(V_W1D+3)}, v8, {s(S_T3)}, v6
        v_add_u32 {v(V_W1U+1)}, {16*3584-1024}, {v(V_W1U)}
        v_add_u32 {v(V_W1U+2)}, {4*3584-2048}, {v(V_W1U)}
        v_add_u32 {v(V_W1U+3)}, {20*3584-3072}, {v(V_W1U)}
        v_add_u32 {v(V_W1D)}, {20*3584+3072}, {v(V_W1D+3)}
        v_add_u32 {v(V_W1D+1)}, {4*3584+2048}, {v(V_W1D+3)}
        v_add_u32 {v(V_W1D+2)}, {16*3584+1024}, {v(V_W1D+3)}
        v_lshrrev_b32 v6, 2, {v(V_LANE)}
        v_lshlrev_b32 v6, 7, v6
        v_and_b32 v7, 3, {v(V_LANE)}
        v_lshl_add_u32 v6, v7, 3, v6
        v_add_u32 v6, {s(S_SB)}, v6
        v_bfe_u32 v7, {v(V_LANE)}, 3, 2
        ''') + sum([L(f'''
        s_add_u32 {s(S_T0)}, {s(S_ODD)}, {t}
        s_and_b32 {s(S_T0)}, {s(S_T0)}, 3
        v_xor_b32 v8, {s(S_T0)}, v7
        v_lshl_add_u32 {v(V_W1R+t)}, v8, 5, v6
        ''') for t in range(4)], [])
    def w1_dma(self, b, slot):
        A = self.A; q1, ip, var = b >> 3, (b >> 1) & 3, b & 1; n = 2 * var + q1
        ops = []
        for i in range(4):
            def f(i=i):
                if i == 0:
                    A(f's_xor_b32 {s(S_BG)}, {s(S_C)}, {ip}')
                    A(f's_mul_i32 {s(S_BG)}, {s(S_BG)}, {64*3584}')
                    if var == 0:
                        if q1: A(f's_add_u32 {s(S_BG)}, {s(S_BG)}, {32*3584}')
                    else: A(f's_sub_u32 {s(S_BG)}, {(512-31-32*q1)*3584 - 3072}, {s(S_BG)}')
                    A(f's_add_u32 m0, {s(S_SB)}, {slot*4096}')
                if n == 2 and i == 0:
                    A(f'''
                    v_add_u32 {v(V_BT)}, {s(S_BG)}, {v(V_W1D)}
                    s_cmp_eq_u32 {s(S_C)}, {ip}
                    s_cselect_b64 exec, 0xff, 0
                    v_subrev_u32 {v(V_BT)}, {256*3584}, {v(V_BT)}
                    s_mov_b64 exec, -1
                    buffer_load_dwordx4 {v(V_BT)}, {s(SRD_W1,4)}, 0 offen lds
                    ''')
                else:
                    A(f'buffer_load_dwordx4 {v((V_W1D if var else V_W1U)+i)}, {s(SRD_W1,4)}, {s(S_BG)} offen offset:{i*1024} lds')
                if i == 3: self.w1m[b] = A.nvm
            ops.append(f)
        return ops
    def w1_tr(self, b, slot):
        A = self.A; ops = []
        for t in range(4):
            for hh in range(2):
                def f(t=t, hh=hh):
                    A.wait(vm=self.w1m[b])
                    A(f'ds_read_b64_tr_b16 {a(16*b+4*t+2*hh,2)}, {v(V_W1R+t)} offset:{slot*4096+hh*2048}')
                    self.w1l[b] = A.nlg
                ops.append(f)
        return ops
    def w1_cs(self, b):
        A = self.A; ops = []
        for t in range(4):
            def f(t=t):
                A.wait(lg=self.w1l[b])
                c = v(V_CS + 4 * t, 4)
                A(f'v_mfma_f32_16x16x32_bf16 {c}, {v(V_ONES,4)}, {a(16*b+4*t,4)}, {c if self.csn[t] else "0"}')
                self.csn[t] += 1
            ops.append(f)
        return ops
    def w1_pipeline(self):
        order = self.w1order; NS = 5
        seq = []
        for k in range(NS): seq.append(('dma', k))
        for k in range(16):
            seq.append(('tr', k))
            if k >= 1:
                seq.append(('cs', k - 1))
                if k - 1 + NS < 16: seq.append(('dma', k - 1 + NS))
        seq.append(('cs', 15))
        out = []
        for kind, k in seq:
            b = order[k]
            if kind == 'dma': ops = self.w1_dma(b, k % NS)
            elif kind == 'tr': ops = self.w1_tr(b, k % NS)
            else: ops = self.w1_cs(b)
            out.append((kind, k, ops))
        return out

    def w2_setup(self):
        return L(f"""
        v_lshlrev_b32 {v(V_W2A)}, 1, {v(V_G)}
        v_xor_b32 {v(V_W2A)}, {v(V_W2A)}, {v(V_LANE)}
        v_and_b32 {v(V_W2A)}, 7, {v(V_W2A)}
        v_lshrrev_b32 {v(V_W2A+1)}, 3, {v(V_LANE)}
        v_lshlrev_b32 {v(V_W2A+1)}, 10, {v(V_W2A+1)}
        v_lshl_add_u32 {v(V_W2A)}, {v(V_W2A)}, 4, {v(V_W2A+1)}
        s_mul_i32 {s(S_W2S)}, {s(S_W)}, {7*8192} @@ s_add_u32 {s(S_W2S)}, {s(S_W2S)}, 8192 @@ s_and_b32 {s(S_W2S)}, {s(S_W2S)}, {hex(0xffffc000)}
        s_lshl_b32 {s(S_BG)}, {s(S_Q)}, 7 @@ s_add_u32 {s(S_W2S)}, {s(S_W2S)}, {s(S_BG)}
        v_add_u32 {v(V_W2A+1)}, {8192-1024}, {v(V_W2A)}
        """)
    def w2_setup_r(self):
        return L(f"""
        s_and_b32 {s(S_TCH)}, {s(S_W)}, 2 @@ s_lshl_b32 {s(S_TCH)}, {s(S_TCH)}, 5 @@ v_xor_b32 {v(V_W2R+3)}, {s(S_TCH)}, {v(V_W1R)}
        v_xor_b32 {v(V_W2R)}, 96, {v(V_W2R+3)}
        v_xor_b32 {v(V_W2R+1)}, 64, {v(V_W2R+3)}
        v_xor_b32 {v(V_W2R+2)}, 32, {v(V_W2R+3)}
        """)
    def w2_dma(self, b, slot):
        A = self.A; h, ks = self.items[b]; ops = []
        def base(x, c):
            if ks == 6:
                A(f's_lshl1_add_u32 {s(S_BG)}, {s(S_ODD)}, {x}')
                A(f's_xor_b32 {s(S_BG)}, {s(S_BG)}, {s(S_Q)}')
            elif x: A(f's_xor_b32 {s(S_BG)}, {s(S_Q)}, {x}')
            A(f's_mul_i32 {s(S_BG)}, {s(S_BG if x or ks == 6 else S_Q)}, {224*1024}')
            A(f's_add_u32 {s(S_BG)}, {s(S_BG)}, {s(S_W2S)}')
            if ks == 6:
                A(f's_lshl_b32 {s(S_RR+3)}, {s(S_ODD)}, 16')
                A(f's_sub_u32 {s(S_BG)}, {s(S_BG)}, {s(S_RR+3)}')
            if c: A(f's_add_u32 {s(S_BG)}, {s(S_BG)}, {c}')
            if h == 0: A(f's_xor_b32 {s(S_BG)}, {s(S_BG)}, 512')
        for i in range(4):
            def f(i=i):
                if i == 0:
                    base(*((ks, 0) if ks < 4 else (2 * (ks - 4), 32768) if ks < 6 else (0, 49152)))
                    A(f's_add_u32 m0, {s(S_SB)}, {slot*4096}')
                if i == 2:
                    if ks < 4: A(f's_add_u32 {s(S_BG)}, {s(S_BG)}, {16384 - 2048}')
                    else: base(*((2 * (ks - 4) + 1, 32768 - 2048) if ks < 6 else (1, 49152 - 2048)))
                A(f'buffer_load_dwordx4 {v(V_W2A+(i&1))}, {s(SRD_W2,4)}, {s(S_BG)} offen offset:{i*1024} lds')
                if i == 3: self.w2m[b] = A.nvm
            ops.append(f)
        return ops
    def w2_tr(self, b, slot):
        A = self.A; ops = []
        for t in range(4):
            for hh in range(2):
                def f(t=t, hh=hh):
                    assert self.blk > b, 'w2 fragment would overwrite live w1'
                    A.wait(vm=self.w2m[b])
                    A(f'ds_read_b64_tr_b16 {a(16*b+4*t+2*hh,2)}, {v(V_W2R+t)} offset:{slot*4096+hh*2048}')
                    self.trl[16 + b] = A.nlg
                ops.append(f)
        return ops
    def smalltouch(self, T):
        self.A(f's_mul_i32 {s(T)}, {s(S_Q)}, 448\ns_lshl_b32 {s(T+1)}, {s(S_W)}, 8')
        self.touch(V_TD, SRD_B1, T, 5); self.touch(V_TD, SRD_B2, T + 1, 2)
        self.touch(191, SRD_WS, S_FLA, 1, ' sc1')
        if self.opt.get('tll'):
            self.A(f's_add_u32 {s(T)}, {s(S_RR)}, 8192')
            self.touch(191, SRD_WS, T, 24, ' sc1')
    def ptouch(self, js=(0, 1, 2), T=S_RR + 2):
        A = self.A
        n = self.opt.get('npl', 3); tf = ' ' + self.opt.get('tf', 'sc1')
        A(f's_lshl3_add_u32 {s(T)}, {s(S_U)}, {s(S_Q)}')
        A(f"""
        s_lshl_b32 {s(T)}, {s(T)}, 5
        s_add_u32 {s(T)}, {s(T)}, {s(S_W)}
        s_lshl2_add_u32 {s(T)}, {s(S_Q) if self.opt.get('lay') else 0}, {s(T)}
        s_lshl_b32 {s(T)}, {s(T)}, 11
        s_add_u32 {s(T)}, {s(T)}, {WS_P + 8192}
        """)
        if 0 in js:
            A(f's_sub_u32 {s(T+1)}, {s(T)}, {8192 - 128}')
            self.touch(191, SRD_WS, T + 1, 11 if self.opt.get('zc') else 7, ' sc1')
        if 3 in js:
            A(f"""
            s_sub_u32 {s(T+1)}, {s(T)}, 8192
            v_mul_u32_u24 v191, {65536+128}, {v(V_LANE)}
            v_xor_b32 v191, {s(T+1)}, v191
            s_mov_b64 exec, 0xfe
            buffer_load_dword v191, v191, {s(SRD_WS,4)}, 0 offen sc1
            s_mov_b64 exec, -1
            """)
        if 4 in js:
            A(f's_add_u32 {s(T+1)}, {s(T)}, 16384')
            self.touch(191, SRD_WS, T + 1, 16, tf)
        if 1 not in js and 2 not in js: return
        A(f"""
        v_mul_u32_u24 {v(V_W2A+2)}, {8192-2048}, {v(V_G)}
        v_add_u32 {v(V_W2A+2)}, {v(V_W2A+2)}, {v(V_L128)}
        """)
        if 1 in js: self.touch(191, SRD_WS, T, min(64, 16 * n), tf, va=V_W2A + 2)
        if n > 4 and 2 in js:
            A(f's_add_u32 {s(T)}, {s(T)}, 32768')
            self.touch(191, SRD_WS, T, 16 * (n - 4), tf, va=V_W2A + 2)

    def align(self):
        if 'pg' not in self.opt: return ''
        return '.p2align 12\n' + (f".fill {self.opt['pg']//4}, 4, 0xbf810000\n" if self.opt['pg'] else '')
    def site(self, X):
        if 'pad' + X in self.opt: self.A.raw(f';SITE {X}')
    def cpf(self):
        self.A(f'''
        s_getpc_b64 {s(S_M,2)}
        L_pc0:
        s_lshr_b32 {s(S_FAST)}, s2, 3
        s_lshl2_add_u32 {s(S_FAST)}, {s(S_FAST)}, {s(S_W)}
        s_lshl_b32 {s(S_FAST)}, {s(S_FAST)}, 8
        s_min_u32 {s(S_FAST)}, {s(S_FAST)}, L_end-L_pc0-192
        ''')
        for k in range(4): self.A(f's_load_dword {s(S_CNT)}, {s(S_M,2)}, {s(S_FAST)} offset:{64*k}')

    def p1(self):
        A = self.A; o = self.opt
        X, R1, SUM, SQ, FS, ACC = 16, 160, 168, 172, 192, 224
        V_SGN, V_FAC, V_ZO, V_EW, V_XD, V_XR, V_ER = 176, 177, 178, 179, 184, 186, 191
        A(f'''
        s_cmp_ge_u32 s2, 256
        s_cbranch_scc1 L_end
        s_load_dwordx2 {s(SRD_X,2)}, s[0:1], 0
        s_load_dwordx2 {s(SRD_WS,2)}, s[0:1], 96
        s_load_dwordx2 {s(SRD_W1,2)}, s[0:1], 48
        s_load_dwordx2 {s(SRD_W2,2)}, s[0:1], 64
        s_load_dwordx2 {s(SRD_B1,2)}, s[0:1], 56
        s_load_dwordx2 {s(SRD_B2,2)}, s[0:1], 72
        s_load_dwordx2 {s(SRD_OUT,2)}, s[0:1], 80
        ''')
        self.stamp('start')
        if self.opt.get('cpf', 0) == 3:
            A(f'''
            s_getpc_b64 {s(S_M,2)}
            L_pc0:
            s_lshr_b32 {s(S_T0)}, s2, 3
            s_lshl_b32 {s(S_T0)}, {s(S_T0)}, 10
            v_lshl_add_u32 v7, v0, 2, {s(S_T0)}
            v_min_u32 v7, L_end-L_pc0, v7
            global_load_dword {v(V_TD)}, v7, {s(S_M,2)}
            ''')
        A(f'''
        v_lshrrev_b32 v6, 6, v0
        v_and_b32 {v(V_LANE)}, 63, v0
        v_readfirstlane_b32 {s(S_W)}, v6
        ''')
        if self.opt.get('cpf', 0) == 1: self.cpf()
        A(f'''
        v_and_b32 {v(V_L15)}, 15, {v(V_LANE)}
        v_lshrrev_b32 {v(V_G)}, 4, {v(V_LANE)}
        v_lshlrev_b32 {v(V_L16)}, 4, {v(V_LANE)}
        v_lshlrev_b32 {v(V_L128)}, 7, {v(V_LANE)}
        s_lshr_b32 {s(S_N)}, s2, 3
        ''')
        if o.get('g2') == 2: A(f'''
        s_and_b32 {s(S_T1)}, s2, 1
        s_and_b32 {s(S_Q)}, {s(S_N)}, 3
        s_lshl2_add_u32 {s(S_Q)}, {s(S_T1)}, {s(S_Q)}
        s_and_b32 {s(S_T1)}, s2, 6
        s_lshr_b32 {s(S_C)}, {s(S_N)}, 3
        s_lshl1_add_u32 {s(S_U)}, {s(S_T1)}, {s(S_C)}
        s_sub_u32 {s(S_T1)}, 32, {s(S_U)}
        s_cmp_eq_u32 {s(S_U)}, 0
        s_cselect_b32 {s(S_T1)}, 16, {s(S_T1)}
        s_bitcmp1_b32 {s(S_N)}, 2
        s_cselect_b32 {s(S_U)}, {s(S_T1)}, {s(S_U)}
        ''')
        elif o.get('g2'): A(f'''
        s_and_b32 {s(S_T1)}, s2, 1
        s_and_b32 {s(S_Q)}, {s(S_N)}, 3
        s_lshl2_add_u32 {s(S_Q)}, {s(S_T1)}, {s(S_Q)}
        s_and_b32 {s(S_T1)}, s2, 6
        s_lshr_b32 {s(S_U)}, {s(S_N)}, 2
        s_and_b32 {s(S_C)}, {s(S_U)}, 3
        s_lshl2_add_u32 {s(S_U)}, {s(S_T1)}, {s(S_U)}
        ''')
        else: A(f'''
        s_and_b32 {s(S_T1)}, s2, 7
        s_and_b32 {s(S_Q)}, {s(S_N)}, 7
        s_lshr_b32 {s(S_C)}, {s(S_N)}, 3
        s_lshl2_add_u32 {s(S_U)}, {s(S_T1)}, {s(S_C)}
        ''')
        A(f'''
        s_lshl_b32 {s(S_HB0)}, {s(S_W)}, 14
        s_and_b32 {s(S_ODD)}, {s(S_W)}, 1
        s_lshl2_add_u32 {s(S_TW)}, {s(S_N)}, {s(S_W)}
        s_lshl_b32 {s(S_T0)}, {s(S_Q)}, 7
        s_and_b32 {s(S_T1)}, {s(S_T0)}, 0x200
        ''')
        for i in range(4):
            A(f's_add_u32 {s(S_T2)}, {s(S_T0)}, {128*i}\ns_and_b32 {s(S_T2)}, {s(S_T2)}, 0x180\ns_or_b32 {s(S_XO+i)}, {s(S_T2)}, {s(S_T1)}')
        self.srd(SRD_X, 2097152); self.srd(SRD_WS, WS_SIZE); self.srd(SRD_W2, 1835008); self.srd(SRD_W1, 1835008)
        self.srd(SRD_B1, 3584); self.srd(SRD_B2, 1024); self.srd(SRD_OUT, 2097152)
        A(f'''
        s_and_b32 {s(S_T0)}, {s(S_W)}, 2
        s_lshl4_add_u32 {s(S_T0)}, {s(S_T0)}, {s(S_ODD)}
        s_lshl_b32 {s(S_T0)}, {s(S_T0)}, 5
        s_add_u32 {s(S_T0)}, {s(S_T0)}, {s(S_U)}
        s_lshl_b32 {s(S_T0)}, {s(S_T0)}, 10
        v_lshrrev_b32 v12, 3, {v(V_LANE)}
        v_and_b32 v13, 7, {v(V_LANE)}
        v_xor_b32 v13, v13, {v(V_G)}
        v_lshlrev_b32 v13, 4, v13
        v_lshl_add_u32 v6, v12, 16, v13
        v_add_u32 {v(V_XD)}, {s(S_T0)}, v6
        v_xor_b32 v6, 64, {v(V_XD)}
        v_add_u32 {v(V_XD+1)}, {8*65536 - 1024}, v6
        ''')
        A(f'''
        s_lshl_b32 {s(S_T0)}, {s(S_Q)}, 5
        v_lshrrev_b32 v6, 2, {v(V_L15)}
        v_and_b32 v7, 3, {v(V_L15)}
        v_lshl_add_u32 v6, v6, 3, v7
        v_add_u32 v6, {s(S_T0)}, v6
        v_add_u32 v7, 4, v6
        v_cmp_eq_u32 vcc, 0, v6
        v_mov_b32 v8, 0x100
        v_cndmask_b32 v6, v6, v8, vcc
        v_cvt_f32_u32 v6, v6
        v_cvt_f32_u32 v7, v7
        v_mul_f32 v6, {f2u(1/512)}, v6
        v_mul_f32 v7, {f2u(1/512)}, v7
        s_add_u32 {s(S_T0)}, {s(S_W)}, {s(S_Q)}
        s_and_b32 {s(S_T0)}, {s(S_T0)}, 3
        s_lshl_b32 {s(S_T0)}, {s(S_T0)}, 6
        v_lshl_add_u32 v8, {v(V_G)}, 3, {s(S_T0)}
        v_cvt_f32_u32 v8, v8
        v_add_f32 v9, {f2u(32.0)}, v8
        s_mul_i32 {s(S_T0)}, {s(S_W)}, {SPW}
        s_add_u32 {s(S_T0)}, {s(S_T0)}, {L_S}
        v_add_u32 v10, {s(S_T0)}, {v(V_L16)}
        ''')
        def tab(kk, et):
            b = X + 32 * et
            A(f'v_mul_f32 {v(b)}, {v(6+et)}, {v(8+kk)}')
            A(f'v_add_f32 {v(b+1)}, {v(b)}, {v(6+et)}')
            if kk == 0: A(f'v_cos_f32 {v(b+2)}, {v(6+et)}')
            for j in range(2):
                A(f'v_cos_f32 {v(b+8+j)}, {v(b+j)}')
                A(f'v_sin_f32 {v(b+16+j)}, {v(b+j)}')
            if kk == 0: A(f'v_add_f32 {v(b+2)}, {v(b+2)}, {v(b+2)}')
            for j in range(2, 8):
                A(f'v_fma_f32 {v(b+8+j)}, {v(b+2)}, {v(b+7+j)}, -{v(b+6+j)}')
                A(f'v_fma_f32 {v(b+16+j)}, {v(b+2)}, {v(b+15+j)}, -{v(b+14+j)}')
            for j in range(4):
                A(f'v_cvt_pk_bf16_f32 {v(b+24+j)}, {v(b+8+2*j)}, {v(b+9+2*j)}')
            for j in range(4):
                A(f'v_cvt_pk_bf16_f32 {v(b+28+j)}, {v(b+16+2*j)}, {v(b+17+2*j)}')
            A(f'ds_write_b128 v10, {v(b+24,4)} offset:{(kk*4+et*2)*1024}')
            A(f'ds_write_b128 v10, {v(b+28,4)} offset:{(kk*4+et*2+1)*1024}')
        npre = o.get('tabpre', 1)
        tabs = [(0, 0), (0, 1), (1, 0), (1, 1)]
        for t in tabs[:npre]: tab(*t)
        A(f's_mov_b32 {s(S_T2)}, {FE}')
        self.site('K')
        A('s_waitcnt lgkmcnt(0)')
        self.stamp('kernarg')
        A.on = bool(o.get('s1', 1))
        xm = []
        def xdma(i):
            A(f's_add_u32 m0, {s(S_HB0)}, {i*2048}')
            so = S_XO + (i >> 1)
            if i & 1:
                A(f's_xor_b32 {s(S_BG)}, {s(so)}, 0x200'); so = S_BG
            A(f'buffer_load_dwordx4 {v(V_XD)}, {s(SRD_X,4)}, {s(so)} offen lds')
            A(f'buffer_load_dwordx4 {v(V_XD+1)}, {s(SRD_X,4)}, {s(so)} offen offset:1024 lds')
            xm.append(A.nvm)
        NX0 = o.get('nx0', 5)
        xdma(0)
        A(f'buffer_load_dwordx2 {v(V_TAG,2)}, off, {s(SRD_WS,4)}, {s(S_T2)} sc1')
        for i in range(1, NX0):
            if o.get('t1e') == i: self.g2touch(1)
            xdma(i)
        if o.get('t1e') == NX0: self.g2touch(1)
        T0 = o.get('t0', 0)
        if T0: self.wtouch(V_TD, SRD_W1, 0, T0)
        A.on = False
        if o.get('cpf') == 2: self.cpf()
        if o.get('txr', 0) or o.get('tsc', 0): A(f'''
        s_and_b32 {s(S_T0)}, {s(S_TW)}, 31
        s_lshl_b32 {s(S_T1)}, {s(S_T0)}, 6
        s_sub_u32 {s(S_T1)}, {s(S_T1)}, {s(S_U)}
        s_add_u32 {s(S_T1)}, {s(S_T1)}, 64
        s_and_b32 {s(S_T1)}, {s(S_T1)}, 2047
        s_lshl_b32 {s(S_T1)}, {s(S_T1)}, 10
        ''')
        if o.get('txr', 0):
            for k in range(8): A(f's_buffer_load_dword {s(S_AM0)}, {s(SRD_X,4)}, {s(S_T1)} offset:{128*k}')
        if o.get('tsc', 0): A(f'''
        s_min_u32 {s(S_T1)}, {s(S_T0)}, 27
        s_lshl_b32 {s(S_T1)}, {s(S_T1)}, 7
        s_buffer_load_dword {s(S_AM0)}, {s(SRD_B1,4)}, {s(S_T1)}
        s_and_b32 {s(S_T1)}, {s(S_T0)}, 7
        s_lshl_b32 {s(S_T1)}, {s(S_T1)}, 7
        s_buffer_load_dword {s(S_AM0)}, {s(SRD_B2,4)}, {s(S_T1)}
        ''')
        A.on = bool(o.get('s1', 1))
        if o.get('tlb'):
            LT = [A.newlabel('tl') for _ in range(4)]
            sh = o.get('tlb')
            A(f's_lshl_b32 {s(S_T0)}, {s(S_N)}, 10')
            for k, (srd, st_, base) in enumerate(((SRD_W1, 28672, 0), (SRD_W2, 28672, 0), (SRD_WS, 32768, WS_Z), (SRD_WS, 114688, WS_R))):
                A(f's_cmp_lg_u32 {s(S_W)}, {k}\ns_cbranch_scc1 {LT[k]}')
                A.snap()
                A(f'v_mul_u32_u24 {v(V_BT)}, {st_}, {v(V_LANE)}')
                if base: A(f's_add_u32 {s(S_T0)}, {s(S_T0)}, {base}')
                A(f'buffer_load_dword {v(V_TD)}, {v(V_BT)}, {s(srd,4)}, {s(S_T0)} offen')
                A.label(LT[k]); A.unsnap()
        A(f'''
        s_mov_b32 {s(S_HB)}, {s(S_HB0)}
        s_mul_i32 {s(S_SB)}, {s(S_W)}, {SPW}
        s_add_u32 {s(S_SB)}, {s(S_SB)}, {L_S}
        s_add_u32 {s(S_TB1)}, {s(S_U)}, 1024
        s_cmp_eq_u32 {s(S_U)}, 0
        s_cselect_b32 {s(S_TB1)}, 32, {s(S_TB1)}
        ''')
        self.w1m = {}; self.w1l = {}; self.csn = [0] * 4; self.w2m = {}
        self.w1order = list(range(16))
        if o.get('ord'): self.w1order = [0, 1, 8, 9] + list(range(2, 8)) + list(range(10, 16))
        self.pipe = self.w1_pipeline()
        for k, t in enumerate(tabs[npre:]):
            tab(*t)
            if o.get('t1e') == 10 + k: self.g2touch(1)
        b = TB
        t2 = L(f'''
        s_mov_b32 {s(S_T2)}, 0xffff
        s_cmp_ge_u32 {s(S_W)}, 2 @@ s_cselect_b32 {s(S_T0)}, {s(S_TB1)}, {s(S_U)} @@ s_cselect_b32 {s(S_T1)}, 0, {f2u(0.25)} @@ s_cselect_b32 {s(S_T2)}, 0xffff0000, {s(S_T2)}
        s_cmp_eq_u32 {s(S_U)}, 0 @@ s_cselect_b32 {s(S_T1)}, {s(S_T1)}, {f2u(0.25)} @@ s_cselect_b32 {s(S_T2)}, {s(S_T2)}, -1
        v_lshl_add_u32 v11, {v(V_L15)}, 6, {s(S_T0)}
        v_cmp_eq_u32 vcc, 0, v11
        v_cvt_f32_u32 v11, v11
        v_mul_f32 v11, {f2u(1/2048)}, v11
        v_lshlrev_b32 v6, 15, {v(V_G)}
        v_and_b32 v6, 0x8000, v6
        v_cndmask_b32 v7, 0, v6, vcc
        s_lshl1_add_u32 {s(S_T0)}, {s(S_ODD)}, {s(S_Q)}
        s_lshl_b32 {s(S_T0)}, {s(S_T0)}, 3
        v_add_u32 v8, {s(S_T0)}, {v(V_G)}
        ''')
        for j in range(4):
            t2 += [f'v_add_u32 v6, {4*j}, v8', 'v_and_b32 v6, 31, v6', 'v_cvt_f32_u32 v6, v6',
                   f'v_mul_f32 {v(b+2*j)}, v6, v11', f'v_add_f32 {v(b+2*j+1)}, {s(S_T1)}, {v(b+2*j)}']
        for j in range(8):
            t2 += [f'v_cos_f32 {v(b+8+j)}, {v(b+j)}', f'v_sin_f32 {v(b+16+j)}, {v(b+j)}']
        for j in range(4):
            d = b + 24 + 8 * (j >> 1) + 2 * (j & 1)
            t2 += [f'v_cvt_pk_bf16_f32 {v(d)}, {v(b+8+2*j)}, {v(b+9+2*j)}',
                   f'v_cvt_pk_bf16_f32 {v(d+5)}, {v(b+16+2*j)}, {v(b+17+2*j)}',
                   f'v_and_b32 {v(d)}, {s(S_T2)}, {v(d)}', f'v_and_b32 {v(d+5)}, {s(S_T2)}, {v(d+5)}',
                   f'v_xor_b32 {v(d+4)}, v7, {v(d)}', f'v_xor_b32 {v(d+1)}, 0x80008000, {v(d+5)}']
        for k in range(2):
            for var in range(2):
                t2.append(f'ds_write_b128 v10, {v(b+24+8*k+4*var,4)} offset:{8192+k*2048+var*1024}')
        self.flush(t2)
        XRP = o.get('xrp', 0)
        VM = 16 if XRP == 2 else 148
        vmset = (f'''
        v_sub_u32 v7, 15, v12
        v_lshl_add_u32 {v(VM)}, v7, 16, v13
        v_xor_b32 {v(VM+1)}, {8*65536+64}, {v(VM)}
        s_sub_u32 {s(S_RR)}, 1088, {s(S_U)}
        s_lshl_b32 {s(S_RR)}, {s(S_RR)}, 10
        s_sub_u32 {s(S_RR+1)}, 1088, {s(S_TB1)}
        s_lshl_b32 {s(S_RR+1)}, {s(S_RR+1)}, 10
        s_lshl_b32 {s(S_RR+2)}, {s(S_W)}, 7
        s_sub_u32 {s(S_RR+3)}, 896, {s(S_RR+2)}
        v_add_u32 v6, {s(S_RR)}, {v(VM)}
        v_lshrrev_b32 v7, 1, v6
        v_and_b32 v7, {1<<20}, v7
        v_sub_u32 {v(VM+2)}, v6, v7
        v_and_b32 {v(VM+3)}, {(1<<21)-1}, v6
        ''')
        if XRP != 2: A(vmset)
        A(f'''
        v_mov_b32 v6, {s(S_U)}
        v_mov_b32 v7, {s(S_TB1)}
        v_and_b32 v8, 1, {v(V_G)}
        v_cmp_eq_u32 vcc, 1, v8
        v_add_u32 v10, {L_S}, {v(V_L16)}
        v_add_u32 v11, {L_S+2*SPW}, {v(V_L16)}
        v_cndmask_b32 v6, v6, v7, vcc
        v_lshl_add_u32 {v(V_TT)}, {v(V_L15)}, 6, v6
        v_lshrrev_b32 v6, 1, {v(V_L15)}
        v_xor_b32 v6, v6, {v(V_G)}
        v_lshlrev_b32 v6, 4, v6
        v_lshl_add_u32 v15, {v(V_L15)}, 7, v6
        v_add_u32 {v(V_XR)}, {s(S_HB)}, v15
        v_xor_b32 {v(V_XR+1)}, 64, {v(V_XR)}
        ''')
        for i in range(4): A(f'v_mov_b32 {v(V_ONES+i)}, 0x3f803f80')
        xr = []
        for m in (1, 0):
            for side in range(2):
                for hh in (1, 0):
                    def f(m=m, side=side, hh=hh):
                        A(f's_add_u32 m0, {s(S_SB)}, {12288+m*4096+side*2048+hh*1024}')
                        if hh == 0 and m == 0: A(f'buffer_load_dwordx4 {v(VM+2+side)}, {s(SRD_X,4)}, {s(S_RR+2+side)} offen lds')
                        else:
                            if hh == 1: A(f's_add_u32 {s(S_BG)}, {s(S_RR+m)}, {s(S_RR+2+side)}')
                            A(f'buffer_load_dwordx4 {v(VM+hh)}, {s(SRD_X,4)}, {s(S_BG)} offen lds')
                        self.xrm = A.nvm
                    xr.append(f)
        A.wait(lg=A.nlg)
        A('s_barrier')
        tl = {}
        def tabrd(f):
            A(f'ds_read_b128 {a(4*f,4)}, {v(10+(f>>4))} offset:{((f>>3)&1)*SPW+(f&7)*1024}')
            tl[f] = A.nlg
        for f in range(8): tabrd(f)
        self.stamp('tables')
        NX1 = min(8, NX0 + o.get('nx1', 3))
        for i in range(NX0, NX1): xdma(i)
        b = FS
        fild = [(lambda f=f: tabrd(f)) for f in range(8, 32)]
        fild += L(f'''
        s_lshl_b32 {s(S_W2S)}, {s(S_ODD)}, 10 @@ s_add_u32 {s(S_W2S)}, {s(S_W2S)}, {L_S+8192} @@ v_add_u32 v10, {s(S_W2S)}, {v(V_L16)}
        v_xor_b32 v11, 1024, v10
        ''')
        fill = []
        for f in range(16): fild.append(f'ds_read_b128 {v(TB+4*f,4)}, {v(10+(f&1))} offset:{(2*((f>>1)&1)+(f>>3))*SPW+((f>>2)&1)*2048}')
        fill += L(f'''
        s_lshl_b32 {s(S_T0)}, {s(S_W)}, 3
        v_lshrrev_b32 v6, 1, {v(V_L15)}
        v_add_u32 v6, {s(S_T0)}, v6
        v_and_b32 v7, 1, {v(V_L15)}
        v_cvt_f32_u32 v9, v7
        v_mul_f32 v9, {f2u(-0.25)}, v9
        v_lshl_add_u32 v8, v6, 1, v7
        v_cmp_eq_u32 vcc, 1, v8
        v_lshlrev_b32 v8, 3, {v(V_G)}
        v_cndmask_b32 v6, v6, 32, vcc
        v_cndmask_b32 v9, v9, 0, vcc
        v_cvt_f32_u32 v6, v6
        v_mul_f32 v6, {f2u(1/64)}, v6
        v_cvt_f32_u32 v8, v8
        v_fma_f32 {v(b)}, v6, v8, v9
        ''')
        for blk in range(4):
            for j in range(4):
                c = 2 * j + (blk & 1) + 32 * (blk >> 1)
                if c: fill.append(f'v_fmamk_f32 {v(b+4*blk+j)}, v6, {f2u(float(c))}, {v(b)}')
        for j in range(16): fill.append(f'v_cos_f32 {v(b+16+j)}, {v(b+j)}')
        for j in range(8): fill.append(f'v_cvt_pk_bf16_f32 {v(R1+j)}, {v(b+16+2*j)}, {v(b+17+2*j)}')
        fill += L(f'''
        v_and_b32 v6, 1, {v(V_LANE)}
        v_lshlrev_b32 v6, 31, v6
        v_or_b32 {v(V_SGN)}, 1.0, v6
        s_cmp_ge_u32 {s(S_Q)}, 4 @@ s_cselect_b64 vcc, -1, 0
        v_mov_b32 {v(V_FAC)}, 1.0
        v_cndmask_b32 {v(V_FAC)}, {v(V_FAC)}, {v(V_SGN)}, vcc
        s_lshl_b32 {s(S_T0)}, {s(S_W)}, 19
        s_lshl_b32 {s(S_T1)}, {s(S_Q)}, 13
        s_add_u32 {s(S_T0)}, {s(S_T0)}, {s(S_T1)}
        s_lshl_b32 {s(S_T1)}, {s(S_U)}, 8
        s_add_u32 {s(S_T0)}, {s(S_T0)}, {s(S_T1)}
        v_lshlrev_b32 v6, 17, {v(V_G)}
        v_lshl_add_u32 v6, {v(V_L15)}, 4, v6
        v_add_u32 {v(V_ZO)}, {s(S_T0)}, v6
        s_lshr_b32 {s(S_T0)}, {s(S_W)}, 1
        s_lshl_b32 {s(S_T0)}, {s(S_T0)}, 10
        s_lshl3_add_u32 {s(S_T0)}, {s(S_ODD)}, {s(S_T0)}
        s_add_u32 {s(S_T0)}, {s(S_T0)}, {L_EXC}
        v_add_u32 {v(V_EW)}, {s(S_T0)}, {v(V_L16)}
        v_add_u32 {v(V_ER)}, {L_EXC}, {v(V_L16)}
        s_lshr_b32 {s(S_T1)}, {s(S_Q)}, 1
        s_lshl2_add_u32 {s(S_T0)}, {s(S_W)}, {s(S_T1)}
        s_lshl_b32 {s(S_T0)}, {s(S_T0)}, 5
        s_add_u32 {s(S_T0)}, {s(S_T0)}, {s(S_U)}
        s_and_b32 {s(S_T1)}, {s(S_Q)}, 1
        s_lshl1_add_u32 {s(S_T0)}, {s(S_T0)}, {s(S_T1)}
        s_lshl_b32 {s(S_T0)}, {s(S_T0)}, 7
        s_add_u32 {s(S_F1)}, {s(S_T0)}, {F1}
        v_and_b32 v6, 1, {v(V_L15)}
        v_cmp_eq_u32 {s(S_XO,2)}, 1, v6
        v_and_b32 v6, 2, {v(V_L15)}
        v_cmp_eq_u32 {s(S_XO+2,2)}, 2, v6
        v_lshrrev_b32 v6, 2, {v(V_L15)}
        v_cmp_eq_u32 {s(S_M,2)}, v6, {v(V_G)}
        ''')
        fill += self.w1_setup()
        fill += L(f's_mov_b32 {s(S_T1)}, 65536\ns_mov_b32 {s(S_T0)}, {f2u(1/512)}\ns_mov_b32 {s(S_T2)}, {WS_HN}\ns_mov_b32 {s(S_T3)}, {WS_HN+65536}')
        xl = []
        def xrd(i):
            while len(xm) <= i: g1.pop(0)()
            A.wait(vm=xm[i])
            for kk in range(2):
                A(f'ds_read_b128 {v(X+8*i+4*kk,4)}, {v(V_XR+kk)} offset:{i*2048}')
            xl.append(A.nlg)
        self.site('A')
        xrd(0)
        self.stamp('x first')
        xrd(1)
        A(f'''
        v_add_u32 {v(V_TAG)}, 0x9e3779b0, {v(V_TAG)}
        v_add_u32 {v(V_TAG+1)}, 0x7f4a7c15, {v(V_TAG+1)}
        s_getreg_b32 {s(S_T0)}, hwreg(HW_REG_XCC_ID)
        s_and_b32 {s(S_T0)}, {s(S_T0)}, 15
        v_add_u32 {v(V_FXV)}, {s(S_T0)}, {v(V_TAG)}
        v_mov_b32 {v(V_FXV+1)}, {v(V_TAG+1)}
        s_lshl_b32 {s(S_T0)}, {s(S_U)}, 7
        s_lshl3_add_u32 {s(S_T0)}, {s(S_Q)}, {s(S_T0)}
        s_add_u32 {s(S_T0)}, {s(S_T0)}, {FX}
        s_mov_b64 exec, 1
        buffer_store_dwordx2 {v(V_FXV,2)}, off, {s(SRD_WS,4)}, {s(S_T0)} sc1
        s_mov_b64 exec, -1
        ''')
        def t1():
            if o.get('t1e'): return
            if o.get('t1bar', 1): A('s_barrier')
            if o.get('g2'):
                self.g2touch(1)
                if o.get('tw2', 2) == 1: self.g2touch(2)
                if o.get('ts') == 0: self.smalltouch(S_AM0)
                return
            T1 = o.get('t1', 112)
            if T1 > T0: self.wtouch(V_TD, SRD_W1, T0, min(T1 - T0, 64))
            if T1 - T0 > 64: self.wtouch(V_TD, SRD_W1, T0 + 64, T1 - T0 - 64)
            if o.get('tw2'): self.wtouch(V_TD, SRD_W2, 0, o['tw2'])
        self.w1t = 56
        g1 = [(lambda i=i: xdma(i)) for i in range(NX1, 8)] + (xr if XRP != 2 else [lambda: None] * o.get('t1d', 0)) + [t1]
        for _ in range(min(len(g1), o.get('xr0', 3))): g1.pop(0)()
        XRE = o.get('xre', 2); cnt = [0, 0]
        def fl(n):
            cnt[0] += 1
            if g1 and cnt[0] % XRE == 0: return g1.pop(0)()
            k = cnt[1]
            if fild and cnt[0] % 4: self.emit(fild.pop(0)); k += 1
            while fill and k < n:
                n0 = A.wt; self.emit(fill.pop(0)); k += A.wt - n0
            cnt[1] = max(0, k - n)
        for i in range(8):
            ip, hp = i >> 1, i & 1
            if i + 2 < 8: xrd(i + 2)
            while 8 * ip + 7 not in tl: self.emit(fild.pop(0))
            A.wait(lg=max(xl[i], tl[8 * ip + 7]))
            for kk in range(2):
                xa = X + 8 * i + 4 * kk
                first = (i == 0 and kk == 0)
                A(f'v_mfma_f32_16x16x32_bf16 {v(SQ,4)}, {v(xa,4)}, {v(xa,4)}, {"0" if first else v(SQ,4)}')
                fl(2.2)
                A(f'v_mfma_f32_16x16x32_bf16 {v(SUM,4)}, {v(xa,4)}, {v(V_ONES,4)}, {"0" if first else v(SUM,4)}')
                fl(2.2)
                for t in range(4):
                    acc = ACC + 16 * hp + 4 * t
                    cin = '0' if (ip == 0 and kk == 0) else v(acc, 4)
                    A(f'v_mfma_f32_16x16x32_bf16 {v(acc,4)}, {v(xa,4)}, {a(32*ip+16*kk+4*t,4)}, {cin}')
                    if not (kk == 1 and t == 3): fl(2.2)
        print('gemm1 fill left', len(fill), len(fild), len(g1))
        self.flush(fild); self.flush(fill)
        self.stamp('gemm1 done')
        A(f'''
        v_cndmask_b32 v6, {v(SQ)}, {v(SQ+1)}, {s(S_XO,2)}
        v_cndmask_b32 v7, {v(SQ+2)}, {v(SQ+3)}, {s(S_XO,2)}
        v_cndmask_b32 v8, {v(SUM)}, {v(SUM+1)}, {s(S_XO,2)}
        v_cndmask_b32 v9, {v(SUM+2)}, {v(SUM+3)}, {s(S_XO,2)}
        v_cndmask_b32 v6, v6, v7, {s(S_XO+2,2)}
        v_cndmask_b32 v8, v8, v9, {s(S_XO+2,2)}
        v_mul_f32 v8, {s(S_T0)}, v8
        v_mul_f32 v8, v8, v8
        v_fma_f32 v6, v6, {s(S_T0)}, -v8
        v_max_f32 v6, 0, v6
        v_add_f32 v6, {f2u(1e-5)}, v6
        v_rsq_f32 v6, v6
        v_fma_f32 {v(ACC)}, {v(ACC+16)}, {v(V_SGN)}, {v(ACC)}
        v_cndmask_b32 v6, 0, v6, {s(S_M,2)}
        v_fma_f32 {v(ACC+1)}, {v(ACC+17)}, {v(V_SGN)}, {v(ACC+1)}
        v_fma_f32 {v(ACC+2)}, {v(ACC+18)}, {v(V_SGN)}, {v(ACC+2)}
        v_mfma_f32_16x16x4_f32 v[20:23], v6, {v(V_FAC)}, 0
        ''')
        for i in range(3, 16):
            A(f'v_fma_f32 {v(ACC+i)}, {v(ACC+16+i)}, {v(V_SGN)}, {v(ACC+i)}')
        for t in range(4):
            for r in range(0, 4, 2):
                A(f'v_pk_mul_f32 {v(ACC+4*t+r,2)}, {v(ACC+4*t+r,2)}, {v(20+r,2)}')
            A(f'v_cvt_pk_bf16_f32 {v(24+2*t)}, {v(ACC+4*t)}, {v(ACC+4*t+1)}')
            A(f'v_cvt_pk_bf16_f32 {v(25+2*t)}, {v(ACC+4*t+2)}, {v(ACC+4*t+3)}')
            A(f'ds_write_b64 {v(V_EW)}, {v(24+2*t,2)} offset:{t*2048}')
        if XRP == 2: A(vmset)
        A.wait(vm=None if XRP else self.xrm, lg=A.nlg)
        A('s_barrier')
        for f in range(8):
            A(f'ds_read_b128 {v(32+4*f,4)}, {v(V_ER)} offset:{f*1024}')
        for t in range(4):
            A(f's_waitcnt lgkmcnt({6-2*t})')
            A(f'v_mfma_f32_16x16x32_bf16 {v(64+4*t,4)}, {v(R1,4)}, {v(32+8*t,4)}, 0')
            A(f'v_mfma_f32_16x16x32_bf16 {v(64+4*t,4)}, {v(R1+4,4)}, {v(36+8*t,4)}, {v(64+4*t,4)}')
        A.dlg = A.nlg
        for k in range(2):
            for t in range(4):
                A(f'v_cvt_pk_bf16_f32 {v(24+4*k+t)}, {v(64+4*t+2*k)}, {v(65+4*t+2*k)}')
            A(f'buffer_store_dwordx4 {v(24+4*k,4)}, {v(V_ZO)}, {s(SRD_WS,4)}, {"0" if k == 0 else s(S_T1)} offen sc1')
            if o.get('zc'): A(f'buffer_store_dwordx4 {v(24+4*k,4)}, {v(V_ZO)}, {s(SRD_WS,4)}, {s(S_T2+k)} offen sc1')
        self.stamp('Z stores')
        self.zst = A.nvm
        self.xr = []
        if o.get('tw2') == 2:
            if o.get('t2bar', 1): A('s_barrier')
            self.g2touch(2)
            if XRP == 2: self.xr = xr
            if o.get('ts', 1) == 1: self.smalltouch(S_T0)
        elif XRP == 2: self.flush(xr)

    def ygrp(self, var, q1, tt): return Y + 32 * var + 16 * q1 + 8 * tt
    def dgrp(self, var, q1, tt):
        return ZF + 32 * q1 + 8 * self.dord.index((var, tt))
    dord = [(1, 1), (0, 1), (1, 0), (0, 0)]
    def window(self):
        A = self.A; o = self.opt
        A.clk = clk = sched.Clock()
        main = []
        AA = A
        A = lambda t: main.extend(L(t))
        XR = ZF
        SD0, SD1, SA1, SM_ = S_W2S, S_AM0, S_TCH, S_FIX
        AD = Y
        A(f'''
        s_sub_u32 {s(S_T0)}, {s(S_W)}, {s(S_Q)}
        s_and_b32 {s(S_T0)}, {s(S_T0)}, 3
        s_lshr_b32 {s(S_T1)}, {s(S_Q)}, 2
        s_lshl1_add_u32 {s(SD0)}, {s(S_T0)}, {s(S_T1)}
        s_lshl_b32 {s(SD0)}, {s(SD0)}, 11
        s_add_u32 {s(S_T0)}, {s(S_W)}, {s(S_Q)}
        s_sub_u32 {s(S_T0)}, 3, {s(S_T0)}
        s_and_b32 {s(S_T0)}, {s(S_T0)}, 3
        s_xor_b32 {s(S_T1)}, {s(S_T1)}, 1
        s_lshl1_add_u32 {s(SD1)}, {s(S_T0)}, {s(S_T1)}
        s_lshl_b32 {s(SD1)}, {s(SD1)}, 11
        s_add_u32 {s(SM_)}, {s(S_SB)}, 12288
        s_mov_b32 {s(SA1)}, 32768
        s_cmp_eq_u32 {s(S_U)}, 0
        s_cselect_b32 {s(S_T2)}, {s(SA1)}, 0
        s_cselect_b32 {s(SA1)}, 16384, {s(SA1)}
        s_cmp_eq_u32 {s(S_ODD)}, 0
        s_cselect_b32 {s(S_T3)}, 0, {s(S_T2)}
        s_cselect_b32 {s(S_T2)}, {s(S_T2)}, 0
        v_xor_b32 v7, 64, v15
        v_xor_b32 v8, 0x70, v15
        v_xor_b32 v9, 0x30, v15
        v_lshrrev_b32 v10, 1, {v(V_L15)}
        v_sub_u32 v11, 8, {v(V_G)}
        v_and_b32 v11, 7, v11
        v_xor_b32 v11, v11, v10
        v_lshlrev_b32 v11, 4, v11
        v_lshl_add_u32 v10, {v(V_L15)}, 7, v11
        v_xor_b32 v11, 64, v10
        v_cmp_eq_u32 vcc, 0, {v(V_L15)}
        v_mov_b32 v12, {s(S_T2)}
        v_mov_b32 v13, {s(S_T3)}
        v_cndmask_b32 v12, 0, v12, vcc
        v_cndmask_b32 v13, 0, v13, vcc
        s_add_u32 {s(S_T0)}, {s(SD1)}, 4096
        s_and_b32 {s(S_T0)}, {s(S_T0)}, 0x3fff
        s_sub_u32 {s(S_T0)}, {s(S_T0)}, {s(SD1)}
        s_mov_b32 {s(S_T1)}, {(-SPW) & 0xffffffff}
        s_cmp_eq_u32 {s(S_W)}, 0
        s_cselect_b32 {s(S_T1)}, {3*SPW}, {s(S_T1)}
        s_cmp_eq_u32 {s(S_ODD)}, 0
        s_cselect_b32 {s(S_T2)}, {s(S_T0)}, {s(S_T1)}
        s_cselect_b32 {s(S_T3)}, {s(S_T1)}, {s(S_T0)}
        v_mov_b32 v6, v10
        s_mov_b64 exec, 0xffff
        v_add_u32 v10, {s(S_T2)}, v10
        v_add_u32 v6, {s(S_T3)}, v6
        s_mov_b64 exec, -1
        ''')
        for rt in range(4):
            pat = [15, 7, 8, 9, 10 if rt < 2 else 6, 11]
            for side in range(2):
                d = S_T0 + side
                if rt & 1: A(f's_add_u32 {s(S_T2)}, {s(SD1 if side else SD0)}, {s(SA1)}')
                A(f's_add_u32 {s(S_T3)}, {s(SM_)}, {(rt&1)*4096+side*2048}')
                A(f's_cmp_eq_u32 {s(S_ODD)}, {rt>>1}')
                A(f's_cselect_b32 {s(d)}, {s(S_T2 if rt & 1 else (SD1 if side else SD0))}, {s(S_T3)}')
            for n in range(6):
                if n >= 2 and not rt & 1: A(f'v_add3_u32 {v(AD+6*rt+n)}, {v(pat[n])}, {s(S_T1)}, {v(12+(rt>>1))}')
                else: A(f'v_add_u32 {v(AD+6*rt+n)}, {s(S_T0 + (n >= 2))}, {v(pat[n])}')
        A = AA
        m2 = []; ex = False
        for x in main:
            if ex or x.startswith('s_cselect'): m2[-1] += '\n' + x
            else: m2.append(x)
            if x.startswith('s_mov_b64 exec'): ex = not x.endswith('-1')
        main = m2
        def xin():
            A.wait(vm=self.xrm); A('s_barrier')
        pre = []
        if o.get('xrp'): pre = main; main = [xin]
        xl = {}
        for rt in range(4):
            main += [f'ds_read_b128 {v(XR+16*rt+4*n,4)}, {v(AD+6*rt+n)}' for n in range(4)]
            main += [f'ds_read_u16 {v(AD+6*rt+4+q1)}, {v(AD+6*rt+4+q1)}' for q1 in range(2)]
            main.append(lambda rt=rt: (xl.__setitem__(rt, A.nlg), rt and A.wait(lg=xl[rt-1])))
        SR = 6
        (pre if pre else main).extend(L(f'''
        v_mov_b32 v6, 0xbf80
        v_mov_b32 v7, -1.0
        v_cndmask_b32 v6, v6, v7, {s(S_XO,2)}
        v_cndmask_b32 v6, 0, v6, {s(S_M,2)}
        v_cndmask_b32 {v(V_SEL+2)}, v6, 0, {s(S_XO+2,2)}
        v_cndmask_b32 {v(V_SEL+3)}, 0, v6, {s(S_XO+2,2)}
        v_mov_b32 {v(V_SEL)}, 0
        v_mov_b32 {v(V_SEL+1)}, 0
        v_mov_b32 {v(V_SEL+4)}, 0
        v_mov_b32 {v(V_SEL+5)}, 0
        v_and_b32 v6, 0xffff, {v(V_SEL+2)}
        v_and_b32 v8, 0xffff0000, {v(V_SEL+3)}
        v_xor_b32 v9, {v(V_SEL+2)}, {v(V_SEL+3)}
        v_xor_b32 v9, v9, v6
        v_xor_b32 v9, v9, v8
        v_mov_b32 v7, 0
        v_mov_b32 v10, v8
        v_mov_b32 v11, v9
        v_mov_b32 v12, v6
        v_mov_b32 v13, 0
        v_cmp_eq_u32 vcc, 0, {v(V_G)}
        s_cmp_eq_u32 {s(S_W)}, 0 @@ s_cselect_b64 {s(S_FIX,2)}, vcc, 0
        '''))
        main = pre + main
        def xfree():
            A.wait(lg=xl[3]); A('s_barrier'); self.xfree = True
        self.xfree = False
        main.append(xfree)
        main.append(f's_mov_b32 {s(S_T0)}, 0xffff')
        main += [f'v_bfi_b32 {v(XR+16*rt+8+4*q1)}, {s(S_T0)}, {v(AD+6*rt+4+q1)}, {v(XR+16*rt+8+4*q1)}' for rt in range(4) for q1 in range(2)]
        sel = lambda var, et: SR + 4 * et if var else V_SEL + 2 - 2 * et
        xf = lambda rt, var, q1: XR + 16 * rt + 4 * (2 * var + q1)
        G8 = [(q1, var, tt) for q1 in range(2) for var, tt in self.dord]
        def smm(d, var, et, x, c): return f'v_mfma_f32_16x16x32_bf16 {v(d+4*et,4)}, {v(sel(var,et),4)}, {v(x,4)}, {v(d+4*et,4) if c else "0"}'
        for q1, var, tt in G8: main += [smm(self.ygrp(1-var,q1,tt), 1-var, et, xf(tt,1-var,q1), 0) for et in range(2)]
        main += [f'v_lshlrev_b32 {v(V_FIX+rt)}, 16, {v(xf(rt,0,0))}' for rt in range(4)]
        main += [f'v_and_b32 {v(r)}, 0x7fff7fff, {v(r)}' for r in (V_SEL + 2, V_SEL + 3, 6, 8, 9, 10, 11, 12)]
        for q1, var, tt in G8: main += [smm(self.ygrp(1-var,q1,tt), var, et, xf(2+tt,var,q1), 1) for et in range(2)]
        for k, (q1, var, tt) in enumerate(G8):
            y = self.ygrp(1 - var, q1, tt); x = xf(2 + tt, var, q1)
            main += [f'v_cvt_pk_bf16_f32 {v(x+i)}, {v(y+2*i)}, {v(y+2*i+1)}' for i in range(4)]
            main += [smm(y, 1-var, et, xf(tt,1-var,q1), 0) for et in range(2)]
            main += [f'v_accvgpr_write_b32 {a(AD_+4*k+i)}, {v(x+i)}' for i in range(4)]
        main += L(f'''
        s_lshr_b32 {s(S_T0)}, {s(S_U)}, 3
        s_lshl2_add_u32 {s(S_T0)}, {s(S_T0)}, {s(S_W)}
        s_lshl_b32 {s(S_T0)}, {s(S_T0)}, 13
        s_add_u32 {s(S_T0)}, {s(S_T0)}, {F1}
        v_add_u32 v15, {s(S_T0)}, {v(V_L128)}
        s_lshl2_add_u32 {s(S_T0)}, {s(S_U)}, {s(S_W)}
        s_lshl_b32 {s(S_T0)}, {s(S_T0)}, 14
        s_and_b32 {s(S_T3)}, {s(S_Q)}, {4 if o.get('zc') else 0}
        s_lshl_b32 {s(S_T3)}, {s(S_T3)}, 19
        s_add_u32 {s(S_T0)}, {s(S_T0)}, {s(S_T3)}
        v_add_u32 {v(V_ZA)}, {s(S_T0)}, {v(V_L16)}
        v_add_u32 {v(V_ZA+1)}, 8192, {v(V_ZA)}
        s_and_b32 {s(S_T3)}, {s(S_Q)}, 3
        s_lshl_b32 {s(S_T3)}, {s(S_T3)}, 11
        s_lshl1_add_u32 {s(S_AM0)}, {s(S_T3)}, {s(S_T0)}
        s_lshl_b32 {s(S_T1)}, {s(S_ODD)}, 11
        s_add_u32 {s(S_T1)}, {s(S_T1)}, {s(S_HB)}
        v_add_u32 v10, {s(S_T1)}, {v(V_L16)}
        v_xor_b32 v11, 2048, v10
        s_xor_b32 {s(S_T1)}, {s(S_W)}, {s(S_C)}
        s_lshl_b32 {s(S_T1)}, {s(S_T1)}, 14
        v_xor_b32 v8, {s(S_T1)}, v10
        v_xor_b32 v9, {s(S_T1)}, v11
        s_lshl3_add_u32 {s(S_RR)}, {s(S_U)}, {s(S_Q)}
        s_lshl2_add_u32 {s(S_RR)}, {s(S_RR)}, {s(S_W)}
        s_lshl_b32 {s(S_RR)}, {s(S_RR)}, 14
        s_add_u32 {s(S_RR)}, {s(S_RR)}, {WS_P}
        s_andn2_b32 {s(S_FLA)}, {s(S_RR)}, {(3<<16)|(1<<14)}
        s_add_u32 {s(S_FLA)}, {s(S_FLA)}, 7168
        v_readfirstlane_b32 {s(S_LT)}, {v(V_TAG)}
        s_and_b32 {s(S_LT)}, {s(S_LT)}, 0xbfffbfff
        s_lshl_b32 {s(S_T0)}, {s(S_U)}, 7
        s_add_u32 {s(S_T0)}, {s(S_T0)}, {FX}
        v_and_b32 v6, 7, {v(V_LANE)}
        v_lshlrev_b32 v6, 3, v6
        ''')
        NBD = o.get('nbd', 14); PE = o.get('pe', 1)
        WR, WL, WT, F1T, W0 = o.get('wr', 64), o.get('wl', 700), o.get('wt', 128), o.get('f1t', 1000), o.get('w0', 0)
        dq = []; tq = []; cq = []; dt = {}; tt_ = {}
        for kind, k, ops in self.pipe: {'dma': dq, 'tr': tq, 'cs': cq}[kind].extend((kind, k, f) for f in ops)
        nxt = W0; flagged = False; pm = None; nd = 0
        while main or (dq and dq[0][1] < NBD) or not flagged:
            T = clk.t
            k = dq[0][1] if dq else 99
            if not flagged and T >= F1T:
                self.stamp('pre F1')
                A.wait(vm=self.zst)
                self.setflag(S_F1, ' sc1')
                self.stamp('F1 set')
                flagged = True
                self.flush(self.xr)
                for _ in range(o.get('wq2', 0)):
                    k = dq[0][1]; self.emit(dq.pop(0)[2]); nxt = max(nxt, T) + WR; dt[k] = nxt
            elif nd < o.get('wq', 0): self.emit(dq.pop(0)[2]); nd += 1; dt[k] = W0
            elif main and main[0] is xin and not flagged and o.get('xrp') == 2: clk.t += 8
            elif k < NBD and T >= nxt and (k < 3 or (self.xfree if k < 5 else (k - 5) in tt_ and T >= tt_[k - 5] + WT)) and not (k >= NBD - PE and (main or not flagged)):
                if k == NBD - PE and pm is None:
                    A(f'buffer_load_dwordx2 v[12:13], v15, {s(SRD_WS,4)}, 0 offen sc1'); pm = A.nvm
                if k >= 5: A.wait(lg=self.w1l[k - 5])
                self.emit(dq.pop(0)[2]); nxt = max(nxt, T - 32) + WR
                if not (dq and dq[0][1] == k):
                    dt[k] = nxt
                    if o.get('fine') == 3 and k in (0, 2, 4, 5, 6, 7, 8, 9, 10, 11, 12): self.stamp(f'wd{k} m{len(main)} T{T}')
            elif tq[0][1] in dt and tq[0][1] < 14 and T >= dt[tq[0][1]] + WL:
                k = tq[0][1]; self.emit(tq.pop(0)[2])
                if tq[0][1] != k: tt_[k] = T
            elif cq[0][1] in tt_ and T >= tt_[cq[0][1]] + WT and clk.pipe <= T + 4 and not (main and o.get('mp', 1)): self.emit(cq.pop(0)[2])
            elif main: self.emit(main.pop(0))
            else: clk.t += 8
        print('window: est', clk.t, 'tr left', len(tq), 'cs left', len(cq))
        A.clk = None
        self.post = dq + tq + cq
        self.stamp('p2 prepoll')
        if pm is None:
            A(f'buffer_load_dwordx2 v[12:13], v15, {s(SRD_WS,4)}, 0 offen sc1'); pm = A.nvm
        Lp = A.newlabel('poll'); D = A.newlabel('polld')
        self.site('B')
        A.wait(vm=pm)
        A.on = False
        A(f'v_cmp_ne_u64 vcc, v[12:13], {v(V_TAG,2)}\ns_mov_b32 {s(S_CNT)}, 0x20000\ns_cbranch_vccz {D}')
        A.snap()
        A.label(Lp)
        A(f'''
        buffer_load_dwordx2 v[12:13], v15, {s(SRD_WS,4)}, 0 offen sc1
        s_sub_u32 {s(S_CNT)}, {s(S_CNT)}, 1
        s_cbranch_scc1 {D}
        s_waitcnt vmcnt(0)
        v_cmp_ne_u64 vcc, v[12:13], {v(V_TAG,2)}
        s_cbranch_vccnz {Lp}
        ''')
        A.label(D)
        A.unsnap()
        self.stamp('p2 polled')

    def p23(self):
        A = self.A; o = self.opt
        A.on = True
        dr = str(o.get('drop', ''))
        A.drop = lambda t: ('d' in dr and t.endswith(' lds')) or ('t' in dr and t.startswith('ds_read_b64_tr')) or ('w' in dr and t.startswith('ds_write')) or ('h' in dr and t.startswith('ds_read_b128'))
        zm = {}
        def zld(q1, ks):
            if ks or q1: A(f's_add_u32 {s(S_T3)}, {s(S_T3)}, 2048\ns_and_b32 {s(S_T3)}, {s(S_T3)}, 0x1800')
            for h in range(2):
                A(f'buffer_load_dwordx4 {v(ZF+32*q1+8*ks+4*h,4)}, {v(V_ZA+q1)}, {s(SRD_WS,4)}, {s(S_T3)} offen offset:{h*1024}{self.zldf}')
            zm[q1, ks] = A.nvm
        for k in range(6):
            zld(k >> 2, k & 3)
            if k == 3: A(f'buffer_load_dwordx2 v[6:7], v6, {s(SRD_WS,4)}, {s(S_T0)} offen sc1')
        NA = 10
        self.debt = 0; self.tick = 0; self.nxt = o.get('dma0', 16); self.blk = -1; self.b4 = False; self.hold = False
        RATE, LAT, SLACK, TL = o.get('rate', 40) / 10, o.get('lat', 44), o.get('slack', 8), o.get('tl', 8)
        dq = []; tq = []; cq = []; dt = {}; tt_ = {}
        for kind, k, f in self.post: {'dma': dq, 'tr': tq, 'cs': cq}[kind].append((kind, k, f))
        self.dfree = 0
        pend_d = {k for _, k, _ in dq}; pend_t = {k for _, k, _ in tq}
        for k in range(16):
            if k not in pend_d: dt[k] = -999
            if k not in pend_t: tt_[k] = -999
        KO = [int(ch) for ch in str(o.get('ko', 123456))]
        self.items = [(0, 0), (1, 0)] + [(0, ks) for ks in KO] + [(1, ks) for ks in KO]
        dq += [('x', 16, x) for x in self.w2_setup()]
        for b in range(14): dq += [('dma', 16 + b, f) for f in self.w2_dma(b, (16 + b) % 5)]
        tq += [('x', 16, x) for x in self.w2_setup_r()]
        self.trl = {}
        for b in range(14): tq += [('tr', 16 + b, f) for f in self.w2_tr(b, (16 + b) % 5)]
        def ins(item, f, tag=-1):
            p = min([n for n, x in enumerate(dq) if x[1] >= item] + [len(dq)])
            dq.insert(p, ('x', tag, f))
        if self.w1t < 56: ins(0, lambda: self.w1touch(self.w1t, 56))
        if 't3' in o:
            t3 = [int(x) for x in str(o['t3']).split('.')]
            for k, p in enumerate(t3): ins(p, lambda k=k: self.w2touch(k if len(t3) > 1 else None))
        if 't4' in o:
            def t4():
                self.smalltouch(S_RR + 2)
                self.g2touch(2)
                if o.get('ptt4'): self.ptouch((o['ptt4'],))
                self.nxt = max(self.nxt, self.tick) + o.get('t4gap', 60)
            ins(o['t4'], t4, -2)
        S_PQ, S_PS = S_RR, S_RR + 1
        ZC = 0
        def trlg(k): return self.w1l[self.w1order[k]] if k < 16 else self.trl[k]
        def d_ok(force=False):
            if not dq: return False
            kind, k, f = dq[0]
            if kind == 'x': return force or k > -2 or self.tick >= (o.get('t4t', 40) if k == -2 else 10)
            if kind == 'st': return force or self.tick >= self.nxt
            dep = k < 5 or ((k - 5) in tt_ and (force or self.tick >= tt_[k - 5] + TL))
            return dep and (force or (self.tick >= self.nxt and not self.hold))
        def d_pop():
            kind, k, f = dq.pop(0)
            if kind == 'st': self.nxt = max(self.nxt, self.tick - SLACK) + o.get('srate', 30) / 10
            if kind == 'dma':
                if k >= 5: A.wait(lg=trlg(k - 5))
                self.nxt = max(self.nxt, self.tick - SLACK) + RATE
                if not (dq and dq[0][:2] == ('dma', k)): dt[k] = self.tick
            self.emit(f)
        def t_ok(force=False):
            if not tq: return False
            kind, k, f = tq[0]
            if k not in dt: return False
            if kind == 'x': return True
            return (k < 14 + self.dfree if k < 16 else self.blk > k - 16) and (force or self.tick >= dt[k] + LAT)
        def t_pop():
            kind, k, f = tq.pop(0)
            self.emit(f)
            if kind == 'tr' and not (tq and tq[0][1] == k): tt_[k] = self.tick
        def c_ok(): return cq and cq[0][1] in tt_ and self.tick >= tt_[cq[0][1]] + TL
        def ensure(k):
            while k not in tt_:
                if t_ok(True): t_pop()
                else:
                    assert d_ok(True), (k, dq[:1], tq[:1]); d_pop()
        self.ensure = ensure; self.dq = dq; self.d_pop = d_pop
        def fill(kmax, qs, k=0):
            k += self.debt; self.debt = 0
            while k < kmax:
                n0 = A.wt
                if d_ok(): d_pop()
                else:
                    for q in qs:
                        if q is None:
                            if t_ok(): t_pop(); break
                        elif q: self.emit(q.pop(0)); break
                    else: break
                k += A.wt - n0
            self.debt = max(0, k - kmax)
        def extra(kmax, qs):
            if mq: mq.pop(0)()
            elif c_ok(): self.emit(cq.pop(0)[2])
            else: return
            self.tick += 1
            fill(kmax, qs)
        def grp(n, rt): return self.ygrp(n >> 1, n & 1, rt) if rt < 2 else self.dgrp(n >> 1, n & 1, rt - 2)
        SQ = {rt: grp(0, rt) + 4 for rt in range(4)}; SM = {rt: grp(2, rt) + 4 for rt in range(4)}
        mq = []
        slots = [TB + 56, TB + 60]
        def dadd(q1):
            for k, (var, tt) in enumerate(self.dord):
                d = self.dgrp(var, q1, tt); y = self.ygrp(1 - var, q1, tt)
                for et in range(2):
                    A(f'v_mfma_f32_16x16x32_bf16 {v(d+4*et,4)}, {v(V_SEL+2-2*et,4)}, {a(AD_+16*q1+4*k,4)}, {v(y+4*et,4)}')
                    self.tick += 1
                    fill(P2BG, [vq, None])
            self.dfree = q1 + 1
        def swap0(q1):
            def f():
                LS = A.newlabel('nsw')
                A(f's_cmp_lg_u32 {s(S_U)}, 0\ns_cbranch_scc1 {LS}')
                A.snap()
                A('s_mov_b32 exec_lo, 0x10001\ns_mov_b32 exec_hi, 0x10001')
                for j in range(8): A(f'v_swap_b32 {v(self.ygrp(1,q1,0)+j)}, {v(self.dgrp(1,q1,0)+j)}')
                A('s_mov_b64 exec, -1\ns_nop 3')
                A.label(LS)
                A.unsnap()
            return f
        def conv(n, rt):
            g = grp(n, rt)
            ln = []
            if n == 0: ln.append(f'v_cndmask_b32 {v(g)}, {v(g)}, {v(V_FIX+rt)}, {s(S_FIX,2)}')
            ln += [f'v_cvt_pk_bf16_f32 {v(g+j)}, {v(g+2*j)}, {v(g+2*j+1)}' for j in range(4)]
            if o.get('w64'):
                ln += [f'ds_write_b64 {v(10+(rt>>1))}, {v(g+2*j,2)} offset:{n*4096+(rt&1)*1024+8*j}' for j in range(2)]
            else: ln.append(f'ds_write_b128 {v(10+(rt>>1))}, {v(g,4)} offset:{n*4096+(rt&1)*1024}')
            def sm(gg, first):
                A(f'v_mfma_f32_16x16x32_bf16 {v(SM[rt],4)}, {v(V_ONES,4)}, {v(gg,4)}, {"0" if first else v(SM[rt],4)}')
                slots.append(gg)
            def rel():
                if self.tick >= o.get('wc0', 0): self.nxt += o.get('wc', 33) / 10
                if n & 1: slots.append(g + 4)
                mq.append(lambda: A(f'v_mfma_f32_16x16x32_bf16 {v(SQ[rt],4)}, {v(g,4)}, {v(g,4)}, {"0" if n == 0 else v(SQ[rt],4)}'))
                if n == 2: mq.append(lambda: sm(grp(0, rt), True))
                if n: mq.append(lambda: sm(g, False))
            ln.append(rel)
            return ln
        def half(q1):
            return (conv(q1, 1) + conv(q1, 3) + conv(2 + q1, 1) + conv(2 + q1, 3)
                    + conv(q1, 0) + conv(q1, 2) + [swap0(q1)] + conv(2 + q1, 0) + conv(2 + q1, 2))
        def take(q, kmax):
            k = 0
            while q and k < kmax:
                n0 = len(A.lines); self.emit(q.pop(0)); k += len(A.lines) - n0
            return k
        P2BG = o.get('p2bg', 2)
        vq = []
        n0 = A.wt
        while A.wt - n0 < o.get('shw', 100):
            if t_ok(): t_pop()
            elif cq and cq[0][1] in tt_: self.emit(cq.pop(0)[2]); A.wt += 4
            elif d_ok() and dq[0][0] == 'x': d_pop()
            else: break
        for q1 in range(2):
            if q1: dadd(0); vq += half(0)
            for ks in range(4):
                z = ZF + 32 * q1 + 8 * ks
                A.wait(vm=zm[q1, ks])
                if (ks, q1) == (0, 0): self.stamp('Z first')
                A(f'v_swap_b32 {v(z+2)}, {v(z+4)}')
                A(f'v_swap_b32 {v(z+3)}, {v(z+5)}')
                n = 0
                for tt in (1, 0):
                    for var in range(2):
                        for et in range(2):
                            acc = self.ygrp(var, q1, tt) + 4 * et
                            A(f'v_mfma_f32_16x16x32_bf16 {v(acc,4)}, {v(z+4*et,4)}, {v(TB+16*ks+8*tt+4*var,4)}, {v(acc,4)}')
                            n += 1; self.tick += 1
                            if q1 == 0 and ks < 2 and n == 1: zld(1, 2 + ks)
                            elif q1 == 0:
                                if (ks, n) > (1, 1): fill(P2BG, [None])
                            else:
                                fill(o.get('p2v', 3), [vq])
                                if mq and n % 2 == 0: extra(2, [vq])
        self.stamp('Z landed')
        dadd(1)
        while vq:
            if mq: extra(2, [vq])
            else: take(vq, 2)
        A.wait(lg=A.nlg)
        A('s_barrier')
        self.stamp('half 0')
        free = [TB + 4 * k for k in range(14)]
        acc = {}
        for t in range(4):
            for rt in range(4 if t < 3 else 2): acc[t, rt] = free.pop(0)
        started = set()
        def mm(t, rt, b, frag):
            c = v(acc[t, rt], 4)
            A(f'v_mfma_f32_16x16x32_bf16 {c}, {a(16*b+4*t,4)}, {v(frag,4)}, {c if (t, rt) in started else "0"}')
            started.add((t, rt))
        fr = {}; fl_ = {}
        def hrd(b):
            q1, ip, var = b >> 3, (b >> 1) & 3, b & 1
            ops = []
            if var == 0 and b:
                x = (ip ^ ((ip - 1) & 3)) << 14
                ops.append(f'v_xor_b32 v8, {x}, v8'); ops.append(f'v_xor_b32 v9, {x}, v9')
            for rt in range(4):
                def f(rt=rt):
                    fr[b, rt] = slots.pop(0)
                    A(f'ds_read_b128 {v(fr[b,rt],4)}, {v(8+(rt>>1))} offset:{(2*var+q1)*4096+(rt&1)*1024}')
                    fl_[b, rt] = A.nlg
                ops.append(f)
            return ops
        vq = half(1)
        while len(slots) < 4: extra(0, [])
        self.flush(hrd(0))
        while mq: extra(2, [None, vq] if o.get('tprio', 1) else [vq])
        take(vq, o.get('h1pre', 6))
        A(f'''
        s_getreg_b32 {s(S_T0)}, hwreg(HW_REG_XCC_ID)
        s_and_b32 {s(S_T0)}, {s(S_T0)}, 15
        v_subrev_u32 v6, {s(S_T0)}, v6
        v_cmp_ne_u64 vcc, v[6:7], {v(V_TAG,2)}
        s_and_b32 {s(S_T0)}, {s(S_Q)}, {4 if o.get('npl', 3) < 4 else 0}
        s_lshr_b32 {s(S_FAST)}, vcc_lo, {s(S_T0)}
        s_and_b32 {s(S_FAST)}, {s(S_FAST)}, {15 if o.get('npl', 3) < 4 else 255}
        s_cselect_b32 {s(S_FAST)}, 0, 1
        ''')
        LE = A.newlabel('noe')
        A(f'''
        s_or_b32 {s(S_T0)}, s2, {s(S_W)}
        s_cmp_lg_u32 {s(S_T0)}, 0
        s_cbranch_scc1 {LE}
        ''')
        A.snap()
        A(f's_mov_b32 {s(S_T0)}, {FE}')
        self.setflag(S_T0, ' sc1')
        A.label(LE); A.unsnap()
        st = L(f'''
        s_lshl_b32 {s(S_T0)}, {s(S_ODD)}, 10
        s_lshl3_add_u32 {s(S_T0)}, {s(S_W)}, {s(S_T0)}
        s_add_u32 {s(S_T0)}, {s(S_T0)}, {L_STAT}
        v_lshl_add_u32 v6, {v(V_L15)}, 5, {s(S_T0)}
        v_xor_b32 v7, 1024, v6
        ''')
        for rt in range(4):
            st += [f'v_cndmask_b32 {v(SM[rt]+1)}, {v(SQ[rt])}, {v(SQ[rt]+1)}, {s(S_XO,2)}',
                   f'v_cndmask_b32 {v(SM[rt]+2)}, {v(SQ[rt]+2)}, {v(SQ[rt]+3)}, {s(S_XO,2)}',
                   f'v_cndmask_b32 {v(SM[rt]+1)}, {v(SM[rt]+1)}, {v(SM[rt]+2)}, {s(S_XO+2,2)}']
        st.append(f's_mov_b64 exec, {s(S_M,2)}\n' + '\n'.join(f'ds_write_b64 {v(6+(rt>>1))}, {v(SM[rt],2)} offset:{(rt&1)*512}' for rt in range(4)) + '\ns_mov_b64 exec, -1')
        def mark(): self.stm = A.nlg
        st.append(mark)
        SB0, SB1 = SQ[2], SQ[3]
        BF = [SM[rt] for rt in range(4)]
        RS = SQ[0]
        s2 = L(f'''
        s_lshl_b32 {s(S_T2)}, {s(S_ODD)}, 10
        s_add_u32 {s(S_T2)}, {s(S_T2)}, {L_STAT}
        v_lshlrev_b32 {v(V_FIX)}, 5, {v(V_LANE)}
        v_xor_b32 {v(V_FIX)}, {s(S_T2)}, {v(V_FIX)}
        ds_read_b128 {v(SB0,4)}, {v(V_FIX)}
        ds_read_b128 {v(SB1,4)}, {v(V_FIX)} offset:16
        ''')
        def w_(): A.wait(lg=self.s2m)
        s3 = [w_] + L(f'''
        v_add_f32 {v(SB0)}, {v(SB0)}, {v(SB0+2)}
        v_add_f32 {v(SB0+1)}, {v(SB0+1)}, {v(SB0+3)}
        v_add_f32 {v(SB1)}, {v(SB1)}, {v(SB1+2)}
        v_add_f32 {v(SB1+1)}, {v(SB1+1)}, {v(SB1+3)}
        v_add_f32 {v(SB0)}, {v(SB0)}, {v(SB1)}
        v_add_f32 {v(SB0+1)}, {v(SB0+1)}, {v(SB1+1)}
        v_mul_f32 {v(SB0)}, {f2u(-1/512)}, {v(SB0)}
        v_mul_f32 {v(SB0+1)}, {f2u(1/512)}, {v(SB0+1)}
        v_fma_f32 {v(SB0+1)}, -{v(SB0)}, {v(SB0)}, {v(SB0+1)}
        v_max_f32 {v(SB0+1)}, 0, {v(SB0+1)}
        v_add_f32 {v(SB0+1)}, {f2u(1e-5)}, {v(SB0+1)}
        v_rcp_f32 {v(RS)}, {v(SB0+1)}
        v_sqrt_f32 {v(SB0+1)}, {v(SB0+1)}
        v_mov_b32 {v(RS+2)}, {v(RS)}
        v_cvt_pk_bf16_f32 {v(SB1)}, {v(SB0)}, {v(SB0+1)}
        v_lshlrev_b32 {v(SB0+2)}, 16, {v(SB1)}
        v_and_b32 {v(SB0+3)}, 0xffff0000, {v(SB1)}
        v_sub_f32 {v(SB0+2)}, {v(SB0)}, {v(SB0+2)}
        v_sub_f32 {v(SB0+3)}, {v(SB0+1)}, {v(SB0+3)}
        v_cvt_pk_bf16_f32 {v(SB1+1)}, {v(SB0+2)}, {v(SB0+3)}
        v_and_b32 {v(SB1+2)}, 0xffff, {v(SB1)}
        v_permlane32_swap_b32 {v(RS)}, {v(RS+2)}
        v_mov_b32 {v(RS+1)}, {v(RS)}
        v_mov_b32 {v(RS+3)}, {v(RS+2)}
        v_permlane16_swap_b32 {v(RS)}, {v(RS+1)}
        v_permlane16_swap_b32 {v(RS+2)}, {v(RS+3)}
        ''')
        for rt in range(4):
            s3 += [f'v_cmp_eq_u32 vcc, {rt}, {v(V_G)}', f'v_mov_b32 {v(BF[rt]+3)}, 0'] + [f'v_cndmask_b32 {v(BF[rt]+k)}, 0, {v(SB1+k)}, vcc' for k in range(3)]
        V_BIAS = SQ[1]
        def bld():
            for t in range(3): A(f'buffer_load_ushort {v(V_BIAS+t)}, {v(V_BT)}, {s(SRD_B1,4)}, {s(S_T1)} offen offset:{32*t}')
            A(f'buffer_load_ushort {v(V_BIAS+3)}, {v(V_BT)}, {s(SRD_B1,4)}, {s(S_T0)} offen offset:96')
            self.bm = A.nvm
        bias = L(f'''
        s_mul_i32 {s(S_T0)}, {s(S_Q)}, 448
        s_lshr_b32 {s(S_T1)}, {s(S_W)}, 1
        s_mul_i32 {s(S_T1)}, {s(S_T1)}, 224
        s_add_u32 {s(S_T0)}, {s(S_T0)}, {s(S_T1)}
        s_lshl_b32 {s(S_T1)}, {s(S_ODD)}, 7
        s_add_u32 {s(S_T1)}, {s(S_T1)}, {s(S_T0)}
        v_lshlrev_b32 {v(V_BT)}, 1, {v(V_L15)}
        ''') + [bld]
        csl = [lambda: A.wait(vm=self.bm)]
        for t in range(4):
            c = V_CS + 4 * t
            csl += L(f'''
            v_lshlrev_b32 {v(c+3)}, 16, {v(V_BIAS+t)}
            v_cvt_pk_bf16_f32 {v(c)}, {v(c)}, {v(c+3)}
            v_lshlrev_b32 {v(c+3)}, 16, {v(c)}
            v_sub_f32 {v(c+2)}, {v(c+2)}, {v(c+3)}
            v_mov_b32 {v(c+1)}, {v(c)}
            v_cvt_pk_bf16_f32 {v(c+2)}, {v(c+2)}, 0
            v_mov_b32 {v(c+3)}, 0
            ''')
        FK = o.get('fk', 22) / 10
        B3 = o.get('b3', 4); B4 = o.get('b4', 99)
        def mark2(): self.s2m = A.nlg
        q2 = []
        nrd = 1
        inv = {b: k for k, b in enumerate(self.w1order)}
        for b in range(12):
            self.blk = b
            if o.get('fine') == 1 and b: self.stamp(f'blk{b} t{self.tick} d{A.nvm}')
            ensure(inv[b])
            if b == B3:
                print('at B3: vq', len(vq), 'mq', len(mq), 'st', len(st), 'tick', self.tick)
                while vq or mq:
                    if mq: extra(2, [vq])
                    else: take(vq, 2)
                self.flush(st)
                A.wait(lg=self.stm)
                A('s_barrier')
                q2 = s2 + [mark2] + bias + s3
            hq = []
            while nrd < (8 if b < B3 else 16) and len(slots) - sum(callable(x) for x in hq) >= 4 and len(hq) < o.get('hmax', 8):
                hq += hrd(nrd); nrd += 1
            if b == B4:
                assert nrd == 16 and not hq, (nrd, len(hq))
                A.wait(lg=A.nlg)
                A('s_barrier')
                self.b4 = True
            for rt in range(4):
                for t in range(4 if rt < 2 else 3):
                    k = A.wait(lg=max(fl_[b, rt], self.w1l[b]))
                    mm(t, rt, b, fr[b, rt]); self.tick += 1
                    qs = ([hq, None, vq] if o.get('tprio', 1) else [hq, vq, None]) + [[] if mq else st, q2, [] if cq or b < o.get('csb', 9) else csl]
                    fill(FK, qs, k * SW)
                    extra(FK, qs)
            self.flush(hq)
            for rt in range(4): slots.append(fr[b, rt])
        self.blk = 12
        print('middle left: dq', len(dq), 'tq', len(tq), 'cq', len(cq), 'q2', len(q2), 'cs', len(csl), 'tick', self.tick)
        for b in range(12, 16): ensure(inv[b])
        while cq: self.emit(cq.pop(0)[2])
        self.flush(q2); self.flush(csl)
        self.stamp('mid done')
        slots += [SB0, SB1, SQ[1]]
        V_BIAS = V_CS
        print('free slots', len(slots))
        V_IB, V_FC = 8, 9
        ep = []
        RF = {}; rv = {}; sw = {}; T2 = {}; self.rst = 0; self.nst = 0
        def epi(t, nt):
            ln = []
            def st(c, off):
                if off >= 4096: A(f's_add_u32 {s(S_PS)}, {s(S_PQ)}, 4096')
                A(f'buffer_store_dwordx4 {v(c,4)}, {v(V_L16)}, {s(SRD_WS,4)}, {s(S_PS if off >= 4096 else S_PQ)} offen offset:{off&4095} sc1')
                self.rst = A.nvm; self.nst += 1
            for rt in (2 * nt, 2 * nt + 1):
                c = acc[t, rt]; d = c if t == 0 else acc[0, rt] + 2 if t == 1 else acc[t, 2 * nt] + 2 * (rt & 1)
                ln += [f'v_mul_f32 {v(c+i)}, {v(c+i)}, |{v(c+i)}|' for i in range(4)]
                ln += [f'v_cvt_pk_bf16_f32 {v(d+i)}, {v(c+2*i)}, {v(c+2*i+1)}' for i in range(2)]
                ln += [f'v_pk_max_i16 {v(d+i)}, {v(d+i)}, 0' for i in range(2)]
                if t == 1:
                    ln.append(lambda rt=rt, c=c: (st(acc[0, rt], rt * 1024), RF.__setitem__((0, rt), ('v', acc[0, rt])), slots.append(c)))
                elif t and rt & 1:
                    ln.append(lambda c=c: (st(acc[t, 2 * nt], 4096 + nt * 1024 if t == 2 else 6144), slots.append(c), t == 3 and slots.append(acc[3, 0])))
            return ln
        def reg(x, n=4, off=0): return (a if x[0] == 'a' else v)(x[1] + off, n)
        def rload(js):
            for ks in js:
                if ks < 4:
                    A(f's_xor_b32 {s(S_PS)}, {s(S_PQ)}, {ks<<16}')
                    for rt in range(4):
                        RF[ks, rt] = ('a', (224, 240, 0)[KO.index(ks) - min(KO.index(k) for k in (1, 2, 3))] + 4 * rt)
                        A(f'buffer_load_dwordx4 {reg(RF[ks,rt])}, {v(V_L16)}, {s(SRD_WS,4)}, {s(S_PS)} offen offset:{rt*1024} sc1')
                        rv[ks, rt] = A.nvm
                    continue
                if ks == 6: A(f's_lshl_b32 {s(S_T0)}, {s(S_ODD)}, 17\ns_xor_b32 {s(S_T0)}, {s(S_T0)}, {s(S_PQ)}')
                for k in range(2):
                    for e in range(2):
                        if ks == 4 and e == 0: RF[ks, 2 * k] = ('v', acc[2, 2 * k]); continue
                        RF[ks, 2 * k + e] = ('v', slots.pop(0))
                        if ks == 6: A(f's_xor_b32 {s(S_PS)}, {s(S_T0)}, {(e<<16)|(k<<14)|4096}')
                        elif ks == 5 or k == 0: A(f's_xor_b32 {s(S_PS)}, {s(S_PQ)}, {((2*(ks-4)+e)<<16)|4096}')
                        A(f'buffer_load_dwordx4 {reg(RF[ks,2*k+e])}, {v(V_L16)}, {s(SRD_WS,4)}, {s(S_PS)} offen offset:{2048 if ks == 6 else k*1024} sc1')
                    rv[ks, 2 * k] = rv[ks, 2 * k + 1] = A.nvm
                    sw[ks, k] = True
        def rswap(ks, k):
            if not sw.pop((ks, k), False): return
            A.wait(vm=rv[ks, 2 * k])
            for i in range(2): A(f'v_swap_b32 {reg(RF[ks,2*k],1,2+i)}, {reg(RF[ks,2*k+1],1,i)}')
        A.wait(lg=max(max(fl_.values()), max(self.w1l.values())))
        EPK = o.get('epk', 22) / 10
        ml = []
        for t in [int(ch) for ch in str(o.get('tord', '0123')).zfill(4)]:
            for nt in range(2 if t < 3 else 1):
                ml += [('a', t, rt, b) for b in range(12, 17) for rt in (2 * nt, 2 * nt + 1)]
        N3 = len(ml)
        NM = o.get('nm', 2)
        if o.get('art'): ml += [('b', j, 0, rt) for rt in range(4) for j in range(8)]
        else: ml += [('b', j, 0, rt) for j in range(8) for rt in range(4)]
        for ks in KO[:6-NM]: ml += [('b', j, ks, rt) for rt in range(4) for j in range(4)]
        for j in range(4): ml += [('b', j, ks, rt) for ks in KO[6-NM:] for rt in range(4)]
        for j in range(4, 8): ml += [('b', j, ks, rt) for ks in KO for rt in range(4)]
        pa = {}; due = []; cnt = {}
        def dual(fn):
            LS = A.newlabel('slow'); LJ = A.newlabel('dj')
            A(f's_cmp_eq_u32 {s(S_FAST)}, 0\ns_cbranch_scc1 {LS}')
            A.snap(); fn(''); A(f's_branch {LJ}'); A.label(LS); A.unsnap()
            fn(' sc1'); A.label(LJ)
        def pack(j):
            return [f'v_cvt_pk_bf16_f32 {v(pa[j,rt&2]+2*(rt&1)+i)}, {v(pa[j,rt]+2*i)}, {v(pa[j,rt]+2*i+1)}' for rt in range(4) for i in range(2)]
        self.nred = 0; self.gb = False
        def red(j):
            x = 3 - (j & 3)
            def wr():
                assert self.gb and (j < 4 or 0 in rdm)
                for k in range(2): A(f'ds_write_b128 {v(V_IB)}, {v(pa[j,2*k],4)} offset:{(x-1)*2048+(k^(x&1))*1024}')
                A(f'v_xor_b32 {v(V_IB)}, {(x^(x-1))<<14}, {v(V_IB)}')
                slots.extend(pa[j, rt] for rt in (1, 3, 0, 2)); self.nred += 1
            return pack(j) + [wr]
        rdm = {}
        AR = (32, 56)
        def rbar(js):
            hf = js[0]
            while self.nred < 3 * (hf + 1): self.emit(ep.pop(0))
            if hf == 0:
                for k in range(14): ensure(16 + k)
            A.wait(lg=A.nlg); A('s_barrier')
            for k in range(6):
                A(f'ds_read_b128 {a(AR[hf]+4*k,4)}, {v(V_IB)} offset:{k*1024}'); rdm[hf, k] = A.nlg
            rdm[hf] = True
            if hf == 0: A(f'v_xor_b32 {v(V_IB)}, {65536|(3<<14)}, {v(V_IB)}')
        def radd(js):
            hf = js[0]; j = 4 * hf + 3
            assert hf or all(cnt[j, rt] == 7 for rt in range(4))
            for x in range(3):
                for rt in range(4):
                    k = A.wait(lg=rdm[hf, 2 * x + (rt >> 1)])
                    A(f'v_mfma_f32_16x16x32_bf16 {v(pa[j,rt],4)}, {v(V_SEL+2-2*(rt&1),4)}, {a(AR[hf]+8*x+4*(rt>>1),4)}, {v(pa[j,rt],4)}')
                    self.tick += 1
                    fill(EPK, [ep, None, misc if self.n >= MB else []], k * SW)
            if hf == 0: due.append((self.n + 1, send()))
        self.sent = None
        def send():
            c = [pa[3, rt] for rt in range(4)]
            q = []
            for k in range(3):
                q += [f'v_cvt_pk_bf16_f32 {v(c[k]+i)}, {v(c[k]+2*i)}, {v(c[k]+2*i+1)}' for i in range(2)]
                q.append(f'v_cvt_pk_bf16_f32 {v(c[k]+2)}, {v(c[3]+2*k)}, {v(c[3]+2*k+1)}' if k < 2 else f'v_mov_b32 {v(c[k]+2)}, {s(S_LT)}')
                q.append(f'v_mov_b32 {v(c[k]+3)}, {s(S_LT)}')
            def st():
                A(f's_xor_b32 {s(S_PS)}, {s(S_PQ)}, {(4<<16)|8192}')
                for k in range(3): A(f'buffer_store_dwordx4 {v(c[k],4)}, {v(V_L16)}, {s(SRD_WS,4)}, {s(S_PS)} offen offset:{k*1024} sc1')
                self.sent = A.nvm
                slots.extend(pa[3, rt] for rt in (3, 0, 1, 2))
                if o.get('fine') == 2: self.stamp(f'sent n{self.n-N3}')
            return q + [st]
        def flag(js):
            while self.nst < 7: self.emit(ep.pop(0))
            A(f's_and_b32 {s(S_T0)}, {s(S_Q)}, 3\ns_lshl1_add_u32 {s(S_T0)}, {s(S_T0)}, {s(S_ODD)}\ns_lshl3_add_u32 {s(S_T0)}, {s(S_T0)}, {s(S_FLA)}')
            A.wait(vm=self.rst)
            A('s_mov_b64 exec, 1')
            dual(lambda sc: A(f'buffer_store_dwordx2 {v(V_TAG,2)}, off, {s(SRD_WS,4)}, {s(S_T0)}{sc}'))
            A('s_mov_b64 exec, -1')
        pm = {}; V_PL = V_ONES
        def pissue(js):
            A(f'buffer_load_dwordx2 {v(V_PL,2)}, {v(V_FC)}, {s(SRD_WS,4)}, {s(S_FLA)} offen sc1')
            pm[js] = A.nvm
        def pcheck(js):
            if js not in pm: pissue(js)
            Lp = A.newlabel('poll'); D = A.newlabel('polld')
            A.wait(vm=pm[js])
            A.on = False
            A(f'v_cmp_ne_u64 vcc, {v(V_PL,2)}, {v(V_TAG,2)}\ns_mov_b32 {s(S_CNT)}, 0x20000\ns_cbranch_vccz {D}')
            A.snap()
            A.label(Lp)
            A(f'''
            buffer_load_dwordx2 {v(V_PL,2)}, {v(V_FC)}, {s(SRD_WS,4)}, {s(S_FLA)} offen sc1
            s_sub_u32 {s(S_CNT)}, {s(S_CNT)}, 1
            s_cbranch_scc1 {D}
            s_waitcnt vmcnt(0)
            v_cmp_ne_u64 vcc, {v(V_PL,2)}, {v(V_TAG,2)}
            s_cbranch_vccnz {Lp}
            ''')
            A.label(D)
            A.unsnap()
            A.on = True
        PD = []
        def pload(js=None):
            if not PD: PD.extend(slots.pop(0) for _ in range(3))
            A(f's_add_u32 {s(S_PS)}, {s(S_PQ)}, 8192')
            for k in range(3): A(f'buffer_load_dwordx4 {v(PD[k],4)}, {v(V_L16)}, {s(SRD_WS,4)}, {s(S_PS)} offen offset:{k*1024} sc1')
            self.plm = A.nvm
        def kcheck(js):
            assert len(misc) in (0, self.nmisc)
            Lc = A.newlabel('chk'); D = A.newlabel('got')
            t = V_PL
            A(f's_movk_i32 {s(S_CNT)}, 0x4000')
            A.wait(vm=self.plm)
            A.on = False
            A.label(Lc)
            A(f'v_xor_b32 {v(t)}, {s(S_LT)}, {v(PD[0]+3)}')
            for k in (1, 2): A(f'v_bitop3_b32 {v(t)}, {v(t)}, {v(PD[k]+3)}, {s(S_LT)} bitop3:0xf6')
            A(f'v_cmp_ne_u32 vcc, 0, {v(t)}\ns_cbranch_vccz {D}')
            A.snap()
            pload()
            A(f's_sub_u32 {s(S_CNT)}, {s(S_CNT)}, 1\ns_waitcnt vmcnt(0)\ns_cbranch_scc0 {Lc}')
            A.label(D)
            A.unsnap()
            A.on = True
        Q3 = []
        def selq(js=None):
            if Q3: return
            Q3.extend([slots.pop(0), slots.pop(0)])
            for k in range(2):
                for i in range(4): A(f'v_mov_b32 {v(Q3[k]+i)}, {v(V_SEL+2+k) if i == 2 else 0}')
        def zadd(js):
            selq()
            for rt, sel, k in ((3, Q3[0], 0), (0, V_SEL + 2, 0), (1, V_SEL + 2, 1), (2, V_SEL + 2, 2), (3, Q3[1], 1)):
                A(f'v_mfma_f32_16x16x32_bf16 {v(pa[7,rt],4)}, {v(sel,4)}, {v(PD[k],4)}, {v(pa[7,rt],4)}')
        def num(js): return int(''.join(map(str, js)))
        def dforce(js):
            k = 16 + num(js)
            while k not in dt:
                if d_ok(True): d_pop()
                else:
                    assert t_ok(True); t_pop()
        def gbar(js): A('s_barrier'); self.gb = True
        def pwait(js):
            while self.sent is None: self.emit(ep.pop(0))
            A.wait(vm=self.sent)
        V_OO = V_CS + 4
        bs = {}
        def balloc():
            for rt in range(4): bs[rt] = slots.pop(0)
            q = [f'ds_read_u16_d16_hi {v(bs[rt]+r)}, {v(V_BIAS+r)} offset:{rt*1024}' for rt in range(2) for r in range(4)]
            q += [f'v_xor_b32 {v(V_BIAS+r)}, 2048, {v(V_BIAS+r)}' for r in range(4)]
            q += [f'ds_read_u16_d16_hi {v(bs[2+rt]+r)}, {v(V_BIAS+r)} offset:{rt*1024}' for rt in range(2) for r in range(4)]
            def mk(): self.bl = A.nlg
            q += [mk, lambda: A.wait(vm=self.b2m)]
            q += [f'v_lshlrev_b32 {v(V_FIX)}, 16, {v(V_BT)}', f'v_and_b32 {v(V_FIX+1)}, 0xffff0000, {v(V_BT)}',
                  f'v_lshlrev_b32 {v(V_FIX+2)}, 16, {v(V_TD)}', f'v_and_b32 {v(V_FIX+3)}, 0xffff0000, {v(V_TD)}', lambda: A.wait(lg=self.bl)]
            if o.get('bz', 1): q += [f'v_and_b32 {v(bs[rt]+r)}, 0xffff0000, {v(bs[rt]+r)}' for rt in range(4) for r in range(4)]
            q += [f'v_add_f32 {v(bs[rt]+r)}, {v(bs[rt]+r)}, {v(V_FIX+r)}' for rt in range(4) for r in range(4)]
            misc.extend(q)
        def spread(d, e):
            return L(f'''
            v_and_b32 v7, 0xc0, {v(e)}
            v_lshl_add_u32 {v(d)}, v7, 8, {v(V_BIAS+3)}
            v_and_b32 v7, 0x20, {v(e)}
            v_lshl_add_u32 {v(d)}, v7, 7, {v(d)}
            v_and_b32 v7, 0x18, {v(e)}
            v_lshl_add_u32 {v(d)}, v7, 5, {v(d)}
            v_and_b32 v7, 7, {v(e)}
            v_lshl_add_u32 {v(d)}, v7, 1, {v(d)}
            ''')
        def b2ld():
            A(f'buffer_load_dwordx2 {v(V_BT,2)}, {v(V_FIX)}, {s(SRD_B2,4)}, 0 offen'); self.b2m = A.nvm
        mis0 = L(f'''
        s_lshl2_add_u32 {s(S_T1)}, {s(S_Q)}, {s(S_W)}
        s_lshl_b32 {s(S_T1)}, {s(S_T1)}, 4
        v_lshl_add_u32 v6, {v(V_G)}, 2, {s(S_T1)}
        v_lshlrev_b32 {v(V_FIX)}, 1, v6
        ''') + [b2ld] + L(f'''
        v_and_b32 {v(V_FC)}, 7, {v(V_LANE)}
        v_lshlrev_b32 {v(V_FC)}, 3, {v(V_FC)}
        s_andn2_b32 {s(S_T2)}, 4, {s(S_Q)}
        s_xor_b32 {s(S_T3)}, {s(S_W)}, 3
        s_lshl3_add_u32 {s(S_T2)}, {s(S_T3)}, {s(S_T2)}
        s_lshl_b32 {s(S_T2)}, {s(S_T2)}, 11
        v_add_u32 {v(V_IB)}, {s(S_T2)}, {v(V_L16)}
        s_and_b32 {s(S_T3)}, {s(S_Q)}, 4
        s_add_u32 {s(S_T2)}, {s(S_T3)}, {s(S_ODD)}
        s_lshl_b32 {s(S_T2)}, {s(S_T2)}, 11
        v_lshl_add_u32 {v(V_BIAS+3)}, {v(V_L15)}, 4, {s(S_T2)}
        s_cmp_ge_u32 {s(S_Q)}, 4 @@ s_cselect_b64 vcc, -1, 0
        v_sub_u32 {v(V_FIX+1)}, 512, v6
        v_cndmask_b32 {v(V_FIX+1)}, v6, {v(V_FIX+1)}, vcc
        v_subrev_u32 {v(V_FIX+2)}, {s(S_T3)}, {v(V_FIX+1)}
        ''') + spread(V_BIAS, V_FIX + 1) + spread(V_BIAS + 2, V_FIX + 2) + L(f'''
        s_add_u32 {s(S_T2)}, {s(S_T3)}, 2
        v_add_u32 {v(V_BIAS+1)}, {s(S_T2)}, {v(V_BIAS+2)}
        v_xor_b32 {v(V_BIAS+3)}, 4, {v(V_BIAS+1)}
        v_add_u32 {v(V_BIAS+2)}, 4, {v(V_BIAS+2)}
        v_lshrrev_b32 v6, 5, {v(V_LANE)}
        v_lshlrev_b32 v6, 4, v6
        s_lshl_b32 {s(S_T1)}, {s(S_T1)}, 1
        v_add_u32 v6, {s(S_T1)}, v6
        v_sub_u32 v7, 2048, {v(V_TT)}
        v_cmp_eq_u32 vcc, 0, {v(V_TT)}
        v_mov_b32 {v(V_OO)}, 1024
        v_cndmask_b32 v7, v7, {v(V_OO)}, vcc
        s_cmp_eq_u32 {s(S_ODD)}, 1 @@ s_cselect_b64 vcc, -1, 0
        v_cndmask_b32 {v(V_OO)}, {v(V_TT)}, v7, vcc
        v_cndmask_b32 {v(V_OO+1)}, v7, {v(V_TT)}, vcc
        v_lshl_add_u32 {v(V_OO)}, {v(V_OO)}, 10, v6
        v_lshl_add_u32 {v(V_OO+1)}, {v(V_OO+1)}, 10, v6
        ''')
        misc = [balloc]
        ev = {}
        tail = []
        EV = {'f': flag, 'i': pissue, 'c': pcheck, 'l': rload, 'd': dforce, 't': lambda js: ensure(16 + num(js)), 'b': gbar,
              'm': lambda js: self.flush(misc), 'e': lambda js: (self.flush(ep), self.flush(m0)), 'q': selq, 'r': rbar, 'a': radd, 'v': pload, 'k': kcheck, 'z': zadd, 'w': pwait, 'h': lambda js: setattr(self, 'hold', bool(js[0]))}
        for e in o.get('ev', 'e0@32.F0@32.b0@32.C0@32.L123456@32.r0@134.a0@142.q0@190.v0@215.R1.a1.K0.z0').split('.'):
            js = tuple(int(ch) for ch in e.split('@')[0][1:])
            fn = EV[e[0].lower()]
            if '@' in e: ev.setdefault(N3 + int(e.split('@')[1]), []).append((e, fn, js))
            else: tail.append((e, fn, js))
        MB = N3 + o.get('misc0', 150); self.nmisc = len(misc)
        m0 = []
        it = {x: k for k, x in enumerate(self.items)}
        for n, m in enumerate(ml):
            self.n = n
            if n == N3:
                self.stamp('p3 mfma done')
                print('last left: ep', len(ep), 'dq', len(dq), 'tq', len(tq), 'tick', self.tick)
                self.blk = 16
                slots.extend(fr[b, rt] for b in range(12, 16) for rt in range(4))
                slots.extend(BF); slots.extend([V_CS + 8, V_CS + 12])
            if n == N3 + 2: m0 = mis0
            for e, fn, js in ev.get(n, []):
                fn(js)
                if e[0].isupper(): self.stamp(e.split('@')[0] + f' d{len(dq)} t{len(tq)}')
            k = 0
            if m[0] == 'a':
                _, t, rt, b = m
                if b < 16: mm(t, rt, b, fr[b, rt])
                else: A(f'v_mfma_f32_16x16x32_bf16 {v(acc[t,rt],4)}, {v(V_CS+4*t,4)}, {v(BF[rt],4)}, {v(acc[t,rt],4)}')
                if b == 16 and rt & 1: due.append((n + 2, epi(t, rt >> 1)))
            else:
                _, j, ks, rt = m
                b = it[j >> 2, ks]
                ensure(16 + b)
                while (ks, rt) not in RF: self.emit(ep.pop(0))
                rswap(ks, rt >> 1)
                k = A.wait(vm=rv.get((ks, rt)), lg=self.trl[16 + b])
                if ks == 0: pa[j, rt] = slots.pop(0)
                c = v(pa[j, rt], 4)
                A(f'v_mfma_f32_16x16x32_bf16 {c}, {a(16*b+4*(j&3),4)}, {reg(RF[ks,rt])}, {c if ks else "0"}')
                cnt[j, rt] = cnt.get((j, rt), 0) + 1
                if j == 7 and RF[ks, rt][0] == 'v': slots.append(RF[ks, rt][1])
                if rt == 3 and cnt[j, rt] == 7 and j & 3 < 3: due.append((n + 2, red(j)))
                if o.get('fine') == 2 and n - N3 in (32, 48, 64, 80, 96, 127, 176): self.stamp(f'n{n-N3} d{len(dq)} t{len(tq)}')
            self.tick += 1
            while due and due[0][0] <= n: ep += due.pop(0)[1]
            fill(EPK, [ep, None, m0, misc if n >= MB else []], k * SW)
        print('end left: ep', len(ep), 'misc', len(misc), 'dq', len(dq), 'tq', len(tq), 'slots', len(slots))
        self.flush(ep)
        if not any(e[0] in 'mM' for e, _, _ in tail): self.flush(misc)
        self.stamp('p4 mfma done')
        for e, fn, js in tail:
            fn(js)
            if e[0].isupper(): self.stamp(e)
        for rt in range(4):
            for k in range(0, 4, 2):
                A(f'v_pk_fma_f32 {v(pa[7,rt]+k,2)}, {v(pa[7,rt]+k,2)}, {v(RS+(rt&2),2)}, {v(bs[rt]+k,2)} op_sel:[0,{rt&1},0] op_sel_hi:[1,{rt&1},1]')
        self.flush(pack(7))
        for k in range(2):
            c = pa[7, 2 * k]
            A(f'v_permlane16_swap_b32 {v(c)}, {v(c+2)}\nv_permlane16_swap_b32 {v(c+1)}, {v(c+3)}')
            A(f'buffer_store_dwordx4 {v(c,4)}, {v(V_OO+k)}, {s(SRD_OUT,4)}, 0 offen{self.outf}')

    def probe_end(self):
        A = self.A
        a_, b_ = self.opt['probe'].split('-')
        if b_ == 'end':
            A('s_waitcnt vmcnt(0)'); self.stamp('end')
        A(f'''
        s_waitcnt lgkmcnt(0)
        s_sub_u32 {s(S_T0)}, {s(S_TS+4)}, {s(S_TS if a_ == 'start' else S_TS+2)}
        s_min_u32 {s(S_T0)}, {s(S_T0)}, 4000
        s_lshl_b32 {s(S_T0)}, {s(S_T0)}, 2
        s_add_u32 {s(S_T0)}, {s(S_T0)}, 4000
        s_add_u32 {s(S_T0)}, {s(S_T0)}, {s(S_TS)}
        L_pspin:
        s_memrealtime {s(S_TS+6,2)}
        s_waitcnt lgkmcnt(0)
        s_sub_u32 {s(S_T1)}, {s(S_TS+6)}, {s(S_T0)}
        s_cmp_lt_i32 {s(S_T1)}, 0
        s_cbranch_scc1 L_pspin
        ''')

    def dump_ts(self):
        if self.opt.get('probe'): return self.probe_end()
        if not self.diag: return
        A = self.A
        A('s_waitcnt vmcnt(0)')
        self.stamp('end')
        A(f'''
        s_lshl_b32 {s(S_T0)}, s2, 2
        s_add_u32 {s(S_T0)}, {s(S_T0)}, {s(S_W)}
        s_lshl_b32 {s(S_T0)}, {s(S_T0)}, 7
        s_add_u32 {s(S_T0)}, {s(S_T0)}, {WS_TS}
        s_getreg_b32 {s(S_T1)}, hwreg(HW_REG_XCC_ID)
        s_waitcnt lgkmcnt(0)
        s_mov_b64 exec, 1
        ''')
        for i in range(20): A(f'v_mov_b32 {v(16+i)}, {s(S_TS+2*i) if i < len(self.names) else 0}')
        A(f'v_mov_b32 v40, {s(S_T1)}')
        A(f'v_mov_b32 v41, {s(S_FAST)}')
        for i in range(5):
            A(f'buffer_store_dwordx4 {v(16+4*i,4)}, off, {s(SRD_WS,4)}, {s(S_T0)} offset:{16*i}')
        A(f'buffer_store_dwordx2 v[40:41], off, {s(SRD_WS,4)}, {s(S_T0)} offset:80')

    def build(self):
        A = self.A
        self.p1()
        self.window()
        self.p23()
        A.on = False
        self.dump_ts()
        if self.opt.get('sched', 1):
            import sched
            A = sched.run(A.prog, self.opt.get('win', 20))
            r = A.report
            print('model:', ' | '.join(f'{r[i][0]} {r[i][1]-r[i-1][1]}' for i in range(1, len(r))))
            self.A = A
        hdr = f'''; FNet (2D DFT, factored) + LayerNorms + squared-ReLU FFN, one persistent launch.
; @launch grid=(256,1,1) block=(256,1,1) lds=163840
''' + (f'; names: {",".join(self.names)}\n' if self.diag else '') + f'''.amdgcn_target "amdgcn-amd-amdhsa--gfx950"
.text
.globl {KNAME}
{self.align()}.p2align 8
.type {KNAME},@function
{KNAME}:
'''
        ftr = f'''L_end:
    s_endpgm
.section .rodata,"a"
.p2align 6
.amdhsa_kernel {KNAME}
  .amdhsa_next_free_vgpr 512
  .amdhsa_next_free_sgpr 102
  .amdhsa_accum_offset 256
  .amdhsa_group_segment_fixed_size 0
  .amdhsa_kernarg_size 104
  .amdhsa_user_sgpr_count 2
  .amdhsa_user_sgpr_kernarg_segment_ptr 1
  .amdhsa_system_sgpr_workgroup_id_x 1
.end_amdhsa_kernel
'''
        import pads
        return hdr + '\n'.join(pads.apply(hdr, A.text().rstrip('\n').split('\n'), ftr, self.opt, S_W)) + '\n' + ftr

if __name__ == '__main__':
    out = sys.argv[1]
    opt = {}
    for x in sys.argv[2:]:
        if '=' in x:
            k, val = x.split('='); opt[k] = int(val) if val.lstrip('-').isdigit() else val.replace('_', ' ')
    g = Gen(diag='diag' in sys.argv[2:], opt=opt)
    t = g.build()
    open(out, 'w').write(t)
    print('nops inserted', g.A.nops, 'stamps', len(g.names))
```

```python
import sys
import sched
from asmlib import *

KNAME = 'sequential_preLN__spectral_fnet__dense_activation_squared_relu__prompt_kernel'
WS_Z, WS_HN, WS_R, WS_ST, WS_FL, WS_TS = 0, 2 << 20, 4 << 20, 12 << 20, 13 << 20, 14 << 20
WS_SIZE = 32 << 20
WS_P2 = 32 << 20
S_LT, S_FLA = 100, 101
WS_P = 16 << 20
FP = WS_ST
F1 = WS_FL + 0x10000
F3 = WS_FL + 0x4000
FX = WS_FL + 0x6000
FX2 = WS_FL + 0x8000
FX3 = WS_FL + 0x40000
FE = WS_FL + 0x7000
HPW = 16384
L_S = 65536
SPW = 20480
L_M = L_S + 4 * SPW
L_EXC, L_XE, L_STAT = L_M, L_M + 8192, L_M + 10240
S_W = 3
S_T0, S_T1, S_T2, S_T3 = 4, 5, 6, 7
SRD_X, SRD_W1, SRD_W2, SRD_OUT, SRD_WS, SRD_B1, SRD_B2 = 8, 12, 16, 20, 24, 28, 32
S_CNT, S_FAST = 36, 37
S_F1 = S_CNT
S_C, S_N, S_U, S_Q = 38, 39, 40, 41
S_TB1, S_ODD, S_TW, S_W2S, S_BG, S_HB0 = 42, 43, 44, 45, 46, 47
S_XO = 48
S_RR = 52
S_FIX = 56
S_AM0, S_TCH = 58, 59
S_M = 60
S_TS = 62
S_HB, S_SB = 0, 1
V_LANE, V_L15, V_G, V_L16, V_TAG = 0, 1, 2, 3, 4
V_L128 = 14
ZF, TB, Y = 16, 80, 192
V_ONES = 144
V_W1U, V_W1D = 148, 152
V_W1R = 156
V_CS = 160
V_SEL = 176
AD_ = 224
V_FXV = 180
V_BT, V_TD = 182, 183
V_FIX = 184
V_ZA = 188
V_TT = 190
V_W2A = 148
V_W2R = 152


SW = 0.4
class TAsm(Asm):
    def __init__(self):
        super().__init__(); self.nvm = 0; self.nlg = 0; self.dvm = 0; self.dlg = 0
        self.prog = []; self.on = False; self.wt = 0; self.clk = None
    def label(self, name): super().label(name); self.prog.append(('label', name))
    def raw(self, t): super().raw(t); self.prog.append(('raw', t))
    def snap(self):
        self._snap = (list(self.hist), self.nvm); self.prog.append(('snap',))
    def unsnap(self):
        self.hist, self.nvm = self._snap; self.prog.append(('unsnap',))
    def i(self, text):
        if getattr(self, 'drop', None) and self.drop(text): return
        super().i(text)
        self.prog.append(('i', text, self.on))
        c = self.hist[-1]
        self.wt += 0 if c.is_mfma else 2 if c.is_vmem else 4 if c.op == 'ds_write_b128' else 2 if c.is_trans else 1 if (c.is_ds or c.is_valu) else SW
        if self.clk: self.clk.do(c, sched.klass(c))
        if c.is_vmem: self.nvm += 1
        if c.is_ds: self.nlg += 1
    def wait(self, vm=None, lg=None):
        p = []
        if vm is not None and vm > self.dvm:
            n = min(63, self.nvm - vm); p.append(f'vmcnt({n})'); self.dvm = self.nvm - n
        if lg is not None and lg > self.dlg:
            n = min(15, self.nlg - lg); p.append(f'lgkmcnt({n})'); self.dlg = self.nlg - n
        if p: self('s_waitcnt ' + ' '.join(p))
        return 1 if p else 0

def L(txt): return [x.strip().replace(' @@ ', '\n') for x in txt.strip().split('\n') if x.strip()]

class Gen:
    def __init__(self, diag=False, opt=None):
        self.A = TAsm(); self.diag = diag; self.nts = 0; self.names = []
        self.opt = opt or {}
        self.fsh = 4
        fl = lambda k, d: (' ' + self.opt[k]).rstrip() if self.opt.get(k, 'pl') != 'pl' else ('' if k in self.opt else d)
        self.ldf = fl('ldf', ' sc1'); self.outf = fl('outf', ' nt'); self.zldf = fl('zldf', ' sc1')
        self.skip = set()
        self.nofence = set(); self.skip = set() if self.opt.get('alls') else {'x first', 'kernarg', 'pre F1'}
        if self.opt.get('fine'): self.skip = {'kernarg', 'tables', 'x first', 'gemm1 done', 'Z stores', 'F1 set', 'p2 prepoll', 'pre F1', 'Z first', 'Z landed'}

    def stamp(self, name):
        if self.opt.get('fine') == 3 and not (name.startswith('wd') or name in ('start', 'gemm1 done', 'Z stores', 'pre F1', 'F1 set', 'p2 prepoll', 'p2 polled', 'Z first', 'end')): self.skip.add(name)
        elif self.opt.get('fine') == 3: self.skip.discard(name)
        if name not in self.nofence: self.A.prog.append(('fence', name))
        elif not self.opt.get('allst'): return
        pr = self.opt.get('probe')
        if pr:
            a_, b_ = pr.split('-')
            if name == 'start': self.A(f's_memrealtime {s(S_TS, 2)}')
            ins = 's_memtime' if self.opt.get('pcyc') else 's_memrealtime'
            if name == a_ and name != 'start': self.A(f'{ins} {s(S_TS+2, 2)}')
            if name == b_: self.A(f'{ins} {s(S_TS+4, 2)}')
            return
        if self.diag and name not in self.skip:
            idx = len(self.names); self.names.append(name)
            assert idx < 19
            self.A(f'{"s_memtime" if self.opt.get("cyc") else "s_memrealtime"} {s(S_TS + 2*idx, 2)}')

    def emit(self, x):
        if callable(x): x()
        else: self.A(x)
    def weave(self, lines, bg, every):
        if isinstance(lines, str): lines = L(lines)
        for n, x in enumerate(lines):
            self.emit(x)
            if bg and (n + 1) % every == 0: self.emit(bg.pop(0))
    def flush(self, bg):
        while bg: self.emit(bg.pop(0))

    def srd(self, base, nbytes):
        self.A(f's_mov_b32 {s(base+2)}, {nbytes}\ns_mov_b32 {s(base+3)}, 0x20000')

    def poll(self, vaddr, nl, vtmp):
        A = self.A
        Lp = A.newlabel('poll'); D = A.newlabel('polld')
        on = A.on; A.on = False
        if nl < 64: A(f's_mov_b64 exec, {(1<<nl)-1}')
        A(f's_mov_b32 {s(S_CNT)}, 0x20000')
        A.label(Lp)
        A(f'buffer_load_dwordx2 {v(vtmp,2)}, {v(vaddr)}, {s(SRD_WS,4)}, 0 offen sc1')
        A(f's_sub_u32 {s(S_CNT)}, {s(S_CNT)}, 1')
        A(f's_cbranch_scc1 {D}')
        A('s_waitcnt vmcnt(0)')
        A(f'v_cmp_ne_u64 vcc, {v(vtmp,2)}, {v(V_TAG,2)}')
        A(f's_cbranch_vccnz {Lp}')
        A.label(D)
        A('s_waitcnt vmcnt(0)')
        A.dvm = A.nvm
        if nl < 64: A('s_mov_b64 exec, -1')
        A.on = on

    def setflag(self, soff, sc):
        A = self.A
        A('s_mov_b64 exec, 1')
        A(f'buffer_store_dwordx2 {v(V_TAG,2)}, off, {s(SRD_WS,4)}, {s(soff)}{sc}')
        A('s_mov_b64 exec, -1')

    def dualflag(self, soff):
        A = self.A
        if self.opt.get('nofast'): return self.setflag(soff, ' sc1')
        LS = A.newlabel('slow'); LJ = A.newlabel('dj')
        A(f's_cmp_eq_u32 {s(S_FAST)}, 0\ns_cbranch_scc1 {LS}')
        A.snap()
        self.setflag(soff, '')
        A(f's_branch {LJ}')
        A.label(LS)
        A.unsnap()
        self.setflag(soff, ' sc1')
        A.label(LJ)

    def touch(self, vd, srd, soff, lanes, fl='', va=V_L128):
        A = self.A
        if lanes < 64: A(f's_mov_b64 exec, {hex((1<<lanes)-1)}' if lanes <= 32 else f's_mov_b32 exec_hi, {hex((1<<(lanes-32))-1)}')
        A(f'buffer_load_dword {v(vd)}, {v(va)}, {s(srd,4)}, {s(soff)} offen{fl}')
        if lanes < 64: A('s_mov_b64 exec, -1')
    def w1touch(self, l0, l1):
        A = self.A
        m = ((1 << l1) - 1) & ~((1 << l0) - 1)
        A(f'''
        s_bfe_u32 {s(S_TCH)}, {s(S_TW)}, 0x20004
        s_lshl_b32 {s(S_TCH)}, {s(S_TCH)}, 6
        s_bitcmp1_b32 {s(S_TW)}, 6
        s_cselect_b32 {s(S_BG)}, 257, 32
        s_add_u32 {s(S_TCH)}, {s(S_TCH)}, {s(S_BG)}
        s_and_b32 {s(S_BG)}, {s(S_TW)}, 15
        s_lshl1_add_u32 {s(S_TCH)}, {s(S_BG)}, {s(S_TCH)}
        s_mul_i32 {s(S_TCH)}, {s(S_TCH)}, 3584
        s_mov_b32 exec_lo, {hex(m & 0xffffffff)}
        s_mov_b32 exec_hi, {hex(m >> 32)}
        buffer_load_dword {v(V_TD)}, {v(V_L128)}, {s(SRD_W1,4)}, {s(S_TCH)} offen
        s_mov_b64 exec, -1
        ''')
    def w2touch(self, k):
        A = self.A
        if k is not None:
            LS = A.newlabel('nt'); A(f's_cmp_lg_u32 {s(S_C)}, {k}\ns_cbranch_scc1 {LS}'); A.snap()
        A(f's_mul_i32 {s(S_TCH)}, {s(S_TW)}, {112*128}')
        self.touch(V_TD, SRD_W2, S_TCH, 64)
        A(f's_add_u32 {s(S_TCH)}, {s(S_TCH)}, 8192')
        self.touch(V_TD, SRD_W2, S_TCH, 48)
        if k is not None:
            A.label(LS); A.unsnap()
    def g2touch(self, m, part=None):
        A = self.A
        if m == 1:
            A(f'''
            v_mul_u32_u24 {v(V_BT)}, {3584-2048}, {v(V_G)}
            v_add_u32 {v(V_BT)}, {v(V_BT)}, {v(V_L128)}
            s_lshr_b32 {s(S_TCH)}, {s(S_Q)}, 2
            s_lshl3_add_u32 {s(S_TCH)}, {s(S_TW)}, {s(S_TCH)}
            s_mul_i32 {s(S_TCH)}, {s(S_TCH)}, 1792
            ''')
            if part == 'a': A(f's_and_b32 {s(S_BG)}, s2, 6\ns_lshl_b32 {s(S_BG)}, {s(S_BG)}, 3\ns_lshl_b64 exec, 0x3fff, {s(S_BG)}')
            else: A('s_mov_b32 exec_lo, 0x3fff3fff\ns_mov_b32 exec_hi, 0x3fff3fff')
            A(f'''
            buffer_load_dword {v(V_TD)}, {v(V_BT)}, {s(SRD_W1,4)}, {s(S_TCH)} offen
            s_mov_b64 exec, -1
            ''')
        else:
            A(f"""
            s_lshr_b32 {s(S_BG)}, {s(S_Q)}, 2
            s_lshl_b32 {s(S_BG)}, {s(S_BG)}, 7
            s_add_u32 {s(S_TCH)}, {s(S_TW)}, {s(S_BG)}
            s_mul_i32 {s(S_TCH)}, {s(S_TCH)}, 7168
            """)
            if part == 'a':
                A(f's_and_b32 {s(S_BG)}, s2, 6\ns_mul_i32 {s(S_BG)}, {s(S_BG)}, 896\ns_add_u32 {s(S_TCH)}, {s(S_TCH)}, {s(S_BG)}')
                self.touch(V_TD, SRD_W2, S_TCH, 14)
            else: self.touch(V_TD, SRD_W2, S_TCH, 56)
    def wtouch(self, vd, srd, l0, lanes):
        A = self.A
        A(f's_mul_i32 {s(S_TCH)}, {s(S_TW)}, {lanes*128}\ns_add_u32 {s(S_TCH)}, {s(S_TCH)}, {l0*128*128}')
        self.touch(vd, srd, S_TCH, lanes)

    def w1_setup(self):
        return L(f'''
        s_mul_i32 {s(S_T0)}, {s(S_Q)}, 448
        s_lshr_b32 {s(S_T1)}, {s(S_W)}, 1
        s_mul_i32 {s(S_T1)}, {s(S_T1)}, 224
        s_mul_i32 {s(S_T2)}, {s(S_ODD)}, 96
        s_add_u32 {s(S_T0)}, {s(S_T0)}, {s(S_T1)}
        s_add_u32 {s(S_T0)}, {s(S_T0)}, {s(S_T2)}
        v_lshlrev_b32 v6, 1, {v(V_G)}
        v_xor_b32 v6, v6, {v(V_LANE)}
        v_and_b32 v6, 7, v6
        v_lshl_add_u32 v6, v6, 4, {s(S_T0)}
        v_lshrrev_b32 v7, 5, {v(V_LANE)}
        v_bfe_u32 v8, {v(V_LANE)}, 3, 2
        v_lshl_add_u32 v7, v7, 3, v8
        v_sub_u32 v8, 11, v7
        s_movk_i32 {s(S_T3)}, 3584
        v_mad_u32_u24 {v(V_W1U)}, v7, {s(S_T3)}, v6
        v_mad_u32_u24 {v(V_W1D+3)}, v8, {s(S_T3)}, v6
        v_add_u32 {v(V_W1U+1)}, {16*3584-1024}, {v(V_W1U)}
        v_add_u32 {v(V_W1U+2)}, {4*3584-2048}, {v(V_W1U)}
        v_add_u32 {v(V_W1U+3)}, {20*3584-3072}, {v(V_W1U)}
        v_add_u32 {v(V_W1D)}, {20*3584+3072}, {v(V_W1D+3)}
        v_add_u32 {v(V_W1D+1)}, {4*3584+2048}, {v(V_W1D+3)}
        v_add_u32 {v(V_W1D+2)}, {16*3584+1024}, {v(V_W1D+3)}
        v_lshrrev_b32 v6, 2, {v(V_LANE)}
        v_lshlrev_b32 v6, 7, v6
        v_and_b32 v7, 3, {v(V_LANE)}
        v_lshl_add_u32 v6, v7, 3, v6
        v_add_u32 v6, {s(S_SB)}, v6
        v_bfe_u32 v7, {v(V_LANE)}, 3, 2
        ''') + sum([L(f'''
        s_add_u32 {s(S_T0)}, {s(S_ODD)}, {t}
        s_and_b32 {s(S_T0)}, {s(S_T0)}, 3
        v_xor_b32 v8, {s(S_T0)}, v7
        v_lshl_add_u32 {v(V_W1R+t)}, v8, 5, v6
        ''') for t in range(4)], [])
    def w1_dma(self, b, slot):
        A = self.A; q1, ip, var = b >> 3, (b >> 1) & 3, b & 1; n = 2 * var + q1
        ops = []
        for i in range(4):
            def f(i=i):
                if i == 0:
                    A(f's_xor_b32 {s(S_BG)}, {s(S_C)}, {ip}')
                    A(f's_mul_i32 {s(S_BG)}, {s(S_BG)}, {64*3584}')
                    if var == 0:
                        if q1: A(f's_add_u32 {s(S_BG)}, {s(S_BG)}, {32*3584}')
                    else: A(f's_sub_u32 {s(S_BG)}, {(512-31-32*q1)*3584 - 3072}, {s(S_BG)}')
                    A(f's_add_u32 m0, {s(S_SB)}, {slot*4096}')
                if n == 2 and i == 0:
                    A(f'''
                    v_add_u32 {v(V_BT)}, {s(S_BG)}, {v(V_W1D)}
                    s_cmp_eq_u32 {s(S_C)}, {ip}
                    s_cselect_b64 exec, 0xff, 0
                    v_subrev_u32 {v(V_BT)}, {256*3584}, {v(V_BT)}
                    s_mov_b64 exec, -1
                    buffer_load_dwordx4 {v(V_BT)}, {s(SRD_W1,4)}, 0 offen lds
                    ''')
                else:
                    A(f'buffer_load_dwordx4 {v((V_W1D if var else V_W1U)+i)}, {s(SRD_W1,4)}, {s(S_BG)} offen offset:{i*1024} lds')
                if i == 3: self.w1m[b] = A.nvm
            ops.append(f)
        return ops
    def w1_tr(self, b, slot):
        A = self.A; ops = []
        for t in range(4):
            for hh in range(2):
                def f(t=t, hh=hh):
                    A.wait(vm=self.w1m[b])
                    A(f'ds_read_b64_tr_b16 {a(16*b+4*t+2*hh,2)}, {v(V_W1R+t)} offset:{slot*4096+hh*2048}')
                    self.w1l[b] = A.nlg
                ops.append(f)
        return ops
    def w1_cs(self, b):
        A = self.A; ops = []
        for t in range(4):
            def f(t=t):
                A.wait(lg=self.w1l[b])
                c = v(V_CS + 4 * t, 4)
                A(f'v_mfma_f32_16x16x32_bf16 {c}, {v(V_ONES,4)}, {a(16*b+4*t,4)}, {c if self.csn[t] else "0"}')
                self.csn[t] += 1
            ops.append(f)
        return ops
    def w1_pipeline(self):
        order = self.w1order; NS = 5
        seq = []
        for k in range(NS): seq.append(('dma', k))
        for k in range(16):
            seq.append(('tr', k))
            if k >= 1:
                seq.append(('cs', k - 1))
                if k - 1 + NS < 16: seq.append(('dma', k - 1 + NS))
        seq.append(('cs', 15))
        out = []
        for kind, k in seq:
            b = order[k]
            if kind == 'dma': ops = self.w1_dma(b, k % NS)
            elif kind == 'tr': ops = self.w1_tr(b, k % NS)
            else: ops = self.w1_cs(b)
            out.append((kind, k, ops))
        return out

    def w2_setup(self):
        return L(f"""
        v_lshlrev_b32 {v(V_W2A)}, 1, {v(V_G)}
        v_xor_b32 {v(V_W2A)}, {v(V_W2A)}, {v(V_LANE)}
        v_and_b32 {v(V_W2A)}, 7, {v(V_W2A)}
        v_lshrrev_b32 {v(V_W2A+1)}, 3, {v(V_LANE)}
        v_lshlrev_b32 {v(V_W2A+1)}, 10, {v(V_W2A+1)}
        v_lshl_add_u32 {v(V_W2A)}, {v(V_W2A)}, 4, {v(V_W2A+1)}
        s_mul_i32 {s(S_W2S)}, {s(S_W)}, {7*8192} @@ s_add_u32 {s(S_W2S)}, {s(S_W2S)}, 8192 @@ s_and_b32 {s(S_W2S)}, {s(S_W2S)}, {hex(0xffffc000)}
        s_lshl_b32 {s(S_BG)}, {s(S_Q)}, 7 @@ s_add_u32 {s(S_W2S)}, {s(S_W2S)}, {s(S_BG)}
        v_add_u32 {v(V_W2A+1)}, {8192-1024}, {v(V_W2A)}
        """)
    def w2_setup_r(self):
        return L(f"""
        s_and_b32 {s(S_TCH)}, {s(S_W)}, 2 @@ s_lshl_b32 {s(S_TCH)}, {s(S_TCH)}, 5 @@ v_xor_b32 {v(V_W2R+3)}, {s(S_TCH)}, {v(V_W1R)}
        v_xor_b32 {v(V_W2R)}, 96, {v(V_W2R+3)}
        v_xor_b32 {v(V_W2R+1)}, 64, {v(V_W2R+3)}
        v_xor_b32 {v(V_W2R+2)}, 32, {v(V_W2R+3)}
        """)
    def w2_dma(self, b, slot):
        A = self.A; h, ks = self.items[b]; ops = []
        def base(x, c):
            if ks == 6:
                A(f's_lshl1_add_u32 {s(S_BG)}, {s(S_ODD)}, {x}')
                A(f's_xor_b32 {s(S_BG)}, {s(S_BG)}, {s(S_Q)}')
            elif x: A(f's_xor_b32 {s(S_BG)}, {s(S_Q)}, {x}')
            A(f's_mul_i32 {s(S_BG)}, {s(S_BG if x or ks == 6 else S_Q)}, {224*1024}')
            A(f's_add_u32 {s(S_BG)}, {s(S_BG)}, {s(S_W2S)}')
            if ks == 6:
                A(f's_lshl_b32 {s(S_RR+3)}, {s(S_ODD)}, 16')
                A(f's_sub_u32 {s(S_BG)}, {s(S_BG)}, {s(S_RR+3)}')
            if c: A(f's_add_u32 {s(S_BG)}, {s(S_BG)}, {c}')
            if h == 0: A(f's_xor_b32 {s(S_BG)}, {s(S_BG)}, 512')
        for i in range(4):
            def f(i=i):
                if i == 0:
                    base(*((ks, 0) if ks < 4 else (2 * (ks - 4), 32768) if ks < 6 else (0, 49152)))
                    A(f's_add_u32 m0, {s(S_SB)}, {slot*4096}')
                if i == 2:
                    if ks < 4: A(f's_add_u32 {s(S_BG)}, {s(S_BG)}, {16384 - 2048}')
                    else: base(*((2 * (ks - 4) + 1, 32768 - 2048) if ks < 6 else (1, 49152 - 2048)))
                A(f'buffer_load_dwordx4 {v(V_W2A+(i&1))}, {s(SRD_W2,4)}, {s(S_BG)} offen offset:{i*1024} lds')
                if i == 3: self.w2m[b] = A.nvm
            ops.append(f)
        return ops
    def w2_tr(self, b, slot):
        A = self.A; ops = []
        for t in range(4):
            for hh in range(2):
                def f(t=t, hh=hh):
                    assert self.blk > b, 'w2 fragment would overwrite live w1'
                    A.wait(vm=self.w2m[b])
                    A(f'ds_read_b64_tr_b16 {a(16*b+4*t+2*hh,2)}, {v(V_W2R+t)} offset:{slot*4096+hh*2048}')
                    self.trl[16 + b] = A.nlg
                ops.append(f)
        return ops
    def smalltouch(self, T):
        self.A(f's_mul_i32 {s(T)}, {s(S_Q)}, 448\ns_lshl_b32 {s(T+1)}, {s(S_W)}, 8')
        self.touch(V_TD, SRD_B1, T, 5); self.touch(V_TD, SRD_B2, T + 1, 2)
        self.touch(191, SRD_WS, S_FLA, 1, ' sc1')
        if self.opt.get('tll'):
            self.A(f's_add_u32 {s(T)}, {s(S_RR)}, 8192')
            self.touch(191, SRD_WS, T, 24, ' sc1')
    def ptouch(self, js=(0, 1, 2), T=S_RR + 2):
        A = self.A
        n = self.opt.get('npl', 3); tf = ' ' + self.opt.get('tf', 'sc1')
        A(f's_lshl3_add_u32 {s(T)}, {s(S_U)}, {s(S_Q)}')
        A(f"""
        s_lshl_b32 {s(T)}, {s(T)}, 5
        s_add_u32 {s(T)}, {s(T)}, {s(S_W)}
        s_lshl2_add_u32 {s(T)}, {s(S_Q) if self.opt.get('lay') else 0}, {s(T)}
        s_lshl_b32 {s(T)}, {s(T)}, 11
        s_add_u32 {s(T)}, {s(T)}, {WS_P + 8192}
        """)
        if 0 in js:
            A(f's_sub_u32 {s(T+1)}, {s(T)}, {8192 - 128}')
            self.touch(191, SRD_WS, T + 1, 11 if self.opt.get('zc') else 7, ' sc1')
        if 3 in js:
            A(f"""
            s_sub_u32 {s(T+1)}, {s(T)}, 8192
            v_mul_u32_u24 v191, {65536+128}, {v(V_LANE)}
            v_xor_b32 v191, {s(T+1)}, v191
            s_mov_b64 exec, 0xfe
            buffer_load_dword v191, v191, {s(SRD_WS,4)}, 0 offen sc1
            s_mov_b64 exec, -1
            """)
        if 4 in js:
            A(f's_add_u32 {s(T+1)}, {s(T)}, 16384')
            self.touch(191, SRD_WS, T + 1, 16, tf)
        if 1 not in js and 2 not in js: return
        A(f"""
        v_mul_u32_u24 {v(V_W2A+2)}, {8192-2048}, {v(V_G)}
        v_add_u32 {v(V_W2A+2)}, {v(V_W2A+2)}, {v(V_L128)}
        """)
        if 1 in js: self.touch(191, SRD_WS, T, min(64, 16 * n), tf, va=V_W2A + 2)
        if n > 4 and 2 in js:
            A(f's_add_u32 {s(T)}, {s(T)}, 32768')
            self.touch(191, SRD_WS, T, 16 * (n - 4), tf, va=V_W2A + 2)

    def fxst(self, T, V):
        A = self.A; LS = A.newlabel('nfx')
        if self.opt.get('fxp') >= 3:
            return A(f'''
        s_getreg_b32 {s(T)}, hwreg(HW_REG_XCC_ID)
        s_and_b32 {s(T)}, {s(T)}, 15
        v_add_u32 {v(V)}, {s(T)}, {v(V_TAG)}
        v_mov_b32 {v(V+1)}, {v(V_TAG+1)}
        s_lshl2_add_u32 {s(T)}, {s(S_U)}, {s(S_W)}
        s_lshl3_add_u32 {s(T)}, {s(T)}, {s(S_Q)}
        s_lshl_b32 {s(T)}, {s(T)}, 7
        s_add_u32 {s(T)}, {s(T)}, {FX3}
        s_mov_b64 exec, 1
        buffer_store_dwordx2 {v(V,2)}, off, {s(SRD_WS,4)}, {s(T)} sc1
        s_mov_b64 exec, -1
        ''')
        A(f's_cmp_lg_u32 {s(S_W)}, {self.opt.get("fxw", 0)}\ns_cbranch_scc1 {LS}')
        A.snap()
        A(f'''
        s_getreg_b32 {s(T)}, hwreg(HW_REG_XCC_ID)
        s_and_b32 {s(T)}, {s(T)}, 15
        v_add_u32 {v(V)}, {s(T)}, {v(V_TAG)}
        v_mov_b32 {v(V+1)}, {v(V_TAG+1)}
        s_lshl3_add_u32 {s(T)}, {s(S_U)}, {s(S_Q)}
        s_lshl_b32 {s(T)}, {s(T)}, 7
        s_add_u32 {s(T)}, {s(T)}, {FX2}
        s_mov_b64 exec, 1
        buffer_store_dwordx2 {v(V,2)}, off, {s(SRD_WS,4)}, {s(T)} sc1
        s_mov_b64 exec, -1
        ''')
        A.label(LS); A.unsnap()
    def align(self):
        if 'pg' not in self.opt: return ''
        return '.p2align 12\n' + (f".fill {self.opt['pg']//4}, 4, 0xbf810000\n" if self.opt['pg'] else '')
    def site(self, X):
        if 'pad' + X in self.opt: self.A.raw(f';SITE {X}')
    def cpf(self):
        self.A(f'''
        s_getpc_b64 {s(S_M,2)}
        L_pc0:
        s_lshr_b32 {s(S_FAST)}, s2, 3
        s_lshl2_add_u32 {s(S_FAST)}, {s(S_FAST)}, {s(S_W)}
        s_lshl_b32 {s(S_FAST)}, {s(S_FAST)}, 8
        s_min_u32 {s(S_FAST)}, {s(S_FAST)}, L_end-L_pc0-192
        ''')
        for k in range(4): self.A(f's_load_dword {s(S_CNT)}, {s(S_M,2)}, {s(S_FAST)} offset:{64*k}')

    def p1(self):
        A = self.A; o = self.opt
        X, R1, SUM, SQ, FS, ACC = 16, 160, 168, 172, 192, 224
        V_SGN, V_FAC, V_ZO, V_EW, V_XD, V_XR, V_ER = 176, 177, 178, 179, 184, 186, 191
        A(f'''
        s_cmp_ge_u32 s2, 256
        s_cbranch_scc1 L_end
        s_load_dwordx2 {s(SRD_X,2)}, s[0:1], 0
        s_load_dwordx2 {s(SRD_WS,2)}, s[0:1], 96
        s_load_dwordx2 {s(SRD_W1,2)}, s[0:1], 48
        s_load_dwordx2 {s(SRD_W2,2)}, s[0:1], 64
        s_load_dwordx2 {s(SRD_B1,2)}, s[0:1], 56
        s_load_dwordx2 {s(SRD_B2,2)}, s[0:1], 72
        s_load_dwordx2 {s(SRD_OUT,2)}, s[0:1], 80
        ''')
        self.stamp('start')
        if self.opt.get('cpf', 0) == 3:
            A(f'''
            s_getpc_b64 {s(S_M,2)}
            L_pc0:
            s_lshr_b32 {s(S_T0)}, s2, 3
            s_lshl_b32 {s(S_T0)}, {s(S_T0)}, 10
            v_lshl_add_u32 v7, v0, 2, {s(S_T0)}
            v_min_u32 v7, L_end-L_pc0, v7
            global_load_dword {v(V_TD)}, v7, {s(S_M,2)}
            ''')
        A(f'''
        v_lshrrev_b32 v6, 6, v0
        v_and_b32 {v(V_LANE)}, 63, v0
        v_readfirstlane_b32 {s(S_W)}, v6
        ''')
        if self.opt.get('cpf', 0) == 1: self.cpf()
        A(f'''
        v_and_b32 {v(V_L15)}, 15, {v(V_LANE)}
        v_lshrrev_b32 {v(V_G)}, 4, {v(V_LANE)}
        v_lshlrev_b32 {v(V_L16)}, 4, {v(V_LANE)}
        v_lshlrev_b32 {v(V_L128)}, 7, {v(V_LANE)}
        s_lshr_b32 {s(S_N)}, s2, 3
        ''')
        if o.get('g2') == 2: A(f'''
        s_and_b32 {s(S_T1)}, s2, 1
        s_and_b32 {s(S_Q)}, {s(S_N)}, 3
        s_lshl2_add_u32 {s(S_Q)}, {s(S_T1)}, {s(S_Q)}
        s_and_b32 {s(S_T1)}, s2, 6
        s_lshr_b32 {s(S_C)}, {s(S_N)}, 3
        s_lshl1_add_u32 {s(S_U)}, {s(S_T1)}, {s(S_C)}
        s_sub_u32 {s(S_T1)}, 32, {s(S_U)}
        s_cmp_eq_u32 {s(S_U)}, 0
        s_cselect_b32 {s(S_T1)}, 16, {s(S_T1)}
        s_bitcmp1_b32 {s(S_N)}, 2
        s_cselect_b32 {s(S_U)}, {s(S_T1)}, {s(S_U)}
        ''')
        elif o.get('g2'): A(f'''
        s_and_b32 {s(S_T1)}, s2, 1
        s_and_b32 {s(S_Q)}, {s(S_N)}, 3
        s_lshl2_add_u32 {s(S_Q)}, {s(S_T1)}, {s(S_Q)}
        s_and_b32 {s(S_T1)}, s2, 6
        s_lshr_b32 {s(S_U)}, {s(S_N)}, 2
        s_and_b32 {s(S_C)}, {s(S_U)}, 3
        s_lshl2_add_u32 {s(S_U)}, {s(S_T1)}, {s(S_U)}
        ''')
        else: A(f'''
        s_and_b32 {s(S_T1)}, s2, 7
        s_and_b32 {s(S_Q)}, {s(S_N)}, 7
        s_lshr_b32 {s(S_C)}, {s(S_N)}, 3
        s_lshl2_add_u32 {s(S_U)}, {s(S_T1)}, {s(S_C)}
        ''')
        A(f'''
        s_lshl_b32 {s(S_HB0)}, {s(S_W)}, 14
        s_and_b32 {s(S_ODD)}, {s(S_W)}, 1
        s_lshl2_add_u32 {s(S_TW)}, {s(S_N)}, {s(S_W)}
        s_lshl_b32 {s(S_T0)}, {s(S_Q)}, 7
        s_and_b32 {s(S_T1)}, {s(S_T0)}, 0x200
        ''')
        for i in range(4):
            A(f's_add_u32 {s(S_T2)}, {s(S_T0)}, {128*i}\ns_and_b32 {s(S_T2)}, {s(S_T2)}, 0x180\ns_or_b32 {s(S_XO+i)}, {s(S_T2)}, {s(S_T1)}')
        self.srd(SRD_X, 2097152); self.srd(SRD_WS, WS_SIZE); self.srd(SRD_W2, 1835008); self.srd(SRD_W1, 1835008)
        self.srd(SRD_B1, 3584); self.srd(SRD_B2, 1024); self.srd(SRD_OUT, 2097152)
        A(f'''
        s_and_b32 {s(S_T0)}, {s(S_W)}, 2
        s_lshl4_add_u32 {s(S_T0)}, {s(S_T0)}, {s(S_ODD)}
        s_lshl_b32 {s(S_T0)}, {s(S_T0)}, 5
        s_add_u32 {s(S_T0)}, {s(S_T0)}, {s(S_U)}
        s_lshl_b32 {s(S_T0)}, {s(S_T0)}, 10
        v_lshrrev_b32 v12, 3, {v(V_LANE)}
        v_and_b32 v13, 7, {v(V_LANE)}
        v_xor_b32 v13, v13, {v(V_G)}
        v_lshlrev_b32 v13, 4, v13
        v_lshl_add_u32 v6, v12, 16, v13
        v_add_u32 {v(V_XD)}, {s(S_T0)}, v6
        v_xor_b32 v6, 64, {v(V_XD)}
        v_add_u32 {v(V_XD+1)}, {8*65536 - 1024}, v6
        ''')
        A(f'''
        s_lshl_b32 {s(S_T0)}, {s(S_Q)}, 5
        v_lshrrev_b32 v6, 2, {v(V_L15)}
        v_and_b32 v7, 3, {v(V_L15)}
        v_lshl_add_u32 v6, v6, 3, v7
        v_add_u32 v6, {s(S_T0)}, v6
        v_add_u32 v7, 4, v6
        v_cmp_eq_u32 vcc, 0, v6
        v_mov_b32 v8, 0x100
        v_cndmask_b32 v6, v6, v8, vcc
        v_cvt_f32_u32 v6, v6
        v_cvt_f32_u32 v7, v7
        v_mul_f32 v6, {f2u(1/512)}, v6
        v_mul_f32 v7, {f2u(1/512)}, v7
        s_add_u32 {s(S_T0)}, {s(S_W)}, {s(S_Q)}
        s_and_b32 {s(S_T0)}, {s(S_T0)}, 3
        s_lshl_b32 {s(S_T0)}, {s(S_T0)}, 6
        v_lshl_add_u32 v8, {v(V_G)}, 3, {s(S_T0)}
        v_cvt_f32_u32 v8, v8
        v_add_f32 v9, {f2u(32.0)}, v8
        s_mul_i32 {s(S_T0)}, {s(S_W)}, {SPW}
        s_add_u32 {s(S_T0)}, {s(S_T0)}, {L_S}
        v_add_u32 v10, {s(S_T0)}, {v(V_L16)}
        ''')
        def tab(kk, et):
            b = X + 32 * et
            A(f'v_mul_f32 {v(b)}, {v(6+et)}, {v(8+kk)}')
            A(f'v_add_f32 {v(b+1)}, {v(b)}, {v(6+et)}')
            if kk == 0: A(f'v_cos_f32 {v(b+2)}, {v(6+et)}')
            for j in range(2):
                A(f'v_cos_f32 {v(b+8+j)}, {v(b+j)}')
                A(f'v_sin_f32 {v(b+16+j)}, {v(b+j)}')
            if kk == 0: A(f'v_add_f32 {v(b+2)}, {v(b+2)}, {v(b+2)}')
            for j in range(2, 8):
                A(f'v_fma_f32 {v(b+8+j)}, {v(b+2)}, {v(b+7+j)}, -{v(b+6+j)}')
                A(f'v_fma_f32 {v(b+16+j)}, {v(b+2)}, {v(b+15+j)}, -{v(b+14+j)}')
            for j in range(4):
                A(f'v_cvt_pk_bf16_f32 {v(b+24+j)}, {v(b+8+2*j)}, {v(b+9+2*j)}')
            for j in range(4):
                A(f'v_cvt_pk_bf16_f32 {v(b+28+j)}, {v(b+16+2*j)}, {v(b+17+2*j)}')
            A(f'ds_write_b128 v10, {v(b+24,4)} offset:{(kk*4+et*2)*1024}')
            A(f'ds_write_b128 v10, {v(b+28,4)} offset:{(kk*4+et*2+1)*1024}')
        npre = o.get('tabpre', 1)
        tabs = [(0, 0), (0, 1), (1, 0), (1, 1)]
        for t in tabs[:npre]: tab(*t)
        A(f's_mov_b32 {s(S_T2)}, {FE}')
        self.site('K')
        A('s_waitcnt lgkmcnt(0)')
        self.stamp('kernarg')
        A.on = bool(o.get('s1', 1))
        xm = []
        def xdma(i):
            A(f's_add_u32 m0, {s(S_HB0)}, {i*2048}')
            so = S_XO + (i >> 1)
            if i & 1:
                A(f's_xor_b32 {s(S_BG)}, {s(so)}, 0x200'); so = S_BG
            A(f'buffer_load_dwordx4 {v(V_XD)}, {s(SRD_X,4)}, {s(so)} offen lds')
            A(f'buffer_load_dwordx4 {v(V_XD+1)}, {s(SRD_X,4)}, {s(so)} offen offset:1024 lds')
            xm.append(A.nvm)
        NX0 = o.get('nx0', 5)
        if o.get('tl1') == 1: A(f'buffer_load_dword {v(V_BT)}, off, {s(SRD_W1,4)}, 0')
        xdma(0)
        if o.get('tl1') == 2: A(f's_buffer_load_dword {s(S_AM0)}, {s(SRD_W1,4)}, 0\ns_buffer_load_dword {s(S_AM0)}, {s(SRD_W1,4)}, 0xffffc\ns_buffer_load_dword {s(S_AM0)}, {s(SRD_W2,4)}, 0\ns_buffer_load_dword {s(S_AM0)}, {s(SRD_W2,4)}, 0xffffc')
        A(f'buffer_load_dwordx2 {v(V_TAG,2)}, off, {s(SRD_WS,4)}, {s(S_T2)} sc1')
        for i in range(1, NX0):
            if o.get('t1e') == i: self.g2touch(1)
            if o.get('t1a') == i: self.g2touch(1, 'a')
            xdma(i)
        if o.get('t1e') == NX0: self.g2touch(1)
        if o.get('t1a') == NX0: self.g2touch(1, 'a')
        T0 = o.get('t0', 0)
        if T0: self.wtouch(V_TD, SRD_W1, 0, T0)
        A.on = False
        if o.get('cpf') == 2: self.cpf()
        if o.get('txr', 0) or o.get('tsc', 0): A(f'''
        s_and_b32 {s(S_T0)}, {s(S_TW)}, 31
        s_lshl_b32 {s(S_T1)}, {s(S_T0)}, 6
        s_sub_u32 {s(S_T1)}, {s(S_T1)}, {s(S_U)}
        s_add_u32 {s(S_T1)}, {s(S_T1)}, 64
        s_and_b32 {s(S_T1)}, {s(S_T1)}, 2047
        s_lshl_b32 {s(S_T1)}, {s(S_T1)}, 10
        ''')
        if o.get('txr', 0):
            for k in range(8): A(f's_buffer_load_dword {s(S_AM0)}, {s(SRD_X,4)}, {s(S_T1)} offset:{128*k}')
        if o.get('tsc', 0): A(f'''
        s_min_u32 {s(S_T1)}, {s(S_T0)}, 27
        s_lshl_b32 {s(S_T1)}, {s(S_T1)}, 7
        s_buffer_load_dword {s(S_AM0)}, {s(SRD_B1,4)}, {s(S_T1)}
        s_and_b32 {s(S_T1)}, {s(S_T0)}, 7
        s_lshl_b32 {s(S_T1)}, {s(S_T1)}, 7
        s_buffer_load_dword {s(S_AM0)}, {s(SRD_B2,4)}, {s(S_T1)}
        ''')
        A.on = bool(o.get('s1', 1))
        if o.get('tlb'):
            LT = [A.newlabel('tl') for _ in range(4)]
            sh = o.get('tlb')
            A(f's_lshl_b32 {s(S_T0)}, {s(S_N)}, 10')
            for k, (srd, st_, base) in enumerate(((SRD_W1, 28672, 0), (SRD_W2, 28672, 0), (SRD_WS, 32768, WS_Z), (SRD_WS, 114688, WS_R))):
                A(f's_cmp_lg_u32 {s(S_W)}, {k}\ns_cbranch_scc1 {LT[k]}')
                A.snap()
                A(f'v_mul_u32_u24 {v(V_BT)}, {st_}, {v(V_LANE)}')
                if base: A(f's_add_u32 {s(S_T0)}, {s(S_T0)}, {base}')
                A(f'buffer_load_dword {v(V_TD)}, {v(V_BT)}, {s(srd,4)}, {s(S_T0)} offen')
                A.label(LT[k]); A.unsnap()
        A(f'''
        s_mov_b32 {s(S_HB)}, {s(S_HB0)}
        s_mul_i32 {s(S_SB)}, {s(S_W)}, {SPW}
        s_add_u32 {s(S_SB)}, {s(S_SB)}, {L_S}
        s_add_u32 {s(S_TB1)}, {s(S_U)}, 1024
        s_cmp_eq_u32 {s(S_U)}, 0
        s_cselect_b32 {s(S_TB1)}, 32, {s(S_TB1)}
        ''')
        self.w1m = {}; self.w1l = {}; self.csn = [0] * 4; self.w2m = {}
        self.w1order = list(range(16))
        if o.get('ord'): self.w1order = [0, 1, 8, 9] + list(range(2, 8)) + list(range(10, 16))
        self.pipe = self.w1_pipeline()
        for k, t in enumerate(tabs[npre:]):
            tab(*t)
            if o.get('t1e') == 10 + k: self.g2touch(1)
            if o.get('t1a') == 10 + k: self.g2touch(1, 'a')
        b = TB
        t2 = L(f'''
        s_mov_b32 {s(S_T2)}, 0xffff
        s_cmp_ge_u32 {s(S_W)}, 2 @@ s_cselect_b32 {s(S_T0)}, {s(S_TB1)}, {s(S_U)} @@ s_cselect_b32 {s(S_T1)}, 0, {f2u(0.25)} @@ s_cselect_b32 {s(S_T2)}, 0xffff0000, {s(S_T2)}
        s_cmp_eq_u32 {s(S_U)}, 0 @@ s_cselect_b32 {s(S_T1)}, {s(S_T1)}, {f2u(0.25)} @@ s_cselect_b32 {s(S_T2)}, {s(S_T2)}, -1
        v_lshl_add_u32 v11, {v(V_L15)}, 6, {s(S_T0)}
        v_cmp_eq_u32 vcc, 0, v11
        v_cvt_f32_u32 v11, v11
        v_mul_f32 v11, {f2u(1/2048)}, v11
        v_lshlrev_b32 v6, 15, {v(V_G)}
        v_and_b32 v6, 0x8000, v6
        v_cndmask_b32 v7, 0, v6, vcc
        s_lshl1_add_u32 {s(S_T0)}, {s(S_ODD)}, {s(S_Q)}
        s_lshl_b32 {s(S_T0)}, {s(S_T0)}, 3
        v_add_u32 v8, {s(S_T0)}, {v(V_G)}
        ''')
        for j in range(4):
            t2 += [f'v_add_u32 v6, {4*j}, v8', 'v_and_b32 v6, 31, v6', 'v_cvt_f32_u32 v6, v6',
                   f'v_mul_f32 {v(b+2*j)}, v6, v11', f'v_add_f32 {v(b+2*j+1)}, {s(S_T1)}, {v(b+2*j)}']
        for j in range(8):
            t2 += [f'v_cos_f32 {v(b+8+j)}, {v(b+j)}', f'v_sin_f32 {v(b+16+j)}, {v(b+j)}']
        for j in range(4):
            d = b + 24 + 8 * (j >> 1) + 2 * (j & 1)
            t2 += [f'v_cvt_pk_bf16_f32 {v(d)}, {v(b+8+2*j)}, {v(b+9+2*j)}',
                   f'v_cvt_pk_bf16_f32 {v(d+5)}, {v(b+16+2*j)}, {v(b+17+2*j)}',
                   f'v_and_b32 {v(d)}, {s(S_T2)}, {v(d)}', f'v_and_b32 {v(d+5)}, {s(S_T2)}, {v(d+5)}',
                   f'v_xor_b32 {v(d+4)}, v7, {v(d)}', f'v_xor_b32 {v(d+1)}, 0x80008000, {v(d+5)}']
        for k in range(2):
            for var in range(2):
                t2.append(f'ds_write_b128 v10, {v(b+24+8*k+4*var,4)} offset:{8192+k*2048+var*1024}')
        self.flush(t2)
        XRP = o.get('xrp', 0)
        VM = 16 if XRP >= 2 else 148
        vmset = (f'''
        v_sub_u32 v7, 15, v12
        v_lshl_add_u32 {v(VM)}, v7, 16, v13
        v_xor_b32 {v(VM+1)}, {8*65536+64}, {v(VM)}
        s_sub_u32 {s(S_RR)}, 1088, {s(S_U)}
        s_lshl_b32 {s(S_RR)}, {s(S_RR)}, 10
        s_sub_u32 {s(S_RR+1)}, 1088, {s(S_TB1)}
        s_lshl_b32 {s(S_RR+1)}, {s(S_RR+1)}, 10
        s_lshl_b32 {s(S_RR+2)}, {s(S_W)}, 7
        s_sub_u32 {s(S_RR+3)}, 896, {s(S_RR+2)}
        v_add_u32 v6, {s(S_RR)}, {v(VM)}
        v_lshrrev_b32 v7, 1, v6
        v_and_b32 v7, {1<<20}, v7
        v_sub_u32 {v(VM+2)}, v6, v7
        v_and_b32 {v(VM+3)}, {(1<<21)-1}, v6
        ''')
        if XRP < 2: A(vmset)
        A(f'''
        v_mov_b32 v6, {s(S_U)}
        v_mov_b32 v7, {s(S_TB1)}
        v_and_b32 v8, 1, {v(V_G)}
        v_cmp_eq_u32 vcc, 1, v8
        v_add_u32 v10, {L_S}, {v(V_L16)}
        v_add_u32 v11, {L_S+2*SPW}, {v(V_L16)}
        v_cndmask_b32 v6, v6, v7, vcc
        v_lshl_add_u32 {v(V_TT)}, {v(V_L15)}, 6, v6
        v_lshrrev_b32 v6, 1, {v(V_L15)}
        v_xor_b32 v6, v6, {v(V_G)}
        v_lshlrev_b32 v6, 4, v6
        v_lshl_add_u32 v15, {v(V_L15)}, 7, v6
        v_add_u32 {v(V_XR)}, {s(S_HB)}, v15
        v_xor_b32 {v(V_XR+1)}, 64, {v(V_XR)}
        ''')
        for i in range(4): A(f'v_mov_b32 {v(V_ONES+i)}, 0x3f803f80')
        xr = []
        for m in (1, 0):
            for side in range(2):
                for hh in (1, 0):
                    def f(m=m, side=side, hh=hh):
                        A(f's_add_u32 m0, {s(S_SB)}, {12288+m*4096+side*2048+hh*1024}')
                        if hh == 0 and m == 0: A(f'buffer_load_dwordx4 {v(VM+2+side)}, {s(SRD_X,4)}, {s(S_RR+2+side)} offen lds')
                        else:
                            if hh == 1: A(f's_add_u32 {s(S_BG)}, {s(S_RR+m)}, {s(S_RR+2+side)}')
                            A(f'buffer_load_dwordx4 {v(VM+hh)}, {s(SRD_X,4)}, {s(S_BG)} offen lds')
                        self.xrm = A.nvm
                    xr.append(f)
        A.wait(lg=A.nlg)
        A('s_barrier')
        tl = {}
        def tabrd(f):
            A(f'ds_read_b128 {a(4*f,4)}, {v(10+(f>>4))} offset:{((f>>3)&1)*SPW+(f&7)*1024}')
            tl[f] = A.nlg
        for f in range(8): tabrd(f)
        self.stamp('tables')
        NX1 = min(8, NX0 + o.get('nx1', 3))
        for i in range(NX0, NX1): xdma(i)
        b = FS
        fild = [(lambda f=f: tabrd(f)) for f in range(8, 32)]
        fild += L(f'''
        s_lshl_b32 {s(S_W2S)}, {s(S_ODD)}, 10 @@ s_add_u32 {s(S_W2S)}, {s(S_W2S)}, {L_S+8192} @@ v_add_u32 v10, {s(S_W2S)}, {v(V_L16)}
        v_xor_b32 v11, 1024, v10
        ''')
        fill = []
        for f in range(16): fild.append(f'ds_read_b128 {v(TB+4*f,4)}, {v(10+(f&1))} offset:{(2*((f>>1)&1)+(f>>3))*SPW+((f>>2)&1)*2048}')
        fill += L(f'''
        s_lshl_b32 {s(S_T0)}, {s(S_W)}, 3
        v_lshrrev_b32 v6, 1, {v(V_L15)}
        v_add_u32 v6, {s(S_T0)}, v6
        v_and_b32 v7, 1, {v(V_L15)}
        v_cvt_f32_u32 v9, v7
        v_mul_f32 v9, {f2u(-0.25)}, v9
        v_lshl_add_u32 v8, v6, 1, v7
        v_cmp_eq_u32 vcc, 1, v8
        v_lshlrev_b32 v8, 3, {v(V_G)}
        v_cndmask_b32 v6, v6, 32, vcc
        v_cndmask_b32 v9, v9, 0, vcc
        v_cvt_f32_u32 v6, v6
        v_mul_f32 v6, {f2u(1/64)}, v6
        v_cvt_f32_u32 v8, v8
        v_fma_f32 {v(b)}, v6, v8, v9
        ''')
        for blk in range(4):
            for j in range(4):
                c = 2 * j + (blk & 1) + 32 * (blk >> 1)
                if c: fill.append(f'v_fmamk_f32 {v(b+4*blk+j)}, v6, {f2u(float(c))}, {v(b)}')
        for j in range(16): fill.append(f'v_cos_f32 {v(b+16+j)}, {v(b+j)}')
        for j in range(8): fill.append(f'v_cvt_pk_bf16_f32 {v(R1+j)}, {v(b+16+2*j)}, {v(b+17+2*j)}')
        rdy = set()
        def chk(): assert cnt[0] > 14; print('vmset at', cnt[0])
        if XRP == 3 and o.get('vmf', 1): fill += [chk] + L(vmset) + [lambda: rdy.add(0)]
        if o.get('w1f'): fill += self.w1_setup() + [lambda: rdy.add(1)]
        fill += L(f'''
        v_and_b32 v6, 1, {v(V_LANE)}
        v_lshlrev_b32 v6, 31, v6
        v_or_b32 {v(V_SGN)}, 1.0, v6
        s_cmp_ge_u32 {s(S_Q)}, 4 @@ s_cselect_b64 vcc, -1, 0
        v_mov_b32 {v(V_FAC)}, 1.0
        v_cndmask_b32 {v(V_FAC)}, {v(V_FAC)}, {v(V_SGN)}, vcc
        s_lshl_b32 {s(S_T0)}, {s(S_W)}, 19
        s_lshl_b32 {s(S_T1)}, {s(S_Q)}, 13
        s_add_u32 {s(S_T0)}, {s(S_T0)}, {s(S_T1)}
        s_lshl_b32 {s(S_T1)}, {s(S_U)}, 8
        s_add_u32 {s(S_T0)}, {s(S_T0)}, {s(S_T1)}
        v_lshlrev_b32 v6, 17, {v(V_G)}
        v_lshl_add_u32 v6, {v(V_L15)}, 4, v6
        v_add_u32 {v(V_ZO)}, {s(S_T0)}, v6
        s_lshr_b32 {s(S_T0)}, {s(S_W)}, 1
        s_lshl_b32 {s(S_T0)}, {s(S_T0)}, 10
        s_lshl3_add_u32 {s(S_T0)}, {s(S_ODD)}, {s(S_T0)}
        s_add_u32 {s(S_T0)}, {s(S_T0)}, {L_EXC}
        v_add_u32 {v(V_EW)}, {s(S_T0)}, {v(V_L16)}
        v_add_u32 {v(V_ER)}, {L_EXC}, {v(V_L16)}
        s_lshr_b32 {s(S_T1)}, {s(S_Q)}, 1
        s_lshl2_add_u32 {s(S_T0)}, {s(S_W)}, {s(S_T1)}
        s_lshl_b32 {s(S_T0)}, {s(S_T0)}, 5
        s_add_u32 {s(S_T0)}, {s(S_T0)}, {s(S_U)}
        s_and_b32 {s(S_T1)}, {s(S_Q)}, 1
        s_lshl1_add_u32 {s(S_T0)}, {s(S_T0)}, {s(S_T1)}
        s_lshl_b32 {s(S_T0)}, {s(S_T0)}, 7
        s_add_u32 {s(S_F1)}, {s(S_T0)}, {F1}
        v_and_b32 v6, 1, {v(V_L15)}
        v_cmp_eq_u32 {s(S_XO,2)}, 1, v6
        v_and_b32 v6, 2, {v(V_L15)}
        v_cmp_eq_u32 {s(S_XO+2,2)}, 2, v6
        v_lshrrev_b32 v6, 2, {v(V_L15)}
        v_cmp_eq_u32 {s(S_M,2)}, v6, {v(V_G)}
        ''')
        g3 = []
        if not o.get('w1f'): fill += self.w1_setup() + [lambda: rdy.add(1)]
        if XRP == 3 and not o.get('vmf', 1): fill += L(vmset) + [lambda: rdy.add(0)]
        if XRP == 3: g3 += [(0, o.get('xrt', 56), f) for f in xr]
        if o.get('wpre'):
            def tbar():
                self.flush(fild); A.wait(lg=A.nlg); A('s_barrier')
            w = [(1, o.get('wpt', 60), f) for f in [tbar] + [f for kind, k, ops in self.pipe if kind == 'dma' for f in ops][:o['wpre']]]
            g3 = w + g3 if o.get('wpf') else g3 + w
        fill += L(f's_mov_b32 {s(S_T1)}, 65536\ns_mov_b32 {s(S_T0)}, {f2u(1/512)}\ns_mov_b32 {s(S_T2)}, {WS_HN}\ns_mov_b32 {s(S_T3)}, {WS_HN+65536}')
        xl = []
        def xrd(i):
            while len(xm) <= i: g1.pop(0)()
            A.wait(vm=xm[i])
            for kk in range(2):
                A(f'ds_read_b128 {v(X+8*i+4*kk,4)}, {v(V_XR+kk)} offset:{i*2048}')
            xl.append(A.nlg)
        self.site('A')
        xrd(0)
        self.stamp('x first')
        xrd(1)
        A(f'''
        v_add_u32 {v(V_TAG)}, 0x9e3779b0, {v(V_TAG)}
        v_add_u32 {v(V_TAG+1)}, 0x7f4a7c15, {v(V_TAG+1)}
        ''')
        if o.get('fxp') in (1, 3): self.fxst(S_T0, V_FXV)
        if not o.get('fxp'): A(f'''
        s_getreg_b32 {s(S_T0)}, hwreg(HW_REG_XCC_ID)
        s_and_b32 {s(S_T0)}, {s(S_T0)}, 15
        v_add_u32 {v(V_FXV)}, {s(S_T0)}, {v(V_TAG)}
        v_mov_b32 {v(V_FXV+1)}, {v(V_TAG+1)}
        s_lshl_b32 {s(S_T0)}, {s(S_U)}, 7
        s_lshl3_add_u32 {s(S_T0)}, {s(S_Q)}, {s(S_T0)}
        s_add_u32 {s(S_T0)}, {s(S_T0)}, {FX}
        s_mov_b64 exec, 1
        buffer_store_dwordx2 {v(V_FXV,2)}, off, {s(SRD_WS,4)}, {s(S_T0)} sc1
        s_mov_b64 exec, -1
        ''')
        def t1():
            if o.get('t1e'): return
            if o.get('t1bar', 1): A('s_barrier')
            if o.get('g2'):
                self.g2touch(1, 'a' if o.get('t1a') == 20 else None)
                if o.get('t2a') == 1: self.g2touch(2, 'a')
                if o.get('tw2', 2) == 1: self.g2touch(2)
                if o.get('ts') == 0: self.smalltouch(S_AM0)
                return
            T1 = o.get('t1', 112)
            if T1 > T0: self.wtouch(V_TD, SRD_W1, T0, min(T1 - T0, 64))
            if T1 - T0 > 64: self.wtouch(V_TD, SRD_W1, T0 + 64, T1 - T0 - 64)
            if o.get('tw2'): self.wtouch(V_TD, SRD_W2, 0, o['tw2'])
        self.w1t = 56
        g1 = [(lambda i=i: xdma(i)) for i in range(NX1, 8)] + (xr if XRP < 2 else [lambda: None] * o.get('t1d', 0)) + [t1]
        for _ in range(min(len(g1), o.get('xr0', 3))): g1.pop(0)()
        XRE = o.get('xre', 2); cnt = [0, 0]
        def fl(n):
            cnt[0] += 1
            if g1 and cnt[0] % XRE == 0: return g1.pop(0)()
            if g3 and g3[0][0] in rdy and cnt[0] >= g3[0][1] and cnt[0] % o.get('xre3', 3) == 0: return g3.pop(0)[2]()
            if not fill and not fild and 2 not in rdy: rdy.add(2); print('gemm1 fill done at', cnt[0])
            k = cnt[1]
            if fild and cnt[0] % 4: self.emit(fild.pop(0)); k += 1
            while fill and k < n:
                n0 = A.wt; self.emit(fill.pop(0)); k += A.wt - n0
            cnt[1] = max(0, k - n)
        for i in range(8):
            ip, hp = i >> 1, i & 1
            if i + 2 < 8: xrd(i + 2)
            if o.get('twd') and i == 5: self.stamp('x last'); A.wait(vm=A.nvm); self.stamp('touch done')
            while 8 * ip + 7 not in tl: self.emit(fild.pop(0))
            A.wait(lg=max(xl[i], tl[8 * ip + 7]))
            for kk in range(2):
                xa = X + 8 * i + 4 * kk
                first = (i == 0 and kk == 0)
                A(f'v_mfma_f32_16x16x32_bf16 {v(SQ,4)}, {v(xa,4)}, {v(xa,4)}, {"0" if first else v(SQ,4)}')
                fl(2.2)
                A(f'v_mfma_f32_16x16x32_bf16 {v(SUM,4)}, {v(xa,4)}, {v(V_ONES,4)}, {"0" if first else v(SUM,4)}')
                fl(2.2)
                for t in range(4):
                    acc = ACC + 16 * hp + 4 * t
                    cin = '0' if (ip == 0 and kk == 0) else v(acc, 4)
                    A(f'v_mfma_f32_16x16x32_bf16 {v(acc,4)}, {v(xa,4)}, {a(32*ip+16*kk+4*t,4)}, {cin}')
                    if not (kk == 1 and t == 3): fl(2.2)
        print('gemm1 fill left', len(fill), len(fild), len(g1), len(g3))
        self.flush(fild); self.flush(fill)
        self.stamp('gemm1 done')
        A(f'''
        v_cndmask_b32 v6, {v(SQ)}, {v(SQ+1)}, {s(S_XO,2)}
        v_cndmask_b32 v7, {v(SQ+2)}, {v(SQ+3)}, {s(S_XO,2)}
        v_cndmask_b32 v8, {v(SUM)}, {v(SUM+1)}, {s(S_XO,2)}
        v_cndmask_b32 v9, {v(SUM+2)}, {v(SUM+3)}, {s(S_XO,2)}
        v_cndmask_b32 v6, v6, v7, {s(S_XO+2,2)}
        v_cndmask_b32 v8, v8, v9, {s(S_XO+2,2)}
        v_mul_f32 v8, {s(S_T0)}, v8
        v_mul_f32 v8, v8, v8
        v_fma_f32 v6, v6, {s(S_T0)}, -v8
        v_max_f32 v6, 0, v6
        v_add_f32 v6, {f2u(1e-5)}, v6
        v_rsq_f32 v6, v6
        v_fma_f32 {v(ACC)}, {v(ACC+16)}, {v(V_SGN)}, {v(ACC)}
        v_cndmask_b32 v6, 0, v6, {s(S_M,2)}
        v_fma_f32 {v(ACC+1)}, {v(ACC+17)}, {v(V_SGN)}, {v(ACC+1)}
        v_fma_f32 {v(ACC+2)}, {v(ACC+18)}, {v(V_SGN)}, {v(ACC+2)}
        v_mfma_f32_16x16x4_f32 v[20:23], v6, {v(V_FAC)}, 0
        ''')
        for i in range(3, 16):
            A(f'v_fma_f32 {v(ACC+i)}, {v(ACC+16+i)}, {v(V_SGN)}, {v(ACC+i)}')
        for t in range(4):
            for r in range(0, 4, 2):
                A(f'v_pk_mul_f32 {v(ACC+4*t+r,2)}, {v(ACC+4*t+r,2)}, {v(20+r,2)}')
            A(f'v_cvt_pk_bf16_f32 {v(24+2*t)}, {v(ACC+4*t)}, {v(ACC+4*t+1)}')
            A(f'v_cvt_pk_bf16_f32 {v(25+2*t)}, {v(ACC+4*t+2)}, {v(ACC+4*t+3)}')
            A(f'ds_write_b64 {v(V_EW)}, {v(24+2*t,2)} offset:{t*2048}')
            if g3: g3.pop(0)[2]()
        while g3: g3.pop(0)[2]()
        if XRP == 2: A(vmset)
        A.wait(vm=None if XRP and not o.get('xrw') else self.xrm, lg=A.nlg)
        A('s_barrier')
        for f in range(8):
            A(f'ds_read_b128 {v(32+4*f,4)}, {v(V_ER)} offset:{f*1024}')
        for t in range(4):
            A(f's_waitcnt lgkmcnt({6-2*t})')
            A(f'v_mfma_f32_16x16x32_bf16 {v(64+4*t,4)}, {v(R1,4)}, {v(32+8*t,4)}, 0')
            A(f'v_mfma_f32_16x16x32_bf16 {v(64+4*t,4)}, {v(R1+4,4)}, {v(36+8*t,4)}, {v(64+4*t,4)}')
        A.dlg = A.nlg
        for k in range(2):
            for t in range(4):
                A(f'v_cvt_pk_bf16_f32 {v(24+4*k+t)}, {v(64+4*t+2*k)}, {v(65+4*t+2*k)}')
            A(f'buffer_store_dwordx4 {v(24+4*k,4)}, {v(V_ZO)}, {s(SRD_WS,4)}, {"0" if k == 0 else s(S_T1)} offen sc1')
            if o.get('zc'): A(f'buffer_store_dwordx4 {v(24+4*k,4)}, {v(V_ZO)}, {s(SRD_WS,4)}, {s(S_T2+k)} offen sc1')
        self.stamp('Z stores')
        self.zst = A.nvm
        self.xr = []
        if o.get('tw2') == 2:
            if o.get('t2bar', 1): A('s_barrier')
            self.g2touch(2)
            if XRP == 2: self.xr = xr
            if o.get('ts', 1) == 1: self.smalltouch(S_T0)
        elif XRP == 2: self.flush(xr)

    def ygrp(self, var, q1, tt): return Y + 32 * var + 16 * q1 + 8 * tt
    def dgrp(self, var, q1, tt):
        return ZF + 32 * q1 + 8 * self.dord.index((var, tt))
    dord = [(1, 1), (0, 1), (1, 0), (0, 0)]
    def window(self):
        A = self.A; o = self.opt
        A.clk = clk = sched.Clock()
        main = []
        AA = A
        A = lambda t: main.extend(L(t))
        XR = ZF
        SD0, SD1, SA1, SM_ = S_W2S, S_AM0, S_TCH, S_FIX
        AD = Y
        A(f'''
        s_sub_u32 {s(S_T0)}, {s(S_W)}, {s(S_Q)}
        s_and_b32 {s(S_T0)}, {s(S_T0)}, 3
        s_lshr_b32 {s(S_T1)}, {s(S_Q)}, 2
        s_lshl1_add_u32 {s(SD0)}, {s(S_T0)}, {s(S_T1)}
        s_lshl_b32 {s(SD0)}, {s(SD0)}, 11
        s_add_u32 {s(S_T0)}, {s(S_W)}, {s(S_Q)}
        s_sub_u32 {s(S_T0)}, 3, {s(S_T0)}
        s_and_b32 {s(S_T0)}, {s(S_T0)}, 3
        s_xor_b32 {s(S_T1)}, {s(S_T1)}, 1
        s_lshl1_add_u32 {s(SD1)}, {s(S_T0)}, {s(S_T1)}
        s_lshl_b32 {s(SD1)}, {s(SD1)}, 11
        s_add_u32 {s(SM_)}, {s(S_SB)}, 12288
        s_mov_b32 {s(SA1)}, 32768
        s_cmp_eq_u32 {s(S_U)}, 0
        s_cselect_b32 {s(S_T2)}, {s(SA1)}, 0
        s_cselect_b32 {s(SA1)}, 16384, {s(SA1)}
        s_cmp_eq_u32 {s(S_ODD)}, 0
        s_cselect_b32 {s(S_T3)}, 0, {s(S_T2)}
        s_cselect_b32 {s(S_T2)}, {s(S_T2)}, 0
        v_xor_b32 v7, 64, v15
        v_xor_b32 v8, 0x70, v15
        v_xor_b32 v9, 0x30, v15
        v_lshrrev_b32 v10, 1, {v(V_L15)}
        v_sub_u32 v11, 8, {v(V_G)}
        v_and_b32 v11, 7, v11
        v_xor_b32 v11, v11, v10
        v_lshlrev_b32 v11, 4, v11
        v_lshl_add_u32 v10, {v(V_L15)}, 7, v11
        v_xor_b32 v11, 64, v10
        v_cmp_eq_u32 vcc, 0, {v(V_L15)}
        v_mov_b32 v12, {s(S_T2)}
        v_mov_b32 v13, {s(S_T3)}
        v_cndmask_b32 v12, 0, v12, vcc
        v_cndmask_b32 v13, 0, v13, vcc
        s_add_u32 {s(S_T0)}, {s(SD1)}, 4096
        s_and_b32 {s(S_T0)}, {s(S_T0)}, 0x3fff
        s_sub_u32 {s(S_T0)}, {s(S_T0)}, {s(SD1)}
        s_mov_b32 {s(S_T1)}, {(-SPW) & 0xffffffff}
        s_cmp_eq_u32 {s(S_W)}, 0
        s_cselect_b32 {s(S_T1)}, {3*SPW}, {s(S_T1)}
        s_cmp_eq_u32 {s(S_ODD)}, 0
        s_cselect_b32 {s(S_T2)}, {s(S_T0)}, {s(S_T1)}
        s_cselect_b32 {s(S_T3)}, {s(S_T1)}, {s(S_T0)}
        v_mov_b32 v6, v10
        s_mov_b64 exec, 0xffff
        v_add_u32 v10, {s(S_T2)}, v10
        v_add_u32 v6, {s(S_T3)}, v6
        s_mov_b64 exec, -1
        ''')
        for rt in range(4):
            pat = [15, 7, 8, 9, 10 if rt < 2 else 6, 11]
            for side in range(2):
                d = S_T0 + side
                if rt & 1: A(f's_add_u32 {s(S_T2)}, {s(SD1 if side else SD0)}, {s(SA1)}')
                A(f's_add_u32 {s(S_T3)}, {s(SM_)}, {(rt&1)*4096+side*2048}')
                A(f's_cmp_eq_u32 {s(S_ODD)}, {rt>>1}')
                A(f's_cselect_b32 {s(d)}, {s(S_T2 if rt & 1 else (SD1 if side else SD0))}, {s(S_T3)}')
            for n in range(6):
                if n >= 2 and not rt & 1: A(f'v_add3_u32 {v(AD+6*rt+n)}, {v(pat[n])}, {s(S_T1)}, {v(12+(rt>>1))}')
                else: A(f'v_add_u32 {v(AD+6*rt+n)}, {s(S_T0 + (n >= 2))}, {v(pat[n])}')
        A = AA
        m2 = []; ex = False
        for x in main:
            if ex or x.startswith('s_cselect'): m2[-1] += '\n' + x
            else: m2.append(x)
            if x.startswith('s_mov_b64 exec'): ex = not x.endswith('-1')
        main = m2
        def xin():
            A.wait(vm=self.xrm); A('s_barrier')
        pre = []
        if o.get('xrp') and not o.get('xrw'): pre = main; main = [xin]
        xl = {}
        for rt in range(4):
            main += [f'ds_read_b128 {v(XR+16*rt+4*n,4)}, {v(AD+6*rt+n)}' for n in range(4)]
            main += [f'ds_read_u16 {v(AD+6*rt+4+q1)}, {v(AD+6*rt+4+q1)}' for q1 in range(2)]
            main.append(lambda rt=rt: (xl.__setitem__(rt, A.nlg), rt and A.wait(lg=xl[rt-1])))
        SR = 6
        (pre if pre else main).extend(L(f'''
        v_mov_b32 v6, 0xbf80
        v_mov_b32 v7, -1.0
        v_cndmask_b32 v6, v6, v7, {s(S_XO,2)}
        v_cndmask_b32 v6, 0, v6, {s(S_M,2)}
        v_cndmask_b32 {v(V_SEL+2)}, v6, 0, {s(S_XO+2,2)}
        v_cndmask_b32 {v(V_SEL+3)}, 0, v6, {s(S_XO+2,2)}
        v_mov_b32 {v(V_SEL)}, 0
        v_mov_b32 {v(V_SEL+1)}, 0
        v_mov_b32 {v(V_SEL+4)}, 0
        v_mov_b32 {v(V_SEL+5)}, 0
        v_and_b32 v6, 0xffff, {v(V_SEL+2)}
        v_and_b32 v8, 0xffff0000, {v(V_SEL+3)}
        v_xor_b32 v9, {v(V_SEL+2)}, {v(V_SEL+3)}
        v_xor_b32 v9, v9, v6
        v_xor_b32 v9, v9, v8
        v_mov_b32 v7, 0
        v_mov_b32 v10, v8
        v_mov_b32 v11, v9
        v_mov_b32 v12, v6
        v_mov_b32 v13, 0
        v_cmp_eq_u32 vcc, 0, {v(V_G)}
        s_cmp_eq_u32 {s(S_W)}, 0 @@ s_cselect_b64 {s(S_FIX,2)}, vcc, 0
        '''))
        main = pre + main
        def xfree():
            A.wait(lg=xl[3]); A('s_barrier'); self.xfree = True
        self.xfree = False
        main.append(xfree)
        main.append(f's_mov_b32 {s(S_T0)}, 0xffff')
        main += [f'v_bfi_b32 {v(XR+16*rt+8+4*q1)}, {s(S_T0)}, {v(AD+6*rt+4+q1)}, {v(XR+16*rt+8+4*q1)}' for rt in range(4) for q1 in range(2)]
        sel = lambda var, et: SR + 4 * et if var else V_SEL + 2 - 2 * et
        xf = lambda rt, var, q1: XR + 16 * rt + 4 * (2 * var + q1)
        G8 = [(q1, var, tt) for q1 in range(2) for var, tt in self.dord]
        def smm(d, var, et, x, c): return f'v_mfma_f32_16x16x32_bf16 {v(d+4*et,4)}, {v(sel(var,et),4)}, {v(x,4)}, {v(d+4*et,4) if c else "0"}'
        for q1, var, tt in G8: main += [smm(self.ygrp(1-var,q1,tt), 1-var, et, xf(tt,1-var,q1), 0) for et in range(2)]
        main += [f'v_lshlrev_b32 {v(V_FIX+rt)}, 16, {v(xf(rt,0,0))}' for rt in range(4)]
        main += [f'v_and_b32 {v(r)}, 0x7fff7fff, {v(r)}' for r in (V_SEL + 2, V_SEL + 3, 6, 8, 9, 10, 11, 12)]
        for q1, var, tt in G8: main += [smm(self.ygrp(1-var,q1,tt), var, et, xf(2+tt,var,q1), 1) for et in range(2)]
        for k, (q1, var, tt) in enumerate(G8):
            y = self.ygrp(1 - var, q1, tt); x = xf(2 + tt, var, q1)
            main += [f'v_cvt_pk_bf16_f32 {v(x+i)}, {v(y+2*i)}, {v(y+2*i+1)}' for i in range(4)]
            main += [smm(y, 1-var, et, xf(tt,1-var,q1), 0) for et in range(2)]
            main += [f'v_accvgpr_write_b32 {a(AD_+4*k+i)}, {v(x+i)}' for i in range(4)]
        main += L(f'''
        s_lshr_b32 {s(S_T0)}, {s(S_U)}, 3
        s_lshl2_add_u32 {s(S_T0)}, {s(S_T0)}, {s(S_W)}
        s_lshl_b32 {s(S_T0)}, {s(S_T0)}, 13
        s_add_u32 {s(S_T0)}, {s(S_T0)}, {F1}
        v_add_u32 v15, {s(S_T0)}, {v(V_L128)}
        s_lshl2_add_u32 {s(S_T0)}, {s(S_U)}, {s(S_W)}
        s_lshl_b32 {s(S_T0)}, {s(S_T0)}, 14
        s_and_b32 {s(S_T3)}, {s(S_Q)}, {4 if o.get('zc') else 0}
        s_lshl_b32 {s(S_T3)}, {s(S_T3)}, 19
        s_add_u32 {s(S_T0)}, {s(S_T0)}, {s(S_T3)}
        v_add_u32 {v(V_ZA)}, {s(S_T0)}, {v(V_L16)}
        v_add_u32 {v(V_ZA+1)}, 8192, {v(V_ZA)}
        s_and_b32 {s(S_T3)}, {s(S_Q)}, 3
        s_lshl_b32 {s(S_T3)}, {s(S_T3)}, 11
        s_lshl1_add_u32 {s(S_AM0)}, {s(S_T3)}, {s(S_T0)}
        s_lshl_b32 {s(S_T1)}, {s(S_ODD)}, 11
        s_add_u32 {s(S_T1)}, {s(S_T1)}, {s(S_HB)}
        v_add_u32 v10, {s(S_T1)}, {v(V_L16)}
        v_xor_b32 v11, 2048, v10
        s_xor_b32 {s(S_T1)}, {s(S_W)}, {s(S_C)}
        s_lshl_b32 {s(S_T1)}, {s(S_T1)}, 14
        v_xor_b32 v8, {s(S_T1)}, v10
        v_xor_b32 v9, {s(S_T1)}, v11
        s_lshl3_add_u32 {s(S_RR)}, {s(S_U)}, {s(S_Q)}
        s_lshl2_add_u32 {s(S_RR)}, {s(S_RR)}, {s(S_W)}
        s_lshl_b32 {s(S_RR)}, {s(S_RR)}, 14
        s_add_u32 {s(S_RR)}, {s(S_RR)}, {WS_P}
        s_andn2_b32 {s(S_FLA)}, {s(S_RR)}, {(3<<16)|(1<<14)}
        s_add_u32 {s(S_FLA)}, {s(S_FLA)}, 7168
        v_readfirstlane_b32 {s(S_LT)}, {v(V_TAG)}
        s_and_b32 {s(S_LT)}, {s(S_LT)}, 0xbfffbfff
        s_lshl_b32 {s(S_T0)}, {s(S_U)}, {(7, 10, 10, 12, 12)[o.get('fxp', 0)]}
        s_add_u32 {s(S_T0)}, {s(S_T0)}, {(FX, FX2, FX2, FX3, FX3)[o.get('fxp', 0)]}
        v_and_b32 v6, 7, {v(V_LANE)}
        v_lshlrev_b32 v6, {7 if o.get('fxp') else 3}, v6
        ''')
        NBD = o.get('nbd', 14); PE = o.get('pe', 1)
        WR, WL, WT, F1T, W0 = o.get('wr', 64), o.get('wl', 700), o.get('wt', 128), o.get('f1t', 1000), o.get('w0', 0)
        dq = []; tq = []; cq = []; dt = {}; tt_ = {}
        for kind, k, ops in self.pipe: {'dma': dq, 'tr': tq, 'cs': cq}[kind].extend((kind, k, f) for f in ops)
        for _ in range(o.get('wpre', 0)): dt[dq.pop(0)[1]] = o.get('wpl', -300)
        nxt = W0; flagged = False; pm = None; nd = 0
        while main or (dq and dq[0][1] < NBD) or not flagged:
            T = clk.t
            k = dq[0][1] if dq else 99
            if not flagged and T >= F1T:
                self.stamp('pre F1')
                A.wait(vm=self.zst)
                self.setflag(S_F1, ' sc1')
                self.stamp('F1 set')
                if o.get('fxp') in (2, 4): self.fxst(S_BG, V_ZA)
                flagged = True
                self.flush(self.xr)
                for _ in range(o.get('wq2', 0)):
                    k = dq[0][1]; assert k < 3 or (k < 5 and self.xfree); self.emit(dq.pop(0)[2]); nxt = max(nxt, T) + WR; dt[k] = nxt
            elif nd < o.get('wq', 0): assert k < 3; self.emit(dq.pop(0)[2]); nd += 1; dt[k] = o.get('wql', W0)
            elif main and main[0] is xin and not flagged and o.get('xrp') == 2: clk.t += 8
            elif k < NBD and T >= nxt and (k < 3 or (self.xfree if k < 5 else (k - 5) in tt_ and T >= tt_[k - 5] + WT)) and not (k >= NBD - PE and (main or not flagged)):
                if k == NBD - PE and pm is None:
                    A(f'buffer_load_dwordx2 v[12:13], v15, {s(SRD_WS,4)}, 0 offen sc1'); pm = A.nvm
                if k >= 5: A.wait(lg=self.w1l[k - 5])
                self.emit(dq.pop(0)[2]); nxt = max(nxt, T - 32) + WR
                if not (dq and dq[0][1] == k):
                    dt[k] = nxt
                    if o.get('fine') == 3 and k in (0, 2, 4, 5, 6, 7, 8, 9, 10, 11, 12): self.stamp(f'wd{k} m{len(main)} T{T}')
            elif tq[0][1] in dt and tq[0][1] < 14 and T >= dt[tq[0][1]] + WL:
                k = tq[0][1]; self.emit(tq.pop(0)[2])
                if tq[0][1] != k: tt_[k] = T
            elif cq[0][1] in tt_ and T >= tt_[cq[0][1]] + WT and clk.pipe <= T + 4 and not (main and o.get('mp', 1)): self.emit(cq.pop(0)[2])
            elif main: self.emit(main.pop(0))
            else: clk.t += 8
        print('window: est', clk.t, 'tr left', len(tq), 'cs left', len(cq))
        A.clk = None
        self.post = dq + tq + cq
        self.stamp('p2 prepoll')
        if pm is None:
            A(f'buffer_load_dwordx2 v[12:13], v15, {s(SRD_WS,4)}, 0 offen sc1'); pm = A.nvm
        Lp = A.newlabel('poll'); D = A.newlabel('polld')
        self.site('B')
        A.wait(vm=pm)
        A.on = False
        A(f'v_cmp_ne_u64 vcc, v[12:13], {v(V_TAG,2)}\ns_mov_b32 {s(S_CNT)}, 0x20000\ns_cbranch_vccz {D}')
        A.snap()
        A.label(Lp)
        A(f'''
        buffer_load_dwordx2 v[12:13], v15, {s(SRD_WS,4)}, 0 offen sc1
        s_sub_u32 {s(S_CNT)}, {s(S_CNT)}, 1
        s_cbranch_scc1 {D}
        s_waitcnt vmcnt(0)
        v_cmp_ne_u64 vcc, v[12:13], {v(V_TAG,2)}
        s_cbranch_vccnz {Lp}
        ''')
        A.label(D)
        A.unsnap()
        self.stamp('p2 polled')

    def p23(self):
        A = self.A; o = self.opt
        A.on = True
        dr = str(o.get('drop', ''))
        A.drop = lambda t: ('d' in dr and t.endswith(' lds')) or ('t' in dr and t.startswith('ds_read_b64_tr')) or ('w' in dr and t.startswith('ds_write')) or ('h' in dr and t.startswith('ds_read_b128'))
        zm = {}
        def zld(q1, ks):
            if ks or q1: A(f's_add_u32 {s(S_T3)}, {s(S_T3)}, 2048\ns_and_b32 {s(S_T3)}, {s(S_T3)}, 0x1800')
            for h in range(2):
                A(f'buffer_load_dwordx4 {v(ZF+32*q1+8*ks+4*h,4)}, {v(V_ZA+q1)}, {s(SRD_WS,4)}, {s(S_T3)} offen offset:{h*1024}{self.zldf}')
            zm[q1, ks] = A.nvm
        for k in range(6):
            zld(k >> 2, k & 3)
            if k == 3: A(f'buffer_load_dwordx2 v[6:7], v6, {s(SRD_WS,4)}, {s(S_T0)} offen sc1')
        NA = 10
        self.debt = 0; self.tick = 0; self.nxt = o.get('dma0', 16); self.blk = -1; self.b4 = False; self.hold = False
        RATE, LAT, SLACK, TL = o.get('rate', 40) / 10, o.get('lat', 44), o.get('slack', 8), o.get('tl', 8)
        dq = []; tq = []; cq = []; dt = {}; tt_ = {}
        for kind, k, f in self.post: {'dma': dq, 'tr': tq, 'cs': cq}[kind].append((kind, k, f))
        self.dfree = 0
        pend_d = {k for _, k, _ in dq}; pend_t = {k for _, k, _ in tq}
        for k in range(16):
            if k not in pend_d: dt[k] = -999
            if k not in pend_t: tt_[k] = -999
        KO = [int(ch) for ch in str(o.get('ko', 123456))]
        self.items = [(0, 0), (1, 0)] + [(0, ks) for ks in KO] + [(1, ks) for ks in KO]
        dq += [('x', 16, x) for x in self.w2_setup()]
        for b in range(14): dq += [('dma', 16 + b, f) for f in self.w2_dma(b, (16 + b) % 5)]
        tq += [('x', 16, x) for x in self.w2_setup_r()]
        self.trl = {}
        for b in range(14): tq += [('tr', 16 + b, f) for f in self.w2_tr(b, (16 + b) % 5)]
        def ins(item, f, tag=-1):
            p = min([n for n, x in enumerate(dq) if x[1] >= item] + [len(dq)])
            dq.insert(p, ('x', tag, f))
        if self.w1t < 56: ins(0, lambda: self.w1touch(self.w1t, 56))
        if 't3' in o:
            t3 = [int(x) for x in str(o['t3']).split('.')]
            for k, p in enumerate(t3): ins(p, lambda k=k: self.w2touch(k if len(t3) > 1 else None))
        if 't4' in o:
            def t4():
                self.smalltouch(S_RR + 2)
                self.g2touch(2)
                if o.get('ptt4'): self.ptouch((o['ptt4'],))
                if o.get('trs') == 1: self.touch(191, SRD_WS, S_RR, 56, ' sc1')
                self.nxt = max(self.nxt, self.tick) + o.get('t4gap', 60)
            ins(o['t4'], t4, -2)
        if o.get('trs', 0) > 1: ins(o['trs'], lambda: self.touch(191, SRD_WS, S_RR, 56, ' sc1'))
        S_PQ, S_PS = S_RR, S_RR + 1
        ZC = 0
        def trlg(k): return self.w1l[self.w1order[k]] if k < 16 else self.trl[k]
        def d_ok(force=False):
            if not dq: return False
            kind, k, f = dq[0]
            if kind == 'x': return force or k > -2 or self.tick >= (o.get('t4t', 40) if k == -2 else 10)
            if kind == 'st': return force or self.tick >= self.nxt
            dep = k < 5 or ((k - 5) in tt_ and (force or self.tick >= tt_[k - 5] + TL))
            return dep and (force or (self.tick >= self.nxt and not self.hold))
        def d_pop():
            kind, k, f = dq.pop(0)
            if kind == 'st': self.nxt = max(self.nxt, self.tick - SLACK) + o.get('srate', 30) / 10
            if kind == 'dma':
                if k >= 5: A.wait(lg=trlg(k - 5))
                self.nxt = max(self.nxt, self.tick - SLACK) + RATE
                if not (dq and dq[0][:2] == ('dma', k)): dt[k] = self.tick
            self.emit(f)
        def t_ok(force=False):
            if not tq: return False
            kind, k, f = tq[0]
            if k not in dt: return False
            if kind == 'x': return True
            return (k < 14 + self.dfree if k < 16 else self.blk > k - 16) and (force or (self.tick >= dt[k] + LAT and (k < 16 or self.tick >= o.get('g0', 0))))
        def t_pop():
            kind, k, f = tq.pop(0)
            self.emit(f)
            if kind == 'tr' and not (tq and tq[0][1] == k): tt_[k] = self.tick
        def c_ok(): return cq and cq[0][1] in tt_ and self.tick >= tt_[cq[0][1]] + TL
        def ensure(k):
            while k not in tt_:
                if t_ok(True): t_pop()
                else:
                    assert d_ok(True), (k, dq[:1], tq[:1]); d_pop()
        self.ensure = ensure; self.dq = dq; self.d_pop = d_pop
        def fill(kmax, qs, k=0):
            k += self.debt; self.debt = 0
            while k < kmax:
                n0 = A.wt
                if d_ok(): d_pop()
                else:
                    for q in qs:
                        if q is None:
                            if t_ok(): t_pop(); break
                        elif q: self.emit(q.pop(0)); break
                    else: break
                k += A.wt - n0
            self.debt = max(0, k - kmax)
        def extra(kmax, qs):
            if mq: mq.pop(0)()
            elif c_ok(): self.emit(cq.pop(0)[2])
            else: return
            self.tick += 1
            fill(kmax, qs)
        def grp(n, rt): return self.ygrp(n >> 1, n & 1, rt) if rt < 2 else self.dgrp(n >> 1, n & 1, rt - 2)
        SQ = {rt: grp(0, rt) + 4 for rt in range(4)}; SM = {rt: grp(2, rt) + 4 for rt in range(4)}
        mq = []
        slots = [TB + 56, TB + 60]
        def dadd(q1):
            for k, (var, tt) in enumerate(self.dord):
                d = self.dgrp(var, q1, tt); y = self.ygrp(1 - var, q1, tt)
                for et in range(2):
                    A(f'v_mfma_f32_16x16x32_bf16 {v(d+4*et,4)}, {v(V_SEL+2-2*et,4)}, {a(AD_+16*q1+4*k,4)}, {v(y+4*et,4)}')
                    self.tick += 1
                    fill(P2BG, [vq, None])
            self.dfree = q1 + 1
        def swap0(q1):
            def f():
                LS = A.newlabel('nsw')
                A(f's_cmp_lg_u32 {s(S_U)}, 0\ns_cbranch_scc1 {LS}')
                A.snap()
                A('s_mov_b32 exec_lo, 0x10001\ns_mov_b32 exec_hi, 0x10001')
                for j in range(8): A(f'v_swap_b32 {v(self.ygrp(1,q1,0)+j)}, {v(self.dgrp(1,q1,0)+j)}')
                A('s_mov_b64 exec, -1\ns_nop 3')
                A.label(LS)
                A.unsnap()
            return f
        def conv(n, rt):
            g = grp(n, rt)
            ln = []
            if n == 0: ln.append(f'v_cndmask_b32 {v(g)}, {v(g)}, {v(V_FIX+rt)}, {s(S_FIX,2)}')
            ln += [f'v_cvt_pk_bf16_f32 {v(g+j)}, {v(g+2*j)}, {v(g+2*j+1)}' for j in range(4)]
            if o.get('w64'):
                ln += [f'ds_write_b64 {v(10+(rt>>1))}, {v(g+2*j,2)} offset:{n*4096+(rt&1)*1024+8*j}' for j in range(2)]
            else: ln.append(f'ds_write_b128 {v(10+(rt>>1))}, {v(g,4)} offset:{n*4096+(rt&1)*1024}')
            def sm(gg, first):
                A(f'v_mfma_f32_16x16x32_bf16 {v(SM[rt],4)}, {v(V_ONES,4)}, {v(gg,4)}, {"0" if first else v(SM[rt],4)}')
                slots.append(gg)
            def rel():
                if self.tick >= o.get('wc0', 0): self.nxt += o.get('wc', 33) / 10
                if n & 1: slots.append(g + 4)
                mq.append(lambda: A(f'v_mfma_f32_16x16x32_bf16 {v(SQ[rt],4)}, {v(g,4)}, {v(g,4)}, {"0" if n == 0 else v(SQ[rt],4)}'))
                if n == 2: mq.append(lambda: sm(grp(0, rt), True))
                if n: mq.append(lambda: sm(g, False))
            ln.append(rel)
            return ln
        def half(q1):
            return (conv(q1, 1) + conv(q1, 3) + conv(2 + q1, 1) + conv(2 + q1, 3)
                    + conv(q1, 0) + conv(q1, 2) + [swap0(q1)] + conv(2 + q1, 0) + conv(2 + q1, 2))
        def take(q, kmax):
            k = 0
            while q and k < kmax:
                n0 = len(A.lines); self.emit(q.pop(0)); k += len(A.lines) - n0
            return k
        P2BG = o.get('p2bg', 2)
        vq = []
        n0 = A.wt
        while A.wt - n0 < o.get('shw', 100):
            if t_ok(): t_pop()
            elif cq and cq[0][1] in tt_: self.emit(cq.pop(0)[2]); A.wt += 4
            elif d_ok() and dq[0][0] == 'x': d_pop()
            else: break
        for q1 in range(2):
            if q1: dadd(0); vq += half(0)
            for ks in range(4):
                z = ZF + 32 * q1 + 8 * ks
                A.wait(vm=zm[q1, ks])
                if (ks, q1) == (0, 0): self.stamp('Z first')
                A(f'v_swap_b32 {v(z+2)}, {v(z+4)}')
                A(f'v_swap_b32 {v(z+3)}, {v(z+5)}')
                n = 0
                for tt in (1, 0):
                    for var in range(2):
                        for et in range(2):
                            acc = self.ygrp(var, q1, tt) + 4 * et
                            A(f'v_mfma_f32_16x16x32_bf16 {v(acc,4)}, {v(z+4*et,4)}, {v(TB+16*ks+8*tt+4*var,4)}, {v(acc,4)}')
                            n += 1; self.tick += 1
                            if q1 == 0 and ks < 2 and n == 1: zld(1, 2 + ks)
                            elif q1 == 0:
                                if (ks, n) > (1, 1): fill(P2BG, [None])
                            else:
                                fill(o.get('p2v', 3), [vq])
                                if mq and n % 2 == 0: extra(2, [vq])
        self.stamp('Z landed')
        dadd(1)
        while vq:
            if mq: extra(2, [vq])
            else: take(vq, 2)
        A.wait(lg=A.nlg)
        A('s_barrier')
        self.stamp('half 0')
        free = [TB + 4 * k for k in range(14)]
        acc = {}
        for t in range(4):
            for rt in range(4 if t < 3 else 2): acc[t, rt] = free.pop(0)
        started = set()
        def mm(t, rt, b, frag):
            c = v(acc[t, rt], 4)
            A(f'v_mfma_f32_16x16x32_bf16 {c}, {a(16*b+4*t,4)}, {v(frag,4)}, {c if (t, rt) in started else "0"}')
            started.add((t, rt))
        fr = {}; fl_ = {}
        def hrd(b):
            q1, ip, var = b >> 3, (b >> 1) & 3, b & 1
            ops = []
            if var == 0 and b:
                x = (ip ^ ((ip - 1) & 3)) << 14
                ops.append(f'v_xor_b32 v8, {x}, v8'); ops.append(f'v_xor_b32 v9, {x}, v9')
            for rt in range(4):
                def f(rt=rt):
                    fr[b, rt] = slots.pop(0)
                    A(f'ds_read_b128 {v(fr[b,rt],4)}, {v(8+(rt>>1))} offset:{(2*var+q1)*4096+(rt&1)*1024}')
                    fl_[b, rt] = A.nlg
                ops.append(f)
            return ops
        vq = half(1)
        while len(slots) < 4: extra(0, [])
        self.flush(hrd(0))
        while mq: extra(2, [None, vq] if o.get('tprio', 1) else [vq])
        take(vq, o.get('h1pre', 6))
        A(f'''
        s_getreg_b32 {s(S_T0)}, hwreg(HW_REG_XCC_ID)
        s_and_b32 {s(S_T0)}, {s(S_T0)}, 15
        v_subrev_u32 v6, {s(S_T0)}, v6
        v_cmp_ne_u64 vcc, v[6:7], {v(V_TAG,2)}
        s_and_b32 {s(S_T0)}, {s(S_Q)}, {4 if o.get('npl', 3) < 4 else 0}
        s_lshr_b32 {s(S_FAST)}, vcc_lo, {s(S_T0)}
        s_and_b32 {s(S_FAST)}, {s(S_FAST)}, {15 if o.get('npl', 3) < 4 else 255}
        s_cselect_b32 {s(S_FAST)}, 0, 1
        ''')
        LE = A.newlabel('noe')
        A(f'''
        s_or_b32 {s(S_T0)}, s2, {s(S_W)}
        s_cmp_lg_u32 {s(S_T0)}, 0
        s_cbranch_scc1 {LE}
        ''')
        A.snap()
        A(f's_mov_b32 {s(S_T0)}, {FE}')
        self.setflag(S_T0, ' sc1')
        A.label(LE); A.unsnap()
        st = L(f'''
        s_lshl_b32 {s(S_T0)}, {s(S_ODD)}, 10
        s_lshl3_add_u32 {s(S_T0)}, {s(S_W)}, {s(S_T0)}
        s_add_u32 {s(S_T0)}, {s(S_T0)}, {L_STAT}
        v_lshl_add_u32 v6, {v(V_L15)}, 5, {s(S_T0)}
        v_xor_b32 v7, 1024, v6
        ''')
        for rt in range(4):
            st += [f'v_cndmask_b32 {v(SM[rt]+1)}, {v(SQ[rt])}, {v(SQ[rt]+1)}, {s(S_XO,2)}',
                   f'v_cndmask_b32 {v(SM[rt]+2)}, {v(SQ[rt]+2)}, {v(SQ[rt]+3)}, {s(S_XO,2)}',
                   f'v_cndmask_b32 {v(SM[rt]+1)}, {v(SM[rt]+1)}, {v(SM[rt]+2)}, {s(S_XO+2,2)}']
        st.append(f's_mov_b64 exec, {s(S_M,2)}\n' + '\n'.join(f'ds_write_b64 {v(6+(rt>>1))}, {v(SM[rt],2)} offset:{(rt&1)*512}' for rt in range(4)) + '\ns_mov_b64 exec, -1')
        def mark(): self.stm = A.nlg
        st.append(mark)
        SB0, SB1 = SQ[2], SQ[3]
        BF = [SM[rt] for rt in range(4)]
        RS = SQ[0]
        s2 = L(f'''
        s_lshl_b32 {s(S_T2)}, {s(S_ODD)}, 10
        s_add_u32 {s(S_T2)}, {s(S_T2)}, {L_STAT}
        v_lshlrev_b32 {v(V_FIX)}, 5, {v(V_LANE)}
        v_xor_b32 {v(V_FIX)}, {s(S_T2)}, {v(V_FIX)}
        ds_read_b128 {v(SB0,4)}, {v(V_FIX)}
        ds_read_b128 {v(SB1,4)}, {v(V_FIX)} offset:16
        ''')
        def w_(): A.wait(lg=self.s2m)
        s3 = [w_] + L(f'''
        v_add_f32 {v(SB0)}, {v(SB0)}, {v(SB0+2)}
        v_add_f32 {v(SB0+1)}, {v(SB0+1)}, {v(SB0+3)}
        v_add_f32 {v(SB1)}, {v(SB1)}, {v(SB1+2)}
        v_add_f32 {v(SB1+1)}, {v(SB1+1)}, {v(SB1+3)}
        v_add_f32 {v(SB0)}, {v(SB0)}, {v(SB1)}
        v_add_f32 {v(SB0+1)}, {v(SB0+1)}, {v(SB1+1)}
        v_mul_f32 {v(SB0)}, {f2u(-1/512)}, {v(SB0)}
        v_mul_f32 {v(SB0+1)}, {f2u(1/512)}, {v(SB0+1)}
        v_fma_f32 {v(SB0+1)}, -{v(SB0)}, {v(SB0)}, {v(SB0+1)}
        v_max_f32 {v(SB0+1)}, 0, {v(SB0+1)}
        v_add_f32 {v(SB0+1)}, {f2u(1e-5)}, {v(SB0+1)}
        v_rcp_f32 {v(RS)}, {v(SB0+1)}
        v_sqrt_f32 {v(SB0+1)}, {v(SB0+1)}
        v_mov_b32 {v(RS+2)}, {v(RS)}
        v_cvt_pk_bf16_f32 {v(SB1)}, {v(SB0)}, {v(SB0+1)}
        v_lshlrev_b32 {v(SB0+2)}, 16, {v(SB1)}
        v_and_b32 {v(SB0+3)}, 0xffff0000, {v(SB1)}
        v_sub_f32 {v(SB0+2)}, {v(SB0)}, {v(SB0+2)}
        v_sub_f32 {v(SB0+3)}, {v(SB0+1)}, {v(SB0+3)}
        v_cvt_pk_bf16_f32 {v(SB1+1)}, {v(SB0+2)}, {v(SB0+3)}
        v_and_b32 {v(SB1+2)}, 0xffff, {v(SB1)}
        v_permlane32_swap_b32 {v(RS)}, {v(RS+2)}
        v_mov_b32 {v(RS+1)}, {v(RS)}
        v_mov_b32 {v(RS+3)}, {v(RS+2)}
        v_permlane16_swap_b32 {v(RS)}, {v(RS+1)}
        v_permlane16_swap_b32 {v(RS+2)}, {v(RS+3)}
        ''')
        for rt in range(4):
            s3 += [f'v_cmp_eq_u32 vcc, {rt}, {v(V_G)}', f'v_mov_b32 {v(BF[rt]+3)}, 0'] + [f'v_cndmask_b32 {v(BF[rt]+k)}, 0, {v(SB1+k)}, vcc' for k in range(3)]
        V_BIAS = SQ[1]
        def bld():
            for t in range(3): A(f'buffer_load_ushort {v(V_BIAS+t)}, {v(V_BT)}, {s(SRD_B1,4)}, {s(S_T1)} offen offset:{32*t}')
            A(f'buffer_load_ushort {v(V_BIAS+3)}, {v(V_BT)}, {s(SRD_B1,4)}, {s(S_T0)} offen offset:96')
            self.bm = A.nvm
        bias = L(f'''
        s_mul_i32 {s(S_T0)}, {s(S_Q)}, 448
        s_lshr_b32 {s(S_T1)}, {s(S_W)}, 1
        s_mul_i32 {s(S_T1)}, {s(S_T1)}, 224
        s_add_u32 {s(S_T0)}, {s(S_T0)}, {s(S_T1)}
        s_lshl_b32 {s(S_T1)}, {s(S_ODD)}, 7
        s_add_u32 {s(S_T1)}, {s(S_T1)}, {s(S_T0)}
        v_lshlrev_b32 {v(V_BT)}, 1, {v(V_L15)}
        ''') + [bld]
        csl = [lambda: A.wait(vm=self.bm)]
        for t in range(4):
            c = V_CS + 4 * t
            csl += L(f'''
            v_lshlrev_b32 {v(c+3)}, 16, {v(V_BIAS+t)}
            v_cvt_pk_bf16_f32 {v(c)}, {v(c)}, {v(c+3)}
            v_lshlrev_b32 {v(c+3)}, 16, {v(c)}
            v_sub_f32 {v(c+2)}, {v(c+2)}, {v(c+3)}
            v_mov_b32 {v(c+1)}, {v(c)}
            v_cvt_pk_bf16_f32 {v(c+2)}, {v(c+2)}, 0
            v_mov_b32 {v(c+3)}, 0
            ''')
        FK = o.get('fk', 22) / 10
        B3 = o.get('b3', 4); B4 = o.get('b4', 99)
        def mark2(): self.s2m = A.nlg
        q2 = []
        nrd = 1
        inv = {b: k for k, b in enumerate(self.w1order)}
        for b in range(12):
            self.blk = b
            if o.get('fine') == 1 and b: self.stamp(f'blk{b} t{self.tick} d{A.nvm}')
            ensure(inv[b])
            if b == B3:
                print('at B3: vq', len(vq), 'mq', len(mq), 'st', len(st), 'tick', self.tick)
                while vq or mq:
                    if mq: extra(2, [vq])
                    else: take(vq, 2)
                self.flush(st)
                A.wait(lg=self.stm)
                A('s_barrier')
                q2 = s2 + [mark2] + bias + s3
            hq = []
            while nrd < (8 if b < B3 else 16) and len(slots) - sum(callable(x) for x in hq) >= 4 and len(hq) < o.get('hmax', 8):
                hq += hrd(nrd); nrd += 1
            if b == B4:
                assert nrd == 16 and not hq, (nrd, len(hq))
                A.wait(lg=A.nlg)
                A('s_barrier')
                self.b4 = True
            for rt in range(4):
                for t in range(4 if rt < 2 else 3):
                    k = A.wait(lg=max(fl_[b, rt], self.w1l[b]))
                    mm(t, rt, b, fr[b, rt]); self.tick += 1
                    qs = ([hq, None, vq] if o.get('tprio', 1) else [hq, vq, None]) + [[] if mq else st, q2, [] if cq or b < o.get('csb', 9) else csl]
                    fill(FK, qs, k * SW)
                    extra(FK, qs)
            self.flush(hq)
            for rt in range(4): slots.append(fr[b, rt])
        self.blk = 12
        print('middle left: dq', len(dq), 'tq', len(tq), 'cq', len(cq), 'q2', len(q2), 'cs', len(csl), 'tick', self.tick)
        for b in range(12, 16): ensure(inv[b])
        while cq: self.emit(cq.pop(0)[2])
        self.flush(q2); self.flush(csl)
        self.stamp('mid done')
        slots += [SB0, SB1, SQ[1]]
        V_BIAS = V_CS
        print('free slots', len(slots))
        V_IB, V_FC = 8, 9
        ep = []
        RF = {}; rv = {}; sw = {}; T2 = {}; self.rst = 0; self.nst = 0
        RSP = o.get('rs') is not None; RSF = ('' if o.get('rs') == 'pl' else ' ' + o.get('rs')) if RSP else ' sc1'
        def epi(t, nt):
            ln = []
            def st(c, off):
                if off >= 4096: A(f's_add_u32 {s(S_PS)}, {s(S_PQ)}, 4096')
                A(f'buffer_store_dwordx4 {v(c,4)}, {v(V_L16)}, {s(SRD_WS,4)}, {s(S_PS if off >= 4096 else S_PQ)} offen offset:{off&4095}{RSF}')
                self.rst = A.nvm; self.nst += 1
            for rt in (2 * nt, 2 * nt + 1):
                c = acc[t, rt]; d = c if t == 0 else acc[0, rt] + 2 if t == 1 else acc[t, 2 * nt] + 2 * (rt & 1)
                ln += [f'v_mul_f32 {v(c+i)}, {v(c+i)}, |{v(c+i)}|' for i in range(4)]
                ln += [f'v_cvt_pk_bf16_f32 {v(d+i)}, {v(c+2*i)}, {v(c+2*i+1)}' for i in range(2)]
                ln += [f'v_pk_max_i16 {v(d+i)}, {v(d+i)}, 0' for i in range(2)]
                if t == 1:
                    ln.append(lambda rt=rt, c=c: (st(acc[0, rt], rt * 1024), RF.__setitem__((0, rt), ('v', acc[0, rt])), slots.append(c)))
                elif t and rt & 1:
                    ln.append(lambda c=c: (st(acc[t, 2 * nt], 4096 + nt * 1024 if t == 2 else 6144), slots.append(c), t == 3 and not RSP and slots.append(acc[3, 0])))
            return ln
        def reg(x, n=4, off=0): return (a if x[0] == 'a' else v)(x[1] + off, n)
        GLF = {'pl': ''}.get(o.get('glf'), ' ' + o.get('glf', 'sc1'))
        def rload(js):
            for ks in js:
                if ks < 4:
                    A(f's_xor_b32 {s(S_PS)}, {s(S_PQ)}, {ks<<16}')
                    for rt in range(4):
                        RF[ks, rt] = ('a', (224, 240, 0)[KO.index(ks) - min(KO.index(k) for k in (1, 2, 3))] + 4 * rt)
                        A(f'buffer_load_dwordx4 {reg(RF[ks,rt])}, {v(V_L16)}, {s(SRD_WS,4)}, {s(S_PS)} offen offset:{rt*1024}{GLF}')
                        rv[ks, rt] = A.nvm
                    continue
                if ks == 6: A(f's_lshl_b32 {s(S_T0)}, {s(S_ODD)}, 17\ns_xor_b32 {s(S_T0)}, {s(S_T0)}, {s(S_PQ)}')
                for k in range(2):
                    for e in range(2):
                        if ks == 4 and e == 0: RF[ks, 2 * k] = ('v', acc[2, 2 * k]); continue
                        RF[ks, 2 * k + e] = ('v', slots.pop(0))
                        if ks == 6: A(f's_xor_b32 {s(S_PS)}, {s(S_T0)}, {(e<<16)|(k<<14)|4096}')
                        elif ks == 5 or k == 0: A(f's_xor_b32 {s(S_PS)}, {s(S_PQ)}, {((2*(ks-4)+e)<<16)|4096}')
                        A(f'buffer_load_dwordx4 {reg(RF[ks,2*k+e])}, {v(V_L16)}, {s(SRD_WS,4)}, {s(S_PS)} offen offset:{2048 if ks == 6 else k*1024}{GLF}')
                    rv[ks, 2 * k] = rv[ks, 2 * k + 1] = A.nvm
                    sw[ks, k] = True
        def rswap(ks, k):
            if not sw.pop((ks, k), False): return
            A.wait(vm=rv[ks, 2 * k])
            for i in range(2): A(f'v_swap_b32 {reg(RF[ks,2*k],1,2+i)}, {reg(RF[ks,2*k+1],1,i)}')
        A.wait(lg=max(max(fl_.values()), max(self.w1l.values())))
        EPK = o.get('epk', 22) / 10
        ml = []
        for t in [int(ch) for ch in str(o.get('tord', '0123')).zfill(4)]:
            for nt in range(2 if t < 3 else 1):
                ml += [('a', t, rt, b) for b in range(12, 17) for rt in (2 * nt, 2 * nt + 1)]
        N3 = len(ml)
        NM = o.get('nm', 2)
        if o.get('art'): ml += [('b', j, 0, rt) for rt in range(4) for j in range(8)]
        else: ml += [('b', j, 0, rt) for j in range(8) for rt in range(4)]
        for ks in KO[:6-NM]: ml += [('b', j, ks, rt) for rt in range(4) for j in range(4)]
        for j in range(4): ml += [('b', j, ks, rt) for ks in KO[6-NM:] for rt in range(4)]
        for j in range(4, 8): ml += [('b', j, ks, rt) for ks in KO for rt in range(4)]
        pa = {}; due = []; cnt = {}
        def dual(fn):
            LS = A.newlabel('slow'); LJ = A.newlabel('dj')
            A(f's_cmp_eq_u32 {s(S_FAST)}, 0\ns_cbranch_scc1 {LS}')
            A.snap(); fn(''); A(f's_branch {LJ}'); A.label(LS); A.unsnap()
            fn(' sc1'); A.label(LJ)
        def pack(j):
            return [f'v_cvt_pk_bf16_f32 {v(pa[j,rt&2]+2*(rt&1)+i)}, {v(pa[j,rt]+2*i)}, {v(pa[j,rt]+2*i+1)}' for rt in range(4) for i in range(2)]
        self.nred = 0; self.gb = False
        def red(j):
            x = 3 - (j & 3)
            def wr():
                assert self.gb and (j < 4 or 0 in rdm)
                for k in range(2): A(f'ds_write_b128 {v(V_IB)}, {v(pa[j,2*k],4)} offset:{(x-1)*2048+(k^(x&1))*1024}')
                A(f'v_xor_b32 {v(V_IB)}, {(x^(x-1))<<14}, {v(V_IB)}')
                slots.extend(pa[j, rt] for rt in (1, 3, 0, 2)); self.nred += 1
            return pack(j) + [wr]
        rdm = {}
        AR = (32, 56)
        def rbar(js):
            hf = js[0]
            while self.nred < 3 * (hf + 1): self.emit(ep.pop(0))
            if hf == 0:
                for k in range(14): ensure(16 + k)
            A.wait(lg=A.nlg); A('s_barrier')
            for k in range(6):
                A(f'ds_read_b128 {a(AR[hf]+4*k,4)}, {v(V_IB)} offset:{k*1024}'); rdm[hf, k] = A.nlg
            rdm[hf] = True
            if hf == 0: A(f'v_xor_b32 {v(V_IB)}, {65536|(3<<14)}, {v(V_IB)}')
        def radd(js):
            hf = js[0]; j = 4 * hf + 3
            assert hf or all(cnt[j, rt] == 7 for rt in range(4))
            for x in range(3):
                for rt in range(4):
                    k = A.wait(lg=rdm[hf, 2 * x + (rt >> 1)])
                    A(f'v_mfma_f32_16x16x32_bf16 {v(pa[j,rt],4)}, {v(V_SEL+2-2*(rt&1),4)}, {a(AR[hf]+8*x+4*(rt>>1),4)}, {v(pa[j,rt],4)}')
                    self.tick += 1
                    fill(EPK, [ep, None, misc if self.n >= MB else []], k * SW)
            if hf == 0: due.append((self.n + 1, send()))
        self.sent = None
        def send():
            c = [pa[3, rt] for rt in range(4)]
            q = []
            for k in range(3):
                q += [f'v_cvt_pk_bf16_f32 {v(c[k]+i)}, {v(c[k]+2*i)}, {v(c[k]+2*i+1)}' for i in range(2)]
                q.append(f'v_cvt_pk_bf16_f32 {v(c[k]+2)}, {v(c[3]+2*k)}, {v(c[3]+2*k+1)}' if k < 2 else f'v_mov_b32 {v(c[k]+2)}, {s(S_LT)}')
                q.append(f'v_mov_b32 {v(c[k]+3)}, {s(S_LT)}')
            def st():
                A(f's_xor_b32 {s(S_PS)}, {s(S_PQ)}, {(4<<16)|8192}')
                for k in range(3): A(f'buffer_store_dwordx4 {v(c[k],4)}, {v(V_L16)}, {s(SRD_WS,4)}, {s(S_PS)} offen offset:{k*1024} sc1')
                self.sent = A.nvm
                slots.extend(pa[3, rt] for rt in (3, 0, 1, 2))
                if o.get('fine') == 2: self.stamp(f'sent n{self.n-N3}')
            return q + [st]
        def flag(js):
            while self.nst < 7: self.emit(ep.pop(0))
            A(f's_and_b32 {s(S_T0)}, {s(S_Q)}, 3\ns_lshl1_add_u32 {s(S_T0)}, {s(S_T0)}, {s(S_ODD)}\ns_lshl3_add_u32 {s(S_T0)}, {s(S_T0)}, {s(S_FLA)}')
            A.wait(vm=self.rst)
            A('s_mov_b64 exec, 1')
            def fl(sc):
                if sc and RSP:
                    assert self.n <= N3 + 32 and (4, 0) not in RF
                    A.snap(); on = A.on; A.on = False
                    A('s_mov_b64 exec, -1')
                    for rt in range(4): A(f'buffer_store_dwordx4 {v(acc[0,rt],4)}, {v(V_L16)}, {s(SRD_WS,4)}, {s(S_PQ)} offen offset:{rt*1024} sc1')
                    hi23()
                    A('s_waitcnt vmcnt(0)\ns_mov_b64 exec, 1')
                    A.on = on; A.unsnap()
                A(f'buffer_store_dwordx2 {v(V_TAG,2)}, off, {s(SRD_WS,4)}, {s(S_T0)}{sc}')
            dual(fl)
            A('s_mov_b64 exec, -1')
        def hi23():
            A(f's_add_u32 {s(S_PS)}, {s(S_PQ)}, 4096')
            for k, c in enumerate((acc[2, 0], acc[2, 2], acc[3, 0])): A(f'buffer_store_dwordx4 {v(c,4)}, {v(V_L16)}, {s(SRD_WS,4)}, {s(S_PS)} offen offset:{k*1024} sc1')
        def clean(js):
            if 0 in js:
                assert sw.get((4, 0), True) and sw.get((4, 1), True) and ((4, 0) not in RF or ((4, 0) in sw and (4, 1) in sw))
                hi23(); slots.append(acc[3, 0])
            if 1 in js:
                A(f's_xor_b32 {s(S_PS)}, {s(S_PQ)}, {1<<16}')
                A.wait(vm=rv[1, 3])
                for rt in range(4): A(f'buffer_store_dwordx4 {reg(RF[1,rt])}, {v(V_L16)}, {s(SRD_WS,4)}, {s(S_PS)} offen offset:{rt*1024} sc1')
            if 2 in js: slots.append(acc[3, 0])
            if 3 in js:
                LS = A.newlabel('nwb')
                A(f's_lshr_b32 {s(S_T0)}, s2, 3\ns_lshl2_add_u32 {s(S_T0)}, {s(S_T0)}, {s(S_W)}\ns_cmp_lg_u32 {s(S_T0)}, {o.get("wbw", 0)}\ns_cbranch_scc1 {LS}')
                LJ = A.newlabel('wj')
                A.snap(); A('buffer_wbl2 sc1'); A(f's_branch {LJ}'); A.label(LS); A.unsnap()
                A(f'buffer_load_dword {v(V_PL)}, off, {s(SRD_WS,4)}, {s(S_FLA)}'); A.label(LJ)
        pm = {}; V_PL = V_ONES
        def pissue(js):
            A(f'buffer_load_dwordx2 {v(V_PL,2)}, {v(V_FC)}, {s(SRD_WS,4)}, {s(S_FLA)} offen sc1')
            pm[js] = A.nvm
        def pcheck(js):
            if js not in pm: pissue(js)
            Lp = A.newlabel('poll'); D = A.newlabel('polld')
            A.wait(vm=pm[js])
            A.on = False
            A(f'v_cmp_ne_u64 vcc, {v(V_PL,2)}, {v(V_TAG,2)}\ns_mov_b32 {s(S_CNT)}, 0x20000\ns_cbranch_vccz {D}')
            A.snap()
            A.label(Lp)
            A(f'''
            buffer_load_dwordx2 {v(V_PL,2)}, {v(V_FC)}, {s(SRD_WS,4)}, {s(S_FLA)} offen sc1
            s_sub_u32 {s(S_CNT)}, {s(S_CNT)}, 1
            s_cbranch_scc1 {D}
            s_waitcnt vmcnt(0)
            v_cmp_ne_u64 vcc, {v(V_PL,2)}, {v(V_TAG,2)}
            s_cbranch_vccnz {Lp}
            ''')
            A.label(D)
            A.unsnap()
            A.on = True
        PD = []
        def pload(js=None):
            if not PD: PD.extend(slots.pop(0) for _ in range(3))
            A(f's_add_u32 {s(S_PS)}, {s(S_PQ)}, 8192')
            for k in range(3): A(f'buffer_load_dwordx4 {v(PD[k],4)}, {v(V_L16)}, {s(SRD_WS,4)}, {s(S_PS)} offen offset:{k*1024} sc1')
            self.plm = A.nvm
        def kcheck(js):
            assert len(misc) in (0, self.nmisc)
            Lc = A.newlabel('chk'); D = A.newlabel('got')
            t = V_PL
            A(f's_movk_i32 {s(S_CNT)}, 0x4000')
            A.wait(vm=self.plm)
            A.on = False
            A.label(Lc)
            A(f'v_xor_b32 {v(t)}, {s(S_LT)}, {v(PD[0]+3)}')
            for k in (1, 2): A(f'v_bitop3_b32 {v(t)}, {v(t)}, {v(PD[k]+3)}, {s(S_LT)} bitop3:0xf6')
            A(f'v_cmp_ne_u32 vcc, 0, {v(t)}\ns_cbranch_vccz {D}')
            A.snap()
            pload()
            A(f's_sub_u32 {s(S_CNT)}, {s(S_CNT)}, 1\ns_waitcnt vmcnt(0)\ns_cbranch_scc0 {Lc}')
            A.label(D)
            A.unsnap()
            A.on = True
        Q3 = []
        def selq(js=None):
            if Q3: return
            Q3.extend([slots.pop(0), slots.pop(0)])
            for k in range(2):
                for i in range(4): A(f'v_mov_b32 {v(Q3[k]+i)}, {v(V_SEL+2+k) if i == 2 else 0}')
        def zadd(js):
            selq()
            for rt, sel, k in ((3, Q3[0], 0), (0, V_SEL + 2, 0), (1, V_SEL + 2, 1), (2, V_SEL + 2, 2), (3, Q3[1], 1)):
                A(f'v_mfma_f32_16x16x32_bf16 {v(pa[7,rt],4)}, {v(sel,4)}, {v(PD[k],4)}, {v(pa[7,rt],4)}')
        def num(js): return int(''.join(map(str, js)))
        def dforce(js):
            k = 16 + num(js)
            while k not in dt:
                if d_ok(True): d_pop()
                else:
                    assert t_ok(True); t_pop()
        def gbar(js): A('s_barrier'); self.gb = True
        def pwait(js):
            while self.sent is None: self.emit(ep.pop(0))
            A.wait(vm=self.sent)
        V_OO = V_CS + 4
        bs = {}
        def balloc():
            for rt in range(4): bs[rt] = slots.pop(0)
            q = [f'ds_read_u16_d16_hi {v(bs[rt]+r)}, {v(V_BIAS+r)} offset:{rt*1024}' for rt in range(2) for r in range(4)]
            q += [f'v_xor_b32 {v(V_BIAS+r)}, 2048, {v(V_BIAS+r)}' for r in range(4)]
            q += [f'ds_read_u16_d16_hi {v(bs[2+rt]+r)}, {v(V_BIAS+r)} offset:{rt*1024}' for rt in range(2) for r in range(4)]
            def mk(): self.bl = A.nlg
            q += [mk, lambda: A.wait(vm=self.b2m)]
            q += [f'v_lshlrev_b32 {v(V_FIX)}, 16, {v(V_BT)}', f'v_and_b32 {v(V_FIX+1)}, 0xffff0000, {v(V_BT)}',
                  f'v_lshlrev_b32 {v(V_FIX+2)}, 16, {v(V_TD)}', f'v_and_b32 {v(V_FIX+3)}, 0xffff0000, {v(V_TD)}', lambda: A.wait(lg=self.bl)]
            if o.get('bz', 1): q += [f'v_and_b32 {v(bs[rt]+r)}, 0xffff0000, {v(bs[rt]+r)}' for rt in range(4) for r in range(4)]
            q += [f'v_add_f32 {v(bs[rt]+r)}, {v(bs[rt]+r)}, {v(V_FIX+r)}' for rt in range(4) for r in range(4)]
            misc.extend(q)
        def spread(d, e):
            return L(f'''
            v_and_b32 v7, 0xc0, {v(e)}
            v_lshl_add_u32 {v(d)}, v7, 8, {v(V_BIAS+3)}
            v_and_b32 v7, 0x20, {v(e)}
            v_lshl_add_u32 {v(d)}, v7, 7, {v(d)}
            v_and_b32 v7, 0x18, {v(e)}
            v_lshl_add_u32 {v(d)}, v7, 5, {v(d)}
            v_and_b32 v7, 7, {v(e)}
            v_lshl_add_u32 {v(d)}, v7, 1, {v(d)}
            ''')
        def b2ld():
            A(f'buffer_load_dwordx2 {v(V_BT,2)}, {v(V_FIX)}, {s(SRD_B2,4)}, 0 offen'); self.b2m = A.nvm
        mis0 = L(f'''
        s_lshl2_add_u32 {s(S_T1)}, {s(S_Q)}, {s(S_W)}
        s_lshl_b32 {s(S_T1)}, {s(S_T1)}, 4
        v_lshl_add_u32 v6, {v(V_G)}, 2, {s(S_T1)}
        v_lshlrev_b32 {v(V_FIX)}, 1, v6
        ''') + [b2ld] + L(f'''
        v_and_b32 {v(V_FC)}, 7, {v(V_LANE)}
        v_lshlrev_b32 {v(V_FC)}, 3, {v(V_FC)}
        s_andn2_b32 {s(S_T2)}, 4, {s(S_Q)}
        s_xor_b32 {s(S_T3)}, {s(S_W)}, 3
        s_lshl3_add_u32 {s(S_T2)}, {s(S_T3)}, {s(S_T2)}
        s_lshl_b32 {s(S_T2)}, {s(S_T2)}, 11
        v_add_u32 {v(V_IB)}, {s(S_T2)}, {v(V_L16)}
        s_and_b32 {s(S_T3)}, {s(S_Q)}, 4
        s_add_u32 {s(S_T2)}, {s(S_T3)}, {s(S_ODD)}
        s_lshl_b32 {s(S_T2)}, {s(S_T2)}, 11
        v_lshl_add_u32 {v(V_BIAS+3)}, {v(V_L15)}, 4, {s(S_T2)}
        s_cmp_ge_u32 {s(S_Q)}, 4 @@ s_cselect_b64 vcc, -1, 0
        v_sub_u32 {v(V_FIX+1)}, 512, v6
        v_cndmask_b32 {v(V_FIX+1)}, v6, {v(V_FIX+1)}, vcc
        v_subrev_u32 {v(V_FIX+2)}, {s(S_T3)}, {v(V_FIX+1)}
        ''') + spread(V_BIAS, V_FIX + 1) + spread(V_BIAS + 2, V_FIX + 2) + L(f'''
        s_add_u32 {s(S_T2)}, {s(S_T3)}, 2
        v_add_u32 {v(V_BIAS+1)}, {s(S_T2)}, {v(V_BIAS+2)}
        v_xor_b32 {v(V_BIAS+3)}, 4, {v(V_BIAS+1)}
        v_add_u32 {v(V_BIAS+2)}, 4, {v(V_BIAS+2)}
        v_lshrrev_b32 v6, 5, {v(V_LANE)}
        v_lshlrev_b32 v6, 4, v6
        s_lshl_b32 {s(S_T1)}, {s(S_T1)}, 1
        v_add_u32 v6, {s(S_T1)}, v6
        v_sub_u32 v7, 2048, {v(V_TT)}
        v_cmp_eq_u32 vcc, 0, {v(V_TT)}
        v_mov_b32 {v(V_OO)}, 1024
        v_cndmask_b32 v7, v7, {v(V_OO)}, vcc
        s_cmp_eq_u32 {s(S_ODD)}, 1 @@ s_cselect_b64 vcc, -1, 0
        v_cndmask_b32 {v(V_OO)}, {v(V_TT)}, v7, vcc
        v_cndmask_b32 {v(V_OO+1)}, v7, {v(V_TT)}, vcc
        v_lshl_add_u32 {v(V_OO)}, {v(V_OO)}, 10, v6
        v_lshl_add_u32 {v(V_OO+1)}, {v(V_OO+1)}, 10, v6
        ''')
        misc = [balloc]
        ev = {}
        tail = []
        EV = {'f': flag, 'i': pissue, 'c': pcheck, 'l': rload, 'd': dforce, 't': lambda js: ensure(16 + num(js)), 'b': gbar,
              'm': lambda js: self.flush(misc), 'e': lambda js: (self.flush(ep), self.flush(m0)), 'q': selq, 'r': rbar, 'a': radd, 'v': pload, 'k': kcheck, 'z': zadd, 'w': pwait, 'x': clean, 'h': lambda js: setattr(self, 'hold', bool(js[0]))}
        for e in o.get('ev', 'e0@32.F0@32.b0@32.C0@32.L123456@32.r0@134.a0@142.q0@190.v0@215.R1.a1.K0.z0').split('.'):
            js = tuple(int(ch) for ch in e.split('@')[0][1:])
            fn = EV[e[0].lower()]
            if '@' in e: ev.setdefault(N3 + int(e.split('@')[1]), []).append((e, fn, js))
            else: tail.append((e, fn, js))
        MB = N3 + o.get('misc0', 150); self.nmisc = len(misc)
        m0 = []
        it = {x: k for k, x in enumerate(self.items)}
        for n, m in enumerate(ml):
            self.n = n
            if n == N3:
                self.stamp('p3 mfma done')
                print('last left: ep', len(ep), 'dq', len(dq), 'tq', len(tq), 'tick', self.tick)
                self.blk = 16
                slots.extend(fr[b, rt] for b in range(12, 16) for rt in range(4))
                slots.extend(BF); slots.extend([V_CS + 8, V_CS + 12])
            if n == N3 + 2: m0 = mis0
            for e, fn, js in ev.get(n, []):
                fn(js)
                if e[0].isupper(): self.stamp(e.split('@')[0] + f' d{len(dq)} t{len(tq)}')
            k = 0
            if m[0] == 'a':
                _, t, rt, b = m
                if b < 16: mm(t, rt, b, fr[b, rt])
                else: A(f'v_mfma_f32_16x16x32_bf16 {v(acc[t,rt],4)}, {v(V_CS+4*t,4)}, {v(BF[rt],4)}, {v(acc[t,rt],4)}')
                if b == 16 and rt & 1: due.append((n + 2, epi(t, rt >> 1)))
            else:
                _, j, ks, rt = m
                b = it[j >> 2, ks]
                ensure(16 + b)
                while (ks, rt) not in RF: self.emit(ep.pop(0))
                rswap(ks, rt >> 1)
                k = A.wait(vm=rv.get((ks, rt)), lg=self.trl[16 + b])
                if ks == 0: pa[j, rt] = slots.pop(0)
                c = v(pa[j, rt], 4)
                A(f'v_mfma_f32_16x16x32_bf16 {c}, {a(16*b+4*(j&3),4)}, {reg(RF[ks,rt])}, {c if ks else "0"}')
                cnt[j, rt] = cnt.get((j, rt), 0) + 1
                if j == 7 and RF[ks, rt][0] == 'v': slots.append(RF[ks, rt][1])
                if rt == 3 and cnt[j, rt] == 7 and j & 3 < 3: due.append((n + 2, red(j)))
                if o.get('fine') == 2 and n - N3 in (32, 48, 64, 80, 96, 127, 176): self.stamp(f'n{n-N3} d{len(dq)} t{len(tq)}')
            self.tick += 1
            while due and due[0][0] <= n: ep += due.pop(0)[1]
            fill(EPK, [ep, None, m0, misc if n >= MB else []], k * SW)
        print('dt', {k: x for k, x in dt.items() if x > -999}); print('tt', {k: x for k, x in tt_.items() if x > -999})
        print('end left: ep', len(ep), 'misc', len(misc), 'dq', len(dq), 'tq', len(tq), 'slots', len(slots))
        self.flush(ep)
        if not any(e[0] in 'mM' for e, _, _ in tail): self.flush(misc)
        self.stamp('p4 mfma done')
        for e, fn, js in tail:
            fn(js)
            if e[0].isupper(): self.stamp(e)
        for rt in range(4):
            for k in range(0, 4, 2):
                A(f'v_pk_fma_f32 {v(pa[7,rt]+k,2)}, {v(pa[7,rt]+k,2)}, {v(RS+(rt&2),2)}, {v(bs[rt]+k,2)} op_sel:[0,{rt&1},0] op_sel_hi:[1,{rt&1},1]')
        self.flush(pack(7))
        for k in range(2):
            c = pa[7, 2 * k]
            A(f'v_permlane16_swap_b32 {v(c)}, {v(c+2)}\nv_permlane16_swap_b32 {v(c+1)}, {v(c+3)}')
            A(f'buffer_store_dwordx4 {v(c,4)}, {v(V_OO+k)}, {s(SRD_OUT,4)}, 0 offen{self.outf}')

    def probe_end(self):
        A = self.A
        a_, b_ = self.opt['probe'].split('-')
        if b_ == 'end':
            A('s_waitcnt vmcnt(0)'); self.stamp('end')
        A(f'''
        s_waitcnt lgkmcnt(0)
        s_sub_u32 {s(S_T0)}, {s(S_TS+4)}, {s(S_TS if a_ == 'start' else S_TS+2)}
        s_lshr_b32 {s(S_T0)}, {s(S_T0)}, {4 if self.opt.get('pcyc') else 0}
        s_min_u32 {s(S_T0)}, {s(S_T0)}, 4000
        s_lshl_b32 {s(S_T0)}, {s(S_T0)}, 2
        s_add_u32 {s(S_T0)}, {s(S_T0)}, 4000
        s_add_u32 {s(S_T0)}, {s(S_T0)}, {s(S_TS)}
        L_pspin:
        s_memrealtime {s(S_TS+6,2)}
        s_waitcnt lgkmcnt(0)
        s_sub_u32 {s(S_T1)}, {s(S_TS+6)}, {s(S_T0)}
        s_cmp_lt_i32 {s(S_T1)}, 0
        s_cbranch_scc1 L_pspin
        ''')

    def dump_ts(self):
        if self.opt.get('probe'): return self.probe_end()
        if not self.diag: return
        A = self.A
        A('s_waitcnt vmcnt(0)')
        self.stamp('end')
        A(f'''
        s_lshl_b32 {s(S_T0)}, s2, 2
        s_add_u32 {s(S_T0)}, {s(S_T0)}, {s(S_W)}
        s_lshl_b32 {s(S_T0)}, {s(S_T0)}, 7
        s_add_u32 {s(S_T0)}, {s(S_T0)}, {WS_TS}
        s_getreg_b32 {s(S_T1)}, hwreg(HW_REG_XCC_ID)
        s_waitcnt lgkmcnt(0)
        s_mov_b64 exec, 1
        ''')
        for i in range(20): A(f'v_mov_b32 {v(16+i)}, {s(S_TS+2*i) if i < len(self.names) else 0}')
        A(f'v_mov_b32 v40, {s(S_T1)}')
        A(f'v_mov_b32 v41, {s(S_FAST)}')
        for i in range(5):
            A(f'buffer_store_dwordx4 {v(16+4*i,4)}, off, {s(SRD_WS,4)}, {s(S_T0)} offset:{16*i}')
        A(f'buffer_store_dwordx2 v[40:41], off, {s(SRD_WS,4)}, {s(S_T0)} offset:80')

    def build(self):
        A = self.A
        self.p1()
        self.window()
        self.p23()
        A.on = False
        self.dump_ts()
        if self.opt.get('sched', 1):
            import sched
            A = sched.run(A.prog, self.opt.get('win', 20))
            r = A.report
            print('model:', ' | '.join(f'{r[i][0]} {r[i][1]-r[i-1][1]}' for i in range(1, len(r))))
            self.A = A
        hdr = f'''; FNet (2D DFT, factored) + LayerNorms + squared-ReLU FFN, one persistent launch.
; @launch grid=(256,1,1) block=(256,1,1) lds=163840
''' + (f'; names: {",".join(self.names)}\n' if self.diag else '') + f'''.amdgcn_target "amdgcn-amd-amdhsa--gfx950"
.text
.globl {KNAME}
{self.align()}.p2align 8
.type {KNAME},@function
{KNAME}:
'''
        ftr = f'''L_end:
    s_endpgm
.section .rodata,"a"
.p2align 6
.amdhsa_kernel {KNAME}
  .amdhsa_next_free_vgpr 512
  .amdhsa_next_free_sgpr 102
  .amdhsa_accum_offset 256
  .amdhsa_group_segment_fixed_size 0
  .amdhsa_kernarg_size 104
  .amdhsa_user_sgpr_count 2
  .amdhsa_user_sgpr_kernarg_segment_ptr 1
  .amdhsa_system_sgpr_workgroup_id_x 1
.end_amdhsa_kernel
'''
        import pads
        return hdr + '\n'.join(pads.apply(hdr, A.text().rstrip('\n').split('\n'), ftr, self.opt, S_W)) + '\n' + ftr

if __name__ == '__main__':
    out = sys.argv[1]
    opt = {}
    for x in sys.argv[2:]:
        if '=' in x:
            k, val = x.split('='); opt[k] = int(val) if val.lstrip('-').isdigit() else val.replace('_', ' ')
    g = Gen(diag='diag' in sys.argv[2:], opt=opt)
    t = g.build()
    open(out, 'w').write(t)
    print('nops inserted', g.A.nops, 'stamps', len(g.names))
```

```python
import sys
import sched
from asmlib import *

KNAME = 'sequential_preLN__spectral_fnet__dense_activation_squared_relu__prompt_kernel'
WS_Z, WS_HN, WS_R, WS_ST, WS_FL, WS_TS = 0, 2 << 20, 4 << 20, 12 << 20, 13 << 20, 14 << 20
WS_SIZE = 32 << 20
WS_P2 = 32 << 20
S_LT, S_FLA = 100, 101
WS_P = 16 << 20
FP = WS_ST
F1 = WS_FL + 0x10000
F3 = WS_FL + 0x4000
FX = WS_FL + 0x6000
FX2 = WS_FL + 0x8000
FX3 = WS_FL + 0x40000
FE = WS_FL + 0x7000
HPW = 16384
L_S = 65536
SPW = 20480
L_M = L_S + 4 * SPW
L_EXC, L_XE, L_STAT = L_M, L_M + 8192, L_M + 10240
S_W = 3
S_T0, S_T1, S_T2, S_T3 = 4, 5, 6, 7
SRD_X, SRD_W1, SRD_W2, SRD_OUT, SRD_WS, SRD_B1, SRD_B2 = 8, 12, 16, 20, 24, 28, 32
S_CNT, S_FAST = 36, 37
S_F1 = S_CNT
S_C, S_N, S_U, S_Q = 38, 39, 40, 41
S_TB1, S_ODD, S_TW, S_W2S, S_BG, S_HB0 = 42, 43, 44, 45, 46, 47
S_XO = 48
S_RR = 52
S_FIX = 56
S_AM0, S_TCH = 58, 59
S_M = 60
S_TS = 62
S_HB, S_SB = 0, 1
V_LANE, V_L15, V_G, V_L16, V_TAG = 0, 1, 2, 3, 4
V_L128 = 14
ZF, TB, Y = 16, 80, 192
V_ONES = 144
V_W1U, V_W1D = 148, 152
V_W1R = 156
V_CS = 160
V_SEL = 176
AD_ = 224
V_FXV = 180
V_BT, V_TD = 182, 183
V_FIX = 184
V_ZA = 188
V_TT = 190
V_W2A = 148
V_W2R = 152


SW = 0.4
class TAsm(Asm):
    def __init__(self):
        super().__init__(); self.nvm = 0; self.nlg = 0; self.dvm = 0; self.dlg = 0
        self.prog = []; self.on = False; self.wt = 0; self.clk = None
    def label(self, name): super().label(name); self.prog.append(('label', name))
    def raw(self, t): super().raw(t); self.prog.append(('raw', t))
    def snap(self):
        self._snap = (list(self.hist), self.nvm); self.prog.append(('snap',))
    def unsnap(self):
        self.hist, self.nvm = self._snap; self.prog.append(('unsnap',))
    def i(self, text):
        if getattr(self, 'drop', None) and self.drop(text): return
        super().i(text)
        self.prog.append(('i', text, self.on))
        c = self.hist[-1]
        self.wt += 0 if c.is_mfma else 2 if c.is_vmem else 4 if c.op == 'ds_write_b128' else 2 if c.is_trans else 1 if (c.is_ds or c.is_valu) else SW
        if self.clk: self.clk.do(c, sched.klass(c))
        if c.is_vmem: self.nvm += 1
        if c.is_ds: self.nlg += 1
    def wait(self, vm=None, lg=None):
        p = []
        if vm is not None and vm > self.dvm:
            n = min(63, self.nvm - vm); p.append(f'vmcnt({n})'); self.dvm = self.nvm - n
        if lg is not None and lg > self.dlg:
            n = min(15, self.nlg - lg); p.append(f'lgkmcnt({n})'); self.dlg = self.nlg - n
        if p: self('s_waitcnt ' + ' '.join(p))
        return 1 if p else 0

def L(txt): return [x.strip().replace(' @@ ', '\n') for x in txt.strip().split('\n') if x.strip()]

class Gen:
    def __init__(self, diag=False, opt=None):
        self.A = TAsm(); self.diag = diag; self.nts = 0; self.names = []
        self.opt = opt or {}
        self.fsh = 4
        fl = lambda k, d: (' ' + self.opt[k]).rstrip() if self.opt.get(k, 'pl') != 'pl' else ('' if k in self.opt else d)
        self.ldf = fl('ldf', ' sc1'); self.outf = fl('outf', ' nt'); self.zldf = fl('zldf', ' sc1'); self.plf = fl('plf', ' sc1'); self.fef = fl('fef', ' sc1'); self.fxf = fl('fxf', ' sc1')
        self.skip = set()
        self.nofence = set(); self.skip = set() if self.opt.get('alls') else {'x first', 'kernarg', 'pre F1'}
        if self.opt.get('fine'): self.skip = {'kernarg', 'tables', 'x first', 'gemm1 done', 'Z stores', 'F1 set', 'p2 prepoll', 'pre F1', 'Z first', 'Z landed'}

    def stamp(self, name):
        if self.opt.get('fine') == 3 and not (name.startswith('wd') or name in ('start', 'gemm1 done', 'Z stores', 'pre F1', 'F1 set', 'p2 prepoll', 'p2 polled', 'Z first', 'end')): self.skip.add(name)
        elif self.opt.get('fine') == 3: self.skip.discard(name)
        if name not in self.nofence: self.A.prog.append(('fence', name))
        elif not self.opt.get('allst'): return
        pr = self.opt.get('probe')
        if pr:
            a_, b_ = pr.split('-')
            if name == 'start': self.A(f's_memrealtime {s(S_TS, 2)}')
            ins = 's_memtime' if self.opt.get('pcyc') else 's_memrealtime'
            if name == a_ and name != 'start': self.A(f'{ins} {s(S_TS+2, 2)}')
            if name == b_: self.A(f'{ins} {s(S_TS+4, 2)}')
            return
        if self.diag and name not in self.skip:
            idx = len(self.names); self.names.append(name)
            assert idx < 19
            self.A(f'{"s_memtime" if self.opt.get("cyc") else "s_memrealtime"} {s(S_TS + 2*idx, 2)}')

    def emit(self, x):
        if callable(x): x()
        else: self.A(x)
    def weave(self, lines, bg, every):
        if isinstance(lines, str): lines = L(lines)
        for n, x in enumerate(lines):
            self.emit(x)
            if bg and (n + 1) % every == 0: self.emit(bg.pop(0))
    def flush(self, bg):
        while bg: self.emit(bg.pop(0))

    def srd(self, base, nbytes):
        self.A(f's_mov_b32 {s(base+2)}, {nbytes}\ns_mov_b32 {s(base+3)}, 0x20000')

    def poll(self, vaddr, nl, vtmp):
        A = self.A
        Lp = A.newlabel('poll'); D = A.newlabel('polld')
        on = A.on; A.on = False
        if nl < 64: A(f's_mov_b64 exec, {(1<<nl)-1}')
        A(f's_mov_b32 {s(S_CNT)}, 0x20000')
        A.label(Lp)
        A(f'buffer_load_dwordx2 {v(vtmp,2)}, {v(vaddr)}, {s(SRD_WS,4)}, 0 offen sc1')
        A(f's_sub_u32 {s(S_CNT)}, {s(S_CNT)}, 1')
        A(f's_cbranch_scc1 {D}')
        A('s_waitcnt vmcnt(0)')
        A(f'v_cmp_ne_u64 vcc, {v(vtmp,2)}, {v(V_TAG,2)}')
        A(f's_cbranch_vccnz {Lp}')
        A.label(D)
        A('s_waitcnt vmcnt(0)')
        A.dvm = A.nvm
        if nl < 64: A('s_mov_b64 exec, -1')
        A.on = on

    def setflag(self, soff, sc):
        A = self.A
        A('s_mov_b64 exec, 1')
        A(f'buffer_store_dwordx2 {v(V_TAG,2)}, off, {s(SRD_WS,4)}, {s(soff)}{sc}')
        A('s_mov_b64 exec, -1')

    def dualflag(self, soff):
        A = self.A
        if self.opt.get('nofast'): return self.setflag(soff, ' sc1')
        LS = A.newlabel('slow'); LJ = A.newlabel('dj')
        A(f's_cmp_eq_u32 {s(S_FAST)}, 0\ns_cbranch_scc1 {LS}')
        A.snap()
        self.setflag(soff, '')
        A(f's_branch {LJ}')
        A.label(LS)
        A.unsnap()
        self.setflag(soff, ' sc1')
        A.label(LJ)

    def touch(self, vd, srd, soff, lanes, fl='', va=V_L128):
        A = self.A
        if lanes < 64: A(f's_mov_b64 exec, {hex((1<<lanes)-1)}' if lanes < 32 else f's_mov_b32 exec_hi, {hex((1<<(lanes-32))-1)}')
        A(f'buffer_load_dword {v(vd)}, {v(va)}, {s(srd,4)}, {s(soff)} offen{fl}')
        if lanes < 64: A('s_mov_b64 exec, -1')
    def w1touch(self, l0, l1):
        A = self.A
        m = ((1 << l1) - 1) & ~((1 << l0) - 1)
        A(f'''
        s_bfe_u32 {s(S_TCH)}, {s(S_TW)}, 0x20004
        s_lshl_b32 {s(S_TCH)}, {s(S_TCH)}, 6
        s_bitcmp1_b32 {s(S_TW)}, 6
        s_cselect_b32 {s(S_BG)}, 257, 32
        s_add_u32 {s(S_TCH)}, {s(S_TCH)}, {s(S_BG)}
        s_and_b32 {s(S_BG)}, {s(S_TW)}, 15
        s_lshl1_add_u32 {s(S_TCH)}, {s(S_BG)}, {s(S_TCH)}
        s_mul_i32 {s(S_TCH)}, {s(S_TCH)}, 3584
        s_mov_b32 exec_lo, {hex(m & 0xffffffff)}
        s_mov_b32 exec_hi, {hex(m >> 32)}
        buffer_load_dword {v(V_TD)}, {v(V_L128)}, {s(SRD_W1,4)}, {s(S_TCH)} offen
        s_mov_b64 exec, -1
        ''')
    def w2touch(self, k):
        A = self.A
        if k is not None:
            LS = A.newlabel('nt'); A(f's_cmp_lg_u32 {s(S_C)}, {k}\ns_cbranch_scc1 {LS}'); A.snap()
        A(f's_mul_i32 {s(S_TCH)}, {s(S_TW)}, {112*128}')
        self.touch(V_TD, SRD_W2, S_TCH, 64)
        A(f's_add_u32 {s(S_TCH)}, {s(S_TCH)}, 8192')
        self.touch(V_TD, SRD_W2, S_TCH, 48)
        if k is not None:
            A.label(LS); A.unsnap()
    def g2touch(self, m, part=None):
        A = self.A
        if m == 1:
            A(f'''
            v_mul_u32_u24 {v(V_BT)}, {3584-2048}, {v(V_G)}
            v_add_u32 {v(V_BT)}, {v(V_BT)}, {v(V_L128)}
            s_lshr_b32 {s(S_TCH)}, {s(S_Q)}, 2
            s_lshl3_add_u32 {s(S_TCH)}, {s(S_TW)}, {s(S_TCH)}
            s_mul_i32 {s(S_TCH)}, {s(S_TCH)}, 1792
            ''')
            if part == 'a': A(f's_and_b32 {s(S_BG)}, s2, 6\ns_lshl_b32 {s(S_BG)}, {s(S_BG)}, 3\ns_lshl_b64 exec, 0x3fff, {s(S_BG)}')
            else: A('s_mov_b32 exec_lo, 0x3fff3fff\ns_mov_b32 exec_hi, 0x3fff3fff')
            A(f'''
            buffer_load_dword {v(V_TD)}, {v(V_BT)}, {s(SRD_W1,4)}, {s(S_TCH)} offen
            s_mov_b64 exec, -1
            ''')
        else:
            A(f"""
            s_lshr_b32 {s(S_BG)}, {s(S_Q)}, 2
            s_lshl_b32 {s(S_BG)}, {s(S_BG)}, 7
            s_add_u32 {s(S_TCH)}, {s(S_TW)}, {s(S_BG)}
            s_mul_i32 {s(S_TCH)}, {s(S_TCH)}, 7168
            """)
            if part == 'a':
                A(f's_and_b32 {s(S_BG)}, s2, 6\ns_mul_i32 {s(S_BG)}, {s(S_BG)}, 896\ns_add_u32 {s(S_TCH)}, {s(S_TCH)}, {s(S_BG)}')
                self.touch(V_TD, SRD_W2, S_TCH, 14)
            else: self.touch(V_TD, SRD_W2, S_TCH, 56)
    def wtouch(self, vd, srd, l0, lanes):
        A = self.A
        A(f's_mul_i32 {s(S_TCH)}, {s(S_TW)}, {lanes*128}\ns_add_u32 {s(S_TCH)}, {s(S_TCH)}, {l0*128*128}')
        self.touch(vd, srd, S_TCH, lanes)

    def w1_setup(self):
        return L(f'''
        s_mul_i32 {s(S_T0)}, {s(S_Q)}, 448
        s_lshr_b32 {s(S_T1)}, {s(S_W)}, 1
        s_mul_i32 {s(S_T1)}, {s(S_T1)}, 224
        s_mul_i32 {s(S_T2)}, {s(S_ODD)}, 96
        s_add_u32 {s(S_T0)}, {s(S_T0)}, {s(S_T1)}
        s_add_u32 {s(S_T0)}, {s(S_T0)}, {s(S_T2)}
        v_lshlrev_b32 v6, 1, {v(V_G)}
        v_xor_b32 v6, v6, {v(V_LANE)}
        v_and_b32 v6, 7, v6
        v_lshl_add_u32 v6, v6, 4, {s(S_T0)}
        v_lshrrev_b32 v7, 5, {v(V_LANE)}
        v_bfe_u32 v8, {v(V_LANE)}, 3, 2
        v_lshl_add_u32 v7, v7, 3, v8
        v_sub_u32 v8, 11, v7
        s_movk_i32 {s(S_T3)}, 3584
        v_mad_u32_u24 {v(V_W1U)}, v7, {s(S_T3)}, v6
        v_mad_u32_u24 {v(V_W1D+3)}, v8, {s(S_T3)}, v6
        v_add_u32 {v(V_W1U+1)}, {16*3584-1024}, {v(V_W1U)}
        v_add_u32 {v(V_W1U+2)}, {4*3584-2048}, {v(V_W1U)}
        v_add_u32 {v(V_W1U+3)}, {20*3584-3072}, {v(V_W1U)}
        v_add_u32 {v(V_W1D)}, {20*3584+3072}, {v(V_W1D+3)}
        v_add_u32 {v(V_W1D+1)}, {4*3584+2048}, {v(V_W1D+3)}
        v_add_u32 {v(V_W1D+2)}, {16*3584+1024}, {v(V_W1D+3)}
        v_lshrrev_b32 v6, 2, {v(V_LANE)}
        v_lshlrev_b32 v6, 7, v6
        v_and_b32 v7, 3, {v(V_LANE)}
        v_lshl_add_u32 v6, v7, 3, v6
        v_add_u32 v6, {s(S_SB)}, v6
        v_bfe_u32 v7, {v(V_LANE)}, 3, 2
        ''') + sum([L(f'''
        s_add_u32 {s(S_T0)}, {s(S_ODD)}, {t}
        s_and_b32 {s(S_T0)}, {s(S_T0)}, 3
        v_xor_b32 v8, {s(S_T0)}, v7
        v_lshl_add_u32 {v(V_W1R+t)}, v8, 5, v6
        ''') for t in range(4)], [])
    def w1_dma(self, b, slot):
        A = self.A; q1, ip, var = b >> 3, (b >> 1) & 3, b & 1; n = 2 * var + q1
        ops = []
        for i in range(4):
            def f(i=i):
                if i == 0:
                    A(f's_xor_b32 {s(S_BG)}, {s(S_C)}, {ip}')
                    A(f's_mul_i32 {s(S_BG)}, {s(S_BG)}, {64*3584}')
                    if var == 0:
                        if q1: A(f's_add_u32 {s(S_BG)}, {s(S_BG)}, {32*3584}')
                    else: A(f's_sub_u32 {s(S_BG)}, {(512-31-32*q1)*3584 - 3072}, {s(S_BG)}')
                    A(f's_add_u32 m0, {s(S_SB)}, {slot*4096}')
                if n == 2 and i == 0:
                    A(f'''
                    v_add_u32 {v(V_BT)}, {s(S_BG)}, {v(V_W1D)}
                    s_cmp_eq_u32 {s(S_C)}, {ip}
                    s_cselect_b64 exec, 0xff, 0
                    v_subrev_u32 {v(V_BT)}, {256*3584}, {v(V_BT)}
                    s_mov_b64 exec, -1
                    buffer_load_dwordx4 {v(V_BT)}, {s(SRD_W1,4)}, 0 offen lds
                    ''')
                else:
                    A(f'buffer_load_dwordx4 {v((V_W1D if var else V_W1U)+i)}, {s(SRD_W1,4)}, {s(S_BG)} offen offset:{i*1024} lds')
                if i == 3: self.w1m[b] = A.nvm
            ops.append(f)
        return ops
    def w1_tr(self, b, slot):
        A = self.A; ops = []
        for t in range(4):
            for hh in range(2):
                def f(t=t, hh=hh):
                    A.wait(vm=self.w1m[b])
                    A(f'ds_read_b64_tr_b16 {a(16*b+4*t+2*hh,2)}, {v(V_W1R+t)} offset:{slot*4096+hh*2048}')
                    self.w1l[b] = A.nlg
                ops.append(f)
        return ops
    def w1_cs(self, b):
        A = self.A; ops = []
        for t in range(4):
            def f(t=t):
                A.wait(lg=self.w1l[b])
                c = v(V_CS + 4 * t, 4)
                A(f'v_mfma_f32_16x16x32_bf16 {c}, {v(V_ONES,4)}, {a(16*b+4*t,4)}, {c if self.csn[t] else "0"}')
                self.csn[t] += 1
            ops.append(f)
        return ops
    def w1_pipeline(self):
        order = self.w1order; NS = 5
        seq = []
        for k in range(NS): seq.append(('dma', k))
        for k in range(16):
            seq.append(('tr', k))
            if k >= 1:
                seq.append(('cs', k - 1))
                if k - 1 + NS < 16: seq.append(('dma', k - 1 + NS))
        seq.append(('cs', 15))
        out = []
        for kind, k in seq:
            b = order[k]
            if kind == 'dma': ops = self.w1_dma(b, k % NS)
            elif kind == 'tr': ops = self.w1_tr(b, k % NS)
            else: ops = self.w1_cs(b)
            out.append((kind, k, ops))
        return out

    def w2_setup(self):
        return L(f"""
        v_lshlrev_b32 {v(V_W2A)}, 1, {v(V_G)}
        v_xor_b32 {v(V_W2A)}, {v(V_W2A)}, {v(V_LANE)}
        v_and_b32 {v(V_W2A)}, 7, {v(V_W2A)}
        v_lshrrev_b32 {v(V_W2A+1)}, 3, {v(V_LANE)}
        v_lshlrev_b32 {v(V_W2A+1)}, 10, {v(V_W2A+1)}
        v_lshl_add_u32 {v(V_W2A)}, {v(V_W2A)}, 4, {v(V_W2A+1)}
        s_mul_i32 {s(S_W2S)}, {s(S_W)}, {7*8192} @@ s_add_u32 {s(S_W2S)}, {s(S_W2S)}, 8192 @@ s_and_b32 {s(S_W2S)}, {s(S_W2S)}, {hex(0xffffc000)}
        s_lshl_b32 {s(S_BG)}, {s(S_Q)}, 7 @@ s_add_u32 {s(S_W2S)}, {s(S_W2S)}, {s(S_BG)}
        v_add_u32 {v(V_W2A+1)}, {8192-1024}, {v(V_W2A)}
        """)
    def w2_setup_r(self):
        return L(f"""
        s_and_b32 {s(S_TCH)}, {s(S_W)}, 2 @@ s_lshl_b32 {s(S_TCH)}, {s(S_TCH)}, 5 @@ v_xor_b32 {v(V_W2R+3)}, {s(S_TCH)}, {v(V_W1R)}
        v_xor_b32 {v(V_W2R)}, 96, {v(V_W2R+3)}
        v_xor_b32 {v(V_W2R+1)}, 64, {v(V_W2R+3)}
        v_xor_b32 {v(V_W2R+2)}, 32, {v(V_W2R+3)}
        """)
    def w2_dma(self, b, slot):
        A = self.A; h, ks = self.items[b]; ops = []
        def base(x, c):
            if ks == 6:
                A(f's_lshl1_add_u32 {s(S_BG)}, {s(S_ODD)}, {x}')
                A(f's_xor_b32 {s(S_BG)}, {s(S_BG)}, {s(S_Q)}')
            elif x: A(f's_xor_b32 {s(S_BG)}, {s(S_Q)}, {x}')
            A(f's_mul_i32 {s(S_BG)}, {s(S_BG if x or ks == 6 else S_Q)}, {224*1024}')
            A(f's_add_u32 {s(S_BG)}, {s(S_BG)}, {s(S_W2S)}')
            if ks == 6:
                A(f's_lshl_b32 {s(S_RR+3)}, {s(S_ODD)}, 16')
                A(f's_sub_u32 {s(S_BG)}, {s(S_BG)}, {s(S_RR+3)}')
            if c: A(f's_add_u32 {s(S_BG)}, {s(S_BG)}, {c}')
            if h == 0: A(f's_xor_b32 {s(S_BG)}, {s(S_BG)}, 512')
        for i in range(4):
            def f(i=i):
                if i == 0:
                    base(*((ks, 0) if ks < 4 else (2 * (ks - 4), 32768) if ks < 6 else (0, 49152)))
                    A(f's_add_u32 m0, {s(S_SB)}, {slot*4096}')
                if i == 2:
                    if ks < 4: A(f's_add_u32 {s(S_BG)}, {s(S_BG)}, {16384 - 2048}')
                    else: base(*((2 * (ks - 4) + 1, 32768 - 2048) if ks < 6 else (1, 49152 - 2048)))
                A(f'buffer_load_dwordx4 {v(V_W2A+(i&1))}, {s(SRD_W2,4)}, {s(S_BG)} offen offset:{i*1024} lds')
                if i == 3: self.w2m[b] = A.nvm
            ops.append(f)
        return ops
    def w2_tr(self, b, slot):
        A = self.A; ops = []
        for t in range(4):
            for hh in range(2):
                def f(t=t, hh=hh):
                    assert self.blk > b, 'w2 fragment would overwrite live w1'
                    A.wait(vm=self.w2m[b])
                    A(f'ds_read_b64_tr_b16 {a(16*b+4*t+2*hh,2)}, {v(V_W2R+t)} offset:{slot*4096+hh*2048}')
                    self.trl[16 + b] = A.nlg
                ops.append(f)
        return ops
    def smalltouch(self, T):
        self.A(f's_mul_i32 {s(T)}, {s(S_Q)}, 448\ns_lshl_b32 {s(T+1)}, {s(S_W)}, 8')
        self.touch(V_TD, SRD_B1, T, 5); self.touch(V_TD, SRD_B2, T + 1, 2)
        self.touch(191, SRD_WS, S_FLA, 1, ' sc1')
        if self.opt.get('tll'):
            self.A(f's_add_u32 {s(T)}, {s(S_RR)}, 8192')
            self.touch(191, SRD_WS, T, 24, ' sc1')
    def ptouch(self, js=(0, 1, 2), T=S_RR + 2):
        A = self.A
        n = self.opt.get('npl', 3); tf = ' ' + self.opt.get('tf', 'sc1')
        A(f's_lshl3_add_u32 {s(T)}, {s(S_U)}, {s(S_Q)}')
        A(f"""
        s_lshl_b32 {s(T)}, {s(T)}, 5
        s_add_u32 {s(T)}, {s(T)}, {s(S_W)}
        s_lshl2_add_u32 {s(T)}, {s(S_Q) if self.opt.get('lay') else 0}, {s(T)}
        s_lshl_b32 {s(T)}, {s(T)}, 11
        s_add_u32 {s(T)}, {s(T)}, {WS_P + 8192}
        """)
        if 0 in js:
            A(f's_sub_u32 {s(T+1)}, {s(T)}, {8192 - 128}')
            self.touch(191, SRD_WS, T + 1, 11 if self.opt.get('zc') else 7, ' sc1')
        if 3 in js:
            A(f"""
            s_sub_u32 {s(T+1)}, {s(T)}, 8192
            v_mul_u32_u24 v191, {65536+128}, {v(V_LANE)}
            v_xor_b32 v191, {s(T+1)}, v191
            s_mov_b64 exec, 0xfe
            buffer_load_dword v191, v191, {s(SRD_WS,4)}, 0 offen sc1
            s_mov_b64 exec, -1
            """)
        if 4 in js:
            A(f's_add_u32 {s(T+1)}, {s(T)}, 16384')
            self.touch(191, SRD_WS, T + 1, 16, tf)
        if 1 not in js and 2 not in js: return
        A(f"""
        v_mul_u32_u24 {v(V_W2A+2)}, {8192-2048}, {v(V_G)}
        v_add_u32 {v(V_W2A+2)}, {v(V_W2A+2)}, {v(V_L128)}
        """)
        if 1 in js: self.touch(191, SRD_WS, T, min(64, 16 * n), tf, va=V_W2A + 2)
        if n > 4 and 2 in js:
            A(f's_add_u32 {s(T)}, {s(T)}, 32768')
            self.touch(191, SRD_WS, T, 16 * (n - 4), tf, va=V_W2A + 2)

    def fxst(self, T, V):
        A = self.A; LS = A.newlabel('nfx')
        if self.opt.get('fxp') >= 3:
            return A(f'''
        s_getreg_b32 {s(T)}, hwreg(HW_REG_XCC_ID)
        s_and_b32 {s(T)}, {s(T)}, 15
        v_add_u32 {v(V)}, {s(T)}, {v(V_TAG)}
        v_mov_b32 {v(V+1)}, {v(V_TAG+1)}
        s_lshl2_add_u32 {s(T)}, {s(S_U)}, {s(S_W)}
        s_lshl3_add_u32 {s(T)}, {s(T)}, {s(S_Q)}
        s_lshl_b32 {s(T)}, {s(T)}, 7
        s_add_u32 {s(T)}, {s(T)}, {FX3}
        s_mov_b64 exec, 1
        buffer_store_dwordx2 {v(V,2)}, off, {s(SRD_WS,4)}, {s(T)} sc1
        s_mov_b64 exec, -1
        ''')
        A(f's_cmp_lg_u32 {s(S_W)}, {self.opt.get("fxw", 0)}\ns_cbranch_scc1 {LS}')
        A.snap()
        A(f'''
        s_getreg_b32 {s(T)}, hwreg(HW_REG_XCC_ID)
        s_and_b32 {s(T)}, {s(T)}, 15
        v_add_u32 {v(V)}, {s(T)}, {v(V_TAG)}
        v_mov_b32 {v(V+1)}, {v(V_TAG+1)}
        s_lshl3_add_u32 {s(T)}, {s(S_U)}, {s(S_Q)}
        s_lshl_b32 {s(T)}, {s(T)}, 7
        s_add_u32 {s(T)}, {s(T)}, {FX2}
        s_mov_b64 exec, 1
        buffer_store_dwordx2 {v(V,2)}, off, {s(SRD_WS,4)}, {s(T)} sc1
        s_mov_b64 exec, -1
        ''')
        A.label(LS); A.unsnap()
    def align(self):
        if 'pg' not in self.opt: return ''
        return '.p2align 12\n' + (f".fill {self.opt['pg']//4}, 4, 0xbf810000\n" if self.opt['pg'] else '')
    def site(self, X):
        if 'pad' + X in self.opt: self.A.raw(f';SITE {X}')
    def cpf(self):
        self.A(f'''
        s_getpc_b64 {s(S_M,2)}
        L_pc0:
        s_lshr_b32 {s(S_FAST)}, s2, 3
        s_lshl2_add_u32 {s(S_FAST)}, {s(S_FAST)}, {s(S_W)}
        s_lshl_b32 {s(S_FAST)}, {s(S_FAST)}, 8
        s_min_u32 {s(S_FAST)}, {s(S_FAST)}, L_end-L_pc0-192
        ''')
        for k in range(4): self.A(f's_load_dword {s(S_CNT)}, {s(S_M,2)}, {s(S_FAST)} offset:{64*k}')

    def p1(self):
        A = self.A; o = self.opt
        X, R1, SUM, SQ, FS, ACC = 16, 160, 168, 172, 192, 224
        V_SGN, V_FAC, V_ZO, V_EW, V_XD, V_XR, V_ER = 176, 177, 178, 179, 184, 186, 191
        A(f'''
        s_cmp_ge_u32 s2, 256
        s_cbranch_scc1 L_end
        s_load_dwordx2 {s(SRD_X,2)}, s[0:1], 0
        s_load_dwordx2 {s(SRD_WS,2)}, s[0:1], 96
        s_load_dwordx2 {s(SRD_W1,2)}, s[0:1], 48
        s_load_dwordx2 {s(SRD_W2,2)}, s[0:1], 64
        s_load_dwordx2 {s(SRD_B1,2)}, s[0:1], 56
        s_load_dwordx2 {s(SRD_B2,2)}, s[0:1], 72
        s_load_dwordx2 {s(SRD_OUT,2)}, s[0:1], 80
        ''')
        self.stamp('start')
        if self.opt.get('cpf', 0) == 3:
            A(f'''
            s_getpc_b64 {s(S_M,2)}
            L_pc0:
            s_lshr_b32 {s(S_T0)}, s2, 3
            s_lshl_b32 {s(S_T0)}, {s(S_T0)}, 10
            v_lshl_add_u32 v7, v0, 2, {s(S_T0)}
            v_min_u32 v7, L_end-L_pc0, v7
            global_load_dword {v(V_TD)}, v7, {s(S_M,2)}
            ''')
        A(f'''
        v_lshrrev_b32 v6, 6, v0
        v_and_b32 {v(V_LANE)}, 63, v0
        v_readfirstlane_b32 {s(S_W)}, v6
        ''')
        if self.opt.get('cpf', 0) == 1: self.cpf()
        A(f'''
        v_and_b32 {v(V_L15)}, 15, {v(V_LANE)}
        v_lshrrev_b32 {v(V_G)}, 4, {v(V_LANE)}
        v_lshlrev_b32 {v(V_L16)}, 4, {v(V_LANE)}
        v_lshlrev_b32 {v(V_L128)}, 7, {v(V_LANE)}
        s_lshr_b32 {s(S_N)}, s2, 3
        ''')
        if o.get('g2') == 2: A(f'''
        s_and_b32 {s(S_T1)}, s2, 1
        s_and_b32 {s(S_Q)}, {s(S_N)}, 3
        s_lshl2_add_u32 {s(S_Q)}, {s(S_T1)}, {s(S_Q)}
        s_and_b32 {s(S_T1)}, s2, 6
        s_lshr_b32 {s(S_C)}, {s(S_N)}, 3
        s_lshl1_add_u32 {s(S_U)}, {s(S_T1)}, {s(S_C)}
        s_sub_u32 {s(S_T1)}, 32, {s(S_U)}
        s_cmp_eq_u32 {s(S_U)}, 0
        s_cselect_b32 {s(S_T1)}, 16, {s(S_T1)}
        s_bitcmp1_b32 {s(S_N)}, 2
        s_cselect_b32 {s(S_U)}, {s(S_T1)}, {s(S_U)}
        ''')
        elif o.get('g2'): A(f'''
        s_and_b32 {s(S_T1)}, s2, 1
        s_and_b32 {s(S_Q)}, {s(S_N)}, 3
        s_lshl2_add_u32 {s(S_Q)}, {s(S_T1)}, {s(S_Q)}
        s_and_b32 {s(S_T1)}, s2, 6
        s_lshr_b32 {s(S_U)}, {s(S_N)}, 2
        s_and_b32 {s(S_C)}, {s(S_U)}, 3
        s_lshl2_add_u32 {s(S_U)}, {s(S_T1)}, {s(S_U)}
        ''')
        else: A(f'''
        s_and_b32 {s(S_T1)}, s2, 7
        s_and_b32 {s(S_Q)}, {s(S_N)}, 7
        s_lshr_b32 {s(S_C)}, {s(S_N)}, 3
        s_lshl2_add_u32 {s(S_U)}, {s(S_T1)}, {s(S_C)}
        ''')
        A(f'''
        s_lshl_b32 {s(S_HB0)}, {s(S_W)}, 14
        s_and_b32 {s(S_ODD)}, {s(S_W)}, 1
        s_lshl2_add_u32 {s(S_TW)}, {s(S_N)}, {s(S_W)}
        s_lshl_b32 {s(S_T0)}, {s(S_Q)}, 7
        s_and_b32 {s(S_T1)}, {s(S_T0)}, 0x200
        ''')
        for i in range(4):
            A(f's_add_u32 {s(S_T2)}, {s(S_T0)}, {128*i}\ns_and_b32 {s(S_T2)}, {s(S_T2)}, 0x180\ns_or_b32 {s(S_XO+i)}, {s(S_T2)}, {s(S_T1)}')
        self.srd(SRD_X, 2097152); self.srd(SRD_WS, WS_SIZE); self.srd(SRD_W2, 1835008); self.srd(SRD_W1, 1835008)
        self.srd(SRD_B1, 3584); self.srd(SRD_B2, 1024); self.srd(SRD_OUT, 2097152)
        A(f'''
        s_and_b32 {s(S_T0)}, {s(S_W)}, 2
        s_lshl4_add_u32 {s(S_T0)}, {s(S_T0)}, {s(S_ODD)}
        s_lshl_b32 {s(S_T0)}, {s(S_T0)}, 5
        s_add_u32 {s(S_T0)}, {s(S_T0)}, {s(S_U)}
        s_lshl_b32 {s(S_T0)}, {s(S_T0)}, 10
        v_lshrrev_b32 v12, 3, {v(V_LANE)}
        v_and_b32 v13, 7, {v(V_LANE)}
        v_xor_b32 v13, v13, {v(V_G)}
        v_lshlrev_b32 v13, 4, v13
        v_lshl_add_u32 v6, v12, 16, v13
        v_add_u32 {v(V_XD)}, {s(S_T0)}, v6
        v_xor_b32 v6, 64, {v(V_XD)}
        v_add_u32 {v(V_XD+1)}, {8*65536 - 1024}, v6
        ''')
        A(f'''
        s_lshl_b32 {s(S_T0)}, {s(S_Q)}, 5
        v_lshrrev_b32 v6, 2, {v(V_L15)}
        v_and_b32 v7, 3, {v(V_L15)}
        v_lshl_add_u32 v6, v6, 3, v7
        v_add_u32 v6, {s(S_T0)}, v6
        v_add_u32 v7, 4, v6
        v_cmp_eq_u32 vcc, 0, v6
        v_mov_b32 v8, 0x100
        v_cndmask_b32 v6, v6, v8, vcc
        v_cvt_f32_u32 v6, v6
        v_cvt_f32_u32 v7, v7
        v_mul_f32 v6, {f2u(1/512)}, v6
        v_mul_f32 v7, {f2u(1/512)}, v7
        s_add_u32 {s(S_T0)}, {s(S_W)}, {s(S_Q)}
        s_and_b32 {s(S_T0)}, {s(S_T0)}, 3
        s_lshl_b32 {s(S_T0)}, {s(S_T0)}, 6
        v_lshl_add_u32 v8, {v(V_G)}, 3, {s(S_T0)}
        v_cvt_f32_u32 v8, v8
        v_add_f32 v9, {f2u(32.0)}, v8
        s_mul_i32 {s(S_T0)}, {s(S_W)}, {SPW}
        s_add_u32 {s(S_T0)}, {s(S_T0)}, {L_S}
        v_add_u32 v10, {s(S_T0)}, {v(V_L16)}
        ''')
        def tab(kk, et):
            b = X + 32 * et
            A(f'v_mul_f32 {v(b)}, {v(6+et)}, {v(8+kk)}')
            A(f'v_add_f32 {v(b+1)}, {v(b)}, {v(6+et)}')
            if kk == 0: A(f'v_cos_f32 {v(b+2)}, {v(6+et)}')
            for j in range(2):
                A(f'v_cos_f32 {v(b+8+j)}, {v(b+j)}')
                A(f'v_sin_f32 {v(b+16+j)}, {v(b+j)}')
            if kk == 0: A(f'v_add_f32 {v(b+2)}, {v(b+2)}, {v(b+2)}')
            for j in range(2, 8):
                A(f'v_fma_f32 {v(b+8+j)}, {v(b+2)}, {v(b+7+j)}, -{v(b+6+j)}')
                A(f'v_fma_f32 {v(b+16+j)}, {v(b+2)}, {v(b+15+j)}, -{v(b+14+j)}')
            for j in range(4):
                A(f'v_cvt_pk_bf16_f32 {v(b+24+j)}, {v(b+8+2*j)}, {v(b+9+2*j)}')
            for j in range(4):
                A(f'v_cvt_pk_bf16_f32 {v(b+28+j)}, {v(b+16+2*j)}, {v(b+17+2*j)}')
            A(f'ds_write_b128 v10, {v(b+24,4)} offset:{(kk*4+et*2)*1024}')
            A(f'ds_write_b128 v10, {v(b+28,4)} offset:{(kk*4+et*2+1)*1024}')
        npre = o.get('tabpre', 1)
        tabs = [(0, 0), (0, 1), (1, 0), (1, 1)]
        for t in tabs[:npre]: tab(*t)
        A(f's_mov_b32 {s(S_T2)}, {FE}')
        self.site('K')
        A('s_waitcnt lgkmcnt(0)')
        self.stamp('kernarg')
        A.on = bool(o.get('s1', 1))
        xm = []
        def xdma(i):
            A(f's_add_u32 m0, {s(S_HB0)}, {i*2048}')
            so = S_XO + (i >> 1)
            if i & 1:
                A(f's_xor_b32 {s(S_BG)}, {s(so)}, 0x200'); so = S_BG
            A(f'buffer_load_dwordx4 {v(V_XD)}, {s(SRD_X,4)}, {s(so)} offen lds')
            A(f'buffer_load_dwordx4 {v(V_XD+1)}, {s(SRD_X,4)}, {s(so)} offen offset:1024 lds')
            xm.append(A.nvm)
        NX0 = o.get('nx0', 5)
        if o.get('tl1') == 1: A(f'buffer_load_dword {v(V_BT)}, off, {s(SRD_W1,4)}, 0')
        xdma(0)
        if o.get('tl1') == 2: A(f's_buffer_load_dword {s(S_AM0)}, {s(SRD_W1,4)}, 0\ns_buffer_load_dword {s(S_AM0)}, {s(SRD_W1,4)}, 0xffffc\ns_buffer_load_dword {s(S_AM0)}, {s(SRD_W2,4)}, 0\ns_buffer_load_dword {s(S_AM0)}, {s(SRD_W2,4)}, 0xffffc')
        A(f'buffer_load_dwordx2 {v(V_TAG,2)}, off, {s(SRD_WS,4)}, {s(S_T2)}{self.fef}')
        for i in range(1, NX0):
            if o.get('t1e') == i: self.g2touch(1)
            if o.get('t1a') == i: self.g2touch(1, 'a')
            xdma(i)
        if o.get('t1e') == NX0: self.g2touch(1)
        if o.get('t1a') == NX0: self.g2touch(1, 'a')
        T0 = o.get('t0', 0)
        if T0: self.wtouch(V_TD, SRD_W1, 0, T0)
        A.on = False
        if o.get('cpf') == 2: self.cpf()
        if o.get('txr', 0) or o.get('tsc', 0): A(f'''
        s_and_b32 {s(S_T0)}, {s(S_TW)}, 31
        s_lshl_b32 {s(S_T1)}, {s(S_T0)}, 6
        s_sub_u32 {s(S_T1)}, {s(S_T1)}, {s(S_U)}
        s_add_u32 {s(S_T1)}, {s(S_T1)}, 64
        s_and_b32 {s(S_T1)}, {s(S_T1)}, 2047
        s_lshl_b32 {s(S_T1)}, {s(S_T1)}, 10
        ''')
        if o.get('txr', 0):
            for k in range(8): A(f's_buffer_load_dword {s(S_AM0)}, {s(SRD_X,4)}, {s(S_T1)} offset:{128*k}')
        if o.get('tsc', 0): A(f'''
        s_min_u32 {s(S_T1)}, {s(S_T0)}, 27
        s_lshl_b32 {s(S_T1)}, {s(S_T1)}, 7
        s_buffer_load_dword {s(S_AM0)}, {s(SRD_B1,4)}, {s(S_T1)}
        s_and_b32 {s(S_T1)}, {s(S_T0)}, 7
        s_lshl_b32 {s(S_T1)}, {s(S_T1)}, 7
        s_buffer_load_dword {s(S_AM0)}, {s(SRD_B2,4)}, {s(S_T1)}
        ''')
        A.on = bool(o.get('s1', 1))
        if o.get('tlb'):
            LT = [A.newlabel('tl') for _ in range(4)]
            sh = o.get('tlb')
            A(f's_lshl_b32 {s(S_T0)}, {s(S_N)}, 10')
            for k, (srd, st_, base) in enumerate(((SRD_W1, 28672, 0), (SRD_W2, 28672, 0), (SRD_WS, 32768, WS_Z), (SRD_WS, 114688, WS_R))):
                A(f's_cmp_lg_u32 {s(S_W)}, {k}\ns_cbranch_scc1 {LT[k]}')
                A.snap()
                A(f'v_mul_u32_u24 {v(V_BT)}, {st_}, {v(V_LANE)}')
                if base: A(f's_add_u32 {s(S_T0)}, {s(S_T0)}, {base}')
                A(f'buffer_load_dword {v(V_TD)}, {v(V_BT)}, {s(srd,4)}, {s(S_T0)} offen')
                A.label(LT[k]); A.unsnap()
        A(f'''
        s_mov_b32 {s(S_HB)}, {s(S_HB0)}
        s_mul_i32 {s(S_SB)}, {s(S_W)}, {SPW}
        s_add_u32 {s(S_SB)}, {s(S_SB)}, {L_S}
        s_add_u32 {s(S_TB1)}, {s(S_U)}, 1024
        s_cmp_eq_u32 {s(S_U)}, 0
        s_cselect_b32 {s(S_TB1)}, 32, {s(S_TB1)}
        ''')
        self.w1m = {}; self.w1l = {}; self.csn = [0] * 4; self.w2m = {}
        self.w1order = list(range(16))
        if o.get('ord'): self.w1order = [0, 1, 8, 9] + list(range(2, 8)) + list(range(10, 16))
        self.pipe = self.w1_pipeline()
        for k, t in enumerate(tabs[npre:]):
            tab(*t)
            if o.get('t1e') == 10 + k: self.g2touch(1)
            if o.get('t1a') == 10 + k: self.g2touch(1, 'a')
        b = TB
        t2 = L(f'''
        s_mov_b32 {s(S_T2)}, 0xffff
        s_cmp_ge_u32 {s(S_W)}, 2 @@ s_cselect_b32 {s(S_T0)}, {s(S_TB1)}, {s(S_U)} @@ s_cselect_b32 {s(S_T1)}, 0, {f2u(0.25)} @@ s_cselect_b32 {s(S_T2)}, 0xffff0000, {s(S_T2)}
        s_cmp_eq_u32 {s(S_U)}, 0 @@ s_cselect_b32 {s(S_T1)}, {s(S_T1)}, {f2u(0.25)} @@ s_cselect_b32 {s(S_T2)}, {s(S_T2)}, -1
        v_lshl_add_u32 v11, {v(V_L15)}, 6, {s(S_T0)}
        v_cmp_eq_u32 vcc, 0, v11
        v_cvt_f32_u32 v11, v11
        v_mul_f32 v11, {f2u(1/2048)}, v11
        v_lshlrev_b32 v6, 15, {v(V_G)}
        v_and_b32 v6, 0x8000, v6
        v_cndmask_b32 v7, 0, v6, vcc
        s_lshl1_add_u32 {s(S_T0)}, {s(S_ODD)}, {s(S_Q)}
        s_lshl_b32 {s(S_T0)}, {s(S_T0)}, 3
        v_add_u32 v8, {s(S_T0)}, {v(V_G)}
        ''')
        for j in range(4):
            t2 += [f'v_add_u32 v6, {4*j}, v8', 'v_and_b32 v6, 31, v6', 'v_cvt_f32_u32 v6, v6',
                   f'v_mul_f32 {v(b+2*j)}, v6, v11', f'v_add_f32 {v(b+2*j+1)}, {s(S_T1)}, {v(b+2*j)}']
        for j in range(8):
            t2 += [f'v_cos_f32 {v(b+8+j)}, {v(b+j)}', f'v_sin_f32 {v(b+16+j)}, {v(b+j)}']
        for j in range(4):
            d = b + 24 + 8 * (j >> 1) + 2 * (j & 1)
            t2 += [f'v_cvt_pk_bf16_f32 {v(d)}, {v(b+8+2*j)}, {v(b+9+2*j)}',
                   f'v_cvt_pk_bf16_f32 {v(d+5)}, {v(b+16+2*j)}, {v(b+17+2*j)}',
                   f'v_and_b32 {v(d)}, {s(S_T2)}, {v(d)}', f'v_and_b32 {v(d+5)}, {s(S_T2)}, {v(d+5)}',
                   f'v_xor_b32 {v(d+4)}, v7, {v(d)}', f'v_xor_b32 {v(d+1)}, 0x80008000, {v(d+5)}']
        for k in range(2):
            for var in range(2):
                t2.append(f'ds_write_b128 v10, {v(b+24+8*k+4*var,4)} offset:{8192+k*2048+var*1024}')
        self.flush(t2)
        XRP = o.get('xrp', 0)
        VM = 16 if XRP >= 2 else 148
        vmset = (f'''
        v_sub_u32 v7, 15, v12
        v_lshl_add_u32 {v(VM)}, v7, 16, v13
        v_xor_b32 {v(VM+1)}, {8*65536+64}, {v(VM)}
        s_sub_u32 {s(S_RR)}, 1088, {s(S_U)}
        s_lshl_b32 {s(S_RR)}, {s(S_RR)}, 10
        s_sub_u32 {s(S_RR+1)}, 1088, {s(S_TB1)}
        s_lshl_b32 {s(S_RR+1)}, {s(S_RR+1)}, 10
        s_lshl_b32 {s(S_RR+2)}, {s(S_W)}, 7
        s_sub_u32 {s(S_RR+3)}, 896, {s(S_RR+2)}
        v_add_u32 v6, {s(S_RR)}, {v(VM)}
        v_lshrrev_b32 v7, 1, v6
        v_and_b32 v7, {1<<20}, v7
        v_sub_u32 {v(VM+2)}, v6, v7
        v_and_b32 {v(VM+3)}, {(1<<21)-1}, v6
        ''')
        if XRP < 2: A(vmset)
        A(f'''
        v_mov_b32 v6, {s(S_U)}
        v_mov_b32 v7, {s(S_TB1)}
        v_and_b32 v8, 1, {v(V_G)}
        v_cmp_eq_u32 vcc, 1, v8
        v_add_u32 v10, {L_S}, {v(V_L16)}
        v_add_u32 v11, {L_S+2*SPW}, {v(V_L16)}
        v_cndmask_b32 v6, v6, v7, vcc
        v_lshl_add_u32 {v(V_TT)}, {v(V_L15)}, 6, v6
        v_lshrrev_b32 v6, 1, {v(V_L15)}
        v_xor_b32 v6, v6, {v(V_G)}
        v_lshlrev_b32 v6, 4, v6
        v_lshl_add_u32 v15, {v(V_L15)}, 7, v6
        v_add_u32 {v(V_XR)}, {s(S_HB)}, v15
        v_xor_b32 {v(V_XR+1)}, 64, {v(V_XR)}
        ''')
        for i in range(4): A(f'v_mov_b32 {v(V_ONES+i)}, 0x3f803f80')
        xr = []
        for m in (1, 0):
            for side in range(2):
                for hh in (1, 0):
                    def f(m=m, side=side, hh=hh):
                        A(f's_add_u32 m0, {s(S_SB)}, {12288+m*4096+side*2048+hh*1024}')
                        if hh == 0 and m == 0: A(f'buffer_load_dwordx4 {v(VM+2+side)}, {s(SRD_X,4)}, {s(S_RR+2+side)} offen lds')
                        else:
                            if hh == 1: A(f's_add_u32 {s(S_BG)}, {s(S_RR+m)}, {s(S_RR+2+side)}')
                            A(f'buffer_load_dwordx4 {v(VM+hh)}, {s(SRD_X,4)}, {s(S_BG)} offen lds')
                        self.xrm = A.nvm
                    xr.append(f)
        A.wait(lg=A.nlg)
        A('s_barrier')
        tl = {}
        def tabrd(f):
            A(f'ds_read_b128 {a(4*f,4)}, {v(10+(f>>4))} offset:{((f>>3)&1)*SPW+(f&7)*1024}')
            tl[f] = A.nlg
        for f in range(8): tabrd(f)
        self.stamp('tables')
        NX1 = min(8, NX0 + o.get('nx1', 3))
        for i in range(NX0, NX1): xdma(i)
        b = FS
        fild = [(lambda f=f: tabrd(f)) for f in range(8, 32)]
        fild += L(f'''
        s_lshl_b32 {s(S_W2S)}, {s(S_ODD)}, 10 @@ s_add_u32 {s(S_W2S)}, {s(S_W2S)}, {L_S+8192} @@ v_add_u32 v10, {s(S_W2S)}, {v(V_L16)}
        v_xor_b32 v11, 1024, v10
        ''')
        fill = []
        for f in range(16): fild.append(f'ds_read_b128 {v(TB+4*f,4)}, {v(10+(f&1))} offset:{(2*((f>>1)&1)+(f>>3))*SPW+((f>>2)&1)*2048}')
        fill += L(f'''
        s_lshl_b32 {s(S_T0)}, {s(S_W)}, 3
        v_lshrrev_b32 v6, 1, {v(V_L15)}
        v_add_u32 v6, {s(S_T0)}, v6
        v_and_b32 v7, 1, {v(V_L15)}
        v_cvt_f32_u32 v9, v7
        v_mul_f32 v9, {f2u(-0.25)}, v9
        v_lshl_add_u32 v8, v6, 1, v7
        v_cmp_eq_u32 vcc, 1, v8
        v_lshlrev_b32 v8, 3, {v(V_G)}
        v_cndmask_b32 v6, v6, 32, vcc
        v_cndmask_b32 v9, v9, 0, vcc
        v_cvt_f32_u32 v6, v6
        v_mul_f32 v6, {f2u(1/64)}, v6
        v_cvt_f32_u32 v8, v8
        v_fma_f32 {v(b)}, v6, v8, v9
        ''')
        for blk in range(4):
            for j in range(4):
                c = 2 * j + (blk & 1) + 32 * (blk >> 1)
                if c: fill.append(f'v_fmamk_f32 {v(b+4*blk+j)}, v6, {f2u(float(c))}, {v(b)}')
        for j in range(16): fill.append(f'v_cos_f32 {v(b+16+j)}, {v(b+j)}')
        for j in range(8): fill.append(f'v_cvt_pk_bf16_f32 {v(R1+j)}, {v(b+16+2*j)}, {v(b+17+2*j)}')
        rdy = set()
        def chk(): assert cnt[0] > 14; print('vmset at', cnt[0])
        if XRP == 3 and o.get('vmf', 1): fill += [chk] + L(vmset) + [lambda: rdy.add(0)]
        if o.get('w1f'): fill += self.w1_setup() + [lambda: rdy.add(1)]
        fill += L(f'''
        v_and_b32 v6, 1, {v(V_LANE)}
        v_lshlrev_b32 v6, 31, v6
        v_or_b32 {v(V_SGN)}, 1.0, v6
        s_cmp_ge_u32 {s(S_Q)}, 4 @@ s_cselect_b64 vcc, -1, 0
        v_mov_b32 {v(V_FAC)}, 1.0
        v_cndmask_b32 {v(V_FAC)}, {v(V_FAC)}, {v(V_SGN)}, vcc
        s_lshl_b32 {s(S_T0)}, {s(S_W)}, 19
        s_lshl_b32 {s(S_T1)}, {s(S_Q)}, 13
        s_add_u32 {s(S_T0)}, {s(S_T0)}, {s(S_T1)}
        s_lshl_b32 {s(S_T1)}, {s(S_U)}, 8
        s_add_u32 {s(S_T0)}, {s(S_T0)}, {s(S_T1)}
        v_lshlrev_b32 v6, 17, {v(V_G)}
        v_lshl_add_u32 v6, {v(V_L15)}, 4, v6
        v_add_u32 {v(V_ZO)}, {s(S_T0)}, v6
        s_lshr_b32 {s(S_T0)}, {s(S_W)}, 1
        s_lshl_b32 {s(S_T0)}, {s(S_T0)}, 10
        s_lshl3_add_u32 {s(S_T0)}, {s(S_ODD)}, {s(S_T0)}
        s_add_u32 {s(S_T0)}, {s(S_T0)}, {L_EXC}
        v_add_u32 {v(V_EW)}, {s(S_T0)}, {v(V_L16)}
        v_add_u32 {v(V_ER)}, {L_EXC}, {v(V_L16)}
        s_lshr_b32 {s(S_T1)}, {s(S_Q)}, 1
        s_lshl2_add_u32 {s(S_T0)}, {s(S_W)}, {s(S_T1)}
        s_lshl_b32 {s(S_T0)}, {s(S_T0)}, 5
        s_add_u32 {s(S_T0)}, {s(S_T0)}, {s(S_U)}
        s_and_b32 {s(S_T1)}, {s(S_Q)}, 1
        s_lshl1_add_u32 {s(S_T0)}, {s(S_T0)}, {s(S_T1)}
        s_lshl_b32 {s(S_T0)}, {s(S_T0)}, 7
        s_add_u32 {s(S_F1)}, {s(S_T0)}, {F1}
        v_and_b32 v6, 1, {v(V_L15)}
        v_cmp_eq_u32 {s(S_XO,2)}, 1, v6
        v_and_b32 v6, 2, {v(V_L15)}
        v_cmp_eq_u32 {s(S_XO+2,2)}, 2, v6
        v_lshrrev_b32 v6, 2, {v(V_L15)}
        v_cmp_eq_u32 {s(S_M,2)}, v6, {v(V_G)}
        ''')
        g3 = []
        if not o.get('w1f'): fill += self.w1_setup() + [lambda: rdy.add(1)]
        if XRP == 3 and not o.get('vmf', 1): fill += L(vmset) + [lambda: rdy.add(0)]
        if XRP == 3: g3 += [(0, o.get('xrt', 56), f) for f in xr]
        if o.get('wpre'):
            def tbar():
                self.flush(fild); A.wait(lg=A.nlg); A('s_barrier')
            w = [(1, o.get('wpt', 60), f) for f in [tbar] + [f for kind, k, ops in self.pipe if kind == 'dma' for f in ops][:o['wpre']]]
            g3 = w + g3 if o.get('wpf') else g3 + w
        fill += L(f's_mov_b32 {s(S_T1)}, 65536\ns_mov_b32 {s(S_T0)}, {f2u(1/512)}\ns_mov_b32 {s(S_T2)}, {WS_HN}\ns_mov_b32 {s(S_T3)}, {WS_HN+65536}')
        xl = []
        def xrd(i):
            while len(xm) <= i: g1.pop(0)()
            A.wait(vm=xm[i])
            for kk in range(2):
                A(f'ds_read_b128 {v(X+8*i+4*kk,4)}, {v(V_XR+kk)} offset:{i*2048}')
            xl.append(A.nlg)
        self.site('A')
        xrd(0)
        self.stamp('x first')
        xrd(1)
        A(f'''
        v_add_u32 {v(V_TAG)}, 0x9e3779b0, {v(V_TAG)}
        v_add_u32 {v(V_TAG+1)}, 0x7f4a7c15, {v(V_TAG+1)}
        ''')
        if o.get('fxp') in (1, 3): self.fxst(S_T0, V_FXV)
        if not o.get('fxp'): A(f'''
        s_getreg_b32 {s(S_T0)}, hwreg(HW_REG_XCC_ID)
        s_and_b32 {s(S_T0)}, {s(S_T0)}, 15
        v_add_u32 {v(V_FXV)}, {s(S_T0)}, {v(V_TAG)}
        v_mov_b32 {v(V_FXV+1)}, {v(V_TAG+1)}
        s_lshl_b32 {s(S_T0)}, {s(S_U)}, 7
        s_lshl3_add_u32 {s(S_T0)}, {s(S_Q)}, {s(S_T0)}
        s_add_u32 {s(S_T0)}, {s(S_T0)}, {FX}
        s_mov_b64 exec, 1
        buffer_store_dwordx2 {v(V_FXV,2)}, off, {s(SRD_WS,4)}, {s(S_T0)} sc1
        s_mov_b64 exec, -1
        ''')
        def t1():
            if o.get('t1e'): return
            if o.get('t1bar', 1): A('s_barrier')
            if o.get('g2'):
                self.g2touch(1, 'a' if o.get('t1a') == 20 else None)
                if o.get('t2a') == 1: self.g2touch(2, 'a')
                if o.get('tw2', 2) == 1: self.g2touch(2)
                if o.get('ts') == 0: self.smalltouch(S_AM0)
                return
            T1 = o.get('t1', 112)
            if T1 > T0: self.wtouch(V_TD, SRD_W1, T0, min(T1 - T0, 64))
            if T1 - T0 > 64: self.wtouch(V_TD, SRD_W1, T0 + 64, T1 - T0 - 64)
            if o.get('tw2'): self.wtouch(V_TD, SRD_W2, 0, o['tw2'])
        self.w1t = 56
        g1 = [(lambda i=i: xdma(i)) for i in range(NX1, 8)] + (xr if XRP < 2 else [lambda: None] * o.get('t1d', 0)) + [t1]
        for _ in range(min(len(g1), o.get('xr0', 3))): g1.pop(0)()
        XRE = o.get('xre', 2); cnt = [0, 0]
        def fl(n):
            cnt[0] += 1
            if g1 and cnt[0] % XRE == 0: return g1.pop(0)()
            if g3 and g3[0][0] in rdy and cnt[0] >= g3[0][1] and cnt[0] % o.get('xre3', 3) == 0: return g3.pop(0)[2]()
            if not fill and not fild and 2 not in rdy: rdy.add(2); print('gemm1 fill done at', cnt[0])
            k = cnt[1]
            if fild and cnt[0] % 4: self.emit(fild.pop(0)); k += 1
            while fill and k < n:
                n0 = A.wt; self.emit(fill.pop(0)); k += A.wt - n0
            cnt[1] = max(0, k - n)
        for i in range(8):
            ip, hp = i >> 1, i & 1
            if i + 2 < 8: xrd(i + 2)
            if o.get('twd') and i == 5: self.stamp('x last'); A.wait(vm=A.nvm); self.stamp('touch done')
            while 8 * ip + 7 not in tl: self.emit(fild.pop(0))
            A.wait(lg=max(xl[i], tl[8 * ip + 7]))
            for kk in range(2):
                xa = X + 8 * i + 4 * kk
                first = (i == 0 and kk == 0)
                A(f'v_mfma_f32_16x16x32_bf16 {v(SQ,4)}, {v(xa,4)}, {v(xa,4)}, {"0" if first else v(SQ,4)}')
                fl(2.2)
                A(f'v_mfma_f32_16x16x32_bf16 {v(SUM,4)}, {v(xa,4)}, {v(V_ONES,4)}, {"0" if first else v(SUM,4)}')
                fl(2.2)
                for t in range(4):
                    acc = ACC + 16 * hp + 4 * t
                    cin = '0' if (ip == 0 and kk == 0) else v(acc, 4)
                    A(f'v_mfma_f32_16x16x32_bf16 {v(acc,4)}, {v(xa,4)}, {a(32*ip+16*kk+4*t,4)}, {cin}')
                    if not (kk == 1 and t == 3): fl(2.2)
        print('gemm1 fill left', len(fill), len(fild), len(g1), len(g3))
        self.flush(fild); self.flush(fill)
        self.stamp('gemm1 done')
        A(f'''
        v_cndmask_b32 v6, {v(SQ)}, {v(SQ+1)}, {s(S_XO,2)}
        v_cndmask_b32 v7, {v(SQ+2)}, {v(SQ+3)}, {s(S_XO,2)}
        v_cndmask_b32 v8, {v(SUM)}, {v(SUM+1)}, {s(S_XO,2)}
        v_cndmask_b32 v9, {v(SUM+2)}, {v(SUM+3)}, {s(S_XO,2)}
        v_cndmask_b32 v6, v6, v7, {s(S_XO+2,2)}
        v_cndmask_b32 v8, v8, v9, {s(S_XO+2,2)}
        v_mul_f32 v8, {s(S_T0)}, v8
        v_mul_f32 v8, v8, v8
        v_fma_f32 v6, v6, {s(S_T0)}, -v8
        v_max_f32 v6, 0, v6
        v_add_f32 v6, {f2u(1e-5)}, v6
        v_rsq_f32 v6, v6
        v_fma_f32 {v(ACC)}, {v(ACC+16)}, {v(V_SGN)}, {v(ACC)}
        v_cndmask_b32 v6, 0, v6, {s(S_M,2)}
        v_fma_f32 {v(ACC+1)}, {v(ACC+17)}, {v(V_SGN)}, {v(ACC+1)}
        v_fma_f32 {v(ACC+2)}, {v(ACC+18)}, {v(V_SGN)}, {v(ACC+2)}
        v_mfma_f32_16x16x4_f32 v[20:23], v6, {v(V_FAC)}, 0
        ''')
        for i in range(3, 16):
            A(f'v_fma_f32 {v(ACC+i)}, {v(ACC+16+i)}, {v(V_SGN)}, {v(ACC+i)}')
        for t in range(4):
            for r in range(0, 4, 2):
                A(f'v_pk_mul_f32 {v(ACC+4*t+r,2)}, {v(ACC+4*t+r,2)}, {v(20+r,2)}')
            A(f'v_cvt_pk_bf16_f32 {v(24+2*t)}, {v(ACC+4*t)}, {v(ACC+4*t+1)}')
            A(f'v_cvt_pk_bf16_f32 {v(25+2*t)}, {v(ACC+4*t+2)}, {v(ACC+4*t+3)}')
            A(f'ds_write_b64 {v(V_EW)}, {v(24+2*t,2)} offset:{t*2048}')
            if g3: g3.pop(0)[2]()
        while g3: g3.pop(0)[2]()
        if XRP == 2: A(vmset)
        A.wait(vm=None if XRP and not o.get('xrw') else self.xrm, lg=A.nlg)
        A('s_barrier')
        for f in range(8):
            A(f'ds_read_b128 {v(32+4*f,4)}, {v(V_ER)} offset:{f*1024}')
        for t in range(4):
            A(f's_waitcnt lgkmcnt({6-2*t})')
            A(f'v_mfma_f32_16x16x32_bf16 {v(64+4*t,4)}, {v(R1,4)}, {v(32+8*t,4)}, 0')
            A(f'v_mfma_f32_16x16x32_bf16 {v(64+4*t,4)}, {v(R1+4,4)}, {v(36+8*t,4)}, {v(64+4*t,4)}')
        A.dlg = A.nlg
        for k in range(2):
            for t in range(4):
                A(f'v_cvt_pk_bf16_f32 {v(24+4*k+t)}, {v(64+4*t+2*k)}, {v(65+4*t+2*k)}')
            A(f'buffer_store_dwordx4 {v(24+4*k,4)}, {v(V_ZO)}, {s(SRD_WS,4)}, {"0" if k == 0 else s(S_T1)} offen sc1')
            if o.get('zc'): A(f'buffer_store_dwordx4 {v(24+4*k,4)}, {v(V_ZO)}, {s(SRD_WS,4)}, {s(S_T2+k)} offen sc1')
        self.stamp('Z stores')
        self.zst = A.nvm
        self.xr = []
        if o.get('tw2') == 2:
            if o.get('t2bar', 1): A('s_barrier')
            self.g2touch(2)
            if XRP == 2: self.xr = xr
            if o.get('ts', 1) == 1: self.smalltouch(S_T0)
        elif XRP == 2: self.flush(xr)

    def ygrp(self, var, q1, tt): return Y + 32 * var + 16 * q1 + 8 * tt
    def dgrp(self, var, q1, tt):
        return ZF + 32 * q1 + 8 * self.dord.index((var, tt))
    dord = [(1, 1), (0, 1), (1, 0), (0, 0)]
    def window(self):
        A = self.A; o = self.opt
        A.clk = clk = sched.Clock()
        main = []
        AA = A
        A = lambda t: main.extend(L(t))
        XR = ZF
        SD0, SD1, SA1, SM_ = S_W2S, S_AM0, S_TCH, S_FIX
        AD = Y
        A(f'''
        s_sub_u32 {s(S_T0)}, {s(S_W)}, {s(S_Q)}
        s_and_b32 {s(S_T0)}, {s(S_T0)}, 3
        s_lshr_b32 {s(S_T1)}, {s(S_Q)}, 2
        s_lshl1_add_u32 {s(SD0)}, {s(S_T0)}, {s(S_T1)}
        s_lshl_b32 {s(SD0)}, {s(SD0)}, 11
        s_add_u32 {s(S_T0)}, {s(S_W)}, {s(S_Q)}
        s_sub_u32 {s(S_T0)}, 3, {s(S_T0)}
        s_and_b32 {s(S_T0)}, {s(S_T0)}, 3
        s_xor_b32 {s(S_T1)}, {s(S_T1)}, 1
        s_lshl1_add_u32 {s(SD1)}, {s(S_T0)}, {s(S_T1)}
        s_lshl_b32 {s(SD1)}, {s(SD1)}, 11
        s_add_u32 {s(SM_)}, {s(S_SB)}, 12288
        s_mov_b32 {s(SA1)}, 32768
        s_cmp_eq_u32 {s(S_U)}, 0
        s_cselect_b32 {s(S_T2)}, {s(SA1)}, 0
        s_cselect_b32 {s(SA1)}, 16384, {s(SA1)}
        s_cmp_eq_u32 {s(S_ODD)}, 0
        s_cselect_b32 {s(S_T3)}, 0, {s(S_T2)}
        s_cselect_b32 {s(S_T2)}, {s(S_T2)}, 0
        v_xor_b32 v7, 64, v15
        v_xor_b32 v8, 0x70, v15
        v_xor_b32 v9, 0x30, v15
        v_lshrrev_b32 v10, 1, {v(V_L15)}
        v_sub_u32 v11, 8, {v(V_G)}
        v_and_b32 v11, 7, v11
        v_xor_b32 v11, v11, v10
        v_lshlrev_b32 v11, 4, v11
        v_lshl_add_u32 v10, {v(V_L15)}, 7, v11
        v_xor_b32 v11, 64, v10
        v_cmp_eq_u32 vcc, 0, {v(V_L15)}
        v_mov_b32 v12, {s(S_T2)}
        v_mov_b32 v13, {s(S_T3)}
        v_cndmask_b32 v12, 0, v12, vcc
        v_cndmask_b32 v13, 0, v13, vcc
        s_add_u32 {s(S_T0)}, {s(SD1)}, 4096
        s_and_b32 {s(S_T0)}, {s(S_T0)}, 0x3fff
        s_sub_u32 {s(S_T0)}, {s(S_T0)}, {s(SD1)}
        s_mov_b32 {s(S_T1)}, {(-SPW) & 0xffffffff}
        s_cmp_eq_u32 {s(S_W)}, 0
        s_cselect_b32 {s(S_T1)}, {3*SPW}, {s(S_T1)}
        s_cmp_eq_u32 {s(S_ODD)}, 0
        s_cselect_b32 {s(S_T2)}, {s(S_T0)}, {s(S_T1)}
        s_cselect_b32 {s(S_T3)}, {s(S_T1)}, {s(S_T0)}
        v_mov_b32 v6, v10
        s_mov_b64 exec, 0xffff
        v_add_u32 v10, {s(S_T2)}, v10
        v_add_u32 v6, {s(S_T3)}, v6
        s_mov_b64 exec, -1
        ''')
        for rt in range(4):
            pat = [15, 7, 8, 9, 10 if rt < 2 else 6, 11]
            for side in range(2):
                d = S_T0 + side
                if rt & 1: A(f's_add_u32 {s(S_T2)}, {s(SD1 if side else SD0)}, {s(SA1)}')
                A(f's_add_u32 {s(S_T3)}, {s(SM_)}, {(rt&1)*4096+side*2048}')
                A(f's_cmp_eq_u32 {s(S_ODD)}, {rt>>1}')
                A(f's_cselect_b32 {s(d)}, {s(S_T2 if rt & 1 else (SD1 if side else SD0))}, {s(S_T3)}')
            for n in range(6):
                if n >= 2 and not rt & 1: A(f'v_add3_u32 {v(AD+6*rt+n)}, {v(pat[n])}, {s(S_T1)}, {v(12+(rt>>1))}')
                else: A(f'v_add_u32 {v(AD+6*rt+n)}, {s(S_T0 + (n >= 2))}, {v(pat[n])}')
        A = AA
        m2 = []; ex = False
        for x in main:
            if ex or x.startswith('s_cselect'): m2[-1] += '\n' + x
            else: m2.append(x)
            if x.startswith('s_mov_b64 exec'): ex = not x.endswith('-1')
        main = m2
        def xin():
            A.wait(vm=self.xrm); A('s_barrier')
        pre = []
        if o.get('xrp') and not o.get('xrw'): pre = main; main = [xin]
        xl = {}
        for rt in range(4):
            main += [f'ds_read_b128 {v(XR+16*rt+4*n,4)}, {v(AD+6*rt+n)}' for n in range(4)]
            main += [f'ds_read_u16 {v(AD+6*rt+4+q1)}, {v(AD+6*rt+4+q1)}' for q1 in range(2)]
            main.append(lambda rt=rt: (xl.__setitem__(rt, A.nlg), rt and A.wait(lg=xl[rt-1])))
        SR = 6
        (pre if pre else main).extend(L(f'''
        v_mov_b32 v6, 0xbf80
        v_mov_b32 v7, -1.0
        v_cndmask_b32 v6, v6, v7, {s(S_XO,2)}
        v_cndmask_b32 v6, 0, v6, {s(S_M,2)}
        v_cndmask_b32 {v(V_SEL+2)}, v6, 0, {s(S_XO+2,2)}
        v_cndmask_b32 {v(V_SEL+3)}, 0, v6, {s(S_XO+2,2)}
        v_mov_b32 {v(V_SEL)}, 0
        v_mov_b32 {v(V_SEL+1)}, 0
        v_mov_b32 {v(V_SEL+4)}, 0
        v_mov_b32 {v(V_SEL+5)}, 0
        v_and_b32 v6, 0xffff, {v(V_SEL+2)}
        v_and_b32 v8, 0xffff0000, {v(V_SEL+3)}
        v_xor_b32 v9, {v(V_SEL+2)}, {v(V_SEL+3)}
        v_xor_b32 v9, v9, v6
        v_xor_b32 v9, v9, v8
        v_mov_b32 v7, 0
        v_mov_b32 v10, v8
        v_mov_b32 v11, v9
        v_mov_b32 v12, v6
        v_mov_b32 v13, 0
        v_cmp_eq_u32 vcc, 0, {v(V_G)}
        s_cmp_eq_u32 {s(S_W)}, 0 @@ s_cselect_b64 {s(S_FIX,2)}, vcc, 0
        '''))
        main = pre + main
        def xfree():
            A.wait(lg=xl[3]); A('s_barrier'); self.xfree = True
        self.xfree = False
        main.append(xfree)
        main.append(f's_mov_b32 {s(S_T0)}, 0xffff')
        main += [f'v_bfi_b32 {v(XR+16*rt+8+4*q1)}, {s(S_T0)}, {v(AD+6*rt+4+q1)}, {v(XR+16*rt+8+4*q1)}' for rt in range(4) for q1 in range(2)]
        sel = lambda var, et: SR + 4 * et if var else V_SEL + 2 - 2 * et
        xf = lambda rt, var, q1: XR + 16 * rt + 4 * (2 * var + q1)
        G8 = [(q1, var, tt) for q1 in range(2) for var, tt in self.dord]
        def smm(d, var, et, x, c): return f'v_mfma_f32_16x16x32_bf16 {v(d+4*et,4)}, {v(sel(var,et),4)}, {v(x,4)}, {v(d+4*et,4) if c else "0"}'
        for q1, var, tt in G8: main += [smm(self.ygrp(1-var,q1,tt), 1-var, et, xf(tt,1-var,q1), 0) for et in range(2)]
        main += [f'v_lshlrev_b32 {v(V_FIX+rt)}, 16, {v(xf(rt,0,0))}' for rt in range(4)]
        main += [f'v_and_b32 {v(r)}, 0x7fff7fff, {v(r)}' for r in (V_SEL + 2, V_SEL + 3, 6, 8, 9, 10, 11, 12)]
        for q1, var, tt in G8: main += [smm(self.ygrp(1-var,q1,tt), var, et, xf(2+tt,var,q1), 1) for et in range(2)]
        for k, (q1, var, tt) in enumerate(G8):
            y = self.ygrp(1 - var, q1, tt); x = xf(2 + tt, var, q1)
            main += [f'v_cvt_pk_bf16_f32 {v(x+i)}, {v(y+2*i)}, {v(y+2*i+1)}' for i in range(4)]
            main += [smm(y, 1-var, et, xf(tt,1-var,q1), 0) for et in range(2)]
            main += [f'v_accvgpr_write_b32 {a(AD_+4*k+i)}, {v(x+i)}' for i in range(4)]
        EPT = o.get('ept')
        if EPT is None: main += L(f'''
        s_lshr_b32 {s(S_T0)}, {s(S_U)}, 3
        s_lshl2_add_u32 {s(S_T0)}, {s(S_T0)}, {s(S_W)}
        s_lshl_b32 {s(S_T0)}, {s(S_T0)}, 13
        s_add_u32 {s(S_T0)}, {s(S_T0)}, {F1}
        v_add_u32 v15, {s(S_T0)}, {v(V_L128)}
        s_lshl2_add_u32 {s(S_T0)}, {s(S_U)}, {s(S_W)}
        s_lshl_b32 {s(S_T0)}, {s(S_T0)}, 14
        s_and_b32 {s(S_T3)}, {s(S_Q)}, {4 if o.get('zc') else 0}
        s_lshl_b32 {s(S_T3)}, {s(S_T3)}, 19
        s_add_u32 {s(S_T0)}, {s(S_T0)}, {s(S_T3)}
        v_add_u32 {v(V_ZA)}, {s(S_T0)}, {v(V_L16)}
        v_add_u32 {v(V_ZA+1)}, 8192, {v(V_ZA)}
        s_and_b32 {s(S_T3)}, {s(S_Q)}, 3
        s_lshl_b32 {s(S_T3)}, {s(S_T3)}, 11
        s_lshl1_add_u32 {s(S_AM0)}, {s(S_T3)}, {s(S_T0)}
        ''')
        else: main += L(f's_and_b32 {s(S_T3)}, {s(S_Q)}, 3\ns_lshl_b32 {s(S_T3)}, {s(S_T3)}, 11')
        main += L(f'''
        s_lshl_b32 {s(S_T1)}, {s(S_ODD)}, 11
        s_add_u32 {s(S_T1)}, {s(S_T1)}, {s(S_HB)}
        v_add_u32 v10, {s(S_T1)}, {v(V_L16)}
        v_xor_b32 v11, 2048, v10
        s_xor_b32 {s(S_T1)}, {s(S_W)}, {s(S_C)}
        s_lshl_b32 {s(S_T1)}, {s(S_T1)}, 14
        v_xor_b32 v8, {s(S_T1)}, v10
        v_xor_b32 v9, {s(S_T1)}, v11
        s_lshl3_add_u32 {s(S_RR)}, {s(S_U)}, {s(S_Q)}
        s_lshl2_add_u32 {s(S_RR)}, {s(S_RR)}, {s(S_W)}
        s_lshl_b32 {s(S_RR)}, {s(S_RR)}, 14
        s_add_u32 {s(S_RR)}, {s(S_RR)}, {WS_P}
        s_andn2_b32 {s(S_FLA)}, {s(S_RR)}, {(3<<16)|(1<<14)}
        s_add_u32 {s(S_FLA)}, {s(S_FLA)}, 7168
        v_readfirstlane_b32 {s(S_LT)}, {v(V_TAG)}
        s_and_b32 {s(S_LT)}, {s(S_LT)}, 0xbfffbfff
        s_lshl_b32 {s(S_T0)}, {s(S_U)}, {(7, 10, 10, 12, 12)[o.get('fxp', 0)]}
        s_add_u32 {s(S_T0)}, {s(S_T0)}, {(FX, FX2, FX2, FX3, FX3)[o.get('fxp', 0)]}
        v_and_b32 v6, 7, {v(V_LANE)}
        v_lshlrev_b32 v6, {7 if o.get('fxp') else 3}, v6
        ''')
        NBD = o.get('nbd', 14); PE = o.get('pe', 1)
        WR, WL, WT, F1T, W0 = o.get('wr', 64), o.get('wl', 700), o.get('wt', 128), o.get('f1t', 1000), o.get('w0', 0)
        dq = []; tq = []; cq = []; dt = {}; tt_ = {}
        for kind, k, ops in self.pipe: {'dma': dq, 'tr': tq, 'cs': cq}[kind].extend((kind, k, f) for f in ops)
        for _ in range(o.get('wpre', 0)): dt[dq.pop(0)[1]] = o.get('wpl', -300)
        nxt = W0; flagged = False; pm = None; nd = 0; chk = False
        def epoll():
            nonlocal pm
            A(f'''
            s_lshr_b32 {s(S_FAST)}, {s(S_U)}, 3
            s_lshl2_add_u32 {s(S_FAST)}, {s(S_FAST)}, {s(S_W)}
            s_lshl_b32 {s(S_FAST)}, {s(S_FAST)}, 13
            s_add_u32 {s(S_FAST)}, {s(S_FAST)}, {F1}
            buffer_load_dwordx2 {v(V_ZA,2)}, {v(V_L128)}, {s(SRD_WS,4)}, {s(S_FAST)} offen sc1
            '''); pm = A.nvm
            print('window: poll at', clk.t, 'main left', len(main), 'dq', len(dq))
        def echeck():
            nonlocal chk
            assert self.xfree
            chk = True
            print('window: check at', clk.t, 'main left', len(main), 'dq', len(dq))
            if o.get('ect'): self.stamp('p2 prepoll')
            Lp = A.newlabel('poll'); D = A.newlabel('polld')
            A.wait(vm=pm)
            A.on = False
            A(f'v_cmp_ne_u64 vcc, {v(V_ZA,2)}, {v(V_TAG,2)}\ns_mov_b32 {s(S_CNT)}, 0x20000\ns_cbranch_vccz {D}')
            A.snap()
            A.label(Lp)
            A(f'''
            buffer_load_dwordx2 {v(V_ZA,2)}, {v(V_L128)}, {s(SRD_WS,4)}, {s(S_FAST)} offen sc1
            s_sub_u32 {s(S_CNT)}, {s(S_CNT)}, 1
            s_cbranch_scc1 {D}
            s_waitcnt vmcnt(0)
            v_cmp_ne_u64 vcc, {v(V_ZA,2)}, {v(V_TAG,2)}
            s_cbranch_vccnz {Lp}
            ''')
            A.label(D)
            A.unsnap()
            A(f's_lshl2_add_u32 {s(S_AM0)}, {s(S_U)}, {s(S_W)}\ns_lshl_b32 {s(S_AM0)}, {s(S_AM0)}, 14')
            if o.get('zt'):
                A(f's_and_b32 {s(S_FAST)}, {s(S_Q)}, 3\ns_lshl_b32 {s(S_FAST)}, {s(S_FAST)}, 12\ns_add_u32 {s(S_FAST)}, {s(S_FAST)}, {s(S_AM0)}')
                self.touch(191, SRD_WS, S_FAST, 32, ' sc1')
            A.on = True
            A(f'v_add_u32 {v(V_ZA)}, {s(S_AM0)}, {v(V_L16)}\nv_add_u32 {v(V_ZA+1)}, 8192, {v(V_ZA)}')
            if o.get('ect'): self.stamp('p2 checked')
        while main or (dq and dq[0][1] < NBD) or not flagged:
            T = clk.t
            k = dq[0][1] if dq else 99
            if not flagged and T >= F1T:
                self.stamp('pre F1')
                A.wait(vm=self.zst)
                self.setflag(S_F1, ' sc1')
                self.stamp('F1 set')
                if o.get('fxp') in (2, 4): self.fxst(S_BG, V_ZA)
                flagged = True
                self.flush(self.xr)
                for _ in range(o.get('wq2', 0)):
                    k = dq[0][1]; assert k < 3 or (k < 5 and self.xfree); self.emit(dq.pop(0)[2]); nxt = max(nxt, T) + WR; dt[k] = nxt
            elif EPT is not None and flagged and pm is None and T >= EPT: epoll()
            elif EPT is not None and pm is not None and not chk and T >= o.get('ect', 99999): echeck()
            elif nd < o.get('wq', 0): assert k < 3; self.emit(dq.pop(0)[2]); nd += 1; dt[k] = o.get('wql', W0)
            elif main and main[0] is xin and not flagged and o.get('xrp') == 2: clk.t += 8
            elif k < NBD and T >= nxt and (k < 3 or (self.xfree if k < 5 else (k - 5) in tt_ and T >= tt_[k - 5] + WT)) and not (k >= NBD - PE and (main or not flagged)):
                if k == NBD - PE and pm is None and EPT is None:
                    A(f'buffer_load_dwordx2 v[12:13], v15, {s(SRD_WS,4)}, 0 offen{self.plf}'); pm = A.nvm
                if k >= 5: A.wait(lg=self.w1l[k - 5])
                self.emit(dq.pop(0)[2]); nxt = max(nxt, T - 32) + WR
                if not (dq and dq[0][1] == k):
                    dt[k] = nxt
                    if o.get('fine') == 3 and k in (0, 2, 4, 5, 6, 7, 8, 9, 10, 11, 12): self.stamp(f'wd{k} m{len(main)} T{T}')
            elif tq[0][1] in dt and tq[0][1] < 14 and T >= dt[tq[0][1]] + WL:
                k = tq[0][1]; self.emit(tq.pop(0)[2])
                if tq[0][1] != k: tt_[k] = T
            elif cq[0][1] in tt_ and T >= tt_[cq[0][1]] + WT and clk.pipe <= T + 4 and not (main and o.get('mp', 1)): self.emit(cq.pop(0)[2])
            elif main: self.emit(main.pop(0))
            else: clk.t += 8
        print('window: est', clk.t, 'tr left', len(tq), 'cs left', len(cq))
        A.clk = None
        self.post = dq + tq + cq
        if EPT is not None:
            if not o.get('ect'): self.stamp('p2 prepoll')
            if pm is None: epoll()
            if not chk: echeck()
            self.stamp('p2 polled')
            return
        self.stamp('p2 prepoll')
        if pm is None:
            A(f'buffer_load_dwordx2 v[12:13], v15, {s(SRD_WS,4)}, 0 offen{self.plf}'); pm = A.nvm
        Lp = A.newlabel('poll'); D = A.newlabel('polld')
        self.site('B')
        A.wait(vm=pm)
        A.on = False
        A(f'v_cmp_ne_u64 vcc, v[12:13], {v(V_TAG,2)}\ns_mov_b32 {s(S_CNT)}, 0x20000\ns_cbranch_vccz {D}')
        A.snap()
        A.label(Lp)
        A(f'''
        buffer_load_dwordx2 v[12:13], v15, {s(SRD_WS,4)}, 0 offen sc1
        s_sub_u32 {s(S_CNT)}, {s(S_CNT)}, 1
        s_cbranch_scc1 {D}
        s_waitcnt vmcnt(0)
        v_cmp_ne_u64 vcc, v[12:13], {v(V_TAG,2)}
        s_cbranch_vccnz {Lp}
        ''')
        A.label(D)
        A.unsnap()
        self.stamp('p2 polled')

    def p23(self):
        A = self.A; o = self.opt
        A.on = True
        dr = str(o.get('drop', ''))
        A.drop = lambda t: ('d' in dr and t.endswith(' lds')) or ('t' in dr and t.startswith('ds_read_b64_tr')) or ('w' in dr and t.startswith('ds_write')) or ('h' in dr and t.startswith('ds_read_b128'))
        zm = {}
        def zld(q1, ks):
            if ks or q1: A(f's_add_u32 {s(S_T3)}, {s(S_T3)}, 2048\ns_and_b32 {s(S_T3)}, {s(S_T3)}, 0x1800')
            for h in range(2):
                A(f'buffer_load_dwordx4 {v(ZF+32*q1+8*ks+4*h,4)}, {v(V_ZA+q1)}, {s(SRD_WS,4)}, {s(S_T3)} offen offset:{h*1024}{self.zldf}')
            zm[q1, ks] = A.nvm
        for k in range(6):
            zld(k >> 2, k & 3)
            if k == 3: A(f'buffer_load_dwordx2 v[6:7], v6, {s(SRD_WS,4)}, {s(S_T0)} offen{self.fxf}')
        if 'ept' in o: self.site('B')
        NA = 10
        self.debt = 0; self.tick = 0; self.nxt = o.get('dma0', 16); self.blk = -1; self.b4 = False; self.hold = False
        RATE, LAT, SLACK, TL = o.get('rate', 40) / 10, o.get('lat', 44), o.get('slack', 8), o.get('tl', 8)
        dq = []; tq = []; cq = []; dt = {}; tt_ = {}
        for kind, k, f in self.post: {'dma': dq, 'tr': tq, 'cs': cq}[kind].append((kind, k, f))
        self.dfree = 0
        pend_d = {k for _, k, _ in dq}; pend_t = {k for _, k, _ in tq}
        for k in range(16):
            if k not in pend_d: dt[k] = -999
            if k not in pend_t: tt_[k] = -999
        KO = [int(ch) for ch in str(o.get('ko', 123456))]
        self.items = [(0, 0), (1, 0)] + [(0, ks) for ks in KO] + [(1, ks) for ks in KO]
        dq += [('x', 16, x) for x in self.w2_setup()]
        for b in range(14): dq += [('dma', 16 + b, f) for f in self.w2_dma(b, (16 + b) % 5)]
        tq += [('x', 16, x) for x in self.w2_setup_r()]
        self.trl = {}
        for b in range(14): tq += [('tr', 16 + b, f) for f in self.w2_tr(b, (16 + b) % 5)]
        def ins(item, f, tag=-1):
            p = min([n for n, x in enumerate(dq) if x[1] >= item] + [len(dq)])
            dq.insert(p, ('x', tag, f))
        if self.w1t < 56: ins(0, lambda: self.w1touch(self.w1t, 56))
        if 't3' in o:
            t3 = [int(x) for x in str(o['t3']).split('.')]
            for k, p in enumerate(t3): ins(p, lambda k=k: self.w2touch(k if len(t3) > 1 else None))
        if 't4' in o:
            def t4():
                if o.get('ts', 1) == 1: self.smalltouch(S_RR + 2)
                if o.get('tw2') != 1: self.g2touch(2)
                if o.get('ptt4'): self.ptouch((o['ptt4'],))
                if o.get('trs') == 1: self.touch(191, SRD_WS, S_RR, 56, ' sc1')
                self.nxt = max(self.nxt, self.tick) + o.get('t4gap', 60)
            ins(o['t4'], t4, -2)
        if o.get('trs', 0) > 1: ins(o['trs'], lambda: self.touch(191, SRD_WS, S_RR, 56, ' sc1'))
        S_PQ, S_PS = S_RR, S_RR + 1
        ZC = 0
        def trlg(k): return self.w1l[self.w1order[k]] if k < 16 else self.trl[k]
        def d_ok(force=False):
            if not dq: return False
            kind, k, f = dq[0]
            if kind == 'x': return force or k > -2 or self.tick >= (o.get('t4t', 40) if k == -2 else 10)
            if kind == 'st': return force or self.tick >= self.nxt
            dep = k < 5 or ((k - 5) in tt_ and (force or self.tick >= tt_[k - 5] + TL))
            return dep and (force or (self.tick >= self.nxt and not self.hold))
        def d_pop():
            kind, k, f = dq.pop(0)
            if kind == 'st': self.nxt = max(self.nxt, self.tick - SLACK) + o.get('srate', 30) / 10
            if kind == 'dma':
                if k >= 5: A.wait(lg=trlg(k - 5))
                self.nxt = max(self.nxt, self.tick - SLACK) + RATE
                if not (dq and dq[0][:2] == ('dma', k)): dt[k] = self.tick
            self.emit(f)
        def t_ok(force=False):
            if not tq: return False
            kind, k, f = tq[0]
            if k not in dt: return False
            if kind == 'x': return True
            return (k < 14 + self.dfree if k < 16 else self.blk > k - 16) and (force or (self.tick >= dt[k] + LAT and (k < 16 or self.tick >= o.get('g0', 0))))
        def t_pop():
            kind, k, f = tq.pop(0)
            self.emit(f)
            if kind == 'tr' and not (tq and tq[0][1] == k): tt_[k] = self.tick
        def c_ok(): return cq and cq[0][1] in tt_ and self.tick >= tt_[cq[0][1]] + TL
        def ensure(k):
            while k not in tt_:
                if t_ok(True): t_pop()
                else:
                    assert d_ok(True), (k, dq[:1], tq[:1]); d_pop()
        self.ensure = ensure; self.dq = dq; self.d_pop = d_pop
        def fill(kmax, qs, k=0):
            k += self.debt; self.debt = 0
            while k < kmax:
                n0 = A.wt
                if d_ok(): d_pop()
                else:
                    for q in qs:
                        if q is None:
                            if t_ok(): t_pop(); break
                        elif q: self.emit(q.pop(0)); break
                    else: break
                k += A.wt - n0
            self.debt = max(0, k - kmax)
        def extra(kmax, qs):
            if mq: mq.pop(0)()
            elif c_ok(): self.emit(cq.pop(0)[2])
            else: return
            self.tick += 1
            fill(kmax, qs)
        def grp(n, rt): return self.ygrp(n >> 1, n & 1, rt) if rt < 2 else self.dgrp(n >> 1, n & 1, rt - 2)
        SQ = {rt: grp(0, rt) + 4 for rt in range(4)}; SM = {rt: grp(2, rt) + 4 for rt in range(4)}
        mq = []
        slots = [TB + 56, TB + 60]
        def dadd(q1):
            for k, (var, tt) in enumerate(self.dord):
                d = self.dgrp(var, q1, tt); y = self.ygrp(1 - var, q1, tt)
                for et in range(2):
                    A(f'v_mfma_f32_16x16x32_bf16 {v(d+4*et,4)}, {v(V_SEL+2-2*et,4)}, {a(AD_+16*q1+4*k,4)}, {v(y+4*et,4)}')
                    self.tick += 1
                    fill(P2BG, [vq, None])
            self.dfree = q1 + 1
        def swap0(q1):
            def f():
                LS = A.newlabel('nsw')
                A(f's_cmp_lg_u32 {s(S_U)}, 0\ns_cbranch_scc1 {LS}')
                A.snap()
                A('s_mov_b32 exec_lo, 0x10001\ns_mov_b32 exec_hi, 0x10001')
                for j in range(8): A(f'v_swap_b32 {v(self.ygrp(1,q1,0)+j)}, {v(self.dgrp(1,q1,0)+j)}')
                A('s_mov_b64 exec, -1\ns_nop 3')
                A.label(LS)
                A.unsnap()
            return f
        def conv(n, rt):
            g = grp(n, rt)
            ln = []
            if n == 0: ln.append(f'v_cndmask_b32 {v(g)}, {v(g)}, {v(V_FIX+rt)}, {s(S_FIX,2)}')
            ln += [f'v_cvt_pk_bf16_f32 {v(g+j)}, {v(g+2*j)}, {v(g+2*j+1)}' for j in range(4)]
            if o.get('w64'):
                ln += [f'ds_write_b64 {v(10+(rt>>1))}, {v(g+2*j,2)} offset:{n*4096+(rt&1)*1024+8*j}' for j in range(2)]
            else: ln.append(f'ds_write_b128 {v(10+(rt>>1))}, {v(g,4)} offset:{n*4096+(rt&1)*1024}')
            def sm(gg, first):
                A(f'v_mfma_f32_16x16x32_bf16 {v(SM[rt],4)}, {v(V_ONES,4)}, {v(gg,4)}, {"0" if first else v(SM[rt],4)}')
                slots.append(gg)
            def rel():
                if self.tick >= o.get('wc0', 0): self.nxt += o.get('wc', 33) / 10
                if n & 1: slots.append(g + 4)
                mq.append(lambda: A(f'v_mfma_f32_16x16x32_bf16 {v(SQ[rt],4)}, {v(g,4)}, {v(g,4)}, {"0" if n == 0 else v(SQ[rt],4)}'))
                if n == 2: mq.append(lambda: sm(grp(0, rt), True))
                if n: mq.append(lambda: sm(g, False))
            ln.append(rel)
            return ln
        def half(q1):
            return (conv(q1, 1) + conv(q1, 3) + conv(2 + q1, 1) + conv(2 + q1, 3)
                    + conv(q1, 0) + conv(q1, 2) + [swap0(q1)] + conv(2 + q1, 0) + conv(2 + q1, 2))
        def take(q, kmax):
            k = 0
            while q and k < kmax:
                n0 = len(A.lines); self.emit(q.pop(0)); k += len(A.lines) - n0
            return k
        P2BG = o.get('p2bg', 2)
        vq = []
        n0 = A.wt
        while A.wt - n0 < o.get('shw', 100):
            if t_ok(): t_pop()
            elif cq and cq[0][1] in tt_: self.emit(cq.pop(0)[2]); A.wt += 4
            elif d_ok() and dq[0][0] == 'x': d_pop()
            else: break
        for q1 in range(2):
            if q1: dadd(0); vq += half(0)
            for ks in range(4):
                z = ZF + 32 * q1 + 8 * ks
                A.wait(vm=zm[q1, ks])
                if (ks, q1) == (0, 0): self.stamp('Z first')
                A(f'v_swap_b32 {v(z+2)}, {v(z+4)}')
                A(f'v_swap_b32 {v(z+3)}, {v(z+5)}')
                n = 0
                for tt in (1, 0):
                    for var in range(2):
                        for et in range(2):
                            acc = self.ygrp(var, q1, tt) + 4 * et
                            A(f'v_mfma_f32_16x16x32_bf16 {v(acc,4)}, {v(z+4*et,4)}, {v(TB+16*ks+8*tt+4*var,4)}, {v(acc,4)}')
                            n += 1; self.tick += 1
                            if q1 == 0 and ks < 2 and n == 1: zld(1, 2 + ks)
                            elif q1 == 0:
                                if (ks, n) > (1, 1): fill(P2BG, [None])
                            else:
                                fill(o.get('p2v', 3), [vq])
                                if mq and n % 2 == 0: extra(2, [vq])
        self.stamp('Z landed')
        dadd(1)
        while vq:
            if mq: extra(2, [vq])
            else: take(vq, 2)
        A.wait(lg=A.nlg)
        A('s_barrier')
        self.stamp('half 0')
        free = [TB + 4 * k for k in range(14)]
        acc = {}
        for t in range(4):
            for rt in range(4 if t < 3 else 2): acc[t, rt] = free.pop(0)
        started = set()
        def mm(t, rt, b, frag):
            c = v(acc[t, rt], 4)
            A(f'v_mfma_f32_16x16x32_bf16 {c}, {a(16*b+4*t,4)}, {v(frag,4)}, {c if (t, rt) in started else "0"}')
            started.add((t, rt))
        fr = {}; fl_ = {}
        def hrd(b):
            q1, ip, var = b >> 3, (b >> 1) & 3, b & 1
            ops = []
            if var == 0 and b:
                x = (ip ^ ((ip - 1) & 3)) << 14
                ops.append(f'v_xor_b32 v8, {x}, v8'); ops.append(f'v_xor_b32 v9, {x}, v9')
            for rt in range(4):
                def f(rt=rt):
                    fr[b, rt] = slots.pop(0)
                    A(f'ds_read_b128 {v(fr[b,rt],4)}, {v(8+(rt>>1))} offset:{(2*var+q1)*4096+(rt&1)*1024}')
                    fl_[b, rt] = A.nlg
                ops.append(f)
            return ops
        vq = half(1)
        while len(slots) < 4: extra(0, [])
        self.flush(hrd(0))
        while mq: extra(2, [None, vq] if o.get('tprio', 1) else [vq])
        take(vq, o.get('h1pre', 6))
        A(f'''
        s_getreg_b32 {s(S_T0)}, hwreg(HW_REG_XCC_ID)
        s_and_b32 {s(S_T0)}, {s(S_T0)}, 15
        v_subrev_u32 v6, {s(S_T0)}, v6
        v_cmp_ne_u64 vcc, v[6:7], {v(V_TAG,2)}
        s_and_b32 {s(S_T0)}, {s(S_Q)}, {4 if o.get('npl', 3) < 4 else 0}
        s_lshr_b32 {s(S_FAST)}, vcc_lo, {s(S_T0)}
        s_and_b32 {s(S_FAST)}, {s(S_FAST)}, {15 if o.get('npl', 3) < 4 else 255}
        s_cselect_b32 {s(S_FAST)}, 0, 1
        ''')
        LE = A.newlabel('noe')
        A(f'''
        s_or_b32 {s(S_T0)}, s2, {s(S_W)}
        s_cmp_lg_u32 {s(S_T0)}, 0
        s_cbranch_scc1 {LE}
        ''')
        A.snap()
        A(f's_mov_b32 {s(S_T0)}, {FE}')
        self.setflag(S_T0, ' sc1')
        A.label(LE); A.unsnap()
        st = L(f'''
        s_lshl_b32 {s(S_T0)}, {s(S_ODD)}, 10
        s_lshl3_add_u32 {s(S_T0)}, {s(S_W)}, {s(S_T0)}
        s_add_u32 {s(S_T0)}, {s(S_T0)}, {L_STAT}
        v_lshl_add_u32 v6, {v(V_L15)}, 5, {s(S_T0)}
        v_xor_b32 v7, 1024, v6
        ''')
        for rt in range(4):
            st += [f'v_cndmask_b32 {v(SM[rt]+1)}, {v(SQ[rt])}, {v(SQ[rt]+1)}, {s(S_XO,2)}',
                   f'v_cndmask_b32 {v(SM[rt]+2)}, {v(SQ[rt]+2)}, {v(SQ[rt]+3)}, {s(S_XO,2)}',
                   f'v_cndmask_b32 {v(SM[rt]+1)}, {v(SM[rt]+1)}, {v(SM[rt]+2)}, {s(S_XO+2,2)}']
        st.append(f's_mov_b64 exec, {s(S_M,2)}\n' + '\n'.join(f'ds_write_b64 {v(6+(rt>>1))}, {v(SM[rt],2)} offset:{(rt&1)*512}' for rt in range(4)) + '\ns_mov_b64 exec, -1')
        def mark(): self.stm = A.nlg
        st.append(mark)
        SB0, SB1 = SQ[2], SQ[3]
        BF = [SM[rt] for rt in range(4)]
        RS = SQ[0]
        s2 = L(f'''
        s_lshl_b32 {s(S_T2)}, {s(S_ODD)}, 10
        s_add_u32 {s(S_T2)}, {s(S_T2)}, {L_STAT}
        v_lshlrev_b32 {v(V_FIX)}, 5, {v(V_LANE)}
        v_xor_b32 {v(V_FIX)}, {s(S_T2)}, {v(V_FIX)}
        ds_read_b128 {v(SB0,4)}, {v(V_FIX)}
        ds_read_b128 {v(SB1,4)}, {v(V_FIX)} offset:16
        ''')
        def w_(): A.wait(lg=self.s2m)
        s3 = [w_] + L(f'''
        v_add_f32 {v(SB0)}, {v(SB0)}, {v(SB0+2)}
        v_add_f32 {v(SB0+1)}, {v(SB0+1)}, {v(SB0+3)}
        v_add_f32 {v(SB1)}, {v(SB1)}, {v(SB1+2)}
        v_add_f32 {v(SB1+1)}, {v(SB1+1)}, {v(SB1+3)}
        v_add_f32 {v(SB0)}, {v(SB0)}, {v(SB1)}
        v_add_f32 {v(SB0+1)}, {v(SB0+1)}, {v(SB1+1)}
        v_mul_f32 {v(SB0)}, {f2u(-1/512)}, {v(SB0)}
        v_mul_f32 {v(SB0+1)}, {f2u(1/512)}, {v(SB0+1)}
        v_fma_f32 {v(SB0+1)}, -{v(SB0)}, {v(SB0)}, {v(SB0+1)}
        v_max_f32 {v(SB0+1)}, 0, {v(SB0+1)}
        v_add_f32 {v(SB0+1)}, {f2u(1e-5)}, {v(SB0+1)}
        v_rcp_f32 {v(RS)}, {v(SB0+1)}
        v_sqrt_f32 {v(SB0+1)}, {v(SB0+1)}
        v_mov_b32 {v(RS+2)}, {v(RS)}
        v_cvt_pk_bf16_f32 {v(SB1)}, {v(SB0)}, {v(SB0+1)}
        v_lshlrev_b32 {v(SB0+2)}, 16, {v(SB1)}
        v_and_b32 {v(SB0+3)}, 0xffff0000, {v(SB1)}
        v_sub_f32 {v(SB0+2)}, {v(SB0)}, {v(SB0+2)}
        v_sub_f32 {v(SB0+3)}, {v(SB0+1)}, {v(SB0+3)}
        v_cvt_pk_bf16_f32 {v(SB1+1)}, {v(SB0+2)}, {v(SB0+3)}
        v_and_b32 {v(SB1+2)}, 0xffff, {v(SB1)}
        v_permlane32_swap_b32 {v(RS)}, {v(RS+2)}
        v_mov_b32 {v(RS+1)}, {v(RS)}
        v_mov_b32 {v(RS+3)}, {v(RS+2)}
        v_permlane16_swap_b32 {v(RS)}, {v(RS+1)}
        v_permlane16_swap_b32 {v(RS+2)}, {v(RS+3)}
        ''')
        for rt in range(4):
            s3 += [f'v_cmp_eq_u32 vcc, {rt}, {v(V_G)}', f'v_mov_b32 {v(BF[rt]+3)}, 0'] + [f'v_cndmask_b32 {v(BF[rt]+k)}, 0, {v(SB1+k)}, vcc' for k in range(3)]
        V_BIAS = SQ[1]
        def bld():
            for t in range(3): A(f'buffer_load_ushort {v(V_BIAS+t)}, {v(V_BT)}, {s(SRD_B1,4)}, {s(S_T1)} offen offset:{32*t}')
            A(f'buffer_load_ushort {v(V_BIAS+3)}, {v(V_BT)}, {s(SRD_B1,4)}, {s(S_T0)} offen offset:96')
            self.bm = A.nvm
        bias = L(f'''
        s_mul_i32 {s(S_T0)}, {s(S_Q)}, 448
        s_lshr_b32 {s(S_T1)}, {s(S_W)}, 1
        s_mul_i32 {s(S_T1)}, {s(S_T1)}, 224
        s_add_u32 {s(S_T0)}, {s(S_T0)}, {s(S_T1)}
        s_lshl_b32 {s(S_T1)}, {s(S_ODD)}, 7
        s_add_u32 {s(S_T1)}, {s(S_T1)}, {s(S_T0)}
        v_lshlrev_b32 {v(V_BT)}, 1, {v(V_L15)}
        ''') + [bld]
        csl = [lambda: A.wait(vm=self.bm)]
        for t in range(4):
            c = V_CS + 4 * t
            csl += L(f'''
            v_lshlrev_b32 {v(c+3)}, 16, {v(V_BIAS+t)}
            v_cvt_pk_bf16_f32 {v(c)}, {v(c)}, {v(c+3)}
            v_lshlrev_b32 {v(c+3)}, 16, {v(c)}
            v_sub_f32 {v(c+2)}, {v(c+2)}, {v(c+3)}
            v_mov_b32 {v(c+1)}, {v(c)}
            v_cvt_pk_bf16_f32 {v(c+2)}, {v(c+2)}, 0
            v_mov_b32 {v(c+3)}, 0
            ''')
        FK = o.get('fk', 22) / 10
        B3 = o.get('b3', 4); B4 = o.get('b4', 99)
        def mark2(): self.s2m = A.nlg
        q2 = []
        nrd = 1
        inv = {b: k for k, b in enumerate(self.w1order)}
        for b in range(12):
            self.blk = b
            if o.get('fine') == 1 and b: self.stamp(f'blk{b} t{self.tick} d{A.nvm}')
            ensure(inv[b])
            if b == B3:
                print('at B3: vq', len(vq), 'mq', len(mq), 'st', len(st), 'tick', self.tick)
                while vq or mq:
                    if mq: extra(2, [vq])
                    else: take(vq, 2)
                self.flush(st)
                A.wait(lg=self.stm)
                A('s_barrier')
                q2 = s2 + [mark2] + bias + s3
            hq = []
            while nrd < (8 if b < B3 else 16) and len(slots) - sum(callable(x) for x in hq) >= 4 and len(hq) < o.get('hmax', 8):
                hq += hrd(nrd); nrd += 1
            if b == B4:
                assert nrd == 16 and not hq, (nrd, len(hq))
                A.wait(lg=A.nlg)
                A('s_barrier')
                self.b4 = True
            for rt in range(4):
                for t in range(4 if rt < 2 else 3):
                    k = A.wait(lg=max(fl_[b, rt], self.w1l[b]))
                    mm(t, rt, b, fr[b, rt]); self.tick += 1
                    qs = ([hq, None, vq] if o.get('tprio', 1) else [hq, vq, None]) + [[] if mq else st, q2, [] if cq or b < o.get('csb', 9) else csl]
                    fill(FK, qs, k * SW)
                    extra(FK, qs)
            self.flush(hq)
            for rt in range(4): slots.append(fr[b, rt])
        self.blk = 12
        print('middle left: dq', len(dq), 'tq', len(tq), 'cq', len(cq), 'q2', len(q2), 'cs', len(csl), 'tick', self.tick)
        for b in range(12, 16): ensure(inv[b])
        while cq: self.emit(cq.pop(0)[2])
        self.flush(q2); self.flush(csl)
        self.stamp('mid done')
        slots += [SB0, SB1, SQ[1]]
        V_BIAS = V_CS
        print('free slots', len(slots))
        V_IB, V_FC = 8, 9
        ep = []
        RF = {}; rv = {}; sw = {}; T2 = {}; self.rst = 0; self.nst = 0
        RSP = o.get('rs') is not None; RSF = ('' if o.get('rs') == 'pl' else ' ' + o.get('rs')) if RSP else ' sc1'
        def epi(t, nt):
            ln = []
            def st(c, off):
                if off >= 4096: A(f's_add_u32 {s(S_PS)}, {s(S_PQ)}, 4096')
                A(f'buffer_store_dwordx4 {v(c,4)}, {v(V_L16)}, {s(SRD_WS,4)}, {s(S_PS if off >= 4096 else S_PQ)} offen offset:{off&4095}{RSF}')
                self.rst = A.nvm; self.nst += 1
            for rt in (2 * nt, 2 * nt + 1):
                c = acc[t, rt]; d = c if t == 0 else acc[0, rt] + 2 if t == 1 else acc[t, 2 * nt] + 2 * (rt & 1)
                ln += [f'v_mul_f32 {v(c+i)}, {v(c+i)}, |{v(c+i)}|' for i in range(4)]
                ln += [f'v_cvt_pk_bf16_f32 {v(d+i)}, {v(c+2*i)}, {v(c+2*i+1)}' for i in range(2)]
                ln += [f'v_pk_max_i16 {v(d+i)}, {v(d+i)}, 0' for i in range(2)]
                if t == 1:
                    ln.append(lambda rt=rt, c=c: (st(acc[0, rt], rt * 1024), RF.__setitem__((0, rt), ('v', acc[0, rt])), slots.append(c)))
                elif t and rt & 1:
                    ln.append(lambda c=c: (st(acc[t, 2 * nt], 4096 + nt * 1024 if t == 2 else 6144), slots.append(c), t == 3 and not RSP and slots.append(acc[3, 0])))
            return ln
        def reg(x, n=4, off=0): return (a if x[0] == 'a' else v)(x[1] + off, n)
        GLF = {'pl': ''}.get(o.get('glf'), ' ' + o.get('glf', 'sc1'))
        def rload(js):
            for ks in js:
                if ks < 4:
                    A(f's_xor_b32 {s(S_PS)}, {s(S_PQ)}, {ks<<16}')
                    for rt in range(4):
                        RF[ks, rt] = ('a', (224, 240, 0)[KO.index(ks) - min(KO.index(k) for k in (1, 2, 3))] + 4 * rt)
                        A(f'buffer_load_dwordx4 {reg(RF[ks,rt])}, {v(V_L16)}, {s(SRD_WS,4)}, {s(S_PS)} offen offset:{rt*1024}{GLF}')
                        rv[ks, rt] = A.nvm
                    continue
                if ks == 6: A(f's_lshl_b32 {s(S_T0)}, {s(S_ODD)}, 17\ns_xor_b32 {s(S_T0)}, {s(S_T0)}, {s(S_PQ)}')
                for k in range(2):
                    for e in range(2):
                        if ks == 4 and e == 0: RF[ks, 2 * k] = ('v', acc[2, 2 * k]); continue
                        RF[ks, 2 * k + e] = ('v', slots.pop(0))
                        if ks == 6: A(f's_xor_b32 {s(S_PS)}, {s(S_T0)}, {(e<<16)|(k<<14)|4096}')
                        elif ks == 5 or k == 0: A(f's_xor_b32 {s(S_PS)}, {s(S_PQ)}, {((2*(ks-4)+e)<<16)|4096}')
                        A(f'buffer_load_dwordx4 {reg(RF[ks,2*k+e])}, {v(V_L16)}, {s(SRD_WS,4)}, {s(S_PS)} offen offset:{2048 if ks == 6 else k*1024}{GLF}')
                    rv[ks, 2 * k] = rv[ks, 2 * k + 1] = A.nvm
                    sw[ks, k] = True
        def rswap(ks, k):
            if not sw.pop((ks, k), False): return
            A.wait(vm=rv[ks, 2 * k])
            for i in range(2): A(f'v_swap_b32 {reg(RF[ks,2*k],1,2+i)}, {reg(RF[ks,2*k+1],1,i)}')
        A.wait(lg=max(max(fl_.values()), max(self.w1l.values())))
        EPK = o.get('epk', 22) / 10
        ml = []
        for t in [int(ch) for ch in str(o.get('tord', '0123')).zfill(4)]:
            for nt in range(2 if t < 3 else 1):
                ml += [('a', t, rt, b) for b in range(12, 17) for rt in (2 * nt, 2 * nt + 1)]
        N3 = len(ml)
        NM = o.get('nm', 2)
        if o.get('art'): ml += [('b', j, 0, rt) for rt in range(4) for j in range(8)]
        else: ml += [('b', j, 0, rt) for j in range(8) for rt in range(4)]
        for ks in KO[:6-NM]: ml += [('b', j, ks, rt) for rt in range(4) for j in range(4)]
        for j in range(4): ml += [('b', j, ks, rt) for ks in KO[6-NM:] for rt in range(4)]
        for j in range(4, 8): ml += [('b', j, ks, rt) for ks in KO for rt in range(4)]
        pa = {}; due = []; cnt = {}
        def dual(fn):
            LS = A.newlabel('slow'); LJ = A.newlabel('dj')
            A(f's_cmp_eq_u32 {s(S_FAST)}, 0\ns_cbranch_scc1 {LS}')
            A.snap(); fn(''); A(f's_branch {LJ}'); A.label(LS); A.unsnap()
            fn(' sc1'); A.label(LJ)
        def pack(j):
            return [f'v_cvt_pk_bf16_f32 {v(pa[j,rt&2]+2*(rt&1)+i)}, {v(pa[j,rt]+2*i)}, {v(pa[j,rt]+2*i+1)}' for rt in range(4) for i in range(2)]
        self.nred = 0; self.gb = False
        def red(j):
            x = 3 - (j & 3)
            def wr():
                assert self.gb and (j < 4 or 0 in rdm)
                for k in range(2): A(f'ds_write_b128 {v(V_IB)}, {v(pa[j,2*k],4)} offset:{(x-1)*2048+(k^(x&1))*1024}')
                A(f'v_xor_b32 {v(V_IB)}, {(x^(x-1))<<14}, {v(V_IB)}')
                slots.extend(pa[j, rt] for rt in (1, 3, 0, 2)); self.nred += 1
            return pack(j) + [wr]
        rdm = {}
        AR = (32, 56)
        def rbar(js):
            hf = js[0]
            while self.nred < 3 * (hf + 1): self.emit(ep.pop(0))
            if hf == 0:
                for k in range(14): ensure(16 + k)
            A.wait(lg=A.nlg); A('s_barrier')
            for k in range(6):
                A(f'ds_read_b128 {a(AR[hf]+4*k,4)}, {v(V_IB)} offset:{k*1024}'); rdm[hf, k] = A.nlg
            rdm[hf] = True
            if hf == 0: A(f'v_xor_b32 {v(V_IB)}, {65536|(3<<14)}, {v(V_IB)}')
        def radd(js):
            hf = js[0]; j = 4 * hf + 3
            assert hf or all(cnt[j, rt] == 7 for rt in range(4))
            for x in range(3):
                for rt in range(4):
                    k = A.wait(lg=rdm[hf, 2 * x + (rt >> 1)])
                    A(f'v_mfma_f32_16x16x32_bf16 {v(pa[j,rt],4)}, {v(V_SEL+2-2*(rt&1),4)}, {a(AR[hf]+8*x+4*(rt>>1),4)}, {v(pa[j,rt],4)}')
                    self.tick += 1
                    fill(EPK, [ep, None, misc if self.n >= MB else []], k * SW)
            if hf == 0: due.append((self.n + 1, send()))
        self.sent = None
        def send():
            c = [pa[3, rt] for rt in range(4)]
            q = []
            for k in range(3):
                q += [f'v_cvt_pk_bf16_f32 {v(c[k]+i)}, {v(c[k]+2*i)}, {v(c[k]+2*i+1)}' for i in range(2)]
                q.append(f'v_cvt_pk_bf16_f32 {v(c[k]+2)}, {v(c[3]+2*k)}, {v(c[3]+2*k+1)}' if k < 2 else f'v_mov_b32 {v(c[k]+2)}, {s(S_LT)}')
                q.append(f'v_mov_b32 {v(c[k]+3)}, {s(S_LT)}')
            def st():
                A(f's_xor_b32 {s(S_PS)}, {s(S_PQ)}, {(4<<16)|8192}')
                for k in range(3): A(f'buffer_store_dwordx4 {v(c[k],4)}, {v(V_L16)}, {s(SRD_WS,4)}, {s(S_PS)} offen offset:{k*1024} sc1')
                self.sent = A.nvm
                slots.extend(pa[3, rt] for rt in (3, 0, 1, 2))
                if o.get('fine') == 2: self.stamp(f'sent n{self.n-N3}')
            return q + [st]
        def flag(js):
            while self.nst < 7: self.emit(ep.pop(0))
            A(f's_and_b32 {s(S_T0)}, {s(S_Q)}, 3\ns_lshl1_add_u32 {s(S_T0)}, {s(S_T0)}, {s(S_ODD)}\ns_lshl3_add_u32 {s(S_T0)}, {s(S_T0)}, {s(S_FLA)}')
            A.wait(vm=self.rst)
            A('s_mov_b64 exec, 1')
            def fl(sc):
                if sc and RSP:
                    assert self.n <= N3 + 32 and (4, 0) not in RF
                    A.snap(); on = A.on; A.on = False
                    A('s_mov_b64 exec, -1')
                    for rt in range(4): A(f'buffer_store_dwordx4 {v(acc[0,rt],4)}, {v(V_L16)}, {s(SRD_WS,4)}, {s(S_PQ)} offen offset:{rt*1024} sc1')
                    hi23()
                    A('s_waitcnt vmcnt(0)\ns_mov_b64 exec, 1')
                    A.on = on; A.unsnap()
                A(f'buffer_store_dwordx2 {v(V_TAG,2)}, off, {s(SRD_WS,4)}, {s(S_T0)}{sc}')
            dual(fl)
            A('s_mov_b64 exec, -1')
        def hi23():
            A(f's_add_u32 {s(S_PS)}, {s(S_PQ)}, 4096')
            for k, c in enumerate((acc[2, 0], acc[2, 2], acc[3, 0])): A(f'buffer_store_dwordx4 {v(c,4)}, {v(V_L16)}, {s(SRD_WS,4)}, {s(S_PS)} offen offset:{k*1024} sc1')
        def clean(js):
            if 0 in js:
                assert sw.get((4, 0), True) and sw.get((4, 1), True) and ((4, 0) not in RF or ((4, 0) in sw and (4, 1) in sw))
                hi23(); slots.append(acc[3, 0])
            if 1 in js:
                A(f's_xor_b32 {s(S_PS)}, {s(S_PQ)}, {1<<16}')
                A.wait(vm=rv[1, 3])
                for rt in range(4): A(f'buffer_store_dwordx4 {reg(RF[1,rt])}, {v(V_L16)}, {s(SRD_WS,4)}, {s(S_PS)} offen offset:{rt*1024} sc1')
            if 2 in js: slots.append(acc[3, 0])
            if 3 in js:
                LS = A.newlabel('nwb')
                A(f's_lshr_b32 {s(S_T0)}, s2, 3\ns_lshl2_add_u32 {s(S_T0)}, {s(S_T0)}, {s(S_W)}\ns_cmp_lg_u32 {s(S_T0)}, {o.get("wbw", 0)}\ns_cbranch_scc1 {LS}')
                LJ = A.newlabel('wj')
                A.snap(); A('buffer_wbl2 sc1'); A(f's_branch {LJ}'); A.label(LS); A.unsnap()
                A(f'buffer_load_dword {v(V_PL)}, off, {s(SRD_WS,4)}, {s(S_FLA)}'); A.label(LJ)
        pm = {}; V_PL = V_ONES
        def pissue(js):
            A(f'buffer_load_dwordx2 {v(V_PL,2)}, {v(V_FC)}, {s(SRD_WS,4)}, {s(S_FLA)} offen sc1')
            pm[js] = A.nvm
        def pcheck(js):
            if js not in pm: pissue(js)
            Lp = A.newlabel('poll'); D = A.newlabel('polld')
            A.wait(vm=pm[js])
            A.on = False
            A(f'v_cmp_ne_u64 vcc, {v(V_PL,2)}, {v(V_TAG,2)}\ns_mov_b32 {s(S_CNT)}, 0x20000\ns_cbranch_vccz {D}')
            A.snap()
            A.label(Lp)
            A(f'''
            buffer_load_dwordx2 {v(V_PL,2)}, {v(V_FC)}, {s(SRD_WS,4)}, {s(S_FLA)} offen sc1
            s_sub_u32 {s(S_CNT)}, {s(S_CNT)}, 1
            s_cbranch_scc1 {D}
            s_waitcnt vmcnt(0)
            v_cmp_ne_u64 vcc, {v(V_PL,2)}, {v(V_TAG,2)}
            s_cbranch_vccnz {Lp}
            ''')
            A.label(D)
            A.unsnap()
            A.on = True
        PD = []
        def pload(js=None):
            if not PD: PD.extend(slots.pop(0) for _ in range(3))
            A(f's_add_u32 {s(S_PS)}, {s(S_PQ)}, 8192')
            for k in range(3): A(f'buffer_load_dwordx4 {v(PD[k],4)}, {v(V_L16)}, {s(SRD_WS,4)}, {s(S_PS)} offen offset:{k*1024} sc1')
            self.plm = A.nvm
        def kcheck(js):
            assert len(misc) in (0, self.nmisc)
            Lc = A.newlabel('chk'); D = A.newlabel('got')
            t = V_PL
            A(f's_movk_i32 {s(S_CNT)}, 0x4000')
            A.wait(vm=self.plm)
            A.on = False
            A.label(Lc)
            A(f'v_xor_b32 {v(t)}, {s(S_LT)}, {v(PD[0]+3)}')
            for k in (1, 2): A(f'v_bitop3_b32 {v(t)}, {v(t)}, {v(PD[k]+3)}, {s(S_LT)} bitop3:0xf6')
            A(f'v_cmp_ne_u32 vcc, 0, {v(t)}\ns_cbranch_vccz {D}')
            A.snap()
            pload()
            A(f's_sub_u32 {s(S_CNT)}, {s(S_CNT)}, 1\ns_waitcnt vmcnt(0)\ns_cbranch_scc0 {Lc}')
            A.label(D)
            A.unsnap()
            A.on = True
        Q3 = []
        def selq(js=None):
            if Q3: return
            Q3.extend([slots.pop(0), slots.pop(0)])
            for k in range(2):
                for i in range(4): A(f'v_mov_b32 {v(Q3[k]+i)}, {v(V_SEL+2+k) if i == 2 else 0}')
        def zadd(js):
            selq()
            for rt, sel, k in ((3, Q3[0], 0), (0, V_SEL + 2, 0), (1, V_SEL + 2, 1), (2, V_SEL + 2, 2), (3, Q3[1], 1)):
                A(f'v_mfma_f32_16x16x32_bf16 {v(pa[7,rt],4)}, {v(sel,4)}, {v(PD[k],4)}, {v(pa[7,rt],4)}')
        def num(js): return int(''.join(map(str, js)))
        def dforce(js):
            k = 16 + num(js)
            while k not in dt:
                if d_ok(True): d_pop()
                else:
                    assert t_ok(True); t_pop()
        def gbar(js): A('s_barrier'); self.gb = True
        def pwait(js):
            while self.sent is None: self.emit(ep.pop(0))
            A.wait(vm=self.sent)
        V_OO = V_CS + 4
        bs = {}
        def balloc():
            for rt in range(4): bs[rt] = slots.pop(0)
            q = [f'ds_read_u16_d16_hi {v(bs[rt]+r)}, {v(V_BIAS+r)} offset:{rt*1024}' for rt in range(2) for r in range(4)]
            q += [f'v_xor_b32 {v(V_BIAS+r)}, 2048, {v(V_BIAS+r)}' for r in range(4)]
            q += [f'ds_read_u16_d16_hi {v(bs[2+rt]+r)}, {v(V_BIAS+r)} offset:{rt*1024}' for rt in range(2) for r in range(4)]
            def mk(): self.bl = A.nlg
            q += [mk, lambda: A.wait(vm=self.b2m)]
            q += [f'v_lshlrev_b32 {v(V_FIX)}, 16, {v(V_BT)}', f'v_and_b32 {v(V_FIX+1)}, 0xffff0000, {v(V_BT)}',
                  f'v_lshlrev_b32 {v(V_FIX+2)}, 16, {v(V_TD)}', f'v_and_b32 {v(V_FIX+3)}, 0xffff0000, {v(V_TD)}', lambda: A.wait(lg=self.bl)]
            if o.get('bz', 1): q += [f'v_and_b32 {v(bs[rt]+r)}, 0xffff0000, {v(bs[rt]+r)}' for rt in range(4) for r in range(4)]
            q += [f'v_add_f32 {v(bs[rt]+r)}, {v(bs[rt]+r)}, {v(V_FIX+r)}' for rt in range(4) for r in range(4)]
            misc.extend(q)
        def spread(d, e):
            return L(f'''
            v_and_b32 v7, 0xc0, {v(e)}
            v_lshl_add_u32 {v(d)}, v7, 8, {v(V_BIAS+3)}
            v_and_b32 v7, 0x20, {v(e)}
            v_lshl_add_u32 {v(d)}, v7, 7, {v(d)}
            v_and_b32 v7, 0x18, {v(e)}
            v_lshl_add_u32 {v(d)}, v7, 5, {v(d)}
            v_and_b32 v7, 7, {v(e)}
            v_lshl_add_u32 {v(d)}, v7, 1, {v(d)}
            ''')
        def b2ld():
            A(f'buffer_load_dwordx2 {v(V_BT,2)}, {v(V_FIX)}, {s(SRD_B2,4)}, 0 offen'); self.b2m = A.nvm
        mis0 = L(f'''
        s_lshl2_add_u32 {s(S_T1)}, {s(S_Q)}, {s(S_W)}
        s_lshl_b32 {s(S_T1)}, {s(S_T1)}, 4
        v_lshl_add_u32 v6, {v(V_G)}, 2, {s(S_T1)}
        v_lshlrev_b32 {v(V_FIX)}, 1, v6
        ''') + [b2ld] + L(f'''
        v_and_b32 {v(V_FC)}, 7, {v(V_LANE)}
        v_lshlrev_b32 {v(V_FC)}, 3, {v(V_FC)}
        s_andn2_b32 {s(S_T2)}, 4, {s(S_Q)}
        s_xor_b32 {s(S_T3)}, {s(S_W)}, 3
        s_lshl3_add_u32 {s(S_T2)}, {s(S_T3)}, {s(S_T2)}
        s_lshl_b32 {s(S_T2)}, {s(S_T2)}, 11
        v_add_u32 {v(V_IB)}, {s(S_T2)}, {v(V_L16)}
        s_and_b32 {s(S_T3)}, {s(S_Q)}, 4
        s_add_u32 {s(S_T2)}, {s(S_T3)}, {s(S_ODD)}
        s_lshl_b32 {s(S_T2)}, {s(S_T2)}, 11
        v_lshl_add_u32 {v(V_BIAS+3)}, {v(V_L15)}, 4, {s(S_T2)}
        s_cmp_ge_u32 {s(S_Q)}, 4 @@ s_cselect_b64 vcc, -1, 0
        v_sub_u32 {v(V_FIX+1)}, 512, v6
        v_cndmask_b32 {v(V_FIX+1)}, v6, {v(V_FIX+1)}, vcc
        v_subrev_u32 {v(V_FIX+2)}, {s(S_T3)}, {v(V_FIX+1)}
        ''') + spread(V_BIAS, V_FIX + 1) + spread(V_BIAS + 2, V_FIX + 2) + L(f'''
        s_add_u32 {s(S_T2)}, {s(S_T3)}, 2
        v_add_u32 {v(V_BIAS+1)}, {s(S_T2)}, {v(V_BIAS+2)}
        v_xor_b32 {v(V_BIAS+3)}, 4, {v(V_BIAS+1)}
        v_add_u32 {v(V_BIAS+2)}, 4, {v(V_BIAS+2)}
        v_lshrrev_b32 v6, 5, {v(V_LANE)}
        v_lshlrev_b32 v6, 4, v6
        s_lshl_b32 {s(S_T1)}, {s(S_T1)}, 1
        v_add_u32 v6, {s(S_T1)}, v6
        v_sub_u32 v7, 2048, {v(V_TT)}
        v_cmp_eq_u32 vcc, 0, {v(V_TT)}
        v_mov_b32 {v(V_OO)}, 1024
        v_cndmask_b32 v7, v7, {v(V_OO)}, vcc
        s_cmp_eq_u32 {s(S_ODD)}, 1 @@ s_cselect_b64 vcc, -1, 0
        v_cndmask_b32 {v(V_OO)}, {v(V_TT)}, v7, vcc
        v_cndmask_b32 {v(V_OO+1)}, v7, {v(V_TT)}, vcc
        v_lshl_add_u32 {v(V_OO)}, {v(V_OO)}, 10, v6
        v_lshl_add_u32 {v(V_OO+1)}, {v(V_OO+1)}, 10, v6
        ''')
        misc = [balloc]
        ev = {}
        tail = []
        EV = {'f': flag, 'i': pissue, 'c': pcheck, 'l': rload, 'd': dforce, 't': lambda js: ensure(16 + num(js)), 'b': gbar,
              'm': lambda js: self.flush(misc), 'e': lambda js: (self.flush(ep), self.flush(m0)), 'q': selq, 'r': rbar, 'a': radd, 'v': pload, 'k': kcheck, 'z': zadd, 'w': pwait, 'x': clean, 'h': lambda js: setattr(self, 'hold', bool(js[0]))}
        for e in o.get('ev', 'e0@32.F0@32.b0@32.C0@32.L123456@32.r0@134.a0@142.q0@190.v0@215.R1.a1.K0.z0').split('.'):
            js = tuple(int(ch) for ch in e.split('@')[0][1:])
            fn = EV[e[0].lower()]
            if '@' in e: ev.setdefault(N3 + int(e.split('@')[1]), []).append((e, fn, js))
            else: tail.append((e, fn, js))
        MB = N3 + o.get('misc0', 150); self.nmisc = len(misc)
        m0 = []
        it = {x: k for k, x in enumerate(self.items)}
        for n, m in enumerate(ml):
            self.n = n
            if n == N3:
                self.stamp('p3 mfma done')
                print('last left: ep', len(ep), 'dq', len(dq), 'tq', len(tq), 'tick', self.tick)
                self.blk = 16
                slots.extend(fr[b, rt] for b in range(12, 16) for rt in range(4))
                slots.extend(BF); slots.extend([V_CS + 8, V_CS + 12])
            if n == N3 + 2: m0 = mis0
            for e, fn, js in ev.get(n, []):
                fn(js)
                if e[0].isupper(): self.stamp(e.split('@')[0] + f' d{len(dq)} t{len(tq)}')
            k = 0
            if m[0] == 'a':
                _, t, rt, b = m
                if b < 16: mm(t, rt, b, fr[b, rt])
                else: A(f'v_mfma_f32_16x16x32_bf16 {v(acc[t,rt],4)}, {v(V_CS+4*t,4)}, {v(BF[rt],4)}, {v(acc[t,rt],4)}')
                if b == 16 and rt & 1: due.append((n + 2, epi(t, rt >> 1)))
            else:
                _, j, ks, rt = m
                b = it[j >> 2, ks]
                ensure(16 + b)
                while (ks, rt) not in RF: self.emit(ep.pop(0))
                rswap(ks, rt >> 1)
                k = A.wait(vm=rv.get((ks, rt)), lg=self.trl[16 + b])
                if ks == 0: pa[j, rt] = slots.pop(0)
                c = v(pa[j, rt], 4)
                A(f'v_mfma_f32_16x16x32_bf16 {c}, {a(16*b+4*(j&3),4)}, {reg(RF[ks,rt])}, {c if ks else "0"}')
                cnt[j, rt] = cnt.get((j, rt), 0) + 1
                if j == 7 and RF[ks, rt][0] == 'v': slots.append(RF[ks, rt][1])
                if rt == 3 and cnt[j, rt] == 7 and j & 3 < 3: due.append((n + 2, red(j)))
                if o.get('fine') == 2 and n - N3 in (32, 48, 64, 80, 96, 127, 176): self.stamp(f'n{n-N3} d{len(dq)} t{len(tq)}')
            self.tick += 1
            while due and due[0][0] <= n: ep += due.pop(0)[1]
            fill(EPK, [ep, None, m0, misc if n >= MB else []], k * SW)
        print('dt', {k: x for k, x in dt.items() if x > -999}); print('tt', {k: x for k, x in tt_.items() if x > -999})
        print('end left: ep', len(ep), 'misc', len(misc), 'dq', len(dq), 'tq', len(tq), 'slots', len(slots))
        self.flush(ep)
        if not any(e[0] in 'mM' for e, _, _ in tail): self.flush(misc)
        self.stamp('p4 mfma done')
        for e, fn, js in tail:
            fn(js)
            if e[0].isupper(): self.stamp(e)
        for rt in range(4):
            for k in range(0, 4, 2):
                A(f'v_pk_fma_f32 {v(pa[7,rt]+k,2)}, {v(pa[7,rt]+k,2)}, {v(RS+(rt&2),2)}, {v(bs[rt]+k,2)} op_sel:[0,{rt&1},0] op_sel_hi:[1,{rt&1},1]')
        self.flush(pack(7))
        for k in range(2):
            c = pa[7, 2 * k]
            A(f'v_permlane16_swap_b32 {v(c)}, {v(c+2)}\nv_permlane16_swap_b32 {v(c+1)}, {v(c+3)}')
            A(f'buffer_store_dwordx4 {v(c,4)}, {v(V_OO+k)}, {s(SRD_OUT,4)}, 0 offen{self.outf}')

    def probe_end(self):
        A = self.A
        a_, b_ = self.opt['probe'].split('-')
        if b_ == 'end':
            A('s_waitcnt vmcnt(0)'); self.stamp('end')
        A(f'''
        s_waitcnt lgkmcnt(0)
        s_sub_u32 {s(S_T0)}, {s(S_TS+4)}, {s(S_TS if a_ == 'start' else S_TS+2)}
        s_lshr_b32 {s(S_T0)}, {s(S_T0)}, {4 if self.opt.get('pcyc') else 0}
        s_min_u32 {s(S_T0)}, {s(S_T0)}, 4000
        s_lshl_b32 {s(S_T0)}, {s(S_T0)}, 2
        s_add_u32 {s(S_T0)}, {s(S_T0)}, 4000
        s_add_u32 {s(S_T0)}, {s(S_T0)}, {s(S_TS)}
        L_pspin:
        s_memrealtime {s(S_TS+6,2)}
        s_waitcnt lgkmcnt(0)
        s_sub_u32 {s(S_T1)}, {s(S_TS+6)}, {s(S_T0)}
        s_cmp_lt_i32 {s(S_T1)}, 0
        s_cbranch_scc1 L_pspin
        ''')

    def dump_ts(self):
        if self.opt.get('probe'): return self.probe_end()
        if not self.diag: return
        A = self.A
        A('s_waitcnt vmcnt(0)')
        self.stamp('end')
        A(f'''
        s_lshl_b32 {s(S_T0)}, s2, 2
        s_add_u32 {s(S_T0)}, {s(S_T0)}, {s(S_W)}
        s_lshl_b32 {s(S_T0)}, {s(S_T0)}, 7
        s_add_u32 {s(S_T0)}, {s(S_T0)}, {WS_TS}
        s_getreg_b32 {s(S_T1)}, hwreg(HW_REG_XCC_ID)
        s_waitcnt lgkmcnt(0)
        s_mov_b64 exec, 1
        ''')
        for i in range(20): A(f'v_mov_b32 {v(16+i)}, {s(S_TS+2*i) if i < len(self.names) else 0}')
        A(f'v_mov_b32 v40, {s(S_T1)}')
        A(f'v_mov_b32 v41, {s(S_FAST)}')
        for i in range(5):
            A(f'buffer_store_dwordx4 {v(16+4*i,4)}, off, {s(SRD_WS,4)}, {s(S_T0)} offset:{16*i}')
        A(f'buffer_store_dwordx2 v[40:41], off, {s(SRD_WS,4)}, {s(S_T0)} offset:80')

    def build(self):
        A = self.A
        self.p1()
        self.window()
        self.p23()
        A.on = False
        self.dump_ts()
        if self.opt.get('sched', 1):
            import sched
            A = sched.run(A.prog, self.opt.get('win', 20))
            r = A.report
            print('model:', ' | '.join(f'{r[i][0]} {r[i][1]-r[i-1][1]}' for i in range(1, len(r))))
            self.A = A
        hdr = f'''; FNet (2D DFT, factored) + LayerNorms + squared-ReLU FFN, one persistent launch.
; @launch grid=(256,1,1) block=(256,1,1) lds=163840
''' + (f'; names: {",".join(self.names)}\n' if self.diag else '') + f'''.amdgcn_target "amdgcn-amd-amdhsa--gfx950"
.text
.globl {KNAME}
{self.align()}.p2align 8
.type {KNAME},@function
{KNAME}:
'''
        ftr = f'''L_end:
    s_endpgm
.section .rodata,"a"
.p2align 6
.amdhsa_kernel {KNAME}
  .amdhsa_next_free_vgpr 512
  .amdhsa_next_free_sgpr 102
  .amdhsa_accum_offset 256
  .amdhsa_group_segment_fixed_size 0
  .amdhsa_kernarg_size 104
  .amdhsa_user_sgpr_count 2
  .amdhsa_user_sgpr_kernarg_segment_ptr 1
  .amdhsa_system_sgpr_workgroup_id_x 1
.end_amdhsa_kernel
'''
        import pads
        return hdr + '\n'.join(pads.apply(hdr, A.text().rstrip('\n').split('\n'), ftr, self.opt, S_W)) + '\n' + ftr

if __name__ == '__main__':
    out = sys.argv[1]
    opt = {}
    for x in sys.argv[2:]:
        if '=' in x:
            k, val = x.split('='); opt[k] = int(val) if val.lstrip('-').isdigit() else val.replace('_', ' ')
    g = Gen(diag='diag' in sys.argv[2:], opt=opt)
    t = g.build()
    open(out, 'w').write(t)
    print('nops inserted', g.A.nops, 'stamps', len(g.names))
```

```python
import sys
import sched
from asmlib import *

KNAME = 'sequential_preLN__spectral_fnet__dense_activation_squared_relu__prompt_kernel'
WS_Z, WS_HN, WS_R, WS_ST, WS_FL, WS_TS = 0, 2 << 20, 4 << 20, 12 << 20, 13 << 20, 14 << 20
WS_SIZE = 32 << 20
WS_P2 = 32 << 20
S_LT, S_FLA = 100, 101
WS_P = 16 << 20
FP = WS_ST
F1 = WS_FL + 0x10000
F3 = WS_FL + 0x4000
FX = WS_FL + 0x6000
FX2 = WS_FL + 0x8000
FX3 = WS_FL + 0x40000
FE = WS_FL + 0x7000
HPW = 16384
L_S = 65536
SPW = 20480
L_M = L_S + 4 * SPW
L_EXC, L_XE, L_STAT = L_M, L_M + 8192, L_M + 10240
S_W = 3
S_T0, S_T1, S_T2, S_T3 = 4, 5, 6, 7
SRD_X, SRD_W1, SRD_W2, SRD_OUT, SRD_WS, SRD_B1, SRD_B2 = 8, 12, 16, 20, 24, 28, 32
S_CNT, S_FAST = 36, 37
S_F1 = S_CNT
S_C, S_N, S_U, S_Q = 38, 39, 40, 41
S_TB1, S_ODD, S_TW, S_W2S, S_BG, S_HB0 = 42, 43, 44, 45, 46, 47
S_XO = 48
S_RR = 52
S_FIX = 56
S_AM0, S_TCH = 58, 59
S_M = 60
S_TS = 62
S_HB, S_SB = 0, 1
V_LANE, V_L15, V_G, V_L16, V_TAG = 0, 1, 2, 3, 4
V_L128 = 14
ZF, TB, Y = 16, 80, 192
V_ONES = 144
V_W1U, V_W1D = 148, 152
V_W1R = 156
V_CS = 160
V_SEL = 176
AD_ = 224
V_FXV = 180
V_BT, V_TD = 182, 183
V_FIX = 184
V_ZA = 188
V_TT = 190
V_W2A = 148
V_W2R = 152


SW = 0.4
class TAsm(Asm):
    def __init__(self):
        super().__init__(); self.nvm = 0; self.nlg = 0; self.dvm = 0; self.dlg = 0
        self.prog = []; self.on = False; self.wt = 0; self.clk = None
    def label(self, name): super().label(name); self.prog.append(('label', name))
    def raw(self, t): super().raw(t); self.prog.append(('raw', t))
    def snap(self):
        self._snap = (list(self.hist), self.nvm); self.prog.append(('snap',))
    def unsnap(self):
        self.hist, self.nvm = self._snap; self.prog.append(('unsnap',))
    def i(self, text):
        if getattr(self, 'drop', None) and self.drop(text): return
        super().i(text)
        self.prog.append(('i', text, self.on))
        c = self.hist[-1]
        self.wt += 0 if c.is_mfma else 2 if c.is_vmem else 4 if c.op == 'ds_write_b128' else 2 if c.is_trans else 1 if (c.is_ds or c.is_valu) else SW
        if self.clk: self.clk.do(c, sched.klass(c))
        if c.is_vmem: self.nvm += 1
        if c.is_ds: self.nlg += 1
    def wait(self, vm=None, lg=None):
        p = []
        if vm is not None and vm > self.dvm:
            n = min(63, self.nvm - vm); p.append(f'vmcnt({n})'); self.dvm = self.nvm - n
        if lg is not None and lg > self.dlg:
            n = min(15, self.nlg - lg); p.append(f'lgkmcnt({n})'); self.dlg = self.nlg - n
        if p: self('s_waitcnt ' + ' '.join(p))
        return 1 if p else 0

def L(txt): return [x.strip().replace(' @@ ', '\n') for x in txt.strip().split('\n') if x.strip()]

class Gen:
    def __init__(self, diag=False, opt=None):
        self.A = TAsm(); self.diag = diag; self.nts = 0; self.names = []
        self.opt = opt or {}
        self.fsh = 4
        fl = lambda k, d: (' ' + self.opt[k]).rstrip() if self.opt.get(k, 'pl') != 'pl' else ('' if k in self.opt else d)
        self.ldf = fl('ldf', ' sc1'); self.outf = fl('outf', ' nt'); self.zldf = fl('zldf', ' sc1'); self.plf = fl('plf', ' sc1'); self.fef = fl('fef', ' sc1'); self.fxf = fl('fxf', ' sc1')
        self.skip = set()
        self.nofence = set(); self.skip = set() if self.opt.get('alls') else {'x first', 'kernarg', 'pre F1'}
        if self.opt.get('fine'): self.skip = {'kernarg', 'tables', 'x first', 'gemm1 done', 'Z stores', 'F1 set', 'p2 prepoll', 'pre F1', 'Z first', 'Z landed'}

    def stamp(self, name):
        if self.opt.get('fine') == 3 and not (name.startswith('wd') or name in ('start', 'gemm1 done', 'Z stores', 'pre F1', 'F1 set', 'p2 prepoll', 'p2 polled', 'Z first', 'end')): self.skip.add(name)
        elif self.opt.get('fine') == 3: self.skip.discard(name)
        if name not in self.nofence: self.A.prog.append(('fence', name))
        elif not self.opt.get('allst'): return
        pr = self.opt.get('probe')
        if pr:
            a_, b_ = pr.split('-')
            if name == 'start': self.A(f's_memrealtime {s(S_TS, 2)}')
            ins = 's_memtime' if self.opt.get('pcyc') else 's_memrealtime'
            if name == a_ and name != 'start': self.A(f'{ins} {s(S_TS+2, 2)}')
            if name == b_: self.A(f'{ins} {s(S_TS+4, 2)}')
            return
        if self.opt.get('only') and name not in ('start', 'end', 'p3 mfma done'): return
        if self.diag and name not in self.skip:
            idx = len(self.names); self.names.append(name)
            assert idx < 19
            self.A(f'{"s_memtime" if self.opt.get("cyc") else "s_memrealtime"} {s(S_TS + 2*idx, 2)}')

    def emit(self, x):
        if callable(x): x()
        else: self.A(x)
    def weave(self, lines, bg, every):
        if isinstance(lines, str): lines = L(lines)
        for n, x in enumerate(lines):
            self.emit(x)
            if bg and (n + 1) % every == 0: self.emit(bg.pop(0))
    def flush(self, bg):
        while bg: self.emit(bg.pop(0))

    def srd(self, base, nbytes):
        self.A(f's_mov_b32 {s(base+2)}, {nbytes}\ns_mov_b32 {s(base+3)}, 0x20000')

    def poll(self, vaddr, nl, vtmp):
        A = self.A
        Lp = A.newlabel('poll'); D = A.newlabel('polld')
        on = A.on; A.on = False
        if nl < 64: A(f's_mov_b64 exec, {(1<<nl)-1}')
        A(f's_mov_b32 {s(S_CNT)}, 0x20000')
        A.label(Lp)
        A(f'buffer_load_dwordx2 {v(vtmp,2)}, {v(vaddr)}, {s(SRD_WS,4)}, 0 offen sc1')
        A(f's_sub_u32 {s(S_CNT)}, {s(S_CNT)}, 1')
        A(f's_cbranch_scc1 {D}')
        A('s_waitcnt vmcnt(0)')
        A(f'v_cmp_ne_u64 vcc, {v(vtmp,2)}, {v(V_TAG,2)}')
        A(f's_cbranch_vccnz {Lp}')
        A.label(D)
        A('s_waitcnt vmcnt(0)')
        A.dvm = A.nvm
        if nl < 64: A('s_mov_b64 exec, -1')
        A.on = on

    def setflag(self, soff, sc):
        A = self.A
        A('s_mov_b64 exec, 1')
        A(f'buffer_store_dwordx2 {v(V_TAG,2)}, off, {s(SRD_WS,4)}, {s(soff)}{sc}')
        A('s_mov_b64 exec, -1')

    def dualflag(self, soff):
        A = self.A
        if self.opt.get('nofast'): return self.setflag(soff, ' sc1')
        LS = A.newlabel('slow'); LJ = A.newlabel('dj')
        A(f's_cmp_eq_u32 {s(S_FAST)}, 0\ns_cbranch_scc1 {LS}')
        A.snap()
        self.setflag(soff, '')
        A(f's_branch {LJ}')
        A.label(LS)
        A.unsnap()
        self.setflag(soff, ' sc1')
        A.label(LJ)

    def touch(self, vd, srd, soff, lanes, fl='', va=V_L128):
        A = self.A
        if lanes < 64: A(f's_mov_b64 exec, {hex((1<<lanes)-1)}' if lanes < 32 else f's_mov_b32 exec_hi, {hex((1<<(lanes-32))-1)}')
        A(f'buffer_load_dword {v(vd)}, {v(va)}, {s(srd,4)}, {s(soff)} offen{fl}')
        if lanes < 64: A('s_mov_b64 exec, -1')
    def w1touch(self, l0, l1):
        A = self.A
        m = ((1 << l1) - 1) & ~((1 << l0) - 1)
        A(f'''
        s_bfe_u32 {s(S_TCH)}, {s(S_TW)}, 0x20004
        s_lshl_b32 {s(S_TCH)}, {s(S_TCH)}, 6
        s_bitcmp1_b32 {s(S_TW)}, 6
        s_cselect_b32 {s(S_BG)}, 257, 32
        s_add_u32 {s(S_TCH)}, {s(S_TCH)}, {s(S_BG)}
        s_and_b32 {s(S_BG)}, {s(S_TW)}, 15
        s_lshl1_add_u32 {s(S_TCH)}, {s(S_BG)}, {s(S_TCH)}
        s_mul_i32 {s(S_TCH)}, {s(S_TCH)}, 3584
        s_mov_b32 exec_lo, {hex(m & 0xffffffff)}
        s_mov_b32 exec_hi, {hex(m >> 32)}
        buffer_load_dword {v(V_TD)}, {v(V_L128)}, {s(SRD_W1,4)}, {s(S_TCH)} offen
        s_mov_b64 exec, -1
        ''')
    def w2touch(self, k):
        A = self.A
        if k is not None:
            LS = A.newlabel('nt'); A(f's_cmp_lg_u32 {s(S_C)}, {k}\ns_cbranch_scc1 {LS}'); A.snap()
        A(f's_mul_i32 {s(S_TCH)}, {s(S_TW)}, {112*128}')
        self.touch(V_TD, SRD_W2, S_TCH, 64)
        A(f's_add_u32 {s(S_TCH)}, {s(S_TCH)}, 8192')
        self.touch(V_TD, SRD_W2, S_TCH, 48)
        if k is not None:
            A.label(LS); A.unsnap()
    def g2touch(self, m, part=None):
        A = self.A
        if m == 1:
            A(f'''
            v_mul_u32_u24 {v(V_BT)}, {3584-2048}, {v(V_G)}
            v_add_u32 {v(V_BT)}, {v(V_BT)}, {v(V_L128)}
            s_lshr_b32 {s(S_TCH)}, {s(S_Q)}, 2
            s_lshl3_add_u32 {s(S_TCH)}, {s(S_TW)}, {s(S_TCH)}
            s_mul_i32 {s(S_TCH)}, {s(S_TCH)}, 1792
            ''')
            if part == 'a': A(f's_and_b32 {s(S_BG)}, s2, 6\ns_lshl_b32 {s(S_BG)}, {s(S_BG)}, 3\ns_lshl_b64 exec, 0x3fff, {s(S_BG)}')
            else: A('s_mov_b32 exec_lo, 0x3fff3fff\ns_mov_b32 exec_hi, 0x3fff3fff')
            A(f'''
            buffer_load_dword {v(V_TD)}, {v(V_BT)}, {s(SRD_W1,4)}, {s(S_TCH)} offen
            s_mov_b64 exec, -1
            ''')
        else:
            A(f"""
            s_lshr_b32 {s(S_BG)}, {s(S_Q)}, 2
            s_lshl_b32 {s(S_BG)}, {s(S_BG)}, 7
            s_add_u32 {s(S_TCH)}, {s(S_TW)}, {s(S_BG)}
            s_mul_i32 {s(S_TCH)}, {s(S_TCH)}, 7168
            """)
            if part == 'a':
                A(f's_and_b32 {s(S_BG)}, s2, 6\ns_mul_i32 {s(S_BG)}, {s(S_BG)}, 896\ns_add_u32 {s(S_TCH)}, {s(S_TCH)}, {s(S_BG)}')
                self.touch(V_TD, SRD_W2, S_TCH, 14)
            else: self.touch(V_TD, SRD_W2, S_TCH, 56)
    def wtouch(self, vd, srd, l0, lanes):
        A = self.A
        A(f's_mul_i32 {s(S_TCH)}, {s(S_TW)}, {lanes*128}\ns_add_u32 {s(S_TCH)}, {s(S_TCH)}, {l0*128*128}')
        self.touch(vd, srd, S_TCH, lanes)

    def w1_setup(self):
        return L(f'''
        s_mul_i32 {s(S_T0)}, {s(S_Q)}, 448
        s_lshr_b32 {s(S_T1)}, {s(S_W)}, 1
        s_mul_i32 {s(S_T1)}, {s(S_T1)}, 224
        s_mul_i32 {s(S_T2)}, {s(S_ODD)}, 96
        s_add_u32 {s(S_T0)}, {s(S_T0)}, {s(S_T1)}
        s_add_u32 {s(S_T0)}, {s(S_T0)}, {s(S_T2)}
        v_lshlrev_b32 v6, 1, {v(V_G)}
        v_xor_b32 v6, v6, {v(V_LANE)}
        v_and_b32 v6, 7, v6
        v_lshl_add_u32 v6, v6, 4, {s(S_T0)}
        v_lshrrev_b32 v7, 5, {v(V_LANE)}
        v_bfe_u32 v8, {v(V_LANE)}, 3, 2
        v_lshl_add_u32 v7, v7, 3, v8
        v_sub_u32 v8, 11, v7
        s_movk_i32 {s(S_T3)}, 3584
        v_mad_u32_u24 {v(V_W1U)}, v7, {s(S_T3)}, v6
        v_mad_u32_u24 {v(V_W1D+3)}, v8, {s(S_T3)}, v6
        v_add_u32 {v(V_W1U+1)}, {16*3584-1024}, {v(V_W1U)}
        v_add_u32 {v(V_W1U+2)}, {4*3584-2048}, {v(V_W1U)}
        v_add_u32 {v(V_W1U+3)}, {20*3584-3072}, {v(V_W1U)}
        v_add_u32 {v(V_W1D)}, {20*3584+3072}, {v(V_W1D+3)}
        v_add_u32 {v(V_W1D+1)}, {4*3584+2048}, {v(V_W1D+3)}
        v_add_u32 {v(V_W1D+2)}, {16*3584+1024}, {v(V_W1D+3)}
        v_lshrrev_b32 v6, 2, {v(V_LANE)}
        v_lshlrev_b32 v6, 7, v6
        v_and_b32 v7, 3, {v(V_LANE)}
        v_lshl_add_u32 v6, v7, 3, v6
        v_add_u32 v6, {s(S_SB)}, v6
        v_bfe_u32 v7, {v(V_LANE)}, 3, 2
        ''') + sum([L(f'''
        s_add_u32 {s(S_T0)}, {s(S_ODD)}, {t}
        s_and_b32 {s(S_T0)}, {s(S_T0)}, 3
        v_xor_b32 v8, {s(S_T0)}, v7
        v_lshl_add_u32 {v(V_W1R+t)}, v8, 5, v6
        ''') for t in range(4)], [])
    def w1_dma(self, b, slot):
        A = self.A; q1, ip, var = b >> 3, (b >> 1) & 3, b & 1; n = 2 * var + q1
        ops = []
        for i in range(4):
            def f(i=i):
                if i == 0:
                    A(f's_xor_b32 {s(S_BG)}, {s(S_C)}, {ip}')
                    A(f's_mul_i32 {s(S_BG)}, {s(S_BG)}, {64*3584}')
                    if var == 0:
                        if q1: A(f's_add_u32 {s(S_BG)}, {s(S_BG)}, {32*3584}')
                    else: A(f's_sub_u32 {s(S_BG)}, {(512-31-32*q1)*3584 - 3072}, {s(S_BG)}')
                    A(f's_add_u32 m0, {s(S_SB)}, {slot*4096}')
                if n == 2 and i == 0:
                    A(f'''
                    v_add_u32 {v(V_BT)}, {s(S_BG)}, {v(V_W1D)}
                    s_cmp_eq_u32 {s(S_C)}, {ip}
                    s_cselect_b64 exec, 0xff, 0
                    v_subrev_u32 {v(V_BT)}, {256*3584}, {v(V_BT)}
                    s_mov_b64 exec, -1
                    buffer_load_dwordx4 {v(V_BT)}, {s(SRD_W1,4)}, 0 offen lds
                    ''')
                else:
                    A(f'buffer_load_dwordx4 {v((V_W1D if var else V_W1U)+i)}, {s(SRD_W1,4)}, {s(S_BG)} offen offset:{i*1024} lds')
                if i == 3: self.w1m[b] = A.nvm
            ops.append(f)
        return ops
    def w1_tr(self, b, slot):
        A = self.A; ops = []
        for t in range(4):
            for hh in range(2):
                def f(t=t, hh=hh):
                    A.wait(vm=self.w1m[b])
                    A(f'ds_read_b64_tr_b16 {a(16*b+4*t+2*hh,2)}, {v(V_W1R+t)} offset:{slot*4096+hh*2048}')
                    self.w1l[b] = A.nlg
                ops.append(f)
        return ops
    def w1_cs(self, b):
        A = self.A; ops = []
        for t in range(4):
            def f(t=t):
                A.wait(lg=self.w1l[b])
                c = v(V_CS + 4 * t, 4)
                A(f'v_mfma_f32_16x16x32_bf16 {c}, {v(V_ONES,4)}, {a(16*b+4*t,4)}, {c if self.csn[t] else "0"}')
                self.csn[t] += 1
            ops.append(f)
        return ops
    def w1_pipeline(self):
        order = self.w1order; NS = 5
        seq = []
        for k in range(NS): seq.append(('dma', k))
        for k in range(16):
            seq.append(('tr', k))
            if k >= 1:
                seq.append(('cs', k - 1))
                if k - 1 + NS < 16: seq.append(('dma', k - 1 + NS))
        seq.append(('cs', 15))
        out = []
        for kind, k in seq:
            b = order[k]
            if kind == 'dma': ops = self.w1_dma(b, k % NS)
            elif kind == 'tr': ops = self.w1_tr(b, k % NS)
            else: ops = self.w1_cs(b)
            out.append((kind, k, ops))
        return out

    def w2_setup(self):
        return L(f"""
        v_lshlrev_b32 {v(V_W2A)}, 1, {v(V_G)}
        v_xor_b32 {v(V_W2A)}, {v(V_W2A)}, {v(V_LANE)}
        v_and_b32 {v(V_W2A)}, 7, {v(V_W2A)}
        v_lshrrev_b32 {v(V_W2A+1)}, 3, {v(V_LANE)}
        v_lshlrev_b32 {v(V_W2A+1)}, 10, {v(V_W2A+1)}
        v_lshl_add_u32 {v(V_W2A)}, {v(V_W2A)}, 4, {v(V_W2A+1)}
        s_mul_i32 {s(S_W2S)}, {s(S_W)}, {7*8192} @@ s_add_u32 {s(S_W2S)}, {s(S_W2S)}, 8192 @@ s_and_b32 {s(S_W2S)}, {s(S_W2S)}, {hex(0xffffc000)}
        s_lshl_b32 {s(S_BG)}, {s(S_Q)}, 7 @@ s_add_u32 {s(S_W2S)}, {s(S_W2S)}, {s(S_BG)}
        v_add_u32 {v(V_W2A+1)}, {8192-1024}, {v(V_W2A)}
        """)
    def w2_setup_r(self):
        return L(f"""
        s_and_b32 {s(S_TCH)}, {s(S_W)}, 2 @@ s_lshl_b32 {s(S_TCH)}, {s(S_TCH)}, 5 @@ v_xor_b32 {v(V_W2R+3)}, {s(S_TCH)}, {v(V_W1R)}
        v_xor_b32 {v(V_W2R)}, 96, {v(V_W2R+3)}
        v_xor_b32 {v(V_W2R+1)}, 64, {v(V_W2R+3)}
        v_xor_b32 {v(V_W2R+2)}, 32, {v(V_W2R+3)}
        """)
    def w2_dma(self, b, slot):
        A = self.A; h, ks = self.items[b]; ops = []
        def base(x, c):
            if ks == 6:
                A(f's_lshl1_add_u32 {s(S_BG)}, {s(S_ODD)}, {x}')
                A(f's_xor_b32 {s(S_BG)}, {s(S_BG)}, {s(S_Q)}')
            elif x: A(f's_xor_b32 {s(S_BG)}, {s(S_Q)}, {x}')
            A(f's_mul_i32 {s(S_BG)}, {s(S_BG if x or ks == 6 else S_Q)}, {224*1024}')
            A(f's_add_u32 {s(S_BG)}, {s(S_BG)}, {s(S_W2S)}')
            if ks == 6:
                A(f's_lshl_b32 {s(S_RR+3)}, {s(S_ODD)}, 16')
                A(f's_sub_u32 {s(S_BG)}, {s(S_BG)}, {s(S_RR+3)}')
            if c: A(f's_add_u32 {s(S_BG)}, {s(S_BG)}, {c}')
            if h == 0: A(f's_xor_b32 {s(S_BG)}, {s(S_BG)}, 512')
        for i in range(4):
            def f(i=i):
                if i == 0:
                    base(*((ks, 0) if ks < 4 else (2 * (ks - 4), 32768) if ks < 6 else (0, 49152)))
                    A(f's_add_u32 m0, {s(S_SB)}, {slot*4096}')
                if i == 2:
                    if ks < 4: A(f's_add_u32 {s(S_BG)}, {s(S_BG)}, {16384 - 2048}')
                    else: base(*((2 * (ks - 4) + 1, 32768 - 2048) if ks < 6 else (1, 49152 - 2048)))
                A(f'buffer_load_dwordx4 {v(V_W2A+(i&1))}, {s(SRD_W2,4)}, {s(S_BG)} offen offset:{i*1024} lds')
                if i == 3: self.w2m[b] = A.nvm
            ops.append(f)
        return ops
    def w2_tr(self, b, slot):
        A = self.A; ops = []
        for t in range(4):
            for hh in range(2):
                def f(t=t, hh=hh):
                    assert self.blk > b, 'w2 fragment would overwrite live w1'
                    A.wait(vm=self.w2m[b])
                    A(f'ds_read_b64_tr_b16 {a(16*b+4*t+2*hh,2)}, {v(V_W2R+t)} offset:{slot*4096+hh*2048}')
                    self.trl[16 + b] = A.nlg
                ops.append(f)
        return ops
    def smalltouch(self, T):
        self.A(f's_mul_i32 {s(T)}, {s(S_Q)}, 448\ns_lshl_b32 {s(T+1)}, {s(S_W)}, 8')
        self.touch(V_TD, SRD_B1, T, 5); self.touch(V_TD, SRD_B2, T + 1, 2)
        self.touch(V_TD if self.opt.get('tlr') else 191, SRD_WS, S_FLA, 1, ' sc1')
        if self.opt.get('tlr'):
            self.A(f'''
            v_lshlrev_b32 v191, 16, {v(V_LANE)}
            v_xor_b32 v191, {s(S_RR)}, v191
            s_mov_b64 exec, 0xff
            buffer_load_dword v191, v191, {s(SRD_WS,4)}, 0 offen offset:{self.opt['tlr']} sc1
            s_mov_b64 exec, -1
            ''')
        if self.opt.get('tll'):
            self.A(f's_add_u32 {s(T)}, {s(S_RR)}, 8192')
            self.touch(191, SRD_WS, T, 24, ' sc1')
    def ptouch(self, js=(0, 1, 2), T=S_RR + 2):
        A = self.A
        n = self.opt.get('npl', 3); tf = ' ' + self.opt.get('tf', 'sc1')
        A(f's_lshl3_add_u32 {s(T)}, {s(S_U)}, {s(S_Q)}')
        A(f"""
        s_lshl_b32 {s(T)}, {s(T)}, 5
        s_add_u32 {s(T)}, {s(T)}, {s(S_W)}
        s_lshl2_add_u32 {s(T)}, {s(S_Q) if self.opt.get('lay') else 0}, {s(T)}
        s_lshl_b32 {s(T)}, {s(T)}, 11
        s_add_u32 {s(T)}, {s(T)}, {WS_P + 8192}
        """)
        if 0 in js:
            A(f's_sub_u32 {s(T+1)}, {s(T)}, {8192 - 128}')
            self.touch(191, SRD_WS, T + 1, 11 if self.opt.get('zc') else 7, ' sc1')
        if 3 in js:
            A(f"""
            s_sub_u32 {s(T+1)}, {s(T)}, 8192
            v_mul_u32_u24 v191, {65536+128}, {v(V_LANE)}
            v_xor_b32 v191, {s(T+1)}, v191
            s_mov_b64 exec, 0xfe
            buffer_load_dword v191, v191, {s(SRD_WS,4)}, 0 offen sc1
            s_mov_b64 exec, -1
            """)
        if 4 in js:
            A(f's_add_u32 {s(T+1)}, {s(T)}, 16384')
            self.touch(191, SRD_WS, T + 1, 16, tf)
        if 1 not in js and 2 not in js: return
        A(f"""
        v_mul_u32_u24 {v(V_W2A+2)}, {8192-2048}, {v(V_G)}
        v_add_u32 {v(V_W2A+2)}, {v(V_W2A+2)}, {v(V_L128)}
        """)
        if 1 in js: self.touch(191, SRD_WS, T, min(64, 16 * n), tf, va=V_W2A + 2)
        if n > 4 and 2 in js:
            A(f's_add_u32 {s(T)}, {s(T)}, 32768')
            self.touch(191, SRD_WS, T, 16 * (n - 4), tf, va=V_W2A + 2)

    def fxst(self, T, V):
        A = self.A; LS = A.newlabel('nfx')
        if self.opt.get('fxp') >= 3:
            return A(f'''
        s_getreg_b32 {s(T)}, hwreg(HW_REG_XCC_ID)
        s_and_b32 {s(T)}, {s(T)}, 15
        v_add_u32 {v(V)}, {s(T)}, {v(V_TAG)}
        v_mov_b32 {v(V+1)}, {v(V_TAG+1)}
        s_lshl2_add_u32 {s(T)}, {s(S_U)}, {s(S_W)}
        s_lshl3_add_u32 {s(T)}, {s(T)}, {s(S_Q)}
        s_lshl_b32 {s(T)}, {s(T)}, 7
        s_add_u32 {s(T)}, {s(T)}, {FX3}
        s_mov_b64 exec, 1
        buffer_store_dwordx2 {v(V,2)}, off, {s(SRD_WS,4)}, {s(T)} sc1
        s_mov_b64 exec, -1
        ''')
        A(f's_cmp_lg_u32 {s(S_W)}, {self.opt.get("fxw", 0)}\ns_cbranch_scc1 {LS}')
        A.snap()
        A(f'''
        s_getreg_b32 {s(T)}, hwreg(HW_REG_XCC_ID)
        s_and_b32 {s(T)}, {s(T)}, 15
        v_add_u32 {v(V)}, {s(T)}, {v(V_TAG)}
        v_mov_b32 {v(V+1)}, {v(V_TAG+1)}
        s_lshl3_add_u32 {s(T)}, {s(S_U)}, {s(S_Q)}
        s_lshl_b32 {s(T)}, {s(T)}, 7
        s_add_u32 {s(T)}, {s(T)}, {FX2}
        s_mov_b64 exec, 1
        buffer_store_dwordx2 {v(V,2)}, off, {s(SRD_WS,4)}, {s(T)} sc1
        s_mov_b64 exec, -1
        ''')
        A.label(LS); A.unsnap()
    def align(self):
        if 'pg' not in self.opt: return ''
        return '.p2align 12\n' + (f".fill {self.opt['pg']//4}, 4, 0xbf810000\n" if self.opt['pg'] else '')
    def site(self, X):
        if 'pad' + X in self.opt: self.A.raw(f';SITE {X}')
    def cpf(self):
        self.A(f'''
        s_getpc_b64 {s(S_M,2)}
        L_pc0:
        s_lshr_b32 {s(S_FAST)}, s2, 3
        s_lshl2_add_u32 {s(S_FAST)}, {s(S_FAST)}, {s(S_W)}
        s_lshl_b32 {s(S_FAST)}, {s(S_FAST)}, 8
        s_min_u32 {s(S_FAST)}, {s(S_FAST)}, L_end-L_pc0-192
        ''')
        for k in range(4): self.A(f's_load_dword {s(S_CNT)}, {s(S_M,2)}, {s(S_FAST)} offset:{64*k}')

    def p1(self):
        A = self.A; o = self.opt
        X, R1, SUM, SQ, FS, ACC = 16, 160, 168, 172, 192, 224
        V_SGN, V_FAC, V_ZO, V_EW, V_XD, V_XR, V_ER = 176, 177, 178, 179, 184, 186, 191
        A(f'''
        s_cmp_ge_u32 s2, 256
        s_cbranch_scc1 L_end
        s_load_dwordx2 {s(SRD_X,2)}, s[0:1], 0
        s_load_dwordx2 {s(SRD_WS,2)}, s[0:1], 96
        s_load_dwordx2 {s(SRD_W1,2)}, s[0:1], 48
        s_load_dwordx2 {s(SRD_W2,2)}, s[0:1], 64
        s_load_dwordx2 {s(SRD_B1,2)}, s[0:1], 56
        s_load_dwordx2 {s(SRD_B2,2)}, s[0:1], 72
        s_load_dwordx2 {s(SRD_OUT,2)}, s[0:1], 80
        ''')
        self.stamp('start')
        if self.opt.get('cpf', 0) == 3:
            A(f'''
            s_getpc_b64 {s(S_M,2)}
            L_pc0:
            s_lshr_b32 {s(S_T0)}, s2, 3
            s_lshl_b32 {s(S_T0)}, {s(S_T0)}, 10
            v_lshl_add_u32 v7, v0, 2, {s(S_T0)}
            v_min_u32 v7, L_end-L_pc0, v7
            global_load_dword {v(V_TD)}, v7, {s(S_M,2)}
            ''')
        A(f'''
        v_lshrrev_b32 v6, 6, v0
        v_and_b32 {v(V_LANE)}, 63, v0
        v_readfirstlane_b32 {s(S_W)}, v6
        ''')
        if self.opt.get('cpf', 0) == 1: self.cpf()
        A(f'''
        v_and_b32 {v(V_L15)}, 15, {v(V_LANE)}
        v_lshrrev_b32 {v(V_G)}, 4, {v(V_LANE)}
        v_lshlrev_b32 {v(V_L16)}, 4, {v(V_LANE)}
        v_lshlrev_b32 {v(V_L128)}, 7, {v(V_LANE)}
        s_lshr_b32 {s(S_N)}, s2, 3
        ''')
        if o.get('g2') == 2: A(f'''
        s_and_b32 {s(S_T1)}, s2, 1
        s_and_b32 {s(S_Q)}, {s(S_N)}, 3
        s_lshl2_add_u32 {s(S_Q)}, {s(S_T1)}, {s(S_Q)}
        s_and_b32 {s(S_T1)}, s2, 6
        s_lshr_b32 {s(S_C)}, {s(S_N)}, 3
        s_lshl1_add_u32 {s(S_U)}, {s(S_T1)}, {s(S_C)}
        s_sub_u32 {s(S_T1)}, 32, {s(S_U)}
        s_cmp_eq_u32 {s(S_U)}, 0
        s_cselect_b32 {s(S_T1)}, 16, {s(S_T1)}
        s_bitcmp1_b32 {s(S_N)}, 2
        s_cselect_b32 {s(S_U)}, {s(S_T1)}, {s(S_U)}
        ''')
        elif o.get('g2'): A(f'''
        s_and_b32 {s(S_T1)}, s2, 1
        s_and_b32 {s(S_Q)}, {s(S_N)}, 3
        s_lshl2_add_u32 {s(S_Q)}, {s(S_T1)}, {s(S_Q)}
        s_and_b32 {s(S_T1)}, s2, 6
        s_lshr_b32 {s(S_U)}, {s(S_N)}, 2
        s_and_b32 {s(S_C)}, {s(S_U)}, 3
        s_lshl2_add_u32 {s(S_U)}, {s(S_T1)}, {s(S_U)}
        ''')
        else: A(f'''
        s_and_b32 {s(S_T1)}, s2, 7
        s_and_b32 {s(S_Q)}, {s(S_N)}, 7
        s_lshr_b32 {s(S_C)}, {s(S_N)}, 3
        s_lshl2_add_u32 {s(S_U)}, {s(S_T1)}, {s(S_C)}
        ''')
        A(f'''
        s_lshl_b32 {s(S_HB0)}, {s(S_W)}, 14
        s_and_b32 {s(S_ODD)}, {s(S_W)}, 1
        s_lshl2_add_u32 {s(S_TW)}, {s(S_N)}, {s(S_W)}
        s_lshl_b32 {s(S_T0)}, {s(S_Q)}, 7
        s_and_b32 {s(S_T1)}, {s(S_T0)}, 0x200
        ''')
        for i in range(4):
            A(f's_add_u32 {s(S_T2)}, {s(S_T0)}, {128*i}\ns_and_b32 {s(S_T2)}, {s(S_T2)}, 0x180\ns_or_b32 {s(S_XO+i)}, {s(S_T2)}, {s(S_T1)}')
        self.srd(SRD_X, 2097152); self.srd(SRD_WS, WS_SIZE); self.srd(SRD_W2, 1835008); self.srd(SRD_W1, 1835008)
        self.srd(SRD_B1, 3584); self.srd(SRD_B2, 1024); self.srd(SRD_OUT, 2097152)
        A(f'''
        s_and_b32 {s(S_T0)}, {s(S_W)}, 2
        s_lshl4_add_u32 {s(S_T0)}, {s(S_T0)}, {s(S_ODD)}
        s_lshl_b32 {s(S_T0)}, {s(S_T0)}, 5
        s_add_u32 {s(S_T0)}, {s(S_T0)}, {s(S_U)}
        s_lshl_b32 {s(S_T0)}, {s(S_T0)}, 10
        v_lshrrev_b32 v12, 3, {v(V_LANE)}
        v_and_b32 v13, 7, {v(V_LANE)}
        v_xor_b32 v13, v13, {v(V_G)}
        v_lshlrev_b32 v13, 4, v13
        v_lshl_add_u32 v6, v12, 16, v13
        v_add_u32 {v(V_XD)}, {s(S_T0)}, v6
        v_xor_b32 v6, 64, {v(V_XD)}
        v_add_u32 {v(V_XD+1)}, {8*65536 - 1024}, v6
        ''')
        A(f'''
        s_lshl_b32 {s(S_T0)}, {s(S_Q)}, 5
        v_lshrrev_b32 v6, 2, {v(V_L15)}
        v_and_b32 v7, 3, {v(V_L15)}
        v_lshl_add_u32 v6, v6, 3, v7
        v_add_u32 v6, {s(S_T0)}, v6
        v_add_u32 v7, 4, v6
        v_cmp_eq_u32 vcc, 0, v6
        v_mov_b32 v8, 0x100
        v_cndmask_b32 v6, v6, v8, vcc
        v_cvt_f32_u32 v6, v6
        v_cvt_f32_u32 v7, v7
        v_mul_f32 v6, {f2u(1/512)}, v6
        v_mul_f32 v7, {f2u(1/512)}, v7
        s_add_u32 {s(S_T0)}, {s(S_W)}, {s(S_Q)}
        s_and_b32 {s(S_T0)}, {s(S_T0)}, 3
        s_lshl_b32 {s(S_T0)}, {s(S_T0)}, 6
        v_lshl_add_u32 v8, {v(V_G)}, 3, {s(S_T0)}
        v_cvt_f32_u32 v8, v8
        v_add_f32 v9, {f2u(32.0)}, v8
        s_mul_i32 {s(S_T0)}, {s(S_W)}, {SPW}
        s_add_u32 {s(S_T0)}, {s(S_T0)}, {L_S}
        v_add_u32 v10, {s(S_T0)}, {v(V_L16)}
        ''')
        def tab(kk, et):
            b = X + 32 * et
            A(f'v_mul_f32 {v(b)}, {v(6+et)}, {v(8+kk)}')
            A(f'v_add_f32 {v(b+1)}, {v(b)}, {v(6+et)}')
            if kk == 0: A(f'v_cos_f32 {v(b+2)}, {v(6+et)}')
            for j in range(2):
                A(f'v_cos_f32 {v(b+8+j)}, {v(b+j)}')
                A(f'v_sin_f32 {v(b+16+j)}, {v(b+j)}')
            if kk == 0: A(f'v_add_f32 {v(b+2)}, {v(b+2)}, {v(b+2)}')
            for j in range(2, 8):
                A(f'v_fma_f32 {v(b+8+j)}, {v(b+2)}, {v(b+7+j)}, -{v(b+6+j)}')
                A(f'v_fma_f32 {v(b+16+j)}, {v(b+2)}, {v(b+15+j)}, -{v(b+14+j)}')
            for j in range(4):
                A(f'v_cvt_pk_bf16_f32 {v(b+24+j)}, {v(b+8+2*j)}, {v(b+9+2*j)}')
            for j in range(4):
                A(f'v_cvt_pk_bf16_f32 {v(b+28+j)}, {v(b+16+2*j)}, {v(b+17+2*j)}')
            A(f'ds_write_b128 v10, {v(b+24,4)} offset:{(kk*4+et*2)*1024}')
            A(f'ds_write_b128 v10, {v(b+28,4)} offset:{(kk*4+et*2+1)*1024}')
        npre = o.get('tabpre', 1)
        tabs = [(0, 0), (0, 1), (1, 0), (1, 1)]
        for t in tabs[:npre]: tab(*t)
        A(f's_mov_b32 {s(S_T2)}, {FE}')
        self.site('K')
        A('s_waitcnt lgkmcnt(0)')
        self.stamp('kernarg')
        A.on = bool(o.get('s1', 1))
        xm = []
        def xdma(i):
            A(f's_add_u32 m0, {s(S_HB0)}, {i*2048}')
            so = S_XO + (i >> 1)
            if i & 1:
                A(f's_xor_b32 {s(S_BG)}, {s(so)}, 0x200'); so = S_BG
            A(f'buffer_load_dwordx4 {v(V_XD)}, {s(SRD_X,4)}, {s(so)} offen lds')
            A(f'buffer_load_dwordx4 {v(V_XD+1)}, {s(SRD_X,4)}, {s(so)} offen offset:1024 lds')
            xm.append(A.nvm)
        NX0 = o.get('nx0', 5)
        if o.get('tl1') == 1: A(f'buffer_load_dword {v(V_BT)}, off, {s(SRD_W1,4)}, 0')
        xdma(0)
        if o.get('tl1') == 2: A(f's_buffer_load_dword {s(S_AM0)}, {s(SRD_W1,4)}, 0\ns_buffer_load_dword {s(S_AM0)}, {s(SRD_W1,4)}, 0xffffc\ns_buffer_load_dword {s(S_AM0)}, {s(SRD_W2,4)}, 0\ns_buffer_load_dword {s(S_AM0)}, {s(SRD_W2,4)}, 0xffffc')
        A(f'buffer_load_dwordx2 {v(V_TAG,2)}, off, {s(SRD_WS,4)}, {s(S_T2)}{self.fef}')
        for i in range(1, NX0):
            if o.get('t1e') == i: self.g2touch(1)
            if o.get('t1a') == i: self.g2touch(1, 'a')
            xdma(i)
        if o.get('t1e') == NX0: self.g2touch(1)
        if o.get('t1a') == NX0: self.g2touch(1, 'a')
        T0 = o.get('t0', 0)
        if T0: self.wtouch(V_TD, SRD_W1, 0, T0)
        A.on = False
        if o.get('cpf') == 2: self.cpf()
        if o.get('txr', 0) or o.get('tsc', 0): A(f'''
        s_and_b32 {s(S_T0)}, {s(S_TW)}, 31
        s_lshl_b32 {s(S_T1)}, {s(S_T0)}, 6
        s_sub_u32 {s(S_T1)}, {s(S_T1)}, {s(S_U)}
        s_add_u32 {s(S_T1)}, {s(S_T1)}, 64
        s_and_b32 {s(S_T1)}, {s(S_T1)}, 2047
        s_lshl_b32 {s(S_T1)}, {s(S_T1)}, 10
        ''')
        if o.get('txr', 0):
            for k in range(8): A(f's_buffer_load_dword {s(S_AM0)}, {s(SRD_X,4)}, {s(S_T1)} offset:{128*k}')
        if o.get('tsc', 0): A(f'''
        s_min_u32 {s(S_T1)}, {s(S_T0)}, 27
        s_lshl_b32 {s(S_T1)}, {s(S_T1)}, 7
        s_buffer_load_dword {s(S_AM0)}, {s(SRD_B1,4)}, {s(S_T1)}
        s_and_b32 {s(S_T1)}, {s(S_T0)}, 7
        s_lshl_b32 {s(S_T1)}, {s(S_T1)}, 7
        s_buffer_load_dword {s(S_AM0)}, {s(SRD_B2,4)}, {s(S_T1)}
        ''')
        A.on = bool(o.get('s1', 1))
        if o.get('tlb'):
            LT = [A.newlabel('tl') for _ in range(4)]
            sh = o.get('tlb')
            A(f's_lshl_b32 {s(S_T0)}, {s(S_N)}, 10')
            for k, (srd, st_, base) in enumerate(((SRD_W1, 28672, 0), (SRD_W2, 28672, 0), (SRD_WS, 32768, WS_Z), (SRD_WS, 114688, WS_R))):
                A(f's_cmp_lg_u32 {s(S_W)}, {k}\ns_cbranch_scc1 {LT[k]}')
                A.snap()
                A(f'v_mul_u32_u24 {v(V_BT)}, {st_}, {v(V_LANE)}')
                if base: A(f's_add_u32 {s(S_T0)}, {s(S_T0)}, {base}')
                A(f'buffer_load_dword {v(V_TD)}, {v(V_BT)}, {s(srd,4)}, {s(S_T0)} offen')
                A.label(LT[k]); A.unsnap()
        A(f'''
        s_mov_b32 {s(S_HB)}, {s(S_HB0)}
        s_mul_i32 {s(S_SB)}, {s(S_W)}, {SPW}
        s_add_u32 {s(S_SB)}, {s(S_SB)}, {L_S}
        s_add_u32 {s(S_TB1)}, {s(S_U)}, 1024
        s_cmp_eq_u32 {s(S_U)}, 0
        s_cselect_b32 {s(S_TB1)}, 32, {s(S_TB1)}
        ''')
        self.w1m = {}; self.w1l = {}; self.csn = [0] * 4; self.w2m = {}
        self.w1order = list(range(16))
        if o.get('ord'): self.w1order = [0, 1, 8, 9] + list(range(2, 8)) + list(range(10, 16))
        self.pipe = self.w1_pipeline()
        for k, t in enumerate(tabs[npre:]):
            tab(*t)
            if o.get('t1e') == 10 + k: self.g2touch(1)
            if o.get('t1a') == 10 + k: self.g2touch(1, 'a')
        b = TB
        t2 = L(f'''
        s_mov_b32 {s(S_T2)}, 0xffff
        s_cmp_ge_u32 {s(S_W)}, 2 @@ s_cselect_b32 {s(S_T0)}, {s(S_TB1)}, {s(S_U)} @@ s_cselect_b32 {s(S_T1)}, 0, {f2u(0.25)} @@ s_cselect_b32 {s(S_T2)}, 0xffff0000, {s(S_T2)}
        s_cmp_eq_u32 {s(S_U)}, 0 @@ s_cselect_b32 {s(S_T1)}, {s(S_T1)}, {f2u(0.25)} @@ s_cselect_b32 {s(S_T2)}, {s(S_T2)}, -1
        v_lshl_add_u32 v11, {v(V_L15)}, 6, {s(S_T0)}
        v_cmp_eq_u32 vcc, 0, v11
        v_cvt_f32_u32 v11, v11
        v_mul_f32 v11, {f2u(1/2048)}, v11
        v_lshlrev_b32 v6, 15, {v(V_G)}
        v_and_b32 v6, 0x8000, v6
        v_cndmask_b32 v7, 0, v6, vcc
        s_lshl1_add_u32 {s(S_T0)}, {s(S_ODD)}, {s(S_Q)}
        s_lshl_b32 {s(S_T0)}, {s(S_T0)}, 3
        v_add_u32 v8, {s(S_T0)}, {v(V_G)}
        ''')
        for j in range(4):
            t2 += [f'v_add_u32 v6, {4*j}, v8', 'v_and_b32 v6, 31, v6', 'v_cvt_f32_u32 v6, v6',
                   f'v_mul_f32 {v(b+2*j)}, v6, v11', f'v_add_f32 {v(b+2*j+1)}, {s(S_T1)}, {v(b+2*j)}']
        for j in range(8):
            t2 += [f'v_cos_f32 {v(b+8+j)}, {v(b+j)}', f'v_sin_f32 {v(b+16+j)}, {v(b+j)}']
        for j in range(4):
            d = b + 24 + 8 * (j >> 1) + 2 * (j & 1)
            t2 += [f'v_cvt_pk_bf16_f32 {v(d)}, {v(b+8+2*j)}, {v(b+9+2*j)}',
                   f'v_cvt_pk_bf16_f32 {v(d+5)}, {v(b+16+2*j)}, {v(b+17+2*j)}',
                   f'v_and_b32 {v(d)}, {s(S_T2)}, {v(d)}', f'v_and_b32 {v(d+5)}, {s(S_T2)}, {v(d+5)}',
                   f'v_xor_b32 {v(d+4)}, v7, {v(d)}', f'v_xor_b32 {v(d+1)}, 0x80008000, {v(d+5)}']
        for k in range(2):
            for var in range(2):
                t2.append(f'ds_write_b128 v10, {v(b+24+8*k+4*var,4)} offset:{8192+k*2048+var*1024}')
        self.flush(t2)
        XRP = o.get('xrp', 0)
        VM = 16 if XRP >= 2 else 148
        vmset = (f'''
        v_sub_u32 v7, 15, v12
        v_lshl_add_u32 {v(VM)}, v7, 16, v13
        v_xor_b32 {v(VM+1)}, {8*65536+64}, {v(VM)}
        s_sub_u32 {s(S_RR)}, 1088, {s(S_U)}
        s_lshl_b32 {s(S_RR)}, {s(S_RR)}, 10
        s_sub_u32 {s(S_RR+1)}, 1088, {s(S_TB1)}
        s_lshl_b32 {s(S_RR+1)}, {s(S_RR+1)}, 10
        s_lshl_b32 {s(S_RR+2)}, {s(S_W)}, 7
        s_sub_u32 {s(S_RR+3)}, 896, {s(S_RR+2)}
        v_add_u32 v6, {s(S_RR)}, {v(VM)}
        v_lshrrev_b32 v7, 1, v6
        v_and_b32 v7, {1<<20}, v7
        v_sub_u32 {v(VM+2)}, v6, v7
        v_and_b32 {v(VM+3)}, {(1<<21)-1}, v6
        ''')
        if XRP < 2: A(vmset)
        A(f'''
        v_mov_b32 v6, {s(S_U)}
        v_mov_b32 v7, {s(S_TB1)}
        v_and_b32 v8, 1, {v(V_G)}
        v_cmp_eq_u32 vcc, 1, v8
        v_add_u32 v10, {L_S}, {v(V_L16)}
        v_add_u32 v11, {L_S+2*SPW}, {v(V_L16)}
        v_cndmask_b32 v6, v6, v7, vcc
        v_lshl_add_u32 {v(V_TT)}, {v(V_L15)}, 6, v6
        v_lshrrev_b32 v6, 1, {v(V_L15)}
        v_xor_b32 v6, v6, {v(V_G)}
        v_lshlrev_b32 v6, 4, v6
        v_lshl_add_u32 v15, {v(V_L15)}, 7, v6
        v_add_u32 {v(V_XR)}, {s(S_HB)}, v15
        v_xor_b32 {v(V_XR+1)}, 64, {v(V_XR)}
        ''')
        for i in range(4): A(f'v_mov_b32 {v(V_ONES+i)}, 0x3f803f80')
        xr = []
        for m in (1, 0):
            for side in range(2):
                for hh in (1, 0):
                    def f(m=m, side=side, hh=hh):
                        A(f's_add_u32 m0, {s(S_SB)}, {12288+m*4096+side*2048+hh*1024}')
                        if hh == 0 and m == 0: A(f'buffer_load_dwordx4 {v(VM+2+side)}, {s(SRD_X,4)}, {s(S_RR+2+side)} offen lds')
                        else:
                            if hh == 1: A(f's_add_u32 {s(S_BG)}, {s(S_RR+m)}, {s(S_RR+2+side)}')
                            A(f'buffer_load_dwordx4 {v(VM+hh)}, {s(SRD_X,4)}, {s(S_BG)} offen lds')
                        self.xrm = A.nvm
                    xr.append(f)
        A.wait(lg=A.nlg)
        A('s_barrier')
        tl = {}
        def tabrd(f):
            A(f'ds_read_b128 {a(4*f,4)}, {v(10+(f>>4))} offset:{((f>>3)&1)*SPW+(f&7)*1024}')
            tl[f] = A.nlg
        for f in range(8): tabrd(f)
        self.stamp('tables')
        NX1 = min(8, NX0 + o.get('nx1', 3))
        for i in range(NX0, NX1): xdma(i)
        b = FS
        fild = [(lambda f=f: tabrd(f)) for f in range(8, 32)]
        fild += L(f'''
        s_lshl_b32 {s(S_W2S)}, {s(S_ODD)}, 10 @@ s_add_u32 {s(S_W2S)}, {s(S_W2S)}, {L_S+8192} @@ v_add_u32 v10, {s(S_W2S)}, {v(V_L16)}
        v_xor_b32 v11, 1024, v10
        ''')
        fill = []
        for f in range(16): fild.append(f'ds_read_b128 {v(TB+4*f,4)}, {v(10+(f&1))} offset:{(2*((f>>1)&1)+(f>>3))*SPW+((f>>2)&1)*2048}')
        fill += L(f'''
        s_lshl_b32 {s(S_T0)}, {s(S_W)}, 3
        v_lshrrev_b32 v6, 1, {v(V_L15)}
        v_add_u32 v6, {s(S_T0)}, v6
        v_and_b32 v7, 1, {v(V_L15)}
        v_cvt_f32_u32 v9, v7
        v_mul_f32 v9, {f2u(-0.25)}, v9
        v_lshl_add_u32 v8, v6, 1, v7
        v_cmp_eq_u32 vcc, 1, v8
        v_lshlrev_b32 v8, 3, {v(V_G)}
        v_cndmask_b32 v6, v6, 32, vcc
        v_cndmask_b32 v9, v9, 0, vcc
        v_cvt_f32_u32 v6, v6
        v_mul_f32 v6, {f2u(1/64)}, v6
        v_cvt_f32_u32 v8, v8
        v_fma_f32 {v(b)}, v6, v8, v9
        ''')
        for blk in range(4):
            for j in range(4):
                c = 2 * j + (blk & 1) + 32 * (blk >> 1)
                if c: fill.append(f'v_fmamk_f32 {v(b+4*blk+j)}, v6, {f2u(float(c))}, {v(b)}')
        for j in range(16): fill.append(f'v_cos_f32 {v(b+16+j)}, {v(b+j)}')
        for j in range(8): fill.append(f'v_cvt_pk_bf16_f32 {v(R1+j)}, {v(b+16+2*j)}, {v(b+17+2*j)}')
        rdy = set()
        def chk(): assert cnt[0] > 14; print('vmset at', cnt[0])
        if XRP == 3 and o.get('vmf', 1): fill += [chk] + L(vmset) + [lambda: rdy.add(0)]
        if o.get('w1f'): fill += self.w1_setup() + [lambda: rdy.add(1)]
        fill += L(f'''
        v_and_b32 v6, 1, {v(V_LANE)}
        v_lshlrev_b32 v6, 31, v6
        v_or_b32 {v(V_SGN)}, 1.0, v6
        s_cmp_ge_u32 {s(S_Q)}, 4 @@ s_cselect_b64 vcc, -1, 0
        v_mov_b32 {v(V_FAC)}, 1.0
        v_cndmask_b32 {v(V_FAC)}, {v(V_FAC)}, {v(V_SGN)}, vcc
        s_lshl_b32 {s(S_T0)}, {s(S_W)}, 19
        s_lshl_b32 {s(S_T1)}, {s(S_Q)}, 13
        s_add_u32 {s(S_T0)}, {s(S_T0)}, {s(S_T1)}
        s_lshl_b32 {s(S_T1)}, {s(S_U)}, 8
        s_add_u32 {s(S_T0)}, {s(S_T0)}, {s(S_T1)}
        v_lshlrev_b32 v6, 17, {v(V_G)}
        v_lshl_add_u32 v6, {v(V_L15)}, 4, v6
        v_add_u32 {v(V_ZO)}, {s(S_T0)}, v6
        s_lshr_b32 {s(S_T0)}, {s(S_W)}, 1
        s_lshl_b32 {s(S_T0)}, {s(S_T0)}, 10
        s_lshl3_add_u32 {s(S_T0)}, {s(S_ODD)}, {s(S_T0)}
        s_add_u32 {s(S_T0)}, {s(S_T0)}, {L_EXC}
        v_add_u32 {v(V_EW)}, {s(S_T0)}, {v(V_L16)}
        v_add_u32 {v(V_ER)}, {L_EXC}, {v(V_L16)}
        s_lshr_b32 {s(S_T1)}, {s(S_Q)}, 1
        s_lshl2_add_u32 {s(S_T0)}, {s(S_W)}, {s(S_T1)}
        s_lshl_b32 {s(S_T0)}, {s(S_T0)}, 5
        s_add_u32 {s(S_T0)}, {s(S_T0)}, {s(S_U)}
        s_and_b32 {s(S_T1)}, {s(S_Q)}, 1
        s_lshl1_add_u32 {s(S_T0)}, {s(S_T0)}, {s(S_T1)}
        s_lshl_b32 {s(S_T0)}, {s(S_T0)}, 7
        s_add_u32 {s(S_F1)}, {s(S_T0)}, {F1}
        v_and_b32 v6, 1, {v(V_L15)}
        v_cmp_eq_u32 {s(S_XO,2)}, 1, v6
        v_and_b32 v6, 2, {v(V_L15)}
        v_cmp_eq_u32 {s(S_XO+2,2)}, 2, v6
        v_lshrrev_b32 v6, 2, {v(V_L15)}
        v_cmp_eq_u32 {s(S_M,2)}, v6, {v(V_G)}
        ''')
        g3 = []
        if not o.get('w1f'): fill += self.w1_setup() + [lambda: rdy.add(1)]
        if XRP == 3 and not o.get('vmf', 1): fill += L(vmset) + [lambda: rdy.add(0)]
        if XRP == 3: g3 += [(0, o.get('xrt', 56), f) for f in xr]
        if o.get('wpre'):
            def tbar():
                self.flush(fild); A.wait(lg=A.nlg); A('s_barrier')
            w = [(1, o.get('wpt', 60), f) for f in [tbar] + [f for kind, k, ops in self.pipe if kind == 'dma' for f in ops][:o['wpre']]]
            g3 = w + g3 if o.get('wpf') else g3 + w
        fill += L(f's_mov_b32 {s(S_T1)}, 65536\ns_mov_b32 {s(S_T0)}, {f2u(1/512)}\ns_mov_b32 {s(S_T2)}, {WS_HN}\ns_mov_b32 {s(S_T3)}, {WS_HN+65536}')
        xl = []
        def xrd(i):
            while len(xm) <= i: g1.pop(0)()
            A.wait(vm=xm[i])
            for kk in range(2):
                A(f'ds_read_b128 {v(X+8*i+4*kk,4)}, {v(V_XR+kk)} offset:{i*2048}')
            xl.append(A.nlg)
        self.site('A')
        xrd(0)
        self.stamp('x first')
        xrd(1)
        A(f'''
        v_add_u32 {v(V_TAG)}, 0x9e3779b0, {v(V_TAG)}
        v_add_u32 {v(V_TAG+1)}, 0x7f4a7c15, {v(V_TAG+1)}
        ''')
        if o.get('fxp') in (1, 3): self.fxst(S_T0, V_FXV)
        if not o.get('fxp'): A(f'''
        s_getreg_b32 {s(S_T0)}, hwreg(HW_REG_XCC_ID)
        s_and_b32 {s(S_T0)}, {s(S_T0)}, 15
        v_add_u32 {v(V_FXV)}, {s(S_T0)}, {v(V_TAG)}
        v_mov_b32 {v(V_FXV+1)}, {v(V_TAG+1)}
        s_lshl_b32 {s(S_T0)}, {s(S_U)}, 7
        s_lshl3_add_u32 {s(S_T0)}, {s(S_Q)}, {s(S_T0)}
        s_add_u32 {s(S_T0)}, {s(S_T0)}, {FX}
        s_mov_b64 exec, 1
        buffer_store_dwordx2 {v(V_FXV,2)}, off, {s(SRD_WS,4)}, {s(S_T0)} sc1
        s_mov_b64 exec, -1
        ''')
        def t1():
            if o.get('t1e'): return
            if o.get('t1bar', 1): A('s_barrier')
            if o.get('g2'):
                self.g2touch(1, 'a' if o.get('t1a') == 20 else None)
                if o.get('t2a') == 1: self.g2touch(2, 'a')
                if o.get('tw2', 2) == 1: self.g2touch(2)
                if o.get('ts') == 0: self.smalltouch(S_AM0)
                return
            T1 = o.get('t1', 112)
            if T1 > T0: self.wtouch(V_TD, SRD_W1, T0, min(T1 - T0, 64))
            if T1 - T0 > 64: self.wtouch(V_TD, SRD_W1, T0 + 64, T1 - T0 - 64)
            if o.get('tw2'): self.wtouch(V_TD, SRD_W2, 0, o['tw2'])
        self.w1t = 56
        g1 = [(lambda i=i: xdma(i)) for i in range(NX1, 8)] + (xr if XRP < 2 else [lambda: None] * o.get('t1d', 0)) + [t1]
        for _ in range(min(len(g1), o.get('xr0', 3))): g1.pop(0)()
        XRE = o.get('xre', 2); cnt = [0, 0]
        def fl(n):
            cnt[0] += 1
            if g1 and cnt[0] % XRE == 0: return g1.pop(0)()
            if g3 and g3[0][0] in rdy and cnt[0] >= g3[0][1] and cnt[0] % o.get('xre3', 3) == 0: return g3.pop(0)[2]()
            if not fill and not fild and 2 not in rdy: rdy.add(2); print('gemm1 fill done at', cnt[0])
            k = cnt[1]
            if fild and cnt[0] % 4: self.emit(fild.pop(0)); k += 1
            while fill and k < n:
                n0 = A.wt; self.emit(fill.pop(0)); k += A.wt - n0
            cnt[1] = max(0, k - n)
        for i in range(8):
            ip, hp = i >> 1, i & 1
            if i + 2 < 8: xrd(i + 2)
            if o.get('twd') and i == 5: self.stamp('x last'); A.wait(vm=A.nvm); self.stamp('touch done')
            while 8 * ip + 7 not in tl: self.emit(fild.pop(0))
            A.wait(lg=max(xl[i], tl[8 * ip + 7]))
            for kk in range(2):
                xa = X + 8 * i + 4 * kk
                first = (i == 0 and kk == 0)
                A(f'v_mfma_f32_16x16x32_bf16 {v(SQ,4)}, {v(xa,4)}, {v(xa,4)}, {"0" if first else v(SQ,4)}')
                fl(2.2)
                A(f'v_mfma_f32_16x16x32_bf16 {v(SUM,4)}, {v(xa,4)}, {v(V_ONES,4)}, {"0" if first else v(SUM,4)}')
                fl(2.2)
                for t in range(4):
                    acc = ACC + 16 * hp + 4 * t
                    cin = '0' if (ip == 0 and kk == 0) else v(acc, 4)
                    A(f'v_mfma_f32_16x16x32_bf16 {v(acc,4)}, {v(xa,4)}, {a(32*ip+16*kk+4*t,4)}, {cin}')
                    if not (kk == 1 and t == 3): fl(2.2)
        print('gemm1 fill left', len(fill), len(fild), len(g1), len(g3))
        self.flush(fild); self.flush(fill)
        self.stamp('gemm1 done')
        A(f'''
        v_cndmask_b32 v6, {v(SQ)}, {v(SQ+1)}, {s(S_XO,2)}
        v_cndmask_b32 v7, {v(SQ+2)}, {v(SQ+3)}, {s(S_XO,2)}
        v_cndmask_b32 v8, {v(SUM)}, {v(SUM+1)}, {s(S_XO,2)}
        v_cndmask_b32 v9, {v(SUM+2)}, {v(SUM+3)}, {s(S_XO,2)}
        v_cndmask_b32 v6, v6, v7, {s(S_XO+2,2)}
        v_cndmask_b32 v8, v8, v9, {s(S_XO+2,2)}
        v_mul_f32 v8, {s(S_T0)}, v8
        v_mul_f32 v8, v8, v8
        v_fma_f32 v6, v6, {s(S_T0)}, -v8
        v_max_f32 v6, 0, v6
        v_add_f32 v6, {f2u(1e-5)}, v6
        v_rsq_f32 v6, v6
        v_fma_f32 {v(ACC)}, {v(ACC+16)}, {v(V_SGN)}, {v(ACC)}
        v_cndmask_b32 v6, 0, v6, {s(S_M,2)}
        v_fma_f32 {v(ACC+1)}, {v(ACC+17)}, {v(V_SGN)}, {v(ACC+1)}
        v_fma_f32 {v(ACC+2)}, {v(ACC+18)}, {v(V_SGN)}, {v(ACC+2)}
        v_mfma_f32_16x16x4_f32 v[20:23], v6, {v(V_FAC)}, 0
        ''')
        for i in range(3, 16):
            A(f'v_fma_f32 {v(ACC+i)}, {v(ACC+16+i)}, {v(V_SGN)}, {v(ACC+i)}')
        for t in range(4):
            for r in range(0, 4, 2):
                A(f'v_pk_mul_f32 {v(ACC+4*t+r,2)}, {v(ACC+4*t+r,2)}, {v(20+r,2)}')
            A(f'v_cvt_pk_bf16_f32 {v(24+2*t)}, {v(ACC+4*t)}, {v(ACC+4*t+1)}')
            A(f'v_cvt_pk_bf16_f32 {v(25+2*t)}, {v(ACC+4*t+2)}, {v(ACC+4*t+3)}')
            A(f'ds_write_b64 {v(V_EW)}, {v(24+2*t,2)} offset:{t*2048}')
            if g3: g3.pop(0)[2]()
        while g3: g3.pop(0)[2]()
        if XRP == 2: A(vmset)
        A.wait(vm=None if XRP and not o.get('xrw') else self.xrm, lg=A.nlg)
        A('s_barrier')
        for f in range(8):
            A(f'ds_read_b128 {v(32+4*f,4)}, {v(V_ER)} offset:{f*1024}')
        for t in range(4):
            A(f's_waitcnt lgkmcnt({6-2*t})')
            A(f'v_mfma_f32_16x16x32_bf16 {v(64+4*t,4)}, {v(R1,4)}, {v(32+8*t,4)}, 0')
            A(f'v_mfma_f32_16x16x32_bf16 {v(64+4*t,4)}, {v(R1+4,4)}, {v(36+8*t,4)}, {v(64+4*t,4)}')
        A.dlg = A.nlg
        for k in range(2):
            for t in range(4):
                A(f'v_cvt_pk_bf16_f32 {v(24+4*k+t)}, {v(64+4*t+2*k)}, {v(65+4*t+2*k)}')
            A(f'buffer_store_dwordx4 {v(24+4*k,4)}, {v(V_ZO)}, {s(SRD_WS,4)}, {"0" if k == 0 else s(S_T1)} offen sc1')
            if o.get('zc'): A(f'buffer_store_dwordx4 {v(24+4*k,4)}, {v(V_ZO)}, {s(SRD_WS,4)}, {s(S_T2+k)} offen sc1')
        self.stamp('Z stores')
        self.zst = A.nvm
        self.xr = []
        if o.get('tw2') == 2:
            if o.get('t2bar', 1): A('s_barrier')
            self.g2touch(2)
            if XRP == 2: self.xr = xr
            if o.get('ts', 1) == 1: self.smalltouch(S_T0)
        elif XRP == 2: self.flush(xr)

    def ygrp(self, var, q1, tt): return Y + 32 * var + 16 * q1 + 8 * tt
    def dgrp(self, var, q1, tt):
        return ZF + 32 * q1 + 8 * self.dord.index((var, tt))
    dord = [(1, 1), (0, 1), (1, 0), (0, 0)]
    def window(self):
        A = self.A; o = self.opt
        A.clk = clk = sched.Clock()
        main = []
        AA = A
        A = lambda t: main.extend(L(t))
        XR = ZF
        SD0, SD1, SA1, SM_ = S_W2S, S_AM0, S_TCH, S_FIX
        AD = Y
        A(f'''
        s_sub_u32 {s(S_T0)}, {s(S_W)}, {s(S_Q)}
        s_and_b32 {s(S_T0)}, {s(S_T0)}, 3
        s_lshr_b32 {s(S_T1)}, {s(S_Q)}, 2
        s_lshl1_add_u32 {s(SD0)}, {s(S_T0)}, {s(S_T1)}
        s_lshl_b32 {s(SD0)}, {s(SD0)}, 11
        s_add_u32 {s(S_T0)}, {s(S_W)}, {s(S_Q)}
        s_sub_u32 {s(S_T0)}, 3, {s(S_T0)}
        s_and_b32 {s(S_T0)}, {s(S_T0)}, 3
        s_xor_b32 {s(S_T1)}, {s(S_T1)}, 1
        s_lshl1_add_u32 {s(SD1)}, {s(S_T0)}, {s(S_T1)}
        s_lshl_b32 {s(SD1)}, {s(SD1)}, 11
        s_add_u32 {s(SM_)}, {s(S_SB)}, 12288
        s_mov_b32 {s(SA1)}, 32768
        s_cmp_eq_u32 {s(S_U)}, 0
        s_cselect_b32 {s(S_T2)}, {s(SA1)}, 0
        s_cselect_b32 {s(SA1)}, 16384, {s(SA1)}
        s_cmp_eq_u32 {s(S_ODD)}, 0
        s_cselect_b32 {s(S_T3)}, 0, {s(S_T2)}
        s_cselect_b32 {s(S_T2)}, {s(S_T2)}, 0
        v_xor_b32 v7, 64, v15
        v_xor_b32 v8, 0x70, v15
        v_xor_b32 v9, 0x30, v15
        v_lshrrev_b32 v10, 1, {v(V_L15)}
        v_sub_u32 v11, 8, {v(V_G)}
        v_and_b32 v11, 7, v11
        v_xor_b32 v11, v11, v10
        v_lshlrev_b32 v11, 4, v11
        v_lshl_add_u32 v10, {v(V_L15)}, 7, v11
        v_xor_b32 v11, 64, v10
        v_cmp_eq_u32 vcc, 0, {v(V_L15)}
        v_mov_b32 v12, {s(S_T2)}
        v_mov_b32 v13, {s(S_T3)}
        v_cndmask_b32 v12, 0, v12, vcc
        v_cndmask_b32 v13, 0, v13, vcc
        s_add_u32 {s(S_T0)}, {s(SD1)}, 4096
        s_and_b32 {s(S_T0)}, {s(S_T0)}, 0x3fff
        s_sub_u32 {s(S_T0)}, {s(S_T0)}, {s(SD1)}
        s_mov_b32 {s(S_T1)}, {(-SPW) & 0xffffffff}
        s_cmp_eq_u32 {s(S_W)}, 0
        s_cselect_b32 {s(S_T1)}, {3*SPW}, {s(S_T1)}
        s_cmp_eq_u32 {s(S_ODD)}, 0
        s_cselect_b32 {s(S_T2)}, {s(S_T0)}, {s(S_T1)}
        s_cselect_b32 {s(S_T3)}, {s(S_T1)}, {s(S_T0)}
        v_mov_b32 v6, v10
        s_mov_b64 exec, 0xffff
        v_add_u32 v10, {s(S_T2)}, v10
        v_add_u32 v6, {s(S_T3)}, v6
        s_mov_b64 exec, -1
        ''')
        for rt in range(4):
            pat = [15, 7, 8, 9, 10 if rt < 2 else 6, 11]
            for side in range(2):
                d = S_T0 + side
                if rt & 1: A(f's_add_u32 {s(S_T2)}, {s(SD1 if side else SD0)}, {s(SA1)}')
                A(f's_add_u32 {s(S_T3)}, {s(SM_)}, {(rt&1)*4096+side*2048}')
                A(f's_cmp_eq_u32 {s(S_ODD)}, {rt>>1}')
                A(f's_cselect_b32 {s(d)}, {s(S_T2 if rt & 1 else (SD1 if side else SD0))}, {s(S_T3)}')
            for n in range(6):
                if n >= 2 and not rt & 1: A(f'v_add3_u32 {v(AD+6*rt+n)}, {v(pat[n])}, {s(S_T1)}, {v(12+(rt>>1))}')
                else: A(f'v_add_u32 {v(AD+6*rt+n)}, {s(S_T0 + (n >= 2))}, {v(pat[n])}')
        A = AA
        m2 = []; ex = False
        for x in main:
            if ex or x.startswith('s_cselect'): m2[-1] += '\n' + x
            else: m2.append(x)
            if x.startswith('s_mov_b64 exec'): ex = not x.endswith('-1')
        main = m2
        def xin():
            A.wait(vm=self.xrm); A('s_barrier')
        pre = []
        if o.get('xrp') and not o.get('xrw'): pre = main; main = [xin]
        xl = {}
        for rt in range(4):
            main += [f'ds_read_b128 {v(XR+16*rt+4*n,4)}, {v(AD+6*rt+n)}' for n in range(4)]
            main += [f'ds_read_u16 {v(AD+6*rt+4+q1)}, {v(AD+6*rt+4+q1)}' for q1 in range(2)]
            main.append(lambda rt=rt: (xl.__setitem__(rt, A.nlg), rt and A.wait(lg=xl[rt-1])))
        SR = 6
        (pre if pre else main).extend(L(f'''
        v_mov_b32 v6, 0xbf80
        v_mov_b32 v7, -1.0
        v_cndmask_b32 v6, v6, v7, {s(S_XO,2)}
        v_cndmask_b32 v6, 0, v6, {s(S_M,2)}
        v_cndmask_b32 {v(V_SEL+2)}, v6, 0, {s(S_XO+2,2)}
        v_cndmask_b32 {v(V_SEL+3)}, 0, v6, {s(S_XO+2,2)}
        v_mov_b32 {v(V_SEL)}, 0
        v_mov_b32 {v(V_SEL+1)}, 0
        v_mov_b32 {v(V_SEL+4)}, 0
        v_mov_b32 {v(V_SEL+5)}, 0
        v_and_b32 v6, 0xffff, {v(V_SEL+2)}
        v_and_b32 v8, 0xffff0000, {v(V_SEL+3)}
        v_xor_b32 v9, {v(V_SEL+2)}, {v(V_SEL+3)}
        v_xor_b32 v9, v9, v6
        v_xor_b32 v9, v9, v8
        v_mov_b32 v7, 0
        v_mov_b32 v10, v8
        v_mov_b32 v11, v9
        v_mov_b32 v12, v6
        v_mov_b32 v13, 0
        v_cmp_eq_u32 vcc, 0, {v(V_G)}
        s_cmp_eq_u32 {s(S_W)}, 0 @@ s_cselect_b64 {s(S_FIX,2)}, vcc, 0
        '''))
        main = pre + main
        def xfree():
            A.wait(lg=xl[3]); A('s_barrier'); self.xfree = True
        self.xfree = False
        main.append(xfree)
        main.append(f's_mov_b32 {s(S_T0)}, 0xffff')
        main += [f'v_bfi_b32 {v(XR+16*rt+8+4*q1)}, {s(S_T0)}, {v(AD+6*rt+4+q1)}, {v(XR+16*rt+8+4*q1)}' for rt in range(4) for q1 in range(2)]
        sel = lambda var, et: SR + 4 * et if var else V_SEL + 2 - 2 * et
        xf = lambda rt, var, q1: XR + 16 * rt + 4 * (2 * var + q1)
        G8 = [(q1, var, tt) for q1 in range(2) for var, tt in self.dord]
        def smm(d, var, et, x, c): return f'v_mfma_f32_16x16x32_bf16 {v(d+4*et,4)}, {v(sel(var,et),4)}, {v(x,4)}, {v(d+4*et,4) if c else "0"}'
        for q1, var, tt in G8: main += [smm(self.ygrp(1-var,q1,tt), 1-var, et, xf(tt,1-var,q1), 0) for et in range(2)]
        main += [f'v_lshlrev_b32 {v(V_FIX+rt)}, 16, {v(xf(rt,0,0))}' for rt in range(4)]
        main += [f'v_and_b32 {v(r)}, 0x7fff7fff, {v(r)}' for r in (V_SEL + 2, V_SEL + 3, 6, 8, 9, 10, 11, 12)]
        for q1, var, tt in G8: main += [smm(self.ygrp(1-var,q1,tt), var, et, xf(2+tt,var,q1), 1) for et in range(2)]
        for k, (q1, var, tt) in enumerate(G8):
            y = self.ygrp(1 - var, q1, tt); x = xf(2 + tt, var, q1)
            main += [f'v_cvt_pk_bf16_f32 {v(x+i)}, {v(y+2*i)}, {v(y+2*i+1)}' for i in range(4)]
            main += [smm(y, 1-var, et, xf(tt,1-var,q1), 0) for et in range(2)]
            main += [f'v_accvgpr_write_b32 {a(AD_+4*k+i)}, {v(x+i)}' for i in range(4)]
        EPT = o.get('ept')
        if EPT is None: main += L(f'''
        s_lshr_b32 {s(S_T0)}, {s(S_U)}, 3
        s_lshl2_add_u32 {s(S_T0)}, {s(S_T0)}, {s(S_W)}
        s_lshl_b32 {s(S_T0)}, {s(S_T0)}, 13
        s_add_u32 {s(S_T0)}, {s(S_T0)}, {F1}
        v_add_u32 v15, {s(S_T0)}, {v(V_L128)}
        s_lshl2_add_u32 {s(S_T0)}, {s(S_U)}, {s(S_W)}
        s_lshl_b32 {s(S_T0)}, {s(S_T0)}, 14
        s_and_b32 {s(S_T3)}, {s(S_Q)}, {4 if o.get('zc') else 0}
        s_lshl_b32 {s(S_T3)}, {s(S_T3)}, 19
        s_add_u32 {s(S_T0)}, {s(S_T0)}, {s(S_T3)}
        v_add_u32 {v(V_ZA)}, {s(S_T0)}, {v(V_L16)}
        v_add_u32 {v(V_ZA+1)}, 8192, {v(V_ZA)}
        s_and_b32 {s(S_T3)}, {s(S_Q)}, 3
        s_lshl_b32 {s(S_T3)}, {s(S_T3)}, 11
        s_lshl1_add_u32 {s(S_AM0)}, {s(S_T3)}, {s(S_T0)}
        ''')
        else: main += L(f's_and_b32 {s(S_T3)}, {s(S_Q)}, 3\ns_lshl_b32 {s(S_T3)}, {s(S_T3)}, 11')
        main += L(f'''
        s_lshl_b32 {s(S_T1)}, {s(S_ODD)}, 11
        s_add_u32 {s(S_T1)}, {s(S_T1)}, {s(S_HB)}
        v_add_u32 v10, {s(S_T1)}, {v(V_L16)}
        v_xor_b32 v11, 2048, v10
        s_xor_b32 {s(S_T1)}, {s(S_W)}, {s(S_C)}
        s_lshl_b32 {s(S_T1)}, {s(S_T1)}, 14
        v_xor_b32 v8, {s(S_T1)}, v10
        v_xor_b32 v9, {s(S_T1)}, v11
        s_lshl3_add_u32 {s(S_RR)}, {s(S_U)}, {s(S_Q)}
        s_lshl2_add_u32 {s(S_RR)}, {s(S_RR)}, {s(S_W)}
        s_lshl_b32 {s(S_RR)}, {s(S_RR)}, 14
        s_add_u32 {s(S_RR)}, {s(S_RR)}, {WS_P}
        s_andn2_b32 {s(S_FLA)}, {s(S_RR)}, {(3<<16)|(1<<14)}
        s_add_u32 {s(S_FLA)}, {s(S_FLA)}, 7168
        v_readfirstlane_b32 {s(S_LT)}, {v(V_TAG)}
        s_and_b32 {s(S_LT)}, {s(S_LT)}, 0xbfffbfff
        s_lshl_b32 {s(S_T0)}, {s(S_U)}, {(7, 10, 10, 12, 12)[o.get('fxp', 0)]}
        s_add_u32 {s(S_T0)}, {s(S_T0)}, {(FX, FX2, FX2, FX3, FX3)[o.get('fxp', 0)]}
        v_and_b32 v6, 7, {v(V_LANE)}
        v_lshlrev_b32 v6, {7 if o.get('fxp') else 3}, v6
        ''')
        NBD = o.get('nbd', 14); PE = o.get('pe', 1)
        WR, WL, WT, F1T, W0 = o.get('wr', 64), o.get('wl', 700), o.get('wt', 128), o.get('f1t', 1000), o.get('w0', 0)
        dq = []; tq = []; cq = []; dt = {}; tt_ = {}
        for kind, k, ops in self.pipe: {'dma': dq, 'tr': tq, 'cs': cq}[kind].extend((kind, k, f) for f in ops)
        for _ in range(o.get('wpre', 0)): dt[dq.pop(0)[1]] = o.get('wpl', -300)
        nxt = W0; flagged = False; pm = None; nd = 0; chk = False
        def epoll():
            nonlocal pm
            A(f'''
            s_lshr_b32 {s(S_FAST)}, {s(S_U)}, 3
            s_lshl2_add_u32 {s(S_FAST)}, {s(S_FAST)}, {s(S_W)}
            s_lshl_b32 {s(S_FAST)}, {s(S_FAST)}, 13
            s_add_u32 {s(S_FAST)}, {s(S_FAST)}, {F1}
            buffer_load_dwordx2 {v(V_ZA,2)}, {v(V_L128)}, {s(SRD_WS,4)}, {s(S_FAST)} offen sc1
            '''); pm = A.nvm
            print('window: poll at', clk.t, 'main left', len(main), 'dq', len(dq))
        def echeck():
            nonlocal chk
            assert self.xfree
            chk = True
            print('window: check at', clk.t, 'main left', len(main), 'dq', len(dq))
            if o.get('ect'): self.stamp('p2 prepoll')
            Lp = A.newlabel('poll'); D = A.newlabel('polld')
            A.wait(vm=pm)
            A.on = False
            A(f'v_cmp_ne_u64 vcc, {v(V_ZA,2)}, {v(V_TAG,2)}\ns_mov_b32 {s(S_CNT)}, 0x20000\ns_cbranch_vccz {D}')
            A.snap()
            A.label(Lp)
            A(f'''
            buffer_load_dwordx2 {v(V_ZA,2)}, {v(V_L128)}, {s(SRD_WS,4)}, {s(S_FAST)} offen sc1
            s_sub_u32 {s(S_CNT)}, {s(S_CNT)}, 1
            s_cbranch_scc1 {D}
            s_waitcnt vmcnt(0)
            v_cmp_ne_u64 vcc, {v(V_ZA,2)}, {v(V_TAG,2)}
            s_cbranch_vccnz {Lp}
            ''')
            A.label(D)
            A.unsnap()
            A(f's_lshl2_add_u32 {s(S_AM0)}, {s(S_U)}, {s(S_W)}\ns_lshl_b32 {s(S_AM0)}, {s(S_AM0)}, 14')
            if o.get('zt'):
                A(f's_and_b32 {s(S_FAST)}, {s(S_Q)}, 3\ns_lshl_b32 {s(S_FAST)}, {s(S_FAST)}, 12\ns_add_u32 {s(S_FAST)}, {s(S_FAST)}, {s(S_AM0)}')
                self.touch(191, SRD_WS, S_FAST, 32, ' sc1')
            A.on = True
            A(f'v_add_u32 {v(V_ZA)}, {s(S_AM0)}, {v(V_L16)}\nv_add_u32 {v(V_ZA+1)}, 8192, {v(V_ZA)}')
            if o.get('ect'): self.stamp('p2 checked')
        while main or (dq and dq[0][1] < NBD) or not flagged:
            T = clk.t
            k = dq[0][1] if dq else 99
            if not flagged and T >= F1T:
                self.stamp('pre F1')
                A.wait(vm=self.zst)
                self.setflag(S_F1, ' sc1')
                self.stamp('F1 set')
                if o.get('fxp') in (2, 4): self.fxst(S_BG, V_ZA)
                flagged = True
                self.flush(self.xr)
                for _ in range(o.get('wq2', 0)):
                    k = dq[0][1]; assert k < 3 or (k < 5 and self.xfree); self.emit(dq.pop(0)[2]); nxt = max(nxt, T) + WR; dt[k] = nxt
            elif EPT is not None and flagged and pm is None and T >= EPT: epoll()
            elif EPT is not None and pm is not None and not chk and T >= o.get('ect', 99999): echeck()
            elif nd < o.get('wq', 0): assert k < 3; self.emit(dq.pop(0)[2]); nd += 1; dt[k] = o.get('wql', W0)
            elif main and main[0] is xin and not flagged and o.get('xrp') == 2: clk.t += 8
            elif k < NBD and T >= nxt and (k < 3 or (self.xfree if k < 5 else (k - 5) in tt_ and T >= tt_[k - 5] + WT)) and not (k >= NBD - PE and (main or not flagged)):
                if k == NBD - PE and pm is None and EPT is None:
                    A(f'buffer_load_dwordx2 v[12:13], v15, {s(SRD_WS,4)}, 0 offen{self.plf}'); pm = A.nvm
                if k >= 5: A.wait(lg=self.w1l[k - 5])
                self.emit(dq.pop(0)[2]); nxt = max(nxt, T - 32) + WR
                if not (dq and dq[0][1] == k):
                    dt[k] = nxt
                    if o.get('fine') == 3 and k in (0, 2, 4, 5, 6, 7, 8, 9, 10, 11, 12): self.stamp(f'wd{k} m{len(main)} T{T}')
            elif tq[0][1] in dt and tq[0][1] < 14 and T >= dt[tq[0][1]] + WL:
                k = tq[0][1]; self.emit(tq.pop(0)[2])
                if tq[0][1] != k: tt_[k] = T
            elif cq[0][1] in tt_ and T >= tt_[cq[0][1]] + WT and clk.pipe <= T + 4 and not (main and o.get('mp', 1)): self.emit(cq.pop(0)[2])
            elif main: self.emit(main.pop(0))
            else: clk.t += 8
        print('window: est', clk.t, 'tr left', len(tq), 'cs left', len(cq))
        A.clk = None
        self.post = dq + tq + cq
        if EPT is not None:
            if not o.get('ect'): self.stamp('p2 prepoll')
            if pm is None: epoll()
            if not chk: echeck()
            self.stamp('p2 polled')
            return
        self.stamp('p2 prepoll')
        if pm is None:
            A(f'buffer_load_dwordx2 v[12:13], v15, {s(SRD_WS,4)}, 0 offen{self.plf}'); pm = A.nvm
        Lp = A.newlabel('poll'); D = A.newlabel('polld')
        if o.get('tpl'):
            A('s_barrier')
            self.g2touch(2, o['tpl'])
            if o.get('ts') == 3: self.smalltouch(S_RR + 2)
        self.site('B')
        A.wait(vm=pm)
        A.on = False
        A(f'v_cmp_ne_u64 vcc, v[12:13], {v(V_TAG,2)}\ns_mov_b32 {s(S_CNT)}, 0x20000\ns_cbranch_vccz {D}')
        A.snap()
        A.label(Lp)
        A(f'''
        buffer_load_dwordx2 v[12:13], v15, {s(SRD_WS,4)}, 0 offen sc1
        s_sub_u32 {s(S_CNT)}, {s(S_CNT)}, 1
        s_cbranch_scc1 {D}
        s_waitcnt vmcnt(0)
        v_cmp_ne_u64 vcc, v[12:13], {v(V_TAG,2)}
        s_cbranch_vccnz {Lp}
        ''')
        A.label(D)
        A.unsnap()
        self.stamp('p2 polled')

    def p23(self):
        A = self.A; o = self.opt
        if o.get('idle'): A(f's_sleep {o["idle"]}')
        A.on = True
        dr = str(o.get('drop', ''))
        A.drop = lambda t: ('d' in dr and t.endswith(' lds')) or ('t' in dr and t.startswith('ds_read_b64_tr')) or ('w' in dr and t.startswith('ds_write')) or ('h' in dr and t.startswith('ds_read_b128'))
        zm = {}
        def zld(q1, ks):
            if ks or q1: A(f's_add_u32 {s(S_T3)}, {s(S_T3)}, 2048\ns_and_b32 {s(S_T3)}, {s(S_T3)}, 0x1800')
            for h in range(2):
                A(f'buffer_load_dwordx4 {v(ZF+32*q1+8*ks+4*h,4)}, {v(V_ZA+q1)}, {s(SRD_WS,4)}, {s(S_T3)} offen offset:{h*1024}{self.zldf}')
            zm[q1, ks] = A.nvm
        for k in range(6):
            zld(k >> 2, k & 3)
            if k == 3: A(f'buffer_load_dwordx2 v[6:7], v6, {s(SRD_WS,4)}, {s(S_T0)} offen{self.fxf}')
        if 'ept' in o: self.site('B')
        NA = 10
        self.debt = 0; self.tick = 0; self.nxt = o.get('dma0', 16); self.blk = -1; self.b4 = False; self.hold = False
        RATE, LAT, SLACK, TL = o.get('rate', 40) / 10, o.get('lat', 44), o.get('slack', 8), o.get('tl', 8)
        self.lat = LAT
        dq = []; tq = []; cq = []; dt = {}; tt_ = {}
        for kind, k, f in self.post: {'dma': dq, 'tr': tq, 'cs': cq}[kind].append((kind, k, f))
        self.dfree = 0
        pend_d = {k for _, k, _ in dq}; pend_t = {k for _, k, _ in tq}
        for k in range(16):
            if k not in pend_d: dt[k] = -999
            if k not in pend_t: tt_[k] = -999
        KO = [int(ch) for ch in str(o.get('ko', 123456))]
        self.items = [(0, 0), (1, 0)] + [(0, ks) for ks in KO] + [(1, ks) for ks in KO]
        P4O = [(x[0], int(x[1]), [int(ch) for ch in x[2:]]) for x in o['p4o'].split('.')] if 'p4o' in o else None
        if P4O: self.items = [(0, 0), (1, 0)] + [(h, ks) for _, h, kl in P4O for ks in kl]
        assert len(set(self.items)) == 14
        dq += [('x', 16, x) for x in self.w2_setup()]
        for b in range(14): dq += [('dma', 16 + b, f) for f in self.w2_dma(b, (16 + b) % 5)]
        tq += [('x', 16, x) for x in self.w2_setup_r()]
        self.trl = {}
        for b in range(14): tq += [('tr', 16 + b, f) for f in self.w2_tr(b, (16 + b) % 5)]
        def ins(item, f, tag=-1):
            p = min([n for n, x in enumerate(dq) if x[1] >= item] + [len(dq)])
            dq.insert(p, ('x', tag, f))
        if self.w1t < 56: ins(0, lambda: self.w1touch(self.w1t, 56))
        if 't3' in o:
            t3 = [int(x) for x in str(o['t3']).split('.')]
            for k, p in enumerate(t3): ins(p, lambda k=k: self.w2touch(k if len(t3) > 1 else None))
        if 't4' in o:
            def t4():
                if o.get('ts', 1) == 1: self.smalltouch(S_RR + 2)
                if o.get('tw2') != 1 and o.get('tpl') != 'f': self.g2touch(2)
                if o.get('ptt4'): self.ptouch((o['ptt4'],))
                if o.get('trs') == 1: self.touch(191, SRD_WS, S_RR, 56, ' sc1')
                self.nxt = max(self.nxt, self.tick) + o.get('t4gap', 60)
            ins(o['t4'], t4, -2)
        if o.get('trs', 0) > 1: ins(o['trs'], lambda: self.touch(191, SRD_WS, S_RR, 56, ' sc1'))
        S_PQ, S_PS = S_RR, S_RR + 1
        ZC = 0
        def trlg(k): return self.w1l[self.w1order[k]] if k < 16 else self.trl[k]
        def d_ok(force=False):
            if not dq: return False
            kind, k, f = dq[0]
            if kind == 'x': return force or k > -2 or self.tick >= (o.get('t4t', 40) if k == -2 else 10)
            if kind == 'st': return force or self.tick >= self.nxt
            dep = k < 5 or ((k - 5) in tt_ and (force or self.tick >= tt_[k - 5] + TL))
            return dep and (force or (self.tick >= self.nxt and not self.hold))
        def d_pop():
            kind, k, f = dq.pop(0)
            if kind == 'st': self.nxt = max(self.nxt, self.tick - SLACK) + o.get('srate', 30) / 10
            if kind == 'dma':
                if k >= 5: A.wait(lg=trlg(k - 5))
                self.nxt = max(self.nxt, self.tick - SLACK) + RATE
                if not (dq and dq[0][:2] == ('dma', k)): dt[k] = self.tick
            self.emit(f)
        def t_ok(force=False):
            if not tq: return False
            kind, k, f = tq[0]
            if k not in dt: return False
            if kind == 'x': return True
            return (k < 14 + self.dfree if k < 16 else self.blk > k - 16) and (force or (self.tick >= dt[k] + self.lat and (k < 16 or self.tick >= o.get('g0', 0))))
        def t_pop():
            kind, k, f = tq.pop(0)
            self.emit(f)
            if kind == 'tr' and not (tq and tq[0][1] == k): tt_[k] = self.tick
        def c_ok(): return cq and cq[0][1] in tt_ and self.tick >= tt_[cq[0][1]] + TL
        def ensure(k):
            while k not in tt_:
                if t_ok(True): t_pop()
                else:
                    assert d_ok(True), (k, dq[:1], tq[:1]); d_pop()
        self.ensure = ensure; self.dq = dq; self.d_pop = d_pop
        def fill(kmax, qs, k=0):
            k += self.debt; self.debt = 0
            while k < kmax:
                n0 = A.wt
                if d_ok(): d_pop()
                else:
                    for q in qs:
                        if q is None:
                            if t_ok(): t_pop(); break
                        elif q: self.emit(q.pop(0)); break
                    else: break
                k += A.wt - n0
            self.debt = max(0, k - kmax)
        def extra(kmax, qs):
            if mq: mq.pop(0)()
            elif c_ok(): self.emit(cq.pop(0)[2])
            else: return
            self.tick += 1
            fill(kmax, qs)
        def grp(n, rt): return self.ygrp(n >> 1, n & 1, rt) if rt < 2 else self.dgrp(n >> 1, n & 1, rt - 2)
        SQ = {rt: grp(0, rt) + 4 for rt in range(4)}; SM = {rt: grp(2, rt) + 4 for rt in range(4)}
        mq = []
        slots = [TB + 56, TB + 60]
        def dadd(q1):
            for k, (var, tt) in enumerate(self.dord):
                d = self.dgrp(var, q1, tt); y = self.ygrp(1 - var, q1, tt)
                for et in range(2):
                    A(f'v_mfma_f32_16x16x32_bf16 {v(d+4*et,4)}, {v(V_SEL+2-2*et,4)}, {a(AD_+16*q1+4*k,4)}, {v(y+4*et,4)}')
                    self.tick += 1
                    fill(P2BG, [vq, None])
            self.dfree = q1 + 1
        def swap0(q1):
            def f():
                LS = A.newlabel('nsw')
                A(f's_cmp_lg_u32 {s(S_U)}, 0\ns_cbranch_scc1 {LS}')
                A.snap()
                A('s_mov_b32 exec_lo, 0x10001\ns_mov_b32 exec_hi, 0x10001')
                for j in range(8): A(f'v_swap_b32 {v(self.ygrp(1,q1,0)+j)}, {v(self.dgrp(1,q1,0)+j)}')
                A('s_mov_b64 exec, -1\ns_nop 3')
                A.label(LS)
                A.unsnap()
            return f
        def conv(n, rt):
            g = grp(n, rt)
            ln = []
            if n == 0: ln.append(f'v_cndmask_b32 {v(g)}, {v(g)}, {v(V_FIX+rt)}, {s(S_FIX,2)}')
            ln += [f'v_cvt_pk_bf16_f32 {v(g+j)}, {v(g+2*j)}, {v(g+2*j+1)}' for j in range(4)]
            if o.get('w64'):
                ln += [f'ds_write_b64 {v(10+(rt>>1))}, {v(g+2*j,2)} offset:{n*4096+(rt&1)*1024+8*j}' for j in range(2)]
            else: ln.append(f'ds_write_b128 {v(10+(rt>>1))}, {v(g,4)} offset:{n*4096+(rt&1)*1024}')
            def sm(gg, first):
                A(f'v_mfma_f32_16x16x32_bf16 {v(SM[rt],4)}, {v(V_ONES,4)}, {v(gg,4)}, {"0" if first else v(SM[rt],4)}')
                slots.append(gg)
            def rel():
                if self.tick >= o.get('wc0', 0): self.nxt += o.get('wc', 33) / 10
                if n & 1: slots.append(g + 4)
                mq.append(lambda: A(f'v_mfma_f32_16x16x32_bf16 {v(SQ[rt],4)}, {v(g,4)}, {v(g,4)}, {"0" if n == 0 else v(SQ[rt],4)}'))
                if n == 2: mq.append(lambda: sm(grp(0, rt), True))
                if n: mq.append(lambda: sm(g, False))
            ln.append(rel)
            return ln
        def half(q1):
            return (conv(q1, 1) + conv(q1, 3) + conv(2 + q1, 1) + conv(2 + q1, 3)
                    + conv(q1, 0) + conv(q1, 2) + [swap0(q1)] + conv(2 + q1, 0) + conv(2 + q1, 2))
        def take(q, kmax):
            k = 0
            while q and k < kmax:
                n0 = len(A.lines); self.emit(q.pop(0)); k += len(A.lines) - n0
            return k
        P2BG = o.get('p2bg', 2)
        vq = []
        n0 = A.wt
        while A.wt - n0 < o.get('shw', 100):
            if t_ok(): t_pop()
            elif cq and cq[0][1] in tt_: self.emit(cq.pop(0)[2]); A.wt += 4
            elif d_ok() and dq[0][0] == 'x': d_pop()
            else: break
        for q1 in range(2):
            if q1: dadd(0); vq += half(0)
            for ks in range(4):
                z = ZF + 32 * q1 + 8 * ks
                A.wait(vm=zm[q1, ks])
                if (ks, q1) == (0, 0): self.stamp('Z first')
                A(f'v_swap_b32 {v(z+2)}, {v(z+4)}')
                A(f'v_swap_b32 {v(z+3)}, {v(z+5)}')
                n = 0
                for tt in (1, 0):
                    for var in range(2):
                        for et in range(2):
                            acc = self.ygrp(var, q1, tt) + 4 * et
                            A(f'v_mfma_f32_16x16x32_bf16 {v(acc,4)}, {v(z+4*et,4)}, {v(TB+16*ks+8*tt+4*var,4)}, {v(acc,4)}')
                            n += 1; self.tick += 1
                            if q1 == 0 and ks < 2 and n == 1: zld(1, 2 + ks)
                            elif q1 == 0:
                                if (ks, n) > (1, 1): fill(P2BG, [None])
                            else:
                                fill(o.get('p2v', 3), [vq])
                                if mq and n % 2 == 0: extra(2, [vq])
        self.stamp('Z landed')
        dadd(1)
        while vq:
            if mq: extra(2, [vq])
            else: take(vq, 2)
        A.wait(lg=A.nlg)
        A('s_barrier')
        self.stamp('half 0')
        free = [TB + 4 * k for k in range(14)]
        acc = {}
        for t in range(4):
            for rt in range(4 if t < 3 else 2): acc[t, rt] = free.pop(0)
        started = set()
        def mm(t, rt, b, frag):
            c = v(acc[t, rt], 4)
            A(f'v_mfma_f32_16x16x32_bf16 {c}, {a(16*b+4*t,4)}, {v(frag,4)}, {c if (t, rt) in started else "0"}')
            started.add((t, rt))
        fr = {}; fl_ = {}
        NL = o.get('nl', 4); GO = o.get('go')
        LB = list(range(16 - NL, 16))
        RD = [(b, rt) for b in range(16) for rt in range(4)]
        if GO: RD = RD[:64 - 4 * NL] + [(b, rt) for rt in range(4) for b in (LB[::-1] if rt & 1 else LB)]
        hip = [0, 0]
        def hrd(k):
            ops = []
            for b, rt in RD[4 * k:4 * k + 4]:
                q1, ip, var = b >> 3, (b >> 1) & 3, b & 1
                for r in ((0, 1) if 4 * k < 64 - 4 * NL or not GO else (rt >> 1,)):
                    if hip[r] != ip: ops.append(f'v_xor_b32 {v(8+r)}, {(ip^hip[r])<<14}, {v(8+r)}'); hip[r] = ip
                def f(b=b, rt=rt, var=var, q1=q1):
                    fr[b, rt] = slots.pop(0)
                    A(f'ds_read_b128 {v(fr[b,rt],4)}, {v(8+(rt>>1))} offset:{(2*var+q1)*4096+(rt&1)*1024}')
                    fl_[b, rt] = A.nlg
                ops.append(f)
            return ops
        vq = half(1)
        while len(slots) < 4: extra(0, [])
        self.flush(hrd(0))
        while mq: extra(2, [None, vq] if o.get('tprio', 1) else [vq])
        take(vq, o.get('h1pre', 6))
        A(f'''
        s_getreg_b32 {s(S_T0)}, hwreg(HW_REG_XCC_ID)
        s_and_b32 {s(S_T0)}, {s(S_T0)}, 15
        v_subrev_u32 v6, {s(S_T0)}, v6
        v_cmp_ne_u64 vcc, v[6:7], {v(V_TAG,2)}
        s_and_b32 {s(S_T0)}, {s(S_Q)}, {4 if o.get('npl', 3) < 4 else 0}
        s_lshr_b32 {s(S_FAST)}, vcc_lo, {s(S_T0)}
        s_and_b32 {s(S_FAST)}, {s(S_FAST)}, {15 if o.get('npl', 3) < 4 else 255}
        s_cselect_b32 {s(S_FAST)}, 0, 1
        ''')
        LE = A.newlabel('noe')
        A(f'''
        s_or_b32 {s(S_T0)}, s2, {s(S_W)}
        s_cmp_lg_u32 {s(S_T0)}, 0
        s_cbranch_scc1 {LE}
        ''')
        A.snap()
        A(f's_mov_b32 {s(S_T0)}, {FE}')
        self.setflag(S_T0, ' sc1')
        A.label(LE); A.unsnap()
        st = L(f'''
        s_lshl_b32 {s(S_T0)}, {s(S_ODD)}, 10
        s_lshl3_add_u32 {s(S_T0)}, {s(S_W)}, {s(S_T0)}
        s_add_u32 {s(S_T0)}, {s(S_T0)}, {L_STAT}
        v_lshl_add_u32 v6, {v(V_L15)}, 5, {s(S_T0)}
        v_xor_b32 v7, 1024, v6
        ''')
        for rt in range(4):
            st += [f'v_cndmask_b32 {v(SM[rt]+1)}, {v(SQ[rt])}, {v(SQ[rt]+1)}, {s(S_XO,2)}',
                   f'v_cndmask_b32 {v(SM[rt]+2)}, {v(SQ[rt]+2)}, {v(SQ[rt]+3)}, {s(S_XO,2)}',
                   f'v_cndmask_b32 {v(SM[rt]+1)}, {v(SM[rt]+1)}, {v(SM[rt]+2)}, {s(S_XO+2,2)}']
        st.append(f's_mov_b64 exec, {s(S_M,2)}\n' + '\n'.join(f'ds_write_b64 {v(6+(rt>>1))}, {v(SM[rt],2)} offset:{(rt&1)*512}' for rt in range(4)) + '\ns_mov_b64 exec, -1')
        def mark(): self.stm = A.nlg
        st.append(mark)
        SB0, SB1 = SQ[2], SQ[3]
        BF = [SM[rt] for rt in range(4)]
        RS = SQ[0]
        s2 = L(f'''
        s_lshl_b32 {s(S_T2)}, {s(S_ODD)}, 10
        s_add_u32 {s(S_T2)}, {s(S_T2)}, {L_STAT}
        v_lshlrev_b32 {v(V_FIX)}, 5, {v(V_LANE)}
        v_xor_b32 {v(V_FIX)}, {s(S_T2)}, {v(V_FIX)}
        ds_read_b128 {v(SB0,4)}, {v(V_FIX)}
        ds_read_b128 {v(SB1,4)}, {v(V_FIX)} offset:16
        ''')
        def w_(): A.wait(lg=self.s2m)
        s3 = [w_] + L(f'''
        v_add_f32 {v(SB0)}, {v(SB0)}, {v(SB0+2)}
        v_add_f32 {v(SB0+1)}, {v(SB0+1)}, {v(SB0+3)}
        v_add_f32 {v(SB1)}, {v(SB1)}, {v(SB1+2)}
        v_add_f32 {v(SB1+1)}, {v(SB1+1)}, {v(SB1+3)}
        v_add_f32 {v(SB0)}, {v(SB0)}, {v(SB1)}
        v_add_f32 {v(SB0+1)}, {v(SB0+1)}, {v(SB1+1)}
        v_mul_f32 {v(SB0)}, {f2u(-1/512)}, {v(SB0)}
        v_mul_f32 {v(SB0+1)}, {f2u(1/512)}, {v(SB0+1)}
        v_fma_f32 {v(SB0+1)}, -{v(SB0)}, {v(SB0)}, {v(SB0+1)}
        v_max_f32 {v(SB0+1)}, 0, {v(SB0+1)}
        v_add_f32 {v(SB0+1)}, {f2u(1e-5)}, {v(SB0+1)}
        v_rcp_f32 {v(RS)}, {v(SB0+1)}
        v_sqrt_f32 {v(SB0+1)}, {v(SB0+1)}
        v_mov_b32 {v(RS+2)}, {v(RS)}
        v_cvt_pk_bf16_f32 {v(SB1)}, {v(SB0)}, {v(SB0+1)}
        v_lshlrev_b32 {v(SB0+2)}, 16, {v(SB1)}
        v_and_b32 {v(SB0+3)}, 0xffff0000, {v(SB1)}
        v_sub_f32 {v(SB0+2)}, {v(SB0)}, {v(SB0+2)}
        v_sub_f32 {v(SB0+3)}, {v(SB0+1)}, {v(SB0+3)}
        v_cvt_pk_bf16_f32 {v(SB1+1)}, {v(SB0+2)}, {v(SB0+3)}
        v_and_b32 {v(SB1+2)}, 0xffff, {v(SB1)}
        v_permlane32_swap_b32 {v(RS)}, {v(RS+2)}
        v_mov_b32 {v(RS+1)}, {v(RS)}
        v_mov_b32 {v(RS+3)}, {v(RS+2)}
        v_permlane16_swap_b32 {v(RS)}, {v(RS+1)}
        v_permlane16_swap_b32 {v(RS+2)}, {v(RS+3)}
        ''')
        for rt in range(4):
            s3 += [f'v_cmp_eq_u32 vcc, {rt}, {v(V_G)}', f'v_mov_b32 {v(BF[rt]+3)}, 0'] + [f'v_cndmask_b32 {v(BF[rt]+k)}, 0, {v(SB1+k)}, vcc' for k in range(3)]
        V_BIAS = SQ[1]
        def bld():
            for t in range(3): A(f'buffer_load_ushort {v(V_BIAS+t)}, {v(V_BT)}, {s(SRD_B1,4)}, {s(S_T1)} offen offset:{32*t}')
            A(f'buffer_load_ushort {v(V_BIAS+3)}, {v(V_BT)}, {s(SRD_B1,4)}, {s(S_T0)} offen offset:96')
            self.bm = A.nvm
        bias = L(f'''
        s_mul_i32 {s(S_T0)}, {s(S_Q)}, 448
        s_lshr_b32 {s(S_T1)}, {s(S_W)}, 1
        s_mul_i32 {s(S_T1)}, {s(S_T1)}, 224
        s_add_u32 {s(S_T0)}, {s(S_T0)}, {s(S_T1)}
        s_lshl_b32 {s(S_T1)}, {s(S_ODD)}, 7
        s_add_u32 {s(S_T1)}, {s(S_T1)}, {s(S_T0)}
        v_lshlrev_b32 {v(V_BT)}, 1, {v(V_L15)}
        ''') + [bld]
        csl = [lambda: A.wait(vm=self.bm)]
        for t in range(4):
            c = V_CS + 4 * t
            csl += L(f'''
            v_lshlrev_b32 {v(c+3)}, 16, {v(V_BIAS+t)}
            v_cvt_pk_bf16_f32 {v(c)}, {v(c)}, {v(c+3)}
            v_lshlrev_b32 {v(c+3)}, 16, {v(c)}
            v_sub_f32 {v(c+2)}, {v(c+2)}, {v(c+3)}
            v_mov_b32 {v(c+1)}, {v(c)}
            v_cvt_pk_bf16_f32 {v(c+2)}, {v(c+2)}, 0
            v_mov_b32 {v(c+3)}, 0
            ''') + [lambda t=t: csd.add(t)]
        csd = set()
        FK = o.get('fk', 22) / 10
        B3 = o.get('b3', 4); B4 = o.get('b4', 99)
        def mark2(): self.s2m = A.nlg
        q2 = []
        nrd = 1
        inv = {b: k for k, b in enumerate(self.w1order)}
        for b in range(16 - NL):
            self.blk = b
            if o.get('fine') == 1 and b: self.stamp(f'blk{b} t{self.tick} d{A.nvm}')
            ensure(inv[b])
            if b == B3:
                print('at B3: vq', len(vq), 'mq', len(mq), 'st', len(st), 'tick', self.tick)
                while vq or mq:
                    if mq: extra(2, [vq])
                    else: take(vq, 2)
                self.flush(st)
                A.wait(lg=self.stm)
                A('s_barrier')
                q2 = s2 + [mark2] + bias + s3
            hq = []
            while nrd < min(8 if b < B3 else 16, b + o.get('hpf', 99)) and len(slots) - sum(callable(x) for x in hq) >= 4 and len(hq) < o.get('hmax', 8):
                hq += hrd(nrd); nrd += 1
            if b == B4:
                assert nrd == 16 and not hq, (nrd, len(hq))
                A.wait(lg=A.nlg)
                A('s_barrier')
                self.b4 = True
            for rt in range(4):
                for t in range(4 if rt < 2 else 3):
                    k = A.wait(lg=max(fl_[b, rt], self.w1l[b]))
                    mm(t, rt, b, fr[b, rt]); self.tick += 1
                    qs = ([hq, None, vq] if o.get('tprio', 1) else [hq, vq, None]) + [[] if mq else st, q2, [] if cq or b < o.get('csb', 9) else csl]
                    fill(FK, qs, k * SW)
                    extra(FK, qs)
            self.flush(hq)
            for rt in range(4): slots.append(fr[b, rt])
        self.blk = 16 - NL
        print('middle left: dq', len(dq), 'tq', len(tq), 'cq', len(cq), 'q2', len(q2), 'cs', len(csl), 'tick', self.tick)
        for b in LB: ensure(inv[b])
        while cq: self.emit(cq.pop(0)[2])
        if not GO: self.flush(q2); self.flush(csl)
        self.stamp('mid done')
        if not GO: slots += [SB0, SB1, SQ[1]]; SB0 = None
        V_BIAS = V_CS
        print('free slots', len(slots))
        V_IB, V_FC = 8, 9
        ep = []
        RF = {}; rv = {}; sw = {}; T2 = {}; self.rst = 0; self.nst = 0
        RSP = o.get('rs') is not None; RSF = ('' if o.get('rs') == 'pl' else ' ' + o.get('rs')) if RSP else ' sc1'
        def epi(t, nt, rts=None):
            ln = []
            def st(c, off):
                if off >= 4096: A(f's_add_u32 {s(S_PS)}, {s(S_PQ)}, 4096')
                A(f'buffer_store_dwordx4 {v(c,4)}, {v(V_L16)}, {s(SRD_WS,4)}, {s(S_PS if off >= 4096 else S_PQ)} offen offset:{off&4095}{RSF}')
                self.rst = A.nvm; self.nst += 1
            for rt in rts or (2 * nt, 2 * nt + 1):
                c = acc[t, rt]; d = c if t == 0 else acc[0, rt] + 2 if t == 1 else acc[t, 2 * nt] + 2 * (rt & 1)
                ln += [f'v_mul_f32 {v(c+i)}, {v(c+i)}, |{v(c+i)}|' for i in range(4)]
                ln += [f'v_cvt_pk_bf16_f32 {v(d+i)}, {v(c+2*i)}, {v(c+2*i+1)}' for i in range(2)]
                ln += [f'v_pk_max_i16 {v(d+i)}, {v(d+i)}, 0' for i in range(2)]
                if t == 1:
                    ln.append(lambda rt=rt, c=c: (st(acc[0, rt], rt * 1024), RF.__setitem__((0, rt), ('v', acc[0, rt])), slots.append(c)))
                elif t and rt & 1:
                    ln.append(lambda c=c: (st(acc[t, 2 * nt], 4096 + nt * 1024 if t == 2 else 6144), slots.append(c), t == 3 and not RSP and slots.append(acc[3, 0])))
            return ln
        def reg(x, n=4, off=0): return (a if x[0] == 'a' else v)(x[1] + off, n)
        GLF = {'pl': ''}.get(o.get('glf'), ' ' + o.get('glf', 'sc1'))
        def rload(js):
            for ks in js:
                if ks < 4:
                    A(f's_xor_b32 {s(S_PS)}, {s(S_PQ)}, {ks<<16}')
                    for rt in range(4):
                        RF[ks, rt] = ('a', (224, 240, 0)[KO.index(ks) - min(KO.index(k) for k in (1, 2, 3))] + 4 * rt)
                        A(f'buffer_load_dwordx4 {reg(RF[ks,rt])}, {v(V_L16)}, {s(SRD_WS,4)}, {s(S_PS)} offen offset:{rt*1024}{GLF}')
                        rv[ks, rt] = A.nvm
                    continue
                if ks == 6: A(f's_lshl_b32 {s(S_T0)}, {s(S_ODD)}, 17\ns_xor_b32 {s(S_T0)}, {s(S_T0)}, {s(S_PQ)}')
                for k in range(2):
                    for e in range(2):
                        if ks == 4 and e == 0: RF[ks, 2 * k] = ('v', acc[2, 2 * k]); continue
                        RF[ks, 2 * k + e] = ('v', slots.pop(0))
                        if ks == 6: A(f's_xor_b32 {s(S_PS)}, {s(S_T0)}, {(e<<16)|(k<<14)|4096}')
                        elif ks == 5 or k == 0: A(f's_xor_b32 {s(S_PS)}, {s(S_PQ)}, {((2*(ks-4)+e)<<16)|4096}')
                        A(f'buffer_load_dwordx4 {reg(RF[ks,2*k+e])}, {v(V_L16)}, {s(SRD_WS,4)}, {s(S_PS)} offen offset:{2048 if ks == 6 else k*1024}{GLF}')
                    rv[ks, 2 * k] = rv[ks, 2 * k + 1] = A.nvm
                    sw[ks, k] = True
        def rswap(ks, k):
            if not sw.pop((ks, k), False): return
            A.wait(vm=rv[ks, 2 * k])
            for i in range(2): A(f'v_swap_b32 {reg(RF[ks,2*k],1,2+i)}, {reg(RF[ks,2*k+1],1,i)}')
        A.wait(lg=max(self.w1l.values()) if GO else max(max(fl_.values()), max(self.w1l.values())))
        EPK = o.get('epk', 22) / 10
        ml = []
        for t in [int(ch) for ch in str(o.get('tord', '0123')).zfill(4)]:
            for nt in range(2 if t < 3 else 1):
                ml += [('a', t, rt, b) for b in LB + [16] for rt in (2 * nt, 2 * nt + 1)]
        if GO:
            GO = [[int(ch) for ch in g] for g in str(GO).split('.')]
            ml = [('a', t, rt, b) for rt in range(4) for t in GO[rt] for b in (LB[::-1] if rt & 1 else LB) + [16]]
            if o.get('lo'):
                LO = [(int(x[0]), int(x[1])) for x in o['lo'].split('.')]
                GO = [[t for t, r in LO if r == rt] for rt in range(4)]
                ml = [('a', t, rt, b) for t, rt in LO for b in (LB[::-1] if rt & 1 else LB) + [16]]
            if o.get('cd'): ml.insert(2 * NL, ml.pop(NL))
        N3 = len(ml)
        NM = o.get('nm', 2)
        if o.get('art'): ml += [('b', j, 0, rt) for rt in range(4) for j in range(8)]
        else: ml += [('b', j, 0, rt) for j in range(8) for rt in range(4)]
        for ks in KO[:6-NM]: ml += [('b', j, ks, rt) for rt in range(4) for j in range(4)]
        for j in range(4): ml += [('b', j, ks, rt) for ks in KO[6-NM:] for rt in range(4)]
        for j in range(4, 8): ml += [('b', j, ks, rt) for ks in KO for rt in range(4)]
        if P4O:
            ml = ml[:N3 + 32]
            for mode, h, kl in P4O:
                if mode == 'k': ml += [('b', 4 * h + tj, ks, rt) for ks in kl for rt in range(4) for tj in range(4)]
                elif mode == 't': ml += [('b', 4 * h + tj, ks, rt) for tj in range(4) for ks in kl for rt in range(4)]
                else: ml += [('b', 4 * h + tj, ks, rt) for tj in range(4) for rt in range(4) for ks in kl]
        use = {}; lastb = {}
        for n, m in enumerate(ml):
            if m[0] == 'b': lastb[self.items.index((m[1] >> 2, m[2]))] = n
        pa = {}; due = []; cnt = {}
        def dual(fn):
            LS = A.newlabel('slow'); LJ = A.newlabel('dj')
            A(f's_cmp_eq_u32 {s(S_FAST)}, 0\ns_cbranch_scc1 {LS}')
            A.snap(); fn(''); A(f's_branch {LJ}'); A.label(LS); A.unsnap()
            fn(' sc1'); A.label(LJ)
        def pack(j):
            return [f'v_cvt_pk_bf16_f32 {v(pa[j,rt&2]+2*(rt&1)+i)}, {v(pa[j,rt]+2*i)}, {v(pa[j,rt]+2*i+1)}' for rt in range(4) for i in range(2)]
        self.nred = 0; self.gb = False
        def red(j):
            x = 3 - (j & 3)
            def wr():
                assert self.gb and (j < 4 or 0 in rdm)
                for k in range(2): A(f'ds_write_b128 {v(V_IB)}, {v(pa[j,2*k],4)} offset:{(x-1)*2048+(k^(x&1))*1024}')
                A(f'v_xor_b32 {v(V_IB)}, {(x^(x-1))<<14}, {v(V_IB)}')
                slots.extend(pa[j, rt] for rt in (1, 3, 0, 2)); self.nred += 1
            return pack(j) + [wr]
        rdm = {}
        AR = (32, 56)
        def rbar(js):
            hf = js[0]
            while self.nred < 3 * (hf + 1): self.emit(ep.pop(0))
            if hf == 0:
                for k in range(14): ensure(16 + k)
            assert all(lastb[b] < self.n for b in (2 + hf, 3 + hf))
            A.wait(lg=A.nlg); A('s_barrier')
            for k in range(6):
                A(f'ds_read_b128 {a(AR[hf]+4*k,4)}, {v(V_IB)} offset:{k*1024}'); rdm[hf, k] = A.nlg
            rdm[hf] = True
            if hf == 0: A(f'v_xor_b32 {v(V_IB)}, {65536|(3<<14)}, {v(V_IB)}')
        def radd(js):
            hf = js[0]; j = 4 * hf + 3
            assert hf or all(cnt[j, rt] == 7 for rt in range(4))
            for x in range(3):
                for rt in range(4):
                    k = A.wait(lg=rdm[hf, 2 * x + (rt >> 1)])
                    A(f'v_mfma_f32_16x16x32_bf16 {v(pa[j,rt],4)}, {v(V_SEL+2-2*(rt&1),4)}, {a(AR[hf]+8*x+4*(rt>>1),4)}, {v(pa[j,rt],4)}')
                    self.tick += 1
                    fill(EPK, [ep, None, misc if self.n >= MB else []], k * SW)
            if hf == 0: due.append((self.n + 1, send()))
        self.sent = None
        def send():
            c = [pa[3, rt] for rt in range(4)]
            q = []
            for k in range(3):
                q += [f'v_cvt_pk_bf16_f32 {v(c[k]+i)}, {v(c[k]+2*i)}, {v(c[k]+2*i+1)}' for i in range(2)]
                q.append(f'v_cvt_pk_bf16_f32 {v(c[k]+2)}, {v(c[3]+2*k)}, {v(c[3]+2*k+1)}' if k < 2 else f'v_mov_b32 {v(c[k]+2)}, {s(S_LT)}')
                q.append(f'v_mov_b32 {v(c[k]+3)}, {s(S_LT)}')
            def st():
                A(f's_xor_b32 {s(S_PS)}, {s(S_PQ)}, {(4<<16)|8192}')
                for k in range(3): A(f'buffer_store_dwordx4 {v(c[k],4)}, {v(V_L16)}, {s(SRD_WS,4)}, {s(S_PS)} offen offset:{k*1024} sc1')
                self.sent = A.nvm
                slots.extend(pa[3, rt] for rt in (3, 0, 1, 2))
                if o.get('fine') == 2: self.stamp(f'sent n{self.n-N3}')
            return q + [st]
        def flag(js):
            while self.nst < 7: self.emit(ep.pop(0))
            A(f's_and_b32 {s(S_T0)}, {s(S_Q)}, 3\ns_lshl1_add_u32 {s(S_T0)}, {s(S_T0)}, {s(S_ODD)}\ns_lshl3_add_u32 {s(S_T0)}, {s(S_T0)}, {s(S_FLA)}')
            A.wait(vm=self.rst)
            A('s_mov_b64 exec, 1')
            def fl(sc):
                if sc and RSP:
                    assert self.n <= N3 + 32 and (4, 0) not in RF
                    A.snap(); on = A.on; A.on = False
                    A('s_mov_b64 exec, -1')
                    for rt in range(4): A(f'buffer_store_dwordx4 {v(acc[0,rt],4)}, {v(V_L16)}, {s(SRD_WS,4)}, {s(S_PQ)} offen offset:{rt*1024} sc1')
                    hi23()
                    A('s_waitcnt vmcnt(0)\ns_mov_b64 exec, 1')
                    A.on = on; A.unsnap()
                A(f'buffer_store_dwordx2 {v(V_TAG,2)}, off, {s(SRD_WS,4)}, {s(S_T0)}{sc}')
            dual(fl)
            A('s_mov_b64 exec, -1')
        def hi23():
            A(f's_add_u32 {s(S_PS)}, {s(S_PQ)}, 4096')
            for k, c in enumerate((acc[2, 0], acc[2, 2], acc[3, 0])): A(f'buffer_store_dwordx4 {v(c,4)}, {v(V_L16)}, {s(SRD_WS,4)}, {s(S_PS)} offen offset:{k*1024} sc1')
        def clean(js):
            if 0 in js:
                assert sw.get((4, 0), True) and sw.get((4, 1), True) and ((4, 0) not in RF or ((4, 0) in sw and (4, 1) in sw))
                hi23(); slots.append(acc[3, 0])
            if 1 in js:
                A(f's_xor_b32 {s(S_PS)}, {s(S_PQ)}, {1<<16}')
                A.wait(vm=rv[1, 3])
                for rt in range(4): A(f'buffer_store_dwordx4 {reg(RF[1,rt])}, {v(V_L16)}, {s(SRD_WS,4)}, {s(S_PS)} offen offset:{rt*1024} sc1')
            if 2 in js: slots.append(acc[3, 0])
            if 3 in js:
                LS = A.newlabel('nwb')
                A(f's_lshr_b32 {s(S_T0)}, s2, 3\ns_lshl2_add_u32 {s(S_T0)}, {s(S_T0)}, {s(S_W)}\ns_cmp_lg_u32 {s(S_T0)}, {o.get("wbw", 0)}\ns_cbranch_scc1 {LS}')
                LJ = A.newlabel('wj')
                A.snap(); A('buffer_wbl2 sc1'); A(f's_branch {LJ}'); A.label(LS); A.unsnap()
                A(f'buffer_load_dword {v(V_PL)}, off, {s(SRD_WS,4)}, {s(S_FLA)}'); A.label(LJ)
        pm = {}; V_PL = V_ONES
        def pissue(js):
            A(f'buffer_load_dwordx2 {v(V_PL,2)}, {v(V_FC)}, {s(SRD_WS,4)}, {s(S_FLA)} offen sc1')
            pm[js] = A.nvm
        def pcheck(js):
            if js not in pm: pissue(js)
            Lp = A.newlabel('poll'); D = A.newlabel('polld')
            A.wait(vm=pm[js])
            A.on = False
            A(f'v_cmp_ne_u64 vcc, {v(V_PL,2)}, {v(V_TAG,2)}\ns_mov_b32 {s(S_CNT)}, 0x20000\ns_cbranch_vccz {D}')
            A.snap()
            A.label(Lp)
            A(f'''
            buffer_load_dwordx2 {v(V_PL,2)}, {v(V_FC)}, {s(SRD_WS,4)}, {s(S_FLA)} offen sc1
            s_sub_u32 {s(S_CNT)}, {s(S_CNT)}, 1
            s_cbranch_scc1 {D}
            s_waitcnt vmcnt(0)
            v_cmp_ne_u64 vcc, {v(V_PL,2)}, {v(V_TAG,2)}
            s_cbranch_vccnz {Lp}
            ''')
            A.label(D)
            A.unsnap()
            A.on = True
        PD = []
        def pload(js=None):
            if not PD: PD.extend(slots.pop(0) for _ in range(3))
            A(f's_add_u32 {s(S_PS)}, {s(S_PQ)}, 8192')
            for k in range(3): A(f'buffer_load_dwordx4 {v(PD[k],4)}, {v(V_L16)}, {s(SRD_WS,4)}, {s(S_PS)} offen offset:{k*1024} sc1')
            self.plm = A.nvm
        def kcheck(js):
            assert len(misc) in (0, self.nmisc)
            Lc = A.newlabel('chk'); D = A.newlabel('got')
            t = V_PL
            A(f's_movk_i32 {s(S_CNT)}, 0x4000')
            A.wait(vm=self.plm)
            A.on = False
            A.label(Lc)
            A(f'v_xor_b32 {v(t)}, {s(S_LT)}, {v(PD[0]+3)}')
            for k in (1, 2): A(f'v_bitop3_b32 {v(t)}, {v(t)}, {v(PD[k]+3)}, {s(S_LT)} bitop3:0xf6')
            A(f'v_cmp_ne_u32 vcc, 0, {v(t)}\ns_cbranch_vccz {D}')
            A.snap()
            pload()
            A(f's_sub_u32 {s(S_CNT)}, {s(S_CNT)}, 1\ns_waitcnt vmcnt(0)\ns_cbranch_scc0 {Lc}')
            A.label(D)
            A.unsnap()
            A.on = True
        Q3 = []
        def selq(js=None):
            if Q3: return
            Q3.extend([slots.pop(0), slots.pop(0)])
            for k in range(2):
                for i in range(4): A(f'v_mov_b32 {v(Q3[k]+i)}, {v(V_SEL+2+k) if i == 2 else 0}')
        def zadd(js):
            selq()
            for rt, sel, k in ((3, Q3[0], 0), (0, V_SEL + 2, 0), (1, V_SEL + 2, 1), (2, V_SEL + 2, 2), (3, Q3[1], 1)):
                A(f'v_mfma_f32_16x16x32_bf16 {v(pa[7,rt],4)}, {v(sel,4)}, {v(PD[k],4)}, {v(pa[7,rt],4)}')
        def num(js): return int(''.join(map(str, js)))
        def dforce(js):
            k = 16 + num(js)
            while k not in dt:
                if d_ok(True): d_pop()
                else:
                    assert t_ok(True); t_pop()
        def gbar(js): A('s_barrier'); self.gb = True
        def pwait(js):
            while self.sent is None: self.emit(ep.pop(0))
            A.wait(vm=self.sent)
        V_OO = V_CS + 4
        bs = {}
        def balloc():
            for rt in range(4): bs[rt] = slots.pop(0)
            q = [f'ds_read_u16_d16_hi {v(bs[rt]+r)}, {v(V_BIAS+r)} offset:{rt*1024}' for rt in range(2) for r in range(4)]
            q += [f'v_xor_b32 {v(V_BIAS+r)}, 2048, {v(V_BIAS+r)}' for r in range(4)]
            q += [f'ds_read_u16_d16_hi {v(bs[2+rt]+r)}, {v(V_BIAS+r)} offset:{rt*1024}' for rt in range(2) for r in range(4)]
            def mk(): self.bl = A.nlg
            q += [mk, lambda: A.wait(vm=self.b2m)]
            q += [f'v_lshlrev_b32 {v(V_FIX)}, 16, {v(V_BT)}', f'v_and_b32 {v(V_FIX+1)}, 0xffff0000, {v(V_BT)}',
                  f'v_lshlrev_b32 {v(V_FIX+2)}, 16, {v(V_TD)}', f'v_and_b32 {v(V_FIX+3)}, 0xffff0000, {v(V_TD)}', lambda: A.wait(lg=self.bl)]
            if o.get('bz', 1): q += [f'v_and_b32 {v(bs[rt]+r)}, 0xffff0000, {v(bs[rt]+r)}' for rt in range(4) for r in range(4)]
            q += [f'v_add_f32 {v(bs[rt]+r)}, {v(bs[rt]+r)}, {v(V_FIX+r)}' for rt in range(4) for r in range(4)]
            misc.extend(q)
        def spread(d, e):
            return L(f'''
            v_and_b32 v7, 0xc0, {v(e)}
            v_lshl_add_u32 {v(d)}, v7, 8, {v(V_BIAS+3)}
            v_and_b32 v7, 0x20, {v(e)}
            v_lshl_add_u32 {v(d)}, v7, 7, {v(d)}
            v_and_b32 v7, 0x18, {v(e)}
            v_lshl_add_u32 {v(d)}, v7, 5, {v(d)}
            v_and_b32 v7, 7, {v(e)}
            v_lshl_add_u32 {v(d)}, v7, 1, {v(d)}
            ''')
        def b2ld():
            A(f'buffer_load_dwordx2 {v(V_BT,2)}, {v(V_FIX)}, {s(SRD_B2,4)}, 0 offen'); self.b2m = A.nvm
        mis0 = L(f'''
        s_lshl2_add_u32 {s(S_T1)}, {s(S_Q)}, {s(S_W)}
        s_lshl_b32 {s(S_T1)}, {s(S_T1)}, 4
        v_lshl_add_u32 v6, {v(V_G)}, 2, {s(S_T1)}
        v_lshlrev_b32 {v(V_FIX)}, 1, v6
        ''') + [b2ld] + L(f'''
        v_and_b32 {v(V_FC)}, 7, {v(V_LANE)}
        v_lshlrev_b32 {v(V_FC)}, 3, {v(V_FC)}
        s_andn2_b32 {s(S_T2)}, 4, {s(S_Q)}
        s_xor_b32 {s(S_T3)}, {s(S_W)}, 3
        s_lshl3_add_u32 {s(S_T2)}, {s(S_T3)}, {s(S_T2)}
        s_lshl_b32 {s(S_T2)}, {s(S_T2)}, 11
        v_add_u32 {v(V_IB)}, {s(S_T2)}, {v(V_L16)}
        s_and_b32 {s(S_T3)}, {s(S_Q)}, 4
        s_add_u32 {s(S_T2)}, {s(S_T3)}, {s(S_ODD)}
        s_lshl_b32 {s(S_T2)}, {s(S_T2)}, 11
        v_lshl_add_u32 {v(V_BIAS+3)}, {v(V_L15)}, 4, {s(S_T2)}
        s_cmp_ge_u32 {s(S_Q)}, 4 @@ s_cselect_b64 vcc, -1, 0
        v_sub_u32 {v(V_FIX+1)}, 512, v6
        v_cndmask_b32 {v(V_FIX+1)}, v6, {v(V_FIX+1)}, vcc
        v_subrev_u32 {v(V_FIX+2)}, {s(S_T3)}, {v(V_FIX+1)}
        ''') + spread(V_BIAS, V_FIX + 1) + spread(V_BIAS + 2, V_FIX + 2) + L(f'''
        s_add_u32 {s(S_T2)}, {s(S_T3)}, 2
        v_add_u32 {v(V_BIAS+1)}, {s(S_T2)}, {v(V_BIAS+2)}
        v_xor_b32 {v(V_BIAS+3)}, 4, {v(V_BIAS+1)}
        v_add_u32 {v(V_BIAS+2)}, 4, {v(V_BIAS+2)}
        v_lshrrev_b32 v6, 5, {v(V_LANE)}
        v_lshlrev_b32 v6, 4, v6
        s_lshl_b32 {s(S_T1)}, {s(S_T1)}, 1
        v_add_u32 v6, {s(S_T1)}, v6
        v_sub_u32 v7, 2048, {v(V_TT)}
        v_cmp_eq_u32 vcc, 0, {v(V_TT)}
        v_mov_b32 {v(V_OO)}, 1024
        v_cndmask_b32 v7, v7, {v(V_OO)}, vcc
        s_cmp_eq_u32 {s(S_ODD)}, 1 @@ s_cselect_b64 vcc, -1, 0
        v_cndmask_b32 {v(V_OO)}, {v(V_TT)}, v7, vcc
        v_cndmask_b32 {v(V_OO+1)}, v7, {v(V_TT)}, vcc
        v_lshl_add_u32 {v(V_OO)}, {v(V_OO)}, 10, v6
        v_lshl_add_u32 {v(V_OO+1)}, {v(V_OO+1)}, 10, v6
        ''')
        misc = [balloc]
        ev = {}
        tail = []
        EV = {'f': flag, 'i': pissue, 'c': pcheck, 'l': rload, 'd': dforce, 't': lambda js: ensure(16 + num(js)), 'b': gbar,
              'm': lambda js: self.flush(misc), 'e': lambda js: (self.flush(ep), self.flush(m0)), 'q': selq, 'r': rbar, 'a': radd, 'v': pload, 'k': kcheck, 'z': zadd, 'w': pwait, 'x': clean, 'y': lambda js: setattr(self, 'lat', num(js)), 'p': lambda js: print('at', self.n - N3, 'dq', len(dq), 'tq', len(tq), 'ep', len(ep), 'nst', self.nst, 'slots', len(slots), 'nrd', nrd), 'h': lambda js: setattr(self, 'hold', bool(js[0]))}
        for e in o.get('ev', 'e0@32.F0@32.b0@32.C0@32.L123456@32.r0@134.a0@142.q0@190.v0@215.R1.a1.K0.z0').split('.'):
            js = tuple(int(ch) for ch in e.split('@')[0][1:])
            fn = EV[e[0].lower()]
            if '@' in e: ev.setdefault(N3 + int(e.split('@')[1]), []).append((e, fn, js))
            else: tail.append((e, fn, js))
        MB = N3 + o.get('misc0', 150); self.nmisc = len(misc)
        m0 = []; hq = []
        it = {x: k for k, x in enumerate(self.items)}
        for n, m in enumerate(ml):
            self.n = n
            if n == N3:
                self.stamp('p3 mfma done')
                print('last left: ep', len(ep), 'dq', len(dq), 'tq', len(tq), 'tick', self.tick)
                self.blk = 16
                if not GO: slots.extend(fr[b, rt] for b in LB for rt in range(4)); slots.extend(BF)
                slots.extend([V_CS + 8, V_CS + 12])
            if n == N3 + 2: m0 = mis0
            for e, fn, js in ev.get(n, []):
                fn(js)
                if e[0].isupper(): self.stamp(e.split('@')[0] + f' d{len(dq)} t{len(tq)}')
            k = 0
            if m[0] == 'a':
                _, t, rt, b = m
                if GO:
                    while nrd < 16 and RD[4 * nrd][1] <= rt + 1 and len(slots) - sum(callable(x) for x in hq) >= 4: hq += hrd(nrd); nrd += 1
                    if b < 16:
                        while (b, rt) not in fr: self.emit(hq.pop(0))
                        k = A.wait(lg=fl_[b, rt])
                    elif t not in csd:
                        print('correction', t, 'q2', len(q2), 'cs', len(csl))
                        self.flush(q2)
                        while t not in csd: self.emit(csl.pop(0))
                    if t == GO[rt][-1]: slots.append(fr[b, rt] if b < 16 else BF[rt])
                    if b == 16: due.append((n + 2, epi(t, rt >> 1, [rt])))
                if b < 16: mm(t, rt, b, fr[b, rt])
                else: A(f'v_mfma_f32_16x16x32_bf16 {v(acc[t,rt],4)}, {v(V_CS+4*t,4)}, {v(BF[rt],4)}, {v(acc[t,rt],4)}')
                if b == 16 and rt & 1 and not GO: due.append((n + 2, epi(t, rt >> 1)))
            else:
                _, j, ks, rt = m
                b = it[j >> 2, ks]
                ensure(16 + b)
                while (ks, rt) not in RF: self.emit(ep.pop(0))
                rswap(ks, rt >> 1)
                k = A.wait(vm=rv.get((ks, rt)), lg=self.trl[16 + b])
                if ks == 0: pa[j, rt] = slots.pop(0)
                c = v(pa[j, rt], 4)
                A(f'v_mfma_f32_16x16x32_bf16 {c}, {a(16*b+4*(j&3),4)}, {reg(RF[ks,rt])}, {c if ks else "0"}')
                cnt[j, rt] = cnt.get((j, rt), 0) + 1
                use[ks, rt] = use.get((ks, rt), 0) + 1
                if use[ks, rt] == 8 and RF[ks, rt][0] == 'v': slots.append(RF[ks, rt][1])
                if rt == 3 and cnt[j, rt] == 7 and j & 3 < 3: due.append((n + 2, red(j)))
                if o.get('fine') == 2 and n - N3 in (32, 48, 64, 80, 96, 127, 176): self.stamp(f'n{n-N3} d{len(dq)} t{len(tq)}')
            self.tick += 1
            while due and due[0][0] <= n: ep += due.pop(0)[1]
            fill(EPK if n >= N3 else o.get('epk3', 22) / 10, [q2, ep, csl, hq, None, m0, misc if n >= MB else []], k * SW)
            if SB0 is not None and not q2 and not csl: slots.extend([SB0, SB1, SQ[1]]); SB0 = None
        print('dt', {k: x for k, x in dt.items() if x > -999}); print('tt', {k: x for k, x in tt_.items() if x > -999})
        print('end left: ep', len(ep), 'misc', len(misc), 'dq', len(dq), 'tq', len(tq), 'slots', len(slots))
        self.flush(ep)
        if not any(e[0] in 'mM' for e, _, _ in tail): self.flush(misc)
        self.stamp('p4 mfma done')
        for e, fn, js in tail:
            fn(js)
            if e[0].isupper(): self.stamp(e)
        for rt in range(4):
            for k in range(0, 4, 2):
                A(f'v_pk_fma_f32 {v(pa[7,rt]+k,2)}, {v(pa[7,rt]+k,2)}, {v(RS+(rt&2),2)}, {v(bs[rt]+k,2)} op_sel:[0,{rt&1},0] op_sel_hi:[1,{rt&1},1]')
        self.flush(pack(7))
        for k in range(2):
            c = pa[7, 2 * k]
            A(f'v_permlane16_swap_b32 {v(c)}, {v(c+2)}\nv_permlane16_swap_b32 {v(c+1)}, {v(c+3)}')
            A(f'buffer_store_dwordx4 {v(c,4)}, {v(V_OO+k)}, {s(SRD_OUT,4)}, 0 offen{self.outf}')

    def probe_end(self):
        A = self.A
        a_, b_ = self.opt['probe'].split('-')
        if b_ == 'end':
            A('s_waitcnt vmcnt(0)'); self.stamp('end')
        A(f'''
        s_waitcnt lgkmcnt(0)
        s_sub_u32 {s(S_T0)}, {s(S_TS+4)}, {s(S_TS if a_ == 'start' else S_TS+2)}
        s_lshr_b32 {s(S_T0)}, {s(S_T0)}, {4 if self.opt.get('pcyc') else 0}
        s_min_u32 {s(S_T0)}, {s(S_T0)}, 4000
        s_lshl_b32 {s(S_T0)}, {s(S_T0)}, 2
        s_add_u32 {s(S_T0)}, {s(S_T0)}, 4000
        s_add_u32 {s(S_T0)}, {s(S_T0)}, {s(S_TS)}
        L_pspin:
        s_memrealtime {s(S_TS+6,2)}
        s_waitcnt lgkmcnt(0)
        s_sub_u32 {s(S_T1)}, {s(S_TS+6)}, {s(S_T0)}
        s_cmp_lt_i32 {s(S_T1)}, 0
        s_cbranch_scc1 L_pspin
        ''')

    def dump_ts(self):
        if self.opt.get('probe'): return self.probe_end()
        if not self.diag: return
        A = self.A
        A('s_waitcnt vmcnt(0)')
        self.stamp('end')
        A(f'''
        s_lshl_b32 {s(S_T0)}, s2, 2
        s_add_u32 {s(S_T0)}, {s(S_T0)}, {s(S_W)}
        s_lshl_b32 {s(S_T0)}, {s(S_T0)}, 7
        s_add_u32 {s(S_T0)}, {s(S_T0)}, {WS_TS}
        s_getreg_b32 {s(S_T1)}, hwreg(HW_REG_XCC_ID)
        s_waitcnt lgkmcnt(0)
        s_mov_b64 exec, 1
        ''')
        for i in range(20): A(f'v_mov_b32 {v(16+i)}, {s(S_TS+2*i) if i < len(self.names) else 0}')
        A(f'v_mov_b32 v40, {s(S_T1)}')
        A(f'v_mov_b32 v41, {s(S_FAST)}')
        for i in range(5):
            A(f'buffer_store_dwordx4 {v(16+4*i,4)}, off, {s(SRD_WS,4)}, {s(S_T0)} offset:{16*i}')
        A(f'buffer_store_dwordx2 v[40:41], off, {s(SRD_WS,4)}, {s(S_T0)} offset:80')

    def build(self):
        A = self.A
        self.p1()
        self.window()
        self.p23()
        A.on = False
        self.dump_ts()
        if self.opt.get('sched', 1):
            import sched
            A = sched.run(A.prog, self.opt.get('win', 20))
            r = A.report
            print('model:', ' | '.join(f'{r[i][0]} {r[i][1]-r[i-1][1]}' for i in range(1, len(r))))
            self.A = A
        hdr = f'''; FNet (2D DFT, factored) + LayerNorms + squared-ReLU FFN, one persistent launch.
; @launch grid=(256,1,1) block=(256,1,1) lds=163840
''' + (f'; names: {",".join(self.names)}\n' if self.diag else '') + f'''.amdgcn_target "amdgcn-amd-amdhsa--gfx950"
.text
.globl {KNAME}
{self.align()}.p2align 8
.type {KNAME},@function
{KNAME}:
'''
        ftr = f'''L_end:
    s_endpgm
.section .rodata,"a"
.p2align 6
.amdhsa_kernel {KNAME}
  .amdhsa_next_free_vgpr 512
  .amdhsa_next_free_sgpr 102
  .amdhsa_accum_offset 256
  .amdhsa_group_segment_fixed_size 0
  .amdhsa_kernarg_size 104
  .amdhsa_user_sgpr_count 2
  .amdhsa_user_sgpr_kernarg_segment_ptr 1
  .amdhsa_system_sgpr_workgroup_id_x 1
.end_amdhsa_kernel
'''
        import pads
        return hdr + '\n'.join(pads.apply(hdr, A.text().rstrip('\n').split('\n'), ftr, self.opt, S_W)) + '\n' + ftr

if __name__ == '__main__':
    out = sys.argv[1]
    opt = {}
    for x in sys.argv[2:]:
        if '=' in x:
            k, val = x.split('='); opt[k] = int(val) if val.lstrip('-').isdigit() else val.replace('_', ' ')
    g = Gen(diag='diag' in sys.argv[2:], opt=opt)
    t = g.build()
    open(out, 'w').write(t)
    print('nops inserted', g.A.nops, 'stamps', len(g.names))
```

```python
import re

TRANS = ('v_exp_f32','v_log_f32','v_rcp_f32','v_rsq_f32','v_sqrt_f32','v_sin_f32','v_cos_f32','v_rcp_iflag_f32')

def _regs(tok):
    tok = tok.strip()
    tok = tok.lstrip('-')
    if tok.startswith('|') and tok.endswith('|'): tok = tok[1:-1]
    if tok.startswith('abs(') and tok.endswith(')'): tok = tok[4:-1]
    m = re.fullmatch(r'([vas])(\d+)', tok)
    if m: return [(m.group(1), int(m.group(2)))]
    m = re.fullmatch(r'([vas])\[(\d+):(\d+)\]', tok)
    if m: return [(m.group(1), i) for i in range(int(m.group(2)), int(m.group(3)) + 1)]
    if tok in ('vcc',): return [('s', 106), ('s', 107)]
    if tok == 'vcc_lo': return [('s', 106)]
    if tok == 'vcc_hi': return [('s', 107)]
    if tok == 'exec': return [('s', 126), ('s', 127)]
    if tok == 'm0': return [('s', 124)]
    return []

class Ins:
    def __init__(self, text):
        self.text = text
        t = text.split(';')[0].strip()
        parts = t.split(None, 1)
        self.op = parts[0]
        rest = parts[1] if len(parts) > 1 else ''
        ops = []; depth = 0; cur = ''
        for ch in rest:
            if ch in '[(': depth += 1
            if ch in '])': depth -= 1
            if ch == ',' and depth == 0:
                ops.append(cur.strip()); cur = ''
            else: cur += ch
        if cur.strip(): ops.append(cur.strip())
        self.mods = ''
        if ops:
            l = ops[-1].split(None, 1)
            ops[-1] = l[0]
            if len(l) > 1: self.mods = l[1]
        self.ops = ops
        op = self.op
        self.is_mfma = op.startswith(('v_mfma', 'v_smfmac')); self.sparse = op.startswith('v_smfmac')
        self.is_valu = op.startswith('v_') and not self.is_mfma
        self.is_salu = op.startswith('s_') and not op.startswith(('s_load', 's_buffer_load', 's_memtime', 's_memrealtime', 's_waitcnt', 's_nop', 's_barrier', 's_branch', 's_cbranch', 's_endpgm', 's_sleep', 's_setprio', 's_atomic'))
        self.is_vmem = op.startswith(('buffer_', 'global_', 'flat_'))
        self.is_ds = op.startswith('ds_')
        self.is_trans = any(op.startswith(x) for x in TRANS)
        self.is_dot = op.startswith('v_dot')
        self.is_dpp = ('_dpp' in op) or ('row_' in self.mods) or ('quad_perm' in self.mods)
        self.is_perml = op.startswith('v_permlane')
        self.is_rdl = op.startswith(('v_readfirstlane', 'v_readlane'))
        self.lds_dma = self.is_vmem and (re.search(r'\blds\b', self.mods) is not None or 'load_lds' in op)
        R = [_regs(o) for o in ops]
        d, u = [], []
        self.srcA = self.srcB = self.srcC = []
        self.wide_store = []
        if self.is_mfma:
            d = R[0]; self.srcA = R[1]; self.srcB = R[2]; self.srcC = R[3]; u = R[1] + R[2] + R[3]
            if self.sparse: self.srcB = R[2] + R[3]; self.srcC = R[0]; u = u + R[0]; assert '16x16x64_bf16' in op
            if '16x16x32' in op or '16x16x16' in op or self.sparse: self.passes = 4; self.xdl = True
            elif '32x32x16' in op or '32x32x8' in op: self.passes = 8; self.xdl = True
            elif '16x16x4_f32' in op: self.passes = 8; self.xdl = False
            elif '32x32x2_f32' in op: self.passes = 16; self.xdl = False
            else: raise ValueError(op)
        elif self.is_valu:
            if op.startswith('v_cmp'):
                d = R[0]; u = sum(R[1:], [])
                if op.startswith('v_cmpx'): d = d + _regs('exec')
            elif (self.is_perml and 'swap' in op) or op.startswith('v_swap'):
                d = R[0] + R[1]; u = R[0] + R[1]
            elif re.match(r'v_(add|sub|subrev)_co_u32', op) or op.startswith('v_mad_u64_u32'):
                d = R[0] + R[1]; u = sum(R[2:], [])
            elif re.match(r'v_(addc|subb)_co_u32', op):
                d = R[0] + R[1]; u = sum(R[2:], [])
            elif op == 'v_nop':
                pass
            else:
                d = R[0]; u = sum(R[1:], [])
                if op.startswith(('v_fmac', 'v_dot2c', 'v_pk_fmac', 'v_writelane')) or self.is_dpp or 'UNUSED_PRESERVE' in self.mods:
                    u = u + R[0]
                if op.startswith('v_cndmask') and len(ops) == 3: u = u + _regs('vcc')
        elif self.is_vmem:
            if self.lds_dma:
                u = sum(R, []) + _regs('m0')
            elif 'load' in op:
                d = R[0]; u = sum(R[1:], [])
                if 'd16' in op: u = u + R[0]
            elif 'store' in op:
                u = sum(R, [])
                if 'x4' in op or 'x3' in op:
                    self.wide_store = R[0] if op.startswith('buffer') else R[1]
            elif 'atomic' in op:
                u = sum(R, [])
                if 'sc0' in self.mods: d = R[0]
            else:
                pass
        elif self.is_ds:
            if op.startswith(('ds_read', 'ds_bpermute', 'ds_permute', 'ds_swizzle')):
                d = R[0]; u = sum(R[1:], [])
            else:
                u = sum(R, [])
        elif op.startswith(('s_load', 's_buffer_load', 's_memtime', 's_memrealtime')):
            d = R[0]; u = sum(R[1:], [])
        elif self.is_salu:
            if op.startswith('s_cmp') or op.startswith('s_bitcmp'):
                u = sum(R, [])
            else:
                d = R[0] if R else []; u = sum(R[1:], [])
                if 'saveexec' in op: d = d + _regs('exec')
        self.defs = set(d); self.uses = set(u)
        self.states = 1
        if op == 's_nop': self.states = int(ops[0], 0) + 1

def need(p, c):
    n = 0
    pv = {r for r in p.defs if r[0] in 'va'}
    ps = {r for r in p.defs if r[0] == 's'}
    if p.is_valu:
        if c.is_mfma and pv & c.uses: n = max(n, 3 if p.is_dot else 2)
        if p.is_trans and c.is_valu and not c.is_trans and pv & c.uses: n = max(n, 1)
        if p.is_trans and c.is_valu and c.is_trans and pv & c.uses: n = max(n, 1)
        if c.is_rdl and pv & c.uses: n = max(n, 1)
        if c.is_perml and pv & c.uses: n = max(n, 2)
        if c.is_dpp and pv & c.uses: n = max(n, 2)
        if ps:
            if c.is_valu and ps & c.uses: n = max(n, 4 if (c.is_rdl or c.op.startswith('v_writelane')) else 2)
            if c.is_vmem and ps & c.uses: n = max(n, 5)
            if ('s', 126) in ps:
                if c.is_mfma or c.is_perml or c.is_rdl: n = max(n, 4)
                if c.is_dpp: n = max(n, 5)
            if c.is_salu and ps & c.uses: n = max(n, 1)
        if p.is_dot and (pv & (c.uses | c.defs)):
            if c.op == p.op:
                srcs = set(sum([_regs(o) for o in c.ops[1:3]], []))
                if pv & srcs: n = max(n, 3)
            else: n = max(n, 3)
        if ('sdwa' in p.op and 'dst_sel:DWORD' not in p.mods) or ('op_sel:' in p.mods and not p.op.startswith('v_pk')):
            if c.is_valu and pv & (c.uses | c.defs): n = max(n, 1)
    if p.is_salu and ('s', 124) in ps and c.lds_dma: n = max(n, 1)
    if p.wide_store and set(p.wide_store) & c.defs:
        n = max(n, 2 if c.is_valu else 1)
    if p.is_mfma:
        P = {2: 0, 4: 1, 8: 2, 16: 3}[p.passes]
        if c.is_mfma:
            if pv & (set(c.srcA) | set(c.srcB)):
                n = max(n, ([5, 8, 12, 20] if p.xdl else [4, 6, 10, 18])[P])
            if pv & set(c.srcC):
                same = (sorted(pv) == sorted(c.srcC)) and c.passes == p.passes and c.xdl == p.xdl
                if same: n = max(n, [2, 0, 0, 0][P])
                elif p.xdl: n = max(n, [4, 6, 10, 18][P])
                elif c.xdl: n = max(n, 0)
                else: n = max(n, [2, 4, 8, 16][P])
            elif pv & c.defs:
                n = max(n, [4, 6, 10, 18][P])
        else:
            if pv & (c.uses | c.defs) and (c.is_valu or c.is_vmem or c.is_ds):
                n = max(n, ([5, 8, 12, 20] if p.xdl else [4, 6, 10, 18])[P] + p.sparse)
            if p.xdl and c.is_valu and set(p.srcC) & c.defs:
                n = max(n, [1, 3, 7, 15][P])
    return n

HZ = [0]
def required(hist, c):
    dist = 0; req = 0; nm = None
    for p in reversed(hist):
        if HZ[0] and p.is_mfma:
            if nm is not None: dist = max(dist, nm + p.passes - 1)
            nm = dist + 1
        n = need(p, c)
        if n - dist > req: req = n - dist
        dist += p.states
        if dist >= 20: break
    return req

class Asm:
    def __init__(self):
        self.lines = []
        self.hist = []
        self.nops = 0
        self.uid = 0
    def raw(self, s):
        self.lines.append(s)
    def label(self, name):
        self.lines.append(name + ':')
    def newlabel(self, base):
        self.uid += 1
        return f'L_{base}_{self.uid}'
    def comment(self, s):
        self.lines.append('    ; ' + s)
    def __call__(self, text):
        for t in text.strip().split('\n'):
            t = t.strip()
            if not t or t.startswith(';'): continue
            if t.endswith(':'): self.label(t[:-1]); continue
            self.i(t)
    def i(self, text):
        c = Ins(text)
        req = required(self.hist, c)
        while req > 0:
            k = min(req, 16)
            nop = Ins(f's_nop {k-1}')
            self.lines.append(f'    s_nop {k-1}'); self.hist.append(nop); self.nops += 1
            req -= k
        self.lines.append('    ' + text); self.hist.append(c)
        if len(self.hist) > 64: self.hist = self.hist[-40:]
    def quiesce(self, n=20):
        while n > 0:
            k = min(n, 16); self.i(f's_nop {k-1}'); n -= k
    def text(self):
        return '\n'.join(self.lines) + '\n'

def v(i, n=1): return f'v{i}' if n == 1 else f'v[{i}:{i+n-1}]'
def a(i, n=1): return f'a{i}' if n == 1 else f'a[{i}:{i+n-1}]'
def s(i, n=1): return f's{i}' if n == 1 else f's[{i}:{i+n-1}]'
import struct
def f2u(x): return '0x%08x' % struct.unpack('<I', struct.pack('<f', x))[0]
```

```python
import re
def apply(body, spec):
    out = list(body); tail = []
    def find(pat, start=0):
        for i in range(start, len(out)):
            if re.match(pat, out[i].strip()): return i
        return -1
    polls = [l.split()[1] for l in out if re.match(r's_cbranch_vccz L_polld_', l.strip())]
    for ch, lab in zip('pq', polls):
        if ch not in spec: continue
        i = find(r's_cbranch_vccz ' + lab + '$'); j = find(lab + ':', i)
        assert out[i-1].strip().startswith('s_mov_b32 s36') and out[i+1].strip().startswith('L_poll_')
        tail += [f'{lab}_o:', out[i-1]] + out[i+1:j] + [f'    s_branch {lab}']
        out[i-1:j] = [f'    s_cbranch_vccnz {lab}_o']
    if 'e' in spec:
        i = find(r's_cbranch_scc1 L_noe_'); lab = out[i].split()[1]; j = find(lab + ':', i)
        tail += [f'{lab}_o:'] + out[i+1:j] + [f'    s_branch {lab}']
        out[i:j] = [f'    s_cbranch_scc0 {lab}_o']
    if 'd' in spec:
        i = find(r's_cbranch_scc1 L_slow_'); lab = out[i].split()[1]; j = find(lab + ':', i)
        dj = out[j-1].split()[1]; k = find(dj + ':', j)
        tail += out[j:k] + [f'    s_branch {dj}']
        out[j-1:k] = []
    if 'g' in spec:
        c = find(r'L_chk_'); i = find(r's_cbranch_vccz L_got_', c); lab = out[i].split()[1]; j = find(lab + ':', i)
        assert out[c-2].strip().startswith('s_movk_i32 s36') and out[j-1].strip().startswith('s_cbranch_scc0 L_chk_')
        chk = out[c+1:i]
        tail += [f'{lab}_o:', out[c-2], f'{lab}_r:'] + out[i+1:j-1] + [f'    s_cbranch_scc1 {lab}'] + chk + [f'    s_cbranch_vccnz {lab}_r', f'    s_branch {lab}']
        out[i:j] = [f'    s_cbranch_vccnz {lab}_o']
        del out[c]; del out[c-2]
    return out, tail
```

```python
import re
from asmlib import Ins, need, Asm

EXEC = {('s', 126), ('s', 127)}
def klass(c):
    if c.is_mfma: return 'M'
    if c.op == 's_waitcnt': return 'W'
    if c.is_vmem: return 'G'
    if c.is_ds: return 'D'
    if c.is_valu: return 'V'
    return 'S'
def parse_wait(text):
    vm = re.search(r'vmcnt\((\d+)\)', text); lg = re.search(r'lgkmcnt\((\d+)\)', text)
    return (int(vm.group(1)) if vm else None, int(lg.group(1)) if lg else None)

class Clock:
    def __init__(s):
        s.t = 0; s.vec = 0; s.pipe = 0; s.lastv = -99; s.lds = 0; s.lastw = -99
    def plan(s, c, k, nop=0):
        t = s.t + (max(4, nop) if nop else 0)
        if k == 'M': t = max(t, s.pipe, s.vec); return t, t + 4
        if k in 'SW': return t, t + (max(4, c.states) if c.op == 's_nop' else 4)
        if k == 'V':
            t = max(t, s.vec); return t, t + (8 if (c.is_trans or (c.op.startswith('v_pk_') and 'f32' in c.op)) else 4)
        if k == 'G': t = max(t, s.lastv + 8); return t, t + 12
        t = max(t, s.vec, s.lastv + 12, s.lds - 24)
        if 'write' in c.op:
            if 'b128' in c.op: t = max(t, s.lastw + 52); return t, t + 20
            return t, t + 8
        t = max(t, s.lastw + 40)
        return t, t + 4
    def do(s, c, k, nop=0):
        t, e = s.plan(c, k, nop)
        s.t = e
        if k == 'M': s.pipe = t + 4 * c.passes; s.vec = t + (12 if c.sparse else 8)
        if k == 'V': s.lastv = e - 4
        if k == 'D':
            cost = 16 if 'b128' in c.op else 8
            if 'write' in c.op and 'b128' in c.op: s.lastw = t
            s.lds = max(s.lds, t) + cost
        return t

from asmlib import required as nops_needed

def schedule(lines, pend, hist, clk, win=20, verbose=None):
    I = [Ins(x) for x in lines]; K = [klass(c) for c in I]; n = len(I)
    uses = []; defs = []
    for c, k in zip(I, K):
        u = set(c.uses); d = set(c.defs)
        if k in 'MVDG': u |= EXEC
        if 'exec_lo' in c.ops[:1] or 'exec_hi' in c.ops[:1]: d |= EXEC
        uses.append(u); defs.append(d)
    dep = [set() for _ in range(n)]
    last = {}
    cnt = {'D': 0, 'G': 0}; idx = {'D': [], 'G': []}
    tgt = {}; cover = []
    lastdef = {}; readers = {}
    mbefore = []; nm = 0
    for j in range(n):
        k = K[j]
        mbefore.append(nm)
        if k == 'M': nm += 1
        if k in last: dep[j].add(last[k])
        last[k] = j
        for r in uses[j]:
            if r in lastdef: dep[j].add(lastdef[r])
        for r in defs[j]:
            if r in lastdef: dep[j].add(lastdef[r])
            dep[j] |= readers.get(r, set())
        for r in uses[j]: readers.setdefault(r, set()).add(j)
        for r in defs[j]: lastdef[r] = j; readers[r] = set()
        if k in 'DG' and 'W' in last: dep[j].add(last['W'])
        for w, regs in cover:
            if regs & (uses[j] | defs[j]): dep[j].add(w)
        if k == 'W':
            vm, lg = parse_wait(lines[j]); regs = set(); tg = {}
            for q, m in (('G', vm), ('D', lg)):
                if m is None: continue
                tg[q] = cnt[q] - m
                if tg[q] > 0: dep[j].add(idx[q][tg[q] - 1])
                while len(pend[q]) > m: regs |= pend[q].pop(0)
            tgt[j] = tg; cover.append((j, regs))
        if k in 'DG':
            cnt[k] += 1; idx[k].append(j); pend[k].append(set(I[j].defs))
        dep[j].discard(j)
    done = [False] * n; out = []; lo = 0; curm = 0
    streams = {k: [j for j in range(n) if K[j] == k] for k in 'MSWGDV'}
    c2 = {'D': 0, 'G': 0}
    t0 = clk.t
    hist = list(hist)
    def put(j):
        nonlocal lo, curm
        k = K[j]; txt = lines[j]
        if k == 'W':
            p = []
            if 'G' in tgt[j]: p.append(f'vmcnt({min(63, c2["G"] - tgt[j]["G"])})')
            if 'D' in tgt[j]: p.append(f'lgkmcnt({min(15, c2["D"] - tgt[j]["D"])})')
            txt = 's_waitcnt ' + ' '.join(p)
        nop = nops_needed(hist, I[j])
        if nop: hist.append(Ins(f's_nop {min(nop, 16) - 1}'))
        clk.do(I[j], k, nop)
        hist.append(I[j]); out.append(txt); done[j] = True
        streams[k].pop(0)
        if k in 'DG': c2[k] += 1
        if k == 'M': curm += 1
        while lo < n and done[lo]: lo += 1
    while lo < n:
        cand = {}
        for k, q in streams.items():
            if not q: continue
            j = q[0]
            if j - lo > win or not all(done[d] for d in dep[j]): continue
            if k == 'W' and mbefore[j] > curm: continue
            if k == 'G' and mbefore[j] > curm + 1: continue
            nop = nops_needed(hist, I[j])
            cand[k] = (j, nop) + clk.plan(I[j], k, nop)
        m = cand.pop('M', None)
        lim = max(clk.pipe, clk.vec) if streams['M'] else None
        fit = [(v[2], {'G': 0, 'W': 1, 'S': 2, 'D': 3, 'V': 4}[k], v[0]) for k, v in cand.items() if lim is not None and v[3] <= lim and not v[1]]
        if fit:
            fit.sort()
            best = fit[0]
            vec = [f for f in fit if f[1] >= 3 and f[0] <= best[0]]
            if best[1] in (1, 2) and vec and min(f[2] for f in vec) < best[2] + 6: best = vec[0]
            put(best[2])
        elif m and not m[1]: put(m[0])
        else:
            if m: cand['M'] = m
            best = min(cand.values(), key=lambda v: (v[2] - clk.t) + 1.0 * (v[0] - lo))
            put(best[0])
    if verbose is not None: verbose.append((n, nm, clk.t - t0))
    return out, hist[-40:]

def run(prog, win=20):
    A = Asm(); clk = Clock(); pend = {'D': [], 'G': []}
    reg = []; stats = []; rep = []
    def flush():
        nonlocal reg
        if reg:
            out, _ = schedule(reg, pend, A.hist, clk, win, stats)
            for x in out: A.i(x)
            reg = []
    depth = None
    for e in prog:
        kind = e[0]
        if kind == 'i':
            c = Ins(e[1])
            plain = e[2] and depth is None and not c.op.startswith(('s_barrier', 's_cbranch', 's_branch', 's_memtime', 's_memrealtime', 's_load', 's_buffer_load', 's_getreg', 's_setprio', 's_sleep', 's_endpgm'))
            if plain: reg.append(e[1]); continue
            flush()
            k = klass(c)
            clk.do(c, k, nops_needed(A.hist, c))
            A.i(e[1])
            if k == 'W':
                vm, lg = parse_wait(e[1])
                if depth is None:
                    for q, m in (('G', vm), ('D', lg)):
                        while m is not None and len(pend[q]) > m: pend[q].pop(0)
            elif k in 'DG' and depth is None: pend[k].append(set(c.defs))
        elif kind == 'snap': flush(); depth = (list(A.hist), dict(clk.__dict__))
        elif kind == 'unsnap': A.hist = depth[0]; clk.__dict__.update(depth[1]); depth = None
        elif kind == 'fence':
            flush(); rep.append((e[1], clk.t))
        elif kind == 'label': flush(); A.label(e[1])
        else: flush(); A.raw(e[1])
    flush()
    A.report = rep
    return A
```

```python
import sys
import sched
from asmlib import *

KNAME = 'sequential_preLN__spectral_fnet__dense_activation_squared_relu__prompt_kernel'
WS_Z, WS_HN, WS_R, WS_ST, WS_FL, WS_TS = 0, 2 << 20, 4 << 20, 12 << 20, 13 << 20, 14 << 20
WS_SIZE = 32 << 20
WS_P2 = 32 << 20
S_LT, S_FLA = 100, 101
WS_P = 16 << 20
FP = WS_ST
F1 = WS_FL + 0x10000
F3 = WS_FL + 0x4000
FX = WS_FL + 0x6000
FX2 = WS_FL + 0x8000
FX3 = WS_FL + 0x40000
FE = WS_FL + 0x7000
HPW = 16384
L_S = 65536
SPW = 20480
L_M = L_S + 4 * SPW
L_EXC, L_XE, L_STAT = L_M, L_M + 8192, L_M + 10240
S_W = 3
S_T0, S_T1, S_T2, S_T3 = 4, 5, 6, 7
SRD_X, SRD_W1, SRD_W2, SRD_OUT, SRD_WS, SRD_B1, SRD_B2 = 8, 12, 16, 20, 24, 28, 32
S_CNT, S_FAST = 36, 37
S_F1 = S_CNT
S_C, S_N, S_U, S_Q = 38, 39, 40, 41
S_TB1, S_ODD, S_TW, S_W2S, S_BG, S_HB0 = 42, 43, 44, 45, 46, 47
S_XO = 48
S_RR = 52
S_FIX = 56
S_AM0, S_TCH = 58, 59
S_M = 60
S_TS = 62
S_HB, S_SB = 0, 1
V_LANE, V_L15, V_G, V_L16, V_TAG = 0, 1, 2, 3, 4
V_L128 = 14
ZF, TB, Y = 16, 80, 192
V_ONES = 144
V_W1U, V_W1D = 148, 152
V_W1R = 156
V_CS = 160
V_SEL = 176
AD_ = 224
V_FXV = 180
V_BT, V_TD = 182, 183
V_FIX = 184
V_ZA = 188
V_IDX = 191
V_TT = 190
V_W2A = 148
V_W2R = 152


SW = 0.4
class TAsm(Asm):
    def __init__(self):
        super().__init__(); self.nvm = 0; self.nlg = 0; self.dvm = 0; self.dlg = 0
        self.prog = []; self.on = False; self.wt = 0; self.clk = None
    def label(self, name): super().label(name); self.prog.append(('label', name))
    def raw(self, t): super().raw(t); self.prog.append(('raw', t))
    def snap(self):
        self._snap = (list(self.hist), self.nvm); self.prog.append(('snap',))
    def unsnap(self):
        self.hist, self.nvm = self._snap; self.prog.append(('unsnap',))
    def i(self, text):
        if getattr(self, 'drop', None) and self.drop(text): return
        super().i(text)
        self.prog.append(('i', text, self.on))
        c = self.hist[-1]
        self.wt += 1 if c.sparse else 0 if c.is_mfma else 2 if c.is_vmem else 4 if c.op == 'ds_write_b128' else 2 if c.is_trans else 1 if (c.is_ds or c.is_valu) else SW
        if self.clk: self.clk.do(c, sched.klass(c))
        if c.is_vmem: self.nvm += 1
        if c.is_ds: self.nlg += 1
    def wait(self, vm=None, lg=None):
        p = []
        if vm is not None and vm > self.dvm:
            n = min(63, self.nvm - vm); p.append(f'vmcnt({n})'); self.dvm = self.nvm - n
        if lg is not None and lg > self.dlg:
            n = min(15, self.nlg - lg); p.append(f'lgkmcnt({n})'); self.dlg = self.nlg - n
        if p: self('s_waitcnt ' + ' '.join(p))
        return 1 if p else 0

def L(txt): return [x.strip().replace(' @@ ', '\n') for x in txt.strip().split('\n') if x.strip()]

class Gen:
    def __init__(self, diag=False, opt=None):
        self.A = TAsm(); self.diag = diag; self.nts = 0; self.names = []
        self.opt = opt or {}
        self.fsh = 4
        fl = lambda k, d: (' ' + self.opt[k]).rstrip() if self.opt.get(k, 'pl') != 'pl' else ('' if k in self.opt else d)
        self.ldf = fl('ldf', ' sc1'); self.outf = fl('outf', ' nt'); self.zldf = fl('zldf', ' sc1'); self.plf = fl('plf', ' sc1'); self.fef = fl('fef', ' sc1'); self.fxf = fl('fxf', ' sc1')
        self.skip = set()
        self.nofence = set(); self.skip = set() if self.opt.get('alls') else {'x first', 'kernarg', 'pre F1'}
        if self.opt.get('alls') == 2: self.skip = {'K0', 'F1 set'}
        if self.opt.get('fine'): self.skip = {'kernarg', 'tables', 'x first', 'gemm1 done', 'Z stores', 'F1 set', 'p2 prepoll', 'pre F1', 'Z first', 'Z landed'}

    def stamp(self, name):
        if self.opt.get('fine') == 3 and not (name.startswith('wd') or name in ('start', 'gemm1 done', 'Z stores', 'pre F1', 'F1 set', 'p2 prepoll', 'p2 polled', 'Z first', 'end')): self.skip.add(name)
        elif self.opt.get('fine') == 3: self.skip.discard(name)
        if name not in self.nofence: self.A.prog.append(('fence', name))
        elif not self.opt.get('allst'): return
        pr = self.opt.get('probe')
        if pr:
            a_, b_ = pr.split('-')
            if name == 'start': self.A(f's_memrealtime {s(S_TS, 2)}')
            ins = 's_memtime' if self.opt.get('pcyc') else 's_memrealtime'
            if name == a_ and name != 'start': self.A(f'{ins} {s(S_TS+2, 2)}')
            if name == b_: self.A(f'{ins} {s(S_TS+4, 2)}')
            return
        if self.opt.get('alls') == 3 and len(self.names) >= 16 and name != 'end': return
        if self.opt.get('only') and name not in ('start', 'end', 'p3 mfma done'): return
        if self.diag and name not in self.skip:
            idx = len(self.names); self.names.append(name)
            assert idx < 19
            self.A(f'{"s_memtime" if self.opt.get("cyc") else "s_memrealtime"} {s(S_TS + 2*idx, 2)}')

    def emit(self, x):
        if callable(x): x()
        else: self.A(x)
    def weave(self, lines, bg, every):
        if isinstance(lines, str): lines = L(lines)
        for n, x in enumerate(lines):
            self.emit(x)
            if bg and (n + 1) % every == 0: self.emit(bg.pop(0))
    def flush(self, bg):
        while bg: self.emit(bg.pop(0))

    def srd(self, base, nbytes):
        self.A(f's_mov_b32 {s(base+2)}, {nbytes}\ns_mov_b32 {s(base+3)}, 0x20000')

    def poll(self, vaddr, nl, vtmp):
        A = self.A
        Lp = A.newlabel('poll'); D = A.newlabel('polld')
        on = A.on; A.on = False
        if nl < 64: A(f's_mov_b64 exec, {(1<<nl)-1}')
        A(f's_mov_b32 {s(S_CNT)}, 0x20000')
        A.label(Lp)
        A(f'buffer_load_dwordx2 {v(vtmp,2)}, {v(vaddr)}, {s(SRD_WS,4)}, 0 offen sc1')
        A(f's_sub_u32 {s(S_CNT)}, {s(S_CNT)}, 1')
        A(f's_cbranch_scc1 {D}')
        A('s_waitcnt vmcnt(0)')
        A(f'v_cmp_ne_u64 vcc, {v(vtmp,2)}, {v(V_TAG,2)}')
        A(f's_cbranch_vccnz {Lp}')
        A.label(D)
        A('s_waitcnt vmcnt(0)')
        A.dvm = A.nvm
        if nl < 64: A('s_mov_b64 exec, -1')
        A.on = on

    def setflag(self, soff, sc):
        A = self.A
        A('s_mov_b64 exec, 1')
        A(f'buffer_store_dwordx2 {v(V_TAG,2)}, off, {s(SRD_WS,4)}, {s(soff)}{sc}')
        A('s_mov_b64 exec, -1')

    def dualflag(self, soff):
        A = self.A
        if self.opt.get('nofast'): return self.setflag(soff, ' sc1')
        LS = A.newlabel('slow'); LJ = A.newlabel('dj')
        A(f's_cmp_eq_u32 {s(S_FAST)}, 0\ns_cbranch_scc1 {LS}')
        A.snap()
        self.setflag(soff, '')
        A(f's_branch {LJ}')
        A.label(LS)
        A.unsnap()
        self.setflag(soff, ' sc1')
        A.label(LJ)

    def touch(self, vd, srd, soff, lanes, fl='', va=V_L128):
        A = self.A
        if lanes < 64: A(f's_mov_b64 exec, {hex((1<<lanes)-1)}' if lanes < 32 else f's_mov_b32 exec_hi, {hex((1<<(lanes-32))-1)}')
        A(f'buffer_load_dword {v(vd)}, {v(va)}, {s(srd,4)}, {s(soff)} offen{fl}')
        if lanes < 64: A('s_mov_b64 exec, -1')
    def w1touch(self, l0, l1):
        A = self.A
        m = ((1 << l1) - 1) & ~((1 << l0) - 1)
        A(f'''
        s_bfe_u32 {s(S_TCH)}, {s(S_TW)}, 0x20004
        s_lshl_b32 {s(S_TCH)}, {s(S_TCH)}, 6
        s_bitcmp1_b32 {s(S_TW)}, 6
        s_cselect_b32 {s(S_BG)}, 257, 32
        s_add_u32 {s(S_TCH)}, {s(S_TCH)}, {s(S_BG)}
        s_and_b32 {s(S_BG)}, {s(S_TW)}, 15
        s_lshl1_add_u32 {s(S_TCH)}, {s(S_BG)}, {s(S_TCH)}
        s_mul_i32 {s(S_TCH)}, {s(S_TCH)}, 3584
        s_mov_b32 exec_lo, {hex(m & 0xffffffff)}
        s_mov_b32 exec_hi, {hex(m >> 32)}
        buffer_load_dword {v(V_TD)}, {v(V_L128)}, {s(SRD_W1,4)}, {s(S_TCH)} offen
        s_mov_b64 exec, -1
        ''')
    def w2touch(self, k):
        A = self.A
        if k is not None:
            LS = A.newlabel('nt'); A(f's_cmp_lg_u32 {s(S_C)}, {k}\ns_cbranch_scc1 {LS}'); A.snap()
        A(f's_mul_i32 {s(S_TCH)}, {s(S_TW)}, {112*128}')
        self.touch(V_TD, SRD_W2, S_TCH, 64)
        A(f's_add_u32 {s(S_TCH)}, {s(S_TCH)}, 8192')
        self.touch(V_TD, SRD_W2, S_TCH, 48)
        if k is not None:
            A.label(LS); A.unsnap()
    def g2touch(self, m, part=None):
        A = self.A
        if m == 1:
            A(f'''
            v_mul_u32_u24 {v(V_BT)}, {3584-2048}, {v(V_G)}
            v_add_u32 {v(V_BT)}, {v(V_BT)}, {v(V_L128)}
            s_lshr_b32 {s(S_TCH)}, {s(S_Q)}, 2
            s_lshl3_add_u32 {s(S_TCH)}, {s(S_TW)}, {s(S_TCH)}
            s_mul_i32 {s(S_TCH)}, {s(S_TCH)}, 1792
            ''')
            if part == 'a': A(f's_and_b32 {s(S_BG)}, s2, 6\ns_lshl_b32 {s(S_BG)}, {s(S_BG)}, 3\ns_lshl_b64 exec, 0x3fff, {s(S_BG)}')
            else: A('s_mov_b32 exec_lo, 0x3fff3fff\ns_mov_b32 exec_hi, 0x3fff3fff')
            A(f'''
            buffer_load_dword {v(V_TD)}, {v(V_BT)}, {s(SRD_W1,4)}, {s(S_TCH)} offen
            s_mov_b64 exec, -1
            ''')
        else:
            A(f"""
            s_lshr_b32 {s(S_BG)}, {s(S_Q)}, 2
            s_lshl_b32 {s(S_BG)}, {s(S_BG)}, 7
            s_add_u32 {s(S_TCH)}, {s(S_TW)}, {s(S_BG)}
            s_mul_i32 {s(S_TCH)}, {s(S_TCH)}, 7168
            """)
            if part == 'a':
                A(f's_and_b32 {s(S_BG)}, s2, 6\ns_mul_i32 {s(S_BG)}, {s(S_BG)}, 896\ns_add_u32 {s(S_TCH)}, {s(S_TCH)}, {s(S_BG)}')
                self.touch(V_TD, SRD_W2, S_TCH, 14)
            else: self.touch(V_TD, SRD_W2, S_TCH, 56)
    def wtouch(self, vd, srd, l0, lanes):
        A = self.A
        A(f's_mul_i32 {s(S_TCH)}, {s(S_TW)}, {lanes*128}\ns_add_u32 {s(S_TCH)}, {s(S_TCH)}, {l0*128*128}')
        self.touch(vd, srd, S_TCH, lanes)

    def w1_setup(self):
        return L(f'''
        s_mul_i32 {s(S_T0)}, {s(S_Q)}, 448
        s_lshr_b32 {s(S_T1)}, {s(S_W)}, 1
        s_mul_i32 {s(S_T1)}, {s(S_T1)}, 224
        s_mul_i32 {s(S_T2)}, {s(S_ODD)}, 96
        s_add_u32 {s(S_T0)}, {s(S_T0)}, {s(S_T1)}
        s_add_u32 {s(S_T0)}, {s(S_T0)}, {s(S_T2)}
        v_lshlrev_b32 v6, 1, {v(V_G)}
        v_xor_b32 v6, v6, {v(V_LANE)}
        v_and_b32 v6, 7, v6
        v_lshl_add_u32 v6, v6, 4, {s(S_T0)}
        v_lshrrev_b32 v7, 5, {v(V_LANE)}
        v_bfe_u32 v8, {v(V_LANE)}, 3, 2
        v_lshl_add_u32 v7, v7, 3, v8
        v_sub_u32 v8, 11, v7
        s_movk_i32 {s(S_T3)}, 3584
        v_mad_u32_u24 {v(V_W1U)}, v7, {s(S_T3)}, v6
        v_mad_u32_u24 {v(V_W1D+3)}, v8, {s(S_T3)}, v6
        v_add_u32 {v(V_W1U+1)}, {16*3584-1024}, {v(V_W1U)}
        v_add_u32 {v(V_W1U+2)}, {4*3584-2048}, {v(V_W1U)}
        v_add_u32 {v(V_W1U+3)}, {20*3584-3072}, {v(V_W1U)}
        v_add_u32 {v(V_W1D)}, {20*3584+3072}, {v(V_W1D+3)}
        v_add_u32 {v(V_W1D+1)}, {4*3584+2048}, {v(V_W1D+3)}
        v_add_u32 {v(V_W1D+2)}, {16*3584+1024}, {v(V_W1D+3)}
        ''') + (L(f'''
        s_lshl_b32 {s(S_T0)}, {s(S_ODD)}, 5
        s_add_u32 {s(S_T2)}, {s(S_T0)}, 32
        v_bfe_u32 {v(V_W1R+1)}, {v(V_LANE)}, 3, 2
        v_and_b32 {v(V_W1R+2)}, 3, {v(V_LANE)}
        v_and_or_b32 {v(V_W1R+3)}, {v(V_LANE)}, 60, {v(V_W1R+1)}
        v_lshl_add_u32 {v(V_W1R+2)}, {v(V_W1R+2)}, 3, {s(S_SB)}
        v_lshl_add_u32 {v(V_W1R+3)}, {v(V_W1R+3)}, 5, {v(V_W1R+2)}
        v_xor_b32 {v(V_W1R)}, {s(S_T0)}, {v(V_W1R+3)}
        v_xor_b32 {v(V_W1R+1)}, {s(S_T2)}, {v(V_W1R+3)}
        v_xor_b32 {v(V_W1R+2)}, 64, {v(V_W1R)}
        v_xor_b32 {v(V_W1R+3)}, 64, {v(V_W1R+1)}
        ''') if self.opt.get('r1c') else L(f'''
        v_lshrrev_b32 v6, 2, {v(V_LANE)}
        v_lshlrev_b32 v6, 7, v6
        v_and_b32 v7, 3, {v(V_LANE)}
        v_lshl_add_u32 v6, v7, 3, v6
        v_add_u32 v6, {s(S_SB)}, v6
        v_bfe_u32 v7, {v(V_LANE)}, 3, 2
        ''') + sum([L(f'''
        s_add_u32 {s(S_T0)}, {s(S_ODD)}, {t}
        s_and_b32 {s(S_T0)}, {s(S_T0)}, 3
        v_xor_b32 v8, {s(S_T0)}, v7
        v_lshl_add_u32 {v(V_W1R+t)}, v8, 5, v6
        ''') for t in range(4)], []))
    def w1_dma(self, b, slot):
        A = self.A; q1, ip, var = b >> 3, (b >> 1) & 3, b & 1; n = 2 * var + q1
        ops = []
        for i in range(4):
            def f(i=i):
                if i == 0:
                    if self.opt.get('m0f'): A(f's_add_u32 m0, {s(S_SB)}, {slot*4096}')
                    if ip or not self.opt.get('m0f'): A(f's_xor_b32 {s(S_BG)}, {s(S_C)}, {ip}')
                    A(f's_mul_i32 {s(S_BG)}, {s(S_BG if ip or not self.opt.get("m0f") else S_C)}, {64*3584}')
                    if var == 0:
                        if q1: A(f's_add_u32 {s(S_BG)}, {s(S_BG)}, {32*3584}')
                    else: A(f's_sub_u32 {s(S_BG)}, {(512-31-32*q1)*3584 - 3072}, {s(S_BG)}')
                    if not self.opt.get('m0f'): A(f's_add_u32 m0, {s(S_SB)}, {slot*4096}')
                if n == 2 and i == 0:
                    A(f'''
                    v_add_u32 {v(V_BT)}, {s(S_BG)}, {v(V_W1D)}
                    s_cmp_eq_u32 {s(S_C)}, {ip}
                    s_cselect_b64 exec, 0xff, 0
                    v_subrev_u32 {v(V_BT)}, {256*3584}, {v(V_BT)}
                    s_mov_b64 exec, -1
                    buffer_load_dwordx4 {v(V_BT)}, {s(SRD_W1,4)}, 0 offen lds
                    ''')
                else:
                    A(f'buffer_load_dwordx4 {v((V_W1D if var else V_W1U)+i)}, {s(SRD_W1,4)}, {s(S_BG)} offen offset:{i*1024} lds')
                if i == 3: self.w1m[b] = A.nvm
            ops.append(f)
        return ops
    def w1_tr(self, b, slot):
        A = self.A; ops = []
        for t in range(4):
            for hh in range(2):
                def f(t=t, hh=hh):
                    A.wait(vm=self.w1m[b])
                    A(f'ds_read_b64_tr_b16 {a(16*b+4*t+2*hh,2)}, {v(V_W1R+t)} offset:{slot*4096+hh*2048}')
                    self.w1l[b] = A.nlg
                ops.append(f)
        return ops
    def w1_cs(self, b):
        A = self.A; ops = []
        if self.opt.get('sp'):
            for t in (0, 2):
                def f(t=t):
                    if not self.csn[t]: A(f'v_mov_b64 {v(V_CS+4*t,2)}, 0\nv_mov_b64 {v(V_CS+4*t+2,2)}, 0')
                    A.wait(lg=self.w1l[b])
                    A(f'v_smfmac_f32_16x16x64_bf16 {v(V_CS+4*t,4)}, {v(V_ONES,4)}, {a(16*b+4*t,8)}, {v(V_IDX)}')
                    self.csn[t] += 1
                ops.append(f)
            return ops
        for t in range(4):
            def f(t=t):
                A.wait(lg=self.w1l[b])
                c = v(V_CS + 4 * t, 4)
                A(f'v_mfma_f32_16x16x32_bf16 {c}, {v(V_ONES,4)}, {a(16*b+4*t,4)}, {c if self.csn[t] else "0"}')
                self.csn[t] += 1
            ops.append(f)
        return ops
    def w1_pipeline(self):
        order = self.w1order; NS = 5
        seq = []
        for k in range(NS): seq.append(('dma', k))
        for k in range(16):
            seq.append(('tr', k))
            if k >= 1:
                seq.append(('cs', k - 1))
                if k - 1 + NS < 16: seq.append(('dma', k - 1 + NS))
        seq.append(('cs', 15))
        out = []
        for kind, k in seq:
            b = order[k]
            if kind == 'dma': ops = self.w1_dma(b, k % NS)
            elif kind == 'tr': ops = self.w1_tr(b, k % NS)
            else: ops = self.w1_cs(b)
            out.append((kind, k, ops))
        return out

    def w2_setup(self):
        return L(f"""
        v_lshlrev_b32 {v(V_W2A)}, 1, {v(V_G)}
        v_xor_b32 {v(V_W2A)}, {v(V_W2A)}, {v(V_LANE)}
        v_and_b32 {v(V_W2A)}, 7, {v(V_W2A)}
        v_lshrrev_b32 {v(V_W2A+1)}, 3, {v(V_LANE)}
        v_lshlrev_b32 {v(V_W2A+1)}, 10, {v(V_W2A+1)}
        v_lshl_add_u32 {v(V_W2A)}, {v(V_W2A)}, 4, {v(V_W2A+1)}
        s_mul_i32 {s(S_W2S)}, {s(S_W)}, {7*8192} @@ s_add_u32 {s(S_W2S)}, {s(S_W2S)}, 8192 @@ s_and_b32 {s(S_W2S)}, {s(S_W2S)}, {hex(0xffffc000)}
        s_lshl_b32 {s(S_BG)}, {s(S_Q)}, 7 @@ s_add_u32 {s(S_W2S)}, {s(S_W2S)}, {s(S_BG)}
        v_add_u32 {v(V_W2A+1)}, {8192-1024}, {v(V_W2A)}
        """)
    def w2_setup_r(self):
        return L(f"""
        s_and_b32 {s(S_TCH)}, {s(S_W)}, 2 @@ s_lshl_b32 {s(S_TCH)}, {s(S_TCH)}, 5 @@ v_xor_b32 {v(V_W2R+3)}, {s(S_TCH)}, {v(V_W1R)}
        v_xor_b32 {v(V_W2R)}, 96, {v(V_W2R+3)}
        v_xor_b32 {v(V_W2R+1)}, 64, {v(V_W2R+3)}
        v_xor_b32 {v(V_W2R+2)}, 32, {v(V_W2R+3)}
        """)
    def w2_dma(self, b, slot):
        A = self.A; h, ks = self.items[b]; ops = []
        def base(x, c):
            if ks == 6:
                A(f's_lshl1_add_u32 {s(S_BG)}, {s(S_ODD)}, {x}')
                A(f's_xor_b32 {s(S_BG)}, {s(S_BG)}, {s(S_Q)}')
            elif x: A(f's_xor_b32 {s(S_BG)}, {s(S_Q)}, {x}')
            A(f's_mul_i32 {s(S_BG)}, {s(S_BG if x or ks == 6 else S_Q)}, {224*1024}')
            A(f's_add_u32 {s(S_BG)}, {s(S_BG)}, {s(S_W2S)}')
            if ks == 6:
                A(f's_lshl_b32 {s(S_RR+3)}, {s(S_ODD)}, 16')
                A(f's_sub_u32 {s(S_BG)}, {s(S_BG)}, {s(S_RR+3)}')
            if c: A(f's_add_u32 {s(S_BG)}, {s(S_BG)}, {c}')
            if h == 0: A(f's_xor_b32 {s(S_BG)}, {s(S_BG)}, 512')
        for i in range(4):
            def f(i=i):
                if i == 0:
                    if self.opt.get('m0f'): A(f's_add_u32 m0, {s(S_SB)}, {slot*4096}')
                    base(*((ks, 0) if ks < 4 else (2 * (ks - 4), 32768) if ks < 6 else (0, 49152)))
                    if not self.opt.get('m0f'): A(f's_add_u32 m0, {s(S_SB)}, {slot*4096}')
                if i == 2:
                    if ks < 4: A(f's_add_u32 {s(S_BG)}, {s(S_BG)}, {16384 - 2048}')
                    else: base(*((2 * (ks - 4) + 1, 32768 - 2048) if ks < 6 else (1, 49152 - 2048)))
                A(f'buffer_load_dwordx4 {v(V_W2A+(i&1))}, {s(SRD_W2,4)}, {s(S_BG)} offen offset:{i*1024} lds')
                if i == 3: self.w2m[b] = A.nvm
            ops.append(f)
        return ops
    def w2_tr(self, b, slot):
        A = self.A; ops = []
        for t in range(4):
            for hh in range(2):
                def f(t=t, hh=hh):
                    assert self.blk > b, 'w2 fragment would overwrite live w1'
                    A.wait(vm=self.w2m[b])
                    A(f'ds_read_b64_tr_b16 {a(16*b+4*t+2*hh,2)}, {v(V_W2R+t)} offset:{slot*4096+hh*2048}')
                    self.trl[16 + b] = A.nlg
                ops.append(f)
        return ops
    def smalltouch(self, T):
        self.A(f's_mul_i32 {s(T)}, {s(S_Q)}, 448\ns_lshl_b32 {s(T+1)}, {s(S_W)}, 8')
        self.touch(V_TD, SRD_B1, T, 5); self.touch(V_TD, SRD_B2, T + 1, 2)
        self.touch(V_TD if self.opt.get('tlr') or self.opt.get('sp') else 191, SRD_WS, S_FLA, 1, ' sc1')
        if self.opt.get('tlr'):
            self.A(f'''
            v_lshlrev_b32 v191, 16, {v(V_LANE)}
            v_xor_b32 v191, {s(S_RR)}, v191
            s_mov_b64 exec, 0xff
            buffer_load_dword v191, v191, {s(SRD_WS,4)}, 0 offen offset:{self.opt['tlr']} sc1
            s_mov_b64 exec, -1
            ''')
        if self.opt.get('tll'):
            self.A(f's_add_u32 {s(T)}, {s(S_RR)}, 8192')
            self.touch(191, SRD_WS, T, 24, ' sc1')
    def ptouch(self, js=(0, 1, 2), T=S_RR + 2):
        A = self.A
        n = self.opt.get('npl', 3); tf = ' ' + self.opt.get('tf', 'sc1')
        A(f's_lshl3_add_u32 {s(T)}, {s(S_U)}, {s(S_Q)}')
        A(f"""
        s_lshl_b32 {s(T)}, {s(T)}, 5
        s_add_u32 {s(T)}, {s(T)}, {s(S_W)}
        s_lshl2_add_u32 {s(T)}, {s(S_Q) if self.opt.get('lay') else 0}, {s(T)}
        s_lshl_b32 {s(T)}, {s(T)}, 11
        s_add_u32 {s(T)}, {s(T)}, {WS_P + 8192}
        """)
        if 0 in js:
            A(f's_sub_u32 {s(T+1)}, {s(T)}, {8192 - 128}')
            self.touch(191, SRD_WS, T + 1, 11 if self.opt.get('zc') else 7, ' sc1')
        if 3 in js:
            A(f"""
            s_sub_u32 {s(T+1)}, {s(T)}, 8192
            v_mul_u32_u24 v191, {65536+128}, {v(V_LANE)}
            v_xor_b32 v191, {s(T+1)}, v191
            s_mov_b64 exec, 0xfe
            buffer_load_dword v191, v191, {s(SRD_WS,4)}, 0 offen sc1
            s_mov_b64 exec, -1
            """)
        if 4 in js:
            A(f's_add_u32 {s(T+1)}, {s(T)}, 16384')
            self.touch(191, SRD_WS, T + 1, 16, tf)
        if 1 not in js and 2 not in js: return
        A(f"""
        v_mul_u32_u24 {v(V_W2A+2)}, {8192-2048}, {v(V_G)}
        v_add_u32 {v(V_W2A+2)}, {v(V_W2A+2)}, {v(V_L128)}
        """)
        if 1 in js: self.touch(191, SRD_WS, T, min(64, 16 * n), tf, va=V_W2A + 2)
        if n > 4 and 2 in js:
            A(f's_add_u32 {s(T)}, {s(T)}, 32768')
            self.touch(191, SRD_WS, T, 16 * (n - 4), tf, va=V_W2A + 2)

    def fxst(self, T, V):
        A = self.A; LS = A.newlabel('nfx')
        if self.opt.get('fxp') >= 3:
            return A(f'''
        s_getreg_b32 {s(T)}, hwreg(HW_REG_XCC_ID)
        s_and_b32 {s(T)}, {s(T)}, 15
        v_add_u32 {v(V)}, {s(T)}, {v(V_TAG)}
        v_mov_b32 {v(V+1)}, {v(V_TAG+1)}
        s_lshl2_add_u32 {s(T)}, {s(S_U)}, {s(S_W)}
        s_lshl3_add_u32 {s(T)}, {s(T)}, {s(S_Q)}
        s_lshl_b32 {s(T)}, {s(T)}, 7
        s_add_u32 {s(T)}, {s(T)}, {FX3}
        s_mov_b64 exec, 1
        buffer_store_dwordx2 {v(V,2)}, off, {s(SRD_WS,4)}, {s(T)} sc1
        s_mov_b64 exec, -1
        ''')
        A(f's_cmp_lg_u32 {s(S_W)}, {self.opt.get("fxw", 0)}\ns_cbranch_scc1 {LS}')
        A.snap()
        A(f'''
        s_getreg_b32 {s(T)}, hwreg(HW_REG_XCC_ID)
        s_and_b32 {s(T)}, {s(T)}, 15
        v_add_u32 {v(V)}, {s(T)}, {v(V_TAG)}
        v_mov_b32 {v(V+1)}, {v(V_TAG+1)}
        s_lshl3_add_u32 {s(T)}, {s(S_U)}, {s(S_Q)}
        s_lshl_b32 {s(T)}, {s(T)}, 7
        s_add_u32 {s(T)}, {s(T)}, {FX2}
        s_mov_b64 exec, 1
        buffer_store_dwordx2 {v(V,2)}, off, {s(SRD_WS,4)}, {s(T)} sc1
        s_mov_b64 exec, -1
        ''')
        A.label(LS); A.unsnap()
    def align(self):
        if 'pg' not in self.opt: return ''
        return '.p2align 12\n' + (f".fill {self.opt['pg']//4}, 4, 0xbf810000\n" if self.opt['pg'] else '')
    def site(self, X):
        if 'pad' + X in self.opt: self.A.raw(f';SITE {X}')
    def cpf(self):
        self.A(f'''
        s_getpc_b64 {s(S_M,2)}
        L_pc0:
        s_lshr_b32 {s(S_FAST)}, s2, 3
        s_lshl2_add_u32 {s(S_FAST)}, {s(S_FAST)}, {s(S_W)}
        s_lshl_b32 {s(S_FAST)}, {s(S_FAST)}, 8
        s_min_u32 {s(S_FAST)}, {s(S_FAST)}, L_end-L_pc0-192
        ''')
        for k in range(4): self.A(f's_load_dword {s(S_CNT)}, {s(S_M,2)}, {s(S_FAST)} offset:{64*k}')

    def p1(self):
        A = self.A; o = self.opt
        X, R1, SUM, SQ, FS, ACC = 16, 160, 168, 172, 192, 224
        V_SGN, V_FAC, V_ZO, V_EW, V_XD, V_XR, V_ER = 176, 177, 178, 179, 184, 186, 12 if o.get('sp') else 191
        A(f'''
        s_cmp_ge_u32 s2, 256
        s_cbranch_scc1 L_end
        s_load_dwordx2 {s(SRD_X,2)}, s[0:1], 0
        s_load_dwordx2 {s(SRD_WS,2)}, s[0:1], 96
        s_load_dwordx2 {s(SRD_W1,2)}, s[0:1], 48
        s_load_dwordx2 {s(SRD_W2,2)}, s[0:1], 64
        s_load_dwordx2 {s(SRD_B1,2)}, s[0:1], 56
        s_load_dwordx2 {s(SRD_B2,2)}, s[0:1], 72
        s_load_dwordx2 {s(SRD_OUT,2)}, s[0:1], 80
        ''')
        self.stamp('start')
        if self.opt.get('cpf', 0) == 3:
            A(f'''
            s_getpc_b64 {s(S_M,2)}
            L_pc0:
            s_lshr_b32 {s(S_T0)}, s2, 3
            s_lshl_b32 {s(S_T0)}, {s(S_T0)}, 10
            v_lshl_add_u32 v7, v0, 2, {s(S_T0)}
            v_min_u32 v7, L_fin-L_pc0, v7
            global_load_dword {v(V_TD)}, v7, {s(S_M,2)}
            ''')
        A(f'''
        v_lshrrev_b32 v6, 6, v0
        v_and_b32 {v(V_LANE)}, 63, v0
        v_readfirstlane_b32 {s(S_W)}, v6
        ''')
        if self.opt.get('cpf', 0) == 1: self.cpf()
        A(f'''
        v_and_b32 {v(V_L15)}, 15, {v(V_LANE)}
        v_lshrrev_b32 {v(V_G)}, 4, {v(V_LANE)}
        v_lshlrev_b32 {v(V_L16)}, 4, {v(V_LANE)}
        v_lshlrev_b32 {v(V_L128)}, 7, {v(V_LANE)}
        s_lshr_b32 {s(S_N)}, s2, 3
        ''')
        if o.get('g2') == 2: A(f'''
        s_and_b32 {s(S_T1)}, s2, 1
        s_and_b32 {s(S_Q)}, {s(S_N)}, 3
        s_lshl2_add_u32 {s(S_Q)}, {s(S_T1)}, {s(S_Q)}
        s_and_b32 {s(S_T1)}, s2, 6
        s_lshr_b32 {s(S_C)}, {s(S_N)}, 3
        s_lshl1_add_u32 {s(S_U)}, {s(S_T1)}, {s(S_C)}
        s_sub_u32 {s(S_T1)}, 32, {s(S_U)}
        s_cmp_eq_u32 {s(S_U)}, 0
        s_cselect_b32 {s(S_T1)}, 16, {s(S_T1)}
        s_bitcmp1_b32 {s(S_N)}, 2
        s_cselect_b32 {s(S_U)}, {s(S_T1)}, {s(S_U)}
        ''')
        elif o.get('g2'): A(f'''
        s_and_b32 {s(S_T1)}, s2, 1
        s_and_b32 {s(S_Q)}, {s(S_N)}, 3
        s_lshl2_add_u32 {s(S_Q)}, {s(S_T1)}, {s(S_Q)}
        s_and_b32 {s(S_T1)}, s2, 6
        s_lshr_b32 {s(S_U)}, {s(S_N)}, 2
        s_and_b32 {s(S_C)}, {s(S_U)}, 3
        s_lshl2_add_u32 {s(S_U)}, {s(S_T1)}, {s(S_U)}
        ''')
        else: A(f'''
        s_and_b32 {s(S_T1)}, s2, 7
        s_and_b32 {s(S_Q)}, {s(S_N)}, 7
        s_lshr_b32 {s(S_C)}, {s(S_N)}, 3
        s_lshl2_add_u32 {s(S_U)}, {s(S_T1)}, {s(S_C)}
        ''')
        A(f'''
        s_lshl_b32 {s(S_HB0)}, {s(S_W)}, 14
        s_and_b32 {s(S_ODD)}, {s(S_W)}, 1
        s_lshl2_add_u32 {s(S_TW)}, {s(S_N)}, {s(S_W)}
        s_lshl_b32 {s(S_T0)}, {s(S_Q)}, 7
        s_and_b32 {s(S_T1)}, {s(S_T0)}, 0x200
        ''')
        for i in range(4):
            A(f's_add_u32 {s(S_T2)}, {s(S_T0)}, {128*i}\ns_and_b32 {s(S_T2)}, {s(S_T2)}, 0x180\ns_or_b32 {s(S_XO+i)}, {s(S_T2)}, {s(S_T1)}')
        self.srd(SRD_X, 2097152); self.srd(SRD_WS, WS_SIZE); self.srd(SRD_W2, 1835008); self.srd(SRD_W1, 1835008)
        self.srd(SRD_B1, 3584); self.srd(SRD_B2, 1024); self.srd(SRD_OUT, 2097152)
        A(f'''
        s_and_b32 {s(S_T0)}, {s(S_W)}, 2
        s_lshl4_add_u32 {s(S_T0)}, {s(S_T0)}, {s(S_ODD)}
        s_lshl_b32 {s(S_T0)}, {s(S_T0)}, 5
        s_add_u32 {s(S_T0)}, {s(S_T0)}, {s(S_U)}
        s_lshl_b32 {s(S_T0)}, {s(S_T0)}, 10
        v_lshrrev_b32 v12, 3, {v(V_LANE)}
        v_and_b32 v13, 7, {v(V_LANE)}
        v_xor_b32 v13, v13, {v(V_G)}
        v_lshlrev_b32 v13, 4, v13
        v_lshl_add_u32 v6, v12, 16, v13
        v_add_u32 {v(V_XD)}, {s(S_T0)}, v6
        v_xor_b32 v6, 64, {v(V_XD)}
        v_add_u32 {v(V_XD+1)}, {8*65536 - 1024}, v6
        ''')
        A(f'''
        s_lshl_b32 {s(S_T0)}, {s(S_Q)}, 5
        v_lshrrev_b32 v6, 2, {v(V_L15)}
        v_and_b32 v7, 3, {v(V_L15)}
        v_lshl_add_u32 v6, v6, 3, v7
        v_add_u32 v6, {s(S_T0)}, v6
        v_add_u32 v7, 4, v6
        v_cmp_eq_u32 vcc, 0, v6
        v_mov_b32 v8, 0x100
        v_cndmask_b32 v6, v6, v8, vcc
        v_cvt_f32_u32 v6, v6
        v_cvt_f32_u32 v7, v7
        v_mul_f32 v6, {f2u(1/512)}, v6
        v_mul_f32 v7, {f2u(1/512)}, v7
        s_add_u32 {s(S_T0)}, {s(S_W)}, {s(S_Q)}
        s_and_b32 {s(S_T0)}, {s(S_T0)}, 3
        s_lshl_b32 {s(S_T0)}, {s(S_T0)}, 6
        v_lshl_add_u32 v8, {v(V_G)}, 3, {s(S_T0)}
        v_cvt_f32_u32 v8, v8
        v_add_f32 v9, {f2u(32.0)}, v8
        s_mul_i32 {s(S_T0)}, {s(S_W)}, {SPW}
        s_add_u32 {s(S_T0)}, {s(S_T0)}, {L_S}
        v_add_u32 v10, {s(S_T0)}, {v(V_L16)}
        ''')
        def tab(kk, et):
            b = X + 32 * et
            A(f'v_mul_f32 {v(b)}, {v(6+et)}, {v(8+kk)}')
            A(f'v_add_f32 {v(b+1)}, {v(b)}, {v(6+et)}')
            if kk == 0: A(f'v_cos_f32 {v(b+2)}, {v(6+et)}')
            for j in range(2):
                A(f'v_cos_f32 {v(b+8+j)}, {v(b+j)}')
                A(f'v_sin_f32 {v(b+16+j)}, {v(b+j)}')
            if kk == 0: A(f'v_add_f32 {v(b+2)}, {v(b+2)}, {v(b+2)}')
            for j in range(2, 8):
                A(f'v_fma_f32 {v(b+8+j)}, {v(b+2)}, {v(b+7+j)}, -{v(b+6+j)}')
                A(f'v_fma_f32 {v(b+16+j)}, {v(b+2)}, {v(b+15+j)}, -{v(b+14+j)}')
            for j in range(4):
                A(f'v_cvt_pk_bf16_f32 {v(b+24+j)}, {v(b+8+2*j)}, {v(b+9+2*j)}')
            for j in range(4):
                A(f'v_cvt_pk_bf16_f32 {v(b+28+j)}, {v(b+16+2*j)}, {v(b+17+2*j)}')
            A(f'ds_write_b128 v10, {v(b+24,4)} offset:{(kk*4+et*2)*1024}')
            A(f'ds_write_b128 v10, {v(b+28,4)} offset:{(kk*4+et*2+1)*1024}')
        npre = o.get('tabpre', 1)
        tabs = [(0, 0), (0, 1), (1, 0), (1, 1)]
        for t in tabs[:npre]: tab(*t)
        A(f's_mov_b32 {s(S_T2)}, {FE}')
        self.site('K')
        A('s_waitcnt lgkmcnt(0)')
        self.stamp('kernarg')
        A.on = bool(o.get('s1', 1))
        xm = []
        XORD = [0, 2, 4, 6, 1, 3, 5, 7] if o.get('g1n') else list(range(8))
        def xdma(i):
            i = XORD[i]
            A(f's_add_u32 m0, {s(S_HB0)}, {i*2048}')
            so = S_XO + (i >> 1)
            if i & 1:
                A(f's_xor_b32 {s(S_BG)}, {s(so)}, 0x200'); so = S_BG
            A(f'buffer_load_dwordx4 {v(V_XD)}, {s(SRD_X,4)}, {s(so)} offen lds')
            A(f'buffer_load_dwordx4 {v(V_XD+1)}, {s(SRD_X,4)}, {s(so)} offen offset:1024 lds')
            xm.append(A.nvm)
        NX0 = o.get('nx0', 5)
        if o.get('tl1') == 1: A(f'buffer_load_dword {v(V_BT)}, off, {s(SRD_W1,4)}, 0')
        xdma(0)
        if o.get('tl1') == 2: A(f's_buffer_load_dword {s(S_AM0)}, {s(SRD_W1,4)}, 0\ns_buffer_load_dword {s(S_AM0)}, {s(SRD_W1,4)}, 0xffffc\ns_buffer_load_dword {s(S_AM0)}, {s(SRD_W2,4)}, 0\ns_buffer_load_dword {s(S_AM0)}, {s(SRD_W2,4)}, 0xffffc')
        A(f'buffer_load_dwordx2 {v(V_TAG,2)}, off, {s(SRD_WS,4)}, {s(S_T2)}{self.fef}')
        for i in range(1, NX0):
            if o.get('t1e') == i: self.g2touch(1)
            if o.get('t1a') == i: self.g2touch(1, 'a')
            xdma(i)
        if o.get('t1e') == NX0: self.g2touch(1)
        if o.get('t1a') == NX0: self.g2touch(1, 'a')
        T0 = o.get('t0', 0)
        if T0: self.wtouch(V_TD, SRD_W1, 0, T0)
        A.on = False
        if o.get('cpf') == 2: self.cpf()
        if o.get('txr', 0) or o.get('tsc', 0): A(f'''
        s_and_b32 {s(S_T0)}, {s(S_TW)}, 31
        s_lshl_b32 {s(S_T1)}, {s(S_T0)}, 6
        s_sub_u32 {s(S_T1)}, {s(S_T1)}, {s(S_U)}
        s_add_u32 {s(S_T1)}, {s(S_T1)}, 64
        s_and_b32 {s(S_T1)}, {s(S_T1)}, 2047
        s_lshl_b32 {s(S_T1)}, {s(S_T1)}, 10
        ''')
        if o.get('txr', 0):
            for k in range(8): A(f's_buffer_load_dword {s(S_AM0)}, {s(SRD_X,4)}, {s(S_T1)} offset:{128*k}')
        if o.get('tsc', 0): A(f'''
        s_min_u32 {s(S_T1)}, {s(S_T0)}, 27
        s_lshl_b32 {s(S_T1)}, {s(S_T1)}, 7
        s_buffer_load_dword {s(S_AM0)}, {s(SRD_B1,4)}, {s(S_T1)}
        s_and_b32 {s(S_T1)}, {s(S_T0)}, 7
        s_lshl_b32 {s(S_T1)}, {s(S_T1)}, 7
        s_buffer_load_dword {s(S_AM0)}, {s(SRD_B2,4)}, {s(S_T1)}
        ''')
        A.on = bool(o.get('s1', 1))
        if o.get('tlb'):
            LT = [A.newlabel('tl') for _ in range(4)]
            sh = o.get('tlb')
            A(f's_lshl_b32 {s(S_T0)}, {s(S_N)}, 10')
            for k, (srd, st_, base) in enumerate(((SRD_W1, 28672, 0), (SRD_W2, 28672, 0), (SRD_WS, 32768, WS_Z), (SRD_WS, 114688, WS_R))):
                A(f's_cmp_lg_u32 {s(S_W)}, {k}\ns_cbranch_scc1 {LT[k]}')
                A.snap()
                A(f'v_mul_u32_u24 {v(V_BT)}, {st_}, {v(V_LANE)}')
                if base: A(f's_add_u32 {s(S_T0)}, {s(S_T0)}, {base}')
                A(f'buffer_load_dword {v(V_TD)}, {v(V_BT)}, {s(srd,4)}, {s(S_T0)} offen')
                A.label(LT[k]); A.unsnap()
        A(f'''
        s_mov_b32 {s(S_HB)}, {s(S_HB0)}
        s_mul_i32 {s(S_SB)}, {s(S_W)}, {SPW}
        s_add_u32 {s(S_SB)}, {s(S_SB)}, {L_S}
        s_add_u32 {s(S_TB1)}, {s(S_U)}, 1024
        s_cmp_eq_u32 {s(S_U)}, 0
        s_cselect_b32 {s(S_TB1)}, 32, {s(S_TB1)}
        ''')
        self.w1m = {}; self.w1l = {}; self.csn = [0] * 4; self.w2m = {}
        self.w1order = list(range(16))
        if o.get('ord'): self.w1order = [0, 1, 8, 9] + list(range(2, 8)) + list(range(10, 16))
        self.pipe = self.w1_pipeline()
        for k, t in enumerate(tabs[npre:]):
            tab(*t)
            if o.get('t1e') == 10 + k: self.g2touch(1)
            if o.get('t1a') == 10 + k: self.g2touch(1, 'a')
        b = TB
        t2 = L(f'''
        s_mov_b32 {s(S_T2)}, 0xffff
        s_cmp_ge_u32 {s(S_W)}, 2 @@ s_cselect_b32 {s(S_T0)}, {s(S_TB1)}, {s(S_U)} @@ s_cselect_b32 {s(S_T1)}, 0, {f2u(0.25)} @@ s_cselect_b32 {s(S_T2)}, 0xffff0000, {s(S_T2)}
        s_cmp_eq_u32 {s(S_U)}, 0 @@ s_cselect_b32 {s(S_T1)}, {s(S_T1)}, {f2u(0.25)} @@ s_cselect_b32 {s(S_T2)}, {s(S_T2)}, -1
        v_lshl_add_u32 v11, {v(V_L15)}, 6, {s(S_T0)}
        v_cmp_eq_u32 vcc, 0, v11
        v_cvt_f32_u32 v11, v11
        v_mul_f32 v11, {f2u(1/2048)}, v11
        v_lshlrev_b32 v6, 15, {v(V_G)}
        v_and_b32 v6, 0x8000, v6
        v_cndmask_b32 v7, 0, v6, vcc
        s_lshl1_add_u32 {s(S_T0)}, {s(S_ODD)}, {s(S_Q)}
        s_lshl_b32 {s(S_T0)}, {s(S_T0)}, 3
        v_add_u32 v8, {s(S_T0)}, {v(V_G)}
        ''')
        for j in range(4):
            t2 += [f'v_add_u32 v6, {4*j}, v8', 'v_and_b32 v6, 31, v6', 'v_cvt_f32_u32 v6, v6',
                   f'v_mul_f32 {v(b+2*j)}, v6, v11', f'v_add_f32 {v(b+2*j+1)}, {s(S_T1)}, {v(b+2*j)}']
        for j in range(8):
            t2 += [f'v_cos_f32 {v(b+8+j)}, {v(b+j)}', f'v_sin_f32 {v(b+16+j)}, {v(b+j)}']
        for j in range(4):
            d = b + 24 + 8 * (j >> 1) + 2 * (j & 1)
            t2 += [f'v_cvt_pk_bf16_f32 {v(d)}, {v(b+8+2*j)}, {v(b+9+2*j)}',
                   f'v_cvt_pk_bf16_f32 {v(d+5)}, {v(b+16+2*j)}, {v(b+17+2*j)}',
                   f'v_and_b32 {v(d)}, {s(S_T2)}, {v(d)}', f'v_and_b32 {v(d+5)}, {s(S_T2)}, {v(d+5)}',
                   f'v_xor_b32 {v(d+4)}, v7, {v(d)}', f'v_xor_b32 {v(d+1)}, 0x80008000, {v(d+5)}']
        for k in range(2):
            for var in range(2):
                t2.append(f'ds_write_b128 v10, {v(b+24+8*k+4*var,4)} offset:{8192+k*2048+var*1024}')
        self.flush(t2)
        XRP = o.get('xrp', 0)
        VM = 16 if XRP >= 2 else 148
        vmset = (f'''
        v_sub_u32 v7, 15, v12
        v_lshl_add_u32 {v(VM)}, v7, 16, v13
        v_xor_b32 {v(VM+1)}, {8*65536+64}, {v(VM)}
        s_sub_u32 {s(S_RR)}, 1088, {s(S_U)}
        s_lshl_b32 {s(S_RR)}, {s(S_RR)}, 10
        s_sub_u32 {s(S_RR+1)}, 1088, {s(S_TB1)}
        s_lshl_b32 {s(S_RR+1)}, {s(S_RR+1)}, 10
        s_lshl_b32 {s(S_RR+2)}, {s(S_W)}, 7
        s_sub_u32 {s(S_RR+3)}, 896, {s(S_RR+2)}
        v_add_u32 v6, {s(S_RR)}, {v(VM)}
        v_lshrrev_b32 v7, 1, v6
        v_and_b32 v7, {1<<20}, v7
        v_sub_u32 {v(VM+2)}, v6, v7
        v_and_b32 {v(VM+3)}, {(1<<21)-1}, v6
        ''')
        if XRP < 2: A(vmset)
        A(f'''
        v_mov_b32 v6, {s(S_U)}
        v_mov_b32 v7, {s(S_TB1)}
        v_and_b32 v8, 1, {v(V_G)}
        v_cmp_eq_u32 vcc, 1, v8
        v_add_u32 v10, {L_S}, {v(V_L16)}
        v_add_u32 v11, {L_S+2*SPW}, {v(V_L16)}
        v_cndmask_b32 v6, v6, v7, vcc
        v_lshl_add_u32 {v(V_TT)}, {v(V_L15)}, 6, v6
        v_lshrrev_b32 v6, 1, {v(V_L15)}
        v_xor_b32 v6, v6, {v(V_G)}
        v_lshlrev_b32 v6, 4, v6
        v_lshl_add_u32 v15, {v(V_L15)}, 7, v6
        v_add_u32 {v(V_XR)}, {s(S_HB)}, v15
        v_xor_b32 {v(V_XR+1)}, 64, {v(V_XR)}
        ''')
        SP = o.get('sp')
        spi = L(f'''
        s_mov_b32 vcc_lo, 0x33333333 @@ s_mov_b32 vcc_hi, 0xcccccccc @@ v_mov_b32 {v(V_ONES)}, 0x3f803f80 @@ v_cndmask_b32 {v(V_ONES)}, 0, {v(V_ONES)}, vcc
        v_and_b32 {v(V_IDX)}, 1, {v(V_LANE)}
        v_mov_b32 {v(V_ONES+1)}, {v(V_ONES)}
        v_mul_u32_u24 {v(V_IDX)}, 0xaaaa, {v(V_IDX)}
        v_mov_b64 {v(V_ONES+2,2)}, {v(V_ONES,2)}
        v_or_b32 {v(V_IDX)}, 0x4444, {v(V_IDX)}
        v_mov_b64 {v(SUM,2)}, 0
        v_mov_b64 {v(SUM+2,2)}, 0
        ''')
        if not SP:
            for i in range(4): A(f'v_mov_b32 {v(V_ONES+i)}, 0x3f803f80')
        xr = []
        for m in (1, 0):
            for side in range(2):
                for hh in (1, 0):
                    def f(m=m, side=side, hh=hh):
                        A(f's_add_u32 m0, {s(S_SB)}, {12288+m*4096+side*2048+hh*1024}')
                        if hh == 0 and m == 0: A(f'buffer_load_dwordx4 {v(VM+2+side)}, {s(SRD_X,4)}, {s(S_RR+2+side)} offen lds')
                        else:
                            if hh == 1: A(f's_add_u32 {s(S_BG)}, {s(S_RR+m)}, {s(S_RR+2+side)}')
                            A(f'buffer_load_dwordx4 {v(VM+hh)}, {s(SRD_X,4)}, {s(S_BG)} offen lds')
                        self.xrm = A.nvm
                    xr.append(f)
        A.wait(lg=A.nlg)
        A('s_barrier')
        tl = {}
        def tabrd(f):
            A(f'ds_read_b128 {a(4*f,4)}, {v(10+(f>>4))} offset:{((f>>3)&1)*SPW+(f&7)*1024}')
            tl[f] = A.nlg
        for f in range(8): tabrd(f)
        self.stamp('tables')
        NX1 = min(8, NX0 + o.get('nx1', 3))
        for i in range(NX0, NX1): xdma(i)
        b = FS
        fild = [(lambda f=f: tabrd(f)) for f in range(8, 32)]
        fild += L(f'''
        s_lshl_b32 {s(S_W2S)}, {s(S_ODD)}, 10 @@ s_add_u32 {s(S_W2S)}, {s(S_W2S)}, {L_S+8192} @@ v_add_u32 v10, {s(S_W2S)}, {v(V_L16)}
        v_xor_b32 v11, 1024, v10
        ''')
        fill = []
        for f in range(16): fild.append(f'ds_read_b128 {v(TB+4*f,4)}, {v(10+(f&1))} offset:{(2*((f>>1)&1)+(f>>3))*SPW+((f>>2)&1)*2048}')
        fill += L(f'''
        s_lshl_b32 {s(S_T0)}, {s(S_W)}, 3
        v_lshrrev_b32 v6, 1, {v(V_L15)}
        v_add_u32 v6, {s(S_T0)}, v6
        v_and_b32 v7, 1, {v(V_L15)}
        v_cvt_f32_u32 v9, v7
        v_mul_f32 v9, {f2u(-0.25)}, v9
        v_lshl_add_u32 v8, v6, 1, v7
        v_cmp_eq_u32 vcc, 1, v8
        v_lshlrev_b32 v8, 3, {v(V_G)}
        v_cndmask_b32 v6, v6, 32, vcc
        v_cndmask_b32 v9, v9, 0, vcc
        v_cvt_f32_u32 v6, v6
        v_mul_f32 v6, {f2u(1/64)}, v6
        v_cvt_f32_u32 v8, v8
        v_fma_f32 {v(b)}, v6, v8, v9
        ''')
        if o.get('r1c'):
            fill += L(f'''
            v_cos_f32 v7, v6
            v_add_f32 {v(b+1)}, {v(b)}, v6
            v_cos_f32 {v(b+8)}, {v(b)}
            v_cos_f32 {v(b+9)}, {v(b+1)}
            v_add_f32 v7, v7, v7
            v_bfe_i32 v8, {v(V_LANE)}, 1, 1
            ''')
            for j in range(2, 8): fill.append(f'v_fma_f32 {v(b+8+j)}, v7, {v(b+7+j)}, -{v(b+6+j)}')
            fill.append('v_and_b32 v8, 0x80008000, v8')
            for j in range(4): fill.append(f'v_cvt_pk_bf16_f32 {v(R1+j)}, {v(b+8+4*(j&1)+(j>>1))}, {v(b+10+4*(j&1)+(j>>1))}')
            for j in range(4): fill.append(f'v_xor_b32 {v(R1+4+j)}, v8, {v(R1+j)}')
        for blk in range(0 if o.get('r1c') else 4):
            for j in range(4):
                c = 2 * j + (blk & 1) + 32 * (blk >> 1)
                if c: fill.append(f'v_fmamk_f32 {v(b+4*blk+j)}, v6, {f2u(float(c))}, {v(b)}')
        for j in range(0 if o.get('r1c') else 16): fill.append(f'v_cos_f32 {v(b+16+j)}, {v(b+j)}')
        for j in range(0 if o.get('r1c') else 8): fill.append(f'v_cvt_pk_bf16_f32 {v(R1+j)}, {v(b+16+2*j)}, {v(b+17+2*j)}')
        rdy = set()
        def chk(): assert cnt[0] > 14; print('vmset at', cnt[0])
        if XRP == 3 and o.get('vmf', 1): fill += [chk] + L(vmset) + [lambda: rdy.add(0)]
        if o.get('w1f'): fill += self.w1_setup() + [lambda: rdy.add(1)]
        fill += L(f'''
        v_and_b32 v6, 1, {v(V_LANE)}
        v_lshlrev_b32 v6, 31, v6
        v_or_b32 {v(V_SGN)}, 1.0, v6
        s_cmp_{'lt' if o.get('g1n') else 'ge'}_u32 {s(S_Q)}, 4 @@ s_cselect_b64 vcc, -1, 0
        v_cndmask_b32 {v(V_FAC)}, 1.0, {v(V_SGN)}, vcc
        ''')
        nsg = len(fill)
        zo = L(f'''
        s_lshl_b32 {s(S_T0)}, {s(S_W)}, 19
        s_lshl_b32 {s(S_T1)}, {s(S_Q)}, 13
        s_add_u32 {s(S_T0)}, {s(S_T0)}, {s(S_T1)}
        s_lshl_b32 {s(S_T1)}, {s(S_U)}, 8
        s_add_u32 {s(S_T0)}, {s(S_T0)}, {s(S_T1)}
        v_lshlrev_b32 v6, 17, {v(V_G)}
        v_lshl_add_u32 v6, {v(V_L15)}, 4, v6
        v_add_u32 {v(V_ZO)}, {s(S_T0)}, v6
        ''')
        if not o.get('zop'): fill += zo; zo = []
        fill += L(f'''
        s_lshr_b32 {s(S_T0)}, {s(S_W)}, 1
        s_lshl_b32 {s(S_T0)}, {s(S_T0)}, 10
        s_lshl3_add_u32 {s(S_T0)}, {s(S_ODD)}, {s(S_T0)}
        s_add_u32 {s(S_T0)}, {s(S_T0)}, {L_EXC}
        v_add_u32 {v(V_EW)}, {s(S_T0)}, {v(V_L16)}
        v_add_u32 {v(V_ER)}, {L_EXC}, {v(V_L16)}
        s_lshr_b32 {s(S_T1)}, {s(S_Q)}, 1
        s_lshl2_add_u32 {s(S_T0)}, {s(S_W)}, {s(S_T1)}
        s_lshl_b32 {s(S_T0)}, {s(S_T0)}, 5
        s_add_u32 {s(S_T0)}, {s(S_T0)}, {s(S_U)}
        s_and_b32 {s(S_T1)}, {s(S_Q)}, 1
        s_lshl1_add_u32 {s(S_T0)}, {s(S_T0)}, {s(S_T1)}
        s_lshl_b32 {s(S_T0)}, {s(S_T0)}, 7
        s_add_u32 {s(S_F1)}, {s(S_T0)}, {F1}
        ''') + L(f'''
        s_mov_b32 {s(S_XO)}, 0xaaaaaaaa
        s_mov_b32 {s(S_XO+1)}, 0xaaaaaaaa
        s_mov_b32 {s(S_XO+2)}, 0xcccccccc
        s_mov_b32 {s(S_XO+3)}, 0xcccccccc
        s_mov_b32 {s(S_M)}, 0x00f0000f
        s_mov_b32 {s(S_M+1)}, 0xf0000f00
        ''' if SP else f'''
        v_and_b32 v6, 1, {v(V_L15)}
        v_cmp_eq_u32 {s(S_XO,2)}, 1, v6
        v_and_b32 v6, 2, {v(V_L15)}
        v_cmp_eq_u32 {s(S_XO+2,2)}, 2, v6
        v_lshrrev_b32 v6, 2, {v(V_L15)}
        v_cmp_eq_u32 {s(S_M,2)}, v6, {v(V_G)}
        ''')
        g3 = []
        G1N = o.get('g1n', 0); post = []
        if G1N:
            w = self.w1_setup(); k = len(w) - o.get('w1p', len(w))
            fill += w[:k]; post = w[k:] + zo + [f's_mov_b32 {s(S_T1)}, 65536']
            rest = fill[nsg:]; e0 = rest.index(f's_lshr_b32 {s(S_T0)}, {s(S_W)}, 1'); m0_ = rest.index(f's_mov_b32 {s(S_XO)}, 0xaaaaaaaa')
            fill = fill[nsg-5:nsg] + rest[e0:e0+6] + rest[m0_:m0_+6] + fill[:nsg-5] + rest[:e0] + rest[e0+6:m0_] + rest[m0_+6:]
        elif not o.get('w1f'): fill += self.w1_setup() + [lambda: rdy.add(1)]
        if XRP == 3 and not o.get('vmf', 1): fill += L(vmset) + [lambda: rdy.add(0)]
        if XRP == 3: g3 += [(0, o.get('xrt', 56), f) for f in xr]
        if o.get('wpre'):
            def tbar():
                self.flush(fild); A.wait(lg=A.nlg); A('s_barrier')
            w = [(1, o.get('wpt', 60), f) for f in [tbar] + [f for kind, k, ops in self.pipe if kind == 'dma' for f in ops][:o['wpre']]]
            g3 = w + g3 if o.get('wpf') else g3 + w
        if not G1N: fill += L(f's_mov_b32 {s(S_T1)}, 65536\ns_mov_b32 {s(S_T0)}, {f2u(1/512)}\ns_mov_b32 {s(S_T2)}, {WS_HN}\ns_mov_b32 {s(S_T3)}, {WS_HN+65536}')
        xl = []
        def xrd(i):
            while len(xm) <= i: g1.pop(0)()
            A.wait(vm=xm[i])
            for kk in range(2):
                A(f'ds_read_b128 {v(X+8*i+4*kk,4)}, {v(V_XR+kk)} offset:{XORD[i]*2048}')
            xl.append(A.nlg)
        self.site('A')
        if SP: self.flush(spi)
        for _ in range(o.get('r1p', 0)): self.emit(fill.pop(0))
        for _ in range(o.get('tdp', 0)): self.emit(fild.pop(0))
        xrd(0)
        self.stamp('x first')
        xrd(1)
        A(f'''
        v_add_u32 {v(V_TAG)}, 0x9e3779b0, {v(V_TAG)}
        v_add_u32 {v(V_TAG+1)}, 0x7f4a7c15, {v(V_TAG+1)}
        ''')
        if o.get('fxp') in (1, 3): self.fxst(S_T0, V_FXV)
        if not o.get('fxp'): A(f'''
        s_getreg_b32 {s(S_T0)}, hwreg(HW_REG_XCC_ID)
        s_and_b32 {s(S_T0)}, {s(S_T0)}, 15
        v_add_u32 {v(V_FXV)}, {s(S_T0)}, {v(V_TAG)}
        v_mov_b32 {v(V_FXV+1)}, {v(V_TAG+1)}
        s_lshl_b32 {s(S_T0)}, {s(S_U)}, 7
        s_lshl3_add_u32 {s(S_T0)}, {s(S_Q)}, {s(S_T0)}
        s_add_u32 {s(S_T0)}, {s(S_T0)}, {FX}
        s_mov_b64 exec, 1
        buffer_store_dwordx2 {v(V_FXV,2)}, off, {s(SRD_WS,4)}, {s(S_T0)} sc1
        s_mov_b64 exec, -1
        ''')
        def t1():
            if o.get('t1e'): return
            if o.get('t1bar', 1): A('s_barrier')
            if o.get('g2'):
                self.g2touch(1, 'a' if o.get('t1a') == 20 else None)
                if o.get('t2a') == 1: self.g2touch(2, 'a')
                if o.get('tw2', 2) == 1: self.g2touch(2)
                if o.get('ts') == 0: self.smalltouch(S_AM0)
                return
            T1 = o.get('t1', 112)
            if T1 > T0: self.wtouch(V_TD, SRD_W1, T0, min(T1 - T0, 64))
            if T1 - T0 > 64: self.wtouch(V_TD, SRD_W1, T0 + 64, T1 - T0 - 64)
            if o.get('tw2'): self.wtouch(V_TD, SRD_W2, 0, o['tw2'])
        self.w1t = 56
        g1 = [(lambda i=i: xdma(i)) for i in range(NX1, 8)] + (xr if XRP < 2 else [lambda: None] * o.get('t1d', 0)) + [t1]
        for _ in range(min(len(g1), o.get('xr0', 3))): g1.pop(0)()
        XRE = o.get('xre', 2); cnt = [0, 0]
        def fl(n):
            cnt[0] += 1
            if g1 and cnt[0] % XRE == 0: return g1.pop(0)()
            if g3 and g3[0][0] in rdy and cnt[0] >= g3[0][1] and cnt[0] % o.get('xre3', 3) == 0: return g3.pop(0)[2]()
            if not fill and not fild and 2 not in rdy: rdy.add(2); print('gemm1 fill done at', cnt[0])
            k = cnt[1]
            if fild and cnt[0] % 4: self.emit(fild.pop(0)); k += 1
            while fill and k < n:
                n0 = A.wt; self.emit(fill.pop(0)); k += A.wt - n0
            cnt[1] = max(0, k - n)
        def ssum(i): A(f'v_smfmac_f32_16x16x64_bf16 {v(SUM,4)}, {v(V_ONES,4)}, {v(X+8*i,8)}, {v(V_IDX)}')
        if G1N: return self.p1tail(locals())
        for i in range(8):
            ip, hp = i >> 1, i & 1
            if i + 2 < 8: xrd(i + 2)
            if o.get('alls') == 3 and i in (2, 4, 5): self.stamp(f'x{i+2}')
            if o.get('twd') and i == 5: self.stamp('x last'); A.wait(vm=A.nvm); self.stamp('touch done')
            while 8 * ip + 7 not in tl: self.emit(fild.pop(0))
            A.wait(lg=max(xl[i], tl[8 * ip + 7]))
            for kk in range(2):
                xa = X + 8 * i + 4 * kk
                first = (i == 0 and kk == 0)
                A(f'v_mfma_f32_16x16x32_bf16 {v(SQ,4)}, {v(xa,4)}, {v(xa,4)}, {"0" if first else v(SQ,4)}')
                fl(2.2)
                if not SP: A(f'v_mfma_f32_16x16x32_bf16 {v(SUM,4)}, {v(xa,4)}, {v(V_ONES,4)}, {"0" if first else v(SUM,4)}'); fl(2.2)
                elif kk: ssum(i); fl(1.2)
                for t in range(4):
                    acc = ACC + 16 * hp + 4 * t
                    cin = '0' if (ip == 0 and kk == 0) else v(acc, 4)
                    A(f'v_mfma_f32_16x16x32_bf16 {v(acc,4)}, {v(xa,4)}, {a(32*ip+16*kk+4*t,4)}, {cin}')
                    if not (kk == 1 and t == 3): fl(2.2)
        print('gemm1 fill left', len(fill), len(fild), len(g1), len(g3))
        self.flush(fild); self.flush(fill)
        self.stamp('gemm1 done')
        A(f'''
        v_cndmask_b32 v6, {v(SQ)}, {v(SQ+1)}, {s(S_XO,2)}
        v_cndmask_b32 v7, {v(SQ+2)}, {v(SQ+3)}, {s(S_XO,2)}
        {f'v_add_f32 v8, {v(SUM)}, {v(SUM+1)}' if SP else f'v_cndmask_b32 v8, {v(SUM)}, {v(SUM+1)}, {s(S_XO,2)}'}
        {f'v_add_f32 v9, {v(SUM+2)}, {v(SUM+3)}' if SP else f'v_cndmask_b32 v9, {v(SUM+2)}, {v(SUM+3)}, {s(S_XO,2)}'}
        v_cndmask_b32 v6, v6, v7, {s(S_XO+2,2)}
        {f'v_add_f32 v8, v8, v9' if SP else f'v_cndmask_b32 v8, v8, v9, {s(S_XO+2,2)}'}
        v_mul_f32 v8, {s(S_T0)}, v8
        v_mul_f32 v8, v8, v8
        v_fma_f32 v6, v6, {s(S_T0)}, -v8
        v_max_f32 v6, 0, v6
        v_add_f32 v6, {f2u(1e-5)}, v6
        v_rsq_f32 v6, v6
        v_fma_f32 {v(ACC)}, {v(ACC+16)}, {v(V_SGN)}, {v(ACC)}
        v_cndmask_b32 v6, 0, v6, {s(S_M,2)}
        v_fma_f32 {v(ACC+1)}, {v(ACC+17)}, {v(V_SGN)}, {v(ACC+1)}
        v_fma_f32 {v(ACC+2)}, {v(ACC+18)}, {v(V_SGN)}, {v(ACC+2)}
        v_mfma_f32_16x16x4_f32 v[20:23], v6, {v(V_FAC)}, 0
        ''')
        for i in range(3, 16):
            A(f'v_fma_f32 {v(ACC+i)}, {v(ACC+16+i)}, {v(V_SGN)}, {v(ACC+i)}')
        for t in range(4):
            for r in range(0, 4, 2):
                A(f'v_pk_mul_f32 {v(ACC+4*t+r,2)}, {v(ACC+4*t+r,2)}, {v(20+r,2)}')
            A(f'v_cvt_pk_bf16_f32 {v(24+2*t)}, {v(ACC+4*t)}, {v(ACC+4*t+1)}')
            A(f'v_cvt_pk_bf16_f32 {v(25+2*t)}, {v(ACC+4*t+2)}, {v(ACC+4*t+3)}')
            A(f'ds_write_b64 {v(V_EW)}, {v(24+2*t,2)} offset:{t*2048}')
            if g3: g3.pop(0)[2]()
        while g3: g3.pop(0)[2]()
        if XRP == 2: A(vmset)
        if o.get('alls') == 3: A.wait(lg=A.nlg); self.stamp('exc wr')
        A.wait(vm=None if XRP and not o.get('xrw') else self.xrm, lg=A.nlg)
        if o.get('alls') == 3: self.stamp('xr in')
        A('s_barrier')
        if o.get('alls') == 3: self.stamp('bar')
        if o.get('rd8'): A.on = False
        for f in range(8):
            A(f'ds_read_b128 {v(32+4*f,4)}, {v(V_ER)} offset:{f*1024}')
        A.on = True
        for t in range(4):
            A(f's_waitcnt lgkmcnt({6-2*t})')
            A(f'v_mfma_f32_16x16x32_bf16 {v(64+4*t,4)}, {v(R1,4)}, {v(32+8*t,4)}, 0')
            A(f'v_mfma_f32_16x16x32_bf16 {v(64+4*t,4)}, {v(R1+4,4)}, {v(36+8*t,4)}, {v(64+4*t,4)}')
        A.dlg = A.nlg
        for k in range(2):
            for t in range(4):
                A(f'v_cvt_pk_bf16_f32 {v(24+4*k+t)}, {v(64+4*t+2*k)}, {v(65+4*t+2*k)}')
            A(f'buffer_store_dwordx4 {v(24+4*k,4)}, {v(V_ZO)}, {s(SRD_WS,4)}, {"0" if k == 0 else s(S_T1)} offen sc1')
            if o.get('zc'): A(f'buffer_store_dwordx4 {v(24+4*k,4)}, {v(V_ZO)}, {s(SRD_WS,4)}, {s(S_T2+k)} offen sc1')
        self.stamp('Z stores')
        self.zst = A.nvm
        self.xr = []
        if o.get('tw2') == 2:
            if o.get('t2bar', 1): A('s_barrier')
            self.g2touch(2)
            if XRP == 2: self.xr = xr
            if o.get('ts', 1) == 1: self.smalltouch(S_T0)
        elif XRP == 2: self.flush(xr)

    def p1tail(self, E):
        A = self.A; o = self.opt
        X, R1, SUM, SQ, ACC, V_SGN, V_FAC, V_ZO, V_EW, V_ER = (E[k] for k in 'X R1 SUM SQ ACC V_SGN V_FAC V_ZO V_EW V_ER'.split())
        fill, fild, g1, post, xrd, xl, tl, ssum = (E[k] for k in 'fill fild g1 post xrd xl tl ssum'.split())
        K = o['g1n']; XRE = o.get('xre', 2); FW = o.get('g1w', 22) / 10
        pri = []; st = {'n': 0, 'debt': 0}
        def fl(n):
            st['n'] += 1
            k = st['debt']
            if pri and pri[0][0] <= st['n']:
                while pri and pri[0][0] <= st['n'] and k < n:
                    n0 = A.wt; x = pri.pop(0)[1]; self.emit(x); k += A.wt - n0 + (isinstance(x, str) and x.startswith('v_pk'))
            elif g1 and st['n'] % XRE == 0: return g1.pop(0)()
            if fild and k < n: self.emit(fild.pop(0)); k += o.get('g1d', 16) / 10
            while fill and k < n:
                n0 = A.wt; self.emit(fill.pop(0)); k += A.wt - n0
            st['debt'] = max(0, k - n)
        def stats(i):
            while len(xl) <= i: xrd(len(xl))
            A.wait(lg=xl[i])
            for kk in range(2):
                xa = X + 8 * i + 4 * kk
                A(f'v_mfma_f32_16x16x32_bf16 {v(SQ,4)}, {v(xa,4)}, {v(xa,4)}, {v(SQ,4) if i or kk else "0"}'); fl(FW)
            ssum(i); fl(FW - 1)
        scaled = set()
        def mm(i, kk, t):
            f = 8 * (i & 3) + 4 * kk + t
            while f not in tl: self.emit(fild.pop(0))
            while i >= 4 and t not in scaled: self.emit(pri.pop(0)[1])
            A.wait(lg=max(xl[i], tl[f]))
            c = v(ACC + 4 * t, 4)
            A(f'v_mfma_f32_16x16x32_bf16 {c}, {v(X+8*i+4*kk,4)}, {a(4*f,4)}, {c if i or kk else "0"}')
        AH = o.get('xah', 2)
        for i in range(8 - K):
            while len(xl) < min(8, i + AH + 1 + (K - AH if i == 7 - K else 0)): xrd(len(xl))
            if i not in (3, 4): stats(i)
            for kk in range(2):
                for t in range(4):
                    mm(i, kk, t)
                    if i == 3 and kk:
                        pri.extend((st['n'] + 3, f'v_mul_f32 {v(ACC+4*t+r)}, {v(V_SGN)}, {v(ACC+4*t+r)}') for r in range(4))
                        pri.append((0, lambda t=t: scaled.add(t)))
                    fl(FW)
            if i == 3: stats(3); stats(4)
        for i in range(8 - K, 8): stats(i)
        print('gemm1 stats done: fill', len(fill), len(fild), len(g1), 'n', st['n'])
        T = 13; C = f2u(1/512)
        rs = []
        pri.extend((st['n'] + 3, x) for x in L(f'''
        v_cndmask_b32 {v(SQ)}, {v(SQ)}, {v(SQ+1)}, {s(S_XO,2)}
        v_cndmask_b32 {v(SQ+2)}, {v(SQ+2)}, {v(SQ+3)}, {s(S_XO,2)}
        v_add_f32 {v(SUM)}, {v(SUM)}, {v(SUM+1)}
        v_add_f32 {v(SUM+2)}, {v(SUM+2)}, {v(SUM+3)}
        v_cndmask_b32 {v(SQ)}, {v(SQ)}, {v(SQ+2)}, {s(S_XO+2,2)}
        v_add_f32 {v(SUM)}, {v(SUM)}, {v(SUM+2)}
        v_mul_f32 {v(SQ)}, {C}, {v(SQ)}
        v_mul_f32 {v(SUM)}, {C}, {v(SUM)}
        v_fma_f32 {v(SQ)}, -{v(SUM)}, {v(SUM)}, {v(SQ)}
        v_max_f32 {v(SQ)}, 0, {v(SQ)}
        v_add_f32 {v(SQ)}, {f2u(1e-5)}, {v(SQ)}
        v_rsq_f32 {v(SQ)}, {v(SQ)}
        v_cndmask_b32 {v(SQ)}, 0, {v(SQ)}, {s(S_M,2)}
        ''') + [lambda: rs.append(st['n'])])
        assert not any(isinstance(x, str) and x.startswith(f's_mov_b32 {s(S_M+1)},') for x in fill), 'masks late'
        done = []; ne = 0
        def epi(t):
            q = []
            for r in range(0, 4, 2): q.append(f'v_pk_mul_f32 {v(ACC+4*t+r,2)}, {v(ACC+4*t+r,2)}, {v(SUM+r,2)}')
            q += [f'v_cvt_pk_bf16_f32 {v(ACC+4*t+r)}, {v(ACC+4*t+2*r)}, {v(ACC+4*t+2*r+1)}' for r in range(2)]
            return q + [f'ds_write_b64 {v(V_EW)}, {v(ACC+4*t,2)} offset:{t*2048}']
        def bc():
            A(f'v_mfma_f32_16x16x4_f32 {v(SUM,4)}, {v(SQ)}, {v(V_FAC)}, 0'); rs.append(st['n']); fl(2 * FW + 1)
        for t in range(4):
            for i in range(8 - K, 8):
                for kk in range(2):
                    mm(i, kk, t)
                    if len(rs) == 1 and st['n'] >= rs[0] + o.get('bcd', 1): fl(FW); bc()
                    else: fl(FW)
                    while len(rs) == 2 and ne < len(done): pri.extend((max(rs[1] + 3, done[ne] + 3), x) for x in epi(ne)); ne += 1
            done.append(st['n'])
        print('gemm1 left: pri', len(pri), 'fill', len(fill), len(fild), len(g1), 'epi', ne)
        assert len(rs) == 2
        self.flush(fild); self.flush(fill)
        self.stamp('gemm1 done')
        while pri: self.emit(pri.pop(0)[1])
        for _ in range(o.get('pp0', 0)): self.emit(post.pop(0))
        for t in range(ne, 4): self.flush(epi(t))
        A.on = False
        for _ in range(o.get('pp1', 0)): self.emit(post.pop(0))
        if o.get('alls') == 3: A.wait(lg=A.nlg); self.stamp('exc wr')
        A.wait(vm=self.xrm, lg=A.nlg)
        if o.get('alls') == 3: self.stamp('xr in')
        A('s_barrier')
        if o.get('alls') == 3: self.stamp('bar')
        A.on = False
        for f in range(8): A(f'ds_read_b128 {v(32+4*f,4)}, {v(V_ER)} offset:{f*1024}')
        n0 = A.wt
        while post and A.wt - n0 < o.get('pp2', 14): self.emit(post.pop(0))
        A.on = True
        for t in range(4):
            A(f's_waitcnt lgkmcnt({6-2*t})')
            for h in range(2):
                A(f'v_mfma_f32_16x16x32_bf16 {v(64+4*t,4)}, {v(R1+4*h,4)}, {v(32+8*t+4*h,4)}, {v(64+4*t,4) if h else "0"}')
                n0 = A.wt
                while post and A.wt - n0 < FW: self.emit(post.pop(0))
            post += [f'v_cvt_pk_bf16_f32 {v(24+4*k+t)}, {v(64+4*t+2*k)}, {v(65+4*t+2*k)}' for k in range(2)]
        print('post left', len(post))
        self.flush(post)
        A.dlg = A.nlg
        for k in range(2): A(f'buffer_store_dwordx4 {v(24+4*k,4)}, {v(V_ZO)}, {s(SRD_WS,4)}, {"0" if k == 0 else s(S_T1)} offen sc1')
        self.stamp('Z stores')
        self.zst = A.nvm
        self.xr = []

    def ygrp(self, var, q1, tt): return Y + 32 * var + 16 * q1 + 8 * tt
    def dgrp(self, var, q1, tt):
        return ZF + 32 * q1 + 8 * self.dord.index((var, tt))
    dord = [(1, 1), (0, 1), (1, 0), (0, 0)]
    def window(self):
        A = self.A; o = self.opt
        A.clk = clk = sched.Clock()
        main = []
        AA = A
        A = lambda t: main.extend(L(t))
        XR = ZF
        SD0, SD1, SA1, SM_ = S_W2S, S_AM0, S_TCH, S_FIX
        AD = Y
        A(f'''
        s_sub_u32 {s(S_T0)}, {s(S_W)}, {s(S_Q)}
        s_and_b32 {s(S_T0)}, {s(S_T0)}, 3
        s_lshr_b32 {s(S_T1)}, {s(S_Q)}, 2
        s_lshl1_add_u32 {s(SD0)}, {s(S_T0)}, {s(S_T1)}
        s_lshl_b32 {s(SD0)}, {s(SD0)}, 11
        s_add_u32 {s(S_T0)}, {s(S_W)}, {s(S_Q)}
        s_sub_u32 {s(S_T0)}, 3, {s(S_T0)}
        s_and_b32 {s(S_T0)}, {s(S_T0)}, 3
        s_xor_b32 {s(S_T1)}, {s(S_T1)}, 1
        s_lshl1_add_u32 {s(SD1)}, {s(S_T0)}, {s(S_T1)}
        s_lshl_b32 {s(SD1)}, {s(SD1)}, 11
        s_add_u32 {s(SM_)}, {s(S_SB)}, 12288
        s_mov_b32 {s(SA1)}, 32768
        s_cmp_eq_u32 {s(S_U)}, 0
        s_cselect_b32 {s(S_T2)}, {s(SA1)}, 0
        s_cselect_b32 {s(SA1)}, 16384, {s(SA1)}
        s_cmp_eq_u32 {s(S_ODD)}, 0
        s_cselect_b32 {s(S_T3)}, 0, {s(S_T2)}
        s_cselect_b32 {s(S_T2)}, {s(S_T2)}, 0
        v_xor_b32 v7, 64, v15
        v_xor_b32 v8, 0x70, v15
        v_xor_b32 v9, 0x30, v15
        v_lshrrev_b32 v10, 1, {v(V_L15)}
        v_sub_u32 v11, 8, {v(V_G)}
        v_and_b32 v11, 7, v11
        v_xor_b32 v11, v11, v10
        v_lshlrev_b32 v11, 4, v11
        v_lshl_add_u32 v10, {v(V_L15)}, 7, v11
        v_xor_b32 v11, 64, v10
        v_cmp_eq_u32 vcc, 0, {v(V_L15)}
        v_mov_b32 v12, {s(S_T2)}
        v_mov_b32 v13, {s(S_T3)}
        v_cndmask_b32 v12, 0, v12, vcc
        v_cndmask_b32 v13, 0, v13, vcc
        s_add_u32 {s(S_T0)}, {s(SD1)}, 4096
        s_and_b32 {s(S_T0)}, {s(S_T0)}, 0x3fff
        s_sub_u32 {s(S_T0)}, {s(S_T0)}, {s(SD1)}
        s_mov_b32 {s(S_T1)}, {(-SPW) & 0xffffffff}
        s_cmp_eq_u32 {s(S_W)}, 0
        s_cselect_b32 {s(S_T1)}, {3*SPW}, {s(S_T1)}
        s_cmp_eq_u32 {s(S_ODD)}, 0
        s_cselect_b32 {s(S_T2)}, {s(S_T0)}, {s(S_T1)}
        s_cselect_b32 {s(S_T3)}, {s(S_T1)}, {s(S_T0)}
        v_mov_b32 v6, v10
        s_mov_b64 exec, 0xffff
        v_add_u32 v10, {s(S_T2)}, v10
        v_add_u32 v6, {s(S_T3)}, v6
        s_mov_b64 exec, -1
        ''')
        for rt in range(4):
            pat = [15, 7, 8, 9, 10 if rt < 2 else 6, 11]
            for side in range(2):
                d = S_T0 + side
                if rt & 1: A(f's_add_u32 {s(S_T2)}, {s(SD1 if side else SD0)}, {s(SA1)}')
                A(f's_add_u32 {s(S_T3)}, {s(SM_)}, {(rt&1)*4096+side*2048}')
                A(f's_cmp_eq_u32 {s(S_ODD)}, {rt>>1}')
                A(f's_cselect_b32 {s(d)}, {s(S_T2 if rt & 1 else (SD1 if side else SD0))}, {s(S_T3)}')
            for n in range(6):
                if n >= 2 and not rt & 1: A(f'v_add3_u32 {v(AD+6*rt+n)}, {v(pat[n])}, {s(S_T1)}, {v(12+(rt>>1))}')
                else: A(f'v_add_u32 {v(AD+6*rt+n)}, {s(S_T0 + (n >= 2))}, {v(pat[n])}')
        A = AA
        m2 = []; ex = False
        for x in main:
            if ex or x.startswith('s_cselect'): m2[-1] += '\n' + x
            else: m2.append(x)
            if x.startswith('s_mov_b64 exec'): ex = not x.endswith('-1')
        main = m2
        def xin():
            A.wait(vm=self.xrm); A('s_barrier')
        pre = []
        if o.get('xrp') and not o.get('xrw'): pre = main; main = [xin]
        xl = {}
        for rt in range(4):
            main += [f'ds_read_b128 {v(XR+16*rt+4*n,4)}, {v(AD+6*rt+n)}' for n in range(4)]
            main += [f'ds_read_u16 {v(AD+6*rt+4+q1)}, {v(AD+6*rt+4+q1)}' for q1 in range(2)]
            main.append(lambda rt=rt: (xl.__setitem__(rt, A.nlg), rt and A.wait(lg=xl[rt-1])))
        SR = 6
        (pre if pre else main).extend(L(f'''
        v_mov_b32 v6, 0xbf80
        v_mov_b32 v7, -1.0
        v_cndmask_b32 v6, v6, v7, {s(S_XO,2)}
        v_cndmask_b32 v6, 0, v6, {s(S_M,2)}
        v_cndmask_b32 {v(V_SEL+2)}, v6, 0, {s(S_XO+2,2)}
        v_cndmask_b32 {v(V_SEL+3)}, 0, v6, {s(S_XO+2,2)}
        v_mov_b32 {v(V_SEL)}, 0
        v_mov_b32 {v(V_SEL+1)}, 0
        v_mov_b32 {v(V_SEL+4)}, 0
        v_mov_b32 {v(V_SEL+5)}, 0
        v_and_b32 v6, 0xffff, {v(V_SEL+2)}
        v_and_b32 v8, 0xffff0000, {v(V_SEL+3)}
        v_xor_b32 v9, {v(V_SEL+2)}, {v(V_SEL+3)}
        v_xor_b32 v9, v9, v6
        v_xor_b32 v9, v9, v8
        v_mov_b32 v7, 0
        v_mov_b32 v10, v8
        v_mov_b32 v11, v9
        v_mov_b32 v12, v6
        v_mov_b32 v13, 0
        v_cmp_eq_u32 vcc, 0, {v(V_G)}
        s_cmp_eq_u32 {s(S_W)}, 0 @@ s_cselect_b64 {s(S_FIX,2)}, vcc, 0
        '''))
        main = pre + main
        def xfree():
            A.wait(lg=xl[3]); A('s_barrier'); self.xfree = True
        self.xfree = False
        main.append(xfree)
        main.append(f's_mov_b32 {s(S_T0)}, 0xffff')
        main += [f'v_bfi_b32 {v(XR+16*rt+8+4*q1)}, {s(S_T0)}, {v(AD+6*rt+4+q1)}, {v(XR+16*rt+8+4*q1)}' for rt in range(4) for q1 in range(2)]
        sel = lambda var, et: SR + 4 * et if var else V_SEL + 2 - 2 * et
        xf = lambda rt, var, q1: XR + 16 * rt + 4 * (2 * var + q1)
        G8 = [(q1, var, tt) for q1 in range(2) for var, tt in self.dord]
        def smm(d, var, et, x, c): return f'v_mfma_f32_16x16x32_bf16 {v(d+4*et,4)}, {v(sel(var,et),4)}, {v(x,4)}, {v(d+4*et,4) if c else "0"}'
        for q1, var, tt in G8: main += [smm(self.ygrp(1-var,q1,tt), 1-var, et, xf(tt,1-var,q1), 0) for et in range(2)]
        main += [f'v_lshlrev_b32 {v(V_FIX+rt)}, 16, {v(xf(rt,0,0))}' for rt in range(4)]
        main += [f'v_and_b32 {v(r)}, 0x7fff7fff, {v(r)}' for r in (V_SEL + 2, V_SEL + 3, 6, 8, 9, 10, 11, 12)]
        for q1, var, tt in G8: main += [smm(self.ygrp(1-var,q1,tt), var, et, xf(2+tt,var,q1), 1) for et in range(2)]
        for k, (q1, var, tt) in enumerate(G8):
            y = self.ygrp(1 - var, q1, tt); x = xf(2 + tt, var, q1)
            main += [f'v_cvt_pk_bf16_f32 {v(x+i)}, {v(y+2*i)}, {v(y+2*i+1)}' for i in range(4)]
            main += [smm(y, 1-var, et, xf(tt,1-var,q1), 0) for et in range(2)]
            main += [f'v_accvgpr_write_b32 {a(AD_+4*k+i)}, {v(x+i)}' for i in range(4)]
        EPT = o.get('ept')
        if EPT is None: main += L(f'''
        s_lshr_b32 {s(S_T0)}, {s(S_U)}, 3
        s_lshl2_add_u32 {s(S_T0)}, {s(S_T0)}, {s(S_W)}
        s_lshl_b32 {s(S_T0)}, {s(S_T0)}, 13
        s_add_u32 {s(S_T0)}, {s(S_T0)}, {F1}
        v_add_u32 v15, {s(S_T0)}, {v(V_L128)}
        s_lshl2_add_u32 {s(S_T0)}, {s(S_U)}, {s(S_W)}
        s_lshl_b32 {s(S_T0)}, {s(S_T0)}, 14
        s_and_b32 {s(S_T3)}, {s(S_Q)}, {4 if o.get('zc') else 0}
        s_lshl_b32 {s(S_T3)}, {s(S_T3)}, 19
        s_add_u32 {s(S_T0)}, {s(S_T0)}, {s(S_T3)}
        v_add_u32 {v(V_ZA)}, {s(S_T0)}, {v(V_L16)}
        v_add_u32 {v(V_ZA+1)}, 8192, {v(V_ZA)}
        s_and_b32 {s(S_T3)}, {s(S_Q)}, 3
        s_lshl_b32 {s(S_T3)}, {s(S_T3)}, 11
        s_lshl1_add_u32 {s(S_AM0)}, {s(S_T3)}, {s(S_T0)}
        ''')
        else: main += L(f's_and_b32 {s(S_T3)}, {s(S_Q)}, 3\ns_lshl_b32 {s(S_T3)}, {s(S_T3)}, 11')
        main += L(f'''
        s_lshl_b32 {s(S_T1)}, {s(S_ODD)}, 11
        s_add_u32 {s(S_T1)}, {s(S_T1)}, {s(S_HB)}
        v_add_u32 v10, {s(S_T1)}, {v(V_L16)}
        v_xor_b32 v11, 2048, v10
        s_xor_b32 {s(S_T1)}, {s(S_W)}, {s(S_C)}
        s_lshl_b32 {s(S_T1)}, {s(S_T1)}, 14
        v_xor_b32 v8, {s(S_T1)}, v10
        v_xor_b32 v9, {s(S_T1)}, v11
        s_lshl3_add_u32 {s(S_RR)}, {s(S_U)}, {s(S_Q)}
        s_lshl2_add_u32 {s(S_RR)}, {s(S_RR)}, {s(S_W)}
        s_lshl_b32 {s(S_RR)}, {s(S_RR)}, 14
        s_add_u32 {s(S_RR)}, {s(S_RR)}, {WS_P}
        s_andn2_b32 {s(S_FLA)}, {s(S_RR)}, {(3<<16)|(1<<14)}
        s_add_u32 {s(S_FLA)}, {s(S_FLA)}, 7168
        v_readfirstlane_b32 {s(S_LT)}, {v(V_TAG)}
        s_and_b32 {s(S_LT)}, {s(S_LT)}, 0xbfffbfff
        s_lshl_b32 {s(S_T0)}, {s(S_U)}, {(7, 10, 10, 12, 12)[o.get('fxp', 0)]}
        s_add_u32 {s(S_T0)}, {s(S_T0)}, {(FX, FX2, FX2, FX3, FX3)[o.get('fxp', 0)]}
        v_and_b32 v6, 7, {v(V_LANE)}
        v_lshlrev_b32 v6, {7 if o.get('fxp') else 3}, v6
        ''')
        NBD = o.get('nbd', 14); PE = o.get('pe', 1)
        WR, WL, WT, F1T, W0 = o.get('wr', 64), o.get('wl', 700), o.get('wt', 128), o.get('f1t', 1000), o.get('w0', 0)
        dq = []; tq = []; cq = []; dt = {}; tt_ = {}
        for kind, k, ops in self.pipe: {'dma': dq, 'tr': tq, 'cs': cq}[kind].extend((kind, k, f) for f in ops)
        for _ in range(o.get('wpre', 0)): dt[dq.pop(0)[1]] = o.get('wpl', -300)
        nxt = W0; flagged = False; pm = None; nd = 0; chk = False
        def epoll():
            nonlocal pm
            A(f'''
            s_lshr_b32 {s(S_FAST)}, {s(S_U)}, 3
            s_lshl2_add_u32 {s(S_FAST)}, {s(S_FAST)}, {s(S_W)}
            s_lshl_b32 {s(S_FAST)}, {s(S_FAST)}, 13
            s_add_u32 {s(S_FAST)}, {s(S_FAST)}, {F1}
            buffer_load_dwordx2 {v(V_ZA,2)}, {v(V_L128)}, {s(SRD_WS,4)}, {s(S_FAST)} offen sc1
            '''); pm = A.nvm
            print('window: poll at', clk.t, 'main left', len(main), 'dq', len(dq))
        def echeck():
            nonlocal chk
            assert self.xfree
            chk = True
            print('window: check at', clk.t, 'main left', len(main), 'dq', len(dq))
            if o.get('ect'): self.stamp('p2 prepoll')
            Lp = A.newlabel('poll'); D = A.newlabel('polld')
            A.wait(vm=pm)
            A.on = False
            A(f'v_cmp_ne_u64 vcc, {v(V_ZA,2)}, {v(V_TAG,2)}\ns_mov_b32 {s(S_CNT)}, 0x20000\ns_cbranch_vccz {D}')
            A.snap()
            A.label(Lp)
            A(f'''
            buffer_load_dwordx2 {v(V_ZA,2)}, {v(V_L128)}, {s(SRD_WS,4)}, {s(S_FAST)} offen sc1
            s_sub_u32 {s(S_CNT)}, {s(S_CNT)}, 1
            s_cbranch_scc1 {D}
            s_waitcnt vmcnt(0)
            v_cmp_ne_u64 vcc, {v(V_ZA,2)}, {v(V_TAG,2)}
            s_cbranch_vccnz {Lp}
            ''')
            A.label(D)
            A.unsnap()
            A(f's_lshl2_add_u32 {s(S_AM0)}, {s(S_U)}, {s(S_W)}\ns_lshl_b32 {s(S_AM0)}, {s(S_AM0)}, 14')
            if o.get('zt'):
                A(f's_and_b32 {s(S_FAST)}, {s(S_Q)}, 3\ns_lshl_b32 {s(S_FAST)}, {s(S_FAST)}, 12\ns_add_u32 {s(S_FAST)}, {s(S_FAST)}, {s(S_AM0)}')
                self.touch(191, SRD_WS, S_FAST, 32, ' sc1')
            A.on = True
            A(f'v_add_u32 {v(V_ZA)}, {s(S_AM0)}, {v(V_L16)}\nv_add_u32 {v(V_ZA+1)}, 8192, {v(V_ZA)}')
            if o.get('ect'): self.stamp('p2 checked')
        while main or (dq and dq[0][1] < NBD) or not flagged:
            T = clk.t
            k = dq[0][1] if dq else 99
            if not flagged and T >= F1T:
                self.stamp('pre F1')
                A.wait(vm=self.zst)
                self.setflag(S_F1, ' sc1')
                self.stamp('F1 set')
                if o.get('fxp') in (2, 4): self.fxst(S_BG, V_ZA)
                flagged = True
                self.flush(self.xr)
                for _ in range(o.get('wq2', 0)):
                    k = dq[0][1]; assert k < 3 or (k < 5 and self.xfree); self.emit(dq.pop(0)[2]); nxt = max(nxt, T) + WR; dt[k] = nxt
            elif EPT is not None and flagged and pm is None and T >= EPT: epoll()
            elif EPT is not None and pm is not None and not chk and T >= o.get('ect', 99999): echeck()
            elif nd < o.get('wq', 0): assert k < 3; self.emit(dq.pop(0)[2]); nd += 1; dt[k] = o.get('wql', W0)
            elif main and main[0] is xin and not flagged and o.get('xrp') == 2: clk.t += 8
            elif k < NBD and T >= nxt and (k < 3 or (self.xfree if k < 5 else (k - 5) in tt_ and T >= tt_[k - 5] + WT)) and not (k >= NBD - PE and (main or not flagged)):
                if k == NBD - PE and pm is None and EPT is None:
                    A(f'buffer_load_dwordx2 v[12:13], v15, {s(SRD_WS,4)}, 0 offen{self.plf}'); pm = A.nvm
                if k >= 5: A.wait(lg=self.w1l[k - 5])
                self.emit(dq.pop(0)[2]); nxt = max(nxt, T - 32) + WR
                if not (dq and dq[0][1] == k):
                    dt[k] = nxt
                    if o.get('fine') == 3 and k in (0, 2, 4, 5, 6, 7, 8, 9, 10, 11, 12): self.stamp(f'wd{k} m{len(main)} T{T}')
            elif tq[0][1] in dt and tq[0][1] < 14 and T >= dt[tq[0][1]] + WL:
                k = tq[0][1]; self.emit(tq.pop(0)[2])
                if tq[0][1] != k: tt_[k] = T
            elif cq[0][1] in tt_ and T >= tt_[cq[0][1]] + WT and clk.pipe <= T + 4 and not (main and o.get('mp', 1)): self.emit(cq.pop(0)[2])
            elif main: self.emit(main.pop(0))
            else: clk.t += 8
        print('window: est', clk.t, 'tr left', len(tq), 'cs left', len(cq))
        A.clk = None
        self.post = dq + tq + cq
        if EPT is not None:
            if not o.get('ect'): self.stamp('p2 prepoll')
            if pm is None: epoll()
            if not chk: echeck()
            self.stamp('p2 polled')
            return
        self.stamp('p2 prepoll')
        if pm is None:
            A(f'buffer_load_dwordx2 v[12:13], v15, {s(SRD_WS,4)}, 0 offen{self.plf}'); pm = A.nvm
        Lp = A.newlabel('poll'); D = A.newlabel('polld')
        if o.get('tpl'):
            A('s_barrier')
            self.g2touch(2, o['tpl'])
            if o.get('ts') == 3: self.smalltouch(S_RR + 2)
        self.site('B')
        A.wait(vm=pm)
        A.on = False
        A(f'v_cmp_ne_u64 vcc, v[12:13], {v(V_TAG,2)}\ns_mov_b32 {s(S_CNT)}, 0x20000\ns_cbranch_vccz {D}')
        A.snap()
        A.label(Lp)
        A(f'''
        buffer_load_dwordx2 v[12:13], v15, {s(SRD_WS,4)}, 0 offen sc1
        s_sub_u32 {s(S_CNT)}, {s(S_CNT)}, 1
        s_cbranch_scc1 {D}
        s_waitcnt vmcnt(0)
        v_cmp_ne_u64 vcc, v[12:13], {v(V_TAG,2)}
        s_cbranch_vccnz {Lp}
        ''')
        A.label(D)
        A.unsnap()
        self.stamp('p2 polled')

    def p23(self):
        A = self.A; o = self.opt
        if o.get('idle'): A(f's_sleep {o["idle"]}')
        A.on = True
        dr = str(o.get('drop', ''))
        A.drop = lambda t: ('d' in dr and t.endswith(' lds')) or ('t' in dr and t.startswith('ds_read_b64_tr')) or ('w' in dr and t.startswith('ds_write')) or ('h' in dr and t.startswith('ds_read_b128'))
        zm = {}
        def zld(q1, ks):
            if ks or q1: A(f's_add_u32 {s(S_T3)}, {s(S_T3)}, 2048\ns_and_b32 {s(S_T3)}, {s(S_T3)}, 0x1800')
            for h in range(2):
                A(f'buffer_load_dwordx4 {v(ZF+32*q1+8*ks+4*h,4)}, {v(V_ZA+q1)}, {s(SRD_WS,4)}, {s(S_T3)} offen offset:{h*1024}{self.zldf}')
            zm[q1, ks] = A.nvm
        for k in range(6):
            zld(k >> 2, k & 3)
            if k == 3: A(f'buffer_load_dwordx2 v[6:7], v6, {s(SRD_WS,4)}, {s(S_T0)} offen{self.fxf}')
        if 'ept' in o: self.site('B')
        NA = 10
        self.debt = 0; self.tick = 0; self.nxt = o.get('dma0', 16); self.blk = -1; self.b4 = False; self.hold = False
        RATE, LAT, SLACK, TL = o.get('rate', 40) / 10, o.get('lat', 44), o.get('slack', 8), o.get('tl', 8)
        self.lat = LAT
        dq = []; tq = []; cq = []; dt = {}; tt_ = {}
        for kind, k, f in self.post: {'dma': dq, 'tr': tq, 'cs': cq}[kind].append((kind, k, f))
        self.dfree = 0
        pend_d = {k for _, k, _ in dq}; pend_t = {k for _, k, _ in tq}
        for k in range(16):
            if k not in pend_d: dt[k] = -999
            if k not in pend_t: tt_[k] = -999
        KO = [int(ch) for ch in str(o.get('ko', 123456))]
        self.items = [(0, 0), (1, 0)] + [(0, ks) for ks in KO] + [(1, ks) for ks in KO]
        P4O = [(x[0], int(x[1]), [int(ch) for ch in x[2:]]) for x in o['p4o'].split('.')] if 'p4o' in o else None
        if P4O: self.items = [(0, 0), (1, 0)] + [(h, ks) for _, h, kl in P4O for ks in kl]
        assert len(set(self.items)) == 14
        dq += [('x', 16, x) for x in self.w2_setup()]
        for b in range(14): dq += [('dma', 16 + b, f) for f in self.w2_dma(b, (16 + b) % 5)]
        tq += [('x', 16, x) for x in self.w2_setup_r()]
        self.trl = {}
        for b in range(14): tq += [('tr', 16 + b, f) for f in self.w2_tr(b, (16 + b) % 5)]
        def ins(item, f, tag=-1):
            p = min([n for n, x in enumerate(dq) if x[1] >= item] + [len(dq)])
            dq.insert(p, ('x', tag, f))
        if self.w1t < 56: ins(0, lambda: self.w1touch(self.w1t, 56))
        if 't3' in o:
            t3 = [int(x) for x in str(o['t3']).split('.')]
            for k, p in enumerate(t3): ins(p, lambda k=k: self.w2touch(k if len(t3) > 1 else None))
        if 't4' in o:
            def t4():
                if o.get('ts', 1) == 1: self.smalltouch(S_RR + 2)
                if o.get('tw2') != 1 and o.get('tpl') != 'f': self.g2touch(2)
                if o.get('ptt4'): self.ptouch((o['ptt4'],))
                if o.get('trs') == 1: self.touch(191, SRD_WS, S_RR, 56, ' sc1')
                self.nxt = max(self.nxt, self.tick) + o.get('t4gap', 60)
            ins(o['t4'], t4, -2)
        if o.get('trs', 0) > 1: ins(o['trs'], lambda: self.touch(191, SRD_WS, S_RR, 56, ' sc1'))
        S_PQ, S_PS = S_RR, S_RR + 1
        ZC = 0
        def trlg(k): return self.w1l[self.w1order[k]] if k < 16 else self.trl[k]
        def d_ok(force=False):
            if not dq: return False
            kind, k, f = dq[0]
            if kind == 'x': return force or k > -2 or self.tick >= (o.get('t4t', 40) if k == -2 else 10)
            if kind == 'st': return force or self.tick >= self.nxt
            dep = k < 5 or ((k - 5) in tt_ and (force or self.tick >= tt_[k - 5] + TL))
            return dep and (force or (self.tick >= self.nxt and not self.hold))
        def d_pop():
            kind, k, f = dq.pop(0)
            if kind == 'st': self.nxt = max(self.nxt, self.tick - SLACK) + o.get('srate', 30) / 10
            if kind == 'dma':
                if k >= 5: A.wait(lg=trlg(k - 5))
                self.nxt = max(self.nxt, self.tick - SLACK) + RATE
                if not (dq and dq[0][:2] == ('dma', k)): dt[k] = self.tick
            self.emit(f)
        def t_ok(force=False):
            if not tq: return False
            kind, k, f = tq[0]
            if k not in dt: return False
            if kind == 'x': return True
            return (k < 14 + self.dfree if k < 16 else self.blk > k - 16) and (force or (self.tick >= dt[k] + self.lat and (k < 16 or self.tick >= o.get('g0', 0))))
        def t_pop():
            kind, k, f = tq.pop(0)
            self.emit(f)
            if kind == 'tr' and not (tq and tq[0][1] == k): tt_[k] = self.tick
        def c_ok(): return cq and cq[0][1] in tt_ and self.tick >= tt_[cq[0][1]] + TL
        def ensure(k):
            while k not in tt_:
                if t_ok(True): t_pop()
                else:
                    assert d_ok(True), (k, dq[:1], tq[:1]); d_pop()
        self.ensure = ensure; self.dq = dq; self.d_pop = d_pop
        def fill(kmax, qs, k=0):
            k += self.debt; self.debt = 0
            while k < kmax:
                n0 = A.wt
                if d_ok(): d_pop()
                else:
                    for q in qs:
                        if q is None:
                            if t_ok(): t_pop(); break
                        elif q: self.emit(q.pop(0)); break
                    else: break
                k += A.wt - n0
            self.debt = max(0, k - kmax)
        def extra(kmax, qs):
            if mq: mq.pop(0)()
            elif c_ok(): self.emit(cq.pop(0)[2])
            else: return
            self.tick += 1
            fill(kmax, qs)
        def grp(n, rt): return self.ygrp(n >> 1, n & 1, rt) if rt < 2 else self.dgrp(n >> 1, n & 1, rt - 2)
        SQ = {rt: grp(0, rt) + 4 for rt in range(4)}; SM = {rt: grp(2, rt) + 4 for rt in range(4)}
        SP = o.get('sp')
        if SP: SQ = {rt: grp(0, rt | 2) + 2 * (rt & 2) for rt in range(4)}; SM = {rt: grp(2, rt | 2) + 2 * (rt & 2) for rt in range(4)}
        mq = []
        slots = [TB + 56, TB + 60]
        def dadd(q1):
            for k, (var, tt) in enumerate(self.dord):
                d = self.dgrp(var, q1, tt); y = self.ygrp(1 - var, q1, tt)
                for et in range(2):
                    A(f'v_mfma_f32_16x16x32_bf16 {v(d+4*et,4)}, {v(V_SEL+2-2*et,4)}, {a(AD_+16*q1+4*k,4)}, {v(y+4*et,4)}')
                    self.tick += 1
                    fill(P2BG, [vq, None])
            self.dfree = q1 + 1
        def swap0(q1):
            def f():
                LS = A.newlabel('nsw')
                A(f's_cmp_lg_u32 {s(S_U)}, 0\ns_cbranch_scc1 {LS}')
                A.snap()
                A('s_mov_b32 exec_lo, 0x10001\ns_mov_b32 exec_hi, 0x10001')
                for j in range(8): A(f'v_swap_b32 {v(self.ygrp(1,q1,0)+j)}, {v(self.dgrp(1,q1,0)+j)}')
                A('s_mov_b64 exec, -1\ns_nop 3')
                A.label(LS)
                A.unsnap()
            return f
        def conv(n, rt):
            g = grp(n, rt)
            ln = []
            if n == 0: ln.append(f'v_cndmask_b32 {v(g)}, {v(g)}, {v(V_FIX+rt)}, {s(S_FIX,2)}')
            if SP:
                g0 = grp(n, rt & 1); d = g0 + 2 * (rt & 2); r0 = rt & 1
                ln += [f'v_cvt_pk_bf16_f32 {v(d+j)}, {v(g+2*j)}, {v(g+2*j+1)}' for j in range(4)]
                ln.append(f'ds_write_b128 {v(10+(rt>>1))}, {v(d,4)} offset:{n*4096+(rt&1)*1024}')
                if n == 2 and rt & 2: ln += [f'v_mov_b64 {v(SM[r0],2)}, 0', f'v_mov_b64 {v(SM[r0]+2,2)}, 0']
                def sq(r, gg): mq.append(lambda: A(f'v_mfma_f32_16x16x32_bf16 {v(SQ[r],4)}, {v(gg,4)}, {v(gg,4)}, {"0" if n == 0 else v(SQ[r],4)}'))
                def sm2(gg):
                    A(f'v_smfmac_f32_16x16x64_bf16 {v(SM[r0],4)}, {v(V_ONES,4)}, {v(gg,8)}, {v(V_IDX)}')
                    slots.extend([gg, gg + 4])
                def rel2():
                    if self.tick >= o.get('wc0', 0): self.nxt += o.get('wc', 33) / 10
                    if n and not rt & 2: sq(rt, d)
                    if not rt & 2: return
                    if n & 1: slots.extend([g, g + 4])
                    if n == 0: sq(r0, g0)
                    sq(rt, d)
                    if n == 2: mq.append(lambda: sm2(grp(0, r0)))
                    if n: mq.append(lambda: sm2(g0))
                return ln + [rel2]
            ln += [f'v_cvt_pk_bf16_f32 {v(g+j)}, {v(g+2*j)}, {v(g+2*j+1)}' for j in range(4)]
            if o.get('w64'):
                ln += [f'ds_write_b64 {v(10+(rt>>1))}, {v(g+2*j,2)} offset:{n*4096+(rt&1)*1024+8*j}' for j in range(2)]
            else: ln.append(f'ds_write_b128 {v(10+(rt>>1))}, {v(g,4)} offset:{n*4096+(rt&1)*1024}')
            def sm(gg, first):
                A(f'v_mfma_f32_16x16x32_bf16 {v(SM[rt],4)}, {v(V_ONES,4)}, {v(gg,4)}, {"0" if first else v(SM[rt],4)}')
                slots.append(gg)
            def rel():
                if self.tick >= o.get('wc0', 0): self.nxt += o.get('wc', 33) / 10
                if n & 1: slots.append(g + 4)
                mq.append(lambda: A(f'v_mfma_f32_16x16x32_bf16 {v(SQ[rt],4)}, {v(g,4)}, {v(g,4)}, {"0" if n == 0 else v(SQ[rt],4)}'))
                if n == 2: mq.append(lambda: sm(grp(0, rt), True))
                if n: mq.append(lambda: sm(g, False))
            ln.append(rel)
            return ln
        def half(q1):
            return (conv(q1, 1) + conv(q1, 3) + conv(2 + q1, 1) + conv(2 + q1, 3)
                    + conv(q1, 0) + conv(q1, 2) + [swap0(q1)] + conv(2 + q1, 0) + conv(2 + q1, 2))
        def take(q, kmax):
            k = 0
            while q and k < kmax:
                n0 = len(A.lines); self.emit(q.pop(0)); k += len(A.lines) - n0
            return k
        P2BG = o.get('p2bg', 2)
        vq = []
        n0 = A.wt
        while A.wt - n0 < o.get('shw', 100):
            if t_ok(): t_pop()
            elif cq and cq[0][1] in tt_: self.emit(cq.pop(0)[2]); A.wt += 4
            elif d_ok() and dq[0][0] == 'x': d_pop()
            else: break
        zs = set(); ZSA = o.get('zsa', 0)
        def zsw(k):
            if k in zs or k > 7: return
            zs.add(k); z = ZF + 8 * k
            A.wait(vm=zm[k >> 2, k & 3])
            if k == 0: self.stamp('Z first')
            A(f'v_swap_b32 {v(z+2)}, {v(z+4)}')
            A(f'v_swap_b32 {v(z+3)}, {v(z+5)}')
        for q1 in range(2):
            if q1: dadd(0); vq += half(0)
            for ks in range(4):
                z = ZF + 32 * q1 + 8 * ks
                zsw(4 * q1 + ks)
                n = 0
                for tt in (1, 0):
                    for var in range(2):
                        for et in range(2):
                            acc = self.ygrp(var, q1, tt) + 4 * et
                            A(f'v_mfma_f32_16x16x32_bf16 {v(acc,4)}, {v(z+4*et,4)}, {v(TB+16*ks+8*tt+4*var,4)}, {v(acc,4)}')
                            n += 1; self.tick += 1
                            if n == 8 - ZSA and ks < 3 and 4 * q1 + ks + 1 >= o.get('zs0', 1) and ZSA: zsw(4 * q1 + ks + 1)
                            elif q1 == 0 and ks < 2 and n == 1: zld(1, 2 + ks)
                            elif q1 == 0:
                                if (ks, n) > (1, 1): fill(P2BG, [None])
                            else:
                                fill(o.get('p2v', 3), [vq])
                                if mq and n % 2 == 0: extra(2, [vq])
        self.stamp('Z landed')
        dadd(1)
        while vq:
            if mq: extra(2, [vq])
            else: take(vq, 2)
        A.wait(lg=A.nlg)
        A('s_barrier')
        self.stamp('half 0')
        free = [TB + 4 * k for k in range(14)]
        acc = {}
        for t in range(4):
            for rt in range(4 if t < 3 else 2): acc[t, rt] = free.pop(0)
        started = set()
        def mm(t, rt, b, frag):
            c = v(acc[t, rt], 4)
            A(f'v_mfma_f32_16x16x32_bf16 {c}, {a(16*b+4*t,4)}, {v(frag,4)}, {c if (t, rt) in started else "0"}')
            started.add((t, rt))
        fr = {}; fl_ = {}
        NL = o.get('nl', 4); GO = o.get('go')
        LB = list(range(16 - NL, 16))
        RD = [(b, rt) for b in range(16) for rt in range(4)]
        if GO: RD = RD[:64 - 4 * NL] + [(b, rt) for rt in range(4) for b in (LB[::-1] if rt & 1 else LB)]
        hip = [0, 0]
        def hrd(k):
            ops = []
            for b, rt in RD[4 * k:4 * k + 4]:
                q1, ip, var = b >> 3, (b >> 1) & 3, b & 1
                for r in ((0, 1) if 4 * k < 64 - 4 * NL or not GO else (rt >> 1,)):
                    if hip[r] != ip: ops.append(f'v_xor_b32 {v(8+r)}, {(ip^hip[r])<<14}, {v(8+r)}'); hip[r] = ip
                def f(b=b, rt=rt, var=var, q1=q1):
                    fr[b, rt] = slots.pop(0)
                    A(f'ds_read_b128 {v(fr[b,rt],4)}, {v(8+(rt>>1))} offset:{(2*var+q1)*4096+(rt&1)*1024}')
                    fl_[b, rt] = A.nlg
                ops.append(f)
            return ops
        vq = half(1)
        while len(slots) < 4: extra(0, [])
        self.flush(hrd(0))
        while mq: extra(2, [None, vq] if o.get('tprio', 1) else [vq])
        take(vq, o.get('h1pre', 6))
        A(f'''
        s_getreg_b32 {s(S_T0)}, hwreg(HW_REG_XCC_ID)
        s_and_b32 {s(S_T0)}, {s(S_T0)}, 15
        v_subrev_u32 v6, {s(S_T0)}, v6
        v_cmp_ne_u64 vcc, v[6:7], {v(V_TAG,2)}
        s_and_b32 {s(S_T0)}, {s(S_Q)}, {4 if o.get('npl', 3) < 4 else 0}
        s_lshr_b32 {s(S_FAST)}, vcc_lo, {s(S_T0)}
        s_and_b32 {s(S_FAST)}, {s(S_FAST)}, {15 if o.get('npl', 3) < 4 else 255}
        s_cselect_b32 {s(S_FAST)}, 0, 1
        ''')
        LE = A.newlabel('noe')
        A(f'''
        s_or_b32 {s(S_T0)}, s2, {s(S_W)}
        s_cmp_lg_u32 {s(S_T0)}, 0
        s_cbranch_scc1 {LE}
        ''')
        A.snap()
        A(f's_mov_b32 {s(S_T0)}, {FE}')
        self.setflag(S_T0, ' sc1')
        A.label(LE); A.unsnap()
        st = L(f'''
        s_lshl_b32 {s(S_T0)}, {s(S_ODD)}, 10
        s_lshl3_add_u32 {s(S_T0)}, {s(S_W)}, {s(S_T0)}
        s_add_u32 {s(S_T0)}, {s(S_T0)}, {L_STAT}
        v_lshl_add_u32 v6, {v(V_L15)}, 5, {s(S_T0)}
        v_xor_b32 v7, 1024, v6
        ''')
        SO = dict(SM)
        if SP:
            SO = {rt: SM[rt | 2] + 2 - (rt & 2) for rt in range(4)}
            for r in (1, 0):
                for rt in (r, r + 2): st += [f'v_cndmask_b32 {v(SQ[rt])}, {v(SQ[rt])}, {v(SQ[rt]+1)}, {s(S_XO,2)}',
                   f'v_cndmask_b32 {v(SQ[rt]+2)}, {v(SQ[rt]+2)}, {v(SQ[rt]+3)}, {s(S_XO,2)}',
                   f'v_cndmask_b32 {v(SO[rt]+1)}, {v(SQ[rt])}, {v(SQ[rt]+2)}, {s(S_XO+2,2)}']
                st += [f'v_add_f32 {v(SO[r+2])}, {v(SM[r]+2)}, {v(SM[r]+3)}', f'v_add_f32 {v(SO[r])}, {v(SM[r])}, {v(SM[r]+1)}']
        for rt in range(0 if SP else 4):
            st += [f'v_cndmask_b32 {v(SM[rt]+1)}, {v(SQ[rt])}, {v(SQ[rt]+1)}, {s(S_XO,2)}',
                   f'v_cndmask_b32 {v(SM[rt]+2)}, {v(SQ[rt]+2)}, {v(SQ[rt]+3)}, {s(S_XO,2)}',
                   f'v_cndmask_b32 {v(SM[rt]+1)}, {v(SM[rt]+1)}, {v(SM[rt]+2)}, {s(S_XO+2,2)}']
        st.append(f's_mov_b64 exec, {s(S_M,2)}\n' + '\n'.join(f'ds_write_b64 {v(6+(rt>>1))}, {v(SO[rt],2)} offset:{(rt&1)*512}' for rt in range(4)) + '\ns_mov_b64 exec, -1')
        def mark(): self.stm = A.nlg
        st.append(mark)
        SB0, SB1 = SQ[2], SQ[3]
        BF = [SM[rt] for rt in range(4)]
        RS = SQ[0]
        s2 = L(f'''
        s_lshl_b32 {s(S_T2)}, {s(S_ODD)}, 10
        s_add_u32 {s(S_T2)}, {s(S_T2)}, {L_STAT}
        v_lshlrev_b32 {v(V_FIX)}, 5, {v(V_LANE)}
        v_xor_b32 {v(V_FIX)}, {s(S_T2)}, {v(V_FIX)}
        ds_read_b128 {v(SB0,4)}, {v(V_FIX)}
        ds_read_b128 {v(SB1,4)}, {v(V_FIX)} offset:16
        ''')
        def w_(): A.wait(lg=self.s2m)
        s3 = [w_] + L(f'''
        v_add_f32 {v(SB0)}, {v(SB0)}, {v(SB0+2)}
        v_add_f32 {v(SB0+1)}, {v(SB0+1)}, {v(SB0+3)}
        v_add_f32 {v(SB1)}, {v(SB1)}, {v(SB1+2)}
        v_add_f32 {v(SB1+1)}, {v(SB1+1)}, {v(SB1+3)}
        v_add_f32 {v(SB0)}, {v(SB0)}, {v(SB1)}
        v_add_f32 {v(SB0+1)}, {v(SB0+1)}, {v(SB1+1)}
        v_mul_f32 {v(SB0)}, {f2u(-1/512)}, {v(SB0)}
        v_mul_f32 {v(SB0+1)}, {f2u(1/512)}, {v(SB0+1)}
        v_fma_f32 {v(SB0+1)}, -{v(SB0)}, {v(SB0)}, {v(SB0+1)}
        v_max_f32 {v(SB0+1)}, 0, {v(SB0+1)}
        v_add_f32 {v(SB0+1)}, {f2u(1e-5)}, {v(SB0+1)}
        v_rcp_f32 {v(RS)}, {v(SB0+1)}
        v_sqrt_f32 {v(SB0+1)}, {v(SB0+1)}
        v_mov_b32 {v(RS+2)}, {v(RS)}
        v_cvt_pk_bf16_f32 {v(SB1)}, {v(SB0)}, {v(SB0+1)}
        v_lshlrev_b32 {v(SB0+2)}, 16, {v(SB1)}
        v_and_b32 {v(SB0+3)}, 0xffff0000, {v(SB1)}
        v_sub_f32 {v(SB0+2)}, {v(SB0)}, {v(SB0+2)}
        v_sub_f32 {v(SB0+3)}, {v(SB0+1)}, {v(SB0+3)}
        v_cvt_pk_bf16_f32 {v(SB1+1)}, {v(SB0+2)}, {v(SB0+3)}
        v_and_b32 {v(SB1+2)}, 0xffff, {v(SB1)}
        v_permlane32_swap_b32 {v(RS)}, {v(RS+2)}
        v_mov_b32 {v(RS+1)}, {v(RS)}
        v_mov_b32 {v(RS+3)}, {v(RS+2)}
        v_permlane16_swap_b32 {v(RS)}, {v(RS+1)}
        v_permlane16_swap_b32 {v(RS+2)}, {v(RS+3)}
        ''')
        for rt in range(4):
            s3 += [f'v_cmp_eq_u32 vcc, {rt}, {v(V_G)}', f'v_mov_b32 {v(BF[rt]+3)}, 0'] + [f'v_cndmask_b32 {v(BF[rt]+k)}, 0, {v(SB1+k)}, vcc' for k in range(3)]
        V_BIAS = SQ[1]
        def bld():
            for t in range(3): A(f'buffer_load_ushort {v(V_BIAS+t)}, {v(V_BT)}, {s(SRD_B1,4)}, {s(S_T1)} offen offset:{32*t}')
            A(f'buffer_load_ushort {v(V_BIAS+3)}, {v(V_BT)}, {s(SRD_B1,4)}, {s(S_T0)} offen offset:96')
            self.bm = A.nvm
        bias = L(f'''
        s_mul_i32 {s(S_T0)}, {s(S_Q)}, 448
        s_lshr_b32 {s(S_T1)}, {s(S_W)}, 1
        s_mul_i32 {s(S_T1)}, {s(S_T1)}, 224
        s_add_u32 {s(S_T0)}, {s(S_T0)}, {s(S_T1)}
        s_lshl_b32 {s(S_T1)}, {s(S_ODD)}, 7
        s_add_u32 {s(S_T1)}, {s(S_T1)}, {s(S_T0)}
        v_lshlrev_b32 {v(V_BT)}, 1, {v(V_L15)}
        ''') + [bld]
        csl = [lambda: A.wait(vm=self.bm)]
        for t in range(4):
            c = V_CS + 4 * t
            if SP and not t & 1: csl += [f'v_add_f32 {v(c+6)}, {v(c+2)}, {v(c+3)}', f'v_add_f32 {v(c+2)}, {v(c)}, {v(c+1)}']
            csl += L(f'''
            v_lshlrev_b32 {v(c+3)}, 16, {v(V_BIAS+t)}
            v_cvt_pk_bf16_f32 {v(c)}, {v(c+2)}, {v(c+3)}
            v_lshlrev_b32 {v(c+3)}, 16, {v(c)}
            v_sub_f32 {v(c+2)}, {v(c+2)}, {v(c+3)}
            v_mov_b32 {v(c+1)}, {v(c)}
            v_cvt_pk_bf16_f32 {v(c+2)}, {v(c+2)}, 0
            v_mov_b32 {v(c+3)}, 0
            ''') + [lambda t=t: csd.add(t)]
        csd = set()
        FK = o.get('fk', 22) / 10
        B3 = o.get('b3', 4); B4 = o.get('b4', 99)
        def mark2(): self.s2m = A.nlg
        q2 = []
        nrd = 1
        inv = {b: k for k, b in enumerate(self.w1order)}
        for b in range(16 - NL):
            self.blk = b
            if o.get('fine') == 1 and b: self.stamp(f'blk{b} t{self.tick} d{A.nvm}')
            ensure(inv[b])
            if b == B3:
                print('at B3: vq', len(vq), 'mq', len(mq), 'st', len(st), 'tick', self.tick)
                while vq or mq:
                    if mq: extra(2, [vq])
                    else: take(vq, 2)
                self.flush(st)
                A.wait(lg=self.stm)
                A('s_barrier')
                q2 = s2 + [mark2] + bias + s3
            hq = []
            while nrd < min(8 if b < B3 else 16, b + o.get('hpf', 99)) and len(slots) - sum(callable(x) for x in hq) >= 4 and len(hq) < o.get('hmax', 8):
                hq += hrd(nrd); nrd += 1
            if b == B4:
                assert nrd == 16 and not hq, (nrd, len(hq))
                A.wait(lg=A.nlg)
                A('s_barrier')
                self.b4 = True
            for rt in range(4):
                for t in range(4 if rt < 2 else 3):
                    k = A.wait(lg=max(fl_[b, rt], self.w1l[b]))
                    mm(t, rt, b, fr[b, rt]); self.tick += 1
                    qs = ([hq, None, vq] if o.get('tprio', 1) else [hq, vq, None]) + [[] if mq or (SP and vq) else st, q2, [] if cq or b < o.get('csb', 9) else csl]
                    fill(FK, qs, k * SW)
                    extra(FK, qs)
            self.flush(hq)
            for rt in range(4): slots.append(fr[b, rt])
        self.blk = 16 - NL
        print('middle left: dq', len(dq), 'tq', len(tq), 'cq', len(cq), 'q2', len(q2), 'cs', len(csl), 'tick', self.tick)
        for b in LB: ensure(inv[b])
        while cq: self.emit(cq.pop(0)[2])
        if not GO: self.flush(q2); self.flush(csl)
        self.stamp('mid done')
        if not GO: slots += [SB0, SB1, SQ[1]]; SB0 = None
        V_BIAS = V_CS
        print('free slots', len(slots))
        V_IB, V_FC = 8, 9
        ep = []
        RF = {}; rv = {}; sw = {}; T2 = {}; self.rst = 0; self.nst = 0
        RSP = o.get('rs') is not None; RSF = ('' if o.get('rs') == 'pl' else ' ' + o.get('rs')) if RSP else ' sc1'
        def epi(t, nt, rts=None):
            ln = []
            def st(c, off):
                if off >= 4096: A(f's_add_u32 {s(S_PS)}, {s(S_PQ)}, 4096')
                A(f'buffer_store_dwordx4 {v(c,4)}, {v(V_L16)}, {s(SRD_WS,4)}, {s(S_PS if off >= 4096 else S_PQ)} offen offset:{off&4095}{RSF}')
                self.rst = A.nvm; self.nst += 1
            for rt in rts or (2 * nt, 2 * nt + 1):
                c = acc[t, rt]; d = c if t == 0 else acc[0, rt] + 2 if t == 1 else acc[t, 2 * nt] + 2 * (rt & 1)
                ln += [f'v_mul_f32 {v(c+i)}, {v(c+i)}, |{v(c+i)}|' for i in range(4)]
                ln += [f'v_cvt_pk_bf16_f32 {v(d+i)}, {v(c+2*i)}, {v(c+2*i+1)}' for i in range(2)]
                ln += [f'v_pk_max_i16 {v(d+i)}, {v(d+i)}, 0' for i in range(2)]
                if t == 1:
                    ln.append(lambda rt=rt, c=c: (st(acc[0, rt], rt * 1024), RF.__setitem__((0, rt), ('v', acc[0, rt])), slots.append(c)))
                elif t and rt & 1:
                    ln.append(lambda c=c: (st(acc[t, 2 * nt], 4096 + nt * 1024 if t == 2 else 6144), slots.append(c), t == 3 and not RSP and slots.append(acc[3, 0])))
            return ln
        def reg(x, n=4, off=0): return (a if x[0] == 'a' else v)(x[1] + off, n)
        GLF = {'pl': ''}.get(o.get('glf'), ' ' + o.get('glf', 'sc1'))
        def rload(js):
            for ks in js:
                if ks < 4:
                    A(f's_xor_b32 {s(S_PS)}, {s(S_PQ)}, {ks<<16}')
                    for rt in range(4):
                        RF[ks, rt] = ('a', (224, 240, 0)[KO.index(ks) - min(KO.index(k) for k in (1, 2, 3))] + 4 * rt)
                        A(f'buffer_load_dwordx4 {reg(RF[ks,rt])}, {v(V_L16)}, {s(SRD_WS,4)}, {s(S_PS)} offen offset:{rt*1024}{GLF}')
                        rv[ks, rt] = A.nvm
                    continue
                if ks == 6: A(f's_lshl_b32 {s(S_T0)}, {s(S_ODD)}, 17\ns_xor_b32 {s(S_T0)}, {s(S_T0)}, {s(S_PQ)}')
                for k in range(2):
                    for e in range(2):
                        if ks == 4 and e == 0: RF[ks, 2 * k] = ('v', acc[2, 2 * k]); continue
                        RF[ks, 2 * k + e] = ('v', slots.pop(0))
                        if ks == 6: A(f's_xor_b32 {s(S_PS)}, {s(S_T0)}, {(e<<16)|(k<<14)|4096}')
                        elif ks == 5 or k == 0: A(f's_xor_b32 {s(S_PS)}, {s(S_PQ)}, {((2*(ks-4)+e)<<16)|4096}')
                        A(f'buffer_load_dwordx4 {reg(RF[ks,2*k+e])}, {v(V_L16)}, {s(SRD_WS,4)}, {s(S_PS)} offen offset:{2048 if ks == 6 else k*1024}{GLF}')
                    rv[ks, 2 * k] = rv[ks, 2 * k + 1] = A.nvm
                    sw[ks, k] = True
        def rswap(ks, k):
            if not sw.pop((ks, k), False): return
            A.wait(vm=rv[ks, 2 * k])
            for i in range(2): A(f'v_swap_b32 {reg(RF[ks,2*k],1,2+i)}, {reg(RF[ks,2*k+1],1,i)}')
        A.wait(lg=max(self.w1l.values()) if GO else max(max(fl_.values()), max(self.w1l.values())))
        EPK = o.get('epk', 22) / 10
        ml = []
        for t in [int(ch) for ch in str(o.get('tord', '0123')).zfill(4)]:
            for nt in range(2 if t < 3 else 1):
                ml += [('a', t, rt, b) for b in LB + [16] for rt in (2 * nt, 2 * nt + 1)]
        if GO:
            GO = [[int(ch) for ch in g] for g in str(GO).split('.')]
            ml = [('a', t, rt, b) for rt in range(4) for t in GO[rt] for b in (LB[::-1] if rt & 1 else LB) + [16]]
            if o.get('lo'):
                LO = [(int(x[0]), int(x[1])) for x in o['lo'].split('.')]
                GO = [[t for t, r in LO if r == rt] for rt in range(4)]
                ml = [('a', t, rt, b) for t, rt in LO for b in (LB[::-1] if rt & 1 else LB) + [16]]
            if o.get('cd'): ml.insert(2 * NL, ml.pop(NL))
        N3 = len(ml)
        NM = o.get('nm', 2)
        if o.get('art'): ml += [('b', j, 0, rt) for rt in range(4) for j in range(8)]
        else: ml += [('b', j, 0, rt) for j in range(8) for rt in range(4)]
        for ks in KO[:6-NM]: ml += [('b', j, ks, rt) for rt in range(4) for j in range(4)]
        for j in range(4): ml += [('b', j, ks, rt) for ks in KO[6-NM:] for rt in range(4)]
        for j in range(4, 8): ml += [('b', j, ks, rt) for ks in KO for rt in range(4)]
        if P4O:
            ml = ml[:N3 + 32]
            for mode, h, kl in P4O:
                if mode == 'k': ml += [('b', 4 * h + tj, ks, rt) for ks in kl for rt in range(4) for tj in range(4)]
                elif mode == 't': ml += [('b', 4 * h + tj, ks, rt) for tj in range(4) for ks in kl for rt in range(4)]
                else: ml += [('b', 4 * h + tj, ks, rt) for tj in range(4) for rt in range(4) for ks in kl]
        use = {}; lastb = {}
        for n, m in enumerate(ml):
            if m[0] == 'b': lastb[self.items.index((m[1] >> 2, m[2]))] = n
        pa = {}; due = []; cnt = {}
        def dual(fn):
            LS = A.newlabel('slow'); LJ = A.newlabel('dj')
            A(f's_cmp_eq_u32 {s(S_FAST)}, 0\ns_cbranch_scc1 {LS}')
            A.snap(); fn(''); A(f's_branch {LJ}'); A.label(LS); A.unsnap()
            fn(' sc1'); A.label(LJ)
        def pack(j):
            return [f'v_cvt_pk_bf16_f32 {v(pa[j,rt&2]+2*(rt&1)+i)}, {v(pa[j,rt]+2*i)}, {v(pa[j,rt]+2*i+1)}' for rt in range(4) for i in range(2)]
        self.nred = 0; self.gb = False
        def red(j):
            x = 3 - (j & 3)
            def wr():
                assert self.gb and (j < 4 or 0 in rdm)
                for k in range(2): A(f'ds_write_b128 {v(V_IB)}, {v(pa[j,2*k],4)} offset:{(x-1)*2048+(k^(x&1))*1024}')
                A(f'v_xor_b32 {v(V_IB)}, {(x^(x-1))<<14}, {v(V_IB)}')
                slots.extend(pa[j, rt] for rt in (1, 3, 0, 2)); self.nred += 1
            return pack(j) + [wr]
        rdm = {}
        AR = (32, 56)
        self.sps = False; SPS = (156, 10, 148)
        def spsel(js):
            assert not dq and not cq and not mq
            self.sps = True; p, q, z = SPS
            A(f'''
            v_mov_b32 {v(p+1)}, 0x3f80
            s_mov_b32 vcc_lo, 0x0f00000f
            s_mov_b32 vcc_hi, 0x0f00000f
            v_cndmask_b32 {v(p+1)}, {v(p+1)}, 1.0, {s(S_XO,2)}
            v_mov_b32 {v(V_IDX)}, 0x44444444
            v_mov_b32 {v(q)}, 0x4444eeee
            v_cndmask_b32 {v(p)}, 0, {v(p+1)}, vcc
            v_cndmask_b32 {v(q+1)}, 0, {v(p+1)}, vcc
            s_mov_b32 vcc_lo, 0xf00000f0
            s_mov_b32 vcc_hi, 0xf00000f0
            v_cndmask_b32 {v(V_IDX)}, {v(V_IDX)}, {v(q)}, {s(S_XO+2,2)}
            v_cndmask_b32 {v(p+2)}, 0, {v(p+1)}, vcc
            v_cndmask_b32 {v(q+3)}, 0, {v(p+1)}, vcc
            s_mov_b32 vcc_lo, 0x33333333
            s_mov_b32 vcc_hi, 0xcccccccc
            v_mov_b32 {v(p+1)}, 0
            v_mov_b32 {v(p+3)}, 0
            v_mov_b32 {v(q)}, 0
            v_mov_b32 {v(q+2)}, 0
            v_cndmask_b32 {v(z+1)}, 0, {v(p)}, vcc
            v_cndmask_b32 {v(z+3)}, 0, {v(p+2)}, vcc
            v_mov_b32 {v(z)}, 0
            v_mov_b32 {v(z+2)}, 0
            ''')
        def rbar(js):
            hf = js[0]
            while self.nred < 3 * (hf + 1): self.emit(ep.pop(0))
            if hf == 0:
                for k in range(14): ensure(16 + k)
            assert all(lastb[b] < self.n for b in (2 + hf, 3 + hf))
            A.wait(lg=A.nlg); A('s_barrier')
            for k in ((4, 5, 0, 2, 1, 3) if self.sps else range(6)):
                A(f'ds_read_b128 {a(AR[hf]+4*((0, 2, 1, 3, 4, 5)[k] if self.sps else k),4)}, {v(V_IB)} offset:{k*1024}'); rdm[hf, k] = A.nlg
            rdm[hf] = True
            if hf == 0: A(f'v_xor_b32 {v(V_IB)}, {65536|(3<<14)}, {v(V_IB)}')
        def radd(js):
            hf = js[0]; j = 4 * hf + 3
            assert hf or all(cnt[j, rt] == 7 for rt in range(4))
            for x in ((2, 1) if self.sps else range(3)):
                for rt in range(4):
                    k = A.wait(lg=rdm[hf, 2 * x + (rt >> 1)])
                    if self.sps and x == 1: A(f'v_smfmac_f32_16x16x64_bf16 {v(pa[j,rt],4)}, {v(SPS[rt&1],4)}, {a(AR[hf]+8*(rt>>1),8)}, {v(V_IDX)}'); k += 1 / SW
                    else: A(f'v_mfma_f32_16x16x32_bf16 {v(pa[j,rt],4)}, {v(V_SEL+2-2*(rt&1),4)}, {a(AR[hf]+8*x+4*(rt>>1),4)}, {v(pa[j,rt],4)}')
                    self.tick += 1
                    fill(EPK, [ep, None, misc if self.n >= MB else []], k * SW)
            if hf == 0: due.append((self.n + 1, send()))
        self.sent = None
        def send():
            c = [pa[3, rt] for rt in range(4)]
            q = []
            for k in range(3):
                q += [f'v_cvt_pk_bf16_f32 {v(c[k]+i)}, {v(c[k]+2*i)}, {v(c[k]+2*i+1)}' for i in range(2)]
                q.append(f'v_cvt_pk_bf16_f32 {v(c[k]+2)}, {v(c[3]+2*k)}, {v(c[3]+2*k+1)}' if k < 2 else f'v_mov_b32 {v(c[k]+2)}, {s(S_LT)}')
                q.append(f'v_mov_b32 {v(c[k]+3)}, {s(S_LT)}')
            def st():
                A(f's_xor_b32 {s(S_PS)}, {s(S_PQ)}, {(4<<16)|8192}')
                for k in range(3): A(f'buffer_store_dwordx4 {v(c[k],4)}, {v(V_L16)}, {s(SRD_WS,4)}, {s(S_PS)} offen offset:{k*1024} sc1')
                self.sent = A.nvm
                slots.extend(pa[3, rt] for rt in (3, 0, 1, 2))
                if o.get('fine') == 2: self.stamp(f'sent n{self.n-N3}')
            return q + [st]
        def flag(js):
            while self.nst < 7: self.emit(ep.pop(0))
            A(f's_and_b32 {s(S_T0)}, {s(S_Q)}, 3\ns_lshl1_add_u32 {s(S_T0)}, {s(S_T0)}, {s(S_ODD)}\ns_lshl3_add_u32 {s(S_T0)}, {s(S_T0)}, {s(S_FLA)}')
            A.wait(vm=self.rst)
            A('s_mov_b64 exec, 1')
            def fl(sc):
                if sc and RSP:
                    assert self.n <= N3 + 32 and (4, 0) not in RF
                    A.snap(); on = A.on; A.on = False
                    A('s_mov_b64 exec, -1')
                    for rt in range(4): A(f'buffer_store_dwordx4 {v(acc[0,rt],4)}, {v(V_L16)}, {s(SRD_WS,4)}, {s(S_PQ)} offen offset:{rt*1024} sc1')
                    hi23()
                    A('s_waitcnt vmcnt(0)\ns_mov_b64 exec, 1')
                    A.on = on; A.unsnap()
                A(f'buffer_store_dwordx2 {v(V_TAG,2)}, off, {s(SRD_WS,4)}, {s(S_T0)}{sc}')
            dual(fl)
            A('s_mov_b64 exec, -1')
        def hi23():
            A(f's_add_u32 {s(S_PS)}, {s(S_PQ)}, 4096')
            for k, c in enumerate((acc[2, 0], acc[2, 2], acc[3, 0])): A(f'buffer_store_dwordx4 {v(c,4)}, {v(V_L16)}, {s(SRD_WS,4)}, {s(S_PS)} offen offset:{k*1024} sc1')
        def clean(js):
            if 0 in js:
                assert sw.get((4, 0), True) and sw.get((4, 1), True) and ((4, 0) not in RF or ((4, 0) in sw and (4, 1) in sw))
                hi23(); slots.append(acc[3, 0])
            if 1 in js:
                A(f's_xor_b32 {s(S_PS)}, {s(S_PQ)}, {1<<16}')
                A.wait(vm=rv[1, 3])
                for rt in range(4): A(f'buffer_store_dwordx4 {reg(RF[1,rt])}, {v(V_L16)}, {s(SRD_WS,4)}, {s(S_PS)} offen offset:{rt*1024} sc1')
            if 2 in js: slots.append(acc[3, 0])
            if 3 in js:
                LS = A.newlabel('nwb')
                A(f's_lshr_b32 {s(S_T0)}, s2, 3\ns_lshl2_add_u32 {s(S_T0)}, {s(S_T0)}, {s(S_W)}\ns_cmp_lg_u32 {s(S_T0)}, {o.get("wbw", 0)}\ns_cbranch_scc1 {LS}')
                LJ = A.newlabel('wj')
                A.snap(); A('buffer_wbl2 sc1'); A(f's_branch {LJ}'); A.label(LS); A.unsnap()
                A(f'buffer_load_dword {v(V_PL)}, off, {s(SRD_WS,4)}, {s(S_FLA)}'); A.label(LJ)
        pm = {}; V_PL = V_ONES
        def pissue(js):
            A(f'buffer_load_dwordx2 {v(V_PL,2)}, {v(V_FC)}, {s(SRD_WS,4)}, {s(S_FLA)} offen sc1')
            pm[js] = A.nvm
        def pcheck(js):
            if js not in pm: pissue(js)
            Lp = A.newlabel('poll'); D = A.newlabel('polld')
            A.wait(vm=pm[js])
            A.on = False
            A(f'v_cmp_ne_u64 vcc, {v(V_PL,2)}, {v(V_TAG,2)}\ns_mov_b32 {s(S_CNT)}, 0x20000\ns_cbranch_vccz {D}')
            A.snap()
            A.label(Lp)
            A(f'''
            buffer_load_dwordx2 {v(V_PL,2)}, {v(V_FC)}, {s(SRD_WS,4)}, {s(S_FLA)} offen sc1
            s_sub_u32 {s(S_CNT)}, {s(S_CNT)}, 1
            s_cbranch_scc1 {D}
            s_waitcnt vmcnt(0)
            v_cmp_ne_u64 vcc, {v(V_PL,2)}, {v(V_TAG,2)}
            s_cbranch_vccnz {Lp}
            ''')
            A.label(D)
            A.unsnap()
            A.on = True
        PD = []
        PR = []; self.oolc = []
        def pload(js=None):
            if js and js[0]:
                PR.append([slots.pop(0) for _ in range(3)])
                for k in range(3): A(f'buffer_load_dwordx4 {v(PR[-1][k],4)}, {v(V_L16)}, {s(SRD_WS,4)}, {s(S_PS)} offen offset:{k*1024} sc1')
                return
            if not PD and self.sps:
                g = [x for x in slots if x + 4 in slots][0]; slots.remove(g); slots.remove(g + 4); PD.extend([g, g + 4, slots.pop(0)])
            if not PD: PD.extend(slots.pop(0) for _ in range(3))
            A(f's_add_u32 {s(S_PS)}, {s(S_PQ)}, 8192')
            for k in range(3): A(f'buffer_load_dwordx4 {v(PD[k],4)}, {v(V_L16)}, {s(SRD_WS,4)}, {s(S_PS)} offen offset:{k*1024} sc1')
            self.plm = A.nvm
        def kcheck(js):
            assert len(misc) in (0, self.nmisc)
            Lc = A.newlabel('chk'); D = A.newlabel('got')
            t = V_PL
            if PR:
                def ck(R): return [f'v_xor_b32 {v(t)}, {s(S_LT)}, {v(R[0]+3)}'] + [f'v_bitop3_b32 {v(t)}, {v(t)}, {v(R[k]+3)}, {s(S_LT)} bitop3:0xf6' for k in (1, 2)] + [f'v_cmp_ne_u32 vcc, 0, {v(t)}']
                A.wait(vm=self.plm); assert A.nvm - self.plm == 3 * len(PR)
                A.on = False
                for x in ck(PD): A(x)
                PR.append([slots.pop(0) for _ in range(3)]); n = len(PR)
                q = ['L_rt:', f's_movk_i32 {s(S_CNT)}, 0x2000', 'L_rt0:']
                for i in range(n):
                    q += [f'buffer_load_dwordx4 {v(PR[i-1][k],4)}, {v(V_L16)}, {s(SRD_WS,4)}, {s(S_PS)} offen offset:{k*1024} sc1' for k in range(3)]
                    q += [f's_waitcnt vmcnt({3*(n-1)})'] + ck(PR[i]) + [f's_cbranch_vccz L_rc{i}']
                q += [f's_sub_u32 {s(S_CNT)}, {s(S_CNT)}, 1', 's_cbranch_scc0 L_rt0']
                for i in range(n):
                    q += [f'L_rc{i}:'] + [f'v_mov_b64 {v(PD[k]+j,2)}, {v(PR[i][k]+j,2)}' for k in range(3) for j in (0, 2)] + ['s_nop 1', f's_branch {D}']
                q = [x if x.endswith(':') else '    ' + x for x in q]
                if o.get('rin'):
                    A(f's_cbranch_vccz {D}')
                    for x in q[:-1]: A.raw(x)
                else:
                    A('s_cbranch_vccnz L_rt'); self.oolc = q
                A.label(D)
                A.on = True
                return
            A(f's_movk_i32 {s(S_CNT)}, 0x4000')
            A.wait(vm=self.plm)
            A.on = False
            A.label(Lc)
            A(f'v_xor_b32 {v(t)}, {s(S_LT)}, {v(PD[0]+3)}')
            for k in (1, 2): A(f'v_bitop3_b32 {v(t)}, {v(t)}, {v(PD[k]+3)}, {s(S_LT)} bitop3:0xf6')
            A(f'v_cmp_ne_u32 vcc, 0, {v(t)}\ns_cbranch_vccz {D}')
            A.snap()
            pload()
            A(f's_sub_u32 {s(S_CNT)}, {s(S_CNT)}, 1\ns_waitcnt vmcnt(0)\ns_cbranch_scc0 {Lc}')
            A.label(D)
            A.unsnap()
            A.on = True
        Q3 = []
        def selq(js=None):
            if Q3 or self.sps: return
            Q3.extend([slots.pop(0), slots.pop(0)])
            for k in range(2):
                for i in range(4): A(f'v_mov_b32 {v(Q3[k]+i)}, {v(V_SEL+2+k) if i == 2 else 0}')
        def zadd(js):
            selq()
            if self.sps:
                for rt in range(3): A(f'v_mfma_f32_16x16x32_bf16 {v(pa[7,rt],4)}, {v(V_SEL+2,4)}, {v(PD[rt],4)}, {v(pa[7,rt],4)}')
                return A(f'v_smfmac_f32_16x16x64_bf16 {v(pa[7,3],4)}, {v(SPS[2],4)}, {v(PD[0],8)}, {v(V_IDX)} abid:1')
            for rt, sel, k in ((3, Q3[0], 0), (0, V_SEL + 2, 0), (1, V_SEL + 2, 1), (2, V_SEL + 2, 2), (3, Q3[1], 1)):
                A(f'v_mfma_f32_16x16x32_bf16 {v(pa[7,rt],4)}, {v(sel,4)}, {v(PD[k],4)}, {v(pa[7,rt],4)}')
        def num(js): return int(''.join(map(str, js)))
        def dforce(js):
            k = 16 + num(js)
            while k not in dt:
                if d_ok(True): d_pop()
                else:
                    assert t_ok(True); t_pop()
        def gbar(js): A('s_barrier'); self.gb = True
        def pwait(js):
            while self.sent is None: self.emit(ep.pop(0))
            A.wait(vm=self.sent)
        V_OO = V_CS + 4
        bs = {}
        def balloc():
            for rt in range(4): bs[rt] = slots.pop(0)
            q = [f'ds_read_u16_d16_hi {v(bs[rt]+r)}, {v(V_BIAS+r)} offset:{rt*1024}' for rt in range(2) for r in range(4)]
            q += [f'v_xor_b32 {v(V_BIAS+r)}, 2048, {v(V_BIAS+r)}' for r in range(4)]
            q += [f'ds_read_u16_d16_hi {v(bs[2+rt]+r)}, {v(V_BIAS+r)} offset:{rt*1024}' for rt in range(2) for r in range(4)]
            def mk(): self.bl = A.nlg
            q += [mk, lambda: A.wait(vm=self.b2m)]
            q += [f'v_lshlrev_b32 {v(V_FIX)}, 16, {v(V_BT)}', f'v_and_b32 {v(V_FIX+1)}, 0xffff0000, {v(V_BT)}',
                  f'v_lshlrev_b32 {v(V_FIX+2)}, 16, {v(V_TD)}', f'v_and_b32 {v(V_FIX+3)}, 0xffff0000, {v(V_TD)}', lambda: A.wait(lg=self.bl)]
            if o.get('bz', 1): q += [f'v_and_b32 {v(bs[rt]+r)}, 0xffff0000, {v(bs[rt]+r)}' for rt in range(4) for r in range(4)]
            q += [f'v_add_f32 {v(bs[rt]+r)}, {v(bs[rt]+r)}, {v(V_FIX+r)}' for rt in range(4) for r in range(4)]
            misc.extend(q)
        def spread(d, e):
            return L(f'''
            v_and_b32 v7, 0xc0, {v(e)}
            v_lshl_add_u32 {v(d)}, v7, 8, {v(V_BIAS+3)}
            v_and_b32 v7, 0x20, {v(e)}
            v_lshl_add_u32 {v(d)}, v7, 7, {v(d)}
            v_and_b32 v7, 0x18, {v(e)}
            v_lshl_add_u32 {v(d)}, v7, 5, {v(d)}
            v_and_b32 v7, 7, {v(e)}
            v_lshl_add_u32 {v(d)}, v7, 1, {v(d)}
            ''')
        def b2ld():
            A(f'buffer_load_dwordx2 {v(V_BT,2)}, {v(V_FIX)}, {s(SRD_B2,4)}, 0 offen'); self.b2m = A.nvm
        mis0 = L(f'''
        s_lshl2_add_u32 {s(S_T1)}, {s(S_Q)}, {s(S_W)}
        s_lshl_b32 {s(S_T1)}, {s(S_T1)}, 4
        v_lshl_add_u32 v6, {v(V_G)}, 2, {s(S_T1)}
        v_lshlrev_b32 {v(V_FIX)}, 1, v6
        ''') + [b2ld] + L(f'''
        v_and_b32 {v(V_FC)}, 7, {v(V_LANE)}
        v_lshlrev_b32 {v(V_FC)}, 3, {v(V_FC)}
        s_andn2_b32 {s(S_T2)}, 4, {s(S_Q)}
        s_xor_b32 {s(S_T3)}, {s(S_W)}, 3
        s_lshl3_add_u32 {s(S_T2)}, {s(S_T3)}, {s(S_T2)}
        s_lshl_b32 {s(S_T2)}, {s(S_T2)}, 11
        v_add_u32 {v(V_IB)}, {s(S_T2)}, {v(V_L16)}
        s_and_b32 {s(S_T3)}, {s(S_Q)}, 4
        s_add_u32 {s(S_T2)}, {s(S_T3)}, {s(S_ODD)}
        s_lshl_b32 {s(S_T2)}, {s(S_T2)}, 11
        v_lshl_add_u32 {v(V_BIAS+3)}, {v(V_L15)}, 4, {s(S_T2)}
        s_cmp_ge_u32 {s(S_Q)}, 4 @@ s_cselect_b64 vcc, -1, 0
        v_sub_u32 {v(V_FIX+1)}, 512, v6
        v_cndmask_b32 {v(V_FIX+1)}, v6, {v(V_FIX+1)}, vcc
        v_subrev_u32 {v(V_FIX+2)}, {s(S_T3)}, {v(V_FIX+1)}
        ''') + spread(V_BIAS, V_FIX + 1) + spread(V_BIAS + 2, V_FIX + 2) + L(f'''
        s_add_u32 {s(S_T2)}, {s(S_T3)}, 2
        v_add_u32 {v(V_BIAS+1)}, {s(S_T2)}, {v(V_BIAS+2)}
        v_xor_b32 {v(V_BIAS+3)}, 4, {v(V_BIAS+1)}
        v_add_u32 {v(V_BIAS+2)}, 4, {v(V_BIAS+2)}
        v_lshrrev_b32 v6, 5, {v(V_LANE)}
        v_lshlrev_b32 v6, 4, v6
        s_lshl_b32 {s(S_T1)}, {s(S_T1)}, 1
        v_add_u32 v6, {s(S_T1)}, v6
        v_sub_u32 v7, 2048, {v(V_TT)}
        v_cmp_eq_u32 vcc, 0, {v(V_TT)}
        v_mov_b32 {v(V_OO)}, 1024
        v_cndmask_b32 v7, v7, {v(V_OO)}, vcc
        s_cmp_eq_u32 {s(S_ODD)}, 1 @@ s_cselect_b64 vcc, -1, 0
        v_cndmask_b32 {v(V_OO)}, {v(V_TT)}, v7, vcc
        v_cndmask_b32 {v(V_OO+1)}, v7, {v(V_TT)}, vcc
        v_lshl_add_u32 {v(V_OO)}, {v(V_OO)}, 10, v6
        v_lshl_add_u32 {v(V_OO+1)}, {v(V_OO+1)}, 10, v6
        ''')
        misc = [balloc]
        ev = {}
        tail = []
        EV = {'f': flag, 'i': pissue, 'c': pcheck, 'l': rload, 'd': dforce, 't': lambda js: ensure(16 + num(js)), 'b': gbar,
              'm': lambda js: self.flush(misc), 'e': lambda js: (self.flush(ep), self.flush(m0)), 'q': selq, 's': spsel, 'r': rbar, 'a': radd, 'v': pload, 'k': kcheck, 'z': zadd, 'w': pwait, 'x': clean, 'y': lambda js: setattr(self, 'lat', num(js)), 'p': lambda js: print('at', self.n - N3, 'dq', len(dq), 'tq', len(tq), 'ep', len(ep), 'nst', self.nst, 'slots', len(slots), 'nrd', nrd), 'h': lambda js: setattr(self, 'hold', bool(js[0]))}
        for e in o.get('ev', 'e0@32.F0@32.b0@32.C0@32.L123456@32.r0@134.a0@142.q0@190.v0@215.R1.a1.K0.z0').split('.'):
            js = tuple(int(ch) for ch in e.split('@')[0][1:])
            fn = EV[e[0].lower()]
            if '@' in e: ev.setdefault(N3 + int(e.split('@')[1]), []).append((e, fn, js))
            else: tail.append((e, fn, js))
        MB = N3 + o.get('misc0', 150); self.nmisc = len(misc)
        m0 = []; hq = []
        it = {x: k for k, x in enumerate(self.items)}
        for n, m in enumerate(ml):
            self.n = n
            if n == N3:
                self.stamp('p3 mfma done')
                print('last left: ep', len(ep), 'dq', len(dq), 'tq', len(tq), 'tick', self.tick)
                self.blk = 16
                if not GO: slots.extend(fr[b, rt] for b in LB for rt in range(4)); slots.extend(BF)
                slots.extend([V_CS + 8, V_CS + 12])
            if n == N3 + 2: m0 = mis0
            for e, fn, js in ev.get(n, []):
                fn(js)
                if e[0].isupper(): self.stamp(e.split('@')[0] + f' d{len(dq)} t{len(tq)}')
            k = 0
            if m[0] == 'a':
                _, t, rt, b = m
                if GO:
                    while nrd < 16 and RD[4 * nrd][1] <= rt + 1 and len(slots) - sum(callable(x) for x in hq) >= 4: hq += hrd(nrd); nrd += 1
                    if b < 16:
                        while (b, rt) not in fr: self.emit(hq.pop(0))
                        k = A.wait(lg=fl_[b, rt])
                    elif t not in csd:
                        print('correction', t, 'q2', len(q2), 'cs', len(csl))
                        self.flush(q2)
                        while t not in csd: self.emit(csl.pop(0))
                    if t == GO[rt][-1]: slots.append(fr[b, rt] if b < 16 else BF[rt])
                    if b == 16: due.append((n + 2, epi(t, rt >> 1, [rt])))
                if b < 16: mm(t, rt, b, fr[b, rt])
                else: A(f'v_mfma_f32_16x16x32_bf16 {v(acc[t,rt],4)}, {v(V_CS+4*t,4)}, {v(BF[rt],4)}, {v(acc[t,rt],4)}')
                if b == 16 and rt & 1 and not GO: due.append((n + 2, epi(t, rt >> 1)))
            else:
                _, j, ks, rt = m
                b = it[j >> 2, ks]
                ensure(16 + b)
                while (ks, rt) not in RF: self.emit(ep.pop(0))
                rswap(ks, rt >> 1)
                for m2 in ml[n + 1:n + 1 + o.get('swa', 0)]: rswap(m2[2], m2[3] >> 1)
                k = A.wait(vm=rv.get((ks, rt)), lg=self.trl[16 + b])
                if ks == 0: pa[j, rt] = slots.pop(0)
                c = v(pa[j, rt], 4)
                A(f'v_mfma_f32_16x16x32_bf16 {c}, {a(16*b+4*(j&3),4)}, {reg(RF[ks,rt])}, {c if ks else "0"}')
                cnt[j, rt] = cnt.get((j, rt), 0) + 1
                use[ks, rt] = use.get((ks, rt), 0) + 1
                if use[ks, rt] == 8 and RF[ks, rt][0] == 'v': slots.append(RF[ks, rt][1])
                if rt == 3 and cnt[j, rt] == 7 and j & 3 < 3: due.append((n + 2, red(j)))
                if o.get('fine') == 2 and n - N3 in (32, 48, 64, 80, 96, 127, 176): self.stamp(f'n{n-N3} d{len(dq)} t{len(tq)}')
            self.tick += 1
            while due and due[0][0] <= n: ep += due.pop(0)[1]
            fill(EPK if n >= N3 else o.get('epk3', 22) / 10, [q2, ep, csl, hq, None, m0, misc if n >= MB else []], k * SW)
            if SB0 is not None and not q2 and not csl: slots.extend([SB0, SB1, SQ[1]]); SB0 = None
        print('dt', {k: x for k, x in dt.items() if x > -999}); print('tt', {k: x for k, x in tt_.items() if x > -999})
        print('end left: ep', len(ep), 'misc', len(misc), 'dq', len(dq), 'tq', len(tq), 'slots', len(slots))
        self.flush(ep)
        if not any(e[0] in 'mM' for e, _, _ in tail): self.flush(misc)
        self.stamp('p4 mfma done')
        for e, fn, js in tail:
            fn(js)
            if e[0].isupper(): self.stamp(e)
        if o.get('tl2'):
            fm = [f'v_pk_fma_f32 {v(pa[7,rt]+k,2)}, {v(pa[7,rt]+k,2)}, {v(RS+(rt&2),2)}, {v(bs[rt]+k,2)} op_sel:[0,{rt&1},0] op_sel_hi:[1,{rt&1},1]' for rt in range(4) for k in (0, 2)]
            pk = pack(7)
            pl = [f'v_permlane16_swap_b32 {v(pa[7,2*k]+i)}, {v(pa[7,2*k]+2+i)}' for k in range(2) for i in range(2)]
            so = [f'buffer_store_dwordx4 {v(pa[7,2*k],4)}, {v(V_OO+k)}, {s(SRD_OUT,4)}, 0 offen{self.outf}' for k in range(2)]
            for x in fm[:4] + pk[:4] + fm[4:6] + pl[:2] + pk[4:6] + fm[6:] + pk[6:] + [so[0]] + pl[2:] + [so[1]]: A(x)
            return
        for rt in range(4):
            for k in range(0, 4, 2):
                A(f'v_pk_fma_f32 {v(pa[7,rt]+k,2)}, {v(pa[7,rt]+k,2)}, {v(RS+(rt&2),2)}, {v(bs[rt]+k,2)} op_sel:[0,{rt&1},0] op_sel_hi:[1,{rt&1},1]')
        self.flush(pack(7))
        for k in range(2):
            c = pa[7, 2 * k]
            A(f'v_permlane16_swap_b32 {v(c)}, {v(c+2)}\nv_permlane16_swap_b32 {v(c+1)}, {v(c+3)}')
            A(f'buffer_store_dwordx4 {v(c,4)}, {v(V_OO+k)}, {s(SRD_OUT,4)}, 0 offen{self.outf}')

    def probe_end(self):
        A = self.A
        a_, b_ = self.opt['probe'].split('-')
        if b_ == 'end':
            A('s_waitcnt vmcnt(0)'); self.stamp('end')
        A(f'''
        s_waitcnt lgkmcnt(0)
        s_sub_u32 {s(S_T0)}, {s(S_TS+4)}, {s(S_TS if a_ == 'start' else S_TS+2)}
        s_lshr_b32 {s(S_T0)}, {s(S_T0)}, {4 if self.opt.get('pcyc') else 0}
        s_min_u32 {s(S_T0)}, {s(S_T0)}, 4000
        s_lshl_b32 {s(S_T0)}, {s(S_T0)}, 2
        s_add_u32 {s(S_T0)}, {s(S_T0)}, 4000
        s_add_u32 {s(S_T0)}, {s(S_T0)}, {s(S_TS)}
        L_pspin:
        s_memrealtime {s(S_TS+6,2)}
        s_waitcnt lgkmcnt(0)
        s_sub_u32 {s(S_T1)}, {s(S_TS+6)}, {s(S_T0)}
        s_cmp_lt_i32 {s(S_T1)}, 0
        s_cbranch_scc1 L_pspin
        ''')

    def dump_ts(self):
        if self.opt.get('probe'): return self.probe_end()
        if not self.diag: return
        A = self.A
        A('s_waitcnt vmcnt(0)')
        self.stamp('end')
        A(f'''
        s_lshl_b32 {s(S_T0)}, s2, 2
        s_add_u32 {s(S_T0)}, {s(S_T0)}, {s(S_W)}
        s_lshl_b32 {s(S_T0)}, {s(S_T0)}, 7
        s_add_u32 {s(S_T0)}, {s(S_T0)}, {WS_TS}
        s_getreg_b32 {s(S_T1)}, hwreg(HW_REG_XCC_ID)
        s_waitcnt lgkmcnt(0)
        s_mov_b64 exec, 1
        ''')
        for i in range(20): A(f'v_mov_b32 {v(16+i)}, {s(S_TS+2*i) if i < len(self.names) else 0}')
        A(f'v_mov_b32 v40, {s(S_T1)}')
        A(f'v_mov_b32 v41, {s(S_FAST)}')
        for i in range(5):
            A(f'buffer_store_dwordx4 {v(16+4*i,4)}, off, {s(SRD_WS,4)}, {s(S_T0)} offset:{16*i}')
        A(f'buffer_store_dwordx2 v[40:41], off, {s(SRD_WS,4)}, {s(S_T0)} offset:80')

    def build(self):
        A = self.A
        self.p1()
        self.window()
        self.p23()
        A.on = False
        self.dump_ts()
        if self.opt.get('sched', 1):
            import sched
            A = sched.run(A.prog, self.opt.get('win', 20))
            r = A.report
            print('model:', ' | '.join(f'{r[i][0]} {r[i][1]-r[i-1][1]}' for i in range(1, len(r))))
            self.A = A
        hdr = f'''; FNet (2D DFT, factored) + LayerNorms + squared-ReLU FFN, one persistent launch.
; @launch grid=(256,1,1) block=(256,1,1) lds=163840
''' + (f'; names: {",".join(self.names)}\n' if self.diag else '') + f'''.amdgcn_target "amdgcn-amd-amdhsa--gfx950"
.text
.globl {KNAME}
{self.align()}.p2align 8
.type {KNAME},@function
{KNAME}:
'''
        import ool
        body, tail = ool.apply(A.text().rstrip('\n').split('\n'), str(self.opt.get('ool', '')))
        tail += self.oolc
        ftr = 'L_end:\n    s_endpgm\n' + ''.join(l + '\n' for l in tail) + ('L_fin:\n    s_endpgm\n' if tail else 'L_fin = L_end\n') + f'''.section .rodata,"a"
.p2align 6
.amdhsa_kernel {KNAME}
  .amdhsa_next_free_vgpr 512
  .amdhsa_next_free_sgpr 102
  .amdhsa_accum_offset 256
  .amdhsa_group_segment_fixed_size 0
  .amdhsa_kernarg_size 104
  .amdhsa_user_sgpr_count 2
  .amdhsa_user_sgpr_kernarg_segment_ptr 1
  .amdhsa_system_sgpr_workgroup_id_x 1
.end_amdhsa_kernel
'''
        import pads
        return hdr + '\n'.join(pads.apply(hdr, body, ftr, self.opt, S_W)) + '\n' + ftr

if __name__ == '__main__':
    out = sys.argv[1]
    opt = {}
    for x in sys.argv[2:]:
        if '=' in x:
            k, val = x.split('='); opt[k] = int(val) if val.lstrip('-').isdigit() else val.replace('_', ' ')
    HZ[0] = opt.get('hz', 0)
    g = Gen(diag='diag' in sys.argv[2:], opt=opt)
    t = g.build()
    open(out, 'w').write(t)
    print('nops inserted', g.A.nops, 'stamps', len(g.names))
```

```python
import re
from asmlib import Ins, need, Asm

EXEC = {('s', 126), ('s', 127)}
def klass(c):
    if c.is_mfma: return 'M'
    if c.op == 's_waitcnt': return 'W'
    if c.is_vmem: return 'G'
    if c.is_ds: return 'D'
    if c.is_valu: return 'V'
    return 'S'
def parse_wait(text):
    vm = re.search(r'vmcnt\((\d+)\)', text); lg = re.search(r'lgkmcnt\((\d+)\)', text)
    return (int(vm.group(1)) if vm else None, int(lg.group(1)) if lg else None)

PH = ['']
OPT = {'boff': '', 'gmv': 99, 'glat': 600, 'gdma': 0, 'tb': 0, 'alf': 5, 'm2': 0, 'beam': 0, 'dlat': 96, 'gpen': 3}
class Clock:
    def __init__(s):
        s.t = 0; s.vec = 0; s.pipe = 0; s.lastv = -99; s.lds = 0; s.lastw = -99; s.dq = (); s.gq = (); s.sm = 10
    def copy(s):
        c = Clock.__new__(Clock); c.t = s.t; c.vec = s.vec; c.pipe = s.pipe; c.lastv = s.lastv; c.lds = s.lds; c.lastw = s.lastw; c.dq = s.dq; c.gq = s.gq; c.sm = s.sm
        return c
    def vmwait(s, m):
        if len(s.gq) > m:
            s.t = max(s.t, s.gq[len(s.gq) - m - 1]); s.gq = s.gq[len(s.gq) - m:]
    def lgwait(s, m):
        if len(s.dq) > m:
            s.t = max(s.t, s.dq[len(s.dq) - m - 1]); s.dq = s.dq[len(s.dq) - m:]
    def plan(s, c, k, nop=0):
        m2 = OPT['m2']
        t = s.t + ((4 * nop if m2 else max(4, nop)) if nop else 0)
        if m2 and k == 'S' and c.op == 's_nop': return t, t + 4 * c.states
        if m2 and k == 'V':
            t = max(t, s.vec)
            if c.op.startswith('v_pk_') and 'f32' in c.op: t = max(t, s.pipe + 8); return t, t + 6
            return t, t + (8 if (c.is_trans or 'swap' in c.op) else 4)
        if k == 'M': t = max(t, s.pipe, s.vec); return t, t + 4
        if k in 'SW': return t, t + (max(4, c.states) if c.op == 's_nop' else 4)
        if k == 'V':
            t = max(t, s.vec); return t, t + (8 if (c.is_trans or (c.op.startswith('v_pk_') and 'f32' in c.op)) else 4)
        if k == 'G': t = max(t, s.lastv + 8); return t, t + 12
        t = max(t, s.vec, s.lastv + 12, s.lds - 24)
        if 'write' in c.op:
            if 'b128' in c.op: t = max(t, s.lastw + 52); return t, t + 20
            return t, t + 8
        t = max(t, s.lastw + 40)
        return t, t + 4
    def do(s, c, k, nop=0):
        t, e = s.plan(c, k, nop)
        s.t = e
        if k == 'M': s.pipe = t + 4 * c.passes; s.vec = t + (12 if c.sparse else 8)
        if k == 'V': s.lastv = e - 4
        if k == 'G' and OPT['tb'] and c.op == 'buffer_load_dword' and c.ops[2] in ('s[16:19]', 's[12:15]'): s.lds = max(s.lds, t) + OPT['tb']
        if k == 'G' and OPT['beam']: s.gq = s.gq[-62:] + (t + (OPT['gdma'] if c.lds_dma and OPT['gdma'] else OPT['glat']),)
        if k == 'D':
            cost = 16 if 'b128' in c.op else 8
            if 'write' in c.op and 'b128' in c.op: s.lastw = t
            s.lds = max(s.lds, t) + cost
            if OPT['beam']: s.dq = s.dq[-15:] + (s.lds + OPT['dlat'],)
        return t

from asmlib import required as nops_needed

def schedule(lines, pend, hist, clk, win=20, verbose=None):
    I = [Ins(x) for x in lines]; K = [klass(c) for c in I]; n = len(I)
    uses = []; defs = []
    for c, k in zip(I, K):
        u = set(c.uses); d = set(c.defs)
        if k in ('VDG' if OPT['m2'] else 'MVDG'): u |= EXEC
        if 'exec_lo' in c.ops[:1] or 'exec_hi' in c.ops[:1]: d |= EXEC
        uses.append(u); defs.append(d)
    dep = [set() for _ in range(n)]
    last = {}
    cnt = {'D': 0, 'G': 0}; idx = {'D': [], 'G': []}
    tgt = {}; cover = []
    lastdef = {}; readers = {}
    mbefore = []; nm = 0
    for j in range(n):
        k = K[j]
        mbefore.append(nm)
        if k == 'M': nm += 1
        if k in last: dep[j].add(last[k])
        last[k] = j
        for r in uses[j]:
            if r in lastdef: dep[j].add(lastdef[r])
        for r in defs[j]:
            if r in lastdef: dep[j].add(lastdef[r])
            dep[j] |= readers.get(r, set())
        for r in uses[j]: readers.setdefault(r, set()).add(j)
        for r in defs[j]: lastdef[r] = j; readers[r] = set()
        if k in 'DG' and 'W' in last: dep[j].add(last['W'])
        for w, regs in cover:
            if regs & (uses[j] | defs[j]): dep[j].add(w)
        if k == 'W':
            vm, lg = parse_wait(lines[j]); regs = set(); tg = {}
            for q, m in (('G', vm), ('D', lg)):
                if m is None: continue
                tg[q] = cnt[q] - m
                if tg[q] > 0: dep[j].add(idx[q][tg[q] - 1])
                if q == 'G' and OPT['beam'] and idx[q]: dep[j].add(idx[q][-1])
                while len(pend[q]) > m: regs |= pend[q].pop(0)
            tgt[j] = tg; cover.append((j, regs))
        if k in 'DG':
            cnt[k] += 1; idx[k].append(j); pend[k].append(set(I[j].defs))
        dep[j].discard(j)
    if OPT['beam'] and PH[0] in OPT['boff'].split('.'): win = 20
    elif OPT['beam']: return beam(lines, I, K, dep, tgt, mbefore, hist, clk, win)
    done = [False] * n; out = []; lo = 0; curm = 0
    streams = {k: [j for j in range(n) if K[j] == k] for k in 'MSWGDV'}
    c2 = {'D': 0, 'G': 0}
    t0 = clk.t
    hist = list(hist)
    def put(j):
        nonlocal lo, curm
        k = K[j]; txt = lines[j]
        if k == 'W':
            p = []
            if 'G' in tgt[j]: p.append(f'vmcnt({min(63, c2["G"] - tgt[j]["G"])})')
            if 'D' in tgt[j]: p.append(f'lgkmcnt({min(15, c2["D"] - tgt[j]["D"])})')
            txt = 's_waitcnt ' + ' '.join(p)
        nop = nops_needed(hist, I[j])
        if nop: hist.append(Ins(f's_nop {min(nop, 16) - 1}'))
        clk.do(I[j], k, nop)
        if k == 'W':
            vm, lg = parse_wait(txt); t0_ = clk.t
            if lg is not None: clk.lgwait(lg)
            if vm is not None: clk.vmwait(vm)
            clk.t = t0_
        hist.append(I[j]); out.append(txt); done[j] = True
        streams[k].pop(0)
        if k in 'DG': c2[k] += 1
        if k == 'M': curm += 1
        while lo < n and done[lo]: lo += 1
    while lo < n:
        cand = {}
        for k, q in streams.items():
            if not q: continue
            j = q[0]
            if j - lo > win or not all(done[d] for d in dep[j]): continue
            if k == 'W' and mbefore[j] > curm: continue
            if k == 'G' and mbefore[j] > curm + 1: continue
            nop = nops_needed(hist, I[j])
            cand[k] = (j, nop) + clk.plan(I[j], k, nop)
        m = cand.pop('M', None)
        lim = max(clk.pipe, clk.vec) if streams['M'] else None
        fit = [(v[2], {'G': 0, 'W': 1, 'S': 2, 'D': 3, 'V': 4}[k], v[0]) for k, v in cand.items() if lim is not None and v[3] <= lim and not v[1]]
        if fit:
            fit.sort()
            best = fit[0]
            vec = [f for f in fit if f[1] >= 3 and f[0] <= best[0]]
            if best[1] in (1, 2) and vec and min(f[2] for f in vec) < best[2] + 6: best = vec[0]
            put(best[2])
        elif m and not m[1]: put(m[0])
        else:
            if m: cand['M'] = m
            best = min(cand.values(), key=lambda v: (v[2] - clk.t) + 1.0 * (v[0] - lo))
            put(best[0])
    if verbose is not None: verbose.append((n, nm, clk.t - t0))
    return out, hist[-40:]

def beam(lines, I, K, dep, tgt, mbefore, hist, clk, win):
    import asmlib
    n = len(I); KS = 'MSWGDV'
    st = [[j for j in range(n) if K[j] == k] for k in KS]
    pos = {}
    for q, l in enumerate(st):
        for r, j in enumerate(l): pos[j] = (q, r)
    need_ = [[0] * 6 for _ in range(n)]
    for j in range(n):
        for d in dep[j]:
            q, r = pos[d]; need_[j][q] = max(need_[j][q], r + 1)
    def icost(c, k):
        z = Clock(); z.t = 100; a, b = z.plan(c, k); return b - a
    remM = [0] * (len(st[0]) + 1)
    for r in range(len(st[0]) - 1, -1, -1): remM[r] = remM[r + 1] + 4 * I[st[0][r]].passes
    remI = []
    for q, l in enumerate(st):
        x = [0] * (len(l) + 1)
        for r in range(len(l) - 1, -1, -1): x[r] = x[r + 1] + icost(I[l[r]], KS[q])
        remI.append(x)
    remW = [0] * (len(st[4]) + 1)
    for r in range(len(st[4]) - 1, -1, -1): remW[r] = remW[r + 1] + (12 if I[st[4][r]].op == 'ds_write_b128' else 0)
    cache = {}
    NOP = {k: Ins(f's_nop {k-1}') for k in range(1, 17)}
    def req(h, c):
        dist = 0; rq = 0; nm = None
        for p in reversed(h):
            if asmlib.HZ[0] and p.is_mfma:
                if nm is not None: dist = max(dist, nm + p.passes - 1)
                nm = dist + 1
            key = (id(p), id(c)); x = cache.get(key)
            if x is None: x = cache[key] = need(p, c)
            if x - dist > rq: rq = x - dist
            dist += p.states
            if dist >= 13: break
        return rq
    cur = [(0, (0,) * 6, clk.copy(), tuple(hist[-13:]), 0, None)]
    for step in range(n):
        nxt = {}
        for _, P, ck, h, pen, path in cur:
            lo = min(st[q][P[q]] for q in range(6) if P[q] < len(st[q]))
            for q in range(6):
                if P[q] >= len(st[q]): continue
                j = st[q][P[q]]
                if j - lo > win: continue
                nd = need_[j]
                if nd[0] > P[0] or nd[1] > P[1] or nd[2] > P[2] or nd[3] > P[3] or nd[4] > P[4] or nd[5] > P[5]: continue
                pe = pen
                if q != 3 and P[3] < len(st[3]) and step - st[3][P[3]] > OPT['gmv']: pe += 2
                if q == 2 and 'G' in tgt[j] and mbefore[j] > P[0]: continue
                if q == 3:
                    if mbefore[j] > P[0] + 1 or j - step > OPT['gmv']: continue
                    pe += OPT['gpen'] * max(0, P[0] - mbefore[j])
                nop = req(h, I[j]); c2 = ck.copy()
                c2.do(I[j], KS[q], nop)
                if q == 2 and 'D' in tgt[j]: c2.lgwait(min(15, P[4] - tgt[j]['D']))
                if q == 2 and 'G' in tgt[j]: c2.vmwait(min(63, P[3] - tgt[j]['G']))
                P2 = P[:q] + (P[q] + 1,) + P[q + 1:]
                rm = remI[0][P2[0]]
                e1 = c2.t + 2 * rm + remI[4][P2[4]] + remI[5][P2[5]] + max(0, remI[1][P2[1]] + remI[2][P2[2]] + remI[3][P2[3]] - rm) + max(0, c2.vec - c2.t)
                e2 = max(c2.pipe, c2.t, c2.vec) + remM[P2[0]] + remW[P2[4]] - 8 if remM[P2[0]] else max(c2.pipe - 8, c2.t)
                est = (max(e1, e2) + OPT['alf'] / 10 * min(e1, e2) if step < n - 1 else e2) + pe + 0.01 * (c2.t + sum(c2.dq[-4:]) / 16)
                c2.sm = 0 if q == 0 else min(10, ck.sm + nop + I[j].states)
                key = (P2, c2.sm)
                o = nxt.get(key)
                if o is None or est < o[0]:
                    h2 = h + ((NOP[min(nop, 16)], I[j]) if nop else (I[j],))
                    nxt[key] = (est, P2, c2, h2[-13:], pe, (j, path))
        cur = sorted(nxt.values(), key=lambda x: x[0])[:OPT['beam']]
    _, P, ck, h, pen, path = cur[0]
    order = []
    while path: order.append(path[0]); path = path[1]
    out = []; c2 = {'D': 0, 'G': 0}
    for j in reversed(order):
        k = K[j]; txt = lines[j]
        if k == 'W':
            p = []
            if 'G' in tgt[j]: p.append(f'vmcnt({min(63, c2["G"] - tgt[j]["G"])})')
            if 'D' in tgt[j]: p.append(f'lgkmcnt({min(15, c2["D"] - tgt[j]["D"])})')
            txt = 's_waitcnt ' + ' '.join(p)
        if k in 'DG': c2[k] += 1
        out.append(txt)
    clk.__dict__.update(ck.__dict__)
    return out, None

def run(prog, win=20):
    A = Asm(); clk = Clock(); pend = {'D': [], 'G': []}
    reg = []; stats = []; rep = []
    def flush():
        nonlocal reg
        if reg:
            out, _ = schedule(reg, pend, A.hist, clk, win, stats)
            for x in out: A.i(x)
            reg = []
    depth = None
    for e in prog:
        kind = e[0]
        if kind == 'i':
            c = Ins(e[1])
            plain = e[2] and depth is None and not c.op.startswith(('s_barrier', 's_cbranch', 's_branch', 's_memtime', 's_memrealtime', 's_load', 's_buffer_load', 's_getreg', 's_setprio', 's_sleep', 's_endpgm'))
            if plain: reg.append(e[1]); continue
            flush()
            k = klass(c)
            clk.do(c, k, nops_needed(A.hist, c))
            A.i(e[1])
            if k == 'W':
                vm, lg = parse_wait(e[1])
                if lg is not None: clk.lgwait(lg)
                if vm is not None: clk.vmwait(vm)
                if depth is None:
                    for q, m in (('G', vm), ('D', lg)):
                        while m is not None and len(pend[q]) > m: pend[q].pop(0)
            elif k in 'DG' and depth is None: pend[k].append(set(c.defs))
        elif kind == 'snap': flush(); depth = (list(A.hist), dict(clk.__dict__))
        elif kind == 'unsnap': A.hist = depth[0]; clk.__dict__.update(depth[1]); depth = None
        elif kind == 'fence':
            flush(); rep.append((e[1], clk.t)); PH[0] = e[1]
        elif kind == 'label': flush(); A.label(e[1])
        else: flush(); A.raw(e[1])
    flush()
    A.report = rep
    return A
```

```python
import sys
import sched
from asmlib import *

KNAME = 'sequential_preLN__spectral_fnet__dense_activation_squared_relu__prompt_kernel'
WS_Z, WS_HN, WS_R, WS_ST, WS_FL, WS_TS = 0, 2 << 20, 4 << 20, 12 << 20, 13 << 20, 14 << 20
WS_SIZE = 32 << 20
WS_P2 = 32 << 20
S_LT, S_FLA = 100, 101
WS_P = 16 << 20
FP = WS_ST
F1 = WS_FL + 0x10000
F3 = WS_FL + 0x4000
FX = WS_FL + 0x6000
FX2 = WS_FL + 0x8000
FX3 = WS_FL + 0x40000
FE = WS_FL + 0x7000
HPW = 16384
L_S = 65536
SPW = 20480
L_M = L_S + 4 * SPW
L_EXC, L_XE, L_STAT = L_M, L_M + 8192, L_M + 10240
S_W = 3
S_T0, S_T1, S_T2, S_T3 = 4, 5, 6, 7
SRD_X, SRD_W1, SRD_W2, SRD_OUT, SRD_WS, SRD_B1, SRD_B2 = 8, 12, 16, 20, 24, 28, 32
S_CNT, S_FAST = 36, 37
S_F1 = S_CNT
S_C, S_N, S_U, S_Q = 38, 39, 40, 41
S_TB1, S_ODD, S_TW, S_W2S, S_BG, S_HB0 = 42, 43, 44, 45, 46, 47
S_XO = 48
S_RR = 52
S_FIX = 56
S_AM0, S_TCH = 58, 59
S_M = 60
S_TS = 62
S_HB, S_SB = 0, 1
V_LANE, V_L15, V_G, V_L16, V_TAG = 0, 1, 2, 3, 4
V_L128 = 14
ZF, TB, Y = 16, 80, 192
V_ONES = 144
V_W1U, V_W1D = 148, 152
V_W1R = 156
V_CS = 160
V_SEL = 176
AD_ = 224
V_FXV = 180
V_BT, V_TD = 182, 183
V_FIX = 184
V_ZA = 188
V_IDX = 191
V_TT = 190
V_W2A = 148
V_W2R = 152


SW = 0.4
class TAsm(Asm):
    def __init__(self):
        super().__init__(); self.nvm = 0; self.nlg = 0; self.dvm = 0; self.dlg = 0
        self.prog = []; self.on = False; self.wt = 0; self.clk = None
    def label(self, name): super().label(name); self.prog.append(('label', name))
    def raw(self, t): super().raw(t); self.prog.append(('raw', t))
    def snap(self):
        self._snap = (list(self.hist), self.nvm); self.prog.append(('snap',))
    def unsnap(self):
        self.hist, self.nvm = self._snap; self.prog.append(('unsnap',))
    def i(self, text):
        if getattr(self, 'drop', None) and self.drop(text): return
        super().i(text)
        self.prog.append(('i', text, self.on))
        c = self.hist[-1]
        self.wt += 1 if c.sparse else 0 if c.is_mfma else 2 if c.is_vmem else 4 if c.op == 'ds_write_b128' else 2 if c.is_trans else 1 if (c.is_ds or c.is_valu) else SW
        if self.clk: self.clk.do(c, sched.klass(c))
        if c.is_vmem: self.nvm += 1
        if c.is_ds: self.nlg += 1
    def wait(self, vm=None, lg=None):
        p = []
        if vm is not None and vm > self.dvm:
            n = min(63, self.nvm - vm); p.append(f'vmcnt({n})'); self.dvm = self.nvm - n
        if lg is not None and lg > self.dlg:
            n = min(15, self.nlg - lg); p.append(f'lgkmcnt({n})'); self.dlg = self.nlg - n
        if p: self('s_waitcnt ' + ' '.join(p))
        return 1 if p else 0

def L(txt): return [x.strip().replace(' @@ ', '\n') for x in txt.strip().split('\n') if x.strip()]

class Gen:
    def __init__(self, diag=False, opt=None):
        self.A = TAsm(); self.diag = diag; self.nts = 0; self.names = []
        self.opt = opt or {}
        self.fsh = 4
        fl = lambda k, d: (' ' + self.opt[k]).rstrip() if self.opt.get(k, 'pl') != 'pl' else ('' if k in self.opt else d)
        self.ldf = fl('ldf', ' sc1'); self.outf = fl('outf', ' nt'); self.zldf = fl('zldf', ' sc1'); self.plf = fl('plf', ' sc1'); self.fef = fl('fef', ' sc1'); self.fxf = fl('fxf', ' sc1')
        self.skip = set()
        self.nofence = set(str(self.opt.get('nof', '')).split('.')); self.skip = set() if self.opt.get('alls') else {'x first', 'kernarg', 'pre F1'}
        if self.opt.get('alls') == 2: self.skip = {'K0', 'F1 set'}
        if self.opt.get('fine'): self.skip = {'kernarg', 'tables', 'x first', 'gemm1 done', 'Z stores', 'F1 set', 'p2 prepoll', 'pre F1', 'Z first', 'Z landed'}

    def stamp(self, name):
        if self.opt.get('fine') == 3 and not (name.startswith('wd') or name in ('start', 'gemm1 done', 'Z stores', 'pre F1', 'F1 set', 'p2 prepoll', 'p2 polled', 'Z first', 'end')): self.skip.add(name)
        elif self.opt.get('fine') == 3: self.skip.discard(name)
        if name not in self.nofence: self.A.prog.append(('fence', name))
        elif not self.opt.get('allst'): return
        pr = self.opt.get('probe')
        if pr:
            a_, b_ = pr.split('-')
            if name == 'start': self.A(f's_memrealtime {s(S_TS, 2)}')
            ins = 's_memtime' if self.opt.get('pcyc') else 's_memrealtime'
            if name == a_ and name != 'start': self.A(f'{ins} {s(S_TS+2, 2)}')
            if name == b_: self.A(f'{ins} {s(S_TS+4, 2)}')
            return
        if self.opt.get('alls') == 3 and len(self.names) >= 16 and name != 'end': return
        if self.opt.get('only') and name not in ('start', 'end', 'p3 mfma done'): return
        if self.diag and name not in self.skip:
            idx = len(self.names); self.names.append(name)
            assert idx < 19
            self.A(f'{"s_memtime" if self.opt.get("cyc") else "s_memrealtime"} {s(S_TS + 2*idx, 2)}')

    def emit(self, x):
        if callable(x): x()
        else: self.A(x)
    def weave(self, lines, bg, every):
        if isinstance(lines, str): lines = L(lines)
        for n, x in enumerate(lines):
            self.emit(x)
            if bg and (n + 1) % every == 0: self.emit(bg.pop(0))
    def flush(self, bg):
        while bg: self.emit(bg.pop(0))

    def srd(self, base, nbytes):
        self.A(f's_mov_b32 {s(base+2)}, {nbytes}\ns_mov_b32 {s(base+3)}, 0x20000')

    def poll(self, vaddr, nl, vtmp):
        A = self.A
        Lp = A.newlabel('poll'); D = A.newlabel('polld')
        on = A.on; A.on = False
        if nl < 64: A(f's_mov_b64 exec, {(1<<nl)-1}')
        A(f's_mov_b32 {s(S_CNT)}, 0x20000')
        A.label(Lp)
        A(f'buffer_load_dwordx2 {v(vtmp,2)}, {v(vaddr)}, {s(SRD_WS,4)}, 0 offen sc1')
        A(f's_sub_u32 {s(S_CNT)}, {s(S_CNT)}, 1')
        A(f's_cbranch_scc1 {D}')
        A('s_waitcnt vmcnt(0)')
        A(f'v_cmp_ne_u64 vcc, {v(vtmp,2)}, {v(V_TAG,2)}')
        A(f's_cbranch_vccnz {Lp}')
        A.label(D)
        A('s_waitcnt vmcnt(0)')
        A.dvm = A.nvm
        if nl < 64: A('s_mov_b64 exec, -1')
        A.on = on

    def setflag(self, soff, sc):
        A = self.A
        A('s_mov_b64 exec, 1')
        A(f'buffer_store_dwordx2 {v(V_TAG,2)}, off, {s(SRD_WS,4)}, {s(soff)}{sc}')
        A('s_mov_b64 exec, -1')

    def dualflag(self, soff):
        A = self.A
        if self.opt.get('nofast'): return self.setflag(soff, ' sc1')
        LS = A.newlabel('slow'); LJ = A.newlabel('dj')
        A(f's_cmp_eq_u32 {s(S_FAST)}, 0\ns_cbranch_scc1 {LS}')
        A.snap()
        self.setflag(soff, '')
        A(f's_branch {LJ}')
        A.label(LS)
        A.unsnap()
        self.setflag(soff, ' sc1')
        A.label(LJ)

    def touch(self, vd, srd, soff, lanes, fl='', va=V_L128):
        A = self.A
        if lanes < 64: A(f's_mov_b64 exec, {hex((1<<lanes)-1)}' if lanes < 32 else f's_mov_b32 exec_hi, {hex((1<<(lanes-32))-1)}')
        A(f'buffer_load_dword {v(vd)}, {v(va)}, {s(srd,4)}, {s(soff)} offen{fl}')
        if lanes < 64: A('s_mov_b64 exec, -1')
    def w1touch(self, l0, l1):
        A = self.A
        m = ((1 << l1) - 1) & ~((1 << l0) - 1)
        A(f'''
        s_bfe_u32 {s(S_TCH)}, {s(S_TW)}, 0x20004
        s_lshl_b32 {s(S_TCH)}, {s(S_TCH)}, 6
        s_bitcmp1_b32 {s(S_TW)}, 6
        s_cselect_b32 {s(S_BG)}, 257, 32
        s_add_u32 {s(S_TCH)}, {s(S_TCH)}, {s(S_BG)}
        s_and_b32 {s(S_BG)}, {s(S_TW)}, 15
        s_lshl1_add_u32 {s(S_TCH)}, {s(S_BG)}, {s(S_TCH)}
        s_mul_i32 {s(S_TCH)}, {s(S_TCH)}, 3584
        s_mov_b32 exec_lo, {hex(m & 0xffffffff)}
        s_mov_b32 exec_hi, {hex(m >> 32)}
        buffer_load_dword {v(V_TD)}, {v(V_L128)}, {s(SRD_W1,4)}, {s(S_TCH)} offen
        s_mov_b64 exec, -1
        ''')
    def w2touch(self, k):
        A = self.A
        if k is not None:
            LS = A.newlabel('nt'); A(f's_cmp_lg_u32 {s(S_C)}, {k}\ns_cbranch_scc1 {LS}'); A.snap()
        A(f's_mul_i32 {s(S_TCH)}, {s(S_TW)}, {112*128}')
        self.touch(V_TD, SRD_W2, S_TCH, 64)
        A(f's_add_u32 {s(S_TCH)}, {s(S_TCH)}, 8192')
        self.touch(V_TD, SRD_W2, S_TCH, 48)
        if k is not None:
            A.label(LS); A.unsnap()
    def g2touch(self, m, part=None):
        A = self.A
        if m == 1:
            A(f'''
            v_mul_u32_u24 {v(V_BT)}, {3584-2048}, {v(V_G)}
            v_add_u32 {v(V_BT)}, {v(V_BT)}, {v(V_L128)}
            s_lshr_b32 {s(S_TCH)}, {s(S_Q)}, 2
            s_lshl3_add_u32 {s(S_TCH)}, {s(S_TW)}, {s(S_TCH)}
            s_mul_i32 {s(S_TCH)}, {s(S_TCH)}, 1792
            ''')
            if part == 'a': A(f's_and_b32 {s(S_BG)}, s2, 6\ns_lshl_b32 {s(S_BG)}, {s(S_BG)}, 3\ns_lshl_b64 exec, 0x3fff, {s(S_BG)}')
            else: A('s_mov_b32 exec_lo, 0x3fff3fff\ns_mov_b32 exec_hi, 0x3fff3fff')
            A(f'''
            buffer_load_dword {v(V_TD)}, {v(V_BT)}, {s(SRD_W1,4)}, {s(S_TCH)} offen
            s_mov_b64 exec, -1
            ''')
        else:
            A(f"""
            s_lshr_b32 {s(S_BG)}, {s(S_Q)}, 2
            s_lshl_b32 {s(S_BG)}, {s(S_BG)}, 7
            s_add_u32 {s(S_TCH)}, {s(S_TW)}, {s(S_BG)}
            s_mul_i32 {s(S_TCH)}, {s(S_TCH)}, 7168
            """)
            if part == 'a':
                A(f's_and_b32 {s(S_BG)}, s2, 6\ns_mul_i32 {s(S_BG)}, {s(S_BG)}, 896\ns_add_u32 {s(S_TCH)}, {s(S_TCH)}, {s(S_BG)}')
                self.touch(V_TD, SRD_W2, S_TCH, 14)
            else: self.touch(V_TD, SRD_W2, S_TCH, 56)
    def wtouch(self, vd, srd, l0, lanes):
        A = self.A
        A(f's_mul_i32 {s(S_TCH)}, {s(S_TW)}, {lanes*128}\ns_add_u32 {s(S_TCH)}, {s(S_TCH)}, {l0*128*128}')
        self.touch(vd, srd, S_TCH, lanes)

    def w1_setup(self):
        return L(f'''
        s_mul_i32 {s(S_T0)}, {s(S_Q)}, 448
        s_lshr_b32 {s(S_T1)}, {s(S_W)}, 1
        s_mul_i32 {s(S_T1)}, {s(S_T1)}, 224
        s_mul_i32 {s(S_T2)}, {s(S_ODD)}, 96
        s_add_u32 {s(S_T0)}, {s(S_T0)}, {s(S_T1)}
        s_add_u32 {s(S_T0)}, {s(S_T0)}, {s(S_T2)}
        v_lshlrev_b32 v6, 1, {v(V_G)}
        v_xor_b32 v6, v6, {v(V_LANE)}
        v_and_b32 v6, 7, v6
        v_lshl_add_u32 v6, v6, 4, {s(S_T0)}
        v_lshrrev_b32 v7, 5, {v(V_LANE)}
        v_bfe_u32 v8, {v(V_LANE)}, 3, 2
        v_lshl_add_u32 v7, v7, 3, v8
        v_sub_u32 v8, 11, v7
        s_movk_i32 {s(S_T3)}, 3584
        v_mad_u32_u24 {v(V_W1U)}, v7, {s(S_T3)}, v6
        v_mad_u32_u24 {v(V_W1D+3)}, v8, {s(S_T3)}, v6
        v_add_u32 {v(V_W1U+1)}, {16*3584-1024}, {v(V_W1U)}
        v_add_u32 {v(V_W1U+2)}, {4*3584-2048}, {v(V_W1U)}
        v_add_u32 {v(V_W1U+3)}, {20*3584-3072}, {v(V_W1U)}
        v_add_u32 {v(V_W1D)}, {20*3584+3072}, {v(V_W1D+3)}
        v_add_u32 {v(V_W1D+1)}, {4*3584+2048}, {v(V_W1D+3)}
        v_add_u32 {v(V_W1D+2)}, {16*3584+1024}, {v(V_W1D+3)}
        ''') + (L(f'''
        s_lshl_b32 {s(S_T0)}, {s(S_ODD)}, 5
        s_add_u32 {s(S_T2)}, {s(S_T0)}, 32
        v_bfe_u32 {v(V_W1R+1)}, {v(V_LANE)}, 3, 2
        v_and_b32 {v(V_W1R+2)}, 3, {v(V_LANE)}
        v_and_or_b32 {v(V_W1R+3)}, {v(V_LANE)}, 60, {v(V_W1R+1)}
        v_lshl_add_u32 {v(V_W1R+2)}, {v(V_W1R+2)}, 3, {s(S_SB)}
        v_lshl_add_u32 {v(V_W1R+3)}, {v(V_W1R+3)}, 5, {v(V_W1R+2)}
        v_xor_b32 {v(V_W1R)}, {s(S_T0)}, {v(V_W1R+3)}
        v_xor_b32 {v(V_W1R+1)}, {s(S_T2)}, {v(V_W1R+3)}
        v_xor_b32 {v(V_W1R+2)}, 64, {v(V_W1R)}
        v_xor_b32 {v(V_W1R+3)}, 64, {v(V_W1R+1)}
        ''') if self.opt.get('r1c') else L(f'''
        v_lshrrev_b32 v6, 2, {v(V_LANE)}
        v_lshlrev_b32 v6, 7, v6
        v_and_b32 v7, 3, {v(V_LANE)}
        v_lshl_add_u32 v6, v7, 3, v6
        v_add_u32 v6, {s(S_SB)}, v6
        v_bfe_u32 v7, {v(V_LANE)}, 3, 2
        ''') + sum([L(f'''
        s_add_u32 {s(S_T0)}, {s(S_ODD)}, {t}
        s_and_b32 {s(S_T0)}, {s(S_T0)}, 3
        v_xor_b32 v8, {s(S_T0)}, v7
        v_lshl_add_u32 {v(V_W1R+t)}, v8, 5, v6
        ''') for t in range(4)], []))
    def w1_dma(self, b, slot):
        A = self.A; q1, ip, var = b >> 3, (b >> 1) & 3, b & 1; n = 2 * var + q1
        ops = []
        for i in range(4):
            def f(i=i):
                if i == 0:
                    if self.opt.get('m0f'): A(f's_add_u32 m0, {s(S_SB)}, {slot*4096}')
                    if ip or not self.opt.get('m0f'): A(f's_xor_b32 {s(S_BG)}, {s(S_C)}, {ip}')
                    A(f's_mul_i32 {s(S_BG)}, {s(S_BG if ip or not self.opt.get("m0f") else S_C)}, {64*3584}')
                    if var == 0:
                        if q1: A(f's_add_u32 {s(S_BG)}, {s(S_BG)}, {32*3584}')
                    else: A(f's_sub_u32 {s(S_BG)}, {(512-31-32*q1)*3584 - 3072}, {s(S_BG)}')
                    if not self.opt.get('m0f'): A(f's_add_u32 m0, {s(S_SB)}, {slot*4096}')
                if n == 2 and i == 0:
                    A(f'''
                    v_add_u32 {v(V_BT)}, {s(S_BG)}, {v(V_W1D)}
                    s_cmp_eq_u32 {s(S_C)}, {ip}
                    s_cselect_b64 exec, 0xff, 0
                    v_subrev_u32 {v(V_BT)}, {256*3584}, {v(V_BT)}
                    s_mov_b64 exec, -1
                    buffer_load_dwordx4 {v(V_BT)}, {s(SRD_W1,4)}, 0 offen lds
                    ''')
                else:
                    A(f'buffer_load_dwordx4 {v((V_W1D if var else V_W1U)+i)}, {s(SRD_W1,4)}, {s(S_BG)} offen offset:{i*1024} lds')
                if i == 3: self.w1m[b] = A.nvm
            ops.append(f)
        return ops
    def w1_tr(self, b, slot):
        A = self.A; ops = []
        for t in range(4):
            for hh in range(2):
                def f(t=t, hh=hh):
                    A.wait(vm=self.w1m[b])
                    A(f'ds_read_b64_tr_b16 {a(16*b+4*t+2*hh,2)}, {v(V_W1R+t)} offset:{slot*4096+hh*2048}')
                    self.w1l[b] = A.nlg
                ops.append(f)
        return ops
    def w1_cs(self, b):
        A = self.A; ops = []
        if self.opt.get('sp'):
            for t in (0, 2):
                def f(t=t):
                    if not self.csn[t]: A(f'v_mov_b64 {v(V_CS+4*t,2)}, 0\nv_mov_b64 {v(V_CS+4*t+2,2)}, 0')
                    A.wait(lg=self.w1l[b])
                    A(f'v_smfmac_f32_16x16x64_bf16 {v(V_CS+4*t,4)}, {v(V_ONES,4)}, {a(16*b+4*t,8)}, {v(V_IDX)}')
                    self.csn[t] += 1
                ops.append(f)
            return ops
        for t in range(4):
            def f(t=t):
                A.wait(lg=self.w1l[b])
                c = v(V_CS + 4 * t, 4)
                A(f'v_mfma_f32_16x16x32_bf16 {c}, {v(V_ONES,4)}, {a(16*b+4*t,4)}, {c if self.csn[t] else "0"}')
                self.csn[t] += 1
            ops.append(f)
        return ops
    def w1_pipeline(self):
        order = self.w1order; NS = 5
        seq = []
        for k in range(NS): seq.append(('dma', k))
        for k in range(16):
            seq.append(('tr', k))
            if k >= 1:
                seq.append(('cs', k - 1))
                if k - 1 + NS < 16: seq.append(('dma', k - 1 + NS))
        seq.append(('cs', 15))
        out = []
        for kind, k in seq:
            b = order[k]
            if kind == 'dma': ops = self.w1_dma(b, k % NS)
            elif kind == 'tr': ops = self.w1_tr(b, k % NS)
            else: ops = self.w1_cs(b)
            out.append((kind, k, ops))
        return out

    def w2_setup(self):
        return L(f"""
        v_lshlrev_b32 {v(V_W2A)}, 1, {v(V_G)}
        v_xor_b32 {v(V_W2A)}, {v(V_W2A)}, {v(V_LANE)}
        v_and_b32 {v(V_W2A)}, 7, {v(V_W2A)}
        v_lshrrev_b32 {v(V_W2A+1)}, 3, {v(V_LANE)}
        v_lshlrev_b32 {v(V_W2A+1)}, 10, {v(V_W2A+1)}
        v_lshl_add_u32 {v(V_W2A)}, {v(V_W2A)}, 4, {v(V_W2A+1)}
        s_mul_i32 {s(S_W2S)}, {s(S_W)}, {7*8192} @@ s_add_u32 {s(S_W2S)}, {s(S_W2S)}, 8192 @@ s_and_b32 {s(S_W2S)}, {s(S_W2S)}, {hex(0xffffc000)}
        s_lshl_b32 {s(S_BG)}, {s(S_Q)}, 7 @@ s_add_u32 {s(S_W2S)}, {s(S_W2S)}, {s(S_BG)}
        v_add_u32 {v(V_W2A+1)}, {8192-1024}, {v(V_W2A)}
        """)
    def w2_setup_r(self):
        return L(f"""
        s_and_b32 {s(S_TCH)}, {s(S_W)}, 2 @@ s_lshl_b32 {s(S_TCH)}, {s(S_TCH)}, 5 @@ v_xor_b32 {v(V_W2R+3)}, {s(S_TCH)}, {v(V_W1R)}
        v_xor_b32 {v(V_W2R)}, 96, {v(V_W2R+3)}
        v_xor_b32 {v(V_W2R+1)}, 64, {v(V_W2R+3)}
        v_xor_b32 {v(V_W2R+2)}, 32, {v(V_W2R+3)}
        """)
    def w2_dma(self, b, slot):
        A = self.A; h, ks = self.items[b]; ops = []
        def base(x, c):
            if ks == 6:
                A(f's_lshl1_add_u32 {s(S_BG)}, {s(S_ODD)}, {x}')
                A(f's_xor_b32 {s(S_BG)}, {s(S_BG)}, {s(S_Q)}')
            elif x: A(f's_xor_b32 {s(S_BG)}, {s(S_Q)}, {x}')
            A(f's_mul_i32 {s(S_BG)}, {s(S_BG if x or ks == 6 else S_Q)}, {224*1024}')
            A(f's_add_u32 {s(S_BG)}, {s(S_BG)}, {s(S_W2S)}')
            if ks == 6:
                A(f's_lshl_b32 {s(S_RR+3)}, {s(S_ODD)}, 16')
                A(f's_sub_u32 {s(S_BG)}, {s(S_BG)}, {s(S_RR+3)}')
            if c: A(f's_add_u32 {s(S_BG)}, {s(S_BG)}, {c}')
            if h == 0: A(f's_xor_b32 {s(S_BG)}, {s(S_BG)}, 512')
        for i in range(4):
            def f(i=i):
                if i == 0:
                    if self.opt.get('m0f'): A(f's_add_u32 m0, {s(S_SB)}, {slot*4096}')
                    base(*((ks, 0) if ks < 4 else (2 * (ks - 4), 32768) if ks < 6 else (0, 49152)))
                    if not self.opt.get('m0f'): A(f's_add_u32 m0, {s(S_SB)}, {slot*4096}')
                if i == 2:
                    if ks < 4: A(f's_add_u32 {s(S_BG)}, {s(S_BG)}, {16384 - 2048}')
                    else: base(*((2 * (ks - 4) + 1, 32768 - 2048) if ks < 6 else (1, 49152 - 2048)))
                A(f'buffer_load_dwordx4 {v(V_W2A+(i&1))}, {s(SRD_W2,4)}, {s(S_BG)} offen offset:{i*1024} lds')
                if i == 3: self.w2m[b] = A.nvm
            ops.append(f)
        return ops
    def w2_tr(self, b, slot):
        A = self.A; ops = []
        for t in range(4):
            for hh in range(2):
                def f(t=t, hh=hh):
                    assert self.blk > b, 'w2 fragment would overwrite live w1'
                    A.wait(vm=self.w2m[b])
                    A(f'ds_read_b64_tr_b16 {a(16*b+4*t+2*hh,2)}, {v(V_W2R+t)} offset:{slot*4096+hh*2048}')
                    self.trl[16 + b] = A.nlg
                ops.append(f)
        return ops
    def smalltouch(self, T):
        self.A(f's_mul_i32 {s(T)}, {s(S_Q)}, 448\ns_lshl_b32 {s(T+1)}, {s(S_W)}, 8')
        self.touch(V_TD, SRD_B1, T, 5); self.touch(V_TD, SRD_B2, T + 1, 2)
        self.touch(V_TD if self.opt.get('tlr') or self.opt.get('sp') else 191, SRD_WS, S_FLA, 1, ' sc1')
        if self.opt.get('tlr'):
            self.A(f'''
            v_lshlrev_b32 v191, 16, {v(V_LANE)}
            v_xor_b32 v191, {s(S_RR)}, v191
            s_mov_b64 exec, 0xff
            buffer_load_dword v191, v191, {s(SRD_WS,4)}, 0 offen offset:{self.opt['tlr']} sc1
            s_mov_b64 exec, -1
            ''')
        if self.opt.get('tll'):
            self.A(f's_add_u32 {s(T)}, {s(S_RR)}, 8192')
            self.touch(191, SRD_WS, T, 24, ' sc1')
    def ptouch(self, js=(0, 1, 2), T=S_RR + 2):
        A = self.A
        n = self.opt.get('npl', 3); tf = ' ' + self.opt.get('tf', 'sc1')
        A(f's_lshl3_add_u32 {s(T)}, {s(S_U)}, {s(S_Q)}')
        A(f"""
        s_lshl_b32 {s(T)}, {s(T)}, 5
        s_add_u32 {s(T)}, {s(T)}, {s(S_W)}
        s_lshl2_add_u32 {s(T)}, {s(S_Q) if self.opt.get('lay') else 0}, {s(T)}
        s_lshl_b32 {s(T)}, {s(T)}, 11
        s_add_u32 {s(T)}, {s(T)}, {WS_P + 8192}
        """)
        if 0 in js:
            A(f's_sub_u32 {s(T+1)}, {s(T)}, {8192 - 128}')
            self.touch(191, SRD_WS, T + 1, 11 if self.opt.get('zc') else 7, ' sc1')
        if 3 in js:
            A(f"""
            s_sub_u32 {s(T+1)}, {s(T)}, 8192
            v_mul_u32_u24 v191, {65536+128}, {v(V_LANE)}
            v_xor_b32 v191, {s(T+1)}, v191
            s_mov_b64 exec, 0xfe
            buffer_load_dword v191, v191, {s(SRD_WS,4)}, 0 offen sc1
            s_mov_b64 exec, -1
            """)
        if 4 in js:
            A(f's_add_u32 {s(T+1)}, {s(T)}, 16384')
            self.touch(191, SRD_WS, T + 1, 16, tf)
        if 1 not in js and 2 not in js: return
        A(f"""
        v_mul_u32_u24 {v(V_W2A+2)}, {8192-2048}, {v(V_G)}
        v_add_u32 {v(V_W2A+2)}, {v(V_W2A+2)}, {v(V_L128)}
        """)
        if 1 in js: self.touch(191, SRD_WS, T, min(64, 16 * n), tf, va=V_W2A + 2)
        if n > 4 and 2 in js:
            A(f's_add_u32 {s(T)}, {s(T)}, 32768')
            self.touch(191, SRD_WS, T, 16 * (n - 4), tf, va=V_W2A + 2)

    def fxst(self, T, V):
        A = self.A; LS = A.newlabel('nfx')
        if self.opt.get('fxp') >= 3:
            return A(f'''
        s_getreg_b32 {s(T)}, hwreg(HW_REG_XCC_ID)
        s_and_b32 {s(T)}, {s(T)}, 15
        v_add_u32 {v(V)}, {s(T)}, {v(V_TAG)}
        v_mov_b32 {v(V+1)}, {v(V_TAG+1)}
        s_lshl2_add_u32 {s(T)}, {s(S_U)}, {s(S_W)}
        s_lshl3_add_u32 {s(T)}, {s(T)}, {s(S_Q)}
        s_lshl_b32 {s(T)}, {s(T)}, 7
        s_add_u32 {s(T)}, {s(T)}, {FX3}
        s_mov_b64 exec, 1
        buffer_store_dwordx2 {v(V,2)}, off, {s(SRD_WS,4)}, {s(T)} sc1
        s_mov_b64 exec, -1
        ''')
        A(f's_cmp_lg_u32 {s(S_W)}, {self.opt.get("fxw", 0)}\ns_cbranch_scc1 {LS}')
        A.snap()
        A(f'''
        s_getreg_b32 {s(T)}, hwreg(HW_REG_XCC_ID)
        s_and_b32 {s(T)}, {s(T)}, 15
        v_add_u32 {v(V)}, {s(T)}, {v(V_TAG)}
        v_mov_b32 {v(V+1)}, {v(V_TAG+1)}
        s_lshl3_add_u32 {s(T)}, {s(S_U)}, {s(S_Q)}
        s_lshl_b32 {s(T)}, {s(T)}, 7
        s_add_u32 {s(T)}, {s(T)}, {FX2}
        s_mov_b64 exec, 1
        buffer_store_dwordx2 {v(V,2)}, off, {s(SRD_WS,4)}, {s(T)} sc1
        s_mov_b64 exec, -1
        ''')
        A.label(LS); A.unsnap()
    def align(self):
        if 'pg' not in self.opt: return ''
        return '.p2align 12\n' + (f".fill {self.opt['pg']//4}, 4, 0xbf810000\n" if self.opt['pg'] else '')
    def site(self, X):
        if 'pad' + X in self.opt: self.A.raw(f';SITE {X}')
    def cpf(self):
        self.A(f'''
        s_getpc_b64 {s(S_M,2)}
        L_pc0:
        s_lshr_b32 {s(S_FAST)}, s2, 3
        s_lshl2_add_u32 {s(S_FAST)}, {s(S_FAST)}, {s(S_W)}
        s_lshl_b32 {s(S_FAST)}, {s(S_FAST)}, 8
        s_min_u32 {s(S_FAST)}, {s(S_FAST)}, L_end-L_pc0-192
        ''')
        for k in range(4): self.A(f's_load_dword {s(S_CNT)}, {s(S_M,2)}, {s(S_FAST)} offset:{64*k}')

    def p1(self):
        A = self.A; o = self.opt
        X, R1, SUM, SQ, FS, ACC = 16, 160, 168, 172, 192, 224
        V_SGN, V_FAC, V_ZO, V_EW, V_XD, V_XR, V_ER = 176, 177, 178, 179, 184, 186, 12 if o.get('sp') else 191
        A(f'''
        s_cmp_ge_u32 s2, 256
        s_cbranch_scc1 L_end
        s_load_dwordx2 {s(SRD_X,2)}, s[0:1], 0
        s_load_dwordx2 {s(SRD_WS,2)}, s[0:1], 96
        s_load_dwordx2 {s(SRD_W1,2)}, s[0:1], 48
        s_load_dwordx2 {s(SRD_W2,2)}, s[0:1], 64
        s_load_dwordx2 {s(SRD_B1,2)}, s[0:1], 56
        s_load_dwordx2 {s(SRD_B2,2)}, s[0:1], 72
        s_load_dwordx2 {s(SRD_OUT,2)}, s[0:1], 80
        ''')
        self.stamp('start')
        if self.opt.get('cpf', 0) == 3:
            A(f'''
            s_getpc_b64 {s(S_M,2)}
            L_pc0:
            s_lshr_b32 {s(S_T0)}, s2, 3
            s_lshl_b32 {s(S_T0)}, {s(S_T0)}, 10
            v_lshl_add_u32 v7, v0, 2, {s(S_T0)}
            v_min_u32 v7, L_fin-L_pc0, v7
            global_load_dword {v(V_TD)}, v7, {s(S_M,2)}
            ''')
        A(f'''
        v_lshrrev_b32 v6, 6, v0
        v_and_b32 {v(V_LANE)}, 63, v0
        v_readfirstlane_b32 {s(S_W)}, v6
        ''')
        if self.opt.get('cpf', 0) == 1: self.cpf()
        A(f'''
        v_and_b32 {v(V_L15)}, 15, {v(V_LANE)}
        v_lshrrev_b32 {v(V_G)}, 4, {v(V_LANE)}
        v_lshlrev_b32 {v(V_L16)}, 4, {v(V_LANE)}
        v_lshlrev_b32 {v(V_L128)}, 7, {v(V_LANE)}
        s_lshr_b32 {s(S_N)}, s2, 3
        ''')
        if o.get('g2') == 2: A(f'''
        s_and_b32 {s(S_T1)}, s2, 1
        s_and_b32 {s(S_Q)}, {s(S_N)}, 3
        s_lshl2_add_u32 {s(S_Q)}, {s(S_T1)}, {s(S_Q)}
        s_and_b32 {s(S_T1)}, s2, 6
        s_lshr_b32 {s(S_C)}, {s(S_N)}, 3
        s_lshl1_add_u32 {s(S_U)}, {s(S_T1)}, {s(S_C)}
        s_sub_u32 {s(S_T1)}, 32, {s(S_U)}
        s_cmp_eq_u32 {s(S_U)}, 0
        s_cselect_b32 {s(S_T1)}, 16, {s(S_T1)}
        s_bitcmp1_b32 {s(S_N)}, 2
        s_cselect_b32 {s(S_U)}, {s(S_T1)}, {s(S_U)}
        ''')
        elif o.get('g2'): A(f'''
        s_and_b32 {s(S_T1)}, s2, 1
        s_and_b32 {s(S_Q)}, {s(S_N)}, 3
        s_lshl2_add_u32 {s(S_Q)}, {s(S_T1)}, {s(S_Q)}
        s_and_b32 {s(S_T1)}, s2, 6
        s_lshr_b32 {s(S_U)}, {s(S_N)}, 2
        s_and_b32 {s(S_C)}, {s(S_U)}, 3
        s_lshl2_add_u32 {s(S_U)}, {s(S_T1)}, {s(S_U)}
        ''')
        else: A(f'''
        s_and_b32 {s(S_T1)}, s2, 7
        s_and_b32 {s(S_Q)}, {s(S_N)}, 7
        s_lshr_b32 {s(S_C)}, {s(S_N)}, 3
        s_lshl2_add_u32 {s(S_U)}, {s(S_T1)}, {s(S_C)}
        ''')
        A(f'''
        s_lshl_b32 {s(S_HB0)}, {s(S_W)}, 14
        s_and_b32 {s(S_ODD)}, {s(S_W)}, 1
        s_lshl2_add_u32 {s(S_TW)}, {s(S_N)}, {s(S_W)}
        s_lshl_b32 {s(S_T0)}, {s(S_Q)}, 7
        s_and_b32 {s(S_T1)}, {s(S_T0)}, 0x200
        ''')
        for i in range(4):
            A(f's_add_u32 {s(S_T2)}, {s(S_T0)}, {128*i}\ns_and_b32 {s(S_T2)}, {s(S_T2)}, 0x180\ns_or_b32 {s(S_XO+i)}, {s(S_T2)}, {s(S_T1)}')
        self.srd(SRD_X, 2097152); self.srd(SRD_WS, WS_SIZE); self.srd(SRD_W2, 1835008); self.srd(SRD_W1, 1835008)
        self.srd(SRD_B1, 3584); self.srd(SRD_B2, 1024); self.srd(SRD_OUT, 2097152)
        A(f'''
        s_and_b32 {s(S_T0)}, {s(S_W)}, 2
        s_lshl4_add_u32 {s(S_T0)}, {s(S_T0)}, {s(S_ODD)}
        s_lshl_b32 {s(S_T0)}, {s(S_T0)}, 5
        s_add_u32 {s(S_T0)}, {s(S_T0)}, {s(S_U)}
        s_lshl_b32 {s(S_T0)}, {s(S_T0)}, 10
        v_lshrrev_b32 v12, 3, {v(V_LANE)}
        v_and_b32 v13, 7, {v(V_LANE)}
        v_xor_b32 v13, v13, {v(V_G)}
        v_lshlrev_b32 v13, 4, v13
        v_lshl_add_u32 v6, v12, 16, v13
        v_add_u32 {v(V_XD)}, {s(S_T0)}, v6
        v_xor_b32 v6, 64, {v(V_XD)}
        v_add_u32 {v(V_XD+1)}, {8*65536 - 1024}, v6
        ''')
        A(f'''
        s_lshl_b32 {s(S_T0)}, {s(S_Q)}, 5
        v_lshrrev_b32 v6, 2, {v(V_L15)}
        v_and_b32 v7, 3, {v(V_L15)}
        v_lshl_add_u32 v6, v6, 3, v7
        v_add_u32 v6, {s(S_T0)}, v6
        v_add_u32 v7, 4, v6
        v_cmp_eq_u32 vcc, 0, v6
        v_mov_b32 v8, 0x100
        v_cndmask_b32 v6, v6, v8, vcc
        v_cvt_f32_u32 v6, v6
        v_cvt_f32_u32 v7, v7
        v_mul_f32 v6, {f2u(1/512)}, v6
        v_mul_f32 v7, {f2u(1/512)}, v7
        s_add_u32 {s(S_T0)}, {s(S_W)}, {s(S_Q)}
        s_and_b32 {s(S_T0)}, {s(S_T0)}, 3
        s_lshl_b32 {s(S_T0)}, {s(S_T0)}, 6
        v_lshl_add_u32 v8, {v(V_G)}, 3, {s(S_T0)}
        v_cvt_f32_u32 v8, v8
        v_add_f32 v9, {f2u(32.0)}, v8
        s_mul_i32 {s(S_T0)}, {s(S_W)}, {SPW}
        s_add_u32 {s(S_T0)}, {s(S_T0)}, {L_S}
        v_add_u32 v10, {s(S_T0)}, {v(V_L16)}
        ''')
        def tab(kk, et):
            b = X + 32 * et
            A(f'v_mul_f32 {v(b)}, {v(6+et)}, {v(8+kk)}')
            A(f'v_add_f32 {v(b+1)}, {v(b)}, {v(6+et)}')
            if kk == 0: A(f'v_cos_f32 {v(b+2)}, {v(6+et)}')
            for j in range(2):
                A(f'v_cos_f32 {v(b+8+j)}, {v(b+j)}')
                A(f'v_sin_f32 {v(b+16+j)}, {v(b+j)}')
            if kk == 0: A(f'v_add_f32 {v(b+2)}, {v(b+2)}, {v(b+2)}')
            for j in range(2, 8):
                A(f'v_fma_f32 {v(b+8+j)}, {v(b+2)}, {v(b+7+j)}, -{v(b+6+j)}')
                A(f'v_fma_f32 {v(b+16+j)}, {v(b+2)}, {v(b+15+j)}, -{v(b+14+j)}')
            for j in range(4):
                A(f'v_cvt_pk_bf16_f32 {v(b+24+j)}, {v(b+8+2*j)}, {v(b+9+2*j)}')
            for j in range(4):
                A(f'v_cvt_pk_bf16_f32 {v(b+28+j)}, {v(b+16+2*j)}, {v(b+17+2*j)}')
            A(f'ds_write_b128 v10, {v(b+24,4)} offset:{(kk*4+et*2)*1024}')
            A(f'ds_write_b128 v10, {v(b+28,4)} offset:{(kk*4+et*2+1)*1024}')
        npre = o.get('tabpre', 1)
        tabs = [(0, 0), (0, 1), (1, 0), (1, 1)]
        for t in tabs[:npre]: tab(*t)
        A(f's_mov_b32 {s(S_T2)}, {FE}')
        self.site('K')
        A('s_waitcnt lgkmcnt(0)')
        self.stamp('kernarg')
        A.on = bool(o.get('s1', 1))
        xm = []
        XORD = [0, 2, 4, 6, 1, 3, 5, 7] if o.get('g1n') else list(range(8))
        def xdma(i):
            i = XORD[i]
            A(f's_add_u32 m0, {s(S_HB0)}, {i*2048}')
            so = S_XO + (i >> 1)
            if i & 1:
                A(f's_xor_b32 {s(S_BG)}, {s(so)}, 0x200'); so = S_BG
            A(f'buffer_load_dwordx4 {v(V_XD)}, {s(SRD_X,4)}, {s(so)} offen lds')
            A(f'buffer_load_dwordx4 {v(V_XD+1)}, {s(SRD_X,4)}, {s(so)} offen offset:1024 lds')
            xm.append(A.nvm)
        NX0 = o.get('nx0', 5)
        if o.get('tl1') == 1: A(f'buffer_load_dword {v(V_BT)}, off, {s(SRD_W1,4)}, 0')
        xdma(0)
        if o.get('tl1') == 2: A(f's_buffer_load_dword {s(S_AM0)}, {s(SRD_W1,4)}, 0\ns_buffer_load_dword {s(S_AM0)}, {s(SRD_W1,4)}, 0xffffc\ns_buffer_load_dword {s(S_AM0)}, {s(SRD_W2,4)}, 0\ns_buffer_load_dword {s(S_AM0)}, {s(SRD_W2,4)}, 0xffffc')
        A(f'buffer_load_dwordx2 {v(V_TAG,2)}, off, {s(SRD_WS,4)}, {s(S_T2)}{self.fef}')
        for i in range(1, NX0):
            if o.get('t1e') == i: self.g2touch(1)
            if o.get('t1a') == i: self.g2touch(1, 'a')
            xdma(i)
        if o.get('t1e') == NX0: self.g2touch(1)
        if o.get('t1a') == NX0: self.g2touch(1, 'a')
        T0 = o.get('t0', 0)
        if T0: self.wtouch(V_TD, SRD_W1, 0, T0)
        A.on = False
        if o.get('cpf') == 2: self.cpf()
        if o.get('txr', 0) or o.get('tsc', 0): A(f'''
        s_and_b32 {s(S_T0)}, {s(S_TW)}, 31
        s_lshl_b32 {s(S_T1)}, {s(S_T0)}, 6
        s_sub_u32 {s(S_T1)}, {s(S_T1)}, {s(S_U)}
        s_add_u32 {s(S_T1)}, {s(S_T1)}, 64
        s_and_b32 {s(S_T1)}, {s(S_T1)}, 2047
        s_lshl_b32 {s(S_T1)}, {s(S_T1)}, 10
        ''')
        if o.get('txr', 0):
            for k in range(8): A(f's_buffer_load_dword {s(S_AM0)}, {s(SRD_X,4)}, {s(S_T1)} offset:{128*k}')
        if o.get('tsc', 0): A(f'''
        s_min_u32 {s(S_T1)}, {s(S_T0)}, 27
        s_lshl_b32 {s(S_T1)}, {s(S_T1)}, 7
        s_buffer_load_dword {s(S_AM0)}, {s(SRD_B1,4)}, {s(S_T1)}
        s_and_b32 {s(S_T1)}, {s(S_T0)}, 7
        s_lshl_b32 {s(S_T1)}, {s(S_T1)}, 7
        s_buffer_load_dword {s(S_AM0)}, {s(SRD_B2,4)}, {s(S_T1)}
        ''')
        A.on = bool(o.get('s1', 1))
        if o.get('tlb'):
            LT = [A.newlabel('tl') for _ in range(4)]
            sh = o.get('tlb')
            A(f's_lshl_b32 {s(S_T0)}, {s(S_N)}, 10')
            for k, (srd, st_, base) in enumerate(((SRD_W1, 28672, 0), (SRD_W2, 28672, 0), (SRD_WS, 32768, WS_Z), (SRD_WS, 114688, WS_R))):
                A(f's_cmp_lg_u32 {s(S_W)}, {k}\ns_cbranch_scc1 {LT[k]}')
                A.snap()
                A(f'v_mul_u32_u24 {v(V_BT)}, {st_}, {v(V_LANE)}')
                if base: A(f's_add_u32 {s(S_T0)}, {s(S_T0)}, {base}')
                A(f'buffer_load_dword {v(V_TD)}, {v(V_BT)}, {s(srd,4)}, {s(S_T0)} offen')
                A.label(LT[k]); A.unsnap()
        A(f'''
        s_mov_b32 {s(S_HB)}, {s(S_HB0)}
        s_mul_i32 {s(S_SB)}, {s(S_W)}, {SPW}
        s_add_u32 {s(S_SB)}, {s(S_SB)}, {L_S}
        s_add_u32 {s(S_TB1)}, {s(S_U)}, 1024
        s_cmp_eq_u32 {s(S_U)}, 0
        s_cselect_b32 {s(S_TB1)}, 32, {s(S_TB1)}
        ''')
        self.w1m = {}; self.w1l = {}; self.csn = [0] * 4; self.w2m = {}
        self.w1order = list(range(16))
        if o.get('ord'): self.w1order = [0, 1, 8, 9] + list(range(2, 8)) + list(range(10, 16))
        self.pipe = self.w1_pipeline()
        for k, t in enumerate(tabs[npre:]):
            tab(*t)
            if o.get('t1e') == 10 + k: self.g2touch(1)
            if o.get('t1a') == 10 + k: self.g2touch(1, 'a')
        b = TB
        t2 = L(f'''
        s_mov_b32 {s(S_T2)}, 0xffff
        s_cmp_ge_u32 {s(S_W)}, 2 @@ s_cselect_b32 {s(S_T0)}, {s(S_TB1)}, {s(S_U)} @@ s_cselect_b32 {s(S_T1)}, 0, {f2u(0.25)} @@ s_cselect_b32 {s(S_T2)}, 0xffff0000, {s(S_T2)}
        s_cmp_eq_u32 {s(S_U)}, 0 @@ s_cselect_b32 {s(S_T1)}, {s(S_T1)}, {f2u(0.25)} @@ s_cselect_b32 {s(S_T2)}, {s(S_T2)}, -1
        v_lshl_add_u32 v11, {v(V_L15)}, 6, {s(S_T0)}
        v_cmp_eq_u32 vcc, 0, v11
        v_cvt_f32_u32 v11, v11
        v_mul_f32 v11, {f2u(1/2048)}, v11
        v_lshlrev_b32 v6, 15, {v(V_G)}
        v_and_b32 v6, 0x8000, v6
        v_cndmask_b32 v7, 0, v6, vcc
        s_lshl1_add_u32 {s(S_T0)}, {s(S_ODD)}, {s(S_Q)}
        s_lshl_b32 {s(S_T0)}, {s(S_T0)}, 3
        v_add_u32 v8, {s(S_T0)}, {v(V_G)}
        ''')
        for j in range(4):
            t2 += [f'v_add_u32 v6, {4*j}, v8', 'v_and_b32 v6, 31, v6', 'v_cvt_f32_u32 v6, v6',
                   f'v_mul_f32 {v(b+2*j)}, v6, v11', f'v_add_f32 {v(b+2*j+1)}, {s(S_T1)}, {v(b+2*j)}']
        for j in range(8):
            t2 += [f'v_cos_f32 {v(b+8+j)}, {v(b+j)}', f'v_sin_f32 {v(b+16+j)}, {v(b+j)}']
        for j in range(4):
            d = b + 24 + 8 * (j >> 1) + 2 * (j & 1)
            t2 += [f'v_cvt_pk_bf16_f32 {v(d)}, {v(b+8+2*j)}, {v(b+9+2*j)}',
                   f'v_cvt_pk_bf16_f32 {v(d+5)}, {v(b+16+2*j)}, {v(b+17+2*j)}',
                   f'v_and_b32 {v(d)}, {s(S_T2)}, {v(d)}', f'v_and_b32 {v(d+5)}, {s(S_T2)}, {v(d+5)}',
                   f'v_xor_b32 {v(d+4)}, v7, {v(d)}', f'v_xor_b32 {v(d+1)}, 0x80008000, {v(d+5)}']
        for k in range(2):
            for var in range(2):
                t2.append(f'ds_write_b128 v10, {v(b+24+8*k+4*var,4)} offset:{8192+k*2048+var*1024}')
        self.flush(t2)
        XRP = o.get('xrp', 0)
        VM = 16 if XRP >= 2 else 148
        vmset = (f'''
        v_sub_u32 v7, 15, v12
        v_lshl_add_u32 {v(VM)}, v7, 16, v13
        v_xor_b32 {v(VM+1)}, {8*65536+64}, {v(VM)}
        s_sub_u32 {s(S_RR)}, 1088, {s(S_U)}
        s_lshl_b32 {s(S_RR)}, {s(S_RR)}, 10
        s_sub_u32 {s(S_RR+1)}, 1088, {s(S_TB1)}
        s_lshl_b32 {s(S_RR+1)}, {s(S_RR+1)}, 10
        s_lshl_b32 {s(S_RR+2)}, {s(S_W)}, 7
        s_sub_u32 {s(S_RR+3)}, 896, {s(S_RR+2)}
        v_add_u32 v6, {s(S_RR)}, {v(VM)}
        v_lshrrev_b32 v7, 1, v6
        v_and_b32 v7, {1<<20}, v7
        v_sub_u32 {v(VM+2)}, v6, v7
        v_and_b32 {v(VM+3)}, {(1<<21)-1}, v6
        ''')
        if XRP < 2: A(vmset)
        A(f'''
        v_mov_b32 v6, {s(S_U)}
        v_mov_b32 v7, {s(S_TB1)}
        v_and_b32 v8, 1, {v(V_G)}
        v_cmp_eq_u32 vcc, 1, v8
        v_add_u32 v10, {L_S}, {v(V_L16)}
        v_add_u32 v11, {L_S+2*SPW}, {v(V_L16)}
        v_cndmask_b32 v6, v6, v7, vcc
        v_lshl_add_u32 {v(V_TT)}, {v(V_L15)}, 6, v6
        v_lshrrev_b32 v6, 1, {v(V_L15)}
        v_xor_b32 v6, v6, {v(V_G)}
        v_lshlrev_b32 v6, 4, v6
        v_lshl_add_u32 v15, {v(V_L15)}, 7, v6
        v_add_u32 {v(V_XR)}, {s(S_HB)}, v15
        v_xor_b32 {v(V_XR+1)}, 64, {v(V_XR)}
        ''')
        SP = o.get('sp')
        spi = L(f'''
        s_mov_b32 vcc_lo, 0x33333333 @@ s_mov_b32 vcc_hi, 0xcccccccc @@ v_mov_b32 {v(V_ONES)}, 0x3f803f80 @@ v_cndmask_b32 {v(V_ONES)}, 0, {v(V_ONES)}, vcc
        v_and_b32 {v(V_IDX)}, 1, {v(V_LANE)}
        v_mov_b32 {v(V_ONES+1)}, {v(V_ONES)}
        v_mul_u32_u24 {v(V_IDX)}, 0xaaaa, {v(V_IDX)}
        v_mov_b64 {v(V_ONES+2,2)}, {v(V_ONES,2)}
        v_or_b32 {v(V_IDX)}, 0x4444, {v(V_IDX)}
        v_mov_b64 {v(SUM,2)}, 0
        v_mov_b64 {v(SUM+2,2)}, 0
        ''')
        if not SP:
            for i in range(4): A(f'v_mov_b32 {v(V_ONES+i)}, 0x3f803f80')
        xr = []
        for m in (1, 0):
            for side in range(2):
                for hh in (1, 0):
                    def f(m=m, side=side, hh=hh):
                        A(f's_add_u32 m0, {s(S_SB)}, {12288+m*4096+side*2048+hh*1024}')
                        if hh == 0 and m == 0: A(f'buffer_load_dwordx4 {v(VM+2+side)}, {s(SRD_X,4)}, {s(S_RR+2+side)} offen lds')
                        else:
                            if hh == 1: A(f's_add_u32 {s(S_BG)}, {s(S_RR+m)}, {s(S_RR+2+side)}')
                            A(f'buffer_load_dwordx4 {v(VM+hh)}, {s(SRD_X,4)}, {s(S_BG)} offen lds')
                        self.xrm = A.nvm
                    xr.append(f)
        A.wait(lg=A.nlg)
        A('s_barrier')
        tl = {}
        def tabrd(f):
            A(f'ds_read_b128 {a(4*f,4)}, {v(10+(f>>4))} offset:{((f>>3)&1)*SPW+(f&7)*1024}')
            tl[f] = A.nlg
        for f in range(8): tabrd(f)
        self.stamp('tables')
        NX1 = min(8, NX0 + o.get('nx1', 3))
        for i in range(NX0, NX1): xdma(i)
        b = FS
        fild = [(lambda f=f: tabrd(f)) for f in range(8, 32)]
        fild += L(f'''
        s_lshl_b32 {s(S_W2S)}, {s(S_ODD)}, 10 @@ s_add_u32 {s(S_W2S)}, {s(S_W2S)}, {L_S+8192} @@ v_add_u32 v10, {s(S_W2S)}, {v(V_L16)}
        v_xor_b32 v11, 1024, v10
        ''')
        fill = []
        for f in range(16): fild.append(f'ds_read_b128 {v(TB+4*f,4)}, {v(10+(f&1))} offset:{(2*((f>>1)&1)+(f>>3))*SPW+((f>>2)&1)*2048}')
        fill += L(f'''
        s_lshl_b32 {s(S_T0)}, {s(S_W)}, 3
        v_lshrrev_b32 v6, 1, {v(V_L15)}
        v_add_u32 v6, {s(S_T0)}, v6
        v_and_b32 v7, 1, {v(V_L15)}
        v_cvt_f32_u32 v9, v7
        v_mul_f32 v9, {f2u(-0.25)}, v9
        v_lshl_add_u32 v8, v6, 1, v7
        v_cmp_eq_u32 vcc, 1, v8
        v_lshlrev_b32 v8, 3, {v(V_G)}
        v_cndmask_b32 v6, v6, 32, vcc
        v_cndmask_b32 v9, v9, 0, vcc
        v_cvt_f32_u32 v6, v6
        v_mul_f32 v6, {f2u(1/64)}, v6
        v_cvt_f32_u32 v8, v8
        v_fma_f32 {v(b)}, v6, v8, v9
        ''')
        if o.get('r1c'):
            fill += L(f'''
            v_cos_f32 v7, v6
            v_add_f32 {v(b+1)}, {v(b)}, v6
            v_cos_f32 {v(b+8)}, {v(b)}
            v_cos_f32 {v(b+9)}, {v(b+1)}
            v_add_f32 v7, v7, v7
            v_bfe_i32 v8, {v(V_LANE)}, 1, 1
            ''')
            for j in range(2, 8): fill.append(f'v_fma_f32 {v(b+8+j)}, v7, {v(b+7+j)}, -{v(b+6+j)}')
            fill.append('v_and_b32 v8, 0x80008000, v8')
            for j in range(4): fill.append(f'v_cvt_pk_bf16_f32 {v(R1+j)}, {v(b+8+4*(j&1)+(j>>1))}, {v(b+10+4*(j&1)+(j>>1))}')
            for j in range(4): fill.append(f'v_xor_b32 {v(R1+4+j)}, v8, {v(R1+j)}')
        for blk in range(0 if o.get('r1c') else 4):
            for j in range(4):
                c = 2 * j + (blk & 1) + 32 * (blk >> 1)
                if c: fill.append(f'v_fmamk_f32 {v(b+4*blk+j)}, v6, {f2u(float(c))}, {v(b)}')
        for j in range(0 if o.get('r1c') else 16): fill.append(f'v_cos_f32 {v(b+16+j)}, {v(b+j)}')
        for j in range(0 if o.get('r1c') else 8): fill.append(f'v_cvt_pk_bf16_f32 {v(R1+j)}, {v(b+16+2*j)}, {v(b+17+2*j)}')
        rdy = set()
        def chk(): assert cnt[0] > 14; print('vmset at', cnt[0])
        if XRP == 3 and o.get('vmf', 1): fill += [chk] + L(vmset) + [lambda: rdy.add(0)]
        if o.get('w1f'): fill += self.w1_setup() + [lambda: rdy.add(1)]
        fill += L(f'''
        v_and_b32 v6, 1, {v(V_LANE)}
        v_lshlrev_b32 v6, 31, v6
        v_or_b32 {v(V_SGN)}, 1.0, v6
        s_cmp_{'lt' if o.get('g1n') else 'ge'}_u32 {s(S_Q)}, 4 @@ s_cselect_b64 vcc, -1, 0
        v_cndmask_b32 {v(V_FAC)}, 1.0, {v(V_SGN)}, vcc
        ''')
        nsg = len(fill)
        zo = L(f'''
        s_lshl_b32 {s(S_T0)}, {s(S_W)}, 19
        s_lshl_b32 {s(S_T1)}, {s(S_Q)}, 13
        s_add_u32 {s(S_T0)}, {s(S_T0)}, {s(S_T1)}
        s_lshl_b32 {s(S_T1)}, {s(S_U)}, 8
        s_add_u32 {s(S_T0)}, {s(S_T0)}, {s(S_T1)}
        v_lshlrev_b32 v6, 17, {v(V_G)}
        v_lshl_add_u32 v6, {v(V_L15)}, 4, v6
        v_add_u32 {v(V_ZO)}, {s(S_T0)}, v6
        ''')
        if not o.get('zop'): fill += zo; zo = []
        fill += L(f'''
        s_lshr_b32 {s(S_T0)}, {s(S_W)}, 1
        s_lshl_b32 {s(S_T0)}, {s(S_T0)}, 10
        s_lshl3_add_u32 {s(S_T0)}, {s(S_ODD)}, {s(S_T0)}
        s_add_u32 {s(S_T0)}, {s(S_T0)}, {L_EXC}
        v_add_u32 {v(V_EW)}, {s(S_T0)}, {v(V_L16)}
        v_add_u32 {v(V_ER)}, {L_EXC}, {v(V_L16)}
        s_lshr_b32 {s(S_T1)}, {s(S_Q)}, 1
        s_lshl2_add_u32 {s(S_T0)}, {s(S_W)}, {s(S_T1)}
        s_lshl_b32 {s(S_T0)}, {s(S_T0)}, 5
        s_add_u32 {s(S_T0)}, {s(S_T0)}, {s(S_U)}
        s_and_b32 {s(S_T1)}, {s(S_Q)}, 1
        s_lshl1_add_u32 {s(S_T0)}, {s(S_T0)}, {s(S_T1)}
        s_lshl_b32 {s(S_T0)}, {s(S_T0)}, 7
        s_add_u32 {s(S_F1)}, {s(S_T0)}, {F1}
        ''') + L(f'''
        s_mov_b32 {s(S_XO)}, 0xaaaaaaaa
        s_mov_b32 {s(S_XO+1)}, 0xaaaaaaaa
        s_mov_b32 {s(S_XO+2)}, 0xcccccccc
        s_mov_b32 {s(S_XO+3)}, 0xcccccccc
        s_mov_b32 {s(S_M)}, 0x00f0000f
        s_mov_b32 {s(S_M+1)}, 0xf0000f00
        ''' if SP else f'''
        v_and_b32 v6, 1, {v(V_L15)}
        v_cmp_eq_u32 {s(S_XO,2)}, 1, v6
        v_and_b32 v6, 2, {v(V_L15)}
        v_cmp_eq_u32 {s(S_XO+2,2)}, 2, v6
        v_lshrrev_b32 v6, 2, {v(V_L15)}
        v_cmp_eq_u32 {s(S_M,2)}, v6, {v(V_G)}
        ''')
        g3 = []
        G1N = o.get('g1n', 0); post = []
        if G1N:
            w = self.w1_setup(); k = len(w) - o.get('w1p', len(w))
            fill += w[:k]; post = w[k:] + zo + [f's_mov_b32 {s(S_T1)}, 65536']
            rest = fill[nsg:]; e0 = rest.index(f's_lshr_b32 {s(S_T0)}, {s(S_W)}, 1'); m0_ = rest.index(f's_mov_b32 {s(S_XO)}, 0xaaaaaaaa')
            fill = fill[nsg-5:nsg] + rest[e0:e0+6] + rest[m0_:m0_+6] + fill[:nsg-5] + rest[:e0] + rest[e0+6:m0_] + rest[m0_+6:]
        elif not o.get('w1f'): fill += self.w1_setup() + [lambda: rdy.add(1)]
        if XRP == 3 and not o.get('vmf', 1): fill += L(vmset) + [lambda: rdy.add(0)]
        if XRP == 3: g3 += [(0, o.get('xrt', 56), f) for f in xr]
        if o.get('wpre'):
            def tbar():
                self.flush(fild); A.wait(lg=A.nlg); A('s_barrier')
            w = [(1, o.get('wpt', 60), f) for f in [tbar] + [f for kind, k, ops in self.pipe if kind == 'dma' for f in ops][:o['wpre']]]
            g3 = w + g3 if o.get('wpf') else g3 + w
        if not G1N: fill += L(f's_mov_b32 {s(S_T1)}, 65536\ns_mov_b32 {s(S_T0)}, {f2u(1/512)}\ns_mov_b32 {s(S_T2)}, {WS_HN}\ns_mov_b32 {s(S_T3)}, {WS_HN+65536}')
        xl = []
        def xrd(i):
            while len(xm) <= i: g1.pop(0)()
            A.wait(vm=xm[i])
            for kk in range(2):
                A(f'ds_read_b128 {v(X+8*i+4*kk,4)}, {v(V_XR+kk)} offset:{XORD[i]*2048}')
            xl.append(A.nlg)
        self.site('A')
        if SP: self.flush(spi)
        for _ in range(o.get('r1p', 0)): self.emit(fill.pop(0))
        for _ in range(o.get('tdp', 0)): self.emit(fild.pop(0))
        xrd(0)
        self.stamp('x first')
        xrd(1)
        A(f'''
        v_add_u32 {v(V_TAG)}, 0x9e3779b0, {v(V_TAG)}
        v_add_u32 {v(V_TAG+1)}, 0x7f4a7c15, {v(V_TAG+1)}
        ''')
        if o.get('fxp') in (1, 3): self.fxst(S_T0, V_FXV)
        if not o.get('fxp'): A(f'''
        s_getreg_b32 {s(S_T0)}, hwreg(HW_REG_XCC_ID)
        s_and_b32 {s(S_T0)}, {s(S_T0)}, 15
        v_add_u32 {v(V_FXV)}, {s(S_T0)}, {v(V_TAG)}
        v_mov_b32 {v(V_FXV+1)}, {v(V_TAG+1)}
        s_lshl_b32 {s(S_T0)}, {s(S_U)}, 7
        s_lshl3_add_u32 {s(S_T0)}, {s(S_Q)}, {s(S_T0)}
        s_add_u32 {s(S_T0)}, {s(S_T0)}, {FX}
        s_mov_b64 exec, 1
        buffer_store_dwordx2 {v(V_FXV,2)}, off, {s(SRD_WS,4)}, {s(S_T0)} sc1
        s_mov_b64 exec, -1
        ''')
        def t1():
            if o.get('t1e'): return
            if o.get('t1bar', 1): A('s_barrier')
            if o.get('g2'):
                self.g2touch(1, 'a' if o.get('t1a') == 20 else None)
                if o.get('t2a') == 1: self.g2touch(2, 'a')
                if o.get('tw2', 2) == 1: self.g2touch(2)
                if o.get('ts') == 0: self.smalltouch(S_AM0)
                return
            T1 = o.get('t1', 112)
            if T1 > T0: self.wtouch(V_TD, SRD_W1, T0, min(T1 - T0, 64))
            if T1 - T0 > 64: self.wtouch(V_TD, SRD_W1, T0 + 64, T1 - T0 - 64)
            if o.get('tw2'): self.wtouch(V_TD, SRD_W2, 0, o['tw2'])
        self.w1t = 56
        g1 = [(lambda i=i: xdma(i)) for i in range(NX1, 8)] + (xr if XRP < 2 else [lambda: None] * o.get('t1d', 0)) + [t1]
        for _ in range(min(len(g1), o.get('xr0', 3))): g1.pop(0)()
        XRE = o.get('xre', 2); cnt = [0, 0]
        def fl(n):
            cnt[0] += 1
            if g1 and cnt[0] % XRE == 0: return g1.pop(0)()
            if g3 and g3[0][0] in rdy and cnt[0] >= g3[0][1] and cnt[0] % o.get('xre3', 3) == 0: return g3.pop(0)[2]()
            if not fill and not fild and 2 not in rdy: rdy.add(2); print('gemm1 fill done at', cnt[0])
            k = cnt[1]
            if fild and cnt[0] % 4: self.emit(fild.pop(0)); k += 1
            while fill and k < n:
                n0 = A.wt; self.emit(fill.pop(0)); k += A.wt - n0
            cnt[1] = max(0, k - n)
        def ssum(i): A(f'v_smfmac_f32_16x16x64_bf16 {v(SUM,4)}, {v(V_ONES,4)}, {v(X+8*i,8)}, {v(V_IDX)}')
        if G1N: return self.p1tail(locals())
        for i in range(8):
            ip, hp = i >> 1, i & 1
            if i + 2 < 8: xrd(i + 2)
            if o.get('alls') == 3 and i in (2, 4, 5): self.stamp(f'x{i+2}')
            if o.get('twd') and i == 5: self.stamp('x last'); A.wait(vm=A.nvm); self.stamp('touch done')
            while 8 * ip + 7 not in tl: self.emit(fild.pop(0))
            A.wait(lg=max(xl[i], tl[8 * ip + 7]))
            for kk in range(2):
                xa = X + 8 * i + 4 * kk
                first = (i == 0 and kk == 0)
                A(f'v_mfma_f32_16x16x32_bf16 {v(SQ,4)}, {v(xa,4)}, {v(xa,4)}, {"0" if first else v(SQ,4)}')
                fl(2.2)
                if not SP: A(f'v_mfma_f32_16x16x32_bf16 {v(SUM,4)}, {v(xa,4)}, {v(V_ONES,4)}, {"0" if first else v(SUM,4)}'); fl(2.2)
                elif kk: ssum(i); fl(1.2)
                for t in range(4):
                    acc = ACC + 16 * hp + 4 * t
                    cin = '0' if (ip == 0 and kk == 0) else v(acc, 4)
                    A(f'v_mfma_f32_16x16x32_bf16 {v(acc,4)}, {v(xa,4)}, {a(32*ip+16*kk+4*t,4)}, {cin}')
                    if not (kk == 1 and t == 3): fl(2.2)
        print('gemm1 fill left', len(fill), len(fild), len(g1), len(g3))
        self.flush(fild); self.flush(fill)
        self.stamp('gemm1 done')
        A(f'''
        v_cndmask_b32 v6, {v(SQ)}, {v(SQ+1)}, {s(S_XO,2)}
        v_cndmask_b32 v7, {v(SQ+2)}, {v(SQ+3)}, {s(S_XO,2)}
        {f'v_add_f32 v8, {v(SUM)}, {v(SUM+1)}' if SP else f'v_cndmask_b32 v8, {v(SUM)}, {v(SUM+1)}, {s(S_XO,2)}'}
        {f'v_add_f32 v9, {v(SUM+2)}, {v(SUM+3)}' if SP else f'v_cndmask_b32 v9, {v(SUM+2)}, {v(SUM+3)}, {s(S_XO,2)}'}
        v_cndmask_b32 v6, v6, v7, {s(S_XO+2,2)}
        {f'v_add_f32 v8, v8, v9' if SP else f'v_cndmask_b32 v8, v8, v9, {s(S_XO+2,2)}'}
        v_mul_f32 v8, {s(S_T0)}, v8
        v_mul_f32 v8, v8, v8
        v_fma_f32 v6, v6, {s(S_T0)}, -v8
        v_max_f32 v6, 0, v6
        v_add_f32 v6, {f2u(1e-5)}, v6
        v_rsq_f32 v6, v6
        v_fma_f32 {v(ACC)}, {v(ACC+16)}, {v(V_SGN)}, {v(ACC)}
        v_cndmask_b32 v6, 0, v6, {s(S_M,2)}
        v_fma_f32 {v(ACC+1)}, {v(ACC+17)}, {v(V_SGN)}, {v(ACC+1)}
        v_fma_f32 {v(ACC+2)}, {v(ACC+18)}, {v(V_SGN)}, {v(ACC+2)}
        v_mfma_f32_16x16x4_f32 v[20:23], v6, {v(V_FAC)}, 0
        ''')
        for i in range(3, 16):
            A(f'v_fma_f32 {v(ACC+i)}, {v(ACC+16+i)}, {v(V_SGN)}, {v(ACC+i)}')
        for t in range(4):
            for r in range(0, 4, 2):
                A(f'v_pk_mul_f32 {v(ACC+4*t+r,2)}, {v(ACC+4*t+r,2)}, {v(20+r,2)}')
            A(f'v_cvt_pk_bf16_f32 {v(24+2*t)}, {v(ACC+4*t)}, {v(ACC+4*t+1)}')
            A(f'v_cvt_pk_bf16_f32 {v(25+2*t)}, {v(ACC+4*t+2)}, {v(ACC+4*t+3)}')
            A(f'ds_write_b64 {v(V_EW)}, {v(24+2*t,2)} offset:{t*2048}')
            if g3: g3.pop(0)[2]()
        while g3: g3.pop(0)[2]()
        if XRP == 2: A(vmset)
        if o.get('alls') == 3: A.wait(lg=A.nlg); self.stamp('exc wr')
        A.wait(vm=None if XRP and not o.get('xrw') else self.xrm, lg=A.nlg)
        if o.get('alls') == 3: self.stamp('xr in')
        A('s_barrier')
        if o.get('alls') == 3: self.stamp('bar')
        if o.get('rd8'): A.on = False
        for f in range(8):
            A(f'ds_read_b128 {v(32+4*f,4)}, {v(V_ER)} offset:{f*1024}')
        A.on = True
        for t in range(4):
            A(f's_waitcnt lgkmcnt({6-2*t})')
            A(f'v_mfma_f32_16x16x32_bf16 {v(64+4*t,4)}, {v(R1,4)}, {v(32+8*t,4)}, 0')
            A(f'v_mfma_f32_16x16x32_bf16 {v(64+4*t,4)}, {v(R1+4,4)}, {v(36+8*t,4)}, {v(64+4*t,4)}')
        A.dlg = A.nlg
        for k in range(2):
            for t in range(4):
                A(f'v_cvt_pk_bf16_f32 {v(24+4*k+t)}, {v(64+4*t+2*k)}, {v(65+4*t+2*k)}')
            A(f'buffer_store_dwordx4 {v(24+4*k,4)}, {v(V_ZO)}, {s(SRD_WS,4)}, {"0" if k == 0 else s(S_T1)} offen sc1')
            if o.get('zc'): A(f'buffer_store_dwordx4 {v(24+4*k,4)}, {v(V_ZO)}, {s(SRD_WS,4)}, {s(S_T2+k)} offen sc1')
        self.stamp('Z stores')
        self.zst = A.nvm
        self.xr = []
        if o.get('tw2') == 2:
            if o.get('t2bar', 1): A('s_barrier')
            self.g2touch(2)
            if XRP == 2: self.xr = xr
            if o.get('ts', 1) == 1: self.smalltouch(S_T0)
        elif XRP == 2: self.flush(xr)

    def p1tail(self, E):
        A = self.A; o = self.opt
        X, R1, SUM, SQ, ACC, V_SGN, V_FAC, V_ZO, V_EW, V_ER = (E[k] for k in 'X R1 SUM SQ ACC V_SGN V_FAC V_ZO V_EW V_ER'.split())
        fill, fild, g1, post, xrd, xl, tl, ssum = (E[k] for k in 'fill fild g1 post xrd xl tl ssum'.split())
        K = o['g1n']; XRE = o.get('xre', 2); FW = o.get('g1w', 22) / 10
        pri = []; st = {'n': 0, 'debt': 0}
        def fl(n):
            st['n'] += 1
            k = st['debt']
            if pri and pri[0][0] <= st['n']:
                while pri and pri[0][0] <= st['n'] and k < n:
                    n0 = A.wt; x = pri.pop(0)[1]; self.emit(x); k += A.wt - n0 + (isinstance(x, str) and x.startswith('v_pk'))
            elif g1 and st['n'] % XRE == 0: return g1.pop(0)()
            if fild and k < n: self.emit(fild.pop(0)); k += o.get('g1d', 16) / 10
            while fill and k < n:
                n0 = A.wt; self.emit(fill.pop(0)); k += A.wt - n0
            st['debt'] = max(0, k - n)
        def stats(i):
            while len(xl) <= i: xrd(len(xl))
            A.wait(lg=xl[i])
            for kk in range(2):
                xa = X + 8 * i + 4 * kk
                A(f'v_mfma_f32_16x16x32_bf16 {v(SQ,4)}, {v(xa,4)}, {v(xa,4)}, {v(SQ,4) if i or kk else "0"}'); fl(FW)
            ssum(i); fl(FW - 1)
        scaled = set()
        def mm(i, kk, t):
            f = 8 * (i & 3) + 4 * kk + t
            while f not in tl: self.emit(fild.pop(0))
            while i >= 4 and t not in scaled: self.emit(pri.pop(0)[1])
            A.wait(lg=max(xl[i], tl[f]))
            c = v(ACC + 4 * t, 4)
            A(f'v_mfma_f32_16x16x32_bf16 {c}, {v(X+8*i+4*kk,4)}, {a(4*f,4)}, {c if i or kk else "0"}')
        AH = o.get('xah', 2)
        for i in range(8 - K):
            while len(xl) < min(8, i + AH + 1 + (K - AH if i == 7 - K else 0)): xrd(len(xl))
            if i not in (3, 4): stats(i)
            for kk in range(2):
                for t in range(4):
                    mm(i, kk, t)
                    if i == 3 and kk:
                        pri.extend((st['n'] + 3, f'v_mul_f32 {v(ACC+4*t+r)}, {v(V_SGN)}, {v(ACC+4*t+r)}') for r in range(4))
                        pri.append((0, lambda t=t: scaled.add(t)))
                    fl(FW)
            if i == 3: stats(3); stats(4)
        for i in range(8 - K, 8): stats(i)
        print('gemm1 stats done: fill', len(fill), len(fild), len(g1), 'n', st['n'])
        T = 13; C = f2u(1/512)
        rs = []
        pri.extend((st['n'] + 3, x) for x in L(f'''
        v_cndmask_b32 {v(SQ)}, {v(SQ)}, {v(SQ+1)}, {s(S_XO,2)}
        v_cndmask_b32 {v(SQ+2)}, {v(SQ+2)}, {v(SQ+3)}, {s(S_XO,2)}
        v_add_f32 {v(SUM)}, {v(SUM)}, {v(SUM+1)}
        v_add_f32 {v(SUM+2)}, {v(SUM+2)}, {v(SUM+3)}
        v_cndmask_b32 {v(SQ)}, {v(SQ)}, {v(SQ+2)}, {s(S_XO+2,2)}
        v_add_f32 {v(SUM)}, {v(SUM)}, {v(SUM+2)}
        v_mul_f32 {v(SQ)}, {C}, {v(SQ)}
        v_mul_f32 {v(SUM)}, {C}, {v(SUM)}
        v_fma_f32 {v(SQ)}, -{v(SUM)}, {v(SUM)}, {v(SQ)}
        v_max_f32 {v(SQ)}, 0, {v(SQ)}
        v_add_f32 {v(SQ)}, {f2u(1e-5)}, {v(SQ)}
        v_rsq_f32 {v(SQ)}, {v(SQ)}
        v_cndmask_b32 {v(SQ)}, 0, {v(SQ)}, {s(S_M,2)}
        ''') + [lambda: rs.append(st['n'])])
        assert not any(isinstance(x, str) and x.startswith(f's_mov_b32 {s(S_M+1)},') for x in fill), 'masks late'
        done = []; ne = 0
        def epi(t):
            q = []
            if o.get('m2') and t < 3: q += [f'v_mul_f32 {v(ACC+4*t+r)}, {v(ACC+4*t+r)}, {v(SUM+r)}' for r in range(4)]
            else: q += [f'v_pk_mul_f32 {v(ACC+4*t+r,2)}, {v(ACC+4*t+r,2)}, {v(SUM+r,2)}' for r in (0, 2)]
            q += [f'v_cvt_pk_bf16_f32 {v(ACC+4*t+r)}, {v(ACC+4*t+2*r)}, {v(ACC+4*t+2*r+1)}' for r in range(2)]
            return q + [f'ds_write_b64 {v(V_EW)}, {v(ACC+4*t,2)} offset:{t*2048}']
        def bc():
            A(f'v_mfma_f32_16x16x4_f32 {v(SUM,4)}, {v(SQ)}, {v(V_FAC)}, 0'); rs.append(st['n']); fl(2 * FW + 1)
        for t in range(4):
            for i in range(8 - K, 8):
                for kk in range(2):
                    mm(i, kk, t)
                    if len(rs) == 1 and st['n'] >= rs[0] + o.get('bcd', 1): fl(FW); bc()
                    else: fl(FW)
                    while len(rs) == 2 and ne < len(done): pri.extend((max(rs[1] + 3, done[ne] + 3), x) for x in epi(ne)); ne += 1
            done.append(st['n'])
        print('gemm1 left: pri', len(pri), 'fill', len(fill), len(fild), len(g1), 'epi', ne)
        assert len(rs) == 2
        self.flush(fild); self.flush(fill)
        self.stamp('gemm1 done')
        while pri: self.emit(pri.pop(0)[1])
        for _ in range(o.get('pp0', 0)): self.emit(post.pop(0))
        for t in range(ne, 4): self.flush(epi(t))
        A.on = False
        for _ in range(o.get('pp1', 0)): self.emit(post.pop(0))
        if o.get('alls') == 3: A.wait(lg=A.nlg); self.stamp('exc wr')
        A.wait(vm=self.xrm, lg=A.nlg)
        if o.get('alls') == 3: self.stamp('xr in')
        A('s_barrier')
        if o.get('alls') == 3: self.stamp('bar')
        A.on = False
        for f in range(8): A(f'ds_read_b128 {v(32+4*f,4)}, {v(V_ER)} offset:{f*1024}')
        n0 = A.wt
        while post and A.wt - n0 < o.get('pp2', 14): self.emit(post.pop(0))
        A.on = True
        for t in range(4):
            A(f's_waitcnt lgkmcnt({6-2*t})')
            for h in range(2):
                A(f'v_mfma_f32_16x16x32_bf16 {v(64+4*t,4)}, {v(R1+4*h,4)}, {v(32+8*t+4*h,4)}, {v(64+4*t,4) if h else "0"}')
                n0 = A.wt
                while post and A.wt - n0 < FW: self.emit(post.pop(0))
            post += [f'v_cvt_pk_bf16_f32 {v(24+4*k+t)}, {v(64+4*t+2*k)}, {v(65+4*t+2*k)}' for k in range(2)]
        print('post left', len(post))
        self.flush(post)
        A.dlg = A.nlg
        for k in range(2): A(f'buffer_store_dwordx4 {v(24+4*k,4)}, {v(V_ZO)}, {s(SRD_WS,4)}, {"0" if k == 0 else s(S_T1)} offen sc1')
        self.stamp('Z stores')
        self.zst = A.nvm
        self.xr = []

    def ygrp(self, var, q1, tt): return Y + 32 * var + 16 * q1 + 8 * tt
    def dgrp(self, var, q1, tt):
        return ZF + 32 * q1 + 8 * self.dord.index((var, tt))
    dord = [(1, 1), (0, 1), (1, 0), (0, 0)]
    def window(self):
        A = self.A; o = self.opt
        A.clk = clk = sched.Clock()
        main = []
        AA = A
        A = lambda t: main.extend(L(t))
        XR = ZF
        SD0, SD1, SA1, SM_ = S_W2S, S_AM0, S_TCH, S_FIX
        AD = Y
        A(f'''
        s_sub_u32 {s(S_T0)}, {s(S_W)}, {s(S_Q)}
        s_and_b32 {s(S_T0)}, {s(S_T0)}, 3
        s_lshr_b32 {s(S_T1)}, {s(S_Q)}, 2
        s_lshl1_add_u32 {s(SD0)}, {s(S_T0)}, {s(S_T1)}
        s_lshl_b32 {s(SD0)}, {s(SD0)}, 11
        s_add_u32 {s(S_T0)}, {s(S_W)}, {s(S_Q)}
        s_sub_u32 {s(S_T0)}, 3, {s(S_T0)}
        s_and_b32 {s(S_T0)}, {s(S_T0)}, 3
        s_xor_b32 {s(S_T1)}, {s(S_T1)}, 1
        s_lshl1_add_u32 {s(SD1)}, {s(S_T0)}, {s(S_T1)}
        s_lshl_b32 {s(SD1)}, {s(SD1)}, 11
        s_add_u32 {s(SM_)}, {s(S_SB)}, 12288
        s_mov_b32 {s(SA1)}, 32768
        s_cmp_eq_u32 {s(S_U)}, 0
        s_cselect_b32 {s(S_T2)}, {s(SA1)}, 0
        s_cselect_b32 {s(SA1)}, 16384, {s(SA1)}
        s_cmp_eq_u32 {s(S_ODD)}, 0
        s_cselect_b32 {s(S_T3)}, 0, {s(S_T2)}
        s_cselect_b32 {s(S_T2)}, {s(S_T2)}, 0
        v_xor_b32 v7, 64, v15
        v_xor_b32 v8, 0x70, v15
        v_xor_b32 v9, 0x30, v15
        v_lshrrev_b32 v10, 1, {v(V_L15)}
        v_sub_u32 v11, 8, {v(V_G)}
        v_and_b32 v11, 7, v11
        v_xor_b32 v11, v11, v10
        v_lshlrev_b32 v11, 4, v11
        v_lshl_add_u32 v10, {v(V_L15)}, 7, v11
        v_xor_b32 v11, 64, v10
        v_cmp_eq_u32 vcc, 0, {v(V_L15)}
        v_mov_b32 v12, {s(S_T2)}
        v_mov_b32 v13, {s(S_T3)}
        v_cndmask_b32 v12, 0, v12, vcc
        v_cndmask_b32 v13, 0, v13, vcc
        s_add_u32 {s(S_T0)}, {s(SD1)}, 4096
        s_and_b32 {s(S_T0)}, {s(S_T0)}, 0x3fff
        s_sub_u32 {s(S_T0)}, {s(S_T0)}, {s(SD1)}
        s_mov_b32 {s(S_T1)}, {(-SPW) & 0xffffffff}
        s_cmp_eq_u32 {s(S_W)}, 0
        s_cselect_b32 {s(S_T1)}, {3*SPW}, {s(S_T1)}
        s_cmp_eq_u32 {s(S_ODD)}, 0
        s_cselect_b32 {s(S_T2)}, {s(S_T0)}, {s(S_T1)}
        s_cselect_b32 {s(S_T3)}, {s(S_T1)}, {s(S_T0)}
        v_mov_b32 v6, v10
        s_mov_b64 exec, 0xffff
        v_add_u32 v10, {s(S_T2)}, v10
        v_add_u32 v6, {s(S_T3)}, v6
        s_mov_b64 exec, -1
        ''')
        for rt in range(4):
            pat = [15, 7, 8, 9, 10 if rt < 2 else 6, 11]
            for side in range(2):
                d = S_T0 + side
                if rt & 1: A(f's_add_u32 {s(S_T2)}, {s(SD1 if side else SD0)}, {s(SA1)}')
                A(f's_add_u32 {s(S_T3)}, {s(SM_)}, {(rt&1)*4096+side*2048}')
                A(f's_cmp_eq_u32 {s(S_ODD)}, {rt>>1}')
                A(f's_cselect_b32 {s(d)}, {s(S_T2 if rt & 1 else (SD1 if side else SD0))}, {s(S_T3)}')
            for n in range(6):
                if n >= 2 and not rt & 1: A(f'v_add3_u32 {v(AD+6*rt+n)}, {v(pat[n])}, {s(S_T1)}, {v(12+(rt>>1))}')
                else: A(f'v_add_u32 {v(AD+6*rt+n)}, {s(S_T0 + (n >= 2))}, {v(pat[n])}')
        A = AA
        m2 = []; ex = False
        for x in main:
            if ex or x.startswith('s_cselect'): m2[-1] += '\n' + x
            else: m2.append(x)
            if x.startswith('s_mov_b64 exec'): ex = not x.endswith('-1')
        main = m2
        def xin():
            A.wait(vm=self.xrm); A('s_barrier')
        pre = []
        if o.get('xrp') and not o.get('xrw'): pre = main; main = [xin]
        xl = {}
        for rt in range(4):
            main += [f'ds_read_b128 {v(XR+16*rt+4*n,4)}, {v(AD+6*rt+n)}' for n in range(4)]
            main += [f'ds_read_u16 {v(AD+6*rt+4+q1)}, {v(AD+6*rt+4+q1)}' for q1 in range(2)]
            main.append(lambda rt=rt: (xl.__setitem__(rt, A.nlg), rt and A.wait(lg=xl[rt-1])))
        SR = 6
        (pre if pre else main).extend(L(f'''
        v_mov_b32 v6, 0xbf80
        v_mov_b32 v7, -1.0
        v_cndmask_b32 v6, v6, v7, {s(S_XO,2)}
        v_cndmask_b32 v6, 0, v6, {s(S_M,2)}
        v_cndmask_b32 {v(V_SEL+2)}, v6, 0, {s(S_XO+2,2)}
        v_cndmask_b32 {v(V_SEL+3)}, 0, v6, {s(S_XO+2,2)}
        v_mov_b32 {v(V_SEL)}, 0
        v_mov_b32 {v(V_SEL+1)}, 0
        v_mov_b32 {v(V_SEL+4)}, 0
        v_mov_b32 {v(V_SEL+5)}, 0
        v_and_b32 v6, 0xffff, {v(V_SEL+2)}
        v_and_b32 v8, 0xffff0000, {v(V_SEL+3)}
        v_xor_b32 v9, {v(V_SEL+2)}, {v(V_SEL+3)}
        v_xor_b32 v9, v9, v6
        v_xor_b32 v9, v9, v8
        v_mov_b32 v7, 0
        v_mov_b32 v10, v8
        v_mov_b32 v11, v9
        v_mov_b32 v12, v6
        v_mov_b32 v13, 0
        v_cmp_eq_u32 vcc, 0, {v(V_G)}
        s_cmp_eq_u32 {s(S_W)}, 0 @@ s_cselect_b64 {s(S_FIX,2)}, vcc, 0
        '''))
        main = pre + main
        def xfree():
            A.wait(lg=xl[3]); A('s_barrier'); self.xfree = True
        self.xfree = False
        main.append(xfree)
        main.append(f's_mov_b32 {s(S_T0)}, 0xffff')
        main += [f'v_bfi_b32 {v(XR+16*rt+8+4*q1)}, {s(S_T0)}, {v(AD+6*rt+4+q1)}, {v(XR+16*rt+8+4*q1)}' for rt in range(4) for q1 in range(2)]
        sel = lambda var, et: SR + 4 * et if var else V_SEL + 2 - 2 * et
        xf = lambda rt, var, q1: XR + 16 * rt + 4 * (2 * var + q1)
        G8 = [(q1, var, tt) for q1 in range(2) for var, tt in self.dord]
        def smm(d, var, et, x, c): return f'v_mfma_f32_16x16x32_bf16 {v(d+4*et,4)}, {v(sel(var,et),4)}, {v(x,4)}, {v(d+4*et,4) if c else "0"}'
        for q1, var, tt in G8: main += [smm(self.ygrp(1-var,q1,tt), 1-var, et, xf(tt,1-var,q1), 0) for et in range(2)]
        main += [f'v_lshlrev_b32 {v(V_FIX+rt)}, 16, {v(xf(rt,0,0))}' for rt in range(4)]
        main += [f'v_and_b32 {v(r)}, 0x7fff7fff, {v(r)}' for r in (V_SEL + 2, V_SEL + 3, 6, 8, 9, 10, 11, 12)]
        for q1, var, tt in G8: main += [smm(self.ygrp(1-var,q1,tt), var, et, xf(2+tt,var,q1), 1) for et in range(2)]
        for k, (q1, var, tt) in enumerate(G8):
            y = self.ygrp(1 - var, q1, tt); x = xf(2 + tt, var, q1)
            main += [f'v_cvt_pk_bf16_f32 {v(x+i)}, {v(y+2*i)}, {v(y+2*i+1)}' for i in range(4)]
            main += [smm(y, 1-var, et, xf(tt,1-var,q1), 0) for et in range(2)]
            main += [f'v_accvgpr_write_b32 {a(AD_+4*k+i)}, {v(x+i)}' for i in range(4)]
        EPT = o.get('ept')
        if EPT is None: main += L(f'''
        s_lshr_b32 {s(S_T0)}, {s(S_U)}, 3
        s_lshl2_add_u32 {s(S_T0)}, {s(S_T0)}, {s(S_W)}
        s_lshl_b32 {s(S_T0)}, {s(S_T0)}, 13
        s_add_u32 {s(S_T0)}, {s(S_T0)}, {F1}
        v_add_u32 v15, {s(S_T0)}, {v(V_L128)}
        s_lshl2_add_u32 {s(S_T0)}, {s(S_U)}, {s(S_W)}
        s_lshl_b32 {s(S_T0)}, {s(S_T0)}, 14
        s_and_b32 {s(S_T3)}, {s(S_Q)}, {4 if o.get('zc') else 0}
        s_lshl_b32 {s(S_T3)}, {s(S_T3)}, 19
        s_add_u32 {s(S_T0)}, {s(S_T0)}, {s(S_T3)}
        v_add_u32 {v(V_ZA)}, {s(S_T0)}, {v(V_L16)}
        v_add_u32 {v(V_ZA+1)}, 8192, {v(V_ZA)}
        s_and_b32 {s(S_T3)}, {s(S_Q)}, 3
        s_lshl_b32 {s(S_T3)}, {s(S_T3)}, 11
        s_lshl1_add_u32 {s(S_AM0)}, {s(S_T3)}, {s(S_T0)}
        ''')
        else: main += L(f's_and_b32 {s(S_T3)}, {s(S_Q)}, 3\ns_lshl_b32 {s(S_T3)}, {s(S_T3)}, 11')
        main += L(f'''
        s_lshl_b32 {s(S_T1)}, {s(S_ODD)}, 11
        s_add_u32 {s(S_T1)}, {s(S_T1)}, {s(S_HB)}
        v_add_u32 v10, {s(S_T1)}, {v(V_L16)}
        v_xor_b32 v11, 2048, v10
        s_xor_b32 {s(S_T1)}, {s(S_W)}, {s(S_C)}
        s_lshl_b32 {s(S_T1)}, {s(S_T1)}, 14
        v_xor_b32 v8, {s(S_T1)}, v10
        v_xor_b32 v9, {s(S_T1)}, v11
        s_lshl3_add_u32 {s(S_RR)}, {s(S_U)}, {s(S_Q)}
        s_lshl2_add_u32 {s(S_RR)}, {s(S_RR)}, {s(S_W)}
        s_lshl_b32 {s(S_RR)}, {s(S_RR)}, 14
        s_add_u32 {s(S_RR)}, {s(S_RR)}, {WS_P}
        s_andn2_b32 {s(S_FLA)}, {s(S_RR)}, {(3<<16)|(1<<14)}
        s_add_u32 {s(S_FLA)}, {s(S_FLA)}, 7168
        v_readfirstlane_b32 {s(S_LT)}, {v(V_TAG)}
        s_and_b32 {s(S_LT)}, {s(S_LT)}, 0xbfffbfff
        s_lshl_b32 {s(S_T0)}, {s(S_U)}, {(7, 10, 10, 12, 12)[o.get('fxp', 0)]}
        s_add_u32 {s(S_T0)}, {s(S_T0)}, {(FX, FX2, FX2, FX3, FX3)[o.get('fxp', 0)]}
        v_and_b32 v6, 7, {v(V_LANE)}
        v_lshlrev_b32 v6, {7 if o.get('fxp') else 3}, v6
        ''')
        NBD = o.get('nbd', 14); PE = o.get('pe', 1)
        WR, WL, WT, F1T, W0 = o.get('wr', 64), o.get('wl', 700), o.get('wt', 128), o.get('f1t', 1000), o.get('w0', 0)
        dq = []; tq = []; cq = []; dt = {}; tt_ = {}
        for kind, k, ops in self.pipe: {'dma': dq, 'tr': tq, 'cs': cq}[kind].extend((kind, k, f) for f in ops)
        for _ in range(o.get('wpre', 0)): dt[dq.pop(0)[1]] = o.get('wpl', -300)
        nxt = W0; flagged = False; pm = None; nd = 0; chk = False
        def epoll():
            nonlocal pm
            A(f'''
            s_lshr_b32 {s(S_FAST)}, {s(S_U)}, 3
            s_lshl2_add_u32 {s(S_FAST)}, {s(S_FAST)}, {s(S_W)}
            s_lshl_b32 {s(S_FAST)}, {s(S_FAST)}, 13
            s_add_u32 {s(S_FAST)}, {s(S_FAST)}, {F1}
            buffer_load_dwordx2 {v(V_ZA,2)}, {v(V_L128)}, {s(SRD_WS,4)}, {s(S_FAST)} offen sc1
            '''); pm = A.nvm
            print('window: poll at', clk.t, 'main left', len(main), 'dq', len(dq))
        def echeck():
            nonlocal chk
            assert self.xfree
            chk = True
            print('window: check at', clk.t, 'main left', len(main), 'dq', len(dq))
            if o.get('ect'): self.stamp('p2 prepoll')
            Lp = A.newlabel('poll'); D = A.newlabel('polld')
            A.wait(vm=pm)
            A.on = False
            A(f'v_cmp_ne_u64 vcc, {v(V_ZA,2)}, {v(V_TAG,2)}\ns_mov_b32 {s(S_CNT)}, 0x20000\ns_cbranch_vccz {D}')
            A.snap()
            A.label(Lp)
            A(f'''
            buffer_load_dwordx2 {v(V_ZA,2)}, {v(V_L128)}, {s(SRD_WS,4)}, {s(S_FAST)} offen sc1
            s_sub_u32 {s(S_CNT)}, {s(S_CNT)}, 1
            s_cbranch_scc1 {D}
            s_waitcnt vmcnt(0)
            v_cmp_ne_u64 vcc, {v(V_ZA,2)}, {v(V_TAG,2)}
            s_cbranch_vccnz {Lp}
            ''')
            A.label(D)
            A.unsnap()
            A(f's_lshl2_add_u32 {s(S_AM0)}, {s(S_U)}, {s(S_W)}\ns_lshl_b32 {s(S_AM0)}, {s(S_AM0)}, 14')
            if o.get('zt'):
                A(f's_and_b32 {s(S_FAST)}, {s(S_Q)}, 3\ns_lshl_b32 {s(S_FAST)}, {s(S_FAST)}, 12\ns_add_u32 {s(S_FAST)}, {s(S_FAST)}, {s(S_AM0)}')
                self.touch(191, SRD_WS, S_FAST, 32, ' sc1')
            A.on = True
            A(f'v_add_u32 {v(V_ZA)}, {s(S_AM0)}, {v(V_L16)}\nv_add_u32 {v(V_ZA+1)}, 8192, {v(V_ZA)}')
            if o.get('ect'): self.stamp('p2 checked')
        while main or (dq and dq[0][1] < NBD) or not flagged:
            T = clk.t
            k = dq[0][1] if dq else 99
            if not flagged and T >= F1T:
                self.stamp('pre F1')
                A.wait(vm=self.zst)
                self.setflag(S_F1, ' sc1')
                self.stamp('F1 set')
                if o.get('fxp') in (2, 4): self.fxst(S_BG, V_ZA)
                flagged = True
                self.flush(self.xr)
                for _ in range(o.get('wq2', 0)):
                    k = dq[0][1]; assert k < 3 or (k < 5 and self.xfree); self.emit(dq.pop(0)[2]); nxt = max(nxt, T) + WR; dt[k] = nxt
            elif EPT is not None and flagged and pm is None and T >= EPT: epoll()
            elif EPT is not None and pm is not None and not chk and T >= o.get('ect', 99999): echeck()
            elif nd < o.get('wq', 0): assert k < 3; self.emit(dq.pop(0)[2]); nd += 1; dt[k] = o.get('wql', W0)
            elif main and main[0] is xin and not flagged and o.get('xrp') == 2: clk.t += 8
            elif k < NBD and T >= nxt and (k < 3 or (self.xfree if k < 5 else (k - 5) in tt_ and T >= tt_[k - 5] + WT)) and not (k >= NBD - PE and (main or not flagged)):
                if k == NBD - PE and pm is None and EPT is None:
                    A(f'buffer_load_dwordx2 v[12:13], v15, {s(SRD_WS,4)}, 0 offen{self.plf}'); pm = A.nvm
                if k >= 5: A.wait(lg=self.w1l[k - 5])
                self.emit(dq.pop(0)[2]); nxt = max(nxt, T - 32) + WR
                if not (dq and dq[0][1] == k):
                    dt[k] = nxt
                    if o.get('fine') == 3 and k in (0, 2, 4, 5, 6, 7, 8, 9, 10, 11, 12): self.stamp(f'wd{k} m{len(main)} T{T}')
            elif tq[0][1] in dt and tq[0][1] < 14 and T >= dt[tq[0][1]] + WL:
                k = tq[0][1]; self.emit(tq.pop(0)[2])
                if tq[0][1] != k: tt_[k] = T
            elif cq[0][1] in tt_ and T >= tt_[cq[0][1]] + WT and clk.pipe <= T + 4 and not (main and o.get('mp', 1)): self.emit(cq.pop(0)[2])
            elif main: self.emit(main.pop(0))
            else: clk.t += 8
        print('window: est', clk.t, 'tr left', len(tq), 'cs left', len(cq))
        A.clk = None
        self.post = dq + tq + cq
        if EPT is not None:
            if not o.get('ect'): self.stamp('p2 prepoll')
            if pm is None: epoll()
            if not chk: echeck()
            self.stamp('p2 polled')
            return
        self.stamp('p2 prepoll')
        if pm is None:
            A(f'buffer_load_dwordx2 v[12:13], v15, {s(SRD_WS,4)}, 0 offen{self.plf}'); pm = A.nvm
        Lp = A.newlabel('poll'); D = A.newlabel('polld')
        if o.get('tpl'):
            A('s_barrier')
            self.g2touch(2, o['tpl'])
            if o.get('ts') == 3: self.smalltouch(S_RR + 2)
        self.site('B')
        A.wait(vm=pm)
        A.on = False
        A(f'v_cmp_ne_u64 vcc, v[12:13], {v(V_TAG,2)}\ns_mov_b32 {s(S_CNT)}, 0x20000\ns_cbranch_vccz {D}')
        A.snap()
        A.label(Lp)
        A(f'''
        buffer_load_dwordx2 v[12:13], v15, {s(SRD_WS,4)}, 0 offen sc1
        s_sub_u32 {s(S_CNT)}, {s(S_CNT)}, 1
        s_cbranch_scc1 {D}
        s_waitcnt vmcnt(0)
        v_cmp_ne_u64 vcc, v[12:13], {v(V_TAG,2)}
        s_cbranch_vccnz {Lp}
        ''')
        A.label(D)
        A.unsnap()
        self.stamp('p2 polled')

    def p23(self):
        A = self.A; o = self.opt
        if o.get('idle'): A(f's_sleep {o["idle"]}')
        A.on = True
        dr = str(o.get('drop', ''))
        A.drop = lambda t: ('d' in dr and t.endswith(' lds')) or ('t' in dr and t.startswith('ds_read_b64_tr')) or ('w' in dr and t.startswith('ds_write')) or ('h' in dr and t.startswith('ds_read_b128'))
        zm = {}
        def zld(q1, ks):
            if ks or q1: A(f's_add_u32 {s(S_T3)}, {s(S_T3)}, 2048\ns_and_b32 {s(S_T3)}, {s(S_T3)}, 0x1800')
            for h in range(2):
                A(f'buffer_load_dwordx4 {v(ZF+32*q1+8*ks+4*h,4)}, {v(V_ZA+q1)}, {s(SRD_WS,4)}, {s(S_T3)} offen offset:{h*1024}{self.zldf}')
            zm[q1, ks] = A.nvm
        for k in range(6):
            zld(k >> 2, k & 3)
            if k == 3: A(f'buffer_load_dwordx2 v[6:7], v6, {s(SRD_WS,4)}, {s(S_T0)} offen{self.fxf}')
        if 'ept' in o: self.site('B')
        NA = 10
        self.debt = 0; self.tick = 0; self.nxt = o.get('dma0', 16); self.blk = -1; self.b4 = False; self.hold = False
        RATE, LAT, SLACK, TL = o.get('rate', 40) / 10, o.get('lat', 44), o.get('slack', 8), o.get('tl', 8)
        self.lat = LAT
        dq = []; tq = []; cq = []; dt = {}; tt_ = {}
        for kind, k, f in self.post: {'dma': dq, 'tr': tq, 'cs': cq}[kind].append((kind, k, f))
        self.dfree = 0
        pend_d = {k for _, k, _ in dq}; pend_t = {k for _, k, _ in tq}
        for k in range(16):
            if k not in pend_d: dt[k] = -999
            if k not in pend_t: tt_[k] = -999
        KO = [int(ch) for ch in str(o.get('ko', 123456))]
        self.items = [(0, 0), (1, 0)] + [(0, ks) for ks in KO] + [(1, ks) for ks in KO]
        P4O = [(x[0], int(x[1]), [int(ch) for ch in x[2:]]) for x in o['p4o'].split('.')] if 'p4o' in o else None
        if P4O: self.items = [(0, 0), (1, 0)] + [(h, ks) for _, h, kl in P4O for ks in kl]
        assert len(set(self.items)) == 14
        dq += [('x', 16, x) for x in self.w2_setup()]
        for b in range(14): dq += [('dma', 16 + b, f) for f in self.w2_dma(b, (16 + b) % 5)]
        tq += [('x', 16, x) for x in self.w2_setup_r()]
        self.trl = {}
        for b in range(14): tq += [('tr', 16 + b, f) for f in self.w2_tr(b, (16 + b) % 5)]
        def ins(item, f, tag=-1):
            p = min([n for n, x in enumerate(dq) if x[1] >= item] + [len(dq)])
            dq.insert(p, ('x', tag, f))
        if self.w1t < 56: ins(0, lambda: self.w1touch(self.w1t, 56))
        if 't3' in o:
            t3 = [int(x) for x in str(o['t3']).split('.')]
            for k, p in enumerate(t3): ins(p, lambda k=k: self.w2touch(k if len(t3) > 1 else None))
        if 't4' in o:
            def t4():
                if o.get('ts', 1) == 1: self.smalltouch(S_RR + 2)
                if o.get('tw2') != 1 and o.get('tpl') != 'f': self.g2touch(2)
                if o.get('ptt4'): self.ptouch((o['ptt4'],))
                if o.get('trs') == 1: self.touch(191, SRD_WS, S_RR, 56, ' sc1')
                self.nxt = max(self.nxt, self.tick) + o.get('t4gap', 60)
            ins(o['t4'], t4, -2)
        if o.get('trs', 0) > 1: ins(o['trs'], lambda: self.touch(191, SRD_WS, S_RR, 56, ' sc1'))
        S_PQ, S_PS = S_RR, S_RR + 1
        ZC = 0
        def trlg(k): return self.w1l[self.w1order[k]] if k < 16 else self.trl[k]
        def d_ok(force=False):
            if not dq: return False
            kind, k, f = dq[0]
            if kind == 'x': return force or k > -2 or self.tick >= (o.get('t4t', 40) if k == -2 else 10)
            if kind == 'st': return force or self.tick >= self.nxt
            dep = k < 5 or ((k - 5) in tt_ and (force or self.tick >= tt_[k - 5] + TL))
            return dep and (force or (self.tick >= self.nxt and not self.hold))
        def d_pop():
            kind, k, f = dq.pop(0)
            if kind == 'st': self.nxt = max(self.nxt, self.tick - SLACK) + o.get('srate', 30) / 10
            if kind == 'dma':
                if k >= 5: A.wait(lg=trlg(k - 5))
                self.nxt = max(self.nxt, self.tick - SLACK) + RATE
                if not (dq and dq[0][:2] == ('dma', k)): dt[k] = self.tick
            self.emit(f)
        def t_ok(force=False):
            if not tq: return False
            kind, k, f = tq[0]
            if k not in dt: return False
            if kind == 'x': return True
            return (k < 14 + self.dfree if k < 16 else self.blk > k - 16) and (force or (self.tick >= dt[k] + self.lat and (k < 16 or self.tick >= o.get('g0', 0))))
        def t_pop():
            kind, k, f = tq.pop(0)
            self.emit(f)
            if kind == 'tr' and not (tq and tq[0][1] == k): tt_[k] = self.tick
        def c_ok(): return cq and cq[0][1] in tt_ and self.tick >= tt_[cq[0][1]] + TL
        def ensure(k):
            while k not in tt_:
                if t_ok(True): t_pop()
                else:
                    assert d_ok(True), (k, dq[:1], tq[:1]); d_pop()
        self.ensure = ensure; self.dq = dq; self.d_pop = d_pop
        def fill(kmax, qs, k=0):
            k += self.debt; self.debt = 0
            while k < kmax:
                n0 = A.wt
                if d_ok(): d_pop()
                else:
                    for q in qs:
                        if q is None:
                            if t_ok(): t_pop(); break
                        elif q: self.emit(q.pop(0)); break
                    else: break
                k += A.wt - n0
            self.debt = max(0, k - kmax)
        def extra(kmax, qs):
            if mq: mq.pop(0)()
            elif c_ok(): self.emit(cq.pop(0)[2])
            else: return
            self.tick += 1
            fill(kmax, qs)
        def grp(n, rt): return self.ygrp(n >> 1, n & 1, rt) if rt < 2 else self.dgrp(n >> 1, n & 1, rt - 2)
        SQ = {rt: grp(0, rt) + 4 for rt in range(4)}; SM = {rt: grp(2, rt) + 4 for rt in range(4)}
        SP = o.get('sp')
        if SP: SQ = {rt: grp(0, rt | 2) + 2 * (rt & 2) for rt in range(4)}; SM = {rt: grp(2, rt | 2) + 2 * (rt & 2) for rt in range(4)}
        mq = []
        slots = [TB + 56, TB + 60]
        def dadd(q1):
            for k, (var, tt) in enumerate(self.dord):
                d = self.dgrp(var, q1, tt); y = self.ygrp(1 - var, q1, tt)
                for et in range(2):
                    A(f'v_mfma_f32_16x16x32_bf16 {v(d+4*et,4)}, {v(V_SEL+2-2*et,4)}, {a(AD_+16*q1+4*k,4)}, {v(y+4*et,4)}')
                    self.tick += 1
                    fill(P2BG, [vq, None])
            self.dfree = q1 + 1
        def swap0(q1):
            def f():
                LS = A.newlabel('nsw')
                A(f's_cmp_lg_u32 {s(S_U)}, 0\ns_cbranch_scc1 {LS}')
                A.snap()
                A('s_mov_b32 exec_lo, 0x10001\ns_mov_b32 exec_hi, 0x10001')
                for j in range(8): A(f'v_swap_b32 {v(self.ygrp(1,q1,0)+j)}, {v(self.dgrp(1,q1,0)+j)}')
                if HB and q1:
                    A(f's_or_b32 {s(S_T0)}, s2, {s(S_W)}\ns_cselect_b64 exec, 0, 1\ns_mov_b32 {s(S_T0)}, {FE}')
                    A(f'buffer_store_dwordx2 {v(V_TAG,2)}, off, {s(SRD_WS,4)}, {s(S_T0)} sc1')
                A('s_mov_b64 exec, -1' if HB else 's_mov_b64 exec, -1\ns_nop 3')
                A.label(LS)
                A.unsnap()
            return f
        def conv(n, rt):
            g = grp(n, rt)
            ln = []
            if n == 0: ln.append(f'v_cndmask_b32 {v(g)}, {v(g)}, {v(V_FIX+rt)}, {s(S_FIX,2)}')
            if SP:
                g0 = grp(n, rt & 1); d = g0 + 2 * (rt & 2); r0 = rt & 1
                ln += [f'v_cvt_pk_bf16_f32 {v(d+j)}, {v(g+2*j)}, {v(g+2*j+1)}' for j in range(4)]
                ln.append(f'ds_write_b128 {v(10+(rt>>1))}, {v(d,4)} offset:{n*4096+(rt&1)*1024}')
                if n == 2 and rt & 2: ln += [f'v_mov_b64 {v(SM[r0],2)}, 0', f'v_mov_b64 {v(SM[r0]+2,2)}, 0']
                def sq(r, gg): mq.append(lambda: A(f'v_mfma_f32_16x16x32_bf16 {v(SQ[r],4)}, {v(gg,4)}, {v(gg,4)}, {"0" if n == 0 else v(SQ[r],4)}'))
                def sm2(gg):
                    A(f'v_smfmac_f32_16x16x64_bf16 {v(SM[r0],4)}, {v(V_ONES,4)}, {v(gg,8)}, {v(V_IDX)}')
                    slots.extend([gg, gg + 4])
                def rel2():
                    if self.tick >= o.get('wc0', 0): self.nxt += o.get('wc', 33) / 10
                    if n and not rt & 2: sq(rt, d)
                    if not rt & 2: return
                    if n & 1: slots.extend([g, g + 4])
                    if n == 0: sq(r0, g0)
                    sq(rt, d)
                    if n == 2: mq.append(lambda: sm2(grp(0, r0)))
                    if n: mq.append(lambda: sm2(g0))
                return ln + [rel2]
            ln += [f'v_cvt_pk_bf16_f32 {v(g+j)}, {v(g+2*j)}, {v(g+2*j+1)}' for j in range(4)]
            if o.get('w64'):
                ln += [f'ds_write_b64 {v(10+(rt>>1))}, {v(g+2*j,2)} offset:{n*4096+(rt&1)*1024+8*j}' for j in range(2)]
            else: ln.append(f'ds_write_b128 {v(10+(rt>>1))}, {v(g,4)} offset:{n*4096+(rt&1)*1024}')
            def sm(gg, first):
                A(f'v_mfma_f32_16x16x32_bf16 {v(SM[rt],4)}, {v(V_ONES,4)}, {v(gg,4)}, {"0" if first else v(SM[rt],4)}')
                slots.append(gg)
            def rel():
                if self.tick >= o.get('wc0', 0): self.nxt += o.get('wc', 33) / 10
                if n & 1: slots.append(g + 4)
                mq.append(lambda: A(f'v_mfma_f32_16x16x32_bf16 {v(SQ[rt],4)}, {v(g,4)}, {v(g,4)}, {"0" if n == 0 else v(SQ[rt],4)}'))
                if n == 2: mq.append(lambda: sm(grp(0, rt), True))
                if n: mq.append(lambda: sm(g, False))
            ln.append(rel)
            return ln
        HB = o.get('hb', 0)
        xcc = L(f'''
        v_subrev_u32 v6, {s(S_FAST)}, v6
        v_cmp_ne_u64 vcc, v[6:7], {v(V_TAG,2)}
        s_and_b32 {s(S_T0)}, {s(S_Q)}, 4
        s_lshr_b32 {s(S_FAST)}, vcc_lo, {s(S_T0)} @@ s_and_b32 {s(S_FAST)}, {s(S_FAST)}, 15 @@ s_cselect_b32 {s(S_FAST)}, 0, 1
        ''')
        def wmark(): self.hwm = A.nlg
        def half(q1):
            if HB: return ([swap0(q1)] + conv(q1, 1) + conv(q1, 3) + conv(2 + q1, 1) + conv(2 + q1, 3)
                    + conv(q1, 0) + conv(q1, 2) + conv(2 + q1, 0) + conv(2 + q1, 2) + ([] if q1 else [wmark] + xcc))
            return (conv(q1, 1) + conv(q1, 3) + conv(2 + q1, 1) + conv(2 + q1, 3)
                    + conv(q1, 0) + conv(q1, 2) + [swap0(q1)] + conv(2 + q1, 0) + conv(2 + q1, 2))
        def take(q, kmax):
            k = 0
            while q and k < kmax:
                n0 = len(A.lines); self.emit(q.pop(0)); k += len(A.lines) - n0
            return k
        P2BG = o.get('p2bg', 2)
        vq = []
        if HB: A(f's_getreg_b32 {s(S_FAST)}, hwreg(HW_REG_XCC_ID)\ns_and_b32 {s(S_FAST)}, {s(S_FAST)}, 15')
        n0 = A.wt
        while A.wt - n0 < o.get('shw', 100):
            if t_ok(): t_pop()
            elif cq and cq[0][1] in tt_: self.emit(cq.pop(0)[2]); A.wt += 4
            elif d_ok() and dq[0][0] == 'x': d_pop()
            else: break
        zs = set(); ZSA = o.get('zsa', 0)
        def zsw(k):
            if k in zs or k > 7: return
            zs.add(k); z = ZF + 8 * k
            A.wait(vm=zm[k >> 2, k & 3])
            if k == 0: self.stamp('Z first')
            A(f'v_swap_b32 {v(z+2)}, {v(z+4)}')
            A(f'v_swap_b32 {v(z+3)}, {v(z+5)}')
        for q1 in range(2):
            if q1: dadd(0); vq += half(0)
            for ks in range(4):
                z = ZF + 32 * q1 + 8 * ks
                zsw(4 * q1 + ks)
                n = 0
                for tt in (1, 0):
                    for var in range(2):
                        for et in range(2):
                            acc = self.ygrp(var, q1, tt) + 4 * et
                            A(f'v_mfma_f32_16x16x32_bf16 {v(acc,4)}, {v(z+4*et,4)}, {v(TB+16*ks+8*tt+4*var,4)}, {v(acc,4)}')
                            n += 1; self.tick += 1
                            if n == 8 - ZSA and ks < 3 and 4 * q1 + ks + 1 >= o.get('zs0', 1) and ZSA: zsw(4 * q1 + ks + 1)
                            elif q1 == 0 and ks < 2 and n == 1: zld(1, 2 + ks)
                            elif q1 == 0:
                                if (ks, n) > (1, 1): fill(P2BG, [None])
                            else:
                                fill(o.get('p2v', 3), [vq])
                                if mq and n % 2 == 0: extra(2, [vq])
        self.stamp('Z landed')
        if not HB: dadd(1)
        while vq:
            if mq: extra(2, [vq])
            else: take(vq, 2)
        A.wait(lg=self.hwm if HB else A.nlg)
        A('s_barrier')
        self.stamp('half 0')
        free = [TB + 4 * k for k in range(14)]
        acc = {}
        for t in range(4):
            for rt in range(4 if t < 3 else 2): acc[t, rt] = free.pop(0)
        started = set()
        def mm(t, rt, b, frag):
            c = v(acc[t, rt], 4)
            A(f'v_mfma_f32_16x16x32_bf16 {c}, {a(16*b+4*t,4)}, {v(frag,4)}, {c if (t, rt) in started else "0"}')
            started.add((t, rt))
        fr = {}; fl_ = {}
        NL = o.get('nl', 4); GO = o.get('go')
        LB = list(range(16 - NL, 16))
        RD = [(b, rt) for b in range(16) for rt in range(4)]
        if GO: RD = RD[:64 - 4 * NL] + [(b, rt) for rt in range(4) for b in (LB[::-1] if rt & 1 else LB)]
        hip = [0, 0]
        def hrd(k):
            ops = []
            for b, rt in RD[4 * k:4 * k + 4]:
                q1, ip, var = b >> 3, (b >> 1) & 3, b & 1
                for r in ((0, 1) if 4 * k < 64 - 4 * NL or not GO else (rt >> 1,)):
                    if hip[r] != ip: ops.append(f'v_xor_b32 {v(8+r)}, {(ip^hip[r])<<14}, {v(8+r)}'); hip[r] = ip
                def f(b=b, rt=rt, var=var, q1=q1):
                    fr[b, rt] = slots.pop(0)
                    A(f'ds_read_b128 {v(fr[b,rt],4)}, {v(8+(rt>>1))} offset:{(2*var+q1)*4096+(rt&1)*1024}')
                    fl_[b, rt] = A.nlg
                ops.append(f)
            return ops
        if not HB: vq = half(1)
        while len(slots) < 4: extra(0, [])
        if HB:
            vq += hrd(0); dadd(1); self.flush(vq)
            while mq: extra(2, [None])
            vq += half(1); self.emit(vq.pop(0))
        else: self.flush(hrd(0))
        while mq: extra(2, [None, vq] if o.get('tprio', 1) else [vq])
        if not HB: take(vq, o.get('h1pre', 6))
        if not HB: A(f'''
        s_getreg_b32 {s(S_T0)}, hwreg(HW_REG_XCC_ID)
        s_and_b32 {s(S_T0)}, {s(S_T0)}, 15
        v_subrev_u32 v6, {s(S_T0)}, v6
        v_cmp_ne_u64 vcc, v[6:7], {v(V_TAG,2)}
        s_and_b32 {s(S_T0)}, {s(S_Q)}, {4 if o.get('npl', 3) < 4 else 0}
        s_lshr_b32 {s(S_FAST)}, vcc_lo, {s(S_T0)}
        s_and_b32 {s(S_FAST)}, {s(S_FAST)}, {15 if o.get('npl', 3) < 4 else 255}
        s_cselect_b32 {s(S_FAST)}, 0, 1
        ''')
        if not HB:
            LE = A.newlabel('noe')
            A(f'''
            s_or_b32 {s(S_T0)}, s2, {s(S_W)}
            s_cmp_lg_u32 {s(S_T0)}, 0
            s_cbranch_scc1 {LE}
            ''')
            A.snap()
            A(f's_mov_b32 {s(S_T0)}, {FE}')
            self.setflag(S_T0, ' sc1')
            A.label(LE); A.unsnap()
        st = L(f'''
        s_lshl_b32 {s(S_T0)}, {s(S_ODD)}, 10
        s_lshl3_add_u32 {s(S_T0)}, {s(S_W)}, {s(S_T0)}
        s_add_u32 {s(S_T0)}, {s(S_T0)}, {L_STAT}
        v_lshl_add_u32 v6, {v(V_L15)}, 5, {s(S_T0)}
        v_xor_b32 v7, 1024, v6
        ''')
        SO = dict(SM)
        if SP:
            SO = {rt: SM[rt | 2] + 2 - (rt & 2) for rt in range(4)}
            for r in (1, 0):
                for rt in (r, r + 2): st += [f'v_cndmask_b32 {v(SQ[rt])}, {v(SQ[rt])}, {v(SQ[rt]+1)}, {s(S_XO,2)}',
                   f'v_cndmask_b32 {v(SQ[rt]+2)}, {v(SQ[rt]+2)}, {v(SQ[rt]+3)}, {s(S_XO,2)}',
                   f'v_cndmask_b32 {v(SO[rt]+1)}, {v(SQ[rt])}, {v(SQ[rt]+2)}, {s(S_XO+2,2)}']
                st += [f'v_add_f32 {v(SO[r+2])}, {v(SM[r]+2)}, {v(SM[r]+3)}', f'v_add_f32 {v(SO[r])}, {v(SM[r])}, {v(SM[r]+1)}']
        for rt in range(0 if SP else 4):
            st += [f'v_cndmask_b32 {v(SM[rt]+1)}, {v(SQ[rt])}, {v(SQ[rt]+1)}, {s(S_XO,2)}',
                   f'v_cndmask_b32 {v(SM[rt]+2)}, {v(SQ[rt]+2)}, {v(SQ[rt]+3)}, {s(S_XO,2)}',
                   f'v_cndmask_b32 {v(SM[rt]+1)}, {v(SM[rt]+1)}, {v(SM[rt]+2)}, {s(S_XO+2,2)}']
        st.append(f's_mov_b64 exec, {s(S_M,2)}\n' + '\n'.join(f'ds_write_b64 {v(6+(rt>>1))}, {v(SO[rt],2)} offset:{(rt&1)*512}' for rt in range(4)) + '\ns_mov_b64 exec, -1')
        def mark(): self.stm = A.nlg
        st.append(mark)
        SB0, SB1 = SQ[2], SQ[3]
        BF = [SM[rt] for rt in range(4)]
        RS = SQ[0]
        s2 = L(f'''
        s_lshl_b32 {s(S_T2)}, {s(S_ODD)}, 10
        s_add_u32 {s(S_T2)}, {s(S_T2)}, {L_STAT}
        v_lshlrev_b32 {v(V_FIX)}, 5, {v(V_LANE)}
        v_xor_b32 {v(V_FIX)}, {s(S_T2)}, {v(V_FIX)}
        ds_read_b128 {v(SB0,4)}, {v(V_FIX)}
        ds_read_b128 {v(SB1,4)}, {v(V_FIX)} offset:16
        ''')
        def w_(): A.wait(lg=self.s2m)
        s3 = [w_] + L(f'''
        v_add_f32 {v(SB0)}, {v(SB0)}, {v(SB0+2)}
        v_add_f32 {v(SB0+1)}, {v(SB0+1)}, {v(SB0+3)}
        v_add_f32 {v(SB1)}, {v(SB1)}, {v(SB1+2)}
        v_add_f32 {v(SB1+1)}, {v(SB1+1)}, {v(SB1+3)}
        v_add_f32 {v(SB0)}, {v(SB0)}, {v(SB1)}
        v_add_f32 {v(SB0+1)}, {v(SB0+1)}, {v(SB1+1)}
        v_mul_f32 {v(SB0)}, {f2u(-1/512)}, {v(SB0)}
        v_mul_f32 {v(SB0+1)}, {f2u(1/512)}, {v(SB0+1)}
        v_fma_f32 {v(SB0+1)}, -{v(SB0)}, {v(SB0)}, {v(SB0+1)}
        v_max_f32 {v(SB0+1)}, 0, {v(SB0+1)}
        v_add_f32 {v(SB0+1)}, {f2u(1e-5)}, {v(SB0+1)}
        v_rcp_f32 {v(RS)}, {v(SB0+1)}
        v_sqrt_f32 {v(SB0+1)}, {v(SB0+1)}
        v_mov_b32 {v(RS+2)}, {v(RS)}
        v_cvt_pk_bf16_f32 {v(SB1)}, {v(SB0)}, {v(SB0+1)}
        v_lshlrev_b32 {v(SB0+2)}, 16, {v(SB1)}
        v_and_b32 {v(SB0+3)}, 0xffff0000, {v(SB1)}
        v_sub_f32 {v(SB0+2)}, {v(SB0)}, {v(SB0+2)}
        v_sub_f32 {v(SB0+3)}, {v(SB0+1)}, {v(SB0+3)}
        v_cvt_pk_bf16_f32 {v(SB1+1)}, {v(SB0+2)}, {v(SB0+3)}
        v_and_b32 {v(SB1+2)}, 0xffff, {v(SB1)}
        v_permlane32_swap_b32 {v(RS)}, {v(RS+2)}
        v_mov_b32 {v(RS+1)}, {v(RS)}
        v_mov_b32 {v(RS+3)}, {v(RS+2)}
        v_permlane16_swap_b32 {v(RS)}, {v(RS+1)}
        v_permlane16_swap_b32 {v(RS+2)}, {v(RS+3)}
        ''')
        for rt in range(4):
            s3 += [f'v_cmp_eq_u32 vcc, {rt}, {v(V_G)}', f'v_mov_b32 {v(BF[rt]+3)}, 0'] + [f'v_cndmask_b32 {v(BF[rt]+k)}, 0, {v(SB1+k)}, vcc' for k in range(3)]
        V_BIAS = SQ[1]
        def bld():
            for t in range(3): A(f'buffer_load_ushort {v(V_BIAS+t)}, {v(V_BT)}, {s(SRD_B1,4)}, {s(S_T1)} offen offset:{32*t}')
            A(f'buffer_load_ushort {v(V_BIAS+3)}, {v(V_BT)}, {s(SRD_B1,4)}, {s(S_T0)} offen offset:96')
            self.bm = A.nvm
        bias = L(f'''
        s_mul_i32 {s(S_T0)}, {s(S_Q)}, 448
        s_lshr_b32 {s(S_T1)}, {s(S_W)}, 1
        s_mul_i32 {s(S_T1)}, {s(S_T1)}, 224
        s_add_u32 {s(S_T0)}, {s(S_T0)}, {s(S_T1)}
        s_lshl_b32 {s(S_T1)}, {s(S_ODD)}, 7
        s_add_u32 {s(S_T1)}, {s(S_T1)}, {s(S_T0)}
        v_lshlrev_b32 {v(V_BT)}, 1, {v(V_L15)}
        ''') + [bld]
        csl = [lambda: A.wait(vm=self.bm)]
        for t in range(4):
            c = V_CS + 4 * t
            if SP and not t & 1: csl += [f'v_add_f32 {v(c+6)}, {v(c+2)}, {v(c+3)}', f'v_add_f32 {v(c+2)}, {v(c)}, {v(c+1)}']
            csl += L(f'''
            v_lshlrev_b32 {v(c+3)}, 16, {v(V_BIAS+t)}
            v_cvt_pk_bf16_f32 {v(c)}, {v(c+2)}, {v(c+3)}
            v_lshlrev_b32 {v(c+3)}, 16, {v(c)}
            v_sub_f32 {v(c+2)}, {v(c+2)}, {v(c+3)}
            v_mov_b32 {v(c+1)}, {v(c)}
            v_cvt_pk_bf16_f32 {v(c+2)}, {v(c+2)}, 0
            v_mov_b32 {v(c+3)}, 0
            ''') + [lambda t=t: csd.add(t)]
        csd = set()
        FK = o.get('fk', 22) / 10
        B3 = o.get('b3', 4); B4 = o.get('b4', 99)
        def mark2(): self.s2m = A.nlg
        q2 = []
        nrd = 1
        inv = {b: k for k, b in enumerate(self.w1order)}
        B3D = o.get('b3d', 0); b3d = []
        def bar3():
            A.wait(lg=self.stm)
            A('s_barrier')
            q2.extend(s2 + [mark2] + bias + s3); b3d.append(1)
        for b in range(16 - NL):
            self.blk = b
            if o.get('fine') == 1 and b: self.stamp(f'blk{b} t{self.tick} d{A.nvm}')
            ensure(inv[b])
            if b == B3:
                print('at B3: vq', len(vq), 'mq', len(mq), 'st', len(st), 'tick', self.tick)
                while vq or mq:
                    if mq: extra(2, [vq])
                    else: take(vq, 2)
                self.flush(st)
                if not B3D: bar3()
            hq = []
            while nrd < min(16 if b3d else 8, b + o.get('hpf', 99)) and len(slots) - sum(callable(x) for x in hq) >= 4 and len(hq) < o.get('hmax', 8):
                hq += hrd(nrd); nrd += 1
            if b == B4:
                assert nrd == 16 and not hq, (nrd, len(hq))
                A.wait(lg=A.nlg)
                A('s_barrier')
                self.b4 = True
            for rt in range(4):
                for t in range(4 if rt < 2 else 3):
                    k = A.wait(lg=max(fl_[b, rt], self.w1l[b]))
                    mm(t, rt, b, fr[b, rt]); self.tick += 1
                    if b == B3 and 4 * rt + t + 1 >= B3D and not b3d:
                        bar3()
                        while nrd < 16 and len(slots) - sum(callable(x) for x in hq) >= 4 and len(hq) < o.get('hmax', 8): hq += hrd(nrd); nrd += 1
                    qs = ([hq, None, vq] if o.get('tprio', 1) else [hq, vq, None]) + [[] if mq or (SP and vq) else st, q2, [] if cq or b < o.get('csb', 9) else csl]
                    fill(FK, qs, k * SW)
                    extra(FK, qs)
            self.flush(hq)
            for rt in range(4): slots.append(fr[b, rt])
        self.blk = 16 - NL
        print('middle left: dq', len(dq), 'tq', len(tq), 'cq', len(cq), 'q2', len(q2), 'cs', len(csl), 'tick', self.tick)
        for b in LB: ensure(inv[b])
        while cq: self.emit(cq.pop(0)[2])
        if not GO: self.flush(q2); self.flush(csl)
        self.stamp('mid done')
        if not GO: slots += [SB0, SB1, SQ[1]]; SB0 = None
        V_BIAS = V_CS
        print('free slots', len(slots))
        V_IB, V_FC = 8, 9
        ep = []
        RF = {}; rv = {}; sw = {}; T2 = {}; self.rst = 0; self.nst = 0
        RSP = o.get('rs') is not None; RSF = ('' if o.get('rs') == 'pl' else ' ' + o.get('rs')) if RSP else ' sc1'
        def epi(t, nt, rts=None):
            ln = []
            def st(c, off):
                if off >= 4096: A(f's_add_u32 {s(S_PS)}, {s(S_PQ)}, 4096')
                A(f'buffer_store_dwordx4 {v(c,4)}, {v(V_L16)}, {s(SRD_WS,4)}, {s(S_PS if off >= 4096 else S_PQ)} offen offset:{off&4095}{RSF}')
                self.rst = A.nvm; self.nst += 1
            for rt in rts or (2 * nt, 2 * nt + 1):
                c = acc[t, rt]; d = c if t == 0 else acc[0, rt] + 2 if t == 1 else acc[t, 2 * nt] + 2 * (rt & 1)
                ln += [f'v_mul_f32 {v(c+i)}, {v(c+i)}, |{v(c+i)}|' for i in range(4)]
                ln += [f'v_cvt_pk_bf16_f32 {v(d+i)}, {v(c+2*i)}, {v(c+2*i+1)}' for i in range(2)]
                ln += [f'v_pk_max_i16 {v(d+i)}, {v(d+i)}, 0' for i in range(2)]
                if t == 1:
                    ln.append(lambda rt=rt, c=c: (st(acc[0, rt], rt * 1024), RF.__setitem__((0, rt), ('v', acc[0, rt])), slots.append(c)))
                elif t and rt & 1:
                    ln.append(lambda c=c: (st(acc[t, 2 * nt], 4096 + nt * 1024 if t == 2 else 6144), slots.append(c), t == 3 and not RSP and slots.append(acc[3, 0])))
            return ln
        def reg(x, n=4, off=0): return (a if x[0] == 'a' else v)(x[1] + off, n)
        GLF = {'pl': ''}.get(o.get('glf'), ' ' + o.get('glf', 'sc1'))
        def rload(js):
            for ks in js:
                if ks < 4:
                    A(f's_xor_b32 {s(S_PS)}, {s(S_PQ)}, {ks<<16}')
                    for rt in range(4):
                        RF[ks, rt] = ('a', (224, 240, 0)[KO.index(ks) - min(KO.index(k) for k in (1, 2, 3))] + 4 * rt)
                        A(f'buffer_load_dwordx4 {reg(RF[ks,rt])}, {v(V_L16)}, {s(SRD_WS,4)}, {s(S_PS)} offen offset:{rt*1024}{GLF}')
                        rv[ks, rt] = A.nvm
                    continue
                if ks == 6: A(f's_lshl_b32 {s(S_T0)}, {s(S_ODD)}, 17\ns_xor_b32 {s(S_T0)}, {s(S_T0)}, {s(S_PQ)}')
                for k in range(2):
                    for e in range(2):
                        if ks == 4 and e == 0: RF[ks, 2 * k] = ('v', acc[2, 2 * k]); continue
                        RF[ks, 2 * k + e] = ('v', slots.pop(0))
                        if ks == 6: A(f's_xor_b32 {s(S_PS)}, {s(S_T0)}, {(e<<16)|(k<<14)|4096}')
                        elif ks == 5 or k == 0: A(f's_xor_b32 {s(S_PS)}, {s(S_PQ)}, {((2*(ks-4)+e)<<16)|4096}')
                        A(f'buffer_load_dwordx4 {reg(RF[ks,2*k+e])}, {v(V_L16)}, {s(SRD_WS,4)}, {s(S_PS)} offen offset:{2048 if ks == 6 else k*1024}{GLF}')
                    rv[ks, 2 * k] = rv[ks, 2 * k + 1] = A.nvm
                    sw[ks, k] = True
        def rswap(ks, k):
            if not sw.pop((ks, k), False): return
            A.wait(vm=rv[ks, 2 * k])
            for i in range(2): A(f'v_swap_b32 {reg(RF[ks,2*k],1,2+i)}, {reg(RF[ks,2*k+1],1,i)}')
        A.wait(lg=max(self.w1l.values()) if GO else max(max(fl_.values()), max(self.w1l.values())))
        EPK = o.get('epk', 22) / 10
        ml = []
        for t in [int(ch) for ch in str(o.get('tord', '0123')).zfill(4)]:
            for nt in range(2 if t < 3 else 1):
                ml += [('a', t, rt, b) for b in LB + [16] for rt in (2 * nt, 2 * nt + 1)]
        if GO:
            GO = [[int(ch) for ch in g] for g in str(GO).split('.')]
            ml = [('a', t, rt, b) for rt in range(4) for t in GO[rt] for b in (LB[::-1] if rt & 1 else LB) + [16]]
            if o.get('lo'):
                LO = [(int(x[0]), int(x[1])) for x in o['lo'].split('.')]
                GO = [[t for t, r in LO if r == rt] for rt in range(4)]
                ml = [('a', t, rt, b) for t, rt in LO for b in (LB[::-1] if rt & 1 else LB) + [16]]
            if o.get('cd'): ml.insert(2 * NL, ml.pop(NL))
        N3 = len(ml)
        NM = o.get('nm', 2)
        if o.get('art'): ml += [('b', j, 0, rt) for rt in range(4) for j in range(8)]
        else: ml += [('b', j, 0, rt) for j in range(8) for rt in range(4)]
        for ks in KO[:6-NM]: ml += [('b', j, ks, rt) for rt in range(4) for j in range(4)]
        for j in range(4): ml += [('b', j, ks, rt) for ks in KO[6-NM:] for rt in range(4)]
        for j in range(4, 8): ml += [('b', j, ks, rt) for ks in KO for rt in range(4)]
        if P4O:
            ml = ml[:N3 + 32]
            for mode, h, kl in P4O:
                if mode == 'k': ml += [('b', 4 * h + tj, ks, rt) for ks in kl for rt in range(4) for tj in range(4)]
                elif mode == 't': ml += [('b', 4 * h + tj, ks, rt) for tj in range(4) for ks in kl for rt in range(4)]
                else: ml += [('b', 4 * h + tj, ks, rt) for tj in range(4) for rt in range(4) for ks in kl]
        use = {}; lastb = {}
        for n, m in enumerate(ml):
            if m[0] == 'b': lastb[self.items.index((m[1] >> 2, m[2]))] = n
        pa = {}; due = []; cnt = {}
        def dual(fn):
            LS = A.newlabel('slow'); LJ = A.newlabel('dj')
            A(f's_cmp_eq_u32 {s(S_FAST)}, 0\ns_cbranch_scc1 {LS}')
            A.snap(); fn(''); A(f's_branch {LJ}'); A.label(LS); A.unsnap()
            fn(' sc1'); A.label(LJ)
        def pack(j):
            return [f'v_cvt_pk_bf16_f32 {v(pa[j,rt&2]+2*(rt&1)+i)}, {v(pa[j,rt]+2*i)}, {v(pa[j,rt]+2*i+1)}' for rt in range(4) for i in range(2)]
        self.nred = 0; self.gb = False
        def red(j):
            x = 3 - (j & 3)
            def wr():
                assert self.gb and (j < 4 or 0 in rdm)
                for k in range(2): A(f'ds_write_b128 {v(V_IB)}, {v(pa[j,2*k],4)} offset:{(x-1)*2048+(k^(x&1))*1024}')
                A(f'v_xor_b32 {v(V_IB)}, {(x^(x-1))<<14}, {v(V_IB)}')
                slots.extend(pa[j, rt] for rt in (1, 3, 0, 2)); self.nred += 1
            return pack(j) + [wr]
        rdm = {}
        AR = (32, 56)
        self.sps = False; SPS = (156, 10, 148)
        def spsel(js):
            assert not dq and not cq and not mq
            self.sps = True; p, q, z = SPS
            A(f'''
            v_mov_b32 {v(p+1)}, 0x3f80
            s_mov_b32 vcc_lo, 0x0f00000f
            s_mov_b32 vcc_hi, 0x0f00000f
            v_cndmask_b32 {v(p+1)}, {v(p+1)}, 1.0, {s(S_XO,2)}
            v_mov_b32 {v(V_IDX)}, 0x44444444
            v_mov_b32 {v(q)}, 0x4444eeee
            v_cndmask_b32 {v(p)}, 0, {v(p+1)}, vcc
            v_cndmask_b32 {v(q+1)}, 0, {v(p+1)}, vcc
            s_mov_b32 vcc_lo, 0xf00000f0
            s_mov_b32 vcc_hi, 0xf00000f0
            v_cndmask_b32 {v(V_IDX)}, {v(V_IDX)}, {v(q)}, {s(S_XO+2,2)}
            v_cndmask_b32 {v(p+2)}, 0, {v(p+1)}, vcc
            v_cndmask_b32 {v(q+3)}, 0, {v(p+1)}, vcc
            s_mov_b32 vcc_lo, 0x33333333
            s_mov_b32 vcc_hi, 0xcccccccc
            v_mov_b32 {v(p+1)}, 0
            v_mov_b32 {v(p+3)}, 0
            v_mov_b32 {v(q)}, 0
            v_mov_b32 {v(q+2)}, 0
            v_cndmask_b32 {v(z+1)}, 0, {v(p)}, vcc
            v_cndmask_b32 {v(z+3)}, 0, {v(p+2)}, vcc
            v_mov_b32 {v(z)}, 0
            v_mov_b32 {v(z+2)}, 0
            ''')
        def rbar(js):
            hf = js[0]
            while self.nred < 3 * (hf + 1): self.emit(ep.pop(0))
            if hf == 0:
                for k in range(14): ensure(16 + k)
            assert all(lastb[b] < self.n for b in (2 + hf, 3 + hf))
            A.wait(lg=A.nlg); A('s_barrier')
            for k in ((4, 5, 0, 2, 1, 3) if self.sps else range(6)):
                A(f'ds_read_b128 {a(AR[hf]+4*((0, 2, 1, 3, 4, 5)[k] if self.sps else k),4)}, {v(V_IB)} offset:{k*1024}'); rdm[hf, k] = A.nlg
            rdm[hf] = True
            if hf == 0: A(f'v_xor_b32 {v(V_IB)}, {65536|(3<<14)}, {v(V_IB)}')
        def radd(js):
            hf = js[0]; j = 4 * hf + 3
            assert hf or all(cnt[j, rt] == 7 for rt in range(4))
            for x in ((2, 1) if self.sps else range(3)):
                for rt in range(4):
                    k = A.wait(lg=rdm[hf, 2 * x + (rt >> 1)])
                    if self.sps and x == 1: A(f'v_smfmac_f32_16x16x64_bf16 {v(pa[j,rt],4)}, {v(SPS[rt&1],4)}, {a(AR[hf]+8*(rt>>1),8)}, {v(V_IDX)}'); k += 1 / SW
                    else: A(f'v_mfma_f32_16x16x32_bf16 {v(pa[j,rt],4)}, {v(V_SEL+2-2*(rt&1),4)}, {a(AR[hf]+8*x+4*(rt>>1),4)}, {v(pa[j,rt],4)}')
                    self.tick += 1
                    fill(EPK, [ep, None, misc if self.n >= MB else []], k * SW)
            if hf == 0: due.append((self.n + 1, send()))
        self.sent = None
        def send():
            c = [pa[3, rt] for rt in range(4)]
            q = []
            for k in range(3):
                q += [f'v_cvt_pk_bf16_f32 {v(c[k]+i)}, {v(c[k]+2*i)}, {v(c[k]+2*i+1)}' for i in range(2)]
                q.append(f'v_cvt_pk_bf16_f32 {v(c[k]+2)}, {v(c[3]+2*k)}, {v(c[3]+2*k+1)}' if k < 2 else f'v_mov_b32 {v(c[k]+2)}, {s(S_LT)}')
                q.append(f'v_mov_b32 {v(c[k]+3)}, {s(S_LT)}')
            def st():
                A(f's_xor_b32 {s(S_PS)}, {s(S_PQ)}, {(4<<16)|8192}')
                for k in range(3): A(f'buffer_store_dwordx4 {v(c[k],4)}, {v(V_L16)}, {s(SRD_WS,4)}, {s(S_PS)} offen offset:{k*1024} sc1')
                self.sent = A.nvm
                slots.extend(pa[3, rt] for rt in (3, 0, 1, 2))
                if o.get('fine') == 2: self.stamp(f'sent n{self.n-N3}')
            return q + [st]
        def flag(js):
            while self.nst < 7: self.emit(ep.pop(0))
            A(f's_and_b32 {s(S_T0)}, {s(S_Q)}, 3\ns_lshl1_add_u32 {s(S_T0)}, {s(S_T0)}, {s(S_ODD)}\ns_lshl3_add_u32 {s(S_T0)}, {s(S_T0)}, {s(S_FLA)}')
            A.wait(vm=self.rst)
            A('s_mov_b64 exec, 1')
            def fl(sc):
                if sc and RSP:
                    assert self.n <= N3 + 32 and (4, 0) not in RF
                    A.snap(); on = A.on; A.on = False
                    A('s_mov_b64 exec, -1')
                    for rt in range(4): A(f'buffer_store_dwordx4 {v(acc[0,rt],4)}, {v(V_L16)}, {s(SRD_WS,4)}, {s(S_PQ)} offen offset:{rt*1024} sc1')
                    hi23()
                    A('s_waitcnt vmcnt(0)\ns_mov_b64 exec, 1')
                    A.on = on; A.unsnap()
                A(f'buffer_store_dwordx2 {v(V_TAG,2)}, off, {s(SRD_WS,4)}, {s(S_T0)}{sc}')
            dual(fl)
            A('s_mov_b64 exec, -1')
        def hi23():
            A(f's_add_u32 {s(S_PS)}, {s(S_PQ)}, 4096')
            for k, c in enumerate((acc[2, 0], acc[2, 2], acc[3, 0])): A(f'buffer_store_dwordx4 {v(c,4)}, {v(V_L16)}, {s(SRD_WS,4)}, {s(S_PS)} offen offset:{k*1024} sc1')
        def clean(js):
            if 0 in js:
                assert sw.get((4, 0), True) and sw.get((4, 1), True) and ((4, 0) not in RF or ((4, 0) in sw and (4, 1) in sw))
                hi23(); slots.append(acc[3, 0])
            if 1 in js:
                A(f's_xor_b32 {s(S_PS)}, {s(S_PQ)}, {1<<16}')
                A.wait(vm=rv[1, 3])
                for rt in range(4): A(f'buffer_store_dwordx4 {reg(RF[1,rt])}, {v(V_L16)}, {s(SRD_WS,4)}, {s(S_PS)} offen offset:{rt*1024} sc1')
            if 2 in js: slots.append(acc[3, 0])
            if 3 in js:
                LS = A.newlabel('nwb')
                A(f's_lshr_b32 {s(S_T0)}, s2, 3\ns_lshl2_add_u32 {s(S_T0)}, {s(S_T0)}, {s(S_W)}\ns_cmp_lg_u32 {s(S_T0)}, {o.get("wbw", 0)}\ns_cbranch_scc1 {LS}')
                LJ = A.newlabel('wj')
                A.snap(); A('buffer_wbl2 sc1'); A(f's_branch {LJ}'); A.label(LS); A.unsnap()
                A(f'buffer_load_dword {v(V_PL)}, off, {s(SRD_WS,4)}, {s(S_FLA)}'); A.label(LJ)
        pm = {}; V_PL = V_ONES
        def pissue(js):
            A(f'buffer_load_dwordx2 {v(V_PL,2)}, {v(V_FC)}, {s(SRD_WS,4)}, {s(S_FLA)} offen sc1')
            pm[js] = A.nvm
        def pcheck(js):
            if js not in pm: pissue(js)
            Lp = A.newlabel('poll'); D = A.newlabel('polld')
            A.wait(vm=pm[js])
            A.on = False
            A(f'v_cmp_ne_u64 vcc, {v(V_PL,2)}, {v(V_TAG,2)}\ns_mov_b32 {s(S_CNT)}, 0x20000\ns_cbranch_vccz {D}')
            A.snap()
            A.label(Lp)
            A(f'''
            buffer_load_dwordx2 {v(V_PL,2)}, {v(V_FC)}, {s(SRD_WS,4)}, {s(S_FLA)} offen sc1
            s_sub_u32 {s(S_CNT)}, {s(S_CNT)}, 1
            s_cbranch_scc1 {D}
            s_waitcnt vmcnt(0)
            v_cmp_ne_u64 vcc, {v(V_PL,2)}, {v(V_TAG,2)}
            s_cbranch_vccnz {Lp}
            ''')
            A.label(D)
            A.unsnap()
            A.on = True
        PD = []
        PR = []; self.oolc = []
        def pload(js=None):
            if js and js[0]:
                PR.append([slots.pop(0) for _ in range(3)])
                for k in range(3): A(f'buffer_load_dwordx4 {v(PR[-1][k],4)}, {v(V_L16)}, {s(SRD_WS,4)}, {s(S_PS)} offen offset:{k*1024} sc1')
                return
            if not PD and self.sps:
                g = [x for x in slots if x + 4 in slots][0]; slots.remove(g); slots.remove(g + 4); PD.extend([g, g + 4, slots.pop(0)])
            if not PD: PD.extend(slots.pop(0) for _ in range(3))
            A(f's_add_u32 {s(S_PS)}, {s(S_PQ)}, 8192')
            for k in range(3): A(f'buffer_load_dwordx4 {v(PD[k],4)}, {v(V_L16)}, {s(SRD_WS,4)}, {s(S_PS)} offen offset:{k*1024} sc1')
            self.plm = A.nvm
        def kcheck(js):
            assert len(misc) in (0, self.nmisc)
            Lc = A.newlabel('chk'); D = A.newlabel('got')
            t = V_PL
            if PR:
                def ck(R): return [f'v_xor_b32 {v(t)}, {s(S_LT)}, {v(R[0]+3)}'] + [f'v_bitop3_b32 {v(t)}, {v(t)}, {v(R[k]+3)}, {s(S_LT)} bitop3:0xf6' for k in (1, 2)] + [f'v_cmp_ne_u32 vcc, 0, {v(t)}']
                A.wait(vm=self.plm); assert A.nvm - self.plm == 3 * len(PR)
                A.on = False
                for x in ck(PD): A(x)
                PR.append([slots.pop(0) for _ in range(3)]); n = len(PR)
                q = ['L_rt:', f's_movk_i32 {s(S_CNT)}, 0x2000', 'L_rt0:']
                for i in range(n):
                    q += [f'buffer_load_dwordx4 {v(PR[i-1][k],4)}, {v(V_L16)}, {s(SRD_WS,4)}, {s(S_PS)} offen offset:{k*1024} sc1' for k in range(3)]
                    q += [f's_waitcnt vmcnt({3*(n-1)})'] + ck(PR[i]) + [f's_cbranch_vccz L_rc{i}']
                q += [f's_sub_u32 {s(S_CNT)}, {s(S_CNT)}, 1', 's_cbranch_scc0 L_rt0']
                for i in range(n):
                    q += [f'L_rc{i}:'] + [f'v_mov_b64 {v(PD[k]+j,2)}, {v(PR[i][k]+j,2)}' for k in range(3) for j in (0, 2)] + ['s_nop 1', f's_branch {D}']
                q = [x if x.endswith(':') else '    ' + x for x in q]
                if o.get('rin'):
                    A(f's_cbranch_vccz {D}')
                    for x in q[:-1]: A.raw(x)
                else:
                    A('s_cbranch_vccnz L_rt'); self.oolc = q
                A.label(D)
                A.on = True
                return
            A(f's_movk_i32 {s(S_CNT)}, 0x4000')
            A.wait(vm=self.plm)
            A.on = False
            A.label(Lc)
            A(f'v_xor_b32 {v(t)}, {s(S_LT)}, {v(PD[0]+3)}')
            for k in (1, 2): A(f'v_bitop3_b32 {v(t)}, {v(t)}, {v(PD[k]+3)}, {s(S_LT)} bitop3:0xf6')
            A(f'v_cmp_ne_u32 vcc, 0, {v(t)}\ns_cbranch_vccz {D}')
            A.snap()
            pload()
            A(f's_sub_u32 {s(S_CNT)}, {s(S_CNT)}, 1\ns_waitcnt vmcnt(0)\ns_cbranch_scc0 {Lc}')
            A.label(D)
            A.unsnap()
            A.on = True
        Q3 = []
        def selq(js=None):
            if Q3 or self.sps: return
            Q3.extend([slots.pop(0), slots.pop(0)])
            for k in range(2):
                for i in range(4): A(f'v_mov_b32 {v(Q3[k]+i)}, {v(V_SEL+2+k) if i == 2 else 0}')
        def zadd(js):
            selq()
            if self.sps:
                for rt in range(3): A(f'v_mfma_f32_16x16x32_bf16 {v(pa[7,rt],4)}, {v(V_SEL+2,4)}, {v(PD[rt],4)}, {v(pa[7,rt],4)}')
                return A(f'v_smfmac_f32_16x16x64_bf16 {v(pa[7,3],4)}, {v(SPS[2],4)}, {v(PD[0],8)}, {v(V_IDX)} abid:1')
            for rt, sel, k in ((3, Q3[0], 0), (0, V_SEL + 2, 0), (1, V_SEL + 2, 1), (2, V_SEL + 2, 2), (3, Q3[1], 1)):
                A(f'v_mfma_f32_16x16x32_bf16 {v(pa[7,rt],4)}, {v(sel,4)}, {v(PD[k],4)}, {v(pa[7,rt],4)}')
        def num(js): return int(''.join(map(str, js)))
        def dforce(js):
            k = 16 + num(js)
            while k not in dt:
                if d_ok(True): d_pop()
                else:
                    assert t_ok(True); t_pop()
        def gbar(js): A('s_barrier'); self.gb = True
        def pwait(js):
            while self.sent is None: self.emit(ep.pop(0))
            A.wait(vm=self.sent)
        V_OO = V_CS + 4
        bs = {}
        def balloc():
            for rt in range(4): bs[rt] = slots.pop(0)
            q = [f'ds_read_u16_d16_hi {v(bs[rt]+r)}, {v(V_BIAS+r)} offset:{rt*1024}' for rt in range(2) for r in range(4)]
            q += [f'v_xor_b32 {v(V_BIAS+r)}, 2048, {v(V_BIAS+r)}' for r in range(4)]
            q += [f'ds_read_u16_d16_hi {v(bs[2+rt]+r)}, {v(V_BIAS+r)} offset:{rt*1024}' for rt in range(2) for r in range(4)]
            def mk(): self.bl = A.nlg
            q += [mk, lambda: A.wait(vm=self.b2m)]
            q += [f'v_lshlrev_b32 {v(V_FIX)}, 16, {v(V_BT)}', f'v_and_b32 {v(V_FIX+1)}, 0xffff0000, {v(V_BT)}',
                  f'v_lshlrev_b32 {v(V_FIX+2)}, 16, {v(V_TD)}', f'v_and_b32 {v(V_FIX+3)}, 0xffff0000, {v(V_TD)}', lambda: A.wait(lg=self.bl)]
            if o.get('bz', 1): q += [f'v_and_b32 {v(bs[rt]+r)}, 0xffff0000, {v(bs[rt]+r)}' for rt in range(4) for r in range(4)]
            q += [f'v_add_f32 {v(bs[rt]+r)}, {v(bs[rt]+r)}, {v(V_FIX+r)}' for rt in range(4) for r in range(4)]
            misc.extend(q)
        def spread(d, e):
            return L(f'''
            v_and_b32 v7, 0xc0, {v(e)}
            v_lshl_add_u32 {v(d)}, v7, 8, {v(V_BIAS+3)}
            v_and_b32 v7, 0x20, {v(e)}
            v_lshl_add_u32 {v(d)}, v7, 7, {v(d)}
            v_and_b32 v7, 0x18, {v(e)}
            v_lshl_add_u32 {v(d)}, v7, 5, {v(d)}
            v_and_b32 v7, 7, {v(e)}
            v_lshl_add_u32 {v(d)}, v7, 1, {v(d)}
            ''')
        def b2ld():
            A(f'buffer_load_dwordx2 {v(V_BT,2)}, {v(V_FIX)}, {s(SRD_B2,4)}, 0 offen'); self.b2m = A.nvm
        mis0 = L(f'''
        s_lshl2_add_u32 {s(S_T1)}, {s(S_Q)}, {s(S_W)}
        s_lshl_b32 {s(S_T1)}, {s(S_T1)}, 4
        v_lshl_add_u32 v6, {v(V_G)}, 2, {s(S_T1)}
        v_lshlrev_b32 {v(V_FIX)}, 1, v6
        ''') + [b2ld] + L(f'''
        v_and_b32 {v(V_FC)}, 7, {v(V_LANE)}
        v_lshlrev_b32 {v(V_FC)}, 3, {v(V_FC)}
        s_andn2_b32 {s(S_T2)}, 4, {s(S_Q)}
        s_xor_b32 {s(S_T3)}, {s(S_W)}, 3
        s_lshl3_add_u32 {s(S_T2)}, {s(S_T3)}, {s(S_T2)}
        s_lshl_b32 {s(S_T2)}, {s(S_T2)}, 11
        v_add_u32 {v(V_IB)}, {s(S_T2)}, {v(V_L16)}
        s_and_b32 {s(S_T3)}, {s(S_Q)}, 4
        s_add_u32 {s(S_T2)}, {s(S_T3)}, {s(S_ODD)}
        s_lshl_b32 {s(S_T2)}, {s(S_T2)}, 11
        v_lshl_add_u32 {v(V_BIAS+3)}, {v(V_L15)}, 4, {s(S_T2)}
        s_cmp_ge_u32 {s(S_Q)}, 4 @@ s_cselect_b64 vcc, -1, 0
        v_sub_u32 {v(V_FIX+1)}, 512, v6
        v_cndmask_b32 {v(V_FIX+1)}, v6, {v(V_FIX+1)}, vcc
        v_subrev_u32 {v(V_FIX+2)}, {s(S_T3)}, {v(V_FIX+1)}
        ''') + spread(V_BIAS, V_FIX + 1) + spread(V_BIAS + 2, V_FIX + 2) + L(f'''
        s_add_u32 {s(S_T2)}, {s(S_T3)}, 2
        v_add_u32 {v(V_BIAS+1)}, {s(S_T2)}, {v(V_BIAS+2)}
        v_xor_b32 {v(V_BIAS+3)}, 4, {v(V_BIAS+1)}
        v_add_u32 {v(V_BIAS+2)}, 4, {v(V_BIAS+2)}
        v_lshrrev_b32 v6, 5, {v(V_LANE)}
        v_lshlrev_b32 v6, 4, v6
        s_lshl_b32 {s(S_T1)}, {s(S_T1)}, 1
        v_add_u32 v6, {s(S_T1)}, v6
        v_sub_u32 v7, 2048, {v(V_TT)}
        v_cmp_eq_u32 vcc, 0, {v(V_TT)}
        v_mov_b32 {v(V_OO)}, 1024
        v_cndmask_b32 v7, v7, {v(V_OO)}, vcc
        s_cmp_eq_u32 {s(S_ODD)}, 1 @@ s_cselect_b64 vcc, -1, 0
        v_cndmask_b32 {v(V_OO)}, {v(V_TT)}, v7, vcc
        v_cndmask_b32 {v(V_OO+1)}, v7, {v(V_TT)}, vcc
        v_lshl_add_u32 {v(V_OO)}, {v(V_OO)}, 10, v6
        v_lshl_add_u32 {v(V_OO+1)}, {v(V_OO+1)}, 10, v6
        ''')
        misc = [balloc]
        ev = {}
        tail = []
        EV = {'f': flag, 'i': pissue, 'c': pcheck, 'l': rload, 'd': dforce, 't': lambda js: ensure(16 + num(js)), 'b': gbar,
              'm': lambda js: self.flush(misc), 'e': lambda js: (self.flush(ep), self.flush(m0)), 'q': selq, 's': spsel, 'r': rbar, 'a': radd, 'v': pload, 'k': kcheck, 'z': zadd, 'w': pwait, 'x': clean, 'y': lambda js: setattr(self, 'lat', num(js)), 'p': lambda js: print('at', self.n - N3, 'dq', len(dq), 'tq', len(tq), 'ep', len(ep), 'nst', self.nst, 'slots', len(slots), 'nrd', nrd), 'h': lambda js: setattr(self, 'hold', bool(js[0]))}
        for e in o.get('ev', 'e0@32.F0@32.b0@32.C0@32.L123456@32.r0@134.a0@142.q0@190.v0@215.R1.a1.K0.z0').split('.'):
            js = tuple(int(ch) for ch in e.split('@')[0][1:])
            fn = EV[e[0].lower()]
            if '@' in e: ev.setdefault(N3 + int(e.split('@')[1]), []).append((e, fn, js))
            else: tail.append((e, fn, js))
        MB = N3 + o.get('misc0', 150); self.nmisc = len(misc)
        m0 = []; hq = []
        it = {x: k for k, x in enumerate(self.items)}
        for n, m in enumerate(ml):
            self.n = n
            if n == N3:
                self.stamp('p3 mfma done')
                print('last left: ep', len(ep), 'dq', len(dq), 'tq', len(tq), 'tick', self.tick)
                self.blk = 16
                if not GO: slots.extend(fr[b, rt] for b in LB for rt in range(4)); slots.extend(BF)
                slots.extend([V_CS + 8, V_CS + 12])
            if n == N3 + 2: m0 = mis0
            for e, fn, js in ev.get(n, []):
                fn(js)
                if e[0].isupper(): self.stamp(e.split('@')[0] + f' d{len(dq)} t{len(tq)}')
            k = 0
            if m[0] == 'a':
                _, t, rt, b = m
                if GO:
                    while nrd < 16 and RD[4 * nrd][1] <= rt + 1 and len(slots) - sum(callable(x) for x in hq) >= 4: hq += hrd(nrd); nrd += 1
                    if b < 16:
                        while (b, rt) not in fr: self.emit(hq.pop(0))
                        k = A.wait(lg=fl_[b, rt])
                    elif t not in csd:
                        print('correction', t, 'q2', len(q2), 'cs', len(csl))
                        self.flush(q2)
                        while t not in csd: self.emit(csl.pop(0))
                    if t == GO[rt][-1]: slots.append(fr[b, rt] if b < 16 else BF[rt])
                    if b == 16: due.append((n + 2, epi(t, rt >> 1, [rt])))
                if b < 16: mm(t, rt, b, fr[b, rt])
                else: A(f'v_mfma_f32_16x16x32_bf16 {v(acc[t,rt],4)}, {v(V_CS+4*t,4)}, {v(BF[rt],4)}, {v(acc[t,rt],4)}')
                if b == 16 and rt & 1 and not GO: due.append((n + 2, epi(t, rt >> 1)))
            else:
                _, j, ks, rt = m
                b = it[j >> 2, ks]
                ensure(16 + b)
                while (ks, rt) not in RF: self.emit(ep.pop(0))
                rswap(ks, rt >> 1)
                for m2 in ml[n + 1:n + 1 + o.get('swa', 0)]: rswap(m2[2], m2[3] >> 1)
                k = A.wait(vm=rv.get((ks, rt)), lg=self.trl[16 + b])
                if ks == 0: pa[j, rt] = slots.pop(0)
                c = v(pa[j, rt], 4)
                A(f'v_mfma_f32_16x16x32_bf16 {c}, {a(16*b+4*(j&3),4)}, {reg(RF[ks,rt])}, {c if ks else "0"}')
                cnt[j, rt] = cnt.get((j, rt), 0) + 1
                use[ks, rt] = use.get((ks, rt), 0) + 1
                if use[ks, rt] == 8 and RF[ks, rt][0] == 'v': slots.append(RF[ks, rt][1])
                if rt == 3 and cnt[j, rt] == 7 and j & 3 < 3: due.append((n + 2, red(j)))
                if o.get('fine') == 2 and n - N3 in (32, 48, 64, 80, 96, 127, 176): self.stamp(f'n{n-N3} d{len(dq)} t{len(tq)}')
            self.tick += 1
            while due and due[0][0] <= n: ep += due.pop(0)[1]
            fill(EPK if n >= N3 else o.get('epk3', 22) / 10, [q2, ep, csl, hq, None, m0, misc if n >= MB else []], k * SW)
            if SB0 is not None and not q2 and not csl: slots.extend([SB0, SB1, SQ[1]]); SB0 = None
        print('dt', {k: x for k, x in dt.items() if x > -999}); print('tt', {k: x for k, x in tt_.items() if x > -999})
        print('end left: ep', len(ep), 'misc', len(misc), 'dq', len(dq), 'tq', len(tq), 'slots', len(slots))
        self.flush(ep)
        if not any(e[0] in 'mM' for e, _, _ in tail): self.flush(misc)
        self.stamp('p4 mfma done')
        for e, fn, js in tail:
            fn(js)
            if e[0].isupper(): self.stamp(e)
        if o.get('tl2'):
            fm = [f'v_pk_fma_f32 {v(pa[7,rt]+k,2)}, {v(pa[7,rt]+k,2)}, {v(RS+(rt&2),2)}, {v(bs[rt]+k,2)} op_sel:[0,{rt&1},0] op_sel_hi:[1,{rt&1},1]' for rt in range(4) for k in (0, 2)]
            pk = pack(7)
            pl = [f'v_permlane16_swap_b32 {v(pa[7,2*k]+i)}, {v(pa[7,2*k]+2+i)}' for k in range(2) for i in range(2)]
            so = [f'buffer_store_dwordx4 {v(pa[7,2*k],4)}, {v(V_OO+k)}, {s(SRD_OUT,4)}, 0 offen{self.outf}' for k in range(2)]
            if o.get('m2'):
                f0 = [f'v_fma_f32 {v(pa[7,0]+k)}, {v(pa[7,0]+k)}, {v(RS)}, {v(bs[0]+k)}' for k in range(4)]
                for x in f0 + pk[:2] + fm[2:4] + pk[2:4] + fm[4:6] + pl[:2] + pk[4:6] + fm[6:] + pk[6:] + [so[0]] + pl[2:] + [so[1]]: A(x)
                return
            for x in fm[:4] + pk[:4] + fm[4:6] + pl[:2] + pk[4:6] + fm[6:] + pk[6:] + [so[0]] + pl[2:] + [so[1]]: A(x)
            return
        for rt in range(4):
            for k in range(0, 4, 2):
                A(f'v_pk_fma_f32 {v(pa[7,rt]+k,2)}, {v(pa[7,rt]+k,2)}, {v(RS+(rt&2),2)}, {v(bs[rt]+k,2)} op_sel:[0,{rt&1},0] op_sel_hi:[1,{rt&1},1]')
        self.flush(pack(7))
        for k in range(2):
            c = pa[7, 2 * k]
            A(f'v_permlane16_swap_b32 {v(c)}, {v(c+2)}\nv_permlane16_swap_b32 {v(c+1)}, {v(c+3)}')
            A(f'buffer_store_dwordx4 {v(c,4)}, {v(V_OO+k)}, {s(SRD_OUT,4)}, 0 offen{self.outf}')

    def probe_end(self):
        A = self.A
        a_, b_ = self.opt['probe'].split('-')
        if b_ == 'end':
            A('s_waitcnt vmcnt(0)'); self.stamp('end')
        A(f'''
        s_waitcnt lgkmcnt(0)
        s_sub_u32 {s(S_T0)}, {s(S_TS+4)}, {s(S_TS if a_ == 'start' else S_TS+2)}
        s_lshr_b32 {s(S_T0)}, {s(S_T0)}, {4 if self.opt.get('pcyc') else 0}
        s_min_u32 {s(S_T0)}, {s(S_T0)}, 4000
        s_lshl_b32 {s(S_T0)}, {s(S_T0)}, 2
        s_add_u32 {s(S_T0)}, {s(S_T0)}, 4000
        s_add_u32 {s(S_T0)}, {s(S_T0)}, {s(S_TS)}
        L_pspin:
        s_memrealtime {s(S_TS+6,2)}
        s_waitcnt lgkmcnt(0)
        s_sub_u32 {s(S_T1)}, {s(S_TS+6)}, {s(S_T0)}
        s_cmp_lt_i32 {s(S_T1)}, 0
        s_cbranch_scc1 L_pspin
        ''')

    def dump_ts(self):
        if self.opt.get('probe'): return self.probe_end()
        if not self.diag: return
        A = self.A
        A('s_waitcnt vmcnt(0)')
        self.stamp('end')
        A(f'''
        s_lshl_b32 {s(S_T0)}, s2, 2
        s_add_u32 {s(S_T0)}, {s(S_T0)}, {s(S_W)}
        s_lshl_b32 {s(S_T0)}, {s(S_T0)}, 7
        s_add_u32 {s(S_T0)}, {s(S_T0)}, {WS_TS}
        s_getreg_b32 {s(S_T1)}, hwreg(HW_REG_XCC_ID)
        s_waitcnt lgkmcnt(0)
        s_mov_b64 exec, 1
        ''')
        for i in range(20): A(f'v_mov_b32 {v(16+i)}, {s(S_TS+2*i) if i < len(self.names) else 0}')
        A(f'v_mov_b32 v40, {s(S_T1)}')
        A(f'v_mov_b32 v41, {s(S_FAST)}')
        for i in range(5):
            A(f'buffer_store_dwordx4 {v(16+4*i,4)}, off, {s(SRD_WS,4)}, {s(S_T0)} offset:{16*i}')
        A(f'buffer_store_dwordx2 v[40:41], off, {s(SRD_WS,4)}, {s(S_T0)} offset:80')

    def build(self):
        A = self.A
        self.p1()
        self.window()
        self.p23()
        A.on = False
        self.dump_ts()
        if self.opt.get('sched', 1):
            import sched
            for k in sched.OPT: sched.OPT[k] = self.opt.get(k, sched.OPT[k])
            A = sched.run(A.prog, self.opt.get('win', 20))
            r = A.report
            print('model:', ' | '.join(f'{r[i][0]} {r[i][1]-r[i-1][1]}' for i in range(1, len(r))))
            self.A = A
        hdr = f'''; FNet (2D DFT, factored) + LayerNorms + squared-ReLU FFN, one persistent launch.
; @launch grid=(256,1,1) block=(256,1,1) lds=163840
''' + (f'; names: {",".join(self.names)}\n' if self.diag else '') + f'''.amdgcn_target "amdgcn-amd-amdhsa--gfx950"
.text
.globl {KNAME}
{self.align()}.p2align 8
.type {KNAME},@function
{KNAME}:
'''
        import ool
        body, tail = ool.apply(A.text().rstrip('\n').split('\n'), str(self.opt.get('ool', '')))
        tail += self.oolc
        ftr = 'L_end:\n    s_endpgm\n' + ''.join(l + '\n' for l in tail) + ('L_fin:\n    s_endpgm\n' if tail else 'L_fin = L_end\n') + f'''.section .rodata,"a"
.p2align 6
.amdhsa_kernel {KNAME}
  .amdhsa_next_free_vgpr 512
  .amdhsa_next_free_sgpr 102
  .amdhsa_accum_offset 256
  .amdhsa_group_segment_fixed_size 0
  .amdhsa_kernarg_size 104
  .amdhsa_user_sgpr_count 2
  .amdhsa_user_sgpr_kernarg_segment_ptr 1
  .amdhsa_system_sgpr_workgroup_id_x 1
.end_amdhsa_kernel
'''
        import pads
        return hdr + '\n'.join(pads.apply(hdr, body, ftr, self.opt, S_W)) + '\n' + ftr

if __name__ == '__main__':
    out = sys.argv[1]
    opt = {}
    for x in sys.argv[2:]:
        if '=' in x:
            k, val = x.split('='); opt[k] = int(val) if val.lstrip('-').isdigit() else val.replace('_', ' ')
    HZ[0] = opt.get('hz', 0)
    g = Gen(diag='diag' in sys.argv[2:], opt=opt)
    t = g.build()
    open(out, 'w').write(t)
    print('nops inserted', g.A.nops, 'stamps', len(g.names))
```

```python
import sys
import sched
from asmlib import *

KNAME = 'sequential_preLN__spectral_fnet__dense_activation_squared_relu__prompt_kernel'
WS_Z, WS_HN, WS_R, WS_ST, WS_FL, WS_TS = 0, 2 << 20, 4 << 20, 12 << 20, 13 << 20, 14 << 20
WS_SIZE = 32 << 20
WS_P2 = 32 << 20
S_LT, S_FLA = 100, 101
WS_P = 16 << 20
FP = WS_ST
F1 = WS_FL + 0x10000
F3 = WS_FL + 0x4000
FX = WS_FL + 0x6000
FX2 = WS_FL + 0x8000
FX3 = WS_FL + 0x40000
FE = WS_FL + 0x7000
HPW = 16384
L_S = 65536
SPW = 20480
L_M = L_S + 4 * SPW
L_EXC, L_XE, L_STAT = L_M, L_M + 8192, L_M + 10240
S_W = 3
S_T0, S_T1, S_T2, S_T3 = 4, 5, 6, 7
SRD_X, SRD_W1, SRD_W2, SRD_OUT, SRD_WS, SRD_B1, SRD_B2 = 8, 12, 16, 20, 24, 28, 32
S_CNT, S_FAST = 36, 37
S_F1 = S_CNT
S_C, S_N, S_U, S_Q = 38, 39, 40, 41
S_TB1, S_ODD, S_TW, S_W2S, S_BG, S_HB0 = 42, 43, 44, 45, 46, 47
S_XO = 48
S_RR = 52
S_FIX = 56
S_AM0, S_TCH = 58, 59
S_M = 60
S_TS = 62
S_HB, S_SB = 0, 1
V_LANE, V_L15, V_G, V_L16, V_TAG = 0, 1, 2, 3, 4
V_L128 = 14
ZF, TB, Y = 16, 80, 192
V_ONES = 144
V_W1U, V_W1D = 148, 152
V_W1R = 156
V_CS = 160
V_SEL = 176
AD_ = 224
V_FXV = 180
V_BT, V_TD = 182, 183
V_FIX = 184
V_ZA = 188
V_IDX = 191
V_TT = 190
V_W2A = 148
V_W2R = 152


SW = 0.4
class TAsm(Asm):
    def __init__(self):
        super().__init__(); self.nvm = 0; self.nlg = 0; self.dvm = 0; self.dlg = 0
        self.prog = []; self.on = False; self.wt = 0; self.clk = None
    def label(self, name): super().label(name); self.prog.append(('label', name))
    def raw(self, t): super().raw(t); self.prog.append(('raw', t))
    def snap(self):
        self._snap = (list(self.hist), self.nvm); self.prog.append(('snap',))
    def unsnap(self):
        self.hist, self.nvm = self._snap; self.prog.append(('unsnap',))
    def i(self, text):
        if getattr(self, 'drop', None) and self.drop(text): return
        super().i(text)
        self.prog.append(('i', text, self.on))
        c = self.hist[-1]
        self.wt += 1 if c.sparse else 0 if c.is_mfma else 2 if c.is_vmem else 4 if c.op == 'ds_write_b128' else 2 if c.is_trans else 1 if (c.is_ds or c.is_valu) else SW
        if self.clk: self.clk.do(c, sched.klass(c))
        if c.is_vmem: self.nvm += 1
        if c.is_ds: self.nlg += 1
    def wait(self, vm=None, lg=None):
        p = []
        if vm is not None and vm > self.dvm:
            n = min(63, self.nvm - vm); p.append(f'vmcnt({n})'); self.dvm = self.nvm - n
        if lg is not None and lg > self.dlg:
            n = min(15, self.nlg - lg); p.append(f'lgkmcnt({n})'); self.dlg = self.nlg - n
        if p: self('s_waitcnt ' + ' '.join(p))
        return 1 if p else 0

def L(txt): return [x.strip().replace(' @@ ', '\n') for x in txt.strip().split('\n') if x.strip()]

class Gen:
    def __init__(self, diag=False, opt=None):
        self.A = TAsm(); self.diag = diag; self.nts = 0; self.names = []
        self.opt = opt or {}
        self.fsh = 4
        fl = lambda k, d: (' ' + self.opt[k]).rstrip() if self.opt.get(k, 'pl') != 'pl' else ('' if k in self.opt else d)
        self.ldf = fl('ldf', ' sc1'); self.outf = fl('outf', ' nt'); self.zldf = fl('zldf', ' sc1'); self.plf = fl('plf', ' sc1'); self.fef = fl('fef', ' sc1'); self.fxf = fl('fxf', ' sc1')
        self.skip = set()
        self.nofence = set(str(self.opt.get('nof', '')).split('.')); self.skip = set() if self.opt.get('alls') else {'x first', 'kernarg', 'pre F1'}
        if self.opt.get('alls') == 2: self.skip = {'K0', 'F1 set'}
        if self.opt.get('fine'): self.skip = {'kernarg', 'tables', 'x first', 'gemm1 done', 'Z stores', 'F1 set', 'p2 prepoll', 'pre F1', 'Z first', 'Z landed'}

    def stamp(self, name):
        if self.opt.get('fine') == 3 and not (name.startswith('wd') or name in ('start', 'gemm1 done', 'Z stores', 'pre F1', 'F1 set', 'p2 prepoll', 'p2 polled', 'Z first', 'end')): self.skip.add(name)
        elif self.opt.get('fine') == 3: self.skip.discard(name)
        if name not in self.nofence: self.A.prog.append(('fence', name))
        elif not self.opt.get('allst'): return
        pr = self.opt.get('probe')
        if pr:
            a_, b_ = pr.split('-')
            if name == 'start': self.A(f's_memrealtime {s(S_TS, 2)}')
            ins = 's_memtime' if self.opt.get('pcyc') else 's_memrealtime'
            if name == a_ and name != 'start': self.A(f'{ins} {s(S_TS+2, 2)}')
            if name == b_: self.A(f'{ins} {s(S_TS+4, 2)}')
            return
        if self.opt.get('alls') == 3 and len(self.names) >= 16 and name != 'end': return
        if self.opt.get('only') and name not in ('start', 'end', 'p3 mfma done'): return
        if self.diag and name not in self.skip:
            idx = len(self.names); self.names.append(name)
            assert idx < 19
            self.A(f'{"s_memtime" if self.opt.get("cyc") else "s_memrealtime"} {s(S_TS + 2*idx, 2)}')

    def emit(self, x):
        if callable(x): x()
        else: self.A(x)
    def weave(self, lines, bg, every):
        if isinstance(lines, str): lines = L(lines)
        for n, x in enumerate(lines):
            self.emit(x)
            if bg and (n + 1) % every == 0: self.emit(bg.pop(0))
    def flush(self, bg):
        while bg: self.emit(bg.pop(0))

    def srd(self, base, nbytes):
        self.A(f's_mov_b32 {s(base+2)}, {nbytes}\ns_mov_b32 {s(base+3)}, 0x20000')

    def poll(self, vaddr, nl, vtmp):
        A = self.A
        Lp = A.newlabel('poll'); D = A.newlabel('polld')
        on = A.on; A.on = False
        if nl < 64: A(f's_mov_b64 exec, {(1<<nl)-1}')
        A(f's_mov_b32 {s(S_CNT)}, 0x20000')
        A.label(Lp)
        A(f'buffer_load_dwordx2 {v(vtmp,2)}, {v(vaddr)}, {s(SRD_WS,4)}, 0 offen sc1')
        A(f's_sub_u32 {s(S_CNT)}, {s(S_CNT)}, 1')
        A(f's_cbranch_scc1 {D}')
        A('s_waitcnt vmcnt(0)')
        A(f'v_cmp_ne_u64 vcc, {v(vtmp,2)}, {v(V_TAG,2)}')
        A(f's_cbranch_vccnz {Lp}')
        A.label(D)
        A('s_waitcnt vmcnt(0)')
        A.dvm = A.nvm
        if nl < 64: A('s_mov_b64 exec, -1')
        A.on = on

    def setflag(self, soff, sc):
        A = self.A
        A('s_mov_b64 exec, 1')
        A(f'buffer_store_dwordx2 {v(V_TAG,2)}, off, {s(SRD_WS,4)}, {s(soff)}{sc}')
        A('s_mov_b64 exec, -1')

    def dualflag(self, soff):
        A = self.A
        if self.opt.get('nofast'): return self.setflag(soff, ' sc1')
        LS = A.newlabel('slow'); LJ = A.newlabel('dj')
        A(f's_cmp_eq_u32 {s(S_FAST)}, 0\ns_cbranch_scc1 {LS}')
        A.snap()
        self.setflag(soff, '')
        A(f's_branch {LJ}')
        A.label(LS)
        A.unsnap()
        self.setflag(soff, ' sc1')
        A.label(LJ)

    def touch(self, vd, srd, soff, lanes, fl='', va=V_L128):
        A = self.A
        if lanes < 64: A(f's_mov_b64 exec, {hex((1<<lanes)-1)}' if lanes < 32 else f's_mov_b32 exec_hi, {hex((1<<(lanes-32))-1)}')
        A(f'buffer_load_dword {v(vd)}, {v(va)}, {s(srd,4)}, {s(soff)} offen{fl}')
        if lanes < 64: A('s_mov_b64 exec, -1')
    def w1touch(self, l0, l1):
        A = self.A
        m = ((1 << l1) - 1) & ~((1 << l0) - 1)
        A(f'''
        s_bfe_u32 {s(S_TCH)}, {s(S_TW)}, 0x20004
        s_lshl_b32 {s(S_TCH)}, {s(S_TCH)}, 6
        s_bitcmp1_b32 {s(S_TW)}, 6
        s_cselect_b32 {s(S_BG)}, 257, 32
        s_add_u32 {s(S_TCH)}, {s(S_TCH)}, {s(S_BG)}
        s_and_b32 {s(S_BG)}, {s(S_TW)}, 15
        s_lshl1_add_u32 {s(S_TCH)}, {s(S_BG)}, {s(S_TCH)}
        s_mul_i32 {s(S_TCH)}, {s(S_TCH)}, 3584
        s_mov_b32 exec_lo, {hex(m & 0xffffffff)}
        s_mov_b32 exec_hi, {hex(m >> 32)}
        buffer_load_dword {v(V_TD)}, {v(V_L128)}, {s(SRD_W1,4)}, {s(S_TCH)} offen
        s_mov_b64 exec, -1
        ''')
    def w2touch(self, k):
        A = self.A
        if k is not None:
            LS = A.newlabel('nt'); A(f's_cmp_lg_u32 {s(S_C)}, {k}\ns_cbranch_scc1 {LS}'); A.snap()
        A(f's_mul_i32 {s(S_TCH)}, {s(S_TW)}, {112*128}')
        self.touch(V_TD, SRD_W2, S_TCH, 64)
        A(f's_add_u32 {s(S_TCH)}, {s(S_TCH)}, 8192')
        self.touch(V_TD, SRD_W2, S_TCH, 48)
        if k is not None:
            A.label(LS); A.unsnap()
    def g2touch(self, m, part=None):
        A = self.A
        if m == 1:
            A(f'''
            v_mul_u32_u24 {v(V_BT)}, {3584-2048}, {v(V_G)}
            v_add_u32 {v(V_BT)}, {v(V_BT)}, {v(V_L128)}
            s_lshr_b32 {s(S_TCH)}, {s(S_Q)}, 2
            s_lshl3_add_u32 {s(S_TCH)}, {s(S_TW)}, {s(S_TCH)}
            s_mul_i32 {s(S_TCH)}, {s(S_TCH)}, 1792
            ''')
            if part == 'a': A(f's_and_b32 {s(S_BG)}, s2, 6\ns_lshl_b32 {s(S_BG)}, {s(S_BG)}, 3\ns_lshl_b64 exec, 0x3fff, {s(S_BG)}')
            else: A('s_mov_b32 exec_lo, 0x3fff3fff\ns_mov_b32 exec_hi, 0x3fff3fff')
            A(f'''
            buffer_load_dword {v(V_TD)}, {v(V_BT)}, {s(SRD_W1,4)}, {s(S_TCH)} offen
            s_mov_b64 exec, -1
            ''')
        else:
            A(f"""
            s_lshr_b32 {s(S_BG)}, {s(S_Q)}, 2
            s_lshl_b32 {s(S_BG)}, {s(S_BG)}, 7
            s_add_u32 {s(S_TCH)}, {s(S_TW)}, {s(S_BG)}
            s_mul_i32 {s(S_TCH)}, {s(S_TCH)}, 7168
            """)
            if part == 'a':
                A(f's_and_b32 {s(S_BG)}, s2, 6\ns_mul_i32 {s(S_BG)}, {s(S_BG)}, 896\ns_add_u32 {s(S_TCH)}, {s(S_TCH)}, {s(S_BG)}')
                self.touch(V_TD, SRD_W2, S_TCH, 14)
            else: self.touch(V_TD, SRD_W2, S_TCH, 56)
    def wtouch(self, vd, srd, l0, lanes):
        A = self.A
        A(f's_mul_i32 {s(S_TCH)}, {s(S_TW)}, {lanes*128}\ns_add_u32 {s(S_TCH)}, {s(S_TCH)}, {l0*128*128}')
        self.touch(vd, srd, S_TCH, lanes)

    def w1_setup(self):
        return L(f'''
        s_mul_i32 {s(S_T0)}, {s(S_Q)}, 448
        s_lshr_b32 {s(S_T1)}, {s(S_W)}, 1
        s_mul_i32 {s(S_T1)}, {s(S_T1)}, 224
        s_mul_i32 {s(S_T2)}, {s(S_ODD)}, 96
        s_add_u32 {s(S_T0)}, {s(S_T0)}, {s(S_T1)}
        s_add_u32 {s(S_T0)}, {s(S_T0)}, {s(S_T2)}
        v_lshlrev_b32 v6, 1, {v(V_G)}
        v_xor_b32 v6, v6, {v(V_LANE)}
        v_and_b32 v6, 7, v6
        v_lshl_add_u32 v6, v6, 4, {s(S_T0)}
        v_lshrrev_b32 v7, 5, {v(V_LANE)}
        v_bfe_u32 v8, {v(V_LANE)}, 3, 2
        v_lshl_add_u32 v7, v7, 3, v8
        v_sub_u32 v8, 11, v7
        s_movk_i32 {s(S_T3)}, 3584
        v_mad_u32_u24 {v(V_W1U)}, v7, {s(S_T3)}, v6
        v_mad_u32_u24 {v(V_W1D+3)}, v8, {s(S_T3)}, v6
        v_add_u32 {v(V_W1U+1)}, {16*3584-1024}, {v(V_W1U)}
        v_add_u32 {v(V_W1U+2)}, {4*3584-2048}, {v(V_W1U)}
        v_add_u32 {v(V_W1U+3)}, {20*3584-3072}, {v(V_W1U)}
        v_add_u32 {v(V_W1D)}, {20*3584+3072}, {v(V_W1D+3)}
        v_add_u32 {v(V_W1D+1)}, {4*3584+2048}, {v(V_W1D+3)}
        v_add_u32 {v(V_W1D+2)}, {16*3584+1024}, {v(V_W1D+3)}
        ''') + (L(f'''
        s_lshl_b32 {s(S_T0)}, {s(S_ODD)}, 5
        s_add_u32 {s(S_T2)}, {s(S_T0)}, 32
        v_bfe_u32 {v(V_W1R+1)}, {v(V_LANE)}, 3, 2
        v_and_b32 {v(V_W1R+2)}, 3, {v(V_LANE)}
        v_and_or_b32 {v(V_W1R+3)}, {v(V_LANE)}, 60, {v(V_W1R+1)}
        v_lshl_add_u32 {v(V_W1R+2)}, {v(V_W1R+2)}, 3, {s(S_SB)}
        v_lshl_add_u32 {v(V_W1R+3)}, {v(V_W1R+3)}, 5, {v(V_W1R+2)}
        v_xor_b32 {v(V_W1R)}, {s(S_T0)}, {v(V_W1R+3)}
        v_xor_b32 {v(V_W1R+1)}, {s(S_T2)}, {v(V_W1R+3)}
        v_xor_b32 {v(V_W1R+2)}, 64, {v(V_W1R)}
        v_xor_b32 {v(V_W1R+3)}, 64, {v(V_W1R+1)}
        ''') if self.opt.get('r1c') else L(f'''
        v_lshrrev_b32 v6, 2, {v(V_LANE)}
        v_lshlrev_b32 v6, 7, v6
        v_and_b32 v7, 3, {v(V_LANE)}
        v_lshl_add_u32 v6, v7, 3, v6
        v_add_u32 v6, {s(S_SB)}, v6
        v_bfe_u32 v7, {v(V_LANE)}, 3, 2
        ''') + sum([L(f'''
        s_add_u32 {s(S_T0)}, {s(S_ODD)}, {t}
        s_and_b32 {s(S_T0)}, {s(S_T0)}, 3
        v_xor_b32 v8, {s(S_T0)}, v7
        v_lshl_add_u32 {v(V_W1R+t)}, v8, 5, v6
        ''') for t in range(4)], []))
    def w1_dma(self, b, slot):
        A = self.A; q1, ip, var = b >> 3, (b >> 1) & 3, b & 1; n = 2 * var + q1
        ops = []
        for i in range(4):
            def f(i=i):
                if i == 0:
                    if self.opt.get('m0f'): A(f's_add_u32 m0, {s(S_SB)}, {slot*4096}')
                    if ip or not self.opt.get('m0f'): A(f's_xor_b32 {s(S_BG)}, {s(S_C)}, {ip}')
                    A(f's_mul_i32 {s(S_BG)}, {s(S_BG if ip or not self.opt.get("m0f") else S_C)}, {64*3584}')
                    if var == 0:
                        if q1: A(f's_add_u32 {s(S_BG)}, {s(S_BG)}, {32*3584}')
                    else: A(f's_sub_u32 {s(S_BG)}, {(512-31-32*q1)*3584 - 3072}, {s(S_BG)}')
                    if not self.opt.get('m0f'): A(f's_add_u32 m0, {s(S_SB)}, {slot*4096}')
                if n == 2 and i == 0:
                    A(f'''
                    v_add_u32 {v(V_BT)}, {s(S_BG)}, {v(V_W1D)}
                    s_cmp_eq_u32 {s(S_C)}, {ip}
                    s_cselect_b64 exec, 0xff, 0
                    v_subrev_u32 {v(V_BT)}, {256*3584}, {v(V_BT)}
                    s_mov_b64 exec, -1
                    buffer_load_dwordx4 {v(V_BT)}, {s(SRD_W1,4)}, 0 offen lds
                    ''')
                else:
                    A(f'buffer_load_dwordx4 {v((V_W1D if var else V_W1U)+i)}, {s(SRD_W1,4)}, {s(S_BG)} offen offset:{i*1024} lds')
                if i == 3: self.w1m[b] = A.nvm
            ops.append(f)
        return ops
    def w1_tr(self, b, slot):
        A = self.A; ops = []
        for t in range(4):
            for hh in range(2):
                def f(t=t, hh=hh):
                    A.wait(vm=self.w1m[b])
                    A(f'ds_read_b64_tr_b16 {a(16*b+4*t+2*hh,2)}, {v(V_W1R+t)} offset:{slot*4096+hh*2048}')
                    self.w1l[b] = A.nlg
                ops.append(f)
        return ops
    def w1_cs(self, b):
        A = self.A; ops = []
        if self.opt.get('sp'):
            for t in (0, 2):
                def f(t=t):
                    if not self.csn[t]: A(f'v_mov_b64 {v(V_CS+4*t,2)}, 0\nv_mov_b64 {v(V_CS+4*t+2,2)}, 0')
                    A.wait(lg=self.w1l[b])
                    A(f'v_smfmac_f32_16x16x64_bf16 {v(V_CS+4*t,4)}, {v(V_ONES,4)}, {a(16*b+4*t,8)}, {v(V_IDX)}')
                    self.csn[t] += 1
                ops.append(f)
            return ops
        for t in range(4):
            def f(t=t):
                A.wait(lg=self.w1l[b])
                c = v(V_CS + 4 * t, 4)
                A(f'v_mfma_f32_16x16x32_bf16 {c}, {v(V_ONES,4)}, {a(16*b+4*t,4)}, {c if self.csn[t] else "0"}')
                self.csn[t] += 1
            ops.append(f)
        return ops
    def w1_pipeline(self):
        order = self.w1order; NS = 5
        seq = []
        for k in range(NS): seq.append(('dma', k))
        for k in range(16):
            seq.append(('tr', k))
            if k >= 1:
                seq.append(('cs', k - 1))
                if k - 1 + NS < 16: seq.append(('dma', k - 1 + NS))
        seq.append(('cs', 15))
        out = []
        for kind, k in seq:
            b = order[k]
            if kind == 'dma': ops = self.w1_dma(b, k % NS)
            elif kind == 'tr': ops = self.w1_tr(b, k % NS)
            else: ops = self.w1_cs(b)
            out.append((kind, k, ops))
        return out

    def w2_setup(self):
        return L(f"""
        v_lshlrev_b32 {v(V_W2A)}, 1, {v(V_G)}
        v_xor_b32 {v(V_W2A)}, {v(V_W2A)}, {v(V_LANE)}
        v_and_b32 {v(V_W2A)}, 7, {v(V_W2A)}
        v_lshrrev_b32 {v(V_W2A+1)}, 3, {v(V_LANE)}
        v_lshlrev_b32 {v(V_W2A+1)}, 10, {v(V_W2A+1)}
        v_lshl_add_u32 {v(V_W2A)}, {v(V_W2A)}, 4, {v(V_W2A+1)}
        s_mul_i32 {s(S_W2S)}, {s(S_W)}, {7*8192} @@ s_add_u32 {s(S_W2S)}, {s(S_W2S)}, 8192 @@ s_and_b32 {s(S_W2S)}, {s(S_W2S)}, {hex(0xffffc000)}
        s_lshl_b32 {s(S_BG)}, {s(S_Q)}, 7 @@ s_add_u32 {s(S_W2S)}, {s(S_W2S)}, {s(S_BG)}
        v_add_u32 {v(V_W2A+1)}, {8192-1024}, {v(V_W2A)}
        """)
    def w2_setup_r(self):
        return L(f"""
        s_and_b32 {s(S_TCH)}, {s(S_W)}, 2 @@ s_lshl_b32 {s(S_TCH)}, {s(S_TCH)}, 5 @@ v_xor_b32 {v(V_W2R+3)}, {s(S_TCH)}, {v(V_W1R)}
        v_xor_b32 {v(V_W2R)}, 96, {v(V_W2R+3)}
        v_xor_b32 {v(V_W2R+1)}, 64, {v(V_W2R+3)}
        v_xor_b32 {v(V_W2R+2)}, 32, {v(V_W2R+3)}
        """)
    def w2_dma(self, b, slot):
        A = self.A; h, ks = self.items[b]; ops = []
        def base(x, c):
            if ks == 6:
                A(f's_lshl1_add_u32 {s(S_BG)}, {s(S_ODD)}, {x}')
                A(f's_xor_b32 {s(S_BG)}, {s(S_BG)}, {s(S_Q)}')
            elif x: A(f's_xor_b32 {s(S_BG)}, {s(S_Q)}, {x}')
            A(f's_mul_i32 {s(S_BG)}, {s(S_BG if x or ks == 6 else S_Q)}, {224*1024}')
            A(f's_add_u32 {s(S_BG)}, {s(S_BG)}, {s(S_W2S)}')
            if ks == 6:
                A(f's_lshl_b32 {s(S_RR+3)}, {s(S_ODD)}, 16')
                A(f's_sub_u32 {s(S_BG)}, {s(S_BG)}, {s(S_RR+3)}')
            if c: A(f's_add_u32 {s(S_BG)}, {s(S_BG)}, {c}')
            if h == 0: A(f's_xor_b32 {s(S_BG)}, {s(S_BG)}, 512')
        for i in range(4):
            def f(i=i):
                if i == 0:
                    if self.opt.get('m0f'): A(f's_add_u32 m0, {s(S_SB)}, {slot*4096}')
                    base(*((ks, 0) if ks < 4 else (2 * (ks - 4), 32768) if ks < 6 else (0, 49152)))
                    if not self.opt.get('m0f'): A(f's_add_u32 m0, {s(S_SB)}, {slot*4096}')
                if i == 2:
                    if ks < 4: A(f's_add_u32 {s(S_BG)}, {s(S_BG)}, {16384 - 2048}')
                    else: base(*((2 * (ks - 4) + 1, 32768 - 2048) if ks < 6 else (1, 49152 - 2048)))
                A(f'buffer_load_dwordx4 {v(V_W2A+(i&1))}, {s(SRD_W2,4)}, {s(S_BG)} offen offset:{i*1024} lds')
                if i == 3: self.w2m[b] = A.nvm
            ops.append(f)
        return ops
    def w2_tr(self, b, slot):
        A = self.A; ops = []
        for t in range(4):
            for hh in range(2):
                def f(t=t, hh=hh):
                    assert self.blk > b, 'w2 fragment would overwrite live w1'
                    A.wait(vm=self.w2m[b])
                    A(f'ds_read_b64_tr_b16 {a(16*b+4*t+2*hh,2)}, {v(V_W2R+t)} offset:{slot*4096+hh*2048}')
                    self.trl[16 + b] = A.nlg
                ops.append(f)
        return ops
    def smalltouch(self, T):
        if self.opt.get('stx'):
            self.A(f's_mul_i32 {s(T)}, {s(S_Q)}, 448\ns_mov_b64 exec, 0x1f')
            self.A(f'buffer_load_dword {v(V_TD)}, {v(V_L128)}, {s(SRD_B1,4)}, {s(T)} offen')
            self.A(f's_and_b32 {s(T+1)}, {s(S_W)}, 2\ns_mul_i32 {s(T+1)}, {s(T+1)}, 192')
            self.A(f'buffer_load_dword {v(V_TD)}, {v(V_L128)}, {s(SRD_B2,4)}, {s(T+1)} offen')
            self.A(f'buffer_load_dword {v(V_TD)}, off, {s(SRD_WS,4)}, {s(S_FLA)} sc1')
            self.A('s_mov_b64 exec, -1')
            return
        self.A(f's_mul_i32 {s(T)}, {s(S_Q)}, 448\ns_lshl_b32 {s(T+1)}, {s(S_W)}, 8')
        self.touch(V_TD, SRD_B1, T, 5); self.touch(V_TD, SRD_B2, T + 1, 2)
        self.touch(V_TD if self.opt.get('tlr') or self.opt.get('sp') else 191, SRD_WS, S_FLA, 1, ' sc1')
        if self.opt.get('tlr'):
            self.A(f'''
            v_lshlrev_b32 v191, 16, {v(V_LANE)}
            v_xor_b32 v191, {s(S_RR)}, v191
            s_mov_b64 exec, 0xff
            buffer_load_dword v191, v191, {s(SRD_WS,4)}, 0 offen offset:{self.opt['tlr']} sc1
            s_mov_b64 exec, -1
            ''')
        if self.opt.get('tll'):
            self.A(f's_add_u32 {s(T)}, {s(S_RR)}, 8192')
            self.touch(191, SRD_WS, T, 24, ' sc1')
    def ptouch(self, js=(0, 1, 2), T=S_RR + 2):
        A = self.A
        n = self.opt.get('npl', 3); tf = ' ' + self.opt.get('tf', 'sc1')
        A(f's_lshl3_add_u32 {s(T)}, {s(S_U)}, {s(S_Q)}')
        A(f"""
        s_lshl_b32 {s(T)}, {s(T)}, 5
        s_add_u32 {s(T)}, {s(T)}, {s(S_W)}
        s_lshl2_add_u32 {s(T)}, {s(S_Q) if self.opt.get('lay') else 0}, {s(T)}
        s_lshl_b32 {s(T)}, {s(T)}, 11
        s_add_u32 {s(T)}, {s(T)}, {WS_P + 8192}
        """)
        if 0 in js:
            A(f's_sub_u32 {s(T+1)}, {s(T)}, {8192 - 128}')
            self.touch(191, SRD_WS, T + 1, 11 if self.opt.get('zc') else 7, ' sc1')
        if 3 in js:
            A(f"""
            s_sub_u32 {s(T+1)}, {s(T)}, 8192
            v_mul_u32_u24 v191, {65536+128}, {v(V_LANE)}
            v_xor_b32 v191, {s(T+1)}, v191
            s_mov_b64 exec, 0xfe
            buffer_load_dword v191, v191, {s(SRD_WS,4)}, 0 offen sc1
            s_mov_b64 exec, -1
            """)
        if 4 in js:
            A(f's_add_u32 {s(T+1)}, {s(T)}, 16384')
            self.touch(191, SRD_WS, T + 1, 16, tf)
        if 1 not in js and 2 not in js: return
        A(f"""
        v_mul_u32_u24 {v(V_W2A+2)}, {8192-2048}, {v(V_G)}
        v_add_u32 {v(V_W2A+2)}, {v(V_W2A+2)}, {v(V_L128)}
        """)
        if 1 in js: self.touch(191, SRD_WS, T, min(64, 16 * n), tf, va=V_W2A + 2)
        if n > 4 and 2 in js:
            A(f's_add_u32 {s(T)}, {s(T)}, 32768')
            self.touch(191, SRD_WS, T, 16 * (n - 4), tf, va=V_W2A + 2)

    def fxst(self, T, V):
        A = self.A; LS = A.newlabel('nfx')
        if self.opt.get('fxp') >= 3:
            return A(f'''
        s_getreg_b32 {s(T)}, hwreg(HW_REG_XCC_ID)
        s_and_b32 {s(T)}, {s(T)}, 15
        v_add_u32 {v(V)}, {s(T)}, {v(V_TAG)}
        v_mov_b32 {v(V+1)}, {v(V_TAG+1)}
        s_lshl2_add_u32 {s(T)}, {s(S_U)}, {s(S_W)}
        s_lshl3_add_u32 {s(T)}, {s(T)}, {s(S_Q)}
        s_lshl_b32 {s(T)}, {s(T)}, 7
        s_add_u32 {s(T)}, {s(T)}, {FX3}
        s_mov_b64 exec, 1
        buffer_store_dwordx2 {v(V,2)}, off, {s(SRD_WS,4)}, {s(T)} sc1
        s_mov_b64 exec, -1
        ''')
        A(f's_cmp_lg_u32 {s(S_W)}, {self.opt.get("fxw", 0)}\ns_cbranch_scc1 {LS}')
        A.snap()
        A(f'''
        s_getreg_b32 {s(T)}, hwreg(HW_REG_XCC_ID)
        s_and_b32 {s(T)}, {s(T)}, 15
        v_add_u32 {v(V)}, {s(T)}, {v(V_TAG)}
        v_mov_b32 {v(V+1)}, {v(V_TAG+1)}
        s_lshl3_add_u32 {s(T)}, {s(S_U)}, {s(S_Q)}
        s_lshl_b32 {s(T)}, {s(T)}, 7
        s_add_u32 {s(T)}, {s(T)}, {FX2}
        s_mov_b64 exec, 1
        buffer_store_dwordx2 {v(V,2)}, off, {s(SRD_WS,4)}, {s(T)} sc1
        s_mov_b64 exec, -1
        ''')
        A.label(LS); A.unsnap()
    def align(self):
        if 'pg' not in self.opt: return ''
        return '.p2align 12\n' + (f".fill {self.opt['pg']//4}, 4, 0xbf810000\n" if self.opt['pg'] else '')
    def site(self, X):
        if 'pad' + X in self.opt: self.A.raw(f';SITE {X}')
    def cpf(self):
        self.A(f'''
        s_getpc_b64 {s(S_M,2)}
        L_pc0:
        s_lshr_b32 {s(S_FAST)}, s2, 3
        s_lshl2_add_u32 {s(S_FAST)}, {s(S_FAST)}, {s(S_W)}
        s_lshl_b32 {s(S_FAST)}, {s(S_FAST)}, 8
        s_min_u32 {s(S_FAST)}, {s(S_FAST)}, L_end-L_pc0-192
        ''')
        for k in range(4): self.A(f's_load_dword {s(S_CNT)}, {s(S_M,2)}, {s(S_FAST)} offset:{64*k}')

    def p1(self):
        A = self.A; o = self.opt
        X, R1, SUM, SQ, FS, ACC = 16, 160, 168, 172, 192, 224
        V_SGN, V_FAC, V_ZO, V_EW, V_XD, V_XR, V_ER = 176, 177, 178, 179, 184, 186, 12 if o.get('sp') else 191
        A(f'''
        s_cmp_ge_u32 s2, 256
        s_cbranch_scc1 L_end
        s_load_dwordx2 {s(SRD_X,2)}, s[0:1], 0
        s_load_dwordx2 {s(SRD_WS,2)}, s[0:1], 96
        s_load_dwordx2 {s(SRD_W1,2)}, s[0:1], 48
        s_load_dwordx2 {s(SRD_W2,2)}, s[0:1], 64
        s_load_dwordx2 {s(SRD_B1,2)}, s[0:1], 56
        s_load_dwordx2 {s(SRD_B2,2)}, s[0:1], 72
        s_load_dwordx2 {s(SRD_OUT,2)}, s[0:1], 80
        ''')
        self.stamp('start')
        if self.opt.get('cpf', 0) == 3:
            A(f'''
            s_getpc_b64 {s(S_M,2)}
            L_pc0:
            s_lshr_b32 {s(S_T0)}, s2, 3
            s_lshl_b32 {s(S_T0)}, {s(S_T0)}, 10
            v_lshl_add_u32 v7, v0, 2, {s(S_T0)}
            v_min_u32 v7, L_fin-L_pc0, v7
            global_load_dword {v(V_TD)}, v7, {s(S_M,2)}
            ''')
        A(f'''
        v_lshrrev_b32 v6, 6, v0
        v_and_b32 {v(V_LANE)}, 63, v0
        v_readfirstlane_b32 {s(S_W)}, v6
        ''')
        if self.opt.get('cpf', 0) == 1: self.cpf()
        A(f'''
        v_and_b32 {v(V_L15)}, 15, {v(V_LANE)}
        v_lshrrev_b32 {v(V_G)}, 4, {v(V_LANE)}
        v_lshlrev_b32 {v(V_L16)}, 4, {v(V_LANE)}
        v_lshlrev_b32 {v(V_L128)}, 7, {v(V_LANE)}
        s_lshr_b32 {s(S_N)}, s2, 3
        ''')
        if o.get('g2') == 2: A(f'''
        s_and_b32 {s(S_T1)}, s2, 1
        s_and_b32 {s(S_Q)}, {s(S_N)}, 3
        s_lshl2_add_u32 {s(S_Q)}, {s(S_T1)}, {s(S_Q)}
        s_and_b32 {s(S_T1)}, s2, 6
        s_lshr_b32 {s(S_C)}, {s(S_N)}, 3
        s_lshl1_add_u32 {s(S_U)}, {s(S_T1)}, {s(S_C)}
        s_sub_u32 {s(S_T1)}, 32, {s(S_U)}
        s_cmp_eq_u32 {s(S_U)}, 0
        s_cselect_b32 {s(S_T1)}, 16, {s(S_T1)}
        s_bitcmp1_b32 {s(S_N)}, 2
        s_cselect_b32 {s(S_U)}, {s(S_T1)}, {s(S_U)}
        ''')
        elif o.get('g2'): A(f'''
        s_and_b32 {s(S_T1)}, s2, 1
        s_and_b32 {s(S_Q)}, {s(S_N)}, 3
        s_lshl2_add_u32 {s(S_Q)}, {s(S_T1)}, {s(S_Q)}
        s_and_b32 {s(S_T1)}, s2, 6
        s_lshr_b32 {s(S_U)}, {s(S_N)}, 2
        s_and_b32 {s(S_C)}, {s(S_U)}, 3
        s_lshl2_add_u32 {s(S_U)}, {s(S_T1)}, {s(S_U)}
        ''')
        else: A(f'''
        s_and_b32 {s(S_T1)}, s2, 7
        s_and_b32 {s(S_Q)}, {s(S_N)}, 7
        s_lshr_b32 {s(S_C)}, {s(S_N)}, 3
        s_lshl2_add_u32 {s(S_U)}, {s(S_T1)}, {s(S_C)}
        ''')
        A(f'''
        s_lshl_b32 {s(S_HB0)}, {s(S_W)}, 14
        s_and_b32 {s(S_ODD)}, {s(S_W)}, 1
        s_lshl2_add_u32 {s(S_TW)}, {s(S_N)}, {s(S_W)}
        s_lshl_b32 {s(S_T0)}, {s(S_Q)}, 7
        s_and_b32 {s(S_T1)}, {s(S_T0)}, 0x200
        ''')
        for i in range(4):
            A(f's_add_u32 {s(S_T2)}, {s(S_T0)}, {128*i}\ns_and_b32 {s(S_T2)}, {s(S_T2)}, 0x180\ns_or_b32 {s(S_XO+i)}, {s(S_T2)}, {s(S_T1)}')
        self.srd(SRD_X, 2097152); self.srd(SRD_WS, WS_SIZE); self.srd(SRD_W2, 1835008); self.srd(SRD_W1, 1835008)
        self.srd(SRD_B1, 3584); self.srd(SRD_B2, 1024); self.srd(SRD_OUT, 2097152)
        A(f'''
        s_and_b32 {s(S_T0)}, {s(S_W)}, 2
        s_lshl4_add_u32 {s(S_T0)}, {s(S_T0)}, {s(S_ODD)}
        s_lshl_b32 {s(S_T0)}, {s(S_T0)}, 5
        s_add_u32 {s(S_T0)}, {s(S_T0)}, {s(S_U)}
        s_lshl_b32 {s(S_T0)}, {s(S_T0)}, 10
        v_lshrrev_b32 v12, 3, {v(V_LANE)}
        v_and_b32 v13, 7, {v(V_LANE)}
        v_xor_b32 v13, v13, {v(V_G)}
        v_lshlrev_b32 v13, 4, v13
        v_lshl_add_u32 v6, v12, 16, v13
        v_add_u32 {v(V_XD)}, {s(S_T0)}, v6
        v_xor_b32 v6, 64, {v(V_XD)}
        v_add_u32 {v(V_XD+1)}, {8*65536 - 1024}, v6
        ''')
        A(f'''
        s_lshl_b32 {s(S_T0)}, {s(S_Q)}, 5
        v_lshrrev_b32 v6, 2, {v(V_L15)}
        v_and_b32 v7, 3, {v(V_L15)}
        v_lshl_add_u32 v6, v6, 3, v7
        v_add_u32 v6, {s(S_T0)}, v6
        v_add_u32 v7, 4, v6
        v_cmp_eq_u32 vcc, 0, v6
        v_mov_b32 v8, 0x100
        v_cndmask_b32 v6, v6, v8, vcc
        v_cvt_f32_u32 v6, v6
        v_cvt_f32_u32 v7, v7
        v_mul_f32 v6, {f2u(1/512)}, v6
        v_mul_f32 v7, {f2u(1/512)}, v7
        s_add_u32 {s(S_T0)}, {s(S_W)}, {s(S_Q)}
        s_and_b32 {s(S_T0)}, {s(S_T0)}, 3
        s_lshl_b32 {s(S_T0)}, {s(S_T0)}, 6
        v_lshl_add_u32 v8, {v(V_G)}, 3, {s(S_T0)}
        v_cvt_f32_u32 v8, v8
        v_add_f32 v9, {f2u(32.0)}, v8
        s_mul_i32 {s(S_T0)}, {s(S_W)}, {SPW}
        s_add_u32 {s(S_T0)}, {s(S_T0)}, {L_S}
        v_add_u32 v10, {s(S_T0)}, {v(V_L16)}
        ''')
        def tab(kk, et):
            b = X + 32 * et
            A(f'v_mul_f32 {v(b)}, {v(6+et)}, {v(8+kk)}')
            A(f'v_add_f32 {v(b+1)}, {v(b)}, {v(6+et)}')
            if kk == 0: A(f'v_cos_f32 {v(b+2)}, {v(6+et)}')
            for j in range(2):
                A(f'v_cos_f32 {v(b+8+j)}, {v(b+j)}')
                A(f'v_sin_f32 {v(b+16+j)}, {v(b+j)}')
            if kk == 0: A(f'v_add_f32 {v(b+2)}, {v(b+2)}, {v(b+2)}')
            for j in range(2, 8):
                A(f'v_fma_f32 {v(b+8+j)}, {v(b+2)}, {v(b+7+j)}, -{v(b+6+j)}')
                A(f'v_fma_f32 {v(b+16+j)}, {v(b+2)}, {v(b+15+j)}, -{v(b+14+j)}')
            for j in range(4):
                A(f'v_cvt_pk_bf16_f32 {v(b+24+j)}, {v(b+8+2*j)}, {v(b+9+2*j)}')
            for j in range(4):
                A(f'v_cvt_pk_bf16_f32 {v(b+28+j)}, {v(b+16+2*j)}, {v(b+17+2*j)}')
            A(f'ds_write_b128 v10, {v(b+24,4)} offset:{(kk*4+et*2)*1024}')
            A(f'ds_write_b128 v10, {v(b+28,4)} offset:{(kk*4+et*2+1)*1024}')
        npre = o.get('tabpre', 1)
        tabs = [(0, 0), (0, 1), (1, 0), (1, 1)]
        for t in tabs[:npre]: tab(*t)
        A(f's_mov_b32 {s(S_T2)}, {FE}')
        self.site('K')
        A('s_waitcnt lgkmcnt(0)')
        self.stamp('kernarg')
        A.on = bool(o.get('s1', 1))
        xm = []
        XORD = [0, 2, 4, 6, 1, 3, 5, 7] if o.get('g1n') else list(range(8))
        def xdma(i):
            i = XORD[i]
            A(f's_add_u32 m0, {s(S_HB0)}, {i*2048}')
            so = S_XO + (i >> 1)
            if i & 1:
                A(f's_xor_b32 {s(S_BG)}, {s(so)}, 0x200'); so = S_BG
            A(f'buffer_load_dwordx4 {v(V_XD)}, {s(SRD_X,4)}, {s(so)} offen lds')
            A(f'buffer_load_dwordx4 {v(V_XD+1)}, {s(SRD_X,4)}, {s(so)} offen offset:1024 lds')
            xm.append(A.nvm)
        NX0 = o.get('nx0', 5)
        if o.get('tl1') == 1: A(f'buffer_load_dword {v(V_BT)}, off, {s(SRD_W1,4)}, 0')
        xdma(0)
        if o.get('tl1') == 2: A(f's_buffer_load_dword {s(S_AM0)}, {s(SRD_W1,4)}, 0\ns_buffer_load_dword {s(S_AM0)}, {s(SRD_W1,4)}, 0xffffc\ns_buffer_load_dword {s(S_AM0)}, {s(SRD_W2,4)}, 0\ns_buffer_load_dword {s(S_AM0)}, {s(SRD_W2,4)}, 0xffffc')
        A(f'buffer_load_dwordx2 {v(V_TAG,2)}, off, {s(SRD_WS,4)}, {s(S_T2)}{self.fef}')
        for i in range(1, NX0):
            if o.get('t1e') == i: self.g2touch(1)
            if o.get('t1a') == i: self.g2touch(1, 'a')
            xdma(i)
        if o.get('t1e') == NX0: self.g2touch(1)
        if o.get('t1a') == NX0: self.g2touch(1, 'a')
        T0 = o.get('t0', 0)
        if T0: self.wtouch(V_TD, SRD_W1, 0, T0)
        A.on = False
        if o.get('cpf') == 2: self.cpf()
        if o.get('txr', 0) or o.get('tsc', 0): A(f'''
        s_and_b32 {s(S_T0)}, {s(S_TW)}, 31
        s_lshl_b32 {s(S_T1)}, {s(S_T0)}, 6
        s_sub_u32 {s(S_T1)}, {s(S_T1)}, {s(S_U)}
        s_add_u32 {s(S_T1)}, {s(S_T1)}, 64
        s_and_b32 {s(S_T1)}, {s(S_T1)}, 2047
        s_lshl_b32 {s(S_T1)}, {s(S_T1)}, 10
        ''')
        if o.get('txr', 0):
            for k in range(8): A(f's_buffer_load_dword {s(S_AM0)}, {s(SRD_X,4)}, {s(S_T1)} offset:{128*k}')
        if o.get('tsc', 0): A(f'''
        s_min_u32 {s(S_T1)}, {s(S_T0)}, 27
        s_lshl_b32 {s(S_T1)}, {s(S_T1)}, 7
        s_buffer_load_dword {s(S_AM0)}, {s(SRD_B1,4)}, {s(S_T1)}
        s_and_b32 {s(S_T1)}, {s(S_T0)}, 7
        s_lshl_b32 {s(S_T1)}, {s(S_T1)}, 7
        s_buffer_load_dword {s(S_AM0)}, {s(SRD_B2,4)}, {s(S_T1)}
        ''')
        A.on = bool(o.get('s1', 1))
        if o.get('tlb'):
            LT = [A.newlabel('tl') for _ in range(4)]
            sh = o.get('tlb')
            A(f's_lshl_b32 {s(S_T0)}, {s(S_N)}, 10')
            for k, (srd, st_, base) in enumerate(((SRD_W1, 28672, 0), (SRD_W2, 28672, 0), (SRD_WS, 32768, WS_Z), (SRD_WS, 114688, WS_R))):
                A(f's_cmp_lg_u32 {s(S_W)}, {k}\ns_cbranch_scc1 {LT[k]}')
                A.snap()
                A(f'v_mul_u32_u24 {v(V_BT)}, {st_}, {v(V_LANE)}')
                if base: A(f's_add_u32 {s(S_T0)}, {s(S_T0)}, {base}')
                A(f'buffer_load_dword {v(V_TD)}, {v(V_BT)}, {s(srd,4)}, {s(S_T0)} offen')
                A.label(LT[k]); A.unsnap()
        A(f'''
        s_mov_b32 {s(S_HB)}, {s(S_HB0)}
        s_mul_i32 {s(S_SB)}, {s(S_W)}, {SPW}
        s_add_u32 {s(S_SB)}, {s(S_SB)}, {L_S}
        s_add_u32 {s(S_TB1)}, {s(S_U)}, 1024
        s_cmp_eq_u32 {s(S_U)}, 0
        s_cselect_b32 {s(S_TB1)}, 32, {s(S_TB1)}
        ''')
        self.w1m = {}; self.w1l = {}; self.csn = [0] * 4; self.w2m = {}
        self.w1order = list(range(16))
        if o.get('ord'): self.w1order = [0, 1, 8, 9] + list(range(2, 8)) + list(range(10, 16))
        self.pipe = self.w1_pipeline()
        for k, t in enumerate(tabs[npre:]):
            tab(*t)
            if o.get('t1e') == 10 + k: self.g2touch(1)
            if o.get('t1a') == 10 + k: self.g2touch(1, 'a')
        b = TB
        t2 = L(f'''
        s_mov_b32 {s(S_T2)}, 0xffff
        s_cmp_ge_u32 {s(S_W)}, 2 @@ s_cselect_b32 {s(S_T0)}, {s(S_TB1)}, {s(S_U)} @@ s_cselect_b32 {s(S_T1)}, 0, {f2u(0.25)} @@ s_cselect_b32 {s(S_T2)}, 0xffff0000, {s(S_T2)}
        s_cmp_eq_u32 {s(S_U)}, 0 @@ s_cselect_b32 {s(S_T1)}, {s(S_T1)}, {f2u(0.25)} @@ s_cselect_b32 {s(S_T2)}, {s(S_T2)}, -1
        v_lshl_add_u32 v11, {v(V_L15)}, 6, {s(S_T0)}
        v_cmp_eq_u32 vcc, 0, v11
        v_cvt_f32_u32 v11, v11
        v_mul_f32 v11, {f2u(1/2048)}, v11
        v_lshlrev_b32 v6, 15, {v(V_G)}
        v_and_b32 v6, 0x8000, v6
        v_cndmask_b32 v7, 0, v6, vcc
        s_lshl1_add_u32 {s(S_T0)}, {s(S_ODD)}, {s(S_Q)}
        s_lshl_b32 {s(S_T0)}, {s(S_T0)}, 3
        v_add_u32 v8, {s(S_T0)}, {v(V_G)}
        ''')
        for j in range(4):
            t2 += [f'v_add_u32 v6, {4*j}, v8', 'v_and_b32 v6, 31, v6', 'v_cvt_f32_u32 v6, v6',
                   f'v_mul_f32 {v(b+2*j)}, v6, v11', f'v_add_f32 {v(b+2*j+1)}, {s(S_T1)}, {v(b+2*j)}']
        for j in range(8):
            t2 += [f'v_cos_f32 {v(b+8+j)}, {v(b+j)}', f'v_sin_f32 {v(b+16+j)}, {v(b+j)}']
        for j in range(4):
            d = b + 24 + 8 * (j >> 1) + 2 * (j & 1)
            t2 += [f'v_cvt_pk_bf16_f32 {v(d)}, {v(b+8+2*j)}, {v(b+9+2*j)}',
                   f'v_cvt_pk_bf16_f32 {v(d+5)}, {v(b+16+2*j)}, {v(b+17+2*j)}',
                   f'v_and_b32 {v(d)}, {s(S_T2)}, {v(d)}', f'v_and_b32 {v(d+5)}, {s(S_T2)}, {v(d+5)}',
                   f'v_xor_b32 {v(d+4)}, v7, {v(d)}', f'v_xor_b32 {v(d+1)}, 0x80008000, {v(d+5)}']
        for k in range(2):
            for var in range(2):
                t2.append(f'ds_write_b128 v10, {v(b+24+8*k+4*var,4)} offset:{8192+k*2048+var*1024}')
        self.flush(t2)
        XRP = o.get('xrp', 0)
        VM = 16 if XRP >= 2 else 148
        vmset = (f'''
        v_sub_u32 v7, 15, v12
        v_lshl_add_u32 {v(VM)}, v7, 16, v13
        v_xor_b32 {v(VM+1)}, {8*65536+64}, {v(VM)}
        s_sub_u32 {s(S_RR)}, 1088, {s(S_U)}
        s_lshl_b32 {s(S_RR)}, {s(S_RR)}, 10
        s_sub_u32 {s(S_RR+1)}, 1088, {s(S_TB1)}
        s_lshl_b32 {s(S_RR+1)}, {s(S_RR+1)}, 10
        s_lshl_b32 {s(S_RR+2)}, {s(S_W)}, 7
        s_sub_u32 {s(S_RR+3)}, 896, {s(S_RR+2)}
        v_add_u32 v6, {s(S_RR)}, {v(VM)}
        v_lshrrev_b32 v7, 1, v6
        v_and_b32 v7, {1<<20}, v7
        v_sub_u32 {v(VM+2)}, v6, v7
        v_and_b32 {v(VM+3)}, {(1<<21)-1}, v6
        ''')
        if XRP < 2: A(vmset)
        A(f'''
        v_mov_b32 v6, {s(S_U)}
        v_mov_b32 v7, {s(S_TB1)}
        v_and_b32 v8, 1, {v(V_G)}
        v_cmp_eq_u32 vcc, 1, v8
        v_add_u32 v10, {L_S}, {v(V_L16)}
        v_add_u32 v11, {L_S+2*SPW}, {v(V_L16)}
        v_cndmask_b32 v6, v6, v7, vcc
        v_lshl_add_u32 {v(V_TT)}, {v(V_L15)}, 6, v6
        v_lshrrev_b32 v6, 1, {v(V_L15)}
        v_xor_b32 v6, v6, {v(V_G)}
        v_lshlrev_b32 v6, 4, v6
        v_lshl_add_u32 v15, {v(V_L15)}, 7, v6
        v_add_u32 {v(V_XR)}, {s(S_HB)}, v15
        v_xor_b32 {v(V_XR+1)}, 64, {v(V_XR)}
        ''')
        SP = o.get('sp')
        spi = L(f'''
        s_mov_b32 vcc_lo, 0x33333333 @@ s_mov_b32 vcc_hi, 0xcccccccc @@ v_mov_b32 {v(V_ONES)}, 0x3f803f80 @@ v_cndmask_b32 {v(V_ONES)}, 0, {v(V_ONES)}, vcc
        v_and_b32 {v(V_IDX)}, 1, {v(V_LANE)}
        v_mov_b32 {v(V_ONES+1)}, {v(V_ONES)}
        v_mul_u32_u24 {v(V_IDX)}, 0xaaaa, {v(V_IDX)}
        v_mov_b64 {v(V_ONES+2,2)}, {v(V_ONES,2)}
        v_or_b32 {v(V_IDX)}, 0x4444, {v(V_IDX)}
        v_mov_b64 {v(SUM,2)}, 0
        v_mov_b64 {v(SUM+2,2)}, 0
        ''')
        if not SP:
            for i in range(4): A(f'v_mov_b32 {v(V_ONES+i)}, 0x3f803f80')
        xr = []
        for m in (1, 0):
            for side in range(2):
                for hh in (1, 0):
                    def f(m=m, side=side, hh=hh):
                        A(f's_add_u32 m0, {s(S_SB)}, {12288+m*4096+side*2048+hh*1024}')
                        if hh == 0 and m == 0: A(f'buffer_load_dwordx4 {v(VM+2+side)}, {s(SRD_X,4)}, {s(S_RR+2+side)} offen lds')
                        else:
                            if hh == 1: A(f's_add_u32 {s(S_BG)}, {s(S_RR+m)}, {s(S_RR+2+side)}')
                            A(f'buffer_load_dwordx4 {v(VM+hh)}, {s(SRD_X,4)}, {s(S_BG)} offen lds')
                        self.xrm = A.nvm
                    xr.append(f)
        A.wait(lg=A.nlg)
        A('s_barrier')
        tl = {}
        def tabrd(f):
            A(f'ds_read_b128 {a(4*f,4)}, {v(10+(f>>4))} offset:{((f>>3)&1)*SPW+(f&7)*1024}')
            tl[f] = A.nlg
        for f in range(8): tabrd(f)
        self.stamp('tables')
        NX1 = min(8, NX0 + o.get('nx1', 3))
        for i in range(NX0, NX1): xdma(i)
        b = FS
        fild = [(lambda f=f: tabrd(f)) for f in range(8, 32)]
        fild += L(f'''
        s_lshl_b32 {s(S_W2S)}, {s(S_ODD)}, 10 @@ s_add_u32 {s(S_W2S)}, {s(S_W2S)}, {L_S+8192} @@ v_add_u32 v10, {s(S_W2S)}, {v(V_L16)}
        v_xor_b32 v11, 1024, v10
        ''')
        fill = []
        for f in range(16): fild.append(f'ds_read_b128 {v(TB+4*f,4)}, {v(10+(f&1))} offset:{(2*((f>>1)&1)+(f>>3))*SPW+((f>>2)&1)*2048}')
        fill += L(f'''
        s_lshl_b32 {s(S_T0)}, {s(S_W)}, 3
        v_lshrrev_b32 v6, 1, {v(V_L15)}
        v_add_u32 v6, {s(S_T0)}, v6
        v_and_b32 v7, 1, {v(V_L15)}
        v_cvt_f32_u32 v9, v7
        v_mul_f32 v9, {f2u(-0.25)}, v9
        v_lshl_add_u32 v8, v6, 1, v7
        v_cmp_eq_u32 vcc, 1, v8
        v_lshlrev_b32 v8, 3, {v(V_G)}
        v_cndmask_b32 v6, v6, 32, vcc
        v_cndmask_b32 v9, v9, 0, vcc
        v_cvt_f32_u32 v6, v6
        v_mul_f32 v6, {f2u(1/64)}, v6
        v_cvt_f32_u32 v8, v8
        v_fma_f32 {v(b)}, v6, v8, v9
        ''')
        if o.get('r1c'):
            fill += L(f'''
            v_cos_f32 v7, v6
            v_add_f32 {v(b+1)}, {v(b)}, v6
            v_cos_f32 {v(b+8)}, {v(b)}
            v_cos_f32 {v(b+9)}, {v(b+1)}
            v_add_f32 v7, v7, v7
            v_bfe_i32 v8, {v(V_LANE)}, 1, 1
            ''')
            for j in range(2, 8): fill.append(f'v_fma_f32 {v(b+8+j)}, v7, {v(b+7+j)}, -{v(b+6+j)}')
            fill.append('v_and_b32 v8, 0x80008000, v8')
            for j in range(4): fill.append(f'v_cvt_pk_bf16_f32 {v(R1+j)}, {v(b+8+4*(j&1)+(j>>1))}, {v(b+10+4*(j&1)+(j>>1))}')
            for j in range(4): fill.append(f'v_xor_b32 {v(R1+4+j)}, v8, {v(R1+j)}')
        for blk in range(0 if o.get('r1c') else 4):
            for j in range(4):
                c = 2 * j + (blk & 1) + 32 * (blk >> 1)
                if c: fill.append(f'v_fmamk_f32 {v(b+4*blk+j)}, v6, {f2u(float(c))}, {v(b)}')
        for j in range(0 if o.get('r1c') else 16): fill.append(f'v_cos_f32 {v(b+16+j)}, {v(b+j)}')
        for j in range(0 if o.get('r1c') else 8): fill.append(f'v_cvt_pk_bf16_f32 {v(R1+j)}, {v(b+16+2*j)}, {v(b+17+2*j)}')
        rdy = set()
        def chk(): assert cnt[0] > 14; print('vmset at', cnt[0])
        if XRP == 3 and o.get('vmf', 1): fill += [chk] + L(vmset) + [lambda: rdy.add(0)]
        if o.get('w1f'): fill += self.w1_setup() + [lambda: rdy.add(1)]
        fill += L(f'''
        v_and_b32 v6, 1, {v(V_LANE)}
        v_lshlrev_b32 v6, 31, v6
        v_or_b32 {v(V_SGN)}, 1.0, v6
        s_cmp_{'lt' if o.get('g1n') else 'ge'}_u32 {s(S_Q)}, 4 @@ s_cselect_b64 vcc, -1, 0
        v_cndmask_b32 {v(V_FAC)}, 1.0, {v(V_SGN)}, vcc
        ''')
        nsg = len(fill)
        zo = L(f'''
        s_lshl_b32 {s(S_T0)}, {s(S_W)}, 19
        s_lshl_b32 {s(S_T1)}, {s(S_Q)}, 13
        s_add_u32 {s(S_T0)}, {s(S_T0)}, {s(S_T1)}
        s_lshl_b32 {s(S_T1)}, {s(S_U)}, 8
        s_add_u32 {s(S_T0)}, {s(S_T0)}, {s(S_T1)}
        v_lshlrev_b32 v6, 17, {v(V_G)}
        v_lshl_add_u32 v6, {v(V_L15)}, 4, v6
        v_add_u32 {v(V_ZO)}, {s(S_T0)}, v6
        ''')
        if not o.get('zop'): fill += zo; zo = []
        fill += L(f'''
        s_lshr_b32 {s(S_T0)}, {s(S_W)}, 1
        s_lshl_b32 {s(S_T0)}, {s(S_T0)}, 10
        s_lshl3_add_u32 {s(S_T0)}, {s(S_ODD)}, {s(S_T0)}
        s_add_u32 {s(S_T0)}, {s(S_T0)}, {L_EXC}
        v_add_u32 {v(V_EW)}, {s(S_T0)}, {v(V_L16)}
        v_add_u32 {v(V_ER)}, {L_EXC}, {v(V_L16)}
        s_lshr_b32 {s(S_T1)}, {s(S_Q)}, 1
        s_lshl2_add_u32 {s(S_T0)}, {s(S_W)}, {s(S_T1)}
        s_lshl_b32 {s(S_T0)}, {s(S_T0)}, 5
        s_add_u32 {s(S_T0)}, {s(S_T0)}, {s(S_U)}
        s_and_b32 {s(S_T1)}, {s(S_Q)}, 1
        s_lshl1_add_u32 {s(S_T0)}, {s(S_T0)}, {s(S_T1)}
        s_lshl_b32 {s(S_T0)}, {s(S_T0)}, 7
        s_add_u32 {s(S_F1)}, {s(S_T0)}, {F1}
        ''') + L(f'''
        s_mov_b32 {s(S_XO)}, 0xaaaaaaaa
        s_mov_b32 {s(S_XO+1)}, 0xaaaaaaaa
        s_mov_b32 {s(S_XO+2)}, 0xcccccccc
        s_mov_b32 {s(S_XO+3)}, 0xcccccccc
        s_mov_b32 {s(S_M)}, 0x00f0000f
        s_mov_b32 {s(S_M+1)}, 0xf0000f00
        ''' if SP else f'''
        v_and_b32 v6, 1, {v(V_L15)}
        v_cmp_eq_u32 {s(S_XO,2)}, 1, v6
        v_and_b32 v6, 2, {v(V_L15)}
        v_cmp_eq_u32 {s(S_XO+2,2)}, 2, v6
        v_lshrrev_b32 v6, 2, {v(V_L15)}
        v_cmp_eq_u32 {s(S_M,2)}, v6, {v(V_G)}
        ''')
        g3 = []
        G1N = o.get('g1n', 0); post = []
        if G1N:
            w = self.w1_setup(); k = len(w) - o.get('w1p', len(w))
            fill += w[:k]; post = w[k:] + zo + [f's_mov_b32 {s(S_T1)}, 65536']
            rest = fill[nsg:]; e0 = rest.index(f's_lshr_b32 {s(S_T0)}, {s(S_W)}, 1'); m0_ = rest.index(f's_mov_b32 {s(S_XO)}, 0xaaaaaaaa')
            fill = fill[nsg-5:nsg] + rest[e0:e0+6] + rest[m0_:m0_+6] + fill[:nsg-5] + rest[:e0] + rest[e0+6:m0_] + rest[m0_+6:]
        elif not o.get('w1f'): fill += self.w1_setup() + [lambda: rdy.add(1)]
        if XRP == 3 and not o.get('vmf', 1): fill += L(vmset) + [lambda: rdy.add(0)]
        if XRP == 3: g3 += [(0, o.get('xrt', 56), f) for f in xr]
        if o.get('wpre'):
            def tbar():
                self.flush(fild); A.wait(lg=A.nlg); A('s_barrier')
            w = [(1, o.get('wpt', 60), f) for f in [tbar] + [f for kind, k, ops in self.pipe if kind == 'dma' for f in ops][:o['wpre']]]
            g3 = w + g3 if o.get('wpf') else g3 + w
        if not G1N: fill += L(f's_mov_b32 {s(S_T1)}, 65536\ns_mov_b32 {s(S_T0)}, {f2u(1/512)}\ns_mov_b32 {s(S_T2)}, {WS_HN}\ns_mov_b32 {s(S_T3)}, {WS_HN+65536}')
        xl = []
        def xrd(i):
            while len(xm) <= i: g1.pop(0)()
            A.wait(vm=xm[i])
            for kk in range(2):
                A(f'ds_read_b128 {v(X+8*i+4*kk,4)}, {v(V_XR+kk)} offset:{XORD[i]*2048}')
            xl.append(A.nlg)
        for _ in range(o.get('xrb', 0)): xr.pop(0)()
        if o.get('t1p') == 1: self.g2touch(1)
        self.site('A')
        if SP: self.flush(spi)
        for _ in range(o.get('r1p', 0)): self.emit(fill.pop(0))
        for _ in range(o.get('tdp', 0)): self.emit(fild.pop(0))
        xrd(0)
        self.stamp('x first')
        xrd(1)
        A(f'''
        v_add_u32 {v(V_TAG)}, 0x9e3779b0, {v(V_TAG)}
        v_add_u32 {v(V_TAG+1)}, 0x7f4a7c15, {v(V_TAG+1)}
        ''')
        if o.get('fxp') in (1, 3): self.fxst(S_T0, V_FXV)
        if not o.get('fxp'): A(f'''
        s_getreg_b32 {s(S_T0)}, hwreg(HW_REG_XCC_ID)
        s_and_b32 {s(S_T0)}, {s(S_T0)}, 15
        v_add_u32 {v(V_FXV)}, {s(S_T0)}, {v(V_TAG)}
        v_mov_b32 {v(V_FXV+1)}, {v(V_TAG+1)}
        s_lshl_b32 {s(S_T0)}, {s(S_U)}, 7
        s_lshl3_add_u32 {s(S_T0)}, {s(S_Q)}, {s(S_T0)}
        s_add_u32 {s(S_T0)}, {s(S_T0)}, {FX}
        s_mov_b64 exec, 1
        buffer_store_dwordx2 {v(V_FXV,2)}, off, {s(SRD_WS,4)}, {s(S_T0)} sc1
        s_mov_b64 exec, -1
        ''')
        def t1():
            if o.get('t1e') or o.get('t1p') == 1: return
            if o.get('t1bar', 1): A('s_barrier')
            if o.get('g2'):
                self.g2touch(1, 'a' if o.get('t1a') == 20 else None)
                if o.get('t2a') == 1: self.g2touch(2, 'a')
                if o.get('tw2', 2) == 1: self.g2touch(2)
                if o.get('ts') == 0: self.smalltouch(S_AM0)
                return
            T1 = o.get('t1', 112)
            if T1 > T0: self.wtouch(V_TD, SRD_W1, T0, min(T1 - T0, 64))
            if T1 - T0 > 64: self.wtouch(V_TD, SRD_W1, T0 + 64, T1 - T0 - 64)
            if o.get('tw2'): self.wtouch(V_TD, SRD_W2, 0, o['tw2'])
        self.w1t = 56
        g1 = [(lambda i=i: xdma(i)) for i in range(NX1, 8)] + (xr if XRP < 2 else [lambda: None] * o.get('t1d', 0)) + [t1]
        for _ in range(min(len(g1), o.get('xr0', 3))): g1.pop(0)()
        XRE = o.get('xre', 2); cnt = [0, 0]
        def fl(n):
            cnt[0] += 1
            if g1 and cnt[0] % XRE == 0: return g1.pop(0)()
            if g3 and g3[0][0] in rdy and cnt[0] >= g3[0][1] and cnt[0] % o.get('xre3', 3) == 0: return g3.pop(0)[2]()
            if not fill and not fild and 2 not in rdy: rdy.add(2); print('gemm1 fill done at', cnt[0])
            k = cnt[1]
            if fild and cnt[0] % 4: self.emit(fild.pop(0)); k += 1
            while fill and k < n:
                n0 = A.wt; self.emit(fill.pop(0)); k += A.wt - n0
            cnt[1] = max(0, k - n)
        def ssum(i): A(f'v_smfmac_f32_16x16x64_bf16 {v(SUM,4)}, {v(V_ONES,4)}, {v(X+8*i,8)}, {v(V_IDX)}')
        if G1N: return self.p1tail(locals())
        for i in range(8):
            ip, hp = i >> 1, i & 1
            if i + 2 < 8: xrd(i + 2)
            if o.get('alls') == 3 and i in (2, 4, 5): self.stamp(f'x{i+2}')
            if o.get('twd') and i == 5: self.stamp('x last'); A.wait(vm=A.nvm); self.stamp('touch done')
            while 8 * ip + 7 not in tl: self.emit(fild.pop(0))
            A.wait(lg=max(xl[i], tl[8 * ip + 7]))
            for kk in range(2):
                xa = X + 8 * i + 4 * kk
                first = (i == 0 and kk == 0)
                A(f'v_mfma_f32_16x16x32_bf16 {v(SQ,4)}, {v(xa,4)}, {v(xa,4)}, {"0" if first else v(SQ,4)}')
                fl(2.2)
                if not SP: A(f'v_mfma_f32_16x16x32_bf16 {v(SUM,4)}, {v(xa,4)}, {v(V_ONES,4)}, {"0" if first else v(SUM,4)}'); fl(2.2)
                elif kk: ssum(i); fl(1.2)
                for t in range(4):
                    acc = ACC + 16 * hp + 4 * t
                    cin = '0' if (ip == 0 and kk == 0) else v(acc, 4)
                    A(f'v_mfma_f32_16x16x32_bf16 {v(acc,4)}, {v(xa,4)}, {a(32*ip+16*kk+4*t,4)}, {cin}')
                    if not (kk == 1 and t == 3): fl(2.2)
        print('gemm1 fill left', len(fill), len(fild), len(g1), len(g3))
        self.flush(fild); self.flush(fill)
        self.stamp('gemm1 done')
        A(f'''
        v_cndmask_b32 v6, {v(SQ)}, {v(SQ+1)}, {s(S_XO,2)}
        v_cndmask_b32 v7, {v(SQ+2)}, {v(SQ+3)}, {s(S_XO,2)}
        {f'v_add_f32 v8, {v(SUM)}, {v(SUM+1)}' if SP else f'v_cndmask_b32 v8, {v(SUM)}, {v(SUM+1)}, {s(S_XO,2)}'}
        {f'v_add_f32 v9, {v(SUM+2)}, {v(SUM+3)}' if SP else f'v_cndmask_b32 v9, {v(SUM+2)}, {v(SUM+3)}, {s(S_XO,2)}'}
        v_cndmask_b32 v6, v6, v7, {s(S_XO+2,2)}
        {f'v_add_f32 v8, v8, v9' if SP else f'v_cndmask_b32 v8, v8, v9, {s(S_XO+2,2)}'}
        v_mul_f32 v8, {s(S_T0)}, v8
        v_mul_f32 v8, v8, v8
        v_fma_f32 v6, v6, {s(S_T0)}, -v8
        v_max_f32 v6, 0, v6
        v_add_f32 v6, {f2u(1e-5)}, v6
        v_rsq_f32 v6, v6
        v_fma_f32 {v(ACC)}, {v(ACC+16)}, {v(V_SGN)}, {v(ACC)}
        v_cndmask_b32 v6, 0, v6, {s(S_M,2)}
        v_fma_f32 {v(ACC+1)}, {v(ACC+17)}, {v(V_SGN)}, {v(ACC+1)}
        v_fma_f32 {v(ACC+2)}, {v(ACC+18)}, {v(V_SGN)}, {v(ACC+2)}
        v_mfma_f32_16x16x4_f32 v[20:23], v6, {v(V_FAC)}, 0
        ''')
        for i in range(3, 16):
            A(f'v_fma_f32 {v(ACC+i)}, {v(ACC+16+i)}, {v(V_SGN)}, {v(ACC+i)}')
        for t in range(4):
            for r in range(0, 4, 2):
                A(f'v_pk_mul_f32 {v(ACC+4*t+r,2)}, {v(ACC+4*t+r,2)}, {v(20+r,2)}')
            A(f'v_cvt_pk_bf16_f32 {v(24+2*t)}, {v(ACC+4*t)}, {v(ACC+4*t+1)}')
            A(f'v_cvt_pk_bf16_f32 {v(25+2*t)}, {v(ACC+4*t+2)}, {v(ACC+4*t+3)}')
            A(f'ds_write_b64 {v(V_EW)}, {v(24+2*t,2)} offset:{t*2048}')
            if g3: g3.pop(0)[2]()
        while g3: g3.pop(0)[2]()
        if XRP == 2: A(vmset)
        if o.get('alls') == 3: A.wait(lg=A.nlg); self.stamp('exc wr')
        A.wait(vm=None if XRP and not o.get('xrw') else self.xrm, lg=A.nlg)
        if o.get('alls') == 3: self.stamp('xr in')
        A('s_barrier')
        if o.get('alls') == 3: self.stamp('bar')
        if o.get('rd8'): A.on = False
        for f in range(8):
            A(f'ds_read_b128 {v(32+4*f,4)}, {v(V_ER)} offset:{f*1024}')
        A.on = True
        for t in range(4):
            A(f's_waitcnt lgkmcnt({6-2*t})')
            A(f'v_mfma_f32_16x16x32_bf16 {v(64+4*t,4)}, {v(R1,4)}, {v(32+8*t,4)}, 0')
            A(f'v_mfma_f32_16x16x32_bf16 {v(64+4*t,4)}, {v(R1+4,4)}, {v(36+8*t,4)}, {v(64+4*t,4)}')
        A.dlg = A.nlg
        for k in range(2):
            for t in range(4):
                A(f'v_cvt_pk_bf16_f32 {v(24+4*k+t)}, {v(64+4*t+2*k)}, {v(65+4*t+2*k)}')
            A(f'buffer_store_dwordx4 {v(24+4*k,4)}, {v(V_ZO)}, {s(SRD_WS,4)}, {"0" if k == 0 else s(S_T1)} offen sc1')
            if o.get('zc'): A(f'buffer_store_dwordx4 {v(24+4*k,4)}, {v(V_ZO)}, {s(SRD_WS,4)}, {s(S_T2+k)} offen sc1')
        self.stamp('Z stores')
        self.zst = A.nvm
        self.xr = []
        if o.get('tw2') == 2:
            if o.get('t2bar', 1): A('s_barrier')
            self.g2touch(2)
            if XRP == 2: self.xr = xr
            if o.get('ts', 1) == 1: self.smalltouch(S_T0)
        elif XRP == 2: self.flush(xr)

    def p1tail(self, E):
        A = self.A; o = self.opt
        X, R1, SUM, SQ, ACC, V_SGN, V_FAC, V_ZO, V_EW, V_ER = (E[k] for k in 'X R1 SUM SQ ACC V_SGN V_FAC V_ZO V_EW V_ER'.split())
        fill, fild, g1, post, xrd, xl, tl, ssum = (E[k] for k in 'fill fild g1 post xrd xl tl ssum'.split())
        K = o['g1n']; XRE = o.get('xre', 2); FW = o.get('g1w', 22) / 10
        pri = []; st = {'n': 0, 'debt': 0}
        def fl(n):
            st['n'] += 1
            k = st['debt']
            if len(g1) == 1 and o.get('t1p', 0) > 1:
                if st['n'] >= o['t1p']: g1.pop(0)()
            if pri and pri[0][0] <= st['n']:
                while pri and pri[0][0] <= st['n'] and k < n:
                    n0 = A.wt; x = pri.pop(0)[1]; self.emit(x); k += A.wt - n0 + (isinstance(x, str) and x.startswith('v_pk'))
            elif g1 and st['n'] % XRE == 0 and not (len(g1) == 1 and o.get('t1p', 0) > 1): return g1.pop(0)()
            if fild and k < n: self.emit(fild.pop(0)); k += o.get('g1d', 16) / 10
            while fill and k < n:
                n0 = A.wt; self.emit(fill.pop(0)); k += A.wt - n0
            st['debt'] = max(0, k - n)
        def stats(i):
            while len(xl) <= i: xrd(len(xl))
            A.wait(lg=xl[i])
            for kk in range(2):
                xa = X + 8 * i + 4 * kk
                A(f'v_mfma_f32_16x16x32_bf16 {v(SQ,4)}, {v(xa,4)}, {v(xa,4)}, {v(SQ,4) if i or kk else "0"}'); fl(FW)
            ssum(i); fl(FW - 1)
        scaled = set()
        def mm(i, kk, t):
            f = 8 * (i & 3) + 4 * kk + t
            while f not in tl: self.emit(fild.pop(0))
            while i >= 4 and t not in scaled: self.emit(pri.pop(0)[1])
            A.wait(lg=max(xl[i], tl[f]))
            c = v(ACC + 4 * t, 4)
            A(f'v_mfma_f32_16x16x32_bf16 {c}, {v(X+8*i+4*kk,4)}, {a(4*f,4)}, {c if i or kk else "0"}')
        AH = o.get('xah', 2)
        for i in range(8 - K):
            while len(xl) < min(8, i + AH + 1 + (K - AH if i == 7 - K else 0)): xrd(len(xl))
            if i not in (3, 4): stats(i)
            for kk in range(2):
                for t in range(4):
                    mm(i, kk, t)
                    if i == 3 and kk:
                        pri.extend((st['n'] + 3, f'v_mul_f32 {v(ACC+4*t+r)}, {v(V_SGN)}, {v(ACC+4*t+r)}') for r in range(4))
                        pri.append((0, lambda t=t: scaled.add(t)))
                    fl(FW)
            if i == 3: stats(3); stats(4)
        for i in range(8 - K, 8): stats(i)
        print('gemm1 stats done: fill', len(fill), len(fild), len(g1), 'n', st['n'])
        T = 13; C = f2u(1/512)
        rs = []
        pri.extend((st['n'] + 3, x) for x in L(f'''
        v_cndmask_b32 {v(SQ)}, {v(SQ)}, {v(SQ+1)}, {s(S_XO,2)}
        v_cndmask_b32 {v(SQ+2)}, {v(SQ+2)}, {v(SQ+3)}, {s(S_XO,2)}
        v_add_f32 {v(SUM)}, {v(SUM)}, {v(SUM+1)}
        v_add_f32 {v(SUM+2)}, {v(SUM+2)}, {v(SUM+3)}
        v_cndmask_b32 {v(SQ)}, {v(SQ)}, {v(SQ+2)}, {s(S_XO+2,2)}
        v_add_f32 {v(SUM)}, {v(SUM)}, {v(SUM+2)}
        v_mul_f32 {v(SQ)}, {C}, {v(SQ)}
        v_mul_f32 {v(SUM)}, {C}, {v(SUM)}
        v_fma_f32 {v(SQ)}, -{v(SUM)}, {v(SUM)}, {v(SQ)}
        v_max_f32 {v(SQ)}, 0, {v(SQ)}
        v_add_f32 {v(SQ)}, {f2u(1e-5)}, {v(SQ)}
        v_rsq_f32 {v(SQ)}, {v(SQ)}
        v_cndmask_b32 {v(SQ)}, 0, {v(SQ)}, {s(S_M,2)}
        ''') + [lambda: rs.append(st['n'])])
        assert not any(isinstance(x, str) and x.startswith(f's_mov_b32 {s(S_M+1)},') for x in fill), 'masks late'
        done = []; ne = 0
        def epi(t):
            q = []
            if o.get('m2') and t < 3: q += [f'v_mul_f32 {v(ACC+4*t+r)}, {v(ACC+4*t+r)}, {v(SUM+r)}' for r in range(4)]
            else: q += [f'v_pk_mul_f32 {v(ACC+4*t+r,2)}, {v(ACC+4*t+r,2)}, {v(SUM+r,2)}' for r in (0, 2)]
            q += [f'v_cvt_pk_bf16_f32 {v(ACC+4*t+r)}, {v(ACC+4*t+2*r)}, {v(ACC+4*t+2*r+1)}' for r in range(2)]
            return q + [f'ds_write_b64 {v(V_EW)}, {v(ACC+4*t,2)} offset:{t*2048}']
        def bc():
            A(f'v_mfma_f32_16x16x4_f32 {v(SUM,4)}, {v(SQ)}, {v(V_FAC)}, 0'); rs.append(st['n']); fl(2 * FW + 1)
        for t in range(4):
            for i in range(8 - K, 8):
                for kk in range(2):
                    mm(i, kk, t)
                    if len(rs) == 1 and st['n'] >= rs[0] + o.get('bcd', 1): fl(FW); bc()
                    else: fl(FW)
                    while len(rs) == 2 and ne < len(done): pri.extend((max(rs[1] + 3, done[ne] + 3), x) for x in epi(ne)); ne += 1
            done.append(st['n'])
        print('gemm1 left: pri', len(pri), 'fill', len(fill), len(fild), len(g1), 'epi', ne)
        assert len(rs) == 2
        self.flush(fild); self.flush(fill)
        self.stamp('gemm1 done')
        while pri: self.emit(pri.pop(0)[1])
        for _ in range(o.get('pp0', 0)): self.emit(post.pop(0))
        for t in range(ne, 4): self.flush(epi(t))
        A.on = False
        for _ in range(o.get('pp1', 0)): self.emit(post.pop(0))
        if o.get('alls') == 3: A.wait(lg=A.nlg); self.stamp('exc wr')
        A.wait(vm=self.xrm, lg=A.nlg)
        if o.get('alls') == 3: self.stamp('xr in')
        A('s_barrier')
        if o.get('alls') == 3: self.stamp('bar')
        A.on = False
        for f in range(8): A(f'ds_read_b128 {v(32+4*f,4)}, {v(V_ER)} offset:{f*1024}')
        n0 = A.wt
        while post and A.wt - n0 < o.get('pp2', 14): self.emit(post.pop(0))
        A.on = True
        for t in range(4):
            A(f's_waitcnt lgkmcnt({6-2*t})')
            for h in range(2):
                A(f'v_mfma_f32_16x16x32_bf16 {v(64+4*t,4)}, {v(R1+4*h,4)}, {v(32+8*t+4*h,4)}, {v(64+4*t,4) if h else "0"}')
                n0 = A.wt
                while post and A.wt - n0 < FW: self.emit(post.pop(0))
            post += [f'v_cvt_pk_bf16_f32 {v(24+4*k+t)}, {v(64+4*t+2*k)}, {v(65+4*t+2*k)}' for k in range(2)]
        print('post left', len(post))
        self.flush(post)
        A.dlg = A.nlg
        for k in range(2): A(f'buffer_store_dwordx4 {v(24+4*k,4)}, {v(V_ZO)}, {s(SRD_WS,4)}, {"0" if k == 0 else s(S_T1)} offen sc1')
        self.stamp('Z stores')
        self.zst = A.nvm
        self.xr = []

    def ygrp(self, var, q1, tt): return Y + 32 * var + 16 * q1 + 8 * tt
    def dgrp(self, var, q1, tt):
        return ZF + 32 * q1 + 8 * self.dord.index((var, tt))
    dord = [(1, 1), (0, 1), (1, 0), (0, 0)]
    def window(self):
        A = self.A; o = self.opt
        A.clk = clk = sched.Clock()
        main = []
        AA = A
        A = lambda t: main.extend(L(t))
        XR = ZF
        SD0, SD1, SA1, SM_ = S_W2S, S_AM0, S_TCH, S_FIX
        AD = Y
        A(f'''
        s_sub_u32 {s(S_T0)}, {s(S_W)}, {s(S_Q)}
        s_and_b32 {s(S_T0)}, {s(S_T0)}, 3
        s_lshr_b32 {s(S_T1)}, {s(S_Q)}, 2
        s_lshl1_add_u32 {s(SD0)}, {s(S_T0)}, {s(S_T1)}
        s_lshl_b32 {s(SD0)}, {s(SD0)}, 11
        s_add_u32 {s(S_T0)}, {s(S_W)}, {s(S_Q)}
        s_sub_u32 {s(S_T0)}, 3, {s(S_T0)}
        s_and_b32 {s(S_T0)}, {s(S_T0)}, 3
        s_xor_b32 {s(S_T1)}, {s(S_T1)}, 1
        s_lshl1_add_u32 {s(SD1)}, {s(S_T0)}, {s(S_T1)}
        s_lshl_b32 {s(SD1)}, {s(SD1)}, 11
        s_add_u32 {s(SM_)}, {s(S_SB)}, 12288
        s_mov_b32 {s(SA1)}, 32768
        s_cmp_eq_u32 {s(S_U)}, 0
        s_cselect_b32 {s(S_T2)}, {s(SA1)}, 0
        s_cselect_b32 {s(SA1)}, 16384, {s(SA1)}
        s_cmp_eq_u32 {s(S_ODD)}, 0
        s_cselect_b32 {s(S_T3)}, 0, {s(S_T2)}
        s_cselect_b32 {s(S_T2)}, {s(S_T2)}, 0
        v_xor_b32 v7, 64, v15
        v_xor_b32 v8, 0x70, v15
        v_xor_b32 v9, 0x30, v15
        v_lshrrev_b32 v10, 1, {v(V_L15)}
        v_sub_u32 v11, 8, {v(V_G)}
        v_and_b32 v11, 7, v11
        v_xor_b32 v11, v11, v10
        v_lshlrev_b32 v11, 4, v11
        v_lshl_add_u32 v10, {v(V_L15)}, 7, v11
        v_xor_b32 v11, 64, v10
        v_cmp_eq_u32 vcc, 0, {v(V_L15)}
        v_mov_b32 v12, {s(S_T2)}
        v_mov_b32 v13, {s(S_T3)}
        v_cndmask_b32 v12, 0, v12, vcc
        v_cndmask_b32 v13, 0, v13, vcc
        s_add_u32 {s(S_T0)}, {s(SD1)}, 4096
        s_and_b32 {s(S_T0)}, {s(S_T0)}, 0x3fff
        s_sub_u32 {s(S_T0)}, {s(S_T0)}, {s(SD1)}
        s_mov_b32 {s(S_T1)}, {(-SPW) & 0xffffffff}
        s_cmp_eq_u32 {s(S_W)}, 0
        s_cselect_b32 {s(S_T1)}, {3*SPW}, {s(S_T1)}
        s_cmp_eq_u32 {s(S_ODD)}, 0
        s_cselect_b32 {s(S_T2)}, {s(S_T0)}, {s(S_T1)}
        s_cselect_b32 {s(S_T3)}, {s(S_T1)}, {s(S_T0)}
        v_mov_b32 v6, v10
        s_mov_b64 exec, 0xffff
        v_add_u32 v10, {s(S_T2)}, v10
        v_add_u32 v6, {s(S_T3)}, v6
        s_mov_b64 exec, -1
        ''')
        for rt in range(4):
            pat = [15, 7, 8, 9, 10 if rt < 2 else 6, 11]
            for side in range(2):
                d = S_T0 + side
                if rt & 1: A(f's_add_u32 {s(S_T2)}, {s(SD1 if side else SD0)}, {s(SA1)}')
                A(f's_add_u32 {s(S_T3)}, {s(SM_)}, {(rt&1)*4096+side*2048}')
                A(f's_cmp_eq_u32 {s(S_ODD)}, {rt>>1}')
                A(f's_cselect_b32 {s(d)}, {s(S_T2 if rt & 1 else (SD1 if side else SD0))}, {s(S_T3)}')
            for n in range(6):
                if n >= 2 and not rt & 1: A(f'v_add3_u32 {v(AD+6*rt+n)}, {v(pat[n])}, {s(S_T1)}, {v(12+(rt>>1))}')
                else: A(f'v_add_u32 {v(AD+6*rt+n)}, {s(S_T0 + (n >= 2))}, {v(pat[n])}')
        A = AA
        m2 = []; ex = False
        for x in main:
            if ex or x.startswith('s_cselect'): m2[-1] += '\n' + x
            else: m2.append(x)
            if x.startswith('s_mov_b64 exec'): ex = not x.endswith('-1')
        main = m2
        def xin():
            A.wait(vm=self.xrm); A('s_barrier')
        pre = []
        if o.get('xrp') and not o.get('xrw'): pre = main; main = [xin]
        xl = {}
        for rt in range(4):
            main += [f'ds_read_b128 {v(XR+16*rt+4*n,4)}, {v(AD+6*rt+n)}' for n in range(4)]
            main += [f'ds_read_u16 {v(AD+6*rt+4+q1)}, {v(AD+6*rt+4+q1)}' for q1 in range(2)]
            main.append(lambda rt=rt: (xl.__setitem__(rt, A.nlg), rt and A.wait(lg=xl[rt-1])))
        SR = 6
        (pre if pre else main).extend(L(f'''
        v_mov_b32 v6, 0xbf80
        v_mov_b32 v7, -1.0
        v_cndmask_b32 v6, v6, v7, {s(S_XO,2)}
        v_cndmask_b32 v6, 0, v6, {s(S_M,2)}
        v_cndmask_b32 {v(V_SEL+2)}, v6, 0, {s(S_XO+2,2)}
        v_cndmask_b32 {v(V_SEL+3)}, 0, v6, {s(S_XO+2,2)}
        v_mov_b32 {v(V_SEL)}, 0
        v_mov_b32 {v(V_SEL+1)}, 0
        v_mov_b32 {v(V_SEL+4)}, 0
        v_mov_b32 {v(V_SEL+5)}, 0
        v_and_b32 v6, 0xffff, {v(V_SEL+2)}
        v_and_b32 v8, 0xffff0000, {v(V_SEL+3)}
        v_xor_b32 v9, {v(V_SEL+2)}, {v(V_SEL+3)}
        v_xor_b32 v9, v9, v6
        v_xor_b32 v9, v9, v8
        v_mov_b32 v7, 0
        v_mov_b32 v10, v8
        v_mov_b32 v11, v9
        v_mov_b32 v12, v6
        v_mov_b32 v13, 0
        v_cmp_eq_u32 vcc, 0, {v(V_G)}
        s_cmp_eq_u32 {s(S_W)}, 0 @@ s_cselect_b64 {s(S_FIX,2)}, vcc, 0
        '''))
        main = pre + main
        def xfree():
            A.wait(lg=xl[3]); A('s_barrier'); self.xfree = True
        self.xfree = False
        main.append(xfree)
        main.append(f's_mov_b32 {s(S_T0)}, 0xffff')
        main += [f'v_bfi_b32 {v(XR+16*rt+8+4*q1)}, {s(S_T0)}, {v(AD+6*rt+4+q1)}, {v(XR+16*rt+8+4*q1)}' for rt in range(4) for q1 in range(2)]
        sel = lambda var, et: SR + 4 * et if var else V_SEL + 2 - 2 * et
        xf = lambda rt, var, q1: XR + 16 * rt + 4 * (2 * var + q1)
        G8 = [(q1, var, tt) for q1 in range(2) for var, tt in self.dord]
        def smm(d, var, et, x, c): return f'v_mfma_f32_16x16x32_bf16 {v(d+4*et,4)}, {v(sel(var,et),4)}, {v(x,4)}, {v(d+4*et,4) if c else "0"}'
        for q1, var, tt in G8: main += [smm(self.ygrp(1-var,q1,tt), 1-var, et, xf(tt,1-var,q1), 0) for et in range(2)]
        main += [f'v_lshlrev_b32 {v(V_FIX+rt)}, 16, {v(xf(rt,0,0))}' for rt in range(4)]
        main += [f'v_and_b32 {v(r)}, 0x7fff7fff, {v(r)}' for r in (V_SEL + 2, V_SEL + 3, 6, 8, 9, 10, 11, 12)]
        for q1, var, tt in G8: main += [smm(self.ygrp(1-var,q1,tt), var, et, xf(2+tt,var,q1), 1) for et in range(2)]
        for k, (q1, var, tt) in enumerate(G8):
            y = self.ygrp(1 - var, q1, tt); x = xf(2 + tt, var, q1)
            main += [f'v_cvt_pk_bf16_f32 {v(x+i)}, {v(y+2*i)}, {v(y+2*i+1)}' for i in range(4)]
            main += [smm(y, 1-var, et, xf(tt,1-var,q1), 0) for et in range(2)]
            main += [f'v_accvgpr_write_b32 {a(AD_+4*k+i)}, {v(x+i)}' for i in range(4)]
        EPT = o.get('ept')
        if EPT is None: main += L(f'''
        s_lshr_b32 {s(S_T0)}, {s(S_U)}, 3
        s_lshl2_add_u32 {s(S_T0)}, {s(S_T0)}, {s(S_W)}
        s_lshl_b32 {s(S_T0)}, {s(S_T0)}, 13
        s_add_u32 {s(S_T0)}, {s(S_T0)}, {F1}
        v_add_u32 v15, {s(S_T0)}, {v(V_L128)}
        s_lshl2_add_u32 {s(S_T0)}, {s(S_U)}, {s(S_W)}
        s_lshl_b32 {s(S_T0)}, {s(S_T0)}, 14
        s_and_b32 {s(S_T3)}, {s(S_Q)}, {4 if o.get('zc') else 0}
        s_lshl_b32 {s(S_T3)}, {s(S_T3)}, 19
        s_add_u32 {s(S_T0)}, {s(S_T0)}, {s(S_T3)}
        v_add_u32 {v(V_ZA)}, {s(S_T0)}, {v(V_L16)}
        v_add_u32 {v(V_ZA+1)}, 8192, {v(V_ZA)}
        s_and_b32 {s(S_T3)}, {s(S_Q)}, 3
        s_lshl_b32 {s(S_T3)}, {s(S_T3)}, 11
        s_lshl1_add_u32 {s(S_AM0)}, {s(S_T3)}, {s(S_T0)}
        ''')
        else: main += L(f's_and_b32 {s(S_T3)}, {s(S_Q)}, 3\ns_lshl_b32 {s(S_T3)}, {s(S_T3)}, 11')
        main += L(f'''
        s_lshl_b32 {s(S_T1)}, {s(S_ODD)}, 11
        s_add_u32 {s(S_T1)}, {s(S_T1)}, {s(S_HB)}
        v_add_u32 v10, {s(S_T1)}, {v(V_L16)}
        v_xor_b32 v11, 2048, v10
        s_xor_b32 {s(S_T1)}, {s(S_W)}, {s(S_C)}
        s_lshl_b32 {s(S_T1)}, {s(S_T1)}, 14
        v_xor_b32 v8, {s(S_T1)}, v10
        v_xor_b32 v9, {s(S_T1)}, v11
        s_lshl3_add_u32 {s(S_RR)}, {s(S_U)}, {s(S_Q)}
        s_lshl2_add_u32 {s(S_RR)}, {s(S_RR)}, {s(S_W)}
        s_lshl_b32 {s(S_RR)}, {s(S_RR)}, 14
        s_add_u32 {s(S_RR)}, {s(S_RR)}, {WS_P}
        s_andn2_b32 {s(S_FLA)}, {s(S_RR)}, {(3<<16)|(1<<14)}
        s_add_u32 {s(S_FLA)}, {s(S_FLA)}, 7168
        v_readfirstlane_b32 {s(S_LT)}, {v(V_TAG)}
        s_and_b32 {s(S_LT)}, {s(S_LT)}, 0xbfffbfff
        s_lshl_b32 {s(S_T0)}, {s(S_U)}, {(7, 10, 10, 12, 12)[o.get('fxp', 0)]}
        s_add_u32 {s(S_T0)}, {s(S_T0)}, {(FX, FX2, FX2, FX3, FX3)[o.get('fxp', 0)]}
        v_and_b32 v6, 7, {v(V_LANE)}
        v_lshlrev_b32 v6, {7 if o.get('fxp') else 3}, v6
        ''')
        NBD = o.get('nbd', 14); PE = o.get('pe', 1)
        WR, WL, WT, F1T, W0 = o.get('wr', 64), o.get('wl', 700), o.get('wt', 128), o.get('f1t', 1000), o.get('w0', 0)
        dq = []; tq = []; cq = []; dt = {}; tt_ = {}
        for kind, k, ops in self.pipe: {'dma': dq, 'tr': tq, 'cs': cq}[kind].extend((kind, k, f) for f in ops)
        for _ in range(o.get('wpre', 0)): dt[dq.pop(0)[1]] = o.get('wpl', -300)
        nxt = W0; flagged = False; pm = None; nd = 0; chk = False
        def epoll():
            nonlocal pm
            A(f'''
            s_lshr_b32 {s(S_FAST)}, {s(S_U)}, 3
            s_lshl2_add_u32 {s(S_FAST)}, {s(S_FAST)}, {s(S_W)}
            s_lshl_b32 {s(S_FAST)}, {s(S_FAST)}, 13
            s_add_u32 {s(S_FAST)}, {s(S_FAST)}, {F1}
            buffer_load_dwordx2 {v(V_ZA,2)}, {v(V_L128)}, {s(SRD_WS,4)}, {s(S_FAST)} offen sc1
            '''); pm = A.nvm
            print('window: poll at', clk.t, 'main left', len(main), 'dq', len(dq))
        def echeck():
            nonlocal chk
            assert self.xfree
            chk = True
            print('window: check at', clk.t, 'main left', len(main), 'dq', len(dq))
            if o.get('ect'): self.stamp('p2 prepoll')
            Lp = A.newlabel('poll'); D = A.newlabel('polld')
            A.wait(vm=pm)
            A.on = False
            A(f'v_cmp_ne_u64 vcc, {v(V_ZA,2)}, {v(V_TAG,2)}\ns_mov_b32 {s(S_CNT)}, 0x20000\ns_cbranch_vccz {D}')
            A.snap()
            A.label(Lp)
            A(f'''
            buffer_load_dwordx2 {v(V_ZA,2)}, {v(V_L128)}, {s(SRD_WS,4)}, {s(S_FAST)} offen sc1
            s_sub_u32 {s(S_CNT)}, {s(S_CNT)}, 1
            s_cbranch_scc1 {D}
            s_waitcnt vmcnt(0)
            v_cmp_ne_u64 vcc, {v(V_ZA,2)}, {v(V_TAG,2)}
            s_cbranch_vccnz {Lp}
            ''')
            A.label(D)
            A.unsnap()
            A(f's_lshl2_add_u32 {s(S_AM0)}, {s(S_U)}, {s(S_W)}\ns_lshl_b32 {s(S_AM0)}, {s(S_AM0)}, 14')
            if o.get('zt'):
                A(f's_and_b32 {s(S_FAST)}, {s(S_Q)}, 3\ns_lshl_b32 {s(S_FAST)}, {s(S_FAST)}, 12\ns_add_u32 {s(S_FAST)}, {s(S_FAST)}, {s(S_AM0)}')
                self.touch(191, SRD_WS, S_FAST, 32, ' sc1')
            A.on = True
            A(f'v_add_u32 {v(V_ZA)}, {s(S_AM0)}, {v(V_L16)}\nv_add_u32 {v(V_ZA+1)}, 8192, {v(V_ZA)}')
            if o.get('ect'): self.stamp('p2 checked')
        while main or (dq and dq[0][1] < NBD) or not flagged:
            T = clk.t
            k = dq[0][1] if dq else 99
            if not flagged and T >= F1T:
                self.stamp('pre F1')
                A.wait(vm=self.zst)
                self.setflag(S_F1, ' sc1')
                self.stamp('F1 set')
                if o.get('fxp') in (2, 4): self.fxst(S_BG, V_ZA)
                flagged = True
                self.flush(self.xr)
                for _ in range(o.get('wq2', 0)):
                    k = dq[0][1]; assert k < 3 or (k < 5 and self.xfree); self.emit(dq.pop(0)[2]); nxt = max(nxt, T) + WR; dt[k] = nxt
            elif EPT is not None and flagged and pm is None and T >= EPT: epoll()
            elif EPT is not None and pm is not None and not chk and T >= o.get('ect', 99999): echeck()
            elif nd < o.get('wq', 0): assert k < 3; self.emit(dq.pop(0)[2]); nd += 1; dt[k] = o.get('wql', W0)
            elif main and main[0] is xin and not flagged and o.get('xrp') == 2: clk.t += 8
            elif k < NBD and T >= nxt and (k < 3 or (self.xfree if k < 5 else (k - 5) in tt_ and T >= tt_[k - 5] + WT)) and not (k >= NBD - PE and (main or not flagged)):
                if k == NBD - PE and pm is None and EPT is None:
                    A(f'buffer_load_dwordx2 v[12:13], v15, {s(SRD_WS,4)}, 0 offen{self.plf}'); pm = A.nvm
                if k >= 5: A.wait(lg=self.w1l[k - 5])
                self.emit(dq.pop(0)[2]); nxt = max(nxt, T - 32) + WR
                if not (dq and dq[0][1] == k):
                    dt[k] = nxt
                    if o.get('fine') == 3 and k in (0, 2, 4, 5, 6, 7, 8, 9, 10, 11, 12): self.stamp(f'wd{k} m{len(main)} T{T}')
            elif tq[0][1] in dt and tq[0][1] < 14 and T >= dt[tq[0][1]] + WL:
                k = tq[0][1]; self.emit(tq.pop(0)[2])
                if tq[0][1] != k: tt_[k] = T
            elif cq[0][1] in tt_ and T >= tt_[cq[0][1]] + WT and clk.pipe <= T + 4 and not (main and o.get('mp', 1)): self.emit(cq.pop(0)[2])
            elif main: self.emit(main.pop(0))
            else: clk.t += 8
        print('window: est', clk.t, 'tr left', len(tq), 'cs left', len(cq))
        A.clk = None
        self.post = dq + tq + cq
        if EPT is not None:
            if not o.get('ect'): self.stamp('p2 prepoll')
            if pm is None: epoll()
            if not chk: echeck()
            self.stamp('p2 polled')
            return
        self.stamp('p2 prepoll')
        if pm is None:
            A(f'buffer_load_dwordx2 v[12:13], v15, {s(SRD_WS,4)}, 0 offen{self.plf}'); pm = A.nvm
        Lp = A.newlabel('poll'); D = A.newlabel('polld')
        if o.get('tpl'):
            A('s_barrier')
            self.g2touch(2, o['tpl'])
            if o.get('ts') == 3: self.smalltouch(S_RR + 2)
        self.site('B')
        A.wait(vm=pm)
        A.on = False
        A(f'v_cmp_ne_u64 vcc, v[12:13], {v(V_TAG,2)}\ns_mov_b32 {s(S_CNT)}, 0x20000\ns_cbranch_vccz {D}')
        A.snap()
        A.label(Lp)
        A(f'''
        buffer_load_dwordx2 v[12:13], v15, {s(SRD_WS,4)}, 0 offen sc1
        s_sub_u32 {s(S_CNT)}, {s(S_CNT)}, 1
        s_cbranch_scc1 {D}
        s_waitcnt vmcnt(0)
        v_cmp_ne_u64 vcc, v[12:13], {v(V_TAG,2)}
        s_cbranch_vccnz {Lp}
        ''')
        A.label(D)
        A.unsnap()
        self.stamp('p2 polled')

    def p23(self):
        A = self.A; o = self.opt
        if o.get('idle'): A(f's_sleep {o["idle"]}')
        A.on = True
        dr = str(o.get('drop', ''))
        A.drop = lambda t: ('d' in dr and t.endswith(' lds')) or ('t' in dr and t.startswith('ds_read_b64_tr')) or ('w' in dr and t.startswith('ds_write')) or ('h' in dr and t.startswith('ds_read_b128'))
        zm = {}
        def zld(q1, ks):
            if ks or q1: A(f's_add_u32 {s(S_T3)}, {s(S_T3)}, 2048\ns_and_b32 {s(S_T3)}, {s(S_T3)}, 0x1800')
            for h in range(2):
                A(f'buffer_load_dwordx4 {v(ZF+32*q1+8*ks+4*h,4)}, {v(V_ZA+q1)}, {s(SRD_WS,4)}, {s(S_T3)} offen offset:{h*1024}{self.zldf}')
            zm[q1, ks] = A.nvm
        for k in range(6):
            zld(k >> 2, k & 3)
            if k == 3: A(f'buffer_load_dwordx2 v[6:7], v6, {s(SRD_WS,4)}, {s(S_T0)} offen{self.fxf}')
        if 'ept' in o: self.site('B')
        NA = 10
        self.debt = 0; self.tick = 0; self.nxt = o.get('dma0', 16); self.blk = -1; self.b4 = False; self.hold = False
        RATE, LAT, SLACK, TL = o.get('rate', 40) / 10, o.get('lat', 44), o.get('slack', 8), o.get('tl', 8)
        self.lat = LAT
        dq = []; tq = []; cq = []; dt = {}; tt_ = {}
        for kind, k, f in self.post: {'dma': dq, 'tr': tq, 'cs': cq}[kind].append((kind, k, f))
        self.dfree = 0
        pend_d = {k for _, k, _ in dq}; pend_t = {k for _, k, _ in tq}
        for k in range(16):
            if k not in pend_d: dt[k] = -999
            if k not in pend_t: tt_[k] = -999
        KO = [int(ch) for ch in str(o.get('ko', 123456))]
        self.items = [(0, 0), (1, 0)] + [(0, ks) for ks in KO] + [(1, ks) for ks in KO]
        P4O = [(x[0], int(x[1]), [int(ch) for ch in x[2:]]) for x in o['p4o'].split('.')] if 'p4o' in o else None
        if P4O: self.items = [(0, 0), (1, 0)] + [(h, ks) for _, h, kl in P4O for ks in kl]
        assert len(set(self.items)) == 14
        dq += [('x', 16, x) for x in self.w2_setup()]
        for b in range(14): dq += [('dma', 16 + b, f) for f in self.w2_dma(b, (16 + b) % 5)]
        tq += [('x', 16, x) for x in self.w2_setup_r()]
        self.trl = {}
        for b in range(14): tq += [('tr', 16 + b, f) for f in self.w2_tr(b, (16 + b) % 5)]
        def ins(item, f, tag=-1):
            p = min([n for n, x in enumerate(dq) if x[1] >= item] + [len(dq)])
            dq.insert(p, ('x', tag, f))
        if self.w1t < 56: ins(0, lambda: self.w1touch(self.w1t, 56))
        if 't3' in o:
            t3 = [int(x) for x in str(o['t3']).split('.')]
            for k, p in enumerate(t3): ins(p, lambda k=k: self.w2touch(k if len(t3) > 1 else None))
        if 't4' in o:
            def t4():
                if o.get('fs'): self.stamp('t4a')
                if o.get('ts', 1) == 1: self.smalltouch(S_RR + 2)
                if o.get('fs'): self.stamp('t4b')
                if o.get('tw2') != 1 and o.get('tpl') != 'f': self.g2touch(2)
                if o.get('fs'): self.stamp('t4c')
                if o.get('ptt4'): self.ptouch((o['ptt4'],))
                if o.get('trs') == 1: self.touch(191, SRD_WS, S_RR, 56, ' sc1')
                self.nxt = max(self.nxt, self.tick) + o.get('t4gap', 60)
            ins(o['t4'], t4, -2)
        if o.get('trs', 0) > 1: ins(o['trs'], lambda: self.touch(191, SRD_WS, S_RR, 56, ' sc1'))
        S_PQ, S_PS = S_RR, S_RR + 1
        ZC = 0
        def trlg(k): return self.w1l[self.w1order[k]] if k < 16 else self.trl[k]
        def d_ok(force=False):
            if not dq: return False
            kind, k, f = dq[0]
            if kind == 'x': return force or k > -2 or self.tick >= (o.get('t4t', 40) if k == -2 else 10)
            if kind == 'st': return force or self.tick >= self.nxt
            dep = k < 5 or ((k - 5) in tt_ and (force or self.tick >= tt_[k - 5] + TL))
            return dep and (force or (self.tick >= self.nxt and not self.hold))
        def d_pop():
            kind, k, f = dq.pop(0)
            if kind == 'st': self.nxt = max(self.nxt, self.tick - SLACK) + o.get('srate', 30) / 10
            if kind == 'dma':
                if k >= 5: A.wait(lg=trlg(k - 5))
                self.nxt = max(self.nxt, self.tick - SLACK) + RATE
                if not (dq and dq[0][:2] == ('dma', k)): dt[k] = self.tick
            self.emit(f)
        def t_ok(force=False):
            if not tq: return False
            kind, k, f = tq[0]
            if k not in dt: return False
            if kind == 'x': return True
            return (k < 14 + self.dfree if k < 16 else self.blk > k - 16) and (force or (self.tick >= dt[k] + self.lat and (k < 16 or self.tick >= o.get('g0', 0))))
        def t_pop():
            kind, k, f = tq.pop(0)
            self.emit(f)
            if kind == 'tr' and not (tq and tq[0][1] == k): tt_[k] = self.tick
        def c_ok(): return cq and cq[0][1] in tt_ and self.tick >= tt_[cq[0][1]] + TL
        def ensure(k):
            while k not in tt_:
                if t_ok(True): t_pop()
                else:
                    assert d_ok(True), (k, dq[:1], tq[:1]); d_pop()
        self.ensure = ensure; self.dq = dq; self.d_pop = d_pop
        def fill(kmax, qs, k=0):
            k += self.debt; self.debt = 0
            while k < kmax:
                n0 = A.wt
                if d_ok(): d_pop()
                else:
                    for q in qs:
                        if q is None:
                            if t_ok(): t_pop(); break
                        elif q: self.emit(q.pop(0)); break
                    else: break
                k += A.wt - n0
            self.debt = max(0, k - kmax)
        def extra(kmax, qs):
            if mq: mq.pop(0)()
            elif c_ok(): self.emit(cq.pop(0)[2])
            else: return
            self.tick += 1
            fill(kmax, qs)
        def grp(n, rt): return self.ygrp(n >> 1, n & 1, rt) if rt < 2 else self.dgrp(n >> 1, n & 1, rt - 2)
        SQ = {rt: grp(0, rt) + 4 for rt in range(4)}; SM = {rt: grp(2, rt) + 4 for rt in range(4)}
        SP = o.get('sp')
        if SP: SQ = {rt: grp(0, rt | 2) + 2 * (rt & 2) for rt in range(4)}; SM = {rt: grp(2, rt | 2) + 2 * (rt & 2) for rt in range(4)}
        mq = []
        slots = [TB + 56, TB + 60]
        def dadd(q1):
            for k, (var, tt) in enumerate(self.dord):
                d = self.dgrp(var, q1, tt); y = self.ygrp(1 - var, q1, tt)
                for et in range(2):
                    A(f'v_mfma_f32_16x16x32_bf16 {v(d+4*et,4)}, {v(V_SEL+2-2*et,4)}, {a(AD_+16*q1+4*k,4)}, {v(y+4*et,4)}')
                    self.tick += 1
                    fill(P2BG, [vq, None])
            self.dfree = q1 + 1
        def swap0(q1):
            def f():
                LS = A.newlabel('nsw')
                A(f's_cmp_lg_u32 {s(S_U)}, 0\ns_cbranch_scc1 {LS}')
                A.snap()
                A('s_mov_b32 exec_lo, 0x10001\ns_mov_b32 exec_hi, 0x10001')
                for j in range(8): A(f'v_swap_b32 {v(self.ygrp(1,q1,0)+j)}, {v(self.dgrp(1,q1,0)+j)}')
                if HB and q1:
                    A(f's_or_b32 {s(S_T0)}, s2, {s(S_W)}\ns_cselect_b64 exec, 0, 1\ns_mov_b32 {s(S_T0)}, {FE}')
                    A(f'buffer_store_dwordx2 {v(V_TAG,2)}, off, {s(SRD_WS,4)}, {s(S_T0)} sc1')
                A('s_mov_b64 exec, -1' if HB else 's_mov_b64 exec, -1\ns_nop 3')
                A.label(LS)
                A.unsnap()
            return f
        def conv(n, rt):
            g = grp(n, rt)
            ln = []
            if n == 0: ln.append(f'v_cndmask_b32 {v(g)}, {v(g)}, {v(V_FIX+rt)}, {s(S_FIX,2)}')
            if SP:
                g0 = grp(n, rt & 1); d = g0 + 2 * (rt & 2); r0 = rt & 1
                ln += [f'v_cvt_pk_bf16_f32 {v(d+j)}, {v(g+2*j)}, {v(g+2*j+1)}' for j in range(4)]
                ln.append(f'ds_write_b128 {v(10+(rt>>1))}, {v(d,4)} offset:{n*4096+(rt&1)*1024}')
                if n == 2 and rt & 2: ln += [f'v_mov_b64 {v(SM[r0],2)}, 0', f'v_mov_b64 {v(SM[r0]+2,2)}, 0']
                def sq(r, gg): mq.append(lambda: A(f'v_mfma_f32_16x16x32_bf16 {v(SQ[r],4)}, {v(gg,4)}, {v(gg,4)}, {"0" if n == 0 else v(SQ[r],4)}'))
                def sm2(gg):
                    A(f'v_smfmac_f32_16x16x64_bf16 {v(SM[r0],4)}, {v(V_ONES,4)}, {v(gg,8)}, {v(V_IDX)}')
                    slots.extend([gg, gg + 4])
                def rel2():
                    if self.tick >= o.get('wc0', 0): self.nxt += o.get('wc', 33) / 10
                    if n and not rt & 2: sq(rt, d)
                    if not rt & 2: return
                    if n & 1: slots.extend([g, g + 4])
                    if n == 0: sq(r0, g0)
                    sq(rt, d)
                    if n == 2: mq.append(lambda: sm2(grp(0, r0)))
                    if n: mq.append(lambda: sm2(g0))
                return ln + [rel2]
            ln += [f'v_cvt_pk_bf16_f32 {v(g+j)}, {v(g+2*j)}, {v(g+2*j+1)}' for j in range(4)]
            if o.get('w64'):
                ln += [f'ds_write_b64 {v(10+(rt>>1))}, {v(g+2*j,2)} offset:{n*4096+(rt&1)*1024+8*j}' for j in range(2)]
            else: ln.append(f'ds_write_b128 {v(10+(rt>>1))}, {v(g,4)} offset:{n*4096+(rt&1)*1024}')
            def sm(gg, first):
                A(f'v_mfma_f32_16x16x32_bf16 {v(SM[rt],4)}, {v(V_ONES,4)}, {v(gg,4)}, {"0" if first else v(SM[rt],4)}')
                slots.append(gg)
            def rel():
                if self.tick >= o.get('wc0', 0): self.nxt += o.get('wc', 33) / 10
                if n & 1: slots.append(g + 4)
                mq.append(lambda: A(f'v_mfma_f32_16x16x32_bf16 {v(SQ[rt],4)}, {v(g,4)}, {v(g,4)}, {"0" if n == 0 else v(SQ[rt],4)}'))
                if n == 2: mq.append(lambda: sm(grp(0, rt), True))
                if n: mq.append(lambda: sm(g, False))
            ln.append(rel)
            return ln
        HB = o.get('hb', 0)
        xcc = L(f'''
        v_subrev_u32 v6, {s(S_FAST)}, v6
        v_cmp_ne_u64 vcc, v[6:7], {v(V_TAG,2)}
        s_and_b32 {s(S_T0)}, {s(S_Q)}, 4
        s_lshr_b32 {s(S_FAST)}, vcc_lo, {s(S_T0)} @@ s_and_b32 {s(S_FAST)}, {s(S_FAST)}, 15 @@ s_cselect_b32 {s(S_FAST)}, 0, 1
        ''')
        def wmark(): self.hwm = A.nlg
        def half(q1):
            if HB: return ([swap0(q1)] + conv(q1, 1) + conv(q1, 3) + conv(2 + q1, 1) + conv(2 + q1, 3)
                    + conv(q1, 0) + conv(q1, 2) + conv(2 + q1, 0) + conv(2 + q1, 2) + ([] if q1 else [wmark] + xcc))
            return (conv(q1, 1) + conv(q1, 3) + conv(2 + q1, 1) + conv(2 + q1, 3)
                    + conv(q1, 0) + conv(q1, 2) + [swap0(q1)] + conv(2 + q1, 0) + conv(2 + q1, 2))
        def take(q, kmax):
            k = 0
            while q and k < kmax:
                n0 = len(A.lines); self.emit(q.pop(0)); k += len(A.lines) - n0
            return k
        P2BG = o.get('p2bg', 2)
        vq = []
        if HB: A(f's_getreg_b32 {s(S_FAST)}, hwreg(HW_REG_XCC_ID)\ns_and_b32 {s(S_FAST)}, {s(S_FAST)}, 15')
        n0 = A.wt
        while A.wt - n0 < o.get('shw', 100):
            if t_ok(): t_pop()
            elif cq and cq[0][1] in tt_: self.emit(cq.pop(0)[2]); A.wt += 4
            elif d_ok() and dq[0][0] == 'x': d_pop()
            else: break
        zs = set(); ZSA = o.get('zsa', 0)
        def zsw(k):
            if k in zs or k > 7: return
            zs.add(k); z = ZF + 8 * k
            A.wait(vm=zm[k >> 2, k & 3])
            if k == 0: self.stamp('Z first')
            A(f'v_swap_b32 {v(z+2)}, {v(z+4)}')
            A(f'v_swap_b32 {v(z+3)}, {v(z+5)}')
        for q1 in range(2):
            if q1: dadd(0); vq += half(0)
            for ks in range(4):
                z = ZF + 32 * q1 + 8 * ks
                zsw(4 * q1 + ks)
                n = 0
                for tt in (1, 0):
                    for var in range(2):
                        for et in range(2):
                            acc = self.ygrp(var, q1, tt) + 4 * et
                            A(f'v_mfma_f32_16x16x32_bf16 {v(acc,4)}, {v(z+4*et,4)}, {v(TB+16*ks+8*tt+4*var,4)}, {v(acc,4)}')
                            n += 1; self.tick += 1
                            if n == 8 - ZSA and ks < 3 and 4 * q1 + ks + 1 >= o.get('zs0', 1) and ZSA: zsw(4 * q1 + ks + 1)
                            elif q1 == 0 and ks < 2 and n == 1: zld(1, 2 + ks)
                            elif q1 == 0:
                                if (ks, n) > (1, 1): fill(P2BG, [None])
                            else:
                                fill(o.get('p2v', 3), [vq])
                                if mq and n % 2 == 0: extra(2, [vq])
        self.stamp('Z landed')
        if not HB: dadd(1)
        while vq:
            if mq: extra(2, [vq])
            else: take(vq, 2)
        A.wait(lg=self.hwm if HB else A.nlg)
        A('s_barrier')
        self.stamp('half 0')
        free = [TB + 4 * k for k in range(14)]
        acc = {}
        for t in range(4):
            for rt in range(4 if t < 3 else 2): acc[t, rt] = free.pop(0)
        started = set()
        def mm(t, rt, b, frag):
            c = v(acc[t, rt], 4)
            A(f'v_mfma_f32_16x16x32_bf16 {c}, {a(16*b+4*t,4)}, {v(frag,4)}, {c if (t, rt) in started else "0"}')
            started.add((t, rt))
        fr = {}; fl_ = {}
        NL = o.get('nl', 4); GO = o.get('go')
        LB = list(range(16 - NL, 16))
        RD = [(b, rt) for b in range(16) for rt in range(4)]
        if GO: RD = RD[:64 - 4 * NL] + [(b, rt) for rt in range(4) for b in (LB[::-1] if rt & 1 else LB)]
        hip = [0, 0]
        def hrd(k):
            ops = []
            for b, rt in RD[4 * k:4 * k + 4]:
                q1, ip, var = b >> 3, (b >> 1) & 3, b & 1
                for r in ((0, 1) if 4 * k < 64 - 4 * NL or not GO else (rt >> 1,)):
                    if hip[r] != ip: ops.append(f'v_xor_b32 {v(8+r)}, {(ip^hip[r])<<14}, {v(8+r)}'); hip[r] = ip
                def f(b=b, rt=rt, var=var, q1=q1):
                    fr[b, rt] = slots.pop(0)
                    A(f'ds_read_b128 {v(fr[b,rt],4)}, {v(8+(rt>>1))} offset:{(2*var+q1)*4096+(rt&1)*1024}')
                    fl_[b, rt] = A.nlg
                ops.append(f)
            return ops
        if not HB: vq = half(1)
        while len(slots) < 4: extra(0, [])
        if HB:
            vq += hrd(0); dadd(1); self.flush(vq)
            while mq: extra(2, [None])
            if o.get('fs'): self.stamp('dadd1')
            vq += half(1); self.emit(vq.pop(0))
            if o.get('fs'): self.stamp('br')
        else: self.flush(hrd(0))
        while mq: extra(2, [None, vq] if o.get('tprio', 1) else [vq])
        if not HB: take(vq, o.get('h1pre', 6))
        if not HB: A(f'''
        s_getreg_b32 {s(S_T0)}, hwreg(HW_REG_XCC_ID)
        s_and_b32 {s(S_T0)}, {s(S_T0)}, 15
        v_subrev_u32 v6, {s(S_T0)}, v6
        v_cmp_ne_u64 vcc, v[6:7], {v(V_TAG,2)}
        s_and_b32 {s(S_T0)}, {s(S_Q)}, {4 if o.get('npl', 3) < 4 else 0}
        s_lshr_b32 {s(S_FAST)}, vcc_lo, {s(S_T0)}
        s_and_b32 {s(S_FAST)}, {s(S_FAST)}, {15 if o.get('npl', 3) < 4 else 255}
        s_cselect_b32 {s(S_FAST)}, 0, 1
        ''')
        if not HB:
            LE = A.newlabel('noe')
            A(f'''
            s_or_b32 {s(S_T0)}, s2, {s(S_W)}
            s_cmp_lg_u32 {s(S_T0)}, 0
            s_cbranch_scc1 {LE}
            ''')
            A.snap()
            A(f's_mov_b32 {s(S_T0)}, {FE}')
            self.setflag(S_T0, ' sc1')
            A.label(LE); A.unsnap()
        st = L(f'''
        s_lshl_b32 {s(S_T0)}, {s(S_ODD)}, 10
        s_lshl3_add_u32 {s(S_T0)}, {s(S_W)}, {s(S_T0)}
        s_add_u32 {s(S_T0)}, {s(S_T0)}, {L_STAT}
        v_lshl_add_u32 v6, {v(V_L15)}, 5, {s(S_T0)}
        v_xor_b32 v7, 1024, v6
        ''')
        SO = dict(SM)
        if SP:
            SO = {rt: SM[rt | 2] + 2 - (rt & 2) for rt in range(4)}
            for r in (1, 0):
                for rt in (r, r + 2): st += [f'v_cndmask_b32 {v(SQ[rt])}, {v(SQ[rt])}, {v(SQ[rt]+1)}, {s(S_XO,2)}',
                   f'v_cndmask_b32 {v(SQ[rt]+2)}, {v(SQ[rt]+2)}, {v(SQ[rt]+3)}, {s(S_XO,2)}',
                   f'v_cndmask_b32 {v(SO[rt]+1)}, {v(SQ[rt])}, {v(SQ[rt]+2)}, {s(S_XO+2,2)}']
                st += [f'v_add_f32 {v(SO[r+2])}, {v(SM[r]+2)}, {v(SM[r]+3)}', f'v_add_f32 {v(SO[r])}, {v(SM[r])}, {v(SM[r]+1)}']
        for rt in range(0 if SP else 4):
            st += [f'v_cndmask_b32 {v(SM[rt]+1)}, {v(SQ[rt])}, {v(SQ[rt]+1)}, {s(S_XO,2)}',
                   f'v_cndmask_b32 {v(SM[rt]+2)}, {v(SQ[rt]+2)}, {v(SQ[rt]+3)}, {s(S_XO,2)}',
                   f'v_cndmask_b32 {v(SM[rt]+1)}, {v(SM[rt]+1)}, {v(SM[rt]+2)}, {s(S_XO+2,2)}']
        st.append(f's_mov_b64 exec, {s(S_M,2)}\n' + '\n'.join(f'ds_write_b64 {v(6+(rt>>1))}, {v(SO[rt],2)} offset:{(rt&1)*512}' for rt in range(4)) + '\ns_mov_b64 exec, -1')
        def mark(): self.stm = A.nlg
        st.append(mark)
        SB0, SB1 = SQ[2], SQ[3]
        BF = [SM[rt] for rt in range(4)]
        RS = SQ[0]
        s2 = L(f'''
        s_lshl_b32 {s(S_T2)}, {s(S_ODD)}, 10
        s_add_u32 {s(S_T2)}, {s(S_T2)}, {L_STAT}
        v_lshlrev_b32 {v(V_FIX)}, 5, {v(V_LANE)}
        v_xor_b32 {v(V_FIX)}, {s(S_T2)}, {v(V_FIX)}
        ds_read_b128 {v(SB0,4)}, {v(V_FIX)}
        ds_read_b128 {v(SB1,4)}, {v(V_FIX)} offset:16
        ''')
        def w_(): A.wait(lg=self.s2m)
        s3 = [w_] + L(f'''
        v_add_f32 {v(SB0)}, {v(SB0)}, {v(SB0+2)}
        v_add_f32 {v(SB0+1)}, {v(SB0+1)}, {v(SB0+3)}
        v_add_f32 {v(SB1)}, {v(SB1)}, {v(SB1+2)}
        v_add_f32 {v(SB1+1)}, {v(SB1+1)}, {v(SB1+3)}
        v_add_f32 {v(SB0)}, {v(SB0)}, {v(SB1)}
        v_add_f32 {v(SB0+1)}, {v(SB0+1)}, {v(SB1+1)}
        v_mul_f32 {v(SB0)}, {f2u(-1/512)}, {v(SB0)}
        v_mul_f32 {v(SB0+1)}, {f2u(1/512)}, {v(SB0+1)}
        v_fma_f32 {v(SB0+1)}, -{v(SB0)}, {v(SB0)}, {v(SB0+1)}
        v_max_f32 {v(SB0+1)}, 0, {v(SB0+1)}
        v_add_f32 {v(SB0+1)}, {f2u(1e-5)}, {v(SB0+1)}
        v_rcp_f32 {v(RS)}, {v(SB0+1)}
        v_sqrt_f32 {v(SB0+1)}, {v(SB0+1)}
        v_mov_b32 {v(RS+2)}, {v(RS)}
        v_cvt_pk_bf16_f32 {v(SB1)}, {v(SB0)}, {v(SB0+1)}
        v_lshlrev_b32 {v(SB0+2)}, 16, {v(SB1)}
        v_and_b32 {v(SB0+3)}, 0xffff0000, {v(SB1)}
        v_sub_f32 {v(SB0+2)}, {v(SB0)}, {v(SB0+2)}
        v_sub_f32 {v(SB0+3)}, {v(SB0+1)}, {v(SB0+3)}
        v_cvt_pk_bf16_f32 {v(SB1+1)}, {v(SB0+2)}, {v(SB0+3)}
        v_and_b32 {v(SB1+2)}, 0xffff, {v(SB1)}
        v_permlane32_swap_b32 {v(RS)}, {v(RS+2)}
        v_mov_b32 {v(RS+1)}, {v(RS)}
        v_mov_b32 {v(RS+3)}, {v(RS+2)}
        v_permlane16_swap_b32 {v(RS)}, {v(RS+1)}
        v_permlane16_swap_b32 {v(RS+2)}, {v(RS+3)}
        ''')
        for rt in range(4):
            s3 += [f'v_cmp_eq_u32 vcc, {rt}, {v(V_G)}', f'v_mov_b32 {v(BF[rt]+3)}, 0'] + [f'v_cndmask_b32 {v(BF[rt]+k)}, 0, {v(SB1+k)}, vcc' for k in range(3)]
        V_BIAS = SQ[1]
        def bld():
            for t in range(3): A(f'buffer_load_ushort {v(V_BIAS+t)}, {v(V_BT)}, {s(SRD_B1,4)}, {s(S_T1)} offen offset:{32*t}')
            A(f'buffer_load_ushort {v(V_BIAS+3)}, {v(V_BT)}, {s(SRD_B1,4)}, {s(S_T0)} offen offset:96')
            self.bm = A.nvm
        bias = L(f'''
        s_mul_i32 {s(S_T0)}, {s(S_Q)}, 448
        s_lshr_b32 {s(S_T1)}, {s(S_W)}, 1
        s_mul_i32 {s(S_T1)}, {s(S_T1)}, 224
        s_add_u32 {s(S_T0)}, {s(S_T0)}, {s(S_T1)}
        s_lshl_b32 {s(S_T1)}, {s(S_ODD)}, 7
        s_add_u32 {s(S_T1)}, {s(S_T1)}, {s(S_T0)}
        v_lshlrev_b32 {v(V_BT)}, 1, {v(V_L15)}
        ''') + [bld]
        csl = [lambda: A.wait(vm=self.bm)]
        for t in range(4):
            c = V_CS + 4 * t
            if SP and not t & 1: csl += [f'v_add_f32 {v(c+6)}, {v(c+2)}, {v(c+3)}', f'v_add_f32 {v(c+2)}, {v(c)}, {v(c+1)}']
            csl += L(f'''
            v_lshlrev_b32 {v(c+3)}, 16, {v(V_BIAS+t)}
            v_cvt_pk_bf16_f32 {v(c)}, {v(c+2)}, {v(c+3)}
            v_lshlrev_b32 {v(c+3)}, 16, {v(c)}
            v_sub_f32 {v(c+2)}, {v(c+2)}, {v(c+3)}
            v_mov_b32 {v(c+1)}, {v(c)}
            v_cvt_pk_bf16_f32 {v(c+2)}, {v(c+2)}, 0
            v_mov_b32 {v(c+3)}, 0
            ''') + [lambda t=t: csd.add(t)]
        csd = set()
        FK = o.get('fk', 22) / 10
        B3 = o.get('b3', 4); B4 = o.get('b4', 99)
        def mark2(): self.s2m = A.nlg
        q2 = []
        nrd = 1
        inv = {b: k for k, b in enumerate(self.w1order)}
        B3D = o.get('b3d', 0); b3d = []
        def bar3():
            A.wait(lg=self.stm)
            A('s_barrier')
            q2.extend(s2 + [mark2] + bias + s3); b3d.append(1)
        for b in range(16 - NL):
            self.blk = b
            if o.get('fine') == 1 and b: self.stamp(f'blk{b} t{self.tick} d{A.nvm}')
            ensure(inv[b])
            if b == B3:
                print('at B3: vq', len(vq), 'mq', len(mq), 'st', len(st), 'tick', self.tick)
                while vq or mq:
                    if mq: extra(2, [vq])
                    else: take(vq, 2)
                self.flush(st)
                if not B3D: bar3()
            hq = []
            while nrd < min(16 if b3d else 8, b + o.get('hpf', 99)) and len(slots) - sum(callable(x) for x in hq) >= 4 and len(hq) < o.get('hmax', 8):
                hq += hrd(nrd); nrd += 1
            if b == B4:
                assert nrd == 16 and not hq, (nrd, len(hq))
                A.wait(lg=A.nlg)
                A('s_barrier')
                self.b4 = True
            for rt in range(4):
                for t in range(4 if rt < 2 else 3):
                    k = A.wait(lg=max(fl_[b, rt], self.w1l[b]))
                    mm(t, rt, b, fr[b, rt]); self.tick += 1
                    if b == B3 and 4 * rt + t + 1 >= B3D and not b3d:
                        bar3()
                        while nrd < 16 and len(slots) - sum(callable(x) for x in hq) >= 4 and len(hq) < o.get('hmax', 8): hq += hrd(nrd); nrd += 1
                    qs = ([hq, None, vq] if o.get('tprio', 1) else [hq, vq, None]) + [[] if mq or (SP and vq) else st, q2, [] if cq or b < o.get('csb', 9) else csl]
                    fill(FK, qs, k * SW)
                    extra(FK, qs)
            self.flush(hq)
            for rt in range(4): slots.append(fr[b, rt])
        self.blk = 16 - NL
        print('middle left: dq', len(dq), 'tq', len(tq), 'cq', len(cq), 'q2', len(q2), 'cs', len(csl), 'tick', self.tick)
        for b in LB: ensure(inv[b])
        while cq: self.emit(cq.pop(0)[2])
        if not GO: self.flush(q2); self.flush(csl)
        self.stamp('mid done')
        if not GO: slots += [SB0, SB1, SQ[1]]; SB0 = None
        V_BIAS = V_CS
        print('free slots', len(slots))
        V_IB, V_FC = 8, 9
        ep = []
        RF = {}; rv = {}; sw = {}; T2 = {}; self.rst = 0; self.nst = 0
        RSP = o.get('rs') is not None; RSF = ('' if o.get('rs') == 'pl' else ' ' + o.get('rs')) if RSP else ' sc1'
        def epi(t, nt, rts=None):
            ln = []
            def st(c, off):
                if off >= 4096: A(f's_add_u32 {s(S_PS)}, {s(S_PQ)}, 4096')
                A(f'buffer_store_dwordx4 {v(c,4)}, {v(V_L16)}, {s(SRD_WS,4)}, {s(S_PS if off >= 4096 else S_PQ)} offen offset:{off&4095}{RSF}')
                self.rst = A.nvm; self.nst += 1
            for rt in rts or (2 * nt, 2 * nt + 1):
                c = acc[t, rt]; d = c if t == 0 else acc[0, rt] + 2 if t == 1 else acc[t, 2 * nt] + 2 * (rt & 1)
                ln += [f'v_mul_f32 {v(c+i)}, {v(c+i)}, |{v(c+i)}|' for i in range(4)]
                ln += [f'v_cvt_pk_bf16_f32 {v(d+i)}, {v(c+2*i)}, {v(c+2*i+1)}' for i in range(2)]
                ln += [f'v_pk_max_i16 {v(d+i)}, {v(d+i)}, 0' for i in range(2)]
                if t == 1:
                    ln.append(lambda rt=rt, c=c: (st(acc[0, rt], rt * 1024), RF.__setitem__((0, rt), ('v', acc[0, rt])), slots.append(c)))
                elif t and rt & 1:
                    ln.append(lambda c=c: (st(acc[t, 2 * nt], 4096 + nt * 1024 if t == 2 else 6144), slots.append(c), t == 3 and not RSP and slots.append(acc[3, 0])))
            return ln
        def reg(x, n=4, off=0): return (a if x[0] == 'a' else v)(x[1] + off, n)
        GLF = {'pl': ''}.get(o.get('glf'), ' ' + o.get('glf', 'sc1'))
        def rload(js):
            for ks in js:
                if ks < 4:
                    A(f's_xor_b32 {s(S_PS)}, {s(S_PQ)}, {ks<<16}')
                    for rt in range(4):
                        RF[ks, rt] = ('a', (224, 240, 0)[KO.index(ks) - min(KO.index(k) for k in (1, 2, 3))] + 4 * rt)
                        A(f'buffer_load_dwordx4 {reg(RF[ks,rt])}, {v(V_L16)}, {s(SRD_WS,4)}, {s(S_PS)} offen offset:{rt*1024}{GLF}')
                        rv[ks, rt] = A.nvm
                    continue
                if ks == 6: A(f's_lshl_b32 {s(S_T0)}, {s(S_ODD)}, 17\ns_xor_b32 {s(S_T0)}, {s(S_T0)}, {s(S_PQ)}')
                for k in range(2):
                    for e in range(2):
                        if ks == 4 and e == 0: RF[ks, 2 * k] = ('v', acc[2, 2 * k]); continue
                        RF[ks, 2 * k + e] = ('v', slots.pop(0))
                        if ks == 6: A(f's_xor_b32 {s(S_PS)}, {s(S_T0)}, {(e<<16)|(k<<14)|4096}')
                        elif ks == 5 or k == 0: A(f's_xor_b32 {s(S_PS)}, {s(S_PQ)}, {((2*(ks-4)+e)<<16)|4096}')
                        A(f'buffer_load_dwordx4 {reg(RF[ks,2*k+e])}, {v(V_L16)}, {s(SRD_WS,4)}, {s(S_PS)} offen offset:{2048 if ks == 6 else k*1024}{GLF}')
                    rv[ks, 2 * k] = rv[ks, 2 * k + 1] = A.nvm
                    sw[ks, k] = True
        def rswap(ks, k):
            if not sw.pop((ks, k), False): return
            A.wait(vm=rv[ks, 2 * k])
            for i in range(2): A(f'v_swap_b32 {reg(RF[ks,2*k],1,2+i)}, {reg(RF[ks,2*k+1],1,i)}')
        A.wait(lg=max(self.w1l.values()) if GO else max(max(fl_.values()), max(self.w1l.values())))
        EPK = o.get('epk', 22) / 10
        ml = []
        for t in [int(ch) for ch in str(o.get('tord', '0123')).zfill(4)]:
            for nt in range(2 if t < 3 else 1):
                ml += [('a', t, rt, b) for b in LB + [16] for rt in (2 * nt, 2 * nt + 1)]
        if GO:
            GO = [[int(ch) for ch in g] for g in str(GO).split('.')]
            ml = [('a', t, rt, b) for rt in range(4) for t in GO[rt] for b in (LB[::-1] if rt & 1 else LB) + [16]]
            if o.get('lo'):
                LO = [(int(x[0]), int(x[1])) for x in o['lo'].split('.')]
                GO = [[t for t, r in LO if r == rt] for rt in range(4)]
                ml = [('a', t, rt, b) for t, rt in LO for b in (LB[::-1] if rt & 1 else LB) + [16]]
            if o.get('cd'): ml.insert(2 * NL, ml.pop(NL))
        N3 = len(ml)
        NM = o.get('nm', 2)
        if o.get('art'): ml += [('b', j, 0, rt) for rt in range(4) for j in range(8)]
        else: ml += [('b', j, 0, rt) for j in range(8) for rt in range(4)]
        for ks in KO[:6-NM]: ml += [('b', j, ks, rt) for rt in range(4) for j in range(4)]
        for j in range(4): ml += [('b', j, ks, rt) for ks in KO[6-NM:] for rt in range(4)]
        for j in range(4, 8): ml += [('b', j, ks, rt) for ks in KO for rt in range(4)]
        if P4O:
            ml = ml[:N3 + 32]
            for mode, h, kl in P4O:
                if mode == 'k': ml += [('b', 4 * h + tj, ks, rt) for ks in kl for rt in range(4) for tj in range(4)]
                elif mode == 't': ml += [('b', 4 * h + tj, ks, rt) for tj in range(4) for ks in kl for rt in range(4)]
                else: ml += [('b', 4 * h + tj, ks, rt) for tj in range(4) for rt in range(4) for ks in kl]
        use = {}; lastb = {}
        for n, m in enumerate(ml):
            if m[0] == 'b': lastb[self.items.index((m[1] >> 2, m[2]))] = n
        pa = {}; due = []; cnt = {}
        def dual(fn):
            LS = A.newlabel('slow'); LJ = A.newlabel('dj')
            A(f's_cmp_eq_u32 {s(S_FAST)}, 0\ns_cbranch_scc1 {LS}')
            A.snap(); fn(''); A(f's_branch {LJ}'); A.label(LS); A.unsnap()
            fn(' sc1'); A.label(LJ)
        def pack(j):
            return [f'v_cvt_pk_bf16_f32 {v(pa[j,rt&2]+2*(rt&1)+i)}, {v(pa[j,rt]+2*i)}, {v(pa[j,rt]+2*i+1)}' for rt in range(4) for i in range(2)]
        self.nred = 0; self.gb = False
        def red(j):
            x = 3 - (j & 3)
            def wr():
                assert self.gb and (j < 4 or 0 in rdm)
                for k in range(2): A(f'ds_write_b128 {v(V_IB)}, {v(pa[j,2*k],4)} offset:{(x-1)*2048+(k^(x&1))*1024}')
                A(f'v_xor_b32 {v(V_IB)}, {(x^(x-1))<<14}, {v(V_IB)}')
                slots.extend(pa[j, rt] for rt in (1, 3, 0, 2)); self.nred += 1
            return pack(j) + [wr]
        rdm = {}
        AR = (32, 56)
        self.sps = False; SPS = (156, 10, 144 if o.get("z3l") else 148)
        def spsel(js):
            assert not cq and not mq and (not dq or o.get("z3l"))
            self.sps = True; p, q, z = SPS
            A(f'''
            v_mov_b32 {v(p+1)}, 0x3f80
            s_mov_b32 vcc_lo, 0x0f00000f
            s_mov_b32 vcc_hi, 0x0f00000f
            v_cndmask_b32 {v(p+1)}, {v(p+1)}, 1.0, {s(S_XO,2)}
            v_mov_b32 {v(V_IDX)}, 0x44444444
            v_mov_b32 {v(q)}, 0x4444eeee
            v_cndmask_b32 {v(p)}, 0, {v(p+1)}, vcc
            v_cndmask_b32 {v(q+1)}, 0, {v(p+1)}, vcc
            s_mov_b32 vcc_lo, 0xf00000f0
            s_mov_b32 vcc_hi, 0xf00000f0
            v_cndmask_b32 {v(V_IDX)}, {v(V_IDX)}, {v(q)}, {s(S_XO+2,2)}
            v_cndmask_b32 {v(p+2)}, 0, {v(p+1)}, vcc
            v_cndmask_b32 {v(q+3)}, 0, {v(p+1)}, vcc
            s_mov_b32 vcc_lo, 0x33333333
            s_mov_b32 vcc_hi, 0xcccccccc
            v_mov_b32 {v(p+1)}, 0
            v_mov_b32 {v(p+3)}, 0
            v_mov_b32 {v(q)}, 0
            v_mov_b32 {v(q+2)}, 0
            v_cndmask_b32 {v(z+1)}, 0, {v(p)}, vcc
            v_cndmask_b32 {v(z+3)}, 0, {v(p+2)}, vcc
            v_mov_b32 {v(z)}, 0
            v_mov_b32 {v(z+2)}, 0
            ''')
        def rbar(js):
            hf = js[0]
            while self.nred < 3 * (hf + 1): self.emit(ep.pop(0))
            if hf == 0:
                for k in range(14): ensure(16 + k)
            assert all(lastb[b] < self.n for b in (2 + hf, 3 + hf))
            A.wait(lg=A.nlg); A('s_barrier')
            for k in ((4, 5, 0, 2, 1, 3) if self.sps else range(6)):
                A(f'ds_read_b128 {a(AR[hf]+4*((0, 2, 1, 3, 4, 5)[k] if self.sps else k),4)}, {v(V_IB)} offset:{k*1024}'); rdm[hf, k] = A.nlg
            rdm[hf] = True
            if hf == 0: A(f'v_xor_b32 {v(V_IB)}, {65536|(3<<14)}, {v(V_IB)}')
        def radd(js):
            hf = js[0]; j = 4 * hf + 3
            assert hf or all(cnt[j, rt] == 7 for rt in range(4))
            for x in ((2, 1) if self.sps else range(3)):
                for rt in range(4):
                    k = A.wait(lg=rdm[hf, 2 * x + (rt >> 1)])
                    if self.sps and x == 1: A(f'v_smfmac_f32_16x16x64_bf16 {v(pa[j,rt],4)}, {v(SPS[rt&1],4)}, {a(AR[hf]+8*(rt>>1),8)}, {v(V_IDX)}'); k += 1 / SW
                    else: A(f'v_mfma_f32_16x16x32_bf16 {v(pa[j,rt],4)}, {v(V_SEL+2-2*(rt&1),4)}, {a(AR[hf]+8*x+4*(rt>>1),4)}, {v(pa[j,rt],4)}')
                    self.tick += 1
                    fill(EPK, [ep, None, misc if self.n >= MB else []], k * SW)
            if hf == 0: due.append((self.n + 1, send()))
        self.sent = None
        def send():
            c = [pa[3, rt] for rt in range(4)]
            q = []
            for k in range(3):
                q += [f'v_cvt_pk_bf16_f32 {v(c[k]+i)}, {v(c[k]+2*i)}, {v(c[k]+2*i+1)}' for i in range(2)]
                q.append(f'v_cvt_pk_bf16_f32 {v(c[k]+2)}, {v(c[3]+2*k)}, {v(c[3]+2*k+1)}' if k < 2 else f'v_mov_b32 {v(c[k]+2)}, {s(S_LT)}')
                q.append(f'v_mov_b32 {v(c[k]+3)}, {s(S_LT)}')
            def st():
                A(f's_xor_b32 {s(S_PS)}, {s(S_PQ)}, {(4<<16)|8192}')
                for k in range(3): A(f'buffer_store_dwordx4 {v(c[k],4)}, {v(V_L16)}, {s(SRD_WS,4)}, {s(S_PS)} offen offset:{k*1024} sc1')
                self.sent = A.nvm
                slots.extend(pa[3, rt] for rt in (3, 0, 1, 2))
                if o.get('fine') == 2: self.stamp(f'sent n{self.n-N3}')
            return q + [st]
        def flag(js):
            while self.nst < 7: self.emit(ep.pop(0))
            A(f's_and_b32 {s(S_T0)}, {s(S_Q)}, 3\ns_lshl1_add_u32 {s(S_T0)}, {s(S_T0)}, {s(S_ODD)}\ns_lshl3_add_u32 {s(S_T0)}, {s(S_T0)}, {s(S_FLA)}')
            A.wait(vm=self.rst)
            A('s_mov_b64 exec, 1')
            def fl(sc):
                if sc and RSP:
                    assert self.n <= N3 + 32 and (4, 0) not in RF
                    A.snap(); on = A.on; A.on = False
                    A('s_mov_b64 exec, -1')
                    for rt in range(4): A(f'buffer_store_dwordx4 {v(acc[0,rt],4)}, {v(V_L16)}, {s(SRD_WS,4)}, {s(S_PQ)} offen offset:{rt*1024} sc1')
                    hi23()
                    A('s_waitcnt vmcnt(0)\ns_mov_b64 exec, 1')
                    A.on = on; A.unsnap()
                A(f'buffer_store_dwordx2 {v(V_TAG,2)}, off, {s(SRD_WS,4)}, {s(S_T0)}{sc}')
            dual(fl)
            A('s_mov_b64 exec, -1')
        def hi23():
            A(f's_add_u32 {s(S_PS)}, {s(S_PQ)}, 4096')
            for k, c in enumerate((acc[2, 0], acc[2, 2], acc[3, 0])): A(f'buffer_store_dwordx4 {v(c,4)}, {v(V_L16)}, {s(SRD_WS,4)}, {s(S_PS)} offen offset:{k*1024} sc1')
        def clean(js):
            if 0 in js:
                assert sw.get((4, 0), True) and sw.get((4, 1), True) and ((4, 0) not in RF or ((4, 0) in sw and (4, 1) in sw))
                hi23(); slots.append(acc[3, 0])
            if 1 in js:
                A(f's_xor_b32 {s(S_PS)}, {s(S_PQ)}, {1<<16}')
                A.wait(vm=rv[1, 3])
                for rt in range(4): A(f'buffer_store_dwordx4 {reg(RF[1,rt])}, {v(V_L16)}, {s(SRD_WS,4)}, {s(S_PS)} offen offset:{rt*1024} sc1')
            if 2 in js: slots.append(acc[3, 0])
            if 3 in js:
                LS = A.newlabel('nwb')
                A(f's_lshr_b32 {s(S_T0)}, s2, 3\ns_lshl2_add_u32 {s(S_T0)}, {s(S_T0)}, {s(S_W)}\ns_cmp_lg_u32 {s(S_T0)}, {o.get("wbw", 0)}\ns_cbranch_scc1 {LS}')
                LJ = A.newlabel('wj')
                A.snap(); A('buffer_wbl2 sc1'); A(f's_branch {LJ}'); A.label(LS); A.unsnap()
                A(f'buffer_load_dword {v(V_PL)}, off, {s(SRD_WS,4)}, {s(S_FLA)}'); A.label(LJ)
        pm = {}; V_PL = V_ONES
        def pissue(js):
            A(f'buffer_load_dwordx2 {v(V_PL,2)}, {v(V_FC)}, {s(SRD_WS,4)}, {s(S_FLA)} offen sc1')
            pm[js] = A.nvm
        def pcheck(js):
            if js not in pm: pissue(js)
            Lp = A.newlabel('poll'); D = A.newlabel('polld')
            A.wait(vm=pm[js])
            A.on = False
            A(f'v_cmp_ne_u64 vcc, {v(V_PL,2)}, {v(V_TAG,2)}\ns_mov_b32 {s(S_CNT)}, 0x20000\ns_cbranch_vccz {D}')
            A.snap()
            A.label(Lp)
            A(f'''
            buffer_load_dwordx2 {v(V_PL,2)}, {v(V_FC)}, {s(SRD_WS,4)}, {s(S_FLA)} offen sc1
            s_sub_u32 {s(S_CNT)}, {s(S_CNT)}, 1
            s_cbranch_scc1 {D}
            s_waitcnt vmcnt(0)
            v_cmp_ne_u64 vcc, {v(V_PL,2)}, {v(V_TAG,2)}
            s_cbranch_vccnz {Lp}
            ''')
            A.label(D)
            A.unsnap()
            A.on = True
        PD = []
        PR = []; self.oolc = []
        def pload(js=None):
            if js and js[0]:
                PR.append([slots.pop(0) for _ in range(3)])
                for k in range(3): A(f'buffer_load_dwordx4 {v(PR[-1][k],4)}, {v(V_L16)}, {s(SRD_WS,4)}, {s(S_PS)} offen offset:{k*1024} sc1')
                return
            if not PD and self.sps:
                g = [x for x in slots if x + 4 in slots][0]; slots.remove(g); slots.remove(g + 4); PD.extend([g, g + 4, slots.pop(0)])
            if not PD: PD.extend(slots.pop(0) for _ in range(3))
            A(f's_add_u32 {s(S_PS)}, {s(S_PQ)}, 8192')
            for k in range(3): A(f'buffer_load_dwordx4 {v(PD[k],4)}, {v(V_L16)}, {s(SRD_WS,4)}, {s(S_PS)} offen offset:{k*1024} sc1')
            self.plm = A.nvm
        def kcheck(js):
            assert len(misc) in (0, self.nmisc)
            Lc = A.newlabel('chk'); D = A.newlabel('got')
            t = 14 if o.get("z3l") else V_PL
            if PR:
                def ck(R): return [f'v_xor_b32 {v(t)}, {s(S_LT)}, {v(R[0]+3)}'] + [f'v_bitop3_b32 {v(t)}, {v(t)}, {v(R[k]+3)}, {s(S_LT)} bitop3:0xf6' for k in (1, 2)] + [f'v_cmp_ne_u32 vcc, 0, {v(t)}']
                A.wait(vm=self.plm); assert A.nvm - self.plm == 3 * len(PR)
                A.on = False
                for x in ck(PD): A(x)
                PR.append([slots.pop(0) for _ in range(3)]); n = len(PR)
                q = ['L_rt:', f's_movk_i32 {s(S_CNT)}, 0x2000', 'L_rt0:']
                for i in range(n):
                    q += [f'buffer_load_dwordx4 {v(PR[i-1][k],4)}, {v(V_L16)}, {s(SRD_WS,4)}, {s(S_PS)} offen offset:{k*1024} sc1' for k in range(3)]
                    q += [f's_waitcnt vmcnt({3*(n-1)})'] + ck(PR[i]) + [f's_cbranch_vccz L_rc{i}']
                q += [f's_sub_u32 {s(S_CNT)}, {s(S_CNT)}, 1', 's_cbranch_scc0 L_rt0']
                for i in range(n):
                    q += [f'L_rc{i}:'] + [f'v_mov_b64 {v(PD[k]+j,2)}, {v(PR[i][k]+j,2)}' for k in range(3) for j in (0, 2)] + ['s_nop 1', f's_branch {D}']
                q = [x if x.endswith(':') else '    ' + x for x in q]
                if o.get('rin'):
                    A(f's_cbranch_vccz {D}')
                    for x in q[:-1]: A.raw(x)
                else:
                    A('s_cbranch_vccnz L_rt'); self.oolc = q
                A.label(D)
                A.on = True
                return
            A(f's_movk_i32 {s(S_CNT)}, 0x4000')
            A.wait(vm=self.plm)
            A.on = False
            A.label(Lc)
            A(f'v_xor_b32 {v(t)}, {s(S_LT)}, {v(PD[0]+3)}')
            for k in (1, 2): A(f'v_bitop3_b32 {v(t)}, {v(t)}, {v(PD[k]+3)}, {s(S_LT)} bitop3:0xf6')
            A(f'v_cmp_ne_u32 vcc, 0, {v(t)}\ns_cbranch_vccz {D}')
            A.snap()
            pload()
            A(f's_sub_u32 {s(S_CNT)}, {s(S_CNT)}, 1\ns_waitcnt vmcnt(0)\ns_cbranch_scc0 {Lc}')
            A.label(D)
            A.unsnap()
            A.on = True
        Q3 = []
        def selq(js=None):
            if Q3 or self.sps: return
            Q3.extend([slots.pop(0), slots.pop(0)])
            for k in range(2):
                for i in range(4): A(f'v_mov_b32 {v(Q3[k]+i)}, {v(V_SEL+2+k) if i == 2 else 0}')
        def zadd(js):
            selq()
            if self.sps:
                for rt in range(3): A(f'v_mfma_f32_16x16x32_bf16 {v(pa[7,rt],4)}, {v(V_SEL+2,4)}, {v(PD[rt],4)}, {v(pa[7,rt],4)}')
                return A(f'v_smfmac_f32_16x16x64_bf16 {v(pa[7,3],4)}, {v(SPS[2],4)}, {v(PD[0],8)}, {v(V_IDX)} abid:1')
            for rt, sel, k in ((3, Q3[0], 0), (0, V_SEL + 2, 0), (1, V_SEL + 2, 1), (2, V_SEL + 2, 2), (3, Q3[1], 1)):
                A(f'v_mfma_f32_16x16x32_bf16 {v(pa[7,rt],4)}, {v(sel,4)}, {v(PD[k],4)}, {v(pa[7,rt],4)}')
        def num(js): return int(''.join(map(str, js)))
        def dforce(js):
            k = 16 + num(js)
            while k not in dt:
                if d_ok(True): d_pop()
                else:
                    assert t_ok(True); t_pop()
        def gbar(js): A('s_barrier'); self.gb = True
        def pwait(js):
            while self.sent is None: self.emit(ep.pop(0))
            A.wait(vm=self.sent)
        V_OO = V_CS + 4
        bs = {}
        def balloc():
            for rt in range(4): bs[rt] = slots.pop(0)
            q = [f'ds_read_u16_d16_hi {v(bs[rt]+r)}, {v(V_BIAS+r)} offset:{rt*1024}' for rt in range(2) for r in range(4)]
            q += [f'v_xor_b32 {v(V_BIAS+r)}, 2048, {v(V_BIAS+r)}' for r in range(4)]
            q += [f'ds_read_u16_d16_hi {v(bs[2+rt]+r)}, {v(V_BIAS+r)} offset:{rt*1024}' for rt in range(2) for r in range(4)]
            def mk(): self.bl = A.nlg
            q += [mk, lambda: A.wait(vm=self.b2m)]
            q += [f'v_lshlrev_b32 {v(V_FIX)}, 16, {v(V_BT)}', f'v_and_b32 {v(V_FIX+1)}, 0xffff0000, {v(V_BT)}',
                  f'v_lshlrev_b32 {v(V_FIX+2)}, 16, {v(V_TD)}', f'v_and_b32 {v(V_FIX+3)}, 0xffff0000, {v(V_TD)}', lambda: A.wait(lg=self.bl)]
            if o.get('bz', 1): q += [f'v_and_b32 {v(bs[rt]+r)}, 0xffff0000, {v(bs[rt]+r)}' for rt in range(4) for r in range(4)]
            q += [f'v_add_f32 {v(bs[rt]+r)}, {v(bs[rt]+r)}, {v(V_FIX+r)}' for rt in range(4) for r in range(4)]
            misc.extend(q)
        def spread(d, e):
            return L(f'''
            v_and_b32 v7, 0xc0, {v(e)}
            v_lshl_add_u32 {v(d)}, v7, 8, {v(V_BIAS+3)}
            v_and_b32 v7, 0x20, {v(e)}
            v_lshl_add_u32 {v(d)}, v7, 7, {v(d)}
            v_and_b32 v7, 0x18, {v(e)}
            v_lshl_add_u32 {v(d)}, v7, 5, {v(d)}
            v_and_b32 v7, 7, {v(e)}
            v_lshl_add_u32 {v(d)}, v7, 1, {v(d)}
            ''')
        def b2ld():
            A(f'buffer_load_dwordx2 {v(V_BT,2)}, {v(V_FIX)}, {s(SRD_B2,4)}, 0 offen'); self.b2m = A.nvm
        mis0 = L(f'''
        s_lshl2_add_u32 {s(S_T1)}, {s(S_Q)}, {s(S_W)}
        s_lshl_b32 {s(S_T1)}, {s(S_T1)}, 4
        v_lshl_add_u32 v6, {v(V_G)}, 2, {s(S_T1)}
        v_lshlrev_b32 {v(V_FIX)}, 1, v6
        ''') + [b2ld] + L(f'''
        v_and_b32 {v(V_FC)}, 7, {v(V_LANE)}
        v_lshlrev_b32 {v(V_FC)}, 3, {v(V_FC)}
        s_andn2_b32 {s(S_T2)}, 4, {s(S_Q)}
        s_xor_b32 {s(S_T3)}, {s(S_W)}, 3
        s_lshl3_add_u32 {s(S_T2)}, {s(S_T3)}, {s(S_T2)}
        s_lshl_b32 {s(S_T2)}, {s(S_T2)}, 11
        v_add_u32 {v(V_IB)}, {s(S_T2)}, {v(V_L16)}
        s_and_b32 {s(S_T3)}, {s(S_Q)}, 4
        s_add_u32 {s(S_T2)}, {s(S_T3)}, {s(S_ODD)}
        s_lshl_b32 {s(S_T2)}, {s(S_T2)}, 11
        v_lshl_add_u32 {v(V_BIAS+3)}, {v(V_L15)}, 4, {s(S_T2)}
        s_cmp_ge_u32 {s(S_Q)}, 4 @@ s_cselect_b64 vcc, -1, 0
        v_sub_u32 {v(V_FIX+1)}, 512, v6
        v_cndmask_b32 {v(V_FIX+1)}, v6, {v(V_FIX+1)}, vcc
        v_subrev_u32 {v(V_FIX+2)}, {s(S_T3)}, {v(V_FIX+1)}
        ''') + spread(V_BIAS, V_FIX + 1) + spread(V_BIAS + 2, V_FIX + 2) + L(f'''
        s_add_u32 {s(S_T2)}, {s(S_T3)}, 2
        v_add_u32 {v(V_BIAS+1)}, {s(S_T2)}, {v(V_BIAS+2)}
        v_xor_b32 {v(V_BIAS+3)}, 4, {v(V_BIAS+1)}
        v_add_u32 {v(V_BIAS+2)}, 4, {v(V_BIAS+2)}
        v_lshrrev_b32 v6, 5, {v(V_LANE)}
        v_lshlrev_b32 v6, 4, v6
        s_lshl_b32 {s(S_T1)}, {s(S_T1)}, 1
        v_add_u32 v6, {s(S_T1)}, v6
        v_sub_u32 v7, 2048, {v(V_TT)}
        v_cmp_eq_u32 vcc, 0, {v(V_TT)}
        v_mov_b32 {v(V_OO)}, 1024
        v_cndmask_b32 v7, v7, {v(V_OO)}, vcc
        s_cmp_eq_u32 {s(S_ODD)}, 1 @@ s_cselect_b64 vcc, -1, 0
        v_cndmask_b32 {v(V_OO)}, {v(V_TT)}, v7, vcc
        v_cndmask_b32 {v(V_OO+1)}, v7, {v(V_TT)}, vcc
        v_lshl_add_u32 {v(V_OO)}, {v(V_OO)}, 10, v6
        v_lshl_add_u32 {v(V_OO+1)}, {v(V_OO+1)}, 10, v6
        ''')
        misc = [balloc]
        ev = {}
        tail = []
        EV = {'f': flag, 'i': pissue, 'c': pcheck, 'l': rload, 'd': dforce, 't': lambda js: ensure(16 + num(js)), 'b': gbar,
              'm': lambda js: self.flush(misc), 'e': lambda js: (self.flush(ep), self.flush(m0)), 'q': selq, 's': spsel, 'r': rbar, 'a': radd, 'v': pload, 'k': kcheck, 'z': zadd, 'w': pwait, 'x': clean, 'y': lambda js: setattr(self, 'lat', num(js)), 'p': lambda js: print('at', self.n - N3, 'dq', len(dq), 'tq', len(tq), 'ep', len(ep), 'nst', self.nst, 'slots', len(slots), 'nrd', nrd), 'h': lambda js: setattr(self, 'hold', bool(js[0]))}
        for e in o.get('ev', 'e0@32.F0@32.b0@32.C0@32.L123456@32.r0@134.a0@142.q0@190.v0@215.R1.a1.K0.z0').split('.'):
            js = tuple(int(ch) for ch in e.split('@')[0][1:])
            fn = EV[e[0].lower()]
            if '@' in e: ev.setdefault(N3 + int(e.split('@')[1]), []).append((e, fn, js))
            else: tail.append((e, fn, js))
        MB = N3 + o.get('misc0', 150); self.nmisc = len(misc)
        m0 = []; hq = []
        it = {x: k for k, x in enumerate(self.items)}
        for n, m in enumerate(ml):
            self.n = n
            if n == N3:
                self.stamp('p3 mfma done')
                print('last left: ep', len(ep), 'dq', len(dq), 'tq', len(tq), 'tick', self.tick)
                self.blk = 16
                if not GO: slots.extend(fr[b, rt] for b in LB for rt in range(4)); slots.extend(BF)
                slots.extend([V_CS + 8, V_CS + 12])
            if n == N3 + 2: m0 = mis0
            for e, fn, js in ev.get(n, []):
                fn(js)
                if e[0].isupper(): self.stamp(e.split('@')[0] + f' d{len(dq)} t{len(tq)}')
            k = 0
            if m[0] == 'a':
                _, t, rt, b = m
                if GO:
                    while nrd < 16 and RD[4 * nrd][1] <= rt + 1 and len(slots) - sum(callable(x) for x in hq) >= 4: hq += hrd(nrd); nrd += 1
                    if b < 16:
                        while (b, rt) not in fr: self.emit(hq.pop(0))
                        k = A.wait(lg=fl_[b, rt])
                    elif t not in csd:
                        print('correction', t, 'q2', len(q2), 'cs', len(csl))
                        self.flush(q2)
                        while t not in csd: self.emit(csl.pop(0))
                    if t == GO[rt][-1]: slots.append(fr[b, rt] if b < 16 else BF[rt])
                    if b == 16: due.append((n + 2, epi(t, rt >> 1, [rt])))
                if b < 16: mm(t, rt, b, fr[b, rt])
                else: A(f'v_mfma_f32_16x16x32_bf16 {v(acc[t,rt],4)}, {v(V_CS+4*t,4)}, {v(BF[rt],4)}, {v(acc[t,rt],4)}')
                if b == 16 and rt & 1 and not GO: due.append((n + 2, epi(t, rt >> 1)))
            else:
                _, j, ks, rt = m
                b = it[j >> 2, ks]
                ensure(16 + b)
                while (ks, rt) not in RF: self.emit(ep.pop(0))
                rswap(ks, rt >> 1)
                for m2 in ml[n + 1:n + 1 + o.get('swa', 0)]: rswap(m2[2], m2[3] >> 1)
                k = A.wait(vm=rv.get((ks, rt)), lg=self.trl[16 + b])
                if ks == 0: pa[j, rt] = slots.pop(0)
                c = v(pa[j, rt], 4)
                A(f'v_mfma_f32_16x16x32_bf16 {c}, {a(16*b+4*(j&3),4)}, {reg(RF[ks,rt])}, {c if ks else "0"}')
                cnt[j, rt] = cnt.get((j, rt), 0) + 1
                use[ks, rt] = use.get((ks, rt), 0) + 1
                if use[ks, rt] == 8 and RF[ks, rt][0] == 'v': slots.append(RF[ks, rt][1])
                if rt == 3 and cnt[j, rt] == 7 and j & 3 < 3: due.append((n + 2, red(j)))
                if o.get('fine') == 2 and n - N3 in (32, 48, 64, 80, 96, 127, 176): self.stamp(f'n{n-N3} d{len(dq)} t{len(tq)}')
            self.tick += 1
            while due and due[0][0] <= n: ep += due.pop(0)[1]
            fill(EPK if n >= N3 else o.get('epk3', 22) / 10, [q2, ep, csl, hq, None, m0, misc if n >= MB else []], k * SW)
            if SB0 is not None and not q2 and not csl: slots.extend([SB0, SB1, SQ[1]]); SB0 = None
        print('dt', {k: x for k, x in dt.items() if x > -999}); print('tt', {k: x for k, x in tt_.items() if x > -999})
        print('end left: ep', len(ep), 'misc', len(misc), 'dq', len(dq), 'tq', len(tq), 'slots', len(slots))
        self.flush(ep)
        if not any(e[0] in 'mM' for e, _, _ in tail): self.flush(misc)
        self.stamp('p4 mfma done')
        for e, fn, js in tail:
            fn(js)
            if e[0].isupper(): self.stamp(e)
        if o.get('tl2'):
            fm = [f'v_pk_fma_f32 {v(pa[7,rt]+k,2)}, {v(pa[7,rt]+k,2)}, {v(RS+(rt&2),2)}, {v(bs[rt]+k,2)} op_sel:[0,{rt&1},0] op_sel_hi:[1,{rt&1},1]' for rt in range(4) for k in (0, 2)]
            pk = pack(7)
            pl = [f'v_permlane16_swap_b32 {v(pa[7,2*k]+i)}, {v(pa[7,2*k]+2+i)}' for k in range(2) for i in range(2)]
            so = [f'buffer_store_dwordx4 {v(pa[7,2*k],4)}, {v(V_OO+k)}, {s(SRD_OUT,4)}, 0 offen{self.outf}' for k in range(2)]
            if o.get('m2'):
                f0 = [f'v_fma_f32 {v(pa[7,0]+k)}, {v(pa[7,0]+k)}, {v(RS)}, {v(bs[0]+k)}' for k in range(4)]
                for x in f0 + pk[:2] + fm[2:4] + pk[2:4] + fm[4:6] + pl[:2] + pk[4:6] + fm[6:] + pk[6:] + [so[0]] + pl[2:] + [so[1]]: A(x)
                return
            for x in fm[:4] + pk[:4] + fm[4:6] + pl[:2] + pk[4:6] + fm[6:] + pk[6:] + [so[0]] + pl[2:] + [so[1]]: A(x)
            return
        for rt in range(4):
            for k in range(0, 4, 2):
                A(f'v_pk_fma_f32 {v(pa[7,rt]+k,2)}, {v(pa[7,rt]+k,2)}, {v(RS+(rt&2),2)}, {v(bs[rt]+k,2)} op_sel:[0,{rt&1},0] op_sel_hi:[1,{rt&1},1]')
        self.flush(pack(7))
        for k in range(2):
            c = pa[7, 2 * k]
            A(f'v_permlane16_swap_b32 {v(c)}, {v(c+2)}\nv_permlane16_swap_b32 {v(c+1)}, {v(c+3)}')
            A(f'buffer_store_dwordx4 {v(c,4)}, {v(V_OO+k)}, {s(SRD_OUT,4)}, 0 offen{self.outf}')

    def probe_end(self):
        A = self.A
        a_, b_ = self.opt['probe'].split('-')
        if b_ == 'end':
            A('s_waitcnt vmcnt(0)'); self.stamp('end')
        A(f'''
        s_waitcnt lgkmcnt(0)
        s_sub_u32 {s(S_T0)}, {s(S_TS+4)}, {s(S_TS if a_ == 'start' else S_TS+2)}
        s_lshr_b32 {s(S_T0)}, {s(S_T0)}, {4 if self.opt.get('pcyc') else 0}
        s_min_u32 {s(S_T0)}, {s(S_T0)}, 4000
        s_lshl_b32 {s(S_T0)}, {s(S_T0)}, 2
        s_add_u32 {s(S_T0)}, {s(S_T0)}, 4000
        s_add_u32 {s(S_T0)}, {s(S_T0)}, {s(S_TS)}
        L_pspin:
        s_memrealtime {s(S_TS+6,2)}
        s_waitcnt lgkmcnt(0)
        s_sub_u32 {s(S_T1)}, {s(S_TS+6)}, {s(S_T0)}
        s_cmp_lt_i32 {s(S_T1)}, 0
        s_cbranch_scc1 L_pspin
        ''')

    def dump_ts(self):
        if self.opt.get('probe'): return self.probe_end()
        if not self.diag: return
        A = self.A
        A('s_waitcnt vmcnt(0)')
        self.stamp('end')
        A(f'''
        s_lshl_b32 {s(S_T0)}, s2, 2
        s_add_u32 {s(S_T0)}, {s(S_T0)}, {s(S_W)}
        s_lshl_b32 {s(S_T0)}, {s(S_T0)}, 7
        s_add_u32 {s(S_T0)}, {s(S_T0)}, {WS_TS}
        s_getreg_b32 {s(S_T1)}, hwreg(HW_REG_XCC_ID)
        s_waitcnt lgkmcnt(0)
        s_mov_b64 exec, 1
        ''')
        for i in range(20): A(f'v_mov_b32 {v(16+i)}, {s(S_TS+2*i) if i < len(self.names) else 0}')
        A(f'v_mov_b32 v40, {s(S_T1)}')
        A(f'v_mov_b32 v41, {s(S_FAST)}')
        for i in range(5):
            A(f'buffer_store_dwordx4 {v(16+4*i,4)}, off, {s(SRD_WS,4)}, {s(S_T0)} offset:{16*i}')
        A(f'buffer_store_dwordx2 v[40:41], off, {s(SRD_WS,4)}, {s(S_T0)} offset:80')

    def build(self):
        A = self.A
        self.p1()
        self.window()
        self.p23()
        A.on = False
        self.dump_ts()
        if self.opt.get('sched', 1):
            import sched
            for k in sched.OPT: sched.OPT[k] = self.opt.get(k, sched.OPT[k])
            A = sched.run(A.prog, self.opt.get('win', 20))
            r = A.report
            print('model:', ' | '.join(f'{r[i][0]} {r[i][1]-r[i-1][1]}' for i in range(1, len(r))))
            self.A = A
        hdr = f'''; FNet (2D DFT, factored) + LayerNorms + squared-ReLU FFN, one persistent launch.
; @launch grid=(256,1,1) block=(256,1,1) lds=163840
''' + (f'; names: {",".join(self.names)}\n' if self.diag else '') + f'''.amdgcn_target "amdgcn-amd-amdhsa--gfx950"
.text
.globl {KNAME}
{self.align()}.p2align 8
.type {KNAME},@function
{KNAME}:
'''
        import ool
        body, tail = ool.apply(A.text().rstrip('\n').split('\n'), str(self.opt.get('ool', '')))
        tail += self.oolc
        ftr = 'L_end:\n    s_endpgm\n' + ''.join(l + '\n' for l in tail) + ('L_fin:\n    s_endpgm\n' if tail else 'L_fin = L_end\n') + f'''.section .rodata,"a"
.p2align 6
.amdhsa_kernel {KNAME}
  .amdhsa_next_free_vgpr 512
  .amdhsa_next_free_sgpr 102
  .amdhsa_accum_offset 256
  .amdhsa_group_segment_fixed_size 0
  .amdhsa_kernarg_size 104
  .amdhsa_user_sgpr_count 2
  .amdhsa_user_sgpr_kernarg_segment_ptr 1
  .amdhsa_system_sgpr_workgroup_id_x 1
.end_amdhsa_kernel
'''
        import pads
        return hdr + '\n'.join(pads.apply(hdr, body, ftr, self.opt, S_W)) + '\n' + ftr

if __name__ == '__main__':
    out = sys.argv[1]
    opt = {}
    for x in sys.argv[2:]:
        if '=' in x:
            k, val = x.split('='); opt[k] = int(val) if val.lstrip('-').isdigit() else val.replace('_', ' ')
    HZ[0] = opt.get('hz', 0)
    g = Gen(diag='diag' in sys.argv[2:], opt=opt)
    t = g.build()
    open(out, 'w').write(t)
    print('nops inserted', g.A.nops, 'stamps', len(g.names))
```
